```python
import torch

def _softmax(x, axis=-1):
    return torch.softmax(x, dim=axis)

def _gelu(x):
    return torch.nn.functional.gelu(x, approximate='tanh')

def _silu(x):
    return torch.nn.functional.silu(x)

def _sigmoid(x):
    return torch.sigmoid(x)

def _layernorm(x, axis=-1, eps=1e-05):
    m = x.mean(dim=axis, keepdim=True)
    v = x.var(dim=axis, keepdim=True, unbiased=False)
    return (x - m) / torch.sqrt(v + eps)

def _scatter_add(tgt, idx, src, axis=0):
    return tgt.clone().index_add_(axis, idx, src)

def _segment_sum(src, seg, n):
    out = torch.zeros((n,) + src.shape[1:], dtype=src.dtype)
    return out.index_add_(0, seg, src)

def _pad(x, pw):
    flat = tuple((v for pair in reversed(pw) for v in pair))
    return torch.nn.functional.pad(x, flat)
kernel_name = 'adaLN_cond__softmax_full_mha__dense_activation_silu__prompt'

def setup_inputs():

    _w = lambda a: (lambda t: t.to(torch.bfloat16) if t.is_floating_point() else t)(torch.as_tensor(a))

    def _A_setup():
        B, S, D = (1, 2048, 512)
        return {'x': _w((lambda *s: torch.randn(*s, dtype=torch.bfloat16) * 0.05)(B, S, D)), 'wqkv': _w((lambda *s: torch.randn(*s, dtype=torch.bfloat16) * 0.05)(D, 3 * D)), 'wo': _w((lambda *s: torch.randn(*s, dtype=torch.bfloat16) * 0.05)(D, D))}
    _A_in = _A_setup()

    def _B_setup():
        B, S, D, F = (1, 2048, 512, 1792)
        return {'x': _w((lambda *s: torch.randn(*s, dtype=torch.bfloat16) * 0.05)(B, S, D)), 'w1': _w((lambda *s: torch.randn(*s, dtype=torch.bfloat16) * 3.2)(D, F) * D ** (-0.5)), 'w2': _w((lambda *s: torch.randn(*s, dtype=torch.bfloat16) * 0.2)(F, D) * F ** (-0.5))}
    _B_in = _B_setup()
    return {'A_x': _A_in['x'], 'A_wqkv': _A_in['wqkv'], 'A_wo': _A_in['wo'], 'B_x': _B_in['x'], 'B_w1': _B_in['w1'], 'B_w2': _B_in['w2'], 'c': _w((lambda *s: torch.randn(*s, dtype=torch.bfloat16) * 0.1)(1, 512) * 8.0), 'w_mod': _w((lambda *s: torch.randn(*s, dtype=torch.bfloat16) * 0.1)(512, 6 * 512) * 512 ** (-0.5) * 8.0)}

def reference(A_x, A_wqkv, A_wo, B_x, B_w1, B_w2, c, w_mod):

    def _A_ref(x, wqkv, wo):
        B, S, D = x.shape
        H = 32
        Dh = D // H
        qkv = (lambda x, *d: x.permute(*d))((x @ wqkv).reshape(B, S, 3, H, Dh), 2, 0, 3, 1, 4)
        q, k, v = (qkv[0], qkv[1], qkv[2])
        scale = Dh ** (-0.5)
        scores = torch.einsum('bhqd,bhkd->bhqk', q, k) * scale
        p = _softmax(scores, axis=-1)
        o = torch.einsum('bhqk,bhkd->bhqd', p, v)
        return (lambda x, *d: x.permute(*d))(o, 0, 2, 1, 3).reshape(B, S, D) @ wo

    def _B_ref(x, w1, w2):
        h = torch.einsum('bsd,df->bsf', x, w1)
        h = _silu(h)
        out = torch.einsum('bsf,fd->bsd', h, w2)
        return out
    x = A_x
    mod = (_silu(c) @ w_mod).reshape(c.shape[0], 6, 1, -1)
    sa, ca, ga, sb, cb, gb = (mod[:, 0].clone(), mod[:, 1].clone(), mod[:, 2].clone(), mod[:, 3].clone(), mod[:, 4].clone(), mod[:, 5].clone())
    h = _layernorm(x, axis=-1) * (1 + ca) + sa
    x = x + ga * _A_ref(h, A_wqkv, A_wo)
    h = _layernorm(x, axis=-1) * (1 + cb) + sb
    x = x + gb * _B_ref(h, B_w1, B_w2)
    return x
```

```python
import re

TRANS = ("v_exp_f32", "v_log_f32", "v_rcp_f32", "v_rsq_f32", "v_sqrt_f32", "v_sin_f32", "v_cos_f32",
         "v_exp_f16", "v_rcp_f16", "v_rcp_iflag_f32")

def _regs(tok):
    tok = tok.strip()
    tok = tok.lstrip('-')
    m = re.match(r"^(?:abs\()?\|?([vsa])(\d+)\|?\)?$", tok)
    if m:
        return [(m.group(1), int(m.group(2)))]
    m = re.match(r"^([vsa])\[(\d+):(\d+)\]$", tok)
    if m:
        return [(m.group(1), i) for i in range(int(m.group(2)), int(m.group(3)) + 1)]
    if tok in ("vcc", "exec"):
        return [(tok, 0)]
    if tok in ("vcc_lo", "vcc_hi"):
        return [("vcc", 0)]
    if tok in ("exec_lo", "exec_hi"):
        return [("exec", 0)]
    if tok == "m0":
        return [("m0", 0)]
    return []

class Ins:
    def __init__(self, text):
        self.text = text
        t = text.split(";")[0].strip()
        self.label = t.endswith(":")
        self.directive = t.startswith(".")
        self.op = ""
        self.dst, self.src = [], []
        self.kind = "other"
        if self.label or self.directive or not t:
            self.kind = "meta"
            return
        parts = t.split(None, 1)
        self.op = op = parts[0]
        rest = parts[1] if len(parts) > 1 else ""
        ops, cur, d = [], "", 0
        for ch in rest:
            if ch == "[": d += 1
            if ch == "]": d -= 1
            if ch == "," and d == 0:
                ops.append(cur.strip()); cur = ""
            else:
                cur += ch
        if cur.strip(): ops.append(cur.strip())
        mods = ""
        if ops:
            last = ops[-1].split(None, 1)
            if len(last) > 1 and not ops[-1].startswith("hwreg"):
                ops[-1] = last[0]; mods = last[1]
        self.mods = mods
        self.ops = ops
        R = [_regs(o) for o in ops]
        flat = lambda L: [x for l in L for x in l]
        base = re.sub(r"_(e32|e64|dpp|sdwa)$", "", op)
        self.base = base
        self.dpp = ("row_" in mods or "quad_perm" in mods or "wave_" in mods or op.endswith("_dpp"))
        if op.startswith("v_mfma") or op.startswith("v_smfmac"):
            self.kind = "mfma"
            self.dst = R[0]; self.srcA = R[1]; self.srcB = R[2]
            if op.startswith("v_smfmac"):
                self.srcC = R[0]; self.srcAB = R[1] + R[2] + R[3]
            else:
                self.srcC = R[3]; self.srcAB = R[1] + R[2]
            self.src = self.srcAB + self.srcC
            self.passes = 8 if "32x32" in op else 4
        elif op.startswith("v_"):
            self.kind = "trans" if base in TRANS else "valu"
            if base.startswith("v_cmpx"):
                self.dst = R[0] + [("exec", 0)]; self.src = flat(R[1:])
            elif base.startswith("v_cmp"):
                self.dst = R[0]; self.src = flat(R[1:])
            elif base in ("v_add_co_u32", "v_sub_co_u32", "v_subrev_co_u32"):
                self.dst = R[0] + R[1]; self.src = flat(R[2:])
            elif base in ("v_addc_co_u32", "v_subb_co_u32"):
                self.dst = R[0] + R[1]; self.src = flat(R[2:])
            elif base.startswith("v_permlane") and "swap" in base:
                self.dst = R[0] + R[1]; self.src = R[0] + R[1]
            elif base in ("v_fmac_f32", "v_pk_fmac_f16", "v_dot2c_f32_bf16", "v_writelane_b32"):
                self.dst = R[0]; self.src = flat(R)
            elif base == "v_nop":
                pass
            else:
                self.dst = R[0]; self.src = flat(R[1:])
                if self.dpp: self.src = self.src + R[0]
        elif op.startswith("ds_"):
            self.kind = "ds"
            if op.startswith("ds_read") or op.startswith("ds_bpermute") or op.startswith("ds_swizzle") or op.startswith("ds_permute"):
                self.dst = R[0]; self.src = flat(R[1:])
            else:
                self.src = flat(R)
        elif op.startswith("buffer_") or op.startswith("global_"):
            self.kind = "vmem"
            lds = (" lds" in " " + mods) or "load_lds" in op
            self.lds = lds
            if op in ("buffer_wbl2", "buffer_inv"):
                pass
            elif "load" in op and not lds:
                self.dst = R[0]; self.src = flat(R[1:])
            elif "atomic" in op and "sc0" in mods and op.startswith("global_"):
                self.dst = R[0]; self.src = flat(R[1:])
            elif "atomic" in op and "sc0" in mods:
                self.dst = R[0]; self.src = flat(R)
            else:
                self.src = flat(R)
            if lds: self.src = self.src + [("m0", 0)]
            self.store_data = []
            if "store" in op and (op.endswith("x4") or op.endswith("x3")):
                self.store_data = R[0] if op.startswith("buffer_") else R[1]
        elif op.startswith("s_"):
            self.kind = "salu"
            if op.startswith("s_cmp") or op.startswith("s_cbranch") or op in ("s_branch", "s_barrier", "s_waitcnt", "s_nop", "s_endpgm", "s_sleep", "s_setprio", "s_bitcmp0_b32", "s_bitcmp1_b32"):
                self.src = flat(R)
            elif "saveexec" in op:
                self.dst = R[0] + [("exec", 0)]; self.src = flat(R[1:]) + [("exec", 0)]
            else:
                self.dst = R[0] if R else []; self.src = flat(R[1:])
    def states(self):
        if self.kind == "meta": return 0
        if self.op == "s_nop": return int(self.ops[0], 0) + 1
        return 1

def need(p, c):
    n = 0
    pd = set(p.dst); cs = set(c.src); cd = set(c.dst)
    pv = p.kind in ("valu", "trans")
    cv = c.kind in ("valu", "trans")
    isvg = lambda r: r[0] in ("v", "a")
    issg = lambda r: r[0] in ("s", "vcc")
    if pv:
        vg = {r for r in pd if isvg(r)}; sg = {r for r in pd if issg(r)}
        if c.kind == "mfma" and vg & cs: n = max(n, 2)
        if cv and c.base in ("v_readlane_b32", "v_readfirstlane_b32") and vg & cs: n = max(n, 1)
        if cv and c.base.startswith("v_permlane") and vg & cs: n = max(n, 2)
        if cv and c.dpp and vg & cs: n = max(n, 2)
        if p.kind == "trans" and (cv or c.kind == "mfma") and vg & cs: n = max(n, 1)
        if c.kind == "vmem" and sg & cs: n = max(n, 5)
        if cv and sg & cs:
            n = max(n, 4 if c.base in ("v_readlane_b32", "v_writelane_b32") else 2)
        if cv and ("vcc", 0) in sg and c.base == "v_cndmask_b32": n = max(n, 2)
        if c.kind == "salu" and sg & cs: n = max(n, 1)
        if ("exec", 0) in pd:
            if c.kind == "mfma": n = max(n, 4)
            if cv and (c.dpp): n = max(n, 5)
            if cv and (c.base.startswith("v_permlane") or c.base in ("v_readlane_b32", "v_readfirstlane_b32", "v_writelane_b32")): n = max(n, 4)
        if ("sdwa" in p.op or "op_sel" in p.mods) and not p.base.startswith("v_pk") and cv and vg & (cs | cd): n = max(n, 1)
    if p.kind == "mfma":
        big, small = (12, 10) if p.passes == 8 else (8, 6)
        if c.kind == "mfma":
            if pd & set(c.srcAB): n = max(n, big)
            elif pd & set(c.srcC):
                if not (c.srcC == p.dst and c.passes == p.passes): n = max(n, small)
            elif pd & cd: n = max(n, small)
        elif c.kind in ("valu", "trans", "vmem", "ds"):
            if pd & (cs | cd): n = max(n, big)
        if cv and set(p.srcC) & cd: n = max(n, 7 if p.passes == 8 else 3)
    if p.kind == "salu" and ("m0", 0) in pd and c.kind == "vmem" and getattr(c, "lds", False): n = max(n, 1)
    if p.kind == "vmem" and getattr(p, "store_data", None):
        if set(p.store_data) & cd and c.kind != "salu": n = max(n, 2 if cv else 1)
    return n

class Asm:
    def __init__(self):
        self.L = []
        self.nops_added = []
    def __call__(self, text):
        for line in text.split("\n"):
            line = line.strip()
            if line: self.L.append(Ins(line))
        return self
    def label(self, name): self(name + ":")
    def _scan(self, seq, start):
        for ci in range(start, len(seq)):
            c = self.L[seq[ci]]
            if c.kind == "meta": continue
            dist = 0
            for pi in range(ci - 1, -1, -1):
                p = self.L[seq[pi]]
                if p.kind != "meta":
                    nd = need(p, c)
                    if nd > dist: return ci, nd - dist, p, c
                    dist += p.states()
                if dist >= 20: break
        return None
    def fix(self, verbose=True):
        while True:
            n = len(self.L)
            r = self._scan(list(range(n)), 0)
            pos = None
            if r:
                pos = r[0]
            else:
                labels = {self.L[i].text.split(":")[0].strip(): i for i in range(n) if self.L[i].label}
                for i in range(n):
                    I = self.L[i]
                    if I.op.startswith("s_cbranch") or I.op == "s_branch":
                        t = labels.get(I.ops[0])
                        if t is None: continue
                        pre = list(range(max(0, i - 24), i + 1)); post = list(range(t, min(n, t + 24)))
                        r = self._scan(pre + post, len(pre))
                        if r:
                            pos = (pre + post)[r[0]]; break
            if pos is None: break
            k = r[1]
            self.nops_added.append((k, r[2].text, r[3].text))
            self.L.insert(pos, Ins(f"s_nop {k-1}"))
        if verbose:
            nm0 = 0
            for k, a, b in self.nops_added:
                if " m0," in a: nm0 += 1
                else: print(f"  [hazard] +{k} nop: '{a}' -> '{b}'")
            if nm0: print(f"  [hazard] {nm0} m0 nops")
    def text(self):
        out = []
        for I in self.L:
            out.append(I.text if (I.label or I.directive) else "    " + I.text)
        return "\n".join(out)

def vr(a, n=1): return f"v{a}" if n == 1 else f"v[{a}:{a+n-1}]"
def sr(a, n=1): return f"s{a}" if n == 1 else f"s[{a}:{a+n-1}]"
def ar(a, n=1): return f"a{a}" if n == 1 else f"a[{a}:{a+n-1}]"

class Track:
    def __init__(self, a, name, limit):
        self.a, self.name, self.limit, self.q = a, name, limit, []
    def op(self, text, tag=None):
        self.a(text); self.q.append(tag)
        assert len(self.q) <= self.limit, f"{self.name}: {len(self.q)} outstanding"
    def count(self, tag):
        idx = [i for i, t in enumerate(self.q) if t == tag or (isinstance(tag, (list, tuple, set)) and t in tag)]
        if not idx: return None
        return len(self.q) - 1 - idx[-1]
    def wait(self, tag):
        n = self.count(tag)
        if n is None: return
        self.a(f"s_waitcnt {self.name}({n})"); self.q = self.q[len(self.q)-n:] if n else []
    def wait_all(self):
        self.a(f"s_waitcnt {self.name}(0)"); self.q = []
    def reset(self): self.q = []
```

```python
import sys, struct
from asmlib import *

NAME = "adaLN_cond__softmax_full_mha__dense_activation_silu__prompt"
WS_MODG = 0x0
WS_STATS = 0x10000
WS_FXN, WS_FKV, WS_FO, WS_FX1, WS_FH = 0x60000, 0x68000, 0x88000, 0xC8000, 0xE8000
WS_XN, WS_K, WS_V, WS_O, WS_X1, WS_Y, WS_H = 0x200000, 0x400000, 0x600000, 0x800000, 0xA00000, 0xC00000, 0xE00000
WS_DIAG = 0x1600000
WS_SIZE = 0x1700000
KA = dict(x=0, wqkv=8, wo=16, w1=32, w2=40, c=48, wmod=56, out=64, dbg=72, ws=80)
SZ = dict(x=2048*512*2, wqkv=512*1536*2, wo=512*512*2, w1=512*1792*2, w2=1792*512*2, c=1024, wmod=512*3072*2, out=2048*512*2, dbg=256, ws=WS_SIZE)
SRD = dict(x=4, wqkv=8, wo=12, w1=16, w2=20, c=24, wmod=28, out=32, dbg=36, ws=40)
S = {k: sr(v, 4) for k, v in SRD.items()}
sW, sTB, sC, sTAG, sI, sX = 44, 45, 46, 47, 48, 49
SPIN = 20000
def f2u(f): return struct.unpack("<I", struct.pack("<f", f))[0]
def hx(f): return hex(f2u(f))
LOG2E = 1.4426950408889634
DIAG = False
OPT = {}
L_WQKV = 0
L_DG = 96*1024
L_SA = 112*1024
L_QX = 148*1024
L_SCR = 156*1024
L_WO = 0
L_W1 = 32*1024
L_RED = 88*1024
L_TAB = 144*1024
L_GA, L_G2, L_GB, L_UW, L_G = L_TAB, L_TAB+128, L_TAB+256, L_TAB+1024, L_TAB+2048
LDS_SIZE = 160*1024

def stamp(a, i):
    if DIAG: a(f"s_memtime s[{70+2*i}:{71+2*i}]")

_uid = [0]
def poll(a, vm, mask, vaddr, soff, vt):
    _uid[0] += 1; n = _uid[0]
    a(f"s_mov_b64 exec, {mask}\ns_mov_b32 s50, {SPIN}")
    a(f"Lpoll{n}:")
    a(f"buffer_load_dword v{vt}, v{vaddr}, {S['ws']}, {soff} offen sc1")
    a("s_waitcnt vmcnt(0)")
    a(f"v_cmp_ne_u32 vcc, s{sTAG}, v{vt}")
    a("s_sub_u32 s50, s50, 1")
    a(f"s_cbranch_vccz Lpolld{n}")
    a(f"s_cmp_lg_u32 s50, 0\ns_cbranch_scc1 Lpoll{n}")
    a(f"Lpolld{n}:\ns_mov_b64 exec, -1")
    vm.reset()

def set_flag(a, vm, soff, vz, vt):
    vm.wait_all()
    a(f"v_mov_b32 v{vt}, s{sTAG}\ns_mov_b64 exec, 1")
    vm.op(f"buffer_store_dword v{vt}, v{vz}, {S['ws']}, {soff} offen sc1")
    a("s_mov_b64 exec, -1")

def rne_bf16(a, d, s):
    a(f"v_cvt_pk_bf16_f32 v{d}, v{s}, v{s}\nv_lshlrev_b32 v{d}, 16, v{d}")

def tr_addr(a, d, t, perm, rowbytes_log2, swz):
    a(f"v_bfe_u32 v{d}, v0, 2, 2\nv_bfe_u32 v{t}, v0, 5, 1")
    a(f"v_lshl_add_u32 v{d}, v{t}, {2 if perm else 3}, v{d}\nv_lshlrev_b32 v{d}, {rowbytes_log2}, v{d}")
    a(f"v_bfe_u32 v{t}, v0, 4, 1\nv_lshl_add_u32 v{d}, v{t}, 5, v{d}")
    a(f"v_and_b32 v{t}, 3, v0\nv_lshl_add_u32 v{d}, v{t}, 3, v{d}")
    if swz: a(f"v_bfe_u32 v{t}, v0, 3, 1\nv_lshl_add_u32 v{d}, v{t}, 6, v{d}")

def half_tr_addr(a, d, t):
    a(f"v_bfe_u32 v{d}, v0, 2, 1")
    a(f"v_bfe_u32 v{t}, v0, 4, 1\nv_lshl_add_u32 v{d}, v{t}, 1, v{d}")
    a(f"v_bfe_u32 v{t}, v0, 3, 1\nv_lshl_add_u32 v{d}, v{t}, 2, v{d}")
    a(f"v_bfe_u32 v{t}, v0, 5, 1\nv_lshl_add_u32 v{d}, v{t}, 4, v{d}")
    a(f"v_lshlrev_b32 v{d}, 5, v{d}\nv_and_b32 v{t}, 3, v0\nv_lshl_add_u32 v{d}, v{t}, 3, v{d}")

vLANE, vL16, vZ = 1, 2, 3

def mod_issue(a, vm, sCol):
    a("v_and_b32 v8, 255, v0\nv_lshrrev_b32 v4, 1, v8\nv_and_b32 v5, 1, v0")
    a("v_mul_u32_u24 v6, 6144, v4\nv_lshl_add_u32 v6, v5, 4, v6\nv_lshlrev_b32 v7, 1, v4")
    a(f"s_lshl_b32 s52, s{sCol}, 1")
    for m in range(4):
        vm.op(f"buffer_load_dwordx4 {vr(16+4*m,4)}, v6, {S['wmod']}, s52 offen", "mod")
        if m < 3: a(f"s_add_u32 s52, s52, {128*6144}")
    for m in range(4): vm.op(f"buffer_load_ushort v{32+m}, v7, {S['c']}, 0 offen offset:{256*m}", "mod")

def mod_partial(a, vm):
    vm.wait("mod")
    F, A = 40, 64
    for m in range(4): a(f"v_lshlrev_b32 v{32+m}, 16, v{32+m}")
    for m in range(4): a(f"v_mul_f32 v{60+m}, {hx(-LOG2E)}, v{32+m}")
    for m in range(4): a(f"v_exp_f32 v{60+m}, v{60+m}")
    for m in range(4): a(f"v_add_f32 v{60+m}, 1.0, v{60+m}")
    for m in range(4): a(f"v_rcp_f32 v{60+m}, v{60+m}")
    for m in range(4): a(f"v_mul_f32 v{32+m}, v{32+m}, v{60+m}")
    for m in range(4): a(f"v_cvt_pk_bf16_f32 v{32+m}, v{32+m}, v{32+m}")
    for m in range(4): a(f"v_lshlrev_b32 v{32+m}, 16, v{32+m}")
    for m in range(4):
        for r in range(4):
            a(f"v_lshlrev_b32 v{F+2*r}, 16, v{16+4*m+r}\nv_and_b32 v{F+2*r+1}, 0xffff0000, v{16+4*m+r}")
        for j in range(8):
            a(f"v_mul_f32 v{A+j}, v{F+j}, v32" if m == 0 else f"v_fmac_f32 v{A+j}, v{F+j}, v{32+m}")
    for j in range(4): a(f"v_permlane32_swap_b32 v{A+j}, v{A+4+j}")
    for j in range(4): a(f"v_add_f32 v{A+j}, v{A+j}, v{A+4+j}")
    for j in range(2): a(f"v_permlane16_swap_b32 v{A+j}, v{A+2+j}")
    for j in range(2): a(f"v_add_f32 v{A+j}, v{A+j}, v{A+2+j}")
    for r in (8, 4, 2):
        for j in range(2): a(f"v_add_f32_dpp v{A+j}, v{A+j}, v{A+j} row_ror:{r} row_mask:0xf bank_mask:0xf")
    a("v_bfe_u32 v8, v0, 6, 2\nv_lshlrev_b32 v8, 6, v8\nv_lshl_add_u32 v8, v5, 5, v8")
    a("v_bfe_u32 v9, v0, 4, 1\nv_lshl_add_u32 v8, v9, 3, v8\nv_bfe_u32 v9, v0, 5, 1\nv_lshl_add_u32 v8, v9, 4, v8")
    a(f"v_add_u32 v8, {L_SCR}, v8")
    a("s_mov_b32 exec_lo, 0x00030003\ns_mov_b32 exec_hi, 0x00030003")
    a(f"ds_write_b64 v8, v[{A}:{A+1}]")
    a("s_mov_b64 exec, -1")

def mod_final(a, vm, sCol):
    a("s_mov_b64 exec, 0xff")
    a(f"v_lshlrev_b32 v8, 3, v{vLANE}\nv_add_u32 v9, {L_SCR}, v8")
    for w in range(4): a(f"ds_read_b64 {vr(16+2*w,2)}, v9 offset:{64*w}")
    a(f"s_lshr_b32 s52, s{sCol}, 9\ns_cmp_eq_u32 s52, 1\ns_cselect_b32 s53, 1.0, 0\ns_cmp_eq_u32 s52, 4\ns_cselect_b32 s53, 1.0, s53")
    a(f"s_lshl_b32 s52, s{sCol}, 2")
    a("s_waitcnt lgkmcnt(0)")
    for j in range(2): a(f"v_add_f32 v{16+j}, v{16+j}, v{18+j}\nv_add_f32 v{20+j}, v{20+j}, v{22+j}")
    for j in range(2): a(f"v_add_f32 v{16+j}, v{16+j}, v{20+j}")
    a("v_cvt_pk_bf16_f32 v18, v16, v17\nv_lshlrev_b32 v16, 16, v18\nv_and_b32 v17, 0xffff0000, v18")
    a("v_add_f32 v16, s53, v16\nv_add_f32 v17, s53, v17")
    a(f"v_cvt_pk_bf16_f32 v16, v16, v17\nv_mov_b32 v17, s{sTAG}")
    vm.op(f"buffer_store_dwordx2 v[16:17], v8, {S['ws']}, s52 offen sc1")
    a("s_mov_b64 exec, -1")

def gran_poll(a, vm, loads, regs):
    _uid[0] += 1; n = _uid[0]
    a(f"s_mov_b32 s50, {SPIN}\nLgp{n}:")
    for t in loads: a(t)
    a("s_waitcnt vmcnt(0)")
    first = True
    for r in regs:
        for o in (1, 3):
            if first: a(f"v_xor_b32 v15, s{sTAG}, v{r+o}"); first = False
            else: a(f"v_xor_b32 v14, s{sTAG}, v{r+o}\nv_or_b32 v15, v15, v14")
    a("v_cmp_ne_u32 vcc, 0, v15\ns_sub_u32 s50, s50, 1")
    a(f"s_cbranch_vccz Lgpd{n}\ns_cmp_lg_u32 s50, 0\ns_cbranch_scc1 Lgp{n}\nLgpd{n}:")
    vm.reset()

def read_tag(a):
    a(f"v_mov_b32 v4, {L_SCR+256}\nds_read_b32 v4, v4\ns_waitcnt lgkmcnt(0)\nv_readfirstlane_b32 s{sTAG}, v4")

def attention(a, vm, role):
    QF, OA, SB, RING, IDX = 16, 32, [96, 112], 128, 176
    vV, vWO, vW1, vW1H = 4, 12, 13, 14
    sHH, sKQ, sK, sV = 54, 55, 56, 57
    a(f"s_and_b32 s{sHH}, s{sW}, 1\ns_lshr_b32 s{sKQ}, s{sW}, 1")
    for i in range(4):
        a(f"s_add_u32 s52, s{sKQ}, {i}\ns_and_b32 s52, s52, 3\ns_lshl_b32 s53, s{sHH}, 2\ns_add_u32 s52, s52, s53\ns_lshl_b32 s52, s52, 10\ns_add_u32 s52, s52, {L_QX}")
        a(f"v_add_u32 v5, s52, v{vL16}\nds_read_b128 {vr(QF+4*i,4)}, v5")
    a(f"v_and_b32 v{vV}, 15, v{vLANE}\nv_lshlrev_b32 v{vV}, 4, v{vV}\nv_bfe_u32 v5, v{vLANE}, 5, 1\nv_lshl_add_u32 v{vV}, v5, 8, v{vV}")
    a(f"s_lshl_b32 s58, s{sC}, 1\ns_add_u32 s58, s58, s{sHH}")
    a(f"s_lshl_b32 s59, s58, 16")
    a(f"s_lshl_b32 s52, s{sKQ}, 14\ns_add_u32 s52, s52, s59\ns_add_u32 s{sK}, s52, {hex(WS_K)}\ns_add_u32 s{sV}, s52, {hex(WS_V)}")
    a("s_mov_b32 s60, 0x0000ffff\ns_mov_b32 s61, 0x0000ffff")
    a(f"v_lshlrev_b32 v5, 11, v{vLANE}")
    a(f"s_lshl_b32 s52, s{sKQ}, 15\ns_lshl_b32 s53, s{sC}, 7\ns_add_u32 s52, s52, s53\ns_add_u32 s62, s52, {hex(WS_FKV)}")
    a(f"v_and_b32 v6, 0x1b, v{vLANE}\nv_cmp_eq_u32 vcc, 16, v6\nv_mov_b32 v6, 0x3f803f80\nv_cndmask_b32 v6, 0, v6, vcc")
    for sl in range(4):
        for r in range(8): a(f"v_mov_b32 v{RING+12*sl+4+r}, v6")
    a(f"v_mov_b32 v{IDX}, 0xdddddddd")
    for r in range(64): a(f"v_mov_b32 v{OA+r}, 0")
    for r in range(8): a(f"v_mov_b32 v{SB[1]+8+r}, 0")
    a(f"v_lshrrev_b32 v7, 2, v{vLANE}\nv_and_b32 v8, 3, v{vLANE}\nv_lshlrev_b32 v{vWO}, 10, v7\nv_lshl_add_u32 v{vWO}, v8, 4, v{vWO}")
    w1_voffs(a, vW1, vW1H)
    a(f"s_lshl_b32 s63, s{sW}, 16\ns_lshl_b32 s52, s{sC}, 6\ns_add_u32 s63, s63, s52")
    a(f"s_lshl_b32 s64, s{sW}, 12")
    a(f"s_mul_i32 s65, s{sW}, {32*3584}\ns_mul_i32 s52, s{sC}, 224\ns_add_u32 s65, s65, s52")
    a(f"s_mul_i32 s66, s{sW}, 7168\ns_add_u32 s66, s66, {L_W1}")
    pre = []
    for j in range(4):
        pre.append([f"s_add_u32 m0, s64, {L_WO+1024*j}", f"s_add_u32 s52, s63, {16384*j}",
                    f"buffer_load_dwordx4 v{vWO}, {S['wo']}, s52 offen lds"])
    pre += w1_kp_dma(65, 66, vW1, vW1H)
    stamp(a, 4)
    poll(a, vm, "0xffff", 5, "s62", 6)
    stamp(a, 5)
    def ld(kt):
        sl = kt % 4
        vm.op(f"buffer_load_dwordx4 {vr(RING+12*sl,4)}, v{vL16}, {S['ws']}, s{sK} offen sc1", ("kv", kt))
        a("s_mov_b64 exec, s[60:61]")
        vm.op(f"buffer_load_dwordx4 {vr(RING+12*sl+4,4)}, v{vV}, {S['ws']}, s{sV} offen sc1", ("kv", kt))
        vm.op(f"buffer_load_dwordx4 {vr(RING+12*sl+8,4)}, v{vV}, {S['ws']}, s{sV} offen offset:512 sc1", ("kv", kt))
        a("s_mov_b64 exec, -1")
        a(f"s_add_u32 s{sK}, s{sK}, 1024\ns_add_u32 s{sV}, s{sV}, 1024")
    def QK(dst, sl, q): return f"v_mfma_f32_32x32x16_bf16 {vr(dst,16)}, {vr(RING+12*sl,4)}, {vr(QF+4*q,4)}, 0"
    def SM(q, sl, half, s): return f"v_smfmac_f32_32x32x32_bf16 {vr(OA+16*q,16)}, {vr(RING+12*sl+4+4*half,4)}, {vr(s+8*half,8)}, v{IDX}"
    ld(0); ld(1); ld(2)
    a("s_waitcnt lgkmcnt(0)")
    vm.wait(("kv", 0))
    a(QK(SB[0], 0, 0))
    a("s_nop 7\ns_nop 3")
    for t in range(64):
        kt, q = t // 4, t % 4
        cur, prv = SB[t & 1], SB[(t + 1) & 1]
        E = [f"v_exp_f32 v{cur+r}, v{cur+r}" for r in range(16)]
        a(E[0]); a(E[1])
        if t > 0: a(SM((t-1) % 4, ((t-1)//4) % 4, 1, prv))
        if q == 0 and kt + 3 < 16: ld(kt + 3)
        if q == 1 and 1 <= kt <= len(pre):
            p = pre[kt-1]
            for x in p[:-1]: a(x)
            vm.op(p[-1], "pre")
        a(E[2]); a(E[3])
        if t < 63:
            if q == 3: vm.wait(("kv", kt + 1))
            a(QK(prv, ((t+1)//4) % 4, (t+1) % 4))
        for r in range(4, 10): a(E[r])
        a(SM(q, kt % 4, 0, cur))
        for r in range(10, 16): a(E[r])
    a("s_nop 0")
    a(SM(3, 3, 1, SB[1]))
    stamp(a, 6)
    a(f"s_mul_i32 s63, s{sHH}, 12\nv_lshlrev_b32 v5, 2, v{vLANE}")
    for i in range(1, 4):
        a(f"s_add_u32 s52, s{sKQ}, {i}\ns_and_b32 s52, s52, 3\ns_mul_i32 s52, s52, 3\ns_add_u32 s52, s52, s63\ns_add_u32 s52, s52, {i-1}\ns_mul_i32 s52, s52, 2304\ns_add_u32 s52, s52, {L_RED}")
        a(f"v_add_u32 v6, s52, v{vL16}\nv_add_u32 v7, s52, v5")
        a(f"ds_write_b128 v6, {vr(OA+16*i,4)}\nds_write_b128 v6, {vr(OA+16*i+4,4)} offset:1024\nds_write_b32 v7, v{OA+16*i+8} offset:2048")
    a(f"s_mul_i32 s52, s{sKQ}, 3\ns_add_u32 s52, s52, s63\ns_mul_i32 s52, s52, 2304\ns_add_u32 s52, s52, {L_RED}")
    a(f"v_add_u32 v6, s52, v{vL16}\nv_add_u32 v7, s52, v5")
    vm.wait_all()
    a("s_waitcnt lgkmcnt(0)\ns_barrier")
    R = 96
    for i in range(3):
        a(f"ds_read_b128 {vr(R+12*i,4)}, v6 offset:{2304*i}\nds_read_b128 {vr(R+12*i+4,4)}, v6 offset:{2304*i+1024}\nds_read_b32 v{R+12*i+8}, v7 offset:{2304*i+2048}")
    a(f"s_lshl_b32 s52, s{sTB}, 2\ns_add_u32 s52, s52, s{sKQ}\ns_lshl_b32 s52, s52, 5\ns_add_u32 s52, s52, s58")
    a(f"s_lshl_b32 s63, s52, 10\ns_add_u32 s63, s63, {hex(WS_O)}\ns_lshl_b32 s64, s52, 7\ns_add_u32 s64, s64, {hex(WS_FO)}")
    for i in range(3):
        a(f"s_waitcnt lgkmcnt({6-3*i})")
        if i == 2: a("s_barrier")
        for r in range(9): a(f"v_add_f32 v{OA+r}, v{OA+r}, v{R+12*i+r}")
    a(f"v_add_f32 v8, v{OA}, v{OA+1}")
    for r in range(2, 8): a(f"v_add_f32 v8, v8, v{OA+r}")
    a(f"s_mov_b32 s52, {hx(2.0**-60)}\ns_mov_b32 s53, {hx(2.0**60)}\ns_movk_i32 s65, 0x207")
    a(f"v_cmp_nge_f32 vcc, v{OA+8}, s52\nv_cmp_nle_f32 s[54:55], v{OA+8}, s53\nv_cmp_class_f32 s[56:57], v8, s65")
    a("s_or_b64 vcc, vcc, s[54:55]\ns_or_b64 vcc, vcc, s[56:57]")
    a(f"s_cbranch_vccnz Lslow_{role}")
    a(f"Lnorm_{role}:")
    a(f"v_rcp_f32 v8, v{OA+8}")
    for r in range(8): a(f"v_mul_f32 v{OA+r}, v{OA+r}, v8")
    for r in range(4): a(f"v_cvt_pk_bf16_f32 v{8+r}, v{OA+2*r}, v{OA+2*r+1}")
    vm.op(f"buffer_store_dwordx4 v[8:11], v{vL16}, {S['ws']}, s63 offen sc1")
    def slow(b):
        tv = Track(b, "vmcnt", 63)
        b(f"Lslow_{role}:")
        b(f"v_lshlrev_b32 v5, 11, v{vLANE}\ns_lshl_b32 s52, s{sC}, 7\ns_add_u32 s62, s52, {hex(WS_FKV)}")
        poll(b, tv, "-1", 5, "s62", 6)
        b(f"s_add_u32 s{sK}, s59, {hex(WS_K)}\ns_mov_b32 s51, 64\nv_mov_b32 v8, 0xff800000")
        b(f"Ls1_{role}:")
        b(f"buffer_load_dwordx4 {vr(RING,4)}, v{vL16}, {S['ws']}, s{sK} offen sc1\ns_add_u32 s{sK}, s{sK}, 1024\ns_waitcnt vmcnt(0)")
        b(QK(SB[0], 0, 0))
        for r in range(0, 16, 2): b(f"v_max3_f32 v8, v{SB[0]+r}, v{SB[0]+r+1}, v8")
        b(f"s_sub_u32 s51, s51, 1\ns_cmp_lg_u32 s51, 0\ns_cbranch_scc1 Ls1_{role}")
        b("v_mov_b32 v9, v8\nv_permlane32_swap_b32 v8, v9\nv_max_f32 v8, v8, v9")
        for r in range(16): b(f"v_sub_f32 v{SB[1]+r}, 0, v8")
        for r in range(16): b(f"v_mov_b32 v{OA+r}, 0")
        b(f"s_add_u32 s{sK}, s59, {hex(WS_K)}\ns_add_u32 s{sV}, s59, {hex(WS_V)}\ns_mov_b32 s51, 64")
        b(f"Ls2_{role}:")
        b(f"buffer_load_dwordx4 {vr(RING,4)}, v{vL16}, {S['ws']}, s{sK} offen sc1\ns_mov_b64 exec, s[60:61]")
        b(f"buffer_load_dwordx4 {vr(RING+4,4)}, v{vV}, {S['ws']}, s{sV} offen sc1\nbuffer_load_dwordx4 {vr(RING+8,4)}, v{vV}, {S['ws']}, s{sV} offen offset:512 sc1")
        b(f"s_mov_b64 exec, -1\ns_add_u32 s{sK}, s{sK}, 1024\ns_add_u32 s{sV}, s{sV}, 1024\ns_waitcnt vmcnt(0)")
        b(f"v_mfma_f32_32x32x16_bf16 {vr(SB[0],16)}, {vr(RING,4)}, {vr(QF,4)}, {vr(SB[1],16)}")
        for r in range(16): b(f"v_exp_f32 v{SB[0]+r}, v{SB[0]+r}")
        b(SM(0, 0, 0, SB[0])); b(SM(0, 0, 1, SB[0]))
        b(f"s_sub_u32 s51, s51, 1\ns_cmp_lg_u32 s51, 0\ns_cbranch_scc1 Ls2_{role}")
        b(f"s_nop 7\ns_nop 7\ns_branch Lnorm_{role}")
    return slow

def w1_voffs(a, vF, vH):
    a(f"v_lshrrev_b32 v7, 2, v{vLANE}\nv_and_b32 v8, 3, v{vLANE}\nv_mul_u32_u24 v{vF}, 3584, v7\nv_lshl_add_u32 v{vF}, v8, 4, v{vF}")
    a(f"v_lshrrev_b32 v7, 1, v{vLANE}\nv_and_b32 v8, 0x13, v7\nv_bfe_u32 v9, v7, 2, 1\nv_lshl_add_u32 v8, v9, 3, v8\nv_bfe_u32 v9, v7, 3, 1\nv_lshl_add_u32 v8, v9, 2, v8")
    a(f"v_mul_u32_u24 v{vH}, 3584, v8\nv_and_b32 v8, 1, v{vLANE}\nv_lshl_add_u32 v{vH}, v8, 4, v{vH}")

def w1_kp_dma(sOff, sLds, vF, vH, dOff=0, dLds=0):
    L = []
    for e in range(2):
        for nt in range(3):
            L.append([f"s_add_u32 m0, s{sLds}, {dLds+3072*e+1024*nt}", f"s_add_u32 s52, s{sOff}, {dOff+16*3584*e+64*nt}",
                      f"buffer_load_dwordx4 v{vF}, {S['w1']}, s52 offen lds"])
    L.append([f"s_add_u32 m0, s{sLds}, {dLds+6144}", f"s_add_u32 s52, s{sOff}, {dOff+192}", f"buffer_load_dwordx4 v{vH}, {S['w1']}, s52 offen lds"])
    return L

def w1_reads(kp, e, dst, vF):
    base = 7168*kp + 3072*e
    return [f"ds_read_b64_tr_b16 {vr(dst+4*nt+2*st,2)}, v{vF[base >> 15]} offset:{(base & 0x7fff)+1024*nt+512*st}" for nt in range(3) for st in range(2)]
def w1_half_reads(kp, dst, vH):
    base = 7168*kp + 6144
    return [f"ds_read_b64_tr_b16 {vr(dst+2*st,2)}, v{vH[base >> 15]} offset:{(base & 0x7fff)+256*st}" for st in range(2)]

def active(a):
    vm = Track(a, "vmcnt", 63); lg = Track(a, "lgkmcnt", 15)
    sCol, sT32 = 51, 67
    a(f"s_lshl_b32 s{sCol}, s{sX}, 1\ns_lshr_b32 s52, s{sI}, 2\ns_add_u32 s{sCol}, s{sCol}, s52\ns_lshl_b32 s{sCol}, s{sCol}, 6")
    a(f"s_and_b32 s52, s{sI}, 3\ns_lshl_b32 s52, s52, 4\ns_add_u32 s{sCol}, s{sCol}, s52")
    a(f"s_cmp_ge_u32 s{sI}, 8\ns_cbranch_scc1 La_nomod")
    mod_issue(a, vm, sCol); mod_partial(a, vm)
    a("La_nomod:")
    a(f"v_mov_b32 v8, 0\nv_mov_b32 v9, 0\nv_mov_b32 v10, 0\nv_mov_b32 v11, 0\ns_lshl_b32 s52, s{sW}, 12\ns_add_u32 s52, s52, {L_DG}\nv_add_u32 v4, s52, v{vL16}")
    for j in range(4): a(f"ds_write_b128 v4, v[8:11] offset:{1024*j}")
    a(f"s_cmp_lg_u32 s{sW}, 3\ns_cbranch_scc1 La_notag")
    a(f"s_mov_b32 s50, {SPIN}\nLa_tag:")
    a(f"buffer_load_dword v4, v{vZ}, {S['dbg']}, 0 offen sc1\ns_waitcnt vmcnt(0)\nv_readfirstlane_b32 s52, v4\ns_sub_u32 s50, s50, 1")
    a("s_cmp_lg_u32 s52, 0\ns_cbranch_scc1 La_tagd\ns_cmp_lg_u32 s50, 0\ns_cbranch_scc1 La_tag\nLa_tagd:")
    a(f"v_mov_b32 v5, {L_SCR+256}\nds_write_b32 v5, v4")
    a("La_notag:")
    stamp(a, 0)
    a("s_waitcnt lgkmcnt(0)\ns_barrier")
    read_tag(a)
    a(f"s_cmp_ge_u32 s{sI}, 8\ns_cbranch_scc1 La_nofin\ns_cmp_lg_u32 s{sW}, 0\ns_cbranch_scc1 La_nofin")
    mod_final(a, vm, sCol)
    a("La_nofin:")
    ACC = [16, 32, 48]; WF = [64, 76]; DH = [88, 104]; DG = [120, 124]; AF = 128
    a(f"s_lshl_b32 s{sT32}, s{sTB}, 2\ns_add_u32 s{sT32}, s{sT32}, s{sW}")
    a(f"v_lshlrev_b32 v5, 7, v{vLANE}\ns_lshl_b32 s52, s{sT32}, 9\ns_add_u32 s52, s52, {hex(WS_FXN)}")
    tr_addr(a, 10, 11, True, 6, False)
    a(f"v_add_u32 v12, {3072*16}, v10")
    a(f"v_bfe_u32 v11, v0, 5, 1\nv_lshlrev_b32 v11, 6, v11\nv_add_u32 v11, {L_SA}, v11\nv_add_u32 v13, {L_DG}, v{vL16}")
    a(f"v_and_b32 v14, 2, v0\nv_cmp_eq_u32 vcc, 0, v14\nv_mov_b32 v14, 0xeeeeeeee\nv_mov_b32 v15, 0x44444444\nv_cndmask_b32 v14, v14, v15, vcc")
    for r in range(48): a(f"v_mov_b32 v{16+r}, 0")
    poll(a, vm, "0xf", 5, "s52", 6)
    stamp(a, 1)
    a(f"s_lshl_b32 s52, s{sT32}, 15\ns_add_u32 s52, s52, {hex(WS_XN)}")
    for ks in range(32):
        vm.op(f"buffer_load_dwordx4 {vr(AF+4*ks,4)}, v{vL16}, {S['ws']}, s52 offen offset:{1024*(ks%4)} sc1", ("xn", ks//2))
        if ks % 4 == 3 and ks < 31: a("s_add_u32 s52, s52, 4096")
        if ks == 7: a("s_barrier")
    def rdS(b):
        L = [(f"ds_read_b128 {vr(DH[b&1]+4*q,4)}, v11 offset:{128*b+16*q}", ("s", b)) for q in range(4)]
        return L + [(f"ds_read_b128 {vr(DG[b&1],4)}, v13 offset:{1024*b}", ("s", b))]
    def rdW(ks):
        return [(f"ds_read_b64_tr_b16 {vr(WF[ks&1]+4*g+2*st,2)}, v{10 if ks < 16 else 12} offset:{3072*(ks%16)+1024*g+512*st}", ("w", ks)) for g in range(3) for st in range(2)]
    def SMF(b): return f"v_smfmac_f32_32x32x32_bf16 {vr(DH[b&1],16)}, {vr(DG[b&1],4)}, {vr(AF+8*b,8)}, v14"
    def CVT(b): return [f"v_cvt_pk_bf16_f32 v{AF+8*b+r}, v{DH[b&1]+2*r}, v{DH[b&1]+2*r+1}" for r in range(8)]
    def MM(ks):
        f = AF + 4*ks; w = WF[ks & 1]
        return [f"v_mfma_f32_32x32x16_bf16 {vr(ACC[0],16)}, {vr(w,4)}, {vr(f,4)}, {vr(ACC[0],16)}",
                f"v_mfma_f32_32x32x16_bf16 {vr(ACC[1],16)}, {vr(w+4,4)}, {vr(f,4)}, {vr(ACC[1],16)}",
                f"v_mfma_f32_32x32x16_bf16 {vr(ACC[2],16)}, {vr(f,4)}, {vr(w+8,4)}, {vr(ACC[2],16)}"]
    for x in rdS(0) + rdS(1): lg.op(*x)
    lg.wait(("s", 0)); vm.wait(("xn", 0))
    a(SMF(0))
    for x in rdW(0): lg.op(*x)
    a("s_nop 5")
    for x in CVT(0): a(x)
    stamp(a, 2)
    for b in range(16):
        nx = b + 1 < 16
        if nx:
            lg.wait(("s", b+1)); vm.wait(("xn", b+1))
            a(SMF(b+1))
        for x in rdW(2*b+1): lg.op(*x)
        lg.wait(("w", 2*b))
        M = MM(2*b); Rs = rdS(b+2) if b + 2 < 16 else []
        a(M[0]); [lg.op(*x) for x in Rs[:2]]
        a(M[1]); [lg.op(*x) for x in Rs[2:]]
        a(M[2])
        lg.wait(("w", 2*b+1))
        M = MM(2*b+1); C = CVT(b+1) if nx else []; Rw = rdW(2*b+2) if nx else []
        a(M[0]); [a(x) for x in C[:4]]; [lg.op(*x) for x in Rw[:2]]
        a(M[1]); [lg.op(*x) for x in Rw[2:]]; [a(x) for x in C[4:6]]
        a(M[2]); [a(x) for x in C[6:]]
    a(f"s_lshl_b32 s52, s{sC}, 17\ns_lshl_b32 s53, s{sT32}, 10\ns_add_u32 s52, s52, s53")
    a(f"s_add_u32 s54, s52, {hex(WS_K)}\ns_add_u32 s55, s54, 65536\ns_add_u32 s56, s52, {hex(WS_V)}")
    a(f"v_and_b32 v5, 0x33, v{vLANE}\nv_bfe_u32 v6, v{vLANE}, 2, 1\nv_lshl_add_u32 v5, v6, 3, v5\nv_bfe_u32 v6, v{vLANE}, 3, 1\nv_lshl_add_u32 v5, v6, 2, v5\nv_lshlrev_b32 v5, 4, v5")
    a(f"v_and_b32 v6, 15, v{vLANE}\nv_lshlrev_b32 v6, 4, v6\nv_bfe_u32 v7, v{vLANE}, 5, 1\nv_lshl_add_u32 v6, v7, 8, v6\nv_bfe_u32 v7, v{vLANE}, 4, 1\nv_lshl_add_u32 v6, v7, 16, v6")
    a(f"s_lshl_b32 s57, s{sW}, 10\ns_add_u32 s57, s57, {L_QX}\nv_add_u32 v7, s57, v{vL16}")
    a(f"s_lshl_b32 s57, s{sT32}, 11\ns_lshl_b32 s58, s{sC}, 7\ns_add_u32 s57, s57, s58\ns_add_u32 s57, s57, {hex(WS_FKV)}")
    for r in range(8): a(f"v_cvt_pk_bf16_f32 v{72+r}, v{ACC[1]+2*r}, v{ACC[1]+2*r+1}")
    vm.op(f"buffer_store_dwordx4 v[72:75], v5, {S['ws']}, s54 offen sc1"); vm.op(f"buffer_store_dwordx4 v[76:79], v5, {S['ws']}, s55 offen sc1")
    for r in range(8): a(f"v_cvt_pk_bf16_f32 v{80+r}, v{ACC[2]+2*r}, v{ACC[2]+2*r+1}")
    vm.op(f"buffer_store_dwordx4 v[80:83], v6, {S['ws']}, s56 offen sc1"); vm.op(f"buffer_store_dwordx4 v[84:87], v6, {S['ws']}, s56 offen offset:512 sc1")
    a(f"s_mov_b32 s53, {hx(0.25*LOG2E)}")
    for r in range(16): a(f"v_mul_f32 v{ACC[0]+r}, s53, v{ACC[0]+r}")
    for r in range(8): a(f"v_cvt_pk_bf16_f32 v{64+r}, v{ACC[0]+2*r}, v{ACC[0]+2*r+1}")
    a("ds_write_b128 v7, v[64:67]\nds_write_b128 v7, v[68:71] offset:4096")
    stamp(a, 3)
    set_flag(a, vm, "s57", vZ, 8)
    a("s_waitcnt lgkmcnt(0)\ns_barrier")
def active2(a):
    vm = Track(a, "vmcnt", 63); lg = Track(a, "lgkmcnt", 15)
    sT32, AF = 67, 128
    ACC, WF, XR, GA, G2, XF = 16, [96, 100, 104, 108], 40, 48, 64, 80
    a(f"v_bfe_u32 v9, v{vLANE}, 5, 1\nv_and_b32 v7, 31, v{vLANE}\nv_lshlrev_b32 v8, 10, v7\nv_lshl_add_u32 v8, v9, 3, v8")
    a(f"s_lshl_b32 s52, s{sT32}, 15\ns_lshl_b32 s53, s{sC}, 6\ns_add_u32 s52, s52, s53")
    for q in range(4): vm.op(f"buffer_load_dwordx2 {vr(XR+2*q,2)}, v8, {S['x']}, s52 offen offset:{16*q}")
    tr_addr(a, 10, 11, True, 6, False)
    for r in range(16): a(f"v_mov_b32 v{ACC+r}, 0")
    a(f"v_lshlrev_b32 v5, 7, v{vLANE}\ns_lshl_b32 s52, s{sT32}, 12\ns_add_u32 s52, s52, {hex(WS_FO)}")
    poll(a, vm, "0xffffffff", 5, "s52", 6)
    stamp(a, 8)
    a(f"s_lshl_b32 s52, s{sT32}, 15\ns_add_u32 s52, s52, {hex(WS_O)}")
    for ks in range(32):
        vm.op(f"buffer_load_dwordx4 {vr(AF+4*ks,4)}, v{vL16}, {S['ws']}, s52 offen offset:{1024*(ks%4)} sc1", ("o", ks))
        if ks % 4 == 3 and ks < 31: a("s_add_u32 s52, s52, 4096")
    def rdWo(ks): return [(f"ds_read_b64_tr_b16 {vr(WF[ks&3]+2*st,2)}, v10 offset:{L_WO+1024*ks+512*st}", ("w", ks)) for st in range(2)]
    lg.reset()
    for x in rdWo(0) + rdWo(1) + rdWo(2): lg.op(*x)
    for ks in range(32):
        if ks + 3 < 32:
            for x in rdWo(ks+3): lg.op(*x)
        lg.wait(("w", ks)); vm.wait(("o", ks))
        a(f"v_mfma_f32_32x32x16_bf16 {vr(ACC,16)}, {vr(WF[ks&3],4)}, {vr(AF+4*ks,4)}, {vr(ACC,16)}")
    a("s_barrier")
    a(f"v_lshlrev_b32 v5, 4, v9\nv_add_u32 v5, {L_GA}, v5")
    for q in range(4): a(f"ds_read_b128 {vr(GA+4*q,4)}, v5 offset:{32*q}")
    for q in range(4): a(f"ds_read_b128 {vr(G2+4*q,4)}, v5 offset:{128+32*q}")
    for q in range(4):
        for h in range(2): a(f"v_lshlrev_b32 v{XF+4*q+2*h}, 16, v{XR+2*q+h}\nv_and_b32 v{XF+4*q+2*h+1}, 0xffff0000, v{XR+2*q+h}")
    a(f"s_lshl_b32 s52, s{sT32}, 15\ns_lshl_b32 s53, s{sC}, 11\ns_add_u32 s52, s52, s53\ns_add_u32 s53, s52, {hex(WS_Y)}\ns_add_u32 s52, s52, {hex(WS_X1)}")
    a(f"s_lshl_b32 s54, s{sC}, 14\ns_lshl_b32 s55, s{sT32}, 8\ns_add_u32 s54, s54, s55\ns_add_u32 s54, s54, {hex(WS_STATS)}")
    a(f"s_lshl_b32 s55, s{sT32}, 11\ns_lshl_b32 s56, s{sC}, 7\ns_add_u32 s56, s55, s56\ns_add_u32 s56, s56, {hex(WS_FX1)}\ns_add_u32 s55, s55, {hex(WS_FX1)}")
    a(f"v_lshlrev_b32 v6, 2, v{vLANE}")
    a("s_waitcnt lgkmcnt(4)")
    for r in range(16): a(f"v_fmac_f32 v{XF+r}, v{ACC+r}, v{GA+r}")
    a("s_waitcnt lgkmcnt(0)")
    for r in range(16): a(f"v_mul_f32 v{ACC+r}, v{XF+r}, v{G2+r}")
    for r in range(8): a(f"v_cvt_pk_bf16_f32 v{32+r}, v{ACC+2*r}, v{ACC+2*r+1}")
    vm.op(f"buffer_store_dwordx4 v[32:35], v{vL16}, {S['ws']}, s53 offen sc1"); vm.op(f"buffer_store_dwordx4 v[36:39], v{vL16}, {S['ws']}, s53 offen offset:1024 sc1")
    a(f"v_add_f32 v48, v{XF}, v{XF+1}\nv_mul_f32 v49, v{XF}, v{XF}\nv_fmac_f32 v49, v{XF+1}, v{XF+1}")
    for r in range(2, 16): a(f"v_add_f32 v48, v48, v{XF+r}\nv_fmac_f32 v49, v{XF+r}, v{XF+r}")
    for r in range(8): a(f"v_cvt_pk_bf16_f32 v{40+r}, v{XF+2*r}, v{XF+2*r+1}")
    a("v_permlane32_swap_b32 v48, v49\nv_add_f32 v48, v48, v49")
    vm.op(f"buffer_store_dword v48, v6, {S['ws']}, s54 offen sc1")
    vm.op(f"buffer_store_dwordx4 v[40:43], v{vL16}, {S['ws']}, s52 offen sc1"); vm.op(f"buffer_store_dwordx4 v[44:47], v{vL16}, {S['ws']}, s52 offen offset:1024 sc1")
    set_flag(a, vm, "s56", vZ, 8)
    stamp(a, 9)
    ACC, WF, WH, ST = 16, [80, 92], [104, 108], 112
    vF, vH = [10, 11, 12, 13], [4, 7, 14, 15]
    tr_addr(a, 10, 11, True, 6, False)
    a(f"v_add_u32 v10, {L_W1}, v10\nv_add_u32 v11, 0x8000, v10\nv_add_u32 v12, 0x10000, v10\nv_add_u32 v13, 0x18000, v10")
    half_tr_addr(a, 4, 7)
    a(f"v_add_u32 v4, {L_W1}, v4\nv_add_u32 v7, 0x8000, v4\nv_add_u32 v14, 0x10000, v4\nv_add_u32 v15, 0x18000, v4")
    a(f"v_and_b32 v8, 16, v0\nv_cmp_eq_u32 vcc, 0, v8\nv_mov_b32 v8, 0xeeeeeeee\nv_mov_b32 v5, 0x44444444\nv_cndmask_b32 v8, v8, v5, vcc")
    for r in range(64): a(f"v_mov_b32 v{ACC+r}, 0")
    a(f"v_lshlrev_b32 v5, 7, v{vLANE}")
    poll(a, vm, "0xffff", 5, "s55", 9)
    stamp(a, 10)
    a(f"s_lshl_b32 s52, s{sT32}, 15\ns_add_u32 s52, s52, {hex(WS_Y)}")
    a(f"s_lshl_b32 s53, s{sT32}, 8\ns_add_u32 s53, s53, {hex(WS_STATS)}")
    for ks in range(32):
        vm.op(f"buffer_load_dwordx4 {vr(AF+4*ks,4)}, v{vL16}, {S['ws']}, s52 offen offset:{1024*(ks%4)} sc1", ("y", ks))
        if ks % 4 == 3 and ks < 31: a("s_add_u32 s52, s52, 4096")
    for q in range(16):
        vm.op(f"buffer_load_dword v{ST+q}, v6, {S['ws']}, s53 offen sc1", "st")
        if q < 15: a("s_add_u32 s53, s53, 16384")
    lg.reset()
    for x in w1_reads(0, 0, WF[0], vF): lg.op(x, ("w", 0))
    for kp in range(16):
        for e in range(2):
            ks = 2*kp + e
            if e == 0:
                R = [(x, ("w", ks+1)) for x in w1_reads(kp, 1, WF[1], vF)] + [(x, ("h", kp)) for x in w1_half_reads(kp, WH[kp & 1], vH)]
            else:
                R = [(x, ("w", ks+1)) for x in w1_reads(kp+1, 0, WF[0], vF)] if kp < 15 else []
            lg.wait(("w", ks)); vm.wait(("y", ks))
            for nt in range(3):
                a(f"v_mfma_f32_32x32x16_bf16 {vr(ACC+16*nt,16)}, {vr(WF[e]+4*nt,4)}, {vr(AF+4*ks,4)}, {vr(ACC+16*nt,16)}")
                if nt == 0: [lg.op(*x) for x in R]
            if e == 1:
                lg.wait(("h", kp))
                a(f"v_smfmac_f32_32x32x32_bf16 {vr(ACC+48,16)}, {vr(WH[kp&1],4)}, {vr(AF+8*kp,8)}, v8")
    a("s_barrier")
    stamp(a, 11)
    vm.wait("st")
    for q in range(1, 16): a(f"v_add_f32 v{ST}, v{ST}, v{ST+q}")
    a(f"v_mov_b32 v9, v{ST}\nv_permlane32_swap_b32 v{ST}, v9")
    a(f"v_mul_f32 v8, {hx(1/512)}, v{ST}\nv_mul_f32 v9, {hx(1/512)}, v9\nv_fma_f32 v9, -v8, v8, v9")
    a(f"v_max_f32 v9, 0, v9\nv_add_f32 v9, {hx(1e-5)}, v9\nv_rsq_f32 v9, v9")
    a(f"v_bfe_u32 v5, v{vLANE}, 5, 1\nv_lshlrev_b32 v14, 7, v5\nv_add_u32 v14, {L_UW}, v14")
    a(f"v_mul_f32 v10, {hx(-LOG2E)}, v9\nv_mul_f32 v9, v10, v8\nv_sub_f32 v9, 0, v9\nv_mov_b32 v8, v10")
    a(f"s_mul_i32 s52, s{sT32}, {112*1024}\ns_mul_i32 s53, s{sC}, 7168\ns_add_u32 s52, s52, s53\ns_add_u32 s52, s52, {hex(WS_H)}")
    a(f"s_lshl_b32 s55, s{sT32}, 11\ns_lshl_b32 s56, s{sC}, 7\ns_add_u32 s56, s55, s56\ns_add_u32 s56, s56, {hex(WS_FH)}")
    U = [128, 160]; E = 192
    def rdUW(nt):
        n = 4 if nt < 3 else 2
        for q in range(n): lg.op(f"ds_read_b128 {vr(U[nt&1]+4*q,4)}, v14 offset:{256*nt+16*q}", ("u", nt))
        for q in range(n): lg.op(f"ds_read_b128 {vr(U[nt&1]+16+4*q,4)}, v14 offset:{256*nt+64+16*q}", ("u", nt))
    lg.reset(); rdUW(0)
    for r in range(8): a(f"v_add_f32 v{ACC+48+r}, v{ACC+48+r}, v{ACC+56+r}")
    for nt in range(4):
        u = U[nt & 1]; acc = ACC + 16*nt; n = 16 if nt < 3 else 8
        lg.wait(("u", nt))
        if nt < 3: rdUW(nt+1)
        for r in range(0, n, 2): a(f"v_pk_fma_f32 {vr(u+r,2)}, {vr(u+r,2)}, v[8:9], {vr(u+16+r,2)} op_sel:[0,1,0] op_sel_hi:[1,1,1]")
        for r in range(0, n, 2): a(f"v_pk_fma_f32 {vr(acc+r,2)}, {vr(acc+r,2)}, v[8:9], {vr(u+r,2)} op_sel:[0,0,0] op_sel_hi:[1,0,1]")
        for r in range(n): a(f"v_exp_f32 v{E+r}, v{acc+r}")
        for r in range(0, n, 2): a(f"v_pk_add_f32 {vr(E+r,2)}, {vr(E+r,2)}, 1.0 op_sel_hi:[1,0]")
        for r in range(n): a(f"v_rcp_f32 v{E+r}, v{E+r}")
        for r in range(0, n, 2): a(f"v_pk_mul_f32 {vr(acc+r,2)}, {vr(acc+r,2)}, {vr(E+r,2)}")
        o = 208 + 8*nt
        for r in range(n//2): a(f"v_cvt_pk_bf16_f32 v{o+r}, v{acc+2*r}, v{acc+2*r+1}")
        if nt == 2: a("s_add_u32 s52, s52, 4096")
        vm.op(f"buffer_store_dwordx4 {vr(o,4)}, v{vL16}, {S['ws']}, s52 offen offset:{2048*(nt&1)} sc1")
        if nt < 3: vm.op(f"buffer_store_dwordx4 {vr(o+4,4)}, v{vL16}, {S['ws']}, s52 offen offset:{2048*(nt&1)+1024} sc1")
    set_flag(a, vm, "s56", vZ, 8)
    stamp(a, 12)
    ACC, WF, GB, XR, NR = [16, 32], [48, 56, 88], 64, 80, 32
    sTT, sKH, sT5, sF5 = 54, 55, 57, 58
    a(f"s_and_b32 s{sTT}, s{sW}, 1\ns_lshr_b32 s{sKH}, s{sW}, 1")
    a(f"s_lshr_b32 s52, s{sC}, 3\ns_lshl_b32 s52, s52, 1\ns_lshl_b32 s{sT5}, s{sTB}, 2\ns_add_u32 s{sT5}, s{sT5}, s52\ns_add_u32 s{sT5}, s{sT5}, s{sTT}")
    a(f"s_and_b32 s{sF5}, s{sC}, 7\ns_lshl_b32 s{sF5}, s{sF5}, 1\ns_add_u32 s{sF5}, s{sF5}, s{sKH}")
    tr_addr(a, 10, 11, True, 7, True)
    a(f"s_lshl_b32 s52, s{sKH}, 6\nv_xor_b32 v10, s52, v10\ns_lshl_b32 s52, s{sKH}, 13\nv_add_u32 v10, s52, v10\nv_xor_b32 v11, 64, v10")
    for r in range(32): a(f"v_mov_b32 v{16+r}, 0")
    a(f"v_lshlrev_b32 v5, 7, v{vLANE}\ns_lshl_b32 s52, s{sT5}, 11\ns_lshl_b32 s53, s{sF5}, 7\ns_add_u32 s53, s53, s52\ns_add_u32 s53, s53, {hex(WS_FX1)}")
    poll(a, vm, "1", 5, "s53", 9)
    a(f"s_lshl_b32 s53, s{sT5}, 15\ns_lshl_b32 s59, s{sF5}, 11\ns_add_u32 s53, s53, s59\ns_add_u32 s53, s53, {hex(WS_X1)}")
    for q in range(2): vm.op(f"buffer_load_dwordx4 {vr(XR+4*q,4)}, v{vL16}, {S['ws']}, s53 offen offset:{1024*q} sc1")
    a(f"s_lshl_b32 s53, s{sKH}, 10\ns_add_u32 s52, s52, s53\ns_add_u32 s52, s52, {hex(WS_FH)}")
    poll(a, vm, "0xff", 5, "s52", 9)
    stamp(a, 13)
    a(f"s_mul_i32 s52, s{sT5}, {112*1024}\ns_mul_i32 s53, s{sKH}, {56*1024}\ns_add_u32 s52, s52, s53\ns_add_u32 s52, s52, {hex(WS_H)}")
    def ldH(ks):
        vm.op(f"buffer_load_dwordx4 {vr(AF+4*(ks%NR),4)}, v{vL16}, {S['ws']}, s52 offen offset:{1024*(ks%4)} sc1", ("h", ks))
        if ks % 4 == 3: a("s_add_u32 s52, s52, 4096")
    PF = 16
    for ks in range(PF):
        ldH(ks)
        if ks == 7: a("s_barrier")
    slot = lambda s: s if s < 9 else s - 9
    def rdW2(ks):
        s, k = ks // 4, ks % 4
        return [(f"ds_read_b64_tr_b16 {vr(WF[ks%3]+4*n+2*st,2)}, v{12+n} offset:{2048*k+1024*st}", ("w", ks)) for n in range(2) for st in range(2)]
    def setslot(s): a(f"v_add_u32 v12, {16384*slot(s)}, v10\nv_add_u32 v13, {16384*slot(s)}, v11")
    lg.reset(); setslot(0)
    for x in rdW2(0) + rdW2(1): lg.op(*x)
    for ks in range(56):
        n = ks + 2
        lg.wait(("w", ks))
        if ks in (11, 19): a("s_barrier")
        if n < 56 and n % 4 == 0:
            if n // 4 in (9, 12): a("s_barrier")
            setslot(n // 4)
        vm.wait(("h", ks))
        a(f"v_mfma_f32_32x32x16_bf16 {vr(ACC[0],16)}, {vr(WF[ks%3],4)}, {vr(AF+4*(ks%NR),4)}, {vr(ACC[0],16)}")
        if n < 56: [lg.op(*x) for x in rdW2(n)]
        a(f"v_mfma_f32_32x32x16_bf16 {vr(ACC[1],16)}, {vr(WF[ks%3]+4,4)}, {vr(AF+4*(ks%NR),4)}, {vr(ACC[1],16)}")
        if ks + PF < 56: ldH(ks + PF)
    stamp(a, 14)
    a(f"s_xor_b32 s52, s{sW}, 2\ns_lshl_b32 s52, s52, 12\ns_add_u32 s52, s52, {16384*5}\nv_add_u32 v5, s52, v{vL16}")
    a(f"s_lshl_b32 s52, s{sW}, 12\ns_add_u32 s52, s52, {16384*5}\nv_add_u32 v6, s52, v{vL16}")
    a(f"v_bfe_u32 v9, v{vLANE}, 5, 1\nv_lshlrev_b32 v7, 4, v9\ns_lshl_b32 s52, s{sKH}, 7\ns_add_u32 s52, s52, {L_GB}\nv_add_u32 v7, s52, v7")
    for q in range(4): a(f"ds_read_b128 {vr(GB+4*q,4)}, v7 offset:{32*q}")
    XF = 96
    for r in range(8): a(f"v_lshlrev_b32 v{XF+2*r}, 16, v{XR+r}\nv_and_b32 v{XF+2*r+1}, 0xffff0000, v{XR+r}")
    for q in range(4): a(f"ds_write_b128 v5, {vr(ACC[1]+4*q,4)} offset:{1024*q}")
    a("s_waitcnt lgkmcnt(0)\ns_barrier")
    for q in range(4): a(f"ds_read_b128 {vr(ACC[1]+4*q,4)}, v6 offset:{1024*q}")
    a(f"v_and_b32 v7, 31, v{vLANE}\nv_lshlrev_b32 v8, 10, v7\nv_lshl_add_u32 v8, v9, 4, v8")
    a(f"s_lshl_b32 s52, s{sT5}, 15\ns_lshl_b32 s53, s{sF5}, 6\ns_add_u32 s52, s52, s53")
    for q in range(4):
        a(f"s_waitcnt lgkmcnt({3-q})")
        for r in range(4*q, 4*q+4): a(f"v_add_f32 v{ACC[0]+r}, v{ACC[0]+r}, v{ACC[1]+r}")
        for r in range(4*q, 4*q+4): a(f"v_fmac_f32 v{XF+r}, v{ACC[0]+r}, v{GB+r}")
    for r in range(8): a(f"v_cvt_pk_bf16_f32 v{64+r}, v{XF+2*r}, v{XF+2*r+1}")
    for p in range(2):
        a(f"v_permlane32_swap_b32 v{64+4*p}, v{64+4*p+2}\nv_permlane32_swap_b32 v{64+4*p+1}, v{64+4*p+3}")
        vm.op(f"buffer_store_dwordx4 {vr(64+4*p,4)}, v8, {S['out']}, s52 offen offset:{32*p}")

def helper(a):
    vm = Track(a, "vmcnt", 63); lg = Track(a, "lgkmcnt", 15)
    sH, sCol = 67, 51
    a(f"s_sub_u32 s{sH}, s{sW}, 4")
    a(f"s_cmp_ge_u32 s{sH}, 2\ns_cbranch_scc1 Lh_dma")
    a(f"v_and_b32 v4, 3, v{vLANE}\ns_lshl_b32 s52, s{sH}, 2\nv_add_u32 v4, s52, v4\nv_lshrrev_b32 v5, 2, v{vLANE}")
    a("v_lshlrev_b32 v6, 10, v4\nv_lshl_add_u32 v6, v5, 4, v6")
    a(f"s_lshl_b32 s52, s{sTB}, 4\ns_add_u32 s52, s52, s{sC}\ns_lshl_b32 s53, s52, 13")
    for m in range(4): vm.op(f"buffer_load_dwordx4 {vr(16+4*m,4)}, v6, {S['x']}, s53 offen offset:{256*m}")
    a("v_lshrrev_b32 v7, 1, v5\nv_lshlrev_b32 v7, 10, v7\nv_and_b32 v8, 1, v5\nv_lshl_add_u32 v7, v8, 9, v7\nv_lshl_add_u32 v7, v4, 4, v7")
    a(f"s_lshr_b32 s53, s52, 2\ns_lshl_b32 s53, s53, 15\ns_and_b32 s54, s52, 3\ns_lshl_b32 s54, s54, 7\ns_add_u32 s53, s53, s54\ns_add_u32 s53, s53, {hex(WS_XN)}")
    a(f"s_lshl_b32 s55, s52, 7\ns_add_u32 s55, s55, {hex(WS_FXN)}")
    vm.wait_all()
    F = 32
    for r in range(16): a(f"v_lshlrev_b32 v{F+2*r}, 16, v{16+r}\nv_and_b32 v{F+2*r+1}, 0xffff0000, v{16+r}")
    def red(v, t):
        for r in (4, 8): a(f"v_add_f32_dpp v{v}, v{v}, v{v} row_ror:{r} row_mask:0xf bank_mask:0xf")
        a(f"v_mov_b32 v{t}, v{v}\nv_permlane16_swap_b32 v{v}, v{t}\nv_add_f32 v{v}, v{v}, v{t}")
        a(f"v_mov_b32 v{t}, v{v}\nv_permlane32_swap_b32 v{v}, v{t}\nv_add_f32 v{v}, v{v}, v{t}")
    a(f"v_pk_add_f32 v[64:65], {vr(F,2)}, {vr(F+2,2)}\nv_pk_add_f32 v[66:67], {vr(F+4,2)}, {vr(F+6,2)}")
    for r in range(8, 32, 4): a(f"v_pk_add_f32 v[64:65], v[64:65], {vr(F+r,2)}\nv_pk_add_f32 v[66:67], v[66:67], {vr(F+r+2,2)}")
    a("v_pk_add_f32 v[64:65], v[64:65], v[66:67]\nv_add_f32 v64, v64, v65")
    red(64, 65)
    a(f"v_mul_f32 v64, {hx(-1/512)}, v64")
    for r in range(0, 32, 2): a(f"v_pk_add_f32 {vr(F+r,2)}, {vr(F+r,2)}, v[64:65] op_sel_hi:[1,0]")
    a(f"v_pk_mul_f32 v[66:67], {vr(F,2)}, {vr(F,2)}\nv_pk_mul_f32 v[68:69], {vr(F+2,2)}, {vr(F+2,2)}")
    for r in range(4, 32, 4): a(f"v_pk_fma_f32 v[66:67], {vr(F+r,2)}, {vr(F+r,2)}, v[66:67]\nv_pk_fma_f32 v[68:69], {vr(F+r+2,2)}, {vr(F+r+2,2)}, v[68:69]")
    a("v_pk_add_f32 v[66:67], v[66:67], v[68:69]\nv_add_f32 v66, v66, v67")
    red(66, 67)
    a(f"v_mov_b32 v67, {hx(1e-5)}\nv_fmac_f32 v67, {hx(1/512)}, v66\nv_rsq_f32 v66, v67")
    for r in range(0, 32, 2): a(f"v_pk_mul_f32 {vr(F+r,2)}, {vr(F+r,2)}, v[66:67] op_sel_hi:[1,0]")
    for m in range(4):
        for r in range(4): a(f"v_cvt_pk_bf16_f32 v{16+4*m+r}, v{F+8*m+2*r}, v{F+8*m+2*r+1}")
        vm.op(f"buffer_store_dwordx4 {vr(16+4*m,4)}, v7, {S['ws']}, s53 offen sc1")
        if m < 3: a("s_add_u32 s53, s53, 8192")
    vm.wait_all()
    stamp(a, 0)
    a("s_barrier")
    read_tag(a)
    a(f"s_cmp_lg_u32 s{sH}, 0\ns_cbranch_scc1 Lh_noflag")
    set_flag(a, vm, "s55", vZ, 8)
    a("Lh_noflag:")
    a(f"v_lshlrev_b32 v4, 5, v{vLANE}\ns_lshl_b32 s52, s{sH}, 11")
    gran_poll(a, vm, [f"buffer_load_dwordx4 v[16:19], v4, {S['ws']}, s52 offen sc1", f"buffer_load_dwordx4 v[20:23], v4, {S['ws']}, s52 offen offset:16 sc1"], [16, 20])
    stamp(a, 1)
    a(f"s_cmp_lg_u32 s{sH}, 0\ns_cbranch_scc1 Lh_g1")
    for j, r in enumerate((16, 18, 20, 22)): a(f"v_lshlrev_b32 v{24+2*j}, 16, v{r}\nv_and_b32 v{25+2*j}, 0xffff0000, v{r}")
    a(f"v_lshrrev_b32 v5, 2, v{vLANE}\nv_lshlrev_b32 v5, 7, v5\nv_and_b32 v6, 3, v{vLANE}\nv_lshl_add_u32 v5, v6, 4, v5\nv_add_u32 v5, {L_SA}, v5")
    a("ds_write_b128 v5, v[24:27]\nds_write_b128 v5, v[28:31] offset:64")
    a("s_branch Lh_b2")
    a("Lh_g1:")
    a(f"v_lshrrev_b32 v5, 2, v{vLANE}\nv_lshlrev_b32 v5, 10, v5\nv_and_b32 v6, 3, v{vLANE}\nv_lshl_add_u32 v5, v6, 7, v5")
    a(f"v_bfe_u32 v6, v{vLANE}, 1, 1\nv_lshl_add_u32 v5, v6, 9, v5\nv_and_b32 v6, 1, v{vLANE}\nv_lshl_add_u32 v5, v6, 3, v5\nv_add_u32 v5, {L_DG}, v5")
    for j in range(8):
        r = (16, 18, 20, 22)[j // 2]
        off = 16*j + 4*(j >> 2) + 2*(j & 1)
        a(f"ds_write_b16{'_d16_hi' if j & 1 else ''} v5, v{r} offset:{off}")
    a("s_branch Lh_b2")
    a("Lh_dma:")
    a(f"s_cmp_lg_u32 s2, 0\ns_cbranch_scc1 Lh_notag\ns_cmp_lg_u32 s{sW}, 6\ns_cbranch_scc1 Lh_notag")
    a("s_memrealtime s[52:53]\ns_waitcnt lgkmcnt(0)\ns_or_b32 s52, s52, 1\nv_mov_b32 v4, s52\ns_mov_b64 exec, 1")
    a(f"buffer_store_dword v4, v{vZ}, {S['dbg']}, 0 offen sc1\ns_mov_b64 exec, -1")
    a("Lh_notag:")
    a(f"v_lshrrev_b32 v4, 2, v{vLANE}\nv_mul_u32_u24 v4, 3072, v4\nv_and_b32 v5, 3, v{vLANE}\nv_lshl_add_u32 v4, v5, 4, v4")
    a(f"s_and_b32 s54, s{sH}, 1\ns_mul_i32 s52, s54, {16*3072}\ns_lshl_b32 s53, s{sC}, 6\ns_add_u32 s52, s52, s53\ns_mul_i32 s53, s54, 3072")
    if not OPT.get("nocodepf"):
        a(f"s_getpc_b64 s[56:57]\nLh_pc:\ns_sub_u32 s56, s56, Lh_pc-{NAME}_kernel\ns_subb_u32 s57, s57, 0")
        a(f"s_lshl_b32 s58, s{sI}, 1\ns_add_u32 s58, s58, s54\ns_lshl_b32 s58, s58, 10\ns_min_u32 s58, s58, Lcode_end-{NAME}_kernel-1024\nv_add_u32 v5, s58, v{vL16}")
        a("global_load_dwordx4 v[16:19], v5, s[56:57]")
    a("s_mov_b32 s51, 16\nLh_wl:")
    a("s_mov_b32 m0, s53")
    for g in range(3): a(f"buffer_load_dwordx4 v4, {S['wqkv']}, s52 offen offset:{1024*g} lds")
    a(f"s_add_u32 s52, s52, {32*3072}\ns_add_u32 s53, s53, 6144\ns_sub_u32 s51, s51, 1\ns_cmp_lg_u32 s51, 0\ns_cbranch_scc1 Lh_wl")
    a("s_barrier")
    read_tag(a)
    a("s_waitcnt vmcnt(0)")
    stamp(a, 1)
    a("Lh_b2:")
    a("s_waitcnt lgkmcnt(0)\ns_barrier")
    vm.reset()
    a(f"s_lshl_b32 s{sCol}, s{sX}, 2\ns_sub_u32 s52, s{sI}, 8\ns_lshr_b32 s52, s52, 2\ns_add_u32 s{sCol}, s{sCol}, s52\ns_lshl_b32 s{sCol}, s{sCol}, 6")
    a(f"s_and_b32 s52, s{sI}, 3\ns_lshl_b32 s52, s52, 4\ns_add_u32 s{sCol}, s{sCol}, s52\ns_add_u32 s{sCol}, s{sCol}, 1024")
    a(f"s_sub_u32 s52, s{sI}, 8\ns_cmp_ge_u32 s52, 16\ns_cbranch_scc1 Lh_nomod")
    mod_issue(a, vm, sCol); mod_partial(a, vm)
    a("Lh_nomod:")
    if not OPT.get("nopf"):
        a(f"s_lshl_b32 s52, s2, 2\ns_add_u32 s52, s52, s{sH}\ns_mul_i32 s53, s52, 1792\ns_lshl_b32 s52, s52, 9")
        for nm in ("w1", "w2"):
            a(f"buffer_load_dwordx4 v[200:203], v{vL16}, {S[nm]}, s53 offen\nbuffer_load_dwordx4 v[204:207], v{vL16}, {S[nm]}, s53 offen offset:768")
        a(f"buffer_load_dwordx4 v[208:211], v{vL16}, {S['wo']}, s52 offen")
    a("s_waitcnt lgkmcnt(0)\ns_barrier")
    a(f"s_sub_u32 s52, s{sI}, 8\ns_cmp_ge_u32 s52, 16\ns_cbranch_scc1 Lh_nofin\ns_cmp_lg_u32 s{sH}, 0\ns_cbranch_scc1 Lh_nofin")
    mod_final(a, vm, sCol)
    a("Lh_nofin:")
def helper2(a):
    vm = Track(a, "vmcnt", 63); lg = Track(a, "lgkmcnt", 15)
    sH = 67
    vF, vH = 13, 14
    a(f"s_add_u32 s53, s{sH}, 8\ns_mul_i32 s65, s53, {32*3584}\ns_mul_i32 s52, s{sC}, 224\ns_add_u32 s65, s65, s52\ns_mul_i32 s66, s53, 7168\ns_add_u32 s66, s66, {L_W1}")
    for p in w1_kp_dma(65, 66, vF, vH) + w1_kp_dma(65, 66, vF, vH, 4*32*3584, 4*7168):
        for x in p[:-1]: a(x)
        vm.op(p[-1])
    a(f"v_lshlrev_b32 v4, 5, v{vLANE}\ns_lshl_b32 s52, s{sH}, 11\ns_add_u32 s52, s52, 4096")
    gran_poll(a, vm, [f"buffer_load_dwordx4 v[16:19], v4, {S['ws']}, s52 offen sc1", f"buffer_load_dwordx4 v[20:23], v4, {S['ws']}, s52 offen offset:16 sc1"], [16, 20])
    for j, r in enumerate((16, 18, 20, 22)): a(f"v_lshlrev_b32 v{24+2*j}, 16, v{r}\nv_and_b32 v{25+2*j}, 0xffff0000, v{r}")
    a(f"s_cmp_eq_u32 s{sH}, 1\ns_cbranch_scc1 Lh_tabg")
    a(f"s_cmp_eq_u32 s{sH}, 3\ns_cselect_b32 s53, {hx(-1/LOG2E)}, 1.0")
    a(f"s_lshl_b32 s54, s{sC}, 2\ns_and_b32 s55, s{sC}, 7\ns_lshl_b32 s55, s55, 3\ns_lshl_b32 s56, s{sH}, 6\ns_cmp_eq_u32 s{sH}, 3\ns_cselect_b32 s54, s55, s54\ns_cselect_b32 s55, 8, 4")
    a(f"s_cselect_b32 s56, 256, s56\ns_add_u32 s56, s56, {L_TAB}")
    for r in range(8): a(f"v_mul_f32 v{24+r}, s53, v{24+r}")
    a(f"v_subrev_u32 v5, s54, v{vLANE}\nv_cmp_gt_u32 vcc, s55, v5\nv_lshlrev_b32 v5, 5, v5\nv_add_u32 v5, s56, v5")
    a("s_and_saveexec_b64 s[56:57], vcc\nds_write_b128 v5, v[24:27]\nds_write_b128 v5, v[28:31] offset:16\ns_mov_b64 exec, -1")
    a(f"s_cmp_lg_u32 s{sH}, 2\ns_cbranch_scc1 Lh_tabd")
    a("Lh_tabg:")
    a(f"v_lshrrev_b32 v5, 1, v{vLANE}\nv_lshlrev_b32 v5, 6, v5\nv_and_b32 v6, 1, v{vLANE}\nv_lshl_add_u32 v5, v6, 3, v5")
    a(f"s_and_b32 s53, s{sH}, 1\ns_lshl_b32 s53, s53, 4\ns_add_u32 s53, s53, {L_G}\nv_add_u32 v5, s53, v5")
    a("v_mov_b32 v17, v18\nv_mov_b32 v21, v22\nds_write_b64 v5, v[16:17]\nds_write_b64 v5, v[20:21] offset:32")
    a("Lh_tabd:")
    a("s_waitcnt vmcnt(0) lgkmcnt(0)")
    stamp(a, 8)
    a("s_barrier")
    vm.reset()
    vW2 = 10
    a(f"v_lshrrev_b32 v{vW2}, 3, v{vLANE}\nv_lshlrev_b32 v{vW2}, 10, v{vW2}\nv_bfe_u32 v5, v{vLANE}, 4, 1\nv_lshlrev_b32 v5, 2, v5\nv_xor_b32 v5, v5, v{vLANE}\nv_and_b32 v5, 7, v5\nv_lshl_add_u32 v{vW2}, v5, 4, v{vW2}")
    a(f"s_lshl_b32 s68, s{sH}, 14\ns_and_b32 s52, s{sC}, 7\ns_lshl_b32 s52, s52, 7\ns_add_u32 s68, s68, s52\ns_lshl_b32 s69, s{sH}, 11")
    def w2_stage(s):
        sl = s if s < 9 else s - 9
        for kh in range(2):
            for hf in range(2):
                a(f"s_add_u32 m0, s69, {16384*sl+8192*kh+1024*hf}\ns_add_u32 s52, s68, {(56*kh+4*s)*16384+8192*hf}")
                vm.op(f"buffer_load_dwordx4 v{vW2}, {S['w2']}, s52 offen lds", ("w2", s))
    w2_stage(0); w2_stage(1)
    ACC, GF, WF = 16, 32, 48
    a(f"v_bfe_u32 v9, v{vLANE}, 5, 1\nv_lshlrev_b32 v6, 5, v9\nv_and_b32 v5, 1, v{vLANE}\nv_lshl_add_u32 v6, v5, 4, v6\nv_add_u32 v6, {L_G}, v6")
    for r in range(16): a(f"v_mov_b32 v{ACC+r}, 0")
    a(f"s_cmp_eq_u32 s{sH}, 3\ns_cbranch_scc1 Lh_uwh")
    tr_addr(a, 4, 5, True, 6, False)
    a(f"s_lshl_b32 s52, s{sH}, 10\ns_add_u32 s52, s52, {L_W1}\nv_add_u32 v4, s52, v4\ns_mov_b32 s51, 16")
    a("Lh_uwl:")
    for e in range(2):
        a(f"ds_read_b128 {vr(GF+4*e,4)}, v6 offset:{64*e}")
        for st in range(2): a(f"ds_read_b64_tr_b16 {vr(WF+4*e+2*st,2)}, v4 offset:{3072*e+512*st}")
    a("v_add_u32 v4, 7168, v4\nv_add_u32 v6, 128, v6\ns_sub_u32 s51, s51, 1")
    for e in range(2):
        a(f"s_waitcnt lgkmcnt({3-3*e})")
        a(f"v_mfma_f32_32x32x16_bf16 {vr(ACC,16)}, {vr(WF+4*e,4)}, {vr(GF+4*e,4)}, {vr(ACC,16)}")
    a("s_cmp_lg_u32 s51, 0\ns_cbranch_scc1 Lh_uwl")
    a("s_branch Lh_uwd")
    a("Lh_uwh:")
    half_tr_addr(a, 4, 5)
    a(f"v_add_u32 v4, {L_W1+6144}, v4\ns_mov_b32 s51, 16")
    a(f"v_and_b32 v8, 16, v0\nv_cmp_eq_u32 vcc, 0, v8\nv_mov_b32 v8, 0xeeeeeeee\nv_mov_b32 v5, 0x44444444\nv_cndmask_b32 v8, v8, v5, vcc")
    a("Lh_uwhl:")
    for e in range(2): a(f"ds_read_b128 {vr(GF+4*e,4)}, v6 offset:{64*e}")
    for st in range(2): a(f"ds_read_b64_tr_b16 {vr(WF+2*st,2)}, v4 offset:{256*st}")
    a("v_add_u32 v4, 7168, v4\nv_add_u32 v6, 128, v6\ns_sub_u32 s51, s51, 1\ns_waitcnt lgkmcnt(0)")
    a(f"v_smfmac_f32_32x32x32_bf16 {vr(ACC,16)}, {vr(WF,4)}, {vr(GF,8)}, v8")
    a("s_cmp_lg_u32 s51, 0\ns_cbranch_scc1 Lh_uwhl")
    a("s_nop 7\ns_nop 3")
    for r in range(8): a(f"v_add_f32 v{ACC+r}, v{ACC+r}, v{ACC+8+r}")
    a("Lh_uwd:")
    a(f"v_and_b32 v5, 1, v{vLANE}\nv_cmp_eq_u32 vcc, 1, v5\nv_mov_b32 v7, {hx(-LOG2E)}\nv_cndmask_b32 v7, 1.0, v7, vcc")
    a(f"v_lshlrev_b32 v6, 7, v9\nv_lshl_add_u32 v6, v5, 6, v6\ns_lshl_b32 s52, s{sH}, 8\ns_add_u32 s52, s52, {L_UW}\nv_add_u32 v6, s52, v6")
    a("s_nop 3")
    for r in range(16): a(f"v_mul_f32 v{ACC+r}, v{ACC+r}, v7")
    a("s_mov_b32 exec_lo, 3\ns_mov_b32 exec_hi, 3")
    for q in range(4): a(f"ds_write_b128 v6, {vr(ACC+4*q,4)} offset:{16*q}")
    a("s_mov_b64 exec, -1\ns_waitcnt lgkmcnt(0)")
    stamp(a, 9)
    a("s_barrier")
    for s in range(2, 9): w2_stage(s)
    vm.wait_all()
    stamp(a, 12)
    a("s_barrier")
    a("s_barrier")
    for s in (9, 10, 11): w2_stage(s)
    a("s_barrier")
    for s in (12, 13): w2_stage(s)
    vm.wait(("w2", 11))
    a("s_barrier")
    vm.wait_all()
    a("s_barrier")
    a("s_barrier")

def diag_out(a, slot):
    if not DIAG: return
    stamp(a, 15)
    a("s_memrealtime s[52:53]\ns_waitcnt vmcnt(0) lgkmcnt(0)")
    a(f"s_and_b32 s54, s{sW}, 3\ns_cmp_lg_u32 s54, 0\ns_cbranch_scc1 Ldiag{slot}")
    a("s_mov_b64 exec, 1")
    for i in range(16):
        a(f"s_sub_u32 s{70+2*i}, s{70+2*i}, s3\nv_mov_b32 v{16+i}, s{70+2*i}")
    a("v_mov_b32 v32, s69\nv_mov_b32 v33, s52" if False else "v_mov_b32 v32, v250\nv_mov_b32 v33, s52")
    a(f"s_lshl_b32 s54, s2, 8\ns_add_u32 s54, s54, {hex(WS_DIAG + 128*slot)}")
    for q in range(4): a(f"buffer_store_dwordx4 {vr(16+4*q,4)}, v{vZ}, {S['ws']}, s54 offen offset:{16*q}")
    a(f"buffer_store_dwordx2 v[32:33], v{vZ}, {S['ws']}, s54 offen offset:64")
    a(f"Ldiag{slot}:")

def build():
    a = Asm()
    a("s_cmp_ge_u32 s2, 256\ns_cbranch_scc1 Lend")
    for nm in ("x", "wmod", "c", "ws", "dbg", "wqkv", "wo", "w1", "w2", "out"):
        a(f"s_load_dwordx2 {sr(SRD[nm],2)}, s[0:1], {KA[nm]}")
    if DIAG: a("s_memtime s[70:71]\ns_memrealtime s[72:73]")
    for nm in SRD: a(f"s_mov_b32 s{SRD[nm]+2}, {hex(SZ[nm])}\ns_mov_b32 s{SRD[nm]+3}, 0x20000")
    a(f"v_lshrrev_b32 v4, 6, v0\nv_and_b32 v{vLANE}, 63, v0\nv_readfirstlane_b32 s{sW}, v4\nv_lshlrev_b32 v{vL16}, 4, v{vLANE}\nv_mov_b32 v{vZ}, 0")
    a(f"s_and_b32 s{sX}, s2, 7\ns_lshr_b32 s{sI}, s2, 3\ns_lshl_b32 s{sTB}, s{sX}, 1\ns_lshr_b32 s52, s{sI}, 4\ns_add_u32 s{sTB}, s{sTB}, s52\ns_and_b32 s{sC}, s{sI}, 15")
    a("s_waitcnt lgkmcnt(0)")
    if DIAG:
        a("s_mov_b32 s3, s70\ns_mov_b32 s69, s72")
        for i in range(16): a(f"s_mov_b32 s{70+2*i}, s3")
    a(f"s_cmp_ge_u32 s{sW}, 4\ns_cbranch_scc1 Lhelper")
    if DIAG: a("s_mov_b32 s68, s69")
    active(a)
    a("s_branch Latt")
    a("Lhelper:")
    if DIAG: a("v_mov_b32 v250, s69")
    helper(a)
    a("Latt:")
    vm = Track(a, "vmcnt", 63)
    slow = attention(a, vm, "x")
    set_flag(a, vm, "s64", vZ, 8)
    stamp(a, 7)
    a(f"s_cmp_ge_u32 s{sW}, 4\ns_cbranch_scc1 Lhelper2")
    active2(a)
    if DIAG: a("v_mov_b32 v250, s68")
    diag_out(a, 0)
    a("s_endpgm")
    a("Lhelper2:")
    helper2(a)
    diag_out(a, 1)
    a("s_endpgm")
    slow(a)
    a("Lend:")
    return a

def emit(a):
    hdr = open(f"cdna_kernels/{NAME}.s.ref").read().split("\n")
    out = [l for l in hdr if l.startswith(";") and "@launch" not in l and "Override launch" not in l and "grid=ceil" not in l]
    out.append(f"; @launch grid=(256,1,1) block=(512,1,1) lds={LDS_SIZE}")
    a.fix()
    out += ['.amdgcn_target "amdgcn-amd-amdhsa--gfx950"', ".text", f".globl {NAME}_kernel", ".p2align 8", f".type {NAME}_kernel,@function", f"{NAME}_kernel:",
            a.text(), "    s_endpgm", "Lcode_end:", '.section .rodata,"a"', ".p2align 6", f".amdhsa_kernel {NAME}_kernel", "  .amdhsa_next_free_vgpr 256",
            "  .amdhsa_next_free_sgpr 102", "  .amdhsa_accum_offset 256", "  .amdhsa_group_segment_fixed_size 0", "  .amdhsa_kernarg_size 88",
            "  .amdhsa_user_sgpr_count 2", "  .amdhsa_user_sgpr_kernarg_segment_ptr 1", "  .amdhsa_system_sgpr_workgroup_id_x 1",
            "  .amdhsa_float_denorm_mode_32 3", ".end_amdhsa_kernel"]
    return "\n".join(out) + "\n"

if __name__ == "__main__":
    import argparse
    p = argparse.ArgumentParser(); p.add_argument("out"); p.add_argument("--diag", action="store_true"); p.add_argument("--opt", default="")
    args = p.parse_args()
    DIAG = args.diag
    for o in args.opt.split(","):
        if o: OPT[o.split("=")[0]] = int(o.split("=")[1]) if "=" in o else 1
    open(args.out, "w").write(emit(build()))
```

```python
import sys, struct
from asmlib import *

NAME = "adaLN_cond__softmax_full_mha__dense_activation_silu__prompt"
WS_MODG = 0x0
WS_STATS = 0x10000
WS_FXN, WS_FKV, WS_FO, WS_FX1, WS_FH = 0x58000, 0x68000, 0x88000, 0xC8000, 0xE8000
WS_XN, WS_K, WS_V, WS_O, WS_X1, WS_Y, WS_H = 0x200000, 0x400000, 0x600000, 0x800000, 0xA00000, 0xC00000, 0xE00000
WS_DIAG = 0x1600000
WS_SIZE = 0x1700000
KA = dict(x=0, wqkv=8, wo=16, w1=32, w2=40, c=48, wmod=56, out=64, dbg=72, ws=80)
SZ = dict(x=2048*512*2, wqkv=512*1536*2, wo=512*512*2, w1=512*1792*2, w2=1792*512*2, c=1024, wmod=512*3072*2, out=2048*512*2, dbg=256, ws=WS_SIZE)
SRD = dict(x=4, wqkv=8, wo=12, w1=16, w2=20, c=24, wmod=28, out=32, dbg=36, ws=40)
S = {k: sr(v, 4) for k, v in SRD.items()}
sW, sTB, sC, sTAG, sI, sX, sR = 44, 45, 46, 47, 48, 49, 69
SPIN = 20000
def f2u(f): return struct.unpack("<I", struct.pack("<f", f))[0]
def hx(f): return hex(f2u(f))
LOG2E = 1.4426950408889634
DIAG = False
OPT = {}
L_WQKV = 0
L_DG = 96*1024
L_SA = 112*1024
L_QX = 144*1024
L_WO = 0
L_W1 = 32*1024
L_RED = 137*1024
L_TAB = 156*1024
L_GA, L_G2, L_GB, L_SCR, L_UW, L_G = L_TAB, L_TAB+128, L_TAB+256, L_TAB+512, L_TAB+1024, L_TAB+2048
LDS_SIZE = 160*1024

def stamp(a, i):
    if DIAG: a(f"s_memtime s[{70+2*i}:{71+2*i}]")

_uid = [0]
def poll(a, vm, mask, vaddr, soff, vt):
    _uid[0] += 1; n = _uid[0]
    a(f"s_mov_b64 exec, {mask}\ns_mov_b32 s50, {SPIN}")
    a(f"Lpoll{n}:")
    a(f"buffer_load_dword v{vt}, v{vaddr}, {S['ws']}, {soff} offen sc1")
    a("s_waitcnt vmcnt(0)")
    a(f"v_cmp_ne_u32 vcc, s{sTAG}, v{vt}")
    a("s_sub_u32 s50, s50, 1")
    a(f"s_cbranch_vccz Lpolld{n}")
    a(f"s_cmp_lg_u32 s50, 0\ns_cbranch_scc1 Lpoll{n}")
    a(f"Lpolld{n}:\ns_mov_b64 exec, -1")
    vm.reset()

def set_flag(a, vm, soff, vz, vt):
    vm.wait_all()
    a(f"v_mov_b32 v{vt}, s{sTAG}\ns_mov_b64 exec, 1")
    vm.op(f"buffer_store_dword v{vt}, v{vz}, {S['ws']}, {soff} offen sc1")
    a("s_mov_b64 exec, -1")

def rne_bf16(a, d, s):
    a(f"v_cvt_pk_bf16_f32 v{d}, v{s}, v{s}\nv_lshlrev_b32 v{d}, 16, v{d}")

def tr_addr(a, d, t, perm, rowbytes_log2, swz):
    a(f"v_bfe_u32 v{d}, v0, 2, 2\nv_bfe_u32 v{t}, v0, 5, 1")
    a(f"v_lshl_add_u32 v{d}, v{t}, {2 if perm else 3}, v{d}\nv_lshlrev_b32 v{d}, {rowbytes_log2}, v{d}")
    a(f"v_bfe_u32 v{t}, v0, 4, 1\nv_lshl_add_u32 v{d}, v{t}, 5, v{d}")
    a(f"v_and_b32 v{t}, 3, v0\nv_lshl_add_u32 v{d}, v{t}, 3, v{d}")
    if swz: a(f"v_bfe_u32 v{t}, v0, 3, 1\nv_lshl_add_u32 v{d}, v{t}, 6, v{d}")

def half_tr_addr(a, d, t):
    a(f"v_bfe_u32 v{d}, v0, 2, 1")
    a(f"v_bfe_u32 v{t}, v0, 4, 1\nv_lshl_add_u32 v{d}, v{t}, 1, v{d}")
    a(f"v_bfe_u32 v{t}, v0, 3, 1\nv_lshl_add_u32 v{d}, v{t}, 2, v{d}")
    a(f"v_bfe_u32 v{t}, v0, 5, 1\nv_lshl_add_u32 v{d}, v{t}, 4, v{d}")
    a(f"v_lshlrev_b32 v{d}, 5, v{d}\nv_and_b32 v{t}, 3, v0\nv_lshl_add_u32 v{d}, v{t}, 3, v{d}")

vLANE, vL16, vZ = 1, 2, 3

def mod_issue(a, vm, sCol, B=16):
    a("v_and_b32 v8, 255, v0\nv_lshrrev_b32 v4, 1, v8\nv_and_b32 v5, 1, v0")
    a("v_mul_u32_u24 v6, 6144, v4\nv_lshl_add_u32 v6, v5, 4, v6\nv_lshlrev_b32 v7, 1, v4")
    a(f"s_lshl_b32 s52, s{sCol}, 1")
    for m in range(4):
        vm.op(f"buffer_load_dwordx4 {vr(B+4*m,4)}, v6, {S['wmod']}, s52 offen", "mod")
        if m < 3: a(f"s_add_u32 s52, s52, {128*6144}")
    for m in range(4): vm.op(f"buffer_load_ushort v{B+16+m}, v7, {S['c']}, 0 offen offset:{256*m}", "mod")

def mod_partial(a, vm, B=16):
    vm.wait("mod")
    C, F, T, A = B+16, B+24, B+20, B+32
    for m in range(4): a(f"v_lshlrev_b32 v{C+m}, 16, v{C+m}")
    for m in range(4): a(f"v_mul_f32 v{T+m}, {hx(-LOG2E)}, v{C+m}")
    for m in range(4): a(f"v_exp_f32 v{T+m}, v{T+m}")
    for m in range(4): a(f"v_add_f32 v{T+m}, 1.0, v{T+m}")
    for m in range(4): a(f"v_rcp_f32 v{T+m}, v{T+m}")
    for m in range(4): a(f"v_mul_f32 v{C+m}, v{C+m}, v{T+m}")
    for m in range(4): a(f"v_cvt_pk_bf16_f32 v{C+m}, v{C+m}, v{C+m}")
    for m in range(4): a(f"v_lshlrev_b32 v{C+m}, 16, v{C+m}")
    for m in range(4):
        for r in range(4):
            a(f"v_lshlrev_b32 v{F+2*r}, 16, v{B+4*m+r}\nv_and_b32 v{F+2*r+1}, 0xffff0000, v{B+4*m+r}")
        for j in range(8):
            a(f"v_mul_f32 v{A+j}, v{F+j}, v{C}" if m == 0 else f"v_fmac_f32 v{A+j}, v{F+j}, v{C+m}")
    for j in range(4): a(f"v_permlane32_swap_b32 v{A+j}, v{A+4+j}")
    for j in range(4): a(f"v_add_f32 v{A+j}, v{A+j}, v{A+4+j}")
    for j in range(2): a(f"v_permlane16_swap_b32 v{A+j}, v{A+2+j}")
    for j in range(2): a(f"v_add_f32 v{A+j}, v{A+j}, v{A+2+j}")
    for r in (8, 4, 2):
        for j in range(2): a(f"v_add_f32_dpp v{A+j}, v{A+j}, v{A+j} row_ror:{r} row_mask:0xf bank_mask:0xf")
    a("v_bfe_u32 v8, v0, 6, 2\nv_lshlrev_b32 v8, 6, v8\nv_and_b32 v9, 1, v0\nv_lshl_add_u32 v8, v9, 5, v8")
    a("v_bfe_u32 v9, v0, 4, 1\nv_lshl_add_u32 v8, v9, 3, v8\nv_bfe_u32 v9, v0, 5, 1\nv_lshl_add_u32 v8, v9, 4, v8")
    a(f"v_add_u32 v8, {L_SCR}, v8")
    a("s_mov_b32 exec_lo, 0x00030003\ns_mov_b32 exec_hi, 0x00030003")
    a(f"ds_write_b64 v8, v[{A}:{A+1}]")
    a("s_mov_b64 exec, -1")

def mod_final(a, vm, sCol):
    a("s_mov_b64 exec, 0xff")
    a(f"v_lshlrev_b32 v8, 3, v{vLANE}\nv_add_u32 v9, {L_SCR}, v8")
    for w in range(4): a(f"ds_read_b64 {vr(240+2*w,2)}, v9 offset:{64*w}")
    a(f"s_lshr_b32 s52, s{sCol}, 9\ns_cmp_eq_u32 s52, 1\ns_cselect_b32 s53, 1.0, 0\ns_cmp_eq_u32 s52, 4\ns_cselect_b32 s53, 1.0, s53")
    a(f"s_lshl_b32 s52, s{sCol}, 2")
    a("s_waitcnt lgkmcnt(0)")
    for j in range(2): a(f"v_add_f32 v{240+j}, v{240+j}, v{242+j}\nv_add_f32 v{244+j}, v{244+j}, v{246+j}")
    for j in range(2): a(f"v_add_f32 v{240+j}, v{240+j}, v{244+j}")
    a("v_cvt_pk_bf16_f32 v242, v240, v241\nv_lshlrev_b32 v240, 16, v242\nv_and_b32 v241, 0xffff0000, v242")
    a("v_add_f32 v240, s53, v240\nv_add_f32 v241, s53, v241")
    a(f"v_cvt_pk_bf16_f32 v240, v240, v241\nv_mov_b32 v241, s{sTAG}")
    vm.op(f"buffer_store_dwordx2 v[240:241], v8, {S['ws']}, s52 offen sc1")
    a("s_mov_b64 exec, -1")

def gran_poll(a, vm, loads, regs):
    _uid[0] += 1; n = _uid[0]
    a(f"s_mov_b32 s50, {SPIN}\nLgp{n}:")
    for t in loads: a(t)
    a("s_waitcnt vmcnt(0)")
    first = True
    for r in regs:
        for o in (1, 3):
            if first: a(f"v_xor_b32 v15, s{sTAG}, v{r+o}"); first = False
            else: a(f"v_xor_b32 v14, s{sTAG}, v{r+o}\nv_or_b32 v15, v15, v14")
    a("v_cmp_ne_u32 vcc, 0, v15\ns_sub_u32 s50, s50, 1")
    a(f"s_cbranch_vccz Lgpd{n}\ns_cmp_lg_u32 s50, 0\ns_cbranch_scc1 Lgp{n}\nLgpd{n}:")
    vm.reset()

def tag_load(a, vm, v):
    vm.op(f"buffer_load_dword v{v}, v{vZ}, {S['dbg']}, 0 offen sc1", "tag")

def tag_get(a, vm, v):
    _uid[0] += 1; n = _uid[0]
    a(f"s_mov_b32 s50, {SPIN}\nLtg{n}:\nv_readfirstlane_b32 s{sTAG}, v{v}\ns_sub_u32 s50, s50, 1")
    a(f"s_cmp_lg_u32 s{sTAG}, 0\ns_cbranch_scc1 Ltgd{n}\ns_cmp_eq_u32 s50, 0\ns_cbranch_scc1 Ltgd{n}")
    a(f"buffer_load_dword v{v}, v{vZ}, {S['dbg']}, 0 offen sc1\ns_waitcnt vmcnt(0)\ns_branch Ltg{n}\nLtgd{n}:")

def mod_join(a, vm, sCol, name):
    a(f"v_mov_b32 v8, {L_SCR+256}\nv_mov_b32 v9, 1\ns_waitcnt lgkmcnt(0)\ns_mov_b64 exec, 1\nds_add_rtn_u32 v9, v8, v9\ns_mov_b64 exec, -1\ns_waitcnt lgkmcnt(0)")
    a(f"v_readfirstlane_b32 s52, v9\ns_cmp_lg_u32 s52, 3\ns_cbranch_scc1 {name}")
    mod_final(a, vm, sCol)

NRING = 6
def attention(a, vm):
    QF, OA, SB, RING = 16, 24, [56, 72], 88
    IDX = RING + 12*NRING
    vV, vWO, vW1, vW1H = 4, 12, 13, 14
    sHH, sQP, sKH, sK, sV = 54, 55, 51, 56, 57
    a(f"s_and_b32 s{sHH}, s{sW}, 1\ns_bfe_u32 s{sQP}, s{sW}, 0x10001\ns_lshr_b32 s{sKH}, s{sW}, 2")
    for i in range(2):
        a(f"s_xor_b32 s52, s{sKH}, {i}\ns_lshl_b32 s53, s{sQP}, 1\ns_add_u32 s52, s52, s53\ns_lshl_b32 s53, s{sHH}, 2\ns_add_u32 s52, s52, s53\ns_lshl_b32 s52, s52, 10\ns_add_u32 s52, s52, {L_QX}")
        a(f"v_add_u32 v5, s52, v{vL16}\nds_read_b128 {vr(QF+4*i,4)}, v5")
    a(f"v_and_b32 v{vV}, 15, v{vLANE}\nv_lshlrev_b32 v{vV}, 4, v{vV}\nv_bfe_u32 v5, v{vLANE}, 5, 1\nv_lshl_add_u32 v{vV}, v5, 8, v{vV}")
    a(f"s_lshl_b32 s58, s{sC}, 1\ns_add_u32 s58, s58, s{sHH}")
    a(f"s_lshl_b32 s59, s58, 16")
    a(f"s_lshl_b32 s52, s{sKH}, 15\ns_add_u32 s52, s52, s59\ns_add_u32 s{sK}, s52, {hex(WS_K)}\ns_add_u32 s{sV}, s52, {hex(WS_V)}")
    a("s_mov_b32 s60, 0x0000ffff\ns_mov_b32 s61, 0x0000ffff")
    a(f"s_lshl_b32 s52, s{sKH}, 16\ns_lshl_b32 s53, s{sC}, 7\ns_add_u32 s52, s52, s53\ns_add_u32 s62, s52, {hex(WS_FKV)}")
    a(f"v_and_b32 v6, 0x1b, v{vLANE}\nv_cmp_eq_u32 vcc, 16, v6\nv_mov_b32 v6, 0x3f803f80\nv_cndmask_b32 v6, 0, v6, vcc")
    for sl in range(NRING):
        for r in range(8): a(f"v_mov_b32 v{RING+12*sl+4+r}, v6")
    a(f"v_mov_b32 v{IDX}, 0xdddddddd")
    for r in range(32): a(f"v_mov_b32 v{OA+r}, 0")
    a(f"v_lshrrev_b32 v7, 2, v{vLANE}\nv_and_b32 v8, 3, v{vLANE}\nv_lshlrev_b32 v{vWO}, 10, v7\nv_lshl_add_u32 v{vWO}, v8, 4, v{vWO}")
    w1_voffs(a, vW1, vW1H)
    a(f"s_add_u32 s63, s{sW}, s{sR}\ns_and_b32 s63, s63, 7\ns_lshl_b32 s63, s63, 16\ns_lshl_b32 s52, s{sC}, 6\ns_add_u32 s63, s63, s52")
    a(f"s_lshl_b32 s64, s{sW}, 12")
    def kp_addr(d):
        return [f"s_lshl_b32 s65, s{sR}, 1", f"s_add_u32 s65, s65, s{sW}", f"s_add_u32 s65, s65, {d}", "s_and_b32 s65, s65, 15", f"s_mul_i32 s65, s65, {32*3584}",
                f"s_mul_i32 s52, s{sC}, 224", "s_add_u32 s65, s65, s52", f"s_mul_i32 s66, s{sW}, 7168", f"s_add_u32 s66, s66, {L_W1+7168*d}"]
    pre = {}
    pre[2] = [[f"s_add_u32 m0, s64, {L_WO+1024*j}", f"s_add_u32 s52, s63, {16384*j}", f"buffer_load_dwordx4 v{vWO}, {S['wo']}, s52 offen lds"] for j in range(4)]
    pre[7] = w1_kp_dma(65, 66, vW1, vW1H); pre[7][0] = kp_addr(0) + pre[7][0]
    pre[14] = w1_kp_dma(65, 66, vW1, vW1H); pre[14][0] = kp_addr(8) + pre[14][0]
    a(f"s_cmp_lt_u32 s{sW}, 4\ns_cbranch_scc1 Latt_nomod\ns_sub_u32 s52, s{sI}, 8\ns_cmp_ge_u32 s52, 16\ns_cbranch_scc1 Latt_nomod")
    a("s_waitcnt vmcnt(0)")
    mod_partial(a, vm, 200); mod_join(a, vm, 66, "Latt_nomod")
    a("Latt_nomod:")
    stamp(a, 4)
    a(f"v_lshlrev_b32 v5, 11, v{vLANE}")
    poll(a, vm, "0xffffffff", 5, "s62", 6)
    stamp(a, 5)
    def ld(kt):
        sl = kt % NRING
        vm.op(f"buffer_load_dwordx4 {vr(RING+12*sl,4)}, v{vL16}, {S['ws']}, s{sK} offen sc1", ("kv", kt))
        a("s_mov_b64 exec, s[60:61]")
        vm.op(f"buffer_load_dwordx4 {vr(RING+12*sl+4,4)}, v{vV}, {S['ws']}, s{sV} offen sc1", ("kv", kt))
        vm.op(f"buffer_load_dwordx4 {vr(RING+12*sl+8,4)}, v{vV}, {S['ws']}, s{sV} offen offset:512 sc1", ("kv", kt))
        a("s_mov_b64 exec, -1")
        a(f"s_add_u32 s{sK}, s{sK}, 1024\ns_add_u32 s{sV}, s{sV}, 1024")
    def QK(dst, sl, q): return f"v_mfma_f32_32x32x16_bf16 {vr(dst,16)}, {vr(RING+12*sl,4)}, {vr(QF+4*q,4)}, 0"
    def SM(q, sl, half, s): return f"v_smfmac_f32_32x32x32_bf16 {vr(OA+16*q,16)}, {vr(RING+12*sl+4+4*half,4)}, {vr(s+8*half,8)}, v{IDX}"
    for kt in range(NRING-1): ld(kt)
    a("s_waitcnt lgkmcnt(0)")
    vm.wait(("kv", 0))
    a(QK(SB[0], 0, 0))
    a("s_nop 7\ns_nop 3")
    for t in range(64):
        kt, q = t // 2, t % 2
        cur, prv = SB[t & 1], SB[(t + 1) & 1]
        E = [f"v_exp_f32 v{cur+r}, v{cur+r}" for r in range(16)]
        if OPT.get("prio") and q == 0:
            if kt % 2 == 0: a(f"s_setprio {OPT['prio'] & 1}")
        a(E[0]); a(E[1])
        if t > 0: a(SM((t-1) % 2, ((t-1)//2) % NRING, 1, prv))
        if q == 0 and kt + NRING - 1 < 32: ld(kt + NRING - 1)
        if q == 1 and kt in pre and not OPT.get("nopre"):
            if kt == 14: a(f"s_cmp_eq_u32 s{sW}, 7\ns_cbranch_scc1 Latt_nopre")
            q0 = list(vm.q)
            for p in pre[kt]:
                for x in p[:-1]: a(x)
                vm.op(p[-1], "pre")
            if kt == 14:
                a("Latt_nopre:")
                vm.q = q0
                vm.extra = True
        if q == 1 and kt == 22 and not OPT.get("nopre"):
            a(f"s_cmp_eq_u32 s{sW}, 7\ns_cbranch_scc1 Latt_nopf\ns_mul_i32 s52, s{sI}, 7\ns_add_u32 s52, s52, s{sW}\ns_lshl_b32 s52, s52, 13\nv_lshlrev_b32 v5, 7, v{vLANE}")
            a(f"buffer_load_dword v6, v5, {S['w2']}, s52 offen")
            a("Latt_nopf:")
        a(E[2]); a(E[3])
        if t < 63:
            if q == 1: vm.wait(("kv", kt + 1))
            a(QK(prv, ((t+1)//2) % NRING, (t+1) % 2))
        for r in range(4, 10): a(E[r])
        a(SM(q, kt % NRING, 0, cur))
        for r in range(10, 16): a(E[r])
    a("s_nop 0")
    a(SM(1, 31 % NRING, 1, SB[1]))
    stamp(a, 6)
    a(f"s_xor_b32 s52, s{sW}, 4\ns_mul_i32 s52, s52, 2304\ns_add_u32 s52, s52, {L_RED}\ns_mul_i32 s53, s{sW}, 2304\ns_add_u32 s53, s53, {L_RED}")
    a(f"v_lshlrev_b32 v5, 2, v{vLANE}\nv_add_u32 v6, s52, v{vL16}\nv_add_u32 v7, s52, v5\nv_add_u32 v8, s53, v{vL16}\nv_add_u32 v9, s53, v5")
    a(f"s_lshl_b32 s52, s{sTB}, 2\ns_lshl_b32 s53, s{sQP}, 1\ns_add_u32 s52, s52, s53\ns_add_u32 s52, s52, s{sKH}\ns_lshl_b32 s52, s52, 5\ns_add_u32 s52, s52, s58")
    a(f"s_lshl_b32 s63, s52, 10\ns_add_u32 s63, s63, {hex(WS_O)}\ns_lshl_b32 s64, s52, 7\ns_add_u32 s64, s64, {hex(WS_FO)}")
    a(f"ds_write_b128 v6, {vr(OA+16,4)}\nds_write_b128 v6, {vr(OA+20,4)} offset:1024\nds_write_b32 v7, v{OA+24} offset:2048")
    vm.wait_all()
    a("s_waitcnt lgkmcnt(0)\ns_barrier")
    R = SB[0]
    a(f"ds_read_b128 {vr(R,4)}, v8\nds_read_b128 {vr(R+4,4)}, v8 offset:1024\nds_read_b32 v{R+8}, v9 offset:2048")
    a(f"s_mov_b32 s52, {hx(2.0**-60)}\ns_mov_b32 s53, {hx(2.0**60)}\ns_movk_i32 s65, 0x207")
    a("s_waitcnt lgkmcnt(0)\ns_barrier")
    for r in range(9): a(f"v_add_f32 v{OA+r}, v{OA+r}, v{R+r}")
    a(f"v_add_f32 v8, v{OA}, v{OA+1}")
    for r in range(2, 8): a(f"v_add_f32 v8, v8, v{OA+r}")
    a(f"v_cmp_nge_f32 vcc, v{OA+8}, s52\nv_cmp_nle_f32 s[54:55], v{OA+8}, s53\nv_cmp_class_f32 s[56:57], v8, s65")
    a("s_or_b64 vcc, vcc, s[54:55]\ns_or_b64 vcc, vcc, s[56:57]")
    a("s_cbranch_vccnz Lslow")
    a("Lnorm:")
    a(f"v_rcp_f32 v8, v{OA+8}")
    for r in range(8): a(f"v_mul_f32 v{OA+r}, v{OA+r}, v8")
    for r in range(4): a(f"v_cvt_pk_bf16_f32 v{8+r}, v{OA+2*r}, v{OA+2*r+1}")
    vm.op(f"buffer_store_dwordx4 v[8:11], v{vL16}, {S['ws']}, s63 offen sc1")
    def slow(b):
        tv = Track(b, "vmcnt", 63)
        b("Lslow:")
        b(f"v_lshlrev_b32 v5, 11, v{vLANE}\ns_lshl_b32 s52, s{sC}, 7\ns_add_u32 s62, s52, {hex(WS_FKV)}")
        poll(b, tv, "-1", 5, "s62", 6)
        b(f"s_add_u32 s{sK}, s59, {hex(WS_K)}\ns_mov_b32 s51, 64\nv_mov_b32 v8, 0xff800000")
        b("Ls1:")
        b(f"buffer_load_dwordx4 {vr(RING,4)}, v{vL16}, {S['ws']}, s{sK} offen sc1\ns_add_u32 s{sK}, s{sK}, 1024\ns_waitcnt vmcnt(0)")
        b(QK(SB[0], 0, 0))
        for r in range(0, 16, 2): b(f"v_max3_f32 v8, v{SB[0]+r}, v{SB[0]+r+1}, v8")
        b("s_sub_u32 s51, s51, 1\ns_cmp_lg_u32 s51, 0\ns_cbranch_scc1 Ls1")
        b("v_mov_b32 v9, v8\nv_permlane32_swap_b32 v8, v9\nv_max_f32 v8, v8, v9")
        for r in range(16): b(f"v_sub_f32 v{SB[1]+r}, 0, v8")
        for r in range(16): b(f"v_mov_b32 v{OA+r}, 0")
        b(f"s_add_u32 s{sK}, s59, {hex(WS_K)}\ns_add_u32 s{sV}, s59, {hex(WS_V)}\ns_mov_b32 s51, 64")
        b("Ls2:")
        b(f"buffer_load_dwordx4 {vr(RING,4)}, v{vL16}, {S['ws']}, s{sK} offen sc1\ns_mov_b64 exec, s[60:61]")
        b(f"buffer_load_dwordx4 {vr(RING+4,4)}, v{vV}, {S['ws']}, s{sV} offen sc1\nbuffer_load_dwordx4 {vr(RING+8,4)}, v{vV}, {S['ws']}, s{sV} offen offset:512 sc1")
        b(f"s_mov_b64 exec, -1\ns_add_u32 s{sK}, s{sK}, 1024\ns_add_u32 s{sV}, s{sV}, 1024\ns_waitcnt vmcnt(0)")
        b(f"v_mfma_f32_32x32x16_bf16 {vr(SB[0],16)}, {vr(RING,4)}, {vr(QF,4)}, {vr(SB[1],16)}")
        for r in range(16): b(f"v_exp_f32 v{SB[0]+r}, v{SB[0]+r}")
        b(SM(0, 0, 0, SB[0])); b(SM(0, 0, 1, SB[0]))
        b("s_sub_u32 s51, s51, 1\ns_cmp_lg_u32 s51, 0\ns_cbranch_scc1 Ls2")
        b("s_nop 7\ns_nop 7\ns_branch Lnorm")
    return slow

def w1_voffs(a, vF, vH):
    a(f"v_lshrrev_b32 v7, 2, v{vLANE}\nv_and_b32 v8, 3, v{vLANE}\nv_mul_u32_u24 v{vF}, 3584, v7\nv_lshl_add_u32 v{vF}, v8, 4, v{vF}")
    a(f"v_lshrrev_b32 v7, 1, v{vLANE}\nv_and_b32 v8, 0x13, v7\nv_bfe_u32 v9, v7, 2, 1\nv_lshl_add_u32 v8, v9, 3, v8\nv_bfe_u32 v9, v7, 3, 1\nv_lshl_add_u32 v8, v9, 2, v8")
    a(f"v_mul_u32_u24 v{vH}, 3584, v8\nv_and_b32 v8, 1, v{vLANE}\nv_lshl_add_u32 v{vH}, v8, 4, v{vH}")

def w1_kp_dma(sOff, sLds, vF, vH, dOff=0, dLds=0):
    L = []
    for e in range(2):
        for nt in range(3):
            L.append([f"s_add_u32 m0, s{sLds}, {dLds+3072*e+1024*nt}", f"s_add_u32 s52, s{sOff}, {dOff+16*3584*e+64*nt}",
                      f"buffer_load_dwordx4 v{vF}, {S['w1']}, s52 offen lds"])
    L.append([f"s_add_u32 m0, s{sLds}, {dLds+6144}", f"s_add_u32 s52, s{sOff}, {dOff+192}", f"buffer_load_dwordx4 v{vH}, {S['w1']}, s52 offen lds"])
    return L

def w1_reads(kp, e, dst, vF):
    base = 7168*kp + 3072*e
    return [f"ds_read_b64_tr_b16 {vr(dst+4*nt+2*st,2)}, v{vF[base >> 15]} offset:{(base & 0x7fff)+1024*nt+512*st}" for nt in range(3) for st in range(2)]
def w1_half_reads(kp, dst, vH):
    base = 7168*kp + 6144
    return [f"ds_read_b64_tr_b16 {vr(dst+2*st,2)}, v{vH[base >> 15]} offset:{(base & 0x7fff)+256*st}" for st in range(2)]

def rot_loads(a, vm, base_s, dst, tag, div=1):
    for ks in range(32):
        if ks % 4 == 0: a(f"s_add_u32 s53, s{sR}, {ks//4}\ns_and_b32 s53, s53, 7\ns_lshl_b32 s53, s53, 12\ns_add_u32 s53, s53, s{base_s}")
        yield ks, (f"buffer_load_dwordx4 {vr(dst+4*ks,4)}, v{vL16}, {S['ws']}, s53 offen offset:{1024*(ks%4)} sc1", (tag, ks//div))

def active(a):
    vm = Track(a, "vmcnt", 63); lg = Track(a, "lgkmcnt", 15)
    sCol, sT32 = 51, 67
    a(f"s_cmp_ge_u32 s{sI}, 8\ns_cbranch_scc1 La_warm")
    a(f"s_lshl_b32 s{sCol}, s{sX}, 1\ns_lshr_b32 s52, s{sI}, 2\ns_add_u32 s{sCol}, s{sCol}, s52\ns_lshl_b32 s{sCol}, s{sCol}, 6")
    a(f"s_and_b32 s52, s{sI}, 3\ns_lshl_b32 s52, s52, 4\ns_add_u32 s{sCol}, s{sCol}, s52")
    mod_issue(a, vm, sCol)
    tag_load(a, vm, 15)
    a(f"v_mov_b32 v8, {L_SCR+256}\nds_write_b32 v8, v{vZ}\ns_waitcnt lgkmcnt(0)\ns_barrier")
    mod_partial(a, vm)
    vm.wait_all(); tag_get(a, vm, 15)
    mod_join(a, vm, sCol, "La_p1")
    a("s_branch La_p1")
    a("La_warm:")
    vm.reset()
    a(f"s_sub_u32 s54, s{sI}, 8\ns_cmp_eq_u32 s{sW}, 3\ns_cbranch_scc1 La_warm3")
    a(f"s_mul_i32 s52, s54, 3\ns_add_u32 s52, s52, s{sW}\ns_lshl_b32 s52, s52, 3")
    a(f"v_lshrrev_b32 v4, 3, v{vLANE}\nv_add_u32 v4, s52, v4\nv_mul_u32_u24 v4, 3072, v4\nv_bfe_u32 v5, v{vLANE}, 2, 1\nv_lshl_add_u32 v4, v5, 10, v4\nv_and_b32 v5, 3, v{vLANE}\nv_lshl_add_u32 v4, v5, 7, v4")
    a(f"s_and_b32 s52, s{sX}, 1\ns_lshl_b32 s52, s52, 9\ns_add_u32 s52, s52, 1024")
    a(f"buffer_load_dword v6, v4, {S['wqkv']}, s52 offen")
    a("s_branch La_warmd")
    a("La_warm3:")
    a("s_cmp_ge_u32 s54, 8\ns_cbranch_scc1 La_warmq")
    a(f"s_lshl_b32 s52, s54, 5\ns_add_u32 s52, s52, 256\nv_lshrrev_b32 v4, 1, v{vLANE}\nv_add_u32 v4, s52, v4\nv_mul_u32_u24 v4, 6144, v4\nv_and_b32 v5, 1, v{vLANE}\nv_lshl_add_u32 v4, v5, 7, v4")
    a(f"s_lshl_b32 s52, s{sX}, 8\nbuffer_load_dword v6, v4, {S['wmod']}, s52 offen")
    a("s_branch La_warmd")
    a("La_warmq:")
    a(f"s_sub_u32 s52, s54, 8\ns_lshl_b32 s52, s52, 5\nv_lshrrev_b32 v4, 2, v{vLANE}\nv_add_u32 v4, s52, v4\nv_mul_u32_u24 v4, 3072, v4\nv_and_b32 v5, 3, v{vLANE}\nv_lshl_add_u32 v4, v5, 7, v4")
    a(f"s_and_b32 s52, s{sX}, 1\ns_lshl_b32 s52, s52, 9\nbuffer_load_dword v6, v4, {S['wqkv']}, s52 offen\ns_add_u32 s52, s52, {16*3072}\nbuffer_load_dword v7, v4, {S['wqkv']}, s52 offen")
    a("La_warmd:")
    tag_load(a, vm, 15)
    a(f"v_mov_b32 v8, {L_SCR+256}\nds_write_b32 v8, v{vZ}\ns_waitcnt lgkmcnt(0)\ns_barrier")
    vm.wait_all(); tag_get(a, vm, 15)
    a("La_p1:")
    stamp(a, 0)
    ACC = [16, 32, 48]; WF = [64, 72]; DH = [88, 104]; DG = [120, 124]; AF = 128
    a(f"s_lshl_b32 s{sT32}, s{sTB}, 2\ns_add_u32 s{sT32}, s{sT32}, s{sW}")
    a(f"v_lshlrev_b32 v5, 7, v{vLANE}\ns_lshl_b32 s52, s{sT32}, 10\ns_add_u32 s52, s52, {hex(WS_FXN)}")
    tr_addr(a, 10, 11, True, 6, False)
    a(f"v_add_u32 v12, {3072*16}, v10")
    a(f"v_bfe_u32 v11, v0, 5, 1\nv_lshlrev_b32 v11, 6, v11\nv_add_u32 v11, {L_SA}, v11\nv_add_u32 v13, {L_DG}, v{vL16}")
    a(f"v_and_b32 v14, 2, v0\nv_cmp_eq_u32 vcc, 0, v14\nv_mov_b32 v14, 0xeeeeeeee\nv_mov_b32 v15, 0x44444444\nv_cndmask_b32 v14, v14, v15, vcc")
    for r in range(48): a(f"v_mov_b32 v{16+r}, 0")
    poll(a, vm, "0xff", 5, "s52", 6)
    stamp(a, 1)
    a(f"s_lshl_b32 s52, s{sT32}, 15\ns_add_u32 s52, s52, {hex(WS_XN)}")
    XL = rot_loads(a, vm, 52, AF, "xn", 2)
    def xn_issue(n):
        for _ in range(n):
            r = next(XL, None)
            if r: vm.op(*r[1])
    xn_issue(10)
    a("s_barrier")
    def rdS(b):
        L = [(f"ds_read_b128 {vr(DH[b&1]+4*q,4)}, v11 offset:{128*b+16*q}", ("s", b)) for q in range(4)]
        return L + [(f"ds_read_b128 {vr(DG[b&1],4)}, v13 offset:{1024*b}", ("s", b))]
    def rdW(ks):
        return [(f"ds_read_b64_tr_b16 {vr(WF[ks&1]+4*(g-1)+2*st,2)}, v{10 if ks < 16 else 12} offset:{3072*(ks%16)+1024*g+512*st}", ("w", ks)) for g in (1, 2) for st in range(2)]
    def SMF(b): return f"v_smfmac_f32_32x32x32_bf16 {vr(DH[b&1],16)}, {vr(DG[b&1],4)}, {vr(AF+8*b,8)}, v14"
    def CVT(b): return [f"v_cvt_pk_bf16_f32 v{AF+8*b+r}, v{DH[b&1]+2*r}, v{DH[b&1]+2*r+1}" for r in range(8)]
    def MM(ks):
        f = AF + 4*ks; w = WF[ks & 1]
        return [f"v_mfma_f32_32x32x16_bf16 {vr(ACC[1],16)}, {vr(w,4)}, {vr(f,4)}, {vr(ACC[1],16)}",
                f"v_mfma_f32_32x32x16_bf16 {vr(ACC[2],16)}, {vr(f,4)}, {vr(w+4,4)}, {vr(ACC[2],16)}"]
    for x in rdS(0) + rdS(1): lg.op(*x)
    lg.wait(("s", 0)); vm.wait(("xn", 0))
    a(SMF(0))
    for x in rdW(0): lg.op(*x)
    xn_issue(2)
    a("s_nop 5")
    for x in CVT(0): a(x)
    stamp(a, 2)
    for b in range(16):
        nx = b + 1 < 16
        if nx:
            lg.wait(("s", b+1)); vm.wait(("xn", b+1))
            a(SMF(b+1))
        for x in rdW(2*b+1): lg.op(*x)
        lg.wait(("w", 2*b))
        M = MM(2*b); Rs = rdS(b+2) if b + 2 < 16 else []
        a(M[0]); [lg.op(*x) for x in Rs]
        a(M[1]); xn_issue(3)
        if b == 8: a("s_barrier")
        lg.wait(("w", 2*b+1))
        M = MM(2*b+1); C = CVT(b+1) if nx else []; Rw = rdW(2*b+2) if nx else []
        a(M[0]); [lg.op(*x) for x in Rw]; [a(x) for x in C[:3]]
        a(M[1]); [a(x) for x in C[3:]]
    a(f"s_lshl_b32 s52, s{sC}, 17\ns_lshl_b32 s53, s{sT32}, 10\ns_add_u32 s52, s52, s53")
    a(f"s_add_u32 s54, s52, {hex(WS_K)}\ns_add_u32 s55, s54, 65536\ns_add_u32 s56, s52, {hex(WS_V)}")
    a(f"v_and_b32 v5, 0x33, v{vLANE}\nv_bfe_u32 v6, v{vLANE}, 2, 1\nv_lshl_add_u32 v5, v6, 3, v5\nv_bfe_u32 v6, v{vLANE}, 3, 1\nv_lshl_add_u32 v5, v6, 2, v5\nv_lshlrev_b32 v5, 4, v5")
    a(f"v_and_b32 v6, 15, v{vLANE}\nv_lshlrev_b32 v6, 4, v6\nv_bfe_u32 v7, v{vLANE}, 5, 1\nv_lshl_add_u32 v6, v7, 8, v6\nv_bfe_u32 v7, v{vLANE}, 4, 1\nv_lshl_add_u32 v6, v7, 16, v6")
    for r in range(8): a(f"v_cvt_pk_bf16_f32 v{88+r}, v{ACC[1]+2*r}, v{ACC[1]+2*r+1}")
    vm.op(f"buffer_store_dwordx4 v[88:91], v5, {S['ws']}, s54 offen sc1"); vm.op(f"buffer_store_dwordx4 v[92:95], v5, {S['ws']}, s55 offen sc1")
    for r in range(8): a(f"v_cvt_pk_bf16_f32 v{96+r}, v{ACC[2]+2*r}, v{ACC[2]+2*r+1}")
    vm.op(f"buffer_store_dwordx4 v[96:99], v6, {S['ws']}, s56 offen sc1"); vm.op(f"buffer_store_dwordx4 v[100:103], v6, {S['ws']}, s56 offen offset:512 sc1")
    stamp(a, 3)
    a(f"s_lshl_b32 s57, s{sW}, 10\ns_add_u32 s57, s57, {L_QX}\nv_add_u32 v7, s57, v{vL16}")
    a(f"s_lshl_b32 s57, s{sT32}, 11\ns_lshl_b32 s58, s{sC}, 7\ns_add_u32 s57, s57, s58\ns_add_u32 s57, s57, {hex(WS_FKV)}")
    a("s_barrier")
    WQ = [64, 68, 72, 76]
    def rdQ(ks): return [(f"ds_read_b64_tr_b16 {vr(WQ[ks&3]+2*st,2)}, v{10 if ks < 16 else 12} offset:{3072*(ks%16)+512*st}", ("q", ks)) for st in range(2)]
    lg.reset()
    for x in rdQ(0) + rdQ(1) + rdQ(2): lg.op(*x)
    for ks in range(32):
        if ks + 3 < 32: [lg.op(*x) for x in rdQ(ks+3)]
        lg.wait(("q", ks))
        a(f"v_mfma_f32_32x32x16_bf16 {vr(ACC[0],16)}, {vr(WQ[ks&3],4)}, {vr(AF+4*ks,4)}, {vr(ACC[0],16)}")
        if ks == OPT.get("kvflag", 20): set_flag(a, vm, "s57", vZ, 8)
    a(f"s_mov_b32 s53, {hx(0.25*LOG2E)}")
    for r in range(16): a(f"v_mul_f32 v{ACC[0]+r}, s53, v{ACC[0]+r}")
    for r in range(8): a(f"v_cvt_pk_bf16_f32 v{64+r}, v{ACC[0]+2*r}, v{ACC[0]+2*r+1}")
    a("ds_write_b128 v7, v[64:67]\nds_write_b128 v7, v[68:71] offset:4096")
    a("s_waitcnt lgkmcnt(0)\ns_barrier")

def active2(a):
    vm = Track(a, "vmcnt", 63); lg = Track(a, "lgkmcnt", 15)
    sT32, AF = 67, 128
    ACC, WF, XR, GA, G2, XF = 16, [96, 100, 104, 108], 40, 48, 64, 80
    a(f"v_bfe_u32 v9, v{vLANE}, 5, 1\nv_and_b32 v7, 31, v{vLANE}\nv_lshlrev_b32 v8, 10, v7\nv_lshl_add_u32 v8, v9, 3, v8")
    a(f"s_lshl_b32 s52, s{sT32}, 15\ns_lshl_b32 s53, s{sC}, 6\ns_add_u32 s52, s52, s53")
    for q in range(4): vm.op(f"buffer_load_dwordx2 {vr(XR+2*q,2)}, v8, {S['x']}, s52 offen offset:{16*q}")
    tr_addr(a, 10, 11, True, 6, False)
    for r in range(16): a(f"v_mov_b32 v{ACC+r}, 0")
    a(f"v_lshlrev_b32 v5, 7, v{vLANE}\ns_lshl_b32 s52, s{sT32}, 12\ns_add_u32 s52, s52, {hex(WS_FO)}")
    poll(a, vm, "0xffffffff", 5, "s52", 6)
    stamp(a, 8)
    a(f"s_lshl_b32 s52, s{sT32}, 15\ns_add_u32 s52, s52, {hex(WS_O)}")
    OL = rot_loads(a, vm, 52, AF, "o")
    for _ in range(12): vm.op(*next(OL)[1])
    def rdWo(ks): return [(f"ds_read_b64_tr_b16 {vr(WF[ks&3]+2*st,2)}, v10 offset:{L_WO+1024*ks+512*st}", ("w", ks)) for st in range(2)]
    lg.reset()
    for x in rdWo(0) + rdWo(1) + rdWo(2): lg.op(*x)
    for ks in range(32):
        if ks + 3 < 32:
            for x in rdWo(ks+3): lg.op(*x)
        lg.wait(("w", ks)); vm.wait(("o", ks))
        a(f"v_mfma_f32_32x32x16_bf16 {vr(ACC,16)}, {vr(WF[ks&3],4)}, {vr(AF+4*ks,4)}, {vr(ACC,16)}")
        if ks + 12 < 32: vm.op(*next(OL)[1])
    a("s_barrier")
    a(f"v_lshlrev_b32 v5, 4, v9\nv_add_u32 v5, {L_GA}, v5")
    for q in range(4): a(f"ds_read_b128 {vr(GA+4*q,4)}, v5 offset:{32*q}")
    for q in range(4): a(f"ds_read_b128 {vr(G2+4*q,4)}, v5 offset:{128+32*q}")
    for q in range(4):
        for h in range(2): a(f"v_lshlrev_b32 v{XF+4*q+2*h}, 16, v{XR+2*q+h}\nv_and_b32 v{XF+4*q+2*h+1}, 0xffff0000, v{XR+2*q+h}")
    a(f"s_lshl_b32 s52, s{sT32}, 15\ns_lshl_b32 s53, s{sC}, 11\ns_add_u32 s52, s52, s53\ns_add_u32 s53, s52, {hex(WS_Y)}\ns_add_u32 s52, s52, {hex(WS_X1)}")
    a(f"s_lshl_b32 s54, s{sC}, 14\ns_lshl_b32 s55, s{sT32}, 8\ns_add_u32 s54, s54, s55\ns_add_u32 s54, s54, {hex(WS_STATS)}")
    a(f"s_lshl_b32 s55, s{sT32}, 11\ns_lshl_b32 s56, s{sC}, 7\ns_add_u32 s56, s55, s56\ns_add_u32 s56, s56, {hex(WS_FX1)}\ns_add_u32 s55, s55, {hex(WS_FX1)}")
    a(f"v_lshlrev_b32 v6, 2, v{vLANE}")
    a("s_waitcnt lgkmcnt(4)")
    for r in range(16): a(f"v_fmac_f32 v{XF+r}, v{ACC+r}, v{GA+r}")
    a("s_waitcnt lgkmcnt(0)")
    for r in range(16): a(f"v_mul_f32 v{ACC+r}, v{XF+r}, v{G2+r}")
    for r in range(8): a(f"v_cvt_pk_bf16_f32 v{32+r}, v{ACC+2*r}, v{ACC+2*r+1}")
    vm.op(f"buffer_store_dwordx4 v[32:35], v{vL16}, {S['ws']}, s53 offen sc1"); vm.op(f"buffer_store_dwordx4 v[36:39], v{vL16}, {S['ws']}, s53 offen offset:1024 sc1")
    a(f"v_add_f32 v48, v{XF}, v{XF+1}\nv_mul_f32 v49, v{XF}, v{XF}\nv_fmac_f32 v49, v{XF+1}, v{XF+1}")
    for r in range(2, 16): a(f"v_add_f32 v48, v48, v{XF+r}\nv_fmac_f32 v49, v{XF+r}, v{XF+r}")
    for r in range(8): a(f"v_cvt_pk_bf16_f32 v{40+r}, v{XF+2*r}, v{XF+2*r+1}")
    a("v_permlane32_swap_b32 v48, v49\nv_add_f32 v48, v48, v49")
    vm.op(f"buffer_store_dword v48, v6, {S['ws']}, s54 offen sc1")
    vm.op(f"buffer_store_dwordx4 v[40:43], v{vL16}, {S['ws']}, s52 offen sc1"); vm.op(f"buffer_store_dwordx4 v[44:47], v{vL16}, {S['ws']}, s52 offen offset:1024 sc1")
    set_flag(a, vm, "s56", vZ, 8)
    stamp(a, 9)
    ACC, WF, WH, ST = 16, [80, 92], [104, 108], 112
    vF, vH = [10, 11, 12, 13], [4, 7, 14, 15]
    tr_addr(a, 10, 11, True, 6, False)
    a(f"v_add_u32 v10, {L_W1}, v10\nv_add_u32 v11, 0x8000, v10\nv_add_u32 v12, 0x10000, v10\nv_add_u32 v13, 0x18000, v10")
    half_tr_addr(a, 4, 7)
    a(f"v_add_u32 v4, {L_W1}, v4\nv_add_u32 v7, 0x8000, v4\nv_add_u32 v14, 0x10000, v4\nv_add_u32 v15, 0x18000, v4")
    a(f"v_and_b32 v8, 16, v0\nv_cmp_eq_u32 vcc, 0, v8\nv_mov_b32 v8, 0xeeeeeeee\nv_mov_b32 v5, 0x44444444\nv_cndmask_b32 v8, v8, v5, vcc")
    for r in range(64): a(f"v_mov_b32 v{ACC+r}, 0")
    a(f"v_lshlrev_b32 v5, 7, v{vLANE}")
    poll(a, vm, "0xffff", 5, "s55", 9)
    stamp(a, 10)
    a(f"s_lshl_b32 s52, s{sT32}, 15\ns_add_u32 s52, s52, {hex(WS_Y)}")
    a(f"s_lshl_b32 s54, s{sT32}, 8\ns_add_u32 s54, s54, {hex(WS_STATS)}")
    YL = rot_loads(a, vm, 52, AF, "y")
    for _ in range(12): vm.op(*next(YL)[1])
    lg.reset()
    for x in w1_reads(0, 0, WF[0], vF): lg.op(x, ("w", 0))
    for kp in range(16):
        for e in range(2):
            ks = 2*kp + e
            if e == 0:
                R = [(x, ("w", ks+1)) for x in w1_reads(kp, 1, WF[1], vF)] + [(x, ("h", kp)) for x in w1_half_reads(kp, WH[kp & 1], vH)]
            else:
                R = [(x, ("w", ks+1)) for x in w1_reads(kp+1, 0, WF[0], vF)] if kp < 15 else []
            lg.wait(("w", ks)); vm.wait(("y", ks))
            for nt in range(3):
                a(f"v_mfma_f32_32x32x16_bf16 {vr(ACC+16*nt,16)}, {vr(WF[e]+4*nt,4)}, {vr(AF+4*ks,4)}, {vr(ACC+16*nt,16)}")
                if nt == 0: [lg.op(*x) for x in R]
                if nt >= 1:
                    j = 12 + 2*ks + nt - 1
                    if j < 32: vm.op(*next(YL)[1])
                    elif j < 48:
                        vm.op(f"buffer_load_dword v{ST+j-32}, v6, {S['ws']}, s54 offen sc1", "st"); a("s_add_u32 s54, s54, 16384")
            if e == 1:
                lg.wait(("h", kp))
                a(f"v_smfmac_f32_32x32x32_bf16 {vr(ACC+48,16)}, {vr(WH[kp&1],4)}, {vr(AF+8*kp,8)}, v8")
    a("s_barrier")
    stamp(a, 11)
    vm.wait("st")
    for q in range(1, 16): a(f"v_add_f32 v{ST}, v{ST}, v{ST+q}")
    a(f"v_mov_b32 v9, v{ST}\nv_permlane32_swap_b32 v{ST}, v9")
    a(f"v_mul_f32 v8, {hx(1/512)}, v{ST}\nv_mul_f32 v9, {hx(1/512)}, v9\nv_fma_f32 v9, -v8, v8, v9")
    a(f"v_max_f32 v9, 0, v9\nv_add_f32 v9, {hx(1e-5)}, v9\nv_rsq_f32 v9, v9")
    a(f"v_bfe_u32 v5, v{vLANE}, 5, 1\nv_lshlrev_b32 v14, 7, v5\nv_add_u32 v14, {L_UW}, v14")
    a(f"v_mul_f32 v10, {hx(-LOG2E)}, v9\nv_mul_f32 v9, v10, v8\nv_sub_f32 v9, 0, v9\nv_mov_b32 v8, v10")
    a(f"s_mul_i32 s52, s{sT32}, {112*1024}\ns_mul_i32 s53, s{sC}, 7168\ns_add_u32 s52, s52, s53\ns_add_u32 s52, s52, {hex(WS_H)}")
    a(f"s_lshl_b32 s55, s{sT32}, 11\ns_lshl_b32 s56, s{sC}, 7\ns_add_u32 s56, s55, s56\ns_add_u32 s56, s56, {hex(WS_FH)}")
    U = [128, 160]; E = 192
    def rdUW(nt):
        n = 4 if nt < 3 else 2
        for q in range(n): lg.op(f"ds_read_b128 {vr(U[nt&1]+4*q,4)}, v14 offset:{256*nt+16*q}", ("u", nt))
        for q in range(n): lg.op(f"ds_read_b128 {vr(U[nt&1]+16+4*q,4)}, v14 offset:{256*nt+64+16*q}", ("u", nt))
    lg.reset(); rdUW(0)
    for r in range(8): a(f"v_add_f32 v{ACC+48+r}, v{ACC+48+r}, v{ACC+56+r}")
    for nt in range(4):
        u = U[nt & 1]; acc = ACC + 16*nt; n = 16 if nt < 3 else 8
        lg.wait(("u", nt))
        if nt < 3: rdUW(nt+1)
        for r in range(0, n, 2): a(f"v_pk_fma_f32 {vr(u+r,2)}, {vr(u+r,2)}, v[8:9], {vr(u+16+r,2)} op_sel:[0,1,0] op_sel_hi:[1,1,1]")
        for r in range(0, n, 2): a(f"v_pk_fma_f32 {vr(acc+r,2)}, {vr(acc+r,2)}, v[8:9], {vr(u+r,2)} op_sel:[0,0,0] op_sel_hi:[1,0,1]")
        for r in range(n): a(f"v_exp_f32 v{E+r}, v{acc+r}")
        for r in range(0, n, 2): a(f"v_pk_add_f32 {vr(E+r,2)}, {vr(E+r,2)}, 1.0 op_sel_hi:[1,0]")
        for r in range(n): a(f"v_rcp_f32 v{E+r}, v{E+r}")
        for r in range(0, n, 2): a(f"v_pk_mul_f32 {vr(acc+r,2)}, {vr(acc+r,2)}, {vr(E+r,2)}")
        o = 208 + 8*nt
        for r in range(n//2): a(f"v_cvt_pk_bf16_f32 v{o+r}, v{acc+2*r}, v{acc+2*r+1}")
        if nt == 2: a("s_add_u32 s52, s52, 4096")
        vm.op(f"buffer_store_dwordx4 {vr(o,4)}, v{vL16}, {S['ws']}, s52 offen offset:{2048*(nt&1)} sc1")
        if nt < 3: vm.op(f"buffer_store_dwordx4 {vr(o+4,4)}, v{vL16}, {S['ws']}, s52 offen offset:{2048*(nt&1)+1024} sc1")
    set_flag(a, vm, "s56", vZ, 8)
    stamp(a, 12)
    ACC, WF, GB, XR, NR = [16, 32], [48, 56, 88], 64, 80, 32
    sTT, sKH, sT5, sF5 = 54, 55, 57, 58
    a(f"s_and_b32 s{sTT}, s{sW}, 1\ns_lshr_b32 s{sKH}, s{sW}, 1")
    a(f"s_lshr_b32 s52, s{sC}, 3\ns_lshl_b32 s52, s52, 1\ns_lshl_b32 s{sT5}, s{sTB}, 2\ns_add_u32 s{sT5}, s{sT5}, s52\ns_add_u32 s{sT5}, s{sT5}, s{sTT}")
    a(f"s_and_b32 s{sF5}, s{sC}, 7\ns_lshl_b32 s{sF5}, s{sF5}, 1\ns_add_u32 s{sF5}, s{sF5}, s{sKH}")
    tr_addr(a, 10, 11, True, 7, True)
    a(f"s_lshl_b32 s52, s{sKH}, 6\nv_xor_b32 v10, s52, v10\ns_lshl_b32 s52, s{sKH}, 13\nv_add_u32 v10, s52, v10\nv_xor_b32 v11, 64, v10")
    for r in range(32): a(f"v_mov_b32 v{16+r}, 0")
    a(f"v_lshlrev_b32 v5, 7, v{vLANE}\ns_lshl_b32 s52, s{sT5}, 11\ns_lshl_b32 s53, s{sF5}, 7\ns_add_u32 s53, s53, s52\ns_add_u32 s53, s53, {hex(WS_FX1)}")
    poll(a, vm, "1", 5, "s53", 9)
    a(f"s_lshl_b32 s53, s{sT5}, 15\ns_lshl_b32 s59, s{sF5}, 11\ns_add_u32 s53, s53, s59\ns_add_u32 s53, s53, {hex(WS_X1)}")
    for q in range(2): vm.op(f"buffer_load_dwordx4 {vr(XR+4*q,4)}, v{vL16}, {S['ws']}, s53 offen offset:{1024*q} sc1")
    a(f"s_lshl_b32 s53, s{sKH}, 10\ns_add_u32 s52, s52, s53\ns_add_u32 s52, s52, {hex(WS_FH)}")
    poll(a, vm, "0xff", 5, "s52", 9)
    stamp(a, 13)
    a(f"s_mul_i32 s52, s{sT5}, {112*1024}\ns_mul_i32 s53, s{sKH}, {56*1024}\ns_add_u32 s52, s52, s53\ns_add_u32 s52, s52, {hex(WS_H)}")
    a(f"s_lshl_b32 s59, s{sR}, 1\ns_cmp_ge_u32 s59, 14\ns_cselect_b32 s59, 0, s59")
    def ldH(ks):
        if ks % 4 == 0: a(f"s_add_u32 s53, s59, {ks//4}\ns_cmp_ge_u32 s53, 14\ns_cselect_b32 s60, 14, 0\ns_sub_u32 s53, s53, s60\ns_lshl_b32 s53, s53, 12\ns_add_u32 s53, s53, s52")
        vm.op(f"buffer_load_dwordx4 {vr(AF+4*(ks%NR),4)}, v{vL16}, {S['ws']}, s53 offen offset:{1024*(ks%4)} sc1", ("h", ks))
    PF = 12
    for ks in range(PF):
        ldH(ks)
        if ks == 7: a("s_barrier")
    slot = lambda s: s if s < 9 else s - 9
    def rdW2(ks):
        s, k = ks // 4, ks % 4
        return [(f"ds_read_b64_tr_b16 {vr(WF[ks%3]+4*n+2*st,2)}, v{12+n} offset:{2048*k+1024*st}", ("w", ks)) for n in range(2) for st in range(2)]
    def setslot(s): a(f"v_add_u32 v12, {16384*slot(s)}, v10\nv_add_u32 v13, {16384*slot(s)}, v11")
    lg.reset(); setslot(0)
    for x in rdW2(0) + rdW2(1): lg.op(*x)
    for ks in range(56):
        n = ks + 2
        lg.wait(("w", ks))
        if ks in (11, 19): a("s_barrier")
        if n < 56 and n % 4 == 0:
            if n // 4 in (9, 12): a("s_barrier")
            setslot(n // 4)
        vm.wait(("h", ks))
        a(f"v_mfma_f32_32x32x16_bf16 {vr(ACC[0],16)}, {vr(WF[ks%3],4)}, {vr(AF+4*(ks%NR),4)}, {vr(ACC[0],16)}")
        if n < 56: [lg.op(*x) for x in rdW2(n)]
        a(f"v_mfma_f32_32x32x16_bf16 {vr(ACC[1],16)}, {vr(WF[ks%3]+4,4)}, {vr(AF+4*(ks%NR),4)}, {vr(ACC[1],16)}")
        if ks + PF < 56: ldH(ks + PF)
    stamp(a, 14)
    a(f"s_xor_b32 s52, s{sW}, 2\ns_lshl_b32 s52, s52, 12\ns_add_u32 s52, s52, {16384*5}\nv_add_u32 v5, s52, v{vL16}")
    a(f"s_lshl_b32 s52, s{sW}, 12\ns_add_u32 s52, s52, {16384*5}\nv_add_u32 v6, s52, v{vL16}")
    a(f"v_bfe_u32 v9, v{vLANE}, 5, 1\nv_lshlrev_b32 v7, 4, v9\ns_lshl_b32 s52, s{sKH}, 7\ns_add_u32 s52, s52, {L_GB}\nv_add_u32 v7, s52, v7")
    for q in range(4): a(f"ds_read_b128 {vr(GB+4*q,4)}, v7 offset:{32*q}")
    XF = 96
    for r in range(8): a(f"v_lshlrev_b32 v{XF+2*r}, 16, v{XR+r}\nv_and_b32 v{XF+2*r+1}, 0xffff0000, v{XR+r}")
    for q in range(4): a(f"ds_write_b128 v5, {vr(ACC[1]+4*q,4)} offset:{1024*q}")
    a("s_waitcnt lgkmcnt(0)\ns_barrier")
    for q in range(4): a(f"ds_read_b128 {vr(ACC[1]+4*q,4)}, v6 offset:{1024*q}")
    a(f"v_and_b32 v7, 31, v{vLANE}\nv_lshlrev_b32 v8, 10, v7\nv_lshl_add_u32 v8, v9, 4, v8")
    a(f"s_lshl_b32 s52, s{sT5}, 15\ns_lshl_b32 s53, s{sF5}, 6\ns_add_u32 s52, s52, s53")
    for q in range(4):
        a(f"s_waitcnt lgkmcnt({3-q})")
        for r in range(4*q, 4*q+4): a(f"v_add_f32 v{ACC[0]+r}, v{ACC[0]+r}, v{ACC[1]+r}")
        for r in range(4*q, 4*q+4): a(f"v_fmac_f32 v{XF+r}, v{ACC[0]+r}, v{GB+r}")
    for r in range(8): a(f"v_cvt_pk_bf16_f32 v{64+r}, v{XF+2*r}, v{XF+2*r+1}")
    for p in range(2):
        a(f"v_permlane32_swap_b32 v{64+4*p}, v{64+4*p+2}\nv_permlane32_swap_b32 v{64+4*p+1}, v{64+4*p+3}")
        vm.op(f"buffer_store_dwordx4 {vr(64+4*p,4)}, v8, {S['out']}, s52 offen offset:{32*p}")

def helper(a):
    vm = Track(a, "vmcnt", 63); lg = Track(a, "lgkmcnt", 15)
    sH, sCol = 67, 66
    a(f"s_sub_u32 s{sH}, s{sW}, 4")
    a(f"s_cmp_ge_u32 s{sH}, 2\ns_cbranch_scc1 Lh_dma")
    a(f"v_and_b32 v4, 3, v{vLANE}\ns_lshl_b32 s52, s{sH}, 2\nv_add_u32 v4, s52, v4\nv_lshrrev_b32 v5, 2, v{vLANE}")
    a("v_lshlrev_b32 v6, 10, v4\nv_lshl_add_u32 v6, v5, 4, v6")
    a(f"s_lshl_b32 s52, s{sTB}, 4\ns_add_u32 s52, s52, s{sC}\ns_lshl_b32 s53, s52, 13")
    for m in range(4): vm.op(f"buffer_load_dwordx4 {vr(16+4*m,4)}, v6, {S['x']}, s53 offen offset:{256*m}")
    tag_load(a, vm, 15)
    a("s_barrier")
    a("v_lshrrev_b32 v7, 1, v5\nv_lshlrev_b32 v7, 10, v7\nv_and_b32 v8, 1, v5\nv_lshl_add_u32 v7, v8, 9, v7\nv_lshl_add_u32 v7, v4, 4, v7")
    a(f"s_lshr_b32 s53, s52, 2\ns_lshl_b32 s53, s53, 15\ns_and_b32 s54, s52, 3\ns_lshl_b32 s54, s54, 7\ns_add_u32 s53, s53, s54\ns_add_u32 s53, s53, {hex(WS_XN)}")
    a(f"s_lshl_b32 s55, s52, 1\ns_add_u32 s55, s55, s{sH}\ns_lshl_b32 s55, s55, 7\ns_add_u32 s55, s55, {hex(WS_FXN)}")
    a(f"s_cmp_lg_u32 s{sH}, 1\ns_cbranch_scc1 Lh_nozero")
    a(f"v_mov_b32 v32, 0\nv_mov_b32 v33, 0\nv_mov_b32 v34, 0\nv_mov_b32 v35, 0\nv_add_u32 v9, {L_DG}, v{vL16}")
    for j in range(16): a(f"ds_write_b128 v9, v[32:35] offset:{1024*j}")
    a("Lh_nozero:")
    vm.wait_all()
    F = 32
    a("s_waitcnt lgkmcnt(0)")
    for r in range(16): a(f"v_lshlrev_b32 v{F+2*r}, 16, v{16+r}\nv_and_b32 v{F+2*r+1}, 0xffff0000, v{16+r}")
    def red(v, t):
        for r in (4, 8): a(f"v_add_f32_dpp v{v}, v{v}, v{v} row_ror:{r} row_mask:0xf bank_mask:0xf")
        a(f"v_mov_b32 v{t}, v{v}\nv_permlane16_swap_b32 v{v}, v{t}\nv_add_f32 v{v}, v{v}, v{t}")
        a(f"v_mov_b32 v{t}, v{v}\nv_permlane32_swap_b32 v{v}, v{t}\nv_add_f32 v{v}, v{v}, v{t}")
    a(f"v_pk_add_f32 v[64:65], {vr(F,2)}, {vr(F+2,2)}\nv_pk_add_f32 v[66:67], {vr(F+4,2)}, {vr(F+6,2)}")
    for r in range(8, 32, 4): a(f"v_pk_add_f32 v[64:65], v[64:65], {vr(F+r,2)}\nv_pk_add_f32 v[66:67], v[66:67], {vr(F+r+2,2)}")
    a("v_pk_add_f32 v[64:65], v[64:65], v[66:67]\nv_add_f32 v64, v64, v65")
    red(64, 65)
    a(f"v_mul_f32 v64, {hx(-1/512)}, v64")
    for r in range(0, 32, 2): a(f"v_pk_add_f32 {vr(F+r,2)}, {vr(F+r,2)}, v[64:65] op_sel_hi:[1,0]")
    a(f"v_pk_mul_f32 v[66:67], {vr(F,2)}, {vr(F,2)}\nv_pk_mul_f32 v[68:69], {vr(F+2,2)}, {vr(F+2,2)}")
    for r in range(4, 32, 4): a(f"v_pk_fma_f32 v[66:67], {vr(F+r,2)}, {vr(F+r,2)}, v[66:67]\nv_pk_fma_f32 v[68:69], {vr(F+r+2,2)}, {vr(F+r+2,2)}, v[68:69]")
    a("v_pk_add_f32 v[66:67], v[66:67], v[68:69]\nv_add_f32 v66, v66, v67")
    red(66, 67)
    a(f"v_mov_b32 v67, {hx(1e-5)}\nv_fmac_f32 v67, {hx(1/512)}, v66\nv_rsq_f32 v66, v67")
    for r in range(0, 32, 2): a(f"v_pk_mul_f32 {vr(F+r,2)}, {vr(F+r,2)}, v[66:67] op_sel_hi:[1,0]")
    for m in range(4):
        for r in range(4): a(f"v_cvt_pk_bf16_f32 v{16+4*m+r}, v{F+8*m+2*r}, v{F+8*m+2*r+1}")
        vm.op(f"buffer_store_dwordx4 {vr(16+4*m,4)}, v7, {S['ws']}, s53 offen sc1")
        if m < 3: a("s_add_u32 s53, s53, 8192")
    tag_get(a, vm, 15)
    set_flag(a, vm, "s55", vZ, 8)
    stamp(a, 0)
    a(f"v_lshlrev_b32 v4, 5, v{vLANE}\ns_lshl_b32 s52, s{sH}, 11")
    a(f"v_lshrrev_b32 v5, 2, v{vLANE}\ns_lshl_b32 s53, s{sR}, 1\nv_subrev_u32 v5, s53, v5\nv_and_b32 v5, 15, v5\nv_and_b32 v6, 3, v{vLANE}")
    gran_poll(a, vm, [f"buffer_load_dwordx4 v[16:19], v4, {S['ws']}, s52 offen sc1", f"buffer_load_dwordx4 v[20:23], v4, {S['ws']}, s52 offen offset:16 sc1"], [16, 20])
    stamp(a, 1)
    a(f"s_cmp_lg_u32 s{sH}, 0\ns_cbranch_scc1 Lh_g1")
    for j, r in enumerate((16, 18, 20, 22)): a(f"v_lshlrev_b32 v{24+2*j}, 16, v{r}\nv_and_b32 v{25+2*j}, 0xffff0000, v{r}")
    a(f"v_lshlrev_b32 v5, 7, v5\nv_lshl_add_u32 v5, v6, 4, v5\nv_add_u32 v5, {L_SA}, v5")
    a("ds_write_b128 v5, v[24:27]\nds_write_b128 v5, v[28:31] offset:64")
    a("s_branch Lh_b2")
    a("Lh_g1:")
    a(f"v_lshlrev_b32 v5, 10, v5\nv_lshl_add_u32 v5, v6, 7, v5")
    a(f"v_bfe_u32 v6, v{vLANE}, 1, 1\nv_lshl_add_u32 v5, v6, 9, v5\nv_and_b32 v6, 1, v{vLANE}\nv_lshl_add_u32 v5, v6, 3, v5\nv_add_u32 v5, {L_DG}, v5")
    for j in range(8):
        r = (16, 18, 20, 22)[j // 2]
        a(f"ds_write_b16{'_d16_hi' if j & 1 else ''} v5, v{r} offset:{16*j + 4*(j >> 2) + 2*(j & 1)}")
    a("s_branch Lh_b2")
    a("Lh_dma:")
    vm.reset()
    a(f"s_cmp_lg_u32 s2, 0\ns_cbranch_scc1 Lh_notag\ns_cmp_lg_u32 s{sW}, 6\ns_cbranch_scc1 Lh_notag")
    a("s_memrealtime s[52:53]\ns_waitcnt lgkmcnt(0)\ns_or_b32 s52, s52, 1\nv_mov_b32 v4, s52\ns_mov_b64 exec, 1")
    a(f"buffer_store_dword v4, v{vZ}, {S['dbg']}, 0 offen sc1\ns_mov_b64 exec, -1")
    a("Lh_notag:")
    a(f"s_and_b32 s54, s{sH}, 1")
    a(f"s_getpc_b64 s[56:57]\nLh_pc:\ns_sub_u32 s56, s56, Lh_pc-{NAME}_kernel\ns_subb_u32 s57, s57, 0")
    a(f"s_lshl_b32 s58, s{sI}, 1\ns_add_u32 s58, s58, s54\ns_lshl_b32 s58, s58, 10\ns_min_u32 s58, s58, Lcode_end-{NAME}_kernel-1024\nv_add_u32 v5, s58, v{vL16}")
    a("global_load_dwordx4 v[16:19], v5, s[56:57]")
    tag_load(a, vm, 15)
    a("s_barrier")
    a(f"v_lshrrev_b32 v4, 2, v{vLANE}\nv_mul_u32_u24 v4, 3072, v4\nv_and_b32 v5, 3, v{vLANE}\nv_lshl_add_u32 v4, v5, 4, v4")
    vm.wait_all(); tag_get(a, vm, 15)
    def wloop(name, groups, thr):
        a(f"s_lshl_b32 s55, s{sR}, 2\ns_add_u32 s55, s55, s54\ns_mul_i32 s53, s54, 3072\ns_lshl_b32 s56, s{sC}, 6\ns_mov_b32 s51, 16\n{name}:")
        a(f"s_and_b32 s52, s55, 31\ns_mul_i32 s52, s52, {16*3072}\ns_mov_b32 m0, s53\ns_add_u32 s52, s52, s56")
        for g in groups: a(f"buffer_load_dwordx4 v4, {S['wqkv']}, s52 offen offset:{1024*g} lds")
        a(f"s_add_u32 s55, s55, 2\ns_add_u32 s53, s53, 6144\ns_sub_u32 s51, s51, 1\ns_waitcnt vmcnt({thr})\ns_cmp_lg_u32 s51, 0\ns_cbranch_scc1 {name}")
    wloop("Lh_wl", (1, 2), OPT.get("thr", 6))
    a("s_waitcnt vmcnt(0)")
    stamp(a, 1)
    a("Lh_b2:")
    a("s_waitcnt lgkmcnt(0)\ns_barrier")
    a(f"s_lshl_b32 s{sCol}, s{sX}, 2\ns_sub_u32 s52, s{sI}, 8\ns_lshr_b32 s52, s52, 2\ns_add_u32 s{sCol}, s{sCol}, s52\ns_lshl_b32 s{sCol}, s{sCol}, 6")
    a(f"s_and_b32 s52, s{sI}, 3\ns_lshl_b32 s52, s52, 4\ns_add_u32 s{sCol}, s{sCol}, s52\ns_add_u32 s{sCol}, s{sCol}, 1024")
    a("s_barrier")
    a(f"s_cmp_lt_u32 s{sH}, 2\ns_cbranch_scc1 Lh_noq")
    wloop("Lh_ql", (0,), 16)
    a("s_waitcnt vmcnt(0)")
    a("Lh_noq:")
    a(f"s_sub_u32 s52, s{sI}, 8\ns_cmp_ge_u32 s52, 16\ns_cbranch_scc1 Lh_nomod")
    mod_issue(a, vm, sCol, 200)
    a("Lh_nomod:")
    stamp(a, 2)
    a("s_barrier")
    a("s_barrier")

def helper2(a):
    vm = Track(a, "vmcnt", 63); lg = Track(a, "lgkmcnt", 15)
    sH = 67
    vF, vH = 13, 14
    a(f"s_cmp_lg_u32 s{sH}, 3\ns_cbranch_scc1 Lh_nokp")
    a(f"s_lshl_b32 s65, s{sR}, 1\ns_add_u32 s65, s65, 15\ns_and_b32 s65, s65, 15\ns_mul_i32 s65, s65, {32*3584}\ns_mul_i32 s52, s{sC}, 224\ns_add_u32 s65, s65, s52\ns_mov_b32 s66, {L_W1+15*7168}")
    for p in w1_kp_dma(65, 66, vF, vH):
        for x in p[:-1]: a(x)
        vm.op(p[-1])
    a("Lh_nokp:")
    a(f"v_lshlrev_b32 v4, 5, v{vLANE}\ns_lshl_b32 s52, s{sH}, 11\ns_add_u32 s52, s52, 4096")
    gran_poll(a, vm, [f"buffer_load_dwordx4 v[16:19], v4, {S['ws']}, s52 offen sc1", f"buffer_load_dwordx4 v[20:23], v4, {S['ws']}, s52 offen offset:16 sc1"], [16, 20])
    for j, r in enumerate((16, 18, 20, 22)): a(f"v_lshlrev_b32 v{24+2*j}, 16, v{r}\nv_and_b32 v{25+2*j}, 0xffff0000, v{r}")
    a(f"s_cmp_eq_u32 s{sH}, 1\ns_cbranch_scc1 Lh_tabg")
    a(f"s_cmp_eq_u32 s{sH}, 3\ns_cselect_b32 s53, {hx(-1/LOG2E)}, 1.0")
    a(f"s_lshl_b32 s54, s{sC}, 2\ns_and_b32 s55, s{sC}, 7\ns_lshl_b32 s55, s55, 3\ns_lshl_b32 s56, s{sH}, 6\ns_cmp_eq_u32 s{sH}, 3\ns_cselect_b32 s54, s55, s54\ns_cselect_b32 s55, 8, 4")
    a(f"s_cselect_b32 s56, 256, s56\ns_add_u32 s56, s56, {L_TAB}")
    for r in range(8): a(f"v_mul_f32 v{24+r}, s53, v{24+r}")
    a(f"v_subrev_u32 v5, s54, v{vLANE}\nv_cmp_gt_u32 vcc, s55, v5\nv_lshlrev_b32 v5, 5, v5\nv_add_u32 v5, s56, v5")
    a("s_and_saveexec_b64 s[56:57], vcc\nds_write_b128 v5, v[24:27]\nds_write_b128 v5, v[28:31] offset:16\ns_mov_b64 exec, -1")
    a(f"s_cmp_lg_u32 s{sH}, 2\ns_cbranch_scc1 Lh_tabd")
    a("Lh_tabg:")
    a(f"v_lshrrev_b32 v5, 1, v{vLANE}\ns_lshl_b32 s53, s{sR}, 2\nv_subrev_u32 v5, s53, v5\nv_and_b32 v5, 31, v5\nv_lshlrev_b32 v5, 6, v5\nv_and_b32 v6, 1, v{vLANE}\nv_lshl_add_u32 v5, v6, 3, v5")
    a(f"s_and_b32 s53, s{sH}, 1\ns_lshl_b32 s53, s53, 4\ns_add_u32 s53, s53, {L_G}\nv_add_u32 v5, s53, v5")
    a("v_mov_b32 v17, v18\nv_mov_b32 v21, v22\nds_write_b64 v5, v[16:17]\nds_write_b64 v5, v[20:21] offset:32")
    a("Lh_tabd:")
    a("s_waitcnt vmcnt(0) lgkmcnt(0)")
    stamp(a, 8)
    a("s_barrier")
    vm.reset()
    vW2 = 10
    a(f"v_lshrrev_b32 v{vW2}, 3, v{vLANE}\nv_lshlrev_b32 v{vW2}, 10, v{vW2}\nv_bfe_u32 v5, v{vLANE}, 4, 1\nv_lshlrev_b32 v5, 2, v5\nv_xor_b32 v5, v5, v{vLANE}\nv_and_b32 v5, 7, v5\nv_lshl_add_u32 v{vW2}, v5, 4, v{vW2}")
    a(f"s_lshl_b32 s58, s{sH}, 14\ns_and_b32 s52, s{sC}, 7\ns_lshl_b32 s52, s52, 7\ns_add_u32 s58, s58, s52\ns_lshl_b32 s59, s{sH}, 11")
    a(f"s_lshl_b32 s60, s{sR}, 1\ns_cmp_ge_u32 s60, 14\ns_cselect_b32 s60, 0, s60")
    def w2_stage(s, thr=None):
        sl = s if s < 9 else s - 9
        a(f"s_add_u32 s61, s60, {s}\ns_cmp_ge_u32 s61, 14\ns_cselect_b32 s62, 14, 0\ns_sub_u32 s61, s61, s62\ns_lshl_b32 s61, s61, 16\ns_add_u32 s61, s61, s58")
        for kh in range(2):
            for hf in range(2):
                a(f"s_add_u32 m0, s59, {16384*sl+8192*kh+1024*hf}\ns_add_u32 s52, s61, {56*kh*16384+8192*hf}")
                vm.op(f"buffer_load_dwordx4 v{vW2}, {S['w2']}, s52 offen lds", ("w2", s))
        if thr: vm.wait(("w2", s-1))
    w2_stage(0); w2_stage(1)
    ACC, GF, WF = 16, 32, 48
    a(f"v_bfe_u32 v9, v{vLANE}, 5, 1\nv_lshlrev_b32 v6, 5, v9\nv_and_b32 v5, 1, v{vLANE}\nv_lshl_add_u32 v6, v5, 4, v6\nv_add_u32 v6, {L_G}, v6")
    for r in range(16): a(f"v_mov_b32 v{ACC+r}, 0")
    a(f"s_cmp_eq_u32 s{sH}, 3\ns_cbranch_scc1 Lh_uwh")
    tr_addr(a, 4, 5, True, 6, False)
    a(f"s_lshl_b32 s52, s{sH}, 10\ns_add_u32 s52, s52, {L_W1}\nv_add_u32 v4, s52, v4\ns_mov_b32 s51, 16")
    a("Lh_uwl:")
    for e in range(2):
        a(f"ds_read_b128 {vr(GF+4*e,4)}, v6 offset:{64*e}")
        for st in range(2): a(f"ds_read_b64_tr_b16 {vr(WF+4*e+2*st,2)}, v4 offset:{3072*e+512*st}")
    a("v_add_u32 v4, 7168, v4\nv_add_u32 v6, 128, v6\ns_sub_u32 s51, s51, 1")
    for e in range(2):
        a(f"s_waitcnt lgkmcnt({3-3*e})")
        a(f"v_mfma_f32_32x32x16_bf16 {vr(ACC,16)}, {vr(WF+4*e,4)}, {vr(GF+4*e,4)}, {vr(ACC,16)}")
    a("s_cmp_lg_u32 s51, 0\ns_cbranch_scc1 Lh_uwl")
    a("s_branch Lh_uwd")
    a("Lh_uwh:")
    half_tr_addr(a, 4, 5)
    a(f"v_add_u32 v4, {L_W1+6144}, v4\ns_mov_b32 s51, 16")
    a(f"v_and_b32 v8, 16, v0\nv_cmp_eq_u32 vcc, 0, v8\nv_mov_b32 v8, 0xeeeeeeee\nv_mov_b32 v5, 0x44444444\nv_cndmask_b32 v8, v8, v5, vcc")
    a("Lh_uwhl:")
    for e in range(2): a(f"ds_read_b128 {vr(GF+4*e,4)}, v6 offset:{64*e}")
    for st in range(2): a(f"ds_read_b64_tr_b16 {vr(WF+2*st,2)}, v4 offset:{256*st}")
    a("v_add_u32 v4, 7168, v4\nv_add_u32 v6, 128, v6\ns_sub_u32 s51, s51, 1\ns_waitcnt lgkmcnt(0)")
    a(f"v_smfmac_f32_32x32x32_bf16 {vr(ACC,16)}, {vr(WF,4)}, {vr(GF,8)}, v8")
    a("s_cmp_lg_u32 s51, 0\ns_cbranch_scc1 Lh_uwhl")
    a("s_nop 7\ns_nop 3")
    for r in range(8): a(f"v_add_f32 v{ACC+r}, v{ACC+r}, v{ACC+8+r}")
    a("Lh_uwd:")
    a(f"v_and_b32 v5, 1, v{vLANE}\nv_cmp_eq_u32 vcc, 1, v5\nv_mov_b32 v7, {hx(-LOG2E)}\nv_cndmask_b32 v7, 1.0, v7, vcc")
    a(f"v_lshlrev_b32 v6, 7, v9\nv_lshl_add_u32 v6, v5, 6, v6\ns_lshl_b32 s52, s{sH}, 8\ns_add_u32 s52, s52, {L_UW}\nv_add_u32 v6, s52, v6")
    a("s_nop 3")
    for r in range(16): a(f"v_mul_f32 v{ACC+r}, v{ACC+r}, v7")
    a("s_mov_b32 exec_lo, 3\ns_mov_b32 exec_hi, 3")
    for q in range(4): a(f"ds_write_b128 v6, {vr(ACC+4*q,4)} offset:{16*q}")
    a("s_mov_b64 exec, -1\ns_waitcnt lgkmcnt(0)")
    stamp(a, 9)
    a("s_barrier")
    for s in range(2, 9): w2_stage(s, True)
    vm.wait_all()
    stamp(a, 12)
    a("s_barrier")
    a("s_barrier")
    for s in (9, 10, 11): w2_stage(s)
    a("s_barrier")
    for s in (12, 13): w2_stage(s)
    vm.wait(("w2", 11))
    a("s_barrier")
    vm.wait_all()
    a("s_barrier")
    a("s_barrier")

def diag_out(a, slot):
    if not DIAG: return
    stamp(a, 15)
    a("s_memrealtime s[52:53]\ns_waitcnt vmcnt(0) lgkmcnt(0)")
    a(f"s_and_b32 s54, s{sW}, 3\ns_cmp_lg_u32 s54, 0\ns_cbranch_scc1 Ldiag{slot}")
    a("s_mov_b64 exec, 1")
    for i in range(16):
        a(f"s_sub_u32 s{70+2*i}, s{70+2*i}, s3\nv_mov_b32 v{16+i}, s{70+2*i}")
    a("v_mov_b32 v32, s69\nv_mov_b32 v33, s52" if False else "v_mov_b32 v32, v250\nv_mov_b32 v33, s52")
    a(f"s_lshl_b32 s54, s2, 8\ns_add_u32 s54, s54, {hex(WS_DIAG + 128*slot)}")
    for q in range(4): a(f"buffer_store_dwordx4 {vr(16+4*q,4)}, v{vZ}, {S['ws']}, s54 offen offset:{16*q}")
    a(f"buffer_store_dwordx2 v[32:33], v{vZ}, {S['ws']}, s54 offen offset:64")
    a(f"Ldiag{slot}:")

def build():
    a = Asm()
    a("s_cmp_ge_u32 s2, 256\ns_cbranch_scc1 Lend")
    for nm in ("x", "wmod", "c", "ws", "dbg", "wqkv", "wo", "w1", "w2", "out"):
        a(f"s_load_dwordx2 {sr(SRD[nm],2)}, s[0:1], {KA[nm]}")
    if DIAG: a("s_memtime s[70:71]\ns_memrealtime s[72:73]")
    for nm in SRD: a(f"s_mov_b32 s{SRD[nm]+2}, {hex(SZ[nm])}\ns_mov_b32 s{SRD[nm]+3}, 0x20000")
    a(f"v_lshrrev_b32 v4, 6, v0\nv_and_b32 v{vLANE}, 63, v0\nv_readfirstlane_b32 s{sW}, v4\nv_lshlrev_b32 v{vL16}, 4, v{vLANE}\nv_mov_b32 v{vZ}, 0")
    a(f"s_and_b32 s{sX}, s2, 7\ns_lshr_b32 s{sI}, s2, 3\ns_lshr_b32 s{sTB}, s{sX}, 1\ns_lshl_b32 s{sTB}, s{sTB}, 2\ns_lshr_b32 s52, s{sI}, 3\ns_add_u32 s{sTB}, s{sTB}, s52")
    a(f"s_and_b32 s{sR}, s{sI}, 7\ns_and_b32 s{sC}, s{sX}, 1\ns_lshl_b32 s{sC}, s{sC}, 3\ns_add_u32 s{sC}, s{sC}, s{sR}")
    a("s_waitcnt lgkmcnt(0)")
    if DIAG:
        a("s_mov_b32 s3, s70\ns_mov_b32 s68, s72")
        for i in range(16): a(f"s_mov_b32 s{70+2*i}, s3")
    a(f"s_cmp_ge_u32 s{sW}, 4\ns_cbranch_scc1 Lhelper")
    active(a)
    a("s_branch Latt")
    a("Lhelper:")
    if DIAG: a("v_mov_b32 v250, s68")
    helper(a)
    a("Latt:")
    vm = Track(a, "vmcnt", 63)
    slow = attention(a, vm)
    set_flag(a, vm, "s64", vZ, 8)
    stamp(a, 7)
    a(f"s_cmp_ge_u32 s{sW}, 4\ns_cbranch_scc1 Lhelper2")
    active2(a)
    if DIAG: a("v_mov_b32 v250, s68")
    diag_out(a, 0)
    a("s_endpgm")
    a("Lhelper2:")
    helper2(a)
    diag_out(a, 1)
    a("s_endpgm")
    slow(a)
    a("Lend:")
    return a

def emit(a):
    hdr = open(f"cdna_kernels/{NAME}.s.ref").read().split("\n")
    out = [l for l in hdr if l.startswith(";") and "@launch" not in l and "Override launch" not in l and "grid=ceil" not in l]
    out.append(f"; @launch grid=(256,1,1) block=(512,1,1) lds={LDS_SIZE}")
    a.fix()
    out += ['.amdgcn_target "amdgcn-amd-amdhsa--gfx950"', ".text", f".globl {NAME}_kernel", ".p2align 8", f".type {NAME}_kernel,@function", f"{NAME}_kernel:",
            a.text(), "    s_endpgm", "Lcode_end:", '.section .rodata,"a"', ".p2align 6", f".amdhsa_kernel {NAME}_kernel", "  .amdhsa_next_free_vgpr 256",
            "  .amdhsa_next_free_sgpr 102", "  .amdhsa_accum_offset 256", "  .amdhsa_group_segment_fixed_size 0", "  .amdhsa_kernarg_size 88",
            "  .amdhsa_user_sgpr_count 2", "  .amdhsa_user_sgpr_kernarg_segment_ptr 1", "  .amdhsa_system_sgpr_workgroup_id_x 1",
            "  .amdhsa_float_denorm_mode_32 3", ".end_amdhsa_kernel"]
    return "\n".join(out) + "\n"

if __name__ == "__main__":
    import argparse
    p = argparse.ArgumentParser(); p.add_argument("out"); p.add_argument("--diag", action="store_true"); p.add_argument("--opt", default="")
    args = p.parse_args()
    DIAG = args.diag
    for o in args.opt.split(","):
        if o: OPT[o.split("=")[0]] = int(o.split("=")[1]) if "=" in o else 1
    open(args.out, "w").write(emit(build()))
```

```python
import sys, struct
from asmlib import *

NAME = "adaLN_cond__softmax_full_mha__dense_activation_silu__prompt"
WS_MODG = 0x0
WS_STATS = 0x10000
WS_FXN, WS_FKV, WS_FO, WS_FX1, WS_FH = 0x50000, 0x52000, 0x56000, 0x5E000, 0x62000
WS_XN, WS_K, WS_V, WS_O, WS_X1, WS_Y, WS_H = 0x200000, 0x400000, 0x600000, 0x800000, 0xA00000, 0xC00000, 0xE00000
WS_DIAG = 0x1600000
WS_SIZE = 0x1700000
KA = dict(x=0, wqkv=8, wo=16, w1=32, w2=40, c=48, wmod=56, out=64, dbg=72, ws=80)
SZ = dict(x=2048*512*2, wqkv=512*1536*2, wo=512*512*2, w1=512*1792*2, w2=1792*512*2, c=1024, wmod=512*3072*2, out=2048*512*2, dbg=256, ws=WS_SIZE)
SRD = dict(x=4, wqkv=8, wo=12, w1=16, w2=20, c=24, wmod=28, out=32, dbg=36, ws=40)
S = {k: sr(v, 4) for k, v in SRD.items()}
sW, sTB, sC, sTAG, sI, sX, sR = 44, 45, 46, 47, 48, 49, 69
SPIN = 20000
def f2u(f): return struct.unpack("<I", struct.pack("<f", f))[0]
def hx(f): return hex(f2u(f))
LOG2E = 1.4426950408889634
DIAG = False
OPT = {}
L_WQKV = 0
L_DG = 96*1024
L_SA = 112*1024
L_QX = 144*1024
L_WO = 0
L_W1 = 32*1024
L_RED = 137*1024
L_TAB = 156*1024
L_GA, L_G2, L_GB, L_SCR, L_UW, L_G = L_TAB, L_TAB+128, L_TAB+256, L_TAB+512, L_TAB+1024, L_TAB+2048
LDS_SIZE = 160*1024

def stamp(a, i):
    if DIAG: a(f"s_memtime s[{70+2*i}:{71+2*i}]")

_uid = [0]
def poll(a, vm, mask, vaddr, soff, vt):
    _uid[0] += 1; n = _uid[0]
    a(f"s_mov_b64 exec, {mask}\ns_mov_b32 s50, {SPIN}")
    a(f"Lpoll{n}:")
    a(f"buffer_load_dword v{vt}, v{vaddr}, {S['ws']}, {soff} offen sc1")
    a("s_waitcnt vmcnt(0)")
    a(f"v_cmp_ne_u32 vcc, s{sTAG}, v{vt}")
    a("s_sub_u32 s50, s50, 1")
    a(f"s_cbranch_vccz Lpolld{n}")
    if OPT.get("sleep", 1): a(f"s_sleep {OPT.get('sleep', 1)}")
    a(f"s_cmp_lg_u32 s50, 0\ns_cbranch_scc1 Lpoll{n}")
    a(f"Lpolld{n}:\ns_mov_b64 exec, -1")
    vm.reset()

def flag_off(a, d, f, base):
    a(f"s_lshr_b32 s50, s{f}, 3\ns_lshl_b32 s50, s50, 7\ns_and_b32 s{d}, s{f}, 7\ns_lshl_b32 s{d}, s{d}, 2\ns_add_u32 s{d}, s{d}, s50\ns_add_u32 s{d}, s{d}, {hex(base)}")

def set_flag(a, vm, soff, vz, vt):
    vm.wait_all()
    a(f"v_mov_b32 v{vt}, s{sTAG}\ns_mov_b64 exec, 1")
    vm.op(f"buffer_store_dword v{vt}, v{vz}, {S['ws']}, {soff} offen sc1")
    a("s_mov_b64 exec, -1")

def rne_bf16(a, d, s):
    a(f"v_cvt_pk_bf16_f32 v{d}, v{s}, v{s}\nv_lshlrev_b32 v{d}, 16, v{d}")

def tr_addr(a, d, t, perm, rowbytes_log2, swz):
    a(f"v_bfe_u32 v{d}, v0, 2, 2\nv_bfe_u32 v{t}, v0, 5, 1")
    a(f"v_lshl_add_u32 v{d}, v{t}, {2 if perm else 3}, v{d}\nv_lshlrev_b32 v{d}, {rowbytes_log2}, v{d}")
    a(f"v_bfe_u32 v{t}, v0, 4, 1\nv_lshl_add_u32 v{d}, v{t}, 5, v{d}")
    a(f"v_and_b32 v{t}, 3, v0\nv_lshl_add_u32 v{d}, v{t}, 3, v{d}")
    if swz: a(f"v_bfe_u32 v{t}, v0, 3, 1\nv_lshl_add_u32 v{d}, v{t}, 6, v{d}")

def half_tr_addr(a, d, t):
    a(f"v_bfe_u32 v{d}, v0, 2, 1")
    a(f"v_bfe_u32 v{t}, v0, 4, 1\nv_lshl_add_u32 v{d}, v{t}, 1, v{d}")
    a(f"v_bfe_u32 v{t}, v0, 3, 1\nv_lshl_add_u32 v{d}, v{t}, 2, v{d}")
    a(f"v_bfe_u32 v{t}, v0, 5, 1\nv_lshl_add_u32 v{d}, v{t}, 4, v{d}")
    a(f"v_lshlrev_b32 v{d}, 5, v{d}\nv_and_b32 v{t}, 3, v0\nv_lshl_add_u32 v{d}, v{t}, 3, v{d}")

vLANE, vL16, vZ = 1, 2, 3
def poll_addr(a, d):
    a(f"v_lshrrev_b32 v{d}, 3, v{vLANE}\nv_lshlrev_b32 v{d}, 5, v{d}\nv_and_or_b32 v{d}, v{vLANE}, 7, v{d}\nv_lshlrev_b32 v{d}, 2, v{d}")

def mod_issue(a, vm, sCol, B=16, T=4):
    a(f"v_bfe_u32 v{T}, v0, 1, 7\nv_and_b32 v{T+1}, 1, v0")
    a(f"v_mul_u32_u24 v{T+2}, 6144, v{T}\nv_lshl_add_u32 v{T+2}, v{T+1}, 4, v{T+2}\nv_lshlrev_b32 v{T+3}, 1, v{T}")
    a(f"s_lshl_b32 s52, s{sCol}, 1")
    for m in range(4):
        vm.op(f"buffer_load_dwordx4 {vr(B+4*m,4)}, v{T+2}, {S['wmod']}, s52 offen", "mod")
        if m < 3: a(f"s_add_u32 s52, s52, {128*6144}")
    for m in range(4): vm.op(f"buffer_load_ushort v{B+16+m}, v{T+3}, {S['c']}, 0 offen offset:{256*m}", "mod")

def mod_partial(a, vm, B=16):
    vm.wait("mod")
    C, F, T, A = B+16, B+24, B+20, B+32
    for m in range(4): a(f"v_lshlrev_b32 v{C+m}, 16, v{C+m}")
    for m in range(4): a(f"v_mul_f32 v{T+m}, {hx(-LOG2E)}, v{C+m}")
    for m in range(4): a(f"v_exp_f32 v{T+m}, v{T+m}")
    for m in range(4): a(f"v_add_f32 v{T+m}, 1.0, v{T+m}")
    for m in range(4): a(f"v_rcp_f32 v{T+m}, v{T+m}")
    for m in range(4): a(f"v_mul_f32 v{C+m}, v{C+m}, v{T+m}")
    for m in range(4): a(f"v_cvt_pk_bf16_f32 v{C+m}, v{C+m}, v{C+m}")
    for m in range(4): a(f"v_lshlrev_b32 v{C+m}, 16, v{C+m}")
    for m in range(4):
        for r in range(4):
            a(f"v_lshlrev_b32 v{F+2*r}, 16, v{B+4*m+r}\nv_and_b32 v{F+2*r+1}, 0xffff0000, v{B+4*m+r}")
        for j in range(8):
            a(f"v_mul_f32 v{A+j}, v{F+j}, v{C}" if m == 0 else f"v_fmac_f32 v{A+j}, v{F+j}, v{C+m}")
    for j in range(4): a(f"v_permlane32_swap_b32 v{A+j}, v{A+4+j}")
    for j in range(4): a(f"v_add_f32 v{A+j}, v{A+j}, v{A+4+j}")
    for j in range(2): a(f"v_permlane16_swap_b32 v{A+j}, v{A+2+j}")
    for j in range(2): a(f"v_add_f32 v{A+j}, v{A+j}, v{A+2+j}")
    for r in (8, 4, 2):
        for j in range(2): a(f"v_add_f32_dpp v{A+j}, v{A+j}, v{A+j} row_ror:{r} row_mask:0xf bank_mask:0xf")
    a("v_bfe_u32 v8, v0, 6, 2\nv_lshlrev_b32 v8, 6, v8\nv_and_b32 v9, 1, v0\nv_lshl_add_u32 v8, v9, 5, v8")
    a("v_bfe_u32 v9, v0, 4, 1\nv_lshl_add_u32 v8, v9, 3, v8\nv_bfe_u32 v9, v0, 5, 1\nv_lshl_add_u32 v8, v9, 4, v8")
    a(f"v_add_u32 v8, {L_SCR}, v8")
    a("s_mov_b32 exec_lo, 0x00030003\ns_mov_b32 exec_hi, 0x00030003")
    a(f"ds_write_b64 v8, v[{A}:{A+1}]")
    a("s_mov_b64 exec, -1")

def mod_final(a, vm, sCol):
    a("s_mov_b64 exec, 0xff")
    a(f"v_lshlrev_b32 v8, 3, v{vLANE}\nv_add_u32 v9, {L_SCR}, v8")
    for w in range(4): a(f"ds_read_b64 {vr(240+2*w,2)}, v9 offset:{64*w}")
    a(f"s_lshr_b32 s52, s{sCol}, 9\ns_cmp_eq_u32 s52, 1\ns_cselect_b32 s53, 1.0, 0\ns_cmp_eq_u32 s52, 4\ns_cselect_b32 s53, 1.0, s53")
    a(f"s_lshl_b32 s52, s{sCol}, 2")
    a("s_waitcnt lgkmcnt(0)")
    for j in range(2): a(f"v_add_f32 v{240+j}, v{240+j}, v{242+j}\nv_add_f32 v{244+j}, v{244+j}, v{246+j}")
    for j in range(2): a(f"v_add_f32 v{240+j}, v{240+j}, v{244+j}")
    a("v_cvt_pk_bf16_f32 v242, v240, v241\nv_lshlrev_b32 v240, 16, v242\nv_and_b32 v241, 0xffff0000, v242")
    a("v_add_f32 v240, s53, v240\nv_add_f32 v241, s53, v241")
    a(f"v_cvt_pk_bf16_f32 v240, v240, v241\nv_mov_b32 v241, s{sTAG}")
    vm.op(f"buffer_store_dwordx2 v[240:241], v8, {S['ws']}, s52 offen sc1")
    a("s_mov_b64 exec, -1")

def gran_poll(a, vm, loads, regs):
    _uid[0] += 1; n = _uid[0]
    a(f"s_mov_b32 s50, {SPIN}\nLgp{n}:")
    for t in loads: a(t)
    a("s_waitcnt vmcnt(0)")
    first = True
    for r in regs:
        for o in (1, 3):
            if first: a(f"v_xor_b32 v15, s{sTAG}, v{r+o}"); first = False
            else: a(f"v_xor_b32 v14, s{sTAG}, v{r+o}\nv_or_b32 v15, v15, v14")
    a("v_cmp_ne_u32 vcc, 0, v15\ns_sub_u32 s50, s50, 1")
    a(f"s_cbranch_vccz Lgpd{n}\ns_sleep {OPT.get('gsleep', 4)}\ns_cmp_lg_u32 s50, 0\ns_cbranch_scc1 Lgp{n}\nLgpd{n}:")
    vm.reset()

def tag_get(a):
    _uid[0] += 1; n = _uid[0]
    a(f"v_mov_b32 v8, {L_SCR+260}\ns_mov_b32 s50, {SPIN*20}\nLtg{n}:\nds_read_b32 v9, v8\ns_sub_u32 s50, s50, 1\ns_waitcnt lgkmcnt(0)\nv_readfirstlane_b32 s{sTAG}, v9")
    a(f"s_cmp_lg_u32 s{sTAG}, 0\ns_cbranch_scc1 Ltgd{n}\ns_cmp_lg_u32 s50, 0\ns_cbranch_scc1 Ltg{n}\nLtgd{n}:")

def read_tag(a):
    a(f"v_mov_b32 v8, {L_SCR+260}\nds_read_b32 v9, v8\ns_waitcnt lgkmcnt(0)\nv_readfirstlane_b32 s{sTAG}, v9")

def mall_touch(a):
    _uid[0] += 1; n = _uid[0]
    a(f"v_lshlrev_b32 v5, 7, v{vLANE}\ns_cmp_eq_u32 s{sW}, 6\ns_cbranch_scc1 Lt6_{n}\ns_cmp_eq_u32 s{sW}, 7\ns_cbranch_scc1 Lt7_{n}")
    a(f"s_mul_i32 s52, s2, {56*128}\ns_cmp_eq_u32 s{sW}, 5\ns_cbranch_scc1 Lt5_{n}")
    a(f"buffer_load_dword v248, v5, {S['w1']}, s52 offen\ns_branch Ltd_{n}")
    a(f"Lt5_{n}:\nbuffer_load_dword v248, v5, {S['w2']}, s52 offen\ns_branch Ltd_{n}")
    a(f"Lt6_{n}:\nv_lshrrev_b32 v6, 5, v{vLANE}\nv_mul_u32_u24 v6, {6144-4096}, v6\nv_add_u32 v5, v5, v6\ns_mul_i32 s52, s2, 12288\ns_add_u32 s52, s52, 2048")
    a(f"buffer_load_dword v248, v5, {S['wmod']}, s52 offen\ns_branch Ltd_{n}")
    a(f"Lt7_{n}:\ns_lshl_b32 s52, s2, 11\ns_mov_b64 exec, 0xffff\nbuffer_load_dword v248, v5, {S['wo']}, s52 offen\ns_mov_b64 exec, -1")
    a(f"Ltd_{n}:")

def mod_join(a, vm, sCol, name):
    a(f"v_mov_b32 v8, {L_SCR+256}\nv_mov_b32 v9, 1\ns_waitcnt lgkmcnt(0)\ns_mov_b64 exec, 1\nds_add_rtn_u32 v9, v8, v9\ns_mov_b64 exec, -1\ns_waitcnt lgkmcnt(0)")
    a(f"v_readfirstlane_b32 s52, v9\ns_cmp_lg_u32 s52, 3\ns_cbranch_scc1 {name}")
    mod_final(a, vm, sCol)

NRING = 6
def set_nring(n):
    global NRING
    NRING = n
def attention(a, vm):
    QF, OA, SB, RING = 16, 24, [56, 72], 88
    IDX = RING + 12*NRING
    vV, vWO, vW1, vW1H = 4, 12, 13, 14
    sHH, sQP, sKH, sK, sV = 54, 55, 51, 56, 57
    a(f"s_and_b32 s{sHH}, s{sW}, 1\ns_bfe_u32 s{sQP}, s{sW}, 0x10001\ns_lshr_b32 s{sKH}, s{sW}, 2")
    for i in range(2):
        a(f"s_xor_b32 s52, s{sKH}, {i}\ns_lshl_b32 s53, s{sQP}, 1\ns_add_u32 s52, s52, s53\ns_lshl_b32 s53, s{sHH}, 2\ns_add_u32 s52, s52, s53\ns_lshl_b32 s52, s52, 10\ns_add_u32 s52, s52, {L_QX}")
        a(f"v_add_u32 v5, s52, v{vL16}\nds_read_b128 {vr(QF+4*i,4)}, v5")
    a(f"v_and_b32 v{vV}, 15, v{vLANE}\nv_lshlrev_b32 v{vV}, 4, v{vV}\nv_bfe_u32 v5, v{vLANE}, 5, 1\nv_lshl_add_u32 v{vV}, v5, 8, v{vV}")
    a(f"s_lshl_b32 s58, s{sC}, 1\ns_add_u32 s58, s58, s{sHH}")
    a(f"s_lshl_b32 s59, s58, 16")
    a(f"s_lshl_b32 s52, s{sKH}, 15\ns_add_u32 s52, s52, s59\ns_add_u32 s{sK}, s52, {hex(WS_K)}\ns_add_u32 s{sV}, s52, {hex(WS_V)}")
    a("s_mov_b32 s60, 0x0000ffff\ns_mov_b32 s61, 0x0000ffff")
    a(f"s_lshl_b32 s52, s{sKH}, 9\ns_lshl_b32 s53, s{sC}, 10\ns_add_u32 s52, s52, s53\ns_add_u32 s62, s52, {hex(WS_FKV)}")
    a(f"v_and_b32 v6, 0x1b, v{vLANE}\nv_cmp_eq_u32 vcc, 16, v6\nv_mov_b32 v6, 0x3f803f80\nv_cndmask_b32 v6, 0, v6, vcc")
    for sl in range(NRING):
        for r in range(8): a(f"v_mov_b32 v{RING+12*sl+4+r}, v6")
    a(f"v_mov_b32 v{IDX}, 0xdddddddd")
    for r in range(32): a(f"v_mov_b32 v{OA+r}, 0")
    a(f"v_lshrrev_b32 v7, 2, v{vLANE}\nv_and_b32 v8, 3, v{vLANE}\nv_lshlrev_b32 v{vWO}, 10, v7\nv_lshl_add_u32 v{vWO}, v8, 4, v{vWO}")
    w1_voffs(a, vW1, vW1H)
    a(f"s_add_u32 s63, s{sW}, s{sR}\ns_and_b32 s63, s63, 7\ns_lshl_b32 s63, s63, 16\ns_lshl_b32 s52, s{sC}, 6\ns_add_u32 s63, s63, s52")
    a(f"s_lshl_b32 s64, s{sW}, 12")
    def kp_addr(d):
        return [f"s_lshl_b32 s65, s{sR}, 1", f"s_add_u32 s65, s65, s{sW}", f"s_add_u32 s65, s65, {d}", "s_and_b32 s65, s65, 15", f"s_mul_i32 s65, s65, {32*3584}",
                f"s_mul_i32 s52, s{sC}, 224", "s_add_u32 s65, s65, s52", f"s_mul_i32 s66, s{sW}, 7168", f"s_add_u32 s66, s66, {L_W1+7168*d}"]
    pre = {}
    pre[2] = [[f"s_add_u32 m0, s64, {L_WO+1024*j}", f"s_add_u32 s52, s63, {16384*j}", f"buffer_load_dwordx4 v{vWO}, {S['wo']}, s52 offen lds"] for j in range(4)]
    pre[7] = w1_kp_dma(65, 66, vW1, vW1H); pre[7][0] = kp_addr(0) + pre[7][0]
    pre[14] = w1_kp_dma(65, 66, vW1, vW1H); pre[14][0] = kp_addr(8) + pre[14][0]
    stamp(a, 4)
    poll_addr(a, 5)
    poll(a, vm, "0xffffffff", 5, "s62", 6)
    stamp(a, 5)
    def ld(kt):
        sl = kt % NRING
        fl = "" if OPT.get("kvplain") else " sc1"
        vm.op(f"buffer_load_dwordx4 {vr(RING+12*sl,4)}, v{vL16}, {S['ws']}, s{sK} offen{fl}", ("kv", kt))
        a("s_mov_b64 exec, s[60:61]")
        vm.op(f"buffer_load_dwordx4 {vr(RING+12*sl+4,4)}, v{vV}, {S['ws']}, s{sV} offen{fl}", ("kv", kt))
        vm.op(f"buffer_load_dwordx4 {vr(RING+12*sl+8,4)}, v{vV}, {S['ws']}, s{sV} offen offset:512{fl}", ("kv", kt))
        a("s_mov_b64 exec, -1")
        a(f"s_add_u32 s{sK}, s{sK}, 1024\ns_add_u32 s{sV}, s{sV}, 1024")
    def QK(dst, sl, q): return f"v_mfma_f32_32x32x16_bf16 {vr(dst,16)}, {vr(RING+12*sl,4)}, {vr(QF+4*q,4)}, 0"
    def SM(q, sl, half, s): return f"v_smfmac_f32_32x32x32_bf16 {vr(OA+16*q,16)}, {vr(RING+12*sl+4+4*half,4)}, {vr(s+8*half,8)}, v{IDX}"
    for kt in range(NRING-1): ld(kt)
    a("s_waitcnt lgkmcnt(0)")
    vm.wait(("kv", 0))
    a(QK(SB[0], 0, 0))
    a("s_nop 7\ns_nop 3")
    for t in range(64):
        kt, q = t // 2, t % 2
        cur, prv = SB[t & 1], SB[(t + 1) & 1]
        E = [f"v_exp_f32 v{cur+r}, v{cur+r}" for r in range(16)]
        if OPT.get("prio") and q == 0:
            if kt % 2 == 0: a(f"s_setprio {OPT['prio'] & 1}")
        a(E[0]); a(E[1])
        if t > 0: a(SM((t-1) % 2, ((t-1)//2) % NRING, 1, prv))
        if q == 0 and kt + NRING - 1 < 32: ld(kt + NRING - 1)
        if q == 1 and kt in pre and not OPT.get("nopre"):
            if kt == 14: a(f"s_cmp_eq_u32 s{sW}, 7\ns_cbranch_scc1 Latt_nopre")
            q0 = list(vm.q)
            for p in pre[kt]:
                for x in p[:-1]: a(x)
                vm.op(p[-1], "pre")
            if kt == 14:
                a("Latt_nopre:")
                vm.q = q0
                vm.extra = True
        if q == 1 and kt == 1 and OPT.get("touch", 1) == 2:
            a(f"s_cmp_lt_u32 s{sW}, 4\ns_cbranch_scc1 Latt_notouch")
            mall_touch(a)
            a("Latt_notouch:")
        if q == 1 and kt == 25:
            a(f"s_cmp_lt_u32 s{sW}, 4\ns_cbranch_scc1 Latt_nomod\ns_sub_u32 s52, s{sI}, 8\ns_cmp_ge_u32 s52, 16\ns_cbranch_scc1 Latt_nomod")
            a(f"s_lshl_b32 s66, s{sX}, 2\ns_lshr_b32 s52, s52, 2\ns_add_u32 s66, s66, s52\ns_lshl_b32 s66, s66, 6")
            a(f"s_and_b32 s52, s{sI}, 3\ns_lshl_b32 s52, s52, 4\ns_add_u32 s66, s66, s52\ns_add_u32 s66, s66, 1024")
            mod_issue(a, Track(a, "vmcnt", 63), 66, 200, T=244)
            a("Latt_nomod:")
        if q == 1 and kt == 18 and not OPT.get("nopre"):
            a(f"s_cmp_lg_u32 s{sW}, 7\ns_cbranch_scc1 Latt_nowk\nv_lshrrev_b32 v5, 1, v{vLANE}\nv_mul_u32_u24 v5, 3584, v5\nv_and_b32 v6, 1, v{vLANE}\nv_lshl_add_u32 v5, v6, 7, v5")
            a(f"s_lshl_b32 s52, s{sR}, 1\ns_add_u32 s52, s52, 15\ns_and_b32 s52, s52, 15\ns_mul_i32 s52, s52, {32*3584}\ns_mul_i32 s53, s{sC}, 224\ns_add_u32 s52, s52, s53")
            a(f"buffer_load_dword v248, v5, {S['w1']}, s52 offen\nbuffer_load_dword v248, v5, {S['w1']}, s52 offen offset:92")
            a("Latt_nowk:")
        if q == 1 and kt == 22 and not OPT.get("nopre"):
            a(f"s_cmp_eq_u32 s{sW}, 7\ns_cbranch_scc1 Latt_nopf\ns_mul_i32 s52, s{sI}, 7\ns_add_u32 s52, s52, s{sW}\ns_lshl_b32 s52, s52, 13\nv_lshlrev_b32 v5, 7, v{vLANE}")
            a(f"buffer_load_dword v248, v5, {S['w2']}, s52 offen")
            a("Latt_nopf:")
        a(E[2]); a(E[3])
        if t < 63:
            if q == 1: vm.wait(("kv", kt + 1))
            a(QK(prv, ((t+1)//2) % NRING, (t+1) % 2))
        for r in range(4, 10): a(E[r])
        a(SM(q, kt % NRING, 0, cur))
        for r in range(10, 16): a(E[r])
    a("s_nop 0")
    a(SM(1, 31 % NRING, 1, SB[1]))
    stamp(a, 6)
    a(f"s_xor_b32 s52, s{sW}, 4\ns_mul_i32 s52, s52, 2304\ns_add_u32 s52, s52, {L_RED}\ns_mul_i32 s53, s{sW}, 2304\ns_add_u32 s53, s53, {L_RED}")
    a(f"v_lshlrev_b32 v5, 2, v{vLANE}\nv_add_u32 v6, s52, v{vL16}\nv_add_u32 v7, s52, v5\nv_add_u32 v8, s53, v{vL16}\nv_add_u32 v9, s53, v5")
    a(f"s_lshl_b32 s52, s{sTB}, 2\ns_lshl_b32 s53, s{sQP}, 1\ns_add_u32 s52, s52, s53\ns_add_u32 s52, s52, s{sKH}\ns_lshl_b32 s52, s52, 5\ns_add_u32 s52, s52, s58")
    a(f"s_lshl_b32 s63, s52, 10\ns_add_u32 s63, s63, {hex(WS_O)}")
    flag_off(a, 64, 52, WS_FO)
    a(f"ds_write_b128 v6, {vr(OA+16,4)}\nds_write_b128 v6, {vr(OA+20,4)} offset:1024\nds_write_b32 v7, v{OA+24} offset:2048")
    vm.wait_all()
    a("s_waitcnt lgkmcnt(0)\ns_barrier")
    R = SB[0]
    a(f"ds_read_b128 {vr(R,4)}, v8\nds_read_b128 {vr(R+4,4)}, v8 offset:1024\nds_read_b32 v{R+8}, v9 offset:2048")
    a(f"s_mov_b32 s52, {hx(2.0**-60)}\ns_mov_b32 s53, {hx(2.0**60)}\ns_movk_i32 s65, 0x207")
    a("s_waitcnt lgkmcnt(0)\ns_barrier")
    for r in range(9): a(f"v_add_f32 v{OA+r}, v{OA+r}, v{R+r}")
    a(f"v_add_f32 v8, v{OA}, v{OA+1}")
    for r in range(2, 8): a(f"v_add_f32 v8, v8, v{OA+r}")
    a(f"v_cmp_nge_f32 vcc, v{OA+8}, s52\nv_cmp_nle_f32 s[54:55], v{OA+8}, s53\nv_cmp_class_f32 s[56:57], v8, s65")
    a("s_or_b64 vcc, vcc, s[54:55]\ns_or_b64 vcc, vcc, s[56:57]")
    a("s_cbranch_vccnz Lslow")
    a("Lnorm:")
    a(f"v_rcp_f32 v8, v{OA+8}")
    for r in range(8): a(f"v_mul_f32 v{OA+r}, v{OA+r}, v8")
    for r in range(4): a(f"v_cvt_pk_bf16_f32 v{8+r}, v{OA+2*r}, v{OA+2*r+1}")
    vm.op(f"buffer_store_dwordx4 v[8:11], v{vL16}, {S['ws']}, s63 offen sc1")
    def slow(b):
        tv = Track(b, "vmcnt", 63)
        b("Lslow:")
        poll_addr(b, 5)
        b(f"s_lshl_b32 s52, s{sC}, 10\ns_add_u32 s62, s52, {hex(WS_FKV)}")
        poll(b, tv, "-1", 5, "s62", 6)
        b(f"s_add_u32 s{sK}, s59, {hex(WS_K)}\ns_mov_b32 s51, 64\nv_mov_b32 v8, 0xff800000")
        b("Ls1:")
        b(f"buffer_load_dwordx4 {vr(RING,4)}, v{vL16}, {S['ws']}, s{sK} offen sc1\ns_add_u32 s{sK}, s{sK}, 1024\ns_waitcnt vmcnt(0)")
        b(QK(SB[0], 0, 0))
        for r in range(0, 16, 2): b(f"v_max3_f32 v8, v{SB[0]+r}, v{SB[0]+r+1}, v8")
        b("s_sub_u32 s51, s51, 1\ns_cmp_lg_u32 s51, 0\ns_cbranch_scc1 Ls1")
        b("v_mov_b32 v9, v8\nv_permlane32_swap_b32 v8, v9\nv_max_f32 v8, v8, v9")
        for r in range(16): b(f"v_sub_f32 v{SB[1]+r}, 0, v8")
        for r in range(16): b(f"v_mov_b32 v{OA+r}, 0")
        b(f"s_add_u32 s{sK}, s59, {hex(WS_K)}\ns_add_u32 s{sV}, s59, {hex(WS_V)}\ns_mov_b32 s51, 64")
        b("Ls2:")
        b(f"buffer_load_dwordx4 {vr(RING,4)}, v{vL16}, {S['ws']}, s{sK} offen sc1\ns_mov_b64 exec, s[60:61]")
        b(f"buffer_load_dwordx4 {vr(RING+4,4)}, v{vV}, {S['ws']}, s{sV} offen sc1\nbuffer_load_dwordx4 {vr(RING+8,4)}, v{vV}, {S['ws']}, s{sV} offen offset:512 sc1")
        b(f"s_mov_b64 exec, -1\ns_add_u32 s{sK}, s{sK}, 1024\ns_add_u32 s{sV}, s{sV}, 1024\ns_waitcnt vmcnt(0)")
        b(f"v_mfma_f32_32x32x16_bf16 {vr(SB[0],16)}, {vr(RING,4)}, {vr(QF,4)}, {vr(SB[1],16)}")
        for r in range(16): b(f"v_exp_f32 v{SB[0]+r}, v{SB[0]+r}")
        b(SM(0, 0, 0, SB[0])); b(SM(0, 0, 1, SB[0]))
        b("s_sub_u32 s51, s51, 1\ns_cmp_lg_u32 s51, 0\ns_cbranch_scc1 Ls2")
        b("s_nop 7\ns_nop 7\ns_branch Lnorm")
    return slow

def w1_voffs(a, vF, vH):
    a(f"v_lshrrev_b32 v7, 2, v{vLANE}\nv_and_b32 v8, 3, v{vLANE}\nv_mul_u32_u24 v{vF}, 3584, v7\nv_lshl_add_u32 v{vF}, v8, 4, v{vF}")
    a(f"v_lshrrev_b32 v7, 1, v{vLANE}\nv_and_b32 v8, 0x13, v7\nv_bfe_u32 v9, v7, 2, 1\nv_lshl_add_u32 v8, v9, 3, v8\nv_bfe_u32 v9, v7, 3, 1\nv_lshl_add_u32 v8, v9, 2, v8")
    a(f"v_mul_u32_u24 v{vH}, 3584, v8\nv_and_b32 v8, 1, v{vLANE}\nv_lshl_add_u32 v{vH}, v8, 4, v{vH}")

def w1_kp_dma(sOff, sLds, vF, vH, dOff=0, dLds=0):
    L = []
    for e in range(2):
        for nt in range(3):
            L.append([f"s_add_u32 m0, s{sLds}, {dLds+3072*e+1024*nt}", f"s_add_u32 s52, s{sOff}, {dOff+16*3584*e+64*nt}",
                      f"buffer_load_dwordx4 v{vF}, {S['w1']}, s52 offen lds"])
    L.append([f"s_add_u32 m0, s{sLds}, {dLds+6144}", f"s_add_u32 s52, s{sOff}, {dOff+192}", f"buffer_load_dwordx4 v{vH}, {S['w1']}, s52 offen lds"])
    return L

def w1_reads(kp, e, dst, vF):
    base = 7168*kp + 3072*e
    return [f"ds_read_b64_tr_b16 {vr(dst+4*nt+2*st,2)}, v{vF[base >> 15]} offset:{(base & 0x7fff)+1024*nt+512*st}" for nt in range(3) for st in range(2)]
def w1_half_reads(kp, dst, vH):
    base = 7168*kp + 6144
    return [f"ds_read_b64_tr_b16 {vr(dst+2*st,2)}, v{vH[base >> 15]} offset:{(base & 0x7fff)+256*st}" for st in range(2)]

def rot_loads(a, vm, base_s, dst, tag, div=1):
    for ks in range(32):
        if ks % 4 == 0: a(f"s_add_u32 s53, s{sR}, {ks//4}\ns_and_b32 s53, s53, 7\ns_lshl_b32 s53, s53, 12\ns_add_u32 s53, s53, s{base_s}")
        yield ks, (f"buffer_load_dwordx4 {vr(dst+4*ks,4)}, v{vL16}, {S['ws']}, s53 offen offset:{1024*(ks%4)} sc1", (tag, ks//div))

def p0_active(a):
    vm = Track(a, "vmcnt", 63)
    sCol = 51
    a(f"s_cmp_ge_u32 s{sI}, 8\ns_cbranch_scc1 La_warm")
    a(f"s_lshl_b32 s{sCol}, s{sX}, 1\ns_lshr_b32 s52, s{sI}, 2\ns_add_u32 s{sCol}, s{sCol}, s52\ns_lshl_b32 s{sCol}, s{sCol}, 6")
    a(f"s_and_b32 s52, s{sI}, 3\ns_lshl_b32 s52, s52, 4\ns_add_u32 s{sCol}, s{sCol}, s52")
    mod_issue(a, vm, sCol)
    late_srds(a)
    mod_partial(a, vm)
    stamp(a, 0)
    a("s_waitcnt lgkmcnt(0)\ns_barrier")
    read_tag(a)
    a(f"s_cmp_lg_u32 s{sW}, 0\ns_cbranch_scc1 La_p1")
    mod_final(a, vm, sCol)
    a("s_branch La_p1")
    a("La_warm:")
    a(f"s_sub_u32 s54, s{sI}, 8\ns_cmp_eq_u32 s{sW}, 3\ns_cbranch_scc1 La_warm3")
    a(f"s_mul_i32 s52, s54, 3\ns_add_u32 s52, s52, s{sW}\ns_lshl_b32 s52, s52, 3")
    a(f"v_lshrrev_b32 v4, 3, v{vLANE}\nv_add_u32 v4, s52, v4\nv_mul_u32_u24 v4, 3072, v4\nv_bfe_u32 v5, v{vLANE}, 2, 1\nv_lshl_add_u32 v4, v5, 10, v4\nv_and_b32 v5, 3, v{vLANE}\nv_lshl_add_u32 v4, v5, 7, v4")
    a(f"s_and_b32 s52, s{sX}, 1\ns_lshl_b32 s52, s52, 9\ns_add_u32 s52, s52, 1024")
    a(f"buffer_load_dword v6, v4, {S['wqkv']}, s52 offen")
    a("s_branch La_warmd")
    a("La_warm3:")
    a("s_cmp_ge_u32 s54, 8\ns_cbranch_scc1 La_warmq")
    a(f"s_lshl_b32 s52, s54, 5\ns_add_u32 s52, s52, 256\nv_lshrrev_b32 v4, 1, v{vLANE}\nv_add_u32 v4, s52, v4\nv_mul_u32_u24 v4, 6144, v4\nv_and_b32 v5, 1, v{vLANE}\nv_lshl_add_u32 v4, v5, 7, v4")
    a(f"s_lshl_b32 s52, s{sX}, 8\nbuffer_load_dword v6, v4, {S['wmod']}, s52 offen")
    a("s_branch La_warmd")
    a("La_warmq:")
    a(f"s_sub_u32 s52, s54, 8\ns_lshl_b32 s52, s52, 5\nv_lshrrev_b32 v4, 2, v{vLANE}\nv_add_u32 v4, s52, v4\nv_mul_u32_u24 v4, 3072, v4\nv_and_b32 v5, 3, v{vLANE}\nv_lshl_add_u32 v4, v5, 7, v4")
    a(f"s_and_b32 s52, s{sX}, 1\ns_lshl_b32 s52, s52, 9\nbuffer_load_dword v6, v4, {S['wqkv']}, s52 offen\ns_add_u32 s52, s52, {16*3072}\nbuffer_load_dword v7, v4, {S['wqkv']}, s52 offen")
    a("La_warmd:")
    late_srds(a)
    a("s_waitcnt vmcnt(0)")
    stamp(a, 0)
    a("s_barrier")
    read_tag(a)
    a("s_branch La_p1")

def late_srds(a):
    for nm in ("wo", "w1", "w2", "out"): a(f"s_mov_b32 s{SRD[nm]+2}, {hex(SZ[nm])}\ns_mov_b32 s{SRD[nm]+3}, 0x20000")

def active(a):
    vm = Track(a, "vmcnt", 63); lg = Track(a, "lgkmcnt", 15)
    sT32 = 67
    a("La_p1:")
    ACC = [16, 32, 48]; WF = [64, 72]; DH = [88, 104]; DG = [120, 124]; AF = 128
    a(f"s_lshl_b32 s{sT32}, s{sTB}, 2\ns_add_u32 s{sT32}, s{sT32}, s{sW}")
    a(f"v_lshlrev_b32 v5, 2, v{vLANE}\ns_lshl_b32 s52, s{sT32}, 7\ns_add_u32 s52, s52, {hex(WS_FXN)}")
    tr_addr(a, 10, 11, True, 6, False)
    a(f"v_add_u32 v12, {3072*16}, v10")
    a(f"v_bfe_u32 v11, v0, 5, 1\nv_lshlrev_b32 v11, 6, v11\nv_add_u32 v11, {L_SA}, v11\nv_add_u32 v13, {L_DG}, v{vL16}")
    a(f"v_and_b32 v14, 2, v0\nv_cmp_eq_u32 vcc, 0, v14\nv_mov_b32 v14, 0xeeeeeeee\nv_mov_b32 v15, 0x44444444\nv_cndmask_b32 v14, v14, v15, vcc")
    for r in range(48): a(f"v_mov_b32 v{16+r}, 0")
    poll(a, vm, "0xff", 5, "s52", 6)
    stamp(a, 1)
    a(f"s_lshl_b32 s52, s{sT32}, 15\ns_add_u32 s52, s52, {hex(WS_XN)}")
    XL = rot_loads(a, vm, 52, AF, "xn", 2)
    def xn_issue(n):
        for _ in range(n):
            r = next(XL, None)
            if r: vm.op(*r[1])
    xn_issue(10)
    a("s_barrier")
    def rdS(b):
        L = [(f"ds_read_b128 {vr(DH[b&1]+4*q,4)}, v11 offset:{128*b+16*q}", ("s", b)) for q in range(4)]
        return L + [(f"ds_read_b128 {vr(DG[b&1],4)}, v13 offset:{1024*b}", ("s", b))]
    def rdW(ks):
        return [(f"ds_read_b64_tr_b16 {vr(WF[ks&1]+4*(g-1)+2*st,2)}, v{10 if ks < 16 else 12} offset:{3072*(ks%16)+1024*g+512*st}", ("w", ks)) for g in (1, 2) for st in range(2)]
    def SMF(b): return f"v_smfmac_f32_32x32x32_bf16 {vr(DH[b&1],16)}, {vr(DG[b&1],4)}, {vr(AF+8*b,8)}, v14"
    def CVT(b): return [f"v_cvt_pk_bf16_f32 v{AF+8*b+r}, v{DH[b&1]+2*r}, v{DH[b&1]+2*r+1}" for r in range(8)]
    def MM(ks):
        f = AF + 4*ks; w = WF[ks & 1]
        return [f"v_mfma_f32_32x32x16_bf16 {vr(ACC[1],16)}, {vr(w,4)}, {vr(f,4)}, {vr(ACC[1],16)}",
                f"v_mfma_f32_32x32x16_bf16 {vr(ACC[2],16)}, {vr(f,4)}, {vr(w+4,4)}, {vr(ACC[2],16)}"]
    for x in rdS(0) + rdS(1): lg.op(*x)
    lg.wait(("s", 0)); vm.wait(("xn", 0))
    a(SMF(0))
    for x in rdW(0): lg.op(*x)
    xn_issue(2)
    a("s_nop 5")
    for x in CVT(0): a(x)
    stamp(a, 2)
    for b in range(16):
        nx = b + 1 < 16
        if nx:
            lg.wait(("s", b+1)); vm.wait(("xn", b+1))
            a(SMF(b+1))
        for x in rdW(2*b+1): lg.op(*x)
        lg.wait(("w", 2*b))
        M = MM(2*b); Rs = rdS(b+2) if b + 2 < 16 else []
        a(M[0]); [lg.op(*x) for x in Rs]
        a(M[1]); xn_issue(3)
        if b == 8: a("s_barrier")
        lg.wait(("w", 2*b+1))
        M = MM(2*b+1); C = CVT(b+1) if nx else []; Rw = rdW(2*b+2) if nx else []
        a(M[0]); [lg.op(*x) for x in Rw]; [a(x) for x in C[:3]]
        a(M[1]); [a(x) for x in C[3:]]
    a(f"s_lshl_b32 s52, s{sC}, 17\ns_lshl_b32 s53, s{sT32}, 10\ns_add_u32 s52, s52, s53")
    a(f"s_add_u32 s54, s52, {hex(WS_K)}\ns_add_u32 s55, s54, 65536\ns_add_u32 s56, s52, {hex(WS_V)}")
    a(f"v_and_b32 v5, 0x33, v{vLANE}\nv_bfe_u32 v6, v{vLANE}, 2, 1\nv_lshl_add_u32 v5, v6, 3, v5\nv_bfe_u32 v6, v{vLANE}, 3, 1\nv_lshl_add_u32 v5, v6, 2, v5\nv_lshlrev_b32 v5, 4, v5")
    a(f"v_and_b32 v6, 15, v{vLANE}\nv_lshlrev_b32 v6, 4, v6\nv_bfe_u32 v7, v{vLANE}, 5, 1\nv_lshl_add_u32 v6, v7, 8, v6\nv_bfe_u32 v7, v{vLANE}, 4, 1\nv_lshl_add_u32 v6, v7, 16, v6")
    for r in range(8): a(f"v_cvt_pk_bf16_f32 v{88+r}, v{ACC[1]+2*r}, v{ACC[1]+2*r+1}")
    vm.op(f"buffer_store_dwordx4 v[88:91], v5, {S['ws']}, s54 offen sc1"); vm.op(f"buffer_store_dwordx4 v[92:95], v5, {S['ws']}, s55 offen sc1")
    for r in range(8): a(f"v_cvt_pk_bf16_f32 v{96+r}, v{ACC[2]+2*r}, v{ACC[2]+2*r+1}")
    vm.op(f"buffer_store_dwordx4 v[96:99], v6, {S['ws']}, s56 offen sc1"); vm.op(f"buffer_store_dwordx4 v[100:103], v6, {S['ws']}, s56 offen offset:512 sc1")
    stamp(a, 3)
    a(f"s_lshl_b32 s57, s{sW}, 10\ns_add_u32 s57, s57, {L_QX}\nv_add_u32 v7, s57, v{vL16}")
    a(f"s_lshl_b32 s58, s{sC}, 6\ns_add_u32 s58, s58, s{sT32}")
    flag_off(a, 57, 58, WS_FKV)
    a("s_barrier")
    WQ = [64, 68, 72, 76]
    def rdQ(ks): return [(f"ds_read_b64_tr_b16 {vr(WQ[ks&3]+2*st,2)}, v{10 if ks < 16 else 12} offset:{3072*(ks%16)+512*st}", ("q", ks)) for st in range(2)]
    lg.reset()
    for x in rdQ(0) + rdQ(1) + rdQ(2): lg.op(*x)
    for ks in range(32):
        if ks + 3 < 32: [lg.op(*x) for x in rdQ(ks+3)]
        lg.wait(("q", ks))
        a(f"v_mfma_f32_32x32x16_bf16 {vr(ACC[0],16)}, {vr(WQ[ks&3],4)}, {vr(AF+4*ks,4)}, {vr(ACC[0],16)}")
        if ks == OPT.get("kvflag", 20): set_flag(a, vm, "s57", vZ, 8)
    a(f"s_mov_b32 s53, {hx(0.25*LOG2E)}")
    for r in range(16): a(f"v_mul_f32 v{ACC[0]+r}, s53, v{ACC[0]+r}")
    for r in range(8): a(f"v_cvt_pk_bf16_f32 v{64+r}, v{ACC[0]+2*r}, v{ACC[0]+2*r+1}")
    a("ds_write_b128 v7, v[64:67]\nds_write_b128 v7, v[68:71] offset:4096")
    a("s_waitcnt lgkmcnt(0)\ns_barrier")

def active2(a):
    vm = Track(a, "vmcnt", 63); lg = Track(a, "lgkmcnt", 15)
    sT32, AF = 67, 128
    ACC, WF, XR, GA, G2, XF = 16, [96, 100, 104, 108], 40, 48, 64, 80
    a(f"v_bfe_u32 v9, v{vLANE}, 5, 1\nv_and_b32 v7, 31, v{vLANE}\nv_lshlrev_b32 v8, 10, v7\nv_lshl_add_u32 v8, v9, 3, v8")
    a(f"s_lshl_b32 s52, s{sT32}, 15\ns_lshl_b32 s53, s{sC}, 6\ns_add_u32 s52, s52, s53")
    for q in range(4): vm.op(f"buffer_load_dwordx2 {vr(XR+2*q,2)}, v8, {S['x']}, s52 offen offset:{16*q}")
    tr_addr(a, 10, 11, True, 6, False)
    for r in range(16): a(f"v_mov_b32 v{ACC+r}, 0")
    poll_addr(a, 5)
    a(f"s_lshl_b32 s52, s{sT32}, 9\ns_add_u32 s52, s52, {hex(WS_FO)}")
    poll(a, vm, "0xffffffff", 5, "s52", 6)
    stamp(a, 8)
    a(f"s_lshl_b32 s52, s{sT32}, 15\ns_add_u32 s52, s52, {hex(WS_O)}")
    OL = rot_loads(a, vm, 52, AF, "o")
    for _ in range(12): vm.op(*next(OL)[1])
    def rdWo(ks): return [(f"ds_read_b64_tr_b16 {vr(WF[ks&3]+2*st,2)}, v10 offset:{L_WO+1024*ks+512*st}", ("w", ks)) for st in range(2)]
    lg.reset()
    for x in rdWo(0) + rdWo(1) + rdWo(2): lg.op(*x)
    for ks in range(32):
        if ks + 3 < 32:
            for x in rdWo(ks+3): lg.op(*x)
        lg.wait(("w", ks)); vm.wait(("o", ks))
        a(f"v_mfma_f32_32x32x16_bf16 {vr(ACC,16)}, {vr(WF[ks&3],4)}, {vr(AF+4*ks,4)}, {vr(ACC,16)}")
        if ks + 12 < 32: vm.op(*next(OL)[1])
        if ks == OPT.get("b5b", 19): a("s_barrier")
    a("s_barrier")
    a(f"v_lshlrev_b32 v5, 4, v9\nv_add_u32 v5, {L_GA}, v5")
    for q in range(4): a(f"ds_read_b128 {vr(GA+4*q,4)}, v5 offset:{32*q}")
    for q in range(4): a(f"ds_read_b128 {vr(G2+4*q,4)}, v5 offset:{128+32*q}")
    for q in range(4):
        for h in range(2): a(f"v_lshlrev_b32 v{XF+4*q+2*h}, 16, v{XR+2*q+h}\nv_and_b32 v{XF+4*q+2*h+1}, 0xffff0000, v{XR+2*q+h}")
    a(f"s_lshl_b32 s52, s{sT32}, 15\ns_lshl_b32 s53, s{sC}, 11\ns_add_u32 s52, s52, s53\ns_add_u32 s53, s52, {hex(WS_Y)}\ns_add_u32 s52, s52, {hex(WS_X1)}")
    a(f"s_lshl_b32 s54, s{sC}, 14\ns_lshl_b32 s55, s{sT32}, 8\ns_add_u32 s54, s54, s55\ns_add_u32 s54, s54, {hex(WS_STATS)}")
    a(f"s_lshl_b32 s55, s{sT32}, 4\ns_add_u32 s55, s55, s{sC}")
    flag_off(a, 56, 55, WS_FX1)
    a(f"s_lshl_b32 s55, s{sT32}, 8\ns_add_u32 s55, s55, {hex(WS_FX1)}")
    a(f"v_lshlrev_b32 v6, 2, v{vLANE}")
    a("s_waitcnt lgkmcnt(4)")
    for r in range(16): a(f"v_fmac_f32 v{XF+r}, v{ACC+r}, v{GA+r}")
    a("s_waitcnt lgkmcnt(0)")
    for r in range(16): a(f"v_mul_f32 v{ACC+r}, v{XF+r}, v{G2+r}")
    for r in range(8): a(f"v_cvt_pk_bf16_f32 v{32+r}, v{ACC+2*r}, v{ACC+2*r+1}")
    vm.op(f"buffer_store_dwordx4 v[32:35], v{vL16}, {S['ws']}, s53 offen sc1"); vm.op(f"buffer_store_dwordx4 v[36:39], v{vL16}, {S['ws']}, s53 offen offset:1024 sc1")
    a(f"v_add_f32 v48, v{XF}, v{XF+1}\nv_mul_f32 v49, v{XF}, v{XF}\nv_fmac_f32 v49, v{XF+1}, v{XF+1}")
    for r in range(2, 16): a(f"v_add_f32 v48, v48, v{XF+r}\nv_fmac_f32 v49, v{XF+r}, v{XF+r}")
    for r in range(8): a(f"v_cvt_pk_bf16_f32 v{40+r}, v{XF+2*r}, v{XF+2*r+1}")
    a("v_permlane32_swap_b32 v48, v49\nv_add_f32 v48, v48, v49")
    vm.op(f"buffer_store_dword v48, v6, {S['ws']}, s54 offen sc1")
    vm.op(f"buffer_store_dwordx4 v[40:43], v{vL16}, {S['ws']}, s52 offen sc1"); vm.op(f"buffer_store_dwordx4 v[44:47], v{vL16}, {S['ws']}, s52 offen offset:1024 sc1")
    set_flag(a, vm, "s56", vZ, 8)
    stamp(a, 9)
    ACC, WF, WH, ST = 16, [80, 92], [104, 108], 112
    vF, vH = [10, 11, 12, 13], [4, 7, 14, 15]
    tr_addr(a, 10, 11, True, 6, False)
    a(f"v_add_u32 v10, {L_W1}, v10\nv_add_u32 v11, 0x8000, v10\nv_add_u32 v12, 0x10000, v10\nv_add_u32 v13, 0x18000, v10")
    half_tr_addr(a, 4, 7)
    a(f"v_add_u32 v4, {L_W1}, v4\nv_add_u32 v7, 0x8000, v4\nv_add_u32 v14, 0x10000, v4\nv_add_u32 v15, 0x18000, v4")
    a(f"v_and_b32 v8, 16, v0\nv_cmp_eq_u32 vcc, 0, v8\nv_mov_b32 v8, 0xeeeeeeee\nv_mov_b32 v5, 0x44444444\nv_cndmask_b32 v8, v8, v5, vcc")
    for r in range(64): a(f"v_mov_b32 v{ACC+r}, 0")
    poll_addr(a, 5)
    poll(a, vm, "0xffff", 5, "s55", 9)
    stamp(a, 10)
    a(f"s_lshl_b32 s52, s{sT32}, 15\ns_add_u32 s52, s52, {hex(WS_Y)}")
    a(f"s_lshl_b32 s54, s{sT32}, 8\ns_add_u32 s54, s54, {hex(WS_STATS)}")
    YL = rot_loads(a, vm, 52, AF, "y")
    for _ in range(12): vm.op(*next(YL)[1])
    lg.reset()
    for x in w1_reads(0, 0, WF[0], vF): lg.op(x, ("w", 0))
    for kp in range(16):
        for e in range(2):
            ks = 2*kp + e
            if e == 0:
                R = [(x, ("w", ks+1)) for x in w1_reads(kp, 1, WF[1], vF)] + [(x, ("h", kp)) for x in w1_half_reads(kp, WH[kp & 1], vH)]
            else:
                R = [(x, ("w", ks+1)) for x in w1_reads(kp+1, 0, WF[0], vF)] if kp < 15 else []
            lg.wait(("w", ks)); vm.wait(("y", ks))
            for nt in range(3):
                a(f"v_mfma_f32_32x32x16_bf16 {vr(ACC+16*nt,16)}, {vr(WF[e]+4*nt,4)}, {vr(AF+4*ks,4)}, {vr(ACC+16*nt,16)}")
                if nt == 0: [lg.op(*x) for x in R]
                if nt >= 1:
                    j = 12 + 2*ks + nt - 1
                    if j < 32: vm.op(*next(YL)[1])
                    elif j < 48:
                        vm.op(f"buffer_load_dword v{ST+j-32}, v6, {S['ws']}, s54 offen sc1", "st"); a("s_add_u32 s54, s54, 16384")
            if e == 1:
                lg.wait(("h", kp))
                a(f"v_smfmac_f32_32x32x32_bf16 {vr(ACC+48,16)}, {vr(WH[kp&1],4)}, {vr(AF+8*kp,8)}, v8")
    a("s_barrier")
    stamp(a, 11)
    vm.wait("st")
    for q in range(1, 16): a(f"v_add_f32 v{ST}, v{ST}, v{ST+q}")
    a(f"v_mov_b32 v9, v{ST}\nv_permlane32_swap_b32 v{ST}, v9")
    a(f"v_mul_f32 v8, {hx(1/512)}, v{ST}\nv_mul_f32 v9, {hx(1/512)}, v9\nv_fma_f32 v9, -v8, v8, v9")
    a(f"v_max_f32 v9, 0, v9\nv_add_f32 v9, {hx(1e-5)}, v9\nv_rsq_f32 v9, v9")
    a(f"v_bfe_u32 v5, v{vLANE}, 5, 1\nv_lshlrev_b32 v14, 7, v5\nv_add_u32 v14, {L_UW}, v14")
    a(f"v_mul_f32 v10, {hx(-LOG2E)}, v9\nv_mul_f32 v9, v10, v8\nv_sub_f32 v9, 0, v9\nv_mov_b32 v8, v10")
    a(f"s_mul_i32 s52, s{sT32}, {112*1024}\ns_mul_i32 s53, s{sC}, 7168\ns_add_u32 s52, s52, s53\ns_add_u32 s52, s52, {hex(WS_H)}")
    a(f"s_lshl_b32 s55, s{sT32}, 4\ns_add_u32 s55, s55, s{sC}")
    flag_off(a, 56, 55, WS_FH)
    U = [128, 160]; E = 192
    def rdUW(nt):
        n = 4 if nt < 3 else 2
        for q in range(n): lg.op(f"ds_read_b128 {vr(U[nt&1]+4*q,4)}, v14 offset:{256*nt+16*q}", ("u", nt))
        for q in range(n): lg.op(f"ds_read_b128 {vr(U[nt&1]+16+4*q,4)}, v14 offset:{256*nt+64+16*q}", ("u", nt))
    lg.reset(); rdUW(0)
    for r in range(8): a(f"v_add_f32 v{ACC+48+r}, v{ACC+48+r}, v{ACC+56+r}")
    for nt in range(4):
        u = U[nt & 1]; acc = ACC + 16*nt; n = 16 if nt < 3 else 8
        lg.wait(("u", nt))
        if nt < 3: rdUW(nt+1)
        for r in range(0, n, 2): a(f"v_pk_fma_f32 {vr(u+r,2)}, {vr(u+r,2)}, v[8:9], {vr(u+16+r,2)} op_sel:[0,1,0] op_sel_hi:[1,1,1]")
        for r in range(0, n, 2): a(f"v_pk_fma_f32 {vr(acc+r,2)}, {vr(acc+r,2)}, v[8:9], {vr(u+r,2)} op_sel:[0,0,0] op_sel_hi:[1,0,1]")
        for r in range(n): a(f"v_exp_f32 v{E+r}, v{acc+r}")
        for r in range(0, n, 2): a(f"v_pk_add_f32 {vr(E+r,2)}, {vr(E+r,2)}, 1.0 op_sel_hi:[1,0]")
        for r in range(n): a(f"v_rcp_f32 v{E+r}, v{E+r}")
        for r in range(0, n, 2): a(f"v_pk_mul_f32 {vr(acc+r,2)}, {vr(acc+r,2)}, {vr(E+r,2)}")
        o = 208 + 8*nt
        for r in range(n//2): a(f"v_cvt_pk_bf16_f32 v{o+r}, v{acc+2*r}, v{acc+2*r+1}")
        if nt == 2: a("s_add_u32 s52, s52, 4096")
        vm.op(f"buffer_store_dwordx4 {vr(o,4)}, v{vL16}, {S['ws']}, s52 offen offset:{2048*(nt&1)} sc1")
        if nt < 3: vm.op(f"buffer_store_dwordx4 {vr(o+4,4)}, v{vL16}, {S['ws']}, s52 offen offset:{2048*(nt&1)+1024} sc1")
    set_flag(a, vm, "s56", vZ, 8)
    stamp(a, 12)
    ACC, WF, GB, XR, NR = [16, 32], [48, 56, 88], 64, 80, 32
    sTT, sKH, sT5, sF5 = 54, 55, 57, 58
    a(f"s_and_b32 s{sTT}, s{sW}, 1\ns_lshr_b32 s{sKH}, s{sW}, 1")
    a(f"s_lshr_b32 s52, s{sC}, 3\ns_lshl_b32 s52, s52, 1\ns_lshl_b32 s{sT5}, s{sTB}, 2\ns_add_u32 s{sT5}, s{sT5}, s52\ns_add_u32 s{sT5}, s{sT5}, s{sTT}")
    a(f"s_and_b32 s{sF5}, s{sC}, 7\ns_lshl_b32 s{sF5}, s{sF5}, 1\ns_add_u32 s{sF5}, s{sF5}, s{sKH}")
    tr_addr(a, 10, 11, True, 7, True)
    a(f"s_lshl_b32 s52, s{sKH}, 6\nv_xor_b32 v10, s52, v10\ns_lshl_b32 s52, s{sKH}, 13\nv_add_u32 v10, s52, v10\nv_xor_b32 v11, 64, v10")
    for r in range(32): a(f"v_mov_b32 v{16+r}, 0")
    a(f"v_lshlrev_b32 v5, 2, v{vLANE}\ns_lshl_b32 s52, s{sT5}, 4\ns_add_u32 s52, s52, s{sF5}")
    flag_off(a, 53, 52, WS_FX1)
    a(f"s_lshl_b32 s52, s{sT5}, 8")
    poll(a, vm, "1", 5, "s53", 9)
    a(f"s_lshl_b32 s53, s{sT5}, 15\ns_lshl_b32 s59, s{sF5}, 11\ns_add_u32 s53, s53, s59\ns_add_u32 s53, s53, {hex(WS_X1)}")
    for q in range(2): vm.op(f"buffer_load_dwordx4 {vr(XR+4*q,4)}, v{vL16}, {S['ws']}, s53 offen offset:{1024*q} sc1")
    a(f"s_lshl_b32 s53, s{sKH}, 7\ns_add_u32 s52, s52, s53\ns_add_u32 s52, s52, {hex(WS_FH)}")
    poll(a, vm, "0xff", 5, "s52", 9)
    stamp(a, 13)
    a(f"s_mul_i32 s52, s{sT5}, {112*1024}\ns_mul_i32 s53, s{sKH}, {56*1024}\ns_add_u32 s52, s52, s53\ns_add_u32 s52, s52, {hex(WS_H)}")
    a(f"s_lshl_b32 s59, s{sR}, 1\ns_cmp_ge_u32 s59, 14\ns_cselect_b32 s59, 0, s59")
    def ldH(ks):
        if ks % 4 == 0: a(f"s_add_u32 s53, s59, {ks//4}\ns_cmp_ge_u32 s53, 14\ns_cselect_b32 s60, 14, 0\ns_sub_u32 s53, s53, s60\ns_lshl_b32 s53, s53, 12\ns_add_u32 s53, s53, s52")
        vm.op(f"buffer_load_dwordx4 {vr(AF+4*(ks%NR),4)}, v{vL16}, {S['ws']}, s53 offen offset:{1024*(ks%4)} sc1", ("h", ks))
    PF = 12
    for ks in range(PF):
        ldH(ks)
        if ks == 7: a("s_barrier")
    slot = lambda s: s if s < 9 else s - 9
    def rdW2(ks):
        s, k = ks // 4, ks % 4
        return [(f"ds_read_b64_tr_b16 {vr(WF[ks%3]+4*n+2*st,2)}, v{12+n} offset:{2048*k+1024*st}", ("w", ks)) for n in range(2) for st in range(2)]
    def setslot(s): a(f"v_add_u32 v12, {16384*slot(s)}, v10\nv_add_u32 v13, {16384*slot(s)}, v11")
    lg.reset(); setslot(0)
    for x in rdW2(0) + rdW2(1): lg.op(*x)
    for ks in range(56):
        n = ks + 2
        lg.wait(("w", ks))
        if ks in (11, 19): a("s_barrier")
        if n < 56 and n % 4 == 0:
            if n // 4 in (9, 12): a("s_barrier")
            setslot(n // 4)
        vm.wait(("h", ks))
        a(f"v_mfma_f32_32x32x16_bf16 {vr(ACC[0],16)}, {vr(WF[ks%3],4)}, {vr(AF+4*(ks%NR),4)}, {vr(ACC[0],16)}")
        if n < 56: [lg.op(*x) for x in rdW2(n)]
        a(f"v_mfma_f32_32x32x16_bf16 {vr(ACC[1],16)}, {vr(WF[ks%3]+4,4)}, {vr(AF+4*(ks%NR),4)}, {vr(ACC[1],16)}")
        if ks + PF < 56: ldH(ks + PF)
    stamp(a, 14)
    a(f"s_xor_b32 s52, s{sW}, 2\ns_lshl_b32 s52, s52, 12\ns_add_u32 s52, s52, {16384*5}\nv_add_u32 v5, s52, v{vL16}")
    a(f"s_lshl_b32 s52, s{sW}, 12\ns_add_u32 s52, s52, {16384*5}\nv_add_u32 v6, s52, v{vL16}")
    a(f"v_bfe_u32 v9, v{vLANE}, 5, 1\nv_lshlrev_b32 v7, 4, v9\ns_lshl_b32 s52, s{sKH}, 7\ns_add_u32 s52, s52, {L_GB}\nv_add_u32 v7, s52, v7")
    for q in range(4): a(f"ds_read_b128 {vr(GB+4*q,4)}, v7 offset:{32*q}")
    XF = 96
    for r in range(8): a(f"v_lshlrev_b32 v{XF+2*r}, 16, v{XR+r}\nv_and_b32 v{XF+2*r+1}, 0xffff0000, v{XR+r}")
    for q in range(4): a(f"ds_write_b128 v5, {vr(ACC[1]+4*q,4)} offset:{1024*q}")
    a("s_waitcnt lgkmcnt(0)\ns_barrier")
    for q in range(4): a(f"ds_read_b128 {vr(ACC[1]+4*q,4)}, v6 offset:{1024*q}")
    a(f"v_and_b32 v7, 31, v{vLANE}\nv_lshlrev_b32 v8, 10, v7\nv_lshl_add_u32 v8, v9, 4, v8")
    a(f"s_lshl_b32 s52, s{sT5}, 15\ns_lshl_b32 s53, s{sF5}, 6\ns_add_u32 s52, s52, s53")
    for q in range(4):
        a(f"s_waitcnt lgkmcnt({3-q})")
        for r in range(4*q, 4*q+4): a(f"v_add_f32 v{ACC[0]+r}, v{ACC[0]+r}, v{ACC[1]+r}")
        for r in range(4*q, 4*q+4): a(f"v_fmac_f32 v{XF+r}, v{ACC[0]+r}, v{GB+r}")
    for r in range(8): a(f"v_cvt_pk_bf16_f32 v{64+r}, v{XF+2*r}, v{XF+2*r+1}")
    for p in range(2):
        a(f"v_permlane32_swap_b32 v{64+4*p}, v{64+4*p+2}\nv_permlane32_swap_b32 v{64+4*p+1}, v{64+4*p+3}")
        vm.op(f"buffer_store_dwordx4 {vr(64+4*p,4)}, v8, {S['out']}, s52 offen offset:{32*p}")

def p0_ln(a):
    vm = Track(a, "vmcnt", 63)
    sH = 67
    late_srds(a)
    a("v_lshrrev_b32 v7, 1, v5\nv_lshlrev_b32 v7, 10, v7\nv_and_b32 v8, 1, v5\nv_lshl_add_u32 v7, v8, 9, v7\nv_lshl_add_u32 v7, v4, 4, v7")
    a(f"s_lshr_b32 s53, s52, 2\ns_lshl_b32 s53, s53, 15\ns_and_b32 s54, s52, 3\ns_lshl_b32 s54, s54, 7\ns_add_u32 s53, s53, s54\ns_add_u32 s53, s53, {hex(WS_XN)}")
    a(f"s_lshl_b32 s56, s52, 1\ns_add_u32 s56, s56, s{sH}")
    flag_off(a, 55, 56, WS_FXN)
    a(f"s_cmp_lg_u32 s{sH}, 1\ns_cbranch_scc1 Lh_nozero")
    a(f"v_mov_b32 v32, 0\nv_mov_b32 v33, 0\nv_mov_b32 v34, 0\nv_mov_b32 v35, 0\nv_add_u32 v9, {L_DG}, v{vL16}")
    for j in range(16): a(f"ds_write_b128 v9, v[32:35] offset:{1024*j}")
    a("Lh_nozero:")
    stamp(a, 3)
    vm.wait_all()
    stamp(a, 10)
    F = 32
    a("s_waitcnt lgkmcnt(0)")
    for r in range(16): a(f"v_lshlrev_b32 v{F+2*r}, 16, v{16+r}\nv_and_b32 v{F+2*r+1}, 0xffff0000, v{16+r}")
    def red(v, t):
        for r in (4, 8): a(f"v_add_f32_dpp v{v}, v{v}, v{v} row_ror:{r} row_mask:0xf bank_mask:0xf")
        a(f"v_mov_b32 v{t}, v{v}\nv_permlane16_swap_b32 v{v}, v{t}\nv_add_f32 v{v}, v{v}, v{t}")
        a(f"v_mov_b32 v{t}, v{v}\nv_permlane32_swap_b32 v{v}, v{t}\nv_add_f32 v{v}, v{v}, v{t}")
    a(f"v_pk_add_f32 v[64:65], {vr(F,2)}, {vr(F+2,2)}\nv_pk_add_f32 v[66:67], {vr(F+4,2)}, {vr(F+6,2)}")
    for r in range(8, 32, 4): a(f"v_pk_add_f32 v[64:65], v[64:65], {vr(F+r,2)}\nv_pk_add_f32 v[66:67], v[66:67], {vr(F+r+2,2)}")
    a("v_pk_add_f32 v[64:65], v[64:65], v[66:67]\nv_add_f32 v64, v64, v65")
    red(64, 65)
    a(f"v_mul_f32 v64, {hx(-1/512)}, v64")
    for r in range(0, 32, 2): a(f"v_pk_add_f32 {vr(F+r,2)}, {vr(F+r,2)}, v[64:65] op_sel_hi:[1,0]")
    a(f"v_pk_mul_f32 v[66:67], {vr(F,2)}, {vr(F,2)}\nv_pk_mul_f32 v[68:69], {vr(F+2,2)}, {vr(F+2,2)}")
    for r in range(4, 32, 4): a(f"v_pk_fma_f32 v[66:67], {vr(F+r,2)}, {vr(F+r,2)}, v[66:67]\nv_pk_fma_f32 v[68:69], {vr(F+r+2,2)}, {vr(F+r+2,2)}, v[68:69]")
    a("v_pk_add_f32 v[66:67], v[66:67], v[68:69]\nv_add_f32 v66, v66, v67")
    red(66, 67)
    a(f"v_mov_b32 v67, {hx(1e-5)}\nv_fmac_f32 v67, {hx(1/512)}, v66\nv_rsq_f32 v66, v67")
    for r in range(0, 32, 2): a(f"v_pk_mul_f32 {vr(F+r,2)}, {vr(F+r,2)}, v[66:67] op_sel_hi:[1,0]")
    for m in range(4):
        for r in range(4): a(f"v_cvt_pk_bf16_f32 v{16+4*m+r}, v{F+8*m+2*r}, v{F+8*m+2*r+1}")
        vm.op(f"buffer_store_dwordx4 {vr(16+4*m,4)}, v7, {S['ws']}, s53 offen sc1")
        if m < 3: a("s_add_u32 s53, s53, 8192")
    stamp(a, 11)
    vm.wait_all()
    stamp(a, 13)
    a("s_barrier")
    read_tag(a)
    set_flag(a, vm, "s55", vZ, 8)
    stamp(a, 0)
    a(f"s_lshl_b32 s52, s{sH}, 11")
    a(f"v_lshrrev_b32 v5, 3, v{vLANE}\ns_lshl_b32 s53, s{sR}, 1\nv_subrev_u32 v5, s53, v5\nv_and_b32 v5, 15, v5\nv_xor_b32 v6, 8, v5")
    gran_poll(a, vm, [f"buffer_load_dwordx4 v[16:19], v{vL16}, {S['ws']}, s52 offen sc1", f"buffer_load_dwordx4 v[20:23], v{vL16}, {S['ws']}, s52 offen offset:1024 sc1"], [16, 20])
    stamp(a, 1)
    a(f"s_cmp_lg_u32 s{sH}, 0\ns_cbranch_scc1 Lh_g1")
    for j, r in enumerate((16, 18, 20, 22)): a(f"v_lshlrev_b32 v{24+2*j}, 16, v{r}\nv_and_b32 v{25+2*j}, 0xffff0000, v{r}")
    a(f"v_and_b32 v7, 1, v{vLANE}\nv_lshlrev_b32 v7, 6, v7\nv_bfe_u32 v9, v{vLANE}, 1, 2\nv_lshl_add_u32 v7, v9, 4, v7\nv_add_u32 v7, {L_SA}, v7")
    a("v_lshl_add_u32 v5, v5, 7, v7\nv_lshl_add_u32 v6, v6, 7, v7")
    a("ds_write_b128 v5, v[24:27]\nds_write_b128 v6, v[28:31]")
    a("s_branch Lh_b2")
    a("Lh_g1:")
    a(f"v_and_b32 v7, 7, v{vLANE}\nv_lshlrev_b32 v7, 6, v7\nv_bfe_u32 v9, v{vLANE}, 2, 1\nv_lshl_add_u32 v7, v9, 9, v7\nv_and_b32 v9, 3, v{vLANE}\nv_lshl_add_u32 v7, v9, 2, v7\nv_add_u32 v7, {L_DG}, v7")
    a("v_lshl_add_u32 v5, v5, 10, v7\nv_lshl_add_u32 v6, v6, 10, v7")
    for j in range(2):
        for e in range(4):
            a(f"ds_write_b16{'_d16_hi' if e & 1 else ''} v{5+j}, v{16+4*j+2*(e>>1)} offset:{16*e + 2*(e & 1)}")
    a("s_branch Lh_b2")

def p0_dma(a):
    sH = 67
    late_srds(a)
    a(f"s_and_b32 s54, s{sH}, 1")
    a(f"v_lshrrev_b32 v4, 2, v{vLANE}\nv_mul_u32_u24 v4, 3072, v4\nv_and_b32 v5, 3, v{vLANE}\nv_lshl_add_u32 v4, v5, 4, v4")
    wloop(a, "Lh_wl", (1, 2), OPT.get("thr", 6))
    a(f"s_cmp_lg_u32 s{sW}, 7\ns_cbranch_scc1 Lh_notag2")
    a(f"s_mov_b32 s50, {SPIN}\ns_mov_b64 exec, 1\nLh_tagl:\nbuffer_load_dword v6, v{vZ}, {S['dbg']}, 0 offen sc1\ns_sub_u32 s50, s50, 1\ns_waitcnt vmcnt(0)\nv_readfirstlane_b32 s52, v6")
    a(f"s_cmp_lg_u32 s52, 0\ns_cbranch_scc1 Lh_tagd\ns_cmp_lg_u32 s50, 0\ns_cbranch_scc1 Lh_tagl\nLh_tagd:\nv_mov_b32 v5, {L_SCR+260}\nds_write_b32 v5, v6\ns_mov_b64 exec, -1")
    a("Lh_notag2:")
    a("s_waitcnt vmcnt(0) lgkmcnt(0)")
    stamp(a, 0)
    a("s_barrier")
    read_tag(a)
    a("s_branch Lh_b2")

def wloop(a, name, groups, thr):
    a(f"s_lshl_b32 s55, s{sR}, 2\ns_add_u32 s55, s55, s54\ns_mul_i32 s53, s54, 3072\ns_lshl_b32 s56, s{sC}, 6\ns_mov_b32 s51, 16\n{name}:")
    a(f"s_and_b32 s52, s55, 31\ns_mul_i32 s52, s52, {16*3072}\ns_mov_b32 m0, s53\ns_add_u32 s52, s52, s56")
    for g in groups: a(f"buffer_load_dwordx4 v4, {S['wqkv']}, s52 offen offset:{1024*g} lds")
    a(f"s_add_u32 s55, s55, 2\ns_add_u32 s53, s53, 6144\ns_sub_u32 s51, s51, 1\ns_waitcnt vmcnt({thr})\ns_cmp_lg_u32 s51, 0\ns_cbranch_scc1 {name}")

def helper(a):
    vm = Track(a, "vmcnt", 63)
    sH, sCol = 67, 66
    a("Lh_b2:")
    a("s_waitcnt lgkmcnt(0)\ns_barrier")
    a("s_barrier")
    a(f"s_cmp_lt_u32 s{sH}, 2\ns_cbranch_scc1 Lh_noq")
    wloop(a, "Lh_ql", (0,), 16)
    a("s_waitcnt vmcnt(0)")
    a("Lh_noq:")
    if OPT.get("touch", 1) == 1: mall_touch(a)
    stamp(a, 2)
    a("s_barrier")
    a("s_barrier")

def helper2(a):
    vm = Track(a, "vmcnt", 63); lg = Track(a, "lgkmcnt", 15)
    sH = 67
    vF, vH = 13, 14
    a(f"s_sub_u32 s52, s{sI}, 8\ns_cmp_ge_u32 s52, 16\ns_cbranch_scc1 Lh_nomod2")
    mod_partial(a, vm, 200); mod_join(a, vm, 66, "Lh_nomod2")
    a("Lh_nomod2:")
    a(f"s_cmp_lg_u32 s{sH}, 3\ns_cbranch_scc1 Lh_nokp")
    a(f"s_lshl_b32 s65, s{sR}, 1\ns_add_u32 s65, s65, 15\ns_and_b32 s65, s65, 15\ns_mul_i32 s65, s65, {32*3584}\ns_mul_i32 s52, s{sC}, 224\ns_add_u32 s65, s65, s52\ns_mov_b32 s66, {L_W1+15*7168}")
    for p in w1_kp_dma(65, 66, vF, vH):
        for x in p[:-1]: a(x)
        vm.op(p[-1])
    a("Lh_nokp:")
    a("s_barrier")
    a(f"v_lshlrev_b32 v4, 5, v{vLANE}\ns_lshl_b32 s52, s{sH}, 11\ns_add_u32 s52, s52, 4096")
    gran_poll(a, vm, [f"buffer_load_dwordx4 v[16:19], v4, {S['ws']}, s52 offen sc1", f"buffer_load_dwordx4 v[20:23], v4, {S['ws']}, s52 offen offset:16 sc1"], [16, 20])
    for j, r in enumerate((16, 18, 20, 22)): a(f"v_lshlrev_b32 v{24+2*j}, 16, v{r}\nv_and_b32 v{25+2*j}, 0xffff0000, v{r}")
    a(f"s_cmp_eq_u32 s{sH}, 1\ns_cbranch_scc1 Lh_tabg")
    a(f"s_cmp_eq_u32 s{sH}, 3\ns_cselect_b32 s53, {hx(-1/LOG2E)}, 1.0")
    a(f"s_lshl_b32 s54, s{sC}, 2\ns_and_b32 s55, s{sC}, 7\ns_lshl_b32 s55, s55, 3\ns_lshl_b32 s56, s{sH}, 6\ns_cmp_eq_u32 s{sH}, 3\ns_cselect_b32 s54, s55, s54\ns_cselect_b32 s55, 8, 4")
    a(f"s_cselect_b32 s56, 256, s56\ns_add_u32 s56, s56, {L_TAB}")
    for r in range(8): a(f"v_mul_f32 v{24+r}, s53, v{24+r}")
    a(f"v_subrev_u32 v5, s54, v{vLANE}\nv_cmp_gt_u32 vcc, s55, v5\nv_lshlrev_b32 v5, 5, v5\nv_add_u32 v5, s56, v5")
    a("s_and_saveexec_b64 s[56:57], vcc\nds_write_b128 v5, v[24:27]\nds_write_b128 v5, v[28:31] offset:16\ns_mov_b64 exec, -1")
    a(f"s_cmp_lg_u32 s{sH}, 2\ns_cbranch_scc1 Lh_tabd")
    a("Lh_tabg:")
    a(f"v_lshrrev_b32 v5, 1, v{vLANE}\ns_lshl_b32 s53, s{sR}, 2\nv_subrev_u32 v5, s53, v5\nv_and_b32 v5, 31, v5\nv_lshlrev_b32 v5, 6, v5\nv_and_b32 v6, 1, v{vLANE}\nv_lshl_add_u32 v5, v6, 3, v5")
    a(f"s_and_b32 s53, s{sH}, 1\ns_lshl_b32 s53, s53, 4\ns_add_u32 s53, s53, {L_G}\nv_add_u32 v5, s53, v5")
    a("v_mov_b32 v17, v18\nv_mov_b32 v21, v22\nds_write_b64 v5, v[16:17]\nds_write_b64 v5, v[20:21] offset:32")
    a("Lh_tabd:")
    a("s_waitcnt vmcnt(0) lgkmcnt(0)")
    stamp(a, 8)
    a("s_barrier")
    vm.reset()
    vW2 = 10
    a(f"v_lshrrev_b32 v{vW2}, 3, v{vLANE}\nv_lshlrev_b32 v{vW2}, 10, v{vW2}\nv_bfe_u32 v5, v{vLANE}, 4, 1\nv_lshlrev_b32 v5, 2, v5\nv_xor_b32 v5, v5, v{vLANE}\nv_and_b32 v5, 7, v5\nv_lshl_add_u32 v{vW2}, v5, 4, v{vW2}")
    a(f"s_lshl_b32 s58, s{sH}, 14\ns_and_b32 s52, s{sC}, 7\ns_lshl_b32 s52, s52, 7\ns_add_u32 s58, s58, s52\ns_lshl_b32 s59, s{sH}, 11")
    a(f"s_lshl_b32 s60, s{sR}, 1\ns_cmp_ge_u32 s60, 14\ns_cselect_b32 s60, 0, s60")
    def w2_stage(s, thr=None):
        sl = s if s < 9 else s - 9
        a(f"s_add_u32 s61, s60, {s}\ns_cmp_ge_u32 s61, 14\ns_cselect_b32 s62, 14, 0\ns_sub_u32 s61, s61, s62\ns_lshl_b32 s61, s61, 16\ns_add_u32 s61, s61, s58")
        for kh in range(2):
            for hf in range(2):
                a(f"s_add_u32 m0, s59, {16384*sl+8192*kh+1024*hf}\ns_add_u32 s52, s61, {56*kh*16384+8192*hf}")
                vm.op(f"buffer_load_dwordx4 v{vW2}, {S['w2']}, s52 offen lds", ("w2", s))
        if thr: vm.wait(("w2", s-1))
    w2_stage(0); w2_stage(1)
    ACC, GF, WF = 16, 32, 48
    a(f"v_bfe_u32 v9, v{vLANE}, 5, 1\nv_lshlrev_b32 v6, 5, v9\nv_and_b32 v5, 1, v{vLANE}\nv_lshl_add_u32 v6, v5, 4, v6\nv_add_u32 v6, {L_G}, v6")
    for r in range(16): a(f"v_mov_b32 v{ACC+r}, 0")
    a(f"s_cmp_eq_u32 s{sH}, 3\ns_cbranch_scc1 Lh_uwh")
    tr_addr(a, 4, 5, True, 6, False)
    a(f"s_lshl_b32 s52, s{sH}, 10\ns_add_u32 s52, s52, {L_W1}\nv_add_u32 v4, s52, v4\ns_mov_b32 s51, 16")
    a("Lh_uwl:")
    for e in range(2):
        a(f"ds_read_b128 {vr(GF+4*e,4)}, v6 offset:{64*e}")
        for st in range(2): a(f"ds_read_b64_tr_b16 {vr(WF+4*e+2*st,2)}, v4 offset:{3072*e+512*st}")
    a("v_add_u32 v4, 7168, v4\nv_add_u32 v6, 128, v6\ns_sub_u32 s51, s51, 1")
    for e in range(2):
        a(f"s_waitcnt lgkmcnt({3-3*e})")
        a(f"v_mfma_f32_32x32x16_bf16 {vr(ACC,16)}, {vr(WF+4*e,4)}, {vr(GF+4*e,4)}, {vr(ACC,16)}")
    a("s_cmp_lg_u32 s51, 0\ns_cbranch_scc1 Lh_uwl")
    a("s_branch Lh_uwd")
    a("Lh_uwh:")
    half_tr_addr(a, 4, 5)
    a(f"v_add_u32 v4, {L_W1+6144}, v4\ns_mov_b32 s51, 16")
    a(f"v_and_b32 v8, 16, v0\nv_cmp_eq_u32 vcc, 0, v8\nv_mov_b32 v8, 0xeeeeeeee\nv_mov_b32 v5, 0x44444444\nv_cndmask_b32 v8, v8, v5, vcc")
    a("Lh_uwhl:")
    for e in range(2): a(f"ds_read_b128 {vr(GF+4*e,4)}, v6 offset:{64*e}")
    for st in range(2): a(f"ds_read_b64_tr_b16 {vr(WF+2*st,2)}, v4 offset:{256*st}")
    a("v_add_u32 v4, 7168, v4\nv_add_u32 v6, 128, v6\ns_sub_u32 s51, s51, 1\ns_waitcnt lgkmcnt(0)")
    a(f"v_smfmac_f32_32x32x32_bf16 {vr(ACC,16)}, {vr(WF,4)}, {vr(GF,8)}, v8")
    a("s_cmp_lg_u32 s51, 0\ns_cbranch_scc1 Lh_uwhl")
    a("s_nop 7\ns_nop 3")
    for r in range(8): a(f"v_add_f32 v{ACC+r}, v{ACC+r}, v{ACC+8+r}")
    a("Lh_uwd:")
    a(f"v_and_b32 v5, 1, v{vLANE}\nv_cmp_eq_u32 vcc, 1, v5\nv_mov_b32 v7, {hx(-LOG2E)}\nv_cndmask_b32 v7, 1.0, v7, vcc")
    a(f"v_lshlrev_b32 v6, 7, v9\nv_lshl_add_u32 v6, v5, 6, v6\ns_lshl_b32 s52, s{sH}, 8\ns_add_u32 s52, s52, {L_UW}\nv_add_u32 v6, s52, v6")
    a("s_nop 3")
    for r in range(16): a(f"v_mul_f32 v{ACC+r}, v{ACC+r}, v7")
    a("s_mov_b32 exec_lo, 3\ns_mov_b32 exec_hi, 3")
    for q in range(4): a(f"ds_write_b128 v6, {vr(ACC+4*q,4)} offset:{16*q}")
    a("s_mov_b64 exec, -1\ns_waitcnt lgkmcnt(0)")
    stamp(a, 9)
    a("s_barrier")
    for s in range(2, 9): w2_stage(s, True)
    vm.wait_all()
    stamp(a, 12)
    a("s_barrier")
    a("s_barrier")
    for s in (9, 10, 11): w2_stage(s)
    a("s_barrier")
    for s in (12, 13): w2_stage(s)
    vm.wait(("w2", 11))
    a("s_barrier")
    vm.wait_all()
    a("s_barrier")
    a("s_barrier")

def diag_out(a, slot):
    if not DIAG: return
    stamp(a, 15)
    a("s_memrealtime s[52:53]\ns_waitcnt vmcnt(0) lgkmcnt(0)")
    a("s_mov_b64 exec, 1")
    for i in range(16):
        a(f"s_sub_u32 s{70+2*i}, s{70+2*i}, s3\nv_mov_b32 v{16+i}, s{70+2*i}")
    a("v_mov_b32 v32, s69\nv_mov_b32 v33, s52" if False else "v_mov_b32 v32, v250\nv_mov_b32 v33, s52")
    a(f"s_lshl_b32 s54, s2, 10\ns_lshl_b32 s55, s{sW}, 7\ns_add_u32 s54, s54, s55\ns_add_u32 s54, s54, {hex(WS_DIAG)}")
    for q in range(4): a(f"buffer_store_dwordx4 {vr(16+4*q,4)}, v{vZ}, {S['ws']}, s54 offen offset:{16*q}")
    a(f"buffer_store_dwordx2 v[32:33], v{vZ}, {S['ws']}, s54 offen offset:64")
    a(f"Ldiag{slot}:")

def build():
    a = Asm()
    a("s_cmp_ge_u32 s2, 256\ns_cbranch_scc1 Lend")
    for nm in ("x", "dbg", "wmod", "c", "wqkv", "ws", "wo", "w1", "w2", "out"):
        a(f"s_load_dwordx2 {sr(SRD[nm],2)}, s[0:1], {KA[nm]}")
    if DIAG: a("s_memtime s[70:71]\ns_memrealtime s[72:73]")
    a(f"v_lshrrev_b32 v4, 6, v0\nv_and_b32 v{vLANE}, 63, v0\nv_mov_b32 v{vZ}, 0\nv_readfirstlane_b32 s{sW}, v4\nv_lshlrev_b32 v{vL16}, 4, v{vLANE}")
    a(f"s_getpc_b64 s[56:57]\nLpc:\ns_sub_u32 s56, s56, Lpc-{NAME}_kernel\ns_subb_u32 s57, s57, 0")
    a(f"s_and_b32 s{sX}, s2, 7\ns_lshr_b32 s{sI}, s2, 3\ns_sub_u32 s67, s{sW}, 4")
    a(f"s_cmp_lt_u32 s{sW}, 6\ns_cbranch_scc1 Le_nopf")
    a(f"s_lshl_b32 s58, s{sI}, 1\ns_add_u32 s58, s58, s67\ns_sub_u32 s58, s58, 2\ns_lshl_b32 s58, s58, 10\ns_min_u32 s58, s58, Lcode_end-{NAME}_kernel-1024\nv_add_u32 v5, s58, v{vL16}")
    a("global_load_dwordx4 v[16:19], v5, s[56:57]")
    a("Le_nopf:")
    a(f"s_lshr_b32 s{sTB}, s{sX}, 1\ns_lshl_b32 s{sTB}, s{sTB}, 2\ns_lshr_b32 s52, s{sI}, 3\ns_add_u32 s{sTB}, s{sTB}, s52")
    a(f"s_and_b32 s{sR}, s{sI}, 7\ns_and_b32 s{sC}, s{sX}, 1\ns_lshl_b32 s{sC}, s{sC}, 3\ns_add_u32 s{sC}, s{sC}, s{sR}")
    for nm in ("x", "dbg", "wmod", "c", "wqkv", "ws"): a(f"s_mov_b32 s{SRD[nm]+2}, {hex(SZ[nm])}\ns_mov_b32 s{SRD[nm]+3}, 0x20000")
    a(f"v_and_b32 v4, 3, v{vLANE}\nv_lshl_add_u32 v4, s67, 2, v4\nv_lshrrev_b32 v5, 2, v{vLANE}\nv_lshlrev_b32 v6, 10, v4\nv_lshl_add_u32 v6, v5, 4, v6")
    a(f"s_lshl_b32 s52, s{sTB}, 4\ns_add_u32 s52, s52, s{sC}\ns_lshl_b32 s53, s52, 13")
    a(f"v_mov_b32 v8, {L_SCR+256}\nv_mov_b32 v10, 0\nv_mov_b32 v11, 0\nds_write_b64 v8, v[10:11]")
    a("s_memrealtime s[54:55]")
    a("s_waitcnt lgkmcnt(0)")
    a(f"s_cmp_lt_u32 s67, 2\ns_cbranch_scc0 Le_nox")
    for m in range(4): a(f"buffer_load_dwordx4 {vr(16+4*m,4)}, v6, {S['x']}, s53 offen offset:{256*m}")
    a("Le_nox:")
    a(f"s_lshl_b32 s58, s2, 3\ns_add_u32 s58, s58, s{sW}\ns_cmp_lg_u32 s58, 6\ns_cbranch_scc1 Le_notag")
    a(f"s_or_b32 s54, s54, 1\nv_mov_b32 v7, s54\ns_mov_b64 exec, 1\nbuffer_store_dword v7, v{vZ}, {S['dbg']}, 0 offen sc1\ns_mov_b64 exec, -1")
    a("Le_notag:")
    if DIAG:
        a("s_mov_b32 s3, s70\ns_mov_b32 s68, s72\nv_mov_b32 v250, s72")
        for i in range(16): a(f"s_mov_b32 s{70+2*i}, s3")
    a("s_barrier")
    a(f"s_cmp_ge_u32 s{sW}, 6\ns_cbranch_scc1 Lp0_dma\ns_cmp_ge_u32 s{sW}, 4\ns_cbranch_scc1 Lp0_ln")
    p0_active(a)
    a("Lp0_dma:")
    p0_dma(a)
    a("Lp0_ln:")
    p0_ln(a)
    active(a)
    a("s_branch Latt")
    helper(a)
    a("Latt:")
    vm = Track(a, "vmcnt", 63)
    slow = attention(a, vm)
    set_flag(a, vm, "s64", vZ, 8)
    stamp(a, 7)
    a(f"s_cmp_ge_u32 s{sW}, 4\ns_cbranch_scc1 Lhelper2")
    active2(a)
    if DIAG: a("v_mov_b32 v250, s68")
    diag_out(a, 0)
    a("s_endpgm")
    a("Lhelper2:")
    helper2(a)
    diag_out(a, 1)
    a("s_endpgm")
    slow(a)
    a("Lend:")
    return a

def emit(a):
    hdr = open(f"cdna_kernels/{NAME}.s.ref").read().split("\n")
    out = [l for l in hdr if l.startswith(";") and "@launch" not in l and "Override launch" not in l and "grid=ceil" not in l]
    out.append(f"; @launch grid=(256,1,1) block=(512,1,1) lds={LDS_SIZE}")
    a.fix()
    out += ['.amdgcn_target "amdgcn-amd-amdhsa--gfx950"', ".text", f".globl {NAME}_kernel", ".p2align 8", f".type {NAME}_kernel,@function", f"{NAME}_kernel:",
            a.text(), "    s_endpgm", "Lcode_end:", '.section .rodata,"a"', ".p2align 6", f".amdhsa_kernel {NAME}_kernel", "  .amdhsa_next_free_vgpr 256",
            "  .amdhsa_next_free_sgpr 102", "  .amdhsa_accum_offset 256", "  .amdhsa_group_segment_fixed_size 0", "  .amdhsa_kernarg_size 88",
            "  .amdhsa_user_sgpr_count 2", "  .amdhsa_user_sgpr_kernarg_segment_ptr 1", "  .amdhsa_system_sgpr_workgroup_id_x 1",
            "  .amdhsa_float_denorm_mode_32 3", ".end_amdhsa_kernel"]
    return "\n".join(out) + "\n"

if __name__ == "__main__":
    import argparse
    p = argparse.ArgumentParser(); p.add_argument("out"); p.add_argument("--diag", action="store_true"); p.add_argument("--opt", default="")
    args = p.parse_args()
    DIAG = args.diag
    for o in args.opt.split(","):
        if o: OPT[o.split("=")[0]] = int(o.split("=")[1]) if "=" in o else 1
    set_nring(OPT.get('nring', 6))
    open(args.out, "w").write(emit(build()))
```

```python
import sys, struct
from asmlib import *

NAME = "adaLN_cond__softmax_full_mha__dense_activation_silu__prompt"
WS_MODG = 0x0
WS_STATS = 0x10000
WS_FXN, WS_FKV, WS_FO, WS_FX1, WS_FH = 0x50000, 0x52000, 0x56000, 0x5E000, 0x62000
WS_XN, WS_K, WS_V, WS_O, WS_X1, WS_Y, WS_H = 0x200000, 0x400000, 0x600000, 0x800000, 0xA00000, 0xC00000, 0xE00000
WS_DIAG = 0x1600000
WS_SIZE = 0x1700000
KA = dict(x=0, wqkv=8, wo=16, w1=32, w2=40, c=48, wmod=56, out=64, dbg=72, ws=80)
SZ = dict(x=2048*512*2, wqkv=512*1536*2, wo=512*512*2, w1=512*1792*2, w2=1792*512*2, c=1024, wmod=512*3072*2, out=2048*512*2, dbg=256, ws=WS_SIZE)
SRD = dict(x=4, wqkv=8, wo=12, w1=16, w2=20, c=24, wmod=28, out=32, dbg=36, ws=40)
S = {k: sr(v, 4) for k, v in SRD.items()}
sW, sTB, sC, sTAG, sI, sX, sR = 44, 45, 46, 47, 48, 49, 69
SPIN = 20000
def f2u(f): return struct.unpack("<I", struct.pack("<f", f))[0]
def hx(f): return hex(f2u(f))
LOG2E = 1.4426950408889634
DIAG = False
OPT = {}
L_WKV, L_WQ = 0, 64*1024
L_DG = 96*1024
L_SA = 112*1024
L_QX = 144*1024
L_WO = 0
L_W1 = 32*1024
L_RED = 88*1024
L_TAB = 156*1024
L_GA, L_G2, L_GB, L_SCR, L_UW, L_G = L_TAB, L_TAB+128, L_TAB+256, L_TAB+512, L_TAB+1024, L_TAB+2048
LDS_SIZE = 160*1024

def stamp(a, i, grp=0):
    if DIAG and (OPT.get("focus", 0) == grp or i == 15): a(f"s_memtime s[{70+2*i}:{71+2*i}]")

_uid = [0]
def poll(a, vm, mask, vaddr, soff, vt):
    _uid[0] += 1; n = _uid[0]
    a(f"s_mov_b64 exec, {mask}\ns_mov_b32 s50, {SPIN}")
    a(f"Lpoll{n}:")
    a(f"buffer_load_dword v{vt}, v{vaddr}, {S['ws']}, {soff} offen sc1")
    a("s_waitcnt vmcnt(0)")
    a(f"v_cmp_ne_u32 vcc, s{sTAG}, v{vt}")
    a("s_sub_u32 s50, s50, 1")
    a(f"s_cbranch_vccz Lpolld{n}")
    if OPT.get("sleep", 1): a(f"s_sleep {OPT.get('sleep', 1)}")
    a(f"s_cmp_lg_u32 s50, 0\ns_cbranch_scc1 Lpoll{n}")
    a(f"Lpolld{n}:\ns_mov_b64 exec, -1")
    vm.reset()

def flag_off(a, d, f, base):
    a(f"s_lshr_b32 s50, s{f}, 3\ns_lshl_b32 s50, s50, 7\ns_and_b32 s{d}, s{f}, 7\ns_lshl_b32 s{d}, s{d}, 2\ns_add_u32 s{d}, s{d}, s50\ns_add_u32 s{d}, s{d}, {hex(base)}")

def set_flag(a, vm, soff, vz, vt):
    vm.wait_all()
    a(f"v_mov_b32 v{vt}, s{sTAG}\ns_mov_b64 exec, 1")
    vm.op(f"buffer_store_dword v{vt}, v{vz}, {S['ws']}, {soff} offen sc1")
    a("s_mov_b64 exec, -1")

def rne_bf16(a, d, s):
    a(f"v_cvt_pk_bf16_f32 v{d}, v{s}, v{s}\nv_lshlrev_b32 v{d}, 16, v{d}")

def tr_addr(a, d, t, perm, rowbytes_log2, swz):
    a(f"v_bfe_u32 v{d}, v0, 2, 2\nv_bfe_u32 v{t}, v0, 5, 1")
    a(f"v_lshl_add_u32 v{d}, v{t}, {2 if perm else 3}, v{d}\nv_lshlrev_b32 v{d}, {rowbytes_log2}, v{d}")
    a(f"v_bfe_u32 v{t}, v0, 4, 1\nv_lshl_add_u32 v{d}, v{t}, 5, v{d}")
    a(f"v_and_b32 v{t}, 3, v0\nv_lshl_add_u32 v{d}, v{t}, 3, v{d}")
    if swz: a(f"v_bfe_u32 v{t}, v0, 3, 1\nv_lshl_add_u32 v{d}, v{t}, 6, v{d}")

def half_tr_addr(a, d, t):
    a(f"v_bfe_u32 v{d}, v0, 2, 1")
    a(f"v_bfe_u32 v{t}, v0, 4, 1\nv_lshl_add_u32 v{d}, v{t}, 1, v{d}")
    a(f"v_bfe_u32 v{t}, v0, 3, 1\nv_lshl_add_u32 v{d}, v{t}, 2, v{d}")
    a(f"v_bfe_u32 v{t}, v0, 5, 1\nv_lshl_add_u32 v{d}, v{t}, 4, v{d}")
    a(f"v_lshlrev_b32 v{d}, 5, v{d}\nv_and_b32 v{t}, 3, v0\nv_lshl_add_u32 v{d}, v{t}, 3, v{d}")

vLANE, vL16, vZ = 1, 2, 3
def poll_addr(a, d):
    a(f"v_lshrrev_b32 v{d}, 3, v{vLANE}\nv_lshlrev_b32 v{d}, 5, v{d}\nv_and_or_b32 v{d}, v{vLANE}, 7, v{d}\nv_lshlrev_b32 v{d}, 2, v{d}")

def mod_issue(a, vm, sCol, B=16, T=4):
    a(f"v_bfe_u32 v{T}, v0, 1, 7\nv_and_b32 v{T+1}, 1, v0")
    a(f"v_mul_u32_u24 v{T+2}, 6144, v{T}\nv_lshl_add_u32 v{T+2}, v{T+1}, 4, v{T+2}\nv_lshlrev_b32 v{T+3}, 1, v{T}")
    a(f"s_lshl_b32 s52, s{sCol}, 1")
    for m in range(4):
        vm.op(f"buffer_load_dwordx4 {vr(B+4*m,4)}, v{T+2}, {S['wmod']}, s52 offen", "mod")
        if m < 3: a(f"s_add_u32 s52, s52, {128*6144}")
    for m in range(4): vm.op(f"buffer_load_ushort v{B+16+m}, v{T+3}, {S['c']}, 0 offen offset:{256*m}", "mod")

def mod_partial(a, vm, B=16):
    vm.wait("mod")
    C, F, T, A = B+16, B+24, B+20, B+32
    for m in range(4): a(f"v_lshlrev_b32 v{C+m}, 16, v{C+m}")
    for m in range(4): a(f"v_mul_f32 v{T+m}, {hx(-LOG2E)}, v{C+m}")
    for m in range(4): a(f"v_exp_f32 v{T+m}, v{T+m}")
    for m in range(4): a(f"v_add_f32 v{T+m}, 1.0, v{T+m}")
    for m in range(4): a(f"v_rcp_f32 v{T+m}, v{T+m}")
    for m in range(4): a(f"v_mul_f32 v{C+m}, v{C+m}, v{T+m}")
    for m in range(4): a(f"v_cvt_pk_bf16_f32 v{C+m}, v{C+m}, v{C+m}")
    for m in range(4): a(f"v_lshlrev_b32 v{C+m}, 16, v{C+m}")
    for m in range(4):
        for r in range(4):
            a(f"v_lshlrev_b32 v{F+2*r}, 16, v{B+4*m+r}\nv_and_b32 v{F+2*r+1}, 0xffff0000, v{B+4*m+r}")
        for j in range(8):
            a(f"v_mul_f32 v{A+j}, v{F+j}, v{C}" if m == 0 else f"v_fmac_f32 v{A+j}, v{F+j}, v{C+m}")
    for j in range(4): a(f"v_permlane32_swap_b32 v{A+j}, v{A+4+j}")
    for j in range(4): a(f"v_add_f32 v{A+j}, v{A+j}, v{A+4+j}")
    for j in range(2): a(f"v_permlane16_swap_b32 v{A+j}, v{A+2+j}")
    for j in range(2): a(f"v_add_f32 v{A+j}, v{A+j}, v{A+2+j}")
    for r in (8, 4, 2):
        for j in range(2): a(f"v_add_f32_dpp v{A+j}, v{A+j}, v{A+j} row_ror:{r} row_mask:0xf bank_mask:0xf")
    a("v_bfe_u32 v8, v0, 6, 2\nv_lshlrev_b32 v8, 6, v8\nv_and_b32 v9, 1, v0\nv_lshl_add_u32 v8, v9, 5, v8")
    a("v_bfe_u32 v9, v0, 4, 1\nv_lshl_add_u32 v8, v9, 3, v8\nv_bfe_u32 v9, v0, 5, 1\nv_lshl_add_u32 v8, v9, 4, v8")
    a(f"v_add_u32 v8, {L_SCR}, v8")
    a("s_mov_b32 exec_lo, 0x00030003\ns_mov_b32 exec_hi, 0x00030003")
    a(f"ds_write_b64 v8, v[{A}:{A+1}]")
    a("s_mov_b64 exec, -1")

def mod_final(a, vm, sCol):
    a("s_mov_b64 exec, 0xff")
    a(f"v_lshlrev_b32 v8, 3, v{vLANE}\nv_add_u32 v9, {L_SCR}, v8")
    for w in range(4): a(f"ds_read_b64 {vr(240+2*w,2)}, v9 offset:{64*w}")
    a(f"s_lshr_b32 s52, s{sCol}, 9\ns_cmp_eq_u32 s52, 1\ns_cselect_b32 s53, 1.0, 0\ns_cmp_eq_u32 s52, 4\ns_cselect_b32 s53, 1.0, s53")
    a(f"s_lshl_b32 s52, s{sCol}, 2")
    a("s_waitcnt lgkmcnt(0)")
    for j in range(2): a(f"v_add_f32 v{240+j}, v{240+j}, v{242+j}\nv_add_f32 v{244+j}, v{244+j}, v{246+j}")
    for j in range(2): a(f"v_add_f32 v{240+j}, v{240+j}, v{244+j}")
    a("v_cvt_pk_bf16_f32 v242, v240, v241\nv_lshlrev_b32 v240, 16, v242\nv_and_b32 v241, 0xffff0000, v242")
    a("v_add_f32 v240, s53, v240\nv_add_f32 v241, s53, v241")
    a(f"v_cvt_pk_bf16_f32 v240, v240, v241\nv_mov_b32 v241, s{sTAG}")
    vm.op(f"buffer_store_dwordx2 v[240:241], v8, {S['ws']}, s52 offen sc1")
    a("s_mov_b64 exec, -1")

def gran_poll(a, vm, loads, regs):
    _uid[0] += 1; n = _uid[0]
    a(f"s_mov_b32 s50, {SPIN}\nLgp{n}:")
    for t in loads: a(t)
    a("s_waitcnt vmcnt(0)")
    first = True
    for r in regs:
        for o in (1, 3):
            if first: a(f"v_xor_b32 v15, s{sTAG}, v{r+o}"); first = False
            else: a(f"v_xor_b32 v14, s{sTAG}, v{r+o}\nv_or_b32 v15, v15, v14")
    a("v_cmp_ne_u32 vcc, 0, v15\ns_sub_u32 s50, s50, 1")
    a(f"s_cbranch_vccz Lgpd{n}\ns_sleep {OPT.get('gsleep', 1)}\ns_cmp_lg_u32 s50, 0\ns_cbranch_scc1 Lgp{n}\nLgpd{n}:")
    vm.reset()

def tag_get(a):
    _uid[0] += 1; n = _uid[0]
    a(f"v_mov_b32 v8, {L_SCR+260}\ns_mov_b32 s50, {SPIN*20}\nLtg{n}:\nds_read_b32 v9, v8\ns_sub_u32 s50, s50, 1\ns_waitcnt lgkmcnt(0)\nv_readfirstlane_b32 s{sTAG}, v9")
    a(f"s_cmp_lg_u32 s{sTAG}, 0\ns_cbranch_scc1 Ltgd{n}\ns_cmp_lg_u32 s50, 0\ns_cbranch_scc1 Ltg{n}\nLtgd{n}:")

def tag_now(a, v):
    _uid[0] += 1; n = _uid[0]
    a(f"s_mov_b32 s50, {SPIN}\nLtn{n}:\nv_readfirstlane_b32 s{sTAG}, v{v}\ns_sub_u32 s50, s50, 1")
    a(f"s_cmp_lg_u32 s{sTAG}, 0\ns_cbranch_scc1 Ltnd{n}\ns_cmp_eq_u32 s50, 0\ns_cbranch_scc1 Ltnd{n}")
    a(f"buffer_load_dword v{v}, v{vZ}, {S['dbg']}, 0 offen sc1\ns_waitcnt vmcnt(0)\ns_branch Ltn{n}\nLtnd{n}:")

def read_tag(a):
    a(f"v_mov_b32 v8, {L_SCR+260}\nds_read_b32 v9, v8\ns_waitcnt lgkmcnt(0)\nv_readfirstlane_b32 s{sTAG}, v9")

def mall_touch(a):
    _uid[0] += 1; n = _uid[0]
    a(f"v_lshlrev_b32 v5, 7, v{vLANE}\ns_cmp_eq_u32 s{sW}, 6\ns_cbranch_scc1 Lt6_{n}\ns_cmp_eq_u32 s{sW}, 7\ns_cbranch_scc1 Lt7_{n}")
    a(f"s_mul_i32 s52, s2, {56*128}\ns_cmp_eq_u32 s{sW}, 5\ns_cbranch_scc1 Lt5_{n}")
    a(f"buffer_load_dword v248, v5, {S['w1']}, s52 offen\ns_branch Ltd_{n}")
    a(f"Lt5_{n}:\nbuffer_load_dword v248, v5, {S['w2']}, s52 offen\ns_branch Ltd_{n}")
    a(f"Lt6_{n}:\nv_lshrrev_b32 v6, 5, v{vLANE}\nv_mul_u32_u24 v6, {6144-4096}, v6\nv_add_u32 v5, v5, v6\ns_mul_i32 s52, s2, 12288\ns_add_u32 s52, s52, 2048")
    a(f"buffer_load_dword v248, v5, {S['wmod']}, s52 offen\ns_branch Ltd_{n}")
    a(f"Lt7_{n}:\ns_lshl_b32 s52, s2, 11\ns_mov_b64 exec, 0xffff\nbuffer_load_dword v248, v5, {S['wo']}, s52 offen\ns_mov_b64 exec, -1")
    a(f"Ltd_{n}:")

def stouch(nm, soff, line):
    return f"s_buffer_load_dwordx2 s[0:1], {S[nm]}, s{soff} offset:{128*line+60}"

def mod_join(a, vm, sCol, name, pre=None):
    a(f"v_mov_b32 v8, {L_SCR+256}\nv_mov_b32 v9, 1\ns_waitcnt lgkmcnt(0)\ns_mov_b64 exec, 1\nds_add_rtn_u32 v9, v8, v9\ns_mov_b64 exec, -1\ns_waitcnt lgkmcnt(0)")
    a(f"v_readfirstlane_b32 s52, v9\ns_cmp_lg_u32 s52, 3\ns_cbranch_scc1 {name}")
    if pre: pre()
    mod_final(a, vm, sCol)

NRING = 4
def set_nring(n):
    global NRING
    NRING = n
vSTASH, vMOD = 180, 208
def attention(a, vm):
    QF, OA, SB, RING = 16, 32, [96, 112], 128
    IDX = RING + 12*NRING
    assert IDX < vSTASH
    vV, vWO, vW1, vW1H = 4, 12, 13, 14
    sHH, sKQ, sK, sV = 54, 55, 56, 57
    a(f"s_and_b32 s{sHH}, s{sW}, 1\ns_lshr_b32 s{sKQ}, s{sW}, 1")
    for i in range(4):
        a(f"s_add_u32 s52, s{sKQ}, {i}\ns_and_b32 s52, s52, 3\ns_lshl_b32 s53, s{sHH}, 2\ns_add_u32 s52, s52, s53\ns_lshl_b32 s52, s52, 10\ns_add_u32 s52, s52, {L_QX}")
        a(f"v_add_u32 v5, s52, v{vL16}\nds_read_b128 {vr(QF+4*i,4)}, v5")
    a(f"v_and_b32 v{vV}, 15, v{vLANE}\nv_lshlrev_b32 v{vV}, 4, v{vV}\nv_bfe_u32 v5, v{vLANE}, 5, 1\nv_lshl_add_u32 v{vV}, v5, 8, v{vV}")
    a(f"s_lshl_b32 s58, s{sC}, 1\ns_add_u32 s58, s58, s{sHH}")
    a(f"s_lshl_b32 s59, s58, 16")
    a(f"s_lshl_b32 s52, s{sKQ}, 14\ns_add_u32 s52, s52, s59\ns_add_u32 s{sK}, s52, {hex(WS_K)}\ns_add_u32 s{sV}, s52, {hex(WS_V)}")
    a("s_mov_b32 s60, 0x0000ffff\ns_mov_b32 s61, 0x0000ffff")
    a(f"s_lshl_b32 s52, s{sKQ}, 8\ns_lshr_b32 s53, s{sC}, 1\ns_lshl_b32 s53, s53, 11\ns_add_u32 s52, s52, s53\ns_add_u32 s62, s52, {hex(WS_FKV)}")
    a(f"v_and_b32 v6, 0x1b, v{vLANE}\nv_cmp_eq_u32 vcc, 16, v6\nv_mov_b32 v6, 0x3f803f80\nv_cndmask_b32 v6, 0, v6, vcc")
    for sl in range(NRING):
        for r in range(8): a(f"v_mov_b32 v{RING+12*sl+4+r}, v6")
    a(f"v_mov_b32 v{IDX}, 0xdddddddd")
    for r in range(64): a(f"v_mov_b32 v{OA+r}, 0")
    a(f"v_lshrrev_b32 v7, 2, v{vLANE}\nv_and_b32 v8, 3, v{vLANE}\nv_lshlrev_b32 v{vWO}, 10, v7\nv_lshl_add_u32 v{vWO}, v8, 4, v{vWO}")
    w1_voffs(a, vW1, vW1H)
    def kp_addr(d):
        return [f"s_lshl_b32 s65, s{sR}, 1", f"s_add_u32 s65, s65, s{sW}", f"s_add_u32 s65, s65, {d}", "s_and_b32 s65, s65, 15", f"s_mul_i32 s65, s65, {32*3584}",
                f"s_mul_i32 s52, s{sC}, 224", "s_add_u32 s65, s65, s52", f"s_mul_i32 s66, s{sW}, 7168", f"s_add_u32 s66, s66, {L_W1+7168*d}"]
    wo = [[f"s_add_u32 m0, s66, {L_WO+1024*j}", f"s_add_u32 s52, s65, {16384*j}", f"buffer_load_dwordx4 v{vWO}, {S['wo']}, s52 offen lds"] for j in range(4)]
    wo[0] = [f"s_add_u32 s65, s{sW}, s{sR}", "s_and_b32 s65, s65, 7", "s_lshl_b32 s65, s65, 16", f"s_lshl_b32 s52, s{sC}, 6", "s_add_u32 s65, s65, s52", f"s_lshl_b32 s66, s{sW}, 12"] + wo[0]
    k1 = w1_kp_dma(65, 66, vW1, vW1H); k1[0] = kp_addr(0) + k1[0]
    k2 = []
    for j, p in enumerate(w1_kp_dma(65, 66, vW1, vW1H)):
        k2.append([p[1], p[2].replace("buffer_load_dwordx4 ", f"buffer_load_dwordx4 {vr(vSTASH+4*j,4)}, ").replace(" lds", "")])
    k2[0] = kp_addr(8)[:7] + k2[0]
    p0 = OPT.get("pre0", 5)
    pre = {4*p0+1: wo[:2], 4*p0+5: wo[2:], 4*p0+9: k1[:3], 4*p0+13: k1[3:], 4*p0+17: k2[:3], 4*p0+21: k2[3:]}
    stamp(a, 4)
    a(f"v_and_b32 v5, 7, v{vLANE}\nv_lshlrev_b32 v5, 2, v5\nv_bfe_u32 v6, v{vLANE}, 3, 1\nv_lshl_add_u32 v5, v6, 7, v5\nv_bfe_u32 v6, v{vLANE}, 4, 1\nv_lshl_add_u32 v5, v6, 10, v5")
    a(f"s_and_b32 s65, s{sTB}, 3\ns_lshl_b32 s65, s65, 12")
    poll(a, vm, "0xffffffff", 5, "s62", 6)
    stamp(a, 5)
    def ld(kt):
        sl = kt % NRING
        fl = "" if OPT.get("kvplain") else " sc1"
        if kt % 4 == 0: a(f"s_add_u32 s63, s{sK}, s62\ns_add_u32 s64, s{sV}, s62\ns_add_u32 s62, s62, 4096\ns_and_b32 s62, s62, 0x3fff")
        o = 1024*(kt % 4)
        vm.op(f"buffer_load_dwordx4 {vr(RING+12*sl,4)}, v{vL16}, {S['ws']}, s63 offen offset:{o}{fl}", ("kv", kt))
        a("s_mov_b64 exec, s[60:61]")
        vm.op(f"buffer_load_dwordx4 {vr(RING+12*sl+4,4)}, v{vV}, {S['ws']}, s64 offen offset:{o}{fl}", ("kv", kt))
        vm.op(f"buffer_load_dwordx4 {vr(RING+12*sl+8,4)}, v{vV}, {S['ws']}, s64 offen offset:{o+512}{fl}", ("kv", kt))
        a("s_mov_b64 exec, -1")
    def QK(dst, sl, q): return f"v_mfma_f32_32x32x16_bf16 {vr(dst,16)}, {vr(RING+12*sl,4)}, {vr(QF+4*q,4)}, 0"
    def SM(q, sl, half, s): return f"v_smfmac_f32_32x32x32_bf16 {vr(OA+16*q,16)}, {vr(RING+12*sl+4+4*half,4)}, {vr(s+8*half,8)}, v{IDX}"
    a("s_mov_b32 s62, s65\ns_setprio 1")
    ld(0)
    a(f"s_and_b32 s53, s{sW}, 3\ns_lshl_b32 s52, s2, 2\ns_add_u32 s53, s53, s52\ns_mul_i32 s53, s53, {9*128}")
    ST = [stouch("w1", 53, n) for n in range(9)] + [stouch("wmod", 53, n) for n in range(16)] + [stouch("w2", 53, n) for n in range(14)]
    ld(1)
    a("s_waitcnt lgkmcnt(0)")
    vm.wait(("kv", 0))
    a(QK(SB[0], 0, 0))
    for kt in range(2, NRING-1): ld(kt)
    a("s_nop 3")
    for t in range(64):
        kt, q = t // 4, t % 4
        cur, prv = SB[t & 1], SB[(t + 1) & 1]
        E = [f"v_exp_f32 v{cur+r}, v{cur+r}" for r in range(16)]
        if t == OPT.get("prio", 52):
            a(f"s_cmp_ge_u32 s{sW}, 4\ns_cbranch_scc1 Latt_prio\ns_setprio 0\nLatt_prio:")
        a(E[0]); a(E[1])
        if t > 0: a(SM((t-1) % 4, ((t-1)//4) % NRING, 1, prv))
        if q == 0 and kt + NRING - 1 < 16: ld(kt + NRING - 1)
        if t in pre and not OPT.get("nopre"):
            for p in pre[t]:
                for x in p[:-1]: a(x)
                vm.op(p[-1], "pre")
        if t == 50:
            a(f"s_cmp_lt_u32 s{sW}, 4\ns_cbranch_scc1 Latt_nomod\ns_sub_u32 s52, s{sI}, 8\ns_cmp_ge_u32 s52, 16\ns_cbranch_scc1 Latt_nomod")
            a(f"s_lshl_b32 s66, s{sX}, 2\ns_lshr_b32 s52, s52, 2\ns_add_u32 s66, s66, s52\ns_lshl_b32 s66, s66, 6")
            a(f"s_and_b32 s52, s{sI}, 3\ns_lshl_b32 s52, s52, 4\ns_add_u32 s66, s66, s52\ns_add_u32 s66, s66, 1024")
            mod_issue(a, Track(a, "vmcnt", 63), 66, vMOD, T=244)
            a("Latt_nomod:")
        if t == OPT.get("w2t", 62) and not OPT.get("nopre"):
            a(f"s_cmp_eq_u32 s{sW}, 7\ns_cbranch_scc1 Latt_nopf\ns_mul_i32 s52, s{sI}, 7\ns_add_u32 s52, s52, s{sW}\ns_lshl_b32 s52, s52, 13\nv_lshlrev_b32 v5, 7, v{vLANE}")
            a(f"buffer_load_dword v248, v5, {S['w2']}, s52 offen")
            a("Latt_nopf:")
        if OPT.get("st", 7) & 4 and t % 3 != 2 and t - t//3 < 39:
            j = t - t//3
            if j == 9: a(f"s_lshl_b32 s53, s2, 1\ns_bfe_u32 s52, s{sW}, 0x10001\ns_add_u32 s53, s53, s52\ns_mul_i32 s53, s53, 6144\ns_lshl_b32 s52, s{sHH}, 11\ns_add_u32 s53, s53, s52\ns_add_u32 s53, s53, 2048")
            if j == 25: a(f"s_and_b32 s53, s{sW}, 3\ns_lshl_b32 s52, s2, 2\ns_add_u32 s53, s53, s52\ns_mul_i32 s53, s53, {14*128}")
            a(ST[j])
        a(E[2]); a(E[3])
        if t < 63:
            if q == 3: vm.wait(("kv", kt + 1))
            a(QK(prv, ((t+1)//4) % NRING, (t+1) % 4))
        for r in range(4, 10): a(E[r])
        a(SM(q, kt % NRING, 0, cur))
        for r in range(10, 16): a(E[r])
        if t % 4 == 3 and t < 60: stamp(a, t//4, 5)
    a(f"s_mul_i32 s63, s{sHH}, 12\nv_lshlrev_b32 v5, 2, v{vLANE}")
    a(SM(3, 15 % NRING, 1, SB[1]))
    a("s_setprio 0")
    stamp(a, 6)
    for i in range(1, 4):
        a(f"s_add_u32 s52, s{sKQ}, {i}\ns_and_b32 s52, s52, 3\ns_mul_i32 s52, s52, 3\ns_add_u32 s52, s52, s63\ns_add_u32 s52, s52, {i-1}\ns_mul_i32 s52, s52, 2304\ns_add_u32 s52, s52, {L_RED}")
        a(f"v_add_u32 v6, s52, v{vL16}\nv_add_u32 v7, s52, v5")
        a(f"ds_write_b128 v6, {vr(OA+16*i,4)}\nds_write_b128 v6, {vr(OA+16*i+4,4)} offset:1024\nds_write_b32 v7, v{OA+16*i+8} offset:2048")
    a(f"s_mul_i32 s52, s{sKQ}, 3\ns_add_u32 s52, s52, s63\ns_mul_i32 s52, s52, 2304\ns_add_u32 s52, s52, {L_RED}")
    a(f"v_add_u32 v6, s52, v{vL16}\nv_add_u32 v7, s52, v5")
    a(f"s_lshl_b32 s52, s{sTB}, 2\ns_add_u32 s52, s52, s{sKQ}\ns_lshl_b32 s52, s52, 5\ns_add_u32 s52, s52, s58")
    a(f"s_lshl_b32 s63, s52, 10\ns_add_u32 s63, s63, {hex(WS_O)}")
    flag_off(a, 64, 52, WS_FO)
    vm.wait_all()
    a("s_waitcnt lgkmcnt(0)\ns_barrier")
    R = 96
    for i in range(3):
        a(f"ds_read_b128 {vr(R+12*i,4)}, v6 offset:{2304*i}\nds_read_b128 {vr(R+12*i+4,4)}, v6 offset:{2304*i+1024}\nds_read_b32 v{R+12*i+8}, v7 offset:{2304*i+2048}")
    a(f"s_mov_b32 s52, {hx(2.0**-60)}\ns_mov_b32 s53, {hx(2.0**60)}\ns_movk_i32 s65, 0x207")
    for i in range(3):
        a(f"s_waitcnt lgkmcnt({6-3*i})")
        for r in range(9): a(f"v_add_f32 v{OA+r}, v{OA+r}, v{R+12*i+r}")
    a(f"v_add_f32 v8, v{OA}, v{OA+1}\nv_add_f32 v9, v{OA+2}, v{OA+3}\nv_add_f32 v10, v{OA+4}, v{OA+5}\nv_add_f32 v11, v{OA+6}, v{OA+7}")
    a("v_add_f32 v8, v8, v9\nv_add_f32 v10, v10, v11\nv_add_f32 v8, v8, v10")
    a(f"v_cmp_nge_f32 vcc, v{OA+8}, s52\nv_cmp_nle_f32 s[54:55], v{OA+8}, s53\nv_cmp_class_f32 s[56:57], v8, s65")
    a(f"v_rcp_f32 v8, v{OA+8}")
    a("s_or_b64 vcc, vcc, s[54:55]\ns_or_b64 vcc, vcc, s[56:57]")
    a("s_cbranch_vccnz Lslow")
    a("Lnorm:")
    for r in range(8): a(f"v_mul_f32 v{OA+r}, v{OA+r}, v8")
    for r in range(4): a(f"v_cvt_pk_bf16_f32 v{8+r}, v{OA+2*r}, v{OA+2*r+1}")
    vm.op(f"buffer_store_dwordx4 v[8:11], v{vL16}, {S['ws']}, s63 offen sc1")
    a("s_barrier")
    a(f"s_mul_i32 s52, s{sW}, 7168\ns_add_u32 s52, s52, {L_W1+8*7168}\nv_add_u32 v5, s52, v{vL16}")
    for j in range(7): a(f"ds_write_b128 v5, {vr(vSTASH+4*j,4)} offset:{1024*j}")
    def slow(b):
        tv = Track(b, "vmcnt", 63)
        b("Lslow:")
        poll_addr(b, 5)
        b(f"s_lshr_b32 s52, s{sC}, 1\ns_lshl_b32 s52, s52, 11\ns_add_u32 s62, s52, {hex(WS_FKV)}")
        poll(b, tv, "-1", 5, "s62", 6)
        b("s_add_u32 s62, s62, 1024")
        poll(b, tv, "-1", 5, "s62", 6)
        b(f"s_add_u32 s{sK}, s59, {hex(WS_K)}\ns_mov_b32 s51, 64\nv_mov_b32 v8, 0xff800000")
        b("Ls1:")
        b(f"buffer_load_dwordx4 {vr(RING,4)}, v{vL16}, {S['ws']}, s{sK} offen sc1\ns_add_u32 s{sK}, s{sK}, 1024\ns_waitcnt vmcnt(0)")
        b(QK(SB[0], 0, 0))
        for r in range(0, 16, 2): b(f"v_max3_f32 v8, v{SB[0]+r}, v{SB[0]+r+1}, v8")
        b("s_sub_u32 s51, s51, 1\ns_cmp_lg_u32 s51, 0\ns_cbranch_scc1 Ls1")
        b("v_mov_b32 v9, v8\nv_permlane32_swap_b32 v8, v9\nv_max_f32 v8, v8, v9")
        for r in range(16): b(f"v_sub_f32 v{SB[1]+r}, 0, v8")
        for r in range(16): b(f"v_mov_b32 v{OA+r}, 0")
        b(f"s_add_u32 s{sK}, s59, {hex(WS_K)}\ns_add_u32 s{sV}, s59, {hex(WS_V)}\ns_mov_b32 s51, 64")
        b("Ls2:")
        b(f"buffer_load_dwordx4 {vr(RING,4)}, v{vL16}, {S['ws']}, s{sK} offen sc1\ns_mov_b64 exec, s[60:61]")
        b(f"buffer_load_dwordx4 {vr(RING+4,4)}, v{vV}, {S['ws']}, s{sV} offen sc1\nbuffer_load_dwordx4 {vr(RING+8,4)}, v{vV}, {S['ws']}, s{sV} offen offset:512 sc1")
        b(f"s_mov_b64 exec, -1\ns_add_u32 s{sK}, s{sK}, 1024\ns_add_u32 s{sV}, s{sV}, 1024\ns_waitcnt vmcnt(0)")
        b(f"v_mfma_f32_32x32x16_bf16 {vr(SB[0],16)}, {vr(RING,4)}, {vr(QF,4)}, {vr(SB[1],16)}")
        for r in range(16): b(f"v_exp_f32 v{SB[0]+r}, v{SB[0]+r}")
        b(SM(0, 0, 0, SB[0])); b(SM(0, 0, 1, SB[0]))
        b("s_sub_u32 s51, s51, 1\ns_cmp_lg_u32 s51, 0\ns_cbranch_scc1 Ls2")
        b(f"s_nop 7\ns_nop 7\nv_rcp_f32 v8, v{OA+8}\ns_nop 0\ns_branch Lnorm")
    return slow

def w1_voffs(a, vF, vH):
    a(f"v_lshrrev_b32 v7, 2, v{vLANE}\nv_and_b32 v8, 3, v{vLANE}\nv_mul_u32_u24 v{vF}, 3584, v7\nv_lshl_add_u32 v{vF}, v8, 4, v{vF}")
    a(f"v_lshrrev_b32 v7, 1, v{vLANE}\nv_and_b32 v8, 0x13, v7\nv_bfe_u32 v9, v7, 2, 1\nv_lshl_add_u32 v8, v9, 3, v8\nv_bfe_u32 v9, v7, 3, 1\nv_lshl_add_u32 v8, v9, 2, v8")
    a(f"v_mul_u32_u24 v{vH}, 3584, v8\nv_and_b32 v8, 1, v{vLANE}\nv_lshl_add_u32 v{vH}, v8, 4, v{vH}")

def w1_kp_dma(sOff, sLds, vF, vH, dOff=0, dLds=0):
    L = []
    for e in range(2):
        for nt in range(3):
            L.append([f"s_add_u32 m0, s{sLds}, {dLds+3072*e+1024*nt}", f"s_add_u32 s52, s{sOff}, {dOff+16*3584*e+64*nt}",
                      f"buffer_load_dwordx4 v{vF}, {S['w1']}, s52 offen lds"])
    L.append([f"s_add_u32 m0, s{sLds}, {dLds+6144}", f"s_add_u32 s52, s{sOff}, {dOff+192}", f"buffer_load_dwordx4 v{vH}, {S['w1']}, s52 offen lds"])
    return L

def w1_reads(kp, e, dst, vF):
    base = 7168*kp + 3072*e
    return [f"ds_read_b64_tr_b16 {vr(dst+4*nt+2*st,2)}, v{vF[base >> 15]} offset:{(base & 0x7fff)+1024*nt+512*st}" for nt in range(3) for st in range(2)]
def w1_half_reads(kp, dst, vH):
    base = 7168*kp + 6144
    return [f"ds_read_b64_tr_b16 {vr(dst+2*st,2)}, v{vH[base >> 15]} offset:{(base & 0x7fff)+256*st}" for st in range(2)]

def rot_loads(a, vm, base_s, dst, tag, div=1):
    for ks in range(32):
        if ks % 4 == 0: a(f"s_add_u32 s53, s{sR}, {ks//4}\ns_and_b32 s53, s53, 7\ns_lshl_b32 s53, s53, 12\ns_add_u32 s53, s53, s{base_s}")
        yield ks, (f"buffer_load_dwordx4 {vr(dst+4*ks,4)}, v{vL16}, {S['ws']}, s53 offen offset:{1024*(ks%4)} sc1", (tag, ks//div))

def lds_init_b0(a):
    late_srds(a)
    a(f"v_mov_b32 v8, {L_SCR+256}\nv_mov_b32 v10, 0\nv_mov_b32 v11, 0\nds_write_b64 v8, v[10:11]\ns_waitcnt lgkmcnt(0)\ns_barrier")

def tag_to_lds_b1(a):
    a(f"v_mov_b32 v8, s{sTAG}\nv_mov_b32 v9, {L_SCR+260}\nds_write_b32 v9, v8\ns_waitcnt lgkmcnt(0)")
    stamp(a, 0)
    a("s_barrier")
    a("s_branch La_p1")

def p0_ln(a):
    vm = Track(a, "vmcnt", 63)
    a(f"s_and_b32 s52, s{sX}, 1\ns_lshl_b32 s52, s52, 4\ns_add_u32 s52, s52, s{sI}\ns_sub_u32 s52, s52, 8\ns_lshl_b32 s52, s52, 2\ns_add_u32 s52, s52, s{sW}")
    a(f"s_lshr_b32 s53, s{sX}, 1\ns_lshl_b32 s53, s53, 7\ns_add_u32 s56, s52, s53\ns_lshl_b32 s53, s56, 12")
    a(f"v_and_b32 v4, 3, v{vLANE}\nv_lshrrev_b32 v5, 2, v{vLANE}\nv_lshlrev_b32 v6, 10, v4\nv_lshl_add_u32 v6, v5, 4, v6")
    a("s_waitcnt lgkmcnt(0)")
    for m in range(4): vm.op(f"buffer_load_dwordx4 {vr(16+4*m,4)}, v6, {S['x']}, s53 offen offset:{256*m}")
    lds_init_b0(a)
    a("v_lshrrev_b32 v7, 1, v5\nv_lshlrev_b32 v7, 10, v7\nv_and_b32 v8, 1, v5\nv_lshl_add_u32 v7, v8, 9, v7\nv_lshl_add_u32 v7, v4, 4, v7")
    a(f"s_lshr_b32 s53, s56, 3\ns_lshl_b32 s53, s53, 15\ns_and_b32 s54, s56, 7\ns_lshl_b32 s54, s54, 6\ns_add_u32 s53, s53, s54\ns_add_u32 s53, s53, {hex(WS_XN)}")
    flag_off(a, 55, 56, WS_FXN)
    stamp(a, 0, 7)
    vm.wait_all()
    stamp(a, 1, 7)
    vm.op(f"buffer_load_dword v15, v{vZ}, {S['dbg']}, 0 offen sc1")
    F = 32
    for r in range(16): a(f"v_lshlrev_b32 v{F+2*r}, 16, v{16+r}\nv_and_b32 v{F+2*r+1}, 0xffff0000, v{16+r}")
    def red(v, t):
        for r in (4, 8): a(f"v_add_f32_dpp v{v}, v{v}, v{v} row_ror:{r} row_mask:0xf bank_mask:0xf")
        a(f"v_mov_b32 v{t}, v{v}\nv_permlane16_swap_b32 v{v}, v{t}\nv_add_f32 v{v}, v{v}, v{t}")
        a(f"v_mov_b32 v{t}, v{v}\nv_permlane32_swap_b32 v{v}, v{t}\nv_add_f32 v{v}, v{v}, v{t}")
    a(f"v_pk_add_f32 v[64:65], {vr(F,2)}, {vr(F+2,2)}\nv_pk_add_f32 v[66:67], {vr(F+4,2)}, {vr(F+6,2)}")
    for r in range(8, 32, 4): a(f"v_pk_add_f32 v[64:65], v[64:65], {vr(F+r,2)}\nv_pk_add_f32 v[66:67], v[66:67], {vr(F+r+2,2)}")
    a("v_pk_add_f32 v[64:65], v[64:65], v[66:67]\nv_add_f32 v64, v64, v65")
    red(64, 65)
    a(f"v_mul_f32 v64, {hx(-1/512)}, v64")
    for r in range(0, 32, 2): a(f"v_pk_add_f32 {vr(F+r,2)}, {vr(F+r,2)}, v[64:65] op_sel_hi:[1,0]")
    a(f"v_pk_mul_f32 v[66:67], {vr(F,2)}, {vr(F,2)}\nv_pk_mul_f32 v[68:69], {vr(F+2,2)}, {vr(F+2,2)}")
    for r in range(4, 32, 4): a(f"v_pk_fma_f32 v[66:67], {vr(F+r,2)}, {vr(F+r,2)}, v[66:67]\nv_pk_fma_f32 v[68:69], {vr(F+r+2,2)}, {vr(F+r+2,2)}, v[68:69]")
    a("v_pk_add_f32 v[66:67], v[66:67], v[68:69]\nv_add_f32 v66, v66, v67")
    red(66, 67)
    a(f"v_mov_b32 v67, {hx(1e-5)}\nv_fmac_f32 v67, {hx(1/512)}, v66\nv_rsq_f32 v66, v67")
    for r in range(0, 32, 2): a(f"v_pk_mul_f32 {vr(F+r,2)}, {vr(F+r,2)}, v[66:67] op_sel_hi:[1,0]")
    for m in range(4):
        for r in range(4): a(f"v_cvt_pk_bf16_f32 v{16+4*m+r}, v{F+8*m+2*r}, v{F+8*m+2*r+1}")
        vm.op(f"buffer_store_dwordx4 {vr(16+4*m,4)}, v7, {S['ws']}, s53 offen sc1")
        if m < 3: a("s_add_u32 s53, s53, 8192")
    stamp(a, 2, 7)
    vm.wait_all()
    stamp(a, 3, 7)
    tag_now(a, 15)
    set_flag(a, vm, "s55", vZ, 8)
    stamp(a, 4, 7)
    tag_to_lds_b1(a)

def p0_mod(a):
    vm = Track(a, "vmcnt", 63)
    sCol = 51
    a(f"s_lshl_b32 s{sCol}, s{sX}, 1\ns_lshr_b32 s52, s{sI}, 2\ns_add_u32 s{sCol}, s{sCol}, s52\ns_lshl_b32 s{sCol}, s{sCol}, 6")
    a(f"s_and_b32 s52, s{sI}, 3\ns_lshl_b32 s52, s52, 4\ns_add_u32 s{sCol}, s{sCol}, s52")
    a("s_waitcnt lgkmcnt(0)")
    mod_issue(a, vm, sCol)
    lds_init_b0(a)
    vm.wait("mod")
    stamp(a, 1, 7)
    a(f"buffer_load_dword v15, v{vZ}, {S['dbg']}, 0 offen sc1")
    mod_partial(a, vm)
    a("s_waitcnt vmcnt(0)")
    tag_now(a, 15)
    mod_join(a, vm, sCol, "La_joined")
    a("La_joined:")
    stamp(a, 4, 7)
    tag_to_lds_b1(a)

def p0_warm(a):
    a(f"s_sub_u32 s52, s{sI}, 24\ns_lshl_b32 s52, s52, 1\ns_add_u32 s52, s52, s{sW}\ns_lshl_b32 s52, s52, 5")
    a(f"v_lshrrev_b32 v4, 1, v{vLANE}\nv_add_u32 v4, s52, v4\nv_mul_u32_u24 v4, 6144, v4\nv_and_b32 v5, 1, v{vLANE}\nv_lshl_add_u32 v4, v5, 7, v4\ns_lshl_b32 s52, s{sX}, 8")
    a(f"s_waitcnt lgkmcnt(0)\ns_cmp_ge_u32 s{sW}, 2\ns_cbranch_scc1 La_nowm")
    a(f"buffer_load_dword v6, v4, {S['wmod']}, s52 offen")
    a("La_nowm:")
    lds_init_b0(a)
    a("s_waitcnt vmcnt(0)")
    stamp(a, 1, 7)
    a(f"buffer_load_dword v15, v{vZ}, {S['dbg']}, 0 offen sc1\ns_waitcnt vmcnt(0)")
    tag_now(a, 15)
    tag_to_lds_b1(a)

def p0_helper(a):
    vm = Track(a, "vmcnt", 63)
    sH = 67
    a(f"v_mov_b32 v32, 0\nv_mov_b32 v33, 0\nv_mov_b32 v34, 0\nv_mov_b32 v35, 0\ns_lshl_b32 s52, s{sH}, 12\ns_add_u32 s52, s52, {L_DG}\nv_add_u32 v9, s52, v{vL16}")
    for j in range(4): a(f"ds_write_b128 v9, v[32:35] offset:{1024*j}")
    a(f"s_lshl_b32 s52, s2, 2\ns_add_u32 s52, s52, s{sH}\ns_mul_i32 s52, s52, {12*128}")
    a("s_waitcnt lgkmcnt(0)")
    a(f"s_lshl_b32 s58, s2, 3\ns_add_u32 s58, s58, s{sW}\ns_cmp_lg_u32 s58, {64*8+4}\ns_cbranch_scc1 Le_notag")
    a(f"s_or_b32 s54, s54, 1\nv_mov_b32 v7, s54\ns_mov_b64 exec, 1\nbuffer_store_dword v7, v{vZ}, {S['dbg']}, 0 offen sc1\ns_mov_b64 exec, -1")
    a("Le_notag:")
    for n in range(4): a(stouch("wqkv", 52, n))
    late_srds(a)
    a("s_barrier")
    for n in range(4, 12): a(stouch("wqkv", 52, n))
    a(f"v_lshrrev_b32 v4, 3, v{vLANE}\nv_mul_u32_u24 v4, 3072, v4\nv_bfe_u32 v5, v{vLANE}, 4, 1\nv_lshlrev_b32 v5, 2, v5\nv_xor_b32 v5, v5, v{vLANE}\nv_and_b32 v5, 7, v5\nv_lshl_add_u32 v4, v5, 4, v4")
    a(f"s_and_b32 s56, s{sC}, 1\ns_add_u32 s56, s56, 1\ns_lshl_b32 s56, s56, 10\ns_lshr_b32 s52, s{sC}, 1\ns_lshl_b32 s52, s52, 7\ns_add_u32 s56, s56, s52")
    a(f"s_and_b32 s55, s{sTB}, 3\ns_lshl_b32 s55, s55, 3\ns_add_u32 s55, s55, s{sH}\ns_lshl_b32 s57, s{sR}, 2\ns_mov_b32 s51, 8")
    stamp(a, 0, 7)
    a("s_barrier")
    stamp(a, 1, 7)
    a("Lh_wl:")
    a(f"s_and_b32 s55, s55, 31\ns_lshl_b32 s53, s55, 11\ns_add_u32 s52, s55, s57\ns_and_b32 s52, s52, 31\ns_mul_i32 s52, s52, {16*3072}\ns_mov_b32 m0, s53\ns_add_u32 s52, s52, s56")
    a(f"buffer_load_dwordx4 v4, {S['wqkv']}, s52 offen lds\ns_add_u32 m0, s53, 1024\ns_add_u32 s52, s52, {8*3072}\nbuffer_load_dwordx4 v4, {S['wqkv']}, s52 offen lds")
    a(f"s_add_u32 s55, s55, 4\ns_sub_u32 s51, s51, 1\ns_cmp_lg_u32 s51, 0\ns_cbranch_scc1 Lh_wl")
    read_tag(a)
    stamp(a, 0); stamp(a, 2, 7)
    a(f"s_cmp_ge_u32 s{sH}, 2\ns_cbranch_scc1 Lh_b2")
    a(f"s_lshl_b32 s52, s{sH}, 11")
    a(f"v_lshrrev_b32 v5, 3, v{vLANE}\ns_lshl_b32 s53, s{sR}, 1\nv_subrev_u32 v5, s53, v5\nv_and_b32 v5, 15, v5\nv_xor_b32 v6, 8, v5")
    gran_poll(a, vm, [f"buffer_load_dwordx4 v[16:19], v{vL16}, {S['ws']}, s52 offen sc1", f"buffer_load_dwordx4 v[20:23], v{vL16}, {S['ws']}, s52 offen offset:1024 sc1"], [16, 20])
    stamp(a, 1)
    a(f"s_cmp_lg_u32 s{sH}, 0\ns_cbranch_scc1 Lh_g1")
    for j, r in enumerate((16, 18, 20, 22)): a(f"v_lshlrev_b32 v{24+2*j}, 16, v{r}\nv_and_b32 v{25+2*j}, 0xffff0000, v{r}")
    a(f"v_and_b32 v7, 1, v{vLANE}\nv_lshlrev_b32 v7, 6, v7\nv_bfe_u32 v9, v{vLANE}, 1, 2\nv_lshl_add_u32 v7, v9, 4, v7\nv_add_u32 v7, {L_SA}, v7")
    a("v_lshl_add_u32 v5, v5, 7, v7\nv_lshl_add_u32 v6, v6, 7, v7")
    a("ds_write_b128 v5, v[24:27]\nds_write_b128 v6, v[28:31]")
    a("s_branch Lh_b2")
    a("Lh_g1:")
    a(f"v_and_b32 v7, 7, v{vLANE}\nv_lshlrev_b32 v7, 6, v7\nv_bfe_u32 v9, v{vLANE}, 2, 1\nv_lshl_add_u32 v7, v9, 9, v7\nv_and_b32 v9, 3, v{vLANE}\nv_lshl_add_u32 v7, v9, 2, v7\nv_add_u32 v7, {L_DG}, v7")
    a("v_lshl_add_u32 v5, v5, 10, v7\nv_lshl_add_u32 v6, v6, 10, v7")
    for j in range(2):
        for e in range(4):
            a(f"ds_write_b16{'_d16_hi' if e & 1 else ''} v{5+j}, v{16+4*j+2*(e>>1)} offset:{16*e + 2*(e & 1)}")
    a("s_branch Lh_b2")

def late_srds(a):
    for nm in ("wo", "w1", "w2", "out"): a(f"s_mov_b32 s{SRD[nm]+2}, {hex(SZ[nm])}\ns_mov_b32 s{SRD[nm]+3}, 0x20000")

def active(a):
    vm = Track(a, "vmcnt", 63); lg = Track(a, "lgkmcnt", 15)
    sT32 = 67
    a("La_p1:")
    ACC = [16, 32, 48]; WF = [64, 72]; DH = [88, 104]; DG = [120, 124]; AF = 128
    a(f"s_lshl_b32 s{sT32}, s{sTB}, 2\ns_add_u32 s{sT32}, s{sT32}, s{sW}")
    a(f"v_lshlrev_b32 v5, 2, v{vLANE}\ns_lshl_b32 s52, s{sT32}, 7\ns_add_u32 s52, s52, {hex(WS_FXN)}")
    tr_addr(a, 10, 12, True, 7, True)
    a("v_xor_b32 v12, 64, v10")
    a(f"v_bfe_u32 v11, v0, 5, 1\nv_lshlrev_b32 v11, 6, v11\nv_add_u32 v11, {L_SA}, v11\nv_add_u32 v13, {L_DG}, v{vL16}")
    a(f"v_and_b32 v14, 2, v0\nv_cmp_eq_u32 vcc, 0, v14\nv_mov_b32 v14, 0xeeeeeeee\nv_mov_b32 v15, 0x44444444\nv_cndmask_b32 v14, v14, v15, vcc")
    for r in range(48): a(f"v_mov_b32 v{16+r}, 0")
    poll(a, vm, "0xff", 5, "s52", 6)
    stamp(a, 1)
    a(f"s_lshl_b32 s52, s{sT32}, 15\ns_add_u32 s52, s52, {hex(WS_XN)}")
    a(f"s_lshr_b32 s54, s{sC}, 1\ns_lshl_b32 s54, s54, 18\ns_lshl_b32 s55, s{sT32}, 10\ns_add_u32 s54, s54, s55")
    a(f"s_bitcmp1_b32 s{sC}, 0\ns_cbranch_scc1 La_vwg")
    def rdS(b):
        L = [(f"ds_read_b128 {vr(DH[b&1]+4*q,4)}, v11 offset:{128*b+16*q}", ("s", b)) for q in range(4)]
        return L + [(f"ds_read_b128 {vr(DG[b&1],4)}, v13 offset:{1024*b}", ("s", b))]
    def rdW(ks):
        return [(f"ds_read_b64_tr_b16 {vr(WF[ks&1]+4*g+2*st,2)}, v{(10, 12)[g]} offset:{2048*ks+1024*st}", ("w", ks)) for g in range(2) for st in range(2)]
    def SMF(b): return f"v_smfmac_f32_32x32x32_bf16 {vr(DH[b&1],16)}, {vr(DG[b&1],4)}, {vr(AF+8*b,8)}, v14"
    def CVT(b): return [f"v_cvt_pk_bf16_f32 v{AF+8*b+r}, v{DH[b&1]+2*r}, v{DH[b&1]+2*r+1}" for r in range(8)]
    for isV in (0, 1):
        if isV: a("La_vwg:")
        vm.reset(); lg.reset()
        XL = rot_loads(a, vm, 52, AF, "xn", 2)
        def xn_issue(n):
            for _ in range(n):
                r = next(XL, None)
                if r: vm.op(*r[1])
        def MM(ks):
            f = AF + 4*ks; w = WF[ks & 1]
            if isV: return [f"v_mfma_f32_32x32x16_bf16 {vr(ACC[1+g],16)}, {vr(f,4)}, {vr(w+4*g,4)}, {vr(ACC[1+g],16)}" for g in range(2)]
            return [f"v_mfma_f32_32x32x16_bf16 {vr(ACC[1+g],16)}, {vr(w+4*g,4)}, {vr(f,4)}, {vr(ACC[1+g],16)}" for g in range(2)]
        xn_issue(OPT.get("xn0", 8))
        a("s_barrier")
        xn_issue(10 - OPT.get("xn0", 8))
        for x in rdS(0) + rdS(1): lg.op(*x)
        lg.wait(("s", 0)); vm.wait(("xn", 0))
        a(SMF(0))
        for x in rdW(0): lg.op(*x)
        xn_issue(2)
        a("s_nop 5")
        for x in CVT(0): a(x)
        stamp(a, 2)
        for b in range(16):
            nx = b + 1 < 16
            if nx:
                lg.wait(("s", b+1)); vm.wait(("xn", b+1))
                a(SMF(b+1))
            for x in rdW(2*b+1): lg.op(*x)
            lg.wait(("w", 2*b))
            M = MM(2*b); Rs = rdS(b+2) if b + 2 < 16 else []
            a(M[0]); [lg.op(*x) for x in Rs]
            a(M[1]); xn_issue(3)
            if b == OPT.get("b2b", 6): a("s_barrier")
            lg.wait(("w", 2*b+1))
            M = MM(2*b+1); C = CVT(b+1) if nx else []; Rw = rdW(2*b+2) if nx else []
            a(M[0]); [lg.op(*x) for x in Rw]; [a(x) for x in C[:3]]
            a(M[1]); [a(x) for x in C[3:]]
            if b < 15: stamp(a, b, 6)
        if not isV:
            a(f"s_add_u32 s54, s54, {hex(WS_K)}")
            a(f"v_and_b32 v5, 0x33, v{vLANE}\nv_bfe_u32 v6, v{vLANE}, 2, 1\nv_lshl_add_u32 v5, v6, 3, v5\nv_bfe_u32 v6, v{vLANE}, 3, 1\nv_lshl_add_u32 v5, v6, 2, v5\nv_lshlrev_b32 v5, 4, v5")
            for h in range(4):
                for r in range(4): a(f"v_cvt_pk_bf16_f32 v{88+4*h+r}, v{ACC[1]+8*h+2*r}, v{ACC[1]+8*h+2*r+1}")
                vm.op(f"buffer_store_dwordx4 {vr(88+4*h,4)}, v5, {S['ws']}, s54 offen sc1")
                if h < 3: a("s_add_u32 s54, s54, 65536")
            a("s_branch La_kvd")
        else:
            a(f"s_add_u32 s54, s54, {hex(WS_V)}")
            a(f"v_and_b32 v6, 15, v{vLANE}\nv_lshlrev_b32 v6, 4, v6\nv_bfe_u32 v7, v{vLANE}, 5, 1\nv_lshl_add_u32 v6, v7, 8, v6\nv_bfe_u32 v7, v{vLANE}, 4, 1\nv_lshl_add_u32 v6, v7, 16, v6")
            for h in range(4):
                for r in range(4): a(f"v_cvt_pk_bf16_f32 v{88+4*h+r}, v{ACC[1]+8*h+2*r}, v{ACC[1]+8*h+2*r+1}")
                vm.op(f"buffer_store_dwordx4 {vr(88+4*h,4)}, v6, {S['ws']}, s54 offen offset:{512*(h&1)} sc1")
                if h == 1: a("s_add_u32 s54, s54, 131072")
    a("La_kvd:")
    stamp(a, 3)
    a(f"s_lshl_b32 s57, s{sW}, 10\ns_add_u32 s57, s57, {L_QX}\nv_add_u32 v7, s57, v{vL16}")
    a(f"s_lshl_b32 s58, s{sC}, 6\ns_add_u32 s58, s58, s{sT32}")
    flag_off(a, 57, 58, WS_FKV)
    tr_addr(a, 10, 12, True, 6, False)
    a(f"v_add_u32 v10, {L_WQ}, v10")
    a("s_barrier")
    WQ = [64, 68, 72, 76]
    def rdQ(ks): return [(f"ds_read_b64_tr_b16 {vr(WQ[ks&3]+2*st,2)}, v10 offset:{1024*ks+512*st}", ("q", ks)) for st in range(2)]
    lg.reset()
    for x in rdQ(0) + rdQ(1) + rdQ(2): lg.op(*x)
    for ks in range(32):
        if ks + 3 < 32: [lg.op(*x) for x in rdQ(ks+3)]
        lg.wait(("q", ks))
        a(f"v_mfma_f32_32x32x16_bf16 {vr(ACC[0],16)}, {vr(WQ[ks&3],4)}, {vr(AF+4*ks,4)}, {vr(ACC[0],16)}")
        if ks == OPT.get("kvflag", 20): set_flag(a, vm, "s57", vZ, 8)
    a(f"s_mov_b32 s53, {hx(0.25*LOG2E)}")
    for r in range(16): a(f"v_mul_f32 v{ACC[0]+r}, s53, v{ACC[0]+r}")
    for r in range(8): a(f"v_cvt_pk_bf16_f32 v{64+r}, v{ACC[0]+2*r}, v{ACC[0]+2*r+1}")
    a("ds_write_b128 v7, v[64:67]\nds_write_b128 v7, v[68:71] offset:4096")
    a("s_waitcnt lgkmcnt(0)\ns_barrier")

def active2(a):
    vm = Track(a, "vmcnt", 63); lg = Track(a, "lgkmcnt", 15)
    sT32, AF = 67, 128
    ACC, WF, XR, GA, G2, XF = 16, [96, 100, 104, 108], 40, 48, 64, 80
    a(f"v_bfe_u32 v9, v{vLANE}, 5, 1\nv_and_b32 v7, 31, v{vLANE}\nv_lshlrev_b32 v8, 10, v7\nv_lshl_add_u32 v8, v9, 3, v8")
    a(f"s_lshl_b32 s52, s{sT32}, 15\ns_lshl_b32 s53, s{sC}, 6\ns_add_u32 s52, s52, s53")
    for q in range(4): vm.op(f"buffer_load_dwordx2 {vr(XR+2*q,2)}, v8, {S['x']}, s52 offen offset:{16*q}")
    tr_addr(a, 10, 11, True, 6, False)
    for r in range(16): a(f"v_mov_b32 v{ACC+r}, 0")
    poll_addr(a, 5)
    a(f"s_lshl_b32 s52, s{sT32}, 9\ns_add_u32 s52, s52, {hex(WS_FO)}")
    poll(a, vm, "0xffffffff", 5, "s52", 6)
    stamp(a, 8); stamp(a, 0, 2)
    a(f"s_lshl_b32 s52, s{sT32}, 15\ns_add_u32 s52, s52, {hex(WS_O)}")
    OL = rot_loads(a, vm, 52, AF, "o")
    for _ in range(OPT.get("b5b", 2)): vm.op(*next(OL)[1])
    a("s_barrier")
    for _ in range(12 - OPT.get("b5b", 2)): vm.op(*next(OL)[1])
    for q in range(4):
        for h in range(2): a(f"v_lshlrev_b32 v{XF+4*q+2*h}, 16, v{XR+2*q+h}\nv_and_b32 v{XF+4*q+2*h+1}, 0xffff0000, v{XR+2*q+h}")
    a(f"s_lshl_b32 s57, s{sT32}, 15\ns_lshl_b32 s58, s{sC}, 11\ns_add_u32 s57, s57, s58\ns_add_u32 s58, s57, {hex(WS_Y)}\ns_add_u32 s57, s57, {hex(WS_X1)}")
    a(f"s_lshl_b32 s54, s{sC}, 14\ns_lshl_b32 s55, s{sT32}, 8\ns_add_u32 s54, s54, s55\ns_add_u32 s54, s54, {hex(WS_STATS)}")
    a(f"s_lshl_b32 s55, s{sT32}, 4\ns_add_u32 s55, s55, s{sC}")
    flag_off(a, 56, 55, WS_FX1)
    a(f"s_lshl_b32 s55, s{sT32}, 8\ns_add_u32 s55, s55, {hex(WS_FX1)}")
    a(f"v_lshlrev_b32 v6, 2, v{vLANE}\nv_lshlrev_b32 v5, 4, v9\nv_add_u32 v5, {L_GA}, v5")
    def rdWo(ks): return [(f"ds_read_b64_tr_b16 {vr(WF[ks&3]+2*st,2)}, v10 offset:{L_WO+1024*ks+512*st}", ("w", ks)) for st in range(2)]
    lg.reset()
    for x in rdWo(0) + rdWo(1) + rdWo(2): lg.op(*x)
    for ks in range(32):
        if ks + 3 < 32:
            for x in rdWo(ks+3): lg.op(*x)
        if ks == 28:
            lg.wait(("w", 31))
            a("s_barrier")
            for q in range(4): a(f"ds_read_b128 {vr(GA+4*q,4)}, v5 offset:{32*q}")
            for q in range(4): a(f"ds_read_b128 {vr(G2+4*q,4)}, v5 offset:{128+32*q}")
        lg.wait(("w", ks)); vm.wait(("o", ks))
        a(f"v_mfma_f32_32x32x16_bf16 {vr(ACC,16)}, {vr(WF[ks&3],4)}, {vr(AF+4*ks,4)}, {vr(ACC,16)}")
        if ks + 12 < 32: vm.op(*next(OL)[1])
        if ks % 4 == 0 or ks == 31: stamp(a, 1 + (ks+1)//4, 2)
    stamp(a, 10, 2)
    a("s_waitcnt lgkmcnt(4)")
    for r in range(16): a(f"v_fmac_f32 v{XF+r}, v{ACC+r}, v{GA+r}")
    a("s_waitcnt lgkmcnt(0)")
    for r in range(16): a(f"v_mul_f32 v{ACC+r}, v{XF+r}, v{G2+r}")
    for r in range(8): a(f"v_cvt_pk_bf16_f32 v{32+r}, v{ACC+2*r}, v{ACC+2*r+1}")
    vm.op(f"buffer_store_dwordx4 v[32:35], v{vL16}, {S['ws']}, s58 offen sc1"); vm.op(f"buffer_store_dwordx4 v[36:39], v{vL16}, {S['ws']}, s58 offen offset:1024 sc1")
    a(f"v_pk_add_f32 v[48:49], {vr(XF,2)}, {vr(XF+2,2)}\nv_pk_mul_f32 v[50:51], {vr(XF,2)}, {vr(XF,2)}\nv_pk_fma_f32 v[50:51], {vr(XF+2,2)}, {vr(XF+2,2)}, v[50:51]")
    for r in range(4, 16, 2): a(f"v_pk_add_f32 v[48:49], v[48:49], {vr(XF+r,2)}\nv_pk_fma_f32 v[50:51], {vr(XF+r,2)}, {vr(XF+r,2)}, v[50:51]")
    a("v_add_f32 v48, v48, v49\nv_add_f32 v49, v50, v51")
    for r in range(8): a(f"v_cvt_pk_bf16_f32 v{40+r}, v{XF+2*r}, v{XF+2*r+1}")
    a("v_permlane32_swap_b32 v48, v49\nv_add_f32 v48, v48, v49")
    vm.op(f"buffer_store_dword v48, v6, {S['ws']}, s54 offen sc1")
    vm.op(f"buffer_store_dwordx4 v[40:43], v{vL16}, {S['ws']}, s57 offen sc1"); vm.op(f"buffer_store_dwordx4 v[44:47], v{vL16}, {S['ws']}, s57 offen offset:1024 sc1")
    stamp(a, 11, 2)
    set_flag(a, vm, "s56", vZ, 8)
    stamp(a, 9); stamp(a, 12, 2)
    ACC, WF, WH, ST = 16, [80, 92, 104], [116, 120], 240
    vF, vH = [10, 11, 12, 13], [4, 7, 14, 15]
    tr_addr(a, 10, 11, True, 6, False)
    a(f"v_add_u32 v10, {L_W1}, v10\nv_add_u32 v11, 0x8000, v10\nv_add_u32 v12, 0x10000, v10\nv_add_u32 v13, 0x18000, v10")
    half_tr_addr(a, 4, 7)
    a(f"v_add_u32 v4, {L_W1}, v4\nv_add_u32 v7, 0x8000, v4\nv_add_u32 v14, 0x10000, v4\nv_add_u32 v15, 0x18000, v4")
    a(f"v_and_b32 v8, 16, v0\nv_cmp_eq_u32 vcc, 0, v8\nv_mov_b32 v8, 0xeeeeeeee\nv_mov_b32 v5, 0x44444444\nv_cndmask_b32 v8, v8, v5, vcc")
    for r in range(64): a(f"v_mov_b32 v{ACC+r}, 0")
    poll_addr(a, 5)
    poll(a, vm, "0xffff", 5, "s55", 9)
    stamp(a, 10); stamp(a, 0, 3)
    a(f"s_lshl_b32 s52, s{sT32}, 15\ns_add_u32 s52, s52, {hex(WS_Y)}")
    a(f"s_lshl_b32 s54, s{sT32}, 8\ns_add_u32 s54, s54, {hex(WS_STATS)}")
    YL = rot_loads(a, vm, 52, AF, "y")
    for _ in range(4): vm.op(*next(YL)[1])
    for q in range(16):
        vm.op(f"buffer_load_dword v{ST+q}, v6, {S['ws']}, s54 offen sc1", "st"); a("s_add_u32 s54, s54, 16384")
    for _ in range(8): vm.op(*next(YL)[1])
    lg.reset()
    def rdW1(ks): return [(x, ("w", ks)) for x in w1_reads(ks//2, ks & 1, WF[ks % 3], vF)]
    for x in rdW1(0) + rdW1(1): lg.op(*x)
    for kp in range(16):
        for e in range(2):
            ks = 2*kp + e
            R = rdW1(ks+2) if ks + 2 < 32 else []
            if e == 0: R = [(x, ("h", kp)) for x in w1_half_reads(kp, WH[kp & 1], vH)] + R
            lg.wait(("w", ks)); vm.wait(("y", ks))
            for nt in range(3):
                a(f"v_mfma_f32_32x32x16_bf16 {vr(ACC+16*nt,16)}, {vr(WF[ks%3]+4*nt,4)}, {vr(AF+4*ks,4)}, {vr(ACC+16*nt,16)}")
                [lg.op(*x) for x in R[3*nt:3*nt+3]]
                if nt >= 1:
                    j = 12 + 2*ks + nt - 1
                    if j < 32: vm.op(*next(YL)[1])
                if ks in (4, 5):
                    for q in (((0, 8), (1, 9), (2, 10)), ((3, 11), (4, 12), (5, 13)), ((6, 14), (7, 15)))[nt] if ks == 4 else (((0, 4), (1, 5), (2, 6), (3, 7)), ((0, 2), (1, 3)), ())[nt]:
                        a(f"v_add_f32 v{ST+q[0]}, v{ST+q[0]}, v{ST+q[1]}")
                    if ks == 5 and nt == 2: a(f"v_add_f32 v124, v{ST}, v{ST+1}")
            if e == 1:
                lg.wait(("h", kp))
                a(f"v_smfmac_f32_32x32x32_bf16 {vr(ACC+48,16)}, {vr(WH[kp&1],4)}, {vr(AF+8*kp,8)}, v8")
                if kp % 2 == 0 or kp == 15: stamp(a, 1 + (kp+1)//2, 3)
                if kp == OPT.get("b6b", 4): a("s_barrier")
    a("s_barrier")
    stamp(a, 11)
    ST = 124
    a(f"v_mov_b32 v9, v{ST}\nv_permlane32_swap_b32 v{ST}, v9")
    a(f"v_mul_f32 v8, {hx(1/512)}, v{ST}\nv_mul_f32 v9, {hx(1/512)}, v9\nv_fma_f32 v9, -v8, v8, v9")
    a(f"v_max_f32 v9, 0, v9\nv_add_f32 v9, {hx(1e-5)}, v9\nv_rsq_f32 v9, v9")
    a(f"v_bfe_u32 v5, v{vLANE}, 5, 1\nv_lshlrev_b32 v14, 7, v5\nv_add_u32 v14, {L_UW}, v14")
    a(f"v_mul_f32 v10, {hx(-LOG2E)}, v9\nv_mul_f32 v9, v10, v8\nv_sub_f32 v9, 0, v9\nv_mov_b32 v8, v10")
    a(f"s_mul_i32 s52, s{sT32}, {112*1024}\ns_mul_i32 s53, s{sC}, 7168\ns_add_u32 s52, s52, s53\ns_add_u32 s52, s52, {hex(WS_H)}")
    a(f"s_lshl_b32 s55, s{sT32}, 4\ns_add_u32 s55, s55, s{sC}")
    flag_off(a, 56, 55, WS_FH)
    U = [128, 160]; E = 192
    def rdUW(nt):
        n = 4 if nt < 3 else 2
        for q in range(n): lg.op(f"ds_read_b128 {vr(U[nt&1]+4*q,4)}, v14 offset:{256*nt+16*q}", ("u", nt))
        for q in range(n): lg.op(f"ds_read_b128 {vr(U[nt&1]+16+4*q,4)}, v14 offset:{256*nt+64+16*q}", ("u", nt))
    lg.reset(); rdUW(0)
    for r in range(8): a(f"v_add_f32 v{ACC+48+r}, v{ACC+48+r}, v{ACC+56+r}")
    for nt in range(4):
        u = U[nt & 1]; acc = ACC + 16*nt; n = 16 if nt < 3 else 8
        lg.wait(("u", nt))
        if nt < 3: rdUW(nt+1)
        for r in range(0, n, 2): a(f"v_pk_fma_f32 {vr(u+r,2)}, {vr(u+r,2)}, v[8:9], {vr(u+16+r,2)} op_sel:[0,1,0] op_sel_hi:[1,1,1]")
        for r in range(0, n, 2): a(f"v_pk_fma_f32 {vr(acc+r,2)}, {vr(acc+r,2)}, v[8:9], {vr(u+r,2)} op_sel:[0,0,0] op_sel_hi:[1,0,1]")
        for r in range(n): a(f"v_exp_f32 v{E+r}, v{acc+r}")
        for r in range(0, n, 2): a(f"v_pk_add_f32 {vr(E+r,2)}, {vr(E+r,2)}, 1.0 op_sel_hi:[1,0]")
        for r in range(n): a(f"v_rcp_f32 v{E+r}, v{E+r}")
        for r in range(0, n, 2): a(f"v_pk_mul_f32 {vr(acc+r,2)}, {vr(acc+r,2)}, {vr(E+r,2)}")
        o = 208 + 8*nt
        for r in range(n//2): a(f"v_cvt_pk_bf16_f32 v{o+r}, v{acc+2*r}, v{acc+2*r+1}")
        if nt == 2: a("s_add_u32 s52, s52, 4096")
        vm.op(f"buffer_store_dwordx4 {vr(o,4)}, v{vL16}, {S['ws']}, s52 offen offset:{2048*(nt&1)} sc1")
        if nt < 3: vm.op(f"buffer_store_dwordx4 {vr(o+4,4)}, v{vL16}, {S['ws']}, s52 offen offset:{2048*(nt&1)+1024} sc1")
        stamp(a, 10 + nt, 3)
    set_flag(a, vm, "s56", vZ, 8)
    stamp(a, 12); stamp(a, 14, 3)
    ACC, WF, GB, XR, NR = [16, 32], [48, 56, 88], 64, 80, 32
    sTT, sKH, sT5, sF5 = 54, 55, 57, 58
    a(f"s_and_b32 s{sTT}, s{sW}, 1\ns_lshr_b32 s{sKH}, s{sW}, 1")
    a(f"s_lshr_b32 s52, s{sC}, 3\ns_lshl_b32 s52, s52, 1\ns_lshl_b32 s{sT5}, s{sTB}, 2\ns_add_u32 s{sT5}, s{sT5}, s52\ns_add_u32 s{sT5}, s{sT5}, s{sTT}")
    a(f"s_and_b32 s{sF5}, s{sC}, 7\ns_lshl_b32 s{sF5}, s{sF5}, 1\ns_add_u32 s{sF5}, s{sF5}, s{sKH}")
    tr_addr(a, 10, 11, True, 7, True)
    a(f"s_lshl_b32 s52, s{sKH}, 6\nv_xor_b32 v10, s52, v10\ns_lshl_b32 s52, s{sKH}, 13\nv_add_u32 v10, s52, v10\nv_xor_b32 v11, 64, v10")
    for r in range(32): a(f"v_mov_b32 v{16+r}, 0")
    a(f"v_lshlrev_b32 v5, 2, v{vLANE}\ns_lshl_b32 s52, s{sT5}, 4\ns_add_u32 s52, s52, s{sF5}")
    flag_off(a, 53, 52, WS_FX1)
    a(f"s_lshl_b32 s52, s{sT5}, 8")
    poll(a, vm, "1", 5, "s53", 9)
    a(f"s_lshl_b32 s53, s{sT5}, 15\ns_lshl_b32 s59, s{sF5}, 11\ns_add_u32 s53, s53, s59\ns_add_u32 s53, s53, {hex(WS_X1)}")
    for q in range(2): vm.op(f"buffer_load_dwordx4 {vr(XR+4*q,4)}, v{vL16}, {S['ws']}, s53 offen offset:{1024*q} sc1")
    a(f"s_lshl_b32 s53, s{sKH}, 7\ns_add_u32 s52, s52, s53\ns_add_u32 s52, s52, {hex(WS_FH)}")
    poll(a, vm, "0xff", 5, "s52", 9)
    stamp(a, 13); stamp(a, 0, 4)
    a(f"s_mul_i32 s52, s{sT5}, {112*1024}\ns_mul_i32 s53, s{sKH}, {56*1024}\ns_add_u32 s52, s52, s53\ns_add_u32 s52, s52, {hex(WS_H)}")
    a(f"s_lshl_b32 s59, s{sR}, 1\ns_cmp_ge_u32 s59, 14\ns_cselect_b32 s59, 0, s59")
    def ldH(ks):
        if ks % 4 == 0: a(f"s_add_u32 s53, s59, {ks//4}\ns_cmp_ge_u32 s53, 14\ns_cselect_b32 s60, 14, 0\ns_sub_u32 s53, s53, s60\ns_lshl_b32 s53, s53, 12\ns_add_u32 s53, s53, s52")
        vm.op(f"buffer_load_dwordx4 {vr(AF+4*(ks%NR),4)}, v{vL16}, {S['ws']}, s53 offen offset:{1024*(ks%4)} sc1", ("h", ks))
    PF = 12
    for ks in range(PF):
        ldH(ks)
        if ks == 7: a("s_barrier")
    slot = lambda s: s if s < 9 else s - 9
    def rdW2(ks):
        s, k = ks // 4, ks % 4
        return [(f"ds_read_b64_tr_b16 {vr(WF[ks%3]+4*n+2*st,2)}, v{12+n} offset:{2048*k+1024*st}", ("w", ks)) for n in range(2) for st in range(2)]
    def setslot(s): a(f"v_add_u32 v12, {16384*slot(s)}, v10\nv_add_u32 v13, {16384*slot(s)}, v11")
    lg.reset(); setslot(0)
    for x in rdW2(0) + rdW2(1): lg.op(*x)
    for ks in range(56):
        n = ks + 2
        lg.wait(("w", ks))
        if ks in (11, 19): a("s_barrier")
        if n < 56 and n % 4 == 0:
            if n // 4 in (9, 12): a("s_barrier")
            setslot(n // 4)
        vm.wait(("h", ks))
        a(f"v_mfma_f32_32x32x16_bf16 {vr(ACC[0],16)}, {vr(WF[ks%3],4)}, {vr(AF+4*(ks%NR),4)}, {vr(ACC[0],16)}")
        if n < 56: [lg.op(*x) for x in rdW2(n)]
        a(f"v_mfma_f32_32x32x16_bf16 {vr(ACC[1],16)}, {vr(WF[ks%3]+4,4)}, {vr(AF+4*(ks%NR),4)}, {vr(ACC[1],16)}")
        if ks + PF < 56: ldH(ks + PF)
        if ks % 4 == 3: stamp(a, 1 + ks//4, 4)
    stamp(a, 14)
    a(f"s_xor_b32 s52, s{sW}, 2\ns_lshl_b32 s52, s52, 12\ns_add_u32 s52, s52, {16384*5}\nv_add_u32 v5, s52, v{vL16}")
    a(f"s_lshl_b32 s52, s{sW}, 12\ns_add_u32 s52, s52, {16384*5}\nv_add_u32 v6, s52, v{vL16}")
    a(f"v_bfe_u32 v9, v{vLANE}, 5, 1\nv_lshlrev_b32 v7, 4, v9\ns_lshl_b32 s52, s{sKH}, 7\ns_add_u32 s52, s52, {L_GB}\nv_add_u32 v7, s52, v7")
    for q in range(4): a(f"ds_read_b128 {vr(GB+4*q,4)}, v7 offset:{32*q}")
    XF = 96
    for r in range(8): a(f"v_lshlrev_b32 v{XF+2*r}, 16, v{XR+r}\nv_and_b32 v{XF+2*r+1}, 0xffff0000, v{XR+r}")
    for q in range(4): a(f"ds_write_b128 v5, {vr(ACC[1]+4*q,4)} offset:{1024*q}")
    a("s_waitcnt lgkmcnt(0)\ns_barrier")
    for q in range(4): a(f"ds_read_b128 {vr(ACC[1]+4*q,4)}, v6 offset:{1024*q}")
    a(f"v_and_b32 v7, 31, v{vLANE}\nv_lshlrev_b32 v8, 10, v7\nv_lshl_add_u32 v8, v9, 4, v8")
    a(f"s_lshl_b32 s52, s{sT5}, 15\ns_lshl_b32 s53, s{sF5}, 6\ns_add_u32 s52, s52, s53")
    for q in range(4):
        a(f"s_waitcnt lgkmcnt({3-q})")
        for r in range(4*q, 4*q+4): a(f"v_add_f32 v{ACC[0]+r}, v{ACC[0]+r}, v{ACC[1]+r}")
        for r in range(4*q, 4*q+4): a(f"v_fmac_f32 v{XF+r}, v{ACC[0]+r}, v{GB+r}")
    for r in range(8): a(f"v_cvt_pk_bf16_f32 v{64+r}, v{XF+2*r}, v{XF+2*r+1}")
    for p in range(2):
        a(f"v_permlane32_swap_b32 v{64+4*p}, v{64+4*p+2}\nv_permlane32_swap_b32 v{64+4*p+1}, v{64+4*p+3}")
        vm.op(f"buffer_store_dwordx4 {vr(64+4*p,4)}, v8, {S['out']}, s52 offen offset:{32*p}")

def wq_loop(a):
    a(f"v_lshrrev_b32 v4, 2, v{vLANE}\nv_mul_u32_u24 v4, 3072, v4\nv_and_b32 v5, 3, v{vLANE}\nv_lshl_add_u32 v4, v5, 4, v4")
    a(f"s_lshl_b32 s55, s{sR}, 2\ns_add_u32 s55, s55, s67\ns_lshl_b32 s53, s67, 10\ns_add_u32 s53, s53, {L_WQ}\ns_lshl_b32 s56, s{sC}, 6\ns_mov_b32 s51, 8\nLh_ql:")
    a(f"s_and_b32 s52, s55, 31\ns_mul_i32 s52, s52, {16*3072}\ns_mov_b32 m0, s53\ns_add_u32 s52, s52, s56")
    a(f"buffer_load_dwordx4 v4, {S['wqkv']}, s52 offen lds")
    a(f"s_add_u32 s55, s55, 4\ns_add_u32 s53, s53, 4096\ns_sub_u32 s51, s51, 1\ns_cmp_lg_u32 s51, 0\ns_cbranch_scc1 Lh_ql")

def helper(a):
    vm = Track(a, "vmcnt", 63)
    sH, sCol = 67, 66
    a("Lh_b2:")
    a("s_waitcnt vmcnt(0) lgkmcnt(0)\ns_barrier")
    if OPT.get("st", 7) & 2:
        a(f"s_lshl_b32 s57, s2, 2\ns_add_u32 s57, s57, s{sH}\ns_lshl_b32 s58, s57, 9\ns_mul_i32 s57, s57, {5*128}\ns_add_u32 s57, s57, {9216*128}")
        for n in range(3): a(stouch("w1", 57, n))
    a("s_barrier")
    wq_loop(a)
    if OPT.get("st", 7) & 2:
        for n in range(3, 5): a(stouch("w1", 57, n))
        a(stouch("wo", 58, 0))
    a("s_waitcnt vmcnt(0)")
    if OPT.get("touch", 0) == 1: mall_touch(a)
    stamp(a, 2)
    a("s_barrier")
    if OPT.get("st", 7) & 2:
        for n in range(1, 4): a(stouch("wo", 58, n))
    a("s_barrier")

def helper2(a):
    vm = Track(a, "vmcnt", 63); lg = Track(a, "lgkmcnt", 15)
    sH = 67
    vF, vH = 13, 14
    a(f"s_sub_u32 s52, s{sI}, 8\ns_cmp_ge_u32 s52, 16\ns_cbranch_scc1 Lh_nomod2")
    mod_partial(a, vm, vMOD); mod_join(a, vm, 66, "Lh_nomod2")
    a("Lh_nomod2:")
    a("s_barrier")
    a(f"v_lshlrev_b32 v4, 5, v{vLANE}\ns_lshl_b32 s52, s{sH}, 11\ns_add_u32 s52, s52, 4096")
    gran_poll(a, vm, [f"buffer_load_dwordx4 v[16:19], v4, {S['ws']}, s52 offen sc1", f"buffer_load_dwordx4 v[20:23], v4, {S['ws']}, s52 offen offset:16 sc1"], [16, 20])
    for j, r in enumerate((16, 18, 20, 22)): a(f"v_lshlrev_b32 v{24+2*j}, 16, v{r}\nv_and_b32 v{25+2*j}, 0xffff0000, v{r}")
    a(f"s_cmp_eq_u32 s{sH}, 1\ns_cbranch_scc1 Lh_tabg")
    a(f"s_cmp_eq_u32 s{sH}, 3\ns_cselect_b32 s53, {hx(-1/LOG2E)}, 1.0")
    a(f"s_lshl_b32 s54, s{sC}, 2\ns_and_b32 s55, s{sC}, 7\ns_lshl_b32 s55, s55, 3\ns_lshl_b32 s56, s{sH}, 6\ns_cmp_eq_u32 s{sH}, 3\ns_cselect_b32 s54, s55, s54\ns_cselect_b32 s55, 8, 4")
    a(f"s_cselect_b32 s56, 256, s56\ns_add_u32 s56, s56, {L_TAB}")
    for r in range(8): a(f"v_mul_f32 v{24+r}, s53, v{24+r}")
    a(f"v_subrev_u32 v5, s54, v{vLANE}\nv_cmp_gt_u32 vcc, s55, v5\nv_lshlrev_b32 v5, 5, v5\nv_add_u32 v5, s56, v5")
    a("s_and_saveexec_b64 s[56:57], vcc\nds_write_b128 v5, v[24:27]\nds_write_b128 v5, v[28:31] offset:16\ns_mov_b64 exec, -1")
    a(f"s_cmp_lg_u32 s{sH}, 2\ns_cbranch_scc1 Lh_tabd")
    a("Lh_tabg:")
    a(f"v_lshrrev_b32 v5, 1, v{vLANE}\ns_lshl_b32 s53, s{sR}, 2\nv_subrev_u32 v5, s53, v5\nv_and_b32 v5, 31, v5\nv_lshlrev_b32 v5, 6, v5\nv_and_b32 v6, 1, v{vLANE}\nv_lshl_add_u32 v5, v6, 3, v5")
    a(f"s_and_b32 s53, s{sH}, 1\ns_lshl_b32 s53, s53, 4\ns_add_u32 s53, s53, {L_G}\nv_add_u32 v5, s53, v5")
    a("v_mov_b32 v17, v18\nv_mov_b32 v21, v22\nds_write_b64 v5, v[16:17]\nds_write_b64 v5, v[20:21] offset:32")
    a("Lh_tabd:")
    a("s_waitcnt vmcnt(0) lgkmcnt(0)")
    stamp(a, 8)
    a("s_barrier")
    vm.reset()
    vW2 = 10
    a(f"v_lshrrev_b32 v{vW2}, 3, v{vLANE}\nv_lshlrev_b32 v{vW2}, 10, v{vW2}\nv_bfe_u32 v5, v{vLANE}, 4, 1\nv_lshlrev_b32 v5, 2, v5\nv_xor_b32 v5, v5, v{vLANE}\nv_and_b32 v5, 7, v5\nv_lshl_add_u32 v{vW2}, v5, 4, v{vW2}")
    a(f"s_lshl_b32 s58, s{sH}, 14\ns_and_b32 s52, s{sC}, 7\ns_lshl_b32 s52, s52, 7\ns_add_u32 s58, s58, s52\ns_lshl_b32 s59, s{sH}, 11")
    a(f"s_lshl_b32 s60, s{sR}, 1\ns_cmp_ge_u32 s60, 14\ns_cselect_b32 s60, 0, s60")
    def w2_stage(s, thr=None):
        sl = s if s < 9 else s - 9
        a(f"s_add_u32 s61, s60, {s}\ns_cmp_ge_u32 s61, 14\ns_cselect_b32 s62, 14, 0\ns_sub_u32 s61, s61, s62\ns_lshl_b32 s61, s61, 16\ns_add_u32 s61, s61, s58")
        for kh in range(2):
            for hf in range(2):
                a(f"s_add_u32 m0, s59, {16384*sl+8192*kh+1024*hf}\ns_add_u32 s52, s61, {56*kh*16384+8192*hf}")
                vm.op(f"buffer_load_dwordx4 v{vW2}, {S['w2']}, s52 offen lds", ("w2", s))
        if thr: vm.wait(("w2", s-1))
    w2_stage(0); w2_stage(1)
    ACC, GF, WF = 16, 32, 48
    a(f"v_bfe_u32 v9, v{vLANE}, 5, 1\nv_lshlrev_b32 v6, 5, v9\nv_and_b32 v5, 1, v{vLANE}\nv_lshl_add_u32 v6, v5, 4, v6\nv_add_u32 v6, {L_G}, v6")
    for r in range(16): a(f"v_mov_b32 v{ACC+r}, 0")
    a(f"s_cmp_eq_u32 s{sH}, 3\ns_cbranch_scc1 Lh_uwh")
    tr_addr(a, 4, 5, True, 6, False)
    a(f"s_lshl_b32 s52, s{sH}, 10\ns_add_u32 s52, s52, {L_W1}\nv_add_u32 v4, s52, v4\ns_mov_b32 s51, 16")
    a("Lh_uwl:")
    for e in range(2):
        a(f"ds_read_b128 {vr(GF+4*e,4)}, v6 offset:{64*e}")
        for st in range(2): a(f"ds_read_b64_tr_b16 {vr(WF+4*e+2*st,2)}, v4 offset:{3072*e+512*st}")
    a("v_add_u32 v4, 7168, v4\nv_add_u32 v6, 128, v6\ns_sub_u32 s51, s51, 1")
    for e in range(2):
        a(f"s_waitcnt lgkmcnt({3-3*e})")
        a(f"v_mfma_f32_32x32x16_bf16 {vr(ACC,16)}, {vr(WF+4*e,4)}, {vr(GF+4*e,4)}, {vr(ACC,16)}")
    a("s_cmp_lg_u32 s51, 0\ns_cbranch_scc1 Lh_uwl")
    a("s_branch Lh_uwd")
    a("Lh_uwh:")
    half_tr_addr(a, 4, 5)
    a(f"v_add_u32 v4, {L_W1+6144}, v4\ns_mov_b32 s51, 16")
    a(f"v_and_b32 v8, 16, v0\nv_cmp_eq_u32 vcc, 0, v8\nv_mov_b32 v8, 0xeeeeeeee\nv_mov_b32 v5, 0x44444444\nv_cndmask_b32 v8, v8, v5, vcc")
    a("Lh_uwhl:")
    for e in range(2): a(f"ds_read_b128 {vr(GF+4*e,4)}, v6 offset:{64*e}")
    for st in range(2): a(f"ds_read_b64_tr_b16 {vr(WF+2*st,2)}, v4 offset:{256*st}")
    a("v_add_u32 v4, 7168, v4\nv_add_u32 v6, 128, v6\ns_sub_u32 s51, s51, 1\ns_waitcnt lgkmcnt(0)")
    a(f"v_smfmac_f32_32x32x32_bf16 {vr(ACC,16)}, {vr(WF,4)}, {vr(GF,8)}, v8")
    a("s_cmp_lg_u32 s51, 0\ns_cbranch_scc1 Lh_uwhl")
    a("s_nop 7\ns_nop 3")
    for r in range(8): a(f"v_add_f32 v{ACC+r}, v{ACC+r}, v{ACC+8+r}")
    a("Lh_uwd:")
    a(f"v_and_b32 v5, 1, v{vLANE}\nv_cmp_eq_u32 vcc, 1, v5\nv_mov_b32 v7, {hx(-LOG2E)}\nv_cndmask_b32 v7, 1.0, v7, vcc")
    a(f"v_lshlrev_b32 v6, 7, v9\nv_lshl_add_u32 v6, v5, 6, v6\ns_lshl_b32 s52, s{sH}, 8\ns_add_u32 s52, s52, {L_UW}\nv_add_u32 v6, s52, v6")
    a("s_nop 3")
    for r in range(16): a(f"v_mul_f32 v{ACC+r}, v{ACC+r}, v7")
    a("s_mov_b32 exec_lo, 3\ns_mov_b32 exec_hi, 3")
    for q in range(4): a(f"ds_write_b128 v6, {vr(ACC+4*q,4)} offset:{16*q}")
    a("s_mov_b64 exec, -1\ns_waitcnt lgkmcnt(0)")
    stamp(a, 9)
    a("s_barrier")
    NREG = OPT.get("nreg", 12); S0 = 14 - NREG; RB = 48
    order = list(range(S0, 9)) + list(range(9, 14))
    for s in order:
        a(f"s_add_u32 s61, s60, {s}\ns_cmp_ge_u32 s61, 14\ns_cselect_b32 s62, 14, 0\ns_sub_u32 s61, s61, s62\ns_lshl_b32 s61, s61, 16\ns_add_u32 s61, s61, s58")
        for j in range(4):
            a(f"s_add_u32 s52, s61, {56*(j>>1)*16384+8192*(j&1)}")
            vm.op(f"buffer_load_dwordx4 {vr(RB+16*(s-S0)+4*j,4)}, v{vW2}, {S['w2']}, s52 offen", ("w2r", s))
    a("s_barrier")
    a(f"v_add_u32 v4, s59, v{vL16}\nv_add_u32 v5, 0x10000, v4\nv_add_u32 v6, 0x20000, v4")
    def w2_put(s):
        sl = s if s < 9 else s - 9
        for j in range(4): a(f"ds_write_b128 v{4 + sl//4}, {vr(RB+16*(s-S0)+4*j,4)} offset:{16384*(sl%4)+8192*(j>>1)+1024*(j&1)}")
    for s in range(2, S0): w2_stage(s, True)
    for s in range(S0, 9):
        vm.wait(("w2r", s)); w2_put(s)
        if (s - S0) % 2 == 1: a("s_waitcnt lgkmcnt(4)")
    vm.wait_all()
    a("s_waitcnt lgkmcnt(0)")
    stamp(a, 12)
    a("s_barrier")
    a("s_barrier")
    for s in (9, 10, 11): w2_put(s)
    a("s_barrier")
    for s in (12, 13): w2_put(s)
    a("s_waitcnt lgkmcnt(8)\ns_barrier")
    a("s_waitcnt lgkmcnt(0)\ns_barrier")
    a("s_barrier")

def diag_out(a, slot):
    if not DIAG: return
    stamp(a, 15)
    a("s_memrealtime s[52:53]\ns_waitcnt vmcnt(0) lgkmcnt(0)")
    a("s_mov_b64 exec, 1")
    for i in range(16):
        a(f"s_sub_u32 s{70+2*i}, s{70+2*i}, s3\nv_mov_b32 v{16+i}, s{70+2*i}")
    a("v_mov_b32 v32, s69\nv_mov_b32 v33, s52" if False else "v_mov_b32 v32, v250\nv_mov_b32 v33, s52")
    a(f"s_lshl_b32 s54, s2, 10\ns_lshl_b32 s55, s{sW}, 7\ns_add_u32 s54, s54, s55\ns_add_u32 s54, s54, {hex(WS_DIAG)}")
    for q in range(4): a(f"buffer_store_dwordx4 {vr(16+4*q,4)}, v{vZ}, {S['ws']}, s54 offen offset:{16*q}")
    a(f"buffer_store_dwordx2 v[32:33], v{vZ}, {S['ws']}, s54 offen offset:64")
    a(f"Ldiag{slot}:")

def build():
    a = Asm()
    a("s_cmp_ge_u32 s2, 256\ns_cbranch_scc1 Lend")
    for nm in ("x", "dbg", "wmod", "c", "wqkv", "ws", "wo", "w1", "w2", "out"):
        a(f"s_load_dwordx2 {sr(SRD[nm],2)}, s[0:1], {KA[nm]}")
    if DIAG: a("s_memtime s[70:71]\ns_memrealtime s[72:73]")
    a(f"v_lshrrev_b32 v4, 6, v0\nv_and_b32 v{vLANE}, 63, v0\nv_mov_b32 v{vZ}, 0\nv_readfirstlane_b32 s{sW}, v4\nv_lshlrev_b32 v{vL16}, 4, v{vLANE}")
    a(f"s_getpc_b64 s[56:57]\nLpc:\ns_sub_u32 s56, s56, Lpc-{NAME}_kernel\ns_subb_u32 s57, s57, 0")
    a(f"s_and_b32 s{sX}, s2, 7\ns_lshr_b32 s{sI}, s2, 3\ns_sub_u32 s67, s{sW}, 4")
    a(f"s_cmp_lt_u32 s{sW}, 6\ns_cbranch_scc1 Le_nopf")
    a(f"s_lshl_b32 s58, s{sI}, 1\ns_add_u32 s58, s58, s67\ns_sub_u32 s58, s58, 2\ns_lshl_b32 s58, s58, 10\ns_min_u32 s58, s58, Lcode_end-{NAME}_kernel-1024\nv_add_u32 v5, s58, v{vL16}")
    a("global_load_dwordx4 v[16:19], v5, s[56:57]")
    a("Le_nopf:")
    a(f"s_lshr_b32 s{sTB}, s{sX}, 1\ns_lshl_b32 s{sTB}, s{sTB}, 2\ns_lshr_b32 s52, s{sI}, 3\ns_add_u32 s{sTB}, s{sTB}, s52")
    a(f"s_and_b32 s{sR}, s{sI}, 7\ns_and_b32 s{sC}, s{sX}, 1\ns_lshl_b32 s{sC}, s{sC}, 3\ns_add_u32 s{sC}, s{sC}, s{sR}")
    for nm in ("x", "dbg", "wmod", "c", "wqkv", "ws"): a(f"s_mov_b32 s{SRD[nm]+2}, {hex(SZ[nm])}\ns_mov_b32 s{SRD[nm]+3}, 0x20000")
    a("s_memrealtime s[54:55]")
    if DIAG:
        a("s_waitcnt lgkmcnt(0)\ns_mov_b32 s3, s70\ns_mov_b32 s68, s72\nv_mov_b32 v250, s72")
        for i in range(16): a(f"s_mov_b32 s{70+2*i}, s3")
    a(f"s_cmp_ge_u32 s{sW}, 4\ns_cbranch_scc1 Lp0_h\ns_cmp_lt_u32 s{sI}, 8\ns_cbranch_scc1 Lp0_mod\ns_cmp_ge_u32 s{sI}, 24\ns_cbranch_scc1 Lp0_warm")
    p0_ln(a)
    a("Lp0_h:")
    p0_helper(a)
    a("Lp0_mod:")
    p0_mod(a)
    a("Lp0_warm:")
    p0_warm(a)
    active(a)
    a("s_branch Latt")
    helper(a)
    a("Latt:")
    vm = Track(a, "vmcnt", 63)
    slow = attention(a, vm)
    set_flag(a, vm, "s64", vZ, 8)
    stamp(a, 7)
    a(f"s_cmp_ge_u32 s{sW}, 4\ns_cbranch_scc1 Lhelper2")
    active2(a)
    if DIAG: a("v_mov_b32 v250, s68")
    diag_out(a, 0)
    a("s_endpgm")
    a("Lhelper2:")
    helper2(a)
    diag_out(a, 1)
    a("s_endpgm")
    slow(a)
    a("Lend:")
    return a

def emit(a):
    hdr = open(f"cdna_kernels/{NAME}.s.ref").read().split("\n")
    out = [l for l in hdr if l.startswith(";") and "@launch" not in l and "Override launch" not in l and "grid=ceil" not in l]
    out.append(f"; @launch grid=(256,1,1) block=(512,1,1) lds={LDS_SIZE}")
    a.fix()
    out += ['.amdgcn_target "amdgcn-amd-amdhsa--gfx950"', ".text", f".globl {NAME}_kernel", ".p2align 8", f".type {NAME}_kernel,@function", f"{NAME}_kernel:",
            a.text(), "    s_endpgm", "Lcode_end:", '.section .rodata,"a"', ".p2align 6", f".amdhsa_kernel {NAME}_kernel", "  .amdhsa_next_free_vgpr 256",
            "  .amdhsa_next_free_sgpr 102", "  .amdhsa_accum_offset 256", "  .amdhsa_group_segment_fixed_size 0", "  .amdhsa_kernarg_size 88",
            "  .amdhsa_user_sgpr_count 2", "  .amdhsa_user_sgpr_kernarg_segment_ptr 1", "  .amdhsa_system_sgpr_workgroup_id_x 1",
            "  .amdhsa_float_denorm_mode_32 3", ".end_amdhsa_kernel"]
    return "\n".join(out) + "\n"

if __name__ == "__main__":
    import argparse
    p = argparse.ArgumentParser(); p.add_argument("out"); p.add_argument("--diag", action="store_true"); p.add_argument("--opt", default="")
    args = p.parse_args()
    DIAG = args.diag
    for o in args.opt.split(","):
        if o: OPT[o.split("=")[0]] = int(o.split("=")[1]) if "=" in o else 1
    set_nring(OPT.get('nring', 4))
    open(args.out, "w").write(emit(build()))
```

```python
import re

TRANS = ("v_exp_f32", "v_log_f32", "v_rcp_f32", "v_rsq_f32", "v_sqrt_f32", "v_sin_f32", "v_cos_f32",
         "v_exp_f16", "v_rcp_f16", "v_rcp_iflag_f32")

def _regs(tok):
    tok = tok.strip()
    tok = tok.lstrip('-')
    m = re.match(r"^(?:abs\()?\|?([vsa])(\d+)\|?\)?$", tok)
    if m:
        return [(m.group(1), int(m.group(2)))]
    m = re.match(r"^([vsa])\[(\d+):(\d+)\]$", tok)
    if m:
        return [(m.group(1), i) for i in range(int(m.group(2)), int(m.group(3)) + 1)]
    if tok in ("vcc", "exec"):
        return [(tok, 0)]
    if tok in ("vcc_lo", "vcc_hi"):
        return [("vcc", 0)]
    if tok in ("exec_lo", "exec_hi"):
        return [("exec", 0)]
    if tok == "m0":
        return [("m0", 0)]
    return []

class Ins:
    def __init__(self, text):
        self.text = text
        t = text.split(";")[0].strip()
        self.label = t.endswith(":")
        self.directive = t.startswith(".")
        self.op = ""
        self.dst, self.src = [], []
        self.kind = "other"
        if self.label or self.directive or not t:
            self.kind = "meta"
            return
        parts = t.split(None, 1)
        self.op = op = parts[0]
        rest = parts[1] if len(parts) > 1 else ""
        ops, cur, d = [], "", 0
        for ch in rest:
            if ch == "[": d += 1
            if ch == "]": d -= 1
            if ch == "," and d == 0:
                ops.append(cur.strip()); cur = ""
            else:
                cur += ch
        if cur.strip(): ops.append(cur.strip())
        mods = ""
        if ops:
            last = ops[-1].split(None, 1)
            if len(last) > 1 and not ops[-1].startswith("hwreg"):
                ops[-1] = last[0]; mods = last[1]
        self.mods = mods
        self.ops = ops
        R = [_regs(o) for o in ops]
        flat = lambda L: [x for l in L for x in l]
        base = re.sub(r"_(e32|e64|dpp|sdwa)$", "", op)
        self.base = base
        self.dpp = ("row_" in mods or "quad_perm" in mods or "wave_" in mods or op.endswith("_dpp"))
        if op.startswith("v_mfma") or op.startswith("v_smfmac"):
            self.kind = "mfma"
            self.dst = R[0]; self.srcA = R[1]; self.srcB = R[2]
            if op.startswith("v_smfmac"):
                self.srcC = R[0]; self.srcAB = R[1] + R[2] + R[3]
            else:
                self.srcC = R[3]; self.srcAB = R[1] + R[2]
            self.src = self.srcAB + self.srcC
            self.passes = 8 if "32x32" in op else 4
        elif op.startswith("v_"):
            self.kind = "trans" if base in TRANS else "valu"
            if base.startswith("v_cmpx"):
                self.dst = R[0] + [("exec", 0)]; self.src = flat(R[1:])
            elif base.startswith("v_cmp"):
                self.dst = R[0]; self.src = flat(R[1:])
            elif base in ("v_add_co_u32", "v_sub_co_u32", "v_subrev_co_u32"):
                self.dst = R[0] + R[1]; self.src = flat(R[2:])
            elif base in ("v_addc_co_u32", "v_subb_co_u32"):
                self.dst = R[0] + R[1]; self.src = flat(R[2:])
            elif base.startswith("v_permlane") and "swap" in base:
                self.dst = R[0] + R[1]; self.src = R[0] + R[1]
            elif base in ("v_fmac_f32", "v_pk_fmac_f16", "v_dot2c_f32_bf16", "v_writelane_b32"):
                self.dst = R[0]; self.src = flat(R)
            elif base == "v_nop":
                pass
            else:
                self.dst = R[0]; self.src = flat(R[1:])
                if self.dpp: self.src = self.src + R[0]
        elif op.startswith("ds_"):
            self.kind = "ds"
            if op.startswith("ds_read") or op.startswith("ds_bpermute") or op.startswith("ds_swizzle") or op.startswith("ds_permute"):
                self.dst = R[0]; self.src = flat(R[1:])
            else:
                self.src = flat(R)
        elif op.startswith("buffer_") or op.startswith("global_"):
            self.kind = "vmem"
            lds = (" lds" in " " + mods) or "load_lds" in op
            self.lds = lds
            if op in ("buffer_wbl2", "buffer_inv"):
                pass
            elif "load" in op and not lds:
                self.dst = R[0]; self.src = flat(R[1:])
            elif "atomic" in op and "sc0" in mods and op.startswith("global_"):
                self.dst = R[0]; self.src = flat(R[1:])
            elif "atomic" in op and "sc0" in mods:
                self.dst = R[0]; self.src = flat(R)
            else:
                self.src = flat(R)
            if lds: self.src = self.src + [("m0", 0)]
            self.store_data = []
            if "store" in op and (op.endswith("x4") or op.endswith("x3")):
                self.store_data = R[0] if op.startswith("buffer_") else R[1]
        elif op.startswith("s_"):
            self.kind = "salu"
            if op.startswith("s_cmp") or op.startswith("s_cbranch") or op in ("s_branch", "s_barrier", "s_waitcnt", "s_nop", "s_endpgm", "s_sleep", "s_setprio", "s_bitcmp0_b32", "s_bitcmp1_b32"):
                self.src = flat(R)
            elif "saveexec" in op:
                self.dst = R[0] + [("exec", 0)]; self.src = flat(R[1:]) + [("exec", 0)]
            else:
                self.dst = R[0] if R else []; self.src = flat(R[1:])
    def states(self):
        if self.kind == "meta": return 0
        if self.op == "s_nop": return int(self.ops[0], 0) + 1
        return 1

def need(p, c):
    n = 0
    pd = set(p.dst); cs = set(c.src); cd = set(c.dst)
    pv = p.kind in ("valu", "trans")
    cv = c.kind in ("valu", "trans")
    isvg = lambda r: r[0] in ("v", "a")
    issg = lambda r: r[0] in ("s", "vcc")
    if pv:
        vg = {r for r in pd if isvg(r)}; sg = {r for r in pd if issg(r)}
        if c.kind == "mfma" and vg & cs: n = max(n, 2)
        if cv and c.base in ("v_readlane_b32", "v_readfirstlane_b32") and vg & cs: n = max(n, 1)
        if cv and c.base.startswith("v_permlane") and vg & cs: n = max(n, 2)
        if cv and c.dpp and vg & cs: n = max(n, 2)
        if p.kind == "trans" and (cv or c.kind == "mfma") and vg & cs: n = max(n, 1)
        if c.kind == "vmem" and sg & cs: n = max(n, 5)
        if cv and sg & cs:
            n = max(n, 4 if c.base in ("v_readlane_b32", "v_writelane_b32") else 2)
        if cv and ("vcc", 0) in sg and c.base == "v_cndmask_b32": n = max(n, 2)
        if c.kind == "salu" and sg & cs: n = max(n, 1)
        if ("exec", 0) in pd:
            if c.kind == "mfma": n = max(n, 4)
            if cv and (c.dpp): n = max(n, 5)
            if cv and (c.base.startswith("v_permlane") or c.base in ("v_readlane_b32", "v_readfirstlane_b32", "v_writelane_b32")): n = max(n, 4)
        if ("sdwa" in p.op or "op_sel" in p.mods) and not p.base.startswith("v_pk") and cv and vg & (cs | cd): n = max(n, 1)
    if p.kind == "mfma":
        big, small = (12, 10) if p.passes == 8 else (8, 6)
        if c.kind == "mfma":
            if pd & set(c.srcAB): n = max(n, big)
            elif pd & set(c.srcC):
                if not (c.srcC == p.dst and c.passes == p.passes): n = max(n, small)
            elif pd & cd: n = max(n, small)
        elif c.kind in ("valu", "trans", "vmem", "ds"):
            if pd & (cs | cd): n = max(n, big)
        if cv and set(p.srcC) & cd: n = max(n, 7 if p.passes == 8 else 3)
    if p.kind == "salu" and ("m0", 0) in pd and c.kind == "vmem" and getattr(c, "lds", False): n = max(n, 1)
    if p.kind == "vmem" and getattr(p, "store_data", None):
        if set(p.store_data) & cd and c.kind != "salu": n = max(n, 2 if cv else 1)
    return n

class Asm:
    def __init__(self):
        self.L = []
        self.nops_added = []
    def __call__(self, text):
        for line in text.split("\n"):
            line = line.strip()
            if line: self.L.append(Ins(line))
        return self
    def label(self, name): self(name + ":")
    def _scan(self, seq, start):
        for ci in range(start, len(seq)):
            c = self.L[seq[ci]]
            if c.kind == "meta": continue
            dist = 0
            for pi in range(ci - 1, -1, -1):
                p = self.L[seq[pi]]
                if p.kind != "meta":
                    nd = need(p, c)
                    if nd > dist: return ci, nd - dist, p, c
                    dist += p.states()
                if dist >= 20: break
        return None
    def fix(self, verbose=True):
        while True:
            n = len(self.L)
            r = self._scan(list(range(n)), 0)
            pos = None
            if r:
                pos = r[0]
            else:
                labels = {self.L[i].text.split(":")[0].strip(): i for i in range(n) if self.L[i].label}
                for i in range(n):
                    I = self.L[i]
                    if I.op.startswith("s_cbranch") or I.op == "s_branch":
                        t = labels.get(I.ops[0])
                        if t is None: continue
                        pre = list(range(max(0, i - 24), i + 1)); post = list(range(t, min(n, t + 24)))
                        r = self._scan(pre + post, len(pre))
                        if r:
                            pos = (pre + post)[r[0]]; break
            if pos is None: break
            k = r[1]
            self.nops_added.append((k, r[2].text, r[3].text))
            self.L.insert(pos, Ins(f"s_nop {k-1}"))
        if verbose:
            nm0 = 0
            for k, a, b in self.nops_added:
                if " m0," in a: nm0 += 1
                else: print(f"  [hazard] +{k} nop: '{a}' -> '{b}'")
            if nm0: print(f"  [hazard] {nm0} m0 nops")
    def text(self):
        out = []
        for I in self.L:
            out.append(I.text if (I.label or I.directive) else "    " + I.text)
        return "\n".join(out)

def vr(a, n=1): return f"v{a}" if n == 1 else f"v[{a}:{a+n-1}]"
def sr(a, n=1): return f"s{a}" if n == 1 else f"s[{a}:{a+n-1}]"
def ar(a, n=1): return f"a{a}" if n == 1 else f"a[{a}:{a+n-1}]"

class Track:
    def __init__(self, a, name, limit):
        self.a, self.name, self.limit, self.q = a, name, limit, []
    def op(self, text, tag=None):
        if len(self.q) >= self.limit:
            keep = self.limit - 3
            self.a(f"s_waitcnt {self.name}({keep})"); self.q = self.q[len(self.q)-keep:]
        self.a(text); self.q.append(tag)
    def count(self, tag):
        idx = [i for i, t in enumerate(self.q) if t == tag or (isinstance(tag, (list, set)) and t in tag)]
        if not idx: return None
        return len(self.q) - 1 - idx[-1]
    def wait(self, tag):
        n = self.count(tag)
        if n is None: return
        self.a(f"s_waitcnt {self.name}({n})"); self.q = self.q[len(self.q)-n:] if n else []
    def wait_all(self):
        self.a(f"s_waitcnt {self.name}(0)"); self.q = []
    def reset(self): self.q = []
```

```python
import sys, struct
from asmlib import *

NAME = "adaLN_cond__softmax_full_mha__dense_activation_silu__prompt"
WS_MODG = 0x0
WS_STATS = 0x10000
WS_FXN, WS_FKV, WS_FO, WS_FX1, WS_FH = 0x50000, 0x52000, 0x80000, 0xC0000, 0xE0000
WS_XN, WS_K, WS_V, WS_O, WS_X1, WS_Y, WS_H = 0x200000, 0x400000, 0x600000, 0x800000, 0xA00000, 0xC00000, 0xE00000
WS_DIAG = 0x1600000
WS_SIZE = 0x1700000
KA = dict(x=0, wqkv=8, wo=16, w1=32, w2=40, c=48, wmod=56, out=64, dbg=72, ws=80)
SZ = dict(x=2048*512*2, wqkv=512*1536*2, wo=512*512*2, w1=512*1792*2, w2=1792*512*2, c=1024, wmod=512*3072*2, out=2048*512*2, dbg=256, ws=WS_SIZE)
SRD = dict(x=4, wqkv=8, wo=12, w1=16, w2=20, c=24, wmod=28, out=32, dbg=36, ws=40)
S = {k: sr(v, 4) for k, v in SRD.items()}
sW, sTB, sC, sTAG, sI, sX, sR = 44, 45, 46, 47, 48, 49, 69
SPIN = 20000
def f2u(f): return struct.unpack("<I", struct.pack("<f", f))[0]
def hx(f): return hex(f2u(f))
LOG2E = 1.4426950408889634
DIAG = False
OPT = {}
L_WKV, L_WQ = 0, 64*1024
L_DG = 96*1024
L_SA = 112*1024
L_QX = 144*1024
L_WO = 0
L_W1 = 32*1024
L_RED = 88*1024
L_TAB = 156*1024
L_GA, L_G2, L_GB, L_SCR, L_UW, L_G = L_TAB, L_TAB+128, L_TAB+256, L_TAB+512, L_TAB+1024, L_TAB+2048
LDS_SIZE = 160*1024

def stamp(a, i, grp=0):
    if DIAG and (OPT.get("focus", 0) == grp or i == 15): a(f"{'s_memrealtime' if OPT.get('rt') else 's_memtime'} s[{70+2*i}:{71+2*i}]")

_uid = [0]
def poll(a, vm, mask, vaddr, soff, vt, first=0):
    _uid[0] += 1; n = _uid[0]
    a(f"s_mov_b64 exec, {mask}\ns_mov_b32 s50, {SPIN}")
    if first: a(f"s_sleep {first}")
    a(f"Lpoll{n}:\nbuffer_load_dword v{vt}, v{vaddr}, {S['ws']}, {soff} offen sc1\ns_waitcnt vmcnt(0)\nv_cmp_ne_u32 vcc, s{sTAG}, v{vt}\ns_sub_u32 s50, s50, 1\ns_cbranch_vccz Lpolld{n}")
    if OPT.get("psleep", 0): a(f"s_sleep {OPT.get('psleep', 0)}")
    a(f"s_cmp_lg_u32 s50, 0\ns_cbranch_scc1 Lpoll{n}")
    a(f"Lpolld{n}:\ns_mov_b64 exec, -1")
    vm.reset()

def LF(): return OPT.get("lf", 3)
def flag_off(a, d, f, base, lf=3):
    a(f"s_lshr_b32 s50, s{f}, {lf}\ns_lshl_b32 s50, s50, 7\ns_and_b32 s{d}, s{f}, {(1 << lf) - 1}\ns_lshl_b32 s{d}, s{d}, 2\ns_add_u32 s{d}, s{d}, s50\ns_add_u32 s{d}, s{d}, {hex(base)}")

def set_flag(a, vm, soff, vz, vt):
    vm.wait_all()
    a(f"v_mov_b32 v{vt}, s{sTAG}\ns_mov_b64 exec, 1")
    vm.op(f"buffer_store_dword v{vt}, v{vz}, {S['ws']}, {soff} offen sc1")
    a("s_mov_b64 exec, -1")

def rne_bf16(a, d, s):
    a(f"v_cvt_pk_bf16_f32 v{d}, v{s}, v{s}\nv_lshlrev_b32 v{d}, 16, v{d}")

def tr_addr(a, d, t, perm, rowbytes_log2, swz):
    a(f"v_bfe_u32 v{d}, v0, 2, 2\nv_bfe_u32 v{t}, v0, 5, 1")
    a(f"v_lshl_add_u32 v{d}, v{t}, {2 if perm else 3}, v{d}\nv_lshlrev_b32 v{d}, {rowbytes_log2}, v{d}")
    a(f"v_bfe_u32 v{t}, v0, 4, 1\nv_lshl_add_u32 v{d}, v{t}, 5, v{d}")
    a(f"v_and_b32 v{t}, 3, v0\nv_lshl_add_u32 v{d}, v{t}, 3, v{d}")
    if swz: a(f"v_bfe_u32 v{t}, v0, 3, 1\nv_lshl_add_u32 v{d}, v{t}, 6, v{d}")

def half_tr_addr(a, d, t):
    a(f"v_bfe_u32 v{d}, v0, 2, 1")
    a(f"v_bfe_u32 v{t}, v0, 4, 1\nv_lshl_add_u32 v{d}, v{t}, 1, v{d}")
    a(f"v_bfe_u32 v{t}, v0, 3, 1\nv_lshl_add_u32 v{d}, v{t}, 2, v{d}")
    a(f"v_bfe_u32 v{t}, v0, 5, 1\nv_lshl_add_u32 v{d}, v{t}, 4, v{d}")
    a(f"v_lshlrev_b32 v{d}, 5, v{d}\nv_and_b32 v{t}, 3, v0\nv_lshl_add_u32 v{d}, v{t}, 3, v{d}")

vLANE, vL16, vZ = 1, 2, 3
def poll_addr(a, d, lf=3):
    a(f"v_lshrrev_b32 v{d}, {lf}, v{vLANE}\nv_lshlrev_b32 v{d}, 5, v{d}\nv_and_or_b32 v{d}, v{vLANE}, {(1 << lf) - 1}, v{d}\nv_lshlrev_b32 v{d}, 2, v{d}")

def mod_issue(a, vm, sCol, B=16, T=4):
    a(f"v_bfe_u32 v{T}, v0, 1, 7\nv_and_b32 v{T+1}, 1, v0")
    a(f"v_mul_u32_u24 v{T+2}, 6144, v{T}\nv_lshl_add_u32 v{T+2}, v{T+1}, 4, v{T+2}\nv_lshlrev_b32 v{T+3}, 1, v{T}")
    a(f"s_lshl_b32 s52, s{sCol}, 1")
    for m in range(4):
        vm.op(f"buffer_load_dwordx4 {vr(B+4*m,4)}, v{T+2}, {S['wmod']}, s52 offen", "mod")
        if m < 3: a(f"s_add_u32 s52, s52, {128*6144}")
    for m in range(4): vm.op(f"buffer_load_ushort v{B+16+m}, v{T+3}, {S['c']}, 0 offen offset:{256*m}", "mod")

def mod_partial(a, vm, B=16):
    vm.wait("mod")
    C, F, T, A = B+16, B+24, B+20, B+32
    for m in range(4): a(f"v_lshlrev_b32 v{C+m}, 16, v{C+m}")
    for m in range(4): a(f"v_mul_f32 v{T+m}, {hx(-LOG2E)}, v{C+m}")
    for m in range(4): a(f"v_exp_f32 v{T+m}, v{T+m}")
    for m in range(4): a(f"v_add_f32 v{T+m}, 1.0, v{T+m}")
    for m in range(4): a(f"v_rcp_f32 v{T+m}, v{T+m}")
    for m in range(4): a(f"v_mul_f32 v{C+m}, v{C+m}, v{T+m}")
    for m in range(4): a(f"v_cvt_pk_bf16_f32 v{C+m}, v{C+m}, v{C+m}")
    for m in range(4): a(f"v_lshlrev_b32 v{C+m}, 16, v{C+m}")
    for m in range(4):
        for r in range(4):
            a(f"v_lshlrev_b32 v{F+2*r}, 16, v{B+4*m+r}\nv_and_b32 v{F+2*r+1}, 0xffff0000, v{B+4*m+r}")
        for j in range(8):
            a(f"v_mul_f32 v{A+j}, v{F+j}, v{C}" if m == 0 else f"v_fmac_f32 v{A+j}, v{F+j}, v{C+m}")
    for j in range(4): a(f"v_permlane32_swap_b32 v{A+j}, v{A+4+j}")
    for j in range(4): a(f"v_add_f32 v{A+j}, v{A+j}, v{A+4+j}")
    for j in range(2): a(f"v_permlane16_swap_b32 v{A+j}, v{A+2+j}")
    for j in range(2): a(f"v_add_f32 v{A+j}, v{A+j}, v{A+2+j}")
    for r in (8, 4, 2):
        for j in range(2): a(f"v_add_f32_dpp v{A+j}, v{A+j}, v{A+j} row_ror:{r} row_mask:0xf bank_mask:0xf")
    a("v_bfe_u32 v8, v0, 6, 2\nv_lshlrev_b32 v8, 6, v8\nv_and_b32 v9, 1, v0\nv_lshl_add_u32 v8, v9, 5, v8")
    a("v_bfe_u32 v9, v0, 4, 1\nv_lshl_add_u32 v8, v9, 3, v8\nv_bfe_u32 v9, v0, 5, 1\nv_lshl_add_u32 v8, v9, 4, v8")
    a(f"v_add_u32 v8, {L_SCR}, v8")
    a("s_mov_b32 exec_lo, 0x00030003\ns_mov_b32 exec_hi, 0x00030003")
    a(f"ds_write_b64 v8, v[{A}:{A+1}]")
    a("s_mov_b64 exec, -1")

def mod_final(a, vm, sCol):
    a("s_mov_b64 exec, 0xff")
    a(f"v_lshlrev_b32 v8, 3, v{vLANE}\nv_add_u32 v9, {L_SCR}, v8")
    for w in range(4): a(f"ds_read_b64 {vr(240+2*w,2)}, v9 offset:{64*w}")
    a(f"s_lshr_b32 s52, s{sCol}, 9\ns_cmp_eq_u32 s52, 1\ns_cselect_b32 s53, 1.0, 0\ns_cmp_eq_u32 s52, 4\ns_cselect_b32 s53, 1.0, s53")
    a(f"s_lshl_b32 s52, s{sCol}, 2")
    a("s_waitcnt lgkmcnt(0)")
    for j in range(2): a(f"v_add_f32 v{240+j}, v{240+j}, v{242+j}\nv_add_f32 v{244+j}, v{244+j}, v{246+j}")
    for j in range(2): a(f"v_add_f32 v{240+j}, v{240+j}, v{244+j}")
    a("v_cvt_pk_bf16_f32 v242, v240, v241\nv_lshlrev_b32 v240, 16, v242\nv_and_b32 v241, 0xffff0000, v242")
    a("v_add_f32 v240, s53, v240\nv_add_f32 v241, s53, v241")
    a(f"v_cvt_pk_bf16_f32 v240, v240, v241\nv_mov_b32 v241, s{sTAG}")
    vm.op(f"buffer_store_dwordx2 v[240:241], v8, {S['ws']}, s52 offen sc1")
    a("s_mov_b64 exec, -1")

def gran_poll(a, vm, loads, regs):
    _uid[0] += 1; n = _uid[0]
    a(f"s_mov_b32 s50, {SPIN}\nLgp{n}:")
    for t in loads: a(t)
    a("s_waitcnt vmcnt(0)")
    first = True
    for r in regs:
        for o in (1, 3):
            if first: a(f"v_xor_b32 v15, s{sTAG}, v{r+o}"); first = False
            else: a(f"v_xor_b32 v14, s{sTAG}, v{r+o}\nv_or_b32 v15, v15, v14")
    a("v_cmp_ne_u32 vcc, 0, v15\ns_sub_u32 s50, s50, 1")
    a(f"s_cbranch_vccz Lgpd{n}\ns_sleep {OPT.get('gsleep', 1)}\ns_cmp_lg_u32 s50, 0\ns_cbranch_scc1 Lgp{n}\nLgpd{n}:")
    vm.reset()

def tag_get(a):
    _uid[0] += 1; n = _uid[0]
    a(f"v_mov_b32 v8, {L_SCR+260}\ns_mov_b32 s50, {SPIN*20}\nLtg{n}:\nds_read_b32 v9, v8\ns_sub_u32 s50, s50, 1\ns_waitcnt lgkmcnt(0)\nv_readfirstlane_b32 s{sTAG}, v9")
    a(f"s_cmp_lg_u32 s{sTAG}, 0\ns_cbranch_scc1 Ltgd{n}\ns_cmp_lg_u32 s50, 0\ns_cbranch_scc1 Ltg{n}\nLtgd{n}:")

def tag_now(a, v):
    _uid[0] += 1; n = _uid[0]
    a(f"s_mov_b32 s50, {SPIN}\nLtn{n}:\nv_readfirstlane_b32 s{sTAG}, v{v}\ns_sub_u32 s50, s50, 1")
    a(f"s_cmp_lg_u32 s{sTAG}, 0\ns_cbranch_scc1 Ltnd{n}\ns_cmp_eq_u32 s50, 0\ns_cbranch_scc1 Ltnd{n}")
    a(f"buffer_load_dword v{v}, v{vZ}, {S['dbg']}, 0 offen sc1\ns_waitcnt vmcnt(0)\ns_branch Ltn{n}\nLtnd{n}:")

def read_tag(a):
    a(f"v_mov_b32 v8, {L_SCR+260}\nds_read_b32 v9, v8\ns_waitcnt lgkmcnt(0)\nv_readfirstlane_b32 s{sTAG}, v9")

def mall_touch(a):
    _uid[0] += 1; n = _uid[0]
    a(f"v_lshlrev_b32 v5, 7, v{vLANE}\ns_cmp_eq_u32 s{sW}, 6\ns_cbranch_scc1 Lt6_{n}\ns_cmp_eq_u32 s{sW}, 7\ns_cbranch_scc1 Lt7_{n}")
    a(f"s_mul_i32 s52, s2, {56*128}\ns_cmp_eq_u32 s{sW}, 5\ns_cbranch_scc1 Lt5_{n}")
    a(f"buffer_load_dword v248, v5, {S['w1']}, s52 offen\ns_branch Ltd_{n}")
    a(f"Lt5_{n}:\nbuffer_load_dword v248, v5, {S['w2']}, s52 offen\ns_branch Ltd_{n}")
    a(f"Lt6_{n}:\nv_lshrrev_b32 v6, 5, v{vLANE}\nv_mul_u32_u24 v6, {6144-4096}, v6\nv_add_u32 v5, v5, v6\ns_mul_i32 s52, s2, 12288\ns_add_u32 s52, s52, 2048")
    a(f"buffer_load_dword v248, v5, {S['wmod']}, s52 offen\ns_branch Ltd_{n}")
    a(f"Lt7_{n}:\ns_lshl_b32 s52, s2, 11\ns_mov_b64 exec, 0xffff\nbuffer_load_dword v248, v5, {S['wo']}, s52 offen\ns_mov_b64 exec, -1")
    a(f"Ltd_{n}:")

def stouch(nm, soff, line):
    return f"s_buffer_load_dwordx2 s[0:1], {S[nm]}, s{soff} offset:{128*line+60}"

def mod_join(a, vm, sCol, name, pre=None):
    a(f"v_mov_b32 v8, {L_SCR+256}\nv_mov_b32 v9, 1\ns_waitcnt lgkmcnt(0)\ns_mov_b64 exec, 1\nds_add_rtn_u32 v9, v8, v9\ns_mov_b64 exec, -1\ns_waitcnt lgkmcnt(0)")
    a(f"v_readfirstlane_b32 s52, v9\ns_cmp_lg_u32 s52, 3\ns_cbranch_scc1 {name}")
    if pre: pre()
    mod_final(a, vm, sCol)

NRING = 4
def set_nring(n):
    global NRING
    NRING = n
vSTASH, vMOD, vXR = 180, 208, 208
def attention(a, vm):
    QF, OA, SB, RING = 16, 32, [96, 112], 128
    IDX = RING + 12*NRING
    assert IDX < vSTASH
    vV, vWO, vW1, vW1H = 4, 12, 13, 14
    sHH, sKQ, sK, sV = 54, 55, 56, 57
    a(f"s_and_b32 s{sHH}, s{sW}, 1\ns_lshr_b32 s{sKQ}, s{sW}, 1")
    for i in range(4):
        a(f"s_add_u32 s52, s{sKQ}, {i}\ns_and_b32 s52, s52, 3\ns_lshl_b32 s53, s{sHH}, 2\ns_add_u32 s52, s52, s53\ns_lshl_b32 s52, s52, 10\ns_add_u32 s52, s52, {L_QX}")
        a(f"v_add_u32 v5, s52, v{vL16}\nds_read_b128 {vr(QF+4*i,4)}, v5")
    a(f"v_and_b32 v{vV}, 15, v{vLANE}\nv_lshlrev_b32 v{vV}, 4, v{vV}\nv_bfe_u32 v5, v{vLANE}, 5, 1\nv_lshl_add_u32 v{vV}, v5, 8, v{vV}")
    a(f"s_lshl_b32 s58, s{sC}, 1\ns_add_u32 s58, s58, s{sHH}")
    a(f"s_lshl_b32 s59, s58, 16")
    a(f"s_lshl_b32 s52, s{sKQ}, 14\ns_add_u32 s52, s52, s59\ns_add_u32 s{sK}, s52, {hex(WS_K)}\ns_add_u32 s{sV}, s52, {hex(WS_V)}")
    a("s_mov_b32 s60, 0x0000ffff\ns_mov_b32 s61, 0x0000ffff")
    a(f"s_lshl_b32 s52, s{sKQ}, 8\ns_lshr_b32 s53, s{sC}, 1\ns_lshl_b32 s53, s53, 11\ns_add_u32 s52, s52, s53\ns_add_u32 s62, s52, {hex(WS_FKV)}")
    a(f"v_and_b32 v6, 0x1b, v{vLANE}\nv_cmp_eq_u32 vcc, 16, v6\nv_mov_b32 v6, 0x3f803f80\nv_cndmask_b32 v6, 0, v6, vcc")
    for sl in range(NRING):
        for r in range(8): a(f"v_mov_b32 v{RING+12*sl+4+r}, v6")
    a(f"v_mov_b32 v{IDX}, 0xdddddddd")
    for r in range(64): a(f"v_mov_b32 v{OA+r}, 0")
    a(f"v_lshrrev_b32 v7, 2, v{vLANE}\nv_and_b32 v8, 3, v{vLANE}\nv_lshlrev_b32 v{vWO}, 10, v7\nv_lshl_add_u32 v{vWO}, v8, 4, v{vWO}")
    w1_voffs(a, vW1, vW1H)
    def kp_addr(d):
        return [f"s_lshl_b32 s65, s{sR}, 1", f"s_add_u32 s65, s65, s{sW}", f"s_add_u32 s65, s65, {d}", "s_and_b32 s65, s65, 15", f"s_mul_i32 s65, s65, {32*3584}",
                f"s_mul_i32 s52, s{sC}, 224", "s_add_u32 s65, s65, s52", f"s_mul_i32 s66, s{sW}, 7168", f"s_add_u32 s66, s66, {L_W1+7168*d}"]
    wo = [[f"s_add_u32 m0, s66, {L_WO+1024*j}", f"s_add_u32 s52, s65, {16384*j}", f"buffer_load_dwordx4 v{vWO}, {S['wo']}, s52 offen lds"] for j in range(4)]
    wo[0] = [f"s_add_u32 s65, s{sW}, s{sR}", "s_and_b32 s65, s65, 7", "s_lshl_b32 s65, s65, 16", f"s_lshl_b32 s52, s{sC}, 6", "s_add_u32 s65, s65, s52", f"s_lshl_b32 s66, s{sW}, 12"] + wo[0]
    k1 = w1_kp_dma(65, 66, vW1, vW1H); k1[0] = kp_addr(0) + k1[0]
    k2 = []
    for j, p in enumerate(w1_kp_dma(65, 66, vW1, vW1H)):
        k2.append([p[1], p[2].replace("buffer_load_dwordx4 ", f"buffer_load_dwordx4 {vr(vSTASH+4*j,4)}, ").replace(" lds", "")])
    k2[0] = kp_addr(8)[:7] + k2[0]
    p0 = OPT.get("pre0", 5)
    pre = {4*p0+1: wo[:2], 4*p0+5: wo[2:], 4*p0+9: k1[:3], 4*p0+13: k1[3:], 4*p0+17: k2[:3], 4*p0+21: k2[3:]}
    stamp(a, 4)
    a(f"v_and_b32 v5, 7, v{vLANE}\nv_lshlrev_b32 v5, 2, v5\nv_bfe_u32 v6, v{vLANE}, 3, 1\nv_lshl_add_u32 v5, v6, 7, v5\nv_bfe_u32 v6, v{vLANE}, 4, 1\nv_lshl_add_u32 v5, v6, 10, v5")
    a(f"s_and_b32 s65, s{sTB}, 3\ns_lshl_b32 s65, s65, 12")
    poll(a, vm, "0xffffffff", 5, "s62", 6, OPT.get("fk", 0))
    stamp(a, 5)
    def ld(kt):
        sl = kt % NRING
        fl = "" if OPT.get("kvplain") else " sc1"
        if kt % 4 == 0: a(f"s_add_u32 s63, s{sK}, s62\ns_add_u32 s64, s{sV}, s62\ns_add_u32 s62, s62, 4096\ns_and_b32 s62, s62, 0x3fff")
        o = 1024*(kt % 4)
        vm.op(f"buffer_load_dwordx4 {vr(RING+12*sl,4)}, v{vL16}, {S['ws']}, s63 offen offset:{o}{fl}", ("kv", kt))
        a("s_mov_b64 exec, s[60:61]")
        vm.op(f"buffer_load_dwordx4 {vr(RING+12*sl+4,4)}, v{vV}, {S['ws']}, s64 offen offset:{o}{fl}", ("kv", kt))
        vm.op(f"buffer_load_dwordx4 {vr(RING+12*sl+8,4)}, v{vV}, {S['ws']}, s64 offen offset:{o+512}{fl}", ("kv", kt))
        a("s_mov_b64 exec, -1")
    def QK(dst, sl, q): return f"v_mfma_f32_32x32x16_bf16 {vr(dst,16)}, {vr(RING+12*sl,4)}, {vr(QF+4*q,4)}, 0"
    def SM(q, sl, half, s): return f"v_smfmac_f32_32x32x32_bf16 {vr(OA+16*q,16)}, {vr(RING+12*sl+4+4*half,4)}, {vr(s+8*half,8)}, v{IDX}"
    a("s_mov_b32 s62, s65\ns_setprio 1")
    ld(0)
    a(f"s_and_b32 s53, s{sW}, 3\ns_lshl_b32 s52, s2, 2\ns_add_u32 s53, s53, s52\ns_mul_i32 s53, s53, {9*128}")
    ST = [stouch("w1", 53, n) for n in range(9)] + [stouch("wmod", 53, n) for n in range(16)] + [stouch("w2", 53, n) for n in range(14)]
    ld(1)
    a("s_waitcnt lgkmcnt(0)")
    vm.wait(("kv", 0))
    a(QK(SB[0], 0, 0))
    for kt in range(2, NRING-1): ld(kt)
    a("s_nop 3")
    for t in range(64):
        kt, q = t // 4, t % 4
        cur, prv = SB[t & 1], SB[(t + 1) & 1]
        E = [f"v_exp_f32 v{cur+r}, v{cur+r}" for r in range(16)]
        if t == OPT.get("prio", 52):
            a(f"s_cmp_ge_u32 s{sW}, 4\ns_cbranch_scc1 Latt_prio\ns_setprio 0\nLatt_prio:")
        a(E[0]); a(E[1])
        if t > 0: a(SM((t-1) % 4, ((t-1)//4) % NRING, 1, prv))
        if q == 0 and kt + NRING - 1 < 16: ld(kt + NRING - 1)
        if t in pre and not OPT.get("nopre"):
            for p in pre[t]:
                for x in p[:-1]: a(x)
                vm.op(p[-1], "pre")
        if t == 57:
            a(f"s_cmp_ge_u32 s{sW}, 4\ns_cbranch_scc1 Latt_nox")
            a(f"v_bfe_u32 v5, v{vLANE}, 5, 1\nv_and_b32 v6, 31, v{vLANE}\nv_lshlrev_b32 v6, 10, v6\nv_lshl_add_u32 v6, v5, 3, v6")
            a(f"s_lshl_b32 s52, s67, 15\ns_lshl_b32 s50, s{sC}, 6\ns_add_u32 s52, s52, s50")
            for qq in range(4): a(f"buffer_load_dwordx2 {vr(vXR+2*qq,2)}, v6, {S['x']}, s52 offen offset:{16*qq}")
            a("Latt_nox:")
        if t == 50:
            a(f"s_cmp_lt_u32 s{sW}, 4\ns_cbranch_scc1 Latt_nomod\ns_sub_u32 s52, s{sI}, 8\ns_cmp_ge_u32 s52, 16\ns_cbranch_scc1 Latt_nomod")
            a(f"s_lshl_b32 s66, s{sX}, 2\ns_lshr_b32 s52, s52, 2\ns_add_u32 s66, s66, s52\ns_lshl_b32 s66, s66, 6")
            a(f"s_and_b32 s52, s{sI}, 3\ns_lshl_b32 s52, s52, 4\ns_add_u32 s66, s66, s52\ns_add_u32 s66, s66, 1024")
            mod_issue(a, Track(a, "vmcnt", 63), 66, vMOD, T=244)
            a("Latt_nomod:")
        if t == OPT.get("w2t", 62) and not OPT.get("nopre"):
            a(f"s_cmp_eq_u32 s{sW}, 7\ns_cbranch_scc1 Latt_nopf\ns_mul_i32 s52, s{sI}, 7\ns_add_u32 s52, s52, s{sW}\ns_lshl_b32 s52, s52, 13\nv_lshlrev_b32 v5, 7, v{vLANE}")
            a(f"buffer_load_dword v248, v5, {S['w2']}, s52 offen")
            a("Latt_nopf:")
        if OPT.get("st", 7) & 4 and t % 3 != 2 and t - t//3 < 39:
            j = t - t//3
            if j == 9: a(f"s_lshl_b32 s53, s2, 1\ns_bfe_u32 s52, s{sW}, 0x10001\ns_add_u32 s53, s53, s52\ns_mul_i32 s53, s53, 6144\ns_lshl_b32 s52, s{sHH}, 11\ns_add_u32 s53, s53, s52\ns_add_u32 s53, s53, 2048")
            if j == 25: a(f"s_and_b32 s53, s{sW}, 3\ns_lshl_b32 s52, s2, 2\ns_add_u32 s53, s53, s52\ns_mul_i32 s53, s53, {14*128}")
            a(ST[j])
        a(E[2]); a(E[3])
        if t < 63:
            if q == 3: vm.wait(("kv", kt + 1))
            a(QK(prv, ((t+1)//4) % NRING, (t+1) % 4))
        for r in range(4, 10): a(E[r])
        a(SM(q, kt % NRING, 0, cur))
        for r in range(10, 16): a(E[r])
        if t % 4 == 3 and t < 60: stamp(a, t//4, 5)
    a(f"s_mul_i32 s63, s{sHH}, 12\nv_lshlrev_b32 v5, 2, v{vLANE}")
    a(SM(3, 15 % NRING, 1, SB[1]))
    a("s_setprio 0")
    stamp(a, 6); stamp(a, 0, 8)
    for i in range(1, 4):
        a(f"s_add_u32 s52, s{sKQ}, {i}\ns_and_b32 s52, s52, 3\ns_mul_i32 s52, s52, 3\ns_add_u32 s52, s52, s63\ns_add_u32 s52, s52, {i-1}\ns_mul_i32 s52, s52, 2304\ns_add_u32 s52, s52, {L_RED}")
        a(f"v_add_u32 v6, s52, v{vL16}\nv_add_u32 v7, s52, v5")
        a(f"ds_write_b128 v6, {vr(OA+16*i,4)}\nds_write_b128 v6, {vr(OA+16*i+4,4)} offset:1024\nds_write_b32 v7, v{OA+16*i+8} offset:2048")
    a(f"s_mul_i32 s52, s{sKQ}, 3\ns_add_u32 s52, s52, s63\ns_mul_i32 s52, s52, 2304\ns_add_u32 s52, s52, {L_RED}")
    a(f"v_add_u32 v6, s52, v{vL16}\nv_add_u32 v7, s52, v5")
    a(f"s_lshl_b32 s52, s{sTB}, 2\ns_add_u32 s52, s52, s{sKQ}\ns_lshl_b32 s52, s52, 5\ns_add_u32 s52, s52, s58")
    a(f"s_lshl_b32 s63, s52, 10\ns_add_u32 s63, s63, {hex(WS_O)}")
    flag_off(a, 64, 52, WS_FO, LF())
    stamp(a, 1, 8)
    vm.wait_all()
    a("s_waitcnt lgkmcnt(0)")
    stamp(a, 2, 8)
    a("s_barrier")
    stamp(a, 3, 8)
    R = 96
    for i in range(3):
        a(f"ds_read_b128 {vr(R+12*i,4)}, v6 offset:{2304*i}\nds_read_b128 {vr(R+12*i+4,4)}, v6 offset:{2304*i+1024}\nds_read_b32 v{R+12*i+8}, v7 offset:{2304*i+2048}")
    a(f"s_mov_b32 s52, {hx(2.0**-60)}\ns_mov_b32 s53, {hx(2.0**60)}\ns_movk_i32 s65, 0x207")
    for i in range(3):
        a(f"s_waitcnt lgkmcnt({6-3*i})")
        for r in range(9): a(f"v_add_f32 v{OA+r}, v{OA+r}, v{R+12*i+r}")
    a(f"v_add_f32 v8, v{OA}, v{OA+1}\nv_add_f32 v9, v{OA+2}, v{OA+3}\nv_add_f32 v10, v{OA+4}, v{OA+5}\nv_add_f32 v11, v{OA+6}, v{OA+7}")
    a("v_add_f32 v8, v8, v9\nv_add_f32 v10, v10, v11\nv_add_f32 v8, v8, v10")
    a(f"v_cmp_nge_f32 vcc, v{OA+8}, s52\nv_cmp_nle_f32 s[54:55], v{OA+8}, s53\nv_cmp_class_f32 s[56:57], v8, s65")
    a(f"v_rcp_f32 v8, v{OA+8}")
    a("s_or_b64 vcc, vcc, s[54:55]\ns_or_b64 vcc, vcc, s[56:57]")
    a("s_cbranch_vccnz Lslow")
    a("Lnorm:")
    for r in range(8): a(f"v_mul_f32 v{OA+r}, v{OA+r}, v8")
    for r in range(4): a(f"v_cvt_pk_bf16_f32 v{8+r}, v{OA+2*r}, v{OA+2*r+1}")
    vm.op(f"buffer_store_dwordx4 v[8:11], v{vL16}, {S['ws']}, s63 offen sc1")
    stamp(a, 4, 8)
    a("s_barrier")
    stamp(a, 5, 8)
    a(f"s_mul_i32 s52, s{sW}, 7168\ns_add_u32 s52, s52, {L_W1+8*7168}\nv_add_u32 v5, s52, v{vL16}")
    for j in range(7): a(f"ds_write_b128 v5, {vr(vSTASH+4*j,4)} offset:{1024*j}")
    def slow(b):
        tv = Track(b, "vmcnt", 63)
        b("Lslow:")
        poll_addr(b, 5)
        b(f"s_lshr_b32 s52, s{sC}, 1\ns_lshl_b32 s52, s52, 11\ns_add_u32 s62, s52, {hex(WS_FKV)}")
        poll(b, tv, "-1", 5, "s62", 6)
        b("s_add_u32 s62, s62, 1024")
        poll(b, tv, "-1", 5, "s62", 6)
        b(f"s_waitcnt vmcnt(0)\ns_add_u32 s{sK}, s59, {hex(WS_K)}\ns_mov_b32 s51, 64\nv_mov_b32 v8, 0xff800000")
        b("Ls1:")
        b(f"buffer_load_dwordx4 {vr(RING,4)}, v{vL16}, {S['ws']}, s{sK} offen sc1\ns_add_u32 s{sK}, s{sK}, 1024\ns_waitcnt vmcnt(0)")
        b(QK(SB[0], 0, 0))
        for r in range(0, 16, 2): b(f"v_max3_f32 v8, v{SB[0]+r}, v{SB[0]+r+1}, v8")
        b("s_sub_u32 s51, s51, 1\ns_cmp_lg_u32 s51, 0\ns_cbranch_scc1 Ls1")
        b("v_mov_b32 v9, v8\nv_permlane32_swap_b32 v8, v9\nv_max_f32 v8, v8, v9")
        for r in range(16): b(f"v_sub_f32 v{SB[1]+r}, 0, v8")
        for r in range(16): b(f"v_mov_b32 v{OA+r}, 0")
        b(f"s_add_u32 s{sK}, s59, {hex(WS_K)}\ns_add_u32 s{sV}, s59, {hex(WS_V)}\ns_mov_b32 s51, 64")
        b("Ls2:")
        b(f"buffer_load_dwordx4 {vr(RING,4)}, v{vL16}, {S['ws']}, s{sK} offen sc1\ns_mov_b64 exec, s[60:61]")
        b(f"buffer_load_dwordx4 {vr(RING+4,4)}, v{vV}, {S['ws']}, s{sV} offen sc1\nbuffer_load_dwordx4 {vr(RING+8,4)}, v{vV}, {S['ws']}, s{sV} offen offset:512 sc1")
        b(f"s_mov_b64 exec, -1\ns_add_u32 s{sK}, s{sK}, 1024\ns_add_u32 s{sV}, s{sV}, 1024\ns_waitcnt vmcnt(0)")
        b(f"v_mfma_f32_32x32x16_bf16 {vr(SB[0],16)}, {vr(RING,4)}, {vr(QF,4)}, {vr(SB[1],16)}")
        for r in range(16): b(f"v_exp_f32 v{SB[0]+r}, v{SB[0]+r}")
        b(SM(0, 0, 0, SB[0])); b(SM(0, 0, 1, SB[0]))
        b("s_sub_u32 s51, s51, 1\ns_cmp_lg_u32 s51, 0\ns_cbranch_scc1 Ls2")
        b(f"s_nop 7\ns_nop 7\nv_rcp_f32 v8, v{OA+8}\ns_nop 0\ns_branch Lnorm")
    return slow

def w1_voffs(a, vF, vH):
    a(f"v_lshrrev_b32 v7, 2, v{vLANE}\nv_and_b32 v8, 3, v{vLANE}\nv_mul_u32_u24 v{vF}, 3584, v7\nv_lshl_add_u32 v{vF}, v8, 4, v{vF}")
    a(f"v_lshrrev_b32 v7, 1, v{vLANE}\nv_and_b32 v8, 0x13, v7\nv_bfe_u32 v9, v7, 2, 1\nv_lshl_add_u32 v8, v9, 3, v8\nv_bfe_u32 v9, v7, 3, 1\nv_lshl_add_u32 v8, v9, 2, v8")
    a(f"v_mul_u32_u24 v{vH}, 3584, v8\nv_and_b32 v8, 1, v{vLANE}\nv_lshl_add_u32 v{vH}, v8, 4, v{vH}")

def w1_kp_dma(sOff, sLds, vF, vH, dOff=0, dLds=0):
    L = []
    for e in range(2):
        for nt in range(3):
            L.append([f"s_add_u32 m0, s{sLds}, {dLds+3072*e+1024*nt}", f"s_add_u32 s52, s{sOff}, {dOff+16*3584*e+64*nt}",
                      f"buffer_load_dwordx4 v{vF}, {S['w1']}, s52 offen lds"])
    L.append([f"s_add_u32 m0, s{sLds}, {dLds+6144}", f"s_add_u32 s52, s{sOff}, {dOff+192}", f"buffer_load_dwordx4 v{vH}, {S['w1']}, s52 offen lds"])
    return L

def w1_reads(kp, e, dst, vF):
    base = 7168*kp + 3072*e
    return [f"ds_read_b64_tr_b16 {vr(dst+4*nt+2*st,2)}, v{vF[base >> 15]} offset:{(base & 0x7fff)+1024*nt+512*st}" for nt in range(3) for st in range(2)]
def w1_half_reads(kp, dst, vH):
    base = 7168*kp + 6144
    return [f"ds_read_b64_tr_b16 {vr(dst+2*st,2)}, v{vH[base >> 15]} offset:{(base & 0x7fff)+256*st}" for st in range(2)]

def rot_loads(a, vm, base_s, dst, tag, div=1):
    for ks in range(32):
        if ks % 4 == 0: a(f"s_add_u32 s53, s{sR}, {ks//4}\ns_and_b32 s53, s53, 7\ns_lshl_b32 s53, s53, 12\ns_add_u32 s53, s53, s{base_s}")
        yield ks, (f"buffer_load_dwordx4 {vr(dst+4*ks,4)}, v{vL16}, {S['ws']}, s53 offen offset:{1024*(ks%4)} sc1", (tag, ks//div))

def lds_init_b0(a):
    late_srds(a)
    a(f"v_mov_b32 v8, {L_SCR+256}\nv_mov_b32 v10, 0\nv_mov_b32 v11, 0\nds_write_b64 v8, v[10:11]\ns_waitcnt lgkmcnt(0)\ns_barrier")

def tag_to_lds_b1(a):
    a(f"v_mov_b32 v8, s{sTAG}\nv_mov_b32 v9, {L_SCR+260}\nds_write_b32 v9, v8\ns_waitcnt lgkmcnt(0)")
    stamp(a, 0)
    if not OPT.get("eb1", 0): a("s_barrier")
    a("s_branch La_p1")

def p0_ln(a):
    vm = Track(a, "vmcnt", 63)
    a(f"s_and_b32 s52, s{sX}, 1\ns_lshl_b32 s52, s52, 4\ns_add_u32 s52, s52, s{sI}\ns_sub_u32 s52, s52, 8\ns_lshl_b32 s52, s52, 2\ns_add_u32 s52, s52, s{sW}")
    a(f"s_lshr_b32 s53, s{sX}, 1\ns_lshl_b32 s53, s53, 7\ns_add_u32 s56, s52, s53\ns_lshl_b32 s53, s56, 12")
    a(f"v_and_b32 v4, 3, v{vLANE}\nv_lshrrev_b32 v5, 2, v{vLANE}\nv_lshlrev_b32 v6, 10, v4\nv_lshl_add_u32 v6, v5, 4, v6")
    a("s_waitcnt lgkmcnt(0)")
    for m in range(4): vm.op(f"buffer_load_dwordx4 {vr(16+4*m,4)}, v6, {S['x']}, s53 offen offset:{256*m}")
    lds_init_b0(a)
    a("v_lshrrev_b32 v7, 1, v5\nv_lshlrev_b32 v7, 10, v7\nv_and_b32 v8, 1, v5\nv_lshl_add_u32 v7, v8, 9, v7\nv_lshl_add_u32 v7, v4, 4, v7")
    a(f"s_lshr_b32 s53, s56, 3\ns_lshl_b32 s53, s53, 15\ns_and_b32 s54, s56, 7\ns_lshl_b32 s54, s54, 6\ns_add_u32 s53, s53, s54\ns_add_u32 s53, s53, {hex(WS_XN)}")
    flag_off(a, 55, 56, WS_FXN)
    stamp(a, 0, 7)
    vm.wait_all()
    stamp(a, 1, 7)
    vm.op(f"buffer_load_dword v15, v{vZ}, {S['dbg']}, 0 offen sc1")
    F = 32
    for r in range(16): a(f"v_lshlrev_b32 v{F+2*r}, 16, v{16+r}\nv_and_b32 v{F+2*r+1}, 0xffff0000, v{16+r}")
    def red(v, t):
        for r in (4, 8): a(f"v_add_f32_dpp v{v}, v{v}, v{v} row_ror:{r} row_mask:0xf bank_mask:0xf")
        a(f"v_mov_b32 v{t}, v{v}\nv_permlane16_swap_b32 v{v}, v{t}\nv_add_f32 v{v}, v{v}, v{t}")
        a(f"v_mov_b32 v{t}, v{v}\nv_permlane32_swap_b32 v{v}, v{t}\nv_add_f32 v{v}, v{v}, v{t}")
    a(f"v_pk_add_f32 v[64:65], {vr(F,2)}, {vr(F+2,2)}\nv_pk_add_f32 v[66:67], {vr(F+4,2)}, {vr(F+6,2)}")
    for r in range(8, 32, 4): a(f"v_pk_add_f32 v[64:65], v[64:65], {vr(F+r,2)}\nv_pk_add_f32 v[66:67], v[66:67], {vr(F+r+2,2)}")
    a("v_pk_add_f32 v[64:65], v[64:65], v[66:67]\nv_add_f32 v64, v64, v65")
    red(64, 65)
    a(f"v_mul_f32 v64, {hx(-1/512)}, v64")
    for r in range(0, 32, 2): a(f"v_pk_add_f32 {vr(F+r,2)}, {vr(F+r,2)}, v[64:65] op_sel_hi:[1,0]")
    a(f"v_pk_mul_f32 v[66:67], {vr(F,2)}, {vr(F,2)}\nv_pk_mul_f32 v[68:69], {vr(F+2,2)}, {vr(F+2,2)}")
    for r in range(4, 32, 4): a(f"v_pk_fma_f32 v[66:67], {vr(F+r,2)}, {vr(F+r,2)}, v[66:67]\nv_pk_fma_f32 v[68:69], {vr(F+r+2,2)}, {vr(F+r+2,2)}, v[68:69]")
    a("v_pk_add_f32 v[66:67], v[66:67], v[68:69]\nv_add_f32 v66, v66, v67")
    red(66, 67)
    a(f"v_mov_b32 v67, {hx(1e-5)}\nv_fmac_f32 v67, {hx(1/512)}, v66\nv_rsq_f32 v66, v67")
    for r in range(0, 32, 2): a(f"v_pk_mul_f32 {vr(F+r,2)}, {vr(F+r,2)}, v[66:67] op_sel_hi:[1,0]")
    for m in range(4):
        for r in range(4): a(f"v_cvt_pk_bf16_f32 v{16+4*m+r}, v{F+8*m+2*r}, v{F+8*m+2*r+1}")
        vm.op(f"buffer_store_dwordx4 {vr(16+4*m,4)}, v7, {S['ws']}, s53 offen sc1")
        if m < 3: a("s_add_u32 s53, s53, 8192")
    stamp(a, 2, 7)
    if OPT.get("eb1", 0): a("s_barrier")
    vm.wait_all()
    stamp(a, 3, 7)
    tag_now(a, 15)
    set_flag(a, vm, "s55", vZ, 8)
    stamp(a, 4, 7)
    tag_to_lds_b1(a)

def p0_mod(a):
    vm = Track(a, "vmcnt", 63)
    sCol = 51
    a(f"s_lshl_b32 s{sCol}, s{sX}, 1\ns_lshr_b32 s52, s{sI}, 2\ns_add_u32 s{sCol}, s{sCol}, s52\ns_lshl_b32 s{sCol}, s{sCol}, 6")
    a(f"s_and_b32 s52, s{sI}, 3\ns_lshl_b32 s52, s52, 4\ns_add_u32 s{sCol}, s{sCol}, s52")
    a("s_waitcnt lgkmcnt(0)")
    mod_issue(a, vm, sCol)
    lds_init_b0(a)
    vm.wait("mod")
    stamp(a, 1, 7)
    a(f"buffer_load_dword v15, v{vZ}, {S['dbg']}, 0 offen sc1")
    if OPT.get("eb1", 0): a("s_barrier")
    mod_partial(a, vm)
    a("s_waitcnt vmcnt(0)")
    tag_now(a, 15)
    mod_join(a, vm, sCol, "La_joined")
    a("La_joined:")
    stamp(a, 4, 7)
    tag_to_lds_b1(a)

def p0_warm(a):
    a(f"s_sub_u32 s52, s{sI}, 24\ns_lshl_b32 s52, s52, 1\ns_add_u32 s52, s52, s{sW}\ns_lshl_b32 s52, s52, 5")
    a(f"v_lshrrev_b32 v4, 1, v{vLANE}\nv_add_u32 v4, s52, v4\nv_mul_u32_u24 v4, 6144, v4\nv_and_b32 v5, 1, v{vLANE}\nv_lshl_add_u32 v4, v5, 7, v4\ns_lshl_b32 s52, s{sX}, 8")
    a(f"s_waitcnt lgkmcnt(0)\ns_cmp_ge_u32 s{sW}, 2\ns_cbranch_scc1 La_nowm")
    a(f"buffer_load_dword v6, v4, {S['wmod']}, s52 offen")
    a("La_nowm:")
    lds_init_b0(a)
    a("s_waitcnt vmcnt(0)")
    stamp(a, 1, 7)
    a(f"buffer_load_dword v15, v{vZ}, {S['dbg']}, 0 offen sc1")
    if OPT.get("eb1", 0): a("s_barrier")
    a("s_waitcnt vmcnt(0)")
    tag_now(a, 15)
    tag_to_lds_b1(a)

def p0_helper(a):
    vm = Track(a, "vmcnt", 63)
    sH = 67
    a(f"v_mov_b32 v32, 0\nv_mov_b32 v33, 0\nv_mov_b32 v34, 0\nv_mov_b32 v35, 0\ns_lshl_b32 s52, s{sH}, 12\ns_add_u32 s52, s52, {L_DG}\nv_add_u32 v9, s52, v{vL16}")
    for j in range(4): a(f"ds_write_b128 v9, v[32:35] offset:{1024*j}")
    a(f"s_lshl_b32 s52, s2, 2\ns_add_u32 s52, s52, s{sH}\ns_and_b32 s53, s52, 1\ns_lshr_b32 s52, s52, 1\ns_mul_i32 s52, s52, 3072")
    a("s_lshl_b32 s57, s53, 9\ns_add_u32 s57, s57, s52\ns_lshl_b32 s53, s53, 10\ns_add_u32 s52, s52, s53\ns_add_u32 s52, s52, 1024")
    a("s_waitcnt lgkmcnt(0)")
    a(f"s_lshl_b32 s58, s2, 3\ns_add_u32 s58, s58, s{sW}\ns_cmp_lg_u32 s58, {64*8+4}\ns_cbranch_scc1 Le_notag")
    a(f"s_or_b32 s54, s54, 1\nv_mov_b32 v7, s54\ns_mov_b64 exec, 1\nbuffer_store_dword v7, v{vZ}, {S['dbg']}, 0 offen sc1\ns_mov_b64 exec, -1")
    a("Le_notag:")
    for n in range(4): a(stouch("wqkv", 52, n))
    late_srds(a)
    a("s_barrier")
    for n in range(4, 8): a(stouch("wqkv", 52, n))
    if not OPT.get("eb1", 0):
        for n in range(4): a(stouch("wqkv", 57, n))
    a("s_mov_b32 s59, s57")
    a(f"v_lshrrev_b32 v4, 3, v{vLANE}\nv_mul_u32_u24 v4, 3072, v4\nv_bfe_u32 v5, v{vLANE}, 4, 1\nv_lshlrev_b32 v5, 2, v5\nv_xor_b32 v5, v5, v{vLANE}\nv_and_b32 v5, 7, v5\nv_lshl_add_u32 v4, v5, 4, v4")
    a(f"s_and_b32 s56, s{sC}, 1\ns_add_u32 s56, s56, 1\ns_lshl_b32 s56, s56, 10\ns_lshr_b32 s52, s{sC}, 1\ns_lshl_b32 s52, s52, 7\ns_add_u32 s56, s56, s52")
    a(f"s_and_b32 s55, s{sTB}, 3\ns_lshl_b32 s55, s55, 3\ns_add_u32 s55, s55, s{sH}\ns_lshl_b32 s57, s{sR}, 2\ns_mov_b32 s51, 8")
    stamp(a, 0, 7)
    a("s_barrier")
    stamp(a, 1, 7)
    a("Lh_wl:")
    a(f"s_and_b32 s55, s55, 31\ns_lshl_b32 s53, s55, 11\ns_add_u32 s52, s55, s57\ns_and_b32 s52, s52, 31\ns_mul_i32 s52, s52, {16*3072}\ns_mov_b32 m0, s53\ns_add_u32 s52, s52, s56")
    a(f"buffer_load_dwordx4 v4, {S['wqkv']}, s52 offen lds\ns_add_u32 m0, s53, 1024\ns_add_u32 s52, s52, {8*3072}\nbuffer_load_dwordx4 v4, {S['wqkv']}, s52 offen lds")
    a(f"s_add_u32 s55, s55, 4\ns_sub_u32 s51, s51, 1\ns_cmp_lg_u32 s51, 0\ns_cbranch_scc1 Lh_wl")
    if OPT.get("eb1", 0):
        for n in range(4): a(stouch("wqkv", 59, n))
        tag_get(a)
    else: read_tag(a)
    stamp(a, 0); stamp(a, 2, 7)
    a(f"s_cmp_ge_u32 s{sH}, 2\ns_cbranch_scc1 Lh_b2")
    a(f"s_lshl_b32 s52, s{sH}, 11")
    a(f"v_lshrrev_b32 v5, 3, v{vLANE}\ns_lshl_b32 s53, s{sR}, 1\nv_subrev_u32 v5, s53, v5\nv_and_b32 v5, 15, v5\nv_xor_b32 v6, 8, v5")
    gran_poll(a, vm, [f"buffer_load_dwordx4 v[16:19], v{vL16}, {S['ws']}, s52 offen sc1", f"buffer_load_dwordx4 v[20:23], v{vL16}, {S['ws']}, s52 offen offset:1024 sc1"], [16, 20])
    stamp(a, 1)
    a(f"s_cmp_lg_u32 s{sH}, 0\ns_cbranch_scc1 Lh_g1")
    for j, r in enumerate((16, 18, 20, 22)): a(f"v_lshlrev_b32 v{24+2*j}, 16, v{r}\nv_and_b32 v{25+2*j}, 0xffff0000, v{r}")
    a(f"v_and_b32 v7, 1, v{vLANE}\nv_lshlrev_b32 v7, 6, v7\nv_bfe_u32 v9, v{vLANE}, 1, 2\nv_lshl_add_u32 v7, v9, 4, v7\nv_add_u32 v7, {L_SA}, v7")
    a("v_lshl_add_u32 v5, v5, 7, v7\nv_lshl_add_u32 v6, v6, 7, v7")
    a("ds_write_b128 v5, v[24:27]\nds_write_b128 v6, v[28:31]")
    a("s_branch Lh_b2")
    a("Lh_g1:")
    a(f"v_and_b32 v7, 7, v{vLANE}\nv_lshlrev_b32 v7, 6, v7\nv_bfe_u32 v9, v{vLANE}, 2, 1\nv_lshl_add_u32 v7, v9, 9, v7\nv_and_b32 v9, 3, v{vLANE}\nv_lshl_add_u32 v7, v9, 2, v7\nv_add_u32 v7, {L_DG}, v7")
    a("v_lshl_add_u32 v5, v5, 10, v7\nv_lshl_add_u32 v6, v6, 10, v7")
    for j in range(2):
        for e in range(4):
            a(f"ds_write_b16{'_d16_hi' if e & 1 else ''} v{5+j}, v{16+4*j+2*(e>>1)} offset:{16*e + 2*(e & 1)}")
    a("s_branch Lh_b2")

def late_srds(a):
    for nm in ("wo", "w1", "w2", "out"): a(f"s_mov_b32 s{SRD[nm]+2}, {hex(SZ[nm])}\ns_mov_b32 s{SRD[nm]+3}, 0x20000")

def active(a):
    vm = Track(a, "vmcnt", 63); lg = Track(a, "lgkmcnt", 15)
    sT32 = 67
    a("La_p1:")
    ACC = [16, 32, 48]; WF = [64, 72]; DH = [88, 104]; DG = [120, 124]; AF = 128
    a(f"s_lshl_b32 s{sT32}, s{sTB}, 2\ns_add_u32 s{sT32}, s{sT32}, s{sW}")
    a(f"v_lshlrev_b32 v5, 2, v{vLANE}\ns_lshl_b32 s52, s{sT32}, 7\ns_add_u32 s52, s52, {hex(WS_FXN)}")
    tr_addr(a, 10, 12, True, 7, True)
    a("v_xor_b32 v12, 64, v10")
    a(f"v_bfe_u32 v11, v0, 5, 1\nv_lshlrev_b32 v11, 6, v11\nv_add_u32 v11, {L_SA}, v11\nv_add_u32 v13, {L_DG}, v{vL16}")
    a(f"v_and_b32 v14, 2, v0\nv_cmp_eq_u32 vcc, 0, v14\nv_mov_b32 v14, 0xeeeeeeee\nv_mov_b32 v15, 0x44444444\nv_cndmask_b32 v14, v14, v15, vcc")
    for r in range(48): a(f"v_mov_b32 v{16+r}, 0")
    poll(a, vm, "0xff", 5, "s52", 6, OPT.get("fn", 0))
    stamp(a, 1)
    a(f"s_lshl_b32 s52, s{sT32}, 15\ns_add_u32 s52, s52, {hex(WS_XN)}")
    a(f"s_lshr_b32 s54, s{sC}, 1\ns_lshl_b32 s54, s54, 18\ns_lshl_b32 s55, s{sT32}, 10\ns_add_u32 s54, s54, s55")
    a(f"s_bitcmp1_b32 s{sC}, 0\ns_cbranch_scc1 La_vwg")
    def rdS(b):
        L = [(f"ds_read_b128 {vr(DH[b&1]+4*q,4)}, v11 offset:{128*b+16*q}", ("s", b)) for q in range(4)]
        return L + [(f"ds_read_b128 {vr(DG[b&1],4)}, v13 offset:{1024*b}", ("s", b))]
    def rdW(ks):
        return [(f"ds_read_b64_tr_b16 {vr(WF[ks&1]+4*g+2*st,2)}, v{(10, 12)[g]} offset:{2048*ks+1024*st}", ("w", ks)) for g in range(2) for st in range(2)]
    def SMF(b): return f"v_smfmac_f32_32x32x32_bf16 {vr(DH[b&1],16)}, {vr(DG[b&1],4)}, {vr(AF+8*b,8)}, v14"
    def CVT(b): return [f"v_cvt_pk_bf16_f32 v{AF+8*b+r}, v{DH[b&1]+2*r}, v{DH[b&1]+2*r+1}" for r in range(8)]
    for isV in (0, 1):
        if isV: a("La_vwg:")
        vm.reset(); lg.reset()
        XL = rot_loads(a, vm, 52, AF, "xn", 2)
        def xn_issue(n):
            for _ in range(n):
                r = next(XL, None)
                if r: vm.op(*r[1])
        def MM(ks):
            f = AF + 4*ks; w = WF[ks & 1]
            if isV: return [f"v_mfma_f32_32x32x16_bf16 {vr(ACC[1+g],16)}, {vr(f,4)}, {vr(w+4*g,4)}, {vr(ACC[1+g],16)}" for g in range(2)]
            return [f"v_mfma_f32_32x32x16_bf16 {vr(ACC[1+g],16)}, {vr(w+4*g,4)}, {vr(f,4)}, {vr(ACC[1+g],16)}" for g in range(2)]
        xn_issue(OPT.get("xn0", 8))
        a("s_barrier")
        xn_issue(10 - OPT.get("xn0", 8))
        for x in rdS(0) + rdS(1): lg.op(*x)
        lg.wait(("s", 0)); vm.wait(("xn", 0))
        a(SMF(0))
        for x in rdW(0): lg.op(*x)
        xn_issue(2)
        a("s_nop 5")
        for x in CVT(0): a(x)
        stamp(a, 2)
        for b in range(16):
            nx = b + 1 < 16
            if nx:
                lg.wait(("s", b+1)); vm.wait(("xn", b+1))
                a(SMF(b+1))
            for x in rdW(2*b+1): lg.op(*x)
            lg.wait(("w", 2*b))
            M = MM(2*b); Rs = rdS(b+2) if b + 2 < 16 else []
            a(M[0]); [lg.op(*x) for x in Rs]
            a(M[1]); xn_issue(3)
            if b == OPT.get("b2b", 6): a("s_barrier")
            lg.wait(("w", 2*b+1))
            M = MM(2*b+1); C = CVT(b+1) if nx else []; Rw = rdW(2*b+2) if nx else []
            a(M[0]); [lg.op(*x) for x in Rw]; [a(x) for x in C[:3]]
            a(M[1]); [a(x) for x in C[3:]]
            if b < 15: stamp(a, b, 6)
        if not isV:
            a(f"s_add_u32 s54, s54, {hex(WS_K)}")
            a(f"v_and_b32 v5, 0x33, v{vLANE}\nv_bfe_u32 v6, v{vLANE}, 2, 1\nv_lshl_add_u32 v5, v6, 3, v5\nv_bfe_u32 v6, v{vLANE}, 3, 1\nv_lshl_add_u32 v5, v6, 2, v5\nv_lshlrev_b32 v5, 4, v5")
            for h in range(4):
                for r in range(4): a(f"v_cvt_pk_bf16_f32 v{88+4*h+r}, v{ACC[1]+8*h+2*r}, v{ACC[1]+8*h+2*r+1}")
                vm.op(f"buffer_store_dwordx4 {vr(88+4*h,4)}, v5, {S['ws']}, s54 offen sc1")
                if h < 3: a("s_add_u32 s54, s54, 65536")
            a("s_branch La_kvd")
        else:
            a(f"s_add_u32 s54, s54, {hex(WS_V)}")
            a(f"v_and_b32 v6, 15, v{vLANE}\nv_lshlrev_b32 v6, 4, v6\nv_bfe_u32 v7, v{vLANE}, 5, 1\nv_lshl_add_u32 v6, v7, 8, v6\nv_bfe_u32 v7, v{vLANE}, 4, 1\nv_lshl_add_u32 v6, v7, 16, v6")
            for h in range(4):
                for r in range(4): a(f"v_cvt_pk_bf16_f32 v{88+4*h+r}, v{ACC[1]+8*h+2*r}, v{ACC[1]+8*h+2*r+1}")
                vm.op(f"buffer_store_dwordx4 {vr(88+4*h,4)}, v6, {S['ws']}, s54 offen offset:{512*(h&1)} sc1")
                if h == 1: a("s_add_u32 s54, s54, 131072")
    a("La_kvd:")
    stamp(a, 3)
    a(f"s_lshl_b32 s57, s{sW}, 10\ns_add_u32 s57, s57, {L_QX}\nv_add_u32 v7, s57, v{vL16}")
    a(f"s_lshl_b32 s58, s{sC}, 6\ns_add_u32 s58, s58, s{sT32}")
    flag_off(a, 57, 58, WS_FKV)
    tr_addr(a, 10, 12, True, 6, False)
    a(f"v_add_u32 v10, {L_WQ}, v10")
    a("s_barrier")
    WQ = [64, 68, 72, 76]
    def rdQ(ks): return [(f"ds_read_b64_tr_b16 {vr(WQ[ks&3]+2*st,2)}, v10 offset:{1024*ks+512*st}", ("q", ks)) for st in range(2)]
    lg.reset()
    for x in rdQ(0) + rdQ(1) + rdQ(2): lg.op(*x)
    for ks in range(32):
        if ks + 3 < 32: [lg.op(*x) for x in rdQ(ks+3)]
        lg.wait(("q", ks))
        a(f"v_mfma_f32_32x32x16_bf16 {vr(ACC[0],16)}, {vr(WQ[ks&3],4)}, {vr(AF+4*ks,4)}, {vr(ACC[0],16)}")
        if ks == OPT.get("kvflag", 20): set_flag(a, vm, "s57", vZ, 8)
    a(f"s_mov_b32 s53, {hx(0.25*LOG2E)}")
    for r in range(16): a(f"v_mul_f32 v{ACC[0]+r}, s53, v{ACC[0]+r}")
    for r in range(8): a(f"v_cvt_pk_bf16_f32 v{64+r}, v{ACC[0]+2*r}, v{ACC[0]+2*r+1}")
    a("ds_write_b128 v7, v[64:67]\nds_write_b128 v7, v[68:71] offset:4096")
    a("s_waitcnt lgkmcnt(0)\ns_barrier")

def active2(a):
    vm = Track(a, "vmcnt", 63); lg = Track(a, "lgkmcnt", 15)
    sT32, AF = 67, 128
    ACC, WF, XR, GA, G2, XF = 16, [96, 100, 104, 108], vXR, 48, 64, 80
    a(f"v_bfe_u32 v9, v{vLANE}, 5, 1")
    for q in range(4):
        for h in range(2): a(f"v_lshlrev_b32 v{XF+4*q+2*h}, 16, v{XR+2*q+h}\nv_and_b32 v{XF+4*q+2*h+1}, 0xffff0000, v{XR+2*q+h}")
    a(f"s_lshl_b32 s57, s{sT32}, 15\ns_lshl_b32 s58, s{sC}, 11\ns_add_u32 s57, s57, s58\ns_add_u32 s58, s57, {hex(WS_Y)}\ns_add_u32 s57, s57, {hex(WS_X1)}")
    a(f"s_lshl_b32 s54, s{sC}, 14\ns_lshl_b32 s55, s{sT32}, 8\ns_add_u32 s54, s54, s55\ns_add_u32 s54, s54, {hex(WS_STATS)}")
    a(f"s_lshl_b32 s55, s{sT32}, 4\ns_add_u32 s55, s55, s{sC}")
    flag_off(a, 56, 55, WS_FX1, LF())
    a(f"s_lshl_b32 s55, s{sT32}, {11-LF()}\ns_add_u32 s55, s55, {hex(WS_FX1)}")
    tr_addr(a, 10, 11, True, 6, False)
    for r in range(16): a(f"v_mov_b32 v{ACC+r}, 0")
    poll_addr(a, 5, LF())
    a(f"s_lshl_b32 s52, s{sT32}, {12-LF()}\ns_add_u32 s52, s52, {hex(WS_FO)}")
    stamp(a, 6, 8)
    set_flag(a, vm, "s64", vZ, 8)
    stamp(a, 7); stamp(a, 7, 8)
    poll(a, vm, "0xffffffff", 5, "s52", 11, OPT.get("fo", 20))
    stamp(a, 8); stamp(a, 0, 2)
    a(f"s_lshl_b32 s52, s{sT32}, 15\ns_add_u32 s52, s52, {hex(WS_O)}")
    OL = rot_loads(a, vm, 52, AF, "o")
    for _ in range(OPT.get("b5b", 12)): vm.op(*next(OL)[1])
    a("s_barrier")
    for _ in range(12 - OPT.get("b5b", 12)): vm.op(*next(OL)[1])
    a(f"v_lshlrev_b32 v6, 2, v{vLANE}\nv_lshlrev_b32 v5, 4, v9\nv_add_u32 v5, {L_GA}, v5")
    def rdWo(ks): return [(f"ds_read_b64_tr_b16 {vr(WF[ks&3]+2*st,2)}, v10 offset:{L_WO+1024*ks+512*st}", ("w", ks)) for st in range(2)]
    lg.reset()
    for x in rdWo(0) + rdWo(1) + rdWo(2): lg.op(*x)
    for ks in range(32):
        if ks + 3 < 32:
            for x in rdWo(ks+3): lg.op(*x)
        if ks == 28:
            lg.wait(("w", 31))
            a("s_barrier")
            for q in range(4): a(f"ds_read_b128 {vr(GA+4*q,4)}, v5 offset:{32*q}")
            for q in range(4): a(f"ds_read_b128 {vr(G2+4*q,4)}, v5 offset:{128+32*q}")
        lg.wait(("w", ks)); vm.wait(("o", ks))
        a(f"v_mfma_f32_32x32x16_bf16 {vr(ACC,16)}, {vr(WF[ks&3],4)}, {vr(AF+4*ks,4)}, {vr(ACC,16)}")
        if ks + 12 < 32: vm.op(*next(OL)[1])
        if ks % 4 == 0 or ks == 31: stamp(a, 1 + (ks+1)//4, 2)
    stamp(a, 10, 2)
    a("s_waitcnt lgkmcnt(4)")
    for r in range(16): a(f"v_fmac_f32 v{XF+r}, v{ACC+r}, v{GA+r}")
    a("s_waitcnt lgkmcnt(0)")
    for r in range(16): a(f"v_mul_f32 v{ACC+r}, v{XF+r}, v{G2+r}")
    for r in range(8): a(f"v_cvt_pk_bf16_f32 v{32+r}, v{ACC+2*r}, v{ACC+2*r+1}")
    vm.op(f"buffer_store_dwordx4 v[32:35], v{vL16}, {S['ws']}, s58 offen sc1"); vm.op(f"buffer_store_dwordx4 v[36:39], v{vL16}, {S['ws']}, s58 offen offset:1024 sc1")
    a(f"v_pk_add_f32 v[48:49], {vr(XF,2)}, {vr(XF+2,2)}\nv_pk_mul_f32 v[50:51], {vr(XF,2)}, {vr(XF,2)}\nv_pk_fma_f32 v[50:51], {vr(XF+2,2)}, {vr(XF+2,2)}, v[50:51]")
    for r in range(4, 16, 2): a(f"v_pk_add_f32 v[48:49], v[48:49], {vr(XF+r,2)}\nv_pk_fma_f32 v[50:51], {vr(XF+r,2)}, {vr(XF+r,2)}, v[50:51]")
    a("v_add_f32 v48, v48, v49\nv_add_f32 v49, v50, v51")
    for r in range(8): a(f"v_cvt_pk_bf16_f32 v{40+r}, v{XF+2*r}, v{XF+2*r+1}")
    a("v_permlane32_swap_b32 v48, v49\nv_add_f32 v48, v48, v49")
    vm.op(f"buffer_store_dword v48, v6, {S['ws']}, s54 offen sc1")
    vm.op(f"buffer_store_dwordx4 v[40:43], v{vL16}, {S['ws']}, s57 offen sc1"); vm.op(f"buffer_store_dwordx4 v[44:47], v{vL16}, {S['ws']}, s57 offen offset:1024 sc1")
    stamp(a, 11, 2)
    ACC, WF, WH, ST = 16, [80, 92, 104], [116, 120], 240
    vF, vH = [10, 11, 12, 13], [4, 7, 14, 15]
    tr_addr(a, 10, 11, True, 6, False)
    a(f"v_add_u32 v10, {L_W1}, v10\nv_add_u32 v11, 0x8000, v10\nv_add_u32 v12, 0x10000, v10\nv_add_u32 v13, 0x18000, v10")
    half_tr_addr(a, 4, 7)
    a(f"v_add_u32 v4, {L_W1}, v4\nv_add_u32 v7, 0x8000, v4\nv_add_u32 v14, 0x10000, v4\nv_add_u32 v15, 0x18000, v4")
    a(f"v_and_b32 v8, 16, v0\nv_cmp_eq_u32 vcc, 0, v8\nv_mov_b32 v8, 0xeeeeeeee\nv_mov_b32 v5, 0x44444444\nv_cndmask_b32 v8, v8, v5, vcc")
    for r in range(64): a(f"v_mov_b32 v{ACC+r}, 0")
    poll_addr(a, 5, LF())
    set_flag(a, vm, "s56", vZ, 9)
    stamp(a, 9); stamp(a, 12, 2)
    poll(a, vm, "0xffff", 5, "s55", 125, OPT.get("fx", 16))
    stamp(a, 10); stamp(a, 0, 3)
    a(f"s_lshl_b32 s52, s{sT32}, 15\ns_add_u32 s52, s52, {hex(WS_Y)}")
    a(f"s_lshl_b32 s54, s{sT32}, 8\ns_add_u32 s54, s54, {hex(WS_STATS)}")
    YL = rot_loads(a, vm, 52, AF, "y")
    for _ in range(4): vm.op(*next(YL)[1])
    for q in range(16):
        vm.op(f"buffer_load_dword v{ST+q}, v6, {S['ws']}, s54 offen sc1", "st"); a("s_add_u32 s54, s54, 16384")
    for _ in range(8): vm.op(*next(YL)[1])
    lg.reset()
    def rdW1(ks): return [(x, ("w", ks)) for x in w1_reads(ks//2, ks & 1, WF[ks % 3], vF)]
    for x in rdW1(0) + rdW1(1): lg.op(*x)
    TT, UB = 128, 184
    side = {}
    side[(6, 0)] = ["v_mov_b32 v125, v124", f"v_bfe_u32 v5, v{vLANE}, 5, 1", "v_lshlrev_b32 v9, 7, v5", "v_permlane32_swap_b32 v124, v125"]
    side[(6, 1)] = [f"v_add_u32 v9, {L_UW}, v9", f"v_mul_f32 v124, {hx(1/512)}, v124", f"v_mul_f32 v125, {hx(1/512)}, v125", "v_fma_f32 v125, -v124, v124, v125"]
    side[(6, 2)] = ["v_max_f32 v125, 0, v125", f"v_add_f32 v125, {hx(1e-5)}, v125", "v_rsq_f32 v125, v125"]
    side[(7, 0)] = [f"v_mul_f32 v5, {hx(-LOG2E)}, v125", "v_mul_f32 v125, v5, v124", "v_sub_f32 v125, 0, v125", "v_mov_b32 v124, v5"]
    side[(7, 1)] = [f"s_lshl_b32 s55, s{sT32}, 4", f"s_add_u32 s55, s55, s{sC}", f"s_lshr_b32 s50, s55, {LF()}", "s_lshl_b32 s50, s50, 7", f"s_and_b32 s56, s55, {(1 << LF()) - 1}"]
    side[(7, 2)] = ["s_lshl_b32 s56, s56, 2", "s_add_u32 s56, s56, s50", f"s_add_u32 s56, s56, {hex(WS_FH)}"]
    side[(12, 0)] = [f"s_mul_i32 s52, s{sT32}, {112*1024}", f"s_mul_i32 s53, s{sC}, 7168", "s_add_u32 s52, s52, s53", f"s_add_u32 s52, s52, {hex(WS_H)}"]
    for m in range(7):
        ks = 16 + 2*m
        rw = lambda j: f"ds_read_b128 {vr(TT+4*j,4)}, v9 offset:{256*(j//4)+64+16*(j%4)}"
        ru = lambda j: f"ds_read_b128 {vr(UB+4*(j&1),4)}, v9 offset:{256*(j//4)+16*(j%4)}"
        fm = lambda j: [f"v_fmac_f32 v{TT+4*j+r}, v125, v{UB+4*(j&1)+r}" for r in range(4)]
        side.setdefault((ks+2, 1), []).extend([f"wait{ks+1}"] + fm(2*m))
        side.setdefault((ks+2, 2), []).extend(fm(2*m+1))
        side.setdefault((ks, 2), []).append(rw(2*m))
        side.setdefault((ks+1, 2), []).extend([ru(2*m), rw(2*m+1), ru(2*m+1)])
    for kp in range(16):
        for e in range(2):
            ks = 2*kp + e
            R = rdW1(ks+2) if ks + 2 < 32 else []
            if e == 0: R = [(x, ("h", kp)) for x in w1_half_reads(kp, WH[kp & 1], vH)] + R
            lg.wait(("w", ks)); vm.wait(("y", ks))
            for nt in range(3):
                a(f"v_mfma_f32_32x32x16_bf16 {vr(ACC+16*nt,16)}, {vr(WF[ks%3]+4*nt,4)}, {vr(AF+4*ks,4)}, {vr(ACC+16*nt,16)}")
                [lg.op(*x) for x in R[3*nt:3*nt+3]]
                if nt >= 1:
                    j = 12 + 2*ks + nt - 1
                    if j < 32: vm.op(*next(YL)[1])
                if ks in (4, 5):
                    for q in (((0, 8), (1, 9), (2, 10)), ((3, 11), (4, 12), (5, 13)), ((6, 14), (7, 15)))[nt] if ks == 4 else (((0, 4), (1, 5), (2, 6), (3, 7)), ((0, 2), (1, 3)), ())[nt]:
                        a(f"v_add_f32 v{ST+q[0]}, v{ST+q[0]}, v{ST+q[1]}")
                    if ks == 5 and nt == 2: a(f"v_add_f32 v124, v{ST}, v{ST+1}")
                for x in side.get((ks, nt), []):
                    if x.startswith("ds_"): lg.op(x, ("u", ks))
                    elif x.startswith("wait"): lg.wait(("u", int(x[4:])))
                    else: a(x)
            if e == 1:
                lg.wait(("h", kp))
                a(f"v_smfmac_f32_32x32x32_bf16 {vr(ACC+48,16)}, {vr(WH[kp&1],4)}, {vr(AF+8*kp,8)}, v8")
                if kp % 2 == 0 or kp == 15: stamp(a, 1 + (kp+1)//2, 3)
                if kp == OPT.get("b6b", 4): a("s_barrier")
    a("s_barrier")
    stamp(a, 11)
    E = 80
    for r in range(8): a(f"v_add_f32 v{ACC+48+r}, v{ACC+48+r}, v{ACC+56+r}")
    for nt in range(4):
        t = TT + 16*nt; acc = ACC + 16*nt; n = 16 if nt < 3 else 8
        for r in range(0, n, 2): a(f"v_pk_fma_f32 {vr(acc+r,2)}, {vr(acc+r,2)}, v[124:125], {vr(t+r,2)} op_sel:[0,0,0] op_sel_hi:[1,0,1]")
        for r in range(n): a(f"v_exp_f32 v{E+r}, v{acc+r}")
        for r in range(0, n, 2): a(f"v_pk_add_f32 {vr(E+r,2)}, {vr(E+r,2)}, 1.0 op_sel_hi:[1,0]")
        for r in range(n): a(f"v_rcp_f32 v{E+r}, v{E+r}")
        for r in range(0, n, 2): a(f"v_pk_mul_f32 {vr(acc+r,2)}, {vr(acc+r,2)}, {vr(E+r,2)}")
        o = 208 + 8*nt
        for r in range(n//2): a(f"v_cvt_pk_bf16_f32 v{o+r}, v{acc+2*r}, v{acc+2*r+1}")
        if nt == 2: a("s_add_u32 s52, s52, 4096")
        vm.op(f"buffer_store_dwordx4 {vr(o,4)}, v{vL16}, {S['ws']}, s52 offen offset:{2048*(nt&1)} sc1")
        if nt < 3: vm.op(f"buffer_store_dwordx4 {vr(o+4,4)}, v{vL16}, {S['ws']}, s52 offen offset:{2048*(nt&1)+1024} sc1")
        stamp(a, 10 + nt, 3)
    stamp(a, 14, 3)
    ACC, WF, GB, XR, NR = [16, 32], [48, 56, 88], 64, 80, 32
    sTT, sKH, sT5, sF5 = 54, 55, 57, 58
    a(f"s_and_b32 s{sTT}, s{sW}, 1\ns_lshr_b32 s{sKH}, s{sW}, 1")
    a(f"s_lshr_b32 s52, s{sC}, 3\ns_lshl_b32 s52, s52, 1\ns_lshl_b32 s{sT5}, s{sTB}, 2\ns_add_u32 s{sT5}, s{sT5}, s52\ns_add_u32 s{sT5}, s{sT5}, s{sTT}")
    a(f"s_and_b32 s{sF5}, s{sC}, 7\ns_lshl_b32 s{sF5}, s{sF5}, 1\ns_add_u32 s{sF5}, s{sF5}, s{sKH}")
    tr_addr(a, 10, 11, True, 7, True)
    a(f"s_lshl_b32 s52, s{sKH}, 6\nv_xor_b32 v10, s52, v10\ns_lshl_b32 s52, s{sKH}, 13\nv_add_u32 v10, s52, v10\nv_xor_b32 v11, 64, v10")
    for r in range(32): a(f"v_mov_b32 v{16+r}, 0")
    poll_addr(a, 5, LF())
    a(f"s_lshl_b32 s52, s{sT5}, {11-LF()}\ns_lshl_b32 s53, s{sKH}, {10-LF()}\ns_add_u32 s52, s52, s53\ns_add_u32 s52, s52, {hex(WS_FH)}")
    a(f"s_lshl_b32 s61, s{sT5}, 15\ns_lshl_b32 s59, s{sF5}, 11\ns_add_u32 s61, s61, s59\ns_add_u32 s61, s61, {hex(WS_X1)}")
    set_flag(a, vm, "s56", vZ, 9)
    stamp(a, 12)
    poll(a, vm, "0xff", 5, "s52", 6, OPT.get("fh", 16))
    stamp(a, 13); stamp(a, 0, 4)
    a(f"s_mul_i32 s52, s{sT5}, {112*1024}\ns_mul_i32 s53, s{sKH}, {56*1024}\ns_add_u32 s52, s52, s53\ns_add_u32 s52, s52, {hex(WS_H)}")
    a(f"s_lshl_b32 s59, s{sR}, 1\ns_cmp_ge_u32 s59, 14\ns_cselect_b32 s59, 0, s59")
    def ldH(ks):
        if ks % 4 == 0: a(f"s_add_u32 s53, s59, {ks//4}\ns_cmp_ge_u32 s53, 14\ns_cselect_b32 s60, 14, 0\ns_sub_u32 s53, s53, s60\ns_lshl_b32 s53, s53, 12\ns_add_u32 s53, s53, s52")
        vm.op(f"buffer_load_dwordx4 {vr(AF+4*(ks%NR),4)}, v{vL16}, {S['ws']}, s53 offen offset:{1024*(ks%4)} sc1", ("h", ks))
    PF = 12
    for ks in range(PF):
        ldH(ks)
        if ks == 7: a("s_barrier")
    slot = lambda s: s if s < 9 else s - 9
    def rdW2(ks):
        s, k = ks // 4, ks % 4
        return [(f"ds_read_b64_tr_b16 {vr(WF[ks%3]+4*n+2*st,2)}, v{12+n} offset:{2048*k+1024*st}", ("w", ks)) for n in range(2) for st in range(2)]
    def setslot(s): a(f"v_add_u32 v12, {16384*slot(s)}, v10\nv_add_u32 v13, {16384*slot(s)}, v11")
    lg.reset(); setslot(0)
    for x in rdW2(0) + rdW2(1): lg.op(*x)
    for ks in range(56):
        n = ks + 2
        lg.wait(("w", ks))
        if ks in (11, 19): a("s_barrier")
        if n < 56 and n % 4 == 0:
            if n // 4 in (9, 12): a("s_barrier")
            setslot(n // 4)
        vm.wait(("h", ks))
        a(f"v_mfma_f32_32x32x16_bf16 {vr(ACC[0],16)}, {vr(WF[ks%3],4)}, {vr(AF+4*(ks%NR),4)}, {vr(ACC[0],16)}")
        if n < 56: [lg.op(*x) for x in rdW2(n)]
        a(f"v_mfma_f32_32x32x16_bf16 {vr(ACC[1],16)}, {vr(WF[ks%3]+4,4)}, {vr(AF+4*(ks%NR),4)}, {vr(ACC[1],16)}")
        if ks + PF < 56: ldH(ks + PF)
        if ks == 44:
            for q in range(2): vm.op(f"buffer_load_dwordx4 {vr(XR+4*q,4)}, v{vL16}, {S['ws']}, s61 offen offset:{1024*q} sc1", "x1")
        if ks % 4 == 3: stamp(a, 1 + ks//4, 4)
    stamp(a, 14)
    vm.wait("x1")
    a(f"s_xor_b32 s52, s{sW}, 2\ns_lshl_b32 s52, s52, 12\ns_add_u32 s52, s52, {16384*5}\nv_add_u32 v5, s52, v{vL16}")
    a(f"s_lshl_b32 s52, s{sW}, 12\ns_add_u32 s52, s52, {16384*5}\nv_add_u32 v6, s52, v{vL16}")
    a(f"v_bfe_u32 v9, v{vLANE}, 5, 1\nv_lshlrev_b32 v7, 4, v9\ns_lshl_b32 s52, s{sKH}, 7\ns_add_u32 s52, s52, {L_GB}\nv_add_u32 v7, s52, v7")
    for q in range(4): a(f"ds_read_b128 {vr(GB+4*q,4)}, v7 offset:{32*q}")
    XF = 96
    for r in range(8): a(f"v_lshlrev_b32 v{XF+2*r}, 16, v{XR+r}\nv_and_b32 v{XF+2*r+1}, 0xffff0000, v{XR+r}")
    for q in range(4): a(f"ds_write_b128 v5, {vr(ACC[1]+4*q,4)} offset:{1024*q}")
    a("s_waitcnt lgkmcnt(0)\ns_barrier")
    for q in range(4): a(f"ds_read_b128 {vr(ACC[1]+4*q,4)}, v6 offset:{1024*q}")
    a(f"v_and_b32 v7, 31, v{vLANE}\nv_lshlrev_b32 v8, 10, v7\nv_lshl_add_u32 v8, v9, 4, v8")
    a(f"s_lshl_b32 s52, s{sT5}, 15\ns_lshl_b32 s53, s{sF5}, 6\ns_add_u32 s52, s52, s53")
    for q in range(4):
        a(f"s_waitcnt lgkmcnt({3-q})")
        for r in range(4*q, 4*q+4): a(f"v_add_f32 v{ACC[0]+r}, v{ACC[0]+r}, v{ACC[1]+r}")
        for r in range(4*q, 4*q+4): a(f"v_fmac_f32 v{XF+r}, v{ACC[0]+r}, v{GB+r}")
    for r in range(8): a(f"v_cvt_pk_bf16_f32 v{64+r}, v{XF+2*r}, v{XF+2*r+1}")
    for p in range(2):
        a(f"v_permlane32_swap_b32 v{64+4*p}, v{64+4*p+2}\nv_permlane32_swap_b32 v{64+4*p+1}, v{64+4*p+3}")
        vm.op(f"buffer_store_dwordx4 {vr(64+4*p,4)}, v8, {S['out']}, s52 offen offset:{32*p}{['', ' sc1', ' nt', ' sc0 sc1', ' sc1 nt'][OPT.get('osc', 0)]}")

def wq_loop(a):
    a(f"v_lshrrev_b32 v4, 2, v{vLANE}\nv_mul_u32_u24 v4, 3072, v4\nv_and_b32 v5, 3, v{vLANE}\nv_lshl_add_u32 v4, v5, 4, v4")
    a(f"s_lshl_b32 s55, s{sR}, 2\ns_add_u32 s55, s55, s67\ns_lshl_b32 s53, s67, 10\ns_add_u32 s53, s53, {L_WQ}\ns_lshl_b32 s56, s{sC}, 6\ns_mov_b32 s51, 8\nLh_ql:")
    a(f"s_and_b32 s52, s55, 31\ns_mul_i32 s52, s52, {16*3072}\ns_mov_b32 m0, s53\ns_add_u32 s52, s52, s56")
    a(f"buffer_load_dwordx4 v4, {S['wqkv']}, s52 offen lds")
    a(f"s_add_u32 s55, s55, 4\ns_add_u32 s53, s53, 4096\ns_sub_u32 s51, s51, 1\ns_cmp_lg_u32 s51, 0\ns_cbranch_scc1 Lh_ql")

def helper(a):
    vm = Track(a, "vmcnt", 63)
    sH, sCol = 67, 66
    a("Lh_b2:")
    a("s_waitcnt vmcnt(0) lgkmcnt(0)\ns_barrier")
    if OPT.get("st", 7) & 2:
        a(f"s_lshl_b32 s57, s2, 2\ns_add_u32 s57, s57, s{sH}\ns_lshl_b32 s58, s57, 9\ns_mul_i32 s57, s57, {5*128}\ns_add_u32 s57, s57, {9216*128}")
        for n in range(3): a(stouch("w1", 57, n))
    a("s_barrier")
    wq_loop(a)
    if OPT.get("st", 7) & 2:
        for n in range(3, 5): a(stouch("w1", 57, n))
        a(stouch("wo", 58, 0))
    a("s_waitcnt vmcnt(0)")
    if OPT.get("touch", 0) == 1: mall_touch(a)
    stamp(a, 2)
    a("s_barrier")
    if OPT.get("st", 7) & 2:
        for n in range(1, 4): a(stouch("wo", 58, n))
    a("s_barrier")

def helper2(a):
    vm = Track(a, "vmcnt", 63); lg = Track(a, "lgkmcnt", 15)
    sH = 67
    stamp(a, 6, 8)
    set_flag(a, vm, "s64", vZ, 8)
    stamp(a, 7); stamp(a, 7, 8)
    vF, vH = 13, 14
    a(f"s_sub_u32 s52, s{sI}, 8\ns_cmp_ge_u32 s52, 16\ns_cbranch_scc1 Lh_nomod2")
    mod_partial(a, vm, vMOD); mod_join(a, vm, 66, "Lh_nomod2")
    a("Lh_nomod2:")
    a("s_barrier")
    a(f"v_lshlrev_b32 v4, 5, v{vLANE}\ns_lshl_b32 s52, s{sH}, 11\ns_add_u32 s52, s52, 4096")
    gran_poll(a, vm, [f"buffer_load_dwordx4 v[16:19], v4, {S['ws']}, s52 offen sc1", f"buffer_load_dwordx4 v[20:23], v4, {S['ws']}, s52 offen offset:16 sc1"], [16, 20])
    for j, r in enumerate((16, 18, 20, 22)): a(f"v_lshlrev_b32 v{24+2*j}, 16, v{r}\nv_and_b32 v{25+2*j}, 0xffff0000, v{r}")
    a(f"s_cmp_eq_u32 s{sH}, 1\ns_cbranch_scc1 Lh_tabg")
    a(f"s_cmp_eq_u32 s{sH}, 3\ns_cselect_b32 s53, {hx(-1/LOG2E)}, 1.0")
    a(f"s_lshl_b32 s54, s{sC}, 2\ns_and_b32 s55, s{sC}, 7\ns_lshl_b32 s55, s55, 3\ns_lshl_b32 s56, s{sH}, 6\ns_cmp_eq_u32 s{sH}, 3\ns_cselect_b32 s54, s55, s54\ns_cselect_b32 s55, 8, 4")
    a(f"s_cselect_b32 s56, 256, s56\ns_add_u32 s56, s56, {L_TAB}")
    for r in range(8): a(f"v_mul_f32 v{24+r}, s53, v{24+r}")
    a(f"v_subrev_u32 v5, s54, v{vLANE}\nv_cmp_gt_u32 vcc, s55, v5\nv_lshlrev_b32 v5, 5, v5\nv_add_u32 v5, s56, v5")
    a("s_and_saveexec_b64 s[56:57], vcc\nds_write_b128 v5, v[24:27]\nds_write_b128 v5, v[28:31] offset:16\ns_mov_b64 exec, -1")
    a(f"s_cmp_lg_u32 s{sH}, 2\ns_cbranch_scc1 Lh_tabd")
    a("Lh_tabg:")
    a(f"v_lshrrev_b32 v5, 1, v{vLANE}\ns_lshl_b32 s53, s{sR}, 2\nv_subrev_u32 v5, s53, v5\nv_and_b32 v5, 31, v5\nv_lshlrev_b32 v5, 6, v5\nv_and_b32 v6, 1, v{vLANE}\nv_lshl_add_u32 v5, v6, 3, v5")
    a(f"s_and_b32 s53, s{sH}, 1\ns_lshl_b32 s53, s53, 4\ns_add_u32 s53, s53, {L_G}\nv_add_u32 v5, s53, v5")
    a("v_mov_b32 v17, v18\nv_mov_b32 v21, v22\nds_write_b64 v5, v[16:17]\nds_write_b64 v5, v[20:21] offset:32")
    a("Lh_tabd:")
    a("s_waitcnt vmcnt(0) lgkmcnt(0)")
    stamp(a, 8)
    a("s_barrier")
    vm.reset()
    vW2 = 10
    a(f"v_lshrrev_b32 v{vW2}, 3, v{vLANE}\nv_lshlrev_b32 v{vW2}, 10, v{vW2}\nv_bfe_u32 v5, v{vLANE}, 4, 1\nv_lshlrev_b32 v5, 2, v5\nv_xor_b32 v5, v5, v{vLANE}\nv_and_b32 v5, 7, v5\nv_lshl_add_u32 v{vW2}, v5, 4, v{vW2}")
    a(f"s_lshl_b32 s58, s{sH}, 14\ns_and_b32 s52, s{sC}, 7\ns_lshl_b32 s52, s52, 7\ns_add_u32 s58, s58, s52\ns_lshl_b32 s59, s{sH}, 11")
    a(f"s_lshl_b32 s60, s{sR}, 1\ns_cmp_ge_u32 s60, 14\ns_cselect_b32 s60, 0, s60")
    def w2_stage(s, thr=None):
        sl = s if s < 9 else s - 9
        a(f"s_add_u32 s61, s60, {s}\ns_cmp_ge_u32 s61, 14\ns_cselect_b32 s62, 14, 0\ns_sub_u32 s61, s61, s62\ns_lshl_b32 s61, s61, 16\ns_add_u32 s61, s61, s58")
        for kh in range(2):
            for hf in range(2):
                a(f"s_add_u32 m0, s59, {16384*sl+8192*kh+1024*hf}\ns_add_u32 s52, s61, {56*kh*16384+8192*hf}")
                vm.op(f"buffer_load_dwordx4 v{vW2}, {S['w2']}, s52 offen lds", ("w2", s))
        if thr: vm.wait(("w2", s-1))
    w2_stage(0); w2_stage(1)
    ACC, GF, WF = 16, 32, 48
    a(f"v_bfe_u32 v9, v{vLANE}, 5, 1\nv_lshlrev_b32 v6, 5, v9\nv_and_b32 v5, 1, v{vLANE}\nv_lshl_add_u32 v6, v5, 4, v6\nv_add_u32 v6, {L_G}, v6")
    for r in range(16): a(f"v_mov_b32 v{ACC+r}, 0")
    a(f"s_cmp_eq_u32 s{sH}, 3\ns_cbranch_scc1 Lh_uwh")
    tr_addr(a, 4, 5, True, 6, False)
    a(f"s_lshl_b32 s52, s{sH}, 10\ns_add_u32 s52, s52, {L_W1}\nv_add_u32 v4, s52, v4\ns_mov_b32 s51, 16")
    a("Lh_uwl:")
    for e in range(2):
        a(f"ds_read_b128 {vr(GF+4*e,4)}, v6 offset:{64*e}")
        for st in range(2): a(f"ds_read_b64_tr_b16 {vr(WF+4*e+2*st,2)}, v4 offset:{3072*e+512*st}")
    a("v_add_u32 v4, 7168, v4\nv_add_u32 v6, 128, v6\ns_sub_u32 s51, s51, 1")
    for e in range(2):
        a(f"s_waitcnt lgkmcnt({3-3*e})")
        a(f"v_mfma_f32_32x32x16_bf16 {vr(ACC,16)}, {vr(WF+4*e,4)}, {vr(GF+4*e,4)}, {vr(ACC,16)}")
    a("s_cmp_lg_u32 s51, 0\ns_cbranch_scc1 Lh_uwl")
    a("s_branch Lh_uwd")
    a("Lh_uwh:")
    half_tr_addr(a, 4, 5)
    a(f"v_add_u32 v4, {L_W1+6144}, v4\ns_mov_b32 s51, 16")
    a(f"v_and_b32 v8, 16, v0\nv_cmp_eq_u32 vcc, 0, v8\nv_mov_b32 v8, 0xeeeeeeee\nv_mov_b32 v5, 0x44444444\nv_cndmask_b32 v8, v8, v5, vcc")
    a("Lh_uwhl:")
    for e in range(2): a(f"ds_read_b128 {vr(GF+4*e,4)}, v6 offset:{64*e}")
    for st in range(2): a(f"ds_read_b64_tr_b16 {vr(WF+2*st,2)}, v4 offset:{256*st}")
    a("v_add_u32 v4, 7168, v4\nv_add_u32 v6, 128, v6\ns_sub_u32 s51, s51, 1\ns_waitcnt lgkmcnt(0)")
    a(f"v_smfmac_f32_32x32x32_bf16 {vr(ACC,16)}, {vr(WF,4)}, {vr(GF,8)}, v8")
    a("s_cmp_lg_u32 s51, 0\ns_cbranch_scc1 Lh_uwhl")
    a("s_nop 7\ns_nop 3")
    for r in range(8): a(f"v_add_f32 v{ACC+r}, v{ACC+r}, v{ACC+8+r}")
    a("Lh_uwd:")
    a(f"v_and_b32 v5, 1, v{vLANE}\nv_cmp_eq_u32 vcc, 1, v5\nv_mov_b32 v7, {hx(-LOG2E)}\nv_cndmask_b32 v7, 1.0, v7, vcc")
    a(f"v_lshlrev_b32 v6, 7, v9\nv_lshl_add_u32 v6, v5, 6, v6\ns_lshl_b32 s52, s{sH}, 8\ns_add_u32 s52, s52, {L_UW}\nv_add_u32 v6, s52, v6")
    a("s_nop 3")
    for r in range(16): a(f"v_mul_f32 v{ACC+r}, v{ACC+r}, v7")
    a("s_mov_b32 exec_lo, 3\ns_mov_b32 exec_hi, 3")
    for q in range(4): a(f"ds_write_b128 v6, {vr(ACC+4*q,4)} offset:{16*q}")
    a("s_mov_b64 exec, -1\ns_waitcnt lgkmcnt(0)")
    stamp(a, 9)
    a("s_barrier")
    NREG = OPT.get("nreg", 12); S0 = 14 - NREG; RB = 48
    order = list(range(S0, 9)) + list(range(9, 14))
    for s in order:
        a(f"s_add_u32 s61, s60, {s}\ns_cmp_ge_u32 s61, 14\ns_cselect_b32 s62, 14, 0\ns_sub_u32 s61, s61, s62\ns_lshl_b32 s61, s61, 16\ns_add_u32 s61, s61, s58")
        for j in range(4):
            a(f"s_add_u32 s52, s61, {56*(j>>1)*16384+8192*(j&1)}")
            vm.op(f"buffer_load_dwordx4 {vr(RB+16*(s-S0)+4*j,4)}, v{vW2}, {S['w2']}, s52 offen", ("w2r", s))
    a("s_barrier")
    a(f"v_add_u32 v4, s59, v{vL16}\nv_add_u32 v5, 0x10000, v4\nv_add_u32 v6, 0x20000, v4")
    def w2_put(s):
        sl = s if s < 9 else s - 9
        for j in range(4): a(f"ds_write_b128 v{4 + sl//4}, {vr(RB+16*(s-S0)+4*j,4)} offset:{16384*(sl%4)+8192*(j>>1)+1024*(j&1)}")
    for s in range(2, S0): w2_stage(s, True)
    for s in range(S0, 9):
        vm.wait(("w2r", s)); w2_put(s)
        if (s - S0) % 2 == 1: a("s_waitcnt lgkmcnt(4)")
    vm.wait_all()
    a("s_waitcnt lgkmcnt(0)")
    stamp(a, 12)
    a("s_barrier")
    a("s_barrier")
    for s in (9, 10, 11): w2_put(s)
    a("s_barrier")
    for s in (12, 13): w2_put(s)
    a("s_waitcnt lgkmcnt(8)\ns_barrier")
    a("s_waitcnt lgkmcnt(0)\ns_barrier")
    a("s_barrier")

def diag_out(a, slot):
    if not DIAG: return
    stamp(a, 15)
    a("s_memrealtime s[52:53]\ns_waitcnt vmcnt(0) lgkmcnt(0)")
    a("s_mov_b64 exec, 1")
    for i in range(16):
        a(f"s_sub_u32 s{70+2*i}, s{70+2*i}, s3\nv_mov_b32 v{16+i}, s{70+2*i}")
    a("v_mov_b32 v32, s69\nv_mov_b32 v33, s52" if False else "v_mov_b32 v32, v250\nv_mov_b32 v33, s52")
    a(f"s_lshl_b32 s54, s2, 10\ns_lshl_b32 s55, s{sW}, 7\ns_add_u32 s54, s54, s55\ns_add_u32 s54, s54, {hex(WS_DIAG)}")
    for q in range(4): a(f"buffer_store_dwordx4 {vr(16+4*q,4)}, v{vZ}, {S['ws']}, s54 offen offset:{16*q}")
    a(f"buffer_store_dwordx2 v[32:33], v{vZ}, {S['ws']}, s54 offen offset:64")
    a(f"Ldiag{slot}:")

def build():
    a = Asm()
    a("s_cmp_ge_u32 s2, 256\ns_cbranch_scc1 Lend")
    for nm in ("x", "dbg", "wmod", "c", "wqkv", "ws", "wo", "w1", "w2", "out"):
        a(f"s_load_dwordx2 {sr(SRD[nm],2)}, s[0:1], {KA[nm]}")
    if DIAG: a("s_memtime s[70:71]\ns_memrealtime s[72:73]")
    a(f"v_lshrrev_b32 v4, 6, v0\nv_and_b32 v{vLANE}, 63, v0\nv_mov_b32 v{vZ}, 0\nv_readfirstlane_b32 s{sW}, v4\nv_lshlrev_b32 v{vL16}, 4, v{vLANE}")
    a(f"s_getpc_b64 s[56:57]\nLpc:\ns_sub_u32 s56, s56, Lpc-{NAME}_kernel\ns_subb_u32 s57, s57, 0")
    a(f"s_and_b32 s{sX}, s2, 7\ns_lshr_b32 s{sI}, s2, 3\ns_sub_u32 s67, s{sW}, 4")
    a(f"s_cmp_lt_u32 s{sW}, 6\ns_cbranch_scc1 Le_nopf")
    a(f"s_lshl_b32 s58, s{sI}, 1\ns_add_u32 s58, s58, s67\ns_sub_u32 s58, s58, 2\ns_lshl_b32 s58, s58, 10\ns_min_u32 s58, s58, Lcode_end-{NAME}_kernel-1024\nv_add_u32 v5, s58, v{vL16}")
    a("global_load_dwordx4 v[16:19], v5, s[56:57]")
    a("Le_nopf:")
    a(f"s_lshr_b32 s{sTB}, s{sX}, 1\ns_lshl_b32 s{sTB}, s{sTB}, 2\ns_lshr_b32 s52, s{sI}, 3\ns_add_u32 s{sTB}, s{sTB}, s52")
    a(f"s_and_b32 s{sR}, s{sI}, 7\ns_and_b32 s{sC}, s{sX}, 1\ns_lshl_b32 s{sC}, s{sC}, 3\ns_add_u32 s{sC}, s{sC}, s{sR}")
    for nm in ("x", "dbg", "wmod", "c", "wqkv", "ws"): a(f"s_mov_b32 s{SRD[nm]+2}, {hex(SZ[nm])}\ns_mov_b32 s{SRD[nm]+3}, 0x20000")
    a("s_memrealtime s[54:55]")
    if DIAG:
        a("s_waitcnt lgkmcnt(0)\ns_mov_b32 s3, s70\ns_mov_b32 s68, s72\nv_mov_b32 v250, s72")
        if OPT.get("rt"): a("s_mov_b32 s3, s72")
        for i in range(16): a(f"s_mov_b32 s{70+2*i}, s3")
    a(f"s_cmp_ge_u32 s{sW}, 4\ns_cbranch_scc1 Lp0_h\ns_cmp_lt_u32 s{sI}, 8\ns_cbranch_scc1 Lp0_mod\ns_cmp_ge_u32 s{sI}, 24\ns_cbranch_scc1 Lp0_warm")
    p0_ln(a)
    a("Lp0_h:")
    p0_helper(a)
    a("Lp0_mod:")
    p0_mod(a)
    a("Lp0_warm:")
    p0_warm(a)
    active(a)
    a("s_branch Latt")
    helper(a)
    a("Latt:")
    vm = Track(a, "vmcnt", 63)
    slow = attention(a, vm)
    a(f"s_cmp_ge_u32 s{sW}, 4\ns_cbranch_scc1 Lhelper2")
    active2(a)
    if DIAG: a("v_mov_b32 v250, s68")
    diag_out(a, 0)
    a("s_endpgm")
    a("Lhelper2:")
    helper2(a)
    diag_out(a, 1)
    a("s_endpgm")
    slow(a)
    a("Lend:")
    return a

def emit(a):
    hdr = open(f"cdna_kernels/{NAME}.s.ref").read().split("\n")
    out = [l for l in hdr if l.startswith(";") and "@launch" not in l and "Override launch" not in l and "grid=ceil" not in l]
    out.append(f"; @launch grid=(256,1,1) block=(512,1,1) lds={LDS_SIZE}")
    a.fix()
    out += ['.amdgcn_target "amdgcn-amd-amdhsa--gfx950"', ".text", f".globl {NAME}_kernel", ".p2align 8", f".type {NAME}_kernel,@function", f"{NAME}_kernel:",
            a.text(), "    s_endpgm", "Lcode_end:", '.section .rodata,"a"', ".p2align 6", f".amdhsa_kernel {NAME}_kernel", "  .amdhsa_next_free_vgpr 256",
            "  .amdhsa_next_free_sgpr 102", "  .amdhsa_accum_offset 256", "  .amdhsa_group_segment_fixed_size 0", "  .amdhsa_kernarg_size 88",
            "  .amdhsa_user_sgpr_count 2", "  .amdhsa_user_sgpr_kernarg_segment_ptr 1", "  .amdhsa_system_sgpr_workgroup_id_x 1",
            "  .amdhsa_float_denorm_mode_32 3", ".end_amdhsa_kernel"]
    return "\n".join(out) + "\n"

if __name__ == "__main__":
    import argparse
    p = argparse.ArgumentParser(); p.add_argument("out"); p.add_argument("--diag", action="store_true"); p.add_argument("--opt", default="")
    args = p.parse_args()
    DIAG = args.diag
    for o in args.opt.split(","):
        if o: OPT[o.split("=")[0]] = int(o.split("=")[1]) if "=" in o else 1
    set_nring(OPT.get('nring', 4))
    open(args.out, "w").write(emit(build()))
```

```python
import sys, struct
from asmlib import *

NAME = "adaLN_cond__softmax_full_mha__dense_activation_silu__prompt"
WS_MODG = 0x0
WS_STATS = 0x10000
WS_FXN, WS_FKV, WS_FO, WS_FX1, WS_FH = 0x50000, 0x52000, 0x80000, 0xC0000, 0xE0000
FH_B = 0x8000
WS_XN, WS_K, WS_V, WS_O, WS_X1, WS_Y, WS_H = 0x200000, 0x400000, 0x600000, 0x800000, 0xA00000, 0xC00000, 0xE00000
WS_DIAG = 0x1600000
WS_SIZE = 0x1700000
KA = dict(x=0, wqkv=8, wo=16, w1=32, w2=40, c=48, wmod=56, out=64, dbg=72, ws=80)
SZ = dict(x=2048*512*2, wqkv=512*1536*2, wo=512*512*2, w1=512*1792*2, w2=1792*512*2, c=1024, wmod=512*3072*2, out=2048*512*2, dbg=256, ws=WS_SIZE)
SRD = dict(x=4, wqkv=8, wo=12, w1=16, w2=20, c=24, wmod=28, out=32, dbg=36, ws=40)
S = {k: sr(v, 4) for k, v in SRD.items()}
sW, sTB, sC, sTAG, sI, sX, sR = 44, 45, 46, 47, 48, 49, 69
SPIN = 20000
def f2u(f): return struct.unpack("<I", struct.pack("<f", f))[0]
def hx(f): return hex(f2u(f))
LOG2E = 1.4426950408889634
DIAG = False
OPT = {}
L_WKV, L_WQ = 0, 64*1024
L_DG = 96*1024
L_SA = 112*1024
L_QX = 144*1024
L_WO = 0
L_W1 = 32*1024
L_RED = 88*1024
L_TAB = 156*1024
L_GA, L_G2, L_GB, L_SCR, L_UW, L_G = L_TAB, L_TAB+128, L_TAB+256, L_TAB+512, L_TAB+1024, L_TAB+2048
LDS_SIZE = 160*1024

def stamp(a, i, grp=0):
    if DIAG and (OPT.get("focus", 0) == grp or i == 15): a(f"{'s_memrealtime' if OPT.get('rt') else 's_memtime'} s[{70+2*i}:{71+2*i}]")

_uid = [0]
def poll(a, vm, mask, vaddr, soff, vt, first=0):
    _uid[0] += 1; n = _uid[0]
    a(f"s_mov_b64 exec, {mask}\ns_mov_b32 s50, {SPIN}")
    if first: a(f"s_sleep {first}")
    a(f"Lpoll{n}:\nbuffer_load_dword v{vt}, v{vaddr}, {S['ws']}, {soff} offen sc1\ns_waitcnt vmcnt(0)\nv_cmp_ne_u32 vcc, s{sTAG}, v{vt}\ns_sub_u32 s50, s50, 1\ns_cbranch_vccz Lpolld{n}")
    if OPT.get("psleep", 0): a(f"s_sleep {OPT.get('psleep', 0)}")
    a(f"s_cmp_lg_u32 s50, 0\ns_cbranch_scc1 Lpoll{n}")
    a(f"Lpolld{n}:\ns_mov_b64 exec, -1")
    vm.reset()

def LF(): return OPT.get("lf", 3)
def flag_off(a, d, f, base, lf=3):
    a(f"s_lshr_b32 s50, s{f}, {lf}\ns_lshl_b32 s50, s50, 7\ns_and_b32 s{d}, s{f}, {(1 << lf) - 1}\ns_lshl_b32 s{d}, s{d}, 2\ns_add_u32 s{d}, s{d}, s50\ns_add_u32 s{d}, s{d}, {hex(base)}")

def set_flag(a, vm, soff, vz, vt):
    vm.wait_all()
    a(f"v_mov_b32 v{vt}, s{sTAG}\ns_mov_b64 exec, 1")
    vm.op(f"buffer_store_dword v{vt}, v{vz}, {S['ws']}, {soff} offen sc1")
    a("s_mov_b64 exec, -1")

def rne_bf16(a, d, s):
    a(f"v_cvt_pk_bf16_f32 v{d}, v{s}, v{s}\nv_lshlrev_b32 v{d}, 16, v{d}")

def tr_addr(a, d, t, perm, rowbytes_log2, swz):
    a(f"v_bfe_u32 v{d}, v0, 2, 2\nv_bfe_u32 v{t}, v0, 5, 1")
    a(f"v_lshl_add_u32 v{d}, v{t}, {2 if perm else 3}, v{d}\nv_lshlrev_b32 v{d}, {rowbytes_log2}, v{d}")
    a(f"v_bfe_u32 v{t}, v0, 4, 1\nv_lshl_add_u32 v{d}, v{t}, 5, v{d}")
    a(f"v_and_b32 v{t}, 3, v0\nv_lshl_add_u32 v{d}, v{t}, 3, v{d}")
    if swz: a(f"v_bfe_u32 v{t}, v0, 3, 1\nv_lshl_add_u32 v{d}, v{t}, 6, v{d}")

def half_tr_addr(a, d, t):
    a(f"v_bfe_u32 v{d}, v0, 2, 1")
    a(f"v_bfe_u32 v{t}, v0, 4, 1\nv_lshl_add_u32 v{d}, v{t}, 1, v{d}")
    a(f"v_bfe_u32 v{t}, v0, 3, 1\nv_lshl_add_u32 v{d}, v{t}, 2, v{d}")
    a(f"v_bfe_u32 v{t}, v0, 5, 1\nv_lshl_add_u32 v{d}, v{t}, 4, v{d}")
    a(f"v_lshlrev_b32 v{d}, 5, v{d}\nv_and_b32 v{t}, 3, v0\nv_lshl_add_u32 v{d}, v{t}, 3, v{d}")

vLANE, vL16, vZ = 1, 2, 3
def poll_addr(a, d, lf=3):
    a(f"v_lshrrev_b32 v{d}, {lf}, v{vLANE}\nv_lshlrev_b32 v{d}, 5, v{d}\nv_and_or_b32 v{d}, v{vLANE}, {(1 << lf) - 1}, v{d}\nv_lshlrev_b32 v{d}, 2, v{d}")

def mod_issue(a, vm, sCol, B=16, T=4):
    a(f"v_bfe_u32 v{T}, v0, 1, 7\nv_and_b32 v{T+1}, 1, v0")
    a(f"v_mul_u32_u24 v{T+2}, 6144, v{T}\nv_lshl_add_u32 v{T+2}, v{T+1}, 4, v{T+2}\nv_lshlrev_b32 v{T+3}, 1, v{T}")
    a(f"s_lshl_b32 s52, s{sCol}, 1")
    for m in range(4):
        vm.op(f"buffer_load_dwordx4 {vr(B+4*m,4)}, v{T+2}, {S['wmod']}, s52 offen", "mod")
        if m < 3: a(f"s_add_u32 s52, s52, {128*6144}")
    for m in range(4): vm.op(f"buffer_load_ushort v{B+16+m}, v{T+3}, {S['c']}, 0 offen offset:{256*m}", "mod")

def mod_partial(a, vm, B=16):
    vm.wait("mod")
    C, F, T, A = B+16, B+24, B+20, B+32
    for m in range(4): a(f"v_lshlrev_b32 v{C+m}, 16, v{C+m}")
    for m in range(4): a(f"v_mul_f32 v{T+m}, {hx(-LOG2E)}, v{C+m}")
    for m in range(4): a(f"v_exp_f32 v{T+m}, v{T+m}")
    for m in range(4): a(f"v_add_f32 v{T+m}, 1.0, v{T+m}")
    for m in range(4): a(f"v_rcp_f32 v{T+m}, v{T+m}")
    for m in range(4): a(f"v_mul_f32 v{C+m}, v{C+m}, v{T+m}")
    for m in range(4): a(f"v_cvt_pk_bf16_f32 v{C+m}, v{C+m}, v{C+m}")
    for m in range(4): a(f"v_lshlrev_b32 v{C+m}, 16, v{C+m}")
    for m in range(4):
        for r in range(4):
            a(f"v_lshlrev_b32 v{F+2*r}, 16, v{B+4*m+r}\nv_and_b32 v{F+2*r+1}, 0xffff0000, v{B+4*m+r}")
        for j in range(8):
            a(f"v_mul_f32 v{A+j}, v{F+j}, v{C}" if m == 0 else f"v_fmac_f32 v{A+j}, v{F+j}, v{C+m}")
    for j in range(4): a(f"v_permlane32_swap_b32 v{A+j}, v{A+4+j}")
    for j in range(4): a(f"v_add_f32 v{A+j}, v{A+j}, v{A+4+j}")
    for j in range(2): a(f"v_permlane16_swap_b32 v{A+j}, v{A+2+j}")
    for j in range(2): a(f"v_add_f32 v{A+j}, v{A+j}, v{A+2+j}")
    for r in (8, 4, 2):
        for j in range(2): a(f"v_add_f32_dpp v{A+j}, v{A+j}, v{A+j} row_ror:{r} row_mask:0xf bank_mask:0xf")
    a("v_bfe_u32 v8, v0, 6, 2\nv_lshlrev_b32 v8, 6, v8\nv_and_b32 v9, 1, v0\nv_lshl_add_u32 v8, v9, 5, v8")
    a("v_bfe_u32 v9, v0, 4, 1\nv_lshl_add_u32 v8, v9, 3, v8\nv_bfe_u32 v9, v0, 5, 1\nv_lshl_add_u32 v8, v9, 4, v8")
    a(f"v_add_u32 v8, {L_SCR}, v8")
    a("s_mov_b32 exec_lo, 0x00030003\ns_mov_b32 exec_hi, 0x00030003")
    a(f"ds_write_b64 v8, v[{A}:{A+1}]")
    a("s_mov_b64 exec, -1")

def mod_final(a, vm, sCol):
    a("s_mov_b64 exec, 0xff")
    a(f"v_lshlrev_b32 v8, 3, v{vLANE}\nv_add_u32 v9, {L_SCR}, v8")
    for w in range(4): a(f"ds_read_b64 {vr(240+2*w,2)}, v9 offset:{64*w}")
    a(f"s_lshr_b32 s52, s{sCol}, 9\ns_cmp_eq_u32 s52, 1\ns_cselect_b32 s53, 1.0, 0\ns_cmp_eq_u32 s52, 4\ns_cselect_b32 s53, 1.0, s53")
    a(f"s_lshl_b32 s52, s{sCol}, 2")
    a("s_waitcnt lgkmcnt(0)")
    for j in range(2): a(f"v_add_f32 v{240+j}, v{240+j}, v{242+j}\nv_add_f32 v{244+j}, v{244+j}, v{246+j}")
    for j in range(2): a(f"v_add_f32 v{240+j}, v{240+j}, v{244+j}")
    a("v_cvt_pk_bf16_f32 v242, v240, v241\nv_lshlrev_b32 v240, 16, v242\nv_and_b32 v241, 0xffff0000, v242")
    a("v_add_f32 v240, s53, v240\nv_add_f32 v241, s53, v241")
    a(f"v_cvt_pk_bf16_f32 v240, v240, v241\nv_mov_b32 v241, s{sTAG}")
    vm.op(f"buffer_store_dwordx2 v[240:241], v8, {S['ws']}, s52 offen sc1")
    a("s_mov_b64 exec, -1")

def gran_poll(a, vm, loads, regs):
    _uid[0] += 1; n = _uid[0]
    a(f"s_mov_b32 s50, {SPIN}\nLgp{n}:")
    for t in loads: a(t)
    a("s_waitcnt vmcnt(0)")
    first = True
    for r in regs:
        for o in (1, 3):
            if first: a(f"v_xor_b32 v15, s{sTAG}, v{r+o}"); first = False
            else: a(f"v_xor_b32 v14, s{sTAG}, v{r+o}\nv_or_b32 v15, v15, v14")
    a("v_cmp_ne_u32 vcc, 0, v15\ns_sub_u32 s50, s50, 1")
    a(f"s_cbranch_vccz Lgpd{n}\ns_sleep {OPT.get('gsleep', 1)}\ns_cmp_lg_u32 s50, 0\ns_cbranch_scc1 Lgp{n}\nLgpd{n}:")
    vm.reset()

def tag_get(a):
    _uid[0] += 1; n = _uid[0]
    a(f"v_mov_b32 v8, {L_SCR+260}\ns_mov_b32 s50, {SPIN*20}\nLtg{n}:\nds_read_b32 v9, v8\ns_sub_u32 s50, s50, 1\ns_waitcnt lgkmcnt(0)\nv_readfirstlane_b32 s{sTAG}, v9")
    a(f"s_cmp_lg_u32 s{sTAG}, 0\ns_cbranch_scc1 Ltgd{n}\ns_cmp_lg_u32 s50, 0\ns_cbranch_scc1 Ltg{n}\nLtgd{n}:")

def tag_now(a, v):
    _uid[0] += 1; n = _uid[0]
    a(f"s_mov_b32 s50, {SPIN}\nLtn{n}:\nv_readfirstlane_b32 s{sTAG}, v{v}\ns_sub_u32 s50, s50, 1")
    a(f"s_cmp_lg_u32 s{sTAG}, 0\ns_cbranch_scc1 Ltnd{n}\ns_cmp_eq_u32 s50, 0\ns_cbranch_scc1 Ltnd{n}")
    a(f"buffer_load_dword v{v}, v{vZ}, {S['dbg']}, 0 offen sc1\ns_waitcnt vmcnt(0)\ns_branch Ltn{n}\nLtnd{n}:")

def read_tag(a):
    a(f"v_mov_b32 v8, {L_SCR+260}\nds_read_b32 v9, v8\ns_waitcnt lgkmcnt(0)\nv_readfirstlane_b32 s{sTAG}, v9")

def mall_touch(a):
    _uid[0] += 1; n = _uid[0]
    a(f"v_lshlrev_b32 v5, 7, v{vLANE}\ns_cmp_eq_u32 s{sW}, 6\ns_cbranch_scc1 Lt6_{n}\ns_cmp_eq_u32 s{sW}, 7\ns_cbranch_scc1 Lt7_{n}")
    a(f"s_mul_i32 s52, s2, {56*128}\ns_cmp_eq_u32 s{sW}, 5\ns_cbranch_scc1 Lt5_{n}")
    a(f"buffer_load_dword v248, v5, {S['w1']}, s52 offen\ns_branch Ltd_{n}")
    a(f"Lt5_{n}:\nbuffer_load_dword v248, v5, {S['w2']}, s52 offen\ns_branch Ltd_{n}")
    a(f"Lt6_{n}:\nv_lshrrev_b32 v6, 5, v{vLANE}\nv_mul_u32_u24 v6, {6144-4096}, v6\nv_add_u32 v5, v5, v6\ns_mul_i32 s52, s2, 12288\ns_add_u32 s52, s52, 2048")
    a(f"buffer_load_dword v248, v5, {S['wmod']}, s52 offen\ns_branch Ltd_{n}")
    a(f"Lt7_{n}:\ns_lshl_b32 s52, s2, 11\ns_mov_b64 exec, 0xffff\nbuffer_load_dword v248, v5, {S['wo']}, s52 offen\ns_mov_b64 exec, -1")
    a(f"Ltd_{n}:")

def stouch(nm, soff, line):
    return f"s_buffer_load_dwordx2 s[0:1], {S[nm]}, s{soff} offset:{128*line+60}"

def mod_join(a, vm, sCol, name, pre=None):
    a(f"v_mov_b32 v8, {L_SCR+256}\nv_mov_b32 v9, 1\ns_waitcnt lgkmcnt(0)\ns_mov_b64 exec, 1\nds_add_rtn_u32 v9, v8, v9\ns_mov_b64 exec, -1\ns_waitcnt lgkmcnt(0)")
    a(f"v_readfirstlane_b32 s52, v9\ns_cmp_lg_u32 s52, 3\ns_cbranch_scc1 {name}")
    if pre: pre()
    mod_final(a, vm, sCol)

NRING = 4
def set_nring(n):
    global NRING
    NRING = n
vSTASH, vMOD, vXR = 180, 208, 208
QF, OA, SB, RING = 16, 32, [96, 112], 128
vV, vWO, vW1, vW1H = 4, 12, 13, 14
sHH, sKQ, sK, sV = 54, 55, 56, 57
def att_setup():
    a = Asm()
    a(f"s_and_b32 s{sHH}, s{sW}, 1\ns_lshr_b32 s{sKQ}, s{sW}, 1")
    a(f"v_and_b32 v{vV}, 15, v{vLANE}\nv_lshlrev_b32 v{vV}, 4, v{vV}\nv_bfe_u32 v5, v{vLANE}, 5, 1\nv_lshl_add_u32 v{vV}, v5, 8, v{vV}")
    a(f"s_lshl_b32 s58, s{sC}, 1\ns_add_u32 s58, s58, s{sHH}")
    a(f"s_lshl_b32 s59, s58, 16")
    a(f"s_lshl_b32 s52, s{sKQ}, 14\ns_add_u32 s52, s52, s59\ns_add_u32 s{sK}, s52, {hex(WS_K)}\ns_add_u32 s{sV}, s52, {hex(WS_V)}")
    a("s_mov_b32 s60, 0x0000ffff\ns_mov_b32 s61, 0x0000ffff")
    a(f"s_lshl_b32 s52, s{sKQ}, 8\ns_lshr_b32 s53, s{sC}, 1\ns_lshl_b32 s53, s53, 11\ns_add_u32 s52, s52, s53\ns_add_u32 s62, s52, {hex(WS_FKV)}")
    a(f"s_and_b32 s65, s{sTB}, 3\ns_lshl_b32 s65, s65, 12")
    a(f"v_lshrrev_b32 v6, 2, v{vLANE}\nv_and_b32 v11, 3, v{vLANE}\nv_lshlrev_b32 v{vWO}, 10, v6\nv_lshl_add_u32 v{vWO}, v11, 4, v{vWO}")
    w1_voffs(a, vW1, vW1H, 6, 11, 15)
    a(f"v_and_b32 v5, 7, v{vLANE}\nv_lshlrev_b32 v5, 2, v5\nv_bfe_u32 v6, v{vLANE}, 3, 1\nv_lshl_add_u32 v5, v6, 7, v5\nv_bfe_u32 v6, v{vLANE}, 4, 1\nv_lshl_add_u32 v5, v6, 10, v5")
    a(f"v_and_b32 v6, 0x1b, v{vLANE}\nv_cmp_eq_u32 vcc, 16, v6\nv_mov_b32 v15, 0x3f803f80\ns_nop 0\nv_cndmask_b32 v15, 0, v15, vcc")
    for r in range(64): a(f"v_mov_b32 v{OA+r}, 0")
    early = [I.text for I in a.L]
    late = [f"v_mov_b32 v{RING+12*sl+4+r}, v15" for sl in range(NRING) for r in range(8)] + [f"v_mov_b32 v{RING+12*NRING}, 0xdddddddd"]
    return early, late

def att_q(a):
    for i in range(4):
        a(f"s_add_u32 s52, s{sKQ}, {i}\ns_and_b32 s52, s52, 3\ns_lshl_b32 s53, s{sHH}, 2\ns_add_u32 s52, s52, s53\ns_lshl_b32 s52, s52, 10\ns_add_u32 s52, s52, {L_QX}")
        a(f"v_add_u32 v9, s52, v{vL16}\nds_read_b128 {vr(QF+4*i,4)}, v9")

def att_ld(a, vm, kt):
    sl = kt % NRING
    if kt % 4 == 0: a(f"s_add_u32 s63, s{sK}, s62\ns_add_u32 s64, s{sV}, s62\ns_add_u32 s62, s62, 4096\ns_and_b32 s62, s62, 0x3fff")
    o = 1024*(kt % 4)
    vm.op(f"buffer_load_dwordx4 {vr(RING+12*sl,4)}, v{vL16}, {S['ws']}, s63 offen offset:{o} sc1", ("kv", kt))
    a("s_mov_b64 exec, s[60:61]")
    vm.op(f"buffer_load_dwordx4 {vr(RING+12*sl+4,4)}, v{vV}, {S['ws']}, s64 offen offset:{o} sc1", ("kv", kt))
    vm.op(f"buffer_load_dwordx4 {vr(RING+12*sl+8,4)}, v{vV}, {S['ws']}, s64 offen offset:{o+512} sc1", ("kv", kt))
    a("s_mov_b64 exec, -1")

def att_first(a, vm, first):
    stamp(a, 4)
    poll(a, vm, "0xffffffff", 5, "s62", 6, first)
    stamp(a, 5)
    a("s_mov_b32 s62, s65")
    for kt in range(NRING-1): att_ld(a, vm, kt)

def attention(a, vm):
    IDX = RING + 12*NRING
    assert IDX < vSTASH
    def kp_addr(d):
        return [f"s_lshl_b32 s65, s{sR}, 1", f"s_add_u32 s65, s65, s{sW}", f"s_add_u32 s65, s65, {d}", "s_and_b32 s65, s65, 15", f"s_mul_i32 s65, s65, {32*3584}",
                f"s_mul_i32 s52, s{sC}, 224", "s_add_u32 s65, s65, s52", f"s_mul_i32 s66, s{sW}, 7168", f"s_add_u32 s66, s66, {L_W1+7168*d}"]
    wo = [[f"s_add_u32 m0, s66, {L_WO+1024*j}", f"s_add_u32 s52, s65, {16384*j}", f"buffer_load_dwordx4 v{vWO}, {S['wo']}, s52 offen lds"] for j in range(4)]
    wo[0] = [f"s_add_u32 s65, s{sW}, s{sR}", "s_and_b32 s65, s65, 7", "s_lshl_b32 s65, s65, 16", f"s_lshl_b32 s52, s{sC}, 6", "s_add_u32 s65, s65, s52", f"s_lshl_b32 s66, s{sW}, 12"] + wo[0]
    k1 = w1_kp_dma(65, 66, vW1, vW1H); k1[0] = kp_addr(0) + k1[0]
    k2 = []
    for j, p in enumerate(w1_kp_dma(65, 66, vW1, vW1H)):
        k2.append([p[1], p[2].replace("buffer_load_dwordx4 ", f"buffer_load_dwordx4 {vr(vSTASH+4*j,4)}, ").replace(" lds", "")])
    k2[0] = kp_addr(8)[:7] + k2[0]
    p0 = OPT.get("pre0", 5)
    pre = {4*p0+1: wo[:2], 4*p0+5: wo[2:], 4*p0+9: k1[:3], 4*p0+13: k1[3:], 4*p0+17: k2[:3], 4*p0+21: k2[3:]}
    ld = lambda kt: att_ld(a, vm, kt)
    for kt in range(NRING-1): vm.q += [('kv', kt)]*3
    def QK(dst, sl, q): return f"v_mfma_f32_32x32x16_bf16 {vr(dst,16)}, {vr(RING+12*sl,4)}, {vr(QF+4*q,4)}, 0"
    def SM(q, sl, half, s): return f"v_smfmac_f32_32x32x32_bf16 {vr(OA+16*q,16)}, {vr(RING+12*sl+4+4*half,4)}, {vr(s+8*half,8)}, v{IDX}"
    a("s_setprio 1")
    a(f"s_and_b32 s53, s{sW}, 3\ns_lshl_b32 s52, s2, 2\ns_add_u32 s53, s53, s52\ns_mul_i32 s53, s53, {9*128}")
    ST = [stouch("w1", 53, n) for n in range(9)] + [stouch("wmod", 53, n) for n in range(16)] + [stouch("w2", 53, n) for n in range(14)]
    a("s_waitcnt lgkmcnt(0)")
    vm.wait(("kv", 0))
    a(QK(SB[0], 0, 0))
    a("s_nop 7\ns_nop 3")
    TAIL = OPT.get("tail", 0)
    qof = lambda t: (t + 1) % 4 if (TAIL and t >= 60) else t % 4
    def red_write(i):
        return [f"s_add_u32 s52, s{sKQ}, {i}\ns_and_b32 s52, s52, 3\ns_mul_i32 s52, s52, 3\ns_add_u32 s52, s52, s63\ns_add_u32 s52, s52, {i-1}\ns_mul_i32 s52, s52, 2304\ns_add_u32 s52, s52, {L_RED}",
                f"v_add_u32 v6, s52, v{vL16}\nv_add_u32 v7, s52, v15",
                f"ds_write_b128 v6, {vr(OA+16*i,4)}", f"ds_write_b128 v6, {vr(OA+16*i+4,4)} offset:1024", f"ds_write_b32 v7, v{OA+16*i+8} offset:2048"]
    for t in range(64):
        kt, q = t // 4, t % 4
        cur, prv = SB[t & 1], SB[(t + 1) & 1]
        E = [f"v_exp_f32 v{cur+r}, v{cur+r}" for r in range(16)]
        if t == OPT.get("prio", 52):
            a(f"s_cmp_ge_u32 s{sW}, 4\ns_cbranch_scc1 Latt_prio\ns_setprio 0\nLatt_prio:")
        a(E[0]); a(E[1])
        if t > 0: a(SM(qof(t-1), ((t-1)//4) % NRING, 1, prv))
        if t == 59: a(f"s_mul_i32 s63, s{sHH}, 12\nv_lshlrev_b32 v15, 2, v{vLANE}")
        if q == 0 and kt + NRING - 1 < 16: ld(kt + NRING - 1)
        if t in pre and not OPT.get("nopre"):
            for p in pre[t]:
                for x in p[:-1]: a(x)
                vm.op(p[-1], "pre")
        if t == OPT.get("cpf", 46):
            a(f"s_cmp_lg_u32 s{sW}, 7\ns_cbranch_scc1 Latt_nocp\ns_getpc_b64 s[50:51]\nLpc2:\ns_and_b32 s52, s{sI}, 3\ns_lshl_b32 s52, s52, 13\nv_lshlrev_b32 v5, 7, v{vLANE}\nv_add_u32 v5, s52, v5")
            a("v_min_u32 v5, Lcode_end-Lpc2-4, v5\nglobal_load_dword v249, v5, s[50:51]\nLatt_nocp:")
        if t == 57:
            a(f"s_cmp_ge_u32 s{sW}, 4\ns_cbranch_scc1 Latt_nox")
            a(f"v_bfe_u32 v5, v{vLANE}, 5, 1\nv_and_b32 v6, 31, v{vLANE}\nv_lshlrev_b32 v6, 10, v6\nv_lshl_add_u32 v6, v5, 3, v6")
            a(f"s_lshl_b32 s52, s67, 15\ns_lshl_b32 s50, s{sC}, 6\ns_add_u32 s52, s52, s50")
            for qq in range(4): a(f"buffer_load_dwordx2 {vr(vXR+2*qq,2)}, v6, {S['x']}, s52 offen offset:{16*qq}")
            a("Latt_nox:")
        if t == 50:
            a(f"s_cmp_lt_u32 s{sW}, 4\ns_cbranch_scc1 Latt_nomod\ns_sub_u32 s52, s{sI}, 8\ns_cmp_ge_u32 s52, 16\ns_cbranch_scc1 Latt_nomod")
            a(f"s_lshl_b32 s66, s{sX}, 2\ns_lshr_b32 s52, s52, 2\ns_add_u32 s66, s66, s52\ns_lshl_b32 s66, s66, 6")
            a(f"s_and_b32 s52, s{sI}, 3\ns_lshl_b32 s52, s52, 4\ns_add_u32 s66, s66, s52\ns_add_u32 s66, s66, 1024")
            mod_issue(a, Track(a, "vmcnt", 63), 66, vMOD, T=244)
            a("Latt_nomod:")
        if t == OPT.get("w2t", 62) and not OPT.get("nopre"):
            a(f"s_cmp_eq_u32 s{sW}, 7\ns_cbranch_scc1 Latt_nopf\ns_mul_i32 s52, s{sI}, 7\ns_add_u32 s52, s52, s{sW}\ns_lshl_b32 s52, s52, 13\nv_lshlrev_b32 v5, 7, v{vLANE}")
            a(f"buffer_load_dword v248, v5, {S['w2']}, s52 offen")
            a("Latt_nopf:")
        if OPT.get("st", 7) & 4 and t % 3 != 2 and t - t//3 < 39:
            j = t - t//3
            if j == 9: a(f"s_lshl_b32 s53, s2, 1\ns_bfe_u32 s52, s{sW}, 0x10001\ns_add_u32 s53, s53, s52\ns_mul_i32 s53, s53, 6144\ns_lshl_b32 s52, s{sHH}, 11\ns_add_u32 s53, s53, s52\ns_add_u32 s53, s53, 2048")
            if j == 25: a(f"s_and_b32 s53, s{sW}, 3\ns_lshl_b32 s52, s2, 2\ns_add_u32 s53, s53, s52\ns_mul_i32 s53, s53, {14*128}")
            a(ST[j])
        sh = OPT.get("vb", 1)
        for r in range(2, 4+sh): a(E[r])
        if t < 63:
            if q == 3: vm.wait(("kv", kt + 1))
            a(QK(prv, ((t+1)//4) % NRING, qof(t+1)))
        for r in range(4+sh, 10+sh): a(E[r])
        a(SM(qof(t), kt % NRING, 0, cur))
        W = red_write(t - 60) if (TAIL and t >= 61) else []
        for r in range(10+sh, 16):
            a(E[r])
            if W: a(W.pop(0))
        for x in W: a(x)
        if t % 4 == 3 and t < 60: stamp(a, t//4, 5)
    a("s_nop 1")
    a(SM(qof(63), 15 % NRING, 1, SB[1]))
    a("s_setprio 0")
    stamp(a, 6); stamp(a, 0, 8)
    if not TAIL:
        for i in range(1, 4):
            for x in red_write(i): a(x)
    a(f"s_mul_i32 s52, s{sKQ}, 3\ns_add_u32 s52, s52, s63\ns_mul_i32 s52, s52, 2304\ns_add_u32 s52, s52, {L_RED}")
    a(f"v_add_u32 v6, s52, v{vL16}\nv_add_u32 v7, s52, v15")
    a(f"s_lshl_b32 s52, s{sTB}, 2\ns_add_u32 s52, s52, s{sKQ}\ns_lshl_b32 s52, s52, 5\ns_add_u32 s52, s52, s58")
    a(f"s_lshl_b32 s63, s52, 10\ns_add_u32 s63, s63, {hex(WS_O)}")
    flag_off(a, 64, 52, WS_FO, LF())
    stamp(a, 1, 8)
    vm.wait_all()
    a("s_waitcnt lgkmcnt(0)")
    stamp(a, 2, 8)
    a("s_barrier")
    stamp(a, 3, 8)
    R = 96
    for i in range(3):
        a(f"ds_read_b128 {vr(R+12*i,4)}, v6 offset:{2304*i}\nds_read_b128 {vr(R+12*i+4,4)}, v6 offset:{2304*i+1024}\nds_read_b32 v{R+12*i+8}, v7 offset:{2304*i+2048}")
    a(f"s_mov_b32 s52, {hx(2.0**-60)}\ns_mov_b32 s53, {hx(2.0**60)}\ns_movk_i32 s65, 0x207")
    for i in range(3):
        a(f"s_waitcnt lgkmcnt({6-3*i})")
        for r in range(9): a(f"v_add_f32 v{OA+r}, v{OA+r}, v{R+12*i+r}")
    a(f"v_add_f32 v8, v{OA}, v{OA+1}\nv_add_f32 v9, v{OA+2}, v{OA+3}\nv_add_f32 v10, v{OA+4}, v{OA+5}\nv_add_f32 v11, v{OA+6}, v{OA+7}")
    a("v_add_f32 v8, v8, v9\nv_add_f32 v10, v10, v11\nv_add_f32 v8, v8, v10")
    a(f"v_cmp_nge_f32 vcc, v{OA+8}, s52\nv_cmp_nle_f32 s[54:55], v{OA+8}, s53\nv_cmp_class_f32 s[56:57], v8, s65")
    a(f"v_rcp_f32 v8, v{OA+8}")
    a("s_or_b64 vcc, vcc, s[54:55]\ns_or_b64 vcc, vcc, s[56:57]")
    a("s_cbranch_vccnz Lslow")
    a("Lnorm:")
    for r in range(8): a(f"v_mul_f32 v{OA+r}, v{OA+r}, v8")
    for r in range(4): a(f"v_cvt_pk_bf16_f32 v{8+r}, v{OA+2*r}, v{OA+2*r+1}")
    vm.op(f"buffer_store_dwordx4 v[8:11], v{vL16}, {S['ws']}, s63 offen sc1")
    stamp(a, 4, 8)
    a("s_barrier")
    stamp(a, 5, 8)
    a(f"s_mul_i32 s52, s{sW}, 7168\ns_add_u32 s52, s52, {L_W1+8*7168}\nv_add_u32 v5, s52, v{vL16}")
    for j in range(7): a(f"ds_write_b128 v5, {vr(vSTASH+4*j,4)} offset:{1024*j}")
    def slow(b):
        tv = Track(b, "vmcnt", 63)
        b("Lslow:")
        poll_addr(b, 5)
        b(f"s_lshr_b32 s52, s{sC}, 1\ns_lshl_b32 s52, s52, 11\ns_add_u32 s62, s52, {hex(WS_FKV)}")
        poll(b, tv, "-1", 5, "s62", 6)
        b("s_add_u32 s62, s62, 1024")
        poll(b, tv, "-1", 5, "s62", 6)
        b(f"s_waitcnt vmcnt(0)\ns_add_u32 s{sK}, s59, {hex(WS_K)}\ns_mov_b32 s51, 64\nv_mov_b32 v8, 0xff800000")
        b("Ls1:")
        b(f"buffer_load_dwordx4 {vr(RING,4)}, v{vL16}, {S['ws']}, s{sK} offen sc1\ns_add_u32 s{sK}, s{sK}, 1024\ns_waitcnt vmcnt(0)")
        b(QK(SB[0], 0, 0))
        for r in range(0, 16, 2): b(f"v_max3_f32 v8, v{SB[0]+r}, v{SB[0]+r+1}, v8")
        b("s_sub_u32 s51, s51, 1\ns_cmp_lg_u32 s51, 0\ns_cbranch_scc1 Ls1")
        b("v_mov_b32 v9, v8\nv_permlane32_swap_b32 v8, v9\nv_max_f32 v8, v8, v9")
        for r in range(16): b(f"v_sub_f32 v{SB[1]+r}, 0, v8")
        for r in range(16): b(f"v_mov_b32 v{OA+r}, 0")
        b(f"s_add_u32 s{sK}, s59, {hex(WS_K)}\ns_add_u32 s{sV}, s59, {hex(WS_V)}\ns_mov_b32 s51, 64")
        b("Ls2:")
        b(f"buffer_load_dwordx4 {vr(RING,4)}, v{vL16}, {S['ws']}, s{sK} offen sc1\ns_mov_b64 exec, s[60:61]")
        b(f"buffer_load_dwordx4 {vr(RING+4,4)}, v{vV}, {S['ws']}, s{sV} offen sc1\nbuffer_load_dwordx4 {vr(RING+8,4)}, v{vV}, {S['ws']}, s{sV} offen offset:512 sc1")
        b(f"s_mov_b64 exec, -1\ns_add_u32 s{sK}, s{sK}, 1024\ns_add_u32 s{sV}, s{sV}, 1024\ns_waitcnt vmcnt(0)")
        b(f"v_mfma_f32_32x32x16_bf16 {vr(SB[0],16)}, {vr(RING,4)}, {vr(QF,4)}, {vr(SB[1],16)}")
        for r in range(16): b(f"v_exp_f32 v{SB[0]+r}, v{SB[0]+r}")
        b(SM(0, 0, 0, SB[0])); b(SM(0, 0, 1, SB[0]))
        b("s_sub_u32 s51, s51, 1\ns_cmp_lg_u32 s51, 0\ns_cbranch_scc1 Ls2")
        b(f"s_nop 7\ns_nop 7\nv_rcp_f32 v8, v{OA+8}\ns_nop 0\ns_branch Lnorm")
    return slow

def w1_voffs(a, vF, vH, p=7, q=8, r=9):
    a(f"v_lshrrev_b32 v{p}, 2, v{vLANE}\nv_and_b32 v{q}, 3, v{vLANE}\nv_mul_u32_u24 v{vF}, 3584, v{p}\nv_lshl_add_u32 v{vF}, v{q}, 4, v{vF}")
    a(f"v_lshrrev_b32 v{p}, 1, v{vLANE}\nv_and_b32 v{q}, 0x13, v{p}\nv_bfe_u32 v{r}, v{p}, 2, 1\nv_lshl_add_u32 v{q}, v{r}, 3, v{q}\nv_bfe_u32 v{r}, v{p}, 3, 1\nv_lshl_add_u32 v{q}, v{r}, 2, v{q}")
    a(f"v_mul_u32_u24 v{vH}, 3584, v{q}\nv_and_b32 v{q}, 1, v{vLANE}\nv_lshl_add_u32 v{vH}, v{q}, 4, v{vH}")

def w1_kp_dma(sOff, sLds, vF, vH, dOff=0, dLds=0):
    L = []
    for e in range(2):
        for nt in range(3):
            L.append([f"s_add_u32 m0, s{sLds}, {dLds+3072*e+1024*nt}", f"s_add_u32 s52, s{sOff}, {dOff+16*3584*e+64*nt}",
                      f"buffer_load_dwordx4 v{vF}, {S['w1']}, s52 offen lds"])
    L.append([f"s_add_u32 m0, s{sLds}, {dLds+6144}", f"s_add_u32 s52, s{sOff}, {dOff+192}", f"buffer_load_dwordx4 v{vH}, {S['w1']}, s52 offen lds"])
    return L

def w1_reads(kp, e, dst, vF):
    base = 7168*kp + 3072*e
    return [f"ds_read_b64_tr_b16 {vr(dst+4*nt+2*st,2)}, v{vF[base >> 15]} offset:{(base & 0x7fff)+1024*nt+512*st}" for nt in range(3) for st in range(2)]
def w1_half_reads(kp, dst, vH):
    base = 7168*kp + 6144
    return [f"ds_read_b64_tr_b16 {vr(dst+2*st,2)}, v{vH[base >> 15]} offset:{(base & 0x7fff)+256*st}" for st in range(2)]

def h_pj(ks):
    return (ks // 4, ks % 4) if ks < 32 else ((ks - 32) // 3, 4 + (ks - 32) % 3)

def rot_loads(a, vm, base_s, dst, tag, div=1):
    for ks in range(32):
        if ks % 4 == 0: a(f"s_add_u32 s53, s{sR}, {ks//4}\ns_and_b32 s53, s53, 7\ns_lshl_b32 s53, s53, 12\ns_add_u32 s53, s53, s{base_s}")
        yield ks, (f"buffer_load_dwordx4 {vr(dst+4*ks,4)}, v{vL16}, {S['ws']}, s53 offen offset:{1024*(ks%4)} sc1", (tag, ks//div))

def lds_init_b0(a):
    late_srds(a)
    a(f"v_mov_b32 v8, {L_SCR+256}\nv_mov_b32 v10, 0\nv_mov_b32 v11, 0\nds_write_b64 v8, v[10:11]\ns_waitcnt lgkmcnt(0)\ns_barrier")

EB = lambda bit: OPT.get('eb1', 2) & bit
def tag_to_lds_b1(a, late):
    a(f"v_mov_b32 v8, s{sTAG}\nv_mov_b32 v9, {L_SCR+260}\nds_write_b32 v9, v8\ns_waitcnt lgkmcnt(0)")
    stamp(a, 0)
    if late: a("s_barrier")
    a("s_branch La_p1")

def p0_ln(a):
    vm = Track(a, "vmcnt", 63)
    a(f"s_and_b32 s52, s{sX}, 1\ns_lshl_b32 s52, s52, 4\ns_add_u32 s52, s52, s{sI}\ns_sub_u32 s52, s52, 8\ns_lshl_b32 s52, s52, 2\ns_add_u32 s52, s52, s{sW}")
    a(f"s_lshr_b32 s53, s{sX}, 1\ns_lshl_b32 s53, s53, 7\ns_add_u32 s56, s52, s53\ns_lshl_b32 s53, s56, 12")
    a(f"v_and_b32 v4, 3, v{vLANE}\nv_lshrrev_b32 v5, 2, v{vLANE}\nv_lshlrev_b32 v6, 10, v4\nv_lshl_add_u32 v6, v5, 4, v6")
    a("s_waitcnt lgkmcnt(0)")
    for m in range(4): vm.op(f"buffer_load_dwordx4 {vr(16+4*m,4)}, v6, {S['x']}, s53 offen offset:{256*m}")
    lds_init_b0(a)
    a("v_lshrrev_b32 v7, 1, v5\nv_lshlrev_b32 v7, 10, v7\nv_and_b32 v8, 1, v5\nv_lshl_add_u32 v7, v8, 9, v7\nv_lshl_add_u32 v7, v4, 4, v7")
    a(f"s_lshr_b32 s53, s56, 3\ns_lshl_b32 s53, s53, 15\ns_and_b32 s54, s56, 7\ns_lshl_b32 s54, s54, 6\ns_add_u32 s53, s53, s54\ns_add_u32 s53, s53, {hex(WS_XN)}")
    flag_off(a, 55, 56, WS_FXN)
    stamp(a, 0, 7)
    vm.wait_all()
    stamp(a, 1, 7)
    vm.op(f"buffer_load_dword v15, v{vZ}, {S['dbg']}, 0 offen sc1")
    F = 32
    for r in range(16): a(f"v_lshlrev_b32 v{F+2*r}, 16, v{16+r}\nv_and_b32 v{F+2*r+1}, 0xffff0000, v{16+r}")
    def red(v, t):
        for r in (4, 8): a(f"v_add_f32_dpp v{v}, v{v}, v{v} row_ror:{r} row_mask:0xf bank_mask:0xf")
        a(f"v_mov_b32 v{t}, v{v}\nv_permlane16_swap_b32 v{v}, v{t}\nv_add_f32 v{v}, v{v}, v{t}")
        a(f"v_mov_b32 v{t}, v{v}\nv_permlane32_swap_b32 v{v}, v{t}\nv_add_f32 v{v}, v{v}, v{t}")
    a(f"v_pk_add_f32 v[64:65], {vr(F,2)}, {vr(F+2,2)}\nv_pk_add_f32 v[66:67], {vr(F+4,2)}, {vr(F+6,2)}")
    for r in range(8, 32, 4): a(f"v_pk_add_f32 v[64:65], v[64:65], {vr(F+r,2)}\nv_pk_add_f32 v[66:67], v[66:67], {vr(F+r+2,2)}")
    a("v_pk_add_f32 v[64:65], v[64:65], v[66:67]\nv_add_f32 v64, v64, v65")
    red(64, 65)
    a(f"v_mul_f32 v64, {hx(-1/512)}, v64")
    for r in range(0, 32, 2): a(f"v_pk_add_f32 {vr(F+r,2)}, {vr(F+r,2)}, v[64:65] op_sel_hi:[1,0]")
    a(f"v_pk_mul_f32 v[66:67], {vr(F,2)}, {vr(F,2)}\nv_pk_mul_f32 v[68:69], {vr(F+2,2)}, {vr(F+2,2)}")
    for r in range(4, 32, 4): a(f"v_pk_fma_f32 v[66:67], {vr(F+r,2)}, {vr(F+r,2)}, v[66:67]\nv_pk_fma_f32 v[68:69], {vr(F+r+2,2)}, {vr(F+r+2,2)}, v[68:69]")
    a("v_pk_add_f32 v[66:67], v[66:67], v[68:69]\nv_add_f32 v66, v66, v67")
    red(66, 67)
    a(f"v_mov_b32 v67, {hx(1e-5)}\nv_fmac_f32 v67, {hx(1/512)}, v66\nv_rsq_f32 v66, v67")
    for r in range(0, 32, 2): a(f"v_pk_mul_f32 {vr(F+r,2)}, {vr(F+r,2)}, v[66:67] op_sel_hi:[1,0]")
    for m in range(4):
        for r in range(4): a(f"v_cvt_pk_bf16_f32 v{16+4*m+r}, v{F+8*m+2*r}, v{F+8*m+2*r+1}")
        vm.op(f"buffer_store_dwordx4 {vr(16+4*m,4)}, v7, {S['ws']}, s53 offen sc1")
        if m < 3: a("s_add_u32 s53, s53, 8192")
    stamp(a, 2, 7)
    if EB(1): a("s_barrier")
    vm.wait_all()
    stamp(a, 3, 7)
    tag_now(a, 15)
    set_flag(a, vm, "s55", vZ, 8)
    stamp(a, 4, 7)
    tag_to_lds_b1(a, not EB(1))

def p0_mod(a):
    vm = Track(a, "vmcnt", 63)
    sCol = 51
    a(f"s_lshl_b32 s{sCol}, s{sX}, 1\ns_lshr_b32 s52, s{sI}, 2\ns_add_u32 s{sCol}, s{sCol}, s52\ns_lshl_b32 s{sCol}, s{sCol}, 6")
    a(f"s_and_b32 s52, s{sI}, 3\ns_lshl_b32 s52, s52, 4\ns_add_u32 s{sCol}, s{sCol}, s52")
    a("s_waitcnt lgkmcnt(0)")
    mod_issue(a, vm, sCol)
    lds_init_b0(a)
    vm.wait("mod")
    stamp(a, 1, 7)
    a(f"buffer_load_dword v15, v{vZ}, {S['dbg']}, 0 offen sc1")
    if EB(4): a("s_barrier")
    mod_partial(a, vm)
    a("s_waitcnt vmcnt(0)")
    tag_now(a, 15)
    mod_join(a, vm, sCol, "La_joined")
    a("La_joined:")
    stamp(a, 4, 7)
    tag_to_lds_b1(a, not EB(4))

def p0_warm(a):
    a(f"s_sub_u32 s52, s{sI}, 24\ns_lshl_b32 s52, s52, 1\ns_add_u32 s52, s52, s{sW}\ns_lshl_b32 s52, s52, 5")
    a(f"v_lshrrev_b32 v4, 1, v{vLANE}\nv_add_u32 v4, s52, v4\nv_mul_u32_u24 v4, 6144, v4\nv_and_b32 v5, 1, v{vLANE}\nv_lshl_add_u32 v4, v5, 7, v4\ns_lshl_b32 s52, s{sX}, 8")
    a(f"s_waitcnt lgkmcnt(0)\ns_cmp_ge_u32 s{sW}, 2\ns_cbranch_scc1 La_nowm")
    a(f"buffer_load_dword v6, v4, {S['wmod']}, s52 offen")
    a("La_nowm:")
    lds_init_b0(a)
    a("s_waitcnt vmcnt(0)")
    stamp(a, 1, 7)
    a(f"buffer_load_dword v15, v{vZ}, {S['dbg']}, 0 offen sc1")
    if EB(2): a("s_barrier")
    a("s_waitcnt vmcnt(0)")
    tag_now(a, 15)
    tag_to_lds_b1(a, not EB(2))

def p0_helper(a):
    vm = Track(a, "vmcnt", 63)
    sH = 67
    a(f"v_mov_b32 v32, 0\nv_mov_b32 v33, 0\nv_mov_b32 v34, 0\nv_mov_b32 v35, 0\ns_lshl_b32 s52, s{sH}, 12\ns_add_u32 s52, s52, {L_DG}\nv_add_u32 v9, s52, v{vL16}")
    for j in range(4): a(f"ds_write_b128 v9, v[32:35] offset:{1024*j}")
    a(f"s_lshl_b32 s52, s2, 2\ns_add_u32 s52, s52, s{sH}\ns_and_b32 s53, s52, 1\ns_lshr_b32 s52, s52, 1\ns_mul_i32 s52, s52, 3072")
    a("s_lshl_b32 s57, s53, 9\ns_add_u32 s57, s57, s52\ns_lshl_b32 s53, s53, 10\ns_add_u32 s52, s52, s53\ns_add_u32 s52, s52, 1024")
    a("s_waitcnt lgkmcnt(0)")
    a(f"s_lshl_b32 s58, s2, 3\ns_add_u32 s58, s58, s{sW}\ns_cmp_lg_u32 s58, {64*8+4}\ns_cbranch_scc1 Le_notag")
    a(f"s_or_b32 s54, s54, 1\nv_mov_b32 v7, s54\ns_mov_b64 exec, 1\nbuffer_store_dword v7, v{vZ}, {S['dbg']}, 0 offen sc1\ns_mov_b64 exec, -1")
    a("Le_notag:")
    for n in range(4): a(stouch("wqkv", 52, n))
    late_srds(a)
    a("s_barrier")
    for n in range(4, 8): a(stouch("wqkv", 52, n))
    for n in range(4): a(stouch("wqkv", 57, n))
    a(f"v_lshrrev_b32 v4, 3, v{vLANE}\nv_mul_u32_u24 v4, 3072, v4\nv_bfe_u32 v5, v{vLANE}, 4, 1\nv_lshlrev_b32 v5, 2, v5\nv_xor_b32 v5, v5, v{vLANE}\nv_and_b32 v5, 7, v5\nv_lshl_add_u32 v4, v5, 4, v4")
    a(f"s_and_b32 s56, s{sC}, 1\ns_add_u32 s56, s56, 1\ns_lshl_b32 s56, s56, 10\ns_lshr_b32 s52, s{sC}, 1\ns_lshl_b32 s52, s52, 7\ns_add_u32 s56, s56, s52")
    a(f"s_and_b32 s55, s{sTB}, 3\ns_lshl_b32 s55, s55, 3\ns_add_u32 s55, s55, s{sH}\ns_lshl_b32 s57, s{sR}, 2\ns_mov_b32 s51, 8")
    stamp(a, 0, 7)
    a("s_barrier")
    stamp(a, 1, 7)
    a("Lh_wl:")
    a(f"s_and_b32 s55, s55, 31\ns_lshl_b32 s53, s55, 11\ns_add_u32 s52, s55, s57\ns_and_b32 s52, s52, 31\ns_mul_i32 s52, s52, {16*3072}\ns_mov_b32 m0, s53\ns_add_u32 s52, s52, s56")
    a(f"buffer_load_dwordx4 v4, {S['wqkv']}, s52 offen lds\ns_add_u32 m0, s53, 1024\ns_add_u32 s52, s52, {8*3072}\nbuffer_load_dwordx4 v4, {S['wqkv']}, s52 offen lds")
    a(f"s_add_u32 s55, s55, 4\ns_sub_u32 s51, s51, 1\ns_cmp_lg_u32 s51, 0\ns_cbranch_scc1 Lh_wl")
    tag_get(a)
    stamp(a, 0); stamp(a, 2, 7)
    a(f"s_cmp_ge_u32 s{sH}, 2\ns_cbranch_scc1 Lh_b2")
    a(f"s_lshl_b32 s52, s{sH}, 11")
    a(f"v_lshrrev_b32 v5, 3, v{vLANE}\ns_lshl_b32 s53, s{sR}, 1\nv_subrev_u32 v5, s53, v5\nv_and_b32 v5, 15, v5\nv_xor_b32 v6, 8, v5")
    gran_poll(a, vm, [f"buffer_load_dwordx4 v[16:19], v{vL16}, {S['ws']}, s52 offen sc1", f"buffer_load_dwordx4 v[20:23], v{vL16}, {S['ws']}, s52 offen offset:1024 sc1"], [16, 20])
    stamp(a, 1)
    a(f"s_cmp_lg_u32 s{sH}, 0\ns_cbranch_scc1 Lh_g1")
    for j, r in enumerate((16, 18, 20, 22)): a(f"v_lshlrev_b32 v{24+2*j}, 16, v{r}\nv_and_b32 v{25+2*j}, 0xffff0000, v{r}")
    a(f"v_and_b32 v7, 1, v{vLANE}\nv_lshlrev_b32 v7, 6, v7\nv_bfe_u32 v9, v{vLANE}, 1, 2\nv_lshl_add_u32 v7, v9, 4, v7\nv_add_u32 v7, {L_SA}, v7")
    a("v_lshl_add_u32 v5, v5, 7, v7\nv_lshl_add_u32 v6, v6, 7, v7")
    a("ds_write_b128 v5, v[24:27]\nds_write_b128 v6, v[28:31]")
    a("s_branch Lh_b2")
    a("Lh_g1:")
    a(f"v_and_b32 v7, 7, v{vLANE}\nv_lshlrev_b32 v7, 6, v7\nv_bfe_u32 v9, v{vLANE}, 2, 1\nv_lshl_add_u32 v7, v9, 9, v7\nv_and_b32 v9, 3, v{vLANE}\nv_lshl_add_u32 v7, v9, 2, v7\nv_add_u32 v7, {L_DG}, v7")
    a("v_lshl_add_u32 v5, v5, 10, v7\nv_lshl_add_u32 v6, v6, 10, v7")
    for j in range(2):
        for e in range(4):
            a(f"ds_write_b16{'_d16_hi' if e & 1 else ''} v{5+j}, v{16+4*j+2*(e>>1)} offset:{16*e + 2*(e & 1)}")
    a("s_branch Lh_b2")

def late_srds(a):
    for nm in ("wo", "w1", "w2", "out"): a(f"s_mov_b32 s{SRD[nm]+2}, {hex(SZ[nm])}\ns_mov_b32 s{SRD[nm]+3}, 0x20000")

def active(a):
    vm = Track(a, "vmcnt", 63); lg = Track(a, "lgkmcnt", 15)
    sT32 = 67
    a("La_p1:")
    ACC = [16, 32, 48]; WF = [64, 72]; DH = [88, 104]; DG = [120, 124]; AF = 128
    a(f"s_lshl_b32 s{sT32}, s{sTB}, 2\ns_add_u32 s{sT32}, s{sT32}, s{sW}")
    a(f"v_lshlrev_b32 v5, 2, v{vLANE}\ns_lshl_b32 s52, s{sT32}, 7\ns_add_u32 s52, s52, {hex(WS_FXN)}")
    tr_addr(a, 10, 12, True, 7, True)
    a("v_xor_b32 v12, 64, v10")
    a(f"v_bfe_u32 v11, v0, 5, 1\nv_lshlrev_b32 v11, 6, v11\nv_add_u32 v11, {L_SA}, v11\nv_add_u32 v13, {L_DG}, v{vL16}")
    a(f"v_and_b32 v14, 2, v0\nv_cmp_eq_u32 vcc, 0, v14\nv_mov_b32 v14, 0xeeeeeeee\nv_mov_b32 v15, 0x44444444\nv_cndmask_b32 v14, v14, v15, vcc")
    for r in range(48): a(f"v_mov_b32 v{16+r}, 0")
    poll(a, vm, "0xff", 5, "s52", 6, OPT.get("fn", 0))
    stamp(a, 1)
    a(f"s_lshl_b32 s52, s{sT32}, 15\ns_add_u32 s52, s52, {hex(WS_XN)}")
    a(f"s_lshr_b32 s54, s{sC}, 1\ns_lshl_b32 s54, s54, 18\ns_lshl_b32 s55, s{sT32}, 10\ns_add_u32 s54, s54, s55")
    a(f"s_bitcmp1_b32 s{sC}, 0\ns_cbranch_scc1 La_vwg")
    def rdS(b):
        L = [(f"ds_read_b128 {vr(DH[b&1]+4*q,4)}, v11 offset:{128*b+16*q}", ("s", b)) for q in range(4)]
        return L + [(f"ds_read_b128 {vr(DG[b&1],4)}, v13 offset:{1024*b}", ("s", b))]
    def rdW(ks):
        return [(f"ds_read_b64_tr_b16 {vr(WF[ks&1]+4*g+2*st,2)}, v{(10, 12)[g]} offset:{2048*ks+1024*st}", ("w", ks)) for g in range(2) for st in range(2)]
    def SMF(b): return f"v_smfmac_f32_32x32x32_bf16 {vr(DH[b&1],16)}, {vr(DG[b&1],4)}, {vr(AF+8*b,8)}, v14"
    def CVT(b): return [f"v_cvt_pk_bf16_f32 v{AF+8*b+r}, v{DH[b&1]+2*r}, v{DH[b&1]+2*r+1}" for r in range(8)]
    for isV in (0, 1):
        if isV: a("La_vwg:")
        vm.reset(); lg.reset()
        XL = rot_loads(a, vm, 52, AF, "xn", 2)
        def xn_issue(n):
            for _ in range(n):
                r = next(XL, None)
                if r: vm.op(*r[1])
        def MM(ks):
            f = AF + 4*ks; w = WF[ks & 1]
            if isV: return [f"v_mfma_f32_32x32x16_bf16 {vr(ACC[1+g],16)}, {vr(f,4)}, {vr(w+4*g,4)}, {vr(ACC[1+g],16)}" for g in range(2)]
            return [f"v_mfma_f32_32x32x16_bf16 {vr(ACC[1+g],16)}, {vr(w+4*g,4)}, {vr(f,4)}, {vr(ACC[1+g],16)}" for g in range(2)]
        xn_issue(OPT.get("xn0", 8))
        a("s_barrier")
        xn_issue(10 - OPT.get("xn0", 8))
        for x in rdS(0) + rdS(1): lg.op(*x)
        lg.wait(("s", 0)); vm.wait(("xn", 0))
        a(SMF(0))
        for x in rdW(0): lg.op(*x)
        xn_issue(2)
        a("s_nop 5")
        for x in CVT(0): a(x)
        stamp(a, 2)
        for b in range(16):
            nx = b + 1 < 16
            if nx:
                lg.wait(("s", b+1)); vm.wait(("xn", b+1))
                a(SMF(b+1))
            for x in rdW(2*b+1): lg.op(*x)
            lg.wait(("w", 2*b))
            M = MM(2*b); Rs = rdS(b+2) if b + 2 < 16 else []
            a(M[0]); [lg.op(*x) for x in Rs]
            a(M[1]); xn_issue(3)
            if b == OPT.get("b2b", 6): a("s_barrier")
            lg.wait(("w", 2*b+1))
            M = MM(2*b+1); C = CVT(b+1) if nx else []; Rw = rdW(2*b+2) if nx else []
            a(M[0]); [lg.op(*x) for x in Rw]; [a(x) for x in C[:3]]
            a(M[1]); [a(x) for x in C[3:]]
            if b < 15: stamp(a, b, 6)
        if not isV:
            a(f"s_add_u32 s54, s54, {hex(WS_K)}")
            a(f"v_and_b32 v5, 0x33, v{vLANE}\nv_bfe_u32 v6, v{vLANE}, 2, 1\nv_lshl_add_u32 v5, v6, 3, v5\nv_bfe_u32 v6, v{vLANE}, 3, 1\nv_lshl_add_u32 v5, v6, 2, v5\nv_lshlrev_b32 v5, 4, v5")
            for h in range(4):
                for r in range(4): a(f"v_cvt_pk_bf16_f32 v{112+4*h+r}, v{ACC[1]+8*h+2*r}, v{ACC[1]+8*h+2*r+1}")
                vm.op(f"buffer_store_dwordx4 {vr(112+4*h,4)}, v5, {S['ws']}, s54 offen sc1")
                if h < 3: a("s_add_u32 s54, s54, 65536")
            a("s_branch La_kvd")
        else:
            a(f"s_add_u32 s54, s54, {hex(WS_V)}")
            a(f"v_and_b32 v6, 15, v{vLANE}\nv_lshlrev_b32 v6, 4, v6\nv_bfe_u32 v7, v{vLANE}, 5, 1\nv_lshl_add_u32 v6, v7, 8, v6\nv_bfe_u32 v7, v{vLANE}, 4, 1\nv_lshl_add_u32 v6, v7, 16, v6")
            for h in range(4):
                for r in range(4): a(f"v_cvt_pk_bf16_f32 v{112+4*h+r}, v{ACC[1]+8*h+2*r}, v{ACC[1]+8*h+2*r+1}")
                vm.op(f"buffer_store_dwordx4 {vr(112+4*h,4)}, v6, {S['ws']}, s54 offen offset:{512*(h&1)} sc1")
                if h == 1: a("s_add_u32 s54, s54, 131072")
    a("La_kvd:")
    stamp(a, 3)
    a(f"s_lshl_b32 s57, s{sW}, 10\ns_add_u32 s57, s57, {L_QX}\nv_add_u32 v7, s57, v{vL16}")
    a(f"s_lshl_b32 s58, s{sC}, 6\ns_add_u32 s58, s58, s{sT32}")
    flag_off(a, 51, 58, WS_FKV)
    tr_addr(a, 10, 12, True, 6, False)
    a(f"v_add_u32 v10, {L_WQ}, v10")
    a("s_barrier")
    WQ = [96, 100, 104, 108]
    early, late = att_setup(); fill = early + late; assert len(early) >= 12*5
    def rdQ(ks): return [(f"ds_read_b64_tr_b16 {vr(WQ[ks&3]+2*st,2)}, v10 offset:{1024*ks+512*st}", ("q", ks)) for st in range(2)]
    lg.reset()
    for x in rdQ(0) + rdQ(1) + rdQ(2): lg.op(*x)
    for ks in range(32):
        if ks + 3 < 32: [lg.op(*x) for x in rdQ(ks+3)]
        lg.wait(("q", ks))
        a(f"v_mfma_f32_32x32x16_bf16 {vr(ACC[0],16)}, {vr(WQ[ks&3],4)}, {vr(AF+4*ks,4)}, {vr(ACC[0],16)}")
        if ks == OPT.get("kvflag", 8): set_flag(a, vm, "s51", vZ, 8)
        else:
            for x in fill[:6]: a(x)
            fill = fill[6:]
    for x in fill: a(x)
    a(f"s_mov_b32 s53, {hx(0.25*LOG2E)}")
    for r in range(16): a(f"v_mul_f32 v{ACC[0]+r}, s53, v{ACC[0]+r}")
    for r in range(8): a(f"v_cvt_pk_bf16_f32 v{96+r}, v{ACC[0]+2*r}, v{ACC[0]+2*r+1}")
    a("ds_write_b128 v7, v[96:99]\nds_write_b128 v7, v[100:103] offset:4096")
    a("s_waitcnt lgkmcnt(0)\ns_barrier")
    att_q(a)
    att_first(a, vm, OPT.get("fk", 0))

def active2(a):
    vm = Track(a, "vmcnt", 63); lg = Track(a, "lgkmcnt", 15)
    sT32, AF = 67, 128
    ACC, WF, XR, GA, G2, XF = 16, [96, 100, 104, 108], vXR, 48, 64, 80
    a(f"v_bfe_u32 v9, v{vLANE}, 5, 1")
    for q in range(4):
        for h in range(2): a(f"v_lshlrev_b32 v{XF+4*q+2*h}, 16, v{XR+2*q+h}\nv_and_b32 v{XF+4*q+2*h+1}, 0xffff0000, v{XR+2*q+h}")
    a(f"s_lshl_b32 s57, s{sT32}, 15\ns_lshl_b32 s58, s{sC}, 11\ns_add_u32 s57, s57, s58\ns_add_u32 s58, s57, {hex(WS_Y)}\ns_add_u32 s57, s57, {hex(WS_X1)}")
    a(f"s_lshl_b32 s54, s{sC}, 14\ns_lshl_b32 s55, s{sT32}, 8\ns_add_u32 s54, s54, s55\ns_add_u32 s54, s54, {hex(WS_STATS)}")
    a(f"s_lshl_b32 s55, s{sT32}, 4\ns_add_u32 s55, s55, s{sC}")
    flag_off(a, 56, 55, WS_FX1, LF())
    a(f"s_lshl_b32 s55, s{sT32}, {11-LF()}\ns_add_u32 s55, s55, {hex(WS_FX1)}")
    tr_addr(a, 10, 11, True, 6, False)
    for r in range(16): a(f"v_mov_b32 v{ACC+r}, 0")
    poll_addr(a, 5, LF())
    a(f"s_lshl_b32 s52, s{sT32}, {12-LF()}\ns_add_u32 s52, s52, {hex(WS_FO)}")
    stamp(a, 6, 8)
    set_flag(a, vm, "s64", vZ, 8)
    stamp(a, 7); stamp(a, 7, 8)
    poll(a, vm, "0xffffffff", 5, "s52", 11, OPT.get("fo", 20))
    stamp(a, 8); stamp(a, 0, 2)
    a(f"s_lshl_b32 s52, s{sT32}, 15\ns_add_u32 s52, s52, {hex(WS_O)}")
    OL = rot_loads(a, vm, 52, AF, "o")
    for _ in range(OPT.get("b5b", 12)): vm.op(*next(OL)[1])
    a("s_barrier")
    for _ in range(12 - OPT.get("b5b", 12)): vm.op(*next(OL)[1])
    a(f"v_lshlrev_b32 v6, 2, v{vLANE}\nv_lshlrev_b32 v5, 4, v9\nv_add_u32 v5, {L_GA}, v5")
    def rdWo(ks): return [(f"ds_read_b64_tr_b16 {vr(WF[ks&3]+2*st,2)}, v10 offset:{L_WO+1024*ks+512*st}", ("w", ks)) for st in range(2)]
    lg.reset()
    for x in rdWo(0) + rdWo(1) + rdWo(2): lg.op(*x)
    for ks in range(32):
        if ks + 3 < 32:
            for x in rdWo(ks+3): lg.op(*x)
        if ks == 28:
            lg.wait(("w", 31))
            a("s_barrier")
            for q in range(4): a(f"ds_read_b128 {vr(GA+4*q,4)}, v5 offset:{32*q}")
            for q in range(4): a(f"ds_read_b128 {vr(G2+4*q,4)}, v5 offset:{128+32*q}")
        lg.wait(("w", ks)); vm.wait(("o", ks))
        a(f"v_mfma_f32_32x32x16_bf16 {vr(ACC,16)}, {vr(WF[ks&3],4)}, {vr(AF+4*ks,4)}, {vr(ACC,16)}")
        if ks + 12 < 32: vm.op(*next(OL)[1])
        if ks % 4 == 0 or ks == 31: stamp(a, 1 + (ks+1)//4, 2)
    stamp(a, 10, 2)
    a("s_waitcnt lgkmcnt(4)")
    for r in range(16): a(f"v_fmac_f32 v{XF+r}, v{ACC+r}, v{GA+r}")
    a("s_waitcnt lgkmcnt(0)")
    for r in range(16): a(f"v_mul_f32 v{ACC+r}, v{XF+r}, v{G2+r}")
    for r in range(8): a(f"v_cvt_pk_bf16_f32 v{32+r}, v{ACC+2*r}, v{ACC+2*r+1}")
    vm.op(f"buffer_store_dwordx4 v[32:35], v{vL16}, {S['ws']}, s58 offen sc1"); vm.op(f"buffer_store_dwordx4 v[36:39], v{vL16}, {S['ws']}, s58 offen offset:1024 sc1")
    a(f"v_pk_add_f32 v[48:49], {vr(XF,2)}, {vr(XF+2,2)}\nv_pk_mul_f32 v[50:51], {vr(XF,2)}, {vr(XF,2)}\nv_pk_fma_f32 v[50:51], {vr(XF+2,2)}, {vr(XF+2,2)}, v[50:51]")
    for r in range(4, 16, 2): a(f"v_pk_add_f32 v[48:49], v[48:49], {vr(XF+r,2)}\nv_pk_fma_f32 v[50:51], {vr(XF+r,2)}, {vr(XF+r,2)}, v[50:51]")
    a("v_add_f32 v48, v48, v49\nv_add_f32 v49, v50, v51")
    for r in range(8): a(f"v_cvt_pk_bf16_f32 v{40+r}, v{XF+2*r}, v{XF+2*r+1}")
    a("v_permlane32_swap_b32 v48, v49\nv_add_f32 v48, v48, v49")
    vm.op(f"buffer_store_dword v48, v6, {S['ws']}, s54 offen sc1")
    vm.op(f"buffer_store_dwordx4 v[40:43], v{vL16}, {S['ws']}, s57 offen sc1"); vm.op(f"buffer_store_dwordx4 v[44:47], v{vL16}, {S['ws']}, s57 offen offset:1024 sc1")
    stamp(a, 11, 2)
    ACC, WF, WH, ST = 16, [80, 92, 104], [116, 120], 240
    vF, vH = [10, 11, 12, 13], [4, 7, 14, 15]
    tr_addr(a, 10, 11, True, 6, False)
    a(f"v_add_u32 v10, {L_W1}, v10\nv_add_u32 v11, 0x8000, v10\nv_add_u32 v12, 0x10000, v10\nv_add_u32 v13, 0x18000, v10")
    half_tr_addr(a, 4, 7)
    a(f"v_add_u32 v4, {L_W1}, v4\nv_add_u32 v7, 0x8000, v4\nv_add_u32 v14, 0x10000, v4\nv_add_u32 v15, 0x18000, v4")
    a(f"v_and_b32 v8, 16, v0\nv_cmp_eq_u32 vcc, 0, v8\nv_mov_b32 v8, 0xeeeeeeee\nv_mov_b32 v5, 0x44444444\nv_cndmask_b32 v8, v8, v5, vcc")
    for r in range(64): a(f"v_mov_b32 v{ACC+r}, 0")
    poll_addr(a, 5, LF())
    set_flag(a, vm, "s56", vZ, 9)
    stamp(a, 9); stamp(a, 12, 2)
    poll(a, vm, "0xffff", 5, "s55", 125, OPT.get("fx", 12))
    stamp(a, 10); stamp(a, 0, 3)
    a(f"s_lshl_b32 s52, s{sT32}, 15\ns_add_u32 s52, s52, {hex(WS_Y)}")
    a(f"s_lshl_b32 s54, s{sT32}, 8\ns_add_u32 s54, s54, {hex(WS_STATS)}")
    YL = rot_loads(a, vm, 52, AF, "y")
    for _ in range(4): vm.op(*next(YL)[1])
    for q in range(16):
        vm.op(f"buffer_load_dword v{ST+q}, v6, {S['ws']}, s54 offen sc1", "st"); a("s_add_u32 s54, s54, 16384")
    for _ in range(8): vm.op(*next(YL)[1])
    lg.reset()
    def rdW1(ks): return [(x, ("w", ks)) for x in w1_reads(ks//2, ks & 1, WF[ks % 3], vF)]
    for x in rdW1(0) + rdW1(1): lg.op(*x)
    TT, UB = 128, 184
    side = {}
    side[(6, 0)] = ["v_mov_b32 v125, v124", f"v_bfe_u32 v5, v{vLANE}, 5, 1", "v_lshlrev_b32 v9, 7, v5", "v_permlane32_swap_b32 v124, v125"]
    side[(6, 1)] = [f"v_add_u32 v9, {L_UW}, v9", f"v_mul_f32 v124, {hx(1/512)}, v124", f"v_mul_f32 v125, {hx(1/512)}, v125", "v_fma_f32 v125, -v124, v124, v125"]
    side[(6, 2)] = ["v_max_f32 v125, 0, v125", f"v_add_f32 v125, {hx(1e-5)}, v125", "v_rsq_f32 v125, v125"]
    side[(7, 0)] = [f"v_mul_f32 v5, {hx(-LOG2E)}, v125", "v_mul_f32 v125, v5, v124", "v_sub_f32 v125, 0, v125", "v_mov_b32 v124, v5"]
    side[(7, 1)] = [f"s_lshl_b32 s55, s{sT32}, 4", f"s_add_u32 s55, s55, s{sC}", f"s_lshr_b32 s50, s55, {LF()}", "s_lshl_b32 s50, s50, 7", f"s_and_b32 s56, s55, {(1 << LF()) - 1}"]
    side[(7, 2)] = ["s_lshl_b32 s56, s56, 2", "s_add_u32 s56, s56, s50", f"s_add_u32 s56, s56, {hex(WS_FH)}"]
    side[(12, 0)] = [f"s_mul_i32 s52, s{sT32}, {112*1024}", f"s_mul_i32 s53, s{sC}, 7168", "s_add_u32 s52, s52, s53", f"s_add_u32 s52, s52, {hex(WS_H)}"]
    for m in range(7):
        ks = 16 + 2*m
        rw = lambda j: f"ds_read_b128 {vr(TT+4*j,4)}, v9 offset:{256*(j//4)+64+16*(j%4)}"
        ru = lambda j: f"ds_read_b128 {vr(UB+4*(j&1),4)}, v9 offset:{256*(j//4)+16*(j%4)}"
        fm = lambda j: [f"v_fmac_f32 v{TT+4*j+r}, v125, v{UB+4*(j&1)+r}" for r in range(4)]
        side.setdefault((ks+2, 1), []).extend([f"wait{ks+1}"] + fm(2*m))
        side.setdefault((ks+2, 2), []).extend(fm(2*m+1))
        side.setdefault((ks, 2), []).append(rw(2*m))
        side.setdefault((ks+1, 2), []).extend([ru(2*m), rw(2*m+1), ru(2*m+1)])
    for kp in range(16):
        for e in range(2):
            ks = 2*kp + e
            R = rdW1(ks+2) if ks + 2 < 32 else []
            if e == 0: R = [(x, ("h", kp)) for x in w1_half_reads(kp, WH[kp & 1], vH)] + R
            lg.wait(("w", ks)); vm.wait(("y", ks))
            for nt in range(3):
                a(f"v_mfma_f32_32x32x16_bf16 {vr(ACC+16*nt,16)}, {vr(WF[ks%3]+4*nt,4)}, {vr(AF+4*ks,4)}, {vr(ACC+16*nt,16)}")
                [lg.op(*x) for x in R[3*nt:3*nt+3]]
                if nt >= 1:
                    j = 12 + 2*ks + nt - 1
                    if j < 32: vm.op(*next(YL)[1])
                if ks in (4, 5):
                    for q in (((0, 8), (1, 9), (2, 10)), ((3, 11), (4, 12), (5, 13)), ((6, 14), (7, 15)))[nt] if ks == 4 else (((0, 4), (1, 5), (2, 6), (3, 7)), ((0, 2), (1, 3)), ())[nt]:
                        a(f"v_add_f32 v{ST+q[0]}, v{ST+q[0]}, v{ST+q[1]}")
                    if ks == 5 and nt == 2: a(f"v_add_f32 v124, v{ST}, v{ST+1}")
                for x in side.get((ks, nt), []):
                    if x.startswith("ds_"): lg.op(x, ("u", ks))
                    elif x.startswith("wait"): lg.wait(("u", int(x[4:])))
                    else: a(x)
            if e == 1:
                lg.wait(("h", kp))
                a(f"v_smfmac_f32_32x32x32_bf16 {vr(ACC+48,16)}, {vr(WH[kp&1],4)}, {vr(AF+8*kp,8)}, v8")
                if kp % 2 == 0 or kp == 15: stamp(a, 1 + (kp+1)//2, 3)
                if kp == OPT.get("b6b", 4): a("s_barrier")
    a("s_barrier")
    stamp(a, 11)
    E = 80
    for r in range(8): a(f"v_add_f32 v{ACC+48+r}, v{ACC+48+r}, v{ACC+56+r}")
    for nt in range(4):
        t = TT + 16*nt; acc = ACC + 16*nt; n = 16 if nt < 3 else 8
        for r in range(0, n, 2): a(f"v_pk_fma_f32 {vr(acc+r,2)}, {vr(acc+r,2)}, v[124:125], {vr(t+r,2)} op_sel:[0,0,0] op_sel_hi:[1,0,1]")
        for r in range(n): a(f"v_exp_f32 v{E+r}, v{acc+r}")
        for r in range(0, n, 2): a(f"v_pk_add_f32 {vr(E+r,2)}, {vr(E+r,2)}, 1.0 op_sel_hi:[1,0]")
        for r in range(n): a(f"v_rcp_f32 v{E+r}, v{E+r}")
        for r in range(0, n, 2): a(f"v_pk_mul_f32 {vr(acc+r,2)}, {vr(acc+r,2)}, {vr(E+r,2)}")
        o = 208 + 8*nt
        for r in range(n//2): a(f"v_cvt_pk_bf16_f32 v{o+r}, v{acc+2*r}, v{acc+2*r+1}")
        if nt == 2: a("s_add_u32 s52, s52, 4096")
        vm.op(f"buffer_store_dwordx4 {vr(o,4)}, v{vL16}, {S['ws']}, s52 offen offset:{2048*(nt&1)} sc1")
        if nt < 3: vm.op(f"buffer_store_dwordx4 {vr(o+4,4)}, v{vL16}, {S['ws']}, s52 offen offset:{2048*(nt&1)+1024} sc1")
        stamp(a, 10 + nt, 3)
        if nt == 1: vm.q = [("ha", 0)]*len(vm.q)
        if nt == OPT.get("fa", 2) and OPT.get("h2", 0):
            vm.wait(("ha", 0))
            a(f"v_mov_b32 v9, s{sTAG}\ns_mov_b64 exec, 1")
            vm.op(f"buffer_store_dword v9, v{vZ}, {S['ws']}, s56 offen sc1")
            a(f"s_mov_b64 exec, -1\ns_add_u32 s56, s56, {FH_B}")
    stamp(a, 14, 3)
    ACC, WF, GB, XR, NR = [16, 32], [48, 56, 88], 64, 80, 32
    sTT, sKH, sT5, sF5 = 54, 55, 57, 58
    a(f"s_and_b32 s{sTT}, s{sW}, 1\ns_lshr_b32 s{sKH}, s{sW}, 1")
    a(f"s_lshr_b32 s52, s{sC}, 3\ns_lshl_b32 s52, s52, 1\ns_lshl_b32 s{sT5}, s{sTB}, 2\ns_add_u32 s{sT5}, s{sT5}, s52\ns_add_u32 s{sT5}, s{sT5}, s{sTT}")
    a(f"s_and_b32 s{sF5}, s{sC}, 7\ns_lshl_b32 s{sF5}, s{sF5}, 1\ns_add_u32 s{sF5}, s{sF5}, s{sKH}")
    tr_addr(a, 10, 11, True, 7, True)
    a(f"s_lshl_b32 s52, s{sKH}, 6\nv_xor_b32 v10, s52, v10\ns_lshl_b32 s52, s{sKH}, 13\nv_add_u32 v10, s52, v10\nv_xor_b32 v11, 64, v10")
    for r in range(32): a(f"v_mov_b32 v{16+r}, 0")
    poll_addr(a, 5, LF())
    a(f"s_lshl_b32 s52, s{sT5}, {11-LF()}\ns_lshl_b32 s53, s{sKH}, {10-LF()}\ns_add_u32 s52, s52, s53\ns_add_u32 s52, s52, {hex(WS_FH)}")
    a(f"s_lshl_b32 s61, s{sT5}, 15\ns_lshl_b32 s59, s{sF5}, 11\ns_add_u32 s61, s61, s59\ns_add_u32 s61, s61, {hex(WS_X1)}")
    H2 = OPT.get("h2", 0)
    a(f"s_add_u32 s62, s52, {FH_B}")
    if H2:
        a(f"s_mov_b64 exec, 0xff")
        vm.op(f"buffer_load_dword v6, v5, {S['ws']}, s52 offen sc1", "fa")
        a("s_mov_b64 exec, -1")
        set_flag(a, vm, "s56", vZ, 9)
        stamp(a, 12)
        a(f"s_mov_b64 exec, 0xff\nv_cmp_ne_u32 vcc, s{sTAG}, v6\ns_mov_b64 exec, -1\ns_cbranch_vccz La_haok")
        poll(a, vm, "0xff", 5, "s52", 6, 2)
        a("La_haok:")
        vm.q = [None]
    else:
        set_flag(a, vm, "s56", vZ, 9)
        stamp(a, 12)
        poll(a, vm, "0xff", 5, "s52", 6, OPT.get("fh", 16))
    stamp(a, 13); stamp(a, 0, 4)
    a(f"s_mul_i32 s52, s{sT5}, {112*1024}\ns_mul_i32 s53, s{sKH}, {56*1024}\ns_add_u32 s52, s52, s53\ns_add_u32 s52, s52, {hex(WS_H)}")
    def ldH(ks):
        p, j = h_pj(ks)
        if j in (0, 4): a(f"s_add_u32 s53, s{sR}, {p}\ns_and_b32 s53, s53, 7\ns_mul_i32 s53, s53, 7168\ns_add_u32 s53, s53, s52" + ("\ns_add_u32 s53, s53, 4096" if j else ""))
        vm.op(f"buffer_load_dwordx4 {vr(AF+4*(ks%NR),4)}, v{vL16}, {S['ws']}, s53 offen offset:{1024*(j%4)} sc1", ("h", ks))
    PF = 12
    for ks in range(PF):
        ldH(ks)
        if ks == 7: a("s_barrier")
    slot = lambda s: s if s < 9 else s - 9
    def rdW2(ks):
        s, k = ks // 4, ks % 4
        return [(f"ds_read_b64_tr_b16 {vr(WF[ks%3]+4*n+2*st,2)}, v{12+n} offset:{2048*k+1024*st}", ("w", ks)) for n in range(2) for st in range(2)]
    def setslot(s): a(f"v_add_u32 v12, {16384*slot(s)}, v10\nv_add_u32 v13, {16384*slot(s)}, v11")
    lg.reset(); setslot(0)
    for x in rdW2(0) + rdW2(1): lg.op(*x)
    for ks in range(56):
        n = ks + 2
        lg.wait(("w", ks))
        if ks in (11, 19): a("s_barrier")
        if n < 56 and n % 4 == 0:
            if n // 4 in (9, 12): a("s_barrier")
            setslot(n // 4)
        vm.wait(("h", ks))
        a(f"v_mfma_f32_32x32x16_bf16 {vr(ACC[0],16)}, {vr(WF[ks%3],4)}, {vr(AF+4*(ks%NR),4)}, {vr(ACC[0],16)}")
        if n < 56: [lg.op(*x) for x in rdW2(n)]
        a(f"v_mfma_f32_32x32x16_bf16 {vr(ACC[1],16)}, {vr(WF[ks%3]+4,4)}, {vr(AF+4*(ks%NR),4)}, {vr(ACC[1],16)}")
        if H2 and ks == OPT.get("fb", 10):
            a("s_mov_b64 exec, 0xff"); vm.op(f"buffer_load_dword v6, v5, {S['ws']}, s62 offen sc1", "fb"); a("s_mov_b64 exec, -1")
        if H2 and ks + PF == 32:
            vm.wait("fb")
            a(f"s_mov_b64 exec, 0xff\nv_cmp_ne_u32 vcc, s{sTAG}, v6\ns_mov_b64 exec, -1\ns_cbranch_vccz La_hbok")
            q0 = list(vm.q)
            poll(a, vm, "0xff", 5, "s62", 6, 0)
            vm.q = q0
            a("La_hbok:")
        if ks + PF < 56: ldH(ks + PF)
        if ks == 44:
            for q in range(2): vm.op(f"buffer_load_dwordx4 {vr(XR+4*q,4)}, v{vL16}, {S['ws']}, s61 offen offset:{1024*q} sc1", "x1")
        if ks % 4 == 3: stamp(a, 1 + ks//4, 4)
    stamp(a, 14)
    vm.wait("x1")
    a(f"s_xor_b32 s52, s{sW}, 2\ns_lshl_b32 s52, s52, 12\ns_add_u32 s52, s52, {16384*5}\nv_add_u32 v5, s52, v{vL16}")
    a(f"s_lshl_b32 s52, s{sW}, 12\ns_add_u32 s52, s52, {16384*5}\nv_add_u32 v6, s52, v{vL16}")
    a(f"v_bfe_u32 v9, v{vLANE}, 5, 1\nv_lshlrev_b32 v7, 4, v9\ns_lshl_b32 s52, s{sKH}, 7\ns_add_u32 s52, s52, {L_GB}\nv_add_u32 v7, s52, v7")
    for q in range(4): a(f"ds_read_b128 {vr(GB+4*q,4)}, v7 offset:{32*q}")
    XF = 96
    for r in range(8): a(f"v_lshlrev_b32 v{XF+2*r}, 16, v{XR+r}\nv_and_b32 v{XF+2*r+1}, 0xffff0000, v{XR+r}")
    for q in range(4): a(f"ds_write_b128 v5, {vr(ACC[1]+4*q,4)} offset:{1024*q}")
    a("s_waitcnt lgkmcnt(0)\ns_barrier")
    for q in range(4): a(f"ds_read_b128 {vr(ACC[1]+4*q,4)}, v6 offset:{1024*q}")
    a(f"v_and_b32 v7, 31, v{vLANE}\nv_lshlrev_b32 v8, 10, v7\nv_lshl_add_u32 v8, v9, 4, v8")
    a(f"s_lshl_b32 s52, s{sT5}, 15\ns_lshl_b32 s53, s{sF5}, 6\ns_add_u32 s52, s52, s53")
    for q in range(4):
        a(f"s_waitcnt lgkmcnt({3-q})")
        for r in range(4*q, 4*q+4): a(f"v_add_f32 v{ACC[0]+r}, v{ACC[0]+r}, v{ACC[1]+r}")
        for r in range(4*q, 4*q+4): a(f"v_fmac_f32 v{XF+r}, v{ACC[0]+r}, v{GB+r}")
    for r in range(8): a(f"v_cvt_pk_bf16_f32 v{64+r}, v{XF+2*r}, v{XF+2*r+1}")
    for p in range(2):
        a(f"v_permlane32_swap_b32 v{64+4*p}, v{64+4*p+2}\nv_permlane32_swap_b32 v{64+4*p+1}, v{64+4*p+3}")
        vm.op(f"buffer_store_dwordx4 {vr(64+4*p,4)}, v8, {S['out']}, s52 offen offset:{32*p}{['', ' sc1', ' nt', ' sc0 sc1', ' sc1 nt'][OPT.get('osc', 0)]}")

def wq_loop(a):
    a(f"v_lshrrev_b32 v4, 2, v{vLANE}\nv_mul_u32_u24 v4, 3072, v4\nv_and_b32 v5, 3, v{vLANE}\nv_lshl_add_u32 v4, v5, 4, v4")
    a(f"s_lshl_b32 s55, s{sR}, 2\ns_add_u32 s55, s55, s67\ns_lshl_b32 s53, s67, 10\ns_add_u32 s53, s53, {L_WQ}\ns_lshl_b32 s56, s{sC}, 6\ns_mov_b32 s51, 8\nLh_ql:")
    a(f"s_and_b32 s52, s55, 31\ns_mul_i32 s52, s52, {16*3072}\ns_mov_b32 m0, s53\ns_add_u32 s52, s52, s56")
    a(f"buffer_load_dwordx4 v4, {S['wqkv']}, s52 offen lds")
    a(f"s_add_u32 s55, s55, 4\ns_add_u32 s53, s53, 4096\ns_sub_u32 s51, s51, 1\ns_cmp_lg_u32 s51, 0\ns_cbranch_scc1 Lh_ql")

def helper(a):
    vm = Track(a, "vmcnt", 63)
    sH, sCol = 67, 66
    a("Lh_b2:")
    a("s_waitcnt vmcnt(0) lgkmcnt(0)\ns_barrier")
    if OPT.get("st", 7) & 2:
        a(f"s_lshl_b32 s57, s2, 2\ns_add_u32 s57, s57, s{sH}\ns_lshl_b32 s58, s57, 9\ns_mul_i32 s57, s57, {5*128}\ns_add_u32 s57, s57, {9216*128}")
        for n in range(3): a(stouch("w1", 57, n))
    a("s_barrier")
    wq_loop(a)
    if OPT.get("st", 7) & 2:
        for n in range(3, 5): a(stouch("w1", 57, n))
        a(stouch("wo", 58, 0))
    a("s_waitcnt vmcnt(0)")
    if OPT.get("touch", 0) == 1: mall_touch(a)
    stamp(a, 2)
    a("s_barrier")
    if OPT.get("st", 7) & 2:
        for n in range(1, 4): a(stouch("wo", 58, n))
    early, late = att_setup()
    for x in early + late: a(x)
    if OPT.get("hearly", 0):
        att_first(a, vm, OPT.get("fkh", 12))
        a("s_barrier")
        att_q(a)
    else:
        a("s_barrier")
        att_q(a)
        att_first(a, vm, OPT.get("fk", 0))

def helper2(a):
    vm = Track(a, "vmcnt", 63); lg = Track(a, "lgkmcnt", 15)
    sH = 67
    stamp(a, 6, 8)
    set_flag(a, vm, "s64", vZ, 8)
    stamp(a, 7); stamp(a, 7, 8)
    vF, vH = 13, 14
    a(f"s_sub_u32 s52, s{sI}, 8\ns_cmp_ge_u32 s52, 16\ns_cbranch_scc1 Lh_nomod2")
    mod_partial(a, vm, vMOD); mod_join(a, vm, 66, "Lh_nomod2")
    a("Lh_nomod2:")
    a("s_barrier")
    a(f"v_lshlrev_b32 v4, 5, v{vLANE}\ns_lshl_b32 s52, s{sH}, 11\ns_add_u32 s52, s52, 4096")
    gran_poll(a, vm, [f"buffer_load_dwordx4 v[16:19], v4, {S['ws']}, s52 offen sc1", f"buffer_load_dwordx4 v[20:23], v4, {S['ws']}, s52 offen offset:16 sc1"], [16, 20])
    for j, r in enumerate((16, 18, 20, 22)): a(f"v_lshlrev_b32 v{24+2*j}, 16, v{r}\nv_and_b32 v{25+2*j}, 0xffff0000, v{r}")
    a(f"s_cmp_eq_u32 s{sH}, 1\ns_cbranch_scc1 Lh_tabg")
    a(f"s_cmp_eq_u32 s{sH}, 3\ns_cselect_b32 s53, {hx(-1/LOG2E)}, 1.0")
    a(f"s_lshl_b32 s54, s{sC}, 2\ns_and_b32 s55, s{sC}, 7\ns_lshl_b32 s55, s55, 3\ns_lshl_b32 s56, s{sH}, 6\ns_cmp_eq_u32 s{sH}, 3\ns_cselect_b32 s54, s55, s54\ns_cselect_b32 s55, 8, 4")
    a(f"s_cselect_b32 s56, 256, s56\ns_add_u32 s56, s56, {L_TAB}")
    for r in range(8): a(f"v_mul_f32 v{24+r}, s53, v{24+r}")
    a(f"v_subrev_u32 v5, s54, v{vLANE}\nv_cmp_gt_u32 vcc, s55, v5\nv_lshlrev_b32 v5, 5, v5\nv_add_u32 v5, s56, v5")
    a("s_and_saveexec_b64 s[56:57], vcc\nds_write_b128 v5, v[24:27]\nds_write_b128 v5, v[28:31] offset:16\ns_mov_b64 exec, -1")
    a(f"s_cmp_lg_u32 s{sH}, 2\ns_cbranch_scc1 Lh_tabd")
    a("Lh_tabg:")
    a(f"v_lshrrev_b32 v5, 1, v{vLANE}\ns_lshl_b32 s53, s{sR}, 2\nv_subrev_u32 v5, s53, v5\nv_and_b32 v5, 31, v5\nv_lshlrev_b32 v5, 6, v5\nv_and_b32 v6, 1, v{vLANE}\nv_lshl_add_u32 v5, v6, 3, v5")
    a(f"s_and_b32 s53, s{sH}, 1\ns_lshl_b32 s53, s53, 4\ns_add_u32 s53, s53, {L_G}\nv_add_u32 v5, s53, v5")
    a("v_mov_b32 v17, v18\nv_mov_b32 v21, v22\nds_write_b64 v5, v[16:17]\nds_write_b64 v5, v[20:21] offset:32")
    a("Lh_tabd:")
    a("s_waitcnt vmcnt(0) lgkmcnt(0)")
    stamp(a, 8)
    a("s_barrier")
    vm.reset()
    vW2 = 10
    a(f"v_lshrrev_b32 v{vW2}, 3, v{vLANE}\nv_lshlrev_b32 v{vW2}, 10, v{vW2}\nv_bfe_u32 v5, v{vLANE}, 4, 1\nv_lshlrev_b32 v5, 2, v5\nv_xor_b32 v5, v5, v{vLANE}\nv_and_b32 v5, 7, v5\nv_lshl_add_u32 v{vW2}, v5, 4, v{vW2}")
    a(f"s_lshl_b32 s58, s{sR}, 7\ns_lshl_b32 s59, s{sH}, 11")
    def w2_row(s):
        if s < 8:
            a(f"s_add_u32 s61, s{sR}, {s}\ns_and_b32 s61, s61, 7\ns_mul_i32 s61, s61, 7\ns_add_u32 s61, s61, s{sH}")
        else:
            a(f"s_add_u32 s60, s{sH}, {4*(s-8)}\ns_mul_i32 s61, s60, 43\ns_lshr_b32 s61, s61, 7\ns_mul_i32 s62, s61, 3\ns_sub_u32 s60, s60, s62")
            a(f"s_add_u32 s61, s61, s{sR}\ns_and_b32 s61, s61, 7\ns_mul_i32 s61, s61, 7\ns_add_u32 s61, s61, s60\ns_add_u32 s61, s61, 4")
        a("s_lshl_b32 s61, s61, 14\ns_add_u32 s61, s61, s58")
    def w2_stage(s, thr=None):
        sl = s if s < 9 else s - 9
        w2_row(s)
        for kh in range(2):
            for hf in range(2):
                a(f"s_add_u32 m0, s59, {16384*sl+8192*kh+1024*hf}\ns_add_u32 s52, s61, {56*kh*16384+8192*hf}")
                vm.op(f"buffer_load_dwordx4 v{vW2}, {S['w2']}, s52 offen lds", ("w2", s))
        if thr: vm.wait(("w2", s-1))
    w2_stage(0); w2_stage(1)
    ACC, GF, WF = 16, 32, 48
    a(f"v_bfe_u32 v9, v{vLANE}, 5, 1\nv_lshlrev_b32 v6, 5, v9\nv_and_b32 v5, 1, v{vLANE}\nv_lshl_add_u32 v6, v5, 4, v6\nv_add_u32 v6, {L_G}, v6")
    for r in range(16): a(f"v_mov_b32 v{ACC+r}, 0")
    a(f"s_cmp_eq_u32 s{sH}, 3\ns_cbranch_scc1 Lh_uwh")
    tr_addr(a, 4, 5, True, 6, False)
    a(f"s_lshl_b32 s52, s{sH}, 10\ns_add_u32 s52, s52, {L_W1}\nv_add_u32 v4, s52, v4\ns_mov_b32 s51, 16")
    a("Lh_uwl:")
    for e in range(2):
        a(f"ds_read_b128 {vr(GF+4*e,4)}, v6 offset:{64*e}")
        for st in range(2): a(f"ds_read_b64_tr_b16 {vr(WF+4*e+2*st,2)}, v4 offset:{3072*e+512*st}")
    a("v_add_u32 v4, 7168, v4\nv_add_u32 v6, 128, v6\ns_sub_u32 s51, s51, 1")
    for e in range(2):
        a(f"s_waitcnt lgkmcnt({3-3*e})")
        a(f"v_mfma_f32_32x32x16_bf16 {vr(ACC,16)}, {vr(WF+4*e,4)}, {vr(GF+4*e,4)}, {vr(ACC,16)}")
    a("s_cmp_lg_u32 s51, 0\ns_cbranch_scc1 Lh_uwl")
    a("s_branch Lh_uwd")
    a("Lh_uwh:")
    half_tr_addr(a, 4, 5)
    a(f"v_add_u32 v4, {L_W1+6144}, v4\ns_mov_b32 s51, 16")
    a(f"v_and_b32 v8, 16, v0\nv_cmp_eq_u32 vcc, 0, v8\nv_mov_b32 v8, 0xeeeeeeee\nv_mov_b32 v5, 0x44444444\nv_cndmask_b32 v8, v8, v5, vcc")
    a("Lh_uwhl:")
    for e in range(2): a(f"ds_read_b128 {vr(GF+4*e,4)}, v6 offset:{64*e}")
    for st in range(2): a(f"ds_read_b64_tr_b16 {vr(WF+2*st,2)}, v4 offset:{256*st}")
    a("v_add_u32 v4, 7168, v4\nv_add_u32 v6, 128, v6\ns_sub_u32 s51, s51, 1\ns_waitcnt lgkmcnt(0)")
    a(f"v_smfmac_f32_32x32x32_bf16 {vr(ACC,16)}, {vr(WF,4)}, {vr(GF,8)}, v8")
    a("s_cmp_lg_u32 s51, 0\ns_cbranch_scc1 Lh_uwhl")
    a("s_nop 7\ns_nop 3")
    for r in range(8): a(f"v_add_f32 v{ACC+r}, v{ACC+r}, v{ACC+8+r}")
    a("Lh_uwd:")
    a(f"v_and_b32 v5, 1, v{vLANE}\nv_cmp_eq_u32 vcc, 1, v5\nv_mov_b32 v7, {hx(-LOG2E)}\nv_cndmask_b32 v7, 1.0, v7, vcc")
    a(f"v_lshlrev_b32 v6, 7, v9\nv_lshl_add_u32 v6, v5, 6, v6\ns_lshl_b32 s52, s{sH}, 8\ns_add_u32 s52, s52, {L_UW}\nv_add_u32 v6, s52, v6")
    a("s_nop 3")
    for r in range(16): a(f"v_mul_f32 v{ACC+r}, v{ACC+r}, v7")
    a("s_mov_b32 exec_lo, 3\ns_mov_b32 exec_hi, 3")
    for q in range(4): a(f"ds_write_b128 v6, {vr(ACC+4*q,4)} offset:{16*q}")
    a("s_mov_b64 exec, -1\ns_waitcnt lgkmcnt(0)")
    stamp(a, 9)
    a("s_barrier")
    NREG = OPT.get("nreg", 12); S0 = 14 - NREG; RB = 48
    order = list(range(S0, 9)) + list(range(9, 14))
    for s in order:
        w2_row(s)
        for j in range(4):
            a(f"s_add_u32 s52, s61, {56*(j>>1)*16384+8192*(j&1)}")
            vm.op(f"buffer_load_dwordx4 {vr(RB+16*(s-S0)+4*j,4)}, v{vW2}, {S['w2']}, s52 offen", ("w2r", s))
    a("s_barrier")
    a(f"v_add_u32 v4, s59, v{vL16}\nv_add_u32 v5, 0x10000, v4\nv_add_u32 v6, 0x20000, v4")
    def w2_put(s):
        sl = s if s < 9 else s - 9
        for j in range(4): a(f"ds_write_b128 v{4 + sl//4}, {vr(RB+16*(s-S0)+4*j,4)} offset:{16384*(sl%4)+8192*(j>>1)+1024*(j&1)}")
    for s in range(2, S0): w2_stage(s, True)
    for s in range(S0, 9):
        vm.wait(("w2r", s)); w2_put(s)
        if (s - S0) % 2 == 1: a("s_waitcnt lgkmcnt(4)")
    vm.wait_all()
    a("s_waitcnt lgkmcnt(0)")
    stamp(a, 12)
    a("s_barrier")
    a("s_barrier")
    for s in (9, 10, 11): w2_put(s)
    a("s_barrier")
    for s in (12, 13): w2_put(s)
    a("s_waitcnt lgkmcnt(8)\ns_barrier")
    a("s_waitcnt lgkmcnt(0)\ns_barrier")
    a("s_barrier")

def diag_out(a, slot):
    if not DIAG: return
    stamp(a, 15)
    a("s_memrealtime s[52:53]\ns_waitcnt vmcnt(0) lgkmcnt(0)")
    a("s_mov_b64 exec, 1")
    for i in range(16):
        a(f"s_sub_u32 s{70+2*i}, s{70+2*i}, s3\nv_mov_b32 v{16+i}, s{70+2*i}")
    a("v_mov_b32 v32, s69\nv_mov_b32 v33, s52" if False else "v_mov_b32 v32, v250\nv_mov_b32 v33, s52")
    a(f"s_lshl_b32 s54, s2, 10\ns_lshl_b32 s55, s{sW}, 7\ns_add_u32 s54, s54, s55\ns_add_u32 s54, s54, {hex(WS_DIAG)}")
    for q in range(4): a(f"buffer_store_dwordx4 {vr(16+4*q,4)}, v{vZ}, {S['ws']}, s54 offen offset:{16*q}")
    a(f"buffer_store_dwordx2 v[32:33], v{vZ}, {S['ws']}, s54 offen offset:64")
    if OPT.get("dbgout") and slot == 0:
        a(f"s_lshl_b32 s54, s2, 3\ns_add_u32 s54, s54, s{sW}\ns_cmp_lg_u32 s54, {OPT['dbgout']*8}\ns_cbranch_scc1 Ldiag{slot}")
        for i in range(1, 16): a(f"buffer_store_dword v{16+i}, v{vZ}, {S['dbg']}, 0 offen offset:{4*i}")
    a(f"Ldiag{slot}:")

def build():
    a = Asm()
    a("s_cmp_ge_u32 s2, 256\ns_cbranch_scc1 Lend")
    for nm in ("x", "dbg", "wmod", "c", "wqkv", "ws", "wo", "w1", "w2", "out"):
        a(f"s_load_dwordx2 {sr(SRD[nm],2)}, s[0:1], {KA[nm]}")
    if DIAG: a("s_memtime s[70:71]\ns_memrealtime s[72:73]")
    a(f"v_lshrrev_b32 v4, 6, v0\nv_and_b32 v{vLANE}, 63, v0\nv_mov_b32 v{vZ}, 0\nv_readfirstlane_b32 s{sW}, v4\nv_lshlrev_b32 v{vL16}, 4, v{vLANE}")
    a(f"s_getpc_b64 s[56:57]\nLpc:\ns_sub_u32 s56, s56, Lpc-{NAME}_kernel\ns_subb_u32 s57, s57, 0")
    a(f"s_and_b32 s{sX}, s2, 7\ns_lshr_b32 s{sI}, s2, 3\ns_sub_u32 s67, s{sW}, 4")
    a(f"s_cmp_lt_u32 s{sW}, 6\ns_cbranch_scc1 Le_nopf")
    a(f"s_lshl_b32 s58, s{sI}, 1\ns_add_u32 s58, s58, s67\ns_sub_u32 s58, s58, 2\ns_lshl_b32 s58, s58, 10\ns_min_u32 s58, s58, Lcode_end-{NAME}_kernel-1024\nv_add_u32 v5, s58, v{vL16}")
    a("global_load_dwordx4 v[16:19], v5, s[56:57]")
    a("Le_nopf:")
    a(f"s_lshr_b32 s{sTB}, s{sX}, 1\ns_lshl_b32 s{sTB}, s{sTB}, 2\ns_lshr_b32 s52, s{sI}, 3\ns_add_u32 s{sTB}, s{sTB}, s52")
    a(f"s_and_b32 s{sR}, s{sI}, 7\ns_and_b32 s{sC}, s{sX}, 1\ns_lshl_b32 s{sC}, s{sC}, 3\ns_add_u32 s{sC}, s{sC}, s{sR}")
    for nm in ("x", "dbg", "wmod", "c", "wqkv", "ws"): a(f"s_mov_b32 s{SRD[nm]+2}, {hex(SZ[nm])}\ns_mov_b32 s{SRD[nm]+3}, 0x20000")
    a("s_memrealtime s[54:55]")
    if DIAG:
        a("s_waitcnt lgkmcnt(0)\ns_mov_b32 s3, s70\ns_mov_b32 s68, s72\nv_mov_b32 v250, s72")
        if OPT.get("rt"): a("s_mov_b32 s3, s72")
        for i in range(16): a(f"s_mov_b32 s{70+2*i}, s3")
    a(f"s_cmp_ge_u32 s{sW}, 4\ns_cbranch_scc1 Lp0_h\ns_cmp_lt_u32 s{sI}, 8\ns_cbranch_scc1 Lp0_mod\ns_cmp_ge_u32 s{sI}, 24\ns_cbranch_scc1 Lp0_warm")
    p0_ln(a)
    a("Lp0_h:")
    p0_helper(a)
    a("Lp0_mod:")
    p0_mod(a)
    a("Lp0_warm:")
    p0_warm(a)
    active(a)
    a("s_branch Latt")
    helper(a)
    a("Latt:")
    vm = Track(a, "vmcnt", 63)
    slow = attention(a, vm)
    a(f"s_cmp_ge_u32 s{sW}, 4\ns_cbranch_scc1 Lhelper2")
    active2(a)
    if OPT.get("hold"):
        a(f"Lhold:\ns_memrealtime s[52:53]\ns_waitcnt lgkmcnt(0)\ns_sub_u32 s52, s52, s{sTAG}\ns_cmp_lt_u32 s52, {OPT['hold']}\ns_cbranch_scc1 Lhold")
    if DIAG: a("v_mov_b32 v250, s68")
    diag_out(a, 0)
    a("s_endpgm")
    a("Lhelper2:")
    helper2(a)
    diag_out(a, 1)
    a("s_endpgm")
    slow(a)
    a("Lend:")
    return a

def emit(a):
    hdr = open(f"cdna_kernels/{NAME}.s.ref").read().split("\n")
    out = [l for l in hdr if l.startswith(";") and "@launch" not in l and "Override launch" not in l and "grid=ceil" not in l]
    out.append(f"; @launch grid=(256,1,1) block=(512,1,1) lds={LDS_SIZE}")
    a.fix()
    out += ['.amdgcn_target "amdgcn-amd-amdhsa--gfx950"', ".text", f".globl {NAME}_kernel", ".p2align 8", f".type {NAME}_kernel,@function", f"{NAME}_kernel:",
            a.text(), "    s_endpgm", "Lcode_end:", '.section .rodata,"a"', ".p2align 6", f".amdhsa_kernel {NAME}_kernel", "  .amdhsa_next_free_vgpr 256",
            "  .amdhsa_next_free_sgpr 102", "  .amdhsa_accum_offset 256", "  .amdhsa_group_segment_fixed_size 0", "  .amdhsa_kernarg_size 88",
            "  .amdhsa_user_sgpr_count 2", "  .amdhsa_user_sgpr_kernarg_segment_ptr 1", "  .amdhsa_system_sgpr_workgroup_id_x 1",
            "  .amdhsa_float_denorm_mode_32 3", ".end_amdhsa_kernel"]
    return "\n".join(out) + "\n"

if __name__ == "__main__":
    import argparse
    p = argparse.ArgumentParser(); p.add_argument("out"); p.add_argument("--diag", action="store_true"); p.add_argument("--opt", default="")
    args = p.parse_args()
    DIAG = args.diag
    for o in args.opt.split(","):
        if o: OPT[o.split("=")[0]] = int(o.split("=")[1]) if "=" in o else 1
    set_nring(OPT.get('nring', 4))
    open(args.out, "w").write(emit(build()))
```

```python
import sys, struct
from asmlib import *

NAME = "adaLN_cond__softmax_full_mha__dense_activation_silu__prompt"
WS_MODG = 0x0
WS_STATS = 0x10000
WS_FXN, WS_FKV, WS_FO, WS_FX1, WS_FH = 0x50000, 0x52000, 0x80000, 0xC0000, 0xE0000
FH_B = 0x8000
WS_XN, WS_K, WS_V, WS_O, WS_X1, WS_Y, WS_H = 0x200000, 0x400000, 0x600000, 0x800000, 0xA00000, 0xC00000, 0xE00000
WS_DIAG = 0x1600000
WS_SIZE = 0x1700000
KA = dict(x=0, wqkv=8, wo=16, w1=32, w2=40, c=48, wmod=56, out=64, dbg=72, ws=80)
SZ = dict(x=2048*512*2, wqkv=512*1536*2, wo=512*512*2, w1=512*1792*2, w2=1792*512*2, c=1024, wmod=512*3072*2, out=2048*512*2, dbg=256, ws=WS_SIZE)
SRD = dict(x=4, wqkv=8, wo=12, w1=16, w2=20, c=24, wmod=28, out=32, dbg=36, ws=40)
S = {k: sr(v, 4) for k, v in SRD.items()}
sW, sTB, sC, sTAG, sI, sX, sR = 44, 45, 46, 47, 48, 49, 69
SPIN = 20000
def f2u(f): return struct.unpack("<I", struct.pack("<f", f))[0]
def hx(f): return hex(f2u(f))
LOG2E = 1.4426950408889634
DIAG = False
OPT = {}
L_WKV, L_WQ = 0, 64*1024
L_DG = 96*1024
L_SA = 112*1024
L_QX = 144*1024
L_WO = 0
L_W1 = 32*1024
L_RED = 88*1024
L_TAB = 156*1024
L_GA, L_G2, L_GB, L_SCR, L_UW, L_G = L_TAB, L_TAB+128, L_TAB+256, L_TAB+512, L_TAB+1024, L_TAB+2048
LDS_SIZE = 160*1024

def stamp(a, i, grp=0):
    if DIAG and (OPT.get("focus", 0) == grp or i == 15): a(f"{'s_memrealtime' if OPT.get('rt') else 's_memtime'} s[{70+2*i}:{71+2*i}]")

_uid = [0]
def poll(a, vm, mask, vaddr, soff, vt, first=0):
    _uid[0] += 1; n = _uid[0]
    a(f"s_mov_b64 exec, {mask}\ns_mov_b32 s50, {SPIN}")
    if first: a(f"s_sleep {first}")
    a(f"Lpoll{n}:\nbuffer_load_dword v{vt}, v{vaddr}, {S['ws']}, {soff} offen sc1\ns_waitcnt vmcnt(0)\nv_cmp_ne_u32 vcc, s{sTAG}, v{vt}\ns_sub_u32 s50, s50, 1\ns_cbranch_vccz Lpolld{n}")
    if OPT.get("psleep", 0): a(f"s_sleep {OPT.get('psleep', 0)}")
    a(f"s_cmp_lg_u32 s50, 0\ns_cbranch_scc1 Lpoll{n}")
    a(f"Lpolld{n}:\ns_mov_b64 exec, -1")
    vm.reset()

def LF(): return OPT.get("lf", 3)
def flag_off(a, d, f, base, lf=3):
    a(f"s_lshr_b32 s50, s{f}, {lf}\ns_lshl_b32 s50, s50, 7\ns_and_b32 s{d}, s{f}, {(1 << lf) - 1}\ns_lshl_b32 s{d}, s{d}, 2\ns_add_u32 s{d}, s{d}, s50\ns_add_u32 s{d}, s{d}, {hex(base)}")

def set_flag(a, vm, soff, vz, vt):
    vm.wait_all()
    a(f"v_mov_b32 v{vt}, s{sTAG}\ns_mov_b64 exec, 1")
    vm.op(f"buffer_store_dword v{vt}, v{vz}, {S['ws']}, {soff} offen sc1")
    a("s_mov_b64 exec, -1")

def rne_bf16(a, d, s):
    a(f"v_cvt_pk_bf16_f32 v{d}, v{s}, v{s}\nv_lshlrev_b32 v{d}, 16, v{d}")

def tr_addr(a, d, t, perm, rowbytes_log2, swz):
    a(f"v_bfe_u32 v{d}, v0, 2, 2\nv_bfe_u32 v{t}, v0, 5, 1")
    a(f"v_lshl_add_u32 v{d}, v{t}, {2 if perm else 3}, v{d}\nv_lshlrev_b32 v{d}, {rowbytes_log2}, v{d}")
    a(f"v_bfe_u32 v{t}, v0, 4, 1\nv_lshl_add_u32 v{d}, v{t}, 5, v{d}")
    a(f"v_and_b32 v{t}, 3, v0\nv_lshl_add_u32 v{d}, v{t}, 3, v{d}")
    if swz: a(f"v_bfe_u32 v{t}, v0, 3, 1\nv_lshl_add_u32 v{d}, v{t}, 6, v{d}")

def half_tr_addr(a, d, t):
    a(f"v_bfe_u32 v{d}, v0, 2, 1")
    a(f"v_bfe_u32 v{t}, v0, 4, 1\nv_lshl_add_u32 v{d}, v{t}, 1, v{d}")
    a(f"v_bfe_u32 v{t}, v0, 3, 1\nv_lshl_add_u32 v{d}, v{t}, 2, v{d}")
    a(f"v_bfe_u32 v{t}, v0, 5, 1\nv_lshl_add_u32 v{d}, v{t}, 4, v{d}")
    a(f"v_lshlrev_b32 v{d}, 5, v{d}\nv_and_b32 v{t}, 3, v0\nv_lshl_add_u32 v{d}, v{t}, 3, v{d}")

vLANE, vL16, vZ = 1, 2, 3
def poll_addr(a, d, lf=3):
    a(f"v_lshrrev_b32 v{d}, {lf}, v{vLANE}\nv_lshlrev_b32 v{d}, 5, v{d}\nv_and_or_b32 v{d}, v{vLANE}, {(1 << lf) - 1}, v{d}\nv_lshlrev_b32 v{d}, 2, v{d}")

def mod_issue(a, vm, sCol, B=16, T=4):
    a(f"v_bfe_u32 v{T}, v0, 1, 7\nv_and_b32 v{T+1}, 1, v0")
    a(f"v_mul_u32_u24 v{T+2}, 6144, v{T}\nv_lshl_add_u32 v{T+2}, v{T+1}, 4, v{T+2}\nv_lshlrev_b32 v{T+3}, 1, v{T}")
    a(f"s_lshl_b32 s52, s{sCol}, 1")
    for m in range(4):
        vm.op(f"buffer_load_dwordx4 {vr(B+4*m,4)}, v{T+2}, {S['wmod']}, s52 offen", "mod")
        if m < 3: a(f"s_add_u32 s52, s52, {128*6144}")
    for m in range(4): vm.op(f"buffer_load_ushort v{B+16+m}, v{T+3}, {S['c']}, 0 offen offset:{256*m}", "mod")

def mod_partial(a, vm, B=16):
    vm.wait("mod")
    C, F, T, A = B+16, B+24, B+20, B+32
    for m in range(4): a(f"v_lshlrev_b32 v{C+m}, 16, v{C+m}")
    for m in range(4): a(f"v_mul_f32 v{T+m}, {hx(-LOG2E)}, v{C+m}")
    for m in range(4): a(f"v_exp_f32 v{T+m}, v{T+m}")
    for m in range(4): a(f"v_add_f32 v{T+m}, 1.0, v{T+m}")
    for m in range(4): a(f"v_rcp_f32 v{T+m}, v{T+m}")
    for m in range(4): a(f"v_mul_f32 v{C+m}, v{C+m}, v{T+m}")
    for m in range(4): a(f"v_cvt_pk_bf16_f32 v{C+m}, v{C+m}, v{C+m}")
    for m in range(4): a(f"v_lshlrev_b32 v{C+m}, 16, v{C+m}")
    for m in range(4):
        for r in range(4):
            a(f"v_lshlrev_b32 v{F+2*r}, 16, v{B+4*m+r}\nv_and_b32 v{F+2*r+1}, 0xffff0000, v{B+4*m+r}")
        for j in range(8):
            a(f"v_mul_f32 v{A+j}, v{F+j}, v{C}" if m == 0 else f"v_fmac_f32 v{A+j}, v{F+j}, v{C+m}")
    for j in range(4): a(f"v_permlane32_swap_b32 v{A+j}, v{A+4+j}")
    for j in range(4): a(f"v_add_f32 v{A+j}, v{A+j}, v{A+4+j}")
    for j in range(2): a(f"v_permlane16_swap_b32 v{A+j}, v{A+2+j}")
    for j in range(2): a(f"v_add_f32 v{A+j}, v{A+j}, v{A+2+j}")
    for r in (8, 4, 2):
        for j in range(2): a(f"v_add_f32_dpp v{A+j}, v{A+j}, v{A+j} row_ror:{r} row_mask:0xf bank_mask:0xf")
    a("v_bfe_u32 v8, v0, 6, 2\nv_lshlrev_b32 v8, 6, v8\nv_and_b32 v9, 1, v0\nv_lshl_add_u32 v8, v9, 5, v8")
    a("v_bfe_u32 v9, v0, 4, 1\nv_lshl_add_u32 v8, v9, 3, v8\nv_bfe_u32 v9, v0, 5, 1\nv_lshl_add_u32 v8, v9, 4, v8")
    a(f"v_add_u32 v8, {L_SCR}, v8")
    a("s_mov_b32 exec_lo, 0x00030003\ns_mov_b32 exec_hi, 0x00030003")
    a(f"ds_write_b64 v8, v[{A}:{A+1}]")
    a("s_mov_b64 exec, -1")

def mod_final(a, vm, sCol):
    a("s_mov_b64 exec, 0xff")
    a(f"v_lshlrev_b32 v8, 3, v{vLANE}\nv_add_u32 v9, {L_SCR}, v8")
    for w in range(4): a(f"ds_read_b64 {vr(240+2*w,2)}, v9 offset:{64*w}")
    a(f"s_lshr_b32 s52, s{sCol}, 9\ns_cmp_eq_u32 s52, 1\ns_cselect_b32 s53, 1.0, 0\ns_cmp_eq_u32 s52, 4\ns_cselect_b32 s53, 1.0, s53")
    a(f"s_lshl_b32 s52, s{sCol}, 2")
    a("s_waitcnt lgkmcnt(0)")
    for j in range(2): a(f"v_add_f32 v{240+j}, v{240+j}, v{242+j}\nv_add_f32 v{244+j}, v{244+j}, v{246+j}")
    for j in range(2): a(f"v_add_f32 v{240+j}, v{240+j}, v{244+j}")
    a("v_cvt_pk_bf16_f32 v242, v240, v241\nv_lshlrev_b32 v240, 16, v242\nv_and_b32 v241, 0xffff0000, v242")
    a("v_add_f32 v240, s53, v240\nv_add_f32 v241, s53, v241")
    a(f"v_cvt_pk_bf16_f32 v240, v240, v241\nv_mov_b32 v241, s{sTAG}")
    vm.op(f"buffer_store_dwordx2 v[240:241], v8, {S['ws']}, s52 offen sc1")
    a("s_mov_b64 exec, -1")

def gran_poll(a, vm, loads, regs):
    _uid[0] += 1; n = _uid[0]
    a(f"s_mov_b32 s50, {SPIN}\nLgp{n}:")
    for t in loads: a(t)
    a("s_waitcnt vmcnt(0)")
    first = True
    for r in regs:
        for o in (1, 3):
            if first: a(f"v_xor_b32 v15, s{sTAG}, v{r+o}"); first = False
            else: a(f"v_xor_b32 v14, s{sTAG}, v{r+o}\nv_or_b32 v15, v15, v14")
    a("v_cmp_ne_u32 vcc, 0, v15\ns_sub_u32 s50, s50, 1")
    a(f"s_cbranch_vccz Lgpd{n}\ns_sleep {OPT.get('gsleep', 1)}\ns_cmp_lg_u32 s50, 0\ns_cbranch_scc1 Lgp{n}\nLgpd{n}:")
    vm.reset()

def tag_get(a):
    _uid[0] += 1; n = _uid[0]
    a(f"v_mov_b32 v8, {L_SCR+260}\ns_mov_b32 s50, {SPIN*20}\nLtg{n}:\nds_read_b32 v9, v8\ns_sub_u32 s50, s50, 1\ns_waitcnt lgkmcnt(0)\nv_readfirstlane_b32 s{sTAG}, v9")
    a(f"s_cmp_lg_u32 s{sTAG}, 0\ns_cbranch_scc1 Ltgd{n}\ns_cmp_lg_u32 s50, 0\ns_cbranch_scc1 Ltg{n}\nLtgd{n}:")

def tag_now(a, v):
    _uid[0] += 1; n = _uid[0]
    a(f"s_mov_b32 s50, {SPIN}\nLtn{n}:\nv_readfirstlane_b32 s{sTAG}, v{v}\ns_sub_u32 s50, s50, 1")
    a(f"s_cmp_lg_u32 s{sTAG}, 0\ns_cbranch_scc1 Ltnd{n}\ns_cmp_eq_u32 s50, 0\ns_cbranch_scc1 Ltnd{n}")
    a(f"buffer_load_dword v{v}, v{vZ}, {S['dbg']}, 0 offen sc1\ns_waitcnt vmcnt(0)\ns_branch Ltn{n}\nLtnd{n}:")

def read_tag(a):
    a(f"v_mov_b32 v8, {L_SCR+260}\nds_read_b32 v9, v8\ns_waitcnt lgkmcnt(0)\nv_readfirstlane_b32 s{sTAG}, v9")

def mall_touch(a):
    _uid[0] += 1; n = _uid[0]
    a(f"v_lshlrev_b32 v5, 7, v{vLANE}\ns_cmp_eq_u32 s{sW}, 6\ns_cbranch_scc1 Lt6_{n}\ns_cmp_eq_u32 s{sW}, 7\ns_cbranch_scc1 Lt7_{n}")
    a(f"s_mul_i32 s52, s2, {56*128}\ns_cmp_eq_u32 s{sW}, 5\ns_cbranch_scc1 Lt5_{n}")
    a(f"buffer_load_dword v248, v5, {S['w1']}, s52 offen\ns_branch Ltd_{n}")
    a(f"Lt5_{n}:\nbuffer_load_dword v248, v5, {S['w2']}, s52 offen\ns_branch Ltd_{n}")
    a(f"Lt6_{n}:\nv_lshrrev_b32 v6, 5, v{vLANE}\nv_mul_u32_u24 v6, {6144-4096}, v6\nv_add_u32 v5, v5, v6\ns_mul_i32 s52, s2, 12288\ns_add_u32 s52, s52, 2048")
    a(f"buffer_load_dword v248, v5, {S['wmod']}, s52 offen\ns_branch Ltd_{n}")
    a(f"Lt7_{n}:\ns_lshl_b32 s52, s2, 11\ns_mov_b64 exec, 0xffff\nbuffer_load_dword v248, v5, {S['wo']}, s52 offen\ns_mov_b64 exec, -1")
    a(f"Ltd_{n}:")

def stouch(nm, soff, line):
    return f"s_buffer_load_dwordx2 s[0:1], {S[nm]}, s{soff} offset:{128*line+60}"

def mod_join(a, vm, sCol, name, pre=None):
    a(f"v_mov_b32 v8, {L_SCR+256}\nv_mov_b32 v9, 1\ns_waitcnt lgkmcnt(0)\ns_mov_b64 exec, 1\nds_add_rtn_u32 v9, v8, v9\ns_mov_b64 exec, -1\ns_waitcnt lgkmcnt(0)")
    a(f"v_readfirstlane_b32 s52, v9\ns_cmp_lg_u32 s52, 3\ns_cbranch_scc1 {name}")
    if pre: pre()
    mod_final(a, vm, sCol)

NRING = 4
def set_nring(n):
    global NRING
    NRING = n
vSTASH, vMOD, vXR = 180, 208, 208
QF, OA, SB, RING = 16, 32, [96, 112], 128
vV, vWO, vW1, vW1H = 4, 12, 13, 14
sHH, sKQ, sK, sV = 54, 55, 56, 57
def att_setup():
    a = Asm()
    a(f"s_and_b32 s{sHH}, s{sW}, 1\ns_lshr_b32 s{sKQ}, s{sW}, 1")
    a(f"v_and_b32 v{vV}, 15, v{vLANE}\nv_lshlrev_b32 v{vV}, 4, v{vV}\nv_bfe_u32 v5, v{vLANE}, 5, 1\nv_lshl_add_u32 v{vV}, v5, 8, v{vV}")
    a(f"s_lshl_b32 s58, s{sC}, 1\ns_add_u32 s58, s58, s{sHH}")
    a(f"s_lshl_b32 s59, s58, 16")
    a(f"s_lshl_b32 s52, s{sKQ}, 14\ns_add_u32 s52, s52, s59\ns_add_u32 s{sK}, s52, {hex(WS_K)}\ns_add_u32 s{sV}, s52, {hex(WS_V)}")
    a("s_mov_b32 s60, 0x0000ffff\ns_mov_b32 s61, 0x0000ffff")
    a(f"s_lshl_b32 s52, s{sKQ}, 8\ns_lshr_b32 s53, s{sC}, 1\ns_lshl_b32 s53, s53, 11\ns_add_u32 s52, s52, s53\ns_add_u32 s62, s52, {hex(WS_FKV)}")
    a(f"s_and_b32 s65, s{sTB}, 3\ns_lshl_b32 s65, s65, 12")
    a(f"v_lshrrev_b32 v6, 2, v{vLANE}\nv_and_b32 v11, 3, v{vLANE}\nv_lshlrev_b32 v{vWO}, 10, v6\nv_lshl_add_u32 v{vWO}, v11, 4, v{vWO}")
    w1_voffs(a, vW1, vW1H, 6, 11, 15)
    a(f"v_and_b32 v5, 7, v{vLANE}\nv_lshlrev_b32 v5, 2, v5\nv_bfe_u32 v6, v{vLANE}, 3, 1\nv_lshl_add_u32 v5, v6, 7, v5\nv_bfe_u32 v6, v{vLANE}, 4, 1\nv_lshl_add_u32 v5, v6, 10, v5")
    a(f"v_and_b32 v6, 0x1b, v{vLANE}\nv_cmp_eq_u32 vcc, 16, v6\nv_mov_b32 v15, 0x3f803f80\ns_nop 0\nv_cndmask_b32 v15, 0, v15, vcc")
    for r in range(64): a(f"v_mov_b32 v{OA+r}, 0")
    early = [I.text for I in a.L]
    late = [f"v_mov_b32 v{RING+12*sl+4+r}, v15" for sl in range(NRING) for r in range(8)] + [f"v_mov_b32 v{RING+12*NRING}, 0xdddddddd"]
    return early, late

def q_join(a):
    _uid[0] += 1; n = _uid[0]
    a(f"v_mov_b32 v9, {L_SCR+264}\ns_mov_b32 s50, {SPIN*20}\nLqj{n}:\nds_read_b32 v10, v9\ns_sub_u32 s50, s50, 1\ns_waitcnt lgkmcnt(0)\nv_readfirstlane_b32 s52, v10")
    a(f"s_cmp_eq_u32 s52, 4\ns_cbranch_scc1 Lqjd{n}\ns_cmp_lg_u32 s50, 0\ns_cbranch_scc1 Lqj{n}\nLqjd{n}:")

def att_q(a):
    for i in range(4):
        a(f"s_add_u32 s52, s{sKQ}, {i}\ns_and_b32 s52, s52, 3\ns_lshl_b32 s53, s{sHH}, 2\ns_add_u32 s52, s52, s53\ns_lshl_b32 s52, s52, 10\ns_add_u32 s52, s52, {L_QX}")
        a(f"v_add_u32 v9, s52, v{vL16}\nds_read_b128 {vr(QF+4*i,4)}, v9")

def att_ld(a, vm, kt):
    sl = kt % NRING
    if kt % 4 == 0: a(f"s_add_u32 s63, s{sK}, s62\ns_add_u32 s64, s{sV}, s62\ns_add_u32 s62, s62, 4096\ns_and_b32 s62, s62, 0x3fff")
    o = 1024*(kt % 4)
    vm.op(f"buffer_load_dwordx4 {vr(RING+12*sl,4)}, v{vL16}, {S['ws']}, s63 offen offset:{o} sc1", ("kv", kt))
    a("s_mov_b64 exec, s[60:61]")
    vm.op(f"buffer_load_dwordx4 {vr(RING+12*sl+4,4)}, v{vV}, {S['ws']}, s64 offen offset:{o} sc1", ("kv", kt))
    vm.op(f"buffer_load_dwordx4 {vr(RING+12*sl+8,4)}, v{vV}, {S['ws']}, s64 offen offset:{o+512} sc1", ("kv", kt))
    a("s_mov_b64 exec, -1")

def att_first(a, vm, first):
    stamp(a, 4)
    poll(a, vm, "0xffffffff", 5, "s62", 6, first)
    stamp(a, 5)
    a("s_mov_b32 s62, s65")
    for kt in range(NRING-1): att_ld(a, vm, kt)

def attention(a, vm):
    IDX = RING + 12*NRING
    assert IDX < vSTASH
    def kp_addr(d):
        return [f"s_lshl_b32 s65, s{sR}, 1", f"s_add_u32 s65, s65, s{sW}", f"s_add_u32 s65, s65, {d}", "s_and_b32 s65, s65, 15", f"s_mul_i32 s65, s65, {32*3584}",
                f"s_mul_i32 s52, s{sC}, 224", "s_add_u32 s65, s65, s52", f"s_mul_i32 s66, s{sW}, 7168", f"s_add_u32 s66, s66, {L_W1+7168*d}"]
    wo = [[f"s_add_u32 m0, s66, {L_WO+1024*j}", f"s_add_u32 s52, s65, {16384*j}", f"buffer_load_dwordx4 v{vWO}, {S['wo']}, s52 offen lds"] for j in range(4)]
    wo[0] = [f"s_add_u32 s65, s{sW}, s{sR}", "s_and_b32 s65, s65, 7", "s_lshl_b32 s65, s65, 16", f"s_lshl_b32 s52, s{sC}, 6", "s_add_u32 s65, s65, s52", f"s_lshl_b32 s66, s{sW}, 12"] + wo[0]
    k1 = w1_kp_dma(65, 66, vW1, vW1H); k1[0] = kp_addr(0) + k1[0]
    k2 = []
    for j, p in enumerate(w1_kp_dma(65, 66, vW1, vW1H)):
        k2.append([p[1], p[2].replace("buffer_load_dwordx4 ", f"buffer_load_dwordx4 {vr(vSTASH+4*j,4)}, ").replace(" lds", "")])
    k2[0] = kp_addr(8)[:7] + k2[0]
    p0 = OPT.get("pre0", 5)
    pre = {4*p0+1: wo[:2], 4*p0+5: wo[2:], 4*p0+9: k1[:3], 4*p0+13: k1[3:], 4*p0+17: k2[:3], 4*p0+21: k2[3:]}
    ld = lambda kt: att_ld(a, vm, kt)
    for kt in range(NRING-1): vm.q += [('kv', kt)]*3
    def QK(dst, sl, q): return f"v_mfma_f32_32x32x16_bf16 {vr(dst,16)}, {vr(RING+12*sl,4)}, {vr(QF+4*q,4)}, 0"
    def SM(q, sl, half, s): return f"v_smfmac_f32_32x32x32_bf16 {vr(OA+16*q,16)}, {vr(RING+12*sl+4+4*half,4)}, {vr(s+8*half,8)}, v{IDX}"
    a("s_setprio 1")
    a(f"s_and_b32 s53, s{sW}, 3\ns_lshl_b32 s52, s2, 2\ns_add_u32 s53, s53, s52\ns_mul_i32 s53, s53, {9*128}")
    ST = [stouch("w1", 53, n) for n in range(9)] + [stouch("wmod", 53, n) for n in range(16)] + [stouch("w2", 53, n) for n in range(14)]
    a("s_waitcnt lgkmcnt(0)")
    vm.wait(("kv", 0))
    a(QK(SB[0], 0, 0))
    a("s_nop 7\ns_nop 3")
    TAIL = OPT.get("tail", 0)
    qof = lambda t: (t + 1) % 4 if (TAIL and t >= 60) else t % 4
    def red_write(i):
        return [f"s_add_u32 s52, s{sKQ}, {i}\ns_and_b32 s52, s52, 3\ns_mul_i32 s52, s52, 3\ns_add_u32 s52, s52, s63\ns_add_u32 s52, s52, {i-1}\ns_mul_i32 s52, s52, 2304\ns_add_u32 s52, s52, {L_RED}",
                f"v_add_u32 v6, s52, v{vL16}\nv_add_u32 v7, s52, v15",
                f"ds_write_b128 v6, {vr(OA+16*i,4)}", f"ds_write_b128 v6, {vr(OA+16*i+4,4)} offset:1024", f"ds_write_b32 v7, v{OA+16*i+8} offset:2048"]
    for t in range(64):
        kt, q = t // 4, t % 4
        cur, prv = SB[t & 1], SB[(t + 1) & 1]
        E = [f"v_exp_f32 v{cur+r}, v{cur+r}" for r in range(16)]
        if t == OPT.get("prio", 55):
            a(f"s_cmp_ge_u32 s{sW}, 4\ns_cbranch_scc1 Latt_prio\ns_setprio 0\nLatt_prio:")
        a(E[0]); a(E[1])
        if t > 0: a(SM(qof(t-1), ((t-1)//4) % NRING, 1, prv))
        if t == 59: a(f"s_mul_i32 s63, s{sHH}, 12\nv_lshlrev_b32 v15, 2, v{vLANE}")
        if q == 0 and kt + NRING - 1 < 16: ld(kt + NRING - 1)
        if t in pre and not OPT.get("nopre"):
            for p in pre[t]:
                for x in p[:-1]: a(x)
                vm.op(p[-1], "pre")
        if t == OPT.get("cpf", 99):
            a(f"s_cmp_lg_u32 s{sW}, 7\ns_cbranch_scc1 Latt_nocp\ns_getpc_b64 s[50:51]\nLpc2:\ns_and_b32 s52, s{sI}, 3\ns_lshl_b32 s52, s52, 13\nv_lshlrev_b32 v5, 7, v{vLANE}\nv_add_u32 v5, s52, v5")
            a("v_min_u32 v5, Lcode_end-Lpc2-4, v5\nglobal_load_dword v249, v5, s[50:51]\nLatt_nocp:")
        if t == 57:
            a(f"s_cmp_ge_u32 s{sW}, 4\ns_cbranch_scc1 Latt_nox")
            a(f"v_bfe_u32 v5, v{vLANE}, 5, 1\nv_and_b32 v6, 31, v{vLANE}\nv_lshlrev_b32 v6, 10, v6\nv_lshl_add_u32 v6, v5, 3, v6")
            a(f"s_lshl_b32 s52, s67, 15\ns_lshl_b32 s50, s{sC}, 6\ns_add_u32 s52, s52, s50")
            for qq in range(4): a(f"buffer_load_dwordx2 {vr(vXR+2*qq,2)}, v6, {S['x']}, s52 offen offset:{16*qq}")
            a("Latt_nox:")
        if t == 50:
            a(f"s_cmp_lt_u32 s{sW}, 4\ns_cbranch_scc1 Latt_nomod\ns_sub_u32 s52, s{sI}, 8\ns_cmp_ge_u32 s52, 16\ns_cbranch_scc1 Latt_nomod")
            a(f"s_lshl_b32 s66, s{sX}, 2\ns_lshr_b32 s52, s52, 2\ns_add_u32 s66, s66, s52\ns_lshl_b32 s66, s66, 6")
            a(f"s_and_b32 s52, s{sI}, 3\ns_lshl_b32 s52, s52, 4\ns_add_u32 s66, s66, s52\ns_add_u32 s66, s66, 1024")
            mod_issue(a, Track(a, "vmcnt", 63), 66, vMOD, T=244)
            a("Latt_nomod:")
        if t == OPT.get("w2t", 62) and not OPT.get("nopre"):
            a(f"s_cmp_eq_u32 s{sW}, 7\ns_cbranch_scc1 Latt_nopf\ns_mul_i32 s52, s{sI}, 7\ns_add_u32 s52, s52, s{sW}\ns_lshl_b32 s52, s52, 13\nv_lshlrev_b32 v5, 7, v{vLANE}")
            a(f"buffer_load_dword v248, v5, {S['w2']}, s52 offen")
            a("Latt_nopf:")
        if OPT.get("st", 7) & 4 and t % 3 != 2 and t - t//3 < 39:
            j = t - t//3
            if j == 9: a(f"s_lshl_b32 s53, s2, 1\ns_bfe_u32 s52, s{sW}, 0x10001\ns_add_u32 s53, s53, s52\ns_mul_i32 s53, s53, 6144\ns_lshl_b32 s52, s{sHH}, 11\ns_add_u32 s53, s53, s52\ns_add_u32 s53, s53, 2048")
            if j == 25: a(f"s_and_b32 s53, s{sW}, 3\ns_lshl_b32 s52, s2, 2\ns_add_u32 s53, s53, s52\ns_mul_i32 s53, s53, {14*128}")
            a(ST[j])
        sh = OPT.get("vb", 1)
        for r in range(2, 4+sh): a(E[r])
        if t < 63:
            if q == 3: vm.wait(("kv", kt + 1))
            a(QK(prv, ((t+1)//4) % NRING, qof(t+1)))
        for r in range(4+sh, 10+sh): a(E[r])
        a(SM(qof(t), kt % NRING, 0, cur))
        W = red_write(t - 60) if (TAIL and t >= 61) else []
        for r in range(10+sh, 16):
            a(E[r])
            if W: a(W.pop(0))
        for x in W: a(x)
        if t % 4 == 3 and t < 60: stamp(a, t//4, 5)
    a("s_nop 1")
    a(SM(qof(63), 15 % NRING, 1, SB[1]))
    a("s_setprio 0")
    stamp(a, 6); stamp(a, 0, 8)
    if not TAIL:
        for i in range(1, 4):
            for x in red_write(i): a(x)
    a(f"s_mul_i32 s52, s{sKQ}, 3\ns_add_u32 s52, s52, s63\ns_mul_i32 s52, s52, 2304\ns_add_u32 s52, s52, {L_RED}")
    a(f"v_add_u32 v6, s52, v{vL16}\nv_add_u32 v7, s52, v15")
    a(f"s_lshl_b32 s52, s{sTB}, 2\ns_add_u32 s52, s52, s{sKQ}\ns_lshl_b32 s52, s52, 5\ns_add_u32 s52, s52, s58")
    a(f"s_lshl_b32 s63, s52, 10\ns_add_u32 s63, s63, {hex(WS_O)}")
    flag_off(a, 64, 52, WS_FO, LF())
    stamp(a, 1, 8)
    vm.wait_all()
    a("s_waitcnt lgkmcnt(0)")
    stamp(a, 2, 8)
    a("s_barrier")
    stamp(a, 3, 8)
    R = 96
    for i in range(3):
        a(f"ds_read_b128 {vr(R+12*i,4)}, v6 offset:{2304*i}\nds_read_b128 {vr(R+12*i+4,4)}, v6 offset:{2304*i+1024}\nds_read_b32 v{R+12*i+8}, v7 offset:{2304*i+2048}")
    a(f"s_mov_b32 s52, {hx(2.0**-60)}\ns_mov_b32 s53, {hx(2.0**60)}\ns_movk_i32 s65, 0x207")
    for i in range(3):
        a(f"s_waitcnt lgkmcnt({6-3*i})")
        for r in range(9): a(f"v_add_f32 v{OA+r}, v{OA+r}, v{R+12*i+r}")
    a(f"v_add_f32 v8, v{OA}, v{OA+1}\nv_add_f32 v9, v{OA+2}, v{OA+3}\nv_add_f32 v10, v{OA+4}, v{OA+5}\nv_add_f32 v11, v{OA+6}, v{OA+7}")
    a("v_add_f32 v8, v8, v9\nv_add_f32 v10, v10, v11\nv_add_f32 v8, v8, v10")
    a(f"v_cmp_nge_f32 vcc, v{OA+8}, s52\nv_cmp_nle_f32 s[54:55], v{OA+8}, s53\nv_cmp_class_f32 s[56:57], v8, s65")
    a(f"v_rcp_f32 v8, v{OA+8}")
    a("s_or_b64 vcc, vcc, s[54:55]\ns_or_b64 vcc, vcc, s[56:57]")
    a("s_cbranch_vccnz Lslow")
    a("Lnorm:")
    for r in range(8): a(f"v_mul_f32 v{OA+r}, v{OA+r}, v8")
    for r in range(4): a(f"v_cvt_pk_bf16_f32 v{8+r}, v{OA+2*r}, v{OA+2*r+1}")
    vm.op(f"buffer_store_dwordx4 v[8:11], v{vL16}, {S['ws']}, s63 offen sc1")
    stamp(a, 4, 8)
    a("s_barrier")
    stamp(a, 5, 8)
    a(f"s_mul_i32 s52, s{sW}, 7168\ns_add_u32 s52, s52, {L_W1+8*7168}\nv_add_u32 v5, s52, v{vL16}")
    for j in range(7): a(f"ds_write_b128 v5, {vr(vSTASH+4*j,4)} offset:{1024*j}")
    def slow(b):
        tv = Track(b, "vmcnt", 63)
        b("Lslow:")
        poll_addr(b, 5)
        b(f"s_lshr_b32 s52, s{sC}, 1\ns_lshl_b32 s52, s52, 11\ns_add_u32 s62, s52, {hex(WS_FKV)}")
        poll(b, tv, "-1", 5, "s62", 6)
        b("s_add_u32 s62, s62, 1024")
        poll(b, tv, "-1", 5, "s62", 6)
        b(f"s_waitcnt vmcnt(0)\ns_add_u32 s{sK}, s59, {hex(WS_K)}\ns_mov_b32 s51, 64\nv_mov_b32 v8, 0xff800000")
        b("Ls1:")
        b(f"buffer_load_dwordx4 {vr(RING,4)}, v{vL16}, {S['ws']}, s{sK} offen sc1\ns_add_u32 s{sK}, s{sK}, 1024\ns_waitcnt vmcnt(0)")
        b(QK(SB[0], 0, 0))
        for r in range(0, 16, 2): b(f"v_max3_f32 v8, v{SB[0]+r}, v{SB[0]+r+1}, v8")
        b("s_sub_u32 s51, s51, 1\ns_cmp_lg_u32 s51, 0\ns_cbranch_scc1 Ls1")
        b("v_mov_b32 v9, v8\nv_permlane32_swap_b32 v8, v9\nv_max_f32 v8, v8, v9")
        for r in range(16): b(f"v_sub_f32 v{SB[1]+r}, 0, v8")
        for r in range(16): b(f"v_mov_b32 v{OA+r}, 0")
        b(f"s_add_u32 s{sK}, s59, {hex(WS_K)}\ns_add_u32 s{sV}, s59, {hex(WS_V)}\ns_mov_b32 s51, 64")
        b("Ls2:")
        b(f"buffer_load_dwordx4 {vr(RING,4)}, v{vL16}, {S['ws']}, s{sK} offen sc1\ns_mov_b64 exec, s[60:61]")
        b(f"buffer_load_dwordx4 {vr(RING+4,4)}, v{vV}, {S['ws']}, s{sV} offen sc1\nbuffer_load_dwordx4 {vr(RING+8,4)}, v{vV}, {S['ws']}, s{sV} offen offset:512 sc1")
        b(f"s_mov_b64 exec, -1\ns_add_u32 s{sK}, s{sK}, 1024\ns_add_u32 s{sV}, s{sV}, 1024\ns_waitcnt vmcnt(0)")
        b(f"v_mfma_f32_32x32x16_bf16 {vr(SB[0],16)}, {vr(RING,4)}, {vr(QF,4)}, {vr(SB[1],16)}")
        for r in range(16): b(f"v_exp_f32 v{SB[0]+r}, v{SB[0]+r}")
        b(SM(0, 0, 0, SB[0])); b(SM(0, 0, 1, SB[0]))
        b("s_sub_u32 s51, s51, 1\ns_cmp_lg_u32 s51, 0\ns_cbranch_scc1 Ls2")
        b(f"s_nop 7\ns_nop 7\nv_rcp_f32 v8, v{OA+8}\ns_nop 0\ns_branch Lnorm")
    return slow

def w1_voffs(a, vF, vH, p=7, q=8, r=9):
    a(f"v_lshrrev_b32 v{p}, 2, v{vLANE}\nv_and_b32 v{q}, 3, v{vLANE}\nv_mul_u32_u24 v{vF}, 3584, v{p}\nv_lshl_add_u32 v{vF}, v{q}, 4, v{vF}")
    a(f"v_lshrrev_b32 v{p}, 1, v{vLANE}\nv_and_b32 v{q}, 0x13, v{p}\nv_bfe_u32 v{r}, v{p}, 2, 1\nv_lshl_add_u32 v{q}, v{r}, 3, v{q}\nv_bfe_u32 v{r}, v{p}, 3, 1\nv_lshl_add_u32 v{q}, v{r}, 2, v{q}")
    a(f"v_mul_u32_u24 v{vH}, 3584, v{q}\nv_and_b32 v{q}, 1, v{vLANE}\nv_lshl_add_u32 v{vH}, v{q}, 4, v{vH}")

def w1_kp_dma(sOff, sLds, vF, vH, dOff=0, dLds=0):
    L = []
    for e in range(2):
        for nt in range(3):
            L.append([f"s_add_u32 m0, s{sLds}, {dLds+3072*e+1024*nt}", f"s_add_u32 s52, s{sOff}, {dOff+16*3584*e+64*nt}",
                      f"buffer_load_dwordx4 v{vF}, {S['w1']}, s52 offen lds"])
    L.append([f"s_add_u32 m0, s{sLds}, {dLds+6144}", f"s_add_u32 s52, s{sOff}, {dOff+192}", f"buffer_load_dwordx4 v{vH}, {S['w1']}, s52 offen lds"])
    return L

def w1_reads(kp, e, dst, vF):
    base = 7168*kp + 3072*e
    return [f"ds_read_b64_tr_b16 {vr(dst+4*nt+2*st,2)}, v{vF[base >> 15]} offset:{(base & 0x7fff)+1024*nt+512*st}" for nt in range(3) for st in range(2)]
def w1_half_reads(kp, dst, vH):
    base = 7168*kp + 6144
    return [f"ds_read_b64_tr_b16 {vr(dst+2*st,2)}, v{vH[base >> 15]} offset:{(base & 0x7fff)+256*st}" for st in range(2)]

def h_pj(ks):
    return (ks // 4, ks % 4) if ks < 32 else ((ks - 32) // 3, 4 + (ks - 32) % 3)

def rot_loads(a, vm, base_s, dst, tag, div=1):
    for ks in range(32):
        if ks % 4 == 0: a(f"s_add_u32 s53, s{sR}, {ks//4}\ns_and_b32 s53, s53, 7\ns_lshl_b32 s53, s53, 12\ns_add_u32 s53, s53, s{base_s}")
        yield ks, (f"buffer_load_dwordx4 {vr(dst+4*ks,4)}, v{vL16}, {S['ws']}, s53 offen offset:{1024*(ks%4)} sc1", (tag, ks//div))

def lds_init_b0(a):
    late_srds(a)
    a(f"v_mov_b32 v8, {L_SCR+256}\nv_mov_b32 v10, 0\nv_mov_b32 v11, 0\nds_write_b64 v8, v[10:11]\nds_write_b32 v8, v10 offset:8\ns_waitcnt lgkmcnt(0)\ns_barrier")

EB = lambda bit: OPT.get('eb1', 2) & bit
def tag_to_lds_b1(a, late):
    a(f"v_mov_b32 v8, s{sTAG}\nv_mov_b32 v9, {L_SCR+260}\nds_write_b32 v9, v8\ns_waitcnt lgkmcnt(0)")
    stamp(a, 0)
    if late: a("s_barrier")
    a("s_branch La_p1")

def p0_ln(a):
    vm = Track(a, "vmcnt", 63)
    a(f"s_and_b32 s52, s{sX}, 1\ns_lshl_b32 s52, s52, 4\ns_add_u32 s52, s52, s{sI}\ns_sub_u32 s52, s52, 8\ns_lshl_b32 s52, s52, 2\ns_add_u32 s52, s52, s{sW}")
    a(f"s_lshr_b32 s53, s{sX}, 1\ns_lshl_b32 s53, s53, 7\ns_add_u32 s56, s52, s53\ns_lshl_b32 s53, s56, 12")
    a(f"v_and_b32 v4, 3, v{vLANE}\nv_lshrrev_b32 v5, 2, v{vLANE}\nv_lshlrev_b32 v6, 10, v4\nv_lshl_add_u32 v6, v5, 4, v6")
    a("s_waitcnt lgkmcnt(0)")
    for m in range(4): vm.op(f"buffer_load_dwordx4 {vr(16+4*m,4)}, v6, {S['x']}, s53 offen offset:{256*m}")
    lds_init_b0(a)
    a("v_lshrrev_b32 v7, 1, v5\nv_lshlrev_b32 v7, 10, v7\nv_and_b32 v8, 1, v5\nv_lshl_add_u32 v7, v8, 9, v7\nv_lshl_add_u32 v7, v4, 4, v7")
    a(f"s_lshr_b32 s53, s56, 3\ns_lshl_b32 s53, s53, 15\ns_and_b32 s54, s56, 7\ns_lshl_b32 s54, s54, 6\ns_add_u32 s53, s53, s54\ns_add_u32 s53, s53, {hex(WS_XN)}")
    flag_off(a, 55, 56, WS_FXN)
    stamp(a, 0, 7)
    vm.wait_all()
    stamp(a, 1, 7)
    vm.op(f"buffer_load_dword v15, v{vZ}, {S['dbg']}, 0 offen sc1")
    F = 32
    for r in range(16): a(f"v_lshlrev_b32 v{F+2*r}, 16, v{16+r}\nv_and_b32 v{F+2*r+1}, 0xffff0000, v{16+r}")
    def red(v, t):
        for r in (4, 8): a(f"v_add_f32_dpp v{v}, v{v}, v{v} row_ror:{r} row_mask:0xf bank_mask:0xf")
        a(f"v_mov_b32 v{t}, v{v}\nv_permlane16_swap_b32 v{v}, v{t}\nv_add_f32 v{v}, v{v}, v{t}")
        a(f"v_mov_b32 v{t}, v{v}\nv_permlane32_swap_b32 v{v}, v{t}\nv_add_f32 v{v}, v{v}, v{t}")
    a(f"v_pk_add_f32 v[64:65], {vr(F,2)}, {vr(F+2,2)}\nv_pk_add_f32 v[66:67], {vr(F+4,2)}, {vr(F+6,2)}")
    for r in range(8, 32, 4): a(f"v_pk_add_f32 v[64:65], v[64:65], {vr(F+r,2)}\nv_pk_add_f32 v[66:67], v[66:67], {vr(F+r+2,2)}")
    a("v_pk_add_f32 v[64:65], v[64:65], v[66:67]\nv_add_f32 v64, v64, v65")
    red(64, 65)
    a(f"v_mul_f32 v64, {hx(-1/512)}, v64")
    for r in range(0, 32, 2): a(f"v_pk_add_f32 {vr(F+r,2)}, {vr(F+r,2)}, v[64:65] op_sel_hi:[1,0]")
    a(f"v_pk_mul_f32 v[66:67], {vr(F,2)}, {vr(F,2)}\nv_pk_mul_f32 v[68:69], {vr(F+2,2)}, {vr(F+2,2)}")
    for r in range(4, 32, 4): a(f"v_pk_fma_f32 v[66:67], {vr(F+r,2)}, {vr(F+r,2)}, v[66:67]\nv_pk_fma_f32 v[68:69], {vr(F+r+2,2)}, {vr(F+r+2,2)}, v[68:69]")
    a("v_pk_add_f32 v[66:67], v[66:67], v[68:69]\nv_add_f32 v66, v66, v67")
    red(66, 67)
    a(f"v_mov_b32 v67, {hx(1e-5)}\nv_fmac_f32 v67, {hx(1/512)}, v66\nv_rsq_f32 v66, v67")
    for r in range(0, 32, 2): a(f"v_pk_mul_f32 {vr(F+r,2)}, {vr(F+r,2)}, v[66:67] op_sel_hi:[1,0]")
    for m in range(4):
        for r in range(4): a(f"v_cvt_pk_bf16_f32 v{16+4*m+r}, v{F+8*m+2*r}, v{F+8*m+2*r+1}")
        vm.op(f"buffer_store_dwordx4 {vr(16+4*m,4)}, v7, {S['ws']}, s53 offen sc1")
        if m < 3: a("s_add_u32 s53, s53, 8192")
    stamp(a, 2, 7)
    if EB(1): a("s_barrier")
    vm.wait_all()
    stamp(a, 3, 7)
    tag_now(a, 15)
    set_flag(a, vm, "s55", vZ, 8)
    stamp(a, 4, 7)
    tag_to_lds_b1(a, not EB(1))

def p0_mod(a):
    vm = Track(a, "vmcnt", 63)
    sCol = 51
    a(f"s_lshl_b32 s{sCol}, s{sX}, 1\ns_lshr_b32 s52, s{sI}, 2\ns_add_u32 s{sCol}, s{sCol}, s52\ns_lshl_b32 s{sCol}, s{sCol}, 6")
    a(f"s_and_b32 s52, s{sI}, 3\ns_lshl_b32 s52, s52, 4\ns_add_u32 s{sCol}, s{sCol}, s52")
    a("s_waitcnt lgkmcnt(0)")
    mod_issue(a, vm, sCol)
    lds_init_b0(a)
    vm.wait("mod")
    stamp(a, 1, 7)
    a(f"buffer_load_dword v15, v{vZ}, {S['dbg']}, 0 offen sc1")
    if EB(4): a("s_barrier")
    mod_partial(a, vm)
    a("s_waitcnt vmcnt(0)")
    tag_now(a, 15)
    mod_join(a, vm, sCol, "La_joined")
    a("La_joined:")
    stamp(a, 4, 7)
    tag_to_lds_b1(a, not EB(4))

def p0_warm(a):
    a(f"s_sub_u32 s52, s{sI}, 24\ns_lshl_b32 s52, s52, 1\ns_add_u32 s52, s52, s{sW}\ns_lshl_b32 s52, s52, 5")
    a(f"v_lshrrev_b32 v4, 1, v{vLANE}\nv_add_u32 v4, s52, v4\nv_mul_u32_u24 v4, 6144, v4\nv_and_b32 v5, 1, v{vLANE}\nv_lshl_add_u32 v4, v5, 7, v4\ns_lshl_b32 s52, s{sX}, 8")
    a(f"s_waitcnt lgkmcnt(0)\ns_cmp_ge_u32 s{sW}, 2\ns_cbranch_scc1 La_nowm")
    a(f"buffer_load_dword v6, v4, {S['wmod']}, s52 offen")
    a("La_nowm:")
    lds_init_b0(a)
    a("s_waitcnt vmcnt(0)")
    stamp(a, 1, 7)
    a(f"buffer_load_dword v15, v{vZ}, {S['dbg']}, 0 offen sc1")
    if EB(2): a("s_barrier")
    a("s_waitcnt vmcnt(0)")
    tag_now(a, 15)
    tag_to_lds_b1(a, not EB(2))

def p0_helper(a):
    vm = Track(a, "vmcnt", 63)
    sH = 67
    a(f"v_mov_b32 v32, 0\nv_mov_b32 v33, 0\nv_mov_b32 v34, 0\nv_mov_b32 v35, 0\ns_lshl_b32 s52, s{sH}, 12\ns_add_u32 s52, s52, {L_DG}\nv_add_u32 v9, s52, v{vL16}")
    for j in range(4): a(f"ds_write_b128 v9, v[32:35] offset:{1024*j}")
    a(f"s_lshl_b32 s52, s2, 2\ns_add_u32 s52, s52, s{sH}\ns_and_b32 s53, s52, 1\ns_lshr_b32 s52, s52, 1\ns_mul_i32 s52, s52, 3072")
    a("s_lshl_b32 s57, s53, 9\ns_add_u32 s57, s57, s52\ns_lshl_b32 s53, s53, 10\ns_add_u32 s52, s52, s53\ns_add_u32 s52, s52, 1024")
    a("s_waitcnt lgkmcnt(0)")
    a(f"s_lshl_b32 s58, s2, 3\ns_add_u32 s58, s58, s{sW}\ns_cmp_lg_u32 s58, {64*8+4}\ns_cbranch_scc1 Le_notag")
    a(f"s_or_b32 s54, s54, 1\nv_mov_b32 v7, s54\ns_mov_b64 exec, 1\nbuffer_store_dword v7, v{vZ}, {S['dbg']}, 0 offen sc1\ns_mov_b64 exec, -1")
    a("Le_notag:")
    s0 = OPT.get("st0", 9)
    for n in range(min(s0, 4) if s0 != 9 else 1): a(stouch("wqkv", 52, n))
    late_srds(a)
    a("s_barrier")
    if s0 == 9: a("s_waitcnt lgkmcnt(0)")
    for n in range(min(s0, 4) if s0 != 9 else 1, 8): a(stouch("wqkv", 52, n))
    for n in range(4): a(stouch("wqkv", 57, n))
    a(f"v_lshrrev_b32 v4, 3, v{vLANE}\nv_mul_u32_u24 v4, 3072, v4\nv_bfe_u32 v5, v{vLANE}, 4, 1\nv_lshlrev_b32 v5, 2, v5\nv_xor_b32 v5, v5, v{vLANE}\nv_and_b32 v5, 7, v5\nv_lshl_add_u32 v4, v5, 4, v4")
    a(f"s_and_b32 s56, s{sC}, 1\ns_add_u32 s56, s56, 1\ns_lshl_b32 s56, s56, 10\ns_lshr_b32 s52, s{sC}, 1\ns_lshl_b32 s52, s52, 7\ns_add_u32 s56, s56, s52")
    a(f"s_and_b32 s55, s{sTB}, 3\ns_lshl_b32 s55, s55, 3\ns_add_u32 s55, s55, s{sH}\ns_lshl_b32 s57, s{sR}, 2\ns_mov_b32 s51, 8")
    stamp(a, 0, 7)
    a("s_barrier")
    stamp(a, 1, 7)
    a("Lh_wl:")
    a(f"s_and_b32 s55, s55, 31\ns_lshl_b32 s53, s55, 11\ns_add_u32 s52, s55, s57\ns_and_b32 s52, s52, 31\ns_mul_i32 s52, s52, {16*3072}\ns_mov_b32 m0, s53\ns_add_u32 s52, s52, s56")
    a(f"buffer_load_dwordx4 v4, {S['wqkv']}, s52 offen lds\ns_add_u32 m0, s53, 1024\ns_add_u32 s52, s52, {8*3072}\nbuffer_load_dwordx4 v4, {S['wqkv']}, s52 offen lds")
    a(f"s_add_u32 s55, s55, 4\ns_sub_u32 s51, s51, 1\ns_cmp_lg_u32 s51, 0\ns_cbranch_scc1 Lh_wl")
    tag_get(a)
    stamp(a, 0); stamp(a, 2, 7)
    a(f"s_cmp_ge_u32 s{sH}, 2\ns_cbranch_scc1 Lh_b2")
    a(f"s_lshl_b32 s52, s{sH}, 11")
    a(f"v_lshrrev_b32 v5, 3, v{vLANE}\ns_lshl_b32 s53, s{sR}, 1\nv_subrev_u32 v5, s53, v5\nv_and_b32 v5, 15, v5\nv_xor_b32 v6, 8, v5")
    gran_poll(a, vm, [f"buffer_load_dwordx4 v[16:19], v{vL16}, {S['ws']}, s52 offen sc1", f"buffer_load_dwordx4 v[20:23], v{vL16}, {S['ws']}, s52 offen offset:1024 sc1"], [16, 20])
    stamp(a, 1)
    a(f"s_cmp_lg_u32 s{sH}, 0\ns_cbranch_scc1 Lh_g1")
    for j, r in enumerate((16, 18, 20, 22)): a(f"v_lshlrev_b32 v{24+2*j}, 16, v{r}\nv_and_b32 v{25+2*j}, 0xffff0000, v{r}")
    a(f"v_and_b32 v7, 1, v{vLANE}\nv_lshlrev_b32 v7, 6, v7\nv_bfe_u32 v9, v{vLANE}, 1, 2\nv_lshl_add_u32 v7, v9, 4, v7\nv_add_u32 v7, {L_SA}, v7")
    a("v_lshl_add_u32 v5, v5, 7, v7\nv_lshl_add_u32 v6, v6, 7, v7")
    a("ds_write_b128 v5, v[24:27]\nds_write_b128 v6, v[28:31]")
    a("s_branch Lh_b2")
    a("Lh_g1:")
    a(f"v_and_b32 v7, 7, v{vLANE}\nv_lshlrev_b32 v7, 6, v7\nv_bfe_u32 v9, v{vLANE}, 2, 1\nv_lshl_add_u32 v7, v9, 9, v7\nv_and_b32 v9, 3, v{vLANE}\nv_lshl_add_u32 v7, v9, 2, v7\nv_add_u32 v7, {L_DG}, v7")
    a("v_lshl_add_u32 v5, v5, 10, v7\nv_lshl_add_u32 v6, v6, 10, v7")
    for j in range(2):
        for e in range(4):
            a(f"ds_write_b16{'_d16_hi' if e & 1 else ''} v{5+j}, v{16+4*j+2*(e>>1)} offset:{16*e + 2*(e & 1)}")
    a("s_branch Lh_b2")

def late_srds(a):
    for nm in ("wo", "w1", "w2", "out"): a(f"s_mov_b32 s{SRD[nm]+2}, {hex(SZ[nm])}\ns_mov_b32 s{SRD[nm]+3}, 0x20000")

def active(a):
    vm = Track(a, "vmcnt", 63); lg = Track(a, "lgkmcnt", 15)
    sT32 = 67
    a("La_p1:")
    ACC = [16, 32, 48]; WF = [64, 72]; DH = [88, 104]; DG = [120, 124]; AF = 128
    a(f"s_lshl_b32 s{sT32}, s{sTB}, 2\ns_add_u32 s{sT32}, s{sT32}, s{sW}")
    a(f"v_lshlrev_b32 v5, 2, v{vLANE}\ns_lshl_b32 s52, s{sT32}, 7\ns_add_u32 s52, s52, {hex(WS_FXN)}")
    tr_addr(a, 10, 12, True, 7, True)
    a("v_xor_b32 v12, 64, v10")
    a(f"v_bfe_u32 v11, v0, 5, 1\nv_lshlrev_b32 v11, 6, v11\nv_add_u32 v11, {L_SA}, v11\nv_add_u32 v13, {L_DG}, v{vL16}")
    a(f"v_and_b32 v14, 2, v0\nv_cmp_eq_u32 vcc, 0, v14\nv_mov_b32 v14, 0xeeeeeeee\nv_mov_b32 v15, 0x44444444\nv_cndmask_b32 v14, v14, v15, vcc")
    for r in range(48): a(f"v_mov_b32 v{16+r}, 0")
    poll(a, vm, "0xff", 5, "s52", 6, OPT.get("fn", 0))
    stamp(a, 1)
    a(f"s_lshl_b32 s52, s{sT32}, 15\ns_add_u32 s52, s52, {hex(WS_XN)}")
    a(f"s_lshr_b32 s54, s{sC}, 1\ns_lshl_b32 s54, s54, 18\ns_lshl_b32 s55, s{sT32}, 10\ns_add_u32 s54, s54, s55")
    a(f"s_bitcmp1_b32 s{sC}, 0\ns_cbranch_scc1 La_vwg")
    def rdS(b):
        L = [(f"ds_read_b128 {vr(DH[b&1]+4*q,4)}, v11 offset:{128*b+16*q}", ("s", b)) for q in range(4)]
        return L + [(f"ds_read_b128 {vr(DG[b&1],4)}, v13 offset:{1024*b}", ("s", b))]
    def rdW(ks):
        return [(f"ds_read_b64_tr_b16 {vr(WF[ks&1]+4*g+2*st,2)}, v{(10, 12)[g]} offset:{2048*ks+1024*st}", ("w", ks)) for g in range(2) for st in range(2)]
    def SMF(b): return f"v_smfmac_f32_32x32x32_bf16 {vr(DH[b&1],16)}, {vr(DG[b&1],4)}, {vr(AF+8*b,8)}, v14"
    def CVT(b): return [f"v_cvt_pk_bf16_f32 v{AF+8*b+r}, v{DH[b&1]+2*r}, v{DH[b&1]+2*r+1}" for r in range(8)]
    for isV in (0, 1):
        if isV: a("La_vwg:")
        vm.reset(); lg.reset()
        XL = rot_loads(a, vm, 52, AF, "xn", 2)
        def xn_issue(n):
            for _ in range(n):
                r = next(XL, None)
                if r: vm.op(*r[1])
        def MM(ks):
            f = AF + 4*ks; w = WF[ks & 1]
            if isV: return [f"v_mfma_f32_32x32x16_bf16 {vr(ACC[1+g],16)}, {vr(f,4)}, {vr(w+4*g,4)}, {vr(ACC[1+g],16)}" for g in range(2)]
            return [f"v_mfma_f32_32x32x16_bf16 {vr(ACC[1+g],16)}, {vr(w+4*g,4)}, {vr(f,4)}, {vr(ACC[1+g],16)}" for g in range(2)]
        xn_issue(OPT.get("xn0", 8))
        a("s_barrier")
        xn_issue(10 - OPT.get("xn0", 8))
        for x in rdS(0) + rdS(1): lg.op(*x)
        lg.wait(("s", 0)); vm.wait(("xn", 0))
        a(SMF(0))
        for x in rdW(0): lg.op(*x)
        xn_issue(2)
        a("s_nop 5")
        for x in CVT(0): a(x)
        stamp(a, 2)
        for b in range(16):
            nx = b + 1 < 16
            if nx:
                lg.wait(("s", b+1)); vm.wait(("xn", b+1))
                a(SMF(b+1))
            for x in rdW(2*b+1): lg.op(*x)
            lg.wait(("w", 2*b))
            M = MM(2*b); Rs = rdS(b+2) if b + 2 < 16 else []
            a(M[0]); [lg.op(*x) for x in Rs]
            a(M[1]); xn_issue(3)
            if b == OPT.get("b2b", 6): a("s_barrier")
            lg.wait(("w", 2*b+1))
            M = MM(2*b+1); C = CVT(b+1) if nx else []; Rw = rdW(2*b+2) if nx else []
            a(M[0]); [lg.op(*x) for x in Rw]; [a(x) for x in C[:3]]
            a(M[1]); [a(x) for x in C[3:]]
            if b < 15: stamp(a, b, 6)
        if not isV:
            a(f"s_add_u32 s54, s54, {hex(WS_K)}")
            a(f"v_and_b32 v5, 0x33, v{vLANE}\nv_bfe_u32 v6, v{vLANE}, 2, 1\nv_lshl_add_u32 v5, v6, 3, v5\nv_bfe_u32 v6, v{vLANE}, 3, 1\nv_lshl_add_u32 v5, v6, 2, v5\nv_lshlrev_b32 v5, 4, v5")
            for h in range(4):
                for r in range(4): a(f"v_cvt_pk_bf16_f32 v{112+4*h+r}, v{ACC[1]+8*h+2*r}, v{ACC[1]+8*h+2*r+1}")
                vm.op(f"buffer_store_dwordx4 {vr(112+4*h,4)}, v5, {S['ws']}, s54 offen sc1")
                if h < 3: a("s_add_u32 s54, s54, 65536")
            a("s_branch La_kvd")
        else:
            a(f"s_add_u32 s54, s54, {hex(WS_V)}")
            a(f"v_and_b32 v6, 15, v{vLANE}\nv_lshlrev_b32 v6, 4, v6\nv_bfe_u32 v7, v{vLANE}, 5, 1\nv_lshl_add_u32 v6, v7, 8, v6\nv_bfe_u32 v7, v{vLANE}, 4, 1\nv_lshl_add_u32 v6, v7, 16, v6")
            for h in range(4):
                for r in range(4): a(f"v_cvt_pk_bf16_f32 v{112+4*h+r}, v{ACC[1]+8*h+2*r}, v{ACC[1]+8*h+2*r+1}")
                vm.op(f"buffer_store_dwordx4 {vr(112+4*h,4)}, v6, {S['ws']}, s54 offen offset:{512*(h&1)} sc1")
                if h == 1: a("s_add_u32 s54, s54, 131072")
    a("La_kvd:")
    stamp(a, 3)
    a(f"s_lshl_b32 s57, s{sW}, 10\ns_add_u32 s57, s57, {L_QX}\nv_add_u32 v7, s57, v{vL16}")
    a(f"s_lshl_b32 s58, s{sC}, 6\ns_add_u32 s58, s58, s{sT32}")
    flag_off(a, 51, 58, WS_FKV)
    tr_addr(a, 10, 12, True, 6, False)
    a(f"v_add_u32 v10, {L_WQ}, v10")
    a("s_barrier")
    WQ = [96, 100, 104, 108]
    early, late = att_setup(); fill = early + late; assert len(early) >= 12*5
    def rdQ(ks): return [(f"ds_read_b64_tr_b16 {vr(WQ[ks&3]+2*st,2)}, v10 offset:{1024*ks+512*st}", ("q", ks)) for st in range(2)]
    lg.reset()
    for x in rdQ(0) + rdQ(1) + rdQ(2): lg.op(*x)
    for ks in range(32):
        if ks + 3 < 32: [lg.op(*x) for x in rdQ(ks+3)]
        lg.wait(("q", ks))
        a(f"v_mfma_f32_32x32x16_bf16 {vr(ACC[0],16)}, {vr(WQ[ks&3],4)}, {vr(AF+4*ks,4)}, {vr(ACC[0],16)}")
        if ks == OPT.get("kvflag", 8): set_flag(a, vm, "s51", vZ, 8)
        else:
            for x in fill[:6]: a(x)
            fill = fill[6:]
    for x in fill: a(x)
    a(f"s_mov_b32 s53, {hx(0.25*LOG2E)}")
    for r in range(16): a(f"v_mul_f32 v{ACC[0]+r}, s53, v{ACC[0]+r}")
    for r in range(8): a(f"v_cvt_pk_bf16_f32 v{96+r}, v{ACC[0]+2*r}, v{ACC[0]+2*r+1}")
    a("ds_write_b128 v7, v[96:99]\nds_write_b128 v7, v[100:103] offset:4096")
    if OPT.get("qj", 1):
        a(f"v_mov_b32 v9, {L_SCR+264}\nv_mov_b32 v10, 1\ns_waitcnt lgkmcnt(0)\ns_mov_b64 exec, 1\nds_add_u32 v9, v10\ns_mov_b64 exec, -1")
        att_first(a, vm, OPT.get("fk", 0))
        q_join(a); att_q(a)
    else:
        a("s_waitcnt lgkmcnt(0)\ns_barrier")
        att_q(a)
        att_first(a, vm, OPT.get("fk", 0))

def active2(a):
    vm = Track(a, "vmcnt", 63); lg = Track(a, "lgkmcnt", 15)
    sT32, AF = 67, 128
    ACC, WF, XR, GA, G2, XF = 16, [96, 100, 104, 108], vXR, 48, 64, 80
    a(f"v_bfe_u32 v9, v{vLANE}, 5, 1")
    for q in range(4):
        for h in range(2): a(f"v_lshlrev_b32 v{XF+4*q+2*h}, 16, v{XR+2*q+h}\nv_and_b32 v{XF+4*q+2*h+1}, 0xffff0000, v{XR+2*q+h}")
    a(f"s_lshl_b32 s57, s{sT32}, 15\ns_lshl_b32 s58, s{sC}, 11\ns_add_u32 s57, s57, s58\ns_add_u32 s58, s57, {hex(WS_Y)}\ns_add_u32 s57, s57, {hex(WS_X1)}")
    a(f"s_lshl_b32 s54, s{sC}, 14\ns_lshl_b32 s55, s{sT32}, 8\ns_add_u32 s54, s54, s55\ns_add_u32 s54, s54, {hex(WS_STATS)}")
    a(f"s_lshl_b32 s55, s{sT32}, 4\ns_add_u32 s55, s55, s{sC}")
    flag_off(a, 56, 55, WS_FX1, LF())
    a(f"s_lshl_b32 s55, s{sT32}, {11-LF()}\ns_add_u32 s55, s55, {hex(WS_FX1)}")
    tr_addr(a, 10, 11, True, 6, False)
    for r in range(16): a(f"v_mov_b32 v{ACC+r}, 0")
    poll_addr(a, 5, LF())
    a(f"s_lshl_b32 s52, s{sT32}, {12-LF()}\ns_add_u32 s52, s52, {hex(WS_FO)}")
    stamp(a, 6, 8)
    set_flag(a, vm, "s64", vZ, 8)
    stamp(a, 7); stamp(a, 7, 8)
    poll(a, vm, "0xffffffff", 5, "s52", 11, OPT.get("fo", 20))
    stamp(a, 8); stamp(a, 0, 2)
    a(f"s_lshl_b32 s52, s{sT32}, 15\ns_add_u32 s52, s52, {hex(WS_O)}")
    OL = rot_loads(a, vm, 52, AF, "o")
    for _ in range(OPT.get("b5b", 12)): vm.op(*next(OL)[1])
    a("s_barrier")
    for _ in range(12 - OPT.get("b5b", 12)): vm.op(*next(OL)[1])
    a(f"v_lshlrev_b32 v6, 2, v{vLANE}\nv_lshlrev_b32 v5, 4, v9\nv_add_u32 v5, {L_GA}, v5")
    def rdWo(ks): return [(f"ds_read_b64_tr_b16 {vr(WF[ks&3]+2*st,2)}, v10 offset:{L_WO+1024*ks+512*st}", ("w", ks)) for st in range(2)]
    lg.reset()
    for x in rdWo(0) + rdWo(1) + rdWo(2): lg.op(*x)
    for ks in range(32):
        if ks + 3 < 32:
            for x in rdWo(ks+3): lg.op(*x)
        if ks == 28:
            lg.wait(("w", 31))
            a("s_barrier")
            for q in range(4): a(f"ds_read_b128 {vr(GA+4*q,4)}, v5 offset:{32*q}")
            for q in range(4): a(f"ds_read_b128 {vr(G2+4*q,4)}, v5 offset:{128+32*q}")
        lg.wait(("w", ks)); vm.wait(("o", ks))
        a(f"v_mfma_f32_32x32x16_bf16 {vr(ACC,16)}, {vr(WF[ks&3],4)}, {vr(AF+4*ks,4)}, {vr(ACC,16)}")
        if ks + 12 < 32: vm.op(*next(OL)[1])
        if ks % 4 == 0 or ks == 31: stamp(a, 1 + (ks+1)//4, 2)
    stamp(a, 10, 2)
    a("s_waitcnt lgkmcnt(4)")
    for r in range(16): a(f"v_fmac_f32 v{XF+r}, v{ACC+r}, v{GA+r}")
    a("s_waitcnt lgkmcnt(0)")
    for r in range(16): a(f"v_mul_f32 v{ACC+r}, v{XF+r}, v{G2+r}")
    for r in range(8): a(f"v_cvt_pk_bf16_f32 v{32+r}, v{ACC+2*r}, v{ACC+2*r+1}")
    vm.op(f"buffer_store_dwordx4 v[32:35], v{vL16}, {S['ws']}, s58 offen sc1"); vm.op(f"buffer_store_dwordx4 v[36:39], v{vL16}, {S['ws']}, s58 offen offset:1024 sc1")
    a(f"v_pk_add_f32 v[48:49], {vr(XF,2)}, {vr(XF+2,2)}\nv_pk_mul_f32 v[50:51], {vr(XF,2)}, {vr(XF,2)}\nv_pk_fma_f32 v[50:51], {vr(XF+2,2)}, {vr(XF+2,2)}, v[50:51]")
    for r in range(4, 16, 2): a(f"v_pk_add_f32 v[48:49], v[48:49], {vr(XF+r,2)}\nv_pk_fma_f32 v[50:51], {vr(XF+r,2)}, {vr(XF+r,2)}, v[50:51]")
    a("v_add_f32 v48, v48, v49\nv_add_f32 v49, v50, v51")
    for r in range(8): a(f"v_cvt_pk_bf16_f32 v{40+r}, v{XF+2*r}, v{XF+2*r+1}")
    a("v_permlane32_swap_b32 v48, v49\nv_add_f32 v48, v48, v49")
    vm.op(f"buffer_store_dword v48, v6, {S['ws']}, s54 offen sc1")
    vm.op(f"buffer_store_dwordx4 v[40:43], v{vL16}, {S['ws']}, s57 offen sc1"); vm.op(f"buffer_store_dwordx4 v[44:47], v{vL16}, {S['ws']}, s57 offen offset:1024 sc1")
    stamp(a, 11, 2)
    ACC, WF, WH, ST = 16, [80, 92, 104], [116, 120], 240
    vF, vH = [10, 11, 12, 13], [4, 7, 14, 15]
    tr_addr(a, 10, 11, True, 6, False)
    a(f"v_add_u32 v10, {L_W1}, v10\nv_add_u32 v11, 0x8000, v10\nv_add_u32 v12, 0x10000, v10\nv_add_u32 v13, 0x18000, v10")
    half_tr_addr(a, 4, 7)
    a(f"v_add_u32 v4, {L_W1}, v4\nv_add_u32 v7, 0x8000, v4\nv_add_u32 v14, 0x10000, v4\nv_add_u32 v15, 0x18000, v4")
    a(f"v_and_b32 v8, 16, v0\nv_cmp_eq_u32 vcc, 0, v8\nv_mov_b32 v8, 0xeeeeeeee\nv_mov_b32 v5, 0x44444444\nv_cndmask_b32 v8, v8, v5, vcc")
    for r in range(64): a(f"v_mov_b32 v{ACC+r}, 0")
    poll_addr(a, 5, LF())
    set_flag(a, vm, "s56", vZ, 9)
    stamp(a, 9); stamp(a, 12, 2)
    poll(a, vm, "0xffff", 5, "s55", 125, OPT.get("fx", 12))
    stamp(a, 10); stamp(a, 0, 3)
    a(f"s_lshl_b32 s52, s{sT32}, 15\ns_add_u32 s52, s52, {hex(WS_Y)}")
    a(f"s_lshl_b32 s54, s{sT32}, 8\ns_add_u32 s54, s54, {hex(WS_STATS)}")
    YL = rot_loads(a, vm, 52, AF, "y")
    for _ in range(4): vm.op(*next(YL)[1])
    for q in range(16):
        vm.op(f"buffer_load_dword v{ST+q}, v6, {S['ws']}, s54 offen sc1", "st"); a("s_add_u32 s54, s54, 16384")
    for _ in range(8): vm.op(*next(YL)[1])
    lg.reset()
    def rdW1(ks): return [(x, ("w", ks)) for x in w1_reads(ks//2, ks & 1, WF[ks % 3], vF)]
    for x in rdW1(0) + rdW1(1): lg.op(*x)
    TT, UB = 128, 184
    side = {}
    side[(6, 0)] = ["v_mov_b32 v125, v124", f"v_bfe_u32 v5, v{vLANE}, 5, 1", "v_lshlrev_b32 v9, 7, v5", "v_permlane32_swap_b32 v124, v125"]
    side[(6, 1)] = [f"v_add_u32 v9, {L_UW}, v9", f"v_mul_f32 v124, {hx(1/512)}, v124", f"v_mul_f32 v125, {hx(1/512)}, v125", "v_fma_f32 v125, -v124, v124, v125"]
    side[(6, 2)] = ["v_max_f32 v125, 0, v125", f"v_add_f32 v125, {hx(1e-5)}, v125", "v_rsq_f32 v125, v125"]
    side[(7, 0)] = [f"v_mul_f32 v5, {hx(-LOG2E)}, v125", "v_mul_f32 v125, v5, v124", "v_sub_f32 v125, 0, v125", "v_mov_b32 v124, v5"]
    side[(7, 1)] = [f"s_lshl_b32 s55, s{sT32}, 4", f"s_add_u32 s55, s55, s{sC}", f"s_lshr_b32 s50, s55, {LF()}", "s_lshl_b32 s50, s50, 7", f"s_and_b32 s56, s55, {(1 << LF()) - 1}"]
    side[(7, 2)] = ["s_lshl_b32 s56, s56, 2", "s_add_u32 s56, s56, s50", f"s_add_u32 s56, s56, {hex(WS_FH)}"]
    side[(12, 0)] = [f"s_mul_i32 s52, s{sT32}, {112*1024}", f"s_mul_i32 s53, s{sC}, 7168", "s_add_u32 s52, s52, s53", f"s_add_u32 s52, s52, {hex(WS_H)}"]
    for m in range(7):
        ks = 16 + 2*m
        rw = lambda j: f"ds_read_b128 {vr(TT+4*j,4)}, v9 offset:{256*(j//4)+64+16*(j%4)}"
        ru = lambda j: f"ds_read_b128 {vr(UB+4*(j&1),4)}, v9 offset:{256*(j//4)+16*(j%4)}"
        fm = lambda j: [f"v_fmac_f32 v{TT+4*j+r}, v125, v{UB+4*(j&1)+r}" for r in range(4)]
        side.setdefault((ks+2, 1), []).extend([f"wait{ks+1}"] + fm(2*m))
        side.setdefault((ks+2, 2), []).extend(fm(2*m+1))
        side.setdefault((ks, 2), []).append(rw(2*m))
        side.setdefault((ks+1, 2), []).extend([ru(2*m), rw(2*m+1), ru(2*m+1)])
    for kp in range(16):
        for e in range(2):
            ks = 2*kp + e
            R = rdW1(ks+2) if ks + 2 < 32 else []
            if e == 0: R = [(x, ("h", kp)) for x in w1_half_reads(kp, WH[kp & 1], vH)] + R
            lg.wait(("w", ks)); vm.wait(("y", ks))
            for nt in range(3):
                a(f"v_mfma_f32_32x32x16_bf16 {vr(ACC+16*nt,16)}, {vr(WF[ks%3]+4*nt,4)}, {vr(AF+4*ks,4)}, {vr(ACC+16*nt,16)}")
                [lg.op(*x) for x in R[3*nt:3*nt+3]]
                if nt >= 1:
                    j = 12 + 2*ks + nt - 1
                    if j < 32: vm.op(*next(YL)[1])
                if ks in (4, 5):
                    for q in (((0, 8), (1, 9), (2, 10)), ((3, 11), (4, 12), (5, 13)), ((6, 14), (7, 15)))[nt] if ks == 4 else (((0, 4), (1, 5), (2, 6), (3, 7)), ((0, 2), (1, 3)), ())[nt]:
                        a(f"v_add_f32 v{ST+q[0]}, v{ST+q[0]}, v{ST+q[1]}")
                    if ks == 5 and nt == 2: a(f"v_add_f32 v124, v{ST}, v{ST+1}")
                for x in side.get((ks, nt), []):
                    if x.startswith("ds_"): lg.op(x, ("u", ks))
                    elif x.startswith("wait"): lg.wait(("u", int(x[4:])))
                    else: a(x)
            if e == 1:
                lg.wait(("h", kp))
                a(f"v_smfmac_f32_32x32x32_bf16 {vr(ACC+48,16)}, {vr(WH[kp&1],4)}, {vr(AF+8*kp,8)}, v8")
                if kp % 2 == 0 or kp == 15: stamp(a, 1 + (kp+1)//2, 3)
                if kp == OPT.get("b6b", 4): a("s_barrier")
    a("s_barrier")
    stamp(a, 11)
    E = 80
    for r in range(8): a(f"v_add_f32 v{ACC+48+r}, v{ACC+48+r}, v{ACC+56+r}")
    for nt in range(4):
        t = TT + 16*nt; acc = ACC + 16*nt; n = 16 if nt < 3 else 8
        for r in range(0, n, 2): a(f"v_pk_fma_f32 {vr(acc+r,2)}, {vr(acc+r,2)}, v[124:125], {vr(t+r,2)} op_sel:[0,0,0] op_sel_hi:[1,0,1]")
        for r in range(n): a(f"v_exp_f32 v{E+r}, v{acc+r}")
        for r in range(0, n, 2): a(f"v_pk_add_f32 {vr(E+r,2)}, {vr(E+r,2)}, 1.0 op_sel_hi:[1,0]")
        for r in range(n): a(f"v_rcp_f32 v{E+r}, v{E+r}")
        for r in range(0, n, 2): a(f"v_pk_mul_f32 {vr(acc+r,2)}, {vr(acc+r,2)}, {vr(E+r,2)}")
        o = 208 + 8*nt
        for r in range(n//2): a(f"v_cvt_pk_bf16_f32 v{o+r}, v{acc+2*r}, v{acc+2*r+1}")
        if nt == 2: a("s_add_u32 s52, s52, 4096")
        vm.op(f"buffer_store_dwordx4 {vr(o,4)}, v{vL16}, {S['ws']}, s52 offen offset:{2048*(nt&1)} sc1")
        if nt < 3: vm.op(f"buffer_store_dwordx4 {vr(o+4,4)}, v{vL16}, {S['ws']}, s52 offen offset:{2048*(nt&1)+1024} sc1")
        stamp(a, 10 + nt, 3)
        if nt == 1: vm.q = [("ha", 0)]*len(vm.q)
        if nt == OPT.get("fa", 2) and OPT.get("h2", 0):
            vm.wait(("ha", 0))
            a(f"v_mov_b32 v9, s{sTAG}\ns_mov_b64 exec, 1")
            vm.op(f"buffer_store_dword v9, v{vZ}, {S['ws']}, s56 offen sc1")
            a(f"s_mov_b64 exec, -1\ns_add_u32 s56, s56, {FH_B}")
    stamp(a, 14, 3)
    ACC, WF, GB, XR, NR = [16, 32], [48, 56, 88], 64, 80, 32
    sTT, sKH, sT5, sF5 = 54, 55, 57, 58
    a(f"s_and_b32 s{sTT}, s{sW}, 1\ns_lshr_b32 s{sKH}, s{sW}, 1")
    a(f"s_lshr_b32 s52, s{sC}, 3\ns_lshl_b32 s52, s52, 1\ns_lshl_b32 s{sT5}, s{sTB}, 2\ns_add_u32 s{sT5}, s{sT5}, s52\ns_add_u32 s{sT5}, s{sT5}, s{sTT}")
    a(f"s_and_b32 s{sF5}, s{sC}, 7\ns_lshl_b32 s{sF5}, s{sF5}, 1\ns_add_u32 s{sF5}, s{sF5}, s{sKH}")
    tr_addr(a, 10, 11, True, 7, True)
    a(f"s_lshl_b32 s52, s{sKH}, 6\nv_xor_b32 v10, s52, v10\ns_lshl_b32 s52, s{sKH}, 13\nv_add_u32 v10, s52, v10\nv_xor_b32 v11, 64, v10")
    for r in range(32): a(f"v_mov_b32 v{16+r}, 0")
    poll_addr(a, 5, LF())
    a(f"s_lshl_b32 s52, s{sT5}, {11-LF()}\ns_lshl_b32 s53, s{sKH}, {10-LF()}\ns_add_u32 s52, s52, s53\ns_add_u32 s52, s52, {hex(WS_FH)}")
    a(f"s_lshl_b32 s61, s{sT5}, 15\ns_lshl_b32 s59, s{sF5}, 11\ns_add_u32 s61, s61, s59\ns_add_u32 s61, s61, {hex(WS_X1)}")
    H2 = OPT.get("h2", 0)
    a(f"s_add_u32 s62, s52, {FH_B}")
    if H2:
        a(f"s_mov_b64 exec, 0xff")
        vm.op(f"buffer_load_dword v6, v5, {S['ws']}, s52 offen sc1", "fa")
        a("s_mov_b64 exec, -1")
        set_flag(a, vm, "s56", vZ, 9)
        stamp(a, 12)
        a(f"s_mov_b64 exec, 0xff\nv_cmp_ne_u32 vcc, s{sTAG}, v6\ns_mov_b64 exec, -1\ns_cbranch_vccz La_haok")
        poll(a, vm, "0xff", 5, "s52", 6, 2)
        a("La_haok:")
        vm.q = [None]
    else:
        set_flag(a, vm, "s56", vZ, 9)
        stamp(a, 12)
        poll(a, vm, "0xff", 5, "s52", 6, OPT.get("fh", 16))
    stamp(a, 13); stamp(a, 0, 4)
    a(f"s_mul_i32 s52, s{sT5}, {112*1024}\ns_mul_i32 s53, s{sKH}, {56*1024}\ns_add_u32 s52, s52, s53\ns_add_u32 s52, s52, {hex(WS_H)}")
    def ldH(ks):
        p, j = h_pj(ks)
        if j in (0, 4): a(f"s_add_u32 s53, s{sR}, {p}\ns_and_b32 s53, s53, 7\ns_mul_i32 s53, s53, 7168\ns_add_u32 s53, s53, s52" + ("\ns_add_u32 s53, s53, 4096" if j else ""))
        vm.op(f"buffer_load_dwordx4 {vr(AF+4*(ks%NR),4)}, v{vL16}, {S['ws']}, s53 offen offset:{1024*(j%4)} sc1", ("h", ks))
    PF = 12
    for ks in range(PF):
        ldH(ks)
        if ks == 7: a("s_barrier")
    slot = lambda s: s if s < 9 else s - 9
    def rdW2(ks):
        s, k = ks // 4, ks % 4
        return [(f"ds_read_b64_tr_b16 {vr(WF[ks%3]+4*n+2*st,2)}, v{12+n} offset:{2048*k+1024*st}", ("w", ks)) for n in range(2) for st in range(2)]
    def setslot(s): a(f"v_add_u32 v12, {16384*slot(s)}, v10\nv_add_u32 v13, {16384*slot(s)}, v11")
    lg.reset(); setslot(0)
    for x in rdW2(0) + rdW2(1): lg.op(*x)
    for ks in range(56):
        n = ks + 2
        lg.wait(("w", ks))
        if ks in (11, 19): a("s_barrier")
        if n < 56 and n % 4 == 0:
            if n // 4 in (9, 12): a("s_barrier")
            setslot(n // 4)
        vm.wait(("h", ks))
        a(f"v_mfma_f32_32x32x16_bf16 {vr(ACC[0],16)}, {vr(WF[ks%3],4)}, {vr(AF+4*(ks%NR),4)}, {vr(ACC[0],16)}")
        if n < 56: [lg.op(*x) for x in rdW2(n)]
        a(f"v_mfma_f32_32x32x16_bf16 {vr(ACC[1],16)}, {vr(WF[ks%3]+4,4)}, {vr(AF+4*(ks%NR),4)}, {vr(ACC[1],16)}")
        if H2 and ks == OPT.get("fb", 10):
            a("s_mov_b64 exec, 0xff"); vm.op(f"buffer_load_dword v6, v5, {S['ws']}, s62 offen sc1", "fb"); a("s_mov_b64 exec, -1")
        if H2 and ks + PF == 32:
            vm.wait("fb")
            a(f"s_mov_b64 exec, 0xff\nv_cmp_ne_u32 vcc, s{sTAG}, v6\ns_mov_b64 exec, -1\ns_cbranch_vccz La_hbok")
            q0 = list(vm.q)
            poll(a, vm, "0xff", 5, "s62", 6, 0)
            vm.q = q0
            a("La_hbok:")
        if ks + PF < 56: ldH(ks + PF)
        if ks == 44:
            for q in range(2): vm.op(f"buffer_load_dwordx4 {vr(XR+4*q,4)}, v{vL16}, {S['ws']}, s61 offen offset:{1024*q} sc1", "x1")
        if ks % 4 == 3: stamp(a, 1 + ks//4, 4)
    stamp(a, 14)
    vm.wait("x1")
    a(f"s_xor_b32 s52, s{sW}, 2\ns_lshl_b32 s52, s52, 12\ns_add_u32 s52, s52, {16384*5}\nv_add_u32 v5, s52, v{vL16}")
    a(f"s_lshl_b32 s52, s{sW}, 12\ns_add_u32 s52, s52, {16384*5}\nv_add_u32 v6, s52, v{vL16}")
    a(f"v_bfe_u32 v9, v{vLANE}, 5, 1\nv_lshlrev_b32 v7, 4, v9\ns_lshl_b32 s52, s{sKH}, 7\ns_add_u32 s52, s52, {L_GB}\nv_add_u32 v7, s52, v7")
    for q in range(4): a(f"ds_read_b128 {vr(GB+4*q,4)}, v7 offset:{32*q}")
    XF = 96
    for r in range(8): a(f"v_lshlrev_b32 v{XF+2*r}, 16, v{XR+r}\nv_and_b32 v{XF+2*r+1}, 0xffff0000, v{XR+r}")
    for q in range(4): a(f"ds_write_b128 v5, {vr(ACC[1]+4*q,4)} offset:{1024*q}")
    a("s_waitcnt lgkmcnt(0)\ns_barrier")
    for q in range(4): a(f"ds_read_b128 {vr(ACC[1]+4*q,4)}, v6 offset:{1024*q}")
    a(f"v_and_b32 v7, 31, v{vLANE}\nv_lshlrev_b32 v8, 10, v7\nv_lshl_add_u32 v8, v9, 4, v8")
    a(f"s_lshl_b32 s52, s{sT5}, 15\ns_lshl_b32 s53, s{sF5}, 6\ns_add_u32 s52, s52, s53")
    for q in range(4):
        a(f"s_waitcnt lgkmcnt({3-q})")
        for r in range(4*q, 4*q+4): a(f"v_add_f32 v{ACC[0]+r}, v{ACC[0]+r}, v{ACC[1]+r}")
        for r in range(4*q, 4*q+4): a(f"v_fmac_f32 v{XF+r}, v{ACC[0]+r}, v{GB+r}")
    for r in range(8): a(f"v_cvt_pk_bf16_f32 v{64+r}, v{XF+2*r}, v{XF+2*r+1}")
    for p in range(2):
        a(f"v_permlane32_swap_b32 v{64+4*p}, v{64+4*p+2}\nv_permlane32_swap_b32 v{64+4*p+1}, v{64+4*p+3}")
        vm.op(f"buffer_store_dwordx4 {vr(64+4*p,4)}, v8, {S['out']}, s52 offen offset:{32*p}{['', ' sc1', ' nt', ' sc0 sc1', ' sc1 nt'][OPT.get('osc', 0)]}")

def wq_loop(a):
    a(f"v_lshrrev_b32 v4, 2, v{vLANE}\nv_mul_u32_u24 v4, 3072, v4\nv_and_b32 v5, 3, v{vLANE}\nv_lshl_add_u32 v4, v5, 4, v4")
    a(f"s_lshl_b32 s55, s{sR}, 2\ns_add_u32 s55, s55, s67\ns_lshl_b32 s53, s67, 10\ns_add_u32 s53, s53, {L_WQ}\ns_lshl_b32 s56, s{sC}, 6\ns_mov_b32 s51, 8\nLh_ql:")
    a(f"s_and_b32 s52, s55, 31\ns_mul_i32 s52, s52, {16*3072}\ns_mov_b32 m0, s53\ns_add_u32 s52, s52, s56")
    a(f"buffer_load_dwordx4 v4, {S['wqkv']}, s52 offen lds")
    a(f"s_add_u32 s55, s55, 4\ns_add_u32 s53, s53, 4096\ns_sub_u32 s51, s51, 1\ns_cmp_lg_u32 s51, 0\ns_cbranch_scc1 Lh_ql")

def helper(a):
    vm = Track(a, "vmcnt", 63)
    sH, sCol = 67, 66
    a("Lh_b2:")
    a("s_waitcnt vmcnt(0) lgkmcnt(0)\ns_barrier")
    if OPT.get("st", 7) & 2:
        a(f"s_lshl_b32 s57, s2, 2\ns_add_u32 s57, s57, s{sH}\ns_lshl_b32 s58, s57, 9\ns_mul_i32 s57, s57, {5*128}\ns_add_u32 s57, s57, {9216*128}")
        for n in range(3): a(stouch("w1", 57, n))
    a("s_barrier")
    wq_loop(a)
    if OPT.get("st", 7) & 2:
        for n in range(3, 5): a(stouch("w1", 57, n))
        a(stouch("wo", 58, 0))
    a("s_waitcnt vmcnt(0)")
    if OPT.get("touch", 0) == 1: mall_touch(a)
    stamp(a, 2)
    a("s_barrier")
    if OPT.get("st", 7) & 2:
        for n in range(1, 4): a(stouch("wo", 58, n))
    early, late = att_setup()
    for x in early + late: a(x)
    if OPT.get("hearly", 1):
        att_first(a, vm, OPT.get("fkh", 24))
        if OPT.get("qj", 1): q_join(a)
        else: a("s_barrier")
        att_q(a)
    else:
        a("s_barrier")
        att_q(a)
        att_first(a, vm, OPT.get("fk", 0))

def helper2(a):
    vm = Track(a, "vmcnt", 63); lg = Track(a, "lgkmcnt", 15)
    sH = 67
    stamp(a, 6, 8)
    set_flag(a, vm, "s64", vZ, 8)
    stamp(a, 7); stamp(a, 7, 8)
    vF, vH = 13, 14
    a(f"s_sub_u32 s52, s{sI}, 8\ns_cmp_ge_u32 s52, 16\ns_cbranch_scc1 Lh_nomod2")
    mod_partial(a, vm, vMOD); mod_join(a, vm, 66, "Lh_nomod2")
    a("Lh_nomod2:")
    a("s_barrier")
    a(f"v_lshlrev_b32 v4, 5, v{vLANE}\ns_lshl_b32 s52, s{sH}, 11\ns_add_u32 s52, s52, 4096")
    gran_poll(a, vm, [f"buffer_load_dwordx4 v[16:19], v4, {S['ws']}, s52 offen sc1", f"buffer_load_dwordx4 v[20:23], v4, {S['ws']}, s52 offen offset:16 sc1"], [16, 20])
    for j, r in enumerate((16, 18, 20, 22)): a(f"v_lshlrev_b32 v{24+2*j}, 16, v{r}\nv_and_b32 v{25+2*j}, 0xffff0000, v{r}")
    a(f"s_cmp_eq_u32 s{sH}, 1\ns_cbranch_scc1 Lh_tabg")
    a(f"s_cmp_eq_u32 s{sH}, 3\ns_cselect_b32 s53, {hx(-1/LOG2E)}, 1.0")
    a(f"s_lshl_b32 s54, s{sC}, 2\ns_and_b32 s55, s{sC}, 7\ns_lshl_b32 s55, s55, 3\ns_lshl_b32 s56, s{sH}, 6\ns_cmp_eq_u32 s{sH}, 3\ns_cselect_b32 s54, s55, s54\ns_cselect_b32 s55, 8, 4")
    a(f"s_cselect_b32 s56, 256, s56\ns_add_u32 s56, s56, {L_TAB}")
    for r in range(8): a(f"v_mul_f32 v{24+r}, s53, v{24+r}")
    a(f"v_subrev_u32 v5, s54, v{vLANE}\nv_cmp_gt_u32 vcc, s55, v5\nv_lshlrev_b32 v5, 5, v5\nv_add_u32 v5, s56, v5")
    a("s_and_saveexec_b64 s[56:57], vcc\nds_write_b128 v5, v[24:27]\nds_write_b128 v5, v[28:31] offset:16\ns_mov_b64 exec, -1")
    a(f"s_cmp_lg_u32 s{sH}, 2\ns_cbranch_scc1 Lh_tabd")
    a("Lh_tabg:")
    a(f"v_lshrrev_b32 v5, 1, v{vLANE}\ns_lshl_b32 s53, s{sR}, 2\nv_subrev_u32 v5, s53, v5\nv_and_b32 v5, 31, v5\nv_lshlrev_b32 v5, 6, v5\nv_and_b32 v6, 1, v{vLANE}\nv_lshl_add_u32 v5, v6, 3, v5")
    a(f"s_and_b32 s53, s{sH}, 1\ns_lshl_b32 s53, s53, 4\ns_add_u32 s53, s53, {L_G}\nv_add_u32 v5, s53, v5")
    a("v_mov_b32 v17, v18\nv_mov_b32 v21, v22\nds_write_b64 v5, v[16:17]\nds_write_b64 v5, v[20:21] offset:32")
    a("Lh_tabd:")
    a("s_waitcnt vmcnt(0) lgkmcnt(0)")
    stamp(a, 8)
    a("s_barrier")
    vm.reset()
    vW2 = 10
    a(f"v_lshrrev_b32 v{vW2}, 3, v{vLANE}\nv_lshlrev_b32 v{vW2}, 10, v{vW2}\nv_bfe_u32 v5, v{vLANE}, 4, 1\nv_lshlrev_b32 v5, 2, v5\nv_xor_b32 v5, v5, v{vLANE}\nv_and_b32 v5, 7, v5\nv_lshl_add_u32 v{vW2}, v5, 4, v{vW2}")
    a(f"s_lshl_b32 s58, s{sR}, 7\ns_lshl_b32 s59, s{sH}, 11")
    def w2_row(s):
        if s < 8:
            a(f"s_add_u32 s61, s{sR}, {s}\ns_and_b32 s61, s61, 7\ns_mul_i32 s61, s61, 7\ns_add_u32 s61, s61, s{sH}")
        else:
            a(f"s_add_u32 s60, s{sH}, {4*(s-8)}\ns_mul_i32 s61, s60, 43\ns_lshr_b32 s61, s61, 7\ns_mul_i32 s62, s61, 3\ns_sub_u32 s60, s60, s62")
            a(f"s_add_u32 s61, s61, s{sR}\ns_and_b32 s61, s61, 7\ns_mul_i32 s61, s61, 7\ns_add_u32 s61, s61, s60\ns_add_u32 s61, s61, 4")
        a("s_lshl_b32 s61, s61, 14\ns_add_u32 s61, s61, s58")
    def w2_stage(s, thr=None):
        sl = s if s < 9 else s - 9
        w2_row(s)
        for kh in range(2):
            for hf in range(2):
                a(f"s_add_u32 m0, s59, {16384*sl+8192*kh+1024*hf}\ns_add_u32 s52, s61, {56*kh*16384+8192*hf}")
                vm.op(f"buffer_load_dwordx4 v{vW2}, {S['w2']}, s52 offen lds", ("w2", s))
        if thr: vm.wait(("w2", s-1))
    w2_stage(0); w2_stage(1)
    ACC, GF, WF = 16, 32, 48
    a(f"v_bfe_u32 v9, v{vLANE}, 5, 1\nv_lshlrev_b32 v6, 5, v9\nv_and_b32 v5, 1, v{vLANE}\nv_lshl_add_u32 v6, v5, 4, v6\nv_add_u32 v6, {L_G}, v6")
    for r in range(16): a(f"v_mov_b32 v{ACC+r}, 0")
    a(f"s_cmp_eq_u32 s{sH}, 3\ns_cbranch_scc1 Lh_uwh")
    tr_addr(a, 4, 5, True, 6, False)
    a(f"s_lshl_b32 s52, s{sH}, 10\ns_add_u32 s52, s52, {L_W1}\nv_add_u32 v4, s52, v4\ns_mov_b32 s51, 16")
    a("Lh_uwl:")
    for e in range(2):
        a(f"ds_read_b128 {vr(GF+4*e,4)}, v6 offset:{64*e}")
        for st in range(2): a(f"ds_read_b64_tr_b16 {vr(WF+4*e+2*st,2)}, v4 offset:{3072*e+512*st}")
    a("v_add_u32 v4, 7168, v4\nv_add_u32 v6, 128, v6\ns_sub_u32 s51, s51, 1")
    for e in range(2):
        a(f"s_waitcnt lgkmcnt({3-3*e})")
        a(f"v_mfma_f32_32x32x16_bf16 {vr(ACC,16)}, {vr(WF+4*e,4)}, {vr(GF+4*e,4)}, {vr(ACC,16)}")
    a("s_cmp_lg_u32 s51, 0\ns_cbranch_scc1 Lh_uwl")
    a("s_branch Lh_uwd")
    a("Lh_uwh:")
    half_tr_addr(a, 4, 5)
    a(f"v_add_u32 v4, {L_W1+6144}, v4\ns_mov_b32 s51, 16")
    a(f"v_and_b32 v8, 16, v0\nv_cmp_eq_u32 vcc, 0, v8\nv_mov_b32 v8, 0xeeeeeeee\nv_mov_b32 v5, 0x44444444\nv_cndmask_b32 v8, v8, v5, vcc")
    a("Lh_uwhl:")
    for e in range(2): a(f"ds_read_b128 {vr(GF+4*e,4)}, v6 offset:{64*e}")
    for st in range(2): a(f"ds_read_b64_tr_b16 {vr(WF+2*st,2)}, v4 offset:{256*st}")
    a("v_add_u32 v4, 7168, v4\nv_add_u32 v6, 128, v6\ns_sub_u32 s51, s51, 1\ns_waitcnt lgkmcnt(0)")
    a(f"v_smfmac_f32_32x32x32_bf16 {vr(ACC,16)}, {vr(WF,4)}, {vr(GF,8)}, v8")
    a("s_cmp_lg_u32 s51, 0\ns_cbranch_scc1 Lh_uwhl")
    a("s_nop 7\ns_nop 3")
    for r in range(8): a(f"v_add_f32 v{ACC+r}, v{ACC+r}, v{ACC+8+r}")
    a("Lh_uwd:")
    a(f"v_and_b32 v5, 1, v{vLANE}\nv_cmp_eq_u32 vcc, 1, v5\nv_mov_b32 v7, {hx(-LOG2E)}\nv_cndmask_b32 v7, 1.0, v7, vcc")
    a(f"v_lshlrev_b32 v6, 7, v9\nv_lshl_add_u32 v6, v5, 6, v6\ns_lshl_b32 s52, s{sH}, 8\ns_add_u32 s52, s52, {L_UW}\nv_add_u32 v6, s52, v6")
    a("s_nop 3")
    for r in range(16): a(f"v_mul_f32 v{ACC+r}, v{ACC+r}, v7")
    a("s_mov_b32 exec_lo, 3\ns_mov_b32 exec_hi, 3")
    for q in range(4): a(f"ds_write_b128 v6, {vr(ACC+4*q,4)} offset:{16*q}")
    a("s_mov_b64 exec, -1\ns_waitcnt lgkmcnt(0)")
    stamp(a, 9)
    a("s_barrier")
    NREG = OPT.get("nreg", 10); S0 = 14 - NREG; RB = 48
    L5 = OPT.get("late5", 0)
    if L5: S0 = 2
    order = list(range(S0, 9)) + ([] if L5 else list(range(9, 14)))
    for s in order:
        w2_row(s)
        for j in range(4):
            a(f"s_add_u32 s52, s61, {56*(j>>1)*16384+8192*(j&1)}")
            vm.op(f"buffer_load_dwordx4 {vr(RB+16*(s-S0)+4*j,4)}, v{vW2}, {S['w2']}, s52 offen", ("w2r", s))
    a("s_barrier")
    a(f"v_add_u32 v4, s59, v{vL16}\nv_add_u32 v5, 0x10000, v4\nv_add_u32 v6, 0x20000, v4")
    def w2_put(s):
        sl = s if s < 9 else s - 9
        for j in range(4): a(f"ds_write_b128 v{4 + sl//4}, {vr(RB+16*(s-S0)+4*j,4)} offset:{16384*(sl%4)+8192*(j>>1)+1024*(j&1)}")
    for s in range(2, S0): w2_stage(s, True)
    for s in range(S0, 9):
        vm.wait(("w2r", s)); w2_put(s)
        if (s - S0) % 2 == 1: a("s_waitcnt lgkmcnt(4)")
    vm.wait_all()
    a("s_waitcnt lgkmcnt(0)")
    stamp(a, 12)
    a("s_barrier")
    a("s_barrier")
    if L5:
        for s in (9, 10, 11): w2_stage(s)
        a("s_barrier")
        for s in (12, 13): w2_stage(s)
        vm.wait(("w2", 11))
        a("s_barrier")
        vm.wait_all()
        a("s_barrier")
    else:
        for s in (9, 10, 11): w2_put(s)
        a("s_barrier")
        for s in (12, 13): w2_put(s)
        a("s_waitcnt lgkmcnt(8)\ns_barrier")
        a("s_waitcnt lgkmcnt(0)\ns_barrier")
    a("s_barrier")

def diag_out(a, slot):
    if not DIAG: return
    stamp(a, 15)
    a("s_memrealtime s[52:53]\ns_waitcnt vmcnt(0) lgkmcnt(0)")
    a("s_mov_b64 exec, 1")
    for i in range(16):
        a(f"s_sub_u32 s{70+2*i}, s{70+2*i}, s3\nv_mov_b32 v{16+i}, s{70+2*i}")
    a("v_mov_b32 v32, s69\nv_mov_b32 v33, s52" if False else "v_mov_b32 v32, v250\nv_mov_b32 v33, s52")
    a(f"s_lshl_b32 s54, s2, 10\ns_lshl_b32 s55, s{sW}, 7\ns_add_u32 s54, s54, s55\ns_add_u32 s54, s54, {hex(WS_DIAG)}")
    for q in range(4): a(f"buffer_store_dwordx4 {vr(16+4*q,4)}, v{vZ}, {S['ws']}, s54 offen offset:{16*q}")
    a(f"buffer_store_dwordx2 v[32:33], v{vZ}, {S['ws']}, s54 offen offset:64")
    if OPT.get("dbgstart") and slot == 0:
        a(f"s_cmp_ge_u32 s2, 8\ns_cbranch_scc1 Ldiag{slot}\ns_cmp_lg_u32 s{sW}, 0\ns_cbranch_scc1 Ldiag{slot}\ns_lshl_b32 s54, s2, 2\ns_add_u32 s54, s54, 4")
        a(f"v_subrev_u32 v32, s{sTAG}, v250\nv_add_u32 v32, 1000, v32\nbuffer_store_dword v32, v{vZ}, {S['dbg']}, s54 offen")
        a(f"s_getreg_b32 s55, hwreg(HW_REG_XCC_ID)\ns_and_b32 s55, s55, 15\nv_mov_b32 v32, s55\ns_cmp_ge_u32 s2, 7\ns_cbranch_scc1 Ldiag{slot}\nbuffer_store_dword v32, v{vZ}, {S['dbg']}, s54 offen offset:32")
    if OPT.get("dbgout") and slot == 0:
        a(f"s_lshl_b32 s54, s2, 3\ns_add_u32 s54, s54, s{sW}\ns_cmp_lg_u32 s54, {OPT['dbgout']*8}\ns_cbranch_scc1 Ldiag{slot}")
        for i in range(1, 16): a(f"buffer_store_dword v{16+i}, v{vZ}, {S['dbg']}, 0 offen offset:{4*i}")
    a(f"Ldiag{slot}:")

def build():
    a = Asm()
    a("s_cmp_ge_u32 s2, 256\ns_cbranch_scc1 Lend")
    for nm in ("x", "dbg", "wmod", "c", "wqkv", "ws", "wo", "w1", "w2", "out"):
        a(f"s_load_dwordx2 {sr(SRD[nm],2)}, s[0:1], {KA[nm]}")
    if DIAG: a("s_memtime s[70:71]\ns_memrealtime s[72:73]")
    a(f"v_lshrrev_b32 v4, 6, v0\nv_and_b32 v{vLANE}, 63, v0\nv_mov_b32 v{vZ}, 0\nv_readfirstlane_b32 s{sW}, v4\nv_lshlrev_b32 v{vL16}, 4, v{vLANE}")
    a(f"s_getpc_b64 s[56:57]\nLpc:\ns_sub_u32 s56, s56, Lpc-{NAME}_kernel\ns_subb_u32 s57, s57, 0")
    a(f"s_and_b32 s{sX}, s2, 7\ns_lshr_b32 s{sI}, s2, 3\ns_sub_u32 s67, s{sW}, 4")
    a(f"s_cmp_lt_u32 s{sW}, 6\ns_cbranch_scc1 Le_nopf")
    a(f"s_lshl_b32 s58, s{sI}, 1\ns_add_u32 s58, s58, s67\ns_sub_u32 s58, s58, 2\ns_lshl_b32 s58, s58, 10\ns_min_u32 s58, s58, Lcode_end-{NAME}_kernel-1024\nv_add_u32 v5, s58, v{vL16}")
    a("global_load_dwordx4 v[16:19], v5, s[56:57]")
    a("Le_nopf:")
    a(f"s_lshr_b32 s{sTB}, s{sX}, 1\ns_lshl_b32 s{sTB}, s{sTB}, 2\ns_lshr_b32 s52, s{sI}, 3\ns_add_u32 s{sTB}, s{sTB}, s52")
    a(f"s_and_b32 s{sR}, s{sI}, 7\ns_and_b32 s{sC}, s{sX}, 1\ns_lshl_b32 s{sC}, s{sC}, 3\ns_add_u32 s{sC}, s{sC}, s{sR}")
    for nm in ("x", "dbg", "wmod", "c", "wqkv", "ws"): a(f"s_mov_b32 s{SRD[nm]+2}, {hex(SZ[nm])}\ns_mov_b32 s{SRD[nm]+3}, 0x20000")
    a("s_memrealtime s[54:55]")
    if DIAG:
        a("s_waitcnt lgkmcnt(0)\ns_mov_b32 s3, s70\ns_mov_b32 s68, s72\nv_mov_b32 v250, s72")
        if OPT.get("rt"): a("s_mov_b32 s3, s72")
        for i in range(16): a(f"s_mov_b32 s{70+2*i}, s3")
    a(f"s_cmp_ge_u32 s{sW}, 4\ns_cbranch_scc1 Lp0_h\ns_cmp_lt_u32 s{sI}, 8\ns_cbranch_scc1 Lp0_mod\ns_cmp_ge_u32 s{sI}, 24\ns_cbranch_scc1 Lp0_warm")
    p0_ln(a)
    a("Lp0_h:")
    p0_helper(a)
    a("Lp0_mod:")
    p0_mod(a)
    a("Lp0_warm:")
    p0_warm(a)
    active(a)
    a("s_branch Latt")
    helper(a)
    a("Latt:")
    vm = Track(a, "vmcnt", 63)
    slow = attention(a, vm)
    a(f"s_cmp_ge_u32 s{sW}, 4\ns_cbranch_scc1 Lhelper2")
    active2(a)
    if OPT.get("hold"):
        a(f"Lhold:\ns_memrealtime s[52:53]\ns_waitcnt lgkmcnt(0)\ns_sub_u32 s52, s52, s{sTAG}\ns_cmp_lt_u32 s52, {OPT['hold']}\ns_cbranch_scc1 Lhold")
    if DIAG: a("v_mov_b32 v250, s68")
    diag_out(a, 0)
    a("s_endpgm")
    a("Lhelper2:")
    helper2(a)
    diag_out(a, 1)
    a("s_endpgm")
    slow(a)
    a("Lend:")
    return a

def emit(a):
    hdr = open(f"cdna_kernels/{NAME}.s.ref").read().split("\n")
    out = [l for l in hdr if l.startswith(";") and "@launch" not in l and "Override launch" not in l and "grid=ceil" not in l]
    out.append(f"; @launch grid=(256,1,1) block=(512,1,1) lds={LDS_SIZE}")
    a.fix()
    out += ['.amdgcn_target "amdgcn-amd-amdhsa--gfx950"', ".text", f".globl {NAME}_kernel", ".p2align 8", f".type {NAME}_kernel,@function", f"{NAME}_kernel:",
            a.text(), "    s_endpgm", "Lcode_end:", '.section .rodata,"a"', ".p2align 6", f".amdhsa_kernel {NAME}_kernel", "  .amdhsa_next_free_vgpr 256",
            "  .amdhsa_next_free_sgpr 102", "  .amdhsa_accum_offset 256", "  .amdhsa_group_segment_fixed_size 0", "  .amdhsa_kernarg_size 88",
            "  .amdhsa_user_sgpr_count 2", "  .amdhsa_user_sgpr_kernarg_segment_ptr 1", "  .amdhsa_system_sgpr_workgroup_id_x 1",
            "  .amdhsa_float_denorm_mode_32 3", ".end_amdhsa_kernel"]
    return "\n".join(out) + "\n"

if __name__ == "__main__":
    import argparse
    p = argparse.ArgumentParser(); p.add_argument("out"); p.add_argument("--diag", action="store_true"); p.add_argument("--opt", default="")
    args = p.parse_args()
    DIAG = args.diag
    for o in args.opt.split(","):
        if o: OPT[o.split("=")[0]] = int(o.split("=")[1]) if "=" in o else 1
    set_nring(OPT.get('nring', 4))
    open(args.out, "w").write(emit(build()))
```

```python
import sys, struct
from asmlib import *

NAME = "adaLN_cond__softmax_full_mha__dense_activation_silu__prompt"
WS_MODG = 0x0
WS_STATS = 0x10000
WS_FXN, WS_FKV, WS_FO, WS_FX1, WS_FH = 0x50000, 0x52000, 0x80000, 0xC0000, 0xE0000
FH_B = 0x8000
WS_XN, WS_K, WS_V, WS_O, WS_X1, WS_Y, WS_H = 0x200000, 0x400000, 0x600000, 0x800000, 0xA00000, 0xC00000, 0xE00000
WS_DIAG = 0x1600000
WS_SIZE = 0x1700000
KA = dict(x=0, wqkv=8, wo=16, w1=32, w2=40, c=48, wmod=56, out=64, dbg=72, ws=80)
SZ = dict(x=2048*512*2, wqkv=512*1536*2, wo=512*512*2, w1=512*1792*2, w2=1792*512*2, c=1024, wmod=512*3072*2, out=2048*512*2, dbg=256, ws=WS_SIZE)
SRD = dict(x=4, wqkv=8, wo=12, w1=16, w2=20, c=24, wmod=28, out=32, dbg=36, ws=40)
S = {k: sr(v, 4) for k, v in SRD.items()}
sW, sTB, sC, sTAG, sI, sX, sR = 44, 45, 46, 47, 48, 49, 69
SPIN = 20000
def f2u(f): return struct.unpack("<I", struct.pack("<f", f))[0]
def hx(f): return hex(f2u(f))
LOG2E = 1.4426950408889634
DIAG = False
OPT = {}
L_WKV, L_WQ = 0, 64*1024
L_DG = 96*1024
L_SA = 112*1024
L_QX = 144*1024
L_WO = 0
L_W1 = 32*1024
L_RED = 88*1024
L_TAB = 156*1024
L_GA, L_G2, L_GB, L_SCR, L_UW, L_G = L_TAB, L_TAB+128, L_TAB+256, L_TAB+512, L_TAB+1024, L_TAB+2048
LDS_SIZE = 160*1024

def stamp(a, i, grp=0):
    if DIAG and (OPT.get("focus", 0) == grp or i == 15): a(f"{'s_memrealtime' if OPT.get('rt') else 's_memtime'} s[{70+2*i}:{71+2*i}]")

_uid = [0]
def poll(a, vm, mask, vaddr, soff, vt, first=0):
    _uid[0] += 1; n = _uid[0]
    a(f"s_mov_b64 exec, {mask}\ns_mov_b32 s50, {SPIN}")
    if first: a(f"s_sleep {first}")
    a(f"Lpoll{n}:\nbuffer_load_dword v{vt}, v{vaddr}, {S['ws']}, {soff} offen sc1\ns_waitcnt vmcnt(0)\nv_cmp_ne_u32 vcc, s{sTAG}, v{vt}\ns_sub_u32 s50, s50, 1\ns_cbranch_vccz Lpolld{n}")
    if OPT.get("psleep", 0): a(f"s_sleep {OPT.get('psleep', 0)}")
    a(f"s_cmp_lg_u32 s50, 0\ns_cbranch_scc1 Lpoll{n}")
    a(f"Lpolld{n}:\ns_mov_b64 exec, -1")
    vm.reset()

def LF(): return OPT.get("lf", 3)
def flag_off(a, d, f, base, lf=3):
    a(f"s_lshr_b32 s50, s{f}, {lf}\ns_lshl_b32 s50, s50, 7\ns_and_b32 s{d}, s{f}, {(1 << lf) - 1}\ns_lshl_b32 s{d}, s{d}, 2\ns_add_u32 s{d}, s{d}, s50\ns_add_u32 s{d}, s{d}, {hex(base)}")

def set_flag(a, vm, soff, vz, vt):
    vm.wait_all()
    a(f"v_mov_b32 v{vt}, s{sTAG}\ns_mov_b64 exec, 1")
    vm.op(f"buffer_store_dword v{vt}, v{vz}, {S['ws']}, {soff} offen sc1")
    a("s_mov_b64 exec, -1")

def rne_bf16(a, d, s):
    a(f"v_cvt_pk_bf16_f32 v{d}, v{s}, v{s}\nv_lshlrev_b32 v{d}, 16, v{d}")

def tr_addr(a, d, t, perm, rowbytes_log2, swz):
    a(f"v_bfe_u32 v{d}, v0, 2, 2\nv_bfe_u32 v{t}, v0, 5, 1")
    a(f"v_lshl_add_u32 v{d}, v{t}, {2 if perm else 3}, v{d}\nv_lshlrev_b32 v{d}, {rowbytes_log2}, v{d}")
    a(f"v_bfe_u32 v{t}, v0, 4, 1\nv_lshl_add_u32 v{d}, v{t}, 5, v{d}")
    a(f"v_and_b32 v{t}, 3, v0\nv_lshl_add_u32 v{d}, v{t}, 3, v{d}")
    if swz: a(f"v_bfe_u32 v{t}, v0, 3, 1\nv_lshl_add_u32 v{d}, v{t}, 6, v{d}")

def half_tr_addr(a, d, t):
    a(f"v_bfe_u32 v{d}, v0, 2, 1")
    a(f"v_bfe_u32 v{t}, v0, 4, 1\nv_lshl_add_u32 v{d}, v{t}, 1, v{d}")
    a(f"v_bfe_u32 v{t}, v0, 3, 1\nv_lshl_add_u32 v{d}, v{t}, 2, v{d}")
    a(f"v_bfe_u32 v{t}, v0, 5, 1\nv_lshl_add_u32 v{d}, v{t}, 4, v{d}")
    a(f"v_lshlrev_b32 v{d}, 5, v{d}\nv_and_b32 v{t}, 3, v0\nv_lshl_add_u32 v{d}, v{t}, 3, v{d}")

vLANE, vL16, vZ = 1, 2, 3
def poll_addr(a, d, lf=3):
    a(f"v_lshrrev_b32 v{d}, {lf}, v{vLANE}\nv_lshlrev_b32 v{d}, 5, v{d}\nv_and_or_b32 v{d}, v{vLANE}, {(1 << lf) - 1}, v{d}\nv_lshlrev_b32 v{d}, 2, v{d}")

def mod_issue(a, vm, sCol, B=16, T=4):
    a(f"v_bfe_u32 v{T}, v0, 1, 7\nv_and_b32 v{T+1}, 1, v0")
    a(f"v_mul_u32_u24 v{T+2}, 6144, v{T}\nv_lshl_add_u32 v{T+2}, v{T+1}, 4, v{T+2}\nv_lshlrev_b32 v{T+3}, 1, v{T}")
    a(f"s_lshl_b32 s52, s{sCol}, 1")
    for m in range(4):
        vm.op(f"buffer_load_dwordx4 {vr(B+4*m,4)}, v{T+2}, {S['wmod']}, s52 offen", "mod")
        if m < 3: a(f"s_add_u32 s52, s52, {128*6144}")
    for m in range(4): vm.op(f"buffer_load_ushort v{B+16+m}, v{T+3}, {S['c']}, 0 offen offset:{256*m}", "mod")

def mod_partial(a, vm, B=16):
    vm.wait("mod")
    C, F, T, A = B+16, B+24, B+20, B+32
    for m in range(4): a(f"v_lshlrev_b32 v{C+m}, 16, v{C+m}")
    for m in range(4): a(f"v_mul_f32 v{T+m}, {hx(-LOG2E)}, v{C+m}")
    for m in range(4): a(f"v_exp_f32 v{T+m}, v{T+m}")
    for m in range(4): a(f"v_add_f32 v{T+m}, 1.0, v{T+m}")
    for m in range(4): a(f"v_rcp_f32 v{T+m}, v{T+m}")
    for m in range(4): a(f"v_mul_f32 v{C+m}, v{C+m}, v{T+m}")
    for m in range(4): a(f"v_cvt_pk_bf16_f32 v{C+m}, v{C+m}, v{C+m}")
    for m in range(4): a(f"v_lshlrev_b32 v{C+m}, 16, v{C+m}")
    for m in range(4):
        for r in range(4):
            a(f"v_lshlrev_b32 v{F+2*r}, 16, v{B+4*m+r}\nv_and_b32 v{F+2*r+1}, 0xffff0000, v{B+4*m+r}")
        for j in range(8):
            a(f"v_mul_f32 v{A+j}, v{F+j}, v{C}" if m == 0 else f"v_fmac_f32 v{A+j}, v{F+j}, v{C+m}")
    for j in range(4): a(f"v_permlane32_swap_b32 v{A+j}, v{A+4+j}")
    for j in range(4): a(f"v_add_f32 v{A+j}, v{A+j}, v{A+4+j}")
    for j in range(2): a(f"v_permlane16_swap_b32 v{A+j}, v{A+2+j}")
    for j in range(2): a(f"v_add_f32 v{A+j}, v{A+j}, v{A+2+j}")
    for r in (8, 4, 2):
        for j in range(2): a(f"v_add_f32_dpp v{A+j}, v{A+j}, v{A+j} row_ror:{r} row_mask:0xf bank_mask:0xf")
    a("v_bfe_u32 v8, v0, 6, 2\nv_lshlrev_b32 v8, 6, v8\nv_and_b32 v9, 1, v0\nv_lshl_add_u32 v8, v9, 5, v8")
    a("v_bfe_u32 v9, v0, 4, 1\nv_lshl_add_u32 v8, v9, 3, v8\nv_bfe_u32 v9, v0, 5, 1\nv_lshl_add_u32 v8, v9, 4, v8")
    a(f"v_add_u32 v8, {L_SCR}, v8")
    a("s_mov_b32 exec_lo, 0x00030003\ns_mov_b32 exec_hi, 0x00030003")
    a(f"ds_write_b64 v8, v[{A}:{A+1}]")
    a("s_mov_b64 exec, -1")

def mod_final(a, vm, sCol):
    a("s_mov_b64 exec, 0xff")
    a(f"v_lshlrev_b32 v8, 3, v{vLANE}\nv_add_u32 v9, {L_SCR}, v8")
    for w in range(4): a(f"ds_read_b64 {vr(240+2*w,2)}, v9 offset:{64*w}")
    a(f"s_lshr_b32 s52, s{sCol}, 9\ns_cmp_eq_u32 s52, 1\ns_cselect_b32 s53, 1.0, 0\ns_cmp_eq_u32 s52, 4\ns_cselect_b32 s53, 1.0, s53")
    a(f"s_lshl_b32 s52, s{sCol}, 2")
    a("s_waitcnt lgkmcnt(0)")
    for j in range(2): a(f"v_add_f32 v{240+j}, v{240+j}, v{242+j}\nv_add_f32 v{244+j}, v{244+j}, v{246+j}")
    for j in range(2): a(f"v_add_f32 v{240+j}, v{240+j}, v{244+j}")
    a("v_cvt_pk_bf16_f32 v242, v240, v241\nv_lshlrev_b32 v240, 16, v242\nv_and_b32 v241, 0xffff0000, v242")
    a("v_add_f32 v240, s53, v240\nv_add_f32 v241, s53, v241")
    a(f"v_cvt_pk_bf16_f32 v240, v240, v241\nv_mov_b32 v241, s{sTAG}")
    vm.op(f"buffer_store_dwordx2 v[240:241], v8, {S['ws']}, s52 offen sc1")
    a("s_mov_b64 exec, -1")

def gran_poll(a, vm, loads, regs):
    _uid[0] += 1; n = _uid[0]
    a(f"s_mov_b32 s50, {SPIN}\nLgp{n}:")
    for t in loads: a(t)
    a("s_waitcnt vmcnt(0)")
    first = True
    for r in regs:
        for o in (1, 3):
            if first: a(f"v_xor_b32 v15, s{sTAG}, v{r+o}"); first = False
            else: a(f"v_xor_b32 v14, s{sTAG}, v{r+o}\nv_or_b32 v15, v15, v14")
    a("v_cmp_ne_u32 vcc, 0, v15\ns_sub_u32 s50, s50, 1")
    a(f"s_cbranch_vccz Lgpd{n}\ns_sleep {OPT.get('gsleep', 1)}\ns_cmp_lg_u32 s50, 0\ns_cbranch_scc1 Lgp{n}\nLgpd{n}:")
    vm.reset()

def tag_get(a):
    _uid[0] += 1; n = _uid[0]
    a(f"v_mov_b32 v8, {L_SCR+260}\ns_mov_b32 s50, {SPIN*20}\nLtg{n}:\nds_read_b32 v9, v8\ns_sub_u32 s50, s50, 1\ns_waitcnt lgkmcnt(0)\nv_readfirstlane_b32 s{sTAG}, v9")
    a(f"s_cmp_lg_u32 s{sTAG}, 0\ns_cbranch_scc1 Ltgd{n}\ns_cmp_lg_u32 s50, 0\ns_cbranch_scc1 Ltg{n}\nLtgd{n}:")

def tag_now(a, v):
    _uid[0] += 1; n = _uid[0]
    a(f"s_mov_b32 s50, {SPIN}\nLtn{n}:\nv_readfirstlane_b32 s{sTAG}, v{v}\ns_sub_u32 s50, s50, 1")
    a(f"s_cmp_lg_u32 s{sTAG}, 0\ns_cbranch_scc1 Ltnd{n}\ns_cmp_eq_u32 s50, 0\ns_cbranch_scc1 Ltnd{n}")
    a(f"buffer_load_dword v{v}, v{vZ}, {S['dbg']}, 0 offen sc1\ns_waitcnt vmcnt(0)\ns_branch Ltn{n}\nLtnd{n}:")

def read_tag(a):
    a(f"v_mov_b32 v8, {L_SCR+260}\nds_read_b32 v9, v8\ns_waitcnt lgkmcnt(0)\nv_readfirstlane_b32 s{sTAG}, v9")

def mall_touch(a):
    _uid[0] += 1; n = _uid[0]
    a(f"v_lshlrev_b32 v5, 7, v{vLANE}\ns_cmp_eq_u32 s{sW}, 6\ns_cbranch_scc1 Lt6_{n}\ns_cmp_eq_u32 s{sW}, 7\ns_cbranch_scc1 Lt7_{n}")
    a(f"s_mul_i32 s52, s2, {56*128}\ns_cmp_eq_u32 s{sW}, 5\ns_cbranch_scc1 Lt5_{n}")
    a(f"buffer_load_dword v248, v5, {S['w1']}, s52 offen\ns_branch Ltd_{n}")
    a(f"Lt5_{n}:\nbuffer_load_dword v248, v5, {S['w2']}, s52 offen\ns_branch Ltd_{n}")
    a(f"Lt6_{n}:\nv_lshrrev_b32 v6, 5, v{vLANE}\nv_mul_u32_u24 v6, {6144-4096}, v6\nv_add_u32 v5, v5, v6\ns_mul_i32 s52, s2, 12288\ns_add_u32 s52, s52, 2048")
    a(f"buffer_load_dword v248, v5, {S['wmod']}, s52 offen\ns_branch Ltd_{n}")
    a(f"Lt7_{n}:\ns_lshl_b32 s52, s2, 11\ns_mov_b64 exec, 0xffff\nbuffer_load_dword v248, v5, {S['wo']}, s52 offen\ns_mov_b64 exec, -1")
    a(f"Ltd_{n}:")

def stouch(nm, soff, line):
    return f"s_buffer_load_dwordx2 s[0:1], {S[nm]}, s{soff} offset:{128*line+60}"

def mod_join(a, vm, sCol, name, pre=None):
    a(f"v_mov_b32 v8, {L_SCR+256}\nv_mov_b32 v9, 1\ns_waitcnt lgkmcnt(0)\ns_mov_b64 exec, 1\nds_add_rtn_u32 v9, v8, v9\ns_mov_b64 exec, -1\ns_waitcnt lgkmcnt(0)")
    a(f"v_readfirstlane_b32 s52, v9\ns_cmp_lg_u32 s52, 3\ns_cbranch_scc1 {name}")
    if pre: pre()
    mod_final(a, vm, sCol)

NRING = 4
def set_nring(n):
    global NRING
    NRING = n
vSTASH, vMOD, vXR = 180, 208, 208
QF, OA, SB, RING = 16, 32, [96, 112], 128
vV, vWO, vW1, vW1H = 4, 12, 13, 14
sHH, sKQ, sK, sV = 54, 55, 56, 57
def att_setup():
    a = Asm()
    a(f"s_and_b32 s{sHH}, s{sW}, 1\ns_lshr_b32 s{sKQ}, s{sW}, 1")
    a(f"v_and_b32 v{vV}, 15, v{vLANE}\nv_lshlrev_b32 v{vV}, 4, v{vV}\nv_bfe_u32 v5, v{vLANE}, 5, 1\nv_lshl_add_u32 v{vV}, v5, 8, v{vV}")
    a(f"s_lshl_b32 s58, s{sC}, 1\ns_add_u32 s58, s58, s{sHH}")
    a(f"s_lshl_b32 s59, s58, 16")
    a(f"s_lshl_b32 s52, s{sKQ}, 14\ns_add_u32 s52, s52, s59\ns_add_u32 s{sK}, s52, {hex(WS_K)}\ns_add_u32 s{sV}, s52, {hex(WS_V)}")
    a("s_mov_b32 s60, 0x0000ffff\ns_mov_b32 s61, 0x0000ffff")
    a(f"s_lshl_b32 s52, s{sKQ}, 8\ns_lshr_b32 s53, s{sC}, 1\ns_lshl_b32 s53, s53, 11\ns_add_u32 s52, s52, s53\ns_add_u32 s62, s52, {hex(WS_FKV)}")
    a(f"s_and_b32 s65, s{sTB}, 3\ns_lshl_b32 s65, s65, 12")
    a(f"v_lshrrev_b32 v6, 2, v{vLANE}\nv_and_b32 v11, 3, v{vLANE}\nv_lshlrev_b32 v{vWO}, 10, v6\nv_lshl_add_u32 v{vWO}, v11, 4, v{vWO}")
    w1_voffs(a, vW1, vW1H, 6, 11, 15)
    a(f"v_and_b32 v5, 7, v{vLANE}\nv_lshlrev_b32 v5, 2, v5\nv_bfe_u32 v6, v{vLANE}, 3, 1\nv_lshl_add_u32 v5, v6, 7, v5\nv_bfe_u32 v6, v{vLANE}, 4, 1\nv_lshl_add_u32 v5, v6, 10, v5")
    a(f"v_and_b32 v6, 0x1b, v{vLANE}\nv_cmp_eq_u32 vcc, 16, v6\nv_mov_b32 v15, 0x3f803f80\ns_nop 0\nv_cndmask_b32 v15, 0, v15, vcc")
    for r in range(64): a(f"v_mov_b32 v{OA+r}, 0")
    early = [I.text for I in a.L]
    late = [f"v_mov_b32 v{RING+12*sl+4+r}, v15" for sl in range(NRING) for r in range(8)] + [f"v_mov_b32 v{RING+12*NRING}, 0xdddddddd"]
    return early, late

def q_join(a):
    _uid[0] += 1; n = _uid[0]
    a(f"v_mov_b32 v9, {L_SCR+264}\ns_mov_b32 s50, {SPIN*20}\nLqj{n}:\nds_read_b32 v10, v9\ns_sub_u32 s50, s50, 1\ns_waitcnt lgkmcnt(0)\nv_readfirstlane_b32 s52, v10")
    a(f"s_cmp_eq_u32 s52, 4\ns_cbranch_scc1 Lqjd{n}\ns_cmp_lg_u32 s50, 0\ns_cbranch_scc1 Lqj{n}\nLqjd{n}:")

def att_q(a):
    for i in range(4):
        a(f"s_add_u32 s52, s{sKQ}, {i}\ns_and_b32 s52, s52, 3\ns_lshl_b32 s53, s{sHH}, 2\ns_add_u32 s52, s52, s53\ns_lshl_b32 s52, s52, 10\ns_add_u32 s52, s52, {L_QX}")
        a(f"v_add_u32 v9, s52, v{vL16}\nds_read_b128 {vr(QF+4*i,4)}, v9")

KVF = lambda: [' sc1', '', ' sc1 nt'][OPT.get('kvf', 0)]
def att_ld(a, vm, kt):
    sl = kt % NRING
    if kt % 4 == 0: a(f"s_add_u32 s63, s{sK}, s62\ns_add_u32 s64, s{sV}, s62\ns_add_u32 s62, s62, 4096\ns_and_b32 s62, s62, 0x3fff")
    o = 1024*(kt % 4)
    vm.op(f"buffer_load_dwordx4 {vr(RING+12*sl,4)}, v{vL16}, {S['ws']}, s63 offen offset:{o}{KVF()}", ("kv", kt))
    a("s_mov_b64 exec, s[60:61]")
    vm.op(f"buffer_load_dwordx4 {vr(RING+12*sl+4,4)}, v{vV}, {S['ws']}, s64 offen offset:{o}{KVF()}", ("kv", kt))
    vm.op(f"buffer_load_dwordx4 {vr(RING+12*sl+8,4)}, v{vV}, {S['ws']}, s64 offen offset:{o+512}{KVF()}", ("kv", kt))
    a("s_mov_b64 exec, -1")

def att_first(a, vm, first):
    stamp(a, 4)
    poll(a, vm, "0xffffffff", 5, "s62", 6, first)
    stamp(a, 5)
    a("s_mov_b32 s62, s65")
    for kt in range(NRING-1): att_ld(a, vm, kt)

def attention(a, vm):
    IDX = RING + 12*NRING
    assert IDX < vSTASH
    def kp_addr(d):
        return [f"s_lshl_b32 s65, s{sR}, 1", f"s_add_u32 s65, s65, s{sW}", f"s_add_u32 s65, s65, {d}", "s_and_b32 s65, s65, 15", f"s_mul_i32 s65, s65, {32*3584}",
                f"s_mul_i32 s52, s{sC}, 224", "s_add_u32 s65, s65, s52", f"s_mul_i32 s66, s{sW}, 7168", f"s_add_u32 s66, s66, {L_W1+7168*d}"]
    wo = [[f"s_add_u32 m0, s66, {L_WO+1024*j}", f"s_add_u32 s52, s65, {16384*j}", f"buffer_load_dwordx4 v{vWO}, {S['wo']}, s52 offen lds"] for j in range(4)]
    wo[0] = [f"s_add_u32 s65, s{sW}, s{sR}", "s_and_b32 s65, s65, 7", "s_lshl_b32 s65, s65, 16", f"s_lshl_b32 s52, s{sC}, 6", "s_add_u32 s65, s65, s52", f"s_lshl_b32 s66, s{sW}, 12"] + wo[0]
    k1 = w1_kp_dma(65, 66, vW1, vW1H); k1[0] = kp_addr(0) + k1[0]
    k2 = []
    for j, p in enumerate(w1_kp_dma(65, 66, vW1, vW1H)):
        k2.append([p[1], p[2].replace("buffer_load_dwordx4 ", f"buffer_load_dwordx4 {vr(vSTASH+4*j,4)}, ").replace(" lds", "")])
    k2[0] = kp_addr(8)[:7] + k2[0]
    p0 = OPT.get("pre0", 5)
    pre = {4*p0+1: wo[:2], 4*p0+5: wo[2:], 4*p0+9: k1[:3], 4*p0+13: k1[3:], 4*p0+17: k2[:3], 4*p0+21: k2[3:]}
    ld = lambda kt: att_ld(a, vm, kt)
    for kt in range(NRING-1): vm.q += [('kv', kt)]*3
    def QK(dst, sl, q): return f"v_mfma_f32_32x32x16_bf16 {vr(dst,16)}, {vr(RING+12*sl,4)}, {vr(QF+4*q,4)}, 0"
    def SM(q, sl, half, s): return f"v_smfmac_f32_32x32x32_bf16 {vr(OA+16*q,16)}, {vr(RING+12*sl+4+4*half,4)}, {vr(s+8*half,8)}, v{IDX}"
    a("s_setprio 1")
    a(f"s_and_b32 s53, s{sW}, 3\ns_lshl_b32 s52, s2, 2\ns_add_u32 s53, s53, s52\ns_mul_i32 s53, s53, {9*128}")
    ST = [stouch("w1", 53, n) for n in range(9)] + [stouch("wmod", 53, n) for n in range(16)] + [stouch("w2", 53, n) for n in range(14)]
    a("s_waitcnt lgkmcnt(0)")
    vm.wait(("kv", 0))
    a(QK(SB[0], 0, 0))
    a("s_nop 7\ns_nop 3")
    TAIL = OPT.get("tail", 0)
    qof = lambda t: (t + 1) % 4 if (TAIL and t >= 60) else t % 4
    def red_write(i):
        return [f"s_add_u32 s52, s{sKQ}, {i}\ns_and_b32 s52, s52, 3\ns_mul_i32 s52, s52, 3\ns_add_u32 s52, s52, s63\ns_add_u32 s52, s52, {i-1}\ns_mul_i32 s52, s52, 2304\ns_add_u32 s52, s52, {L_RED}",
                f"v_add_u32 v6, s52, v{vL16}\nv_add_u32 v7, s52, v15",
                f"ds_write_b128 v6, {vr(OA+16*i,4)}", f"ds_write_b128 v6, {vr(OA+16*i+4,4)} offset:1024", f"ds_write_b32 v7, v{OA+16*i+8} offset:2048"]
    for t in range(64):
        kt, q = t // 4, t % 4
        cur, prv = SB[t & 1], SB[(t + 1) & 1]
        E = [f"v_exp_f32 v{cur+r}, v{cur+r}" for r in range(16)]
        if t == OPT.get("prio", 53):
            a(f"s_cmp_ge_u32 s{sW}, 4\ns_cbranch_scc1 Latt_prio\ns_setprio 0\nLatt_prio:")
        a(E[0]); a(E[1])
        if t > 0: a(SM(qof(t-1), ((t-1)//4) % NRING, 1, prv))
        if t == 59: a(f"s_mul_i32 s63, s{sHH}, 12\nv_lshlrev_b32 v15, 2, v{vLANE}")
        if q == 0 and kt + NRING - 1 < 16: ld(kt + NRING - 1)
        if t in pre and not OPT.get("nopre"):
            for p in pre[t]:
                for x in p[:-1]: a(x)
                vm.op(p[-1], "pre")
        if t == OPT.get("cpf", 99):
            a(f"s_cmp_lg_u32 s{sW}, 7\ns_cbranch_scc1 Latt_nocp\ns_getpc_b64 s[50:51]\nLpc2:\ns_and_b32 s52, s{sI}, 3\ns_lshl_b32 s52, s52, 13\nv_lshlrev_b32 v5, 7, v{vLANE}\nv_add_u32 v5, s52, v5")
            a("v_min_u32 v5, Lcode_end-Lpc2-4, v5\nglobal_load_dword v249, v5, s[50:51]\nLatt_nocp:")
        if t == 57:
            a(f"s_cmp_ge_u32 s{sW}, 4\ns_cbranch_scc1 Latt_nox")
            a(f"v_bfe_u32 v5, v{vLANE}, 5, 1\nv_and_b32 v6, 31, v{vLANE}\nv_lshlrev_b32 v6, 10, v6\nv_lshl_add_u32 v6, v5, 3, v6")
            a(f"s_lshl_b32 s52, s67, 15\ns_lshl_b32 s50, s{sC}, 6\ns_add_u32 s52, s52, s50")
            for qq in range(4): a(f"buffer_load_dwordx2 {vr(vXR+2*qq,2)}, v6, {S['x']}, s52 offen offset:{16*qq}")
            a("Latt_nox:")
        if t == 50:
            a(f"s_cmp_lt_u32 s{sW}, 4\ns_cbranch_scc1 Latt_nomod\ns_sub_u32 s52, s{sI}, 8\ns_cmp_ge_u32 s52, 16\ns_cbranch_scc1 Latt_nomod")
            a(f"s_lshl_b32 s66, s{sX}, 2\ns_lshr_b32 s52, s52, 2\ns_add_u32 s66, s66, s52\ns_lshl_b32 s66, s66, 6")
            a(f"s_and_b32 s52, s{sI}, 3\ns_lshl_b32 s52, s52, 4\ns_add_u32 s66, s66, s52\ns_add_u32 s66, s66, 1024")
            mod_issue(a, Track(a, "vmcnt", 63), 66, vMOD, T=244)
            a("Latt_nomod:")
        if t == OPT.get("w2t", 62) and not OPT.get("nopre"):
            a(f"s_cmp_eq_u32 s{sW}, 7\ns_cbranch_scc1 Latt_nopf\ns_mul_i32 s52, s{sI}, 7\ns_add_u32 s52, s52, s{sW}\ns_lshl_b32 s52, s52, 13\nv_lshlrev_b32 v5, 7, v{vLANE}")
            a(f"buffer_load_dword v248, v5, {S['w2']}, s52 offen")
            a("Latt_nopf:")
        if OPT.get("st", 7) & 4 and t % 3 != 2 and t - t//3 < 39:
            j = t - t//3
            if j == 9: a(f"s_lshl_b32 s53, s2, 1\ns_bfe_u32 s52, s{sW}, 0x10001\ns_add_u32 s53, s53, s52\ns_mul_i32 s53, s53, 6144\ns_lshl_b32 s52, s{sHH}, 11\ns_add_u32 s53, s53, s52\ns_add_u32 s53, s53, 2048")
            if j == 25: a(f"s_and_b32 s53, s{sW}, 3\ns_lshl_b32 s52, s2, 2\ns_add_u32 s53, s53, s52\ns_mul_i32 s53, s53, {14*128}")
            a(ST[j])
        sh = OPT.get("vb", 1)
        for r in range(2, 4+sh): a(E[r])
        if t < 63:
            if q == 3: vm.wait(("kv", kt + 1))
            a(QK(prv, ((t+1)//4) % NRING, qof(t+1)))
        for r in range(4+sh, 10+sh): a(E[r])
        a(SM(qof(t), kt % NRING, 0, cur))
        W = red_write(t - 60) if (TAIL and t >= 61) else []
        for r in range(10+sh, 16):
            a(E[r])
            if W: a(W.pop(0))
        for x in W: a(x)
        if t % 4 == 3 and t < 60: stamp(a, t//4, 5)
    a("s_nop 1")
    a(SM(qof(63), 15 % NRING, 1, SB[1]))
    a("s_setprio 0")
    stamp(a, 6); stamp(a, 0, 8)
    if not TAIL:
        for i in range(1, 4):
            for x in red_write(i): a(x)
    a(f"s_mul_i32 s52, s{sKQ}, 3\ns_add_u32 s52, s52, s63\ns_mul_i32 s52, s52, 2304\ns_add_u32 s52, s52, {L_RED}")
    a(f"v_add_u32 v6, s52, v{vL16}\nv_add_u32 v7, s52, v15")
    a(f"s_lshl_b32 s52, s{sTB}, 2\ns_add_u32 s52, s52, s{sKQ}\ns_lshl_b32 s52, s52, 5\ns_add_u32 s52, s52, s58")
    a(f"s_lshl_b32 s63, s52, 10\ns_add_u32 s63, s63, {hex(WS_O)}")
    flag_off(a, 64, 52, WS_FO, LF())
    stamp(a, 1, 8)
    vm.wait_all()
    a("s_waitcnt lgkmcnt(0)")
    stamp(a, 2, 8)
    a("s_barrier")
    stamp(a, 3, 8)
    R = 96
    for i in range(3):
        a(f"ds_read_b128 {vr(R+12*i,4)}, v6 offset:{2304*i}\nds_read_b128 {vr(R+12*i+4,4)}, v6 offset:{2304*i+1024}\nds_read_b32 v{R+12*i+8}, v7 offset:{2304*i+2048}")
    a(f"s_mov_b32 s52, {hx(2.0**-60)}\ns_mov_b32 s53, {hx(2.0**60)}\ns_movk_i32 s65, 0x207")
    for i in range(3):
        a(f"s_waitcnt lgkmcnt({6-3*i})")
        for r in range(9): a(f"v_add_f32 v{OA+r}, v{OA+r}, v{R+12*i+r}")
    a(f"v_add_f32 v8, v{OA}, v{OA+1}\nv_add_f32 v9, v{OA+2}, v{OA+3}\nv_add_f32 v10, v{OA+4}, v{OA+5}\nv_add_f32 v11, v{OA+6}, v{OA+7}")
    a("v_add_f32 v8, v8, v9\nv_add_f32 v10, v10, v11\nv_add_f32 v8, v8, v10")
    a(f"v_cmp_nge_f32 vcc, v{OA+8}, s52\nv_cmp_nle_f32 s[54:55], v{OA+8}, s53\nv_cmp_class_f32 s[56:57], v8, s65")
    a(f"v_rcp_f32 v8, v{OA+8}")
    a("s_or_b64 vcc, vcc, s[54:55]\ns_or_b64 vcc, vcc, s[56:57]")
    a("s_cbranch_vccnz Lslow")
    a("Lnorm:")
    for r in range(8): a(f"v_mul_f32 v{OA+r}, v{OA+r}, v8")
    for r in range(4): a(f"v_cvt_pk_bf16_f32 v{8+r}, v{OA+2*r}, v{OA+2*r+1}")
    vm.op(f"buffer_store_dwordx4 v[8:11], v{vL16}, {S['ws']}, s63 offen sc1")
    stamp(a, 4, 8)
    a("s_barrier")
    stamp(a, 5, 8)
    a(f"s_mul_i32 s52, s{sW}, 7168\ns_add_u32 s52, s52, {L_W1+8*7168}\nv_add_u32 v5, s52, v{vL16}")
    for j in range(7): a(f"ds_write_b128 v5, {vr(vSTASH+4*j,4)} offset:{1024*j}")
    def slow(b):
        tv = Track(b, "vmcnt", 63)
        b("Lslow:")
        poll_addr(b, 5)
        b(f"s_lshr_b32 s52, s{sC}, 1\ns_lshl_b32 s52, s52, 11\ns_add_u32 s62, s52, {hex(WS_FKV)}")
        poll(b, tv, "-1", 5, "s62", 6)
        b("s_add_u32 s62, s62, 1024")
        poll(b, tv, "-1", 5, "s62", 6)
        b(f"s_waitcnt vmcnt(0)\ns_add_u32 s{sK}, s59, {hex(WS_K)}\ns_mov_b32 s51, 64\nv_mov_b32 v8, 0xff800000")
        b("Ls1:")
        b(f"buffer_load_dwordx4 {vr(RING,4)}, v{vL16}, {S['ws']}, s{sK} offen sc1\ns_add_u32 s{sK}, s{sK}, 1024\ns_waitcnt vmcnt(0)")
        b(QK(SB[0], 0, 0))
        for r in range(0, 16, 2): b(f"v_max3_f32 v8, v{SB[0]+r}, v{SB[0]+r+1}, v8")
        b("s_sub_u32 s51, s51, 1\ns_cmp_lg_u32 s51, 0\ns_cbranch_scc1 Ls1")
        b("v_mov_b32 v9, v8\nv_permlane32_swap_b32 v8, v9\nv_max_f32 v8, v8, v9")
        for r in range(16): b(f"v_sub_f32 v{SB[1]+r}, 0, v8")
        for r in range(16): b(f"v_mov_b32 v{OA+r}, 0")
        b(f"s_add_u32 s{sK}, s59, {hex(WS_K)}\ns_add_u32 s{sV}, s59, {hex(WS_V)}\ns_mov_b32 s51, 64")
        b("Ls2:")
        b(f"buffer_load_dwordx4 {vr(RING,4)}, v{vL16}, {S['ws']}, s{sK} offen sc1\ns_mov_b64 exec, s[60:61]")
        b(f"buffer_load_dwordx4 {vr(RING+4,4)}, v{vV}, {S['ws']}, s{sV} offen sc1\nbuffer_load_dwordx4 {vr(RING+8,4)}, v{vV}, {S['ws']}, s{sV} offen offset:512 sc1")
        b(f"s_mov_b64 exec, -1\ns_add_u32 s{sK}, s{sK}, 1024\ns_add_u32 s{sV}, s{sV}, 1024\ns_waitcnt vmcnt(0)")
        b(f"v_mfma_f32_32x32x16_bf16 {vr(SB[0],16)}, {vr(RING,4)}, {vr(QF,4)}, {vr(SB[1],16)}")
        for r in range(16): b(f"v_exp_f32 v{SB[0]+r}, v{SB[0]+r}")
        b(SM(0, 0, 0, SB[0])); b(SM(0, 0, 1, SB[0]))
        b("s_sub_u32 s51, s51, 1\ns_cmp_lg_u32 s51, 0\ns_cbranch_scc1 Ls2")
        b(f"s_nop 7\ns_nop 7\nv_rcp_f32 v8, v{OA+8}\ns_nop 0\ns_branch Lnorm")
    return slow

def w1_voffs(a, vF, vH, p=7, q=8, r=9):
    a(f"v_lshrrev_b32 v{p}, 2, v{vLANE}\nv_and_b32 v{q}, 3, v{vLANE}\nv_mul_u32_u24 v{vF}, 3584, v{p}\nv_lshl_add_u32 v{vF}, v{q}, 4, v{vF}")
    a(f"v_lshrrev_b32 v{p}, 1, v{vLANE}\nv_and_b32 v{q}, 0x13, v{p}\nv_bfe_u32 v{r}, v{p}, 2, 1\nv_lshl_add_u32 v{q}, v{r}, 3, v{q}\nv_bfe_u32 v{r}, v{p}, 3, 1\nv_lshl_add_u32 v{q}, v{r}, 2, v{q}")
    a(f"v_mul_u32_u24 v{vH}, 3584, v{q}\nv_and_b32 v{q}, 1, v{vLANE}\nv_lshl_add_u32 v{vH}, v{q}, 4, v{vH}")

def w1_kp_dma(sOff, sLds, vF, vH, dOff=0, dLds=0):
    L = []
    for e in range(2):
        for nt in range(3):
            L.append([f"s_add_u32 m0, s{sLds}, {dLds+3072*e+1024*nt}", f"s_add_u32 s52, s{sOff}, {dOff+16*3584*e+64*nt}",
                      f"buffer_load_dwordx4 v{vF}, {S['w1']}, s52 offen lds"])
    L.append([f"s_add_u32 m0, s{sLds}, {dLds+6144}", f"s_add_u32 s52, s{sOff}, {dOff+192}", f"buffer_load_dwordx4 v{vH}, {S['w1']}, s52 offen lds"])
    return L

def w1_reads(kp, e, dst, vF):
    base = 7168*kp + 3072*e
    return [f"ds_read_b64_tr_b16 {vr(dst+4*nt+2*st,2)}, v{vF[base >> 15]} offset:{(base & 0x7fff)+1024*nt+512*st}" for nt in range(3) for st in range(2)]
def w1_half_reads(kp, dst, vH):
    base = 7168*kp + 6144
    return [f"ds_read_b64_tr_b16 {vr(dst+2*st,2)}, v{vH[base >> 15]} offset:{(base & 0x7fff)+256*st}" for st in range(2)]

def h_pj(ks):
    return (ks // 4, ks % 4) if ks < 32 else ((ks - 32) // 3, 4 + (ks - 32) % 3)

def rot_loads(a, vm, base_s, dst, tag, div=1):
    for ks in range(32):
        if ks % 4 == 0: a(f"s_add_u32 s53, s{sR}, {ks//4}\ns_and_b32 s53, s53, 7\ns_lshl_b32 s53, s53, 12\ns_add_u32 s53, s53, s{base_s}")
        yield ks, (f"buffer_load_dwordx4 {vr(dst+4*ks,4)}, v{vL16}, {S['ws']}, s53 offen offset:{1024*(ks%4)} sc1", (tag, ks//div))

def lds_init_b0(a):
    late_srds(a)
    a(f"v_mov_b32 v8, {L_SCR+256}\nv_mov_b32 v10, 0\nv_mov_b32 v11, 0\nds_write_b64 v8, v[10:11]\nds_write_b32 v8, v10 offset:8\ns_waitcnt lgkmcnt(0)\ns_barrier")

EB = lambda bit: OPT.get('eb1', 2) & bit
def tag_to_lds_b1(a, late):
    a(f"v_mov_b32 v8, s{sTAG}\nv_mov_b32 v9, {L_SCR+260}\nds_write_b32 v9, v8\ns_waitcnt lgkmcnt(0)")
    stamp(a, 0)
    if late: a("s_barrier")
    a("s_branch La_p1")

def p0_ln(a):
    vm = Track(a, "vmcnt", 63)
    a(f"s_and_b32 s52, s{sX}, 1\ns_lshl_b32 s52, s52, 4\ns_add_u32 s52, s52, s{sI}\ns_sub_u32 s52, s52, 8\ns_lshl_b32 s52, s52, 2\ns_add_u32 s52, s52, s{sW}")
    a(f"s_lshr_b32 s53, s{sX}, 1\ns_lshl_b32 s53, s53, 7\ns_add_u32 s56, s52, s53\ns_lshl_b32 s53, s56, 12")
    a(f"v_and_b32 v4, 3, v{vLANE}\nv_lshrrev_b32 v5, 2, v{vLANE}\nv_lshlrev_b32 v6, 10, v4\nv_lshl_add_u32 v6, v5, 4, v6")
    a("s_waitcnt lgkmcnt(0)")
    for m in range(4): vm.op(f"buffer_load_dwordx4 {vr(16+4*m,4)}, v6, {S['x']}, s53 offen offset:{256*m}")
    lds_init_b0(a)
    a("v_lshrrev_b32 v7, 1, v5\nv_lshlrev_b32 v7, 10, v7\nv_and_b32 v8, 1, v5\nv_lshl_add_u32 v7, v8, 9, v7\nv_lshl_add_u32 v7, v4, 4, v7")
    a(f"s_lshr_b32 s53, s56, 3\ns_lshl_b32 s53, s53, 15\ns_and_b32 s54, s56, 7\ns_lshl_b32 s54, s54, 6\ns_add_u32 s53, s53, s54\ns_add_u32 s53, s53, {hex(WS_XN)}")
    flag_off(a, 55, 56, WS_FXN)
    stamp(a, 0, 7)
    vm.wait_all()
    stamp(a, 1, 7)
    vm.op(f"buffer_load_dword v15, v{vZ}, {S['dbg']}, 0 offen sc1")
    F = 32
    for r in range(16): a(f"v_lshlrev_b32 v{F+2*r}, 16, v{16+r}\nv_and_b32 v{F+2*r+1}, 0xffff0000, v{16+r}")
    def red(v, t):
        for r in (4, 8): a(f"v_add_f32_dpp v{v}, v{v}, v{v} row_ror:{r} row_mask:0xf bank_mask:0xf")
        a(f"v_mov_b32 v{t}, v{v}\nv_permlane16_swap_b32 v{v}, v{t}\nv_add_f32 v{v}, v{v}, v{t}")
        a(f"v_mov_b32 v{t}, v{v}\nv_permlane32_swap_b32 v{v}, v{t}\nv_add_f32 v{v}, v{v}, v{t}")
    a(f"v_pk_add_f32 v[64:65], {vr(F,2)}, {vr(F+2,2)}\nv_pk_add_f32 v[66:67], {vr(F+4,2)}, {vr(F+6,2)}")
    for r in range(8, 32, 4): a(f"v_pk_add_f32 v[64:65], v[64:65], {vr(F+r,2)}\nv_pk_add_f32 v[66:67], v[66:67], {vr(F+r+2,2)}")
    a("v_pk_add_f32 v[64:65], v[64:65], v[66:67]\nv_add_f32 v64, v64, v65")
    red(64, 65)
    a(f"v_mul_f32 v64, {hx(-1/512)}, v64")
    for r in range(0, 32, 2): a(f"v_pk_add_f32 {vr(F+r,2)}, {vr(F+r,2)}, v[64:65] op_sel_hi:[1,0]")
    a(f"v_pk_mul_f32 v[66:67], {vr(F,2)}, {vr(F,2)}\nv_pk_mul_f32 v[68:69], {vr(F+2,2)}, {vr(F+2,2)}")
    for r in range(4, 32, 4): a(f"v_pk_fma_f32 v[66:67], {vr(F+r,2)}, {vr(F+r,2)}, v[66:67]\nv_pk_fma_f32 v[68:69], {vr(F+r+2,2)}, {vr(F+r+2,2)}, v[68:69]")
    a("v_pk_add_f32 v[66:67], v[66:67], v[68:69]\nv_add_f32 v66, v66, v67")
    red(66, 67)
    a(f"v_mov_b32 v67, {hx(1e-5)}\nv_fmac_f32 v67, {hx(1/512)}, v66\nv_rsq_f32 v66, v67")
    for r in range(0, 32, 2): a(f"v_pk_mul_f32 {vr(F+r,2)}, {vr(F+r,2)}, v[66:67] op_sel_hi:[1,0]")
    for m in range(4):
        for r in range(4): a(f"v_cvt_pk_bf16_f32 v{16+4*m+r}, v{F+8*m+2*r}, v{F+8*m+2*r+1}")
        vm.op(f"buffer_store_dwordx4 {vr(16+4*m,4)}, v7, {S['ws']}, s53 offen sc1")
        if m < 3: a("s_add_u32 s53, s53, 8192")
    stamp(a, 2, 7)
    if EB(1): a("s_barrier")
    vm.wait_all()
    stamp(a, 3, 7)
    tag_now(a, 15)
    set_flag(a, vm, "s55", vZ, 8)
    stamp(a, 4, 7)
    tag_to_lds_b1(a, not EB(1))

def p0_mod(a):
    vm = Track(a, "vmcnt", 63)
    sCol = 51
    a(f"s_lshl_b32 s{sCol}, s{sX}, 1\ns_lshr_b32 s52, s{sI}, 2\ns_add_u32 s{sCol}, s{sCol}, s52\ns_lshl_b32 s{sCol}, s{sCol}, 6")
    a(f"s_and_b32 s52, s{sI}, 3\ns_lshl_b32 s52, s52, 4\ns_add_u32 s{sCol}, s{sCol}, s52")
    a("s_waitcnt lgkmcnt(0)")
    mod_issue(a, vm, sCol)
    lds_init_b0(a)
    vm.wait("mod")
    stamp(a, 1, 7)
    a(f"buffer_load_dword v15, v{vZ}, {S['dbg']}, 0 offen sc1")
    if EB(4): a("s_barrier")
    mod_partial(a, vm)
    a("s_waitcnt vmcnt(0)")
    tag_now(a, 15)
    mod_join(a, vm, sCol, "La_joined")
    a("La_joined:")
    stamp(a, 4, 7)
    tag_to_lds_b1(a, not EB(4))

def p0_warm(a):
    a(f"s_sub_u32 s52, s{sI}, 24\ns_lshl_b32 s52, s52, 1\ns_add_u32 s52, s52, s{sW}\ns_lshl_b32 s52, s52, 5")
    a(f"v_lshrrev_b32 v4, 1, v{vLANE}\nv_add_u32 v4, s52, v4\nv_mul_u32_u24 v4, 6144, v4\nv_and_b32 v5, 1, v{vLANE}\nv_lshl_add_u32 v4, v5, 7, v4\ns_lshl_b32 s52, s{sX}, 8")
    a(f"s_waitcnt lgkmcnt(0)\ns_cmp_ge_u32 s{sW}, 2\ns_cbranch_scc1 La_nowm")
    a(f"buffer_load_dword v6, v4, {S['wmod']}, s52 offen")
    a("La_nowm:")
    lds_init_b0(a)
    a("s_waitcnt vmcnt(0)")
    stamp(a, 1, 7)
    a(f"buffer_load_dword v15, v{vZ}, {S['dbg']}, 0 offen sc1")
    if EB(2): a("s_barrier")
    a("s_waitcnt vmcnt(0)")
    tag_now(a, 15)
    tag_to_lds_b1(a, not EB(2))

def p0_helper(a):
    vm = Track(a, "vmcnt", 63)
    sH = 67
    a(f"v_mov_b32 v32, 0\nv_mov_b32 v33, 0\nv_mov_b32 v34, 0\nv_mov_b32 v35, 0\ns_lshl_b32 s52, s{sH}, 12\ns_add_u32 s52, s52, {L_DG}\nv_add_u32 v9, s52, v{vL16}")
    for j in range(4): a(f"ds_write_b128 v9, v[32:35] offset:{1024*j}")
    a(f"s_lshl_b32 s52, s2, 2\ns_add_u32 s52, s52, s{sH}\ns_and_b32 s53, s52, 1\ns_lshr_b32 s52, s52, 1\ns_mul_i32 s52, s52, 3072")
    a("s_lshl_b32 s57, s53, 9\ns_add_u32 s57, s57, s52\ns_lshl_b32 s53, s53, 10\ns_add_u32 s52, s52, s53\ns_add_u32 s52, s52, 1024")
    a("s_waitcnt lgkmcnt(0)")
    a(f"s_lshl_b32 s58, s2, 3\ns_add_u32 s58, s58, s{sW}\ns_cmp_lg_u32 s58, {64*8+4}\ns_cbranch_scc1 Le_notag")
    a(f"s_or_b32 s54, s54, 1\nv_mov_b32 v7, s54\ns_mov_b64 exec, 1\nbuffer_store_dword v7, v{vZ}, {S['dbg']}, 0 offen sc1\ns_mov_b64 exec, -1")
    a("Le_notag:")
    s0 = OPT.get("st0", 9)
    for n in range(min(s0, 4) if s0 != 9 else 1): a(stouch("wqkv", 52, n))
    late_srds(a)
    a("s_barrier")
    if s0 == 9: a("s_waitcnt lgkmcnt(0)")
    for n in range(min(s0, 4) if s0 != 9 else 1, 8): a(stouch("wqkv", 52, n))
    for n in range(4): a(stouch("wqkv", 57, n))
    a(f"v_lshrrev_b32 v4, 3, v{vLANE}\nv_mul_u32_u24 v4, 3072, v4\nv_bfe_u32 v5, v{vLANE}, 4, 1\nv_lshlrev_b32 v5, 2, v5\nv_xor_b32 v5, v5, v{vLANE}\nv_and_b32 v5, 7, v5\nv_lshl_add_u32 v4, v5, 4, v4")
    a(f"s_and_b32 s56, s{sC}, 1\ns_add_u32 s56, s56, 1\ns_lshl_b32 s56, s56, 10\ns_lshr_b32 s52, s{sC}, 1\ns_lshl_b32 s52, s52, 7\ns_add_u32 s56, s56, s52")
    a(f"s_and_b32 s55, s{sTB}, 3\ns_lshl_b32 s55, s55, 3\ns_add_u32 s55, s55, s{sH}\ns_lshl_b32 s57, s{sR}, 2\ns_mov_b32 s51, 8")
    stamp(a, 0, 7)
    a("s_barrier")
    stamp(a, 1, 7)
    a("Lh_wl:")
    a(f"s_and_b32 s55, s55, 31\ns_lshl_b32 s53, s55, 11\ns_add_u32 s52, s55, s57\ns_and_b32 s52, s52, 31\ns_mul_i32 s52, s52, {16*3072}\ns_mov_b32 m0, s53\ns_add_u32 s52, s52, s56")
    a(f"buffer_load_dwordx4 v4, {S['wqkv']}, s52 offen lds\ns_add_u32 m0, s53, 1024\ns_add_u32 s52, s52, {8*3072}\nbuffer_load_dwordx4 v4, {S['wqkv']}, s52 offen lds")
    a(f"s_add_u32 s55, s55, 4\ns_sub_u32 s51, s51, 1\ns_cmp_lg_u32 s51, 0\ns_cbranch_scc1 Lh_wl")
    tag_get(a)
    stamp(a, 0); stamp(a, 2, 7)
    a(f"s_cmp_ge_u32 s{sH}, 2\ns_cbranch_scc1 Lh_b2")
    a(f"s_lshl_b32 s52, s{sH}, 11")
    a(f"v_lshrrev_b32 v5, 3, v{vLANE}\ns_lshl_b32 s53, s{sR}, 1\nv_subrev_u32 v5, s53, v5\nv_and_b32 v5, 15, v5\nv_xor_b32 v6, 8, v5")
    gran_poll(a, vm, [f"buffer_load_dwordx4 v[16:19], v{vL16}, {S['ws']}, s52 offen sc1", f"buffer_load_dwordx4 v[20:23], v{vL16}, {S['ws']}, s52 offen offset:1024 sc1"], [16, 20])
    stamp(a, 1)
    a(f"s_cmp_lg_u32 s{sH}, 0\ns_cbranch_scc1 Lh_g1")
    for j, r in enumerate((16, 18, 20, 22)): a(f"v_lshlrev_b32 v{24+2*j}, 16, v{r}\nv_and_b32 v{25+2*j}, 0xffff0000, v{r}")
    a(f"v_and_b32 v7, 1, v{vLANE}\nv_lshlrev_b32 v7, 6, v7\nv_bfe_u32 v9, v{vLANE}, 1, 2\nv_lshl_add_u32 v7, v9, 4, v7\nv_add_u32 v7, {L_SA}, v7")
    a("v_lshl_add_u32 v5, v5, 7, v7\nv_lshl_add_u32 v6, v6, 7, v7")
    a("ds_write_b128 v5, v[24:27]\nds_write_b128 v6, v[28:31]")
    a("s_branch Lh_b2")
    a("Lh_g1:")
    a(f"v_and_b32 v7, 7, v{vLANE}\nv_lshlrev_b32 v7, 6, v7\nv_bfe_u32 v9, v{vLANE}, 2, 1\nv_lshl_add_u32 v7, v9, 9, v7\nv_and_b32 v9, 3, v{vLANE}\nv_lshl_add_u32 v7, v9, 2, v7\nv_add_u32 v7, {L_DG}, v7")
    a("v_lshl_add_u32 v5, v5, 10, v7\nv_lshl_add_u32 v6, v6, 10, v7")
    for j in range(2):
        for e in range(4):
            a(f"ds_write_b16{'_d16_hi' if e & 1 else ''} v{5+j}, v{16+4*j+2*(e>>1)} offset:{16*e + 2*(e & 1)}")
    a("s_branch Lh_b2")

def late_srds(a):
    for nm in ("wo", "w1", "w2", "out"): a(f"s_mov_b32 s{SRD[nm]+2}, {hex(SZ[nm])}\ns_mov_b32 s{SRD[nm]+3}, 0x20000")

def active(a):
    vm = Track(a, "vmcnt", 63); lg = Track(a, "lgkmcnt", 15)
    sT32 = 67
    a("La_p1:")
    ACC = [16, 32, 48]; WF = [64, 72]; DH = [88, 104]; DG = [120, 124]; AF = 128
    a(f"s_lshl_b32 s{sT32}, s{sTB}, 2\ns_add_u32 s{sT32}, s{sT32}, s{sW}")
    a(f"v_lshlrev_b32 v5, 2, v{vLANE}\ns_lshl_b32 s52, s{sT32}, 7\ns_add_u32 s52, s52, {hex(WS_FXN)}")
    tr_addr(a, 10, 12, True, 7, True)
    a("v_xor_b32 v12, 64, v10")
    a(f"v_bfe_u32 v11, v0, 5, 1\nv_lshlrev_b32 v11, 6, v11\nv_add_u32 v11, {L_SA}, v11\nv_add_u32 v13, {L_DG}, v{vL16}")
    a(f"v_and_b32 v14, 2, v0\nv_cmp_eq_u32 vcc, 0, v14\nv_mov_b32 v14, 0xeeeeeeee\nv_mov_b32 v15, 0x44444444\nv_cndmask_b32 v14, v14, v15, vcc")
    for r in range(48): a(f"v_mov_b32 v{16+r}, 0")
    poll(a, vm, "0xff", 5, "s52", 6, OPT.get("fn", 0))
    stamp(a, 1)
    a(f"s_lshl_b32 s52, s{sT32}, 15\ns_add_u32 s52, s52, {hex(WS_XN)}")
    a(f"s_lshr_b32 s54, s{sC}, 1\ns_lshl_b32 s54, s54, 18\ns_lshl_b32 s55, s{sT32}, 10\ns_add_u32 s54, s54, s55")
    a(f"s_bitcmp1_b32 s{sC}, 0\ns_cbranch_scc1 La_vwg")
    def rdS(b):
        L = [(f"ds_read_b128 {vr(DH[b&1]+4*q,4)}, v11 offset:{128*b+16*q}", ("s", b)) for q in range(4)]
        return L + [(f"ds_read_b128 {vr(DG[b&1],4)}, v13 offset:{1024*b}", ("s", b))]
    def rdW(ks):
        return [(f"ds_read_b64_tr_b16 {vr(WF[ks&1]+4*g+2*st,2)}, v{(10, 12)[g]} offset:{2048*ks+1024*st}", ("w", ks)) for g in range(2) for st in range(2)]
    def SMF(b): return f"v_smfmac_f32_32x32x32_bf16 {vr(DH[b&1],16)}, {vr(DG[b&1],4)}, {vr(AF+8*b,8)}, v14"
    def CVT(b): return [f"v_cvt_pk_bf16_f32 v{AF+8*b+r}, v{DH[b&1]+2*r}, v{DH[b&1]+2*r+1}" for r in range(8)]
    for isV in (0, 1):
        if isV: a("La_vwg:")
        vm.reset(); lg.reset()
        XL = rot_loads(a, vm, 52, AF, "xn", 2)
        def xn_issue(n):
            for _ in range(n):
                r = next(XL, None)
                if r: vm.op(*r[1])
        def MM(ks):
            f = AF + 4*ks; w = WF[ks & 1]
            if isV: return [f"v_mfma_f32_32x32x16_bf16 {vr(ACC[1+g],16)}, {vr(f,4)}, {vr(w+4*g,4)}, {vr(ACC[1+g],16)}" for g in range(2)]
            return [f"v_mfma_f32_32x32x16_bf16 {vr(ACC[1+g],16)}, {vr(w+4*g,4)}, {vr(f,4)}, {vr(ACC[1+g],16)}" for g in range(2)]
        xn_issue(OPT.get("xn0", 8))
        a("s_barrier")
        xn_issue(10 - OPT.get("xn0", 8))
        for x in rdS(0) + rdS(1): lg.op(*x)
        lg.wait(("s", 0)); vm.wait(("xn", 0))
        a(SMF(0))
        for x in rdW(0): lg.op(*x)
        xn_issue(2)
        a("s_nop 5")
        for x in CVT(0): a(x)
        stamp(a, 2)
        for b in range(16):
            nx = b + 1 < 16
            if nx:
                lg.wait(("s", b+1)); vm.wait(("xn", b+1))
                a(SMF(b+1))
            for x in rdW(2*b+1): lg.op(*x)
            lg.wait(("w", 2*b))
            M = MM(2*b); Rs = rdS(b+2) if b + 2 < 16 else []
            a(M[0]); [lg.op(*x) for x in Rs]
            a(M[1]); xn_issue(3)
            if b == OPT.get("b2b", 6): a("s_barrier")
            lg.wait(("w", 2*b+1))
            M = MM(2*b+1); C = CVT(b+1) if nx else []; Rw = rdW(2*b+2) if nx else []
            a(M[0]); [lg.op(*x) for x in Rw]; [a(x) for x in C[:3]]
            a(M[1]); [a(x) for x in C[3:]]
            if b < 15: stamp(a, b, 6)
        if not isV:
            a(f"s_add_u32 s54, s54, {hex(WS_K)}")
            a(f"v_and_b32 v5, 0x33, v{vLANE}\nv_bfe_u32 v6, v{vLANE}, 2, 1\nv_lshl_add_u32 v5, v6, 3, v5\nv_bfe_u32 v6, v{vLANE}, 3, 1\nv_lshl_add_u32 v5, v6, 2, v5\nv_lshlrev_b32 v5, 4, v5")
            for h in range(4):
                for r in range(4): a(f"v_cvt_pk_bf16_f32 v{112+4*h+r}, v{ACC[1]+8*h+2*r}, v{ACC[1]+8*h+2*r+1}")
                vm.op(f"buffer_store_dwordx4 {vr(112+4*h,4)}, v5, {S['ws']}, s54 offen sc1")
                if h < 3: a("s_add_u32 s54, s54, 65536")
            a("s_branch La_kvd")
        else:
            a(f"s_add_u32 s54, s54, {hex(WS_V)}")
            a(f"v_and_b32 v6, 15, v{vLANE}\nv_lshlrev_b32 v6, 4, v6\nv_bfe_u32 v7, v{vLANE}, 5, 1\nv_lshl_add_u32 v6, v7, 8, v6\nv_bfe_u32 v7, v{vLANE}, 4, 1\nv_lshl_add_u32 v6, v7, 16, v6")
            for h in range(4):
                for r in range(4): a(f"v_cvt_pk_bf16_f32 v{112+4*h+r}, v{ACC[1]+8*h+2*r}, v{ACC[1]+8*h+2*r+1}")
                vm.op(f"buffer_store_dwordx4 {vr(112+4*h,4)}, v6, {S['ws']}, s54 offen offset:{512*(h&1)} sc1")
                if h == 1: a("s_add_u32 s54, s54, 131072")
    a("La_kvd:")
    stamp(a, 3)
    a(f"s_lshl_b32 s57, s{sW}, 10\ns_add_u32 s57, s57, {L_QX}\nv_add_u32 v7, s57, v{vL16}")
    a(f"s_lshl_b32 s58, s{sC}, 6\ns_add_u32 s58, s58, s{sT32}")
    flag_off(a, 51, 58, WS_FKV)
    tr_addr(a, 10, 12, True, 6, False)
    a(f"v_add_u32 v10, {L_WQ}, v10")
    a("s_barrier")
    WQ = [96, 100, 104, 108]
    early, late = att_setup(); fill = early + late; assert len(early) >= 12*5
    def rdQ(ks): return [(f"ds_read_b64_tr_b16 {vr(WQ[ks&3]+2*st,2)}, v10 offset:{1024*ks+512*st}", ("q", ks)) for st in range(2)]
    lg.reset()
    for x in rdQ(0) + rdQ(1) + rdQ(2): lg.op(*x)
    for ks in range(32):
        if ks + 3 < 32: [lg.op(*x) for x in rdQ(ks+3)]
        lg.wait(("q", ks))
        a(f"v_mfma_f32_32x32x16_bf16 {vr(ACC[0],16)}, {vr(WQ[ks&3],4)}, {vr(AF+4*ks,4)}, {vr(ACC[0],16)}")
        if ks == OPT.get("kvflag", 8): set_flag(a, vm, "s51", vZ, 8)
        else:
            for x in fill[:6]: a(x)
            fill = fill[6:]
    for x in fill: a(x)
    a(f"s_mov_b32 s53, {hx(0.25*LOG2E)}")
    for r in range(16): a(f"v_mul_f32 v{ACC[0]+r}, s53, v{ACC[0]+r}")
    for r in range(8): a(f"v_cvt_pk_bf16_f32 v{96+r}, v{ACC[0]+2*r}, v{ACC[0]+2*r+1}")
    a("ds_write_b128 v7, v[96:99]\nds_write_b128 v7, v[100:103] offset:4096")
    if OPT.get("qj", 1):
        a(f"v_mov_b32 v9, {L_SCR+264}\nv_mov_b32 v10, 1\ns_waitcnt lgkmcnt(0)\ns_mov_b64 exec, 1\nds_add_u32 v9, v10\ns_mov_b64 exec, -1")
        att_first(a, vm, OPT.get("fk", 0))
        q_join(a); att_q(a)
    else:
        a("s_waitcnt lgkmcnt(0)\ns_barrier")
        att_q(a)
        att_first(a, vm, OPT.get("fk", 0))

def active2(a):
    vm = Track(a, "vmcnt", 63); lg = Track(a, "lgkmcnt", 15)
    sT32, AF = 67, 128
    ACC, WF, XR, GA, G2, XF = 16, [96, 100, 104, 108], vXR, 48, 64, 80
    a(f"v_bfe_u32 v9, v{vLANE}, 5, 1")
    for q in range(4):
        for h in range(2): a(f"v_lshlrev_b32 v{XF+4*q+2*h}, 16, v{XR+2*q+h}\nv_and_b32 v{XF+4*q+2*h+1}, 0xffff0000, v{XR+2*q+h}")
    a(f"s_lshl_b32 s57, s{sT32}, 15\ns_lshl_b32 s58, s{sC}, 11\ns_add_u32 s57, s57, s58\ns_add_u32 s58, s57, {hex(WS_Y)}\ns_add_u32 s57, s57, {hex(WS_X1)}")
    a(f"s_lshl_b32 s54, s{sC}, 14\ns_lshl_b32 s55, s{sT32}, 8\ns_add_u32 s54, s54, s55\ns_add_u32 s54, s54, {hex(WS_STATS)}")
    a(f"s_lshl_b32 s55, s{sT32}, 4\ns_add_u32 s55, s55, s{sC}")
    flag_off(a, 56, 55, WS_FX1, LF())
    a(f"s_lshl_b32 s55, s{sT32}, {11-LF()}\ns_add_u32 s55, s55, {hex(WS_FX1)}")
    tr_addr(a, 10, 11, True, 6, False)
    for r in range(16): a(f"v_mov_b32 v{ACC+r}, 0")
    poll_addr(a, 5, LF())
    a(f"s_lshl_b32 s52, s{sT32}, {12-LF()}\ns_add_u32 s52, s52, {hex(WS_FO)}")
    stamp(a, 6, 8)
    set_flag(a, vm, "s64", vZ, 8)
    stamp(a, 7); stamp(a, 7, 8)
    poll(a, vm, "0xffffffff", 5, "s52", 11, OPT.get("fo", 28))
    stamp(a, 8); stamp(a, 0, 2)
    a(f"s_lshl_b32 s52, s{sT32}, 15\ns_add_u32 s52, s52, {hex(WS_O)}")
    OL = rot_loads(a, vm, 52, AF, "o")
    for _ in range(OPT.get("b5b", 12)): vm.op(*next(OL)[1])
    a("s_barrier")
    for _ in range(12 - OPT.get("b5b", 12)): vm.op(*next(OL)[1])
    a(f"v_lshlrev_b32 v6, 2, v{vLANE}\nv_lshlrev_b32 v5, 4, v9\nv_add_u32 v5, {L_GA}, v5")
    def rdWo(ks): return [(f"ds_read_b64_tr_b16 {vr(WF[ks&3]+2*st,2)}, v10 offset:{L_WO+1024*ks+512*st}", ("w", ks)) for st in range(2)]
    lg.reset()
    for x in rdWo(0) + rdWo(1) + rdWo(2): lg.op(*x)
    for ks in range(32):
        if ks + 3 < 32:
            for x in rdWo(ks+3): lg.op(*x)
        if ks == 28:
            lg.wait(("w", 31))
            a("s_barrier")
            for q in range(4): a(f"ds_read_b128 {vr(GA+4*q,4)}, v5 offset:{32*q}")
            for q in range(4): a(f"ds_read_b128 {vr(G2+4*q,4)}, v5 offset:{128+32*q}")
        lg.wait(("w", ks)); vm.wait(("o", ks))
        a(f"v_mfma_f32_32x32x16_bf16 {vr(ACC,16)}, {vr(WF[ks&3],4)}, {vr(AF+4*ks,4)}, {vr(ACC,16)}")
        if ks + 12 < 32: vm.op(*next(OL)[1])
        if ks % 4 == 0 or ks == 31: stamp(a, 1 + (ks+1)//4, 2)
    stamp(a, 10, 2)
    a("s_waitcnt lgkmcnt(4)")
    for r in range(16): a(f"v_fmac_f32 v{XF+r}, v{ACC+r}, v{GA+r}")
    a("s_waitcnt lgkmcnt(0)")
    for r in range(16): a(f"v_mul_f32 v{ACC+r}, v{XF+r}, v{G2+r}")
    for r in range(8): a(f"v_cvt_pk_bf16_f32 v{32+r}, v{ACC+2*r}, v{ACC+2*r+1}")
    vm.op(f"buffer_store_dwordx4 v[32:35], v{vL16}, {S['ws']}, s58 offen sc1"); vm.op(f"buffer_store_dwordx4 v[36:39], v{vL16}, {S['ws']}, s58 offen offset:1024 sc1")
    a(f"v_pk_add_f32 v[48:49], {vr(XF,2)}, {vr(XF+2,2)}\nv_pk_mul_f32 v[50:51], {vr(XF,2)}, {vr(XF,2)}\nv_pk_fma_f32 v[50:51], {vr(XF+2,2)}, {vr(XF+2,2)}, v[50:51]")
    for r in range(4, 16, 2): a(f"v_pk_add_f32 v[48:49], v[48:49], {vr(XF+r,2)}\nv_pk_fma_f32 v[50:51], {vr(XF+r,2)}, {vr(XF+r,2)}, v[50:51]")
    a("v_add_f32 v48, v48, v49\nv_add_f32 v49, v50, v51")
    for r in range(8): a(f"v_cvt_pk_bf16_f32 v{40+r}, v{XF+2*r}, v{XF+2*r+1}")
    a("v_permlane32_swap_b32 v48, v49\nv_add_f32 v48, v48, v49")
    vm.op(f"buffer_store_dword v48, v6, {S['ws']}, s54 offen sc1")
    vm.op(f"buffer_store_dwordx4 v[40:43], v{vL16}, {S['ws']}, s57 offen sc1"); vm.op(f"buffer_store_dwordx4 v[44:47], v{vL16}, {S['ws']}, s57 offen offset:1024 sc1")
    stamp(a, 11, 2)
    ACC, WF, WH, ST = 16, [80, 92, 104], [116, 120], 240
    vF, vH = [10, 11, 12, 13], [4, 7, 14, 15]
    tr_addr(a, 10, 11, True, 6, False)
    a(f"v_add_u32 v10, {L_W1}, v10\nv_add_u32 v11, 0x8000, v10\nv_add_u32 v12, 0x10000, v10\nv_add_u32 v13, 0x18000, v10")
    half_tr_addr(a, 4, 7)
    a(f"v_add_u32 v4, {L_W1}, v4\nv_add_u32 v7, 0x8000, v4\nv_add_u32 v14, 0x10000, v4\nv_add_u32 v15, 0x18000, v4")
    a(f"v_and_b32 v8, 16, v0\nv_cmp_eq_u32 vcc, 0, v8\nv_mov_b32 v8, 0xeeeeeeee\nv_mov_b32 v5, 0x44444444\nv_cndmask_b32 v8, v8, v5, vcc")
    for r in range(64): a(f"v_mov_b32 v{ACC+r}, 0")
    poll_addr(a, 5, LF())
    set_flag(a, vm, "s56", vZ, 9)
    stamp(a, 9); stamp(a, 12, 2)
    poll(a, vm, "0xffff", 5, "s55", 125, OPT.get("fx", 18))
    stamp(a, 10); stamp(a, 0, 3)
    a(f"s_lshl_b32 s52, s{sT32}, 15\ns_add_u32 s52, s52, {hex(WS_Y)}")
    a(f"s_lshl_b32 s54, s{sT32}, 8\ns_add_u32 s54, s54, {hex(WS_STATS)}")
    YL = rot_loads(a, vm, 52, AF, "y")
    for _ in range(4): vm.op(*next(YL)[1])
    for q in range(16):
        vm.op(f"buffer_load_dword v{ST+q}, v6, {S['ws']}, s54 offen sc1", "st"); a("s_add_u32 s54, s54, 16384")
    for _ in range(8): vm.op(*next(YL)[1])
    lg.reset()
    def rdW1(ks): return [(x, ("w", ks)) for x in w1_reads(ks//2, ks & 1, WF[ks % 3], vF)]
    for x in rdW1(0) + rdW1(1): lg.op(*x)
    TT, UB = 128, 184
    side = {}
    side[(6, 0)] = ["v_mov_b32 v125, v124", f"v_bfe_u32 v5, v{vLANE}, 5, 1", "v_lshlrev_b32 v9, 7, v5", "v_permlane32_swap_b32 v124, v125"]
    side[(6, 1)] = [f"v_add_u32 v9, {L_UW}, v9", f"v_mul_f32 v124, {hx(1/512)}, v124", f"v_mul_f32 v125, {hx(1/512)}, v125", "v_fma_f32 v125, -v124, v124, v125"]
    side[(6, 2)] = ["v_max_f32 v125, 0, v125", f"v_add_f32 v125, {hx(1e-5)}, v125", "v_rsq_f32 v125, v125"]
    side[(7, 0)] = [f"v_mul_f32 v5, {hx(-LOG2E)}, v125", "v_mul_f32 v125, v5, v124", "v_sub_f32 v125, 0, v125", "v_mov_b32 v124, v5"]
    side[(7, 1)] = [f"s_lshl_b32 s55, s{sT32}, 4", f"s_add_u32 s55, s55, s{sC}", f"s_lshr_b32 s50, s55, {LF()}", "s_lshl_b32 s50, s50, 7", f"s_and_b32 s56, s55, {(1 << LF()) - 1}"]
    side[(7, 2)] = ["s_lshl_b32 s56, s56, 2", "s_add_u32 s56, s56, s50", f"s_add_u32 s56, s56, {hex(WS_FH)}"]
    side[(12, 0)] = [f"s_mul_i32 s52, s{sT32}, {112*1024}", f"s_mul_i32 s53, s{sC}, 7168", "s_add_u32 s52, s52, s53", f"s_add_u32 s52, s52, {hex(WS_H)}"]
    for m in range(7):
        ks = 16 + 2*m
        rw = lambda j: f"ds_read_b128 {vr(TT+4*j,4)}, v9 offset:{256*(j//4)+64+16*(j%4)}"
        ru = lambda j: f"ds_read_b128 {vr(UB+4*(j&1),4)}, v9 offset:{256*(j//4)+16*(j%4)}"
        fm = lambda j: [f"v_fmac_f32 v{TT+4*j+r}, v125, v{UB+4*(j&1)+r}" for r in range(4)]
        side.setdefault((ks+2, 1), []).extend([f"wait{ks+1}"] + fm(2*m))
        side.setdefault((ks+2, 2), []).extend(fm(2*m+1))
        side.setdefault((ks, 2), []).append(rw(2*m))
        side.setdefault((ks+1, 2), []).extend([ru(2*m), rw(2*m+1), ru(2*m+1)])
    for kp in range(16):
        for e in range(2):
            ks = 2*kp + e
            R = rdW1(ks+2) if ks + 2 < 32 else []
            if e == 0: R = [(x, ("h", kp)) for x in w1_half_reads(kp, WH[kp & 1], vH)] + R
            lg.wait(("w", ks)); vm.wait(("y", ks))
            for nt in range(3):
                a(f"v_mfma_f32_32x32x16_bf16 {vr(ACC+16*nt,16)}, {vr(WF[ks%3]+4*nt,4)}, {vr(AF+4*ks,4)}, {vr(ACC+16*nt,16)}")
                [lg.op(*x) for x in R[3*nt:3*nt+3]]
                if nt >= 1:
                    j = 12 + 2*ks + nt - 1
                    if j < 32: vm.op(*next(YL)[1])
                if ks in (4, 5):
                    for q in (((0, 8), (1, 9), (2, 10)), ((3, 11), (4, 12), (5, 13)), ((6, 14), (7, 15)))[nt] if ks == 4 else (((0, 4), (1, 5), (2, 6), (3, 7)), ((0, 2), (1, 3)), ())[nt]:
                        a(f"v_add_f32 v{ST+q[0]}, v{ST+q[0]}, v{ST+q[1]}")
                    if ks == 5 and nt == 2: a(f"v_add_f32 v124, v{ST}, v{ST+1}")
                for x in side.get((ks, nt), []):
                    if x.startswith("ds_"): lg.op(x, ("u", ks))
                    elif x.startswith("wait"): lg.wait(("u", int(x[4:])))
                    else: a(x)
            if e == 1:
                lg.wait(("h", kp))
                a(f"v_smfmac_f32_32x32x32_bf16 {vr(ACC+48,16)}, {vr(WH[kp&1],4)}, {vr(AF+8*kp,8)}, v8")
                if kp % 2 == 0 or kp == 15: stamp(a, 1 + (kp+1)//2, 3)
                if kp == OPT.get("b6b", 4): a("s_barrier")
    a("s_barrier")
    stamp(a, 11)
    E = 80
    for r in range(8): a(f"v_add_f32 v{ACC+48+r}, v{ACC+48+r}, v{ACC+56+r}")
    for nt in range(4):
        t = TT + 16*nt; acc = ACC + 16*nt; n = 16 if nt < 3 else 8
        for r in range(0, n, 2): a(f"v_pk_fma_f32 {vr(acc+r,2)}, {vr(acc+r,2)}, v[124:125], {vr(t+r,2)} op_sel:[0,0,0] op_sel_hi:[1,0,1]")
        for r in range(n): a(f"v_exp_f32 v{E+r}, v{acc+r}")
        for r in range(0, n, 2): a(f"v_pk_add_f32 {vr(E+r,2)}, {vr(E+r,2)}, 1.0 op_sel_hi:[1,0]")
        for r in range(n): a(f"v_rcp_f32 v{E+r}, v{E+r}")
        for r in range(0, n, 2): a(f"v_pk_mul_f32 {vr(acc+r,2)}, {vr(acc+r,2)}, {vr(E+r,2)}")
        o = 208 + 8*nt
        for r in range(n//2): a(f"v_cvt_pk_bf16_f32 v{o+r}, v{acc+2*r}, v{acc+2*r+1}")
        if nt == 2: a("s_add_u32 s52, s52, 4096")
        vm.op(f"buffer_store_dwordx4 {vr(o,4)}, v{vL16}, {S['ws']}, s52 offen offset:{2048*(nt&1)} sc1")
        if nt < 3: vm.op(f"buffer_store_dwordx4 {vr(o+4,4)}, v{vL16}, {S['ws']}, s52 offen offset:{2048*(nt&1)+1024} sc1")
        stamp(a, 10 + nt, 3)
        if nt == 1: vm.q = [("ha", 0)]*len(vm.q)
        if nt == OPT.get("fa", 2) and OPT.get("h2", 0):
            vm.wait(("ha", 0))
            a(f"v_mov_b32 v9, s{sTAG}\ns_mov_b64 exec, 1")
            vm.op(f"buffer_store_dword v9, v{vZ}, {S['ws']}, s56 offen sc1")
            a(f"s_mov_b64 exec, -1\ns_add_u32 s56, s56, {FH_B}")
    stamp(a, 14, 3)
    ACC, WF, GB, XR, NR = [16, 32], [48, 56, 88], 64, 80, 32
    sTT, sKH, sT5, sF5 = 54, 55, 57, 58
    a(f"s_and_b32 s{sTT}, s{sW}, 1\ns_lshr_b32 s{sKH}, s{sW}, 1")
    a(f"s_lshr_b32 s52, s{sC}, 3\ns_lshl_b32 s52, s52, 1\ns_lshl_b32 s{sT5}, s{sTB}, 2\ns_add_u32 s{sT5}, s{sT5}, s52\ns_add_u32 s{sT5}, s{sT5}, s{sTT}")
    a(f"s_and_b32 s{sF5}, s{sC}, 7\ns_lshl_b32 s{sF5}, s{sF5}, 1\ns_add_u32 s{sF5}, s{sF5}, s{sKH}")
    tr_addr(a, 10, 11, True, 7, True)
    a(f"s_lshl_b32 s52, s{sKH}, 6\nv_xor_b32 v10, s52, v10\ns_lshl_b32 s52, s{sKH}, 13\nv_add_u32 v10, s52, v10\nv_xor_b32 v11, 64, v10")
    for r in range(32): a(f"v_mov_b32 v{16+r}, 0")
    poll_addr(a, 5, LF())
    a(f"s_lshl_b32 s52, s{sT5}, {11-LF()}\ns_lshl_b32 s53, s{sKH}, {10-LF()}\ns_add_u32 s52, s52, s53\ns_add_u32 s52, s52, {hex(WS_FH)}")
    a(f"s_lshl_b32 s61, s{sT5}, 15\ns_lshl_b32 s59, s{sF5}, 11\ns_add_u32 s61, s61, s59\ns_add_u32 s61, s61, {hex(WS_X1)}")
    H2 = OPT.get("h2", 0)
    a(f"s_add_u32 s62, s52, {FH_B}")
    if H2:
        a(f"s_mov_b64 exec, 0xff")
        vm.op(f"buffer_load_dword v6, v5, {S['ws']}, s52 offen sc1", "fa")
        a("s_mov_b64 exec, -1")
        set_flag(a, vm, "s56", vZ, 9)
        stamp(a, 12)
        a(f"s_mov_b64 exec, 0xff\nv_cmp_ne_u32 vcc, s{sTAG}, v6\ns_mov_b64 exec, -1\ns_cbranch_vccz La_haok")
        poll(a, vm, "0xff", 5, "s52", 6, 2)
        a("La_haok:")
        vm.q = [None]
    else:
        set_flag(a, vm, "s56", vZ, 9)
        stamp(a, 12)
        poll(a, vm, "0xff", 5, "s52", 6, OPT.get("fh", 20))
    stamp(a, 13); stamp(a, 0, 4)
    a(f"s_mul_i32 s52, s{sT5}, {112*1024}\ns_mul_i32 s53, s{sKH}, {56*1024}\ns_add_u32 s52, s52, s53\ns_add_u32 s52, s52, {hex(WS_H)}")
    def ldH(ks):
        p, j = h_pj(ks)
        if j in (0, 4): a(f"s_add_u32 s53, s{sR}, {p}\ns_and_b32 s53, s53, 7\ns_mul_i32 s53, s53, 7168\ns_add_u32 s53, s53, s52" + ("\ns_add_u32 s53, s53, 4096" if j else ""))
        vm.op(f"buffer_load_dwordx4 {vr(AF+4*(ks%NR),4)}, v{vL16}, {S['ws']}, s53 offen offset:{1024*(j%4)} sc1", ("h", ks))
    PF = OPT.get('pf5', 12)
    for ks in range(PF):
        ldH(ks)
        if ks == 7: a("s_barrier")
    slot = lambda s: s if s < 9 else s - 9
    def rdW2(ks):
        s, k = ks // 4, ks % 4
        return [(f"ds_read_b64_tr_b16 {vr(WF[ks%3]+4*n+2*st,2)}, v{12+n} offset:{2048*k+1024*st}", ("w", ks)) for n in range(2) for st in range(2)]
    def setslot(s): a(f"v_add_u32 v12, {16384*slot(s)}, v10\nv_add_u32 v13, {16384*slot(s)}, v11")
    lg.reset(); setslot(0)
    for x in rdW2(0) + rdW2(1): lg.op(*x)
    for ks in range(56):
        n = ks + 2
        lg.wait(("w", ks))
        if ks in (11, 19): a("s_barrier")
        if n < 56 and n % 4 == 0:
            if n // 4 in (9, 12): a("s_barrier")
            setslot(n // 4)
        vm.wait(("h", ks))
        a(f"v_mfma_f32_32x32x16_bf16 {vr(ACC[0],16)}, {vr(WF[ks%3],4)}, {vr(AF+4*(ks%NR),4)}, {vr(ACC[0],16)}")
        if n < 56: [lg.op(*x) for x in rdW2(n)]
        a(f"v_mfma_f32_32x32x16_bf16 {vr(ACC[1],16)}, {vr(WF[ks%3]+4,4)}, {vr(AF+4*(ks%NR),4)}, {vr(ACC[1],16)}")
        if H2 and ks == OPT.get("fb", 10):
            a("s_mov_b64 exec, 0xff"); vm.op(f"buffer_load_dword v6, v5, {S['ws']}, s62 offen sc1", "fb"); a("s_mov_b64 exec, -1")
        if H2 and ks + PF == 32:
            vm.wait("fb")
            a(f"s_mov_b64 exec, 0xff\nv_cmp_ne_u32 vcc, s{sTAG}, v6\ns_mov_b64 exec, -1\ns_cbranch_vccz La_hbok")
            q0 = list(vm.q)
            poll(a, vm, "0xff", 5, "s62", 6, 0)
            vm.q = q0
            a("La_hbok:")
        if ks + PF < 56: ldH(ks + PF)
        if ks == 44:
            for q in range(2): vm.op(f"buffer_load_dwordx4 {vr(XR+4*q,4)}, v{vL16}, {S['ws']}, s61 offen offset:{1024*q} sc1", "x1")
        if ks % 4 == 3: stamp(a, 1 + ks//4, 4)
    stamp(a, 14)
    vm.wait("x1")
    a(f"s_xor_b32 s52, s{sW}, 2\ns_lshl_b32 s52, s52, 12\ns_add_u32 s52, s52, {16384*5}\nv_add_u32 v5, s52, v{vL16}")
    a(f"s_lshl_b32 s52, s{sW}, 12\ns_add_u32 s52, s52, {16384*5}\nv_add_u32 v6, s52, v{vL16}")
    a(f"v_bfe_u32 v9, v{vLANE}, 5, 1\nv_lshlrev_b32 v7, 4, v9\ns_lshl_b32 s52, s{sKH}, 7\ns_add_u32 s52, s52, {L_GB}\nv_add_u32 v7, s52, v7")
    for q in range(4): a(f"ds_read_b128 {vr(GB+4*q,4)}, v7 offset:{32*q}")
    XF = 96
    for r in range(8): a(f"v_lshlrev_b32 v{XF+2*r}, 16, v{XR+r}\nv_and_b32 v{XF+2*r+1}, 0xffff0000, v{XR+r}")
    for q in range(4): a(f"ds_write_b128 v5, {vr(ACC[1]+4*q,4)} offset:{1024*q}")
    a("s_waitcnt lgkmcnt(0)\ns_barrier")
    for q in range(4): a(f"ds_read_b128 {vr(ACC[1]+4*q,4)}, v6 offset:{1024*q}")
    a(f"v_and_b32 v7, 31, v{vLANE}\nv_lshlrev_b32 v8, 10, v7\nv_lshl_add_u32 v8, v9, 4, v8")
    a(f"s_lshl_b32 s52, s{sT5}, 15\ns_lshl_b32 s53, s{sF5}, 6\ns_add_u32 s52, s52, s53")
    for q in range(4):
        a(f"s_waitcnt lgkmcnt({3-q})")
        for r in range(4*q, 4*q+4): a(f"v_add_f32 v{ACC[0]+r}, v{ACC[0]+r}, v{ACC[1]+r}")
        for r in range(4*q, 4*q+4): a(f"v_fmac_f32 v{XF+r}, v{ACC[0]+r}, v{GB+r}")
    for r in range(8): a(f"v_cvt_pk_bf16_f32 v{64+r}, v{XF+2*r}, v{XF+2*r+1}")
    for p in range(2):
        a(f"v_permlane32_swap_b32 v{64+4*p}, v{64+4*p+2}\nv_permlane32_swap_b32 v{64+4*p+1}, v{64+4*p+3}")
        vm.op(f"buffer_store_dwordx4 {vr(64+4*p,4)}, v8, {S['out']}, s52 offen offset:{32*p}{['', ' sc1', ' nt', ' sc0 sc1', ' sc1 nt'][OPT.get('osc', 0)]}")

def wq_loop(a):
    a(f"v_lshrrev_b32 v4, 2, v{vLANE}\nv_mul_u32_u24 v4, 3072, v4\nv_and_b32 v5, 3, v{vLANE}\nv_lshl_add_u32 v4, v5, 4, v4")
    a(f"s_lshl_b32 s55, s{sR}, 2\ns_add_u32 s55, s55, s67\ns_lshl_b32 s53, s67, 10\ns_add_u32 s53, s53, {L_WQ}\ns_lshl_b32 s56, s{sC}, 6\ns_mov_b32 s51, 8\nLh_ql:")
    a(f"s_and_b32 s52, s55, 31\ns_mul_i32 s52, s52, {16*3072}\ns_mov_b32 m0, s53\ns_add_u32 s52, s52, s56")
    a(f"buffer_load_dwordx4 v4, {S['wqkv']}, s52 offen lds")
    a(f"s_add_u32 s55, s55, 4\ns_add_u32 s53, s53, 4096\ns_sub_u32 s51, s51, 1\ns_cmp_lg_u32 s51, 0\ns_cbranch_scc1 Lh_ql")

def helper(a):
    vm = Track(a, "vmcnt", 63)
    sH, sCol = 67, 66
    a("Lh_b2:")
    a("s_waitcnt vmcnt(0) lgkmcnt(0)\ns_barrier")
    if OPT.get("st", 7) & 2:
        a(f"s_lshl_b32 s57, s2, 2\ns_add_u32 s57, s57, s{sH}\ns_lshl_b32 s58, s57, 9\ns_mul_i32 s57, s57, {5*128}\ns_add_u32 s57, s57, {9216*128}")
        for n in range(3): a(stouch("w1", 57, n))
    a("s_barrier")
    wq_loop(a)
    if OPT.get("st", 7) & 2:
        for n in range(3, 5): a(stouch("w1", 57, n))
        a(stouch("wo", 58, 0))
    a("s_waitcnt vmcnt(0)")
    if OPT.get("touch", 0) == 1: mall_touch(a)
    stamp(a, 2)
    a("s_barrier")
    if OPT.get("st", 7) & 2:
        for n in range(1, 4): a(stouch("wo", 58, n))
    early, late = att_setup()
    for x in early + late: a(x)
    if OPT.get("hearly", 1):
        att_first(a, vm, OPT.get("fkh", 24))
        if OPT.get("qj", 1): q_join(a)
        else: a("s_barrier")
        att_q(a)
    else:
        a("s_barrier")
        att_q(a)
        att_first(a, vm, OPT.get("fk", 0))

def helper2(a):
    vm = Track(a, "vmcnt", 63); lg = Track(a, "lgkmcnt", 15)
    sH = 67
    stamp(a, 6, 8)
    set_flag(a, vm, "s64", vZ, 8)
    stamp(a, 7); stamp(a, 7, 8)
    vF, vH = 13, 14
    a(f"s_sub_u32 s52, s{sI}, 8\ns_cmp_ge_u32 s52, 16\ns_cbranch_scc1 Lh_nomod2")
    mod_partial(a, vm, vMOD); mod_join(a, vm, 66, "Lh_nomod2")
    a("Lh_nomod2:")
    def w2_touch():
        a(f"s_mul_i32 s52, s{sI}, 7\ns_lshl_b32 s53, s{sH}, 1\ns_add_u32 s52, s52, s53\ns_lshl_b32 s52, s52, 13\nv_lshlrev_b32 v5, 7, v{vLANE}")
        a(f"buffer_load_dword v248, v5, {S['w2']}, s52 offen\ns_add_u32 s52, s52, 8192\nbuffer_load_dword v248, v5, {S['w2']}, s52 offen")
    if OPT.get("w2s") == 1: w2_touch()
    a("s_barrier")
    a(f"v_lshlrev_b32 v4, 5, v{vLANE}\ns_lshl_b32 s52, s{sH}, 11\ns_add_u32 s52, s52, 4096")
    gran_poll(a, vm, [f"buffer_load_dwordx4 v[16:19], v4, {S['ws']}, s52 offen sc1", f"buffer_load_dwordx4 v[20:23], v4, {S['ws']}, s52 offen offset:16 sc1"], [16, 20])
    for j, r in enumerate((16, 18, 20, 22)): a(f"v_lshlrev_b32 v{24+2*j}, 16, v{r}\nv_and_b32 v{25+2*j}, 0xffff0000, v{r}")
    a(f"s_cmp_eq_u32 s{sH}, 1\ns_cbranch_scc1 Lh_tabg")
    a(f"s_cmp_eq_u32 s{sH}, 3\ns_cselect_b32 s53, {hx(-1/LOG2E)}, 1.0")
    a(f"s_lshl_b32 s54, s{sC}, 2\ns_and_b32 s55, s{sC}, 7\ns_lshl_b32 s55, s55, 3\ns_lshl_b32 s56, s{sH}, 6\ns_cmp_eq_u32 s{sH}, 3\ns_cselect_b32 s54, s55, s54\ns_cselect_b32 s55, 8, 4")
    a(f"s_cselect_b32 s56, 256, s56\ns_add_u32 s56, s56, {L_TAB}")
    for r in range(8): a(f"v_mul_f32 v{24+r}, s53, v{24+r}")
    a(f"v_subrev_u32 v5, s54, v{vLANE}\nv_cmp_gt_u32 vcc, s55, v5\nv_lshlrev_b32 v5, 5, v5\nv_add_u32 v5, s56, v5")
    a("s_and_saveexec_b64 s[56:57], vcc\nds_write_b128 v5, v[24:27]\nds_write_b128 v5, v[28:31] offset:16\ns_mov_b64 exec, -1")
    a(f"s_cmp_lg_u32 s{sH}, 2\ns_cbranch_scc1 Lh_tabd")
    a("Lh_tabg:")
    a(f"v_lshrrev_b32 v5, 1, v{vLANE}\ns_lshl_b32 s53, s{sR}, 2\nv_subrev_u32 v5, s53, v5\nv_and_b32 v5, 31, v5\nv_lshlrev_b32 v5, 6, v5\nv_and_b32 v6, 1, v{vLANE}\nv_lshl_add_u32 v5, v6, 3, v5")
    a(f"s_and_b32 s53, s{sH}, 1\ns_lshl_b32 s53, s53, 4\ns_add_u32 s53, s53, {L_G}\nv_add_u32 v5, s53, v5")
    a("v_mov_b32 v17, v18\nv_mov_b32 v21, v22\nds_write_b64 v5, v[16:17]\nds_write_b64 v5, v[20:21] offset:32")
    a("Lh_tabd:")
    if OPT.get("w2s") == 2:
        a("s_waitcnt lgkmcnt(0)"); w2_touch()
    else: a("s_waitcnt vmcnt(0) lgkmcnt(0)")
    stamp(a, 8)
    a("s_barrier")
    vm.reset()
    vW2 = 10
    a(f"v_lshrrev_b32 v{vW2}, 3, v{vLANE}\nv_lshlrev_b32 v{vW2}, 10, v{vW2}\nv_bfe_u32 v5, v{vLANE}, 4, 1\nv_lshlrev_b32 v5, 2, v5\nv_xor_b32 v5, v5, v{vLANE}\nv_and_b32 v5, 7, v5\nv_lshl_add_u32 v{vW2}, v5, 4, v{vW2}")
    a(f"s_lshl_b32 s58, s{sR}, 7\ns_lshl_b32 s59, s{sH}, 11")
    def w2_row(s):
        if s < 8:
            a(f"s_add_u32 s61, s{sR}, {s}\ns_and_b32 s61, s61, 7\ns_mul_i32 s61, s61, 7\ns_add_u32 s61, s61, s{sH}")
        else:
            a(f"s_add_u32 s60, s{sH}, {4*(s-8)}\ns_mul_i32 s61, s60, 43\ns_lshr_b32 s61, s61, 7\ns_mul_i32 s62, s61, 3\ns_sub_u32 s60, s60, s62")
            a(f"s_add_u32 s61, s61, s{sR}\ns_and_b32 s61, s61, 7\ns_mul_i32 s61, s61, 7\ns_add_u32 s61, s61, s60\ns_add_u32 s61, s61, 4")
        a("s_lshl_b32 s61, s61, 14\ns_add_u32 s61, s61, s58")
    def w2_stage(s, thr=None):
        sl = s if s < 9 else s - 9
        w2_row(s)
        for kh in range(2):
            for hf in range(2):
                a(f"s_add_u32 m0, s59, {16384*sl+8192*kh+1024*hf}\ns_add_u32 s52, s61, {56*kh*16384+8192*hf}")
                vm.op(f"buffer_load_dwordx4 v{vW2}, {S['w2']}, s52 offen lds", ("w2", s))
        if thr: vm.wait(("w2", s-1))
    w2_stage(0); w2_stage(1)
    ACC, GF, WF = 16, 32, 48
    a(f"v_bfe_u32 v9, v{vLANE}, 5, 1\nv_lshlrev_b32 v6, 5, v9\nv_and_b32 v5, 1, v{vLANE}\nv_lshl_add_u32 v6, v5, 4, v6\nv_add_u32 v6, {L_G}, v6")
    for r in range(16): a(f"v_mov_b32 v{ACC+r}, 0")
    a(f"s_cmp_eq_u32 s{sH}, 3\ns_cbranch_scc1 Lh_uwh")
    tr_addr(a, 4, 5, True, 6, False)
    a(f"s_lshl_b32 s52, s{sH}, 10\ns_add_u32 s52, s52, {L_W1}\nv_add_u32 v4, s52, v4\ns_mov_b32 s51, 16")
    a("Lh_uwl:")
    for e in range(2):
        a(f"ds_read_b128 {vr(GF+4*e,4)}, v6 offset:{64*e}")
        for st in range(2): a(f"ds_read_b64_tr_b16 {vr(WF+4*e+2*st,2)}, v4 offset:{3072*e+512*st}")
    a("v_add_u32 v4, 7168, v4\nv_add_u32 v6, 128, v6\ns_sub_u32 s51, s51, 1")
    for e in range(2):
        a(f"s_waitcnt lgkmcnt({3-3*e})")
        a(f"v_mfma_f32_32x32x16_bf16 {vr(ACC,16)}, {vr(WF+4*e,4)}, {vr(GF+4*e,4)}, {vr(ACC,16)}")
    a("s_cmp_lg_u32 s51, 0\ns_cbranch_scc1 Lh_uwl")
    a("s_branch Lh_uwd")
    a("Lh_uwh:")
    half_tr_addr(a, 4, 5)
    a(f"v_add_u32 v4, {L_W1+6144}, v4\ns_mov_b32 s51, 16")
    a(f"v_and_b32 v8, 16, v0\nv_cmp_eq_u32 vcc, 0, v8\nv_mov_b32 v8, 0xeeeeeeee\nv_mov_b32 v5, 0x44444444\nv_cndmask_b32 v8, v8, v5, vcc")
    a("Lh_uwhl:")
    for e in range(2): a(f"ds_read_b128 {vr(GF+4*e,4)}, v6 offset:{64*e}")
    for st in range(2): a(f"ds_read_b64_tr_b16 {vr(WF+2*st,2)}, v4 offset:{256*st}")
    a("v_add_u32 v4, 7168, v4\nv_add_u32 v6, 128, v6\ns_sub_u32 s51, s51, 1\ns_waitcnt lgkmcnt(0)")
    a(f"v_smfmac_f32_32x32x32_bf16 {vr(ACC,16)}, {vr(WF,4)}, {vr(GF,8)}, v8")
    a("s_cmp_lg_u32 s51, 0\ns_cbranch_scc1 Lh_uwhl")
    a("s_nop 7\ns_nop 3")
    for r in range(8): a(f"v_add_f32 v{ACC+r}, v{ACC+r}, v{ACC+8+r}")
    a("Lh_uwd:")
    a(f"v_and_b32 v5, 1, v{vLANE}\nv_cmp_eq_u32 vcc, 1, v5\nv_mov_b32 v7, {hx(-LOG2E)}\nv_cndmask_b32 v7, 1.0, v7, vcc")
    a(f"v_lshlrev_b32 v6, 7, v9\nv_lshl_add_u32 v6, v5, 6, v6\ns_lshl_b32 s52, s{sH}, 8\ns_add_u32 s52, s52, {L_UW}\nv_add_u32 v6, s52, v6")
    a("s_nop 3")
    for r in range(16): a(f"v_mul_f32 v{ACC+r}, v{ACC+r}, v7")
    a("s_mov_b32 exec_lo, 3\ns_mov_b32 exec_hi, 3")
    for q in range(4): a(f"ds_write_b128 v6, {vr(ACC+4*q,4)} offset:{16*q}")
    a("s_mov_b64 exec, -1\ns_waitcnt lgkmcnt(0)")
    stamp(a, 9)
    a("s_barrier")
    NREG = OPT.get("nreg", 10); S0 = 14 - NREG; RB = 48
    L5 = OPT.get("late5", 0)
    if L5: S0 = 2
    order = list(range(S0, 9)) + ([] if L5 else list(range(9, 14)))
    for s in order:
        w2_row(s)
        for j in range(4):
            a(f"s_add_u32 s52, s61, {56*(j>>1)*16384+8192*(j&1)}")
            vm.op(f"buffer_load_dwordx4 {vr(RB+16*(s-S0)+4*j,4)}, v{vW2}, {S['w2']}, s52 offen", ("w2r", s))
    a("s_barrier")
    a(f"v_add_u32 v4, s59, v{vL16}\nv_add_u32 v5, 0x10000, v4\nv_add_u32 v6, 0x20000, v4")
    def w2_put(s):
        sl = s if s < 9 else s - 9
        for j in range(4): a(f"ds_write_b128 v{4 + sl//4}, {vr(RB+16*(s-S0)+4*j,4)} offset:{16384*(sl%4)+8192*(j>>1)+1024*(j&1)}")
    for s in range(2, S0): w2_stage(s, True)
    for s in range(S0, 9):
        vm.wait(("w2r", s)); w2_put(s)
        if (s - S0) % 2 == 1: a("s_waitcnt lgkmcnt(4)")
    vm.wait_all()
    a("s_waitcnt lgkmcnt(0)")
    stamp(a, 12)
    a("s_barrier")
    a("s_barrier")
    if L5:
        for s in (9, 10, 11): w2_stage(s)
        a("s_barrier")
        for s in (12, 13): w2_stage(s)
        vm.wait(("w2", 11))
        a("s_barrier")
        vm.wait_all()
        a("s_barrier")
    else:
        for s in (9, 10, 11): w2_put(s)
        a("s_barrier")
        for s in (12, 13): w2_put(s)
        a("s_waitcnt lgkmcnt(8)\ns_barrier")
        a("s_waitcnt lgkmcnt(0)\ns_barrier")
    a("s_barrier")

def diag_out(a, slot):
    if not DIAG: return
    stamp(a, 15)
    a("s_memrealtime s[52:53]\ns_waitcnt vmcnt(0) lgkmcnt(0)")
    a("s_mov_b64 exec, 1")
    for i in range(16):
        a(f"s_sub_u32 s{70+2*i}, s{70+2*i}, s3\nv_mov_b32 v{16+i}, s{70+2*i}")
    a("v_mov_b32 v32, s69\nv_mov_b32 v33, s52" if False else "v_mov_b32 v32, v250\nv_mov_b32 v33, s52")
    a(f"s_lshl_b32 s54, s2, 10\ns_lshl_b32 s55, s{sW}, 7\ns_add_u32 s54, s54, s55\ns_add_u32 s54, s54, {hex(WS_DIAG)}")
    for q in range(4): a(f"buffer_store_dwordx4 {vr(16+4*q,4)}, v{vZ}, {S['ws']}, s54 offen offset:{16*q}")
    a(f"buffer_store_dwordx2 v[32:33], v{vZ}, {S['ws']}, s54 offen offset:64")
    if OPT.get("dbgstart") and slot == 0:
        a(f"s_cmp_ge_u32 s2, 8\ns_cbranch_scc1 Ldiag{slot}\ns_cmp_lg_u32 s{sW}, 0\ns_cbranch_scc1 Ldiag{slot}\ns_lshl_b32 s54, s2, 2\ns_add_u32 s54, s54, 4")
        a(f"v_subrev_u32 v32, s{sTAG}, v250\nv_add_u32 v32, 1000, v32\nbuffer_store_dword v32, v{vZ}, {S['dbg']}, s54 offen")
        a(f"s_getreg_b32 s55, hwreg(HW_REG_XCC_ID)\ns_and_b32 s55, s55, 15\nv_mov_b32 v32, s55\ns_cmp_ge_u32 s2, 7\ns_cbranch_scc1 Ldiag{slot}\nbuffer_store_dword v32, v{vZ}, {S['dbg']}, s54 offen offset:32")
    if OPT.get("dbgout") and slot == 0:
        a(f"s_lshl_b32 s54, s2, 3\ns_add_u32 s54, s54, s{sW}\ns_cmp_lg_u32 s54, {OPT['dbgout']*8}\ns_cbranch_scc1 Ldiag{slot}")
        for i in range(1, 16): a(f"buffer_store_dword v{16+i}, v{vZ}, {S['dbg']}, 0 offen offset:{4*i}")
    a(f"Ldiag{slot}:")

def build():
    a = Asm()
    a("s_cmp_ge_u32 s2, 256\ns_cbranch_scc1 Lend")
    for nm in ("x", "dbg", "wmod", "c", "wqkv", "ws", "wo", "w1", "w2", "out"):
        a(f"s_load_dwordx2 {sr(SRD[nm],2)}, s[0:1], {KA[nm]}")
    if DIAG: a("s_memtime s[70:71]\ns_memrealtime s[72:73]")
    a(f"v_lshrrev_b32 v4, 6, v0\nv_and_b32 v{vLANE}, 63, v0\nv_mov_b32 v{vZ}, 0\nv_readfirstlane_b32 s{sW}, v4\nv_lshlrev_b32 v{vL16}, 4, v{vLANE}")
    a(f"s_getpc_b64 s[56:57]\nLpc:\ns_sub_u32 s56, s56, Lpc-{NAME}_kernel\ns_subb_u32 s57, s57, 0")
    a(f"s_and_b32 s{sX}, s2, 7\ns_lshr_b32 s{sI}, s2, 3\ns_sub_u32 s67, s{sW}, 4")
    a(f"s_cmp_lt_u32 s{sW}, 6\ns_cbranch_scc1 Le_nopf")
    a(f"s_lshl_b32 s58, s{sI}, 1\ns_add_u32 s58, s58, s67\ns_sub_u32 s58, s58, 2\ns_lshl_b32 s58, s58, 10\ns_min_u32 s58, s58, Lcode_end-{NAME}_kernel-1024\nv_add_u32 v5, s58, v{vL16}")
    a("global_load_dwordx4 v[16:19], v5, s[56:57]")
    a("Le_nopf:")
    a(f"s_lshr_b32 s{sTB}, s{sX}, 1\ns_lshl_b32 s{sTB}, s{sTB}, 2\ns_lshr_b32 s52, s{sI}, 3\ns_add_u32 s{sTB}, s{sTB}, s52")
    a(f"s_and_b32 s{sR}, s{sI}, 7\ns_and_b32 s{sC}, s{sX}, 1\ns_lshl_b32 s{sC}, s{sC}, 3\ns_add_u32 s{sC}, s{sC}, s{sR}")
    for nm in ("x", "dbg", "wmod", "c", "wqkv", "ws"): a(f"s_mov_b32 s{SRD[nm]+2}, {hex(SZ[nm])}\ns_mov_b32 s{SRD[nm]+3}, 0x20000")
    a("s_memrealtime s[54:55]")
    if DIAG:
        a("s_waitcnt lgkmcnt(0)\ns_mov_b32 s3, s70\ns_mov_b32 s68, s72\nv_mov_b32 v250, s72")
        if OPT.get("rt"): a("s_mov_b32 s3, s72")
        for i in range(16): a(f"s_mov_b32 s{70+2*i}, s3")
    a(f"s_cmp_ge_u32 s{sW}, 4\ns_cbranch_scc1 Lp0_h\ns_cmp_lt_u32 s{sI}, 8\ns_cbranch_scc1 Lp0_mod\ns_cmp_ge_u32 s{sI}, 24\ns_cbranch_scc1 Lp0_warm")
    p0_ln(a)
    a("Lp0_h:")
    p0_helper(a)
    a("Lp0_mod:")
    p0_mod(a)
    a("Lp0_warm:")
    p0_warm(a)
    active(a)
    a("s_branch Latt")
    helper(a)
    a("Latt:")
    vm = Track(a, "vmcnt", 63)
    slow = attention(a, vm)
    a(f"s_cmp_ge_u32 s{sW}, 4\ns_cbranch_scc1 Lhelper2")
    active2(a)
    if OPT.get("hold"):
        a(f"Lhold:\ns_memrealtime s[52:53]\ns_waitcnt lgkmcnt(0)\ns_sub_u32 s52, s52, s{sTAG}\ns_cmp_lt_u32 s52, {OPT['hold']}\ns_cbranch_scc1 Lhold")
    if DIAG: a("v_mov_b32 v250, s68")
    diag_out(a, 0)
    a("s_endpgm")
    a("Lhelper2:")
    helper2(a)
    diag_out(a, 1)
    a("s_endpgm")
    slow(a)
    a("Lend:")
    return a

def emit(a):
    hdr = open(f"cdna_kernels/{NAME}.s.ref").read().split("\n")
    out = [l for l in hdr if l.startswith(";") and "@launch" not in l and "Override launch" not in l and "grid=ceil" not in l]
    out.append(f"; @launch grid=(256,1,1) block=(512,1,1) lds={LDS_SIZE}")
    a.fix()
    out += ['.amdgcn_target "amdgcn-amd-amdhsa--gfx950"', ".text", f".globl {NAME}_kernel", ".p2align 8", f".type {NAME}_kernel,@function", f"{NAME}_kernel:",
            a.text(), "    s_endpgm", "Lcode_end:", '.section .rodata,"a"', ".p2align 6", f".amdhsa_kernel {NAME}_kernel", "  .amdhsa_next_free_vgpr 256",
            "  .amdhsa_next_free_sgpr 102", "  .amdhsa_accum_offset 256", "  .amdhsa_group_segment_fixed_size 0", "  .amdhsa_kernarg_size 88",
            "  .amdhsa_user_sgpr_count 2", "  .amdhsa_user_sgpr_kernarg_segment_ptr 1", "  .amdhsa_system_sgpr_workgroup_id_x 1",
            "  .amdhsa_float_denorm_mode_32 3", ".end_amdhsa_kernel"]
    return "\n".join(out) + "\n"

if __name__ == "__main__":
    import argparse
    p = argparse.ArgumentParser(); p.add_argument("out"); p.add_argument("--diag", action="store_true"); p.add_argument("--opt", default="")
    args = p.parse_args()
    DIAG = args.diag
    for o in args.opt.split(","):
        if o: OPT[o.split("=")[0]] = int(o.split("=")[1]) if "=" in o else 1
    set_nring(OPT.get('nring', 4))
    open(args.out, "w").write(emit(build()))
```

```python
import sys, struct
from asmlib import *

NAME = "adaLN_cond__softmax_full_mha__dense_activation_silu__prompt"
WS_MODG = 0x0
WS_STATS = 0x10000
WS_FXN, WS_FKV, WS_FO, WS_FX1, WS_FH = 0x50000, 0x52000, 0x80000, 0xC0000, 0xE0000
WS_FXC = 0x58000
sLOC = 66
FH_B = 0x8000
WS_XN, WS_K, WS_V, WS_O, WS_X1, WS_Y, WS_H = 0x200000, 0x400000, 0x600000, 0x800000, 0xA00000, 0xC00000, 0xE00000
WS_DIAG = 0x1600000
WS_SIZE = 0x1700000
KA = dict(x=0, wqkv=8, wo=16, w1=32, w2=40, c=48, wmod=56, out=64, dbg=72, ws=80)
SZ = dict(x=2048*512*2, wqkv=512*1536*2, wo=512*512*2, w1=512*1792*2, w2=1792*512*2, c=1024, wmod=512*3072*2, out=2048*512*2, dbg=256, ws=WS_SIZE)
SRD = dict(x=4, wqkv=8, wo=12, w1=16, w2=20, c=24, wmod=28, out=32, dbg=36, ws=40)
S = {k: sr(v, 4) for k, v in SRD.items()}
sW, sTB, sC, sTAG, sI, sX, sR = 44, 45, 46, 47, 48, 49, 69
SPIN = 20000
def f2u(f): return struct.unpack("<I", struct.pack("<f", f))[0]
def hx(f): return hex(f2u(f))
LOG2E = 1.4426950408889634
DIAG = False
OPT = {}
L_WKV, L_WQ = 0, 64*1024
L_DG = 96*1024
L_SA = 112*1024
L_QX = 144*1024
L_WO = 0
L_W1 = 32*1024
L_RED = 88*1024
L_TAB = 156*1024
L_GA, L_G2, L_GB, L_SCR, L_UW, L_G = L_TAB, L_TAB+128, L_TAB+256, L_TAB+512, L_TAB+1024, L_TAB+2048
LDS_SIZE = 160*1024

def stamp(a, i, grp=0):
    if DIAG and (OPT.get("focus", 0) == grp or i == 15): a(f"{'s_memrealtime' if OPT.get('rt') else 's_memtime'} s[{70+2*i}:{71+2*i}]")

_uid = [0]
def poll(a, vm, mask, vaddr, soff, vt, first=0):
    _uid[0] += 1; n = _uid[0]
    a(f"s_mov_b64 exec, {mask}\ns_mov_b32 s50, {SPIN}")
    if first: a(f"s_sleep {first}")
    a(f"Lpoll{n}:\nbuffer_load_dword v{vt}, v{vaddr}, {S['ws']}, {soff} offen sc1\ns_waitcnt vmcnt(0)\nv_cmp_ne_u32 vcc, s{sTAG}, v{vt}\ns_sub_u32 s50, s50, 1\ns_cbranch_vccz Lpolld{n}")
    if OPT.get("psleep", 0): a(f"s_sleep {OPT.get('psleep', 0)}")
    a(f"s_cmp_lg_u32 s50, 0\ns_cbranch_scc1 Lpoll{n}")
    a(f"Lpolld{n}:\ns_mov_b64 exec, -1")
    vm.reset()

def set_flag_rg(a, vm, soff, vt):
    _uid[0] += 1; n = _uid[0]
    vm.wait_all()
    a(f"v_mov_b32 v{vt}, s{sTAG}\ns_mov_b64 exec, 1\ns_cmp_lg_u32 s{sLOC}, 0\ns_cbranch_scc1 Lfl{n}")
    a(f"buffer_store_dword v{vt}, v{vZ}, {S['ws']}, {soff} offen sc1\ns_mov_b64 exec, -1\ns_sleep {OPT.get('fr', 16)}\ns_branch Lfl{n}d\nLfl{n}:")
    vm.op(f"buffer_store_dword v{vt}, v{vZ}, {S['ws']}, {soff} offen")
    a(f"s_mov_b64 exec, -1\nLfl{n}d:")

def LF(): return OPT.get("lf", 3)
def flag_off(a, d, f, base, lf=3):
    a(f"s_lshr_b32 s50, s{f}, {lf}\ns_lshl_b32 s50, s50, 7\ns_and_b32 s{d}, s{f}, {(1 << lf) - 1}\ns_lshl_b32 s{d}, s{d}, 2\ns_add_u32 s{d}, s{d}, s50\ns_add_u32 s{d}, s{d}, {hex(base)}")

RG = lambda: '' if OPT.get('fast') else ' sc1'
RF = lambda: '' if (OPT.get('fast') or OPT.get('fastf')) else ' sc1'
RO = lambda: '' if (OPT.get('fast') and OPT.get('m216')) else ' sc1'
RL = lambda: '' if OPT.get('plainld') else ' sc1'
def set_flag(a, vm, soff, vz, vt, fl=' sc1'):
    vm.wait_all()
    a(f"v_mov_b32 v{vt}, s{sTAG}\ns_mov_b64 exec, 1")
    vm.op(f"buffer_store_dword v{vt}, v{vz}, {S['ws']}, {soff} offen{fl}")
    a("s_mov_b64 exec, -1")

def rne_bf16(a, d, s):
    a(f"v_cvt_pk_bf16_f32 v{d}, v{s}, v{s}\nv_lshlrev_b32 v{d}, 16, v{d}")

def tr_addr(a, d, t, perm, rowbytes_log2, swz):
    a(f"v_bfe_u32 v{d}, v0, 2, 2\nv_bfe_u32 v{t}, v0, 5, 1")
    a(f"v_lshl_add_u32 v{d}, v{t}, {2 if perm else 3}, v{d}\nv_lshlrev_b32 v{d}, {rowbytes_log2}, v{d}")
    a(f"v_bfe_u32 v{t}, v0, 4, 1\nv_lshl_add_u32 v{d}, v{t}, 5, v{d}")
    a(f"v_and_b32 v{t}, 3, v0\nv_lshl_add_u32 v{d}, v{t}, 3, v{d}")
    if swz: a(f"v_bfe_u32 v{t}, v0, 3, 1\nv_lshl_add_u32 v{d}, v{t}, 6, v{d}")

def half_tr_addr(a, d, t):
    a(f"v_bfe_u32 v{d}, v0, 2, 1")
    a(f"v_bfe_u32 v{t}, v0, 4, 1\nv_lshl_add_u32 v{d}, v{t}, 1, v{d}")
    a(f"v_bfe_u32 v{t}, v0, 3, 1\nv_lshl_add_u32 v{d}, v{t}, 2, v{d}")
    a(f"v_bfe_u32 v{t}, v0, 5, 1\nv_lshl_add_u32 v{d}, v{t}, 4, v{d}")
    a(f"v_lshlrev_b32 v{d}, 5, v{d}\nv_and_b32 v{t}, 3, v0\nv_lshl_add_u32 v{d}, v{t}, 3, v{d}")

vLANE, vL16, vZ = 1, 2, 3
def poll_addr(a, d, lf=3):
    a(f"v_lshrrev_b32 v{d}, {lf}, v{vLANE}\nv_lshlrev_b32 v{d}, 5, v{d}\nv_and_or_b32 v{d}, v{vLANE}, {(1 << lf) - 1}, v{d}\nv_lshlrev_b32 v{d}, 2, v{d}")

def mod_issue(a, vm, sCol, B=16, T=4):
    a(f"v_bfe_u32 v{T}, v0, 1, 7\nv_and_b32 v{T+1}, 1, v0")
    a(f"v_mul_u32_u24 v{T+2}, 6144, v{T}\nv_lshl_add_u32 v{T+2}, v{T+1}, 4, v{T+2}\nv_lshlrev_b32 v{T+3}, 1, v{T}")
    a(f"s_lshl_b32 s52, s{sCol}, 1")
    for m in range(4):
        vm.op(f"buffer_load_dwordx4 {vr(B+4*m,4)}, v{T+2}, {S['wmod']}, s52 offen", "mod")
        if m < 3: a(f"s_add_u32 s52, s52, {128*6144}")
    for m in range(4): vm.op(f"buffer_load_ushort v{B+16+m}, v{T+3}, {S['c']}, 0 offen offset:{256*m}", "mod")

def mod_partial(a, vm, B=16):
    vm.wait("mod")
    C, F, T, A = B+16, B+24, B+20, B+32
    for m in range(4): a(f"v_lshlrev_b32 v{C+m}, 16, v{C+m}")
    for m in range(4): a(f"v_mul_f32 v{T+m}, {hx(-LOG2E)}, v{C+m}")
    for m in range(4): a(f"v_exp_f32 v{T+m}, v{T+m}")
    for m in range(4): a(f"v_add_f32 v{T+m}, 1.0, v{T+m}")
    for m in range(4): a(f"v_rcp_f32 v{T+m}, v{T+m}")
    for m in range(4): a(f"v_mul_f32 v{C+m}, v{C+m}, v{T+m}")
    for m in range(4): a(f"v_cvt_pk_bf16_f32 v{C+m}, v{C+m}, v{C+m}")
    for m in range(4): a(f"v_lshlrev_b32 v{C+m}, 16, v{C+m}")
    for m in range(4):
        for r in range(4):
            a(f"v_lshlrev_b32 v{F+2*r}, 16, v{B+4*m+r}\nv_and_b32 v{F+2*r+1}, 0xffff0000, v{B+4*m+r}")
        for j in range(8):
            a(f"v_mul_f32 v{A+j}, v{F+j}, v{C}" if m == 0 else f"v_fmac_f32 v{A+j}, v{F+j}, v{C+m}")
    for j in range(4): a(f"v_permlane32_swap_b32 v{A+j}, v{A+4+j}")
    for j in range(4): a(f"v_add_f32 v{A+j}, v{A+j}, v{A+4+j}")
    for j in range(2): a(f"v_permlane16_swap_b32 v{A+j}, v{A+2+j}")
    for j in range(2): a(f"v_add_f32 v{A+j}, v{A+j}, v{A+2+j}")
    for r in (8, 4, 2):
        for j in range(2): a(f"v_add_f32_dpp v{A+j}, v{A+j}, v{A+j} row_ror:{r} row_mask:0xf bank_mask:0xf")
    a("v_bfe_u32 v8, v0, 6, 2\nv_lshlrev_b32 v8, 6, v8\nv_and_b32 v9, 1, v0\nv_lshl_add_u32 v8, v9, 5, v8")
    a("v_bfe_u32 v9, v0, 4, 1\nv_lshl_add_u32 v8, v9, 3, v8\nv_bfe_u32 v9, v0, 5, 1\nv_lshl_add_u32 v8, v9, 4, v8")
    a(f"v_add_u32 v8, {L_SCR}, v8")
    a("s_mov_b32 exec_lo, 0x00030003\ns_mov_b32 exec_hi, 0x00030003")
    a(f"ds_write_b64 v8, v[{A}:{A+1}]")
    a("s_mov_b64 exec, -1")

def mod_final(a, vm, sCol):
    a("s_mov_b64 exec, 0xff")
    a(f"v_lshlrev_b32 v8, 3, v{vLANE}\nv_add_u32 v9, {L_SCR}, v8")
    for w in range(4): a(f"ds_read_b64 {vr(240+2*w,2)}, v9 offset:{64*w}")
    a(f"s_lshr_b32 s52, s{sCol}, 9\ns_cmp_eq_u32 s52, 1\ns_cselect_b32 s53, 1.0, 0\ns_cmp_eq_u32 s52, 4\ns_cselect_b32 s53, 1.0, s53")
    a(f"s_lshl_b32 s52, s{sCol}, 2")
    a("s_waitcnt lgkmcnt(0)")
    for j in range(2): a(f"v_add_f32 v{240+j}, v{240+j}, v{242+j}\nv_add_f32 v{244+j}, v{244+j}, v{246+j}")
    for j in range(2): a(f"v_add_f32 v{240+j}, v{240+j}, v{244+j}")
    a("v_cvt_pk_bf16_f32 v242, v240, v241\nv_lshlrev_b32 v240, 16, v242\nv_and_b32 v241, 0xffff0000, v242")
    a("v_add_f32 v240, s53, v240\nv_add_f32 v241, s53, v241")
    a(f"v_cvt_pk_bf16_f32 v240, v240, v241\nv_mov_b32 v241, s{sTAG}")
    vm.op(f"buffer_store_dwordx2 v[240:241], v8, {S['ws']}, s52 offen sc1")
    a("s_mov_b64 exec, -1")

def gran_poll(a, vm, loads, regs):
    _uid[0] += 1; n = _uid[0]
    a(f"s_mov_b32 s50, {SPIN}\nLgp{n}:")
    for t in loads: a(t)
    a("s_waitcnt vmcnt(0)")
    first = True
    for r in regs:
        for o in (1, 3):
            if first: a(f"v_xor_b32 v15, s{sTAG}, v{r+o}"); first = False
            else: a(f"v_xor_b32 v14, s{sTAG}, v{r+o}\nv_or_b32 v15, v15, v14")
    a("v_cmp_ne_u32 vcc, 0, v15\ns_sub_u32 s50, s50, 1")
    a(f"s_cbranch_vccz Lgpd{n}\ns_sleep {OPT.get('gsleep', 1)}\ns_cmp_lg_u32 s50, 0\ns_cbranch_scc1 Lgp{n}\nLgpd{n}:")
    vm.reset()

def tag_get(a):
    _uid[0] += 1; n = _uid[0]
    a(f"v_mov_b32 v8, {L_SCR+260}\ns_mov_b32 s50, {SPIN*20}\nLtg{n}:\nds_read_b32 v9, v8\ns_sub_u32 s50, s50, 1\ns_waitcnt lgkmcnt(0)\nv_readfirstlane_b32 s{sTAG}, v9")
    a(f"s_cmp_lg_u32 s{sTAG}, 0\ns_cbranch_scc1 Ltgd{n}\ns_cmp_lg_u32 s50, 0\ns_cbranch_scc1 Ltg{n}\nLtgd{n}:")

def tag_now(a, v):
    _uid[0] += 1; n = _uid[0]
    a(f"s_mov_b32 s50, {SPIN}\nLtn{n}:\nv_readfirstlane_b32 s{sTAG}, v{v}\ns_sub_u32 s50, s50, 1")
    a(f"s_cmp_lg_u32 s{sTAG}, 0\ns_cbranch_scc1 Ltnd{n}\ns_cmp_eq_u32 s50, 0\ns_cbranch_scc1 Ltnd{n}")
    a(f"buffer_load_dword v{v}, v{vZ}, {S['dbg']}, 0 offen sc1\ns_waitcnt vmcnt(0)\ns_branch Ltn{n}\nLtnd{n}:")

def read_tag(a):
    a(f"v_mov_b32 v8, {L_SCR+260}\nds_read_b32 v9, v8\ns_waitcnt lgkmcnt(0)\nv_readfirstlane_b32 s{sTAG}, v9")

def mall_touch(a):
    _uid[0] += 1; n = _uid[0]
    a(f"v_lshlrev_b32 v5, 7, v{vLANE}\ns_cmp_eq_u32 s{sW}, 6\ns_cbranch_scc1 Lt6_{n}\ns_cmp_eq_u32 s{sW}, 7\ns_cbranch_scc1 Lt7_{n}")
    a(f"s_mul_i32 s52, s2, {56*128}\ns_cmp_eq_u32 s{sW}, 5\ns_cbranch_scc1 Lt5_{n}")
    a(f"buffer_load_dword v248, v5, {S['w1']}, s52 offen\ns_branch Ltd_{n}")
    a(f"Lt5_{n}:\nbuffer_load_dword v248, v5, {S['w2']}, s52 offen\ns_branch Ltd_{n}")
    a(f"Lt6_{n}:\nv_lshrrev_b32 v6, 5, v{vLANE}\nv_mul_u32_u24 v6, {6144-4096}, v6\nv_add_u32 v5, v5, v6\ns_mul_i32 s52, s2, 12288\ns_add_u32 s52, s52, 2048")
    a(f"buffer_load_dword v248, v5, {S['wmod']}, s52 offen\ns_branch Ltd_{n}")
    a(f"Lt7_{n}:\ns_lshl_b32 s52, s2, 11\ns_mov_b64 exec, 0xffff\nbuffer_load_dword v248, v5, {S['wo']}, s52 offen\ns_mov_b64 exec, -1")
    a(f"Ltd_{n}:")

def stouch(nm, soff, line):
    return f"s_buffer_load_dwordx2 s[0:1], {S[nm]}, s{soff} offset:{128*line+60}"

def mod_join(a, vm, sCol, name, pre=None):
    a(f"v_mov_b32 v8, {L_SCR+256}\nv_mov_b32 v9, 1\ns_waitcnt lgkmcnt(0)\ns_mov_b64 exec, 1\nds_add_rtn_u32 v9, v8, v9\ns_mov_b64 exec, -1\ns_waitcnt lgkmcnt(0)")
    a(f"v_readfirstlane_b32 s52, v9\ns_cmp_lg_u32 s52, 3\ns_cbranch_scc1 {name}")
    if pre: pre()
    mod_final(a, vm, sCol)

NRING = 4
def set_nring(n):
    global NRING
    NRING = n
vSTASH, vMOD, vXR = 180, 208, 208
QF, OA, SB, RING = 16, 32, [96, 112], 128
vV, vWO, vW1, vW1H = 4, 12, 13, 14
sHH, sKQ, sK, sV = 54, 55, 56, 57
def att_setup():
    a = Asm()
    a(f"s_and_b32 s{sHH}, s{sW}, 1\ns_lshr_b32 s{sKQ}, s{sW}, 1")
    a(f"v_and_b32 v{vV}, 15, v{vLANE}\nv_lshlrev_b32 v{vV}, 4, v{vV}\nv_bfe_u32 v5, v{vLANE}, 5, 1\nv_lshl_add_u32 v{vV}, v5, 8, v{vV}")
    a(f"s_lshl_b32 s58, s{sC}, 1\ns_add_u32 s58, s58, s{sHH}")
    a(f"s_lshl_b32 s59, s58, 16")
    a(f"s_lshl_b32 s52, s{sKQ}, 14\ns_add_u32 s52, s52, s59\ns_add_u32 s{sK}, s52, {hex(WS_K)}\ns_add_u32 s{sV}, s52, {hex(WS_V)}")
    a("s_mov_b32 s60, 0x0000ffff\ns_mov_b32 s61, 0x0000ffff")
    a(f"s_lshl_b32 s52, s{sKQ}, 8\ns_lshr_b32 s53, s{sC}, 1\ns_lshl_b32 s53, s53, 11\ns_add_u32 s52, s52, s53\ns_add_u32 s62, s52, {hex(WS_FKV)}")
    a(f"s_and_b32 s65, s{sTB}, {1 if OPT.get('m216', 0) else 3}\ns_lshl_b32 s65, s65, {13 if OPT.get('m216', 0) else 12}")
    a(f"v_lshrrev_b32 v6, 2, v{vLANE}\nv_and_b32 v11, 3, v{vLANE}\nv_lshlrev_b32 v{vWO}, 10, v6\nv_lshl_add_u32 v{vWO}, v11, 4, v{vWO}")
    w1_voffs(a, vW1, vW1H, 6, 11, 15)
    a(f"v_and_b32 v5, 7, v{vLANE}\nv_lshlrev_b32 v5, 2, v5\nv_bfe_u32 v6, v{vLANE}, 3, 1\nv_lshl_add_u32 v5, v6, 7, v5\nv_bfe_u32 v6, v{vLANE}, 4, 1\nv_lshl_add_u32 v5, v6, 10, v5")
    a(f"v_and_b32 v6, 0x1b, v{vLANE}\nv_cmp_eq_u32 vcc, 16, v6\nv_mov_b32 v15, 0x3f803f80\ns_nop 0\nv_cndmask_b32 v15, 0, v15, vcc")
    for r in range(64): a(f"v_mov_b32 v{OA+r}, 0")
    early = [I.text for I in a.L]
    late = [f"v_mov_b32 v{RING+12*sl+4+r}, v15" for sl in range(NRING) for r in range(8)] + [f"v_mov_b32 v{RING+12*NRING}, 0xdddddddd"]
    return early, late

CNT = dict(b5b=3, b6b=4, b7=5, b9=6, b10=7, b11=8, b12=9, uw=10, b5c=11)
ONEWAY = lambda: OPT.get("ow", 1)
def sig(a, name, va, vb, lg=None):
    if not ONEWAY(): a("s_barrier"); return
    a("s_mov_b64 exec, 1")
    t = f"ds_add_u32 v{va}, v{vb} offset:{4*CNT[name]}"
    lg.op(t, "sig") if lg else a(t)
    a("s_mov_b64 exec, -1")
def sig_regs(a, va, vb): a(f"v_mov_b32 v{va}, {L_SCR+256}\nv_mov_b32 v{vb}, 1")
def await_(a, name, va, vt, have=False):
    if not ONEWAY(): a("s_barrier"); return
    _uid[0] += 1; n = _uid[0]
    if have: a(f"v_readfirstlane_b32 s50, v{vt}\ns_cmp_eq_u32 s50, 4\ns_cbranch_scc1 Law{n}d")
    a(f"s_mov_b32 s63, {SPIN*20}\nLaw{n}:\nds_read_b32 v{vt}, v{va} offset:{4*CNT[name]}\ns_sub_u32 s63, s63, 1\ns_waitcnt lgkmcnt(0)\nv_readfirstlane_b32 s50, v{vt}")
    a(f"s_cmp_eq_u32 s50, 4\ns_cbranch_scc1 Law{n}d\ns_sleep 1\ns_cmp_lg_u32 s63, 0\ns_cbranch_scc1 Law{n}\nLaw{n}d:")

def q_join(a):
    _uid[0] += 1; n = _uid[0]
    a(f"v_mov_b32 v9, {L_SCR+264}\ns_mov_b32 s50, {SPIN*20}\nLqj{n}:\nds_read_b32 v10, v9\ns_sub_u32 s50, s50, 1\ns_waitcnt lgkmcnt(0)\nv_readfirstlane_b32 s52, v10")
    a(f"s_cmp_eq_u32 s52, 4\ns_cbranch_scc1 Lqjd{n}\ns_cmp_lg_u32 s50, 0\ns_cbranch_scc1 Lqj{n}\nLqjd{n}:")

def att_q(a):
    for i in range(4):
        a(f"s_add_u32 s52, s{sKQ}, {i}\ns_and_b32 s52, s52, 3\ns_lshl_b32 s53, s{sHH}, 2\ns_add_u32 s52, s52, s53\ns_lshl_b32 s52, s52, 10\ns_add_u32 s52, s52, {L_QX}")
        a(f"v_add_u32 v9, s52, v{vL16}\nds_read_b128 {vr(QF+4*i,4)}, v9")

KVF = lambda: [' sc1', '', ' sc1 nt'][OPT.get('kvf', 0)]
def att_ld(a, vm, kt):
    sl = kt % NRING
    if kt % 4 == 0: a(f"s_add_u32 s63, s{sK}, s62\ns_add_u32 s64, s{sV}, s62\ns_add_u32 s62, s62, 4096\ns_and_b32 s62, s62, 0x3fff")
    o = 1024*(kt % 4)
    vm.op(f"buffer_load_dwordx4 {vr(RING+12*sl,4)}, v{vL16}, {S['ws']}, s63 offen offset:{o}{KVF()}", ("kv", kt))
    a("s_mov_b64 exec, s[60:61]")
    vm.op(f"buffer_load_dwordx4 {vr(RING+12*sl+4,4)}, v{vV}, {S['ws']}, s64 offen offset:{o}{KVF()}", ("kv", kt))
    vm.op(f"buffer_load_dwordx4 {vr(RING+12*sl+8,4)}, v{vV}, {S['ws']}, s64 offen offset:{o+512}{KVF()}", ("kv", kt))
    a("s_mov_b64 exec, -1")

def att_first(a, vm, first):
    stamp(a, 4)
    poll(a, vm, "0xffffffff", 5, "s62", 6, first)
    stamp(a, 5)
    a("s_mov_b32 s62, s65")
    for kt in range(NRING-1): att_ld(a, vm, kt)

def attention(a, vm):
    IDX = RING + 12*NRING
    assert IDX < vSTASH
    CP = lambda d: f"s_and_b32 s{d}, s{sI}, 15" if OPT.get('mix', 1) else f"s_mov_b32 s{d}, s{sC}"
    TP = lambda d: f"s_lshl_b32 s{d}, s{sX}, 1\ns_lshr_b32 s50, s{sI}, 4\ns_add_u32 s{d}, s{d}, s50" if OPT.get('mix', 1) else f"s_mov_b32 s{d}, s{sTB}"
    def kp_addr(d):
        return [f"s_lshl_b32 s65, s{sR}, 1", f"s_add_u32 s65, s65, s{sW}", f"s_add_u32 s65, s65, {d}", "s_and_b32 s65, s65, 15", f"s_mul_i32 s65, s65, {32*3584}",
                CP(52), "s_mul_i32 s52, s52, 224", "s_add_u32 s65, s65, s52", f"s_mul_i32 s66, s{sW}, 7168", f"s_add_u32 s66, s66, {L_W1+7168*d}"]
    wo = [[f"s_add_u32 m0, s66, {L_WO+1024*j}", f"s_add_u32 s52, s65, {16384*j}", f"buffer_load_dwordx4 v{vWO}, {S['wo']}, s52 offen lds"] for j in range(4)]
    wo[0] = [f"s_add_u32 s65, s{sW}, s{sR}", "s_and_b32 s65, s65, 7", "s_lshl_b32 s65, s65, 16", CP(52), "s_lshl_b32 s52, s52, 6", "s_add_u32 s65, s65, s52", f"s_lshl_b32 s66, s{sW}, 12"] + wo[0]
    k1 = w1_kp_dma(65, 66, vW1, vW1H); k1[0] = kp_addr(0) + k1[0]
    k2 = []
    for j, p in enumerate(w1_kp_dma(65, 66, vW1, vW1H)):
        k2.append([p[1], p[2].replace("buffer_load_dwordx4 ", f"buffer_load_dwordx4 {vr(vSTASH+4*j,4)}, ").replace(" lds", "")])
    k2[0] = kp_addr(8)[:8] + k2[0]
    p0 = OPT.get("pre0", 5)
    pre = {4*p0+1: wo[:2], 4*p0+5: wo[2:], 4*p0+9: k1[:3], 4*p0+13: k1[3:], 4*p0+17: k2[:3], 4*p0+21: k2[3:]}
    ld = lambda kt: att_ld(a, vm, kt)
    for kt in range(NRING-1): vm.q += [('kv', kt)]*3
    def QK(dst, sl, q): return f"v_mfma_f32_32x32x16_bf16 {vr(dst,16)}, {vr(RING+12*sl,4)}, {vr(QF+4*q,4)}, 0"
    def SM(q, sl, half, s): return f"v_smfmac_f32_32x32x32_bf16 {vr(OA+16*q,16)}, {vr(RING+12*sl+4+4*half,4)}, {vr(s+8*half,8)}, v{IDX}"
    a("s_setprio 1")
    a(f"s_and_b32 s53, s{sW}, 3\ns_lshl_b32 s52, s2, 2\ns_add_u32 s53, s53, s52\ns_mul_i32 s53, s53, {9*128}")
    ST = [stouch("w1", 53, n) for n in range(9)] + [stouch("wmod", 53, n) for n in range(16)] + [stouch("w2", 53, n) for n in range(14)]
    a("s_waitcnt lgkmcnt(0)")
    vm.wait(("kv", 0))
    a(QK(SB[0], 0, 0))
    a("s_nop 7\ns_nop 3")
    TAIL = OPT.get("tail", 0)
    qof = lambda t: (t + 1) % 4 if (TAIL and t >= 60) else t % 4
    def red_write(i):
        return [f"s_add_u32 s52, s{sKQ}, {i}\ns_and_b32 s52, s52, 3\ns_mul_i32 s52, s52, 3\ns_add_u32 s52, s52, s63\ns_add_u32 s52, s52, {i-1}\ns_mul_i32 s52, s52, 2304\ns_add_u32 s52, s52, {L_RED}",
                f"v_add_u32 v6, s52, v{vL16}\nv_add_u32 v7, s52, v15",
                f"ds_write_b128 v6, {vr(OA+16*i,4)}", f"ds_write_b128 v6, {vr(OA+16*i+4,4)} offset:1024", f"ds_write_b32 v7, v{OA+16*i+8} offset:2048"]
    for t in range(64):
        kt, q = t // 4, t % 4
        cur, prv = SB[t & 1], SB[(t + 1) & 1]
        E = [f"v_exp_f32 v{cur+r}, v{cur+r}" for r in range(16)]
        if t == OPT.get("prio", 53):
            a(f"s_cmp_ge_u32 s{sW}, 4\ns_cbranch_scc1 Latt_prio\ns_setprio 0\nLatt_prio:")
        a(E[0]); a(E[1])
        if t > 0: a(SM(qof(t-1), ((t-1)//4) % NRING, 1, prv))
        if t == 59: a(f"s_mul_i32 s63, s{sHH}, 12\nv_lshlrev_b32 v15, 2, v{vLANE}")
        if q == 0 and kt + NRING - 1 < 16: ld(kt + NRING - 1)
        if t in pre and not OPT.get("nopre"):
            for p in pre[t]:
                for x in p[:-1]: a(x)
                vm.op(p[-1], "pre")
        if t == OPT.get("cpf", 99):
            a(f"s_cmp_lg_u32 s{sW}, 7\ns_cbranch_scc1 Latt_nocp\ns_getpc_b64 s[50:51]\nLpc2:\ns_and_b32 s52, s{sI}, 3\ns_lshl_b32 s52, s52, 13\nv_lshlrev_b32 v5, 7, v{vLANE}\nv_add_u32 v5, s52, v5")
            a("v_min_u32 v5, Lcode_end-Lpc2-4, v5\nglobal_load_dword v249, v5, s[50:51]\nLatt_nocp:")
        if t == 5:
            a(f"s_cmp_lg_u32 s{sW}, 0\ns_cbranch_scc1 Latt_noxc"); a(TP(52)); a(f"s_lshl_b32 s52, s52, 5"); a(CP(50))
            a(f"s_add_u32 s52, s52, s50\ns_lshl_b32 s52, s52, 2\ns_add_u32 s52, s52, {hex(WS_FXC)}\ns_getreg_b32 s50, hwreg(HW_REG_XCC_ID)\ns_and_b32 s50, s50, 15\ns_lshl_b32 s50, s50, 1\ns_add_u32 s50, s50, s{sTAG}")
            if OPT.get("xcfake"): a(f"s_and_b32 s51, s2, {OPT['xcfake']}\ns_add_u32 s50, s50, s51")
            a(f"v_mov_b32 v5, s50\ns_mov_b64 exec, 1\nbuffer_store_dword v5, v{vZ}, {S['ws']}, s52 offen sc1\ns_mov_b64 exec, -1\nLatt_noxc:")
        if t == 57:
            a(f"s_cmp_ge_u32 s{sW}, 4\ns_cbranch_scc1 Latt_nox")
            a(f"v_bfe_u32 v5, v{vLANE}, 5, 1\nv_and_b32 v6, 31, v{vLANE}\nv_lshlrev_b32 v6, 10, v6\nv_lshl_add_u32 v6, v5, 3, v6")
            a(TP(52)); a(f"s_lshl_b32 s52, s52, 2\ns_add_u32 s67, s52, s{sW}\ns_lshl_b32 s52, s67, 15"); a(CP(50)); a("s_lshl_b32 s50, s50, 6\ns_add_u32 s52, s52, s50")
            for qq in range(4): a(f"buffer_load_dwordx2 {vr(vXR+2*qq,2)}, v6, {S['x']}, s52 offen offset:{16*qq}")
            a(f"s_lshr_b32 s52, s67, 2\ns_lshl_b32 s52, s52, 7\ns_add_u32 s52, s52, {hex(WS_FXC)}\nv_and_b32 v5, 15, v{vLANE}\nv_lshlrev_b32 v5, 2, v5")
            a(f"buffer_load_dword v{vXR+8}, v5, {S['ws']}, s52 offen sc1")
            a("Latt_nox:")
        if t == 50:
            a(f"s_cmp_lt_u32 s{sW}, 4\ns_cbranch_scc1 Latt_nomod\ns_sub_u32 s52, s{sI}, 8\ns_cmp_ge_u32 s52, 16\ns_cbranch_scc1 Latt_nomod")
            a(f"s_lshl_b32 s66, s{sX}, 2\ns_lshr_b32 s52, s52, 2\ns_add_u32 s66, s66, s52\ns_lshl_b32 s66, s66, 6")
            a(f"s_and_b32 s52, s{sI}, 3\ns_lshl_b32 s52, s52, 4\ns_add_u32 s66, s66, s52\ns_add_u32 s66, s66, 1024")
            mod_issue(a, Track(a, "vmcnt", 63), 66, vMOD, T=244)
            a("Latt_nomod:")
        if t == OPT.get("w2t", 62) and not OPT.get("nopre"):
            a(f"s_cmp_eq_u32 s{sW}, 7\ns_cbranch_scc1 Latt_nopf\ns_mul_i32 s52, s{sI}, 7\ns_add_u32 s52, s52, s{sW}\ns_lshl_b32 s52, s52, 13\nv_lshlrev_b32 v5, 7, v{vLANE}")
            a(f"buffer_load_dword v248, v5, {S['w2']}, s52 offen")
            a("Latt_nopf:")
        if OPT.get("st", 7) & 4 and t % 3 != 2 and t - t//3 < 39:
            j = t - t//3
            if j == 9: a(f"s_lshl_b32 s53, s2, 1\ns_bfe_u32 s52, s{sW}, 0x10001\ns_add_u32 s53, s53, s52\ns_mul_i32 s53, s53, 6144\ns_lshl_b32 s52, s{sHH}, 11\ns_add_u32 s53, s53, s52\ns_add_u32 s53, s53, 2048")
            if j == 25: a(f"s_and_b32 s53, s{sW}, 3\ns_lshl_b32 s52, s2, 2\ns_add_u32 s53, s53, s52\ns_mul_i32 s53, s53, {14*128}")
            a(ST[j])
        sh = OPT.get("vb", 1)
        for r in range(2, 4+sh): a(E[r])
        if t < 63:
            if q == 3: vm.wait(("kv", kt + 1))
            a(QK(prv, ((t+1)//4) % NRING, qof(t+1)))
        for r in range(4+sh, 10+sh): a(E[r])
        a(SM(qof(t), kt % NRING, 0, cur))
        W = red_write(t - 60) if (TAIL and t >= 61) else []
        for r in range(10+sh, 16):
            a(E[r])
            if W: a(W.pop(0))
        for x in W: a(x)
        if t % 4 == 3 and t < 60: stamp(a, t//4, 5)
    a("s_nop 1")
    a(SM(qof(63), 15 % NRING, 1, SB[1]))
    a("s_setprio 0")
    stamp(a, 6); stamp(a, 0, 8)
    if not TAIL:
        for i in range(1, 4):
            for x in red_write(i): a(x)
    a(f"s_mul_i32 s52, s{sKQ}, 3\ns_add_u32 s52, s52, s63\ns_mul_i32 s52, s52, 2304\ns_add_u32 s52, s52, {L_RED}")
    a(f"v_add_u32 v6, s52, v{vL16}\nv_add_u32 v7, s52, v15")
    a(f"s_lshl_b32 s52, s{sTB}, 2\ns_add_u32 s52, s52, s{sKQ}\ns_lshl_b32 s52, s52, 5\ns_add_u32 s52, s52, s58")
    a(f"s_lshl_b32 s63, s52, 10\ns_add_u32 s63, s63, {hex(WS_O)}")
    flag_off(a, 64, 52, WS_FO, LF())
    a(TP(sTB)); a(CP(sC))
    stamp(a, 1, 8)
    vm.wait_all()
    a("s_waitcnt lgkmcnt(0)")
    stamp(a, 2, 8)
    a("s_barrier")
    stamp(a, 3, 8)
    R = 96
    for i in range(3):
        a(f"ds_read_b128 {vr(R+12*i,4)}, v6 offset:{2304*i}\nds_read_b128 {vr(R+12*i+4,4)}, v6 offset:{2304*i+1024}\nds_read_b32 v{R+12*i+8}, v7 offset:{2304*i+2048}")
    a(f"s_mov_b32 s52, {hx(2.0**-60)}\ns_mov_b32 s53, {hx(2.0**60)}\ns_movk_i32 s65, 0x207")
    for i in range(3):
        a(f"s_waitcnt lgkmcnt({6-3*i})")
        for r in range(9): a(f"v_add_f32 v{OA+r}, v{OA+r}, v{R+12*i+r}")
    a(f"v_add_f32 v8, v{OA}, v{OA+1}\nv_add_f32 v9, v{OA+2}, v{OA+3}\nv_add_f32 v10, v{OA+4}, v{OA+5}\nv_add_f32 v11, v{OA+6}, v{OA+7}")
    a("v_add_f32 v8, v8, v9\nv_add_f32 v10, v10, v11\nv_add_f32 v8, v8, v10")
    a(f"v_cmp_nge_f32 vcc, v{OA+8}, s52\nv_cmp_nle_f32 s[54:55], v{OA+8}, s53\nv_cmp_class_f32 s[56:57], v8, s65")
    a(f"v_rcp_f32 v8, v{OA+8}")
    a("s_or_b64 vcc, vcc, s[54:55]\ns_or_b64 vcc, vcc, s[56:57]")
    a("s_cbranch_vccnz Lslow")
    a("Lnorm:")
    for r in range(8): a(f"v_mul_f32 v{OA+r}, v{OA+r}, v8")
    for r in range(4): a(f"v_cvt_pk_bf16_f32 v{8+r}, v{OA+2*r}, v{OA+2*r+1}")
    vm.op(f"buffer_store_dwordx4 v[8:11], v{vL16}, {S['ws']}, s63 offen{RO()}")
    stamp(a, 4, 8)
    a("s_barrier")
    stamp(a, 5, 8)
    a(f"s_mul_i32 s52, s{sW}, 7168\ns_add_u32 s52, s52, {L_W1+8*7168}\nv_add_u32 v5, s52, v{vL16}")
    for j in range(7): a(f"ds_write_b128 v5, {vr(vSTASH+4*j,4)} offset:{1024*j}")
    def slow(b):
        tv = Track(b, "vmcnt", 63)
        b("Lslow:")
        poll_addr(b, 5)
        b(f"s_lshr_b32 s52, s58, 2\ns_lshl_b32 s52, s52, 11\ns_add_u32 s62, s52, {hex(WS_FKV)}")
        poll(b, tv, "-1", 5, "s62", 6)
        b("s_add_u32 s62, s62, 1024")
        poll(b, tv, "-1", 5, "s62", 6)
        b(f"s_waitcnt vmcnt(0)\ns_add_u32 s{sK}, s59, {hex(WS_K)}\ns_mov_b32 s51, 64\nv_mov_b32 v8, 0xff800000")
        b("Ls1:")
        b(f"buffer_load_dwordx4 {vr(RING,4)}, v{vL16}, {S['ws']}, s{sK} offen sc1\ns_add_u32 s{sK}, s{sK}, 1024\ns_waitcnt vmcnt(0)")
        b(QK(SB[0], 0, 0))
        for r in range(0, 16, 2): b(f"v_max3_f32 v8, v{SB[0]+r}, v{SB[0]+r+1}, v8")
        b("s_sub_u32 s51, s51, 1\ns_cmp_lg_u32 s51, 0\ns_cbranch_scc1 Ls1")
        b("v_mov_b32 v9, v8\nv_permlane32_swap_b32 v8, v9\nv_max_f32 v8, v8, v9")
        for r in range(16): b(f"v_sub_f32 v{SB[1]+r}, 0, v8")
        for r in range(16): b(f"v_mov_b32 v{OA+r}, 0")
        b(f"s_add_u32 s{sK}, s59, {hex(WS_K)}\ns_add_u32 s{sV}, s59, {hex(WS_V)}\ns_mov_b32 s51, 64")
        b("Ls2:")
        b(f"buffer_load_dwordx4 {vr(RING,4)}, v{vL16}, {S['ws']}, s{sK} offen sc1\ns_mov_b64 exec, s[60:61]")
        b(f"buffer_load_dwordx4 {vr(RING+4,4)}, v{vV}, {S['ws']}, s{sV} offen sc1\nbuffer_load_dwordx4 {vr(RING+8,4)}, v{vV}, {S['ws']}, s{sV} offen offset:512 sc1")
        b(f"s_mov_b64 exec, -1\ns_add_u32 s{sK}, s{sK}, 1024\ns_add_u32 s{sV}, s{sV}, 1024\ns_waitcnt vmcnt(0)")
        b(f"v_mfma_f32_32x32x16_bf16 {vr(SB[0],16)}, {vr(RING,4)}, {vr(QF,4)}, {vr(SB[1],16)}")
        for r in range(16): b(f"v_exp_f32 v{SB[0]+r}, v{SB[0]+r}")
        b(SM(0, 0, 0, SB[0])); b(SM(0, 0, 1, SB[0]))
        b("s_sub_u32 s51, s51, 1\ns_cmp_lg_u32 s51, 0\ns_cbranch_scc1 Ls2")
        b(f"s_nop 7\ns_nop 7\nv_rcp_f32 v8, v{OA+8}\ns_nop 0\ns_branch Lnorm")
    return slow

def w1_voffs(a, vF, vH, p=7, q=8, r=9):
    a(f"v_lshrrev_b32 v{p}, 2, v{vLANE}\nv_and_b32 v{q}, 3, v{vLANE}\nv_mul_u32_u24 v{vF}, 3584, v{p}\nv_lshl_add_u32 v{vF}, v{q}, 4, v{vF}")
    a(f"v_lshrrev_b32 v{p}, 1, v{vLANE}\nv_and_b32 v{q}, 0x13, v{p}\nv_bfe_u32 v{r}, v{p}, 2, 1\nv_lshl_add_u32 v{q}, v{r}, 3, v{q}\nv_bfe_u32 v{r}, v{p}, 3, 1\nv_lshl_add_u32 v{q}, v{r}, 2, v{q}")
    a(f"v_mul_u32_u24 v{vH}, 3584, v{q}\nv_and_b32 v{q}, 1, v{vLANE}\nv_lshl_add_u32 v{vH}, v{q}, 4, v{vH}")

def w1_kp_dma(sOff, sLds, vF, vH, dOff=0, dLds=0):
    L = []
    for e in range(2):
        for nt in range(3):
            L.append([f"s_add_u32 m0, s{sLds}, {dLds+3072*e+1024*nt}", f"s_add_u32 s52, s{sOff}, {dOff+16*3584*e+64*nt}",
                      f"buffer_load_dwordx4 v{vF}, {S['w1']}, s52 offen lds"])
    L.append([f"s_add_u32 m0, s{sLds}, {dLds+6144}", f"s_add_u32 s52, s{sOff}, {dOff+192}", f"buffer_load_dwordx4 v{vH}, {S['w1']}, s52 offen lds"])
    return L

def w1_reads(kp, e, dst, vF):
    base = 7168*kp + 3072*e
    return [f"ds_read_b64_tr_b16 {vr(dst+4*nt+2*st,2)}, v{vF[base >> 15]} offset:{(base & 0x7fff)+1024*nt+512*st}" for nt in range(3) for st in range(2)]
def w1_half_reads(kp, dst, vH):
    base = 7168*kp + 6144
    return [f"ds_read_b64_tr_b16 {vr(dst+2*st,2)}, v{vH[base >> 15]} offset:{(base & 0x7fff)+256*st}" for st in range(2)]

def h_pj(ks):
    return (ks // 4, ks % 4) if ks < 32 else ((ks - 32) // 3, 4 + (ks - 32) % 3)

def rot_loads(a, vm, base_s, dst, tag, div=1):
    for ks in range(32):
        if ks % 4 == 0: a(f"s_add_u32 s53, s{sR}, {ks//4}\ns_and_b32 s53, s53, 7\ns_lshl_b32 s53, s53, 12\ns_add_u32 s53, s53, s{base_s}")
        yield ks, (f"buffer_load_dwordx4 {vr(dst+4*ks,4)}, v{vL16}, {S['ws']}, s53 offen offset:{1024*(ks%4)}{RL() if tag == 'y' else ' sc1'}", (tag, ks//div))

def lds_init_b0(a):
    late_srds(a)
    a(f"v_mov_b32 v8, {L_SCR+256}\nv_mov_b32 v10, 0\nv_mov_b32 v11, 0\nds_write_b64 v8, v[10:11]\nds_write_b64 v8, v[10:11] offset:8\nds_write_b64 v8, v[10:11] offset:16\nds_write_b64 v8, v[10:11] offset:24\nds_write_b64 v8, v[10:11] offset:32\nds_write_b64 v8, v[10:11] offset:40\ns_waitcnt lgkmcnt(0)\ns_barrier")

EB = lambda bit: OPT.get('eb1', 2) & bit
def tag_to_lds_b1(a, late):
    a(f"v_mov_b32 v8, s{sTAG}\nv_mov_b32 v9, {L_SCR+260}\nds_write_b32 v9, v8\ns_waitcnt lgkmcnt(0)")
    stamp(a, 0)
    if late: a("s_barrier")
    a("s_branch La_p1")

def p0_ln(a):
    vm = Track(a, "vmcnt", 63)
    a(f"s_and_b32 s52, s{sX}, 1\ns_lshl_b32 s52, s52, 4\ns_add_u32 s52, s52, s{sI}\ns_sub_u32 s52, s52, 8\ns_lshl_b32 s52, s52, 2\ns_add_u32 s52, s52, s{sW}")
    a(f"s_lshr_b32 s53, s{sX}, 1\ns_lshl_b32 s53, s53, 7\ns_add_u32 s56, s52, s53\ns_lshl_b32 s53, s56, 12")
    a(f"v_and_b32 v4, 3, v{vLANE}\nv_lshrrev_b32 v5, 2, v{vLANE}\nv_lshlrev_b32 v6, 10, v4\nv_lshl_add_u32 v6, v5, 4, v6")
    a("s_waitcnt lgkmcnt(0)")
    for m in range(4): vm.op(f"buffer_load_dwordx4 {vr(16+4*m,4)}, v6, {S['x']}, s53 offen offset:{256*m}")
    lds_init_b0(a)
    a("v_lshrrev_b32 v7, 1, v5\nv_lshlrev_b32 v7, 10, v7\nv_and_b32 v8, 1, v5\nv_lshl_add_u32 v7, v8, 9, v7\nv_lshl_add_u32 v7, v4, 4, v7")
    a(f"s_lshr_b32 s53, s56, 3\ns_lshl_b32 s53, s53, 15\ns_and_b32 s54, s56, 7\ns_lshl_b32 s54, s54, 6\ns_add_u32 s53, s53, s54\ns_add_u32 s53, s53, {hex(WS_XN)}")
    flag_off(a, 55, 56, WS_FXN)
    stamp(a, 0, 7)
    vm.wait_all()
    stamp(a, 1, 7)
    vm.op(f"buffer_load_dword v15, v{vZ}, {S['dbg']}, 0 offen sc1")
    F = 32
    for r in range(16): a(f"v_lshlrev_b32 v{F+2*r}, 16, v{16+r}\nv_and_b32 v{F+2*r+1}, 0xffff0000, v{16+r}")
    def red(v, t):
        for r in (4, 8): a(f"v_add_f32_dpp v{v}, v{v}, v{v} row_ror:{r} row_mask:0xf bank_mask:0xf")
        a(f"v_mov_b32 v{t}, v{v}\nv_permlane16_swap_b32 v{v}, v{t}\nv_add_f32 v{v}, v{v}, v{t}")
        a(f"v_mov_b32 v{t}, v{v}\nv_permlane32_swap_b32 v{v}, v{t}\nv_add_f32 v{v}, v{v}, v{t}")
    a(f"v_pk_add_f32 v[64:65], {vr(F,2)}, {vr(F+2,2)}\nv_pk_add_f32 v[66:67], {vr(F+4,2)}, {vr(F+6,2)}")
    for r in range(8, 32, 4): a(f"v_pk_add_f32 v[64:65], v[64:65], {vr(F+r,2)}\nv_pk_add_f32 v[66:67], v[66:67], {vr(F+r+2,2)}")
    a("v_pk_add_f32 v[64:65], v[64:65], v[66:67]\nv_add_f32 v64, v64, v65")
    red(64, 65)
    a(f"v_mul_f32 v64, {hx(-1/512)}, v64")
    for r in range(0, 32, 2): a(f"v_pk_add_f32 {vr(F+r,2)}, {vr(F+r,2)}, v[64:65] op_sel_hi:[1,0]")
    a(f"v_pk_mul_f32 v[66:67], {vr(F,2)}, {vr(F,2)}\nv_pk_mul_f32 v[68:69], {vr(F+2,2)}, {vr(F+2,2)}")
    for r in range(4, 32, 4): a(f"v_pk_fma_f32 v[66:67], {vr(F+r,2)}, {vr(F+r,2)}, v[66:67]\nv_pk_fma_f32 v[68:69], {vr(F+r+2,2)}, {vr(F+r+2,2)}, v[68:69]")
    a("v_pk_add_f32 v[66:67], v[66:67], v[68:69]\nv_add_f32 v66, v66, v67")
    red(66, 67)
    a(f"v_mov_b32 v67, {hx(1e-5)}\nv_fmac_f32 v67, {hx(1/512)}, v66\nv_rsq_f32 v66, v67")
    for r in range(0, 32, 2): a(f"v_pk_mul_f32 {vr(F+r,2)}, {vr(F+r,2)}, v[66:67] op_sel_hi:[1,0]")
    for m in range(4):
        for r in range(4): a(f"v_cvt_pk_bf16_f32 v{16+4*m+r}, v{F+8*m+2*r}, v{F+8*m+2*r+1}")
        vm.op(f"buffer_store_dwordx4 {vr(16+4*m,4)}, v7, {S['ws']}, s53 offen sc1")
        if m < 3: a("s_add_u32 s53, s53, 8192")
    stamp(a, 2, 7)
    if EB(1): a("s_barrier")
    vm.wait_all()
    stamp(a, 3, 7)
    tag_now(a, 15)
    set_flag(a, vm, "s55", vZ, 8)
    stamp(a, 4, 7)
    tag_to_lds_b1(a, not EB(1))

def p0_mod(a):
    vm = Track(a, "vmcnt", 63)
    sCol = 51
    a(f"s_lshl_b32 s{sCol}, s{sX}, 1\ns_lshr_b32 s52, s{sI}, 2\ns_add_u32 s{sCol}, s{sCol}, s52\ns_lshl_b32 s{sCol}, s{sCol}, 6")
    a(f"s_and_b32 s52, s{sI}, 3\ns_lshl_b32 s52, s52, 4\ns_add_u32 s{sCol}, s{sCol}, s52")
    a("s_waitcnt lgkmcnt(0)")
    mod_issue(a, vm, sCol)
    lds_init_b0(a)
    vm.wait("mod")
    stamp(a, 1, 7)
    a(f"buffer_load_dword v15, v{vZ}, {S['dbg']}, 0 offen sc1")
    if EB(4): a("s_barrier")
    mod_partial(a, vm)
    a("s_waitcnt vmcnt(0)")
    tag_now(a, 15)
    mod_join(a, vm, sCol, "La_joined")
    a("La_joined:")
    stamp(a, 4, 7)
    tag_to_lds_b1(a, not EB(4))

def p0_warm(a):
    a(f"s_sub_u32 s52, s{sI}, 24\ns_lshl_b32 s52, s52, 1\ns_add_u32 s52, s52, s{sW}\ns_lshl_b32 s52, s52, 5")
    a(f"v_lshrrev_b32 v4, 1, v{vLANE}\nv_add_u32 v4, s52, v4\nv_mul_u32_u24 v4, 6144, v4\nv_and_b32 v5, 1, v{vLANE}\nv_lshl_add_u32 v4, v5, 7, v4\ns_lshl_b32 s52, s{sX}, 8")
    a(f"s_waitcnt lgkmcnt(0)\ns_cmp_ge_u32 s{sW}, 2\ns_cbranch_scc1 La_nowm")
    a(f"buffer_load_dword v6, v4, {S['wmod']}, s52 offen")
    a("La_nowm:")
    lds_init_b0(a)
    a("s_waitcnt vmcnt(0)")
    stamp(a, 1, 7)
    a(f"buffer_load_dword v15, v{vZ}, {S['dbg']}, 0 offen sc1")
    if EB(2): a("s_barrier")
    a("s_waitcnt vmcnt(0)")
    tag_now(a, 15)
    tag_to_lds_b1(a, not EB(2))

def p0_helper(a):
    vm = Track(a, "vmcnt", 63)
    sH = 67
    a(f"v_mov_b32 v32, 0\nv_mov_b32 v33, 0\nv_mov_b32 v34, 0\nv_mov_b32 v35, 0\ns_lshl_b32 s52, s{sH}, 12\ns_add_u32 s52, s52, {L_DG}\nv_add_u32 v9, s52, v{vL16}")
    for j in range(4): a(f"ds_write_b128 v9, v[32:35] offset:{1024*j}")
    a(f"s_lshl_b32 s52, s2, 2\ns_add_u32 s52, s52, s{sH}\ns_and_b32 s53, s52, 1\ns_lshr_b32 s52, s52, 1\ns_mul_i32 s52, s52, 3072")
    a("s_lshl_b32 s57, s53, 9\ns_add_u32 s57, s57, s52\ns_lshl_b32 s53, s53, 10\ns_add_u32 s52, s52, s53\ns_add_u32 s52, s52, 1024")
    a("s_waitcnt lgkmcnt(0)")
    a(f"s_lshl_b32 s58, s2, 3\ns_add_u32 s58, s58, s{sW}\ns_cmp_lg_u32 s58, {64*8+4}\ns_cbranch_scc1 Le_notag")
    a(f"s_or_b32 s54, s54, 1\nv_mov_b32 v7, s54\ns_mov_b64 exec, 1\nbuffer_store_dword v7, v{vZ}, {S['dbg']}, 0 offen sc1\ns_mov_b64 exec, -1")
    a("Le_notag:")
    s0 = OPT.get("st0", 9)
    for n in range(min(s0, 4) if s0 != 9 else 1): a(stouch("wqkv", 52, n))
    late_srds(a)
    a("s_barrier")
    if s0 == 9: a("s_waitcnt lgkmcnt(0)")
    for n in range(min(s0, 4) if s0 != 9 else 1, 8): a(stouch("wqkv", 52, n))
    for n in range(4): a(stouch("wqkv", 57, n))
    a(f"v_lshrrev_b32 v4, 3, v{vLANE}\nv_mul_u32_u24 v4, 3072, v4\nv_bfe_u32 v5, v{vLANE}, 4, 1\nv_lshlrev_b32 v5, 2, v5\nv_xor_b32 v5, v5, v{vLANE}\nv_and_b32 v5, 7, v5\nv_lshl_add_u32 v4, v5, 4, v4")
    a(f"s_and_b32 s56, s{sC}, 1\ns_add_u32 s56, s56, 1\ns_lshl_b32 s56, s56, 10\ns_lshr_b32 s52, s{sC}, 1\ns_lshl_b32 s52, s52, 7\ns_add_u32 s56, s56, s52")
    a(f"s_and_b32 s55, s{sTB}, {1 if OPT.get('m216', 0) else 3}\ns_lshl_b32 s55, s55, {4 if OPT.get('m216', 0) else 3}\ns_add_u32 s55, s55, s{sH}\ns_lshl_b32 s57, s{sR}, 2\ns_mov_b32 s51, 8")
    stamp(a, 0, 7)
    a("s_barrier")
    stamp(a, 1, 7)
    a("Lh_wl:")
    a(f"s_and_b32 s55, s55, 31\ns_lshl_b32 s53, s55, 11\ns_add_u32 s52, s55, s57\ns_and_b32 s52, s52, 31\ns_mul_i32 s52, s52, {16*3072}\ns_mov_b32 m0, s53\ns_add_u32 s52, s52, s56")
    a(f"buffer_load_dwordx4 v4, {S['wqkv']}, s52 offen lds\ns_add_u32 m0, s53, 1024\ns_add_u32 s52, s52, {8*3072}\nbuffer_load_dwordx4 v4, {S['wqkv']}, s52 offen lds")
    a(f"s_add_u32 s55, s55, 4\ns_sub_u32 s51, s51, 1\ns_cmp_lg_u32 s51, 0\ns_cbranch_scc1 Lh_wl")
    tag_get(a)
    stamp(a, 0); stamp(a, 2, 7)
    a(f"s_cmp_ge_u32 s{sH}, 2\ns_cbranch_scc1 Lh_b2")
    a(f"s_lshl_b32 s52, s{sH}, 11")
    a(f"v_lshrrev_b32 v5, 3, v{vLANE}\ns_lshl_b32 s53, s{sR}, 1\nv_subrev_u32 v5, s53, v5\nv_and_b32 v5, 15, v5\nv_xor_b32 v6, 8, v5")
    gran_poll(a, vm, [f"buffer_load_dwordx4 v[16:19], v{vL16}, {S['ws']}, s52 offen sc1", f"buffer_load_dwordx4 v[20:23], v{vL16}, {S['ws']}, s52 offen offset:1024 sc1"], [16, 20])
    stamp(a, 1)
    a(f"s_cmp_lg_u32 s{sH}, 0\ns_cbranch_scc1 Lh_g1")
    for j, r in enumerate((16, 18, 20, 22)): a(f"v_lshlrev_b32 v{24+2*j}, 16, v{r}\nv_and_b32 v{25+2*j}, 0xffff0000, v{r}")
    a(f"v_and_b32 v7, 1, v{vLANE}\nv_lshlrev_b32 v7, 6, v7\nv_bfe_u32 v9, v{vLANE}, 1, 2\nv_lshl_add_u32 v7, v9, 4, v7\nv_add_u32 v7, {L_SA}, v7")
    a("v_lshl_add_u32 v5, v5, 7, v7\nv_lshl_add_u32 v6, v6, 7, v7")
    a("ds_write_b128 v5, v[24:27]\nds_write_b128 v6, v[28:31]")
    a("s_branch Lh_b2")
    a("Lh_g1:")
    a(f"v_and_b32 v7, 7, v{vLANE}\nv_lshlrev_b32 v7, 6, v7\nv_bfe_u32 v9, v{vLANE}, 2, 1\nv_lshl_add_u32 v7, v9, 9, v7\nv_and_b32 v9, 3, v{vLANE}\nv_lshl_add_u32 v7, v9, 2, v7\nv_add_u32 v7, {L_DG}, v7")
    a("v_lshl_add_u32 v5, v5, 10, v7\nv_lshl_add_u32 v6, v6, 10, v7")
    for j in range(2):
        for e in range(4):
            a(f"ds_write_b16{'_d16_hi' if e & 1 else ''} v{5+j}, v{16+4*j+2*(e>>1)} offset:{16*e + 2*(e & 1)}")
    a("s_branch Lh_b2")

def late_srds(a):
    for nm in ("wo", "w1", "w2", "out"): a(f"s_mov_b32 s{SRD[nm]+2}, {hex(SZ[nm])}\ns_mov_b32 s{SRD[nm]+3}, 0x20000")

def active(a):
    vm = Track(a, "vmcnt", 63); lg = Track(a, "lgkmcnt", 15)
    sT32 = 67
    a("La_p1:")
    ACC = [16, 32, 48]; WF = [64, 72]; DH = [88, 104]; DG = [120, 124]; AF = 128
    a(f"s_lshl_b32 s{sT32}, s{sTB}, 2\ns_add_u32 s{sT32}, s{sT32}, s{sW}")
    a(f"v_lshlrev_b32 v5, 2, v{vLANE}\ns_lshl_b32 s52, s{sT32}, 7\ns_add_u32 s52, s52, {hex(WS_FXN)}")
    tr_addr(a, 10, 12, True, 7, True)
    a("v_xor_b32 v12, 64, v10")
    a(f"v_bfe_u32 v11, v0, 5, 1\nv_lshlrev_b32 v11, 6, v11\nv_add_u32 v11, {L_SA}, v11\nv_add_u32 v13, {L_DG}, v{vL16}")
    a(f"v_and_b32 v14, 2, v0\nv_cmp_eq_u32 vcc, 0, v14\nv_mov_b32 v14, 0xeeeeeeee\nv_mov_b32 v15, 0x44444444\nv_cndmask_b32 v14, v14, v15, vcc")
    for r in range(48): a(f"v_mov_b32 v{16+r}, 0")
    poll(a, vm, "0xff", 5, "s52", 6, OPT.get("fn", 0))
    stamp(a, 1)
    a(f"s_lshl_b32 s52, s{sT32}, 15\ns_add_u32 s52, s52, {hex(WS_XN)}")
    a(f"s_lshr_b32 s54, s{sC}, 1\ns_lshl_b32 s54, s54, 18\ns_lshl_b32 s55, s{sT32}, 10\ns_add_u32 s54, s54, s55")
    a(f"s_bitcmp1_b32 s{sC}, 0\ns_cbranch_scc1 La_vwg")
    def rdS(b):
        L = [(f"ds_read_b128 {vr(DH[b&1]+4*q,4)}, v11 offset:{128*b+16*q}", ("s", b)) for q in range(4)]
        return L + [(f"ds_read_b128 {vr(DG[b&1],4)}, v13 offset:{1024*b}", ("s", b))]
    def rdW(ks):
        return [(f"ds_read_b64_tr_b16 {vr(WF[ks&1]+4*g+2*st,2)}, v{(10, 12)[g]} offset:{2048*ks+1024*st}", ("w", ks)) for g in range(2) for st in range(2)]
    def SMF(b): return f"v_smfmac_f32_32x32x32_bf16 {vr(DH[b&1],16)}, {vr(DG[b&1],4)}, {vr(AF+8*b,8)}, v14"
    def CVT(b): return [f"v_cvt_pk_bf16_f32 v{AF+8*b+r}, v{DH[b&1]+2*r}, v{DH[b&1]+2*r+1}" for r in range(8)]
    for isV in (0, 1):
        if isV: a("La_vwg:")
        vm.reset(); lg.reset()
        XL = rot_loads(a, vm, 52, AF, "xn", 2)
        def xn_issue(n):
            for _ in range(n):
                r = next(XL, None)
                if r: vm.op(*r[1])
        def MM(ks):
            f = AF + 4*ks; w = WF[ks & 1]
            if isV: return [f"v_mfma_f32_32x32x16_bf16 {vr(ACC[1+g],16)}, {vr(f,4)}, {vr(w+4*g,4)}, {vr(ACC[1+g],16)}" for g in range(2)]
            return [f"v_mfma_f32_32x32x16_bf16 {vr(ACC[1+g],16)}, {vr(w+4*g,4)}, {vr(f,4)}, {vr(ACC[1+g],16)}" for g in range(2)]
        xn_issue(OPT.get("xn0", 8))
        a("s_barrier")
        xn_issue(10 - OPT.get("xn0", 8))
        for x in rdS(0) + rdS(1): lg.op(*x)
        lg.wait(("s", 0)); vm.wait(("xn", 0))
        a(SMF(0))
        for x in rdW(0): lg.op(*x)
        xn_issue(2)
        a("s_nop 5")
        for x in CVT(0): a(x)
        stamp(a, 2)
        for b in range(16):
            nx = b + 1 < 16
            if nx:
                lg.wait(("s", b+1)); vm.wait(("xn", b+1))
                a(SMF(b+1))
            for x in rdW(2*b+1): lg.op(*x)
            lg.wait(("w", 2*b))
            M = MM(2*b); Rs = rdS(b+2) if b + 2 < 16 else []
            a(M[0]); [lg.op(*x) for x in Rs]
            a(M[1]); xn_issue(3)
            if b == OPT.get("b2b", 6): a("s_barrier")
            lg.wait(("w", 2*b+1))
            M = MM(2*b+1); C = CVT(b+1) if nx else []; Rw = rdW(2*b+2) if nx else []
            a(M[0]); [lg.op(*x) for x in Rw]; [a(x) for x in C[:3]]
            a(M[1]); [a(x) for x in C[3:]]
            if b < 15: stamp(a, b, 6)
        if not isV:
            a(f"s_add_u32 s54, s54, {hex(WS_K)}")
            a(f"v_and_b32 v5, 0x33, v{vLANE}\nv_bfe_u32 v6, v{vLANE}, 2, 1\nv_lshl_add_u32 v5, v6, 3, v5\nv_bfe_u32 v6, v{vLANE}, 3, 1\nv_lshl_add_u32 v5, v6, 2, v5\nv_lshlrev_b32 v5, 4, v5")
            for h in range(4):
                for r in range(4): a(f"v_cvt_pk_bf16_f32 v{112+4*h+r}, v{ACC[1]+8*h+2*r}, v{ACC[1]+8*h+2*r+1}")
                vm.op(f"buffer_store_dwordx4 {vr(112+4*h,4)}, v5, {S['ws']}, s54 offen sc1")
                if h < 3: a("s_add_u32 s54, s54, 65536")
            a("s_branch La_kvd")
        else:
            a(f"s_add_u32 s54, s54, {hex(WS_V)}")
            a(f"v_and_b32 v6, 15, v{vLANE}\nv_lshlrev_b32 v6, 4, v6\nv_bfe_u32 v7, v{vLANE}, 5, 1\nv_lshl_add_u32 v6, v7, 8, v6\nv_bfe_u32 v7, v{vLANE}, 4, 1\nv_lshl_add_u32 v6, v7, 16, v6")
            for h in range(4):
                for r in range(4): a(f"v_cvt_pk_bf16_f32 v{112+4*h+r}, v{ACC[1]+8*h+2*r}, v{ACC[1]+8*h+2*r+1}")
                vm.op(f"buffer_store_dwordx4 {vr(112+4*h,4)}, v6, {S['ws']}, s54 offen offset:{512*(h&1)} sc1")
                if h == 1: a("s_add_u32 s54, s54, 131072")
    a("La_kvd:")
    stamp(a, 3)
    a(f"s_lshl_b32 s57, s{sW}, 10\ns_add_u32 s57, s57, {L_QX}\nv_add_u32 v7, s57, v{vL16}")
    a(f"s_lshl_b32 s58, s{sC}, 6\ns_add_u32 s58, s58, s{sT32}")
    flag_off(a, 51, 58, WS_FKV)
    tr_addr(a, 10, 12, True, 6, False)
    a(f"v_add_u32 v10, {L_WQ}, v10")
    a("s_barrier")
    WQ = [96, 100, 104, 108]
    early, late = att_setup(); fill = early + late; assert len(early) >= 12*5
    def rdQ(ks): return [(f"ds_read_b64_tr_b16 {vr(WQ[ks&3]+2*st,2)}, v10 offset:{1024*ks+512*st}", ("q", ks)) for st in range(2)]
    lg.reset()
    for x in rdQ(0) + rdQ(1) + rdQ(2): lg.op(*x)
    for ks in range(32):
        if ks + 3 < 32: [lg.op(*x) for x in rdQ(ks+3)]
        lg.wait(("q", ks))
        a(f"v_mfma_f32_32x32x16_bf16 {vr(ACC[0],16)}, {vr(WQ[ks&3],4)}, {vr(AF+4*ks,4)}, {vr(ACC[0],16)}")
        if ks == OPT.get("kvflag", 8): set_flag(a, vm, "s51", vZ, 8)
        else:
            for x in fill[:6]: a(x)
            fill = fill[6:]
    for x in fill: a(x)
    a(f"s_mov_b32 s53, {hx(0.25*LOG2E)}")
    for r in range(16): a(f"v_mul_f32 v{ACC[0]+r}, s53, v{ACC[0]+r}")
    for r in range(8): a(f"v_cvt_pk_bf16_f32 v{96+r}, v{ACC[0]+2*r}, v{ACC[0]+2*r+1}")
    a("ds_write_b128 v7, v[96:99]\nds_write_b128 v7, v[100:103] offset:4096")
    if OPT.get("qj", 1):
        a(f"v_mov_b32 v9, {L_SCR+264}\nv_mov_b32 v10, 1\ns_waitcnt lgkmcnt(0)\ns_mov_b64 exec, 1\nds_add_u32 v9, v10\ns_mov_b64 exec, -1")
        att_first(a, vm, OPT.get("fk", 0))
        q_join(a); att_q(a)
    else:
        a("s_waitcnt lgkmcnt(0)\ns_barrier")
        att_q(a)
        att_first(a, vm, OPT.get("fk", 0))

def active2(a):
    vm = Track(a, "vmcnt", 63); lg = Track(a, "lgkmcnt", 15)
    sT32, AF = 67, 128
    ACC, WF, XR, GA, G2, XF = 16, [96, 100, 104, 108], vXR, 48, 64, 80
    a(f"s_getreg_b32 s50, hwreg(HW_REG_XCC_ID)\ns_and_b32 s50, s50, 15\ns_lshl_b32 s50, s50, 1\ns_add_u32 s50, s50, s{sTAG}\nv_cmp_ne_u32 vcc, s50, v{vXR+8}\nv_bfe_u32 v9, v{vLANE}, 5, 1\ns_cmp_eq_u64 vcc, 0\ns_cselect_b32 s{sLOC}, 1, 0")
    for q in range(4):
        for h in range(2): a(f"v_lshlrev_b32 v{XF+4*q+2*h}, 16, v{XR+2*q+h}\nv_and_b32 v{XF+4*q+2*h+1}, 0xffff0000, v{XR+2*q+h}")
    a(f"s_lshl_b32 s57, s{sT32}, 15\ns_lshl_b32 s58, s{sC}, 11\ns_add_u32 s57, s57, s58\ns_add_u32 s58, s57, {hex(WS_Y)}\ns_add_u32 s57, s57, {hex(WS_X1)}")
    a(f"s_lshl_b32 s54, s{sC}, 14\ns_lshl_b32 s55, s{sT32}, 8\ns_add_u32 s54, s54, s55\ns_add_u32 s54, s54, {hex(WS_STATS)}")
    a(f"s_lshl_b32 s55, s{sT32}, 4\ns_add_u32 s55, s55, s{sC}")
    flag_off(a, 56, 55, WS_FX1, LF())
    a(f"s_lshl_b32 s55, s{sT32}, {11-LF()}\ns_add_u32 s55, s55, {hex(WS_FX1)}")
    tr_addr(a, 10, 11, True, 6, False)
    for r in range(16): a(f"v_mov_b32 v{ACC+r}, 0")
    poll_addr(a, 5, LF())
    a(f"s_lshl_b32 s52, s{sT32}, {12-LF()}\ns_add_u32 s52, s52, {hex(WS_FO)}")
    stamp(a, 6, 8)
    set_flag(a, vm, "s64", vZ, 8, RO())
    stamp(a, 7); stamp(a, 7, 8)
    poll(a, vm, "0xffffffff", 5, "s52", 11, OPT.get("fo", 28))
    stamp(a, 8); stamp(a, 0, 2)
    a(f"s_lshl_b32 s52, s{sT32}, 15\ns_add_u32 s52, s52, {hex(WS_O)}")
    OL = rot_loads(a, vm, 52, AF, "o")
    for _ in range(OPT.get("b5b", 12)): vm.op(*next(OL)[1])
    sig_regs(a, 126, 127); sig(a, "b5b", 126, 127)
    for _ in range(12 - OPT.get("b5b", 12)): vm.op(*next(OL)[1])
    a(f"v_lshlrev_b32 v6, 2, v{vLANE}\nv_lshlrev_b32 v5, 4, v9\nv_add_u32 v5, {L_GA}, v5")
    def rdWo(ks): return [(f"ds_read_b64_tr_b16 {vr(WF[ks&3]+2*st,2)}, v10 offset:{L_WO+1024*ks+512*st}", ("w", ks)) for st in range(2)]
    lg.reset()
    for x in rdWo(0) + rdWo(1) + rdWo(2): lg.op(*x)
    for ks in range(32):
        if ks + 3 < 32:
            for x in rdWo(ks+3): lg.op(*x)
        if ks == 28:
            lg.wait(("w", 31))
            a("s_barrier")
            for q in range(4): a(f"ds_read_b128 {vr(GA+4*q,4)}, v5 offset:{32*q}")
            for q in range(4): a(f"ds_read_b128 {vr(G2+4*q,4)}, v5 offset:{128+32*q}")
        lg.wait(("w", ks)); vm.wait(("o", ks))
        a(f"v_mfma_f32_32x32x16_bf16 {vr(ACC,16)}, {vr(WF[ks&3],4)}, {vr(AF+4*ks,4)}, {vr(ACC,16)}")
        if ks + 12 < 32: vm.op(*next(OL)[1])
        if ks == 19 and OPT.get("early", 0): sig(a, "b5c", 126, 127, lg)
        if ks % 4 == 0 or ks == 31: stamp(a, 1 + (ks+1)//4, 2)
    stamp(a, 10, 2)
    a("s_waitcnt lgkmcnt(4)")
    for r in range(16): a(f"v_fmac_f32 v{XF+r}, v{ACC+r}, v{GA+r}")
    a("s_waitcnt lgkmcnt(0)")
    for r in range(16): a(f"v_mul_f32 v{ACC+r}, v{XF+r}, v{G2+r}")
    for r in range(8): a(f"v_cvt_pk_bf16_f32 v{32+r}, v{ACC+2*r}, v{ACC+2*r+1}")
    vm.op(f"buffer_store_dwordx4 v[32:35], v{vL16}, {S['ws']}, s58 offen{RG()}"); vm.op(f"buffer_store_dwordx4 v[36:39], v{vL16}, {S['ws']}, s58 offen offset:1024{RG()}")
    a(f"v_pk_add_f32 v[48:49], {vr(XF,2)}, {vr(XF+2,2)}\nv_pk_mul_f32 v[50:51], {vr(XF,2)}, {vr(XF,2)}\nv_pk_fma_f32 v[50:51], {vr(XF+2,2)}, {vr(XF+2,2)}, v[50:51]")
    for r in range(4, 16, 2): a(f"v_pk_add_f32 v[48:49], v[48:49], {vr(XF+r,2)}\nv_pk_fma_f32 v[50:51], {vr(XF+r,2)}, {vr(XF+r,2)}, v[50:51]")
    a("v_add_f32 v48, v48, v49\nv_add_f32 v49, v50, v51")
    for r in range(8): a(f"v_cvt_pk_bf16_f32 v{40+r}, v{XF+2*r}, v{XF+2*r+1}")
    a("v_permlane32_swap_b32 v48, v49\nv_add_f32 v48, v48, v49")
    vm.op(f"buffer_store_dword v48, v6, {S['ws']}, s54 offen{RG()}")
    vm.op(f"buffer_store_dwordx4 v[40:43], v{vL16}, {S['ws']}, s57 offen sc1"); vm.op(f"buffer_store_dwordx4 v[44:47], v{vL16}, {S['ws']}, s57 offen offset:1024 sc1")
    stamp(a, 11, 2)
    ACC, WF, WH, ST = 16, [80, 92, 104], [116, 120], 240
    vF, vH = [10, 11, 12, 13], [4, 7, 14, 15]
    tr_addr(a, 10, 11, True, 6, False)
    a(f"v_add_u32 v10, {L_W1}, v10\nv_add_u32 v11, 0x8000, v10\nv_add_u32 v12, 0x10000, v10\nv_add_u32 v13, 0x18000, v10")
    half_tr_addr(a, 4, 7)
    a(f"v_add_u32 v4, {L_W1}, v4\nv_add_u32 v7, 0x8000, v4\nv_add_u32 v14, 0x10000, v4\nv_add_u32 v15, 0x18000, v4")
    a(f"v_and_b32 v8, 16, v0\nv_cmp_eq_u32 vcc, 0, v8\nv_mov_b32 v8, 0xeeeeeeee\nv_mov_b32 v5, 0x44444444\nv_cndmask_b32 v8, v8, v5, vcc")
    for r in range(64): a(f"v_mov_b32 v{ACC+r}, 0")
    poll_addr(a, 5, LF())
    set_flag_rg(a, vm, "s56", 9)
    stamp(a, 9); stamp(a, 12, 2)
    poll(a, vm, "0xffff", 5, "s55", 125, OPT.get("fx", 2))
    stamp(a, 10); stamp(a, 0, 3)
    a(f"s_lshl_b32 s52, s{sT32}, 15\ns_add_u32 s52, s52, {hex(WS_Y)}")
    a(f"s_lshl_b32 s54, s{sT32}, 8\ns_add_u32 s54, s54, {hex(WS_STATS)}")
    YL = rot_loads(a, vm, 52, AF, "y")
    for _ in range(4): vm.op(*next(YL)[1])
    for q in range(16):
        vm.op(f"buffer_load_dword v{ST+q}, v6, {S['ws']}, s54 offen sc1", "st"); a("s_add_u32 s54, s54, 16384")
    for _ in range(8): vm.op(*next(YL)[1])
    lg.reset()
    def rdW1(ks): return [(x, ("w", ks)) for x in w1_reads(ks//2, ks & 1, WF[ks % 3], vF)]
    for x in rdW1(0) + rdW1(1): lg.op(*x)
    TT, UB = 128, 184
    side = {}
    side[(6, 0)] = ["v_mov_b32 v125, v124", f"v_bfe_u32 v5, v{vLANE}, 5, 1", "v_lshlrev_b32 v9, 7, v5", "v_permlane32_swap_b32 v124, v125"]
    side[(6, 1)] = [f"v_add_u32 v9, {L_UW}, v9", f"v_mul_f32 v124, {hx(1/512)}, v124", f"v_mul_f32 v125, {hx(1/512)}, v125", "v_fma_f32 v125, -v124, v124, v125"]
    side[(6, 2)] = ["v_max_f32 v125, 0, v125", f"v_add_f32 v125, {hx(1e-5)}, v125", "v_rsq_f32 v125, v125"]
    side[(7, 0)] = [f"v_mul_f32 v5, {hx(-LOG2E)}, v125", "v_mul_f32 v125, v5, v124", "v_sub_f32 v125, 0, v125", "v_mov_b32 v124, v5"]
    side[(7, 1)] = [f"s_lshl_b32 s55, s{sT32}, 4", f"s_add_u32 s55, s55, s{sC}", f"s_lshr_b32 s50, s55, {LF()}", "s_lshl_b32 s50, s50, 7", f"s_and_b32 s56, s55, {(1 << LF()) - 1}"]
    side[(7, 2)] = ["s_lshl_b32 s56, s56, 2", "s_add_u32 s56, s56, s50", f"s_add_u32 s56, s56, {hex(WS_FH)}"]
    side[(12, 0)] = [f"s_mul_i32 s52, s{sT32}, {112*1024}", f"s_mul_i32 s53, s{sC}, 7168", "s_add_u32 s52, s52, s53", f"s_add_u32 s52, s52, {hex(WS_H)}"]
    if ONEWAY(): side[(13, 2)] = ["uwrd"]; side[(15, 1)] = ["uwck"]
    for m in range(7):
        ks = 16 + 2*m
        rw = lambda j: f"ds_read_b128 {vr(TT+4*j,4)}, v9 offset:{256*(j//4)+64+16*(j%4)}"
        ru = lambda j: f"ds_read_b128 {vr(UB+4*(j&1),4)}, v9 offset:{256*(j//4)+16*(j%4)}"
        fm = lambda j: [f"v_fmac_f32 v{TT+4*j+r}, v125, v{UB+4*(j&1)+r}" for r in range(4)]
        side.setdefault((ks+2, 1), []).extend([f"wait{ks+1}"] + fm(2*m))
        side.setdefault((ks+2, 2), []).extend(fm(2*m+1))
        side.setdefault((ks, 2), []).append(rw(2*m))
        side.setdefault((ks+1, 2), []).extend([ru(2*m), rw(2*m+1), ru(2*m+1)])
    for kp in range(16):
        for e in range(2):
            ks = 2*kp + e
            R = rdW1(ks+2) if ks + 2 < 32 else []
            if e == 0: R = [(x, ("h", kp)) for x in w1_half_reads(kp, WH[kp & 1], vH)] + R
            lg.wait(("w", ks)); vm.wait(("y", ks))
            for nt in range(3):
                a(f"v_mfma_f32_32x32x16_bf16 {vr(ACC+16*nt,16)}, {vr(WF[ks%3]+4*nt,4)}, {vr(AF+4*ks,4)}, {vr(ACC+16*nt,16)}")
                [lg.op(*x) for x in R[3*nt:3*nt+3]]
                if nt >= 1:
                    j = 12 + 2*ks + nt - 1
                    if j < 32: vm.op(*next(YL)[1])
                if ks in (4, 5):
                    for q in (((0, 8), (1, 9), (2, 10)), ((3, 11), (4, 12), (5, 13)), ((6, 14), (7, 15)))[nt] if ks == 4 else (((0, 4), (1, 5), (2, 6), (3, 7)), ((0, 2), (1, 3)), ())[nt]:
                        a(f"v_add_f32 v{ST+q[0]}, v{ST+q[0]}, v{ST+q[1]}")
                    if ks == 5 and nt == 2: a(f"v_add_f32 v124, v{ST}, v{ST+1}")
                for x in side.get((ks, nt), []):
                    if x.startswith("ds_"): lg.op(x, ("u", ks))
                    elif x.startswith("wait"): lg.wait(("u", int(x[4:])))
                    elif x == "uwrd": lg.op(f"ds_read_b32 v5, v126 offset:{4*CNT['uw']}", "cnt")
                    elif x == "uwck": lg.wait("cnt"); await_(a, "uw", 126, 5, True)
                    else: a(x)
            if e == 1:
                lg.wait(("h", kp))
                a(f"v_smfmac_f32_32x32x32_bf16 {vr(ACC+48,16)}, {vr(WH[kp&1],4)}, {vr(AF+8*kp,8)}, v8")
                if kp % 2 == 0 or kp == 15: stamp(a, 1 + (kp+1)//2, 3)
                if kp == OPT.get("b6b", 4): sig(a, "b6b", 126, 127, lg)
    sig(a, "b7", 126, 127)
    stamp(a, 11)
    E = 80
    for r in range(8): a(f"v_add_f32 v{ACC+48+r}, v{ACC+48+r}, v{ACC+56+r}")
    for nt in range(4):
        t = TT + 16*nt; acc = ACC + 16*nt; n = 16 if nt < 3 else 8
        for r in range(0, n, 2): a(f"v_pk_fma_f32 {vr(acc+r,2)}, {vr(acc+r,2)}, v[124:125], {vr(t+r,2)} op_sel:[0,0,0] op_sel_hi:[1,0,1]")
        for r in range(n): a(f"v_exp_f32 v{E+r}, v{acc+r}")
        for r in range(0, n, 2): a(f"v_pk_add_f32 {vr(E+r,2)}, {vr(E+r,2)}, 1.0 op_sel_hi:[1,0]")
        for r in range(n): a(f"v_rcp_f32 v{E+r}, v{E+r}")
        for r in range(0, n, 2): a(f"v_pk_mul_f32 {vr(acc+r,2)}, {vr(acc+r,2)}, {vr(E+r,2)}")
        o = 208 + 8*nt
        for r in range(n//2): a(f"v_cvt_pk_bf16_f32 v{o+r}, v{acc+2*r}, v{acc+2*r+1}")
        if nt == 2: a("s_add_u32 s52, s52, 4096")
        vm.op(f"buffer_store_dwordx4 {vr(o,4)}, v{vL16}, {S['ws']}, s52 offen offset:{2048*(nt&1)}{RG()}")
        if nt < 3: vm.op(f"buffer_store_dwordx4 {vr(o+4,4)}, v{vL16}, {S['ws']}, s52 offen offset:{2048*(nt&1)+1024}{RG()}")
        stamp(a, 10 + nt, 3)
        if nt == 1: vm.q = [("ha", 0)]*len(vm.q)
        if nt == OPT.get("fa", 2) and OPT.get("h2", 0):
            vm.wait(("ha", 0))
            a(f"v_mov_b32 v9, s{sTAG}\ns_mov_b64 exec, 1")
            vm.op(f"buffer_store_dword v9, v{vZ}, {S['ws']}, s56 offen sc1")
            a(f"s_mov_b64 exec, -1\ns_add_u32 s56, s56, {FH_B}")
    stamp(a, 14, 3)
    ACC, WF, GB, XR, NR = [16, 32], [48, 56, 88], 64, 80, 32
    sTT, sKH, sT5, sF5 = 54, 55, 57, 58
    a(f"s_and_b32 s{sTT}, s{sW}, 1\ns_lshr_b32 s{sKH}, s{sW}, 1")
    a(f"s_lshr_b32 s52, s{sC}, 3\ns_lshl_b32 s52, s52, 1\ns_lshl_b32 s{sT5}, s{sTB}, 2\ns_add_u32 s{sT5}, s{sT5}, s52\ns_add_u32 s{sT5}, s{sT5}, s{sTT}")
    a(f"s_and_b32 s{sF5}, s{sC}, 7\ns_lshl_b32 s{sF5}, s{sF5}, 1\ns_add_u32 s{sF5}, s{sF5}, s{sKH}")
    tr_addr(a, 10, 11, True, 7, True)
    a(f"s_lshl_b32 s52, s{sKH}, 6\nv_xor_b32 v10, s52, v10\ns_lshl_b32 s52, s{sKH}, 13\nv_add_u32 v10, s52, v10\nv_xor_b32 v11, 64, v10")
    for r in range(32): a(f"v_mov_b32 v{16+r}, 0")
    poll_addr(a, 5, LF())
    a(f"s_lshl_b32 s52, s{sT5}, {11-LF()}\ns_lshl_b32 s53, s{sKH}, {10-LF()}\ns_add_u32 s52, s52, s53\ns_add_u32 s52, s52, {hex(WS_FH)}")
    a(f"s_lshl_b32 s61, s{sT5}, 15\ns_lshl_b32 s59, s{sF5}, 11\ns_add_u32 s61, s61, s59\ns_add_u32 s61, s61, {hex(WS_X1)}")
    H2 = OPT.get("h2", 0)
    a(f"s_add_u32 s62, s52, {FH_B}")
    if H2:
        a(f"s_mov_b64 exec, 0xff")
        vm.op(f"buffer_load_dword v6, v5, {S['ws']}, s52 offen sc1", "fa")
        a("s_mov_b64 exec, -1")
        set_flag_rg(a, vm, "s56", 9)
        stamp(a, 12)
        a(f"s_mov_b64 exec, 0xff\nv_cmp_ne_u32 vcc, s{sTAG}, v6\ns_mov_b64 exec, -1\ns_cbranch_vccz La_haok")
        poll(a, vm, "0xff", 5, "s52", 6, 2)
        a("La_haok:")
        vm.q = [None]
    else:
        set_flag_rg(a, vm, "s56", 9)
        stamp(a, 12)
        poll(a, vm, "0xff", 5, "s52", 6, OPT.get("fh", 2))
    stamp(a, 13); stamp(a, 0, 4)
    a(f"s_mul_i32 s52, s{sT5}, {112*1024}\ns_mul_i32 s53, s{sKH}, {56*1024}\ns_add_u32 s52, s52, s53\ns_add_u32 s52, s52, {hex(WS_H)}")
    def ldH(ks):
        p, j = h_pj(ks)
        if j in (0, 4): a(f"s_add_u32 s53, s{sR}, {p}\ns_and_b32 s53, s53, 7\ns_mul_i32 s53, s53, 7168\ns_add_u32 s53, s53, s52" + ("\ns_add_u32 s53, s53, 4096" if j else ""))
        vm.op(f"buffer_load_dwordx4 {vr(AF+4*(ks%NR),4)}, v{vL16}, {S['ws']}, s53 offen offset:{1024*(j%4)}{RL()}", ("h", ks))
    PF = OPT.get('pf5', 12)
    for ks in range(PF):
        ldH(ks)
        if ks == 7: a("s_barrier")
    slot = lambda s: s if s < 9 else s - 9
    def rdW2(ks):
        s, k = ks // 4, ks % 4
        return [(f"ds_read_b64_tr_b16 {vr(WF[ks%3]+4*n+2*st,2)}, v{12+n} offset:{2048*k+1024*st}", ("w", ks)) for n in range(2) for st in range(2)]
    def setslot(s): a(f"v_add_u32 v12, {16384*slot(s)}, v10\nv_add_u32 v13, {16384*slot(s)}, v11")
    lg.reset(); setslot(0)
    for x in rdW2(0) + rdW2(1): lg.op(*x)
    for ks in range(56):
        n = ks + 2
        lg.wait(("w", ks))
        if ks in (11, 19): sig(a, "b9" if ks == 11 else "b10", 126, 127, lg)
        if ONEWAY() and n + 2 in (36, 48): lg.op(f"ds_read_b32 v125, v126 offset:{4*CNT['b11' if n + 2 == 36 else 'b12']}", "cnt")
        if n < 56 and n % 4 == 0:
            if n // 4 in (9, 12):
                lg.wait("cnt"); await_(a, "b11" if n == 36 else "b12", 126, 125, True)
            setslot(n // 4)
        vm.wait(("h", ks))
        a(f"v_mfma_f32_32x32x16_bf16 {vr(ACC[0],16)}, {vr(WF[ks%3],4)}, {vr(AF+4*(ks%NR),4)}, {vr(ACC[0],16)}")
        if n < 56: [lg.op(*x) for x in rdW2(n)]
        a(f"v_mfma_f32_32x32x16_bf16 {vr(ACC[1],16)}, {vr(WF[ks%3]+4,4)}, {vr(AF+4*(ks%NR),4)}, {vr(ACC[1],16)}")
        if H2 and ks == OPT.get("fb", 10):
            a("s_mov_b64 exec, 0xff"); vm.op(f"buffer_load_dword v6, v5, {S['ws']}, s62 offen sc1", "fb"); a("s_mov_b64 exec, -1")
        if H2 and ks + PF == 32:
            vm.wait("fb")
            a(f"s_mov_b64 exec, 0xff\nv_cmp_ne_u32 vcc, s{sTAG}, v6\ns_mov_b64 exec, -1\ns_cbranch_vccz La_hbok")
            q0 = list(vm.q)
            poll(a, vm, "0xff", 5, "s62", 6, 0)
            vm.q = q0
            a("La_hbok:")
        if ks + PF < 56: ldH(ks + PF)
        if ks == 44:
            for q in range(2): vm.op(f"buffer_load_dwordx4 {vr(XR+4*q,4)}, v{vL16}, {S['ws']}, s61 offen offset:{1024*q} sc1", "x1")
        if ks % 4 == 3: stamp(a, 1 + ks//4, 4)
    stamp(a, 14)
    vm.wait("x1")
    a(f"s_xor_b32 s52, s{sW}, 2\ns_lshl_b32 s52, s52, 12\ns_add_u32 s52, s52, {16384*5}\nv_add_u32 v5, s52, v{vL16}")
    a(f"s_lshl_b32 s52, s{sW}, 12\ns_add_u32 s52, s52, {16384*5}\nv_add_u32 v6, s52, v{vL16}")
    a(f"v_bfe_u32 v9, v{vLANE}, 5, 1\nv_lshlrev_b32 v7, 4, v9\ns_lshl_b32 s52, s{sKH}, 7\ns_add_u32 s52, s52, {L_GB}\nv_add_u32 v7, s52, v7")
    for q in range(4): a(f"ds_read_b128 {vr(GB+4*q,4)}, v7 offset:{32*q}")
    XF = 96
    for r in range(8): a(f"v_lshlrev_b32 v{XF+2*r}, 16, v{XR+r}\nv_and_b32 v{XF+2*r+1}, 0xffff0000, v{XR+r}")
    for q in range(4): a(f"ds_write_b128 v5, {vr(ACC[1]+4*q,4)} offset:{1024*q}")
    a("s_waitcnt lgkmcnt(0)\ns_barrier")
    for q in range(4): a(f"ds_read_b128 {vr(ACC[1]+4*q,4)}, v6 offset:{1024*q}")
    a(f"v_and_b32 v7, 31, v{vLANE}\nv_lshlrev_b32 v8, 10, v7\nv_lshl_add_u32 v8, v9, 4, v8")
    a(f"s_lshl_b32 s52, s{sT5}, 15\ns_lshl_b32 s53, s{sF5}, 6\ns_add_u32 s52, s52, s53")
    for q in range(4):
        a(f"s_waitcnt lgkmcnt({3-q})")
        for r in range(4*q, 4*q+4): a(f"v_add_f32 v{ACC[0]+r}, v{ACC[0]+r}, v{ACC[1]+r}")
        for r in range(4*q, 4*q+4): a(f"v_fmac_f32 v{XF+r}, v{ACC[0]+r}, v{GB+r}")
    for r in range(8): a(f"v_cvt_pk_bf16_f32 v{64+r}, v{XF+2*r}, v{XF+2*r+1}")
    for p in range(2):
        a(f"v_permlane32_swap_b32 v{64+4*p}, v{64+4*p+2}\nv_permlane32_swap_b32 v{64+4*p+1}, v{64+4*p+3}")
        vm.op(f"buffer_store_dwordx4 {vr(64+4*p,4)}, v8, {S['out']}, s52 offen offset:{32*p}{['', ' sc1', ' nt', ' sc0 sc1', ' sc1 nt'][OPT.get('osc', 0)]}")

def wq_loop(a):
    a(f"v_lshrrev_b32 v4, 2, v{vLANE}\nv_mul_u32_u24 v4, 3072, v4\nv_and_b32 v5, 3, v{vLANE}\nv_lshl_add_u32 v4, v5, 4, v4")
    a(f"s_lshl_b32 s55, s{sR}, 2\ns_add_u32 s55, s55, s67\ns_lshl_b32 s53, s67, 10\ns_add_u32 s53, s53, {L_WQ}\ns_lshl_b32 s56, s{sC}, 6\ns_mov_b32 s51, 8\nLh_ql:")
    a(f"s_and_b32 s52, s55, 31\ns_mul_i32 s52, s52, {16*3072}\ns_mov_b32 m0, s53\ns_add_u32 s52, s52, s56")
    a(f"buffer_load_dwordx4 v4, {S['wqkv']}, s52 offen lds")
    a(f"s_add_u32 s55, s55, 4\ns_add_u32 s53, s53, 4096\ns_sub_u32 s51, s51, 1\ns_cmp_lg_u32 s51, 0\ns_cbranch_scc1 Lh_ql")

def helper(a):
    vm = Track(a, "vmcnt", 63)
    sH, sCol = 67, 66
    a("Lh_b2:")
    a("s_waitcnt vmcnt(0) lgkmcnt(0)\ns_barrier")
    if OPT.get("st", 7) & 2:
        a(f"s_lshl_b32 s57, s2, 2\ns_add_u32 s57, s57, s{sH}\ns_lshl_b32 s58, s57, 9\ns_mul_i32 s57, s57, {5*128}\ns_add_u32 s57, s57, {9216*128}")
        for n in range(3): a(stouch("w1", 57, n))
    a("s_barrier")
    wq_loop(a)
    if OPT.get("st", 7) & 2:
        for n in range(3, 5): a(stouch("w1", 57, n))
        a(stouch("wo", 58, 0))
    a("s_waitcnt vmcnt(0)")
    if OPT.get("touch", 0) == 1: mall_touch(a)
    stamp(a, 2)
    a("s_barrier")
    if OPT.get("st", 7) & 2:
        for n in range(1, 4): a(stouch("wo", 58, n))
    early, late = att_setup()
    for x in early + late: a(x)
    if OPT.get("hearly", 1):
        att_first(a, vm, OPT.get("fkh", 24))
        if OPT.get("qj", 1): q_join(a)
        else: a("s_barrier")
        att_q(a)
    else:
        a("s_barrier")
        att_q(a)
        att_first(a, vm, OPT.get("fk", 0))

def helper2(a):
    vm = Track(a, "vmcnt", 63); lg = Track(a, "lgkmcnt", 15)
    sH = 67
    stamp(a, 6, 8)
    set_flag(a, vm, "s64", vZ, 8, RO())
    stamp(a, 7); stamp(a, 7, 8)
    vF, vH = 13, 14
    a(f"s_sub_u32 s52, s{sI}, 8\ns_cmp_ge_u32 s52, 16\ns_cbranch_scc1 Lh_nomod2")
    mod_partial(a, vm, vMOD); mod_join(a, vm, 66, "Lh_nomod2")
    a("Lh_nomod2:")
    def w2_touch():
        a(f"s_mul_i32 s52, s{sI}, 7\ns_lshl_b32 s53, s{sH}, 1\ns_add_u32 s52, s52, s53\ns_lshl_b32 s52, s52, 13\nv_lshlrev_b32 v5, 7, v{vLANE}")
        a(f"buffer_load_dword v248, v5, {S['w2']}, s52 offen\ns_add_u32 s52, s52, 8192\nbuffer_load_dword v248, v5, {S['w2']}, s52 offen")
    if OPT.get("w2s") == 1: w2_touch()
    sig_regs(a, 12, 13)
    await_(a, "b5b", 12, 14)
    a(f"v_lshlrev_b32 v4, 5, v{vLANE}\ns_lshl_b32 s52, s{sH}, 11\ns_add_u32 s52, s52, 4096")
    gran_poll(a, vm, [f"buffer_load_dwordx4 v[16:19], v4, {S['ws']}, s52 offen sc1", f"buffer_load_dwordx4 v[20:23], v4, {S['ws']}, s52 offen offset:16 sc1"], [16, 20])
    for j, r in enumerate((16, 18, 20, 22)): a(f"v_lshlrev_b32 v{24+2*j}, 16, v{r}\nv_and_b32 v{25+2*j}, 0xffff0000, v{r}")
    a(f"s_cmp_eq_u32 s{sH}, 1\ns_cbranch_scc1 Lh_tabg")
    a(f"s_cmp_eq_u32 s{sH}, 3\ns_cselect_b32 s53, {hx(-1/LOG2E)}, 1.0")
    a(f"s_lshl_b32 s54, s{sC}, 2\ns_and_b32 s55, s{sC}, 7\ns_lshl_b32 s55, s55, 3\ns_lshl_b32 s56, s{sH}, 6\ns_cmp_eq_u32 s{sH}, 3\ns_cselect_b32 s54, s55, s54\ns_cselect_b32 s55, 8, 4")
    a(f"s_cselect_b32 s56, 256, s56\ns_add_u32 s56, s56, {L_TAB}")
    for r in range(8): a(f"v_mul_f32 v{24+r}, s53, v{24+r}")
    a(f"v_subrev_u32 v5, s54, v{vLANE}\nv_cmp_gt_u32 vcc, s55, v5\nv_lshlrev_b32 v5, 5, v5\nv_add_u32 v5, s56, v5")
    a("s_and_saveexec_b64 s[56:57], vcc\nds_write_b128 v5, v[24:27]\nds_write_b128 v5, v[28:31] offset:16\ns_mov_b64 exec, -1")
    a(f"s_cmp_lg_u32 s{sH}, 2\ns_cbranch_scc1 Lh_tabd")
    a("Lh_tabg:")
    a(f"v_lshrrev_b32 v5, 1, v{vLANE}\ns_lshl_b32 s53, s{sR}, 2\nv_subrev_u32 v5, s53, v5\nv_and_b32 v5, 31, v5\nv_lshlrev_b32 v5, 6, v5\nv_and_b32 v6, 1, v{vLANE}\nv_lshl_add_u32 v5, v6, 3, v5")
    a(f"s_and_b32 s53, s{sH}, 1\ns_lshl_b32 s53, s53, 4\ns_add_u32 s53, s53, {L_G}\nv_add_u32 v5, s53, v5")
    a("v_mov_b32 v17, v18\nv_mov_b32 v21, v22\nds_write_b64 v5, v[16:17]\nds_write_b64 v5, v[20:21] offset:32")
    a("Lh_tabd:")
    vW2 = 10
    a(f"v_lshrrev_b32 v{vW2}, 3, v{vLANE}\nv_lshlrev_b32 v{vW2}, 10, v{vW2}\nv_bfe_u32 v5, v{vLANE}, 4, 1\nv_lshlrev_b32 v5, 2, v5\nv_xor_b32 v5, v5, v{vLANE}\nv_and_b32 v5, 7, v5\nv_lshl_add_u32 v{vW2}, v5, 4, v{vW2}")
    a(f"s_lshl_b32 s58, s{sR}, 7\ns_lshl_b32 s59, s{sH}, 11")
    def w2_row(s):
        if s < 8:
            a(f"s_add_u32 s61, s{sR}, {s}\ns_and_b32 s61, s61, 7\ns_mul_i32 s61, s61, 7\ns_add_u32 s61, s61, s{sH}")
        else:
            a(f"s_add_u32 s60, s{sH}, {4*(s-8)}\ns_mul_i32 s61, s60, 43\ns_lshr_b32 s61, s61, 7\ns_mul_i32 s62, s61, 3\ns_sub_u32 s60, s60, s62")
            a(f"s_add_u32 s61, s61, s{sR}\ns_and_b32 s61, s61, 7\ns_mul_i32 s61, s61, 7\ns_add_u32 s61, s61, s60\ns_add_u32 s61, s61, 4")
        a("s_lshl_b32 s61, s61, 14\ns_add_u32 s61, s61, s58")
    NREG = OPT.get("nreg", 10); S0 = 14 - NREG; RB = 48
    def w2_reg(s):
        w2_row(s)
        for j in range(4):
            a(f"s_add_u32 s52, s61, {56*(j>>1)*16384+8192*(j&1)}")
            vm.op(f"buffer_load_dwordx4 {vr(RB+16*(s-S0)+4*j,4)}, v{vW2}, {S['w2']}, s52 offen", ("w2r", s))
    EARLY = list(range(14 - OPT.get("early", 0), 14))
    if EARLY:
        a("s_waitcnt lgkmcnt(0)"); await_(a, "b5c", 12, 14)
        for s_ in EARLY: w2_reg(s_)
    if OPT.get("w2s") == 2:
        a("s_waitcnt lgkmcnt(0)"); w2_touch()
    else: a("s_waitcnt lgkmcnt(0)")
    stamp(a, 8)
    a("s_barrier")
    def w2_stage(s, thr=None):
        sl = s if s < 9 else s - 9
        w2_row(s)
        for kh in range(2):
            for hf in range(2):
                a(f"s_add_u32 m0, s59, {16384*sl+8192*kh+1024*hf}\ns_add_u32 s52, s61, {56*kh*16384+8192*hf}")
                vm.op(f"buffer_load_dwordx4 v{vW2}, {S['w2']}, s52 offen lds", ("w2", s))
        if thr: vm.wait(("w2", s-1))
    w2_stage(0); w2_stage(1)
    ACC, GF, WF = 16, 32, 48
    a(f"v_bfe_u32 v9, v{vLANE}, 5, 1\nv_lshlrev_b32 v6, 5, v9\nv_and_b32 v5, 1, v{vLANE}\nv_lshl_add_u32 v6, v5, 4, v6\nv_add_u32 v6, {L_G}, v6")
    for r in range(16): a(f"v_mov_b32 v{ACC+r}, 0")
    GZ = OPT.get("gz", 1)
    for r in range(8): a(f"v_mov_b32 v{GF+r}, 0")
    a("s_mov_b32 s56, 3\ns_mov_b32 s57, 3")
    def rdG(e): a(("s_mov_b64 exec, s[56:57]\n" if GZ else "") + f"ds_read_b128 {vr(GF+4*e,4)}, v6 offset:{64*e}" + ("\ns_mov_b64 exec, -1" if GZ else ""))
    a(f"s_cmp_eq_u32 s{sH}, 3\ns_cbranch_scc1 Lh_uwh")
    tr_addr(a, 4, 5, True, 6, False)
    a(f"s_lshl_b32 s52, s{sH}, 10\ns_add_u32 s52, s52, {L_W1}\nv_add_u32 v4, s52, v4\ns_mov_b32 s51, 16")
    a("Lh_uwl:")
    for e in range(2):
        rdG(e)
        for st in range(2): a(f"ds_read_b64_tr_b16 {vr(WF+4*e+2*st,2)}, v4 offset:{3072*e+512*st}")
    a("v_add_u32 v4, 7168, v4\nv_add_u32 v6, 128, v6\ns_sub_u32 s51, s51, 1")
    for e in range(2):
        a(f"s_waitcnt lgkmcnt({3-3*e})")
        a(f"v_mfma_f32_32x32x16_bf16 {vr(ACC,16)}, {vr(WF+4*e,4)}, {vr(GF+4*e,4)}, {vr(ACC,16)}")
    a("s_cmp_lg_u32 s51, 0\ns_cbranch_scc1 Lh_uwl")
    a("s_branch Lh_uwd")
    a("Lh_uwh:")
    half_tr_addr(a, 4, 5)
    a(f"v_add_u32 v4, {L_W1+6144}, v4\ns_mov_b32 s51, 16")
    a(f"v_and_b32 v8, 16, v0\nv_cmp_eq_u32 vcc, 0, v8\nv_mov_b32 v8, 0xeeeeeeee\nv_mov_b32 v5, 0x44444444\nv_cndmask_b32 v8, v8, v5, vcc")
    a("Lh_uwhl:")
    for e in range(2): rdG(e)
    for st in range(2): a(f"ds_read_b64_tr_b16 {vr(WF+2*st,2)}, v4 offset:{256*st}")
    a("v_add_u32 v4, 7168, v4\nv_add_u32 v6, 128, v6\ns_sub_u32 s51, s51, 1\ns_waitcnt lgkmcnt(0)")
    a(f"v_smfmac_f32_32x32x32_bf16 {vr(ACC,16)}, {vr(WF,4)}, {vr(GF,8)}, v8")
    a("s_cmp_lg_u32 s51, 0\ns_cbranch_scc1 Lh_uwhl")
    a("s_nop 7\ns_nop 3")
    for r in range(8): a(f"v_add_f32 v{ACC+r}, v{ACC+r}, v{ACC+8+r}")
    a("Lh_uwd:")
    a(f"v_and_b32 v5, 1, v{vLANE}\nv_cmp_eq_u32 vcc, 1, v5\nv_mov_b32 v7, {hx(-LOG2E)}\nv_cndmask_b32 v7, 1.0, v7, vcc")
    a(f"v_lshlrev_b32 v6, 7, v9\nv_lshl_add_u32 v6, v5, 6, v6\ns_lshl_b32 s52, s{sH}, 8\ns_add_u32 s52, s52, {L_UW}\nv_add_u32 v6, s52, v6")
    a("s_nop 3")
    for r in range(16): a(f"v_mul_f32 v{ACC+r}, v{ACC+r}, v7")
    a("s_mov_b32 exec_lo, 3\ns_mov_b32 exec_hi, 3")
    for q in range(4): a(f"ds_write_b128 v6, {vr(ACC+4*q,4)} offset:{16*q}")
    a("s_mov_b64 exec, -1\ns_waitcnt lgkmcnt(0)")
    stamp(a, 9)
    if ONEWAY(): sig(a, "uw", 12, 13); await_(a, "uw", 12, 14)
    await_(a, "b6b", 12, 14)
    if OPT.get("e23", 0) and S0 == 4: w2_stage(2); w2_stage(3)
    if not OPT.get("now2"):
        for s in range(S0, 14):
            if s not in EARLY: w2_reg(s)
    await_(a, "b7", 12, 14)
    a(f"v_add_u32 v4, s59, v{vL16}\nv_add_u32 v5, 0x10000, v4\nv_add_u32 v6, 0x20000, v4")
    def w2_put(s):
        sl = s if s < 9 else s - 9
        for j in range(4): a(f"ds_write_b128 v{4 + sl//4}, {vr(RB+16*(s-S0)+4*j,4)} offset:{16384*(sl%4)+8192*(j>>1)+1024*(j&1)}")
    if not (OPT.get('e23', 0) and S0 == 4):
        for s in range(2, S0): w2_stage(s, True)
    for s in range(S0, 9):
        vm.wait(("w2r", s)); w2_put(s)
        if (s - S0) % 2 == 1: a("s_waitcnt lgkmcnt(4)")
    vm.wait_all()
    a("s_waitcnt lgkmcnt(0)")
    stamp(a, 12)
    a("s_barrier")
    if OPT.get("fast") and OPT.get("wb", 1):
        a(f"s_lshl_b32 s52, s{sC}, 2\ns_add_u32 s52, s52, s{sH}\ns_cmp_lg_u32 s52, 0\ns_cbranch_scc1 Lh_nowb\nbuffer_wbl2 sc1\nLh_nowb:")
    await_(a, "b9", 12, 14)
    for s in (9, 10, 11): w2_put(s)
    if ONEWAY(): a("s_waitcnt lgkmcnt(0)"); sig(a, "b11", 12, 13)
    await_(a, "b10", 12, 14)
    for s in (12, 13): w2_put(s)
    if not ONEWAY(): a("s_waitcnt lgkmcnt(8)\ns_barrier")
    a("s_waitcnt lgkmcnt(0)"); sig(a, "b12", 12, 13)
    a("s_barrier")

def diag_out(a, slot):
    if not DIAG: return
    stamp(a, 15)
    a("s_memrealtime s[52:53]\ns_waitcnt vmcnt(0) lgkmcnt(0)")
    a("s_mov_b64 exec, 1")
    for i in range(16):
        a(f"s_sub_u32 s{70+2*i}, s{70+2*i}, s3\nv_mov_b32 v{16+i}, s{70+2*i}")
    a("v_mov_b32 v32, s69\nv_mov_b32 v33, s52" if False else "v_mov_b32 v32, v250\nv_mov_b32 v33, s52")
    a(f"s_lshl_b32 s54, s2, 10\ns_lshl_b32 s55, s{sW}, 7\ns_add_u32 s54, s54, s55\ns_add_u32 s54, s54, {hex(WS_DIAG)}")
    for q in range(4): a(f"buffer_store_dwordx4 {vr(16+4*q,4)}, v{vZ}, {S['ws']}, s54 offen offset:{16*q}")
    a(f"buffer_store_dwordx2 v[32:33], v{vZ}, {S['ws']}, s54 offen offset:64")
    if OPT.get("dbgstart") and slot == 0:
        a(f"s_cmp_ge_u32 s2, 8\ns_cbranch_scc1 Ldiag{slot}\ns_cmp_lg_u32 s{sW}, 0\ns_cbranch_scc1 Ldiag{slot}\ns_lshl_b32 s54, s2, 2\ns_add_u32 s54, s54, 4")
        a(f"v_subrev_u32 v32, s{sTAG}, v250\nv_add_u32 v32, 1000, v32\nbuffer_store_dword v32, v{vZ}, {S['dbg']}, s54 offen")
        a(f"s_getreg_b32 s55, hwreg(HW_REG_XCC_ID)\ns_and_b32 s55, s55, 15\nv_mov_b32 v32, s55\ns_cmp_ge_u32 s2, 7\ns_cbranch_scc1 Ldiag{slot}\nbuffer_store_dword v32, v{vZ}, {S['dbg']}, s54 offen offset:32")
    if OPT.get("dbgout") and slot == 0:
        a(f"s_lshl_b32 s54, s2, 3\ns_add_u32 s54, s54, s{sW}\ns_cmp_lg_u32 s54, {OPT['dbgout']*8}\ns_cbranch_scc1 Ldiag{slot}")
        for i in range(1, 16): a(f"buffer_store_dword v{16+i}, v{vZ}, {S['dbg']}, 0 offen offset:{4*i}")
    a(f"Ldiag{slot}:")

def build():
    a = Asm()
    a("s_cmp_ge_u32 s2, 256\ns_cbranch_scc1 Lend")
    for nm in ("x", "dbg", "wmod", "c", "wqkv", "ws", "wo", "w1", "w2", "out"):
        a(f"s_load_dwordx2 {sr(SRD[nm],2)}, s[0:1], {KA[nm]}")
    if DIAG: a("s_memtime s[70:71]\ns_memrealtime s[72:73]")
    a(f"v_lshrrev_b32 v4, 6, v0\nv_and_b32 v{vLANE}, 63, v0\nv_mov_b32 v{vZ}, 0\nv_readfirstlane_b32 s{sW}, v4\nv_lshlrev_b32 v{vL16}, 4, v{vLANE}")
    a(f"s_getpc_b64 s[56:57]\nLpc:\ns_sub_u32 s56, s56, Lpc-{NAME}_kernel\ns_subb_u32 s57, s57, 0")
    a(f"s_and_b32 s{sX}, s2, 7\ns_lshr_b32 s{sI}, s2, 3\ns_sub_u32 s67, s{sW}, 4")
    a(f"s_cmp_lt_u32 s{sW}, 6\ns_cbranch_scc1 Le_nopf")
    a(f"s_lshl_b32 s58, s{sI}, 1\ns_add_u32 s58, s58, s67\ns_sub_u32 s58, s58, 2\ns_lshl_b32 s58, s58, 10\ns_min_u32 s58, s58, Lcode_end-{NAME}_kernel-1024\nv_add_u32 v5, s58, v{vL16}")
    a("global_load_dwordx4 v[16:19], v5, s[56:57]")
    a("Le_nopf:")
    if OPT.get('m216', 0):
        a(f"s_lshl_b32 s{sTB}, s{sX}, 1\ns_lshr_b32 s52, s{sI}, 4\ns_add_u32 s{sTB}, s{sTB}, s52\ns_and_b32 s{sR}, s{sI}, 7\ns_and_b32 s{sC}, s{sI}, 15")
    else:
        a(f"s_lshr_b32 s{sTB}, s{sX}, 1\ns_lshl_b32 s{sTB}, s{sTB}, 2\ns_lshr_b32 s52, s{sI}, 3\ns_add_u32 s{sTB}, s{sTB}, s52")
        a(f"s_and_b32 s{sR}, s{sI}, 7\ns_and_b32 s{sC}, s{sX}, 1\ns_lshl_b32 s{sC}, s{sC}, 3\ns_add_u32 s{sC}, s{sC}, s{sR}")
    for nm in ("x", "dbg", "wmod", "c", "wqkv", "ws"): a(f"s_mov_b32 s{SRD[nm]+2}, {hex(SZ[nm])}\ns_mov_b32 s{SRD[nm]+3}, 0x20000")
    a("s_memrealtime s[54:55]")
    if DIAG:
        a("s_waitcnt lgkmcnt(0)\ns_mov_b32 s3, s70\ns_mov_b32 s68, s72\nv_mov_b32 v250, s72")
        if OPT.get("rt"): a("s_mov_b32 s3, s72")
        for i in range(16): a(f"s_mov_b32 s{70+2*i}, s3")
    a(f"s_cmp_ge_u32 s{sW}, 4\ns_cbranch_scc1 Lp0_h\ns_cmp_lt_u32 s{sI}, 8\ns_cbranch_scc1 Lp0_mod\ns_cmp_ge_u32 s{sI}, 24\ns_cbranch_scc1 Lp0_warm")
    p0_ln(a)
    a("Lp0_h:")
    p0_helper(a)
    a("Lp0_mod:")
    p0_mod(a)
    a("Lp0_warm:")
    p0_warm(a)
    active(a)
    a("s_branch Latt")
    helper(a)
    a("Latt:")
    vm = Track(a, "vmcnt", 63)
    slow = attention(a, vm)
    a(f"s_cmp_ge_u32 s{sW}, 4\ns_cbranch_scc1 Lhelper2")
    active2(a)
    if OPT.get("hold"):
        a(f"Lhold:\ns_memrealtime s[52:53]\ns_waitcnt lgkmcnt(0)\ns_sub_u32 s52, s52, s{sTAG}\ns_cmp_lt_u32 s52, {OPT['hold']}\ns_cbranch_scc1 Lhold")
    if DIAG: a("v_mov_b32 v250, s68")
    diag_out(a, 0)
    a("s_endpgm")
    a("Lhelper2:")
    helper2(a)
    diag_out(a, 1)
    a("s_endpgm")
    slow(a)
    a("Lend:")
    return a

def emit(a):
    hdr = open(f"cdna_kernels/{NAME}.s.ref").read().split("\n")
    out = [l for l in hdr if l.startswith(";") and "@launch" not in l and "Override launch" not in l and "grid=ceil" not in l]
    out.append(f"; @launch grid=(256,1,1) block=(512,1,1) lds={LDS_SIZE}")
    a.fix()
    out += ['.amdgcn_target "amdgcn-amd-amdhsa--gfx950"', ".text", f".globl {NAME}_kernel", ".p2align 8", f".type {NAME}_kernel,@function", f"{NAME}_kernel:",
            a.text(), "    s_endpgm", "Lcode_end:", '.section .rodata,"a"', ".p2align 6", f".amdhsa_kernel {NAME}_kernel", "  .amdhsa_next_free_vgpr 256",
            "  .amdhsa_next_free_sgpr 102", "  .amdhsa_accum_offset 256", "  .amdhsa_group_segment_fixed_size 0", "  .amdhsa_kernarg_size 88",
            "  .amdhsa_user_sgpr_count 2", "  .amdhsa_user_sgpr_kernarg_segment_ptr 1", "  .amdhsa_system_sgpr_workgroup_id_x 1",
            "  .amdhsa_float_denorm_mode_32 3", ".end_amdhsa_kernel"]
    return "\n".join(out) + "\n"

if __name__ == "__main__":
    import argparse
    p = argparse.ArgumentParser(); p.add_argument("out"); p.add_argument("--diag", action="store_true"); p.add_argument("--opt", default="")
    args = p.parse_args()
    DIAG = args.diag
    for o in args.opt.split(","):
        if o: OPT[o.split("=")[0]] = int(o.split("=")[1]) if "=" in o else 1
    set_nring(OPT.get('nring', 4))
    open(args.out, "w").write(emit(build()))
```

```python
import sys, struct
from asmlib import *

NAME = "adaLN_cond__softmax_full_mha__dense_activation_silu__prompt"
WS_MODG = 0x0
WS_STATS = 0x10000
WS_FXN, WS_FKV, WS_FO, WS_FX1, WS_FH = 0x50000, 0x52000, 0x80000, 0xC0000, 0xE0000
WS_FXC = 0x58000
sLOC = 66
FH_B = 0x8000
WS_XN, WS_K, WS_V, WS_O, WS_X1, WS_Y, WS_H = 0x200000, 0x400000, 0x600000, 0x800000, 0xA00000, 0xC00000, 0xE00000
WS_DIAG = 0x1600000
WS_SIZE = 0x1700000
KA = dict(x=0, wqkv=8, wo=16, w1=32, w2=40, c=48, wmod=56, out=64, dbg=72, ws=80)
SZ = dict(x=2048*512*2, wqkv=512*1536*2, wo=512*512*2, w1=512*1792*2, w2=1792*512*2, c=1024, wmod=512*3072*2, out=2048*512*2, dbg=256, ws=WS_SIZE)
SRD = dict(x=4, wqkv=8, wo=12, w1=16, w2=20, c=24, wmod=28, out=32, dbg=36, ws=40)
S = {k: sr(v, 4) for k, v in SRD.items()}
sW, sTB, sC, sTAG, sI, sX, sR = 44, 45, 46, 47, 48, 49, 69
SPIN = 20000
def f2u(f): return struct.unpack("<I", struct.pack("<f", f))[0]
def hx(f): return hex(f2u(f))
LOG2E = 1.4426950408889634
DIAG = False
OPT = {}
L_WKV, L_WQ = 0, 64*1024
L_DG = 96*1024
L_SA = 112*1024
L_QX = 144*1024
L_WO = 0
L_W1 = 32*1024
L_RED = 88*1024
L_TAB = 156*1024
L_GA, L_G2, L_GB, L_SCR, L_UW, L_G = L_TAB, L_TAB+128, L_TAB+256, L_TAB+512, L_TAB+1024, L_TAB+2048
LDS_SIZE = 160*1024

def stamp(a, i, grp=0):
    if DIAG and (OPT.get("focus", 0) == grp or i == 15): a(f"{'s_memrealtime' if OPT.get('rt') else 's_memtime'} s[{70+2*i}:{71+2*i}]")

_uid = [0]
def poll(a, vm, mask, vaddr, soff, vt, first=0):
    _uid[0] += 1; n = _uid[0]
    a(f"s_mov_b64 exec, {mask}\ns_mov_b32 s50, {SPIN}")
    if first: a(f"s_sleep {first}")
    a(f"Lpoll{n}:\nbuffer_load_dword v{vt}, v{vaddr}, {S['ws']}, {soff} offen sc1\ns_waitcnt vmcnt(0)\nv_cmp_ne_u32 vcc, s{sTAG}, v{vt}\ns_sub_u32 s50, s50, 1\ns_cbranch_vccz Lpolld{n}")
    if OPT.get("psleep", 0): a(f"s_sleep {OPT.get('psleep', 0)}")
    a(f"s_cmp_lg_u32 s50, 0\ns_cbranch_scc1 Lpoll{n}")
    a(f"Lpolld{n}:\ns_mov_b64 exec, -1")
    vm.reset()

def set_flag_rg(a, vm, soff, vt):
    _uid[0] += 1; n = _uid[0]
    vm.wait_all()
    a(f"v_mov_b32 v{vt}, s{sTAG}\ns_mov_b64 exec, 1\ns_cmp_lg_u32 s{sLOC}, 0\ns_cbranch_scc1 Lfl{n}")
    a(f"buffer_store_dword v{vt}, v{vZ}, {S['ws']}, {soff} offen sc1\ns_mov_b64 exec, -1\ns_sleep {OPT.get('fr', 16)}\ns_branch Lfl{n}d\nLfl{n}:")
    vm.op(f"buffer_store_dword v{vt}, v{vZ}, {S['ws']}, {soff} offen")
    a(f"s_mov_b64 exec, -1\nLfl{n}d:")

def LF(): return OPT.get("lf", 3)
def flag_off(a, d, f, base, lf=3):
    a(f"s_lshr_b32 s50, s{f}, {lf}\ns_lshl_b32 s50, s50, 7\ns_and_b32 s{d}, s{f}, {(1 << lf) - 1}\ns_lshl_b32 s{d}, s{d}, 2\ns_add_u32 s{d}, s{d}, s50\ns_add_u32 s{d}, s{d}, {hex(base)}")

RG = lambda: '' if OPT.get('fast') else ' sc1'
RF = lambda: '' if (OPT.get('fast') or OPT.get('fastf')) else ' sc1'
RO = lambda: '' if (OPT.get('fast') and OPT.get('m216')) else ' sc1'
RL = lambda: '' if OPT.get('plainld') else ' sc1'
def set_flag(a, vm, soff, vz, vt, fl=' sc1'):
    vm.wait_all()
    a(f"v_mov_b32 v{vt}, s{sTAG}\ns_mov_b64 exec, 1")
    vm.op(f"buffer_store_dword v{vt}, v{vz}, {S['ws']}, {soff} offen{fl}")
    a("s_mov_b64 exec, -1")

def rne_bf16(a, d, s):
    a(f"v_cvt_pk_bf16_f32 v{d}, v{s}, v{s}\nv_lshlrev_b32 v{d}, 16, v{d}")

def tr_addr(a, d, t, perm, rowbytes_log2, swz):
    a(f"v_bfe_u32 v{d}, v0, 2, 2\nv_bfe_u32 v{t}, v0, 5, 1")
    a(f"v_lshl_add_u32 v{d}, v{t}, {2 if perm else 3}, v{d}\nv_lshlrev_b32 v{d}, {rowbytes_log2}, v{d}")
    a(f"v_bfe_u32 v{t}, v0, 4, 1\nv_lshl_add_u32 v{d}, v{t}, 5, v{d}")
    a(f"v_and_b32 v{t}, 3, v0\nv_lshl_add_u32 v{d}, v{t}, 3, v{d}")
    if swz: a(f"v_bfe_u32 v{t}, v0, 3, 1\nv_lshl_add_u32 v{d}, v{t}, 6, v{d}")

def half_tr_addr(a, d, t):
    a(f"v_bfe_u32 v{d}, v0, 2, 1")
    a(f"v_bfe_u32 v{t}, v0, 4, 1\nv_lshl_add_u32 v{d}, v{t}, 1, v{d}")
    a(f"v_bfe_u32 v{t}, v0, 3, 1\nv_lshl_add_u32 v{d}, v{t}, 2, v{d}")
    a(f"v_bfe_u32 v{t}, v0, 5, 1\nv_lshl_add_u32 v{d}, v{t}, 4, v{d}")
    a(f"v_lshlrev_b32 v{d}, 5, v{d}\nv_and_b32 v{t}, 3, v0\nv_lshl_add_u32 v{d}, v{t}, 3, v{d}")

vLANE, vL16, vZ = 1, 2, 3
def poll_addr(a, d, lf=3):
    a(f"v_lshrrev_b32 v{d}, {lf}, v{vLANE}\nv_lshlrev_b32 v{d}, 5, v{d}\nv_and_or_b32 v{d}, v{vLANE}, {(1 << lf) - 1}, v{d}\nv_lshlrev_b32 v{d}, 2, v{d}")

def mod_issue(a, vm, sCol, B=16, T=4):
    a(f"v_bfe_u32 v{T}, v0, 1, 7\nv_and_b32 v{T+1}, 1, v0")
    a(f"v_mul_u32_u24 v{T+2}, 6144, v{T}\nv_lshl_add_u32 v{T+2}, v{T+1}, 4, v{T+2}\nv_lshlrev_b32 v{T+3}, 1, v{T}")
    a(f"s_lshl_b32 s52, s{sCol}, 1")
    for m in range(4):
        vm.op(f"buffer_load_dwordx4 {vr(B+4*m,4)}, v{T+2}, {S['wmod']}, s52 offen", "mod")
        if m < 3: a(f"s_add_u32 s52, s52, {128*6144}")
    for m in range(4): vm.op(f"buffer_load_ushort v{B+16+m}, v{T+3}, {S['c']}, 0 offen offset:{256*m}", "mod")

def mod_partial(a, vm, B=16):
    vm.wait("mod")
    C, F, T, A = B+16, B+24, B+20, B+32
    for m in range(4): a(f"v_lshlrev_b32 v{C+m}, 16, v{C+m}")
    for m in range(4): a(f"v_mul_f32 v{T+m}, {hx(-LOG2E)}, v{C+m}")
    for m in range(4): a(f"v_exp_f32 v{T+m}, v{T+m}")
    for m in range(4): a(f"v_add_f32 v{T+m}, 1.0, v{T+m}")
    for m in range(4): a(f"v_rcp_f32 v{T+m}, v{T+m}")
    for m in range(4): a(f"v_mul_f32 v{C+m}, v{C+m}, v{T+m}")
    for m in range(4): a(f"v_cvt_pk_bf16_f32 v{C+m}, v{C+m}, v{C+m}")
    for m in range(4): a(f"v_lshlrev_b32 v{C+m}, 16, v{C+m}")
    for m in range(4):
        for r in range(4):
            a(f"v_lshlrev_b32 v{F+2*r}, 16, v{B+4*m+r}\nv_and_b32 v{F+2*r+1}, 0xffff0000, v{B+4*m+r}")
        for j in range(8):
            a(f"v_mul_f32 v{A+j}, v{F+j}, v{C}" if m == 0 else f"v_fmac_f32 v{A+j}, v{F+j}, v{C+m}")
    for j in range(4): a(f"v_permlane32_swap_b32 v{A+j}, v{A+4+j}")
    for j in range(4): a(f"v_add_f32 v{A+j}, v{A+j}, v{A+4+j}")
    for j in range(2): a(f"v_permlane16_swap_b32 v{A+j}, v{A+2+j}")
    for j in range(2): a(f"v_add_f32 v{A+j}, v{A+j}, v{A+2+j}")
    for r in (8, 4, 2):
        for j in range(2): a(f"v_add_f32_dpp v{A+j}, v{A+j}, v{A+j} row_ror:{r} row_mask:0xf bank_mask:0xf")
    a("v_bfe_u32 v8, v0, 6, 2\nv_lshlrev_b32 v8, 6, v8\nv_and_b32 v9, 1, v0\nv_lshl_add_u32 v8, v9, 5, v8")
    a("v_bfe_u32 v9, v0, 4, 1\nv_lshl_add_u32 v8, v9, 3, v8\nv_bfe_u32 v9, v0, 5, 1\nv_lshl_add_u32 v8, v9, 4, v8")
    a(f"v_add_u32 v8, {L_SCR}, v8")
    a("s_mov_b32 exec_lo, 0x00030003\ns_mov_b32 exec_hi, 0x00030003")
    a(f"ds_write_b64 v8, v[{A}:{A+1}]")
    a("s_mov_b64 exec, -1")

def mod_final(a, vm, sCol):
    a("s_mov_b64 exec, 0xff")
    a(f"v_lshlrev_b32 v8, 3, v{vLANE}\nv_add_u32 v9, {L_SCR}, v8")
    for w in range(4): a(f"ds_read_b64 {vr(240+2*w,2)}, v9 offset:{64*w}")
    a(f"s_lshr_b32 s52, s{sCol}, 9\ns_cmp_eq_u32 s52, 1\ns_cselect_b32 s53, 1.0, 0\ns_cmp_eq_u32 s52, 4\ns_cselect_b32 s53, 1.0, s53")
    a(f"s_lshl_b32 s52, s{sCol}, 2")
    a("s_waitcnt lgkmcnt(0)")
    for j in range(2): a(f"v_add_f32 v{240+j}, v{240+j}, v{242+j}\nv_add_f32 v{244+j}, v{244+j}, v{246+j}")
    for j in range(2): a(f"v_add_f32 v{240+j}, v{240+j}, v{244+j}")
    a("v_cvt_pk_bf16_f32 v242, v240, v241\nv_lshlrev_b32 v240, 16, v242\nv_and_b32 v241, 0xffff0000, v242")
    a("v_add_f32 v240, s53, v240\nv_add_f32 v241, s53, v241")
    a(f"v_cvt_pk_bf16_f32 v240, v240, v241\nv_mov_b32 v241, s{sTAG}")
    vm.op(f"buffer_store_dwordx2 v[240:241], v8, {S['ws']}, s52 offen sc1")
    a("s_mov_b64 exec, -1")

def gran_poll(a, vm, loads, regs):
    _uid[0] += 1; n = _uid[0]
    a(f"s_mov_b32 s50, {SPIN}\nLgp{n}:")
    for t in loads: a(t)
    a("s_waitcnt vmcnt(0)")
    first = True
    for r in regs:
        for o in (1, 3):
            if first: a(f"v_xor_b32 v15, s{sTAG}, v{r+o}"); first = False
            else: a(f"v_xor_b32 v14, s{sTAG}, v{r+o}\nv_or_b32 v15, v15, v14")
    a("v_cmp_ne_u32 vcc, 0, v15\ns_sub_u32 s50, s50, 1")
    a(f"s_cbranch_vccz Lgpd{n}\ns_sleep {OPT.get('gsleep', 1)}\ns_cmp_lg_u32 s50, 0\ns_cbranch_scc1 Lgp{n}\nLgpd{n}:")
    vm.reset()

def tag_get(a):
    _uid[0] += 1; n = _uid[0]
    a(f"v_mov_b32 v8, {L_SCR+260}\ns_mov_b32 s50, {SPIN*20}\nLtg{n}:\nds_read_b32 v9, v8\ns_sub_u32 s50, s50, 1\ns_waitcnt lgkmcnt(0)\nv_readfirstlane_b32 s{sTAG}, v9")
    a(f"s_cmp_lg_u32 s{sTAG}, 0\ns_cbranch_scc1 Ltgd{n}\ns_cmp_lg_u32 s50, 0\ns_cbranch_scc1 Ltg{n}\nLtgd{n}:")

def tag_now(a, v):
    _uid[0] += 1; n = _uid[0]
    a(f"s_mov_b32 s50, {SPIN}\nLtn{n}:\nv_readfirstlane_b32 s{sTAG}, v{v}\ns_sub_u32 s50, s50, 1")
    a(f"s_cmp_lg_u32 s{sTAG}, 0\ns_cbranch_scc1 Ltnd{n}\ns_cmp_eq_u32 s50, 0\ns_cbranch_scc1 Ltnd{n}")
    a(f"buffer_load_dword v{v}, v{vZ}, {S['dbg']}, 0 offen sc1\ns_waitcnt vmcnt(0)\ns_branch Ltn{n}\nLtnd{n}:")

def read_tag(a):
    a(f"v_mov_b32 v8, {L_SCR+260}\nds_read_b32 v9, v8\ns_waitcnt lgkmcnt(0)\nv_readfirstlane_b32 s{sTAG}, v9")

def mall_touch(a):
    _uid[0] += 1; n = _uid[0]
    a(f"v_lshlrev_b32 v5, 7, v{vLANE}\ns_cmp_eq_u32 s{sW}, 6\ns_cbranch_scc1 Lt6_{n}\ns_cmp_eq_u32 s{sW}, 7\ns_cbranch_scc1 Lt7_{n}")
    a(f"s_mul_i32 s52, s2, {56*128}\ns_cmp_eq_u32 s{sW}, 5\ns_cbranch_scc1 Lt5_{n}")
    a(f"buffer_load_dword v248, v5, {S['w1']}, s52 offen\ns_branch Ltd_{n}")
    a(f"Lt5_{n}:\nbuffer_load_dword v248, v5, {S['w2']}, s52 offen\ns_branch Ltd_{n}")
    a(f"Lt6_{n}:\nv_lshrrev_b32 v6, 5, v{vLANE}\nv_mul_u32_u24 v6, {6144-4096}, v6\nv_add_u32 v5, v5, v6\ns_mul_i32 s52, s2, 12288\ns_add_u32 s52, s52, 2048")
    a(f"buffer_load_dword v248, v5, {S['wmod']}, s52 offen\ns_branch Ltd_{n}")
    a(f"Lt7_{n}:\ns_lshl_b32 s52, s2, 11\ns_mov_b64 exec, 0xffff\nbuffer_load_dword v248, v5, {S['wo']}, s52 offen\ns_mov_b64 exec, -1")
    a(f"Ltd_{n}:")

def stouch(nm, soff, line):
    return f"s_buffer_load_dwordx2 s[0:1], {S[nm]}, s{soff} offset:{128*line+60}"

def mod_join(a, vm, sCol, name, pre=None):
    a(f"v_mov_b32 v8, {L_SCR+256}\nv_mov_b32 v9, 1\ns_waitcnt lgkmcnt(0)\ns_mov_b64 exec, 1\nds_add_rtn_u32 v9, v8, v9\ns_mov_b64 exec, -1\ns_waitcnt lgkmcnt(0)")
    a(f"v_readfirstlane_b32 s52, v9\ns_cmp_lg_u32 s52, 3\ns_cbranch_scc1 {name}")
    if pre: pre()
    mod_final(a, vm, sCol)

NRING = 4
def set_nring(n):
    global NRING
    NRING = n
vSTASH, vMOD, vXR = 180, 208, 208
QF, OA, SB, RING = 16, 32, [96, 112], 128
vV, vWO, vW1, vW1H = 4, 12, 13, 14
sHH, sKQ, sK, sV = 54, 55, 56, 57
def att_setup():
    a = Asm()
    a(f"s_and_b32 s{sHH}, s{sW}, 1\ns_lshr_b32 s{sKQ}, s{sW}, 1")
    a(f"v_and_b32 v{vV}, 15, v{vLANE}\nv_lshlrev_b32 v{vV}, 4, v{vV}\nv_bfe_u32 v5, v{vLANE}, 5, 1\nv_lshl_add_u32 v{vV}, v5, 8, v{vV}")
    a(f"s_lshl_b32 s58, s{sC}, 1\ns_add_u32 s58, s58, s{sHH}")
    a(f"s_lshl_b32 s59, s58, 16")
    a(f"s_lshl_b32 s52, s{sKQ}, 14\ns_add_u32 s52, s52, s59\ns_add_u32 s{sK}, s52, {hex(WS_K)}\ns_add_u32 s{sV}, s52, {hex(WS_V)}")
    a("s_mov_b32 s60, 0x0000ffff\ns_mov_b32 s61, 0x0000ffff")
    a(f"s_lshl_b32 s52, s{sKQ}, 8\ns_lshr_b32 s53, s{sC}, 1\ns_lshl_b32 s53, s53, 11\ns_add_u32 s52, s52, s53\ns_add_u32 s62, s52, {hex(WS_FKV)}")
    a(f"s_and_b32 s65, s{sTB}, {1 if OPT.get('m216', 0) else 3}\ns_lshl_b32 s65, s65, {13 if OPT.get('m216', 0) else 12}")
    a(f"v_lshrrev_b32 v6, 2, v{vLANE}\nv_and_b32 v11, 3, v{vLANE}\nv_lshlrev_b32 v{vWO}, 10, v6\nv_lshl_add_u32 v{vWO}, v11, 4, v{vWO}")
    w1_voffs(a, vW1, vW1H, 6, 11, 15)
    a(f"v_and_b32 v5, 7, v{vLANE}\nv_lshlrev_b32 v5, 2, v5\nv_bfe_u32 v6, v{vLANE}, 3, 1\nv_lshl_add_u32 v5, v6, 7, v5\nv_bfe_u32 v6, v{vLANE}, 4, 1\nv_lshl_add_u32 v5, v6, 10, v5")
    a(f"v_and_b32 v6, 0x1b, v{vLANE}\nv_cmp_eq_u32 vcc, 16, v6\nv_mov_b32 v15, 0x3f803f80\ns_nop 0\nv_cndmask_b32 v15, 0, v15, vcc")
    for r in range(64): a(f"v_mov_b32 v{OA+r}, 0")
    early = [I.text for I in a.L]
    late = [f"v_mov_b32 v{RING+12*sl+4+r}, v15" for sl in range(NRING) for r in range(8)] + [f"v_mov_b32 v{RING+12*NRING}, 0xdddddddd"]
    return early, late

CNT = dict(b5b=3, b6b=4, b7=5, b9=6, b10=7, b11=8, b12=9, uw=10, b5c=11)
ONEWAY = lambda: OPT.get("ow", 1)
def sig(a, name, va, vb, lg=None):
    if not ONEWAY(): a("s_barrier"); return
    a("s_mov_b64 exec, 1")
    t = f"ds_add_u32 v{va}, v{vb} offset:{4*CNT[name]}"
    lg.op(t, "sig") if lg else a(t)
    a("s_mov_b64 exec, -1")
def sig_regs(a, va, vb): a(f"v_mov_b32 v{va}, {L_SCR+256}\nv_mov_b32 v{vb}, 1")
def await_(a, name, va, vt, have=False):
    if not ONEWAY(): a("s_barrier"); return
    _uid[0] += 1; n = _uid[0]
    if have: a(f"v_readfirstlane_b32 s50, v{vt}\ns_cmp_eq_u32 s50, 4\ns_cbranch_scc1 Law{n}d")
    a(f"s_mov_b32 s63, {SPIN*20}\nLaw{n}:\nds_read_b32 v{vt}, v{va} offset:{4*CNT[name]}\ns_sub_u32 s63, s63, 1\ns_waitcnt lgkmcnt(0)\nv_readfirstlane_b32 s50, v{vt}")
    a(f"s_cmp_eq_u32 s50, 4\ns_cbranch_scc1 Law{n}d\ns_sleep 1\ns_cmp_lg_u32 s63, 0\ns_cbranch_scc1 Law{n}\nLaw{n}d:")

def q_join(a):
    _uid[0] += 1; n = _uid[0]
    a(f"v_mov_b32 v9, {L_SCR+264}\ns_mov_b32 s50, {SPIN*20}\nLqj{n}:\nds_read_b32 v10, v9\ns_sub_u32 s50, s50, 1\ns_waitcnt lgkmcnt(0)\nv_readfirstlane_b32 s52, v10")
    a(f"s_cmp_eq_u32 s52, 4\ns_cbranch_scc1 Lqjd{n}\ns_cmp_lg_u32 s50, 0\ns_cbranch_scc1 Lqj{n}\nLqjd{n}:")

def att_q(a):
    for i in range(4):
        a(f"s_add_u32 s52, s{sKQ}, {i}\ns_and_b32 s52, s52, 3\ns_lshl_b32 s53, s{sHH}, 2\ns_add_u32 s52, s52, s53\ns_lshl_b32 s52, s52, 10\ns_add_u32 s52, s52, {L_QX}")
        a(f"v_add_u32 v9, s52, v{vL16}\nds_read_b128 {vr(QF+4*i,4)}, v9")

KVF = lambda: [' sc1', '', ' sc1 nt'][OPT.get('kvf', 0)]
def att_ld(a, vm, kt):
    sl = kt % NRING
    if kt % 4 == 0: a(f"s_add_u32 s63, s{sK}, s62\ns_add_u32 s64, s{sV}, s62\ns_add_u32 s62, s62, 4096\ns_and_b32 s62, s62, 0x3fff")
    o = 1024*(kt % 4)
    vm.op(f"buffer_load_dwordx4 {vr(RING+12*sl,4)}, v{vL16}, {S['ws']}, s63 offen offset:{o}{KVF()}", ("kv", kt))
    a("s_mov_b64 exec, s[60:61]")
    vm.op(f"buffer_load_dwordx4 {vr(RING+12*sl+4,4)}, v{vV}, {S['ws']}, s64 offen offset:{o}{KVF()}", ("kv", kt))
    vm.op(f"buffer_load_dwordx4 {vr(RING+12*sl+8,4)}, v{vV}, {S['ws']}, s64 offen offset:{o+512}{KVF()}", ("kv", kt))
    a("s_mov_b64 exec, -1")

def att_first(a, vm, first):
    stamp(a, 4)
    poll(a, vm, "0xffffffff", 5, "s62", 6, first)
    stamp(a, 5)
    a("s_mov_b32 s62, s65")
    for kt in range(NRING-1): att_ld(a, vm, kt)

def attention(a, vm):
    IDX = RING + 12*NRING
    assert IDX < vSTASH
    CP = lambda d: f"s_and_b32 s{d}, s{sI}, 15" if OPT.get('mix', 1) else f"s_mov_b32 s{d}, s{sC}"
    TP = lambda d: f"s_lshl_b32 s{d}, s{sX}, 1\ns_lshr_b32 s50, s{sI}, 4\ns_add_u32 s{d}, s{d}, s50" if OPT.get('mix', 1) else f"s_mov_b32 s{d}, s{sTB}"
    def kp_addr(d):
        return [f"s_lshl_b32 s65, s{sR}, 1", f"s_add_u32 s65, s65, s{sW}", f"s_add_u32 s65, s65, {d}", "s_and_b32 s65, s65, 15", f"s_mul_i32 s65, s65, {32*3584}",
                CP(52), "s_mul_i32 s52, s52, 224", "s_add_u32 s65, s65, s52", f"s_mul_i32 s66, s{sW}, 7168", f"s_add_u32 s66, s66, {L_W1+7168*d}"]
    wo = [[f"s_add_u32 m0, s66, {L_WO+1024*j}", f"s_add_u32 s52, s65, {16384*j}", f"buffer_load_dwordx4 v{vWO}, {S['wo']}, s52 offen lds"] for j in range(4)]
    wo[0] = [f"s_add_u32 s65, s{sW}, s{sR}", "s_and_b32 s65, s65, 7", "s_lshl_b32 s65, s65, 16", CP(52), "s_lshl_b32 s52, s52, 6", "s_add_u32 s65, s65, s52", f"s_lshl_b32 s66, s{sW}, 12"] + wo[0]
    k1 = w1_kp_dma(65, 66, vW1, vW1H); k1[0] = kp_addr(0) + k1[0]
    k2 = []
    for j, p in enumerate(w1_kp_dma(65, 66, vW1, vW1H)):
        k2.append([p[1], p[2].replace("buffer_load_dwordx4 ", f"buffer_load_dwordx4 {vr(vSTASH+4*j,4)}, ").replace(" lds", "")])
    k2[0] = kp_addr(8)[:8] + k2[0]
    p0 = OPT.get("pre0", 5)
    pre = {4*p0+1: wo[:2], 4*p0+5: wo[2:], 4*p0+9: k1[:3], 4*p0+13: k1[3:], 4*p0+17: k2[:3], 4*p0+21: k2[3:]}
    ld = lambda kt: att_ld(a, vm, kt)
    for kt in range(NRING-1): vm.q += [('kv', kt)]*3
    def QK(dst, sl, q): return f"v_mfma_f32_32x32x16_bf16 {vr(dst,16)}, {vr(RING+12*sl,4)}, {vr(QF+4*q,4)}, 0"
    def SM(q, sl, half, s): return f"v_smfmac_f32_32x32x32_bf16 {vr(OA+16*q,16)}, {vr(RING+12*sl+4+4*half,4)}, {vr(s+8*half,8)}, v{IDX}"
    a("s_setprio 1")
    a(f"s_and_b32 s53, s{sW}, 3\ns_lshl_b32 s52, s2, 2\ns_add_u32 s53, s53, s52\ns_mul_i32 s53, s53, {9*128}")
    ST = [stouch("w1", 53, n) for n in range(9)] + [stouch("wmod", 53, n) for n in range(16)] + [stouch("w2", 53, n) for n in range(14)]
    a("s_waitcnt lgkmcnt(0)")
    vm.wait(("kv", 0))
    a(QK(SB[0], 0, 0))
    a("s_nop 7\ns_nop 3")
    TAIL = OPT.get("tail", 0)
    qof = lambda t: (t + 1) % 4 if (TAIL and t >= 60) else t % 4
    def red_write(i):
        return [f"s_add_u32 s52, s{sKQ}, {i}\ns_and_b32 s52, s52, 3\ns_mul_i32 s52, s52, 3\ns_add_u32 s52, s52, s63\ns_add_u32 s52, s52, {i-1}\ns_mul_i32 s52, s52, 2304\ns_add_u32 s52, s52, {L_RED}",
                f"v_add_u32 v6, s52, v{vL16}\nv_add_u32 v7, s52, v15",
                f"ds_write_b128 v6, {vr(OA+16*i,4)}", f"ds_write_b128 v6, {vr(OA+16*i+4,4)} offset:1024", f"ds_write_b32 v7, v{OA+16*i+8} offset:2048"]
    for t in range(64):
        kt, q = t // 4, t % 4
        cur, prv = SB[t & 1], SB[(t + 1) & 1]
        E = [f"v_exp_f32 v{cur+r}, v{cur+r}" for r in range(16)]
        if t == OPT.get("prio", 53):
            a(f"s_cmp_ge_u32 s{sW}, 4\ns_cbranch_scc1 Latt_prio\ns_setprio 0\nLatt_prio:")
        a(E[0]); a(E[1])
        if t > 0: a(SM(qof(t-1), ((t-1)//4) % NRING, 1, prv))
        if t == 59: a(f"s_mul_i32 s63, s{sHH}, 12\nv_lshlrev_b32 v15, 2, v{vLANE}")
        if q == 0 and kt + NRING - 1 < 16: ld(kt + NRING - 1)
        if t in pre and not OPT.get("nopre"):
            for p in pre[t]:
                for x in p[:-1]: a(x)
                vm.op(p[-1], "pre")
        if t == OPT.get("cpf", 99):
            a(f"s_cmp_lg_u32 s{sW}, 7\ns_cbranch_scc1 Latt_nocp\ns_getpc_b64 s[50:51]\nLpc2:\ns_and_b32 s52, s{sI}, 3\ns_lshl_b32 s52, s52, 13\nv_lshlrev_b32 v5, 7, v{vLANE}\nv_add_u32 v5, s52, v5")
            a("v_min_u32 v5, Lcode_end-Lpc2-4, v5\nglobal_load_dword v249, v5, s[50:51]\nLatt_nocp:")
        if t == 5:
            a(f"s_cmp_lg_u32 s{sW}, 0\ns_cbranch_scc1 Latt_noxc"); a(TP(52)); a(f"s_lshl_b32 s52, s52, 5"); a(CP(50))
            a(f"s_add_u32 s52, s52, s50\ns_lshl_b32 s52, s52, 2\ns_add_u32 s52, s52, {hex(WS_FXC)}\ns_getreg_b32 s50, hwreg(HW_REG_XCC_ID)\ns_and_b32 s50, s50, 15\ns_lshl_b32 s50, s50, 1\ns_add_u32 s50, s50, s{sTAG}")
            if OPT.get("xcfake"): a(f"s_and_b32 s51, s2, {OPT['xcfake']}\ns_add_u32 s50, s50, s51")
            a(f"v_mov_b32 v5, s50\ns_mov_b64 exec, 1\nbuffer_store_dword v5, v{vZ}, {S['ws']}, s52 offen sc1\ns_mov_b64 exec, -1\nLatt_noxc:")
        if t == 57:
            a(f"s_cmp_ge_u32 s{sW}, 4\ns_cbranch_scc1 Latt_nox")
            a(f"v_bfe_u32 v5, v{vLANE}, 5, 1\nv_and_b32 v6, 31, v{vLANE}\nv_lshlrev_b32 v6, 10, v6\nv_lshl_add_u32 v6, v5, 3, v6")
            a(TP(52)); a(f"s_lshl_b32 s52, s52, 2\ns_add_u32 s67, s52, s{sW}\ns_lshl_b32 s52, s67, 15"); a(CP(50)); a("s_lshl_b32 s50, s50, 6\ns_add_u32 s52, s52, s50")
            for qq in range(4): a(f"buffer_load_dwordx2 {vr(vXR+2*qq,2)}, v6, {S['x']}, s52 offen offset:{16*qq}")
            a(f"s_lshr_b32 s52, s67, 2\ns_lshl_b32 s52, s52, 7\ns_add_u32 s52, s52, {hex(WS_FXC)}\nv_and_b32 v5, 15, v{vLANE}\nv_lshlrev_b32 v5, 2, v5")
            a(f"buffer_load_dword v{vXR+8}, v5, {S['ws']}, s52 offen sc1")
            a("Latt_nox:")
        if t == 50:
            a(f"s_cmp_lt_u32 s{sW}, 4\ns_cbranch_scc1 Latt_nomod\ns_sub_u32 s52, s{sI}, 8\ns_cmp_ge_u32 s52, 16\ns_cbranch_scc1 Latt_nomod")
            a(f"s_lshl_b32 s66, s{sX}, 2\ns_lshr_b32 s52, s52, 2\ns_add_u32 s66, s66, s52\ns_lshl_b32 s66, s66, 6")
            a(f"s_and_b32 s52, s{sI}, 3\ns_lshl_b32 s52, s52, 4\ns_add_u32 s66, s66, s52\ns_add_u32 s66, s66, 1024")
            mod_issue(a, Track(a, "vmcnt", 63), 66, vMOD, T=244)
            a("Latt_nomod:")
        if t == OPT.get("w2t", 62) and not OPT.get("nopre"):
            a(f"s_cmp_eq_u32 s{sW}, 7\ns_cbranch_scc1 Latt_nopf\ns_mul_i32 s52, s{sI}, 7\ns_add_u32 s52, s52, s{sW}\ns_lshl_b32 s52, s52, 13\nv_lshlrev_b32 v5, 7, v{vLANE}")
            a(f"buffer_load_dword v248, v5, {S['w2']}, s52 offen")
            a("Latt_nopf:")
        if OPT.get("st", 7) & 4 and t % 3 != 2 and t - t//3 < 39:
            j = t - t//3
            if j == 9: a(f"s_lshl_b32 s53, s2, 1\ns_bfe_u32 s52, s{sW}, 0x10001\ns_add_u32 s53, s53, s52\ns_mul_i32 s53, s53, 6144\ns_lshl_b32 s52, s{sHH}, 11\ns_add_u32 s53, s53, s52\ns_add_u32 s53, s53, 2048")
            if j == 25: a(f"s_and_b32 s53, s{sW}, 3\ns_lshl_b32 s52, s2, 2\ns_add_u32 s53, s53, s52\ns_mul_i32 s53, s53, {14*128}")
            a(ST[j])
        sh = OPT.get("vb", 1)
        for r in range(2, 4+sh): a(E[r])
        if t < 63:
            if q == 3: vm.wait(("kv", kt + 1))
            a(QK(prv, ((t+1)//4) % NRING, qof(t+1)))
        for r in range(4+sh, 10+sh): a(E[r])
        a(SM(qof(t), kt % NRING, 0, cur))
        W = red_write(t - 60) if (TAIL and t >= 61) else []
        for r in range(10+sh, 16):
            a(E[r])
            if W: a(W.pop(0))
        for x in W: a(x)
        if t % 4 == 3 and t < 60: stamp(a, t//4, 5)
    a("s_nop 1")
    a(SM(qof(63), 15 % NRING, 1, SB[1]))
    a("s_setprio 0")
    stamp(a, 6); stamp(a, 0, 8)
    if not TAIL:
        for i in range(1, 4):
            for x in red_write(i): a(x)
    a(f"s_mul_i32 s52, s{sKQ}, 3\ns_add_u32 s52, s52, s63\ns_mul_i32 s52, s52, 2304\ns_add_u32 s52, s52, {L_RED}")
    a(f"v_add_u32 v6, s52, v{vL16}\nv_add_u32 v7, s52, v15")
    a(f"s_lshl_b32 s52, s{sTB}, 2\ns_add_u32 s52, s52, s{sKQ}\ns_lshl_b32 s52, s52, 5\ns_add_u32 s52, s52, s58")
    a(f"s_lshl_b32 s63, s52, 10\ns_add_u32 s63, s63, {hex(WS_O)}")
    flag_off(a, 64, 52, WS_FO, LF())
    a(TP(sTB)); a(CP(sC))
    stamp(a, 1, 8)
    vm.wait_all()
    a("s_waitcnt lgkmcnt(0)")
    stamp(a, 2, 8)
    a("s_barrier")
    stamp(a, 3, 8)
    R = 96
    for i in range(3):
        a(f"ds_read_b128 {vr(R+12*i,4)}, v6 offset:{2304*i}\nds_read_b128 {vr(R+12*i+4,4)}, v6 offset:{2304*i+1024}\nds_read_b32 v{R+12*i+8}, v7 offset:{2304*i+2048}")
    a(f"s_mov_b32 s52, {hx(2.0**-60)}\ns_mov_b32 s53, {hx(2.0**60)}\ns_movk_i32 s65, 0x207")
    for i in range(3):
        a(f"s_waitcnt lgkmcnt({6-3*i})")
        for r in range(9): a(f"v_add_f32 v{OA+r}, v{OA+r}, v{R+12*i+r}")
    a(f"v_add_f32 v8, v{OA}, v{OA+1}\nv_add_f32 v9, v{OA+2}, v{OA+3}\nv_add_f32 v10, v{OA+4}, v{OA+5}\nv_add_f32 v11, v{OA+6}, v{OA+7}")
    a("v_add_f32 v8, v8, v9\nv_add_f32 v10, v10, v11\nv_add_f32 v8, v8, v10")
    a(f"v_cmp_nge_f32 vcc, v{OA+8}, s52\nv_cmp_nle_f32 s[54:55], v{OA+8}, s53\nv_cmp_class_f32 s[56:57], v8, s65")
    a(f"v_rcp_f32 v8, v{OA+8}")
    a("s_or_b64 vcc, vcc, s[54:55]\ns_or_b64 vcc, vcc, s[56:57]")
    a("s_cbranch_vccnz Lslow")
    a("Lnorm:")
    for r in range(8): a(f"v_mul_f32 v{OA+r}, v{OA+r}, v8")
    for r in range(4): a(f"v_cvt_pk_bf16_f32 v{8+r}, v{OA+2*r}, v{OA+2*r+1}")
    vm.op(f"buffer_store_dwordx4 v[8:11], v{vL16}, {S['ws']}, s63 offen{RO()}")
    stamp(a, 4, 8)
    a("s_barrier")
    stamp(a, 5, 8)
    a(f"s_mul_i32 s52, s{sW}, 7168\ns_add_u32 s52, s52, {L_W1+8*7168}\nv_add_u32 v5, s52, v{vL16}")
    for j in range(7): a(f"ds_write_b128 v5, {vr(vSTASH+4*j,4)} offset:{1024*j}")
    def slow(b):
        tv = Track(b, "vmcnt", 63)
        b("Lslow:")
        poll_addr(b, 5)
        b(f"s_lshr_b32 s52, s58, 2\ns_lshl_b32 s52, s52, 11\ns_add_u32 s62, s52, {hex(WS_FKV)}")
        poll(b, tv, "-1", 5, "s62", 6)
        b("s_add_u32 s62, s62, 1024")
        poll(b, tv, "-1", 5, "s62", 6)
        b(f"s_waitcnt vmcnt(0)\ns_add_u32 s{sK}, s59, {hex(WS_K)}\ns_mov_b32 s51, 64\nv_mov_b32 v8, 0xff800000")
        b("Ls1:")
        b(f"buffer_load_dwordx4 {vr(RING,4)}, v{vL16}, {S['ws']}, s{sK} offen sc1\ns_add_u32 s{sK}, s{sK}, 1024\ns_waitcnt vmcnt(0)")
        b(QK(SB[0], 0, 0))
        for r in range(0, 16, 2): b(f"v_max3_f32 v8, v{SB[0]+r}, v{SB[0]+r+1}, v8")
        b("s_sub_u32 s51, s51, 1\ns_cmp_lg_u32 s51, 0\ns_cbranch_scc1 Ls1")
        b("v_mov_b32 v9, v8\nv_permlane32_swap_b32 v8, v9\nv_max_f32 v8, v8, v9")
        for r in range(16): b(f"v_sub_f32 v{SB[1]+r}, 0, v8")
        for r in range(16): b(f"v_mov_b32 v{OA+r}, 0")
        b(f"s_add_u32 s{sK}, s59, {hex(WS_K)}\ns_add_u32 s{sV}, s59, {hex(WS_V)}\ns_mov_b32 s51, 64")
        b("Ls2:")
        b(f"buffer_load_dwordx4 {vr(RING,4)}, v{vL16}, {S['ws']}, s{sK} offen sc1\ns_mov_b64 exec, s[60:61]")
        b(f"buffer_load_dwordx4 {vr(RING+4,4)}, v{vV}, {S['ws']}, s{sV} offen sc1\nbuffer_load_dwordx4 {vr(RING+8,4)}, v{vV}, {S['ws']}, s{sV} offen offset:512 sc1")
        b(f"s_mov_b64 exec, -1\ns_add_u32 s{sK}, s{sK}, 1024\ns_add_u32 s{sV}, s{sV}, 1024\ns_waitcnt vmcnt(0)")
        b(f"v_mfma_f32_32x32x16_bf16 {vr(SB[0],16)}, {vr(RING,4)}, {vr(QF,4)}, {vr(SB[1],16)}")
        for r in range(16): b(f"v_exp_f32 v{SB[0]+r}, v{SB[0]+r}")
        b(SM(0, 0, 0, SB[0])); b(SM(0, 0, 1, SB[0]))
        b("s_sub_u32 s51, s51, 1\ns_cmp_lg_u32 s51, 0\ns_cbranch_scc1 Ls2")
        b(f"s_nop 7\ns_nop 7\nv_rcp_f32 v8, v{OA+8}\ns_nop 0\ns_branch Lnorm")
    return slow

def w1_voffs(a, vF, vH, p=7, q=8, r=9):
    a(f"v_lshrrev_b32 v{p}, 2, v{vLANE}\nv_and_b32 v{q}, 3, v{vLANE}\nv_mul_u32_u24 v{vF}, 3584, v{p}\nv_lshl_add_u32 v{vF}, v{q}, 4, v{vF}")
    a(f"v_lshrrev_b32 v{p}, 1, v{vLANE}\nv_and_b32 v{q}, 0x13, v{p}\nv_bfe_u32 v{r}, v{p}, 2, 1\nv_lshl_add_u32 v{q}, v{r}, 3, v{q}\nv_bfe_u32 v{r}, v{p}, 3, 1\nv_lshl_add_u32 v{q}, v{r}, 2, v{q}")
    a(f"v_mul_u32_u24 v{vH}, 3584, v{q}\nv_and_b32 v{q}, 1, v{vLANE}\nv_lshl_add_u32 v{vH}, v{q}, 4, v{vH}")

def w1_kp_dma(sOff, sLds, vF, vH, dOff=0, dLds=0):
    L = []
    for e in range(2):
        for nt in range(3):
            L.append([f"s_add_u32 m0, s{sLds}, {dLds+3072*e+1024*nt}", f"s_add_u32 s52, s{sOff}, {dOff+16*3584*e+64*nt}",
                      f"buffer_load_dwordx4 v{vF}, {S['w1']}, s52 offen lds"])
    L.append([f"s_add_u32 m0, s{sLds}, {dLds+6144}", f"s_add_u32 s52, s{sOff}, {dOff+192}", f"buffer_load_dwordx4 v{vH}, {S['w1']}, s52 offen lds"])
    return L

def w1_reads(kp, e, dst, vF):
    base = 7168*kp + 3072*e
    return [f"ds_read_b64_tr_b16 {vr(dst+4*nt+2*st,2)}, v{vF[base >> 15]} offset:{(base & 0x7fff)+1024*nt+512*st}" for nt in range(3) for st in range(2)]
def w1_half_reads(kp, dst, vH):
    base = 7168*kp + 6144
    return [f"ds_read_b64_tr_b16 {vr(dst+2*st,2)}, v{vH[base >> 15]} offset:{(base & 0x7fff)+256*st}" for st in range(2)]

def h_pj(ks):
    return (ks // 4, ks % 4) if ks < 32 else ((ks - 32) // 3, 4 + (ks - 32) % 3)

def rot_loads(a, vm, base_s, dst, tag, div=1):
    for ks in range(32):
        if ks % 4 == 0: a(f"s_add_u32 s53, s{sR}, {ks//4}\ns_and_b32 s53, s53, 7\ns_lshl_b32 s53, s53, 12\ns_add_u32 s53, s53, s{base_s}")
        yield ks, (f"buffer_load_dwordx4 {vr(dst+4*ks,4)}, v{vL16}, {S['ws']}, s53 offen offset:{1024*(ks%4)}{RL() if tag == 'y' else ' sc1'}", (tag, ks//div))

def lds_init_b0(a):
    late_srds(a)
    a(f"v_mov_b32 v8, {L_SCR+256}\nv_mov_b32 v10, 0\nv_mov_b32 v11, 0\nds_write_b64 v8, v[10:11]\nds_write_b64 v8, v[10:11] offset:8\nds_write_b64 v8, v[10:11] offset:16\nds_write_b64 v8, v[10:11] offset:24\nds_write_b64 v8, v[10:11] offset:32\nds_write_b64 v8, v[10:11] offset:40\ns_waitcnt lgkmcnt(0)\ns_barrier")

EB = lambda bit: OPT.get('eb1', 2) & bit
def tag_to_lds_b1(a, late):
    a(f"v_mov_b32 v8, s{sTAG}\nv_mov_b32 v9, {L_SCR+260}\nds_write_b32 v9, v8\ns_waitcnt lgkmcnt(0)")
    stamp(a, 0)
    if late: a("s_barrier")
    a("s_branch La_p1")

def p0_ln(a):
    vm = Track(a, "vmcnt", 63)
    a(f"s_and_b32 s52, s{sX}, 1\ns_lshl_b32 s52, s52, 4\ns_add_u32 s52, s52, s{sI}\ns_sub_u32 s52, s52, 8\ns_lshl_b32 s52, s52, 2\ns_add_u32 s52, s52, s{sW}")
    a(f"s_lshr_b32 s53, s{sX}, 1\ns_lshl_b32 s53, s53, 7\ns_add_u32 s56, s52, s53\ns_lshl_b32 s53, s56, 12")
    a(f"v_and_b32 v4, 3, v{vLANE}\nv_lshrrev_b32 v5, 2, v{vLANE}\nv_lshlrev_b32 v6, 10, v4\nv_lshl_add_u32 v6, v5, 4, v6")
    a("s_waitcnt lgkmcnt(0)")
    for m in range(4): vm.op(f"buffer_load_dwordx4 {vr(16+4*m,4)}, v6, {S['x']}, s53 offen offset:{256*m}")
    lds_init_b0(a)
    a("v_lshrrev_b32 v7, 1, v5\nv_lshlrev_b32 v7, 10, v7\nv_and_b32 v8, 1, v5\nv_lshl_add_u32 v7, v8, 9, v7\nv_lshl_add_u32 v7, v4, 4, v7")
    a(f"s_lshr_b32 s53, s56, 3\ns_lshl_b32 s53, s53, 15\ns_and_b32 s54, s56, 7\ns_lshl_b32 s54, s54, 6\ns_add_u32 s53, s53, s54\ns_add_u32 s53, s53, {hex(WS_XN)}")
    flag_off(a, 55, 56, WS_FXN)
    stamp(a, 0, 7)
    vm.wait_all()
    stamp(a, 1, 7)
    vm.op(f"buffer_load_dword v15, v{vZ}, {S['dbg']}, 0 offen sc1")
    F = 32
    for r in range(16): a(f"v_lshlrev_b32 v{F+2*r}, 16, v{16+r}\nv_and_b32 v{F+2*r+1}, 0xffff0000, v{16+r}")
    def red(v, t):
        for r in (4, 8): a(f"v_add_f32_dpp v{v}, v{v}, v{v} row_ror:{r} row_mask:0xf bank_mask:0xf")
        a(f"v_mov_b32 v{t}, v{v}\nv_permlane16_swap_b32 v{v}, v{t}\nv_add_f32 v{v}, v{v}, v{t}")
        a(f"v_mov_b32 v{t}, v{v}\nv_permlane32_swap_b32 v{v}, v{t}\nv_add_f32 v{v}, v{v}, v{t}")
    a(f"v_pk_add_f32 v[64:65], {vr(F,2)}, {vr(F+2,2)}\nv_pk_add_f32 v[66:67], {vr(F+4,2)}, {vr(F+6,2)}")
    for r in range(8, 32, 4): a(f"v_pk_add_f32 v[64:65], v[64:65], {vr(F+r,2)}\nv_pk_add_f32 v[66:67], v[66:67], {vr(F+r+2,2)}")
    a("v_pk_add_f32 v[64:65], v[64:65], v[66:67]\nv_add_f32 v64, v64, v65")
    red(64, 65)
    a(f"v_mul_f32 v64, {hx(-1/512)}, v64")
    for r in range(0, 32, 2): a(f"v_pk_add_f32 {vr(F+r,2)}, {vr(F+r,2)}, v[64:65] op_sel_hi:[1,0]")
    a(f"v_pk_mul_f32 v[66:67], {vr(F,2)}, {vr(F,2)}\nv_pk_mul_f32 v[68:69], {vr(F+2,2)}, {vr(F+2,2)}")
    for r in range(4, 32, 4): a(f"v_pk_fma_f32 v[66:67], {vr(F+r,2)}, {vr(F+r,2)}, v[66:67]\nv_pk_fma_f32 v[68:69], {vr(F+r+2,2)}, {vr(F+r+2,2)}, v[68:69]")
    a("v_pk_add_f32 v[66:67], v[66:67], v[68:69]\nv_add_f32 v66, v66, v67")
    red(66, 67)
    a(f"v_mov_b32 v67, {hx(1e-5)}\nv_fmac_f32 v67, {hx(1/512)}, v66\nv_rsq_f32 v66, v67")
    for r in range(0, 32, 2): a(f"v_pk_mul_f32 {vr(F+r,2)}, {vr(F+r,2)}, v[66:67] op_sel_hi:[1,0]")
    for m in range(4):
        for r in range(4): a(f"v_cvt_pk_bf16_f32 v{16+4*m+r}, v{F+8*m+2*r}, v{F+8*m+2*r+1}")
        vm.op(f"buffer_store_dwordx4 {vr(16+4*m,4)}, v7, {S['ws']}, s53 offen sc1")
        if m < 3: a("s_add_u32 s53, s53, 8192")
    stamp(a, 2, 7)
    if EB(1): a("s_barrier")
    vm.wait_all()
    stamp(a, 3, 7)
    tag_now(a, 15)
    set_flag(a, vm, "s55", vZ, 8)
    stamp(a, 4, 7)
    tag_to_lds_b1(a, not EB(1))

def p0_mod(a):
    vm = Track(a, "vmcnt", 63)
    sCol = 51
    a(f"s_lshl_b32 s{sCol}, s{sX}, 1\ns_lshr_b32 s52, s{sI}, 2\ns_add_u32 s{sCol}, s{sCol}, s52\ns_lshl_b32 s{sCol}, s{sCol}, 6")
    a(f"s_and_b32 s52, s{sI}, 3\ns_lshl_b32 s52, s52, 4\ns_add_u32 s{sCol}, s{sCol}, s52")
    a("s_waitcnt lgkmcnt(0)")
    mod_issue(a, vm, sCol)
    lds_init_b0(a)
    vm.wait("mod")
    stamp(a, 1, 7)
    a(f"buffer_load_dword v15, v{vZ}, {S['dbg']}, 0 offen sc1")
    if EB(4): a("s_barrier")
    mod_partial(a, vm)
    a("s_waitcnt vmcnt(0)")
    tag_now(a, 15)
    mod_join(a, vm, sCol, "La_joined")
    a("La_joined:")
    stamp(a, 4, 7)
    tag_to_lds_b1(a, not EB(4))

def p0_warm(a):
    a(f"s_sub_u32 s52, s{sI}, 24\ns_lshl_b32 s52, s52, 1\ns_add_u32 s52, s52, s{sW}\ns_lshl_b32 s52, s52, 5")
    a(f"v_lshrrev_b32 v4, 1, v{vLANE}\nv_add_u32 v4, s52, v4\nv_mul_u32_u24 v4, 6144, v4\nv_and_b32 v5, 1, v{vLANE}\nv_lshl_add_u32 v4, v5, 7, v4\ns_lshl_b32 s52, s{sX}, 8")
    a(f"s_waitcnt lgkmcnt(0)\ns_cmp_ge_u32 s{sW}, 2\ns_cbranch_scc1 La_nowm")
    a(f"buffer_load_dword v6, v4, {S['wmod']}, s52 offen")
    a("La_nowm:")
    lds_init_b0(a)
    a("s_waitcnt vmcnt(0)")
    stamp(a, 1, 7)
    a(f"buffer_load_dword v15, v{vZ}, {S['dbg']}, 0 offen sc1")
    if EB(2): a("s_barrier")
    a("s_waitcnt vmcnt(0)")
    tag_now(a, 15)
    tag_to_lds_b1(a, not EB(2))

def p0_helper(a):
    vm = Track(a, "vmcnt", 63)
    sH = 67
    a(f"v_mov_b32 v32, 0\nv_mov_b32 v33, 0\nv_mov_b32 v34, 0\nv_mov_b32 v35, 0\ns_lshl_b32 s52, s{sH}, 12\ns_add_u32 s52, s52, {L_DG}\nv_add_u32 v9, s52, v{vL16}")
    for j in range(4): a(f"ds_write_b128 v9, v[32:35] offset:{1024*j}")
    a(f"s_lshl_b32 s52, s2, 2\ns_add_u32 s52, s52, s{sH}\ns_and_b32 s53, s52, 1\ns_lshr_b32 s52, s52, 1\ns_mul_i32 s52, s52, 3072")
    a("s_lshl_b32 s57, s53, 9\ns_add_u32 s57, s57, s52\ns_lshl_b32 s53, s53, 10\ns_add_u32 s52, s52, s53\ns_add_u32 s52, s52, 1024")
    a("s_waitcnt lgkmcnt(0)")
    a(f"s_lshl_b32 s58, s2, 3\ns_add_u32 s58, s58, s{sW}\ns_cmp_lg_u32 s58, {64*8+4}\ns_cbranch_scc1 Le_notag")
    a(f"s_or_b32 s54, s54, 1\nv_mov_b32 v7, s54\ns_mov_b64 exec, 1\nbuffer_store_dword v7, v{vZ}, {S['dbg']}, 0 offen sc1\ns_mov_b64 exec, -1")
    a("Le_notag:")
    s0 = OPT.get("st0", 9)
    for n in range(min(s0, 4) if s0 != 9 else 1): a(stouch("wqkv", 52, n))
    late_srds(a)
    a("s_barrier")
    if s0 == 9: a("s_waitcnt lgkmcnt(0)")
    for n in range(min(s0, 4) if s0 != 9 else 1, 8): a(stouch("wqkv", 52, n))
    for n in range(4): a(stouch("wqkv", 57, n))
    a(f"v_lshrrev_b32 v4, 3, v{vLANE}\nv_mul_u32_u24 v4, 3072, v4\nv_bfe_u32 v5, v{vLANE}, 4, 1\nv_lshlrev_b32 v5, 2, v5\nv_xor_b32 v5, v5, v{vLANE}\nv_and_b32 v5, 7, v5\nv_lshl_add_u32 v4, v5, 4, v4")
    a(f"s_and_b32 s56, s{sC}, 1\ns_add_u32 s56, s56, 1\ns_lshl_b32 s56, s56, 10\ns_lshr_b32 s52, s{sC}, 1\ns_lshl_b32 s52, s52, 7\ns_add_u32 s56, s56, s52")
    a(f"s_and_b32 s55, s{sTB}, {1 if OPT.get('m216', 0) else 3}\ns_lshl_b32 s55, s55, {4 if OPT.get('m216', 0) else 3}\ns_add_u32 s55, s55, s{sH}\ns_lshl_b32 s57, s{sR}, 2\ns_mov_b32 s51, 8")
    stamp(a, 0, 7)
    a("s_barrier")
    stamp(a, 1, 7)
    a("Lh_wl:")
    a(f"s_and_b32 s55, s55, 31\ns_lshl_b32 s53, s55, 11\ns_add_u32 s52, s55, s57\ns_and_b32 s52, s52, 31\ns_mul_i32 s52, s52, {16*3072}\ns_mov_b32 m0, s53\ns_add_u32 s52, s52, s56")
    a(f"buffer_load_dwordx4 v4, {S['wqkv']}, s52 offen lds\ns_add_u32 m0, s53, 1024\ns_add_u32 s52, s52, {8*3072}\nbuffer_load_dwordx4 v4, {S['wqkv']}, s52 offen lds")
    a(f"s_add_u32 s55, s55, 4\ns_sub_u32 s51, s51, 1\ns_cmp_lg_u32 s51, 0\ns_cbranch_scc1 Lh_wl")
    tag_get(a)
    stamp(a, 0); stamp(a, 2, 7)
    a(f"s_cmp_ge_u32 s{sH}, 2\ns_cbranch_scc1 Lh_b2")
    a(f"s_lshl_b32 s52, s{sH}, 11")
    a(f"v_lshrrev_b32 v5, 3, v{vLANE}\ns_lshl_b32 s53, s{sR}, 1\nv_subrev_u32 v5, s53, v5\nv_and_b32 v5, 15, v5\nv_xor_b32 v6, 8, v5")
    gran_poll(a, vm, [f"buffer_load_dwordx4 v[16:19], v{vL16}, {S['ws']}, s52 offen sc1", f"buffer_load_dwordx4 v[20:23], v{vL16}, {S['ws']}, s52 offen offset:1024 sc1"], [16, 20])
    stamp(a, 1)
    a(f"s_cmp_lg_u32 s{sH}, 0\ns_cbranch_scc1 Lh_g1")
    for j, r in enumerate((16, 18, 20, 22)): a(f"v_lshlrev_b32 v{24+2*j}, 16, v{r}\nv_and_b32 v{25+2*j}, 0xffff0000, v{r}")
    a(f"v_and_b32 v7, 1, v{vLANE}\nv_lshlrev_b32 v7, 6, v7\nv_bfe_u32 v9, v{vLANE}, 1, 2\nv_lshl_add_u32 v7, v9, 4, v7\nv_add_u32 v7, {L_SA}, v7")
    a("v_lshl_add_u32 v5, v5, 7, v7\nv_lshl_add_u32 v6, v6, 7, v7")
    a("ds_write_b128 v5, v[24:27]\nds_write_b128 v6, v[28:31]")
    a("s_branch Lh_b2")
    a("Lh_g1:")
    a(f"v_and_b32 v7, 7, v{vLANE}\nv_lshlrev_b32 v7, 6, v7\nv_bfe_u32 v9, v{vLANE}, 2, 1\nv_lshl_add_u32 v7, v9, 9, v7\nv_and_b32 v9, 3, v{vLANE}\nv_lshl_add_u32 v7, v9, 2, v7\nv_add_u32 v7, {L_DG}, v7")
    a("v_lshl_add_u32 v5, v5, 10, v7\nv_lshl_add_u32 v6, v6, 10, v7")
    for j in range(2):
        for e in range(4):
            a(f"ds_write_b16{'_d16_hi' if e & 1 else ''} v{5+j}, v{16+4*j+2*(e>>1)} offset:{16*e + 2*(e & 1)}")
    a("s_branch Lh_b2")

def late_srds(a):
    for nm in ("wo", "w1", "w2", "out"): a(f"s_mov_b32 s{SRD[nm]+2}, {hex(SZ[nm])}\ns_mov_b32 s{SRD[nm]+3}, 0x20000")

def active(a):
    vm = Track(a, "vmcnt", 63); lg = Track(a, "lgkmcnt", 15)
    sT32 = 67
    a("La_p1:")
    ACC = [16, 32, 48]; WF = [64, 72]; DH = [88, 104]; DG = [120, 124]; AF = 128
    a(f"s_lshl_b32 s{sT32}, s{sTB}, 2\ns_add_u32 s{sT32}, s{sT32}, s{sW}")
    a(f"v_lshlrev_b32 v5, 2, v{vLANE}\ns_lshl_b32 s52, s{sT32}, 7\ns_add_u32 s52, s52, {hex(WS_FXN)}")
    tr_addr(a, 10, 12, True, 7, True)
    a("v_xor_b32 v12, 64, v10")
    a(f"v_bfe_u32 v11, v0, 5, 1\nv_lshlrev_b32 v11, 6, v11\nv_add_u32 v11, {L_SA}, v11\nv_add_u32 v13, {L_DG}, v{vL16}")
    a(f"v_and_b32 v14, 2, v0\nv_cmp_eq_u32 vcc, 0, v14\nv_mov_b32 v14, 0xeeeeeeee\nv_mov_b32 v15, 0x44444444\nv_cndmask_b32 v14, v14, v15, vcc")
    for r in range(48): a(f"v_mov_b32 v{16+r}, 0")
    poll(a, vm, "0xff", 5, "s52", 6, OPT.get("fn", 0))
    stamp(a, 1)
    a(f"s_lshl_b32 s52, s{sT32}, 15\ns_add_u32 s52, s52, {hex(WS_XN)}")
    a(f"s_lshr_b32 s54, s{sC}, 1\ns_lshl_b32 s54, s54, 18\ns_lshl_b32 s55, s{sT32}, 10\ns_add_u32 s54, s54, s55")
    a(f"s_bitcmp1_b32 s{sC}, 0\ns_cbranch_scc1 La_vwg")
    def rdS(b):
        L = [(f"ds_read_b128 {vr(DH[b&1]+4*q,4)}, v11 offset:{128*b+16*q}", ("s", b)) for q in range(4)]
        return L + [(f"ds_read_b128 {vr(DG[b&1],4)}, v13 offset:{1024*b}", ("s", b))]
    def rdW(ks):
        return [(f"ds_read_b64_tr_b16 {vr(WF[ks&1]+4*g+2*st,2)}, v{(10, 12)[g]} offset:{2048*ks+1024*st}", ("w", ks)) for g in range(2) for st in range(2)]
    def SMF(b): return f"v_smfmac_f32_32x32x32_bf16 {vr(DH[b&1],16)}, {vr(DG[b&1],4)}, {vr(AF+8*b,8)}, v14"
    def CVT(b): return [f"v_cvt_pk_bf16_f32 v{AF+8*b+r}, v{DH[b&1]+2*r}, v{DH[b&1]+2*r+1}" for r in range(8)]
    for isV in (0, 1):
        if isV: a("La_vwg:")
        vm.reset(); lg.reset()
        XL = rot_loads(a, vm, 52, AF, "xn", 2)
        def xn_issue(n):
            for _ in range(n):
                r = next(XL, None)
                if r: vm.op(*r[1])
        def MM(ks):
            f = AF + 4*ks; w = WF[ks & 1]
            if isV: return [f"v_mfma_f32_32x32x16_bf16 {vr(ACC[1+g],16)}, {vr(f,4)}, {vr(w+4*g,4)}, {vr(ACC[1+g],16)}" for g in range(2)]
            return [f"v_mfma_f32_32x32x16_bf16 {vr(ACC[1+g],16)}, {vr(w+4*g,4)}, {vr(f,4)}, {vr(ACC[1+g],16)}" for g in range(2)]
        xn_issue(OPT.get("xn0", 8))
        a("s_barrier")
        xn_issue(10 - OPT.get("xn0", 8))
        for x in rdS(0) + rdS(1): lg.op(*x)
        lg.wait(("s", 0)); vm.wait(("xn", 0))
        a(SMF(0))
        for x in rdW(0): lg.op(*x)
        xn_issue(2)
        a("s_nop 5")
        for x in CVT(0): a(x)
        stamp(a, 2)
        for b in range(16):
            nx = b + 1 < 16
            if nx:
                lg.wait(("s", b+1)); vm.wait(("xn", b+1))
                a(SMF(b+1))
            for x in rdW(2*b+1): lg.op(*x)
            lg.wait(("w", 2*b))
            M = MM(2*b); Rs = rdS(b+2) if b + 2 < 16 else []
            a(M[0]); [lg.op(*x) for x in Rs]
            a(M[1]); xn_issue(3)
            if b == OPT.get("b2b", 6): a("s_barrier")
            lg.wait(("w", 2*b+1))
            M = MM(2*b+1); C = CVT(b+1) if nx else []; Rw = rdW(2*b+2) if nx else []
            a(M[0]); [lg.op(*x) for x in Rw]; [a(x) for x in C[:3]]
            a(M[1]); [a(x) for x in C[3:]]
            if b < 15: stamp(a, b, 6)
        if not isV:
            a(f"s_add_u32 s54, s54, {hex(WS_K)}")
            a(f"v_and_b32 v5, 0x33, v{vLANE}\nv_bfe_u32 v6, v{vLANE}, 2, 1\nv_lshl_add_u32 v5, v6, 3, v5\nv_bfe_u32 v6, v{vLANE}, 3, 1\nv_lshl_add_u32 v5, v6, 2, v5\nv_lshlrev_b32 v5, 4, v5")
            for h in range(4):
                for r in range(4): a(f"v_cvt_pk_bf16_f32 v{112+4*h+r}, v{ACC[1]+8*h+2*r}, v{ACC[1]+8*h+2*r+1}")
                vm.op(f"buffer_store_dwordx4 {vr(112+4*h,4)}, v5, {S['ws']}, s54 offen sc1")
                if h < 3: a("s_add_u32 s54, s54, 65536")
            a("s_branch La_kvd")
        else:
            a(f"s_add_u32 s54, s54, {hex(WS_V)}")
            a(f"v_and_b32 v6, 15, v{vLANE}\nv_lshlrev_b32 v6, 4, v6\nv_bfe_u32 v7, v{vLANE}, 5, 1\nv_lshl_add_u32 v6, v7, 8, v6\nv_bfe_u32 v7, v{vLANE}, 4, 1\nv_lshl_add_u32 v6, v7, 16, v6")
            for h in range(4):
                for r in range(4): a(f"v_cvt_pk_bf16_f32 v{112+4*h+r}, v{ACC[1]+8*h+2*r}, v{ACC[1]+8*h+2*r+1}")
                vm.op(f"buffer_store_dwordx4 {vr(112+4*h,4)}, v6, {S['ws']}, s54 offen offset:{512*(h&1)} sc1")
                if h == 1: a("s_add_u32 s54, s54, 131072")
    a("La_kvd:")
    stamp(a, 3)
    a(f"s_lshl_b32 s57, s{sW}, 10\ns_add_u32 s57, s57, {L_QX}\nv_add_u32 v7, s57, v{vL16}")
    a(f"s_lshl_b32 s58, s{sC}, 6\ns_add_u32 s58, s58, s{sT32}")
    flag_off(a, 51, 58, WS_FKV)
    tr_addr(a, 10, 12, True, 6, False)
    a(f"v_add_u32 v10, {L_WQ}, v10")
    a("s_barrier")
    WQ = [96, 100, 104, 108]
    early, late = att_setup(); fill = early + late; assert len(early) >= 12*5
    def rdQ(ks): return [(f"ds_read_b64_tr_b16 {vr(WQ[ks&3]+2*st,2)}, v10 offset:{1024*ks+512*st}", ("q", ks)) for st in range(2)]
    lg.reset()
    for x in rdQ(0) + rdQ(1) + rdQ(2): lg.op(*x)
    for ks in range(32):
        if ks + 3 < 32: [lg.op(*x) for x in rdQ(ks+3)]
        lg.wait(("q", ks))
        a(f"v_mfma_f32_32x32x16_bf16 {vr(ACC[0],16)}, {vr(WQ[ks&3],4)}, {vr(AF+4*ks,4)}, {vr(ACC[0],16)}")
        if ks == OPT.get("kvflag", 8): set_flag(a, vm, "s51", vZ, 8)
        else:
            for x in fill[:6]: a(x)
            fill = fill[6:]
    for x in fill: a(x)
    a(f"s_mov_b32 s53, {hx(0.25*LOG2E)}")
    for r in range(16): a(f"v_mul_f32 v{ACC[0]+r}, s53, v{ACC[0]+r}")
    for r in range(8): a(f"v_cvt_pk_bf16_f32 v{96+r}, v{ACC[0]+2*r}, v{ACC[0]+2*r+1}")
    a("ds_write_b128 v7, v[96:99]\nds_write_b128 v7, v[100:103] offset:4096")
    if OPT.get("qj", 1):
        a(f"v_mov_b32 v9, {L_SCR+264}\nv_mov_b32 v10, 1\ns_waitcnt lgkmcnt(0)\ns_mov_b64 exec, 1\nds_add_u32 v9, v10\ns_mov_b64 exec, -1")
        att_first(a, vm, OPT.get("fk", 0))
        q_join(a); att_q(a)
    else:
        a("s_waitcnt lgkmcnt(0)\ns_barrier")
        att_q(a)
        att_first(a, vm, OPT.get("fk", 0))

def active2(a):
    vm = Track(a, "vmcnt", 63); lg = Track(a, "lgkmcnt", 15)
    sT32, AF = 67, 128
    ACC, WF, XR, GA, G2, XF = 16, [96, 100, 104, 108], vXR, 48, 64, 80
    a(f"s_getreg_b32 s50, hwreg(HW_REG_XCC_ID)\ns_and_b32 s50, s50, 15\ns_lshl_b32 s50, s50, 1\ns_add_u32 s50, s50, s{sTAG}\nv_cmp_ne_u32 vcc, s50, v{vXR+8}\nv_bfe_u32 v9, v{vLANE}, 5, 1\ns_cmp_eq_u64 vcc, 0\ns_cselect_b32 s{sLOC}, 1, 0")
    for q in range(4):
        for h in range(2): a(f"v_lshlrev_b32 v{XF+4*q+2*h}, 16, v{XR+2*q+h}\nv_and_b32 v{XF+4*q+2*h+1}, 0xffff0000, v{XR+2*q+h}")
    a(f"s_lshl_b32 s57, s{sT32}, 15\ns_lshl_b32 s58, s{sC}, 11\ns_add_u32 s57, s57, s58\ns_add_u32 s58, s57, {hex(WS_Y)}\ns_add_u32 s57, s57, {hex(WS_X1)}")
    a(f"s_lshl_b32 s54, s{sC}, 14\ns_lshl_b32 s55, s{sT32}, 8\ns_add_u32 s54, s54, s55\ns_add_u32 s54, s54, {hex(WS_STATS)}")
    a(f"s_lshl_b32 s55, s{sT32}, 4\ns_add_u32 s55, s55, s{sC}")
    flag_off(a, 56, 55, WS_FX1, LF())
    a(f"s_lshl_b32 s55, s{sT32}, {11-LF()}\ns_add_u32 s55, s55, {hex(WS_FX1)}")
    tr_addr(a, 10, 11, True, 6, False)
    for r in range(16): a(f"v_mov_b32 v{ACC+r}, 0")
    poll_addr(a, 5, LF())
    a(f"s_lshl_b32 s52, s{sT32}, {12-LF()}\ns_add_u32 s52, s52, {hex(WS_FO)}")
    stamp(a, 6, 8)
    set_flag(a, vm, "s64", vZ, 8, RO())
    stamp(a, 7); stamp(a, 7, 8)
    poll(a, vm, "0xffffffff", 5, "s52", 11, OPT.get("fo", 28))
    stamp(a, 8); stamp(a, 0, 2)
    a(f"s_lshl_b32 s52, s{sT32}, 15\ns_add_u32 s52, s52, {hex(WS_O)}")
    OL = rot_loads(a, vm, 52, AF, "o")
    for _ in range(OPT.get("b5b", 12)): vm.op(*next(OL)[1])
    sig_regs(a, 126, 127); sig(a, "b5b", 126, 127)
    for _ in range(12 - OPT.get("b5b", 12)): vm.op(*next(OL)[1])
    a(f"v_lshlrev_b32 v6, 2, v{vLANE}\nv_lshlrev_b32 v5, 4, v9\nv_add_u32 v5, {L_GA}, v5")
    def rdWo(ks): return [(f"ds_read_b64_tr_b16 {vr(WF[ks&3]+2*st,2)}, v10 offset:{L_WO+1024*ks+512*st}", ("w", ks)) for st in range(2)]
    lg.reset()
    for x in rdWo(0) + rdWo(1) + rdWo(2): lg.op(*x)
    for ks in range(32):
        if ks + 3 < 32:
            for x in rdWo(ks+3): lg.op(*x)
        if ks == 28:
            lg.wait(("w", 31))
            a("s_barrier")
            for q in range(4): a(f"ds_read_b128 {vr(GA+4*q,4)}, v5 offset:{32*q}")
            for q in range(4): a(f"ds_read_b128 {vr(G2+4*q,4)}, v5 offset:{128+32*q}")
        lg.wait(("w", ks)); vm.wait(("o", ks))
        a(f"v_mfma_f32_32x32x16_bf16 {vr(ACC,16)}, {vr(WF[ks&3],4)}, {vr(AF+4*ks,4)}, {vr(ACC,16)}")
        if ks + 12 < 32: vm.op(*next(OL)[1])
        if ks == 19 and OPT.get("early", 0): sig(a, "b5c", 126, 127, lg)
        if ks % 4 == 0 or ks == 31: stamp(a, 1 + (ks+1)//4, 2)
    stamp(a, 10, 2)
    a("s_waitcnt lgkmcnt(4)")
    for r in range(16): a(f"v_fmac_f32 v{XF+r}, v{ACC+r}, v{GA+r}")
    a("s_waitcnt lgkmcnt(0)")
    for r in range(16): a(f"v_mul_f32 v{ACC+r}, v{XF+r}, v{G2+r}")
    for r in range(8): a(f"v_cvt_pk_bf16_f32 v{32+r}, v{ACC+2*r}, v{ACC+2*r+1}")
    vm.op(f"buffer_store_dwordx4 v[32:35], v{vL16}, {S['ws']}, s58 offen{RG()}"); vm.op(f"buffer_store_dwordx4 v[36:39], v{vL16}, {S['ws']}, s58 offen offset:1024{RG()}")
    a(f"v_pk_add_f32 v[48:49], {vr(XF,2)}, {vr(XF+2,2)}\nv_pk_mul_f32 v[50:51], {vr(XF,2)}, {vr(XF,2)}\nv_pk_fma_f32 v[50:51], {vr(XF+2,2)}, {vr(XF+2,2)}, v[50:51]")
    for r in range(4, 16, 2): a(f"v_pk_add_f32 v[48:49], v[48:49], {vr(XF+r,2)}\nv_pk_fma_f32 v[50:51], {vr(XF+r,2)}, {vr(XF+r,2)}, v[50:51]")
    a("v_add_f32 v48, v48, v49\nv_add_f32 v49, v50, v51")
    for r in range(8): a(f"v_cvt_pk_bf16_f32 v{40+r}, v{XF+2*r}, v{XF+2*r+1}")
    a("v_permlane32_swap_b32 v48, v49\nv_add_f32 v48, v48, v49")
    vm.op(f"buffer_store_dword v48, v6, {S['ws']}, s54 offen{RG()}")
    vm.op(f"buffer_store_dwordx4 v[40:43], v{vL16}, {S['ws']}, s57 offen sc1"); vm.op(f"buffer_store_dwordx4 v[44:47], v{vL16}, {S['ws']}, s57 offen offset:1024 sc1")
    stamp(a, 11, 2)
    ACC, WF, WH, ST = 16, [80, 92, 104], [116, 120], 240
    vF, vH = [10, 11, 12, 13], [4, 7, 14, 15]
    tr_addr(a, 10, 11, True, 6, False)
    a(f"v_add_u32 v10, {L_W1}, v10\nv_add_u32 v11, 0x8000, v10\nv_add_u32 v12, 0x10000, v10\nv_add_u32 v13, 0x18000, v10")
    half_tr_addr(a, 4, 7)
    a(f"v_add_u32 v4, {L_W1}, v4\nv_add_u32 v7, 0x8000, v4\nv_add_u32 v14, 0x10000, v4\nv_add_u32 v15, 0x18000, v4")
    a(f"v_and_b32 v8, 16, v0\nv_cmp_eq_u32 vcc, 0, v8\nv_mov_b32 v8, 0xeeeeeeee\nv_mov_b32 v5, 0x44444444\nv_cndmask_b32 v8, v8, v5, vcc")
    for r in range(64): a(f"v_mov_b32 v{ACC+r}, 0")
    poll_addr(a, 5, LF())
    set_flag_rg(a, vm, "s56", 9)
    stamp(a, 9); stamp(a, 12, 2)
    poll(a, vm, "0xffff", 5, "s55", 125, OPT.get("fx", 4))
    stamp(a, 10); stamp(a, 0, 3)
    a(f"s_lshl_b32 s52, s{sT32}, 15\ns_add_u32 s52, s52, {hex(WS_Y)}")
    a(f"s_lshl_b32 s54, s{sT32}, 8\ns_add_u32 s54, s54, {hex(WS_STATS)}")
    YL = rot_loads(a, vm, 52, AF, "y")
    for _ in range(4): vm.op(*next(YL)[1])
    for q in range(16):
        vm.op(f"buffer_load_dword v{ST+q}, v6, {S['ws']}, s54 offen sc1", "st"); a("s_add_u32 s54, s54, 16384")
    for _ in range(8): vm.op(*next(YL)[1])
    lg.reset()
    def rdW1(ks): return [(x, ("w", ks)) for x in w1_reads(ks//2, ks & 1, WF[ks % 3], vF)]
    for x in rdW1(0) + rdW1(1): lg.op(*x)
    TT, UB = 128, 184
    side = {}
    side[(6, 0)] = ["v_mov_b32 v125, v124", f"v_bfe_u32 v5, v{vLANE}, 5, 1", "v_lshlrev_b32 v9, 7, v5", "v_permlane32_swap_b32 v124, v125"]
    side[(6, 1)] = [f"v_add_u32 v9, {L_UW}, v9", f"v_mul_f32 v124, {hx(1/512)}, v124", f"v_mul_f32 v125, {hx(1/512)}, v125", "v_fma_f32 v125, -v124, v124, v125"]
    side[(6, 2)] = ["v_max_f32 v125, 0, v125", f"v_add_f32 v125, {hx(1e-5)}, v125", "v_rsq_f32 v125, v125"]
    side[(7, 0)] = [f"v_mul_f32 v5, {hx(-LOG2E)}, v125", "v_mul_f32 v125, v5, v124", "v_sub_f32 v125, 0, v125", "v_mov_b32 v124, v5"]
    side[(7, 1)] = [f"s_lshl_b32 s55, s{sT32}, 4", f"s_add_u32 s55, s55, s{sC}", f"s_lshr_b32 s50, s55, {LF()}", "s_lshl_b32 s50, s50, 7", f"s_and_b32 s56, s55, {(1 << LF()) - 1}"]
    side[(7, 2)] = ["s_lshl_b32 s56, s56, 2", "s_add_u32 s56, s56, s50", f"s_add_u32 s56, s56, {hex(WS_FH)}"]
    side[(12, 0)] = [f"s_mul_i32 s52, s{sT32}, {112*1024}", f"s_mul_i32 s53, s{sC}, 7168", "s_add_u32 s52, s52, s53", f"s_add_u32 s52, s52, {hex(WS_H)}"]
    if ONEWAY(): side[(13, 2)] = ["uwrd"]; side[(15, 1)] = ["uwck"]
    for m in range(7):
        ks = 16 + 2*m
        rw = lambda j: f"ds_read_b128 {vr(TT+4*j,4)}, v9 offset:{256*(j//4)+64+16*(j%4)}"
        ru = lambda j: f"ds_read_b128 {vr(UB+4*(j&1),4)}, v9 offset:{256*(j//4)+16*(j%4)}"
        fm = lambda j: [f"v_fmac_f32 v{TT+4*j+r}, v125, v{UB+4*(j&1)+r}" for r in range(4)]
        side.setdefault((ks+2, 1), []).extend([f"wait{ks+1}"] + fm(2*m))
        side.setdefault((ks+2, 2), []).extend(fm(2*m+1))
        side.setdefault((ks, 2), []).append(rw(2*m))
        side.setdefault((ks+1, 2), []).extend([ru(2*m), rw(2*m+1), ru(2*m+1)])
    for kp in range(16):
        for e in range(2):
            ks = 2*kp + e
            R = rdW1(ks+2) if ks + 2 < 32 else []
            if e == 0: R = [(x, ("h", kp)) for x in w1_half_reads(kp, WH[kp & 1], vH)] + R
            lg.wait(("w", ks)); vm.wait(("y", ks))
            for nt in range(3):
                a(f"v_mfma_f32_32x32x16_bf16 {vr(ACC+16*nt,16)}, {vr(WF[ks%3]+4*nt,4)}, {vr(AF+4*ks,4)}, {vr(ACC+16*nt,16)}")
                [lg.op(*x) for x in R[3*nt:3*nt+3]]
                if nt >= 1:
                    j = 12 + 2*ks + nt - 1
                    if j < 32: vm.op(*next(YL)[1])
                if ks in (4, 5):
                    for q in (((0, 8), (1, 9), (2, 10)), ((3, 11), (4, 12), (5, 13)), ((6, 14), (7, 15)))[nt] if ks == 4 else (((0, 4), (1, 5), (2, 6), (3, 7)), ((0, 2), (1, 3)), ())[nt]:
                        a(f"v_add_f32 v{ST+q[0]}, v{ST+q[0]}, v{ST+q[1]}")
                    if ks == 5 and nt == 2: a(f"v_add_f32 v124, v{ST}, v{ST+1}")
                for x in side.get((ks, nt), []):
                    if x.startswith("ds_"): lg.op(x, ("u", ks))
                    elif x.startswith("wait"): lg.wait(("u", int(x[4:])))
                    elif x == "uwrd": lg.op(f"ds_read_b32 v5, v126 offset:{4*CNT['uw']}", "cnt")
                    elif x == "uwck": lg.wait("cnt"); await_(a, "uw", 126, 5, True)
                    else: a(x)
            if e == 1:
                lg.wait(("h", kp))
                a(f"v_smfmac_f32_32x32x32_bf16 {vr(ACC+48,16)}, {vr(WH[kp&1],4)}, {vr(AF+8*kp,8)}, v8")
                if kp % 2 == 0 or kp == 15: stamp(a, 1 + (kp+1)//2, 3)
                if kp == OPT.get("b6b", 4): sig(a, "b6b", 126, 127, lg)
    sig(a, "b7", 126, 127)
    stamp(a, 11)
    E = 80
    for r in range(8): a(f"v_add_f32 v{ACC+48+r}, v{ACC+48+r}, v{ACC+56+r}")
    for nt in range(4):
        t = TT + 16*nt; acc = ACC + 16*nt; n = 16 if nt < 3 else 8
        for r in range(0, n, 2): a(f"v_pk_fma_f32 {vr(acc+r,2)}, {vr(acc+r,2)}, v[124:125], {vr(t+r,2)} op_sel:[0,0,0] op_sel_hi:[1,0,1]")
        for r in range(n): a(f"v_exp_f32 v{E+r}, v{acc+r}")
        for r in range(0, n, 2): a(f"v_pk_add_f32 {vr(E+r,2)}, {vr(E+r,2)}, 1.0 op_sel_hi:[1,0]")
        for r in range(n): a(f"v_rcp_f32 v{E+r}, v{E+r}")
        for r in range(0, n, 2): a(f"v_pk_mul_f32 {vr(acc+r,2)}, {vr(acc+r,2)}, {vr(E+r,2)}")
        o = 208 + 8*nt
        for r in range(n//2): a(f"v_cvt_pk_bf16_f32 v{o+r}, v{acc+2*r}, v{acc+2*r+1}")
        if nt == 2: a("s_add_u32 s52, s52, 4096")
        vm.op(f"buffer_store_dwordx4 {vr(o,4)}, v{vL16}, {S['ws']}, s52 offen offset:{2048*(nt&1)}{RG()}")
        if nt < 3: vm.op(f"buffer_store_dwordx4 {vr(o+4,4)}, v{vL16}, {S['ws']}, s52 offen offset:{2048*(nt&1)+1024}{RG()}")
        stamp(a, 10 + nt, 3)
        if nt == 1: vm.q = [("ha", 0)]*len(vm.q)
        if nt == OPT.get("fa", 2) and OPT.get("h2", 0):
            vm.wait(("ha", 0))
            a(f"v_mov_b32 v9, s{sTAG}\ns_mov_b64 exec, 1")
            vm.op(f"buffer_store_dword v9, v{vZ}, {S['ws']}, s56 offen sc1")
            a(f"s_mov_b64 exec, -1\ns_add_u32 s56, s56, {FH_B}")
    stamp(a, 14, 3)
    ACC, WF, GB, XR, NR = [16, 32], [48, 56, 88], 64, 80, 32
    sTT, sKH, sT5, sF5 = 54, 55, 57, 58
    a(f"s_and_b32 s{sTT}, s{sW}, 1\ns_lshr_b32 s{sKH}, s{sW}, 1")
    a(f"s_lshr_b32 s52, s{sC}, 3\ns_lshl_b32 s52, s52, 1\ns_lshl_b32 s{sT5}, s{sTB}, 2\ns_add_u32 s{sT5}, s{sT5}, s52\ns_add_u32 s{sT5}, s{sT5}, s{sTT}")
    a(f"s_and_b32 s{sF5}, s{sC}, 7\ns_lshl_b32 s{sF5}, s{sF5}, 1\ns_add_u32 s{sF5}, s{sF5}, s{sKH}")
    tr_addr(a, 10, 11, True, 7, True)
    a(f"s_lshl_b32 s52, s{sKH}, 6\nv_xor_b32 v10, s52, v10\ns_lshl_b32 s52, s{sKH}, 13\nv_add_u32 v10, s52, v10\nv_xor_b32 v11, 64, v10")
    for r in range(32): a(f"v_mov_b32 v{16+r}, 0")
    poll_addr(a, 5, LF())
    a(f"s_lshl_b32 s52, s{sT5}, {11-LF()}\ns_lshl_b32 s53, s{sKH}, {10-LF()}\ns_add_u32 s52, s52, s53\ns_add_u32 s52, s52, {hex(WS_FH)}")
    a(f"s_lshl_b32 s61, s{sT5}, 15\ns_lshl_b32 s59, s{sF5}, 11\ns_add_u32 s61, s61, s59\ns_add_u32 s61, s61, {hex(WS_X1)}")
    H2 = OPT.get("h2", 0)
    a(f"s_add_u32 s62, s52, {FH_B}")
    if H2:
        a(f"s_mov_b64 exec, 0xff")
        vm.op(f"buffer_load_dword v6, v5, {S['ws']}, s52 offen sc1", "fa")
        a("s_mov_b64 exec, -1")
        set_flag_rg(a, vm, "s56", 9)
        stamp(a, 12)
        a(f"s_mov_b64 exec, 0xff\nv_cmp_ne_u32 vcc, s{sTAG}, v6\ns_mov_b64 exec, -1\ns_cbranch_vccz La_haok")
        poll(a, vm, "0xff", 5, "s52", 6, 2)
        a("La_haok:")
        vm.q = [None]
    else:
        set_flag_rg(a, vm, "s56", 9)
        stamp(a, 12)
        poll(a, vm, "0xff", 5, "s52", 6, OPT.get("fh", 4))
    stamp(a, 13); stamp(a, 0, 4)
    a(f"s_mul_i32 s52, s{sT5}, {112*1024}\ns_mul_i32 s53, s{sKH}, {56*1024}\ns_add_u32 s52, s52, s53\ns_add_u32 s52, s52, {hex(WS_H)}")
    def ldH(ks):
        p, j = h_pj(ks)
        if j in (0, 4): a(f"s_add_u32 s53, s{sR}, {p}\ns_and_b32 s53, s53, 7\ns_mul_i32 s53, s53, 7168\ns_add_u32 s53, s53, s52" + ("\ns_add_u32 s53, s53, 4096" if j else ""))
        vm.op(f"buffer_load_dwordx4 {vr(AF+4*(ks%NR),4)}, v{vL16}, {S['ws']}, s53 offen offset:{1024*(j%4)}{RL()}", ("h", ks))
    PF = OPT.get('pf5', 12)
    for ks in range(PF):
        ldH(ks)
        if ks == 7: a("s_barrier")
    slot = lambda s: s if s < 9 else s - 9
    def rdW2(ks):
        s, k = ks // 4, ks % 4
        return [(f"ds_read_b64_tr_b16 {vr(WF[ks%3]+4*n+2*st,2)}, v{12+n} offset:{2048*k+1024*st}", ("w", ks)) for n in range(2) for st in range(2)]
    def setslot(s): a(f"v_add_u32 v12, {16384*slot(s)}, v10\nv_add_u32 v13, {16384*slot(s)}, v11")
    lg.reset(); setslot(0)
    for x in rdW2(0) + rdW2(1): lg.op(*x)
    for ks in range(56):
        n = ks + 2
        lg.wait(("w", ks))
        if ks in (11, 19): sig(a, "b9" if ks == 11 else "b10", 126, 127, lg)
        if ONEWAY() and n + 2 in (36, 48): lg.op(f"ds_read_b32 v125, v126 offset:{4*CNT['b11' if n + 2 == 36 else 'b12']}", "cnt")
        if n < 56 and n % 4 == 0:
            if n // 4 in (9, 12):
                lg.wait("cnt"); await_(a, "b11" if n == 36 else "b12", 126, 125, True)
            setslot(n // 4)
        vm.wait(("h", ks))
        a(f"v_mfma_f32_32x32x16_bf16 {vr(ACC[0],16)}, {vr(WF[ks%3],4)}, {vr(AF+4*(ks%NR),4)}, {vr(ACC[0],16)}")
        if n < 56: [lg.op(*x) for x in rdW2(n)]
        a(f"v_mfma_f32_32x32x16_bf16 {vr(ACC[1],16)}, {vr(WF[ks%3]+4,4)}, {vr(AF+4*(ks%NR),4)}, {vr(ACC[1],16)}")
        if H2 and ks == OPT.get("fb", 10):
            a("s_mov_b64 exec, 0xff"); vm.op(f"buffer_load_dword v6, v5, {S['ws']}, s62 offen sc1", "fb"); a("s_mov_b64 exec, -1")
        if H2 and ks + PF == 32:
            vm.wait("fb")
            a(f"s_mov_b64 exec, 0xff\nv_cmp_ne_u32 vcc, s{sTAG}, v6\ns_mov_b64 exec, -1\ns_cbranch_vccz La_hbok")
            q0 = list(vm.q)
            poll(a, vm, "0xff", 5, "s62", 6, 0)
            vm.q = q0
            a("La_hbok:")
        if ks + PF < 56: ldH(ks + PF)
        if ks == 44:
            for q in range(2): vm.op(f"buffer_load_dwordx4 {vr(XR+4*q,4)}, v{vL16}, {S['ws']}, s61 offen offset:{1024*q} sc1", "x1")
        if ks % 4 == 3: stamp(a, 1 + ks//4, 4)
    stamp(a, 14)
    vm.wait("x1")
    a(f"s_xor_b32 s52, s{sW}, 2\ns_lshl_b32 s52, s52, 12\ns_add_u32 s52, s52, {16384*5}\nv_add_u32 v5, s52, v{vL16}")
    a(f"s_lshl_b32 s52, s{sW}, 12\ns_add_u32 s52, s52, {16384*5}\nv_add_u32 v6, s52, v{vL16}")
    a(f"v_bfe_u32 v9, v{vLANE}, 5, 1\nv_lshlrev_b32 v7, 4, v9\ns_lshl_b32 s52, s{sKH}, 7\ns_add_u32 s52, s52, {L_GB}\nv_add_u32 v7, s52, v7")
    for q in range(4): a(f"ds_read_b128 {vr(GB+4*q,4)}, v7 offset:{32*q}")
    XF = 96
    for r in range(8): a(f"v_lshlrev_b32 v{XF+2*r}, 16, v{XR+r}\nv_and_b32 v{XF+2*r+1}, 0xffff0000, v{XR+r}")
    for q in range(4): a(f"ds_write_b128 v5, {vr(ACC[1]+4*q,4)} offset:{1024*q}")
    a("s_waitcnt lgkmcnt(0)\ns_barrier")
    for q in range(4): a(f"ds_read_b128 {vr(ACC[1]+4*q,4)}, v6 offset:{1024*q}")
    a(f"v_and_b32 v7, 31, v{vLANE}\nv_lshlrev_b32 v8, 10, v7\nv_lshl_add_u32 v8, v9, 4, v8")
    a(f"s_lshl_b32 s52, s{sT5}, 15\ns_lshl_b32 s53, s{sF5}, 6\ns_add_u32 s52, s52, s53")
    for q in range(4):
        a(f"s_waitcnt lgkmcnt({3-q})")
        for r in range(4*q, 4*q+4): a(f"v_add_f32 v{ACC[0]+r}, v{ACC[0]+r}, v{ACC[1]+r}")
        for r in range(4*q, 4*q+4): a(f"v_fmac_f32 v{XF+r}, v{ACC[0]+r}, v{GB+r}")
    for r in range(8): a(f"v_cvt_pk_bf16_f32 v{64+r}, v{XF+2*r}, v{XF+2*r+1}")
    ofl = ['', ' sc1', ' nt', ' sc0 sc1', ' sc1 nt'][OPT.get('osc', 0)]
    if OPT.get("otr", 0):
        a(f"s_mul_i32 s53, s{sW}, 2560\ns_add_u32 s53, s53, {16384*6}\nv_mul_u32_u24 v5, 80, v7\nv_lshl_add_u32 v5, v9, 4, v5\nv_add_u32 v5, s53, v5")
        a(f"v_lshrrev_b32 v6, 2, v{vLANE}\nv_and_b32 v7, 3, v{vLANE}\nv_lshlrev_b32 v8, 10, v6\nv_lshl_add_u32 v8, v7, 4, v8\nv_mul_u32_u24 v6, 80, v6\nv_lshl_add_u32 v6, v7, 4, v6\nv_add_u32 v6, s53, v6")
        for p in range(2):
            a(f"v_permlane32_swap_b32 v{64+4*p}, v{64+4*p+2}\nv_permlane32_swap_b32 v{64+4*p+1}, v{64+4*p+3}")
            a(f"ds_write_b128 v5, {vr(64+4*p,4)} offset:{32*p}")
        a("s_add_u32 s53, s52, 16384\ns_waitcnt lgkmcnt(0)")
        for p in range(2): a(f"ds_read_b128 {vr(72+4*p,4)}, v6 offset:{1280*p}")
        for p in range(2):
            a(f"s_waitcnt lgkmcnt({1-p})")
            vm.op(f"buffer_store_dwordx4 {vr(72+4*p,4)}, v8, {S['out']}, s{52+p} offen{ofl}")
    else:
        for p in range(2):
            a(f"v_permlane32_swap_b32 v{64+4*p}, v{64+4*p+2}\nv_permlane32_swap_b32 v{64+4*p+1}, v{64+4*p+3}")
            vm.op(f"buffer_store_dwordx4 {vr(64+4*p,4)}, v8, {S['out']}, s52 offen offset:{32*p}{ofl}")

def wq_loop(a):
    a(f"v_lshrrev_b32 v4, 2, v{vLANE}\nv_mul_u32_u24 v4, 3072, v4\nv_and_b32 v5, 3, v{vLANE}\nv_lshl_add_u32 v4, v5, 4, v4")
    a(f"s_lshl_b32 s55, s{sR}, 2\ns_add_u32 s55, s55, s67\ns_lshl_b32 s53, s67, 10\ns_add_u32 s53, s53, {L_WQ}\ns_lshl_b32 s56, s{sC}, 6\ns_mov_b32 s51, 8\nLh_ql:")
    a(f"s_and_b32 s52, s55, 31\ns_mul_i32 s52, s52, {16*3072}\ns_mov_b32 m0, s53\ns_add_u32 s52, s52, s56")
    a(f"buffer_load_dwordx4 v4, {S['wqkv']}, s52 offen lds")
    a(f"s_add_u32 s55, s55, 4\ns_add_u32 s53, s53, 4096\ns_sub_u32 s51, s51, 1\ns_cmp_lg_u32 s51, 0\ns_cbranch_scc1 Lh_ql")

def helper(a):
    vm = Track(a, "vmcnt", 63)
    sH, sCol = 67, 66
    a("Lh_b2:")
    a("s_waitcnt vmcnt(0) lgkmcnt(0)\ns_barrier")
    if OPT.get("st", 7) & 2:
        a(f"s_lshl_b32 s57, s2, 2\ns_add_u32 s57, s57, s{sH}\ns_lshl_b32 s58, s57, 9\ns_mul_i32 s57, s57, {5*128}\ns_add_u32 s57, s57, {9216*128}")
        for n in range(3): a(stouch("w1", 57, n))
    a("s_barrier")
    wq_loop(a)
    if OPT.get("st", 7) & 2:
        for n in range(3, 5): a(stouch("w1", 57, n))
        a(stouch("wo", 58, 0))
    a("s_waitcnt vmcnt(0)")
    if OPT.get("touch", 0) == 1: mall_touch(a)
    stamp(a, 2)
    a("s_barrier")
    if OPT.get("st", 7) & 2:
        for n in range(1, 4): a(stouch("wo", 58, n))
    early, late = att_setup()
    for x in early + late: a(x)
    if OPT.get("hearly", 1):
        att_first(a, vm, OPT.get("fkh", 24))
        if OPT.get("qj", 1): q_join(a)
        else: a("s_barrier")
        att_q(a)
    else:
        a("s_barrier")
        att_q(a)
        att_first(a, vm, OPT.get("fk", 0))

def helper2(a):
    vm = Track(a, "vmcnt", 63); lg = Track(a, "lgkmcnt", 15)
    sH = 67
    stamp(a, 6, 8)
    set_flag(a, vm, "s64", vZ, 8, RO())
    stamp(a, 7); stamp(a, 7, 8)
    vF, vH = 13, 14
    a(f"s_sub_u32 s52, s{sI}, 8\ns_cmp_ge_u32 s52, 16\ns_cbranch_scc1 Lh_nomod2")
    mod_partial(a, vm, vMOD); mod_join(a, vm, 66, "Lh_nomod2")
    a("Lh_nomod2:")
    def w2_touch():
        a(f"s_mul_i32 s52, s{sI}, 7\ns_lshl_b32 s53, s{sH}, 1\ns_add_u32 s52, s52, s53\ns_lshl_b32 s52, s52, 13\nv_lshlrev_b32 v5, 7, v{vLANE}")
        a(f"buffer_load_dword v248, v5, {S['w2']}, s52 offen\ns_add_u32 s52, s52, 8192\nbuffer_load_dword v248, v5, {S['w2']}, s52 offen")
    if OPT.get("w2s") == 1: w2_touch()
    sig_regs(a, 12, 13)
    await_(a, "b5b", 12, 14)
    a(f"v_lshlrev_b32 v4, 5, v{vLANE}\ns_lshl_b32 s52, s{sH}, 11\ns_add_u32 s52, s52, 4096")
    gran_poll(a, vm, [f"buffer_load_dwordx4 v[16:19], v4, {S['ws']}, s52 offen sc1", f"buffer_load_dwordx4 v[20:23], v4, {S['ws']}, s52 offen offset:16 sc1"], [16, 20])
    for j, r in enumerate((16, 18, 20, 22)): a(f"v_lshlrev_b32 v{24+2*j}, 16, v{r}\nv_and_b32 v{25+2*j}, 0xffff0000, v{r}")
    a(f"s_cmp_eq_u32 s{sH}, 1\ns_cbranch_scc1 Lh_tabg")
    a(f"s_cmp_eq_u32 s{sH}, 3\ns_cselect_b32 s53, {hx(-1/LOG2E)}, 1.0")
    a(f"s_lshl_b32 s54, s{sC}, 2\ns_and_b32 s55, s{sC}, 7\ns_lshl_b32 s55, s55, 3\ns_lshl_b32 s56, s{sH}, 6\ns_cmp_eq_u32 s{sH}, 3\ns_cselect_b32 s54, s55, s54\ns_cselect_b32 s55, 8, 4")
    a(f"s_cselect_b32 s56, 256, s56\ns_add_u32 s56, s56, {L_TAB}")
    for r in range(8): a(f"v_mul_f32 v{24+r}, s53, v{24+r}")
    a(f"v_subrev_u32 v5, s54, v{vLANE}\nv_cmp_gt_u32 vcc, s55, v5\nv_lshlrev_b32 v5, 5, v5\nv_add_u32 v5, s56, v5")
    a("s_and_saveexec_b64 s[56:57], vcc\nds_write_b128 v5, v[24:27]\nds_write_b128 v5, v[28:31] offset:16\ns_mov_b64 exec, -1")
    a(f"s_cmp_lg_u32 s{sH}, 2\ns_cbranch_scc1 Lh_tabd")
    a("Lh_tabg:")
    a(f"v_lshrrev_b32 v5, 1, v{vLANE}\ns_lshl_b32 s53, s{sR}, 2\nv_subrev_u32 v5, s53, v5\nv_and_b32 v5, 31, v5\nv_lshlrev_b32 v5, 6, v5\nv_and_b32 v6, 1, v{vLANE}\nv_lshl_add_u32 v5, v6, 3, v5")
    a(f"s_and_b32 s53, s{sH}, 1\ns_lshl_b32 s53, s53, 4\ns_add_u32 s53, s53, {L_G}\nv_add_u32 v5, s53, v5")
    a("v_mov_b32 v17, v18\nv_mov_b32 v21, v22\nds_write_b64 v5, v[16:17]\nds_write_b64 v5, v[20:21] offset:32")
    a("Lh_tabd:")
    vW2 = 10
    a(f"v_lshrrev_b32 v{vW2}, 3, v{vLANE}\nv_lshlrev_b32 v{vW2}, 10, v{vW2}\nv_bfe_u32 v5, v{vLANE}, 4, 1\nv_lshlrev_b32 v5, 2, v5\nv_xor_b32 v5, v5, v{vLANE}\nv_and_b32 v5, 7, v5\nv_lshl_add_u32 v{vW2}, v5, 4, v{vW2}")
    a(f"s_lshl_b32 s58, s{sR}, 7\ns_lshl_b32 s59, s{sH}, 11")
    def w2_row(s):
        if s < 8:
            a(f"s_add_u32 s61, s{sR}, {s}\ns_and_b32 s61, s61, 7\ns_mul_i32 s61, s61, 7\ns_add_u32 s61, s61, s{sH}")
        else:
            a(f"s_add_u32 s60, s{sH}, {4*(s-8)}\ns_mul_i32 s61, s60, 43\ns_lshr_b32 s61, s61, 7\ns_mul_i32 s62, s61, 3\ns_sub_u32 s60, s60, s62")
            a(f"s_add_u32 s61, s61, s{sR}\ns_and_b32 s61, s61, 7\ns_mul_i32 s61, s61, 7\ns_add_u32 s61, s61, s60\ns_add_u32 s61, s61, 4")
        a("s_lshl_b32 s61, s61, 14\ns_add_u32 s61, s61, s58")
    NREG = OPT.get("nreg", 10); S0 = 14 - NREG; RB = 48
    def w2_reg(s):
        w2_row(s)
        for j in range(4):
            a(f"s_add_u32 s52, s61, {56*(j>>1)*16384+8192*(j&1)}")
            vm.op(f"buffer_load_dwordx4 {vr(RB+16*(s-S0)+4*j,4)}, v{vW2}, {S['w2']}, s52 offen", ("w2r", s))
    EARLY = list(range(14 - OPT.get("early", 0), 14))
    if EARLY:
        a("s_waitcnt lgkmcnt(0)"); await_(a, "b5c", 12, 14)
        for s_ in EARLY: w2_reg(s_)
    if OPT.get("w2s") == 2:
        a("s_waitcnt lgkmcnt(0)"); w2_touch()
    else: a("s_waitcnt lgkmcnt(0)")
    stamp(a, 8)
    a("s_barrier")
    def w2_stage(s, thr=None):
        sl = s if s < 9 else s - 9
        w2_row(s)
        for kh in range(2):
            for hf in range(2):
                a(f"s_add_u32 m0, s59, {16384*sl+8192*kh+1024*hf}\ns_add_u32 s52, s61, {56*kh*16384+8192*hf}")
                vm.op(f"buffer_load_dwordx4 v{vW2}, {S['w2']}, s52 offen lds", ("w2", s))
        if thr: vm.wait(("w2", s-1))
    w2_stage(0); w2_stage(1)
    ACC, GF, WF = 16, 32, 48
    a(f"v_bfe_u32 v9, v{vLANE}, 5, 1\nv_lshlrev_b32 v6, 5, v9\nv_and_b32 v5, 1, v{vLANE}\nv_lshl_add_u32 v6, v5, 4, v6\nv_add_u32 v6, {L_G}, v6")
    for r in range(16): a(f"v_mov_b32 v{ACC+r}, 0")
    GZ = OPT.get("gz", 1)
    for r in range(8): a(f"v_mov_b32 v{GF+r}, 0")
    a("s_mov_b32 s56, 3\ns_mov_b32 s57, 3")
    def rdG(e): a(("s_mov_b64 exec, s[56:57]\n" if GZ else "") + f"ds_read_b128 {vr(GF+4*e,4)}, v6 offset:{64*e}" + ("\ns_mov_b64 exec, -1" if GZ else ""))
    a(f"s_cmp_eq_u32 s{sH}, 3\ns_cbranch_scc1 Lh_uwh")
    tr_addr(a, 4, 5, True, 6, False)
    a(f"s_lshl_b32 s52, s{sH}, 10\ns_add_u32 s52, s52, {L_W1}\nv_add_u32 v4, s52, v4\ns_mov_b32 s51, 16")
    a("Lh_uwl:")
    for e in range(2):
        rdG(e)
        for st in range(2): a(f"ds_read_b64_tr_b16 {vr(WF+4*e+2*st,2)}, v4 offset:{3072*e+512*st}")
    a("v_add_u32 v4, 7168, v4\nv_add_u32 v6, 128, v6\ns_sub_u32 s51, s51, 1")
    for e in range(2):
        a(f"s_waitcnt lgkmcnt({3-3*e})")
        a(f"v_mfma_f32_32x32x16_bf16 {vr(ACC,16)}, {vr(WF+4*e,4)}, {vr(GF+4*e,4)}, {vr(ACC,16)}")
    a("s_cmp_lg_u32 s51, 0\ns_cbranch_scc1 Lh_uwl")
    a("s_branch Lh_uwd")
    a("Lh_uwh:")
    half_tr_addr(a, 4, 5)
    a(f"v_add_u32 v4, {L_W1+6144}, v4\ns_mov_b32 s51, 16")
    a(f"v_and_b32 v8, 16, v0\nv_cmp_eq_u32 vcc, 0, v8\nv_mov_b32 v8, 0xeeeeeeee\nv_mov_b32 v5, 0x44444444\nv_cndmask_b32 v8, v8, v5, vcc")
    a("Lh_uwhl:")
    for e in range(2): rdG(e)
    for st in range(2): a(f"ds_read_b64_tr_b16 {vr(WF+2*st,2)}, v4 offset:{256*st}")
    a("v_add_u32 v4, 7168, v4\nv_add_u32 v6, 128, v6\ns_sub_u32 s51, s51, 1\ns_waitcnt lgkmcnt(0)")
    a(f"v_smfmac_f32_32x32x32_bf16 {vr(ACC,16)}, {vr(WF,4)}, {vr(GF,8)}, v8")
    a("s_cmp_lg_u32 s51, 0\ns_cbranch_scc1 Lh_uwhl")
    a("s_nop 7\ns_nop 3")
    for r in range(8): a(f"v_add_f32 v{ACC+r}, v{ACC+r}, v{ACC+8+r}")
    a("Lh_uwd:")
    a(f"v_and_b32 v5, 1, v{vLANE}\nv_cmp_eq_u32 vcc, 1, v5\nv_mov_b32 v7, {hx(-LOG2E)}\nv_cndmask_b32 v7, 1.0, v7, vcc")
    a(f"v_lshlrev_b32 v6, 7, v9\nv_lshl_add_u32 v6, v5, 6, v6\ns_lshl_b32 s52, s{sH}, 8\ns_add_u32 s52, s52, {L_UW}\nv_add_u32 v6, s52, v6")
    a("s_nop 3")
    for r in range(16): a(f"v_mul_f32 v{ACC+r}, v{ACC+r}, v7")
    a("s_mov_b32 exec_lo, 3\ns_mov_b32 exec_hi, 3")
    for q in range(4): a(f"ds_write_b128 v6, {vr(ACC+4*q,4)} offset:{16*q}")
    a("s_mov_b64 exec, -1\ns_waitcnt lgkmcnt(0)")
    stamp(a, 9)
    if ONEWAY(): sig(a, "uw", 12, 13); await_(a, "uw", 12, 14)
    await_(a, "b6b", 12, 14)
    if OPT.get("e23", 0) and S0 == 4: w2_stage(2); w2_stage(3)
    if not OPT.get("now2"):
        for s in range(S0, 14):
            if s not in EARLY: w2_reg(s)
    await_(a, "b7", 12, 14)
    a(f"v_add_u32 v4, s59, v{vL16}\nv_add_u32 v5, 0x10000, v4\nv_add_u32 v6, 0x20000, v4")
    def w2_put(s):
        sl = s if s < 9 else s - 9
        for j in range(4): a(f"ds_write_b128 v{4 + sl//4}, {vr(RB+16*(s-S0)+4*j,4)} offset:{16384*(sl%4)+8192*(j>>1)+1024*(j&1)}")
    if not (OPT.get('e23', 0) and S0 == 4):
        for s in range(2, S0): w2_stage(s, True)
    for s in range(S0, 9):
        vm.wait(("w2r", s)); w2_put(s)
        if (s - S0) % 2 == 1: a("s_waitcnt lgkmcnt(4)")
    vm.wait_all()
    a("s_waitcnt lgkmcnt(0)")
    stamp(a, 12)
    a("s_barrier")
    if OPT.get("fast") and OPT.get("wb", 1):
        a(f"s_lshl_b32 s52, s{sC}, 2\ns_add_u32 s52, s52, s{sH}\ns_cmp_lg_u32 s52, 0\ns_cbranch_scc1 Lh_nowb\nbuffer_wbl2 sc1\nLh_nowb:")
    await_(a, "b9", 12, 14)
    for s in (9, 10, 11): w2_put(s)
    if ONEWAY(): a("s_waitcnt lgkmcnt(0)"); sig(a, "b11", 12, 13)
    await_(a, "b10", 12, 14)
    for s in (12, 13): w2_put(s)
    if not ONEWAY(): a("s_waitcnt lgkmcnt(8)\ns_barrier")
    a("s_waitcnt lgkmcnt(0)"); sig(a, "b12", 12, 13)
    a("s_barrier")

def diag_out(a, slot):
    if not DIAG: return
    stamp(a, 15)
    a("s_memrealtime s[52:53]\ns_waitcnt vmcnt(0) lgkmcnt(0)")
    a("s_mov_b64 exec, 1")
    for i in range(16):
        a(f"s_sub_u32 s{70+2*i}, s{70+2*i}, s3\nv_mov_b32 v{16+i}, s{70+2*i}")
    a("v_mov_b32 v32, s69\nv_mov_b32 v33, s52" if False else "v_mov_b32 v32, v250\nv_mov_b32 v33, s52")
    a(f"s_lshl_b32 s54, s2, 10\ns_lshl_b32 s55, s{sW}, 7\ns_add_u32 s54, s54, s55\ns_add_u32 s54, s54, {hex(WS_DIAG)}")
    for q in range(4): a(f"buffer_store_dwordx4 {vr(16+4*q,4)}, v{vZ}, {S['ws']}, s54 offen offset:{16*q}")
    a(f"buffer_store_dwordx2 v[32:33], v{vZ}, {S['ws']}, s54 offen offset:64")
    if OPT.get("dbgstart") and slot == 0:
        a(f"s_cmp_ge_u32 s2, 8\ns_cbranch_scc1 Ldiag{slot}\ns_cmp_lg_u32 s{sW}, 0\ns_cbranch_scc1 Ldiag{slot}\ns_lshl_b32 s54, s2, 2\ns_add_u32 s54, s54, 4")
        a(f"v_subrev_u32 v32, s{sTAG}, v250\nv_add_u32 v32, 1000, v32\nbuffer_store_dword v32, v{vZ}, {S['dbg']}, s54 offen")
        a(f"s_getreg_b32 s55, hwreg(HW_REG_XCC_ID)\ns_and_b32 s55, s55, 15\nv_mov_b32 v32, s55\ns_cmp_ge_u32 s2, 7\ns_cbranch_scc1 Ldiag{slot}\nbuffer_store_dword v32, v{vZ}, {S['dbg']}, s54 offen offset:32")
    if OPT.get("dbgout") and slot == 0:
        a(f"s_lshl_b32 s54, s2, 3\ns_add_u32 s54, s54, s{sW}\ns_cmp_lg_u32 s54, {OPT['dbgout']*8}\ns_cbranch_scc1 Ldiag{slot}")
        for i in range(1, 16): a(f"buffer_store_dword v{16+i}, v{vZ}, {S['dbg']}, 0 offen offset:{4*i}")
    a(f"Ldiag{slot}:")

def build():
    a = Asm()
    a("s_cmp_ge_u32 s2, 256\ns_cbranch_scc1 Lend")
    for nm in ("x", "dbg", "wmod", "c", "wqkv", "ws", "wo", "w1", "w2", "out"):
        a(f"s_load_dwordx2 {sr(SRD[nm],2)}, s[0:1], {KA[nm]}")
    if DIAG: a("s_memtime s[70:71]\ns_memrealtime s[72:73]")
    a(f"v_lshrrev_b32 v4, 6, v0\nv_and_b32 v{vLANE}, 63, v0\nv_mov_b32 v{vZ}, 0\nv_readfirstlane_b32 s{sW}, v4\nv_lshlrev_b32 v{vL16}, 4, v{vLANE}")
    a(f"s_getpc_b64 s[56:57]\nLpc:\ns_sub_u32 s56, s56, Lpc-{NAME}_kernel\ns_subb_u32 s57, s57, 0")
    a(f"s_and_b32 s{sX}, s2, 7\ns_lshr_b32 s{sI}, s2, 3\ns_sub_u32 s67, s{sW}, 4")
    a(f"s_cmp_lt_u32 s{sW}, 6\ns_cbranch_scc1 Le_nopf")
    a(f"s_lshl_b32 s58, s{sI}, 1\ns_add_u32 s58, s58, s67\ns_sub_u32 s58, s58, 2\ns_lshl_b32 s58, s58, 10\ns_min_u32 s58, s58, Lcode_end-{NAME}_kernel-1024\nv_add_u32 v5, s58, v{vL16}")
    a("global_load_dwordx4 v[16:19], v5, s[56:57]")
    a("Le_nopf:")
    if OPT.get('m216', 0):
        a(f"s_lshl_b32 s{sTB}, s{sX}, 1\ns_lshr_b32 s52, s{sI}, 4\ns_add_u32 s{sTB}, s{sTB}, s52\ns_and_b32 s{sR}, s{sI}, 7\ns_and_b32 s{sC}, s{sI}, 15")
    else:
        a(f"s_lshr_b32 s{sTB}, s{sX}, 1\ns_lshl_b32 s{sTB}, s{sTB}, 2\ns_lshr_b32 s52, s{sI}, 3\ns_add_u32 s{sTB}, s{sTB}, s52")
        a(f"s_and_b32 s{sR}, s{sI}, 7\ns_and_b32 s{sC}, s{sX}, 1\ns_lshl_b32 s{sC}, s{sC}, 3\ns_add_u32 s{sC}, s{sC}, s{sR}")
    for nm in ("x", "dbg", "wmod", "c", "wqkv", "ws"): a(f"s_mov_b32 s{SRD[nm]+2}, {hex(SZ[nm])}\ns_mov_b32 s{SRD[nm]+3}, 0x20000")
    a("s_memrealtime s[54:55]")
    if DIAG:
        a("s_waitcnt lgkmcnt(0)\ns_mov_b32 s3, s70\ns_mov_b32 s68, s72\nv_mov_b32 v250, s72")
        if OPT.get("rt"): a("s_mov_b32 s3, s72")
        for i in range(16): a(f"s_mov_b32 s{70+2*i}, s3")
    a(f"s_cmp_ge_u32 s{sW}, 4\ns_cbranch_scc1 Lp0_h\ns_cmp_lt_u32 s{sI}, 8\ns_cbranch_scc1 Lp0_mod\ns_cmp_ge_u32 s{sI}, 24\ns_cbranch_scc1 Lp0_warm")
    p0_ln(a)
    a("Lp0_h:")
    p0_helper(a)
    a("Lp0_mod:")
    p0_mod(a)
    a("Lp0_warm:")
    p0_warm(a)
    active(a)
    a("s_branch Latt")
    helper(a)
    a("Latt:")
    vm = Track(a, "vmcnt", 63)
    slow = attention(a, vm)
    a(f"s_cmp_ge_u32 s{sW}, 4\ns_cbranch_scc1 Lhelper2")
    active2(a)
    if OPT.get("hold"):
        a(f"Lhold:\ns_memrealtime s[52:53]\ns_waitcnt lgkmcnt(0)\ns_sub_u32 s52, s52, s{sTAG}\ns_cmp_lt_u32 s52, {OPT['hold']}\ns_cbranch_scc1 Lhold")
    if DIAG: a("v_mov_b32 v250, s68")
    diag_out(a, 0)
    a("s_endpgm")
    a("Lhelper2:")
    helper2(a)
    diag_out(a, 1)
    a("s_endpgm")
    slow(a)
    a("Lend:")
    return a

def emit(a):
    hdr = open(f"cdna_kernels/{NAME}.s.ref").read().split("\n")
    out = [l for l in hdr if l.startswith(";") and "@launch" not in l and "Override launch" not in l and "grid=ceil" not in l]
    out.append(f"; @launch grid=(256,1,1) block=(512,1,1) lds={LDS_SIZE}")
    a.fix()
    out += ['.amdgcn_target "amdgcn-amd-amdhsa--gfx950"', ".text", f".globl {NAME}_kernel", ".p2align 8", f".type {NAME}_kernel,@function", f"{NAME}_kernel:",
            a.text(), "    s_endpgm", "Lcode_end:", '.section .rodata,"a"', ".p2align 6", f".amdhsa_kernel {NAME}_kernel", "  .amdhsa_next_free_vgpr 256",
            "  .amdhsa_next_free_sgpr 102", "  .amdhsa_accum_offset 256", "  .amdhsa_group_segment_fixed_size 0", "  .amdhsa_kernarg_size 88",
            "  .amdhsa_user_sgpr_count 2", "  .amdhsa_user_sgpr_kernarg_segment_ptr 1", "  .amdhsa_system_sgpr_workgroup_id_x 1",
            "  .amdhsa_float_denorm_mode_32 3", ".end_amdhsa_kernel"]
    return "\n".join(out) + "\n"

if __name__ == "__main__":
    import argparse
    p = argparse.ArgumentParser(); p.add_argument("out"); p.add_argument("--diag", action="store_true"); p.add_argument("--opt", default="")
    args = p.parse_args()
    DIAG = args.diag
    for o in args.opt.split(","):
        if o: OPT[o.split("=")[0]] = int(o.split("=")[1]) if "=" in o else 1
    set_nring(OPT.get('nring', 4))
    open(args.out, "w").write(emit(build()))
```

```python
import sys, struct
from asmlib import *

NAME = "adaLN_cond__softmax_full_mha__dense_activation_silu__prompt"
WS_MODG = 0x0
WS_STATS = 0x10000
WS_FXN, WS_FKV, WS_FO, WS_FX1, WS_FH = 0x50000, 0x52000, 0x80000, 0xC0000, 0xE0000
WS_FXC = 0x58000
sLOC = 66
FH_B = 0x8000
WS_XN, WS_K, WS_V, WS_O, WS_X1, WS_Y, WS_H = 0x200000, 0x400000, 0x600000, 0x800000, 0xA00000, 0xC00000, 0xE00000
WS_DIAG = 0x1600000
WS_SIZE = 0x1700000
KA = dict(x=0, wqkv=8, wo=16, w1=32, w2=40, c=48, wmod=56, out=64, dbg=72, ws=80)
SZ = dict(x=2048*512*2, wqkv=512*1536*2, wo=512*512*2, w1=512*1792*2, w2=1792*512*2, c=1024, wmod=512*3072*2, out=2048*512*2, dbg=256, ws=WS_SIZE)
SRD = dict(x=4, wqkv=8, wo=12, w1=16, w2=20, c=24, wmod=28, out=32, dbg=36, ws=40)
S = {k: sr(v, 4) for k, v in SRD.items()}
sW, sTB, sC, sTAG, sI, sX, sR = 44, 45, 46, 47, 48, 49, 69
SPIN = 20000
def f2u(f): return struct.unpack("<I", struct.pack("<f", f))[0]
def hx(f): return hex(f2u(f))
LOG2E = 1.4426950408889634
DIAG = False
OPT = {}
L_WKV, L_WQ = 0, 64*1024
L_DG = 96*1024
L_SA = 112*1024
L_QX = 144*1024
L_WO = 0
L_W1 = 32*1024
L_RED = 88*1024
L_TAB = 156*1024
L_GA, L_G2, L_GB, L_SCR, L_UW, L_G = L_TAB, L_TAB+128, L_TAB+256, L_TAB+512, L_TAB+1024, L_TAB+2048
LDS_SIZE = 160*1024

def stamp(a, i, grp=0):
    if DIAG and (OPT.get("focus", 0) == grp or i == 15): a(f"{'s_memrealtime' if OPT.get('rt') else 's_memtime'} s[{70+2*i}:{71+2*i}]")

_uid = [0]
def poll(a, vm, mask, vaddr, soff, vt, first=0):
    _uid[0] += 1; n = _uid[0]
    a(f"s_mov_b64 exec, {mask}\ns_mov_b32 s50, {SPIN}")
    a("; wait for flags == launch tag (bounded)")
    if first: a(f"s_sleep {first}")
    a(f"Lpoll{n}:\nbuffer_load_dword v{vt}, v{vaddr}, {S['ws']}, {soff} offen sc1\ns_waitcnt vmcnt(0)\nv_cmp_ne_u32 vcc, s{sTAG}, v{vt}\ns_sub_u32 s50, s50, 1\ns_cbranch_vccz Lpolld{n}")
    if OPT.get("psleep", 0): a(f"s_sleep {OPT.get('psleep', 0)}")
    a(f"s_cmp_lg_u32 s50, 0\ns_cbranch_scc1 Lpoll{n}")
    a(f"Lpolld{n}:\ns_mov_b64 exec, -1")
    vm.reset()

def set_flag_rg(a, vm, soff, vt):
    _uid[0] += 1; n = _uid[0]
    vm.wait_all()
    a(f"v_mov_b32 v{vt}, s{sTAG}\ns_mov_b64 exec, 1\ns_cmp_lg_u32 s{sLOC}, 0\ns_cbranch_scc1 Lfl{n}")
    a(f"buffer_store_dword v{vt}, v{vZ}, {S['ws']}, {soff} offen sc1\ns_mov_b64 exec, -1\ns_sleep {OPT.get('fr', 16)}\ns_branch Lfl{n}d\nLfl{n}:")
    vm.op(f"buffer_store_dword v{vt}, v{vZ}, {S['ws']}, {soff} offen")
    a(f"s_mov_b64 exec, -1\nLfl{n}d:")

def LF(): return OPT.get("lf", 3)
def flag_off(a, d, f, base, lf=3):
    a(f"s_lshr_b32 s50, s{f}, {lf}\ns_lshl_b32 s50, s50, 7\ns_and_b32 s{d}, s{f}, {(1 << lf) - 1}\ns_lshl_b32 s{d}, s{d}, 2\ns_add_u32 s{d}, s{d}, s50\ns_add_u32 s{d}, s{d}, {hex(base)}")

RG = lambda: [' sc1', '', ' nt', ' sc0', ' sc0 nt'][OPT.get('fast', 0)]
RY = lambda: [' sc1', '', ' nt', ' sc0', ' sc0 nt'][OPT.get('fasty', OPT.get('fast', 0))]
RF = lambda: '' if (OPT.get('fast') or OPT.get('fastf')) else ' sc1'
RO = lambda: '' if (OPT.get('fast') and OPT.get('m216')) else ' sc1'
RL = lambda: '' if OPT.get('plainld') else ' sc1'
def set_flag(a, vm, soff, vz, vt, fl=' sc1'):
    vm.wait_all()
    a(f"v_mov_b32 v{vt}, s{sTAG}\ns_mov_b64 exec, 1")
    vm.op(f"buffer_store_dword v{vt}, v{vz}, {S['ws']}, {soff} offen{fl}")
    a("s_mov_b64 exec, -1")

def rne_bf16(a, d, s):
    a(f"v_cvt_pk_bf16_f32 v{d}, v{s}, v{s}\nv_lshlrev_b32 v{d}, 16, v{d}")

def tr_addr(a, d, t, perm, rowbytes_log2, swz):
    a(f"v_bfe_u32 v{d}, v0, 2, 2\nv_bfe_u32 v{t}, v0, 5, 1")
    a(f"v_lshl_add_u32 v{d}, v{t}, {2 if perm else 3}, v{d}\nv_lshlrev_b32 v{d}, {rowbytes_log2}, v{d}")
    a(f"v_bfe_u32 v{t}, v0, 4, 1\nv_lshl_add_u32 v{d}, v{t}, 5, v{d}")
    a(f"v_and_b32 v{t}, 3, v0\nv_lshl_add_u32 v{d}, v{t}, 3, v{d}")
    if swz: a(f"v_bfe_u32 v{t}, v0, 3, 1\nv_lshl_add_u32 v{d}, v{t}, 6, v{d}")

def half_tr_addr(a, d, t):
    a(f"v_bfe_u32 v{d}, v0, 2, 1")
    a(f"v_bfe_u32 v{t}, v0, 4, 1\nv_lshl_add_u32 v{d}, v{t}, 1, v{d}")
    a(f"v_bfe_u32 v{t}, v0, 3, 1\nv_lshl_add_u32 v{d}, v{t}, 2, v{d}")
    a(f"v_bfe_u32 v{t}, v0, 5, 1\nv_lshl_add_u32 v{d}, v{t}, 4, v{d}")
    a(f"v_lshlrev_b32 v{d}, 5, v{d}\nv_and_b32 v{t}, 3, v0\nv_lshl_add_u32 v{d}, v{t}, 3, v{d}")

vLANE, vL16, vZ = 1, 2, 3
def poll_addr(a, d, lf=3):
    a(f"v_lshrrev_b32 v{d}, {lf}, v{vLANE}\nv_lshlrev_b32 v{d}, 5, v{d}\nv_and_or_b32 v{d}, v{vLANE}, {(1 << lf) - 1}, v{d}\nv_lshlrev_b32 v{d}, 2, v{d}")

def mod_issue(a, vm, sCol, B=16, T=4):
    a(f"v_bfe_u32 v{T}, v0, 1, 7\nv_and_b32 v{T+1}, 1, v0")
    a(f"v_mul_u32_u24 v{T+2}, 6144, v{T}\nv_lshl_add_u32 v{T+2}, v{T+1}, 4, v{T+2}\nv_lshlrev_b32 v{T+3}, 1, v{T}")
    a(f"s_lshl_b32 s52, s{sCol}, 1")
    for m in range(4):
        vm.op(f"buffer_load_dwordx4 {vr(B+4*m,4)}, v{T+2}, {S['wmod']}, s52 offen", "mod")
        if m < 3: a(f"s_add_u32 s52, s52, {128*6144}")
    for m in range(4): vm.op(f"buffer_load_ushort v{B+16+m}, v{T+3}, {S['c']}, 0 offen offset:{256*m}", "mod")

def mod_partial(a, vm, B=16):
    vm.wait("mod")
    C, F, T, A = B+16, B+24, B+20, B+32
    for m in range(4): a(f"v_lshlrev_b32 v{C+m}, 16, v{C+m}")
    for m in range(4): a(f"v_mul_f32 v{T+m}, {hx(-LOG2E)}, v{C+m}")
    for m in range(4): a(f"v_exp_f32 v{T+m}, v{T+m}")
    for m in range(4): a(f"v_add_f32 v{T+m}, 1.0, v{T+m}")
    for m in range(4): a(f"v_rcp_f32 v{T+m}, v{T+m}")
    for m in range(4): a(f"v_mul_f32 v{C+m}, v{C+m}, v{T+m}")
    for m in range(4): a(f"v_cvt_pk_bf16_f32 v{C+m}, v{C+m}, v{C+m}")
    for m in range(4): a(f"v_lshlrev_b32 v{C+m}, 16, v{C+m}")
    for m in range(4):
        for r in range(4):
            a(f"v_lshlrev_b32 v{F+2*r}, 16, v{B+4*m+r}\nv_and_b32 v{F+2*r+1}, 0xffff0000, v{B+4*m+r}")
        for j in range(8):
            a(f"v_mul_f32 v{A+j}, v{F+j}, v{C}" if m == 0 else f"v_fmac_f32 v{A+j}, v{F+j}, v{C+m}")
    for j in range(4): a(f"v_permlane32_swap_b32 v{A+j}, v{A+4+j}")
    for j in range(4): a(f"v_add_f32 v{A+j}, v{A+j}, v{A+4+j}")
    for j in range(2): a(f"v_permlane16_swap_b32 v{A+j}, v{A+2+j}")
    for j in range(2): a(f"v_add_f32 v{A+j}, v{A+j}, v{A+2+j}")
    for r in (8, 4, 2):
        for j in range(2): a(f"v_add_f32_dpp v{A+j}, v{A+j}, v{A+j} row_ror:{r} row_mask:0xf bank_mask:0xf")
    a("v_bfe_u32 v8, v0, 6, 2\nv_lshlrev_b32 v8, 6, v8\nv_and_b32 v9, 1, v0\nv_lshl_add_u32 v8, v9, 5, v8")
    a("v_bfe_u32 v9, v0, 4, 1\nv_lshl_add_u32 v8, v9, 3, v8\nv_bfe_u32 v9, v0, 5, 1\nv_lshl_add_u32 v8, v9, 4, v8")
    a(f"v_add_u32 v8, {L_SCR}, v8")
    a("s_mov_b32 exec_lo, 0x00030003\ns_mov_b32 exec_hi, 0x00030003")
    a(f"ds_write_b64 v8, v[{A}:{A+1}]")
    a("s_mov_b64 exec, -1")

def mod_final(a, vm, sCol):
    a("s_mov_b64 exec, 0xff")
    a(f"v_lshlrev_b32 v8, 3, v{vLANE}\nv_add_u32 v9, {L_SCR}, v8")
    for w in range(4): a(f"ds_read_b64 {vr(240+2*w,2)}, v9 offset:{64*w}")
    a(f"s_lshr_b32 s52, s{sCol}, 9\ns_cmp_eq_u32 s52, 1\ns_cselect_b32 s53, 1.0, 0\ns_cmp_eq_u32 s52, 4\ns_cselect_b32 s53, 1.0, s53")
    a(f"s_lshl_b32 s52, s{sCol}, 2")
    a("s_waitcnt lgkmcnt(0)")
    for j in range(2): a(f"v_add_f32 v{240+j}, v{240+j}, v{242+j}\nv_add_f32 v{244+j}, v{244+j}, v{246+j}")
    for j in range(2): a(f"v_add_f32 v{240+j}, v{240+j}, v{244+j}")
    a("v_cvt_pk_bf16_f32 v242, v240, v241\nv_lshlrev_b32 v240, 16, v242\nv_and_b32 v241, 0xffff0000, v242")
    a("v_add_f32 v240, s53, v240\nv_add_f32 v241, s53, v241")
    a(f"v_cvt_pk_bf16_f32 v240, v240, v241\nv_mov_b32 v241, s{sTAG}")
    vm.op(f"buffer_store_dwordx2 v[240:241], v8, {S['ws']}, s52 offen sc1")
    a("s_mov_b64 exec, -1")

def gran_poll(a, vm, loads, regs):
    _uid[0] += 1; n = _uid[0]
    a(f"s_mov_b32 s50, {SPIN}\nLgp{n}:")
    for t in loads: a(t)
    a("s_waitcnt vmcnt(0)")
    first = True
    for r in regs:
        for o in (1, 3):
            if first: a(f"v_xor_b32 v15, s{sTAG}, v{r+o}"); first = False
            else: a(f"v_xor_b32 v14, s{sTAG}, v{r+o}\nv_or_b32 v15, v15, v14")
    a("v_cmp_ne_u32 vcc, 0, v15\ns_sub_u32 s50, s50, 1")
    a(f"s_cbranch_vccz Lgpd{n}\ns_sleep {OPT.get('gsleep', 1)}\ns_cmp_lg_u32 s50, 0\ns_cbranch_scc1 Lgp{n}\nLgpd{n}:")
    vm.reset()

def tag_get(a):
    _uid[0] += 1; n = _uid[0]
    a(f"v_mov_b32 v8, {L_SCR+260}\ns_mov_b32 s50, {SPIN*20}\nLtg{n}:\nds_read_b32 v9, v8\ns_sub_u32 s50, s50, 1\ns_waitcnt lgkmcnt(0)\nv_readfirstlane_b32 s{sTAG}, v9")
    a(f"s_cmp_lg_u32 s{sTAG}, 0\ns_cbranch_scc1 Ltgd{n}\ns_cmp_lg_u32 s50, 0\ns_cbranch_scc1 Ltg{n}\nLtgd{n}:")

def tag_now(a, v):
    _uid[0] += 1; n = _uid[0]
    a(f"s_mov_b32 s50, {SPIN}\nLtn{n}:\nv_readfirstlane_b32 s{sTAG}, v{v}\ns_sub_u32 s50, s50, 1")
    a(f"s_cmp_lg_u32 s{sTAG}, 0\ns_cbranch_scc1 Ltnd{n}\ns_cmp_eq_u32 s50, 0\ns_cbranch_scc1 Ltnd{n}")
    a(f"buffer_load_dword v{v}, v{vZ}, {S['dbg']}, 0 offen sc1\ns_waitcnt vmcnt(0)\ns_branch Ltn{n}\nLtnd{n}:")

def read_tag(a):
    a(f"v_mov_b32 v8, {L_SCR+260}\nds_read_b32 v9, v8\ns_waitcnt lgkmcnt(0)\nv_readfirstlane_b32 s{sTAG}, v9")

def mall_touch(a):
    _uid[0] += 1; n = _uid[0]
    a(f"v_lshlrev_b32 v5, 7, v{vLANE}\ns_cmp_eq_u32 s{sW}, 6\ns_cbranch_scc1 Lt6_{n}\ns_cmp_eq_u32 s{sW}, 7\ns_cbranch_scc1 Lt7_{n}")
    a(f"s_mul_i32 s52, s2, {56*128}\ns_cmp_eq_u32 s{sW}, 5\ns_cbranch_scc1 Lt5_{n}")
    a(f"buffer_load_dword v248, v5, {S['w1']}, s52 offen\ns_branch Ltd_{n}")
    a(f"Lt5_{n}:\nbuffer_load_dword v248, v5, {S['w2']}, s52 offen\ns_branch Ltd_{n}")
    a(f"Lt6_{n}:\nv_lshrrev_b32 v6, 5, v{vLANE}\nv_mul_u32_u24 v6, {6144-4096}, v6\nv_add_u32 v5, v5, v6\ns_mul_i32 s52, s2, 12288\ns_add_u32 s52, s52, 2048")
    a(f"buffer_load_dword v248, v5, {S['wmod']}, s52 offen\ns_branch Ltd_{n}")
    a(f"Lt7_{n}:\ns_lshl_b32 s52, s2, 11\ns_mov_b64 exec, 0xffff\nbuffer_load_dword v248, v5, {S['wo']}, s52 offen\ns_mov_b64 exec, -1")
    a(f"Ltd_{n}:")

def stouch(nm, soff, line):
    return f"s_buffer_load_dwordx2 s[0:1], {S[nm]}, s{soff} offset:{128*line+60}"

def mod_join(a, vm, sCol, name, pre=None):
    a(f"v_mov_b32 v8, {L_SCR+256}\nv_mov_b32 v9, 1\ns_waitcnt lgkmcnt(0)\ns_mov_b64 exec, 1\nds_add_rtn_u32 v9, v8, v9\ns_mov_b64 exec, -1\ns_waitcnt lgkmcnt(0)")
    a(f"v_readfirstlane_b32 s52, v9\ns_cmp_lg_u32 s52, 3\ns_cbranch_scc1 {name}")
    if pre: pre()
    mod_final(a, vm, sCol)

NRING = 4
def set_nring(n):
    global NRING
    NRING = n
vSTASH, vMOD, vXR = 180, 208, 208
QF, OA, SB, RING = 16, 32, [96, 112], 128
vV, vWO, vW1, vW1H = 4, 12, 13, 14
sHH, sKQ, sK, sV = 54, 55, 56, 57
def att_setup():
    a = Asm()
    a(f"s_and_b32 s{sHH}, s{sW}, 1\ns_lshr_b32 s{sKQ}, s{sW}, 1")
    a(f"v_and_b32 v{vV}, 15, v{vLANE}\nv_lshlrev_b32 v{vV}, 4, v{vV}\nv_bfe_u32 v5, v{vLANE}, 5, 1\nv_lshl_add_u32 v{vV}, v5, 8, v{vV}")
    a(f"s_lshl_b32 s58, s{sC}, 1\ns_add_u32 s58, s58, s{sHH}")
    a(f"s_lshl_b32 s59, s58, 16")
    a(f"s_lshl_b32 s52, s{sKQ}, 14\ns_add_u32 s52, s52, s59\ns_add_u32 s{sK}, s52, {hex(WS_K)}\ns_add_u32 s{sV}, s52, {hex(WS_V)}")
    a("s_mov_b32 s60, 0x0000ffff\ns_mov_b32 s61, 0x0000ffff")
    a(f"s_lshl_b32 s52, s{sKQ}, 8\ns_lshr_b32 s53, s{sC}, 1\ns_lshl_b32 s53, s53, 11\ns_add_u32 s52, s52, s53\ns_add_u32 s62, s52, {hex(WS_FKV)}")
    a(f"s_and_b32 s65, s{sTB}, {1 if OPT.get('m216', 0) else 3}\ns_lshl_b32 s65, s65, {13 if OPT.get('m216', 0) else 12}")
    a(f"v_lshrrev_b32 v6, 2, v{vLANE}\nv_and_b32 v11, 3, v{vLANE}\nv_lshlrev_b32 v{vWO}, 10, v6\nv_lshl_add_u32 v{vWO}, v11, 4, v{vWO}")
    w1_voffs(a, vW1, vW1H, 6, 11, 15)
    a(f"v_and_b32 v5, 7, v{vLANE}\nv_lshlrev_b32 v5, 2, v5\nv_bfe_u32 v6, v{vLANE}, 3, 1\nv_lshl_add_u32 v5, v6, 7, v5\nv_bfe_u32 v6, v{vLANE}, 4, 1\nv_lshl_add_u32 v5, v6, 10, v5")
    a(f"v_and_b32 v6, 0x1b, v{vLANE}\nv_cmp_eq_u32 vcc, 16, v6\nv_mov_b32 v15, 0x3f803f80\ns_nop 0\nv_cndmask_b32 v15, 0, v15, vcc")
    for r in range(64): a(f"v_mov_b32 v{OA+r}, 0")
    early = [I.text for I in a.L]
    late = [f"v_mov_b32 v{RING+12*sl+4+r}, v15" for sl in range(NRING) for r in range(8)] + [f"v_mov_b32 v{RING+12*NRING}, 0xdddddddd"]
    return early, late

CNT = dict(b5b=3, b6b=4, b7=5, b9=6, b10=7, b11=8, b12=9, uw=10, b5c=11)
ONEWAY = lambda: OPT.get("ow", 1)
def sig(a, name, va, vb, lg=None):
    if not ONEWAY(): a("s_barrier"); return
    a("s_mov_b64 exec, 1")
    t = f"ds_add_u32 v{va}, v{vb} offset:{4*CNT[name]}"
    lg.op(t, "sig") if lg else a(t)
    a("s_mov_b64 exec, -1")
def sig_regs(a, va, vb): a(f"v_mov_b32 v{va}, {L_SCR+256}\nv_mov_b32 v{vb}, 1")
def await_(a, name, va, vt, have=False):
    if not ONEWAY(): a("s_barrier"); return
    _uid[0] += 1; n = _uid[0]
    if have: a(f"v_readfirstlane_b32 s50, v{vt}\ns_cmp_eq_u32 s50, 4\ns_cbranch_scc1 Law{n}d")
    a(f"s_mov_b32 s63, {SPIN*20}\nLaw{n}:\nds_read_b32 v{vt}, v{va} offset:{4*CNT[name]}\ns_sub_u32 s63, s63, 1\ns_waitcnt lgkmcnt(0)\nv_readfirstlane_b32 s50, v{vt}")
    a(f"s_cmp_eq_u32 s50, 4\ns_cbranch_scc1 Law{n}d\ns_sleep 1\ns_cmp_lg_u32 s63, 0\ns_cbranch_scc1 Law{n}\nLaw{n}d:")

def q_join(a):
    _uid[0] += 1; n = _uid[0]
    a(f"v_mov_b32 v9, {L_SCR+264}\ns_mov_b32 s50, {SPIN*20}\nLqj{n}:\nds_read_b32 v10, v9\ns_sub_u32 s50, s50, 1\ns_waitcnt lgkmcnt(0)\nv_readfirstlane_b32 s52, v10")
    a(f"s_cmp_eq_u32 s52, 4\ns_cbranch_scc1 Lqjd{n}\ns_cmp_lg_u32 s50, 0\ns_cbranch_scc1 Lqj{n}\nLqjd{n}:")

def att_q(a):
    for i in range(4):
        a(f"s_add_u32 s52, s{sKQ}, {i}\ns_and_b32 s52, s52, 3\ns_lshl_b32 s53, s{sHH}, 2\ns_add_u32 s52, s52, s53\ns_lshl_b32 s52, s52, 10\ns_add_u32 s52, s52, {L_QX}")
        a(f"v_add_u32 v9, s52, v{vL16}\nds_read_b128 {vr(QF+4*i,4)}, v9")

KVF = lambda: [' sc1', '', ' sc1 nt'][OPT.get('kvf', 0)]
def att_ld(a, vm, kt):
    sl = kt % NRING
    if kt % 4 == 0: a(f"s_add_u32 s63, s{sK}, s62\ns_add_u32 s64, s{sV}, s62\ns_add_u32 s62, s62, 4096\ns_and_b32 s62, s62, 0x3fff")
    o = 1024*(kt % 4)
    vm.op(f"buffer_load_dwordx4 {vr(RING+12*sl,4)}, v{vL16}, {S['ws']}, s63 offen offset:{o}{KVF()}", ("kv", kt))
    a("s_mov_b64 exec, s[60:61]")
    vm.op(f"buffer_load_dwordx4 {vr(RING+12*sl+4,4)}, v{vV}, {S['ws']}, s64 offen offset:{o}{KVF()}", ("kv", kt))
    vm.op(f"buffer_load_dwordx4 {vr(RING+12*sl+8,4)}, v{vV}, {S['ws']}, s64 offen offset:{o+512}{KVF()}", ("kv", kt))
    a("s_mov_b64 exec, -1")

def att_first(a, vm, first):
    stamp(a, 4)
    poll(a, vm, "0xffffffff", 5, "s62", 6, first)
    stamp(a, 5)
    a("s_mov_b32 s62, s65")
    for kt in range(NRING-1): att_ld(a, vm, kt)

def attention(a, vm):
    IDX = RING + 12*NRING
    assert IDX < vSTASH
    CP = lambda d: f"s_and_b32 s{d}, s{sI}, 15" if OPT.get('mix', 1) else f"s_mov_b32 s{d}, s{sC}"
    TP = lambda d: f"s_lshl_b32 s{d}, s{sX}, 1\ns_lshr_b32 s50, s{sI}, 4\ns_add_u32 s{d}, s{d}, s50" if OPT.get('mix', 1) else f"s_mov_b32 s{d}, s{sTB}"
    def kp_addr(d):
        return [f"s_lshl_b32 s65, s{sR}, 1", f"s_add_u32 s65, s65, s{sW}", f"s_add_u32 s65, s65, {d}", "s_and_b32 s65, s65, 15", f"s_mul_i32 s65, s65, {32*3584}",
                CP(52), "s_mul_i32 s52, s52, 224", "s_add_u32 s65, s65, s52", f"s_mul_i32 s66, s{sW}, 7168", f"s_add_u32 s66, s66, {L_W1+7168*d}"]
    wo = [[f"s_add_u32 m0, s66, {L_WO+1024*j}", f"s_add_u32 s52, s65, {16384*j}", f"buffer_load_dwordx4 v{vWO}, {S['wo']}, s52 offen lds"] for j in range(4)]
    wo[0] = [f"s_add_u32 s65, s{sW}, s{sR}", "s_and_b32 s65, s65, 7", "s_lshl_b32 s65, s65, 16", CP(52), "s_lshl_b32 s52, s52, 6", "s_add_u32 s65, s65, s52", f"s_lshl_b32 s66, s{sW}, 12"] + wo[0]
    k1 = w1_kp_dma(65, 66, vW1, vW1H); k1[0] = kp_addr(0) + k1[0]
    k2 = []
    for j, p in enumerate(w1_kp_dma(65, 66, vW1, vW1H)):
        k2.append([p[1], p[2].replace("buffer_load_dwordx4 ", f"buffer_load_dwordx4 {vr(vSTASH+4*j,4)}, ").replace(" lds", "")])
    k2[0] = kp_addr(8)[:8] + k2[0]
    p0 = OPT.get("pre0", 5)
    pre = {4*p0+1: wo[:2], 4*p0+5: wo[2:], 4*p0+9: k1[:3], 4*p0+13: k1[3:], 4*p0+17: k2[:3], 4*p0+21: k2[3:]}
    ld = lambda kt: att_ld(a, vm, kt)
    for kt in range(NRING-1): vm.q += [('kv', kt)]*3
    def QK(dst, sl, q): return f"v_mfma_f32_32x32x16_bf16 {vr(dst,16)}, {vr(RING+12*sl,4)}, {vr(QF+4*q,4)}, 0"
    def SM(q, sl, half, s): return f"v_smfmac_f32_32x32x32_bf16 {vr(OA+16*q,16)}, {vr(RING+12*sl+4+4*half,4)}, {vr(s+8*half,8)}, v{IDX}"
    a("s_setprio 1")
    a(f"s_and_b32 s53, s{sW}, 3\ns_lshl_b32 s52, s2, 2\ns_add_u32 s53, s53, s52\ns_mul_i32 s53, s53, {9*128}")
    ST = [stouch("w1", 53, n) for n in range(9)] + [stouch("wmod", 53, n) for n in range(16)] + [stouch("w2", 53, n) for n in range(14)]
    a("s_waitcnt lgkmcnt(0)")
    vm.wait(("kv", 0))
    a(QK(SB[0], 0, 0))
    a("s_nop 7\ns_nop 3")
    TAIL = OPT.get("tail", 1)
    qof = lambda t: (t + 1) % 4 if (TAIL and t >= 60) else t % 4
    def red_write(i):
        return [f"s_add_u32 s52, s{sKQ}, {i}\ns_and_b32 s52, s52, 3\ns_mul_i32 s52, s52, 3\ns_add_u32 s52, s52, s63\ns_add_u32 s52, s52, {i-1}\ns_mul_i32 s52, s52, 2304\ns_add_u32 s52, s52, {L_RED}",
                f"v_add_u32 v6, s52, v{vL16}\nv_add_u32 v7, s52, v15",
                f"ds_write_b128 v6, {vr(OA+16*i,4)}", f"ds_write_b128 v6, {vr(OA+16*i+4,4)} offset:1024", f"ds_write_b32 v7, v{OA+16*i+8} offset:2048"]
    for t in range(64):
        kt, q = t // 4, t % 4
        cur, prv = SB[t & 1], SB[(t + 1) & 1]
        E = [f"v_exp_f32 v{cur+r}, v{cur+r}" for r in range(16)]
        if t == OPT.get("prio", 53):
            a(f"s_cmp_ge_u32 s{sW}, 4\ns_cbranch_scc1 Latt_prio\ns_setprio 0\nLatt_prio:")
        a(E[0]); a(E[1])
        if t > 0: a(SM(qof(t-1), ((t-1)//4) % NRING, 1, prv))
        if t == 59: a(f"s_mul_i32 s63, s{sHH}, 12\nv_lshlrev_b32 v15, 2, v{vLANE}")
        if q == 0 and kt + NRING - 1 < 16: ld(kt + NRING - 1)
        if t in pre and not OPT.get("nopre"):
            for p in pre[t]:
                for x in p[:-1]: a(x)
                vm.op(p[-1], "pre")
        if t == OPT.get("cpf", 99):
            a(f"s_cmp_lg_u32 s{sW}, 7\ns_cbranch_scc1 Latt_nocp\ns_getpc_b64 s[50:51]\nLpc2:\ns_and_b32 s52, s{sI}, 3\ns_lshl_b32 s52, s52, 13\nv_lshlrev_b32 v5, 7, v{vLANE}\nv_add_u32 v5, s52, v5")
            a("v_min_u32 v5, Lcode_end-Lpc2-4, v5\nglobal_load_dword v249, v5, s[50:51]\nLatt_nocp:")
        if t == 5:
            a(f"s_cmp_lg_u32 s{sW}, 0\ns_cbranch_scc1 Latt_noxc"); a(TP(52)); a(f"s_lshl_b32 s52, s52, 5"); a(CP(50))
            a(f"s_add_u32 s52, s52, s50\ns_lshl_b32 s52, s52, 2\ns_add_u32 s52, s52, {hex(WS_FXC)}\ns_getreg_b32 s50, hwreg(HW_REG_XCC_ID)\ns_and_b32 s50, s50, 15\ns_lshl_b32 s50, s50, 1\ns_add_u32 s50, s50, s{sTAG}")
            if OPT.get("xcfake"): a(f"s_and_b32 s51, s2, {OPT['xcfake']}\ns_add_u32 s50, s50, s51")
            a(f"v_mov_b32 v5, s50\ns_mov_b64 exec, 1\nbuffer_store_dword v5, v{vZ}, {S['ws']}, s52 offen sc1\ns_mov_b64 exec, -1\nLatt_noxc:")
        if t == 57:
            a(f"s_cmp_ge_u32 s{sW}, 4\ns_cbranch_scc1 Latt_nox")
            a(f"v_bfe_u32 v5, v{vLANE}, 5, 1\nv_and_b32 v6, 31, v{vLANE}\nv_lshlrev_b32 v6, 10, v6\nv_lshl_add_u32 v6, v5, 3, v6")
            a(TP(52)); a(f"s_lshl_b32 s52, s52, 2\ns_add_u32 s67, s52, s{sW}\ns_lshl_b32 s52, s67, 15"); a(CP(50)); a("s_lshl_b32 s50, s50, 6\ns_add_u32 s52, s52, s50")
            for qq in range(4): a(f"buffer_load_dwordx2 {vr(vXR+2*qq,2)}, v6, {S['x']}, s52 offen offset:{16*qq}")
            a(f"s_lshr_b32 s52, s67, 2\ns_lshl_b32 s52, s52, 7\ns_add_u32 s52, s52, {hex(WS_FXC)}\nv_and_b32 v5, 15, v{vLANE}\nv_lshlrev_b32 v5, 2, v5")
            a(f"buffer_load_dword v{vXR+8}, v5, {S['ws']}, s52 offen sc1")
            a("Latt_nox:")
        if t == 50:
            a(f"s_cmp_lt_u32 s{sW}, 4\ns_cbranch_scc1 Latt_nomod\ns_sub_u32 s52, s{sI}, 8\ns_cmp_ge_u32 s52, 16\ns_cbranch_scc1 Latt_nomod")
            a(f"s_lshl_b32 s66, s{sX}, 2\ns_lshr_b32 s52, s52, 2\ns_add_u32 s66, s66, s52\ns_lshl_b32 s66, s66, 6")
            a(f"s_and_b32 s52, s{sI}, 3\ns_lshl_b32 s52, s52, 4\ns_add_u32 s66, s66, s52\ns_add_u32 s66, s66, 1024")
            mod_issue(a, Track(a, "vmcnt", 63), 66, vMOD, T=244)
            a("Latt_nomod:")
        if t == OPT.get("w2t", 62) and not OPT.get("nopre"):
            if OPT.get("nw", 1):
                a(f"s_mul_i32 s52, s{sI}, 7\ns_min_u32 s50, s{sW}, 6\ns_add_u32 s52, s52, s50\ns_lshl_b32 s52, s52, 13\nv_lshlrev_b32 v5, 7, v{vLANE}")
                vm.op(f"buffer_load_dword v248, v5, {S['w2']}, s52 offen", "w2t")
            else:
                a(f"s_cmp_eq_u32 s{sW}, 7\ns_cbranch_scc1 Latt_nopf\ns_mul_i32 s52, s{sI}, 7\ns_add_u32 s52, s52, s{sW}\ns_lshl_b32 s52, s52, 13\nv_lshlrev_b32 v5, 7, v{vLANE}")
                a(f"buffer_load_dword v248, v5, {S['w2']}, s52 offen")
                a("Latt_nopf:")
        if OPT.get("st", 7) & 4 and t % 3 != 2 and t - t//3 < 39:
            j = t - t//3
            if j == 9: a(f"s_lshl_b32 s53, s2, 1\ns_bfe_u32 s52, s{sW}, 0x10001\ns_add_u32 s53, s53, s52\ns_mul_i32 s53, s53, 6144\ns_lshl_b32 s52, s{sHH}, 11\ns_add_u32 s53, s53, s52\ns_add_u32 s53, s53, 2048")
            if j == 25: a(f"s_and_b32 s53, s{sW}, 3\ns_lshl_b32 s52, s2, 2\ns_add_u32 s53, s53, s52\ns_mul_i32 s53, s53, {14*128}")
            a(ST[j])
        sh = OPT.get("vb", 1)
        for r in range(2, 4+sh): a(E[r])
        if t < 63:
            if q == 3: vm.wait(("kv", kt + 1))
            a(QK(prv, ((t+1)//4) % NRING, qof(t+1)))
        for r in range(4+sh, 10+sh): a(E[r])
        a(SM(qof(t), kt % NRING, 0, cur))
        W = red_write(t - 60) if (TAIL and t >= 61) else []
        for r in range(10+sh, 16):
            a(E[r])
            if W: a(W.pop(0))
        for x in W: a(x)
        if t % 4 == 3 and t < 60: stamp(a, t//4, 5)
    a("s_nop 1")
    a(SM(qof(63), 15 % NRING, 1, SB[1]))
    a("s_setprio 0")
    stamp(a, 6); stamp(a, 0, 8)
    if not TAIL:
        for i in range(1, 4):
            for x in red_write(i): a(x)
    a(f"s_mul_i32 s52, s{sKQ}, 3\ns_add_u32 s52, s52, s63\ns_mul_i32 s52, s52, 2304\ns_add_u32 s52, s52, {L_RED}")
    a(f"v_add_u32 v6, s52, v{vL16}\nv_add_u32 v7, s52, v15")
    a(f"s_lshl_b32 s52, s{sTB}, 2\ns_add_u32 s52, s52, s{sKQ}\ns_lshl_b32 s52, s52, 5\ns_add_u32 s52, s52, s58")
    a(f"s_lshl_b32 s63, s52, 10\ns_add_u32 s63, s63, {hex(WS_O)}")
    flag_off(a, 64, 52, WS_FO, LF())
    a(TP(sTB)); a(CP(sC))
    stamp(a, 1, 8)
    if OPT.get("nw", 1): a("s_waitcnt vmcnt(1)")
    else: vm.wait_all()
    a("s_waitcnt lgkmcnt(0)")
    stamp(a, 2, 8)
    a("s_barrier")
    stamp(a, 3, 8)
    R = 96
    for i in range(3):
        a(f"ds_read_b128 {vr(R+12*i,4)}, v6 offset:{2304*i}\nds_read_b128 {vr(R+12*i+4,4)}, v6 offset:{2304*i+1024}\nds_read_b32 v{R+12*i+8}, v7 offset:{2304*i+2048}")
    a(f"s_mov_b32 s52, {hx(2.0**-60)}\ns_mov_b32 s53, {hx(2.0**60)}\ns_movk_i32 s65, 0x207")
    for i in range(3):
        a(f"s_waitcnt lgkmcnt({6-3*i})")
        for r in range(9): a(f"v_add_f32 v{OA+r}, v{OA+r}, v{R+12*i+r}")
    a(f"v_add_f32 v8, v{OA}, v{OA+1}\nv_add_f32 v9, v{OA+2}, v{OA+3}\nv_add_f32 v10, v{OA+4}, v{OA+5}\nv_add_f32 v11, v{OA+6}, v{OA+7}")
    a("v_add_f32 v8, v8, v9\nv_add_f32 v10, v10, v11\nv_add_f32 v8, v8, v10")
    a(f"v_cmp_nge_f32 vcc, v{OA+8}, s52\nv_cmp_nle_f32 s[54:55], v{OA+8}, s53\nv_cmp_class_f32 s[56:57], v8, s65")
    a(f"v_rcp_f32 v8, v{OA+8}")
    a("s_or_b64 vcc, vcc, s[54:55]\ns_or_b64 vcc, vcc, s[56:57]")
    a("s_cbranch_vccnz Lslow")
    a("Lnorm:")
    for r in range(8): a(f"v_mul_f32 v{OA+r}, v{OA+r}, v8")
    for r in range(4): a(f"v_cvt_pk_bf16_f32 v{8+r}, v{OA+2*r}, v{OA+2*r+1}")
    vm.op(f"buffer_store_dwordx4 v[8:11], v{vL16}, {S['ws']}, s63 offen{RO()}")
    stamp(a, 4, 8)
    a("s_barrier")
    stamp(a, 5, 8)
    a(f"s_mul_i32 s52, s{sW}, 7168\ns_add_u32 s52, s52, {L_W1+8*7168}\nv_add_u32 v5, s52, v{vL16}")
    for j in range(7): a(f"ds_write_b128 v5, {vr(vSTASH+4*j,4)} offset:{1024*j}")
    def slow(b):
        tv = Track(b, "vmcnt", 63)
        b("Lslow:")
        poll_addr(b, 5)
        b(f"s_lshr_b32 s52, s58, 2\ns_lshl_b32 s52, s52, 11\ns_add_u32 s62, s52, {hex(WS_FKV)}")
        poll(b, tv, "-1", 5, "s62", 6)
        b("s_add_u32 s62, s62, 1024")
        poll(b, tv, "-1", 5, "s62", 6)
        b(f"s_waitcnt vmcnt(0)\ns_add_u32 s{sK}, s59, {hex(WS_K)}\ns_mov_b32 s51, 64\nv_mov_b32 v8, 0xff800000")
        b("Ls1:")
        b(f"buffer_load_dwordx4 {vr(RING,4)}, v{vL16}, {S['ws']}, s{sK} offen sc1\ns_add_u32 s{sK}, s{sK}, 1024\ns_waitcnt vmcnt(0)")
        b(QK(SB[0], 0, 0))
        for r in range(0, 16, 2): b(f"v_max3_f32 v8, v{SB[0]+r}, v{SB[0]+r+1}, v8")
        b("s_sub_u32 s51, s51, 1\ns_cmp_lg_u32 s51, 0\ns_cbranch_scc1 Ls1")
        b("v_mov_b32 v9, v8\nv_permlane32_swap_b32 v8, v9\nv_max_f32 v8, v8, v9")
        for r in range(16): b(f"v_sub_f32 v{SB[1]+r}, 0, v8")
        for r in range(16): b(f"v_mov_b32 v{OA+r}, 0")
        b(f"s_add_u32 s{sK}, s59, {hex(WS_K)}\ns_add_u32 s{sV}, s59, {hex(WS_V)}\ns_mov_b32 s51, 64")
        b("Ls2:")
        b(f"buffer_load_dwordx4 {vr(RING,4)}, v{vL16}, {S['ws']}, s{sK} offen sc1\ns_mov_b64 exec, s[60:61]")
        b(f"buffer_load_dwordx4 {vr(RING+4,4)}, v{vV}, {S['ws']}, s{sV} offen sc1\nbuffer_load_dwordx4 {vr(RING+8,4)}, v{vV}, {S['ws']}, s{sV} offen offset:512 sc1")
        b(f"s_mov_b64 exec, -1\ns_add_u32 s{sK}, s{sK}, 1024\ns_add_u32 s{sV}, s{sV}, 1024\ns_waitcnt vmcnt(0)")
        b(f"v_mfma_f32_32x32x16_bf16 {vr(SB[0],16)}, {vr(RING,4)}, {vr(QF,4)}, {vr(SB[1],16)}")
        for r in range(16): b(f"v_exp_f32 v{SB[0]+r}, v{SB[0]+r}")
        b(SM(0, 0, 0, SB[0])); b(SM(0, 0, 1, SB[0]))
        b("s_sub_u32 s51, s51, 1\ns_cmp_lg_u32 s51, 0\ns_cbranch_scc1 Ls2")
        b(f"s_nop 7\ns_nop 7\nv_rcp_f32 v8, v{OA+8}\ns_nop 0\ns_branch Lnorm")
    return slow

def w1_voffs(a, vF, vH, p=7, q=8, r=9):
    a(f"v_lshrrev_b32 v{p}, 2, v{vLANE}\nv_and_b32 v{q}, 3, v{vLANE}\nv_mul_u32_u24 v{vF}, 3584, v{p}\nv_lshl_add_u32 v{vF}, v{q}, 4, v{vF}")
    a(f"v_lshrrev_b32 v{p}, 1, v{vLANE}\nv_and_b32 v{q}, 0x13, v{p}\nv_bfe_u32 v{r}, v{p}, 2, 1\nv_lshl_add_u32 v{q}, v{r}, 3, v{q}\nv_bfe_u32 v{r}, v{p}, 3, 1\nv_lshl_add_u32 v{q}, v{r}, 2, v{q}")
    a(f"v_mul_u32_u24 v{vH}, 3584, v{q}\nv_and_b32 v{q}, 1, v{vLANE}\nv_lshl_add_u32 v{vH}, v{q}, 4, v{vH}")

def w1_kp_dma(sOff, sLds, vF, vH, dOff=0, dLds=0):
    L = []
    for e in range(2):
        for nt in range(3):
            L.append([f"s_add_u32 m0, s{sLds}, {dLds+3072*e+1024*nt}", f"s_add_u32 s52, s{sOff}, {dOff+16*3584*e+64*nt}",
                      f"buffer_load_dwordx4 v{vF}, {S['w1']}, s52 offen lds"])
    L.append([f"s_add_u32 m0, s{sLds}, {dLds+6144}", f"s_add_u32 s52, s{sOff}, {dOff+192}", f"buffer_load_dwordx4 v{vH}, {S['w1']}, s52 offen lds"])
    return L

def w1_reads(kp, e, dst, vF):
    base = 7168*kp + 3072*e
    return [f"ds_read_b64_tr_b16 {vr(dst+4*nt+2*st,2)}, v{vF[base >> 15]} offset:{(base & 0x7fff)+1024*nt+512*st}" for nt in range(3) for st in range(2)]
def w1_half_reads(kp, dst, vH):
    base = 7168*kp + 6144
    return [f"ds_read_b64_tr_b16 {vr(dst+2*st,2)}, v{vH[base >> 15]} offset:{(base & 0x7fff)+256*st}" for st in range(2)]

def h_pj(ks):
    return (ks // 4, ks % 4) if ks < 32 else ((ks - 32) // 3, 4 + (ks - 32) % 3)

def rot_loads(a, vm, base_s, dst, tag, div=1):
    for ks in range(32):
        if ks % 4 == 0: a(f"s_add_u32 s53, s{sR}, {ks//4}\ns_and_b32 s53, s53, 7\ns_lshl_b32 s53, s53, 12\ns_add_u32 s53, s53, s{base_s}")
        yield ks, (f"buffer_load_dwordx4 {vr(dst+4*ks,4)}, v{vL16}, {S['ws']}, s53 offen offset:{1024*(ks%4)}{RL() if tag == 'y' else ' sc1'}", (tag, ks//div))

def lds_init_b0(a):
    late_srds(a)
    a(f"v_mov_b32 v8, {L_SCR+256}\nv_mov_b32 v10, 0\nv_mov_b32 v11, 0\nds_write_b64 v8, v[10:11]\nds_write_b64 v8, v[10:11] offset:8\nds_write_b64 v8, v[10:11] offset:16\nds_write_b64 v8, v[10:11] offset:24\nds_write_b64 v8, v[10:11] offset:32\nds_write_b64 v8, v[10:11] offset:40\ns_waitcnt lgkmcnt(0)\ns_barrier")

EB = lambda bit: OPT.get('eb1', 2) & bit
def tag_to_lds_b1(a, late):
    a(f"v_mov_b32 v8, s{sTAG}\nv_mov_b32 v9, {L_SCR+260}\nds_write_b32 v9, v8\ns_waitcnt lgkmcnt(0)")
    stamp(a, 0)
    if late: a("s_barrier")
    a("s_branch La_p1")

def p0_ln(a):
    vm = Track(a, "vmcnt", 63)
    a(f"s_and_b32 s52, s{sX}, 1\ns_lshl_b32 s52, s52, 4\ns_add_u32 s52, s52, s{sI}\ns_sub_u32 s52, s52, 8\ns_lshl_b32 s52, s52, 2\ns_add_u32 s52, s52, s{sW}")
    a(f"s_lshr_b32 s53, s{sX}, 1\ns_lshl_b32 s53, s53, 7\ns_add_u32 s56, s52, s53\ns_lshl_b32 s53, s56, 12")
    a(f"v_and_b32 v4, 3, v{vLANE}\nv_lshrrev_b32 v5, 2, v{vLANE}\nv_lshlrev_b32 v6, 10, v4\nv_lshl_add_u32 v6, v5, 4, v6")
    a("s_waitcnt lgkmcnt(0)")
    for m in range(4): vm.op(f"buffer_load_dwordx4 {vr(16+4*m,4)}, v6, {S['x']}, s53 offen offset:{256*m}")
    lds_init_b0(a)
    a("v_lshrrev_b32 v7, 1, v5\nv_lshlrev_b32 v7, 10, v7\nv_and_b32 v8, 1, v5\nv_lshl_add_u32 v7, v8, 9, v7\nv_lshl_add_u32 v7, v4, 4, v7")
    a(f"s_lshr_b32 s53, s56, 3\ns_lshl_b32 s53, s53, 15\ns_and_b32 s54, s56, 7\ns_lshl_b32 s54, s54, 6\ns_add_u32 s53, s53, s54\ns_add_u32 s53, s53, {hex(WS_XN)}")
    flag_off(a, 55, 56, WS_FXN)
    stamp(a, 0, 7)
    vm.wait_all()
    stamp(a, 1, 7)
    vm.op(f"buffer_load_dword v15, v{vZ}, {S['dbg']}, 0 offen sc1")
    F = 32
    for r in range(16): a(f"v_lshlrev_b32 v{F+2*r}, 16, v{16+r}\nv_and_b32 v{F+2*r+1}, 0xffff0000, v{16+r}")
    def red(v, t):
        for r in (4, 8): a(f"v_add_f32_dpp v{v}, v{v}, v{v} row_ror:{r} row_mask:0xf bank_mask:0xf")
        a(f"v_mov_b32 v{t}, v{v}\nv_permlane16_swap_b32 v{v}, v{t}\nv_add_f32 v{v}, v{v}, v{t}")
        a(f"v_mov_b32 v{t}, v{v}\nv_permlane32_swap_b32 v{v}, v{t}\nv_add_f32 v{v}, v{v}, v{t}")
    a(f"v_pk_add_f32 v[64:65], {vr(F,2)}, {vr(F+2,2)}\nv_pk_add_f32 v[66:67], {vr(F+4,2)}, {vr(F+6,2)}")
    for r in range(8, 32, 4): a(f"v_pk_add_f32 v[64:65], v[64:65], {vr(F+r,2)}\nv_pk_add_f32 v[66:67], v[66:67], {vr(F+r+2,2)}")
    a("v_pk_add_f32 v[64:65], v[64:65], v[66:67]\nv_add_f32 v64, v64, v65")
    red(64, 65)
    a(f"v_mul_f32 v64, {hx(-1/512)}, v64")
    for r in range(0, 32, 2): a(f"v_pk_add_f32 {vr(F+r,2)}, {vr(F+r,2)}, v[64:65] op_sel_hi:[1,0]")
    a(f"v_pk_mul_f32 v[66:67], {vr(F,2)}, {vr(F,2)}\nv_pk_mul_f32 v[68:69], {vr(F+2,2)}, {vr(F+2,2)}")
    for r in range(4, 32, 4): a(f"v_pk_fma_f32 v[66:67], {vr(F+r,2)}, {vr(F+r,2)}, v[66:67]\nv_pk_fma_f32 v[68:69], {vr(F+r+2,2)}, {vr(F+r+2,2)}, v[68:69]")
    a("v_pk_add_f32 v[66:67], v[66:67], v[68:69]\nv_add_f32 v66, v66, v67")
    red(66, 67)
    a(f"v_mov_b32 v67, {hx(1e-5)}\nv_fmac_f32 v67, {hx(1/512)}, v66\nv_rsq_f32 v66, v67")
    for r in range(0, 32, 2): a(f"v_pk_mul_f32 {vr(F+r,2)}, {vr(F+r,2)}, v[66:67] op_sel_hi:[1,0]")
    for m in range(4):
        for r in range(4): a(f"v_cvt_pk_bf16_f32 v{16+4*m+r}, v{F+8*m+2*r}, v{F+8*m+2*r+1}")
        vm.op(f"buffer_store_dwordx4 {vr(16+4*m,4)}, v7, {S['ws']}, s53 offen sc1")
        if m < 3: a("s_add_u32 s53, s53, 8192")
    stamp(a, 2, 7)
    if EB(1): a("s_barrier")
    vm.wait_all()
    stamp(a, 3, 7)
    tag_now(a, 15)
    set_flag(a, vm, "s55", vZ, 8)
    stamp(a, 4, 7)
    tag_to_lds_b1(a, not EB(1))

def p0_mod(a):
    vm = Track(a, "vmcnt", 63)
    sCol = 51
    a(f"s_lshl_b32 s{sCol}, s{sX}, 1\ns_lshr_b32 s52, s{sI}, 2\ns_add_u32 s{sCol}, s{sCol}, s52\ns_lshl_b32 s{sCol}, s{sCol}, 6")
    a(f"s_and_b32 s52, s{sI}, 3\ns_lshl_b32 s52, s52, 4\ns_add_u32 s{sCol}, s{sCol}, s52")
    a("s_waitcnt lgkmcnt(0)")
    mod_issue(a, vm, sCol)
    lds_init_b0(a)
    vm.wait("mod")
    stamp(a, 1, 7)
    a(f"buffer_load_dword v15, v{vZ}, {S['dbg']}, 0 offen sc1")
    if EB(4): a("s_barrier")
    mod_partial(a, vm)
    a("s_waitcnt vmcnt(0)")
    tag_now(a, 15)
    mod_join(a, vm, sCol, "La_joined")
    a("La_joined:")
    stamp(a, 4, 7)
    tag_to_lds_b1(a, not EB(4))

def p0_warm(a):
    a(f"s_sub_u32 s52, s{sI}, 24\ns_lshl_b32 s52, s52, 1\ns_add_u32 s52, s52, s{sW}\ns_lshl_b32 s52, s52, 5")
    a(f"v_lshrrev_b32 v4, 1, v{vLANE}\nv_add_u32 v4, s52, v4\nv_mul_u32_u24 v4, 6144, v4\nv_and_b32 v5, 1, v{vLANE}\nv_lshl_add_u32 v4, v5, 7, v4\ns_lshl_b32 s52, s{sX}, 8")
    a(f"s_waitcnt lgkmcnt(0)\ns_cmp_ge_u32 s{sW}, 2\ns_cbranch_scc1 La_nowm")
    a(f"buffer_load_dword v6, v4, {S['wmod']}, s52 offen")
    a("La_nowm:")
    lds_init_b0(a)
    a("s_waitcnt vmcnt(0)")
    stamp(a, 1, 7)
    a(f"buffer_load_dword v15, v{vZ}, {S['dbg']}, 0 offen sc1")
    if EB(2): a("s_barrier")
    a("s_waitcnt vmcnt(0)")
    tag_now(a, 15)
    tag_to_lds_b1(a, not EB(2))

def wkv_loop(a, name):
    a(f"{name}:")
    a(f"s_and_b32 s55, s55, 31\ns_lshl_b32 s53, s55, 11\ns_add_u32 s52, s55, s57\ns_and_b32 s52, s52, 31\ns_mul_i32 s52, s52, {16*3072}\ns_mov_b32 m0, s53\ns_add_u32 s52, s52, s56")
    a(f"buffer_load_dwordx4 v12, {S['wqkv']}, s52 offen lds\ns_add_u32 m0, s53, 1024\ns_add_u32 s52, s52, {8*3072}\nbuffer_load_dwordx4 v12, {S['wqkv']}, s52 offen lds")
    a(f"s_add_u32 s55, s55, 4\ns_sub_u32 s51, s51, 1\ns_cmp_lg_u32 s51, 0\ns_cbranch_scc1 {name}")

def p0_helper(a):
    vm = Track(a, "vmcnt", 63)
    sH = 67
    a(f"v_mov_b32 v32, 0\nv_mov_b32 v33, 0\nv_mov_b32 v34, 0\nv_mov_b32 v35, 0\ns_lshl_b32 s52, s{sH}, 12\ns_add_u32 s52, s52, {L_DG}\nv_add_u32 v9, s52, v{vL16}")
    for j in range(4): a(f"ds_write_b128 v9, v[32:35] offset:{1024*j}")
    a(f"s_lshl_b32 s52, s2, 2\ns_add_u32 s52, s52, s{sH}\ns_and_b32 s53, s52, 1\ns_lshr_b32 s52, s52, 1\ns_mul_i32 s52, s52, 3072")
    a("s_lshl_b32 s57, s53, 9\ns_add_u32 s57, s57, s52\ns_lshl_b32 s53, s53, 10\ns_add_u32 s52, s52, s53\ns_add_u32 s52, s52, 1024")
    a("s_waitcnt lgkmcnt(0)")
    a(f"s_lshl_b32 s58, s2, 3\ns_add_u32 s58, s58, s{sW}\ns_cmp_lg_u32 s58, {64*8+4}\ns_cbranch_scc1 Le_notag")
    a(f"s_or_b32 s54, s54, 1\nv_mov_b32 v7, s54\ns_mov_b64 exec, 1\nbuffer_store_dword v7, v{vZ}, {S['dbg']}, 0 offen sc1\ns_mov_b64 exec, -1")
    a("Le_notag:")
    s0 = OPT.get("st0", 9)
    for n in range(min(s0, 4) if s0 != 9 else 1): a(stouch("wqkv", 52, n))
    late_srds(a)
    a("s_barrier")
    if s0 == 9: a("s_waitcnt lgkmcnt(0)")
    for n in range(min(s0, 4) if s0 != 9 else 1, 8): a(stouch("wqkv", 52, n))
    for n in range(4): a(stouch("wqkv", 57, n))
    a(f"v_lshrrev_b32 v4, 3, v{vLANE}\nv_mul_u32_u24 v4, 3072, v4\nv_bfe_u32 v5, v{vLANE}, 4, 1\nv_lshlrev_b32 v5, 2, v5\nv_xor_b32 v5, v5, v{vLANE}\nv_and_b32 v5, 7, v5\nv_lshl_add_u32 v12, v5, 4, v4")
    a(f"s_and_b32 s56, s{sC}, 1\ns_add_u32 s56, s56, 1\ns_lshl_b32 s56, s56, 10\ns_lshr_b32 s52, s{sC}, 1\ns_lshl_b32 s52, s52, 7\ns_add_u32 s56, s56, s52")
    a(f"s_and_b32 s55, s{sTB}, {1 if OPT.get('m216', 0) else 3}\ns_lshl_b32 s55, s55, {4 if OPT.get('m216', 0) else 3}\ns_add_u32 s55, s55, s{sH}\ns_lshl_b32 s57, s{sR}, 2\ns_mov_b32 s51, 8")
    WH_ = OPT.get("whalf", 0)
    if WH_: a(f"s_mov_b32 s55, s{sH}\ns_mov_b32 s51, {WH_}\ns_mov_b32 s59, s56\ns_mov_b32 s60, s57")
    stamp(a, 0, 7)
    a("s_barrier")
    stamp(a, 1, 7)
    wkv_loop(a, "Lh_wl")
    tag_get(a)
    stamp(a, 0); stamp(a, 2, 7)
    a(f"s_cmp_ge_u32 s{sH}, 2\ns_cbranch_scc1 Lh_b2")
    a(f"s_lshl_b32 s52, s{sH}, 11")
    a(f"v_lshrrev_b32 v5, 3, v{vLANE}\ns_lshl_b32 s53, s{sR}, 1\nv_subrev_u32 v5, s53, v5\nv_and_b32 v5, 15, v5\nv_xor_b32 v6, 8, v5")
    gran_poll(a, vm, [f"buffer_load_dwordx4 v[16:19], v{vL16}, {S['ws']}, s52 offen sc1", f"buffer_load_dwordx4 v[20:23], v{vL16}, {S['ws']}, s52 offen offset:1024 sc1"], [16, 20])
    stamp(a, 1)
    a(f"s_cmp_lg_u32 s{sH}, 0\ns_cbranch_scc1 Lh_g1")
    for j, r in enumerate((16, 18, 20, 22)): a(f"v_lshlrev_b32 v{24+2*j}, 16, v{r}\nv_and_b32 v{25+2*j}, 0xffff0000, v{r}")
    a(f"v_and_b32 v7, 1, v{vLANE}\nv_lshlrev_b32 v7, 6, v7\nv_bfe_u32 v9, v{vLANE}, 1, 2\nv_lshl_add_u32 v7, v9, 4, v7\nv_add_u32 v7, {L_SA}, v7")
    a("v_lshl_add_u32 v5, v5, 7, v7\nv_lshl_add_u32 v6, v6, 7, v7")
    a("ds_write_b128 v5, v[24:27]\nds_write_b128 v6, v[28:31]")
    a("s_branch Lh_b2")
    a("Lh_g1:")
    a(f"v_and_b32 v7, 7, v{vLANE}\nv_lshlrev_b32 v7, 6, v7\nv_bfe_u32 v9, v{vLANE}, 2, 1\nv_lshl_add_u32 v7, v9, 9, v7\nv_and_b32 v9, 3, v{vLANE}\nv_lshl_add_u32 v7, v9, 2, v7\nv_add_u32 v7, {L_DG}, v7")
    a("v_lshl_add_u32 v5, v5, 10, v7\nv_lshl_add_u32 v6, v6, 10, v7")
    for j in range(2):
        for e in range(4):
            a(f"ds_write_b16{'_d16_hi' if e & 1 else ''} v{5+j}, v{16+4*j+2*(e>>1)} offset:{16*e + 2*(e & 1)}")
    a("s_branch Lh_b2")

def late_srds(a):
    for nm in ("wo", "w1", "w2", "out"): a(f"s_mov_b32 s{SRD[nm]+2}, {hex(SZ[nm])}\ns_mov_b32 s{SRD[nm]+3}, 0x20000")

def active(a):
    vm = Track(a, "vmcnt", 63); lg = Track(a, "lgkmcnt", 15)
    sT32 = 67
    a("La_p1:")
    ACC = [16, 32, 48]; WF = [64, 72]; DH = [88, 104]; DG = [120, 124]; AF = 128
    a(f"s_lshl_b32 s{sT32}, s{sTB}, 2\ns_add_u32 s{sT32}, s{sT32}, s{sW}")
    a(f"v_lshlrev_b32 v5, 2, v{vLANE}\ns_lshl_b32 s52, s{sT32}, 7\ns_add_u32 s52, s52, {hex(WS_FXN)}")
    tr_addr(a, 10, 12, True, 7, True)
    a("v_xor_b32 v12, 64, v10")
    a(f"v_bfe_u32 v11, v0, 5, 1\nv_lshlrev_b32 v11, 6, v11\nv_add_u32 v11, {L_SA}, v11\nv_add_u32 v13, {L_DG}, v{vL16}")
    a(f"v_and_b32 v14, 2, v0\nv_cmp_eq_u32 vcc, 0, v14\nv_mov_b32 v14, 0xeeeeeeee\nv_mov_b32 v15, 0x44444444\nv_cndmask_b32 v14, v14, v15, vcc")
    for r in range(48): a(f"v_mov_b32 v{16+r}, 0")
    poll(a, vm, "0xff", 5, "s52", 6, OPT.get("fn", 0))
    stamp(a, 1)
    a(f"s_lshl_b32 s52, s{sT32}, 15\ns_add_u32 s52, s52, {hex(WS_XN)}")
    a(f"s_lshr_b32 s54, s{sC}, 1\ns_lshl_b32 s54, s54, 18\ns_lshl_b32 s55, s{sT32}, 10\ns_add_u32 s54, s54, s55")
    a(f"s_bitcmp1_b32 s{sC}, 0\ns_cbranch_scc1 La_vwg")
    def rdS(b):
        L = [(f"ds_read_b128 {vr(DH[b&1]+4*q,4)}, v11 offset:{128*b+16*q}", ("s", b)) for q in range(4)]
        return L + [(f"ds_read_b128 {vr(DG[b&1],4)}, v13 offset:{1024*b}", ("s", b))]
    def rdW(ks):
        return [(f"ds_read_b64_tr_b16 {vr(WF[ks&1]+4*g+2*st,2)}, v{(10, 12)[g]} offset:{2048*ks+1024*st}", ("w", ks)) for g in range(2) for st in range(2)]
    def SMF(b): return f"v_smfmac_f32_32x32x32_bf16 {vr(DH[b&1],16)}, {vr(DG[b&1],4)}, {vr(AF+8*b,8)}, v14"
    def CVT(b): return [f"v_cvt_pk_bf16_f32 v{AF+8*b+r}, v{DH[b&1]+2*r}, v{DH[b&1]+2*r+1}" for r in range(8)]
    for isV in (0, 1):
        if isV: a("La_vwg:")
        vm.reset(); lg.reset()
        XL = rot_loads(a, vm, 52, AF, "xn", 2)
        def xn_issue(n):
            for _ in range(n):
                r = next(XL, None)
                if r: vm.op(*r[1])
        def MM(ks):
            f = AF + 4*ks; w = WF[ks & 1]
            if isV: return [f"v_mfma_f32_32x32x16_bf16 {vr(ACC[1+g],16)}, {vr(f,4)}, {vr(w+4*g,4)}, {vr(ACC[1+g],16)}" for g in range(2)]
            return [f"v_mfma_f32_32x32x16_bf16 {vr(ACC[1+g],16)}, {vr(w+4*g,4)}, {vr(f,4)}, {vr(ACC[1+g],16)}" for g in range(2)]
        xn_issue(OPT.get("xn0", 8))
        a("s_barrier")
        xn_issue(10 - OPT.get("xn0", 8))
        for x in rdS(0) + rdS(1): lg.op(*x)
        lg.wait(("s", 0)); vm.wait(("xn", 0))
        a(SMF(0))
        for x in rdW(0): lg.op(*x)
        xn_issue(2)
        a("s_nop 5")
        for x in CVT(0): a(x)
        stamp(a, 2)
        for b in range(16):
            nx = b + 1 < 16
            if nx:
                lg.wait(("s", b+1)); vm.wait(("xn", b+1))
                a(SMF(b+1))
            for x in rdW(2*b+1): lg.op(*x)
            lg.wait(("w", 2*b))
            M = MM(2*b); Rs = rdS(b+2) if b + 2 < 16 else []
            a(M[0]); [lg.op(*x) for x in Rs]
            a(M[1]); xn_issue(3)
            if b == OPT.get("b2b", 6): a("s_barrier")
            lg.wait(("w", 2*b+1))
            M = MM(2*b+1); C = CVT(b+1) if nx else []; Rw = rdW(2*b+2) if nx else []
            a(M[0]); [lg.op(*x) for x in Rw]; [a(x) for x in C[:3]]
            a(M[1]); [a(x) for x in C[3:]]
            if b < 15: stamp(a, b, 6)
        if not isV:
            a(f"s_add_u32 s54, s54, {hex(WS_K)}")
            a(f"v_and_b32 v5, 0x33, v{vLANE}\nv_bfe_u32 v6, v{vLANE}, 2, 1\nv_lshl_add_u32 v5, v6, 3, v5\nv_bfe_u32 v6, v{vLANE}, 3, 1\nv_lshl_add_u32 v5, v6, 2, v5\nv_lshlrev_b32 v5, 4, v5")
            for h in range(4):
                for r in range(4): a(f"v_cvt_pk_bf16_f32 v{112+4*h+r}, v{ACC[1]+8*h+2*r}, v{ACC[1]+8*h+2*r+1}")
                vm.op(f"buffer_store_dwordx4 {vr(112+4*h,4)}, v5, {S['ws']}, s54 offen sc1")
                if h < 3: a("s_add_u32 s54, s54, 65536")
            a("s_branch La_kvd")
        else:
            a(f"s_add_u32 s54, s54, {hex(WS_V)}")
            a(f"v_and_b32 v6, 15, v{vLANE}\nv_lshlrev_b32 v6, 4, v6\nv_bfe_u32 v7, v{vLANE}, 5, 1\nv_lshl_add_u32 v6, v7, 8, v6\nv_bfe_u32 v7, v{vLANE}, 4, 1\nv_lshl_add_u32 v6, v7, 16, v6")
            for h in range(4):
                for r in range(4): a(f"v_cvt_pk_bf16_f32 v{112+4*h+r}, v{ACC[1]+8*h+2*r}, v{ACC[1]+8*h+2*r+1}")
                vm.op(f"buffer_store_dwordx4 {vr(112+4*h,4)}, v6, {S['ws']}, s54 offen offset:{512*(h&1)} sc1")
                if h == 1: a("s_add_u32 s54, s54, 131072")
    a("La_kvd:")
    stamp(a, 3)
    a(f"s_lshl_b32 s57, s{sW}, 10\ns_add_u32 s57, s57, {L_QX}\nv_add_u32 v7, s57, v{vL16}")
    a(f"s_lshl_b32 s58, s{sC}, 6\ns_add_u32 s58, s58, s{sT32}")
    flag_off(a, 51, 58, WS_FKV)
    tr_addr(a, 10, 12, True, 6, False)
    a(f"v_add_u32 v10, {L_WQ}, v10")
    a("s_barrier")
    WQ = [96, 100, 104, 108]
    early, late = att_setup(); fill = early + late; assert len(early) >= 12*5
    def rdQ(ks): return [(f"ds_read_b64_tr_b16 {vr(WQ[ks&3]+2*st,2)}, v10 offset:{1024*ks+512*st}", ("q", ks)) for st in range(2)]
    lg.reset()
    for x in rdQ(0) + rdQ(1) + rdQ(2): lg.op(*x)
    for ks in range(32):
        if ks + 3 < 32: [lg.op(*x) for x in rdQ(ks+3)]
        lg.wait(("q", ks))
        a(f"v_mfma_f32_32x32x16_bf16 {vr(ACC[0],16)}, {vr(WQ[ks&3],4)}, {vr(AF+4*ks,4)}, {vr(ACC[0],16)}")
        if ks == OPT.get("kvflag", 8): set_flag(a, vm, "s51", vZ, 8)
        else:
            for x in fill[:6]: a(x)
            fill = fill[6:]
    for x in fill: a(x)
    a(f"s_mov_b32 s53, {hx(0.25*LOG2E)}")
    for r in range(16): a(f"v_mul_f32 v{ACC[0]+r}, s53, v{ACC[0]+r}")
    for r in range(8): a(f"v_cvt_pk_bf16_f32 v{96+r}, v{ACC[0]+2*r}, v{ACC[0]+2*r+1}")
    a("ds_write_b128 v7, v[96:99]\nds_write_b128 v7, v[100:103] offset:4096")
    if OPT.get("qj", 1):
        a(f"v_mov_b32 v9, {L_SCR+264}\nv_mov_b32 v10, 1\ns_waitcnt lgkmcnt(0)\ns_mov_b64 exec, 1\nds_add_u32 v9, v10\ns_mov_b64 exec, -1")
        att_first(a, vm, OPT.get("fk", 0))
        q_join(a); att_q(a)
    else:
        a("s_waitcnt lgkmcnt(0)\ns_barrier")
        att_q(a)
        att_first(a, vm, OPT.get("fk", 0))

def active2(a):
    vm = Track(a, "vmcnt", 63); lg = Track(a, "lgkmcnt", 15)
    sT32, AF = 67, 128
    ACC, WF, XR, GA, G2, XF = 16, [96, 100, 104, 108], vXR, 48, 64, 80
    a(f"s_getreg_b32 s50, hwreg(HW_REG_XCC_ID)\ns_and_b32 s50, s50, 15\ns_lshl_b32 s50, s50, 1\ns_add_u32 s50, s50, s{sTAG}\nv_cmp_ne_u32 vcc, s50, v{vXR+8}\nv_bfe_u32 v9, v{vLANE}, 5, 1\ns_cmp_eq_u64 vcc, 0\ns_cselect_b32 s{sLOC}, 1, 0")
    for q in range(4):
        for h in range(2): a(f"v_lshlrev_b32 v{XF+4*q+2*h}, 16, v{XR+2*q+h}\nv_and_b32 v{XF+4*q+2*h+1}, 0xffff0000, v{XR+2*q+h}")
    a(f"s_lshl_b32 s57, s{sT32}, 15\ns_lshl_b32 s58, s{sC}, 11\ns_add_u32 s57, s57, s58\ns_add_u32 s58, s57, {hex(WS_Y)}\ns_add_u32 s57, s57, {hex(WS_X1)}")
    a(f"s_lshl_b32 s54, s{sC}, 14\ns_lshl_b32 s55, s{sT32}, 8\ns_add_u32 s54, s54, s55\ns_add_u32 s54, s54, {hex(WS_STATS)}")
    a(f"s_lshl_b32 s55, s{sT32}, 4\ns_add_u32 s55, s55, s{sC}")
    flag_off(a, 56, 55, WS_FX1, LF())
    a(f"s_lshl_b32 s55, s{sT32}, {11-LF()}\ns_add_u32 s55, s55, {hex(WS_FX1)}")
    tr_addr(a, 10, 11, True, 6, False)
    for r in range(16): a(f"v_mov_b32 v{ACC+r}, 0")
    poll_addr(a, 5, LF())
    a(f"s_lshl_b32 s52, s{sT32}, {12-LF()}\ns_add_u32 s52, s52, {hex(WS_FO)}")
    stamp(a, 6, 8)
    set_flag(a, vm, "s64", vZ, 8, RO())
    stamp(a, 7); stamp(a, 7, 8)
    poll(a, vm, "0xffffffff", 5, "s52", 11, OPT.get("fo", 25))
    stamp(a, 8); stamp(a, 0, 2)
    a(f"s_lshl_b32 s52, s{sT32}, 15\ns_add_u32 s52, s52, {hex(WS_O)}")
    OL = rot_loads(a, vm, 52, AF, "o")
    for _ in range(OPT.get("b5b", 12)): vm.op(*next(OL)[1])
    sig_regs(a, 126, 127); sig(a, "b5b", 126, 127)
    for _ in range(12 - OPT.get("b5b", 12)): vm.op(*next(OL)[1])
    a(f"v_lshlrev_b32 v6, 2, v{vLANE}\nv_lshlrev_b32 v5, 4, v9\nv_add_u32 v5, {L_GA}, v5")
    def rdWo(ks): return [(f"ds_read_b64_tr_b16 {vr(WF[ks&3]+2*st,2)}, v10 offset:{L_WO+1024*ks+512*st}", ("w", ks)) for st in range(2)]
    lg.reset()
    for x in rdWo(0) + rdWo(1) + rdWo(2): lg.op(*x)
    for ks in range(32):
        if ks + 3 < 32:
            for x in rdWo(ks+3): lg.op(*x)
        if ks == 28:
            lg.wait(("w", 31))
            a("s_barrier")
            for q in range(4): a(f"ds_read_b128 {vr(GA+4*q,4)}, v5 offset:{32*q}")
            for q in range(4): a(f"ds_read_b128 {vr(G2+4*q,4)}, v5 offset:{128+32*q}")
        lg.wait(("w", ks)); vm.wait(("o", ks))
        a(f"v_mfma_f32_32x32x16_bf16 {vr(ACC,16)}, {vr(WF[ks&3],4)}, {vr(AF+4*ks,4)}, {vr(ACC,16)}")
        if ks + 12 < 32: vm.op(*next(OL)[1])
        if ks == 19 and OPT.get("early", 0): sig(a, "b5c", 126, 127, lg)
        if ks % 4 == 0 or ks == 31: stamp(a, 1 + (ks+1)//4, 2)
    stamp(a, 10, 2)
    a("s_waitcnt lgkmcnt(4)")
    for r in range(16): a(f"v_fmac_f32 v{XF+r}, v{ACC+r}, v{GA+r}")
    a("s_waitcnt lgkmcnt(0)")
    for r in range(16): a(f"v_mul_f32 v{ACC+r}, v{XF+r}, v{G2+r}")
    for r in range(8): a(f"v_cvt_pk_bf16_f32 v{32+r}, v{ACC+2*r}, v{ACC+2*r+1}")
    vm.op(f"buffer_store_dwordx4 v[32:35], v{vL16}, {S['ws']}, s58 offen{RY()}"); vm.op(f"buffer_store_dwordx4 v[36:39], v{vL16}, {S['ws']}, s58 offen offset:1024{RY()}")
    a(f"v_pk_add_f32 v[48:49], {vr(XF,2)}, {vr(XF+2,2)}\nv_pk_mul_f32 v[50:51], {vr(XF,2)}, {vr(XF,2)}\nv_pk_fma_f32 v[50:51], {vr(XF+2,2)}, {vr(XF+2,2)}, v[50:51]")
    for r in range(4, 16, 2): a(f"v_pk_add_f32 v[48:49], v[48:49], {vr(XF+r,2)}\nv_pk_fma_f32 v[50:51], {vr(XF+r,2)}, {vr(XF+r,2)}, v[50:51]")
    a("v_add_f32 v48, v48, v49\nv_add_f32 v49, v50, v51")
    for r in range(8): a(f"v_cvt_pk_bf16_f32 v{40+r}, v{XF+2*r}, v{XF+2*r+1}")
    a("v_permlane32_swap_b32 v48, v49\nv_add_f32 v48, v48, v49")
    vm.op(f"buffer_store_dword v48, v6, {S['ws']}, s54 offen{RY()}")
    vm.op(f"buffer_store_dwordx4 v[40:43], v{vL16}, {S['ws']}, s57 offen sc1"); vm.op(f"buffer_store_dwordx4 v[44:47], v{vL16}, {S['ws']}, s57 offen offset:1024 sc1")
    stamp(a, 11, 2)
    ACC, WF, WH, ST = 16, [80, 92, 104], [116, 120], 240
    vF, vH = [10, 11, 12, 13], [4, 7, 14, 15]
    tr_addr(a, 10, 11, True, 6, False)
    a(f"v_add_u32 v10, {L_W1}, v10\nv_add_u32 v11, 0x8000, v10\nv_add_u32 v12, 0x10000, v10\nv_add_u32 v13, 0x18000, v10")
    half_tr_addr(a, 4, 7)
    a(f"v_add_u32 v4, {L_W1}, v4\nv_add_u32 v7, 0x8000, v4\nv_add_u32 v14, 0x10000, v4\nv_add_u32 v15, 0x18000, v4")
    a(f"v_and_b32 v8, 16, v0\nv_cmp_eq_u32 vcc, 0, v8\nv_mov_b32 v8, 0xeeeeeeee\nv_mov_b32 v5, 0x44444444\nv_cndmask_b32 v8, v8, v5, vcc")
    for r in range(64): a(f"v_mov_b32 v{ACC+r}, 0")
    poll_addr(a, 5, LF())
    set_flag_rg(a, vm, "s56", 9)
    stamp(a, 9); stamp(a, 12, 2)
    poll(a, vm, "0xffff", 5, "s55", 125, OPT.get("fx", 4))
    stamp(a, 10); stamp(a, 0, 3)
    a(f"s_lshl_b32 s52, s{sT32}, 15\ns_add_u32 s52, s52, {hex(WS_Y)}")
    a(f"s_lshl_b32 s54, s{sT32}, 8\ns_add_u32 s54, s54, {hex(WS_STATS)}")
    YL = rot_loads(a, vm, 52, AF, "y")
    for _ in range(4): vm.op(*next(YL)[1])
    for q in range(16):
        vm.op(f"buffer_load_dword v{ST+q}, v6, {S['ws']}, s54 offen sc1", "st"); a("s_add_u32 s54, s54, 16384")
    for _ in range(8): vm.op(*next(YL)[1])
    lg.reset()
    def rdW1(ks): return [(x, ("w", ks)) for x in w1_reads(ks//2, ks & 1, WF[ks % 3], vF)]
    for x in rdW1(0) + rdW1(1): lg.op(*x)
    TT, UB = 128, 184
    side = {}
    side[(6, 0)] = ["v_mov_b32 v125, v124", f"v_bfe_u32 v5, v{vLANE}, 5, 1", "v_lshlrev_b32 v9, 7, v5", "v_permlane32_swap_b32 v124, v125"]
    side[(6, 1)] = [f"v_add_u32 v9, {L_UW}, v9", f"v_mul_f32 v124, {hx(1/512)}, v124", f"v_mul_f32 v125, {hx(1/512)}, v125", "v_fma_f32 v125, -v124, v124, v125"]
    side[(6, 2)] = ["v_max_f32 v125, 0, v125", f"v_add_f32 v125, {hx(1e-5)}, v125", "v_rsq_f32 v125, v125"]
    side[(7, 0)] = [f"v_mul_f32 v5, {hx(-LOG2E)}, v125", "v_mul_f32 v125, v5, v124", "v_sub_f32 v125, 0, v125", "v_mov_b32 v124, v5"]
    side[(7, 1)] = [f"s_lshl_b32 s55, s{sT32}, 4", f"s_add_u32 s55, s55, s{sC}", f"s_lshr_b32 s50, s55, {LF()}", "s_lshl_b32 s50, s50, 7", f"s_and_b32 s56, s55, {(1 << LF()) - 1}"]
    side[(7, 2)] = ["s_lshl_b32 s56, s56, 2", "s_add_u32 s56, s56, s50", f"s_add_u32 s56, s56, {hex(WS_FH)}"]
    side[(12, 0)] = [f"s_mul_i32 s52, s{sT32}, {112*1024}", f"s_mul_i32 s53, s{sC}, 7168", "s_add_u32 s52, s52, s53", f"s_add_u32 s52, s52, {hex(WS_H)}"]
    if ONEWAY(): side[(13, 2)] = ["uwrd"]; side[(15, 1)] = ["uwck"]
    for m in range(7):
        ks = 16 + 2*m
        rw = lambda j: f"ds_read_b128 {vr(TT+4*j,4)}, v9 offset:{256*(j//4)+64+16*(j%4)}"
        ru = lambda j: f"ds_read_b128 {vr(UB+4*(j&1),4)}, v9 offset:{256*(j//4)+16*(j%4)}"
        fm = lambda j: [f"v_fmac_f32 v{TT+4*j+r}, v125, v{UB+4*(j&1)+r}" for r in range(4)]
        side.setdefault((ks+2, 1), []).extend([f"wait{ks+1}"] + fm(2*m))
        side.setdefault((ks+2, 2), []).extend(fm(2*m+1))
        side.setdefault((ks, 2), []).append(rw(2*m))
        side.setdefault((ks+1, 2), []).extend([ru(2*m), rw(2*m+1), ru(2*m+1)])
    for kp in range(16):
        for e in range(2):
            ks = 2*kp + e
            R = rdW1(ks+2) if ks + 2 < 32 else []
            if e == 0: R = [(x, ("h", kp)) for x in w1_half_reads(kp, WH[kp & 1], vH)] + R
            lg.wait(("w", ks)); vm.wait(("y", ks))
            for nt in range(3):
                a(f"v_mfma_f32_32x32x16_bf16 {vr(ACC+16*nt,16)}, {vr(WF[ks%3]+4*nt,4)}, {vr(AF+4*ks,4)}, {vr(ACC+16*nt,16)}")
                [lg.op(*x) for x in R[3*nt:3*nt+3]]
                if nt >= 1:
                    j = 12 + 2*ks + nt - 1
                    if j < 32: vm.op(*next(YL)[1])
                if ks in (4, 5):
                    for q in (((0, 8), (1, 9), (2, 10)), ((3, 11), (4, 12), (5, 13)), ((6, 14), (7, 15)))[nt] if ks == 4 else (((0, 4), (1, 5), (2, 6), (3, 7)), ((0, 2), (1, 3)), ())[nt]:
                        a(f"v_add_f32 v{ST+q[0]}, v{ST+q[0]}, v{ST+q[1]}")
                    if ks == 5 and nt == 2: a(f"v_add_f32 v124, v{ST}, v{ST+1}")
                for x in side.get((ks, nt), []):
                    if x.startswith("ds_"): lg.op(x, ("u", ks))
                    elif x.startswith("wait"): lg.wait(("u", int(x[4:])))
                    elif x == "uwrd": lg.op(f"ds_read_b32 v5, v126 offset:{4*CNT['uw']}", "cnt")
                    elif x == "uwck": lg.wait("cnt"); await_(a, "uw", 126, 5, True)
                    else: a(x)
            if e == 1:
                lg.wait(("h", kp))
                a(f"v_smfmac_f32_32x32x32_bf16 {vr(ACC+48,16)}, {vr(WH[kp&1],4)}, {vr(AF+8*kp,8)}, v8")
                if kp % 2 == 0 or kp == 15: stamp(a, 1 + (kp+1)//2, 3)
                if kp == OPT.get("b6b", 4): sig(a, "b6b", 126, 127, lg)
    sig(a, "b7", 126, 127)
    stamp(a, 11)
    E = 80
    for r in range(8): a(f"v_add_f32 v{ACC+48+r}, v{ACC+48+r}, v{ACC+56+r}")
    for nt in range(4):
        t = TT + 16*nt; acc = ACC + 16*nt; n = 16 if nt < 3 else 8
        for r in range(0, n, 2): a(f"v_pk_fma_f32 {vr(acc+r,2)}, {vr(acc+r,2)}, v[124:125], {vr(t+r,2)} op_sel:[0,0,0] op_sel_hi:[1,0,1]")
        for r in range(n): a(f"v_exp_f32 v{E+r}, v{acc+r}")
        for r in range(0, n, 2): a(f"v_pk_add_f32 {vr(E+r,2)}, {vr(E+r,2)}, 1.0 op_sel_hi:[1,0]")
        for r in range(n): a(f"v_rcp_f32 v{E+r}, v{E+r}")
        for r in range(0, n, 2): a(f"v_pk_mul_f32 {vr(acc+r,2)}, {vr(acc+r,2)}, {vr(E+r,2)}")
        o = 208 + 8*nt
        for r in range(n//2): a(f"v_cvt_pk_bf16_f32 v{o+r}, v{acc+2*r}, v{acc+2*r+1}")
        if nt == 2: a("s_add_u32 s52, s52, 4096")
        vm.op(f"buffer_store_dwordx4 {vr(o,4)}, v{vL16}, {S['ws']}, s52 offen offset:{2048*(nt&1)}{RG()}")
        if nt < 3: vm.op(f"buffer_store_dwordx4 {vr(o+4,4)}, v{vL16}, {S['ws']}, s52 offen offset:{2048*(nt&1)+1024}{RG()}")
        stamp(a, 10 + nt, 3)
        if nt == 1: vm.q = [("ha", 0)]*len(vm.q)
        if nt == OPT.get("fa", 2) and OPT.get("h2", 0):
            vm.wait(("ha", 0))
            a(f"v_mov_b32 v9, s{sTAG}\ns_mov_b64 exec, 1")
            vm.op(f"buffer_store_dword v9, v{vZ}, {S['ws']}, s56 offen sc1")
            a(f"s_mov_b64 exec, -1\ns_add_u32 s56, s56, {FH_B}")
    stamp(a, 14, 3)
    ACC, WF, GB, XR, NR = [16, 32], [48, 56, 88], 64, 80, 32
    sTT, sKH, sT5, sF5 = 54, 55, 57, 58
    a(f"s_and_b32 s{sTT}, s{sW}, 1\ns_lshr_b32 s{sKH}, s{sW}, 1")
    a(f"s_lshr_b32 s52, s{sC}, 3\ns_lshl_b32 s52, s52, 1\ns_lshl_b32 s{sT5}, s{sTB}, 2\ns_add_u32 s{sT5}, s{sT5}, s52\ns_add_u32 s{sT5}, s{sT5}, s{sTT}")
    a(f"s_and_b32 s{sF5}, s{sC}, 7\ns_lshl_b32 s{sF5}, s{sF5}, 1\ns_add_u32 s{sF5}, s{sF5}, s{sKH}")
    tr_addr(a, 10, 11, True, 7, True)
    a(f"s_lshl_b32 s52, s{sKH}, 6\nv_xor_b32 v10, s52, v10\ns_lshl_b32 s52, s{sKH}, 13\nv_add_u32 v10, s52, v10\nv_xor_b32 v11, 64, v10")
    for r in range(32): a(f"v_mov_b32 v{16+r}, 0")
    poll_addr(a, 5, LF())
    a(f"s_lshl_b32 s52, s{sT5}, {11-LF()}\ns_lshl_b32 s53, s{sKH}, {10-LF()}\ns_add_u32 s52, s52, s53\ns_add_u32 s52, s52, {hex(WS_FH)}")
    a(f"s_lshl_b32 s61, s{sT5}, 15\ns_lshl_b32 s59, s{sF5}, 11\ns_add_u32 s61, s61, s59\ns_add_u32 s61, s61, {hex(WS_X1)}")
    H2 = OPT.get("h2", 0)
    a(f"s_add_u32 s62, s52, {FH_B}")
    if H2:
        a(f"s_mov_b64 exec, 0xff")
        vm.op(f"buffer_load_dword v6, v5, {S['ws']}, s52 offen sc1", "fa")
        a("s_mov_b64 exec, -1")
        set_flag_rg(a, vm, "s56", 9)
        stamp(a, 12)
        a(f"s_mov_b64 exec, 0xff\nv_cmp_ne_u32 vcc, s{sTAG}, v6\ns_mov_b64 exec, -1\ns_cbranch_vccz La_haok")
        poll(a, vm, "0xff", 5, "s52", 6, 2)
        a("La_haok:")
        vm.q = [None]
    else:
        set_flag_rg(a, vm, "s56", 9)
        stamp(a, 12)
        poll(a, vm, "0xff", 5, "s52", 6, OPT.get("fh", 4))
    stamp(a, 13); stamp(a, 0, 4)
    a(f"s_mul_i32 s52, s{sT5}, {112*1024}\ns_mul_i32 s53, s{sKH}, {56*1024}\ns_add_u32 s52, s52, s53\ns_add_u32 s52, s52, {hex(WS_H)}")
    def ldH(ks):
        p, j = h_pj(ks)
        if j in (0, 4): a(f"s_add_u32 s53, s{sR}, {p}\ns_and_b32 s53, s53, 7\ns_mul_i32 s53, s53, 7168\ns_add_u32 s53, s53, s52" + ("\ns_add_u32 s53, s53, 4096" if j else ""))
        vm.op(f"buffer_load_dwordx4 {vr(AF+4*(ks%NR),4)}, v{vL16}, {S['ws']}, s53 offen offset:{1024*(j%4)}{RL()}", ("h", ks))
    PF = OPT.get('pf5', 12)
    for ks in range(PF):
        ldH(ks)
        if ks == 7: a("s_barrier")
    slot = lambda s: s if s < 9 else s - 9
    def rdW2(ks):
        s, k = ks // 4, ks % 4
        return [(f"ds_read_b64_tr_b16 {vr(WF[ks%3]+4*n+2*st,2)}, v{12+n} offset:{2048*k+1024*st}", ("w", ks)) for n in range(2) for st in range(2)]
    def setslot(s): a(f"v_add_u32 v12, {16384*slot(s)}, v10\nv_add_u32 v13, {16384*slot(s)}, v11")
    lg.reset(); setslot(0)
    for x in rdW2(0) + rdW2(1): lg.op(*x)
    for ks in range(56):
        n = ks + 2
        lg.wait(("w", ks))
        if ks in (11, 19): sig(a, "b9" if ks == 11 else "b10", 126, 127, lg)
        if ONEWAY() and n + 2 in (36, 48): lg.op(f"ds_read_b32 v125, v126 offset:{4*CNT['b11' if n + 2 == 36 else 'b12']}", "cnt")
        if n < 56 and n % 4 == 0:
            if n // 4 in (9, 12):
                lg.wait("cnt"); await_(a, "b11" if n == 36 else "b12", 126, 125, True)
            setslot(n // 4)
        vm.wait(("h", ks))
        a(f"v_mfma_f32_32x32x16_bf16 {vr(ACC[0],16)}, {vr(WF[ks%3],4)}, {vr(AF+4*(ks%NR),4)}, {vr(ACC[0],16)}")
        if n < 56: [lg.op(*x) for x in rdW2(n)]
        a(f"v_mfma_f32_32x32x16_bf16 {vr(ACC[1],16)}, {vr(WF[ks%3]+4,4)}, {vr(AF+4*(ks%NR),4)}, {vr(ACC[1],16)}")
        if H2 and ks == OPT.get("fb", 10):
            a("s_mov_b64 exec, 0xff"); vm.op(f"buffer_load_dword v6, v5, {S['ws']}, s62 offen sc1", "fb"); a("s_mov_b64 exec, -1")
        if H2 and ks + PF == 32:
            vm.wait("fb")
            a(f"s_mov_b64 exec, 0xff\nv_cmp_ne_u32 vcc, s{sTAG}, v6\ns_mov_b64 exec, -1\ns_cbranch_vccz La_hbok")
            q0 = list(vm.q)
            poll(a, vm, "0xff", 5, "s62", 6, 0)
            vm.q = q0
            a("La_hbok:")
        if ks + PF < 56: ldH(ks + PF)
        if ks == 44:
            for q in range(2): vm.op(f"buffer_load_dwordx4 {vr(XR+4*q,4)}, v{vL16}, {S['ws']}, s61 offen offset:{1024*q} sc1", "x1")
        if ks % 4 == 3: stamp(a, 1 + ks//4, 4)
    stamp(a, 14)
    vm.wait("x1")
    a(f"s_xor_b32 s52, s{sW}, 2\ns_lshl_b32 s52, s52, 12\ns_add_u32 s52, s52, {16384*5}\nv_add_u32 v5, s52, v{vL16}")
    a(f"s_lshl_b32 s52, s{sW}, 12\ns_add_u32 s52, s52, {16384*5}\nv_add_u32 v6, s52, v{vL16}")
    a(f"v_bfe_u32 v9, v{vLANE}, 5, 1\nv_lshlrev_b32 v7, 4, v9\ns_lshl_b32 s52, s{sKH}, 7\ns_add_u32 s52, s52, {L_GB}\nv_add_u32 v7, s52, v7")
    for q in range(4): a(f"ds_read_b128 {vr(GB+4*q,4)}, v7 offset:{32*q}")
    XF = 96
    for r in range(8): a(f"v_lshlrev_b32 v{XF+2*r}, 16, v{XR+r}\nv_and_b32 v{XF+2*r+1}, 0xffff0000, v{XR+r}")
    for q in range(4): a(f"ds_write_b128 v5, {vr(ACC[1]+4*q,4)} offset:{1024*q}")
    a("s_waitcnt lgkmcnt(0)\ns_barrier")
    for q in range(4): a(f"ds_read_b128 {vr(ACC[1]+4*q,4)}, v6 offset:{1024*q}")
    a(f"v_and_b32 v7, 31, v{vLANE}\nv_lshlrev_b32 v8, 10, v7\nv_lshl_add_u32 v8, v9, 4, v8")
    a(f"s_lshl_b32 s52, s{sT5}, 15\ns_lshl_b32 s53, s{sF5}, 6\ns_add_u32 s52, s52, s53")
    for q in range(4):
        a(f"s_waitcnt lgkmcnt({3-q})")
        for r in range(4*q, 4*q+4): a(f"v_add_f32 v{ACC[0]+r}, v{ACC[0]+r}, v{ACC[1]+r}")
        for r in range(4*q, 4*q+4): a(f"v_fmac_f32 v{XF+r}, v{ACC[0]+r}, v{GB+r}")
    for r in range(8): a(f"v_cvt_pk_bf16_f32 v{64+r}, v{XF+2*r}, v{XF+2*r+1}")
    ofl = ['', ' sc1', ' nt', ' sc0 sc1', ' sc1 nt'][OPT.get('osc', 0)]
    if OPT.get("otr", 0):
        a(f"s_mul_i32 s53, s{sW}, 2560\ns_add_u32 s53, s53, {16384*6}\nv_mul_u32_u24 v5, 80, v7\nv_lshl_add_u32 v5, v9, 4, v5\nv_add_u32 v5, s53, v5")
        a(f"v_lshrrev_b32 v6, 2, v{vLANE}\nv_and_b32 v7, 3, v{vLANE}\nv_lshlrev_b32 v8, 10, v6\nv_lshl_add_u32 v8, v7, 4, v8\nv_mul_u32_u24 v6, 80, v6\nv_lshl_add_u32 v6, v7, 4, v6\nv_add_u32 v6, s53, v6")
        for p in range(2):
            a(f"v_permlane32_swap_b32 v{64+4*p}, v{64+4*p+2}\nv_permlane32_swap_b32 v{64+4*p+1}, v{64+4*p+3}")
            a(f"ds_write_b128 v5, {vr(64+4*p,4)} offset:{32*p}")
        a("s_add_u32 s53, s52, 16384\ns_waitcnt lgkmcnt(0)")
        for p in range(2): a(f"ds_read_b128 {vr(72+4*p,4)}, v6 offset:{1280*p}")
        for p in range(2):
            a(f"s_waitcnt lgkmcnt({1-p})")
            vm.op(f"buffer_store_dwordx4 {vr(72+4*p,4)}, v8, {S['out']}, s{52+p} offen{ofl}")
    else:
        for p in range(2):
            a(f"v_permlane32_swap_b32 v{64+4*p}, v{64+4*p+2}\nv_permlane32_swap_b32 v{64+4*p+1}, v{64+4*p+3}")
            vm.op(f"buffer_store_dwordx4 {vr(64+4*p,4)}, v8, {S['out']}, s52 offen offset:{32*p}{ofl}")

def wq_loop(a):
    a(f"v_lshrrev_b32 v4, 2, v{vLANE}\nv_mul_u32_u24 v4, 3072, v4\nv_and_b32 v5, 3, v{vLANE}\nv_lshl_add_u32 v4, v5, 4, v4")
    a(f"s_lshl_b32 s55, s{sR}, 2\ns_add_u32 s55, s55, s67\ns_lshl_b32 s53, s67, 10\ns_add_u32 s53, s53, {L_WQ}\ns_lshl_b32 s56, s{sC}, 6\ns_mov_b32 s51, 8\nLh_ql:")
    a(f"s_and_b32 s52, s55, 31\ns_mul_i32 s52, s52, {16*3072}\ns_mov_b32 m0, s53\ns_add_u32 s52, s52, s56")
    a(f"buffer_load_dwordx4 v4, {S['wqkv']}, s52 offen lds")
    a(f"s_add_u32 s55, s55, 4\ns_add_u32 s53, s53, 4096\ns_sub_u32 s51, s51, 1\ns_cmp_lg_u32 s51, 0\ns_cbranch_scc1 Lh_ql")

def helper(a):
    vm = Track(a, "vmcnt", 63)
    sH, sCol = 67, 66
    a("Lh_b2:")
    a("s_waitcnt vmcnt(0) lgkmcnt(0)\ns_barrier")
    if OPT.get("whalf", 0):
        a(f"s_add_u32 s55, s{sH}, {4*OPT['whalf']}\ns_mov_b32 s51, {8-OPT['whalf']}\ns_mov_b32 s56, s59\ns_mov_b32 s57, s60")
        wkv_loop(a, "Lh_wl2")
    if OPT.get("st", 7) & 2:
        a(f"s_lshl_b32 s57, s2, 2\ns_add_u32 s57, s57, s{sH}\ns_lshl_b32 s58, s57, 9\ns_mul_i32 s57, s57, {5*128}\ns_add_u32 s57, s57, {9216*128}")
        for n in range(3): a(stouch("w1", 57, n))
    if OPT.get("whalf", 0): a("s_waitcnt vmcnt(0)")
    a("s_barrier")
    wq_loop(a)
    if OPT.get("st", 7) & 2:
        for n in range(3, 5): a(stouch("w1", 57, n))
        a(stouch("wo", 58, 0))
    a("s_waitcnt vmcnt(0)")
    if OPT.get("touch", 0) == 1: mall_touch(a)
    stamp(a, 2)
    a("s_barrier")
    if OPT.get("st", 7) & 2:
        for n in range(1, 4): a(stouch("wo", 58, n))
    early, late = att_setup()
    for x in early + late: a(x)
    if OPT.get("hearly", 1):
        att_first(a, vm, OPT.get("fkh", 24))
        if OPT.get("qj", 1): q_join(a)
        else: a("s_barrier")
        att_q(a)
    else:
        a("s_barrier")
        att_q(a)
        att_first(a, vm, OPT.get("fk", 0))

def helper2(a):
    vm = Track(a, "vmcnt", 63); lg = Track(a, "lgkmcnt", 15)
    sH = 67
    MF = OPT.get("mf", 0)
    if MF:
        a(f"s_sub_u32 s52, s{sI}, 8\ns_cmp_ge_u32 s52, 16\ns_cbranch_scc1 Lh_nomod1")
        mod_partial(a, vm, vMOD)
        if MF == 2: mod_join(a, vm, 66, "Lh_nomod1")
        a("Lh_nomod1:")
    stamp(a, 6, 8)
    set_flag(a, vm, "s64", vZ, 8, RO())
    stamp(a, 7); stamp(a, 7, 8)
    vF, vH = 13, 14
    a(f"s_sub_u32 s52, s{sI}, 8\ns_cmp_ge_u32 s52, 16\ns_cbranch_scc1 Lh_nomod2")
    if not MF: mod_partial(a, vm, vMOD)
    if MF < 2: mod_join(a, vm, 66, "Lh_nomod2")
    a("Lh_nomod2:")
    def w2_touch():
        a(f"s_mul_i32 s52, s{sI}, 7\ns_lshl_b32 s53, s{sH}, 1\ns_add_u32 s52, s52, s53\ns_lshl_b32 s52, s52, 13\nv_lshlrev_b32 v5, 7, v{vLANE}")
        a(f"buffer_load_dword v248, v5, {S['w2']}, s52 offen\ns_add_u32 s52, s52, 8192\nbuffer_load_dword v248, v5, {S['w2']}, s52 offen")
    if OPT.get("w2s") == 1: w2_touch()
    sig_regs(a, 12, 13)
    await_(a, "b5b", 12, 14)
    a(f"v_lshlrev_b32 v4, 5, v{vLANE}\ns_lshl_b32 s52, s{sH}, 11\ns_add_u32 s52, s52, 4096")
    gran_poll(a, vm, [f"buffer_load_dwordx4 v[16:19], v4, {S['ws']}, s52 offen sc1", f"buffer_load_dwordx4 v[20:23], v4, {S['ws']}, s52 offen offset:16 sc1"], [16, 20])
    for j, r in enumerate((16, 18, 20, 22)): a(f"v_lshlrev_b32 v{24+2*j}, 16, v{r}\nv_and_b32 v{25+2*j}, 0xffff0000, v{r}")
    a(f"s_cmp_eq_u32 s{sH}, 1\ns_cbranch_scc1 Lh_tabg")
    a(f"s_cmp_eq_u32 s{sH}, 3\ns_cselect_b32 s53, {hx(-1/LOG2E)}, 1.0")
    a(f"s_lshl_b32 s54, s{sC}, 2\ns_and_b32 s55, s{sC}, 7\ns_lshl_b32 s55, s55, 3\ns_lshl_b32 s56, s{sH}, 6\ns_cmp_eq_u32 s{sH}, 3\ns_cselect_b32 s54, s55, s54\ns_cselect_b32 s55, 8, 4")
    a(f"s_cselect_b32 s56, 256, s56\ns_add_u32 s56, s56, {L_TAB}")
    for r in range(8): a(f"v_mul_f32 v{24+r}, s53, v{24+r}")
    a(f"v_subrev_u32 v5, s54, v{vLANE}\nv_cmp_gt_u32 vcc, s55, v5\nv_lshlrev_b32 v5, 5, v5\nv_add_u32 v5, s56, v5")
    a("s_and_saveexec_b64 s[56:57], vcc\nds_write_b128 v5, v[24:27]\nds_write_b128 v5, v[28:31] offset:16\ns_mov_b64 exec, -1")
    a(f"s_cmp_lg_u32 s{sH}, 2\ns_cbranch_scc1 Lh_tabd")
    a("Lh_tabg:")
    a(f"v_lshrrev_b32 v5, 1, v{vLANE}\ns_lshl_b32 s53, s{sR}, 2\nv_subrev_u32 v5, s53, v5\nv_and_b32 v5, 31, v5\nv_lshlrev_b32 v5, 6, v5\nv_and_b32 v6, 1, v{vLANE}\nv_lshl_add_u32 v5, v6, 3, v5")
    a(f"s_and_b32 s53, s{sH}, 1\ns_lshl_b32 s53, s53, 4\ns_add_u32 s53, s53, {L_G}\nv_add_u32 v5, s53, v5")
    a("v_mov_b32 v17, v18\nv_mov_b32 v21, v22\nds_write_b64 v5, v[16:17]\nds_write_b64 v5, v[20:21] offset:32")
    a("Lh_tabd:")
    vW2 = 10
    a(f"v_lshrrev_b32 v{vW2}, 3, v{vLANE}\nv_lshlrev_b32 v{vW2}, 10, v{vW2}\nv_bfe_u32 v5, v{vLANE}, 4, 1\nv_lshlrev_b32 v5, 2, v5\nv_xor_b32 v5, v5, v{vLANE}\nv_and_b32 v5, 7, v5\nv_lshl_add_u32 v{vW2}, v5, 4, v{vW2}")
    a(f"s_lshl_b32 s58, s{sR}, 7\ns_lshl_b32 s59, s{sH}, 11")
    def w2_row(s):
        if s < 8:
            a(f"s_add_u32 s61, s{sR}, {s}\ns_and_b32 s61, s61, 7\ns_mul_i32 s61, s61, 7\ns_add_u32 s61, s61, s{sH}")
        else:
            a(f"s_add_u32 s60, s{sH}, {4*(s-8)}\ns_mul_i32 s61, s60, 43\ns_lshr_b32 s61, s61, 7\ns_mul_i32 s62, s61, 3\ns_sub_u32 s60, s60, s62")
            a(f"s_add_u32 s61, s61, s{sR}\ns_and_b32 s61, s61, 7\ns_mul_i32 s61, s61, 7\ns_add_u32 s61, s61, s60\ns_add_u32 s61, s61, 4")
        a("s_lshl_b32 s61, s61, 14\ns_add_u32 s61, s61, s58")
    NREG = OPT.get("nreg", 10); S0 = 14 - NREG; RB = 48
    def w2_reg(s):
        w2_row(s)
        for j in range(4):
            a(f"s_add_u32 s52, s61, {56*(j>>1)*16384+8192*(j&1)}")
            vm.op(f"buffer_load_dwordx4 {vr(RB+16*(s-S0)+4*j,4)}, v{vW2}, {S['w2']}, s52 offen", ("w2r", s))
    EARLY = list(range(14 - OPT.get("early", 0), 14))
    if EARLY:
        a("s_waitcnt lgkmcnt(0)"); await_(a, "b5c", 12, 14)
        for s_ in EARLY: w2_reg(s_)
    if OPT.get("w2s") == 2:
        a("s_waitcnt lgkmcnt(0)"); w2_touch()
    else: a("s_waitcnt lgkmcnt(0)")
    stamp(a, 8)
    a("s_barrier")
    def w2_stage(s, thr=None):
        sl = s if s < 9 else s - 9
        w2_row(s)
        for kh in range(2):
            for hf in range(2):
                a(f"s_add_u32 m0, s59, {16384*sl+8192*kh+1024*hf}\ns_add_u32 s52, s61, {56*kh*16384+8192*hf}")
                vm.op(f"buffer_load_dwordx4 v{vW2}, {S['w2']}, s52 offen lds", ("w2", s))
        if thr: vm.wait(("w2", s-1))
    W01 = OPT.get('w01', 2)
    if W01 == 0: w2_stage(0); w2_stage(1)
    ACC, GF, WF = 16, 32, 48
    a(f"v_bfe_u32 v9, v{vLANE}, 5, 1\nv_lshlrev_b32 v6, 5, v9\nv_and_b32 v5, 1, v{vLANE}\nv_lshl_add_u32 v6, v5, 4, v6\nv_add_u32 v6, {L_G}, v6")
    for r in range(16): a(f"v_mov_b32 v{ACC+r}, 0")
    GZ = OPT.get("gz", 1)
    for r in range(8): a(f"v_mov_b32 v{GF+r}, 0")
    a("s_mov_b32 s56, 3\ns_mov_b32 s57, 3")
    def rdG(e): a(("s_mov_b64 exec, s[56:57]\n" if GZ else "") + f"ds_read_b128 {vr(GF+4*e,4)}, v6 offset:{64*e}" + ("\ns_mov_b64 exec, -1" if GZ else ""))
    a(f"s_cmp_eq_u32 s{sH}, 3\ns_cbranch_scc1 Lh_uwh")
    tr_addr(a, 4, 5, True, 6, False)
    a(f"s_lshl_b32 s52, s{sH}, 10\ns_add_u32 s52, s52, {L_W1}\nv_add_u32 v4, s52, v4\ns_mov_b32 s51, 16")
    a("Lh_uwl:")
    for e in range(2):
        rdG(e)
        for st in range(2): a(f"ds_read_b64_tr_b16 {vr(WF+4*e+2*st,2)}, v4 offset:{3072*e+512*st}")
    a("v_add_u32 v4, 7168, v4\nv_add_u32 v6, 128, v6\ns_sub_u32 s51, s51, 1")
    for e in range(2):
        a(f"s_waitcnt lgkmcnt({3-3*e})")
        a(f"v_mfma_f32_32x32x16_bf16 {vr(ACC,16)}, {vr(WF+4*e,4)}, {vr(GF+4*e,4)}, {vr(ACC,16)}")
    a("s_cmp_lg_u32 s51, 0\ns_cbranch_scc1 Lh_uwl")
    a("s_branch Lh_uwd")
    a("Lh_uwh:")
    half_tr_addr(a, 4, 5)
    a(f"v_add_u32 v4, {L_W1+6144}, v4\ns_mov_b32 s51, 16")
    a(f"v_and_b32 v8, 16, v0\nv_cmp_eq_u32 vcc, 0, v8\nv_mov_b32 v8, 0xeeeeeeee\nv_mov_b32 v5, 0x44444444\nv_cndmask_b32 v8, v8, v5, vcc")
    a("Lh_uwhl:")
    for e in range(2): rdG(e)
    for st in range(2): a(f"ds_read_b64_tr_b16 {vr(WF+2*st,2)}, v4 offset:{256*st}")
    a("v_add_u32 v4, 7168, v4\nv_add_u32 v6, 128, v6\ns_sub_u32 s51, s51, 1\ns_waitcnt lgkmcnt(0)")
    a(f"v_smfmac_f32_32x32x32_bf16 {vr(ACC,16)}, {vr(WF,4)}, {vr(GF,8)}, v8")
    a("s_cmp_lg_u32 s51, 0\ns_cbranch_scc1 Lh_uwhl")
    a("s_nop 7\ns_nop 3")
    for r in range(8): a(f"v_add_f32 v{ACC+r}, v{ACC+r}, v{ACC+8+r}")
    a("Lh_uwd:")
    a(f"v_and_b32 v5, 1, v{vLANE}\nv_cmp_eq_u32 vcc, 1, v5\nv_mov_b32 v7, {hx(-LOG2E)}\nv_cndmask_b32 v7, 1.0, v7, vcc")
    a(f"v_lshlrev_b32 v6, 7, v9\nv_lshl_add_u32 v6, v5, 6, v6\ns_lshl_b32 s52, s{sH}, 8\ns_add_u32 s52, s52, {L_UW}\nv_add_u32 v6, s52, v6")
    a("s_nop 3")
    for r in range(16): a(f"v_mul_f32 v{ACC+r}, v{ACC+r}, v7")
    a("s_mov_b32 exec_lo, 3\ns_mov_b32 exec_hi, 3")
    for q in range(4): a(f"ds_write_b128 v6, {vr(ACC+4*q,4)} offset:{16*q}")
    a("s_mov_b64 exec, -1\ns_waitcnt lgkmcnt(0)")
    stamp(a, 9)
    if W01 == 2: w2_stage(0); w2_stage(1)
    if ONEWAY(): sig(a, "uw", 12, 13); await_(a, "uw", 12, 14)
    await_(a, "b6b", 12, 14)
    if W01 == 1: w2_stage(0); w2_stage(1)
    if OPT.get("e23", 0) and S0 == 4: w2_stage(2); w2_stage(3)
    if not OPT.get("now2"):
        for s in range(S0, 14):
            if s not in EARLY: w2_reg(s)
    await_(a, "b7", 12, 14)
    a(f"v_add_u32 v4, s59, v{vL16}\nv_add_u32 v5, 0x10000, v4\nv_add_u32 v6, 0x20000, v4")
    def w2_put(s):
        sl = s if s < 9 else s - 9
        for j in range(4): a(f"ds_write_b128 v{4 + sl//4}, {vr(RB+16*(s-S0)+4*j,4)} offset:{16384*(sl%4)+8192*(j>>1)+1024*(j&1)}")
    if not (OPT.get('e23', 0) and S0 == 4):
        for s in range(2, S0): w2_stage(s, True)
    for s in range(S0, 9):
        vm.wait(("w2r", s)); w2_put(s)
        if (s - S0) % 2 == 1: a("s_waitcnt lgkmcnt(4)")
    vm.wait_all()
    a("s_waitcnt lgkmcnt(0)")
    stamp(a, 12)
    a("s_barrier")
    if OPT.get("fast") and OPT.get("wb", 1):
        a(f"s_lshl_b32 s52, s{sC}, 2\ns_add_u32 s52, s52, s{sH}\ns_cmp_lg_u32 s52, 0\ns_cbranch_scc1 Lh_nowb\nbuffer_wbl2 sc1\nLh_nowb:")
    await_(a, "b9", 12, 14)
    for s in (9, 10, 11): w2_put(s)
    if ONEWAY(): a("s_waitcnt lgkmcnt(0)"); sig(a, "b11", 12, 13)
    await_(a, "b10", 12, 14)
    for s in (12, 13): w2_put(s)
    if not ONEWAY(): a("s_waitcnt lgkmcnt(8)\ns_barrier")
    a("s_waitcnt lgkmcnt(0)"); sig(a, "b12", 12, 13)
    a("s_barrier")

def diag_out(a, slot):
    if not DIAG: return
    stamp(a, 15)
    a("s_memrealtime s[52:53]\ns_waitcnt vmcnt(0) lgkmcnt(0)")
    a("s_mov_b64 exec, 1")
    for i in range(16):
        a(f"s_sub_u32 s{70+2*i}, s{70+2*i}, s3\nv_mov_b32 v{16+i}, s{70+2*i}")
    a("v_mov_b32 v32, s69\nv_mov_b32 v33, s52" if False else "v_mov_b32 v32, v250\nv_mov_b32 v33, s52")
    a(f"s_lshl_b32 s54, s2, 10\ns_lshl_b32 s55, s{sW}, 7\ns_add_u32 s54, s54, s55\ns_add_u32 s54, s54, {hex(WS_DIAG)}")
    for q in range(4): a(f"buffer_store_dwordx4 {vr(16+4*q,4)}, v{vZ}, {S['ws']}, s54 offen offset:{16*q}")
    a(f"buffer_store_dwordx2 v[32:33], v{vZ}, {S['ws']}, s54 offen offset:64")
    if OPT.get("dbgstart") and slot == 0:
        a(f"s_cmp_ge_u32 s2, 8\ns_cbranch_scc1 Ldiag{slot}\ns_cmp_lg_u32 s{sW}, 0\ns_cbranch_scc1 Ldiag{slot}\ns_lshl_b32 s54, s2, 2\ns_add_u32 s54, s54, 4")
        a(f"v_subrev_u32 v32, s{sTAG}, v250\nv_add_u32 v32, 1000, v32\nbuffer_store_dword v32, v{vZ}, {S['dbg']}, s54 offen")
        a(f"s_getreg_b32 s55, hwreg(HW_REG_XCC_ID)\ns_and_b32 s55, s55, 15\nv_mov_b32 v32, s55\ns_cmp_ge_u32 s2, 7\ns_cbranch_scc1 Ldiag{slot}\nbuffer_store_dword v32, v{vZ}, {S['dbg']}, s54 offen offset:32")
    if OPT.get("dbgout") and slot == 0:
        a(f"s_lshl_b32 s54, s2, 3\ns_add_u32 s54, s54, s{sW}\ns_cmp_lg_u32 s54, {OPT['dbgout']*8}\ns_cbranch_scc1 Ldiag{slot}")
        for i in range(1, 16): a(f"buffer_store_dword v{16+i}, v{vZ}, {S['dbg']}, 0 offen offset:{4*i}")
    a(f"Ldiag{slot}:")

def build():
    a = Asm()
    a("s_cmp_ge_u32 s2, 256\ns_cbranch_scc1 Lend")
    for nm in ("x", "dbg", "wmod", "c", "wqkv", "ws", "wo", "w1", "w2", "out"):
        a(f"s_load_dwordx2 {sr(SRD[nm],2)}, s[0:1], {KA[nm]}")
    if DIAG: a("s_memtime s[70:71]\ns_memrealtime s[72:73]")
    a(f"v_lshrrev_b32 v4, 6, v0\nv_and_b32 v{vLANE}, 63, v0\nv_mov_b32 v{vZ}, 0\nv_readfirstlane_b32 s{sW}, v4\nv_lshlrev_b32 v{vL16}, 4, v{vLANE}")
    a(f"s_getpc_b64 s[56:57]\nLpc:\ns_sub_u32 s56, s56, Lpc-{NAME}_kernel\ns_subb_u32 s57, s57, 0")
    a(f"s_and_b32 s{sX}, s2, 7\ns_lshr_b32 s{sI}, s2, 3\ns_sub_u32 s67, s{sW}, 4")
    a(f"s_cmp_lt_u32 s{sW}, 6\ns_cbranch_scc1 Le_nopf")
    a(f"s_lshl_b32 s58, s{sI}, 1\ns_add_u32 s58, s58, s67\ns_sub_u32 s58, s58, 2\ns_lshl_b32 s58, s58, 10\ns_min_u32 s58, s58, Lcode_end-{NAME}_kernel-1024\nv_add_u32 v5, s58, v{vL16}")
    a("global_load_dwordx4 v[16:19], v5, s[56:57]")
    a("Le_nopf:")
    if OPT.get('m216', 0):
        a(f"s_lshl_b32 s{sTB}, s{sX}, 1\ns_lshr_b32 s52, s{sI}, 4\ns_add_u32 s{sTB}, s{sTB}, s52\ns_and_b32 s{sR}, s{sI}, 7\ns_and_b32 s{sC}, s{sI}, 15")
    else:
        a(f"s_lshr_b32 s{sTB}, s{sX}, 1\ns_lshl_b32 s{sTB}, s{sTB}, 2\ns_lshr_b32 s52, s{sI}, 3\ns_add_u32 s{sTB}, s{sTB}, s52")
        a(f"s_and_b32 s{sR}, s{sI}, 7\ns_and_b32 s{sC}, s{sX}, 1\ns_lshl_b32 s{sC}, s{sC}, 3\ns_add_u32 s{sC}, s{sC}, s{sR}")
    for nm in ("x", "dbg", "wmod", "c", "wqkv", "ws"): a(f"s_mov_b32 s{SRD[nm]+2}, {hex(SZ[nm])}\ns_mov_b32 s{SRD[nm]+3}, 0x20000")
    a("s_memrealtime s[54:55]")
    if DIAG:
        a("s_waitcnt lgkmcnt(0)\ns_mov_b32 s3, s70\ns_mov_b32 s68, s72\nv_mov_b32 v250, s72")
        if OPT.get("rt"): a("s_mov_b32 s3, s72")
        for i in range(16): a(f"s_mov_b32 s{70+2*i}, s3")
    a(f"s_cmp_ge_u32 s{sW}, 4\ns_cbranch_scc1 Lp0_h\ns_cmp_lt_u32 s{sI}, 8\ns_cbranch_scc1 Lp0_mod\ns_cmp_ge_u32 s{sI}, 24\ns_cbranch_scc1 Lp0_warm")
    p0_ln(a)
    a("Lp0_h:")
    p0_helper(a)
    a("Lp0_mod:")
    p0_mod(a)
    a("Lp0_warm:")
    p0_warm(a)
    active(a)
    a("s_branch Latt")
    helper(a)
    a("Latt:")
    vm = Track(a, "vmcnt", 63)
    slow = attention(a, vm)
    a(f"s_cmp_ge_u32 s{sW}, 4\ns_cbranch_scc1 Lhelper2")
    active2(a)
    if OPT.get("hold"):
        a(f"Lhold:\ns_memrealtime s[52:53]\ns_waitcnt lgkmcnt(0)\ns_sub_u32 s52, s52, s{sTAG}\ns_cmp_lt_u32 s52, {OPT['hold']}\ns_cbranch_scc1 Lhold")
    if DIAG: a("v_mov_b32 v250, s68")
    diag_out(a, 0)
    a("s_endpgm")
    a("Lhelper2:")
    helper2(a)
    diag_out(a, 1)
    a("s_endpgm")
    a("; ==== attention fallback: true row maximum first, then exp(s - max)")
    slow(a)
    a("Lend:")
    return a

def emit(a):
    hdr = open(f"cdna_kernels/{NAME}.s.ref").read().split("\n")
    out = [l for l in hdr if l.startswith(";") and "@launch" not in l and "Override launch" not in l and "grid=ceil" not in l]
    out.append(f"; @launch grid=(256,1,1) block=(512,1,1) lds={LDS_SIZE}")
    a.fix()
    out += ['.amdgcn_target "amdgcn-amd-amdhsa--gfx950"', ".text", f".globl {NAME}_kernel", ".p2align 8", f".type {NAME}_kernel,@function", f"{NAME}_kernel:",
            a.text(), "    s_endpgm", "Lcode_end:", '.section .rodata,"a"', ".p2align 6", f".amdhsa_kernel {NAME}_kernel", "  .amdhsa_next_free_vgpr 256",
            "  .amdhsa_next_free_sgpr 102", "  .amdhsa_accum_offset 256", "  .amdhsa_group_segment_fixed_size 0", "  .amdhsa_kernarg_size 88",
            "  .amdhsa_user_sgpr_count 2", "  .amdhsa_user_sgpr_kernarg_segment_ptr 1", "  .amdhsa_system_sgpr_workgroup_id_x 1",
            "  .amdhsa_float_denorm_mode_32 3", ".end_amdhsa_kernel"]
    return "\n".join(out) + "\n"

if __name__ == "__main__":
    import argparse
    p = argparse.ArgumentParser(); p.add_argument("out"); p.add_argument("--diag", action="store_true"); p.add_argument("--opt", default="")
    args = p.parse_args()
    DIAG = args.diag
    for o in args.opt.split(","):
        if o: OPT[o.split("=")[0]] = int(o.split("=")[1]) if "=" in o else 1
    set_nring(OPT.get('nring', 4))
    open(args.out, "w").write(emit(build()))
```

```python
import sys, struct
from asmlib import *

NAME = "adaLN_cond__softmax_full_mha__dense_activation_silu__prompt"
WS_MODG = 0x0
WS_STATS = 0x10000
WS_FXN, WS_FKV, WS_FO, WS_FX1, WS_FH = 0x50000, 0x52000, 0x80000, 0xC0000, 0xE0000
WS_FXC = 0x58000
sLOC = 66
FH_B = 0x8000
WS_XN, WS_K, WS_V, WS_O, WS_X1, WS_Y, WS_H = 0x200000, 0x400000, 0x600000, 0x800000, 0xA00000, 0xC00000, 0xE00000
WS_DIAG = 0x1600000
WS_SIZE = 0x1700000
KA = dict(x=0, wqkv=8, wo=16, w1=32, w2=40, c=48, wmod=56, out=64, dbg=72, ws=80)
SZ = dict(x=2048*512*2, wqkv=512*1536*2, wo=512*512*2, w1=512*1792*2, w2=1792*512*2, c=1024, wmod=512*3072*2, out=2048*512*2, dbg=256, ws=WS_SIZE)
SRD = dict(x=4, wqkv=8, wo=12, w1=16, w2=20, c=24, wmod=28, out=32, dbg=36, ws=40)
S = {k: sr(v, 4) for k, v in SRD.items()}
sW, sTB, sC, sTAG, sI, sX, sR = 44, 45, 46, 47, 48, 49, 69
SPIN = 20000
def f2u(f): return struct.unpack("<I", struct.pack("<f", f))[0]
def hx(f): return hex(f2u(f))
LOG2E = 1.4426950408889634
DIAG = False
OPT = {}
L_WKV, L_WQ = 0, 64*1024
L_DG = 96*1024
L_SA = 112*1024
L_QX = 144*1024
L_WO = 0
L_W1 = 32*1024
L_RED = 88*1024
L_TAB = 156*1024
L_GA, L_G2, L_GB, L_SCR, L_UW, L_G = L_TAB, L_TAB+128, L_TAB+256, L_TAB+512, L_TAB+1024, L_TAB+2048
LDS_SIZE = 160*1024

def stamp(a, i, grp=0):
    if DIAG and (OPT.get("focus", 0) == grp or i == 15): a(f"{'s_memrealtime' if OPT.get('rt') else 's_memtime'} s[{70+2*i}:{71+2*i}]")

_uid = [0]
def poll(a, vm, mask, vaddr, soff, vt, first=0):
    _uid[0] += 1; n = _uid[0]
    a(f"s_mov_b64 exec, {mask}\ns_mov_b32 s50, {SPIN}")
    a("; wait for flags == launch tag (bounded)")
    if first: a(f"s_sleep {first}")
    a(f"Lpoll{n}:\nbuffer_load_dword v{vt}, v{vaddr}, {S['ws']}, {soff} offen sc1\ns_waitcnt vmcnt(0)\nv_cmp_ne_u32 vcc, s{sTAG}, v{vt}\ns_sub_u32 s50, s50, 1\ns_cbranch_vccz Lpolld{n}")
    if OPT.get("psleep", 0): a(f"s_sleep {OPT.get('psleep', 0)}")
    a(f"s_cmp_lg_u32 s50, 0\ns_cbranch_scc1 Lpoll{n}")
    a(f"Lpolld{n}:\ns_mov_b64 exec, -1")
    vm.reset()

def set_flag_rg(a, vm, soff, vt):
    _uid[0] += 1; n = _uid[0]
    vm.wait_all()
    a(f"v_mov_b32 v{vt}, s{sTAG}\ns_mov_b64 exec, 1\ns_cmp_lg_u32 s{sLOC}, 0\ns_cbranch_scc1 Lfl{n}")
    a(f"buffer_store_dword v{vt}, v{vZ}, {S['ws']}, {soff} offen sc1\ns_mov_b64 exec, -1\ns_sleep {OPT.get('fr', 16)}\ns_branch Lfl{n}d\nLfl{n}:")
    vm.op(f"buffer_store_dword v{vt}, v{vZ}, {S['ws']}, {soff} offen")
    a(f"s_mov_b64 exec, -1\nLfl{n}d:")

def LF(): return OPT.get("lf", 3)
def flag_off(a, d, f, base, lf=3):
    a(f"s_lshr_b32 s50, s{f}, {lf}\ns_lshl_b32 s50, s50, 7\ns_and_b32 s{d}, s{f}, {(1 << lf) - 1}\ns_lshl_b32 s{d}, s{d}, 2\ns_add_u32 s{d}, s{d}, s50\ns_add_u32 s{d}, s{d}, {hex(base)}")

RG = lambda: [' sc1', '', ' nt', ' sc0', ' sc0 nt'][OPT.get('fast', 0)]
RY = lambda: [' sc1', '', ' nt', ' sc0', ' sc0 nt'][OPT.get('fasty', OPT.get('fast', 0))]
RF = lambda: '' if (OPT.get('fast') or OPT.get('fastf')) else ' sc1'
RO = lambda: '' if (OPT.get('fast') and OPT.get('m216')) else ' sc1'
RL = lambda: '' if OPT.get('plainld') else ' sc1'
def set_flag(a, vm, soff, vz, vt, fl=' sc1'):
    vm.wait_all()
    a(f"v_mov_b32 v{vt}, s{sTAG}\ns_mov_b64 exec, 1")
    vm.op(f"buffer_store_dword v{vt}, v{vz}, {S['ws']}, {soff} offen{fl}")
    a("s_mov_b64 exec, -1")

def rne_bf16(a, d, s):
    a(f"v_cvt_pk_bf16_f32 v{d}, v{s}, v{s}\nv_lshlrev_b32 v{d}, 16, v{d}")

def tr_addr(a, d, t, perm, rowbytes_log2, swz):
    a(f"v_bfe_u32 v{d}, v0, 2, 2\nv_bfe_u32 v{t}, v0, 5, 1")
    a(f"v_lshl_add_u32 v{d}, v{t}, {2 if perm else 3}, v{d}\nv_lshlrev_b32 v{d}, {rowbytes_log2}, v{d}")
    a(f"v_bfe_u32 v{t}, v0, 4, 1\nv_lshl_add_u32 v{d}, v{t}, 5, v{d}")
    a(f"v_and_b32 v{t}, 3, v0\nv_lshl_add_u32 v{d}, v{t}, 3, v{d}")
    if swz: a(f"v_bfe_u32 v{t}, v0, 3, 1\nv_lshl_add_u32 v{d}, v{t}, 6, v{d}")

def half_tr_addr(a, d, t):
    a(f"v_bfe_u32 v{d}, v0, 2, 1")
    a(f"v_bfe_u32 v{t}, v0, 4, 1\nv_lshl_add_u32 v{d}, v{t}, 1, v{d}")
    a(f"v_bfe_u32 v{t}, v0, 3, 1\nv_lshl_add_u32 v{d}, v{t}, 2, v{d}")
    a(f"v_bfe_u32 v{t}, v0, 5, 1\nv_lshl_add_u32 v{d}, v{t}, 4, v{d}")
    a(f"v_lshlrev_b32 v{d}, 5, v{d}\nv_and_b32 v{t}, 3, v0\nv_lshl_add_u32 v{d}, v{t}, 3, v{d}")

vLANE, vL16, vZ = 1, 2, 3
def poll_addr(a, d, lf=3):
    a(f"v_lshrrev_b32 v{d}, {lf}, v{vLANE}\nv_lshlrev_b32 v{d}, 5, v{d}\nv_and_or_b32 v{d}, v{vLANE}, {(1 << lf) - 1}, v{d}\nv_lshlrev_b32 v{d}, 2, v{d}")

def mod_issue(a, vm, sCol, B=16, T=4):
    a(f"v_bfe_u32 v{T}, v0, 1, 7\nv_and_b32 v{T+1}, 1, v0")
    a(f"v_mul_u32_u24 v{T+2}, 6144, v{T}\nv_lshl_add_u32 v{T+2}, v{T+1}, 4, v{T+2}\nv_lshlrev_b32 v{T+3}, 1, v{T}")
    a(f"s_lshl_b32 s52, s{sCol}, 1")
    for m in range(4):
        vm.op(f"buffer_load_dwordx4 {vr(B+4*m,4)}, v{T+2}, {S['wmod']}, s52 offen", "mod")
        if m < 3: a(f"s_add_u32 s52, s52, {128*6144}")
    for m in range(4): vm.op(f"buffer_load_ushort v{B+16+m}, v{T+3}, {S['c']}, 0 offen offset:{256*m}", "mod")

def mod_partial(a, vm, B=16):
    vm.wait("mod")
    C, F, T, A = B+16, B+24, B+20, B+32
    for m in range(4): a(f"v_lshlrev_b32 v{C+m}, 16, v{C+m}")
    for m in range(4): a(f"v_mul_f32 v{T+m}, {hx(-LOG2E)}, v{C+m}")
    for m in range(4): a(f"v_exp_f32 v{T+m}, v{T+m}")
    for m in range(4): a(f"v_add_f32 v{T+m}, 1.0, v{T+m}")
    for m in range(4): a(f"v_rcp_f32 v{T+m}, v{T+m}")
    for m in range(4): a(f"v_mul_f32 v{C+m}, v{C+m}, v{T+m}")
    for m in range(4): a(f"v_cvt_pk_bf16_f32 v{C+m}, v{C+m}, v{C+m}")
    for m in range(4): a(f"v_lshlrev_b32 v{C+m}, 16, v{C+m}")
    for m in range(4):
        for r in range(4):
            a(f"v_lshlrev_b32 v{F+2*r}, 16, v{B+4*m+r}\nv_and_b32 v{F+2*r+1}, 0xffff0000, v{B+4*m+r}")
        for j in range(8):
            a(f"v_mul_f32 v{A+j}, v{F+j}, v{C}" if m == 0 else f"v_fmac_f32 v{A+j}, v{F+j}, v{C+m}")
    for j in range(4): a(f"v_permlane32_swap_b32 v{A+j}, v{A+4+j}")
    for j in range(4): a(f"v_add_f32 v{A+j}, v{A+j}, v{A+4+j}")
    for j in range(2): a(f"v_permlane16_swap_b32 v{A+j}, v{A+2+j}")
    for j in range(2): a(f"v_add_f32 v{A+j}, v{A+j}, v{A+2+j}")
    for r in (8, 4, 2):
        for j in range(2): a(f"v_add_f32_dpp v{A+j}, v{A+j}, v{A+j} row_ror:{r} row_mask:0xf bank_mask:0xf")
    a("v_bfe_u32 v8, v0, 6, 2\nv_lshlrev_b32 v8, 6, v8\nv_and_b32 v9, 1, v0\nv_lshl_add_u32 v8, v9, 5, v8")
    a("v_bfe_u32 v9, v0, 4, 1\nv_lshl_add_u32 v8, v9, 3, v8\nv_bfe_u32 v9, v0, 5, 1\nv_lshl_add_u32 v8, v9, 4, v8")
    a(f"v_add_u32 v8, {L_SCR}, v8")
    a("s_mov_b32 exec_lo, 0x00030003\ns_mov_b32 exec_hi, 0x00030003")
    a(f"ds_write_b64 v8, v[{A}:{A+1}]")
    a("s_mov_b64 exec, -1")

def mod_final(a, vm, sCol):
    a("s_mov_b64 exec, 0xff")
    a(f"v_lshlrev_b32 v8, 3, v{vLANE}\nv_add_u32 v9, {L_SCR}, v8")
    for w in range(4): a(f"ds_read_b64 {vr(240+2*w,2)}, v9 offset:{64*w}")
    a(f"s_lshr_b32 s52, s{sCol}, 9\ns_cmp_eq_u32 s52, 1\ns_cselect_b32 s53, 1.0, 0\ns_cmp_eq_u32 s52, 4\ns_cselect_b32 s53, 1.0, s53")
    a(f"s_lshl_b32 s52, s{sCol}, 2")
    a("s_waitcnt lgkmcnt(0)")
    for j in range(2): a(f"v_add_f32 v{240+j}, v{240+j}, v{242+j}\nv_add_f32 v{244+j}, v{244+j}, v{246+j}")
    for j in range(2): a(f"v_add_f32 v{240+j}, v{240+j}, v{244+j}")
    a("v_cvt_pk_bf16_f32 v242, v240, v241\nv_lshlrev_b32 v240, 16, v242\nv_and_b32 v241, 0xffff0000, v242")
    a("v_add_f32 v240, s53, v240\nv_add_f32 v241, s53, v241")
    a(f"v_cvt_pk_bf16_f32 v240, v240, v241\nv_mov_b32 v241, s{sTAG}")
    vm.op(f"buffer_store_dwordx2 v[240:241], v8, {S['ws']}, s52 offen sc1")
    a("s_mov_b64 exec, -1")

def gran_poll(a, vm, loads, regs, first=0):
    _uid[0] += 1; n = _uid[0]
    if first: a(f"s_sleep {first}")
    a(f"s_mov_b32 s50, {SPIN}\nLgp{n}:")
    for t in loads: a(t)
    a("s_waitcnt vmcnt(0)")
    first = True
    for r in regs:
        for o in (1, 3):
            if first: a(f"v_xor_b32 v15, s{sTAG}, v{r+o}"); first = False
            else: a(f"v_xor_b32 v14, s{sTAG}, v{r+o}\nv_or_b32 v15, v15, v14")
    a("v_cmp_ne_u32 vcc, 0, v15\ns_sub_u32 s50, s50, 1")
    a(f"s_cbranch_vccz Lgpd{n}\ns_sleep {OPT.get('gsleep', 1)}\ns_cmp_lg_u32 s50, 0\ns_cbranch_scc1 Lgp{n}\nLgpd{n}:")
    vm.reset()

def tag_get(a):
    _uid[0] += 1; n = _uid[0]
    a(f"v_mov_b32 v8, {L_SCR+260}\ns_mov_b32 s50, {SPIN*20}\nLtg{n}:\nds_read_b32 v9, v8\ns_sub_u32 s50, s50, 1\ns_waitcnt lgkmcnt(0)\nv_readfirstlane_b32 s{sTAG}, v9")
    a(f"s_cmp_lg_u32 s{sTAG}, 0\ns_cbranch_scc1 Ltgd{n}\ns_cmp_lg_u32 s50, 0\ns_cbranch_scc1 Ltg{n}\nLtgd{n}:")

def tag_now(a, v):
    _uid[0] += 1; n = _uid[0]
    a(f"s_mov_b32 s50, {SPIN}\nLtn{n}:\nv_readfirstlane_b32 s{sTAG}, v{v}\ns_sub_u32 s50, s50, 1")
    a(f"s_cmp_lg_u32 s{sTAG}, 0\ns_cbranch_scc1 Ltnd{n}\ns_cmp_eq_u32 s50, 0\ns_cbranch_scc1 Ltnd{n}")
    a(f"buffer_load_dword v{v}, v{vZ}, {S['dbg']}, 0 offen sc1\ns_waitcnt vmcnt(0)\ns_branch Ltn{n}\nLtnd{n}:")

def read_tag(a):
    a(f"v_mov_b32 v8, {L_SCR+260}\nds_read_b32 v9, v8\ns_waitcnt lgkmcnt(0)\nv_readfirstlane_b32 s{sTAG}, v9")

def mall_touch(a):
    _uid[0] += 1; n = _uid[0]
    a(f"v_lshlrev_b32 v5, 7, v{vLANE}\ns_cmp_eq_u32 s{sW}, 6\ns_cbranch_scc1 Lt6_{n}\ns_cmp_eq_u32 s{sW}, 7\ns_cbranch_scc1 Lt7_{n}")
    a(f"s_mul_i32 s52, s2, {56*128}\ns_cmp_eq_u32 s{sW}, 5\ns_cbranch_scc1 Lt5_{n}")
    a(f"buffer_load_dword v248, v5, {S['w1']}, s52 offen\ns_branch Ltd_{n}")
    a(f"Lt5_{n}:\nbuffer_load_dword v248, v5, {S['w2']}, s52 offen\ns_branch Ltd_{n}")
    a(f"Lt6_{n}:\nv_lshrrev_b32 v6, 5, v{vLANE}\nv_mul_u32_u24 v6, {6144-4096}, v6\nv_add_u32 v5, v5, v6\ns_mul_i32 s52, s2, 12288\ns_add_u32 s52, s52, 2048")
    a(f"buffer_load_dword v248, v5, {S['wmod']}, s52 offen\ns_branch Ltd_{n}")
    a(f"Lt7_{n}:\ns_lshl_b32 s52, s2, 11\ns_mov_b64 exec, 0xffff\nbuffer_load_dword v248, v5, {S['wo']}, s52 offen\ns_mov_b64 exec, -1")
    a(f"Ltd_{n}:")

def stouch(nm, soff, line):
    return f"s_buffer_load_dwordx2 s[0:1], {S[nm]}, s{soff} offset:{128*line+60}"

def mod_join(a, vm, sCol, name, pre=None):
    a(f"v_mov_b32 v8, {L_SCR+256}\nv_mov_b32 v9, 1\ns_waitcnt lgkmcnt(0)\ns_mov_b64 exec, 1\nds_add_rtn_u32 v9, v8, v9\ns_mov_b64 exec, -1\ns_waitcnt lgkmcnt(0)")
    a(f"v_readfirstlane_b32 s52, v9\ns_cmp_lg_u32 s52, 3\ns_cbranch_scc1 {name}")
    if pre: pre()
    mod_final(a, vm, sCol)

NRING = 4
def set_nring(n):
    global NRING
    NRING = n
vSTASH, vMOD, vXR = 180, 208, 208
QF, OA, SB, RING = 16, 32, [96, 112], 128
vV, vWO, vW1, vW1H = 4, 12, 13, 14
sHH, sKQ, sK, sV = 54, 55, 56, 57
def att_setup():
    a = Asm()
    a(f"s_and_b32 s{sHH}, s{sW}, 1\ns_lshr_b32 s{sKQ}, s{sW}, 1")
    a(f"v_and_b32 v{vV}, 15, v{vLANE}\nv_lshlrev_b32 v{vV}, 4, v{vV}\nv_bfe_u32 v5, v{vLANE}, 5, 1\nv_lshl_add_u32 v{vV}, v5, 8, v{vV}")
    a(f"s_lshl_b32 s58, s{sC}, 1\ns_add_u32 s58, s58, s{sHH}")
    a(f"s_lshl_b32 s59, s58, 16")
    a(f"s_lshl_b32 s52, s{sKQ}, 14\ns_add_u32 s52, s52, s59\ns_add_u32 s{sK}, s52, {hex(WS_K)}\ns_add_u32 s{sV}, s52, {hex(WS_V)}")
    a("s_mov_b32 s60, 0x0000ffff\ns_mov_b32 s61, 0x0000ffff")
    a(f"s_lshl_b32 s52, s{sKQ}, 8\ns_lshr_b32 s53, s{sC}, 1\ns_lshl_b32 s53, s53, 11\ns_add_u32 s52, s52, s53\ns_add_u32 s62, s52, {hex(WS_FKV)}")
    a(f"s_and_b32 s65, s{sTB}, {1 if OPT.get('m216', 0) else 3}\ns_lshl_b32 s65, s65, {13 if OPT.get('m216', 0) else 12}")
    a(f"v_lshrrev_b32 v6, 2, v{vLANE}\nv_and_b32 v11, 3, v{vLANE}\nv_lshlrev_b32 v{vWO}, 10, v6\nv_lshl_add_u32 v{vWO}, v11, 4, v{vWO}")
    w1_voffs(a, vW1, vW1H, 6, 11, 15)
    a(f"v_and_b32 v5, 7, v{vLANE}\nv_lshlrev_b32 v5, 2, v5\nv_bfe_u32 v6, v{vLANE}, 3, 1\nv_lshl_add_u32 v5, v6, 7, v5\nv_bfe_u32 v6, v{vLANE}, 4, 1\nv_lshl_add_u32 v5, v6, 10, v5")
    a(f"v_and_b32 v6, 0x1b, v{vLANE}\nv_cmp_eq_u32 vcc, 16, v6\nv_mov_b32 v15, 0x3f803f80\ns_nop 0\nv_cndmask_b32 v15, 0, v15, vcc")
    for r in range(64): a(f"v_mov_b32 v{OA+r}, 0")
    early = [I.text for I in a.L]
    late = [f"v_mov_b32 v{RING+12*sl+4+r}, v15" for sl in range(NRING) for r in range(8)] + [f"v_mov_b32 v{RING+12*NRING}, 0xdddddddd"]
    return early, late

CNT = dict(b5b=3, b6b=4, b7=5, b9=6, b10=7, b11=8, b12=9, uw=10, b5c=11)
ONEWAY = lambda: OPT.get("ow", 1)
def sig(a, name, va, vb, lg=None):
    if not ONEWAY(): a("s_barrier"); return
    a("s_mov_b64 exec, 1")
    t = f"ds_add_u32 v{va}, v{vb} offset:{4*CNT[name]}"
    lg.op(t, "sig") if lg else a(t)
    a("s_mov_b64 exec, -1")
def sig_regs(a, va, vb): a(f"v_mov_b32 v{va}, {L_SCR+256}\nv_mov_b32 v{vb}, 1")
def await_(a, name, va, vt, have=False):
    if not ONEWAY(): a("s_barrier"); return
    _uid[0] += 1; n = _uid[0]
    if have: a(f"v_readfirstlane_b32 s50, v{vt}\ns_cmp_eq_u32 s50, 4\ns_cbranch_scc1 Law{n}d")
    a(f"s_mov_b32 s63, {SPIN*20}\nLaw{n}:\nds_read_b32 v{vt}, v{va} offset:{4*CNT[name]}\ns_sub_u32 s63, s63, 1\ns_waitcnt lgkmcnt(0)\nv_readfirstlane_b32 s50, v{vt}")
    a(f"s_cmp_eq_u32 s50, 4\ns_cbranch_scc1 Law{n}d\ns_sleep {OPT.get('asleep', 1)}\ns_cmp_lg_u32 s63, 0\ns_cbranch_scc1 Law{n}\nLaw{n}d:")

def q_join(a):
    _uid[0] += 1; n = _uid[0]
    a(f"v_mov_b32 v9, {L_SCR+264}\ns_mov_b32 s50, {SPIN*20}\nLqj{n}:\nds_read_b32 v10, v9\ns_sub_u32 s50, s50, 1\ns_waitcnt lgkmcnt(0)\nv_readfirstlane_b32 s52, v10")
    a(f"s_cmp_eq_u32 s52, 4\ns_cbranch_scc1 Lqjd{n}\ns_cmp_lg_u32 s50, 0\ns_cbranch_scc1 Lqj{n}\nLqjd{n}:")

def att_q(a):
    for i in range(4):
        a(f"s_add_u32 s52, s{sKQ}, {i}\ns_and_b32 s52, s52, 3\ns_lshl_b32 s53, s{sHH}, 2\ns_add_u32 s52, s52, s53\ns_lshl_b32 s52, s52, 10\ns_add_u32 s52, s52, {L_QX}")
        a(f"v_add_u32 v9, s52, v{vL16}\nds_read_b128 {vr(QF+4*i,4)}, v9")

KVF = lambda: [' sc1', '', ' sc1 nt'][OPT.get('kvf', 0)]
def att_ld(a, vm, kt):
    sl = kt % NRING
    if kt % 4 == 0: a(f"s_add_u32 s63, s{sK}, s62\ns_add_u32 s64, s{sV}, s62\ns_add_u32 s62, s62, 4096\ns_and_b32 s62, s62, 0x3fff")
    o = 1024*(kt % 4)
    vm.op(f"buffer_load_dwordx4 {vr(RING+12*sl,4)}, v{vL16}, {S['ws']}, s63 offen offset:{o}{KVF()}", ("kv", kt))
    a("s_mov_b64 exec, s[60:61]")
    vm.op(f"buffer_load_dwordx4 {vr(RING+12*sl+4,4)}, v{vV}, {S['ws']}, s64 offen offset:{o}{KVF()}", ("kv", kt))
    vm.op(f"buffer_load_dwordx4 {vr(RING+12*sl+8,4)}, v{vV}, {S['ws']}, s64 offen offset:{o+512}{KVF()}", ("kv", kt))
    a("s_mov_b64 exec, -1")

def att_first(a, vm, first):
    stamp(a, 4)
    poll(a, vm, "0xffffffff", 5, "s62", 6, first)
    stamp(a, 5)
    a("s_mov_b32 s62, s65")
    for kt in range(NRING-1): att_ld(a, vm, kt)

def attention(a, vm):
    IDX = RING + 12*NRING
    assert IDX < vSTASH
    CP = lambda d: f"s_and_b32 s{d}, s{sI}, 15" if OPT.get('mix', 1) else f"s_mov_b32 s{d}, s{sC}"
    TP = lambda d: f"s_lshl_b32 s{d}, s{sX}, 1\ns_lshr_b32 s50, s{sI}, 4\ns_add_u32 s{d}, s{d}, s50" if OPT.get('mix', 1) else f"s_mov_b32 s{d}, s{sTB}"
    def kp_addr(d):
        return [f"s_lshl_b32 s65, s{sR}, 1", f"s_add_u32 s65, s65, s{sW}", f"s_add_u32 s65, s65, {d}", "s_and_b32 s65, s65, 15", f"s_mul_i32 s65, s65, {32*3584}",
                CP(52), "s_mul_i32 s52, s52, 224", "s_add_u32 s65, s65, s52", f"s_mul_i32 s66, s{sW}, 7168", f"s_add_u32 s66, s66, {L_W1+7168*d}"]
    wo = [[f"s_add_u32 m0, s66, {L_WO+1024*j}", f"s_add_u32 s52, s65, {16384*j}", f"buffer_load_dwordx4 v{vWO}, {S['wo']}, s52 offen lds"] for j in range(4)]
    wo[0] = [f"s_add_u32 s65, s{sW}, s{sR}", "s_and_b32 s65, s65, 7", "s_lshl_b32 s65, s65, 16", CP(52), "s_lshl_b32 s52, s52, 6", "s_add_u32 s65, s65, s52", f"s_lshl_b32 s66, s{sW}, 12"] + wo[0]
    k1 = w1_kp_dma(65, 66, vW1, vW1H); k1[0] = kp_addr(0) + k1[0]
    k2 = []
    for j, p in enumerate(w1_kp_dma(65, 66, vW1, vW1H)):
        k2.append([p[1], p[2].replace("buffer_load_dwordx4 ", f"buffer_load_dwordx4 {vr(vSTASH+4*j,4)}, ").replace(" lds", "")])
    k2[0] = kp_addr(8)[:8] + k2[0]
    p0 = OPT.get("pre0", 5)
    pre = {4*p0+1: wo[:2], 4*p0+5: wo[2:], 4*p0+9: k1[:3], 4*p0+13: k1[3:], 4*p0+17: k2[:3], 4*p0+21: k2[3:]}
    ld = lambda kt: att_ld(a, vm, kt)
    for kt in range(NRING-1): vm.q += [('kv', kt)]*3
    def QK(dst, sl, q): return f"v_mfma_f32_32x32x16_bf16 {vr(dst,16)}, {vr(RING+12*sl,4)}, {vr(QF+4*q,4)}, 0"
    def SM(q, sl, half, s): return f"v_smfmac_f32_32x32x32_bf16 {vr(OA+16*q,16)}, {vr(RING+12*sl+4+4*half,4)}, {vr(s+8*half,8)}, v{IDX}"
    a("s_setprio 1")
    a(f"s_and_b32 s53, s{sW}, 3\ns_lshl_b32 s52, s2, 2\ns_add_u32 s53, s53, s52\ns_mul_i32 s53, s53, {9*128}")
    ST = [stouch("w1", 53, n) for n in range(9)] + [stouch("wmod", 53, n) for n in range(16)] + [stouch("w2", 53, n) for n in range(14)]
    a("s_waitcnt lgkmcnt(0)")
    vm.wait(("kv", 0))
    a(QK(SB[0], 0, 0))
    a("s_nop 7\ns_nop 3")
    TAIL = OPT.get("tail", 1)
    qof = lambda t: (t + 1) % 4 if (TAIL and t >= 60) else t % 4
    def red_write(i):
        return [f"s_add_u32 s52, s{sKQ}, {i}\ns_and_b32 s52, s52, 3\ns_mul_i32 s52, s52, 3\ns_add_u32 s52, s52, s63\ns_add_u32 s52, s52, {i-1}\ns_mul_i32 s52, s52, 2304\ns_add_u32 s52, s52, {L_RED}",
                f"v_add_u32 v6, s52, v{vL16}\nv_add_u32 v7, s52, v15",
                f"ds_write_b128 v6, {vr(OA+16*i,4)}", f"ds_write_b128 v6, {vr(OA+16*i+4,4)} offset:1024", f"ds_write_b32 v7, v{OA+16*i+8} offset:2048"]
    for t in range(64):
        kt, q = t // 4, t % 4
        cur, prv = SB[t & 1], SB[(t + 1) & 1]
        E = [f"v_exp_f32 v{cur+r}, v{cur+r}" for r in range(16)]
        if t == OPT.get("prio", 53):
            a(f"s_cmp_ge_u32 s{sW}, 4\ns_cbranch_scc1 Latt_prio\ns_setprio 0\nLatt_prio:")
        a(E[0]); a(E[1])
        if t > 0: a(SM(qof(t-1), ((t-1)//4) % NRING, 1, prv))
        if t == 59: a(f"s_mul_i32 s63, s{sHH}, 12\nv_lshlrev_b32 v15, 2, v{vLANE}")
        if q == 0 and kt + NRING - 1 < 16: ld(kt + NRING - 1)
        if t in pre and not OPT.get("nopre"):
            for p in pre[t]:
                for x in p[:-1]: a(x)
                vm.op(p[-1], "pre")
        if t == OPT.get("cpf", 99):
            a(f"s_cmp_lg_u32 s{sW}, 7\ns_cbranch_scc1 Latt_nocp\ns_getpc_b64 s[50:51]\nLpc2:\ns_and_b32 s52, s{sI}, 3\ns_lshl_b32 s52, s52, 13\nv_lshlrev_b32 v5, 7, v{vLANE}\nv_add_u32 v5, s52, v5")
            a("v_min_u32 v5, Lcode_end-Lpc2-4, v5\nglobal_load_dword v249, v5, s[50:51]\nLatt_nocp:")
        if t == 5:
            a(f"s_cmp_lg_u32 s{sW}, 0\ns_cbranch_scc1 Latt_noxc"); a(TP(52)); a(f"s_lshl_b32 s52, s52, 5"); a(CP(50))
            a(f"s_add_u32 s52, s52, s50\ns_lshl_b32 s52, s52, 2\ns_add_u32 s52, s52, {hex(WS_FXC)}\ns_getreg_b32 s50, hwreg(HW_REG_XCC_ID)\ns_and_b32 s50, s50, 15\ns_lshl_b32 s50, s50, 1\ns_add_u32 s50, s50, s{sTAG}")
            if OPT.get("xcfake"): a(f"s_and_b32 s51, s2, {OPT['xcfake']}\ns_add_u32 s50, s50, s51")
            a(f"v_mov_b32 v5, s50\ns_mov_b64 exec, 1\nbuffer_store_dword v5, v{vZ}, {S['ws']}, s52 offen sc1\ns_mov_b64 exec, -1\nLatt_noxc:")
        if t == 57:
            a(f"s_cmp_ge_u32 s{sW}, 4\ns_cbranch_scc1 Latt_nox")
            a(f"v_bfe_u32 v5, v{vLANE}, 5, 1\nv_and_b32 v6, 31, v{vLANE}\nv_lshlrev_b32 v6, 10, v6\nv_lshl_add_u32 v6, v5, 3, v6")
            a(TP(52)); a(f"s_lshl_b32 s52, s52, 2\ns_add_u32 s67, s52, s{sW}\ns_lshl_b32 s52, s67, 15"); a(CP(50)); a("s_lshl_b32 s50, s50, 6\ns_add_u32 s52, s52, s50")
            for qq in range(4): a(f"buffer_load_dwordx2 {vr(vXR+2*qq,2)}, v6, {S['x']}, s52 offen offset:{16*qq}")
            a(f"s_lshr_b32 s52, s67, 2\ns_lshl_b32 s52, s52, 7\ns_add_u32 s52, s52, {hex(WS_FXC)}\nv_and_b32 v5, 15, v{vLANE}\nv_lshlrev_b32 v5, 2, v5")
            a(f"buffer_load_dword v{vXR+8}, v5, {S['ws']}, s52 offen sc1")
            a("Latt_nox:")
        if t == 50:
            a(f"s_cmp_lt_u32 s{sW}, 4\ns_cbranch_scc1 Latt_nomod\ns_sub_u32 s52, s{sI}, 8\ns_cmp_ge_u32 s52, 16\ns_cbranch_scc1 Latt_nomod")
            a(f"s_lshl_b32 s66, s{sX}, 2\ns_lshr_b32 s52, s52, 2\ns_add_u32 s66, s66, s52\ns_lshl_b32 s66, s66, 6")
            a(f"s_and_b32 s52, s{sI}, 3\ns_lshl_b32 s52, s52, 4\ns_add_u32 s66, s66, s52\ns_add_u32 s66, s66, 1024")
            mod_issue(a, Track(a, "vmcnt", 63), 66, vMOD, T=244)
            a("Latt_nomod:")
        if t == OPT.get("w2t", 62) and not OPT.get("nopre"):
            if OPT.get("nw", 1):
                a(f"s_mul_i32 s52, s{sI}, 7\ns_min_u32 s50, s{sW}, 6\ns_add_u32 s52, s52, s50\ns_lshl_b32 s52, s52, 13\nv_lshlrev_b32 v5, 7, v{vLANE}")
                vm.op(f"buffer_load_dword v248, v5, {S['w2']}, s52 offen", "w2t")
            else:
                a(f"s_cmp_eq_u32 s{sW}, 7\ns_cbranch_scc1 Latt_nopf\ns_mul_i32 s52, s{sI}, 7\ns_add_u32 s52, s52, s{sW}\ns_lshl_b32 s52, s52, 13\nv_lshlrev_b32 v5, 7, v{vLANE}")
                a(f"buffer_load_dword v248, v5, {S['w2']}, s52 offen")
                a("Latt_nopf:")
        if OPT.get("st", 7) & 4 and t % 3 != 2 and t - t//3 < 39:
            j = t - t//3
            if j == 9: a(f"s_lshl_b32 s53, s2, 1\ns_bfe_u32 s52, s{sW}, 0x10001\ns_add_u32 s53, s53, s52\ns_mul_i32 s53, s53, 6144\ns_lshl_b32 s52, s{sHH}, 11\ns_add_u32 s53, s53, s52\ns_add_u32 s53, s53, 2048")
            if j == 25: a(f"s_and_b32 s53, s{sW}, 3\ns_lshl_b32 s52, s2, 2\ns_add_u32 s53, s53, s52\ns_mul_i32 s53, s53, {14*128}")
            a(ST[j])
        sh = OPT.get("vb", 1)
        for r in range(2, 4+sh): a(E[r])
        if t < 63:
            if q == 3: vm.wait(("kv", kt + 1))
            a(QK(prv, ((t+1)//4) % NRING, qof(t+1)))
        for r in range(4+sh, 10+sh): a(E[r])
        a(SM(qof(t), kt % NRING, 0, cur))
        W = red_write(t - 60) if (TAIL and t >= 61) else []
        for r in range(10+sh, 16):
            a(E[r])
            if W: a(W.pop(0))
        for x in W: a(x)
        if t % 4 == 3 and t < 60: stamp(a, t//4, 5)
    a("s_nop 1")
    a(SM(qof(63), 15 % NRING, 1, SB[1]))
    a("s_setprio 0")
    stamp(a, 6); stamp(a, 0, 8)
    if not TAIL:
        for i in range(1, 4):
            for x in red_write(i): a(x)
    a(f"s_mul_i32 s52, s{sKQ}, 3\ns_add_u32 s52, s52, s63\ns_mul_i32 s52, s52, 2304\ns_add_u32 s52, s52, {L_RED}")
    a(f"v_add_u32 v6, s52, v{vL16}\nv_add_u32 v7, s52, v15")
    a(f"s_lshl_b32 s52, s{sTB}, 2\ns_add_u32 s52, s52, s{sKQ}\ns_lshl_b32 s52, s52, 5\ns_add_u32 s52, s52, s58")
    a(f"s_lshl_b32 s63, s52, 10\ns_add_u32 s63, s63, {hex(WS_O)}")
    flag_off(a, 64, 52, WS_FO, LF())
    a(TP(sTB)); a(CP(sC))
    stamp(a, 1, 8)
    if OPT.get("nw", 1): a("s_waitcnt vmcnt(1)")
    else: vm.wait_all()
    a("s_waitcnt lgkmcnt(0)")
    stamp(a, 2, 8)
    a("s_barrier")
    stamp(a, 3, 8)
    R = 96
    for i in range(3):
        a(f"ds_read_b128 {vr(R+12*i,4)}, v6 offset:{2304*i}\nds_read_b128 {vr(R+12*i+4,4)}, v6 offset:{2304*i+1024}\nds_read_b32 v{R+12*i+8}, v7 offset:{2304*i+2048}")
    a(f"s_mov_b32 s52, {hx(2.0**-60)}\ns_mov_b32 s53, {hx(2.0**60)}\ns_movk_i32 s65, 0x207")
    for i in range(3):
        a(f"s_waitcnt lgkmcnt({6-3*i})")
        for r in range(9): a(f"v_add_f32 v{OA+r}, v{OA+r}, v{R+12*i+r}")
    a(f"v_add_f32 v8, v{OA}, v{OA+1}\nv_add_f32 v9, v{OA+2}, v{OA+3}\nv_add_f32 v10, v{OA+4}, v{OA+5}\nv_add_f32 v11, v{OA+6}, v{OA+7}")
    a("v_add_f32 v8, v8, v9\nv_add_f32 v10, v10, v11\nv_add_f32 v8, v8, v10")
    a(f"v_cmp_nge_f32 vcc, v{OA+8}, s52\nv_cmp_nle_f32 s[54:55], v{OA+8}, s53\nv_cmp_class_f32 s[56:57], v8, s65")
    a(f"v_rcp_f32 v8, v{OA+8}")
    a("s_or_b64 vcc, vcc, s[54:55]\ns_or_b64 vcc, vcc, s[56:57]")
    a("s_cbranch_vccnz Lslow")
    a("Lnorm:")
    for r in range(8): a(f"v_mul_f32 v{OA+r}, v{OA+r}, v8")
    for r in range(4): a(f"v_cvt_pk_bf16_f32 v{8+r}, v{OA+2*r}, v{OA+2*r+1}")
    vm.op(f"buffer_store_dwordx4 v[8:11], v{vL16}, {S['ws']}, s63 offen{RO()}")
    stamp(a, 4, 8)
    a("s_barrier")
    stamp(a, 5, 8)
    a(f"s_mul_i32 s52, s{sW}, 7168\ns_add_u32 s52, s52, {L_W1+8*7168}\nv_add_u32 v5, s52, v{vL16}")
    for j in range(7): a(f"ds_write_b128 v5, {vr(vSTASH+4*j,4)} offset:{1024*j}")
    def slow(b):
        tv = Track(b, "vmcnt", 63)
        b("Lslow:")
        poll_addr(b, 5)
        b(f"s_lshr_b32 s52, s58, 2\ns_lshl_b32 s52, s52, 11\ns_add_u32 s62, s52, {hex(WS_FKV)}")
        poll(b, tv, "-1", 5, "s62", 6)
        b("s_add_u32 s62, s62, 1024")
        poll(b, tv, "-1", 5, "s62", 6)
        b(f"s_waitcnt vmcnt(0)\ns_add_u32 s{sK}, s59, {hex(WS_K)}\ns_mov_b32 s51, 64\nv_mov_b32 v8, 0xff800000")
        b("Ls1:")
        b(f"buffer_load_dwordx4 {vr(RING,4)}, v{vL16}, {S['ws']}, s{sK} offen sc1\ns_add_u32 s{sK}, s{sK}, 1024\ns_waitcnt vmcnt(0)")
        b(QK(SB[0], 0, 0))
        for r in range(0, 16, 2): b(f"v_max3_f32 v8, v{SB[0]+r}, v{SB[0]+r+1}, v8")
        b("s_sub_u32 s51, s51, 1\ns_cmp_lg_u32 s51, 0\ns_cbranch_scc1 Ls1")
        b("v_mov_b32 v9, v8\nv_permlane32_swap_b32 v8, v9\nv_max_f32 v8, v8, v9")
        for r in range(16): b(f"v_sub_f32 v{SB[1]+r}, 0, v8")
        for r in range(16): b(f"v_mov_b32 v{OA+r}, 0")
        b(f"s_add_u32 s{sK}, s59, {hex(WS_K)}\ns_add_u32 s{sV}, s59, {hex(WS_V)}\ns_mov_b32 s51, 64")
        b("Ls2:")
        b(f"buffer_load_dwordx4 {vr(RING,4)}, v{vL16}, {S['ws']}, s{sK} offen sc1\ns_mov_b64 exec, s[60:61]")
        b(f"buffer_load_dwordx4 {vr(RING+4,4)}, v{vV}, {S['ws']}, s{sV} offen sc1\nbuffer_load_dwordx4 {vr(RING+8,4)}, v{vV}, {S['ws']}, s{sV} offen offset:512 sc1")
        b(f"s_mov_b64 exec, -1\ns_add_u32 s{sK}, s{sK}, 1024\ns_add_u32 s{sV}, s{sV}, 1024\ns_waitcnt vmcnt(0)")
        b(f"v_mfma_f32_32x32x16_bf16 {vr(SB[0],16)}, {vr(RING,4)}, {vr(QF,4)}, {vr(SB[1],16)}")
        for r in range(16): b(f"v_exp_f32 v{SB[0]+r}, v{SB[0]+r}")
        b(SM(0, 0, 0, SB[0])); b(SM(0, 0, 1, SB[0]))
        b("s_sub_u32 s51, s51, 1\ns_cmp_lg_u32 s51, 0\ns_cbranch_scc1 Ls2")
        b(f"s_nop 7\ns_nop 7\nv_rcp_f32 v8, v{OA+8}\ns_nop 0\ns_branch Lnorm")
    return slow

def w1_voffs(a, vF, vH, p=7, q=8, r=9):
    a(f"v_lshrrev_b32 v{p}, 2, v{vLANE}\nv_and_b32 v{q}, 3, v{vLANE}\nv_mul_u32_u24 v{vF}, 3584, v{p}\nv_lshl_add_u32 v{vF}, v{q}, 4, v{vF}")
    a(f"v_lshrrev_b32 v{p}, 1, v{vLANE}\nv_and_b32 v{q}, 0x13, v{p}\nv_bfe_u32 v{r}, v{p}, 2, 1\nv_lshl_add_u32 v{q}, v{r}, 3, v{q}\nv_bfe_u32 v{r}, v{p}, 3, 1\nv_lshl_add_u32 v{q}, v{r}, 2, v{q}")
    a(f"v_mul_u32_u24 v{vH}, 3584, v{q}\nv_and_b32 v{q}, 1, v{vLANE}\nv_lshl_add_u32 v{vH}, v{q}, 4, v{vH}")

def w1_kp_dma(sOff, sLds, vF, vH, dOff=0, dLds=0):
    L = []
    for e in range(2):
        for nt in range(3):
            L.append([f"s_add_u32 m0, s{sLds}, {dLds+3072*e+1024*nt}", f"s_add_u32 s52, s{sOff}, {dOff+16*3584*e+64*nt}",
                      f"buffer_load_dwordx4 v{vF}, {S['w1']}, s52 offen lds"])
    L.append([f"s_add_u32 m0, s{sLds}, {dLds+6144}", f"s_add_u32 s52, s{sOff}, {dOff+192}", f"buffer_load_dwordx4 v{vH}, {S['w1']}, s52 offen lds"])
    return L

def w1_reads(kp, e, dst, vF):
    base = 7168*kp + 3072*e
    return [f"ds_read_b64_tr_b16 {vr(dst+4*nt+2*st,2)}, v{vF[base >> 15]} offset:{(base & 0x7fff)+1024*nt+512*st}" for nt in range(3) for st in range(2)]
def w1_half_reads(kp, dst, vH):
    base = 7168*kp + 6144
    return [f"ds_read_b64_tr_b16 {vr(dst+2*st,2)}, v{vH[base >> 15]} offset:{(base & 0x7fff)+256*st}" for st in range(2)]

def h_pj(ks):
    return (ks // 4, ks % 4) if ks < 32 else ((ks - 32) // 3, 4 + (ks - 32) % 3)

def rot_loads(a, vm, base_s, dst, tag, div=1):
    for ks in range(32):
        if ks % 4 == 0: a(f"s_add_u32 s53, s{sR}, {ks//4}\ns_and_b32 s53, s53, 7\ns_lshl_b32 s53, s53, 12\ns_add_u32 s53, s53, s{base_s}")
        yield ks, (f"buffer_load_dwordx4 {vr(dst+4*ks,4)}, v{vL16}, {S['ws']}, s53 offen offset:{1024*(ks%4)}{RL() if tag == 'y' else ' sc1'}", (tag, ks//div))

def lds_init_b0(a):
    late_srds(a)
    a(f"v_mov_b32 v8, {L_SCR+256}\nv_mov_b32 v10, 0\nv_mov_b32 v11, 0\nds_write_b64 v8, v[10:11]\nds_write_b64 v8, v[10:11] offset:8\nds_write_b64 v8, v[10:11] offset:16\nds_write_b64 v8, v[10:11] offset:24\nds_write_b64 v8, v[10:11] offset:32\nds_write_b64 v8, v[10:11] offset:40\ns_waitcnt lgkmcnt(0)\ns_barrier")

EB = lambda bit: OPT.get('eb1', 2) & bit
def tag_to_lds_b1(a, late, nap=0):
    a(f"v_mov_b32 v8, s{sTAG}\nv_mov_b32 v9, {L_SCR+260}\nds_write_b32 v9, v8\ns_waitcnt lgkmcnt(0)")
    stamp(a, 0)
    if late: a("s_barrier")
    if nap: a(f"s_sleep {nap}")
    a("s_branch La_p1")

def p0_ln(a):
    vm = Track(a, "vmcnt", 63)
    a(f"s_and_b32 s52, s{sX}, 1\ns_lshl_b32 s52, s52, 4\ns_add_u32 s52, s52, s{sI}\ns_sub_u32 s52, s52, 8\ns_lshl_b32 s52, s52, 2\ns_add_u32 s52, s52, s{sW}")
    a(f"s_lshr_b32 s53, s{sX}, 1\ns_lshl_b32 s53, s53, 7\ns_add_u32 s56, s52, s53\ns_lshl_b32 s53, s56, 12")
    a(f"v_and_b32 v4, 3, v{vLANE}\nv_lshrrev_b32 v5, 2, v{vLANE}\nv_lshlrev_b32 v6, 10, v4\nv_lshl_add_u32 v6, v5, 4, v6")
    a("s_waitcnt lgkmcnt(0)")
    for m in range(4): vm.op(f"buffer_load_dwordx4 {vr(16+4*m,4)}, v6, {S['x']}, s53 offen offset:{256*m}")
    lds_init_b0(a)
    a("v_lshrrev_b32 v7, 1, v5\nv_lshlrev_b32 v7, 10, v7\nv_and_b32 v8, 1, v5\nv_lshl_add_u32 v7, v8, 9, v7\nv_lshl_add_u32 v7, v4, 4, v7")
    a(f"s_lshr_b32 s53, s56, 3\ns_lshl_b32 s53, s53, 15\ns_and_b32 s54, s56, 7\ns_lshl_b32 s54, s54, 6\ns_add_u32 s53, s53, s54\ns_add_u32 s53, s53, {hex(WS_XN)}")
    flag_off(a, 55, 56, WS_FXN)
    stamp(a, 0, 7)
    vm.wait_all()
    stamp(a, 1, 7)
    vm.op(f"buffer_load_dword v15, v{vZ}, {S['dbg']}, 0 offen sc1")
    F = 32
    for r in range(16): a(f"v_lshlrev_b32 v{F+2*r}, 16, v{16+r}\nv_and_b32 v{F+2*r+1}, 0xffff0000, v{16+r}")
    def red(v, t):
        for r in (4, 8): a(f"v_add_f32_dpp v{v}, v{v}, v{v} row_ror:{r} row_mask:0xf bank_mask:0xf")
        a(f"v_mov_b32 v{t}, v{v}\nv_permlane16_swap_b32 v{v}, v{t}\nv_add_f32 v{v}, v{v}, v{t}")
        a(f"v_mov_b32 v{t}, v{v}\nv_permlane32_swap_b32 v{v}, v{t}\nv_add_f32 v{v}, v{v}, v{t}")
    a(f"v_pk_add_f32 v[64:65], {vr(F,2)}, {vr(F+2,2)}\nv_pk_add_f32 v[66:67], {vr(F+4,2)}, {vr(F+6,2)}")
    for r in range(8, 32, 4): a(f"v_pk_add_f32 v[64:65], v[64:65], {vr(F+r,2)}\nv_pk_add_f32 v[66:67], v[66:67], {vr(F+r+2,2)}")
    a("v_pk_add_f32 v[64:65], v[64:65], v[66:67]\nv_add_f32 v64, v64, v65")
    red(64, 65)
    a(f"v_mul_f32 v64, {hx(-1/512)}, v64")
    for r in range(0, 32, 2): a(f"v_pk_add_f32 {vr(F+r,2)}, {vr(F+r,2)}, v[64:65] op_sel_hi:[1,0]")
    a(f"v_pk_mul_f32 v[66:67], {vr(F,2)}, {vr(F,2)}\nv_pk_mul_f32 v[68:69], {vr(F+2,2)}, {vr(F+2,2)}")
    for r in range(4, 32, 4): a(f"v_pk_fma_f32 v[66:67], {vr(F+r,2)}, {vr(F+r,2)}, v[66:67]\nv_pk_fma_f32 v[68:69], {vr(F+r+2,2)}, {vr(F+r+2,2)}, v[68:69]")
    a("v_pk_add_f32 v[66:67], v[66:67], v[68:69]\nv_add_f32 v66, v66, v67")
    red(66, 67)
    a(f"v_mov_b32 v67, {hx(1e-5)}\nv_fmac_f32 v67, {hx(1/512)}, v66\nv_rsq_f32 v66, v67")
    for r in range(0, 32, 2): a(f"v_pk_mul_f32 {vr(F+r,2)}, {vr(F+r,2)}, v[66:67] op_sel_hi:[1,0]")
    for m in range(4):
        for r in range(4): a(f"v_cvt_pk_bf16_f32 v{16+4*m+r}, v{F+8*m+2*r}, v{F+8*m+2*r+1}")
        vm.op(f"buffer_store_dwordx4 {vr(16+4*m,4)}, v7, {S['ws']}, s53 offen sc1")
        if m < 3: a("s_add_u32 s53, s53, 8192")
    stamp(a, 2, 7)
    if EB(1): a("s_barrier")
    vm.wait_all()
    stamp(a, 3, 7)
    tag_now(a, 15)
    set_flag(a, vm, "s55", vZ, 8)
    stamp(a, 4, 7)
    tag_to_lds_b1(a, not EB(1), OPT.get('nl', 0))

def p0_mod(a):
    vm = Track(a, "vmcnt", 63)
    sCol = 51
    a(f"s_lshl_b32 s{sCol}, s{sX}, 1\ns_lshr_b32 s52, s{sI}, 2\ns_add_u32 s{sCol}, s{sCol}, s52\ns_lshl_b32 s{sCol}, s{sCol}, 6")
    a(f"s_and_b32 s52, s{sI}, 3\ns_lshl_b32 s52, s52, 4\ns_add_u32 s{sCol}, s{sCol}, s52")
    a("s_waitcnt lgkmcnt(0)")
    mod_issue(a, vm, sCol)
    lds_init_b0(a)
    vm.wait("mod")
    stamp(a, 1, 7)
    a(f"buffer_load_dword v15, v{vZ}, {S['dbg']}, 0 offen sc1")
    if EB(4): a("s_barrier")
    mod_partial(a, vm)
    a("s_waitcnt vmcnt(0)")
    tag_now(a, 15)
    mod_join(a, vm, sCol, "La_joined")
    a("La_joined:")
    stamp(a, 4, 7)
    tag_to_lds_b1(a, not EB(4), OPT.get('nm', 0))

def p0_warm(a):
    a(f"s_sub_u32 s52, s{sI}, 24\ns_lshl_b32 s52, s52, 1\ns_add_u32 s52, s52, s{sW}\ns_lshl_b32 s52, s52, 5")
    a(f"v_lshrrev_b32 v4, 1, v{vLANE}\nv_add_u32 v4, s52, v4\nv_mul_u32_u24 v4, 6144, v4\nv_and_b32 v5, 1, v{vLANE}\nv_lshl_add_u32 v4, v5, 7, v4\ns_lshl_b32 s52, s{sX}, 8")
    a(f"s_waitcnt lgkmcnt(0)\ns_cmp_ge_u32 s{sW}, 2\ns_cbranch_scc1 La_nowm")
    a(f"buffer_load_dword v6, v4, {S['wmod']}, s52 offen")
    a("La_nowm:")
    lds_init_b0(a)
    a("s_waitcnt vmcnt(0)")
    stamp(a, 1, 7)
    a(f"buffer_load_dword v15, v{vZ}, {S['dbg']}, 0 offen sc1")
    if EB(2): a("s_barrier")
    a("s_waitcnt vmcnt(0)")
    tag_now(a, 15)
    tag_to_lds_b1(a, not EB(2), OPT.get('nwm', 0))

def wkv_loop(a, name):
    a(f"{name}:")
    a(f"s_and_b32 s55, s55, 31\ns_lshl_b32 s53, s55, 11\ns_add_u32 s52, s55, s57\ns_and_b32 s52, s52, 31\ns_mul_i32 s52, s52, {16*3072}\ns_mov_b32 m0, s53\ns_add_u32 s52, s52, s56")
    a(f"buffer_load_dwordx4 v12, {S['wqkv']}, s52 offen lds\ns_add_u32 m0, s53, 1024\ns_add_u32 s52, s52, {8*3072}\nbuffer_load_dwordx4 v12, {S['wqkv']}, s52 offen lds")
    a(f"s_add_u32 s55, s55, 4\ns_sub_u32 s51, s51, 1\ns_cmp_lg_u32 s51, 0\ns_cbranch_scc1 {name}")

def p0_helper(a):
    vm = Track(a, "vmcnt", 63)
    sH = 67
    a(f"v_mov_b32 v32, 0\nv_mov_b32 v33, 0\nv_mov_b32 v34, 0\nv_mov_b32 v35, 0\ns_lshl_b32 s52, s{sH}, 12\ns_add_u32 s52, s52, {L_DG}\nv_add_u32 v9, s52, v{vL16}")
    for j in range(4): a(f"ds_write_b128 v9, v[32:35] offset:{1024*j}")
    a(f"s_lshl_b32 s52, s2, 2\ns_add_u32 s52, s52, s{sH}\ns_and_b32 s53, s52, 1\ns_lshr_b32 s52, s52, 1\ns_mul_i32 s52, s52, 3072")
    a("s_lshl_b32 s57, s53, 9\ns_add_u32 s57, s57, s52\ns_lshl_b32 s53, s53, 10\ns_add_u32 s52, s52, s53\ns_add_u32 s52, s52, 1024")
    a("s_waitcnt lgkmcnt(0)")
    a(f"s_lshl_b32 s58, s2, 3\ns_add_u32 s58, s58, s{sW}\ns_cmp_lg_u32 s58, {64*8+4}\ns_cbranch_scc1 Le_notag")
    a(f"s_or_b32 s54, s54, 1\nv_mov_b32 v7, s54\ns_mov_b64 exec, 1\nbuffer_store_dword v7, v{vZ}, {S['dbg']}, 0 offen sc1\ns_mov_b64 exec, -1")
    a("Le_notag:")
    s0 = OPT.get("st0", 9)
    for n in range(min(s0, 4) if s0 != 9 else 1): a(stouch("wqkv", 52, n))
    late_srds(a)
    a("s_barrier")
    if s0 == 9: a("s_waitcnt lgkmcnt(0)")
    for n in range(min(s0, 4) if s0 != 9 else 1, 8): a(stouch("wqkv", 52, n))
    for n in range(4): a(stouch("wqkv", 57, n))
    a(f"v_lshrrev_b32 v4, 3, v{vLANE}\nv_mul_u32_u24 v4, 3072, v4\nv_bfe_u32 v5, v{vLANE}, 4, 1\nv_lshlrev_b32 v5, 2, v5\nv_xor_b32 v5, v5, v{vLANE}\nv_and_b32 v5, 7, v5\nv_lshl_add_u32 v12, v5, 4, v4")
    a(f"s_and_b32 s56, s{sC}, 1\ns_add_u32 s56, s56, 1\ns_lshl_b32 s56, s56, 10\ns_lshr_b32 s52, s{sC}, 1\ns_lshl_b32 s52, s52, 7\ns_add_u32 s56, s56, s52")
    a(f"s_and_b32 s55, s{sTB}, {1 if OPT.get('m216', 0) else 3}\ns_lshl_b32 s55, s55, {4 if OPT.get('m216', 0) else 3}\ns_add_u32 s55, s55, s{sH}\ns_lshl_b32 s57, s{sR}, 2\ns_mov_b32 s51, 8")
    WH_ = OPT.get("whalf", 0)
    if WH_: a(f"s_mov_b32 s55, s{sH}\ns_mov_b32 s51, {WH_}\ns_mov_b32 s59, s56\ns_mov_b32 s60, s57")
    stamp(a, 0, 7)
    a("s_barrier")
    stamp(a, 1, 7)
    wkv_loop(a, "Lh_wl")
    tag_get(a)
    stamp(a, 0); stamp(a, 2, 7)
    a(f"s_cmp_ge_u32 s{sH}, 2\ns_cbranch_scc1 Lh_b2")
    a(f"s_lshl_b32 s52, s{sH}, 11")
    a(f"v_lshrrev_b32 v5, 3, v{vLANE}\ns_lshl_b32 s53, s{sR}, 1\nv_subrev_u32 v5, s53, v5\nv_and_b32 v5, 15, v5\nv_xor_b32 v6, 8, v5")
    gran_poll(a, vm, [f"buffer_load_dwordx4 v[16:19], v{vL16}, {S['ws']}, s52 offen sc1", f"buffer_load_dwordx4 v[20:23], v{vL16}, {S['ws']}, s52 offen offset:1024 sc1"], [16, 20], OPT.get("ng", 0))
    stamp(a, 1)
    a(f"s_cmp_lg_u32 s{sH}, 0\ns_cbranch_scc1 Lh_g1")
    for j, r in enumerate((16, 18, 20, 22)): a(f"v_lshlrev_b32 v{24+2*j}, 16, v{r}\nv_and_b32 v{25+2*j}, 0xffff0000, v{r}")
    a(f"v_and_b32 v7, 1, v{vLANE}\nv_lshlrev_b32 v7, 6, v7\nv_bfe_u32 v9, v{vLANE}, 1, 2\nv_lshl_add_u32 v7, v9, 4, v7\nv_add_u32 v7, {L_SA}, v7")
    a("v_lshl_add_u32 v5, v5, 7, v7\nv_lshl_add_u32 v6, v6, 7, v7")
    a("ds_write_b128 v5, v[24:27]\nds_write_b128 v6, v[28:31]")
    a("s_branch Lh_b2")
    a("Lh_g1:")
    a(f"v_and_b32 v7, 7, v{vLANE}\nv_lshlrev_b32 v7, 6, v7\nv_bfe_u32 v9, v{vLANE}, 2, 1\nv_lshl_add_u32 v7, v9, 9, v7\nv_and_b32 v9, 3, v{vLANE}\nv_lshl_add_u32 v7, v9, 2, v7\nv_add_u32 v7, {L_DG}, v7")
    a("v_lshl_add_u32 v5, v5, 10, v7\nv_lshl_add_u32 v6, v6, 10, v7")
    for j in range(2):
        for e in range(4):
            a(f"ds_write_b16{'_d16_hi' if e & 1 else ''} v{5+j}, v{16+4*j+2*(e>>1)} offset:{16*e + 2*(e & 1)}")
    a("s_branch Lh_b2")

def late_srds(a):
    for nm in ("wo", "w1", "w2", "out"): a(f"s_mov_b32 s{SRD[nm]+2}, {hex(SZ[nm])}\ns_mov_b32 s{SRD[nm]+3}, 0x20000")

def active(a):
    vm = Track(a, "vmcnt", 63); lg = Track(a, "lgkmcnt", 15)
    sT32 = 67
    a("La_p1:")
    if OPT.get("ap", 0) & 2: a("s_setprio 1")
    ACC = [16, 32, 48]; WF = [64, 72]; DH = [88, 104]; DG = [120, 124]; AF = 128
    a(f"s_lshl_b32 s{sT32}, s{sTB}, 2\ns_add_u32 s{sT32}, s{sT32}, s{sW}")
    a(f"v_lshlrev_b32 v5, 2, v{vLANE}\ns_lshl_b32 s52, s{sT32}, 7\ns_add_u32 s52, s52, {hex(WS_FXN)}")
    tr_addr(a, 10, 12, True, 7, True)
    a("v_xor_b32 v12, 64, v10")
    a(f"v_bfe_u32 v11, v0, 5, 1\nv_lshlrev_b32 v11, 6, v11\nv_add_u32 v11, {L_SA}, v11\nv_add_u32 v13, {L_DG}, v{vL16}")
    a(f"v_and_b32 v14, 2, v0\nv_cmp_eq_u32 vcc, 0, v14\nv_mov_b32 v14, 0xeeeeeeee\nv_mov_b32 v15, 0x44444444\nv_cndmask_b32 v14, v14, v15, vcc")
    for r in range(48): a(f"v_mov_b32 v{16+r}, 0")
    poll(a, vm, "0xff", 5, "s52", 6, OPT.get("fn", 0))
    stamp(a, 1)
    a(f"s_lshl_b32 s52, s{sT32}, 15\ns_add_u32 s52, s52, {hex(WS_XN)}")
    a(f"s_lshr_b32 s54, s{sC}, 1\ns_lshl_b32 s54, s54, 18\ns_lshl_b32 s55, s{sT32}, 10\ns_add_u32 s54, s54, s55")
    a(f"s_bitcmp1_b32 s{sC}, 0\ns_cbranch_scc1 La_vwg")
    def rdS(b):
        L = [(f"ds_read_b128 {vr(DH[b&1]+4*q,4)}, v11 offset:{128*b+16*q}", ("s", b)) for q in range(4)]
        return L + [(f"ds_read_b128 {vr(DG[b&1],4)}, v13 offset:{1024*b}", ("s", b))]
    def rdW(ks):
        return [(f"ds_read_b64_tr_b16 {vr(WF[ks&1]+4*g+2*st,2)}, v{(10, 12)[g]} offset:{2048*ks+1024*st}", ("w", ks)) for g in range(2) for st in range(2)]
    def SMF(b): return f"v_smfmac_f32_32x32x32_bf16 {vr(DH[b&1],16)}, {vr(DG[b&1],4)}, {vr(AF+8*b,8)}, v14"
    def CVT(b): return [f"v_cvt_pk_bf16_f32 v{AF+8*b+r}, v{DH[b&1]+2*r}, v{DH[b&1]+2*r+1}" for r in range(8)]
    for isV in (0, 1):
        if isV: a("La_vwg:")
        vm.reset(); lg.reset()
        XL = rot_loads(a, vm, 52, AF, "xn", 2)
        def xn_issue(n):
            for _ in range(n):
                r = next(XL, None)
                if r: vm.op(*r[1])
        def MM(ks):
            f = AF + 4*ks; w = WF[ks & 1]
            if isV: return [f"v_mfma_f32_32x32x16_bf16 {vr(ACC[1+g],16)}, {vr(f,4)}, {vr(w+4*g,4)}, {vr(ACC[1+g],16)}" for g in range(2)]
            return [f"v_mfma_f32_32x32x16_bf16 {vr(ACC[1+g],16)}, {vr(w+4*g,4)}, {vr(f,4)}, {vr(ACC[1+g],16)}" for g in range(2)]
        xn_issue(OPT.get("xn0", 8))
        a("s_barrier")
        xn_issue(10 - OPT.get("xn0", 8))
        for x in rdS(0) + rdS(1): lg.op(*x)
        lg.wait(("s", 0)); vm.wait(("xn", 0))
        a(SMF(0))
        for x in rdW(0): lg.op(*x)
        xn_issue(2)
        a("s_nop 5")
        for x in CVT(0): a(x)
        stamp(a, 2)
        for b in range(16):
            nx = b + 1 < 16
            if nx:
                lg.wait(("s", b+1)); vm.wait(("xn", b+1))
                a(SMF(b+1))
            for x in rdW(2*b+1): lg.op(*x)
            lg.wait(("w", 2*b))
            M = MM(2*b); Rs = rdS(b+2) if b + 2 < 16 else []
            a(M[0]); [lg.op(*x) for x in Rs]
            a(M[1]); xn_issue(3)
            if b == OPT.get("b2b", 6): a("s_barrier")
            lg.wait(("w", 2*b+1))
            M = MM(2*b+1); C = CVT(b+1) if nx else []; Rw = rdW(2*b+2) if nx else []
            a(M[0]); [lg.op(*x) for x in Rw]; [a(x) for x in C[:3]]
            a(M[1]); [a(x) for x in C[3:]]
            if b < 15: stamp(a, b, 6)
        if not isV:
            a(f"s_add_u32 s54, s54, {hex(WS_K)}")
            a(f"v_and_b32 v5, 0x33, v{vLANE}\nv_bfe_u32 v6, v{vLANE}, 2, 1\nv_lshl_add_u32 v5, v6, 3, v5\nv_bfe_u32 v6, v{vLANE}, 3, 1\nv_lshl_add_u32 v5, v6, 2, v5\nv_lshlrev_b32 v5, 4, v5")
            for h in range(4):
                for r in range(4): a(f"v_cvt_pk_bf16_f32 v{112+4*h+r}, v{ACC[1]+8*h+2*r}, v{ACC[1]+8*h+2*r+1}")
                vm.op(f"buffer_store_dwordx4 {vr(112+4*h,4)}, v5, {S['ws']}, s54 offen sc1")
                if h < 3: a("s_add_u32 s54, s54, 65536")
            a("s_branch La_kvd")
        else:
            a(f"s_add_u32 s54, s54, {hex(WS_V)}")
            a(f"v_and_b32 v6, 15, v{vLANE}\nv_lshlrev_b32 v6, 4, v6\nv_bfe_u32 v7, v{vLANE}, 5, 1\nv_lshl_add_u32 v6, v7, 8, v6\nv_bfe_u32 v7, v{vLANE}, 4, 1\nv_lshl_add_u32 v6, v7, 16, v6")
            for h in range(4):
                for r in range(4): a(f"v_cvt_pk_bf16_f32 v{112+4*h+r}, v{ACC[1]+8*h+2*r}, v{ACC[1]+8*h+2*r+1}")
                vm.op(f"buffer_store_dwordx4 {vr(112+4*h,4)}, v6, {S['ws']}, s54 offen offset:{512*(h&1)} sc1")
                if h == 1: a("s_add_u32 s54, s54, 131072")
    a("La_kvd:")
    stamp(a, 3)
    a(f"s_lshl_b32 s57, s{sW}, 10\ns_add_u32 s57, s57, {L_QX}\nv_add_u32 v7, s57, v{vL16}")
    a(f"s_lshl_b32 s58, s{sC}, 6\ns_add_u32 s58, s58, s{sT32}")
    flag_off(a, 51, 58, WS_FKV)
    tr_addr(a, 10, 12, True, 6, False)
    a(f"v_add_u32 v10, {L_WQ}, v10")
    a("s_barrier")
    WQ = [96, 100, 104, 108]
    early, late = att_setup(); fill = early + late; assert len(early) >= 12*5
    def rdQ(ks): return [(f"ds_read_b64_tr_b16 {vr(WQ[ks&3]+2*st,2)}, v10 offset:{1024*ks+512*st}", ("q", ks)) for st in range(2)]
    lg.reset()
    for x in rdQ(0) + rdQ(1) + rdQ(2): lg.op(*x)
    for ks in range(32):
        if ks + 3 < 32: [lg.op(*x) for x in rdQ(ks+3)]
        lg.wait(("q", ks))
        a(f"v_mfma_f32_32x32x16_bf16 {vr(ACC[0],16)}, {vr(WQ[ks&3],4)}, {vr(AF+4*ks,4)}, {vr(ACC[0],16)}")
        if ks == OPT.get("kvflag", 8): set_flag(a, vm, "s51", vZ, 8)
        else:
            for x in fill[:6]: a(x)
            fill = fill[6:]
    for x in fill: a(x)
    a(f"s_mov_b32 s53, {hx(0.25*LOG2E)}")
    for r in range(16): a(f"v_mul_f32 v{ACC[0]+r}, s53, v{ACC[0]+r}")
    for r in range(8): a(f"v_cvt_pk_bf16_f32 v{96+r}, v{ACC[0]+2*r}, v{ACC[0]+2*r+1}")
    a("ds_write_b128 v7, v[96:99]\nds_write_b128 v7, v[100:103] offset:4096")
    if OPT.get("qj", 1):
        a(f"v_mov_b32 v9, {L_SCR+264}\nv_mov_b32 v10, 1\ns_waitcnt lgkmcnt(0)\ns_mov_b64 exec, 1\nds_add_u32 v9, v10\ns_mov_b64 exec, -1")
        att_first(a, vm, OPT.get("fk", 0))
        q_join(a); att_q(a)
    else:
        a("s_waitcnt lgkmcnt(0)\ns_barrier")
        att_q(a)
        att_first(a, vm, OPT.get("fk", 0))

def active2(a):
    vm = Track(a, "vmcnt", 63); lg = Track(a, "lgkmcnt", 15)
    sT32, AF = 67, 128
    if OPT.get("ap", 1) & 1: a("s_setprio 1")
    ACC, WF, XR, GA, G2, XF = 16, [96, 100, 104, 108], vXR, 48, 64, 80
    a(f"s_getreg_b32 s50, hwreg(HW_REG_XCC_ID)\ns_and_b32 s50, s50, 15\ns_lshl_b32 s50, s50, 1\ns_add_u32 s50, s50, s{sTAG}\nv_cmp_ne_u32 vcc, s50, v{vXR+8}\nv_bfe_u32 v9, v{vLANE}, 5, 1\ns_cmp_eq_u64 vcc, 0\ns_cselect_b32 s{sLOC}, 1, 0")
    for q in range(4):
        for h in range(2): a(f"v_lshlrev_b32 v{XF+4*q+2*h}, 16, v{XR+2*q+h}\nv_and_b32 v{XF+4*q+2*h+1}, 0xffff0000, v{XR+2*q+h}")
    a(f"s_lshl_b32 s57, s{sT32}, 15\ns_lshl_b32 s58, s{sC}, 11\ns_add_u32 s57, s57, s58\ns_add_u32 s58, s57, {hex(WS_Y)}\ns_add_u32 s57, s57, {hex(WS_X1)}")
    a(f"s_lshl_b32 s54, s{sC}, 14\ns_lshl_b32 s55, s{sT32}, 8\ns_add_u32 s54, s54, s55\ns_add_u32 s54, s54, {hex(WS_STATS)}")
    a(f"s_lshl_b32 s55, s{sT32}, 4\ns_add_u32 s55, s55, s{sC}")
    flag_off(a, 56, 55, WS_FX1, LF())
    a(f"s_lshl_b32 s55, s{sT32}, {11-LF()}\ns_add_u32 s55, s55, {hex(WS_FX1)}")
    tr_addr(a, 10, 11, True, 6, False)
    for r in range(16): a(f"v_mov_b32 v{ACC+r}, 0")
    poll_addr(a, 5, LF())
    a(f"s_lshl_b32 s52, s{sT32}, {12-LF()}\ns_add_u32 s52, s52, {hex(WS_FO)}")
    stamp(a, 6, 8)
    set_flag(a, vm, "s64", vZ, 8, RO())
    stamp(a, 7); stamp(a, 7, 8)
    if OPT.get("b5e", 0):
        a(f"s_sleep {OPT['b5e']}")
        sig_regs(a, 126, 127); sig(a, "b5b", 126, 127)
    poll(a, vm, "0xffffffff", 5, "s52", 11, OPT.get("fo", 25) - OPT.get("b5e", 0))
    stamp(a, 8); stamp(a, 0, 2)
    a(f"s_lshl_b32 s52, s{sT32}, 15\ns_add_u32 s52, s52, {hex(WS_O)}")
    OL = rot_loads(a, vm, 52, AF, "o")
    for _ in range(OPT.get("b5b", 12)): vm.op(*next(OL)[1])
    if not OPT.get("b5e", 0): sig_regs(a, 126, 127); sig(a, "b5b", 126, 127)
    for _ in range(12 - OPT.get("b5b", 12)): vm.op(*next(OL)[1])
    a(f"v_lshlrev_b32 v6, 2, v{vLANE}\nv_lshlrev_b32 v5, 4, v9\nv_add_u32 v5, {L_GA}, v5")
    def rdWo(ks): return [(f"ds_read_b64_tr_b16 {vr(WF[ks&3]+2*st,2)}, v10 offset:{L_WO+1024*ks+512*st}", ("w", ks)) for st in range(2)]
    lg.reset()
    for x in rdWo(0) + rdWo(1) + rdWo(2): lg.op(*x)
    for ks in range(32):
        if ks + 3 < 32:
            for x in rdWo(ks+3): lg.op(*x)
        if ks == 28:
            lg.wait(("w", 31))
            a("s_barrier")
            for q in range(4): a(f"ds_read_b128 {vr(GA+4*q,4)}, v5 offset:{32*q}")
            for q in range(4): a(f"ds_read_b128 {vr(G2+4*q,4)}, v5 offset:{128+32*q}")
        lg.wait(("w", ks)); vm.wait(("o", ks))
        a(f"v_mfma_f32_32x32x16_bf16 {vr(ACC,16)}, {vr(WF[ks&3],4)}, {vr(AF+4*ks,4)}, {vr(ACC,16)}")
        if ks + 12 < 32: vm.op(*next(OL)[1])
        if ks == 19 and OPT.get("early", 0): sig(a, "b5c", 126, 127, lg)
        if ks % 4 == 0 or ks == 31: stamp(a, 1 + (ks+1)//4, 2)
    stamp(a, 10, 2)
    a("s_waitcnt lgkmcnt(4)")
    for r in range(16): a(f"v_fmac_f32 v{XF+r}, v{ACC+r}, v{GA+r}")
    a("s_waitcnt lgkmcnt(0)")
    for r in range(16): a(f"v_mul_f32 v{ACC+r}, v{XF+r}, v{G2+r}")
    for r in range(8): a(f"v_cvt_pk_bf16_f32 v{32+r}, v{ACC+2*r}, v{ACC+2*r+1}")
    vm.op(f"buffer_store_dwordx4 v[32:35], v{vL16}, {S['ws']}, s58 offen{RY()}"); vm.op(f"buffer_store_dwordx4 v[36:39], v{vL16}, {S['ws']}, s58 offen offset:1024{RY()}")
    a(f"v_pk_add_f32 v[48:49], {vr(XF,2)}, {vr(XF+2,2)}\nv_pk_mul_f32 v[50:51], {vr(XF,2)}, {vr(XF,2)}\nv_pk_fma_f32 v[50:51], {vr(XF+2,2)}, {vr(XF+2,2)}, v[50:51]")
    for r in range(4, 16, 2): a(f"v_pk_add_f32 v[48:49], v[48:49], {vr(XF+r,2)}\nv_pk_fma_f32 v[50:51], {vr(XF+r,2)}, {vr(XF+r,2)}, v[50:51]")
    a("v_add_f32 v48, v48, v49\nv_add_f32 v49, v50, v51")
    for r in range(8): a(f"v_cvt_pk_bf16_f32 v{40+r}, v{XF+2*r}, v{XF+2*r+1}")
    a("v_permlane32_swap_b32 v48, v49\nv_add_f32 v48, v48, v49")
    vm.op(f"buffer_store_dword v48, v6, {S['ws']}, s54 offen{RY()}")
    vm.op(f"buffer_store_dwordx4 v[40:43], v{vL16}, {S['ws']}, s57 offen sc1"); vm.op(f"buffer_store_dwordx4 v[44:47], v{vL16}, {S['ws']}, s57 offen offset:1024 sc1")
    stamp(a, 11, 2)
    ACC, WF, WH, ST = 16, [80, 92, 104], [116, 120], 240
    vF, vH = [10, 11, 12, 13], [4, 7, 14, 15]
    tr_addr(a, 10, 11, True, 6, False)
    a(f"v_add_u32 v10, {L_W1}, v10\nv_add_u32 v11, 0x8000, v10\nv_add_u32 v12, 0x10000, v10\nv_add_u32 v13, 0x18000, v10")
    half_tr_addr(a, 4, 7)
    a(f"v_add_u32 v4, {L_W1}, v4\nv_add_u32 v7, 0x8000, v4\nv_add_u32 v14, 0x10000, v4\nv_add_u32 v15, 0x18000, v4")
    a(f"v_and_b32 v8, 16, v0\nv_cmp_eq_u32 vcc, 0, v8\nv_mov_b32 v8, 0xeeeeeeee\nv_mov_b32 v5, 0x44444444\nv_cndmask_b32 v8, v8, v5, vcc")
    for r in range(64): a(f"v_mov_b32 v{ACC+r}, 0")
    poll_addr(a, 5, LF())
    set_flag_rg(a, vm, "s56", 9)
    stamp(a, 9); stamp(a, 12, 2)
    poll(a, vm, "0xffff", 5, "s55", 125, OPT.get("fx", 4))
    stamp(a, 10); stamp(a, 0, 3)
    a(f"s_lshl_b32 s52, s{sT32}, 15\ns_add_u32 s52, s52, {hex(WS_Y)}")
    a(f"s_lshl_b32 s54, s{sT32}, 8\ns_add_u32 s54, s54, {hex(WS_STATS)}")
    YL = rot_loads(a, vm, 52, AF, "y")
    for _ in range(4): vm.op(*next(YL)[1])
    for q in range(16):
        vm.op(f"buffer_load_dword v{ST+q}, v6, {S['ws']}, s54 offen sc1", "st"); a("s_add_u32 s54, s54, 16384")
    for _ in range(8): vm.op(*next(YL)[1])
    lg.reset()
    def rdW1(ks): return [(x, ("w", ks)) for x in w1_reads(ks//2, ks & 1, WF[ks % 3], vF)]
    for x in rdW1(0) + rdW1(1): lg.op(*x)
    TT, UB = 128, 184
    side = {}
    side[(6, 0)] = ["v_mov_b32 v125, v124", f"v_bfe_u32 v5, v{vLANE}, 5, 1", "v_lshlrev_b32 v9, 7, v5", "v_permlane32_swap_b32 v124, v125"]
    side[(6, 1)] = [f"v_add_u32 v9, {L_UW}, v9", f"v_mul_f32 v124, {hx(1/512)}, v124", f"v_mul_f32 v125, {hx(1/512)}, v125", "v_fma_f32 v125, -v124, v124, v125"]
    side[(6, 2)] = ["v_max_f32 v125, 0, v125", f"v_add_f32 v125, {hx(1e-5)}, v125", "v_rsq_f32 v125, v125"]
    side[(7, 0)] = [f"v_mul_f32 v5, {hx(-LOG2E)}, v125", "v_mul_f32 v125, v5, v124", "v_sub_f32 v125, 0, v125", "v_mov_b32 v124, v5"]
    side[(7, 1)] = [f"s_lshl_b32 s55, s{sT32}, 4", f"s_add_u32 s55, s55, s{sC}", f"s_lshr_b32 s50, s55, {LF()}", "s_lshl_b32 s50, s50, 7", f"s_and_b32 s56, s55, {(1 << LF()) - 1}"]
    side[(7, 2)] = ["s_lshl_b32 s56, s56, 2", "s_add_u32 s56, s56, s50", f"s_add_u32 s56, s56, {hex(WS_FH)}"]
    side[(12, 0)] = [f"s_mul_i32 s52, s{sT32}, {112*1024}", f"s_mul_i32 s53, s{sC}, 7168", "s_add_u32 s52, s52, s53", f"s_add_u32 s52, s52, {hex(WS_H)}"]
    if ONEWAY(): side[(13, 2)] = ["uwrd"]; side[(15, 1)] = ["uwck"]
    for m in range(7):
        ks = 16 + 2*m
        rw = lambda j: f"ds_read_b128 {vr(TT+4*j,4)}, v9 offset:{256*(j//4)+64+16*(j%4)}"
        ru = lambda j: f"ds_read_b128 {vr(UB+4*(j&1),4)}, v9 offset:{256*(j//4)+16*(j%4)}"
        fm = lambda j: [f"v_fmac_f32 v{TT+4*j+r}, v125, v{UB+4*(j&1)+r}" for r in range(4)]
        side.setdefault((ks+2, 1), []).extend([f"wait{ks+1}"] + fm(2*m))
        side.setdefault((ks+2, 2), []).extend(fm(2*m+1))
        side.setdefault((ks, 2), []).append(rw(2*m))
        side.setdefault((ks+1, 2), []).extend([ru(2*m), rw(2*m+1), ru(2*m+1)])
    for kp in range(16):
        for e in range(2):
            ks = 2*kp + e
            R = rdW1(ks+2) if ks + 2 < 32 else []
            if e == 0: R = [(x, ("h", kp)) for x in w1_half_reads(kp, WH[kp & 1], vH)] + R
            lg.wait(("w", ks)); vm.wait(("y", ks))
            for nt in range(3):
                a(f"v_mfma_f32_32x32x16_bf16 {vr(ACC+16*nt,16)}, {vr(WF[ks%3]+4*nt,4)}, {vr(AF+4*ks,4)}, {vr(ACC+16*nt,16)}")
                [lg.op(*x) for x in R[3*nt:3*nt+3]]
                if nt >= 1:
                    j = 12 + 2*ks + nt - 1
                    if j < 32: vm.op(*next(YL)[1])
                if ks in (4, 5):
                    for q in (((0, 8), (1, 9), (2, 10)), ((3, 11), (4, 12), (5, 13)), ((6, 14), (7, 15)))[nt] if ks == 4 else (((0, 4), (1, 5), (2, 6), (3, 7)), ((0, 2), (1, 3)), ())[nt]:
                        a(f"v_add_f32 v{ST+q[0]}, v{ST+q[0]}, v{ST+q[1]}")
                    if ks == 5 and nt == 2: a(f"v_add_f32 v124, v{ST}, v{ST+1}")
                for x in side.get((ks, nt), []):
                    if x.startswith("ds_"): lg.op(x, ("u", ks))
                    elif x.startswith("wait"): lg.wait(("u", int(x[4:])))
                    elif x == "uwrd": lg.op(f"ds_read_b32 v5, v126 offset:{4*CNT['uw']}", "cnt")
                    elif x == "uwck": lg.wait("cnt"); await_(a, "uw", 126, 5, True)
                    else: a(x)
            if e == 1:
                lg.wait(("h", kp))
                a(f"v_smfmac_f32_32x32x32_bf16 {vr(ACC+48,16)}, {vr(WH[kp&1],4)}, {vr(AF+8*kp,8)}, v8")
                if kp % 2 == 0 or kp == 15: stamp(a, 1 + (kp+1)//2, 3)
                if kp == OPT.get("b6b", 4): sig(a, "b6b", 126, 127, lg)
    sig(a, "b7", 126, 127)
    stamp(a, 11)
    E = 80
    for r in range(8): a(f"v_add_f32 v{ACC+48+r}, v{ACC+48+r}, v{ACC+56+r}")
    for nt in range(4):
        t = TT + 16*nt; acc = ACC + 16*nt; n = 16 if nt < 3 else 8
        for r in range(0, n, 2): a(f"v_pk_fma_f32 {vr(acc+r,2)}, {vr(acc+r,2)}, v[124:125], {vr(t+r,2)} op_sel:[0,0,0] op_sel_hi:[1,0,1]")
        for r in range(n): a(f"v_exp_f32 v{E+r}, v{acc+r}")
        for r in range(0, n, 2): a(f"v_pk_add_f32 {vr(E+r,2)}, {vr(E+r,2)}, 1.0 op_sel_hi:[1,0]")
        for r in range(n): a(f"v_rcp_f32 v{E+r}, v{E+r}")
        for r in range(0, n, 2): a(f"v_pk_mul_f32 {vr(acc+r,2)}, {vr(acc+r,2)}, {vr(E+r,2)}")
        o = 208 + 8*nt
        for r in range(n//2): a(f"v_cvt_pk_bf16_f32 v{o+r}, v{acc+2*r}, v{acc+2*r+1}")
        if nt == 2: a("s_add_u32 s52, s52, 4096")
        vm.op(f"buffer_store_dwordx4 {vr(o,4)}, v{vL16}, {S['ws']}, s52 offen offset:{2048*(nt&1)}{RG()}")
        if nt < 3: vm.op(f"buffer_store_dwordx4 {vr(o+4,4)}, v{vL16}, {S['ws']}, s52 offen offset:{2048*(nt&1)+1024}{RG()}")
        stamp(a, 10 + nt, 3)
        if nt == 1: vm.q = [("ha", 0)]*len(vm.q)
        if nt == OPT.get("fa", 2) and OPT.get("h2", 0):
            vm.wait(("ha", 0))
            a(f"v_mov_b32 v9, s{sTAG}\ns_mov_b64 exec, 1")
            vm.op(f"buffer_store_dword v9, v{vZ}, {S['ws']}, s56 offen sc1")
            a(f"s_mov_b64 exec, -1\ns_add_u32 s56, s56, {FH_B}")
    stamp(a, 14, 3)
    ACC, WF, GB, XR, NR = [16, 32], [48, 56, 88], 64, 80, 32
    sTT, sKH, sT5, sF5 = 54, 55, 57, 58
    a(f"s_and_b32 s{sTT}, s{sW}, 1\ns_lshr_b32 s{sKH}, s{sW}, 1")
    a(f"s_lshr_b32 s52, s{sC}, 3\ns_lshl_b32 s52, s52, 1\ns_lshl_b32 s{sT5}, s{sTB}, 2\ns_add_u32 s{sT5}, s{sT5}, s52\ns_add_u32 s{sT5}, s{sT5}, s{sTT}")
    a(f"s_and_b32 s{sF5}, s{sC}, 7\ns_lshl_b32 s{sF5}, s{sF5}, 1\ns_add_u32 s{sF5}, s{sF5}, s{sKH}")
    tr_addr(a, 10, 11, True, 7, True)
    a(f"s_lshl_b32 s52, s{sKH}, 6\nv_xor_b32 v10, s52, v10\ns_lshl_b32 s52, s{sKH}, 13\nv_add_u32 v10, s52, v10\nv_xor_b32 v11, 64, v10")
    for r in range(32): a(f"v_mov_b32 v{16+r}, 0")
    poll_addr(a, 5, LF())
    a(f"s_lshl_b32 s52, s{sT5}, {11-LF()}\ns_lshl_b32 s53, s{sKH}, {10-LF()}\ns_add_u32 s52, s52, s53\ns_add_u32 s52, s52, {hex(WS_FH)}")
    a(f"s_lshl_b32 s61, s{sT5}, 15\ns_lshl_b32 s59, s{sF5}, 11\ns_add_u32 s61, s61, s59\ns_add_u32 s61, s61, {hex(WS_X1)}")
    H2 = OPT.get("h2", 0)
    a(f"s_add_u32 s62, s52, {FH_B}")
    if H2:
        a(f"s_mov_b64 exec, 0xff")
        vm.op(f"buffer_load_dword v6, v5, {S['ws']}, s52 offen sc1", "fa")
        a("s_mov_b64 exec, -1")
        set_flag_rg(a, vm, "s56", 9)
        stamp(a, 12)
        a(f"s_mov_b64 exec, 0xff\nv_cmp_ne_u32 vcc, s{sTAG}, v6\ns_mov_b64 exec, -1\ns_cbranch_vccz La_haok")
        poll(a, vm, "0xff", 5, "s52", 6, 2)
        a("La_haok:")
        vm.q = [None]
    else:
        set_flag_rg(a, vm, "s56", 9)
        stamp(a, 12)
        poll(a, vm, "0xff", 5, "s52", 6, OPT.get("fh", 4))
    stamp(a, 13); stamp(a, 0, 4)
    a(f"s_mul_i32 s52, s{sT5}, {112*1024}\ns_mul_i32 s53, s{sKH}, {56*1024}\ns_add_u32 s52, s52, s53\ns_add_u32 s52, s52, {hex(WS_H)}")
    def ldH(ks):
        p, j = h_pj(ks)
        if j in (0, 4): a(f"s_add_u32 s53, s{sR}, {p}\ns_and_b32 s53, s53, 7\ns_mul_i32 s53, s53, 7168\ns_add_u32 s53, s53, s52" + ("\ns_add_u32 s53, s53, 4096" if j else ""))
        vm.op(f"buffer_load_dwordx4 {vr(AF+4*(ks%NR),4)}, v{vL16}, {S['ws']}, s53 offen offset:{1024*(j%4)}{RL()}", ("h", ks))
    PF = OPT.get('pf5', 12)
    for ks in range(PF):
        ldH(ks)
        if ks == 7: a("s_barrier")
    slot = lambda s: s if s < 9 else s - 9
    def rdW2(ks):
        s, k = ks // 4, ks % 4
        return [(f"ds_read_b64_tr_b16 {vr(WF[ks%3]+4*n+2*st,2)}, v{12+n} offset:{2048*k+1024*st}", ("w", ks)) for n in range(2) for st in range(2)]
    def setslot(s): a(f"v_add_u32 v12, {16384*slot(s)}, v10\nv_add_u32 v13, {16384*slot(s)}, v11")
    lg.reset(); setslot(0)
    for x in rdW2(0) + rdW2(1): lg.op(*x)
    for ks in range(56):
        n = ks + 2
        lg.wait(("w", ks))
        if ks in (11, 19): sig(a, "b9" if ks == 11 else "b10", 126, 127, lg)
        if ONEWAY() and n + 2 in (36, 48): lg.op(f"ds_read_b32 v125, v126 offset:{4*CNT['b11' if n + 2 == 36 else 'b12']}", "cnt")
        if n < 56 and n % 4 == 0:
            if n // 4 in (9, 12):
                lg.wait("cnt"); await_(a, "b11" if n == 36 else "b12", 126, 125, True)
            setslot(n // 4)
        vm.wait(("h", ks))
        a(f"v_mfma_f32_32x32x16_bf16 {vr(ACC[0],16)}, {vr(WF[ks%3],4)}, {vr(AF+4*(ks%NR),4)}, {vr(ACC[0],16)}")
        if n < 56: [lg.op(*x) for x in rdW2(n)]
        a(f"v_mfma_f32_32x32x16_bf16 {vr(ACC[1],16)}, {vr(WF[ks%3]+4,4)}, {vr(AF+4*(ks%NR),4)}, {vr(ACC[1],16)}")
        if H2 and ks == OPT.get("fb", 10):
            a("s_mov_b64 exec, 0xff"); vm.op(f"buffer_load_dword v6, v5, {S['ws']}, s62 offen sc1", "fb"); a("s_mov_b64 exec, -1")
        if H2 and ks + PF == 32:
            vm.wait("fb")
            a(f"s_mov_b64 exec, 0xff\nv_cmp_ne_u32 vcc, s{sTAG}, v6\ns_mov_b64 exec, -1\ns_cbranch_vccz La_hbok")
            q0 = list(vm.q)
            poll(a, vm, "0xff", 5, "s62", 6, 0)
            vm.q = q0
            a("La_hbok:")
        if ks + PF < 56: ldH(ks + PF)
        if ks == 44:
            for q in range(2): vm.op(f"buffer_load_dwordx4 {vr(XR+4*q,4)}, v{vL16}, {S['ws']}, s61 offen offset:{1024*q} sc1", "x1")
        if ks % 4 == 3: stamp(a, 1 + ks//4, 4)
    stamp(a, 14)
    vm.wait("x1")
    a(f"s_xor_b32 s52, s{sW}, 2\ns_lshl_b32 s52, s52, 12\ns_add_u32 s52, s52, {16384*5}\nv_add_u32 v5, s52, v{vL16}")
    a(f"s_lshl_b32 s52, s{sW}, 12\ns_add_u32 s52, s52, {16384*5}\nv_add_u32 v6, s52, v{vL16}")
    a(f"v_bfe_u32 v9, v{vLANE}, 5, 1\nv_lshlrev_b32 v7, 4, v9\ns_lshl_b32 s52, s{sKH}, 7\ns_add_u32 s52, s52, {L_GB}\nv_add_u32 v7, s52, v7")
    for q in range(4): a(f"ds_read_b128 {vr(GB+4*q,4)}, v7 offset:{32*q}")
    XF = 96
    for r in range(8): a(f"v_lshlrev_b32 v{XF+2*r}, 16, v{XR+r}\nv_and_b32 v{XF+2*r+1}, 0xffff0000, v{XR+r}")
    for q in range(4): a(f"ds_write_b128 v5, {vr(ACC[1]+4*q,4)} offset:{1024*q}")
    a("s_waitcnt lgkmcnt(0)\ns_barrier")
    for q in range(4): a(f"ds_read_b128 {vr(ACC[1]+4*q,4)}, v6 offset:{1024*q}")
    a(f"v_and_b32 v7, 31, v{vLANE}\nv_lshlrev_b32 v8, 10, v7\nv_lshl_add_u32 v8, v9, 4, v8")
    a(f"s_lshl_b32 s52, s{sT5}, 15\ns_lshl_b32 s53, s{sF5}, 6\ns_add_u32 s52, s52, s53")
    for q in range(4):
        a(f"s_waitcnt lgkmcnt({3-q})")
        for r in range(4*q, 4*q+4): a(f"v_add_f32 v{ACC[0]+r}, v{ACC[0]+r}, v{ACC[1]+r}")
        for r in range(4*q, 4*q+4): a(f"v_fmac_f32 v{XF+r}, v{ACC[0]+r}, v{GB+r}")
    for r in range(8): a(f"v_cvt_pk_bf16_f32 v{64+r}, v{XF+2*r}, v{XF+2*r+1}")
    ofl = ['', ' sc1', ' nt', ' sc0 sc1', ' sc1 nt'][OPT.get('osc', 0)]
    if OPT.get("otr", 0):
        a(f"s_mul_i32 s53, s{sW}, 2560\ns_add_u32 s53, s53, {16384*6}\nv_mul_u32_u24 v5, 80, v7\nv_lshl_add_u32 v5, v9, 4, v5\nv_add_u32 v5, s53, v5")
        a(f"v_lshrrev_b32 v6, 2, v{vLANE}\nv_and_b32 v7, 3, v{vLANE}\nv_lshlrev_b32 v8, 10, v6\nv_lshl_add_u32 v8, v7, 4, v8\nv_mul_u32_u24 v6, 80, v6\nv_lshl_add_u32 v6, v7, 4, v6\nv_add_u32 v6, s53, v6")
        for p in range(2):
            a(f"v_permlane32_swap_b32 v{64+4*p}, v{64+4*p+2}\nv_permlane32_swap_b32 v{64+4*p+1}, v{64+4*p+3}")
            a(f"ds_write_b128 v5, {vr(64+4*p,4)} offset:{32*p}")
        a("s_add_u32 s53, s52, 16384\ns_waitcnt lgkmcnt(0)")
        for p in range(2): a(f"ds_read_b128 {vr(72+4*p,4)}, v6 offset:{1280*p}")
        for p in range(2):
            a(f"s_waitcnt lgkmcnt({1-p})")
            vm.op(f"buffer_store_dwordx4 {vr(72+4*p,4)}, v8, {S['out']}, s{52+p} offen{ofl}")
    else:
        for p in range(2):
            a(f"v_permlane32_swap_b32 v{64+4*p}, v{64+4*p+2}\nv_permlane32_swap_b32 v{64+4*p+1}, v{64+4*p+3}")
            vm.op(f"buffer_store_dwordx4 {vr(64+4*p,4)}, v8, {S['out']}, s52 offen offset:{32*p}{ofl}")

def wq_loop(a):
    a(f"v_lshrrev_b32 v4, 2, v{vLANE}\nv_mul_u32_u24 v4, 3072, v4\nv_and_b32 v5, 3, v{vLANE}\nv_lshl_add_u32 v4, v5, 4, v4")
    a(f"s_lshl_b32 s55, s{sR}, 2\ns_add_u32 s55, s55, s67\ns_lshl_b32 s53, s67, 10\ns_add_u32 s53, s53, {L_WQ}\ns_lshl_b32 s56, s{sC}, 6\ns_mov_b32 s51, 8\nLh_ql:")
    a(f"s_and_b32 s52, s55, 31\ns_mul_i32 s52, s52, {16*3072}\ns_mov_b32 m0, s53\ns_add_u32 s52, s52, s56")
    a(f"buffer_load_dwordx4 v4, {S['wqkv']}, s52 offen lds")
    a(f"s_add_u32 s55, s55, 4\ns_add_u32 s53, s53, 4096\ns_sub_u32 s51, s51, 1\ns_cmp_lg_u32 s51, 0\ns_cbranch_scc1 Lh_ql")

def helper(a):
    vm = Track(a, "vmcnt", 63)
    sH, sCol = 67, 66
    a("Lh_b2:")
    a("s_waitcnt vmcnt(0) lgkmcnt(0)\ns_barrier")
    if OPT.get("whalf", 0):
        a(f"s_add_u32 s55, s{sH}, {4*OPT['whalf']}\ns_mov_b32 s51, {8-OPT['whalf']}\ns_mov_b32 s56, s59\ns_mov_b32 s57, s60")
        wkv_loop(a, "Lh_wl2")
    if OPT.get("st", 7) & 2:
        a(f"s_lshl_b32 s57, s2, 2\ns_add_u32 s57, s57, s{sH}\ns_lshl_b32 s58, s57, 9\ns_mul_i32 s57, s57, {5*128}\ns_add_u32 s57, s57, {9216*128}")
        for n in range(3): a(stouch("w1", 57, n))
    if OPT.get("whalf", 0): a("s_waitcnt vmcnt(0)")
    a("s_barrier")
    wq_loop(a)
    if OPT.get("st", 7) & 2:
        for n in range(3, 5): a(stouch("w1", 57, n))
        a(stouch("wo", 58, 0))
    a("s_waitcnt vmcnt(0)")
    if OPT.get("touch", 0) == 1: mall_touch(a)
    stamp(a, 2)
    a("s_barrier")
    if OPT.get("st", 7) & 2:
        for n in range(1, 4): a(stouch("wo", 58, n))
    early, late = att_setup()
    for x in early + late: a(x)
    if OPT.get("hearly", 1):
        att_first(a, vm, OPT.get("fkh", 24))
        if OPT.get("qj", 1): q_join(a)
        else: a("s_barrier")
        att_q(a)
    else:
        a("s_barrier")
        att_q(a)
        att_first(a, vm, OPT.get("fk", 0))

def helper2(a):
    vm = Track(a, "vmcnt", 63); lg = Track(a, "lgkmcnt", 15)
    sH = 67
    MF = OPT.get("mf", 0)
    if MF:
        a(f"s_sub_u32 s52, s{sI}, 8\ns_cmp_ge_u32 s52, 16\ns_cbranch_scc1 Lh_nomod1")
        mod_partial(a, vm, vMOD)
        if MF == 2: mod_join(a, vm, 66, "Lh_nomod1")
        a("Lh_nomod1:")
    stamp(a, 6, 8)
    set_flag(a, vm, "s64", vZ, 8, RO())
    stamp(a, 7); stamp(a, 7, 8)
    vF, vH = 13, 14
    a(f"s_sub_u32 s52, s{sI}, 8\ns_cmp_ge_u32 s52, 16\ns_cbranch_scc1 Lh_nomod2")
    if not MF: mod_partial(a, vm, vMOD)
    if MF < 2: mod_join(a, vm, 66, "Lh_nomod2")
    a("Lh_nomod2:")
    def w2_touch():
        a(f"s_mul_i32 s52, s{sI}, 7\ns_lshl_b32 s53, s{sH}, 1\ns_add_u32 s52, s52, s53\ns_lshl_b32 s52, s52, 13\nv_lshlrev_b32 v5, 7, v{vLANE}")
        a(f"buffer_load_dword v248, v5, {S['w2']}, s52 offen\ns_add_u32 s52, s52, 8192\nbuffer_load_dword v248, v5, {S['w2']}, s52 offen")
    if OPT.get("w2s") == 1: w2_touch()
    sig_regs(a, 12, 13)
    await_(a, "b5b", 12, 14)
    a(f"v_lshlrev_b32 v4, 5, v{vLANE}\ns_lshl_b32 s52, s{sH}, 11\ns_add_u32 s52, s52, 4096")
    gran_poll(a, vm, [f"buffer_load_dwordx4 v[16:19], v4, {S['ws']}, s52 offen sc1", f"buffer_load_dwordx4 v[20:23], v4, {S['ws']}, s52 offen offset:16 sc1"], [16, 20], OPT.get("ng2", 0))
    for j, r in enumerate((16, 18, 20, 22)): a(f"v_lshlrev_b32 v{24+2*j}, 16, v{r}\nv_and_b32 v{25+2*j}, 0xffff0000, v{r}")
    a(f"s_cmp_eq_u32 s{sH}, 1\ns_cbranch_scc1 Lh_tabg")
    a(f"s_cmp_eq_u32 s{sH}, 3\ns_cselect_b32 s53, {hx(-1/LOG2E)}, 1.0")
    a(f"s_lshl_b32 s54, s{sC}, 2\ns_and_b32 s55, s{sC}, 7\ns_lshl_b32 s55, s55, 3\ns_lshl_b32 s56, s{sH}, 6\ns_cmp_eq_u32 s{sH}, 3\ns_cselect_b32 s54, s55, s54\ns_cselect_b32 s55, 8, 4")
    a(f"s_cselect_b32 s56, 256, s56\ns_add_u32 s56, s56, {L_TAB}")
    for r in range(8): a(f"v_mul_f32 v{24+r}, s53, v{24+r}")
    a(f"v_subrev_u32 v5, s54, v{vLANE}\nv_cmp_gt_u32 vcc, s55, v5\nv_lshlrev_b32 v5, 5, v5\nv_add_u32 v5, s56, v5")
    a("s_and_saveexec_b64 s[56:57], vcc\nds_write_b128 v5, v[24:27]\nds_write_b128 v5, v[28:31] offset:16\ns_mov_b64 exec, -1")
    a(f"s_cmp_lg_u32 s{sH}, 2\ns_cbranch_scc1 Lh_tabd")
    a("Lh_tabg:")
    a(f"v_lshrrev_b32 v5, 1, v{vLANE}\ns_lshl_b32 s53, s{sR}, 2\nv_subrev_u32 v5, s53, v5\nv_and_b32 v5, 31, v5\nv_lshlrev_b32 v5, 6, v5\nv_and_b32 v6, 1, v{vLANE}\nv_lshl_add_u32 v5, v6, 3, v5")
    a(f"s_and_b32 s53, s{sH}, 1\ns_lshl_b32 s53, s53, 4\ns_add_u32 s53, s53, {L_G}\nv_add_u32 v5, s53, v5")
    a("v_mov_b32 v17, v18\nv_mov_b32 v21, v22\nds_write_b64 v5, v[16:17]\nds_write_b64 v5, v[20:21] offset:32")
    a("Lh_tabd:")
    vW2 = 10
    a(f"v_lshrrev_b32 v{vW2}, 3, v{vLANE}\nv_lshlrev_b32 v{vW2}, 10, v{vW2}\nv_bfe_u32 v5, v{vLANE}, 4, 1\nv_lshlrev_b32 v5, 2, v5\nv_xor_b32 v5, v5, v{vLANE}\nv_and_b32 v5, 7, v5\nv_lshl_add_u32 v{vW2}, v5, 4, v{vW2}")
    a(f"s_lshl_b32 s58, s{sR}, 7\ns_lshl_b32 s59, s{sH}, 11")
    def w2_row(s):
        if s < 8:
            a(f"s_add_u32 s61, s{sR}, {s}\ns_and_b32 s61, s61, 7\ns_mul_i32 s61, s61, 7\ns_add_u32 s61, s61, s{sH}")
        else:
            a(f"s_add_u32 s60, s{sH}, {4*(s-8)}\ns_mul_i32 s61, s60, 43\ns_lshr_b32 s61, s61, 7\ns_mul_i32 s62, s61, 3\ns_sub_u32 s60, s60, s62")
            a(f"s_add_u32 s61, s61, s{sR}\ns_and_b32 s61, s61, 7\ns_mul_i32 s61, s61, 7\ns_add_u32 s61, s61, s60\ns_add_u32 s61, s61, 4")
        a("s_lshl_b32 s61, s61, 14\ns_add_u32 s61, s61, s58")
    NREG = OPT.get("nreg", 10); S0 = 14 - NREG; RB = 48
    def w2_reg(s):
        w2_row(s)
        for j in range(4):
            a(f"s_add_u32 s52, s61, {56*(j>>1)*16384+8192*(j&1)}")
            vm.op(f"buffer_load_dwordx4 {vr(RB+16*(s-S0)+4*j,4)}, v{vW2}, {S['w2']}, s52 offen", ("w2r", s))
    EARLY = list(range(14 - OPT.get("early", 0), 14))
    if EARLY:
        a("s_waitcnt lgkmcnt(0)"); await_(a, "b5c", 12, 14)
        for s_ in EARLY: w2_reg(s_)
    if OPT.get("w2s") == 2:
        a("s_waitcnt lgkmcnt(0)"); w2_touch()
    else: a("s_waitcnt lgkmcnt(0)")
    stamp(a, 8)
    a("s_barrier")
    def w2_stage(s, thr=None):
        sl = s if s < 9 else s - 9
        w2_row(s)
        for kh in range(2):
            for hf in range(2):
                a(f"s_add_u32 m0, s59, {16384*sl+8192*kh+1024*hf}\ns_add_u32 s52, s61, {56*kh*16384+8192*hf}")
                vm.op(f"buffer_load_dwordx4 v{vW2}, {S['w2']}, s52 offen lds", ("w2", s))
        if thr: vm.wait(("w2", s-1))
    W01 = OPT.get('w01', 2)
    if W01 == 0: w2_stage(0); w2_stage(1)
    ACC, GF, WF = 16, 32, 48
    a(f"v_bfe_u32 v9, v{vLANE}, 5, 1\nv_lshlrev_b32 v6, 5, v9\nv_and_b32 v5, 1, v{vLANE}\nv_lshl_add_u32 v6, v5, 4, v6\nv_add_u32 v6, {L_G}, v6")
    for r in range(16): a(f"v_mov_b32 v{ACC+r}, 0")
    GZ = OPT.get("gz", 1)
    for r in range(8): a(f"v_mov_b32 v{GF+r}, 0")
    a("s_mov_b32 s56, 3\ns_mov_b32 s57, 3")
    def rdG(e): a(("s_mov_b64 exec, s[56:57]\n" if GZ else "") + f"ds_read_b128 {vr(GF+4*e,4)}, v6 offset:{64*e}" + ("\ns_mov_b64 exec, -1" if GZ else ""))
    a(f"s_cmp_eq_u32 s{sH}, 3\ns_cbranch_scc1 Lh_uwh")
    tr_addr(a, 4, 5, True, 6, False)
    a(f"s_lshl_b32 s52, s{sH}, 10\ns_add_u32 s52, s52, {L_W1}\nv_add_u32 v4, s52, v4\ns_mov_b32 s51, 16")
    a("Lh_uwl:")
    for e in range(2):
        rdG(e)
        for st in range(2): a(f"ds_read_b64_tr_b16 {vr(WF+4*e+2*st,2)}, v4 offset:{3072*e+512*st}")
    a("v_add_u32 v4, 7168, v4\nv_add_u32 v6, 128, v6\ns_sub_u32 s51, s51, 1")
    for e in range(2):
        a(f"s_waitcnt lgkmcnt({3-3*e})")
        a(f"v_mfma_f32_32x32x16_bf16 {vr(ACC,16)}, {vr(WF+4*e,4)}, {vr(GF+4*e,4)}, {vr(ACC,16)}")
    a("s_cmp_lg_u32 s51, 0\ns_cbranch_scc1 Lh_uwl")
    a("s_branch Lh_uwd")
    a("Lh_uwh:")
    half_tr_addr(a, 4, 5)
    a(f"v_add_u32 v4, {L_W1+6144}, v4\ns_mov_b32 s51, 16")
    a(f"v_and_b32 v8, 16, v0\nv_cmp_eq_u32 vcc, 0, v8\nv_mov_b32 v8, 0xeeeeeeee\nv_mov_b32 v5, 0x44444444\nv_cndmask_b32 v8, v8, v5, vcc")
    a("Lh_uwhl:")
    for e in range(2): rdG(e)
    for st in range(2): a(f"ds_read_b64_tr_b16 {vr(WF+2*st,2)}, v4 offset:{256*st}")
    a("v_add_u32 v4, 7168, v4\nv_add_u32 v6, 128, v6\ns_sub_u32 s51, s51, 1\ns_waitcnt lgkmcnt(0)")
    a(f"v_smfmac_f32_32x32x32_bf16 {vr(ACC,16)}, {vr(WF,4)}, {vr(GF,8)}, v8")
    a("s_cmp_lg_u32 s51, 0\ns_cbranch_scc1 Lh_uwhl")
    a("s_nop 7\ns_nop 3")
    for r in range(8): a(f"v_add_f32 v{ACC+r}, v{ACC+r}, v{ACC+8+r}")
    a("Lh_uwd:")
    a(f"v_and_b32 v5, 1, v{vLANE}\nv_cmp_eq_u32 vcc, 1, v5\nv_mov_b32 v7, {hx(-LOG2E)}\nv_cndmask_b32 v7, 1.0, v7, vcc")
    a(f"v_lshlrev_b32 v6, 7, v9\nv_lshl_add_u32 v6, v5, 6, v6\ns_lshl_b32 s52, s{sH}, 8\ns_add_u32 s52, s52, {L_UW}\nv_add_u32 v6, s52, v6")
    a("s_nop 3")
    for r in range(16): a(f"v_mul_f32 v{ACC+r}, v{ACC+r}, v7")
    a("s_mov_b32 exec_lo, 3\ns_mov_b32 exec_hi, 3")
    for q in range(4): a(f"ds_write_b128 v6, {vr(ACC+4*q,4)} offset:{16*q}")
    a("s_mov_b64 exec, -1\ns_waitcnt lgkmcnt(0)")
    stamp(a, 9)
    if W01 == 2: w2_stage(0); w2_stage(1)
    if ONEWAY(): sig(a, "uw", 12, 13); await_(a, "uw", 12, 14)
    await_(a, "b6b", 12, 14)
    if W01 == 1: w2_stage(0); w2_stage(1)
    if OPT.get("e23", 0) and S0 == 4: w2_stage(2); w2_stage(3)
    if not OPT.get("now2"):
        for s in range(S0, 14):
            if s not in EARLY: w2_reg(s)
    await_(a, "b7", 12, 14)
    a(f"v_add_u32 v4, s59, v{vL16}\nv_add_u32 v5, 0x10000, v4\nv_add_u32 v6, 0x20000, v4")
    def w2_put(s):
        sl = s if s < 9 else s - 9
        for j in range(4): a(f"ds_write_b128 v{4 + sl//4}, {vr(RB+16*(s-S0)+4*j,4)} offset:{16384*(sl%4)+8192*(j>>1)+1024*(j&1)}")
    if not (OPT.get('e23', 0) and S0 == 4):
        for s in range(2, S0): w2_stage(s, True)
    for s in range(S0, 9):
        vm.wait(("w2r", s)); w2_put(s)
        if (s - S0) % 2 == 1: a("s_waitcnt lgkmcnt(4)")
    vm.wait_all()
    a("s_waitcnt lgkmcnt(0)")
    stamp(a, 12)
    a("s_barrier")
    if OPT.get("fast") and OPT.get("wb", 1):
        a(f"s_lshl_b32 s52, s{sC}, 2\ns_add_u32 s52, s52, s{sH}\ns_cmp_lg_u32 s52, 0\ns_cbranch_scc1 Lh_nowb\nbuffer_wbl2 sc1\nLh_nowb:")
    await_(a, "b9", 12, 14)
    for s in (9, 10, 11): w2_put(s)
    if ONEWAY(): a("s_waitcnt lgkmcnt(0)"); sig(a, "b11", 12, 13)
    await_(a, "b10", 12, 14)
    for s in (12, 13): w2_put(s)
    if not ONEWAY(): a("s_waitcnt lgkmcnt(8)\ns_barrier")
    a("s_waitcnt lgkmcnt(0)"); sig(a, "b12", 12, 13)
    a("s_barrier")

def diag_out(a, slot):
    if not DIAG: return
    stamp(a, 15)
    a("s_memrealtime s[52:53]\ns_waitcnt vmcnt(0) lgkmcnt(0)")
    a("s_mov_b64 exec, 1")
    for i in range(16):
        a(f"s_sub_u32 s{70+2*i}, s{70+2*i}, s3\nv_mov_b32 v{16+i}, s{70+2*i}")
    a("v_mov_b32 v32, s69\nv_mov_b32 v33, s52" if False else "v_mov_b32 v32, v250\nv_mov_b32 v33, s52")
    a(f"s_lshl_b32 s54, s2, 10\ns_lshl_b32 s55, s{sW}, 7\ns_add_u32 s54, s54, s55\ns_add_u32 s54, s54, {hex(WS_DIAG)}")
    for q in range(4): a(f"buffer_store_dwordx4 {vr(16+4*q,4)}, v{vZ}, {S['ws']}, s54 offen offset:{16*q}")
    a(f"buffer_store_dwordx2 v[32:33], v{vZ}, {S['ws']}, s54 offen offset:64")
    if OPT.get("dbgstart") and slot == 0:
        a(f"s_cmp_ge_u32 s2, 8\ns_cbranch_scc1 Ldiag{slot}\ns_cmp_lg_u32 s{sW}, 0\ns_cbranch_scc1 Ldiag{slot}\ns_lshl_b32 s54, s2, 2\ns_add_u32 s54, s54, 4")
        a(f"v_subrev_u32 v32, s{sTAG}, v250\nv_add_u32 v32, 1000, v32\nbuffer_store_dword v32, v{vZ}, {S['dbg']}, s54 offen")
        a(f"s_getreg_b32 s55, hwreg(HW_REG_XCC_ID)\ns_and_b32 s55, s55, 15\nv_mov_b32 v32, s55\ns_cmp_ge_u32 s2, 7\ns_cbranch_scc1 Ldiag{slot}\nbuffer_store_dword v32, v{vZ}, {S['dbg']}, s54 offen offset:32")
    if OPT.get("dbgout") and slot == 0:
        a(f"s_lshl_b32 s54, s2, 3\ns_add_u32 s54, s54, s{sW}\ns_cmp_lg_u32 s54, {OPT['dbgout']*8}\ns_cbranch_scc1 Ldiag{slot}")
        for i in range(1, 16): a(f"buffer_store_dword v{16+i}, v{vZ}, {S['dbg']}, 0 offen offset:{4*i}")
    a(f"Ldiag{slot}:")

def build():
    a = Asm()
    a("s_cmp_ge_u32 s2, 256\ns_cbranch_scc1 Lend")
    for nm in ("x", "dbg", "wmod", "c", "wqkv", "ws", "wo", "w1", "w2", "out"):
        a(f"s_load_dwordx2 {sr(SRD[nm],2)}, s[0:1], {KA[nm]}")
    if DIAG: a("s_memtime s[70:71]\ns_memrealtime s[72:73]")
    a(f"v_lshrrev_b32 v4, 6, v0\nv_and_b32 v{vLANE}, 63, v0\nv_mov_b32 v{vZ}, 0\nv_readfirstlane_b32 s{sW}, v4\nv_lshlrev_b32 v{vL16}, 4, v{vLANE}")
    a(f"s_getpc_b64 s[56:57]\nLpc:\ns_sub_u32 s56, s56, Lpc-{NAME}_kernel\ns_subb_u32 s57, s57, 0")
    a(f"s_and_b32 s{sX}, s2, 7\ns_lshr_b32 s{sI}, s2, 3\ns_sub_u32 s67, s{sW}, 4")
    a(f"s_cmp_lt_u32 s{sW}, 6\ns_cbranch_scc1 Le_nopf")
    a(f"s_lshl_b32 s58, s{sI}, 1\ns_add_u32 s58, s58, s67\ns_sub_u32 s58, s58, 2\ns_lshl_b32 s58, s58, 10\ns_min_u32 s58, s58, Lcode_end-{NAME}_kernel-1024\nv_add_u32 v5, s58, v{vL16}")
    a("global_load_dwordx4 v[16:19], v5, s[56:57]")
    a("Le_nopf:")
    if OPT.get('m216', 0):
        a(f"s_lshl_b32 s{sTB}, s{sX}, 1\ns_lshr_b32 s52, s{sI}, 4\ns_add_u32 s{sTB}, s{sTB}, s52\ns_and_b32 s{sR}, s{sI}, 7\ns_and_b32 s{sC}, s{sI}, 15")
    else:
        a(f"s_lshr_b32 s{sTB}, s{sX}, 1\ns_lshl_b32 s{sTB}, s{sTB}, 2\ns_lshr_b32 s52, s{sI}, 3\ns_add_u32 s{sTB}, s{sTB}, s52")
        a(f"s_and_b32 s{sR}, s{sI}, 7\ns_and_b32 s{sC}, s{sX}, 1\ns_lshl_b32 s{sC}, s{sC}, 3\ns_add_u32 s{sC}, s{sC}, s{sR}")
    for nm in ("x", "dbg", "wmod", "c", "wqkv", "ws"): a(f"s_mov_b32 s{SRD[nm]+2}, {hex(SZ[nm])}\ns_mov_b32 s{SRD[nm]+3}, 0x20000")
    a("s_memrealtime s[54:55]")
    if DIAG:
        a("s_waitcnt lgkmcnt(0)\ns_mov_b32 s3, s70\ns_mov_b32 s68, s72\nv_mov_b32 v250, s72")
        if OPT.get("rt"): a("s_mov_b32 s3, s72")
        for i in range(16): a(f"s_mov_b32 s{70+2*i}, s3")
    a(f"s_cmp_ge_u32 s{sW}, 4\ns_cbranch_scc1 Lp0_h\ns_cmp_lt_u32 s{sI}, 8\ns_cbranch_scc1 Lp0_mod\ns_cmp_ge_u32 s{sI}, 24\ns_cbranch_scc1 Lp0_warm")
    p0_ln(a)
    a("Lp0_h:")
    p0_helper(a)
    a("Lp0_mod:")
    p0_mod(a)
    a("Lp0_warm:")
    p0_warm(a)
    active(a)
    a("s_branch Latt")
    helper(a)
    a("Latt:")
    vm = Track(a, "vmcnt", 63)
    slow = attention(a, vm)
    a(f"s_cmp_ge_u32 s{sW}, 4\ns_cbranch_scc1 Lhelper2")
    active2(a)
    if OPT.get("hold"):
        a(f"Lhold:\ns_memrealtime s[52:53]\ns_waitcnt lgkmcnt(0)\ns_sub_u32 s52, s52, s{sTAG}\ns_cmp_lt_u32 s52, {OPT['hold']}\ns_cbranch_scc1 Lhold")
    if DIAG: a("v_mov_b32 v250, s68")
    diag_out(a, 0)
    a("s_endpgm")
    a("Lhelper2:")
    helper2(a)
    diag_out(a, 1)
    a("s_endpgm")
    a("; ==== attention fallback: true row maximum first, then exp(s - max)")
    slow(a)
    a("Lend:")
    return a

def emit(a):
    hdr = open(f"cdna_kernels/{NAME}.s.ref").read().split("\n")
    out = [l for l in hdr if l.startswith(";") and "@launch" not in l and "Override launch" not in l and "grid=ceil" not in l]
    out.append(f"; @launch grid=(256,1,1) block=(512,1,1) lds={LDS_SIZE}")
    a.fix()
    out += ['.amdgcn_target "amdgcn-amd-amdhsa--gfx950"', ".text", f".globl {NAME}_kernel", ".p2align 8", f".type {NAME}_kernel,@function", f"{NAME}_kernel:",
            a.text(), "    s_endpgm", "Lcode_end:", '.section .rodata,"a"', ".p2align 6", f".amdhsa_kernel {NAME}_kernel", "  .amdhsa_next_free_vgpr 256",
            "  .amdhsa_next_free_sgpr 102", "  .amdhsa_accum_offset 256", "  .amdhsa_group_segment_fixed_size 0", "  .amdhsa_kernarg_size 88",
            "  .amdhsa_user_sgpr_count 2", "  .amdhsa_user_sgpr_kernarg_segment_ptr 1", "  .amdhsa_system_sgpr_workgroup_id_x 1",
            "  .amdhsa_float_denorm_mode_32 3", ".end_amdhsa_kernel"]
    return "\n".join(out) + "\n"

if __name__ == "__main__":
    import argparse
    p = argparse.ArgumentParser(); p.add_argument("out"); p.add_argument("--diag", action="store_true"); p.add_argument("--opt", default="")
    args = p.parse_args()
    DIAG = args.diag
    for o in args.opt.split(","):
        if o: OPT[o.split("=")[0]] = int(o.split("=")[1]) if "=" in o else 1
    set_nring(OPT.get('nring', 4))
    open(args.out, "w").write(emit(build()))
```

```python
import sys, struct
from asmlib import *

NAME = "adaLN_cond__softmax_full_mha__dense_activation_silu__prompt"
WS_MODG = 0x0
WS_STATS = 0x10000
WS_FXN, WS_FKV, WS_FO, WS_FX1, WS_FH = 0x50000, 0x52000, 0x80000, 0xC0000, 0xE0000
WS_FXC = 0x58000
sLOC = 66
FH_B = 0x8000
WS_XN, WS_K, WS_V, WS_O, WS_X1, WS_Y, WS_H = 0x200000, 0x400000, 0x600000, 0x800000, 0xA00000, 0xC00000, 0xE00000
WS_DIAG = 0x1600000
WS_SIZE = 0x1700000
KA = dict(x=0, wqkv=8, wo=16, w1=32, w2=40, c=48, wmod=56, out=64, dbg=72, ws=80)
SZ = dict(x=2048*512*2, wqkv=512*1536*2, wo=512*512*2, w1=512*1792*2, w2=1792*512*2, c=1024, wmod=512*3072*2, out=2048*512*2, dbg=256, ws=WS_SIZE)
SRD = dict(x=4, wqkv=8, wo=12, w1=16, w2=20, c=24, wmod=28, out=32, dbg=36, ws=40)
S = {k: sr(v, 4) for k, v in SRD.items()}
sW, sTB, sC, sTAG, sI, sX, sR = 44, 45, 46, 47, 48, 49, 69
SPIN = 20000
def f2u(f): return struct.unpack("<I", struct.pack("<f", f))[0]
def hx(f): return hex(f2u(f))
LOG2E = 1.4426950408889634
DIAG = False
OPT = {}
L_WKV, L_WQ = 0, 64*1024
L_DG = 96*1024
L_SA = 112*1024
L_QX = 144*1024
L_WO = 0
L_W1 = 32*1024
L_RED = 88*1024
L_TAB = 156*1024
L_GA, L_G2, L_GB, L_SCR, L_UW, L_G = L_TAB, L_TAB+128, L_TAB+256, L_TAB+512, L_TAB+1024, L_TAB+2048
LDS_SIZE = 160*1024

def stamp(a, i, grp=0):
    if DIAG and (OPT.get("focus", 0) == grp or i == 15): a(f"{'s_memrealtime' if OPT.get('rt') else 's_memtime'} s[{70+2*i}:{71+2*i}]")

_uid = [0]
def poll(a, vm, mask, vaddr, soff, vt, first=0):
    _uid[0] += 1; n = _uid[0]
    a(f"s_mov_b64 exec, {mask}\ns_mov_b32 s50, {SPIN}")
    a("; wait for flags == launch tag (bounded)")
    if first: a(f"s_sleep {first}")
    a(f"Lpoll{n}:\nbuffer_load_dword v{vt}, v{vaddr}, {S['ws']}, {soff} offen sc1\ns_waitcnt vmcnt(0)\nv_cmp_ne_u32 vcc, s{sTAG}, v{vt}\ns_sub_u32 s50, s50, 1\ns_cbranch_vccz Lpolld{n}")
    if OPT.get("psleep", 0): a(f"s_sleep {OPT.get('psleep', 0)}")
    a(f"s_cmp_lg_u32 s50, 0\ns_cbranch_scc1 Lpoll{n}")
    a(f"Lpolld{n}:\ns_mov_b64 exec, -1")
    vm.reset()

def set_flag_rg(a, vm, soff, vt):
    _uid[0] += 1; n = _uid[0]
    vm.wait_all()
    a(f"v_mov_b32 v{vt}, s{sTAG}\ns_mov_b64 exec, 1\ns_cmp_lg_u32 s{sLOC}, 0\ns_cbranch_scc1 Lfl{n}")
    a(f"buffer_store_dword v{vt}, v{vZ}, {S['ws']}, {soff} offen sc1\ns_mov_b64 exec, -1\ns_sleep {OPT.get('fr', 16)}\ns_branch Lfl{n}d\nLfl{n}:")
    vm.op(f"buffer_store_dword v{vt}, v{vZ}, {S['ws']}, {soff} offen")
    a(f"s_mov_b64 exec, -1\nLfl{n}d:")

def LF(): return OPT.get("lf", 3)
def flag_off(a, d, f, base, lf=3):
    a(f"s_lshr_b32 s50, s{f}, {lf}\ns_lshl_b32 s50, s50, 7\ns_and_b32 s{d}, s{f}, {(1 << lf) - 1}\ns_lshl_b32 s{d}, s{d}, 2\ns_add_u32 s{d}, s{d}, s50\ns_add_u32 s{d}, s{d}, {hex(base)}")

RG = lambda: [' sc1', '', ' nt', ' sc0', ' sc0 nt'][OPT.get('fast', 0)]
RY = lambda: [' sc1', '', ' nt', ' sc0', ' sc0 nt'][OPT.get('fasty', OPT.get('fast', 0))]
RF = lambda: '' if (OPT.get('fast') or OPT.get('fastf')) else ' sc1'
RO = lambda: '' if (OPT.get('fast') and OPT.get('m216')) else ' sc1'
RL = lambda: '' if OPT.get('plainld') else ' sc1'
def set_flag(a, vm, soff, vz, vt, fl=' sc1'):
    vm.wait_all()
    a(f"v_mov_b32 v{vt}, s{sTAG}\ns_mov_b64 exec, 1")
    vm.op(f"buffer_store_dword v{vt}, v{vz}, {S['ws']}, {soff} offen{fl}")
    a("s_mov_b64 exec, -1")

def rne_bf16(a, d, s):
    a(f"v_cvt_pk_bf16_f32 v{d}, v{s}, v{s}\nv_lshlrev_b32 v{d}, 16, v{d}")

def tr_addr(a, d, t, perm, rowbytes_log2, swz):
    a(f"v_bfe_u32 v{d}, v0, 2, 2\nv_bfe_u32 v{t}, v0, 5, 1")
    a(f"v_lshl_add_u32 v{d}, v{t}, {2 if perm else 3}, v{d}\nv_lshlrev_b32 v{d}, {rowbytes_log2}, v{d}")
    a(f"v_bfe_u32 v{t}, v0, 4, 1\nv_lshl_add_u32 v{d}, v{t}, 5, v{d}")
    a(f"v_and_b32 v{t}, 3, v0\nv_lshl_add_u32 v{d}, v{t}, 3, v{d}")
    if swz: a(f"v_bfe_u32 v{t}, v0, 3, 1\nv_lshl_add_u32 v{d}, v{t}, 6, v{d}")

def half_tr_addr(a, d, t):
    a(f"v_bfe_u32 v{d}, v0, 2, 1")
    a(f"v_bfe_u32 v{t}, v0, 4, 1\nv_lshl_add_u32 v{d}, v{t}, 1, v{d}")
    a(f"v_bfe_u32 v{t}, v0, 3, 1\nv_lshl_add_u32 v{d}, v{t}, 2, v{d}")
    a(f"v_bfe_u32 v{t}, v0, 5, 1\nv_lshl_add_u32 v{d}, v{t}, 4, v{d}")
    a(f"v_lshlrev_b32 v{d}, 5, v{d}\nv_and_b32 v{t}, 3, v0\nv_lshl_add_u32 v{d}, v{t}, 3, v{d}")

vLANE, vL16, vZ = 1, 2, 3
def poll_addr(a, d, lf=3):
    a(f"v_lshrrev_b32 v{d}, {lf}, v{vLANE}\nv_lshlrev_b32 v{d}, 5, v{d}\nv_and_or_b32 v{d}, v{vLANE}, {(1 << lf) - 1}, v{d}\nv_lshlrev_b32 v{d}, 2, v{d}")

def mod_issue(a, vm, sCol, B=16, T=4):
    a(f"v_bfe_u32 v{T}, v0, 1, 7\nv_and_b32 v{T+1}, 1, v0")
    a(f"v_mul_u32_u24 v{T+2}, 6144, v{T}\nv_lshl_add_u32 v{T+2}, v{T+1}, 4, v{T+2}\nv_lshlrev_b32 v{T+3}, 1, v{T}")
    a(f"s_lshl_b32 s52, s{sCol}, 1")
    for m in range(4):
        vm.op(f"buffer_load_dwordx4 {vr(B+4*m,4)}, v{T+2}, {S['wmod']}, s52 offen", "mod")
        if m < 3: a(f"s_add_u32 s52, s52, {128*6144}")
    for m in range(4): vm.op(f"buffer_load_ushort v{B+16+m}, v{T+3}, {S['c']}, 0 offen offset:{256*m}", "mod")

def mod_partial(a, vm, B=16):
    vm.wait("mod")
    C, F, T, A = B+16, B+24, B+20, B+32
    for m in range(4): a(f"v_lshlrev_b32 v{C+m}, 16, v{C+m}")
    for m in range(4): a(f"v_mul_f32 v{T+m}, {hx(-LOG2E)}, v{C+m}")
    for m in range(4): a(f"v_exp_f32 v{T+m}, v{T+m}")
    for m in range(4): a(f"v_add_f32 v{T+m}, 1.0, v{T+m}")
    for m in range(4): a(f"v_rcp_f32 v{T+m}, v{T+m}")
    for m in range(4): a(f"v_mul_f32 v{C+m}, v{C+m}, v{T+m}")
    for m in range(4): a(f"v_cvt_pk_bf16_f32 v{C+m}, v{C+m}, v{C+m}")
    for m in range(4): a(f"v_lshlrev_b32 v{C+m}, 16, v{C+m}")
    for m in range(4):
        for r in range(4):
            a(f"v_lshlrev_b32 v{F+2*r}, 16, v{B+4*m+r}\nv_and_b32 v{F+2*r+1}, 0xffff0000, v{B+4*m+r}")
        for j in range(8):
            a(f"v_mul_f32 v{A+j}, v{F+j}, v{C}" if m == 0 else f"v_fmac_f32 v{A+j}, v{F+j}, v{C+m}")
    for j in range(4): a(f"v_permlane32_swap_b32 v{A+j}, v{A+4+j}")
    for j in range(4): a(f"v_add_f32 v{A+j}, v{A+j}, v{A+4+j}")
    for j in range(2): a(f"v_permlane16_swap_b32 v{A+j}, v{A+2+j}")
    for j in range(2): a(f"v_add_f32 v{A+j}, v{A+j}, v{A+2+j}")
    for r in (8, 4, 2):
        for j in range(2): a(f"v_add_f32_dpp v{A+j}, v{A+j}, v{A+j} row_ror:{r} row_mask:0xf bank_mask:0xf")
    a("v_bfe_u32 v8, v0, 6, 2\nv_lshlrev_b32 v8, 6, v8\nv_and_b32 v9, 1, v0\nv_lshl_add_u32 v8, v9, 5, v8")
    a("v_bfe_u32 v9, v0, 4, 1\nv_lshl_add_u32 v8, v9, 3, v8\nv_bfe_u32 v9, v0, 5, 1\nv_lshl_add_u32 v8, v9, 4, v8")
    a(f"v_add_u32 v8, {L_SCR}, v8")
    a("s_mov_b32 exec_lo, 0x00030003\ns_mov_b32 exec_hi, 0x00030003")
    a(f"ds_write_b64 v8, v[{A}:{A+1}]")
    a("s_mov_b64 exec, -1")

def mod_final(a, vm, sCol):
    a("s_mov_b64 exec, 0xff")
    a(f"v_lshlrev_b32 v8, 3, v{vLANE}\nv_add_u32 v9, {L_SCR}, v8")
    for w in range(4): a(f"ds_read_b64 {vr(240+2*w,2)}, v9 offset:{64*w}")
    a(f"s_lshr_b32 s52, s{sCol}, 9\ns_cmp_eq_u32 s52, 1\ns_cselect_b32 s53, 1.0, 0\ns_cmp_eq_u32 s52, 4\ns_cselect_b32 s53, 1.0, s53")
    a(f"s_lshl_b32 s52, s{sCol}, 2")
    a("s_waitcnt lgkmcnt(0)")
    for j in range(2): a(f"v_add_f32 v{240+j}, v{240+j}, v{242+j}\nv_add_f32 v{244+j}, v{244+j}, v{246+j}")
    for j in range(2): a(f"v_add_f32 v{240+j}, v{240+j}, v{244+j}")
    a("v_cvt_pk_bf16_f32 v242, v240, v241\nv_lshlrev_b32 v240, 16, v242\nv_and_b32 v241, 0xffff0000, v242")
    a("v_add_f32 v240, s53, v240\nv_add_f32 v241, s53, v241")
    a(f"v_cvt_pk_bf16_f32 v240, v240, v241\nv_mov_b32 v241, s{sTAG}")
    vm.op(f"buffer_store_dwordx2 v[240:241], v8, {S['ws']}, s52 offen sc1")
    a("s_mov_b64 exec, -1")

def gran_poll(a, vm, loads, regs, first=0):
    _uid[0] += 1; n = _uid[0]
    if first: a(f"s_sleep {first}")
    a(f"s_mov_b32 s50, {SPIN}\nLgp{n}:")
    for t in loads: a(t)
    a("s_waitcnt vmcnt(0)")
    first = True
    for r in regs:
        for o in (1, 3):
            if first: a(f"v_xor_b32 v15, s{sTAG}, v{r+o}"); first = False
            else: a(f"v_xor_b32 v14, s{sTAG}, v{r+o}\nv_or_b32 v15, v15, v14")
    a("v_cmp_ne_u32 vcc, 0, v15\ns_sub_u32 s50, s50, 1")
    a(f"s_cbranch_vccz Lgpd{n}\ns_sleep {OPT.get('gsleep', 1)}\ns_cmp_lg_u32 s50, 0\ns_cbranch_scc1 Lgp{n}\nLgpd{n}:")
    vm.reset()

def tag_get(a):
    _uid[0] += 1; n = _uid[0]
    a(f"v_mov_b32 v8, {L_SCR+260}\ns_mov_b32 s50, {SPIN*20}\nLtg{n}:\nds_read_b32 v9, v8\ns_sub_u32 s50, s50, 1\ns_waitcnt lgkmcnt(0)\nv_readfirstlane_b32 s{sTAG}, v9")
    a(f"s_cmp_lg_u32 s{sTAG}, 0\ns_cbranch_scc1 Ltgd{n}\ns_cmp_lg_u32 s50, 0\ns_cbranch_scc1 Ltg{n}\nLtgd{n}:")

def tag_now(a, v):
    _uid[0] += 1; n = _uid[0]
    a(f"s_mov_b32 s50, {SPIN}\nLtn{n}:\nv_readfirstlane_b32 s{sTAG}, v{v}\ns_sub_u32 s50, s50, 1")
    a(f"s_cmp_lg_u32 s{sTAG}, 0\ns_cbranch_scc1 Ltnd{n}\ns_cmp_eq_u32 s50, 0\ns_cbranch_scc1 Ltnd{n}")
    a(f"buffer_load_dword v{v}, v{vZ}, {S['dbg']}, 0 offen sc1\ns_waitcnt vmcnt(0)\ns_branch Ltn{n}\nLtnd{n}:")

def read_tag(a):
    a(f"v_mov_b32 v8, {L_SCR+260}\nds_read_b32 v9, v8\ns_waitcnt lgkmcnt(0)\nv_readfirstlane_b32 s{sTAG}, v9")

def mall_touch(a):
    _uid[0] += 1; n = _uid[0]
    a(f"v_lshlrev_b32 v5, 7, v{vLANE}\ns_cmp_eq_u32 s{sW}, 6\ns_cbranch_scc1 Lt6_{n}\ns_cmp_eq_u32 s{sW}, 7\ns_cbranch_scc1 Lt7_{n}")
    a(f"s_mul_i32 s52, s2, {56*128}\ns_cmp_eq_u32 s{sW}, 5\ns_cbranch_scc1 Lt5_{n}")
    a(f"buffer_load_dword v248, v5, {S['w1']}, s52 offen\ns_branch Ltd_{n}")
    a(f"Lt5_{n}:\nbuffer_load_dword v248, v5, {S['w2']}, s52 offen\ns_branch Ltd_{n}")
    a(f"Lt6_{n}:\nv_lshrrev_b32 v6, 5, v{vLANE}\nv_mul_u32_u24 v6, {6144-4096}, v6\nv_add_u32 v5, v5, v6\ns_mul_i32 s52, s2, 12288\ns_add_u32 s52, s52, 2048")
    a(f"buffer_load_dword v248, v5, {S['wmod']}, s52 offen\ns_branch Ltd_{n}")
    a(f"Lt7_{n}:\ns_lshl_b32 s52, s2, 11\ns_mov_b64 exec, 0xffff\nbuffer_load_dword v248, v5, {S['wo']}, s52 offen\ns_mov_b64 exec, -1")
    a(f"Ltd_{n}:")

def stouch(nm, soff, line):
    return f"s_buffer_load_dwordx2 s[0:1], {S[nm]}, s{soff} offset:{128*line+60}"

def mod_join(a, vm, sCol, name, pre=None):
    a(f"v_mov_b32 v8, {L_SCR+256}\nv_mov_b32 v9, 1\ns_waitcnt lgkmcnt(0)\ns_mov_b64 exec, 1\nds_add_rtn_u32 v9, v8, v9\ns_mov_b64 exec, -1\ns_waitcnt lgkmcnt(0)")
    a(f"v_readfirstlane_b32 s52, v9\ns_cmp_lg_u32 s52, 3\ns_cbranch_scc1 {name}")
    if pre: pre()
    mod_final(a, vm, sCol)

NRING = 4
def set_nring(n):
    global NRING
    NRING = n
vSTASH, vMOD, vXR = 180, 208, 208
QF, OA, SB, RING = 16, 32, [96, 112], 128
vV, vWO, vW1, vW1H = 4, 12, 13, 14
sHH, sKQ, sK, sV = 54, 55, 56, 57
def att_setup():
    a = Asm()
    a(f"s_and_b32 s{sHH}, s{sW}, 1\ns_lshr_b32 s{sKQ}, s{sW}, 1")
    a(f"v_and_b32 v{vV}, 15, v{vLANE}\nv_lshlrev_b32 v{vV}, 4, v{vV}\nv_bfe_u32 v5, v{vLANE}, 5, 1\nv_lshl_add_u32 v{vV}, v5, 8, v{vV}")
    a(f"s_lshl_b32 s58, s{sC}, 1\ns_add_u32 s58, s58, s{sHH}")
    a(f"s_lshl_b32 s59, s58, 16")
    a(f"s_lshl_b32 s52, s{sKQ}, 14\ns_add_u32 s52, s52, s59\ns_add_u32 s{sK}, s52, {hex(WS_K)}\ns_add_u32 s{sV}, s52, {hex(WS_V)}")
    a("s_mov_b32 s60, 0x0000ffff\ns_mov_b32 s61, 0x0000ffff")
    a(f"s_lshl_b32 s52, s{sKQ}, 8\ns_lshr_b32 s53, s{sC}, 1\ns_lshl_b32 s53, s53, 11\ns_add_u32 s52, s52, s53\ns_add_u32 s62, s52, {hex(WS_FKV)}")
    a(f"s_and_b32 s65, s{sTB}, {1 if OPT.get('m216', 0) else 3}\ns_lshl_b32 s65, s65, {13 if OPT.get('m216', 0) else 12}")
    a(f"v_lshrrev_b32 v6, 2, v{vLANE}\nv_and_b32 v11, 3, v{vLANE}\nv_lshlrev_b32 v{vWO}, 10, v6\nv_lshl_add_u32 v{vWO}, v11, 4, v{vWO}")
    w1_voffs(a, vW1, vW1H, 6, 11, 15)
    a(f"v_and_b32 v5, 7, v{vLANE}\nv_lshlrev_b32 v5, 2, v5\nv_bfe_u32 v6, v{vLANE}, 3, 1\nv_lshl_add_u32 v5, v6, 7, v5\nv_bfe_u32 v6, v{vLANE}, 4, 1\nv_lshl_add_u32 v5, v6, 10, v5")
    a(f"v_and_b32 v6, 0x1b, v{vLANE}\nv_cmp_eq_u32 vcc, 16, v6\nv_mov_b32 v15, 0x3f803f80\ns_nop 0\nv_cndmask_b32 v15, 0, v15, vcc")
    for r in range(64): a(f"v_mov_b32 v{OA+r}, 0")
    early = [I.text for I in a.L]
    late = [f"v_mov_b32 v{RING+12*sl+4+r}, v15" for sl in range(NRING) for r in range(8)] + [f"v_mov_b32 v{RING+12*NRING}, 0xdddddddd"]
    return early, late

CNT = dict(b5b=3, b6b=4, b7=5, b9=6, b10=7, b11=8, b12=9, uw=10, b5c=11)
ONEWAY = lambda: OPT.get("ow", 1)
def sig(a, name, va, vb, lg=None):
    if not ONEWAY(): a("s_barrier"); return
    a("s_mov_b64 exec, 1")
    t = f"ds_add_u32 v{va}, v{vb} offset:{4*CNT[name]}"
    lg.op(t, "sig") if lg else a(t)
    a("s_mov_b64 exec, -1")
def sig_regs(a, va, vb): a(f"v_mov_b32 v{va}, {L_SCR+256}\nv_mov_b32 v{vb}, 1")
def await_(a, name, va, vt, have=False):
    if not ONEWAY(): a("s_barrier"); return
    _uid[0] += 1; n = _uid[0]
    if have: a(f"v_readfirstlane_b32 s50, v{vt}\ns_cmp_eq_u32 s50, 4\ns_cbranch_scc1 Law{n}d")
    a(f"s_mov_b32 s63, {SPIN*20}\nLaw{n}:\nds_read_b32 v{vt}, v{va} offset:{4*CNT[name]}\ns_sub_u32 s63, s63, 1\ns_waitcnt lgkmcnt(0)\nv_readfirstlane_b32 s50, v{vt}")
    a(f"s_cmp_eq_u32 s50, 4\ns_cbranch_scc1 Law{n}d\ns_sleep {OPT.get('asleep', 1)}\ns_cmp_lg_u32 s63, 0\ns_cbranch_scc1 Law{n}\nLaw{n}d:")

def q_join(a):
    _uid[0] += 1; n = _uid[0]
    a(f"v_mov_b32 v9, {L_SCR+264}\ns_mov_b32 s50, {SPIN*20}\nLqj{n}:\nds_read_b32 v10, v9\ns_sub_u32 s50, s50, 1\ns_waitcnt lgkmcnt(0)\nv_readfirstlane_b32 s52, v10")
    a(f"s_cmp_eq_u32 s52, 4\ns_cbranch_scc1 Lqjd{n}\ns_cmp_lg_u32 s50, 0\ns_cbranch_scc1 Lqj{n}\nLqjd{n}:")

def att_q(a):
    for i in range(4):
        a(f"s_add_u32 s52, s{sKQ}, {i}\ns_and_b32 s52, s52, 3\ns_lshl_b32 s53, s{sHH}, 2\ns_add_u32 s52, s52, s53\ns_lshl_b32 s52, s52, 10\ns_add_u32 s52, s52, {L_QX}")
        a(f"v_add_u32 v9, s52, v{vL16}\nds_read_b128 {vr(QF+4*i,4)}, v9")

KVF = lambda: [' sc1', '', ' sc1 nt'][OPT.get('kvf', 0)]
def att_ld(a, vm, kt):
    sl = kt % NRING
    if kt % 4 == 0: a(f"s_add_u32 s63, s{sK}, s62\ns_add_u32 s64, s{sV}, s62\ns_add_u32 s62, s62, 4096\ns_and_b32 s62, s62, 0x3fff")
    o = 1024*(kt % 4)
    vm.op(f"buffer_load_dwordx4 {vr(RING+12*sl,4)}, v{vL16}, {S['ws']}, s63 offen offset:{o}{KVF()}", ("kv", kt))
    a("s_mov_b64 exec, s[60:61]")
    vm.op(f"buffer_load_dwordx4 {vr(RING+12*sl+4,4)}, v{vV}, {S['ws']}, s64 offen offset:{o}{KVF()}", ("kv", kt))
    vm.op(f"buffer_load_dwordx4 {vr(RING+12*sl+8,4)}, v{vV}, {S['ws']}, s64 offen offset:{o+512}{KVF()}", ("kv", kt))
    a("s_mov_b64 exec, -1")

def att_first(a, vm, first):
    stamp(a, 4)
    poll(a, vm, "0xffffffff", 5, "s62", 6, first)
    stamp(a, 5)
    a("s_mov_b32 s62, s65")
    for kt in range(NRING-1): att_ld(a, vm, kt)

def attention(a, vm):
    IDX = RING + 12*NRING
    assert IDX < vSTASH
    CP = lambda d: f"s_and_b32 s{d}, s{sI}, 15" if OPT.get('mix', 1) else f"s_mov_b32 s{d}, s{sC}"
    TP = lambda d: f"s_lshl_b32 s{d}, s{sX}, 1\ns_lshr_b32 s50, s{sI}, 4\ns_add_u32 s{d}, s{d}, s50" if OPT.get('mix', 1) else f"s_mov_b32 s{d}, s{sTB}"
    def kp_addr(d):
        return [f"s_lshl_b32 s65, s{sR}, 1", f"s_add_u32 s65, s65, s{sW}", f"s_add_u32 s65, s65, {d}", "s_and_b32 s65, s65, 15", f"s_mul_i32 s65, s65, {32*3584}",
                CP(52), "s_mul_i32 s52, s52, 224", "s_add_u32 s65, s65, s52", f"s_mul_i32 s66, s{sW}, 7168", f"s_add_u32 s66, s66, {L_W1+7168*d}"]
    wo = [[f"s_add_u32 m0, s66, {L_WO+1024*j}", f"s_add_u32 s52, s65, {16384*j}", f"buffer_load_dwordx4 v{vWO}, {S['wo']}, s52 offen lds"] for j in range(4)]
    wo[0] = [f"s_add_u32 s65, s{sW}, s{sR}", "s_and_b32 s65, s65, 7", "s_lshl_b32 s65, s65, 16", CP(52), "s_lshl_b32 s52, s52, 6", "s_add_u32 s65, s65, s52", f"s_lshl_b32 s66, s{sW}, 12"] + wo[0]
    k1 = w1_kp_dma(65, 66, vW1, vW1H); k1[0] = kp_addr(0) + k1[0]
    k2 = []
    for j, p in enumerate(w1_kp_dma(65, 66, vW1, vW1H)):
        k2.append([p[1], p[2].replace("buffer_load_dwordx4 ", f"buffer_load_dwordx4 {vr(vSTASH+4*j,4)}, ").replace(" lds", "")])
    k2[0] = kp_addr(8)[:8] + k2[0]
    p0 = OPT.get("pre0", 5)
    pre = {4*p0+1: wo[:2], 4*p0+5: wo[2:], 4*p0+9: k1[:3], 4*p0+13: k1[3:], 4*p0+17: k2[:3], 4*p0+21: k2[3:]}
    ld = lambda kt: att_ld(a, vm, kt)
    for kt in range(NRING-1): vm.q += [('kv', kt)]*3
    def QK(dst, sl, q): return f"v_mfma_f32_32x32x16_bf16 {vr(dst,16)}, {vr(RING+12*sl,4)}, {vr(QF+4*q,4)}, 0"
    def SM(q, sl, half, s): return f"v_smfmac_f32_32x32x32_bf16 {vr(OA+16*q,16)}, {vr(RING+12*sl+4+4*half,4)}, {vr(s+8*half,8)}, v{IDX}"
    a("s_setprio 1")
    a(f"s_and_b32 s53, s{sW}, 3\ns_lshl_b32 s52, s2, 2\ns_add_u32 s53, s53, s52\ns_mul_i32 s53, s53, {9*128}")
    ST = [stouch("w1", 53, n) for n in range(9)] + [stouch("wmod", 53, n) for n in range(16)] + [stouch("w2", 53, n) for n in range(14)]
    a("s_waitcnt lgkmcnt(0)")
    vm.wait(("kv", 0))
    a(QK(SB[0], 0, 0))
    a("s_nop 7\ns_nop 3")
    TAIL = OPT.get("tail", 1)
    qof = lambda t: (t + 1) % 4 if (TAIL and t >= 60) else t % 4
    def red_write(i):
        return [f"s_add_u32 s52, s{sKQ}, {i}\ns_and_b32 s52, s52, 3\ns_mul_i32 s52, s52, 3\ns_add_u32 s52, s52, s63\ns_add_u32 s52, s52, {i-1}\ns_mul_i32 s52, s52, 2304\ns_add_u32 s52, s52, {L_RED}",
                f"v_add_u32 v6, s52, v{vL16}\nv_add_u32 v7, s52, v15",
                f"ds_write_b128 v6, {vr(OA+16*i,4)}", f"ds_write_b128 v6, {vr(OA+16*i+4,4)} offset:1024", f"ds_write_b32 v7, v{OA+16*i+8} offset:2048"]
    for t in range(64):
        kt, q = t // 4, t % 4
        cur, prv = SB[t & 1], SB[(t + 1) & 1]
        E = [f"v_exp_f32 v{cur+r}, v{cur+r}" for r in range(16)]
        if t == OPT.get("prio", 53):
            a(f"s_cmp_ge_u32 s{sW}, 4\ns_cbranch_scc1 Latt_prio\ns_setprio 0\nLatt_prio:")
        a(E[0]); a(E[1])
        if t > 0: a(SM(qof(t-1), ((t-1)//4) % NRING, 1, prv))
        if t == 59: a(f"s_mul_i32 s63, s{sHH}, 12\nv_lshlrev_b32 v15, 2, v{vLANE}")
        if q == 0 and kt + NRING - 1 < 16: ld(kt + NRING - 1)
        if t in pre and not OPT.get("nopre"):
            for p in pre[t]:
                for x in p[:-1]: a(x)
                vm.op(p[-1], "pre")
        if t == OPT.get("cpf", 99):
            a(f"s_cmp_lg_u32 s{sW}, 7\ns_cbranch_scc1 Latt_nocp\ns_getpc_b64 s[50:51]\nLpc2:\ns_and_b32 s52, s{sI}, 3\ns_lshl_b32 s52, s52, 13\nv_lshlrev_b32 v5, 7, v{vLANE}\nv_add_u32 v5, s52, v5")
            a("v_min_u32 v5, Lcode_end-Lpc2-4, v5\nglobal_load_dword v249, v5, s[50:51]\nLatt_nocp:")
        if t == 5:
            a(f"s_cmp_lg_u32 s{sW}, 0\ns_cbranch_scc1 Latt_noxc"); a(TP(52)); a(f"s_lshl_b32 s52, s52, 5"); a(CP(50))
            a(f"s_add_u32 s52, s52, s50\ns_lshl_b32 s52, s52, 2\ns_add_u32 s52, s52, {hex(WS_FXC)}\ns_getreg_b32 s50, hwreg(HW_REG_XCC_ID)\ns_and_b32 s50, s50, 15\ns_lshl_b32 s50, s50, 1\ns_add_u32 s50, s50, s{sTAG}")
            if OPT.get("xcfake"): a(f"s_and_b32 s51, s2, {OPT['xcfake']}\ns_add_u32 s50, s50, s51")
            a(f"v_mov_b32 v5, s50\ns_mov_b64 exec, 1\nbuffer_store_dword v5, v{vZ}, {S['ws']}, s52 offen sc1\ns_mov_b64 exec, -1\nLatt_noxc:")
        if t == 57:
            a(f"s_cmp_ge_u32 s{sW}, 4\ns_cbranch_scc1 Latt_nox")
            a(f"v_bfe_u32 v5, v{vLANE}, 5, 1\nv_and_b32 v6, 31, v{vLANE}\nv_lshlrev_b32 v6, 10, v6\nv_lshl_add_u32 v6, v5, 3, v6")
            a(TP(52)); a(f"s_lshl_b32 s52, s52, 2\ns_add_u32 s67, s52, s{sW}\ns_lshl_b32 s52, s67, 15"); a(CP(50)); a("s_lshl_b32 s50, s50, 6\ns_add_u32 s52, s52, s50")
            for qq in range(4): a(f"buffer_load_dwordx2 {vr(vXR+2*qq,2)}, v6, {S['x']}, s52 offen offset:{16*qq}")
            a(f"s_lshr_b32 s52, s67, 2\ns_lshl_b32 s52, s52, 7\ns_add_u32 s52, s52, {hex(WS_FXC)}\nv_and_b32 v5, 15, v{vLANE}\nv_lshlrev_b32 v5, 2, v5")
            a(f"buffer_load_dword v{vXR+8}, v5, {S['ws']}, s52 offen sc1")
            a("Latt_nox:")
        if t == 50:
            a(f"s_cmp_lt_u32 s{sW}, 4\ns_cbranch_scc1 Latt_nomod\ns_sub_u32 s52, s{sI}, 8\ns_cmp_ge_u32 s52, 16\ns_cbranch_scc1 Latt_nomod")
            a(f"s_lshl_b32 s66, s{sX}, 2\ns_lshr_b32 s52, s52, 2\ns_add_u32 s66, s66, s52\ns_lshl_b32 s66, s66, 6")
            a(f"s_and_b32 s52, s{sI}, 3\ns_lshl_b32 s52, s52, 4\ns_add_u32 s66, s66, s52\ns_add_u32 s66, s66, 1024")
            mod_issue(a, Track(a, "vmcnt", 63), 66, vMOD, T=244)
            a("Latt_nomod:")
        if t == OPT.get("w2t", 62) and not OPT.get("nopre"):
            if OPT.get("nw", 1):
                a(f"s_mul_i32 s52, s{sI}, 7\ns_min_u32 s50, s{sW}, 6\ns_add_u32 s52, s52, s50\ns_lshl_b32 s52, s52, 13\nv_lshlrev_b32 v5, 7, v{vLANE}")
                vm.op(f"buffer_load_dword v248, v5, {S['w2']}, s52 offen", "w2t")
            else:
                a(f"s_cmp_eq_u32 s{sW}, 7\ns_cbranch_scc1 Latt_nopf\ns_mul_i32 s52, s{sI}, 7\ns_add_u32 s52, s52, s{sW}\ns_lshl_b32 s52, s52, 13\nv_lshlrev_b32 v5, 7, v{vLANE}")
                a(f"buffer_load_dword v248, v5, {S['w2']}, s52 offen")
                a("Latt_nopf:")
        if OPT.get("st", 7) & 4 and t % 3 != 2 and t - t//3 < 39:
            j = t - t//3
            if j == 9: a(f"s_lshl_b32 s53, s2, 1\ns_bfe_u32 s52, s{sW}, 0x10001\ns_add_u32 s53, s53, s52\ns_mul_i32 s53, s53, 6144\ns_lshl_b32 s52, s{sHH}, 11\ns_add_u32 s53, s53, s52\ns_add_u32 s53, s53, 2048")
            if j == 25: a(f"s_and_b32 s53, s{sW}, 3\ns_lshl_b32 s52, s2, 2\ns_add_u32 s53, s53, s52\ns_mul_i32 s53, s53, {14*128}")
            a(ST[j])
        sh = OPT.get("vb", 1)
        for r in range(2, 4+sh): a(E[r])
        if t < 63:
            if q == 3: vm.wait(("kv", kt + 1))
            a(QK(prv, ((t+1)//4) % NRING, qof(t+1)))
        for r in range(4+sh, 10+sh): a(E[r])
        a(SM(qof(t), kt % NRING, 0, cur))
        W = red_write(t - 60) if (TAIL and t >= 61) else []
        for r in range(10+sh, 16):
            a(E[r])
            if W: a(W.pop(0))
        for x in W: a(x)
        if t % 4 == 3 and t < 60: stamp(a, t//4, 5)
    a("s_nop 1")
    a(SM(qof(63), 15 % NRING, 1, SB[1]))
    a("s_setprio 0")
    stamp(a, 6); stamp(a, 0, 8)
    if not TAIL:
        for i in range(1, 4):
            for x in red_write(i): a(x)
    a(f"s_mul_i32 s52, s{sKQ}, 3\ns_add_u32 s52, s52, s63\ns_mul_i32 s52, s52, 2304\ns_add_u32 s52, s52, {L_RED}")
    a(f"v_add_u32 v6, s52, v{vL16}\nv_add_u32 v7, s52, v15")
    a(f"s_lshl_b32 s52, s{sTB}, 2\ns_add_u32 s52, s52, s{sKQ}\ns_lshl_b32 s52, s52, 5\ns_add_u32 s52, s52, s58")
    a(f"s_lshl_b32 s63, s52, 10\ns_add_u32 s63, s63, {hex(WS_O)}")
    flag_off(a, 64, 52, WS_FO, LF())
    a(TP(sTB)); a(CP(sC))
    stamp(a, 1, 8)
    if OPT.get("nw", 1): a("s_waitcnt vmcnt(1)")
    else: vm.wait_all()
    a("s_waitcnt lgkmcnt(0)")
    stamp(a, 2, 8)
    a("s_barrier")
    stamp(a, 3, 8)
    R = 96
    for i in range(3):
        a(f"ds_read_b128 {vr(R+12*i,4)}, v6 offset:{2304*i}\nds_read_b128 {vr(R+12*i+4,4)}, v6 offset:{2304*i+1024}\nds_read_b32 v{R+12*i+8}, v7 offset:{2304*i+2048}")
    a(f"s_mov_b32 s52, {hx(2.0**-60)}\ns_mov_b32 s53, {hx(2.0**60)}\ns_movk_i32 s65, 0x207")
    for i in range(3):
        a(f"s_waitcnt lgkmcnt({6-3*i})")
        for r in range(9): a(f"v_add_f32 v{OA+r}, v{OA+r}, v{R+12*i+r}")
    a(f"v_add_f32 v8, v{OA}, v{OA+1}\nv_add_f32 v9, v{OA+2}, v{OA+3}\nv_add_f32 v10, v{OA+4}, v{OA+5}\nv_add_f32 v11, v{OA+6}, v{OA+7}")
    a("v_add_f32 v8, v8, v9\nv_add_f32 v10, v10, v11\nv_add_f32 v8, v8, v10")
    a(f"v_cmp_nge_f32 vcc, v{OA+8}, s52\nv_cmp_nle_f32 s[54:55], v{OA+8}, s53\nv_cmp_class_f32 s[56:57], v8, s65")
    a(f"v_rcp_f32 v8, v{OA+8}")
    a("s_or_b64 vcc, vcc, s[54:55]\ns_or_b64 vcc, vcc, s[56:57]")
    a("s_cbranch_vccnz Lslow")
    a("Lnorm:")
    for r in range(8): a(f"v_mul_f32 v{OA+r}, v{OA+r}, v8")
    for r in range(4): a(f"v_cvt_pk_bf16_f32 v{8+r}, v{OA+2*r}, v{OA+2*r+1}")
    vm.op(f"buffer_store_dwordx4 v[8:11], v{vL16}, {S['ws']}, s63 offen{RO()}")
    stamp(a, 4, 8)
    a("s_barrier")
    stamp(a, 5, 8)
    a(f"s_mul_i32 s52, s{sW}, 7168\ns_add_u32 s52, s52, {L_W1+8*7168}\nv_add_u32 v5, s52, v{vL16}")
    for j in range(7): a(f"ds_write_b128 v5, {vr(vSTASH+4*j,4)} offset:{1024*j}")
    def slow(b):
        tv = Track(b, "vmcnt", 63)
        b("Lslow:")
        poll_addr(b, 5)
        b(f"s_lshr_b32 s52, s58, 2\ns_lshl_b32 s52, s52, 11\ns_add_u32 s62, s52, {hex(WS_FKV)}")
        poll(b, tv, "-1", 5, "s62", 6)
        b("s_add_u32 s62, s62, 1024")
        poll(b, tv, "-1", 5, "s62", 6)
        b(f"s_waitcnt vmcnt(0)\ns_add_u32 s{sK}, s59, {hex(WS_K)}\ns_mov_b32 s51, 64\nv_mov_b32 v8, 0xff800000")
        b("Ls1:")
        b(f"buffer_load_dwordx4 {vr(RING,4)}, v{vL16}, {S['ws']}, s{sK} offen sc1\ns_add_u32 s{sK}, s{sK}, 1024\ns_waitcnt vmcnt(0)")
        b(QK(SB[0], 0, 0))
        for r in range(0, 16, 2): b(f"v_max3_f32 v8, v{SB[0]+r}, v{SB[0]+r+1}, v8")
        b("s_sub_u32 s51, s51, 1\ns_cmp_lg_u32 s51, 0\ns_cbranch_scc1 Ls1")
        b("v_mov_b32 v9, v8\nv_permlane32_swap_b32 v8, v9\nv_max_f32 v8, v8, v9")
        for r in range(16): b(f"v_sub_f32 v{SB[1]+r}, 0, v8")
        for r in range(16): b(f"v_mov_b32 v{OA+r}, 0")
        b(f"s_add_u32 s{sK}, s59, {hex(WS_K)}\ns_add_u32 s{sV}, s59, {hex(WS_V)}\ns_mov_b32 s51, 64")
        b("Ls2:")
        b(f"buffer_load_dwordx4 {vr(RING,4)}, v{vL16}, {S['ws']}, s{sK} offen sc1\ns_mov_b64 exec, s[60:61]")
        b(f"buffer_load_dwordx4 {vr(RING+4,4)}, v{vV}, {S['ws']}, s{sV} offen sc1\nbuffer_load_dwordx4 {vr(RING+8,4)}, v{vV}, {S['ws']}, s{sV} offen offset:512 sc1")
        b(f"s_mov_b64 exec, -1\ns_add_u32 s{sK}, s{sK}, 1024\ns_add_u32 s{sV}, s{sV}, 1024\ns_waitcnt vmcnt(0)")
        b(f"v_mfma_f32_32x32x16_bf16 {vr(SB[0],16)}, {vr(RING,4)}, {vr(QF,4)}, {vr(SB[1],16)}")
        for r in range(16): b(f"v_exp_f32 v{SB[0]+r}, v{SB[0]+r}")
        b(SM(0, 0, 0, SB[0])); b(SM(0, 0, 1, SB[0]))
        b("s_sub_u32 s51, s51, 1\ns_cmp_lg_u32 s51, 0\ns_cbranch_scc1 Ls2")
        b(f"s_nop 7\ns_nop 7\nv_rcp_f32 v8, v{OA+8}\ns_nop 0\ns_branch Lnorm")
    return slow

def w1_voffs(a, vF, vH, p=7, q=8, r=9):
    a(f"v_lshrrev_b32 v{p}, 2, v{vLANE}\nv_and_b32 v{q}, 3, v{vLANE}\nv_mul_u32_u24 v{vF}, 3584, v{p}\nv_lshl_add_u32 v{vF}, v{q}, 4, v{vF}")
    a(f"v_lshrrev_b32 v{p}, 1, v{vLANE}\nv_and_b32 v{q}, 0x13, v{p}\nv_bfe_u32 v{r}, v{p}, 2, 1\nv_lshl_add_u32 v{q}, v{r}, 3, v{q}\nv_bfe_u32 v{r}, v{p}, 3, 1\nv_lshl_add_u32 v{q}, v{r}, 2, v{q}")
    a(f"v_mul_u32_u24 v{vH}, 3584, v{q}\nv_and_b32 v{q}, 1, v{vLANE}\nv_lshl_add_u32 v{vH}, v{q}, 4, v{vH}")

def w1_kp_dma(sOff, sLds, vF, vH, dOff=0, dLds=0):
    L = []
    for e in range(2):
        for nt in range(3):
            L.append([f"s_add_u32 m0, s{sLds}, {dLds+3072*e+1024*nt}", f"s_add_u32 s52, s{sOff}, {dOff+16*3584*e+64*nt}",
                      f"buffer_load_dwordx4 v{vF}, {S['w1']}, s52 offen lds"])
    L.append([f"s_add_u32 m0, s{sLds}, {dLds+6144}", f"s_add_u32 s52, s{sOff}, {dOff+192}", f"buffer_load_dwordx4 v{vH}, {S['w1']}, s52 offen lds"])
    return L

def w1_reads(kp, e, dst, vF):
    base = 7168*kp + 3072*e
    return [f"ds_read_b64_tr_b16 {vr(dst+4*nt+2*st,2)}, v{vF[base >> 15]} offset:{(base & 0x7fff)+1024*nt+512*st}" for nt in range(3) for st in range(2)]
def w1_half_reads(kp, dst, vH):
    base = 7168*kp + 6144
    return [f"ds_read_b64_tr_b16 {vr(dst+2*st,2)}, v{vH[base >> 15]} offset:{(base & 0x7fff)+256*st}" for st in range(2)]

def h_pj(ks):
    return (ks // 4, ks % 4) if ks < 32 else ((ks - 32) // 3, 4 + (ks - 32) % 3)

def rot_loads(a, vm, base_s, dst, tag, div=1):
    for ks in range(32):
        if ks % 4 == 0: a(f"s_add_u32 s53, s{sR}, {ks//4}\ns_and_b32 s53, s53, 7\ns_lshl_b32 s53, s53, 12\ns_add_u32 s53, s53, s{base_s}")
        yield ks, (f"buffer_load_dwordx4 {vr(dst+4*ks,4)}, v{vL16}, {S['ws']}, s53 offen offset:{1024*(ks%4)}{RL() if tag == 'y' else ' sc1'}", (tag, ks//div))

def lds_init_b0(a):
    late_srds(a)
    a(f"v_mov_b32 v8, {L_SCR+256}\nv_mov_b32 v10, 0\nv_mov_b32 v11, 0\nds_write_b64 v8, v[10:11]\nds_write_b64 v8, v[10:11] offset:8\nds_write_b64 v8, v[10:11] offset:16\nds_write_b64 v8, v[10:11] offset:24\nds_write_b64 v8, v[10:11] offset:32\nds_write_b64 v8, v[10:11] offset:40\ns_waitcnt lgkmcnt(0)\ns_barrier")

EB = lambda bit: OPT.get('eb1', 2) & bit
def tag_to_lds_b1(a, late, nap=0):
    a(f"v_mov_b32 v8, s{sTAG}\nv_mov_b32 v9, {L_SCR+260}\nds_write_b32 v9, v8\ns_waitcnt lgkmcnt(0)")
    stamp(a, 0)
    if late: a("s_barrier")
    if nap: a(f"s_sleep {nap}")
    a("s_branch La_p1")

def p0_ln(a):
    vm = Track(a, "vmcnt", 63)
    a(f"s_and_b32 s52, s{sX}, 1\ns_lshl_b32 s52, s52, 4\ns_add_u32 s52, s52, s{sI}\ns_sub_u32 s52, s52, 8\ns_lshl_b32 s52, s52, 2\ns_add_u32 s52, s52, s{sW}")
    a(f"s_lshr_b32 s53, s{sX}, 1\ns_lshl_b32 s53, s53, 7\ns_add_u32 s56, s52, s53\ns_lshl_b32 s53, s56, 12")
    a(f"v_and_b32 v4, 3, v{vLANE}\nv_lshrrev_b32 v5, 2, v{vLANE}\nv_lshlrev_b32 v6, 10, v4\nv_lshl_add_u32 v6, v5, 4, v6")
    a("s_waitcnt lgkmcnt(0)")
    for m in range(4): vm.op(f"buffer_load_dwordx4 {vr(16+4*m,4)}, v6, {S['x']}, s53 offen offset:{256*m}")
    lds_init_b0(a)
    a("v_lshrrev_b32 v7, 1, v5\nv_lshlrev_b32 v7, 10, v7\nv_and_b32 v8, 1, v5\nv_lshl_add_u32 v7, v8, 9, v7\nv_lshl_add_u32 v7, v4, 4, v7")
    a(f"s_lshr_b32 s53, s56, 3\ns_lshl_b32 s53, s53, 15\ns_and_b32 s54, s56, 7\ns_lshl_b32 s54, s54, 6\ns_add_u32 s53, s53, s54\ns_add_u32 s53, s53, {hex(WS_XN)}")
    flag_off(a, 55, 56, WS_FXN)
    stamp(a, 0, 7)
    vm.wait_all()
    stamp(a, 1, 7)
    vm.op(f"buffer_load_dword v15, v{vZ}, {S['dbg']}, 0 offen sc1")
    F = 32
    for r in range(16): a(f"v_lshlrev_b32 v{F+2*r}, 16, v{16+r}\nv_and_b32 v{F+2*r+1}, 0xffff0000, v{16+r}")
    def red(v, t):
        for r in (4, 8): a(f"v_add_f32_dpp v{v}, v{v}, v{v} row_ror:{r} row_mask:0xf bank_mask:0xf")
        a(f"v_mov_b32 v{t}, v{v}\nv_permlane16_swap_b32 v{v}, v{t}\nv_add_f32 v{v}, v{v}, v{t}")
        a(f"v_mov_b32 v{t}, v{v}\nv_permlane32_swap_b32 v{v}, v{t}\nv_add_f32 v{v}, v{v}, v{t}")
    a(f"v_pk_add_f32 v[64:65], {vr(F,2)}, {vr(F+2,2)}\nv_pk_add_f32 v[66:67], {vr(F+4,2)}, {vr(F+6,2)}")
    for r in range(8, 32, 4): a(f"v_pk_add_f32 v[64:65], v[64:65], {vr(F+r,2)}\nv_pk_add_f32 v[66:67], v[66:67], {vr(F+r+2,2)}")
    a("v_pk_add_f32 v[64:65], v[64:65], v[66:67]\nv_add_f32 v64, v64, v65")
    red(64, 65)
    a(f"v_mul_f32 v64, {hx(-1/512)}, v64")
    for r in range(0, 32, 2): a(f"v_pk_add_f32 {vr(F+r,2)}, {vr(F+r,2)}, v[64:65] op_sel_hi:[1,0]")
    a(f"v_pk_mul_f32 v[66:67], {vr(F,2)}, {vr(F,2)}\nv_pk_mul_f32 v[68:69], {vr(F+2,2)}, {vr(F+2,2)}")
    for r in range(4, 32, 4): a(f"v_pk_fma_f32 v[66:67], {vr(F+r,2)}, {vr(F+r,2)}, v[66:67]\nv_pk_fma_f32 v[68:69], {vr(F+r+2,2)}, {vr(F+r+2,2)}, v[68:69]")
    a("v_pk_add_f32 v[66:67], v[66:67], v[68:69]\nv_add_f32 v66, v66, v67")
    red(66, 67)
    a(f"v_mov_b32 v67, {hx(1e-5)}\nv_fmac_f32 v67, {hx(1/512)}, v66\nv_rsq_f32 v66, v67")
    for r in range(0, 32, 2): a(f"v_pk_mul_f32 {vr(F+r,2)}, {vr(F+r,2)}, v[66:67] op_sel_hi:[1,0]")
    for m in range(4):
        for r in range(4): a(f"v_cvt_pk_bf16_f32 v{16+4*m+r}, v{F+8*m+2*r}, v{F+8*m+2*r+1}")
        vm.op(f"buffer_store_dwordx4 {vr(16+4*m,4)}, v7, {S['ws']}, s53 offen sc1")
        if m < 3: a("s_add_u32 s53, s53, 8192")
    stamp(a, 2, 7)
    if EB(1): a("s_barrier")
    vm.wait_all()
    stamp(a, 3, 7)
    tag_now(a, 15)
    set_flag(a, vm, "s55", vZ, 8)
    stamp(a, 4, 7)
    tag_to_lds_b1(a, not EB(1), OPT.get('nl', 0))

def p0_mod(a):
    vm = Track(a, "vmcnt", 63)
    sCol = 51
    a(f"s_lshl_b32 s{sCol}, s{sX}, 1\ns_lshr_b32 s52, s{sI}, 2\ns_add_u32 s{sCol}, s{sCol}, s52\ns_lshl_b32 s{sCol}, s{sCol}, 6")
    a(f"s_and_b32 s52, s{sI}, 3\ns_lshl_b32 s52, s52, 4\ns_add_u32 s{sCol}, s{sCol}, s52")
    a("s_waitcnt lgkmcnt(0)")
    mod_issue(a, vm, sCol)
    lds_init_b0(a)
    vm.wait("mod")
    stamp(a, 1, 7)
    a(f"buffer_load_dword v15, v{vZ}, {S['dbg']}, 0 offen sc1")
    if EB(4): a("s_barrier")
    mod_partial(a, vm)
    a("s_waitcnt vmcnt(0)")
    tag_now(a, 15)
    mod_join(a, vm, sCol, "La_joined")
    a("La_joined:")
    stamp(a, 4, 7)
    tag_to_lds_b1(a, not EB(4), OPT.get('nm', 0))

def p0_warm(a):
    a(f"s_sub_u32 s52, s{sI}, 24\ns_lshl_b32 s52, s52, 1\ns_add_u32 s52, s52, s{sW}\ns_lshl_b32 s52, s52, 5")
    a(f"v_lshrrev_b32 v4, 1, v{vLANE}\nv_add_u32 v4, s52, v4\nv_mul_u32_u24 v4, 6144, v4\nv_and_b32 v5, 1, v{vLANE}\nv_lshl_add_u32 v4, v5, 7, v4\ns_lshl_b32 s52, s{sX}, 8")
    a(f"s_waitcnt lgkmcnt(0)\ns_cmp_ge_u32 s{sW}, 2\ns_cbranch_scc1 La_nowm")
    a(f"buffer_load_dword v6, v4, {S['wmod']}, s52 offen")
    a("La_nowm:")
    lds_init_b0(a)
    a("s_waitcnt vmcnt(0)")
    stamp(a, 1, 7)
    a(f"buffer_load_dword v15, v{vZ}, {S['dbg']}, 0 offen sc1")
    if EB(2): a("s_barrier")
    a("s_waitcnt vmcnt(0)")
    tag_now(a, 15)
    tag_to_lds_b1(a, not EB(2), OPT.get('nwm', 0))

def wkv_loop(a, name):
    a(f"{name}:")
    a(f"s_and_b32 s55, s55, 31\ns_lshl_b32 s53, s55, 11\ns_add_u32 s52, s55, s57\ns_and_b32 s52, s52, 31\ns_mul_i32 s52, s52, {16*3072}\ns_mov_b32 m0, s53\ns_add_u32 s52, s52, s56")
    a(f"buffer_load_dwordx4 v12, {S['wqkv']}, s52 offen lds\ns_add_u32 m0, s53, 1024\ns_add_u32 s52, s52, {8*3072}\nbuffer_load_dwordx4 v12, {S['wqkv']}, s52 offen lds")
    a(f"s_add_u32 s55, s55, 4\ns_sub_u32 s51, s51, 1\ns_cmp_lg_u32 s51, 0\ns_cbranch_scc1 {name}")

def p0_helper(a):
    vm = Track(a, "vmcnt", 63)
    sH = 67
    a(f"v_mov_b32 v32, 0\nv_mov_b32 v33, 0\nv_mov_b32 v34, 0\nv_mov_b32 v35, 0\ns_lshl_b32 s52, s{sH}, 12\ns_add_u32 s52, s52, {L_DG}\nv_add_u32 v9, s52, v{vL16}")
    for j in range(4): a(f"ds_write_b128 v9, v[32:35] offset:{1024*j}")
    a(f"s_lshl_b32 s52, s2, 2\ns_add_u32 s52, s52, s{sH}\ns_and_b32 s53, s52, 1\ns_lshr_b32 s52, s52, 1\ns_mul_i32 s52, s52, 3072")
    a("s_lshl_b32 s57, s53, 9\ns_add_u32 s57, s57, s52\ns_lshl_b32 s53, s53, 10\ns_add_u32 s52, s52, s53\ns_add_u32 s52, s52, 1024")
    a("s_waitcnt lgkmcnt(0)")
    a(f"s_andn2_b32 s58, s2, {OPT.get('tagm', 4)}\ns_lshl_b32 s58, s58, 3\ns_add_u32 s58, s58, s{sW}\ns_cmp_lg_u32 s58, {OPT.get('tagw', 64)*8+4}\ns_cbranch_scc1 Le_notag")
    a(f"s_or_b32 s54, s54, 1\nv_mov_b32 v6, s54\nv_mov_b32 v7, 0\ns_mov_b64 exec, 1\nbuffer_atomic_cmpswap v[6:7], v{vZ}, {S['dbg']}, 0 offen sc1\ns_mov_b64 exec, -1")
    a("Le_notag:")
    s0 = OPT.get("st0", 9)
    for n in range(min(s0, 4) if s0 != 9 else 1): a(stouch("wqkv", 52, n))
    late_srds(a)
    a("s_barrier")
    if s0 == 9: a("s_waitcnt lgkmcnt(0)")
    for n in range(min(s0, 4) if s0 != 9 else 1, 8): a(stouch("wqkv", 52, n))
    for n in range(4): a(stouch("wqkv", 57, n))
    a(f"v_lshrrev_b32 v4, 3, v{vLANE}\nv_mul_u32_u24 v4, 3072, v4\nv_bfe_u32 v5, v{vLANE}, 4, 1\nv_lshlrev_b32 v5, 2, v5\nv_xor_b32 v5, v5, v{vLANE}\nv_and_b32 v5, 7, v5\nv_lshl_add_u32 v12, v5, 4, v4")
    a(f"s_and_b32 s56, s{sC}, 1\ns_add_u32 s56, s56, 1\ns_lshl_b32 s56, s56, 10\ns_lshr_b32 s52, s{sC}, 1\ns_lshl_b32 s52, s52, 7\ns_add_u32 s56, s56, s52")
    a(f"s_and_b32 s55, s{sTB}, {1 if OPT.get('m216', 0) else 3}\ns_lshl_b32 s55, s55, {4 if OPT.get('m216', 0) else 3}\ns_add_u32 s55, s55, s{sH}\ns_lshl_b32 s57, s{sR}, 2\ns_mov_b32 s51, 8")
    WH_ = OPT.get("whalf", 0)
    if WH_: a(f"s_mov_b32 s55, s{sH}\ns_mov_b32 s51, {WH_}\ns_mov_b32 s59, s56\ns_mov_b32 s60, s57")
    stamp(a, 0, 7)
    a("s_barrier")
    stamp(a, 1, 7)
    wkv_loop(a, "Lh_wl")
    tag_get(a)
    stamp(a, 0); stamp(a, 2, 7)
    a(f"s_cmp_ge_u32 s{sH}, 2\ns_cbranch_scc1 Lh_b2")
    a(f"s_lshl_b32 s52, s{sH}, 11")
    a(f"v_lshrrev_b32 v5, 3, v{vLANE}\ns_lshl_b32 s53, s{sR}, 1\nv_subrev_u32 v5, s53, v5\nv_and_b32 v5, 15, v5\nv_xor_b32 v6, 8, v5")
    gran_poll(a, vm, [f"buffer_load_dwordx4 v[16:19], v{vL16}, {S['ws']}, s52 offen sc1", f"buffer_load_dwordx4 v[20:23], v{vL16}, {S['ws']}, s52 offen offset:1024 sc1"], [16, 20], OPT.get("ng", 0))
    stamp(a, 1)
    a(f"s_cmp_lg_u32 s{sH}, 0\ns_cbranch_scc1 Lh_g1")
    for j, r in enumerate((16, 18, 20, 22)): a(f"v_lshlrev_b32 v{24+2*j}, 16, v{r}\nv_and_b32 v{25+2*j}, 0xffff0000, v{r}")
    a(f"v_and_b32 v7, 1, v{vLANE}\nv_lshlrev_b32 v7, 6, v7\nv_bfe_u32 v9, v{vLANE}, 1, 2\nv_lshl_add_u32 v7, v9, 4, v7\nv_add_u32 v7, {L_SA}, v7")
    a("v_lshl_add_u32 v5, v5, 7, v7\nv_lshl_add_u32 v6, v6, 7, v7")
    a("ds_write_b128 v5, v[24:27]\nds_write_b128 v6, v[28:31]")
    a("s_branch Lh_b2")
    a("Lh_g1:")
    a(f"v_and_b32 v7, 7, v{vLANE}\nv_lshlrev_b32 v7, 6, v7\nv_bfe_u32 v9, v{vLANE}, 2, 1\nv_lshl_add_u32 v7, v9, 9, v7\nv_and_b32 v9, 3, v{vLANE}\nv_lshl_add_u32 v7, v9, 2, v7\nv_add_u32 v7, {L_DG}, v7")
    a("v_lshl_add_u32 v5, v5, 10, v7\nv_lshl_add_u32 v6, v6, 10, v7")
    for j in range(2):
        for e in range(4):
            a(f"ds_write_b16{'_d16_hi' if e & 1 else ''} v{5+j}, v{16+4*j+2*(e>>1)} offset:{16*e + 2*(e & 1)}")
    a("s_branch Lh_b2")

def late_srds(a):
    for nm in ("wo", "w1", "w2", "out"): a(f"s_mov_b32 s{SRD[nm]+2}, {hex(SZ[nm])}\ns_mov_b32 s{SRD[nm]+3}, 0x20000")

def active(a):
    vm = Track(a, "vmcnt", 63); lg = Track(a, "lgkmcnt", 15)
    sT32 = 67
    a("La_p1:")
    if OPT.get("ap", 0) & 2: a("s_setprio 1")
    ACC = [16, 32, 48]; WF = [64, 72]; DH = [88, 104]; DG = [120, 124]; AF = 128
    a(f"s_lshl_b32 s{sT32}, s{sTB}, 2\ns_add_u32 s{sT32}, s{sT32}, s{sW}")
    a(f"v_lshlrev_b32 v5, 2, v{vLANE}\ns_lshl_b32 s52, s{sT32}, 7\ns_add_u32 s52, s52, {hex(WS_FXN)}")
    tr_addr(a, 10, 12, True, 7, True)
    a("v_xor_b32 v12, 64, v10")
    a(f"v_bfe_u32 v11, v0, 5, 1\nv_lshlrev_b32 v11, 6, v11\nv_add_u32 v11, {L_SA}, v11\nv_add_u32 v13, {L_DG}, v{vL16}")
    a(f"v_and_b32 v14, 2, v0\nv_cmp_eq_u32 vcc, 0, v14\nv_mov_b32 v14, 0xeeeeeeee\nv_mov_b32 v15, 0x44444444\nv_cndmask_b32 v14, v14, v15, vcc")
    for r in range(48): a(f"v_mov_b32 v{16+r}, 0")
    poll(a, vm, "0xff", 5, "s52", 6, OPT.get("fn", 0))
    stamp(a, 1)
    a(f"s_lshl_b32 s52, s{sT32}, 15\ns_add_u32 s52, s52, {hex(WS_XN)}")
    a(f"s_lshr_b32 s54, s{sC}, 1\ns_lshl_b32 s54, s54, 18\ns_lshl_b32 s55, s{sT32}, 10\ns_add_u32 s54, s54, s55")
    a(f"s_bitcmp1_b32 s{sC}, 0\ns_cbranch_scc1 La_vwg")
    def rdS(b):
        L = [(f"ds_read_b128 {vr(DH[b&1]+4*q,4)}, v11 offset:{128*b+16*q}", ("s", b)) for q in range(4)]
        return L + [(f"ds_read_b128 {vr(DG[b&1],4)}, v13 offset:{1024*b}", ("s", b))]
    def rdW(ks):
        return [(f"ds_read_b64_tr_b16 {vr(WF[ks&1]+4*g+2*st,2)}, v{(10, 12)[g]} offset:{2048*ks+1024*st}", ("w", ks)) for g in range(2) for st in range(2)]
    def SMF(b): return f"v_smfmac_f32_32x32x32_bf16 {vr(DH[b&1],16)}, {vr(DG[b&1],4)}, {vr(AF+8*b,8)}, v14"
    def CVT(b): return [f"v_cvt_pk_bf16_f32 v{AF+8*b+r}, v{DH[b&1]+2*r}, v{DH[b&1]+2*r+1}" for r in range(8)]
    for isV in (0, 1):
        if isV: a("La_vwg:")
        vm.reset(); lg.reset()
        XL = rot_loads(a, vm, 52, AF, "xn", 2)
        def xn_issue(n):
            for _ in range(n):
                r = next(XL, None)
                if r: vm.op(*r[1])
        def MM(ks):
            f = AF + 4*ks; w = WF[ks & 1]
            if isV: return [f"v_mfma_f32_32x32x16_bf16 {vr(ACC[1+g],16)}, {vr(f,4)}, {vr(w+4*g,4)}, {vr(ACC[1+g],16)}" for g in range(2)]
            return [f"v_mfma_f32_32x32x16_bf16 {vr(ACC[1+g],16)}, {vr(w+4*g,4)}, {vr(f,4)}, {vr(ACC[1+g],16)}" for g in range(2)]
        xn_issue(OPT.get("xn0", 8))
        a("s_barrier")
        xn_issue(10 - OPT.get("xn0", 8))
        for x in rdS(0) + rdS(1): lg.op(*x)
        lg.wait(("s", 0)); vm.wait(("xn", 0))
        a(SMF(0))
        for x in rdW(0): lg.op(*x)
        xn_issue(2)
        a("s_nop 5")
        for x in CVT(0): a(x)
        stamp(a, 2)
        for b in range(16):
            nx = b + 1 < 16
            if nx:
                lg.wait(("s", b+1)); vm.wait(("xn", b+1))
                a(SMF(b+1))
            for x in rdW(2*b+1): lg.op(*x)
            lg.wait(("w", 2*b))
            M = MM(2*b); Rs = rdS(b+2) if b + 2 < 16 else []
            a(M[0]); [lg.op(*x) for x in Rs]
            a(M[1]); xn_issue(3)
            if b == OPT.get("b2b", 6): a("s_barrier")
            lg.wait(("w", 2*b+1))
            M = MM(2*b+1); C = CVT(b+1) if nx else []; Rw = rdW(2*b+2) if nx else []
            a(M[0]); [lg.op(*x) for x in Rw]; [a(x) for x in C[:3]]
            a(M[1]); [a(x) for x in C[3:]]
            if b < 15: stamp(a, b, 6)
        if not isV:
            a(f"s_add_u32 s54, s54, {hex(WS_K)}")
            a(f"v_and_b32 v5, 0x33, v{vLANE}\nv_bfe_u32 v6, v{vLANE}, 2, 1\nv_lshl_add_u32 v5, v6, 3, v5\nv_bfe_u32 v6, v{vLANE}, 3, 1\nv_lshl_add_u32 v5, v6, 2, v5\nv_lshlrev_b32 v5, 4, v5")
            for h in range(4):
                for r in range(4): a(f"v_cvt_pk_bf16_f32 v{112+4*h+r}, v{ACC[1]+8*h+2*r}, v{ACC[1]+8*h+2*r+1}")
                vm.op(f"buffer_store_dwordx4 {vr(112+4*h,4)}, v5, {S['ws']}, s54 offen sc1")
                if h < 3: a("s_add_u32 s54, s54, 65536")
            a("s_branch La_kvd")
        else:
            a(f"s_add_u32 s54, s54, {hex(WS_V)}")
            a(f"v_and_b32 v6, 15, v{vLANE}\nv_lshlrev_b32 v6, 4, v6\nv_bfe_u32 v7, v{vLANE}, 5, 1\nv_lshl_add_u32 v6, v7, 8, v6\nv_bfe_u32 v7, v{vLANE}, 4, 1\nv_lshl_add_u32 v6, v7, 16, v6")
            for h in range(4):
                for r in range(4): a(f"v_cvt_pk_bf16_f32 v{112+4*h+r}, v{ACC[1]+8*h+2*r}, v{ACC[1]+8*h+2*r+1}")
                vm.op(f"buffer_store_dwordx4 {vr(112+4*h,4)}, v6, {S['ws']}, s54 offen offset:{512*(h&1)} sc1")
                if h == 1: a("s_add_u32 s54, s54, 131072")
    a("La_kvd:")
    stamp(a, 3)
    a(f"s_lshl_b32 s57, s{sW}, 10\ns_add_u32 s57, s57, {L_QX}\nv_add_u32 v7, s57, v{vL16}")
    a(f"s_lshl_b32 s58, s{sC}, 6\ns_add_u32 s58, s58, s{sT32}")
    flag_off(a, 51, 58, WS_FKV)
    tr_addr(a, 10, 12, True, 6, False)
    a(f"v_add_u32 v10, {L_WQ}, v10")
    a("s_barrier")
    WQ = [96, 100, 104, 108]
    early, late = att_setup(); fill = early + late; assert len(early) >= 12*5
    def rdQ(ks): return [(f"ds_read_b64_tr_b16 {vr(WQ[ks&3]+2*st,2)}, v10 offset:{1024*ks+512*st}", ("q", ks)) for st in range(2)]
    lg.reset()
    for x in rdQ(0) + rdQ(1) + rdQ(2): lg.op(*x)
    for ks in range(32):
        if ks + 3 < 32: [lg.op(*x) for x in rdQ(ks+3)]
        lg.wait(("q", ks))
        a(f"v_mfma_f32_32x32x16_bf16 {vr(ACC[0],16)}, {vr(WQ[ks&3],4)}, {vr(AF+4*ks,4)}, {vr(ACC[0],16)}")
        if ks == OPT.get("kvflag", 8): set_flag(a, vm, "s51", vZ, 8)
        else:
            for x in fill[:6]: a(x)
            fill = fill[6:]
    for x in fill: a(x)
    a(f"s_mov_b32 s53, {hx(0.25*LOG2E)}")
    for r in range(16): a(f"v_mul_f32 v{ACC[0]+r}, s53, v{ACC[0]+r}")
    for r in range(8): a(f"v_cvt_pk_bf16_f32 v{96+r}, v{ACC[0]+2*r}, v{ACC[0]+2*r+1}")
    a("ds_write_b128 v7, v[96:99]\nds_write_b128 v7, v[100:103] offset:4096")
    if OPT.get("qj", 1):
        a(f"v_mov_b32 v9, {L_SCR+264}\nv_mov_b32 v10, 1\ns_waitcnt lgkmcnt(0)\ns_mov_b64 exec, 1\nds_add_u32 v9, v10\ns_mov_b64 exec, -1")
        att_first(a, vm, OPT.get("fk", 0))
        q_join(a); att_q(a)
    else:
        a("s_waitcnt lgkmcnt(0)\ns_barrier")
        att_q(a)
        att_first(a, vm, OPT.get("fk", 0))

def active2(a):
    vm = Track(a, "vmcnt", 63); lg = Track(a, "lgkmcnt", 15)
    sT32, AF = 67, 128
    if OPT.get("ap", 1) & 1: a("s_setprio 1")
    ACC, WF, XR, GA, G2, XF = 16, [96, 100, 104, 108], vXR, 48, 64, 80
    a(f"s_getreg_b32 s50, hwreg(HW_REG_XCC_ID)\ns_and_b32 s50, s50, 15\ns_lshl_b32 s50, s50, 1\ns_add_u32 s50, s50, s{sTAG}\nv_cmp_ne_u32 vcc, s50, v{vXR+8}\nv_bfe_u32 v9, v{vLANE}, 5, 1\ns_cmp_eq_u64 vcc, 0\ns_cselect_b32 s{sLOC}, 1, 0")
    for q in range(4):
        for h in range(2): a(f"v_lshlrev_b32 v{XF+4*q+2*h}, 16, v{XR+2*q+h}\nv_and_b32 v{XF+4*q+2*h+1}, 0xffff0000, v{XR+2*q+h}")
    a(f"s_lshl_b32 s57, s{sT32}, 15\ns_lshl_b32 s58, s{sC}, 11\ns_add_u32 s57, s57, s58\ns_add_u32 s58, s57, {hex(WS_Y)}\ns_add_u32 s57, s57, {hex(WS_X1)}")
    a(f"s_lshl_b32 s54, s{sC}, 14\ns_lshl_b32 s55, s{sT32}, 8\ns_add_u32 s54, s54, s55\ns_add_u32 s54, s54, {hex(WS_STATS)}")
    a(f"s_lshl_b32 s55, s{sT32}, 4\ns_add_u32 s55, s55, s{sC}")
    flag_off(a, 56, 55, WS_FX1, LF())
    a(f"s_lshl_b32 s55, s{sT32}, {11-LF()}\ns_add_u32 s55, s55, {hex(WS_FX1)}")
    tr_addr(a, 10, 11, True, 6, False)
    for r in range(16): a(f"v_mov_b32 v{ACC+r}, 0")
    poll_addr(a, 5, LF())
    a(f"s_lshl_b32 s52, s{sT32}, {12-LF()}\ns_add_u32 s52, s52, {hex(WS_FO)}")
    stamp(a, 6, 8)
    set_flag(a, vm, "s64", vZ, 8, RO())
    stamp(a, 7); stamp(a, 7, 8)
    if OPT.get("b5e", 0):
        a(f"s_sleep {OPT['b5e']}")
        sig_regs(a, 126, 127); sig(a, "b5b", 126, 127)
    poll(a, vm, "0xffffffff", 5, "s52", 11, OPT.get("fo", 25) - OPT.get("b5e", 0))
    stamp(a, 8); stamp(a, 0, 2)
    a(f"s_lshl_b32 s52, s{sT32}, 15\ns_add_u32 s52, s52, {hex(WS_O)}")
    OL = rot_loads(a, vm, 52, AF, "o")
    for _ in range(OPT.get("b5b", 12)): vm.op(*next(OL)[1])
    if not OPT.get("b5e", 0): sig_regs(a, 126, 127); sig(a, "b5b", 126, 127)
    for _ in range(12 - OPT.get("b5b", 12)): vm.op(*next(OL)[1])
    a(f"v_lshlrev_b32 v6, 2, v{vLANE}\nv_lshlrev_b32 v5, 4, v9\nv_add_u32 v5, {L_GA}, v5")
    def rdWo(ks): return [(f"ds_read_b64_tr_b16 {vr(WF[ks&3]+2*st,2)}, v10 offset:{L_WO+1024*ks+512*st}", ("w", ks)) for st in range(2)]
    lg.reset()
    for x in rdWo(0) + rdWo(1) + rdWo(2): lg.op(*x)
    for ks in range(32):
        if ks + 3 < 32:
            for x in rdWo(ks+3): lg.op(*x)
        if ks == 28:
            lg.wait(("w", 31))
            a("s_barrier")
            for q in range(4): a(f"ds_read_b128 {vr(GA+4*q,4)}, v5 offset:{32*q}")
            for q in range(4): a(f"ds_read_b128 {vr(G2+4*q,4)}, v5 offset:{128+32*q}")
        lg.wait(("w", ks)); vm.wait(("o", ks))
        a(f"v_mfma_f32_32x32x16_bf16 {vr(ACC,16)}, {vr(WF[ks&3],4)}, {vr(AF+4*ks,4)}, {vr(ACC,16)}")
        if ks + 12 < 32: vm.op(*next(OL)[1])
        if ks == 19 and OPT.get("early", 0): sig(a, "b5c", 126, 127, lg)
        if ks % 4 == 0 or ks == 31: stamp(a, 1 + (ks+1)//4, 2)
    stamp(a, 10, 2)
    a("s_waitcnt lgkmcnt(4)")
    for r in range(16): a(f"v_fmac_f32 v{XF+r}, v{ACC+r}, v{GA+r}")
    a("s_waitcnt lgkmcnt(0)")
    for r in range(16): a(f"v_mul_f32 v{ACC+r}, v{XF+r}, v{G2+r}")
    for r in range(8): a(f"v_cvt_pk_bf16_f32 v{32+r}, v{ACC+2*r}, v{ACC+2*r+1}")
    vm.op(f"buffer_store_dwordx4 v[32:35], v{vL16}, {S['ws']}, s58 offen{RY()}"); vm.op(f"buffer_store_dwordx4 v[36:39], v{vL16}, {S['ws']}, s58 offen offset:1024{RY()}")
    a(f"v_pk_add_f32 v[48:49], {vr(XF,2)}, {vr(XF+2,2)}\nv_pk_mul_f32 v[50:51], {vr(XF,2)}, {vr(XF,2)}\nv_pk_fma_f32 v[50:51], {vr(XF+2,2)}, {vr(XF+2,2)}, v[50:51]")
    for r in range(4, 16, 2): a(f"v_pk_add_f32 v[48:49], v[48:49], {vr(XF+r,2)}\nv_pk_fma_f32 v[50:51], {vr(XF+r,2)}, {vr(XF+r,2)}, v[50:51]")
    a("v_add_f32 v48, v48, v49\nv_add_f32 v49, v50, v51")
    for r in range(8): a(f"v_cvt_pk_bf16_f32 v{40+r}, v{XF+2*r}, v{XF+2*r+1}")
    a("v_permlane32_swap_b32 v48, v49\nv_add_f32 v48, v48, v49")
    vm.op(f"buffer_store_dword v48, v6, {S['ws']}, s54 offen{RY()}")
    vm.op(f"buffer_store_dwordx4 v[40:43], v{vL16}, {S['ws']}, s57 offen sc1"); vm.op(f"buffer_store_dwordx4 v[44:47], v{vL16}, {S['ws']}, s57 offen offset:1024 sc1")
    stamp(a, 11, 2)
    ACC, WF, WH, ST = 16, [80, 92, 104], [116, 120], 240
    vF, vH = [10, 11, 12, 13], [4, 7, 14, 15]
    tr_addr(a, 10, 11, True, 6, False)
    a(f"v_add_u32 v10, {L_W1}, v10\nv_add_u32 v11, 0x8000, v10\nv_add_u32 v12, 0x10000, v10\nv_add_u32 v13, 0x18000, v10")
    half_tr_addr(a, 4, 7)
    a(f"v_add_u32 v4, {L_W1}, v4\nv_add_u32 v7, 0x8000, v4\nv_add_u32 v14, 0x10000, v4\nv_add_u32 v15, 0x18000, v4")
    a(f"v_and_b32 v8, 16, v0\nv_cmp_eq_u32 vcc, 0, v8\nv_mov_b32 v8, 0xeeeeeeee\nv_mov_b32 v5, 0x44444444\nv_cndmask_b32 v8, v8, v5, vcc")
    for r in range(64): a(f"v_mov_b32 v{ACC+r}, 0")
    poll_addr(a, 5, LF())
    set_flag_rg(a, vm, "s56", 9)
    stamp(a, 9); stamp(a, 12, 2)
    poll(a, vm, "0xffff", 5, "s55", 125, OPT.get("fx", 4))
    stamp(a, 10); stamp(a, 0, 3)
    a(f"s_lshl_b32 s52, s{sT32}, 15\ns_add_u32 s52, s52, {hex(WS_Y)}")
    a(f"s_lshl_b32 s54, s{sT32}, 8\ns_add_u32 s54, s54, {hex(WS_STATS)}")
    YL = rot_loads(a, vm, 52, AF, "y")
    for _ in range(4): vm.op(*next(YL)[1])
    for q in range(16):
        vm.op(f"buffer_load_dword v{ST+q}, v6, {S['ws']}, s54 offen sc1", "st"); a("s_add_u32 s54, s54, 16384")
    for _ in range(8): vm.op(*next(YL)[1])
    lg.reset()
    def rdW1(ks): return [(x, ("w", ks)) for x in w1_reads(ks//2, ks & 1, WF[ks % 3], vF)]
    for x in rdW1(0) + rdW1(1): lg.op(*x)
    TT, UB = 128, 184
    side = {}
    side[(6, 0)] = ["v_mov_b32 v125, v124", f"v_bfe_u32 v5, v{vLANE}, 5, 1", "v_lshlrev_b32 v9, 7, v5", "v_permlane32_swap_b32 v124, v125"]
    side[(6, 1)] = [f"v_add_u32 v9, {L_UW}, v9", f"v_mul_f32 v124, {hx(1/512)}, v124", f"v_mul_f32 v125, {hx(1/512)}, v125", "v_fma_f32 v125, -v124, v124, v125"]
    side[(6, 2)] = ["v_max_f32 v125, 0, v125", f"v_add_f32 v125, {hx(1e-5)}, v125", "v_rsq_f32 v125, v125"]
    side[(7, 0)] = [f"v_mul_f32 v5, {hx(-LOG2E)}, v125", "v_mul_f32 v125, v5, v124", "v_sub_f32 v125, 0, v125", "v_mov_b32 v124, v5"]
    side[(7, 1)] = [f"s_lshl_b32 s55, s{sT32}, 4", f"s_add_u32 s55, s55, s{sC}", f"s_lshr_b32 s50, s55, {LF()}", "s_lshl_b32 s50, s50, 7", f"s_and_b32 s56, s55, {(1 << LF()) - 1}"]
    side[(7, 2)] = ["s_lshl_b32 s56, s56, 2", "s_add_u32 s56, s56, s50", f"s_add_u32 s56, s56, {hex(WS_FH)}"]
    side[(12, 0)] = [f"s_mul_i32 s52, s{sT32}, {112*1024}", f"s_mul_i32 s53, s{sC}, 7168", "s_add_u32 s52, s52, s53", f"s_add_u32 s52, s52, {hex(WS_H)}"]
    if ONEWAY(): side[(13, 2)] = ["uwrd"]; side[(15, 1)] = ["uwck"]
    for m in range(7):
        ks = 16 + 2*m
        rw = lambda j: f"ds_read_b128 {vr(TT+4*j,4)}, v9 offset:{256*(j//4)+64+16*(j%4)}"
        ru = lambda j: f"ds_read_b128 {vr(UB+4*(j&1),4)}, v9 offset:{256*(j//4)+16*(j%4)}"
        fm = lambda j: [f"v_fmac_f32 v{TT+4*j+r}, v125, v{UB+4*(j&1)+r}" for r in range(4)]
        side.setdefault((ks+2, 1), []).extend([f"wait{ks+1}"] + fm(2*m))
        side.setdefault((ks+2, 2), []).extend(fm(2*m+1))
        side.setdefault((ks, 2), []).append(rw(2*m))
        side.setdefault((ks+1, 2), []).extend([ru(2*m), rw(2*m+1), ru(2*m+1)])
    for kp in range(16):
        for e in range(2):
            ks = 2*kp + e
            R = rdW1(ks+2) if ks + 2 < 32 else []
            if e == 0: R = [(x, ("h", kp)) for x in w1_half_reads(kp, WH[kp & 1], vH)] + R
            lg.wait(("w", ks)); vm.wait(("y", ks))
            for nt in range(3):
                a(f"v_mfma_f32_32x32x16_bf16 {vr(ACC+16*nt,16)}, {vr(WF[ks%3]+4*nt,4)}, {vr(AF+4*ks,4)}, {vr(ACC+16*nt,16)}")
                [lg.op(*x) for x in R[3*nt:3*nt+3]]
                if nt >= 1:
                    j = 12 + 2*ks + nt - 1
                    if j < 32: vm.op(*next(YL)[1])
                if ks in (4, 5):
                    for q in (((0, 8), (1, 9), (2, 10)), ((3, 11), (4, 12), (5, 13)), ((6, 14), (7, 15)))[nt] if ks == 4 else (((0, 4), (1, 5), (2, 6), (3, 7)), ((0, 2), (1, 3)), ())[nt]:
                        a(f"v_add_f32 v{ST+q[0]}, v{ST+q[0]}, v{ST+q[1]}")
                    if ks == 5 and nt == 2: a(f"v_add_f32 v124, v{ST}, v{ST+1}")
                for x in side.get((ks, nt), []):
                    if x.startswith("ds_"): lg.op(x, ("u", ks))
                    elif x.startswith("wait"): lg.wait(("u", int(x[4:])))
                    elif x == "uwrd": lg.op(f"ds_read_b32 v5, v126 offset:{4*CNT['uw']}", "cnt")
                    elif x == "uwck": lg.wait("cnt"); await_(a, "uw", 126, 5, True)
                    else: a(x)
            if e == 1:
                lg.wait(("h", kp))
                a(f"v_smfmac_f32_32x32x32_bf16 {vr(ACC+48,16)}, {vr(WH[kp&1],4)}, {vr(AF+8*kp,8)}, v8")
                if kp % 2 == 0 or kp == 15: stamp(a, 1 + (kp+1)//2, 3)
                if kp == OPT.get("b6b", 4): sig(a, "b6b", 126, 127, lg)
    sig(a, "b7", 126, 127)
    stamp(a, 11)
    E = 80
    for r in range(8): a(f"v_add_f32 v{ACC+48+r}, v{ACC+48+r}, v{ACC+56+r}")
    for nt in range(4):
        t = TT + 16*nt; acc = ACC + 16*nt; n = 16 if nt < 3 else 8
        for r in range(0, n, 2): a(f"v_pk_fma_f32 {vr(acc+r,2)}, {vr(acc+r,2)}, v[124:125], {vr(t+r,2)} op_sel:[0,0,0] op_sel_hi:[1,0,1]")
        for r in range(n): a(f"v_exp_f32 v{E+r}, v{acc+r}")
        for r in range(0, n, 2): a(f"v_pk_add_f32 {vr(E+r,2)}, {vr(E+r,2)}, 1.0 op_sel_hi:[1,0]")
        for r in range(n): a(f"v_rcp_f32 v{E+r}, v{E+r}")
        for r in range(0, n, 2): a(f"v_pk_mul_f32 {vr(acc+r,2)}, {vr(acc+r,2)}, {vr(E+r,2)}")
        o = 208 + 8*nt
        for r in range(n//2): a(f"v_cvt_pk_bf16_f32 v{o+r}, v{acc+2*r}, v{acc+2*r+1}")
        if nt == 2: a("s_add_u32 s52, s52, 4096")
        vm.op(f"buffer_store_dwordx4 {vr(o,4)}, v{vL16}, {S['ws']}, s52 offen offset:{2048*(nt&1)}{RG()}")
        if nt < 3: vm.op(f"buffer_store_dwordx4 {vr(o+4,4)}, v{vL16}, {S['ws']}, s52 offen offset:{2048*(nt&1)+1024}{RG()}")
        stamp(a, 10 + nt, 3)
        if nt == 1: vm.q = [("ha", 0)]*len(vm.q)
        if nt == OPT.get("fa", 2) and OPT.get("h2", 0):
            vm.wait(("ha", 0))
            a(f"v_mov_b32 v9, s{sTAG}\ns_mov_b64 exec, 1")
            vm.op(f"buffer_store_dword v9, v{vZ}, {S['ws']}, s56 offen sc1")
            a(f"s_mov_b64 exec, -1\ns_add_u32 s56, s56, {FH_B}")
    stamp(a, 14, 3)
    ACC, WF, GB, XR, NR = [16, 32], [48, 56, 88], 64, 80, 32
    sTT, sKH, sT5, sF5 = 54, 55, 57, 58
    a(f"s_and_b32 s{sTT}, s{sW}, 1\ns_lshr_b32 s{sKH}, s{sW}, 1")
    a(f"s_lshr_b32 s52, s{sC}, 3\ns_lshl_b32 s52, s52, 1\ns_lshl_b32 s{sT5}, s{sTB}, 2\ns_add_u32 s{sT5}, s{sT5}, s52\ns_add_u32 s{sT5}, s{sT5}, s{sTT}")
    a(f"s_and_b32 s{sF5}, s{sC}, 7\ns_lshl_b32 s{sF5}, s{sF5}, 1\ns_add_u32 s{sF5}, s{sF5}, s{sKH}")
    tr_addr(a, 10, 11, True, 7, True)
    a(f"s_lshl_b32 s52, s{sKH}, 6\nv_xor_b32 v10, s52, v10\ns_lshl_b32 s52, s{sKH}, 13\nv_add_u32 v10, s52, v10\nv_xor_b32 v11, 64, v10")
    for r in range(32): a(f"v_mov_b32 v{16+r}, 0")
    poll_addr(a, 5, LF())
    a(f"s_lshl_b32 s52, s{sT5}, {11-LF()}\ns_lshl_b32 s53, s{sKH}, {10-LF()}\ns_add_u32 s52, s52, s53\ns_add_u32 s52, s52, {hex(WS_FH)}")
    a(f"s_lshl_b32 s61, s{sT5}, 15\ns_lshl_b32 s59, s{sF5}, 11\ns_add_u32 s61, s61, s59\ns_add_u32 s61, s61, {hex(WS_X1)}")
    H2 = OPT.get("h2", 0)
    a(f"s_add_u32 s62, s52, {FH_B}")
    if H2:
        a(f"s_mov_b64 exec, 0xff")
        vm.op(f"buffer_load_dword v6, v5, {S['ws']}, s52 offen sc1", "fa")
        a("s_mov_b64 exec, -1")
        set_flag_rg(a, vm, "s56", 9)
        stamp(a, 12)
        a(f"s_mov_b64 exec, 0xff\nv_cmp_ne_u32 vcc, s{sTAG}, v6\ns_mov_b64 exec, -1\ns_cbranch_vccz La_haok")
        poll(a, vm, "0xff", 5, "s52", 6, 2)
        a("La_haok:")
        vm.q = [None]
    else:
        set_flag_rg(a, vm, "s56", 9)
        stamp(a, 12)
        poll(a, vm, "0xff", 5, "s52", 6, OPT.get("fh", 4))
    stamp(a, 13); stamp(a, 0, 4)
    a(f"s_mul_i32 s52, s{sT5}, {112*1024}\ns_mul_i32 s53, s{sKH}, {56*1024}\ns_add_u32 s52, s52, s53\ns_add_u32 s52, s52, {hex(WS_H)}")
    def ldH(ks):
        p, j = h_pj(ks)
        if j in (0, 4): a(f"s_add_u32 s53, s{sR}, {p}\ns_and_b32 s53, s53, 7\ns_mul_i32 s53, s53, 7168\ns_add_u32 s53, s53, s52" + ("\ns_add_u32 s53, s53, 4096" if j else ""))
        vm.op(f"buffer_load_dwordx4 {vr(AF+4*(ks%NR),4)}, v{vL16}, {S['ws']}, s53 offen offset:{1024*(j%4)}{RL()}", ("h", ks))
    PF = OPT.get('pf5', 12)
    for ks in range(PF):
        ldH(ks)
        if ks == 7: a("s_barrier")
    slot = lambda s: s if s < 9 else s - 9
    def rdW2(ks):
        s, k = ks // 4, ks % 4
        return [(f"ds_read_b64_tr_b16 {vr(WF[ks%3]+4*n+2*st,2)}, v{12+n} offset:{2048*k+1024*st}", ("w", ks)) for n in range(2) for st in range(2)]
    def setslot(s): a(f"v_add_u32 v12, {16384*slot(s)}, v10\nv_add_u32 v13, {16384*slot(s)}, v11")
    lg.reset(); setslot(0)
    for x in rdW2(0) + rdW2(1): lg.op(*x)
    for ks in range(56):
        n = ks + 2
        lg.wait(("w", ks))
        if ks in (11, 19): sig(a, "b9" if ks == 11 else "b10", 126, 127, lg)
        if ONEWAY() and n + 2 in (36, 48): lg.op(f"ds_read_b32 v125, v126 offset:{4*CNT['b11' if n + 2 == 36 else 'b12']}", "cnt")
        if n < 56 and n % 4 == 0:
            if n // 4 in (9, 12):
                lg.wait("cnt"); await_(a, "b11" if n == 36 else "b12", 126, 125, True)
            setslot(n // 4)
        vm.wait(("h", ks))
        a(f"v_mfma_f32_32x32x16_bf16 {vr(ACC[0],16)}, {vr(WF[ks%3],4)}, {vr(AF+4*(ks%NR),4)}, {vr(ACC[0],16)}")
        if n < 56: [lg.op(*x) for x in rdW2(n)]
        a(f"v_mfma_f32_32x32x16_bf16 {vr(ACC[1],16)}, {vr(WF[ks%3]+4,4)}, {vr(AF+4*(ks%NR),4)}, {vr(ACC[1],16)}")
        if H2 and ks == OPT.get("fb", 10):
            a("s_mov_b64 exec, 0xff"); vm.op(f"buffer_load_dword v6, v5, {S['ws']}, s62 offen sc1", "fb"); a("s_mov_b64 exec, -1")
        if H2 and ks + PF == 32:
            vm.wait("fb")
            a(f"s_mov_b64 exec, 0xff\nv_cmp_ne_u32 vcc, s{sTAG}, v6\ns_mov_b64 exec, -1\ns_cbranch_vccz La_hbok")
            q0 = list(vm.q)
            poll(a, vm, "0xff", 5, "s62", 6, 0)
            vm.q = q0
            a("La_hbok:")
        if ks + PF < 56: ldH(ks + PF)
        if ks == 44:
            for q in range(2): vm.op(f"buffer_load_dwordx4 {vr(XR+4*q,4)}, v{vL16}, {S['ws']}, s61 offen offset:{1024*q} sc1", "x1")
        if ks % 4 == 3: stamp(a, 1 + ks//4, 4)
    stamp(a, 14)
    vm.wait("x1")
    a(f"s_xor_b32 s52, s{sW}, 2\ns_lshl_b32 s52, s52, 12\ns_add_u32 s52, s52, {16384*5}\nv_add_u32 v5, s52, v{vL16}")
    a(f"s_lshl_b32 s52, s{sW}, 12\ns_add_u32 s52, s52, {16384*5}\nv_add_u32 v6, s52, v{vL16}")
    a(f"v_bfe_u32 v9, v{vLANE}, 5, 1\nv_lshlrev_b32 v7, 4, v9\ns_lshl_b32 s52, s{sKH}, 7\ns_add_u32 s52, s52, {L_GB}\nv_add_u32 v7, s52, v7")
    for q in range(4): a(f"ds_read_b128 {vr(GB+4*q,4)}, v7 offset:{32*q}")
    XF = 96
    for r in range(8): a(f"v_lshlrev_b32 v{XF+2*r}, 16, v{XR+r}\nv_and_b32 v{XF+2*r+1}, 0xffff0000, v{XR+r}")
    for q in range(4): a(f"ds_write_b128 v5, {vr(ACC[1]+4*q,4)} offset:{1024*q}")
    a("s_waitcnt lgkmcnt(0)\ns_barrier")
    for q in range(4): a(f"ds_read_b128 {vr(ACC[1]+4*q,4)}, v6 offset:{1024*q}")
    a(f"v_and_b32 v7, 31, v{vLANE}\nv_lshlrev_b32 v8, 10, v7\nv_lshl_add_u32 v8, v9, 4, v8")
    a(f"s_lshl_b32 s52, s{sT5}, 15\ns_lshl_b32 s53, s{sF5}, 6\ns_add_u32 s52, s52, s53")
    for q in range(4):
        a(f"s_waitcnt lgkmcnt({3-q})")
        for r in range(4*q, 4*q+4): a(f"v_add_f32 v{ACC[0]+r}, v{ACC[0]+r}, v{ACC[1]+r}")
        for r in range(4*q, 4*q+4): a(f"v_fmac_f32 v{XF+r}, v{ACC[0]+r}, v{GB+r}")
    for r in range(8): a(f"v_cvt_pk_bf16_f32 v{64+r}, v{XF+2*r}, v{XF+2*r+1}")
    ofl = ['', ' sc1', ' nt', ' sc0 sc1', ' sc1 nt'][OPT.get('osc', 0)]
    if OPT.get("otr", 0):
        a(f"s_mul_i32 s53, s{sW}, 2560\ns_add_u32 s53, s53, {16384*6}\nv_mul_u32_u24 v5, 80, v7\nv_lshl_add_u32 v5, v9, 4, v5\nv_add_u32 v5, s53, v5")
        a(f"v_lshrrev_b32 v6, 2, v{vLANE}\nv_and_b32 v7, 3, v{vLANE}\nv_lshlrev_b32 v8, 10, v6\nv_lshl_add_u32 v8, v7, 4, v8\nv_mul_u32_u24 v6, 80, v6\nv_lshl_add_u32 v6, v7, 4, v6\nv_add_u32 v6, s53, v6")
        for p in range(2):
            a(f"v_permlane32_swap_b32 v{64+4*p}, v{64+4*p+2}\nv_permlane32_swap_b32 v{64+4*p+1}, v{64+4*p+3}")
            a(f"ds_write_b128 v5, {vr(64+4*p,4)} offset:{32*p}")
        a("s_add_u32 s53, s52, 16384\ns_waitcnt lgkmcnt(0)")
        for p in range(2): a(f"ds_read_b128 {vr(72+4*p,4)}, v6 offset:{1280*p}")
        for p in range(2):
            a(f"s_waitcnt lgkmcnt({1-p})")
            vm.op(f"buffer_store_dwordx4 {vr(72+4*p,4)}, v8, {S['out']}, s{52+p} offen{ofl}")
    else:
        for p in range(2):
            a(f"v_permlane32_swap_b32 v{64+4*p}, v{64+4*p+2}\nv_permlane32_swap_b32 v{64+4*p+1}, v{64+4*p+3}")
            vm.op(f"buffer_store_dwordx4 {vr(64+4*p,4)}, v8, {S['out']}, s52 offen offset:{32*p}{ofl}")

def wq_loop(a):
    a(f"v_lshrrev_b32 v4, 2, v{vLANE}\nv_mul_u32_u24 v4, 3072, v4\nv_and_b32 v5, 3, v{vLANE}\nv_lshl_add_u32 v4, v5, 4, v4")
    a(f"s_lshl_b32 s55, s{sR}, 2\ns_add_u32 s55, s55, s67\ns_lshl_b32 s53, s67, 10\ns_add_u32 s53, s53, {L_WQ}\ns_lshl_b32 s56, s{sC}, 6\ns_mov_b32 s51, 8\nLh_ql:")
    a(f"s_and_b32 s52, s55, 31\ns_mul_i32 s52, s52, {16*3072}\ns_mov_b32 m0, s53\ns_add_u32 s52, s52, s56")
    a(f"buffer_load_dwordx4 v4, {S['wqkv']}, s52 offen lds")
    a(f"s_add_u32 s55, s55, 4\ns_add_u32 s53, s53, 4096\ns_sub_u32 s51, s51, 1\ns_cmp_lg_u32 s51, 0\ns_cbranch_scc1 Lh_ql")

def helper(a):
    vm = Track(a, "vmcnt", 63)
    sH, sCol = 67, 66
    a("Lh_b2:")
    a("s_waitcnt vmcnt(0) lgkmcnt(0)\ns_barrier")
    if OPT.get("whalf", 0):
        a(f"s_add_u32 s55, s{sH}, {4*OPT['whalf']}\ns_mov_b32 s51, {8-OPT['whalf']}\ns_mov_b32 s56, s59\ns_mov_b32 s57, s60")
        wkv_loop(a, "Lh_wl2")
    if OPT.get("st", 7) & 2:
        a(f"s_lshl_b32 s57, s2, 2\ns_add_u32 s57, s57, s{sH}\ns_lshl_b32 s58, s57, 9\ns_mul_i32 s57, s57, {5*128}\ns_add_u32 s57, s57, {9216*128}")
        for n in range(3): a(stouch("w1", 57, n))
    if OPT.get("whalf", 0): a("s_waitcnt vmcnt(0)")
    a("s_barrier")
    wq_loop(a)
    if OPT.get("st", 7) & 2:
        for n in range(3, 5): a(stouch("w1", 57, n))
        a(stouch("wo", 58, 0))
    a("s_waitcnt vmcnt(0)")
    if OPT.get("touch", 0) == 1: mall_touch(a)
    stamp(a, 2)
    a("s_barrier")
    if OPT.get("st", 7) & 2:
        for n in range(1, 4): a(stouch("wo", 58, n))
    early, late = att_setup()
    for x in early + late: a(x)
    if OPT.get("hearly", 1):
        att_first(a, vm, OPT.get("fkh", 24))
        if OPT.get("qj", 1): q_join(a)
        else: a("s_barrier")
        att_q(a)
    else:
        a("s_barrier")
        att_q(a)
        att_first(a, vm, OPT.get("fk", 0))

def helper2(a):
    vm = Track(a, "vmcnt", 63); lg = Track(a, "lgkmcnt", 15)
    sH = 67
    MF = OPT.get("mf", 0)
    if MF:
        a(f"s_sub_u32 s52, s{sI}, 8\ns_cmp_ge_u32 s52, 16\ns_cbranch_scc1 Lh_nomod1")
        mod_partial(a, vm, vMOD)
        if MF == 2: mod_join(a, vm, 66, "Lh_nomod1")
        a("Lh_nomod1:")
    stamp(a, 6, 8)
    set_flag(a, vm, "s64", vZ, 8, RO())
    stamp(a, 7); stamp(a, 7, 8)
    vF, vH = 13, 14
    a(f"s_sub_u32 s52, s{sI}, 8\ns_cmp_ge_u32 s52, 16\ns_cbranch_scc1 Lh_nomod2")
    if not MF: mod_partial(a, vm, vMOD)
    if MF < 2: mod_join(a, vm, 66, "Lh_nomod2")
    a("Lh_nomod2:")
    def w2_touch():
        a(f"s_mul_i32 s52, s{sI}, 7\ns_lshl_b32 s53, s{sH}, 1\ns_add_u32 s52, s52, s53\ns_lshl_b32 s52, s52, 13\nv_lshlrev_b32 v5, 7, v{vLANE}")
        a(f"buffer_load_dword v248, v5, {S['w2']}, s52 offen\ns_add_u32 s52, s52, 8192\nbuffer_load_dword v248, v5, {S['w2']}, s52 offen")
    if OPT.get("w2s") == 1: w2_touch()
    sig_regs(a, 12, 13)
    await_(a, "b5b", 12, 14)
    a(f"v_lshlrev_b32 v4, 5, v{vLANE}\ns_lshl_b32 s52, s{sH}, 11\ns_add_u32 s52, s52, 4096")
    gran_poll(a, vm, [f"buffer_load_dwordx4 v[16:19], v4, {S['ws']}, s52 offen sc1", f"buffer_load_dwordx4 v[20:23], v4, {S['ws']}, s52 offen offset:16 sc1"], [16, 20], OPT.get("ng2", 0))
    for j, r in enumerate((16, 18, 20, 22)): a(f"v_lshlrev_b32 v{24+2*j}, 16, v{r}\nv_and_b32 v{25+2*j}, 0xffff0000, v{r}")
    a(f"s_cmp_eq_u32 s{sH}, 1\ns_cbranch_scc1 Lh_tabg")
    a(f"s_cmp_eq_u32 s{sH}, 3\ns_cselect_b32 s53, {hx(-1/LOG2E)}, 1.0")
    a(f"s_lshl_b32 s54, s{sC}, 2\ns_and_b32 s55, s{sC}, 7\ns_lshl_b32 s55, s55, 3\ns_lshl_b32 s56, s{sH}, 6\ns_cmp_eq_u32 s{sH}, 3\ns_cselect_b32 s54, s55, s54\ns_cselect_b32 s55, 8, 4")
    a(f"s_cselect_b32 s56, 256, s56\ns_add_u32 s56, s56, {L_TAB}")
    for r in range(8): a(f"v_mul_f32 v{24+r}, s53, v{24+r}")
    a(f"v_subrev_u32 v5, s54, v{vLANE}\nv_cmp_gt_u32 vcc, s55, v5\nv_lshlrev_b32 v5, 5, v5\nv_add_u32 v5, s56, v5")
    a("s_and_saveexec_b64 s[56:57], vcc\nds_write_b128 v5, v[24:27]\nds_write_b128 v5, v[28:31] offset:16\ns_mov_b64 exec, -1")
    a(f"s_cmp_lg_u32 s{sH}, 2\ns_cbranch_scc1 Lh_tabd")
    a("Lh_tabg:")
    a(f"v_lshrrev_b32 v5, 1, v{vLANE}\ns_lshl_b32 s53, s{sR}, 2\nv_subrev_u32 v5, s53, v5\nv_and_b32 v5, 31, v5\nv_lshlrev_b32 v5, 6, v5\nv_and_b32 v6, 1, v{vLANE}\nv_lshl_add_u32 v5, v6, 3, v5")
    a(f"s_and_b32 s53, s{sH}, 1\ns_lshl_b32 s53, s53, 4\ns_add_u32 s53, s53, {L_G}\nv_add_u32 v5, s53, v5")
    a("v_mov_b32 v17, v18\nv_mov_b32 v21, v22\nds_write_b64 v5, v[16:17]\nds_write_b64 v5, v[20:21] offset:32")
    a("Lh_tabd:")
    vW2 = 10
    a(f"v_lshrrev_b32 v{vW2}, 3, v{vLANE}\nv_lshlrev_b32 v{vW2}, 10, v{vW2}\nv_bfe_u32 v5, v{vLANE}, 4, 1\nv_lshlrev_b32 v5, 2, v5\nv_xor_b32 v5, v5, v{vLANE}\nv_and_b32 v5, 7, v5\nv_lshl_add_u32 v{vW2}, v5, 4, v{vW2}")
    a(f"s_lshl_b32 s58, s{sR}, 7\ns_lshl_b32 s59, s{sH}, 11")
    def w2_row(s):
        if s < 8:
            a(f"s_add_u32 s61, s{sR}, {s}\ns_and_b32 s61, s61, 7\ns_mul_i32 s61, s61, 7\ns_add_u32 s61, s61, s{sH}")
        else:
            a(f"s_add_u32 s60, s{sH}, {4*(s-8)}\ns_mul_i32 s61, s60, 43\ns_lshr_b32 s61, s61, 7\ns_mul_i32 s62, s61, 3\ns_sub_u32 s60, s60, s62")
            a(f"s_add_u32 s61, s61, s{sR}\ns_and_b32 s61, s61, 7\ns_mul_i32 s61, s61, 7\ns_add_u32 s61, s61, s60\ns_add_u32 s61, s61, 4")
        a("s_lshl_b32 s61, s61, 14\ns_add_u32 s61, s61, s58")
    NREG = OPT.get("nreg", 10); S0 = 14 - NREG; RB = 48
    def w2_reg(s):
        w2_row(s)
        for j in range(4):
            a(f"s_add_u32 s52, s61, {56*(j>>1)*16384+8192*(j&1)}")
            vm.op(f"buffer_load_dwordx4 {vr(RB+16*(s-S0)+4*j,4)}, v{vW2}, {S['w2']}, s52 offen", ("w2r", s))
    EARLY = list(range(14 - OPT.get("early", 0), 14))
    if EARLY:
        a("s_waitcnt lgkmcnt(0)"); await_(a, "b5c", 12, 14)
        for s_ in EARLY: w2_reg(s_)
    if OPT.get("w2s") == 2:
        a("s_waitcnt lgkmcnt(0)"); w2_touch()
    else: a("s_waitcnt lgkmcnt(0)")
    stamp(a, 8)
    a("s_barrier")
    def w2_stage(s, thr=None):
        sl = s if s < 9 else s - 9
        w2_row(s)
        for kh in range(2):
            for hf in range(2):
                a(f"s_add_u32 m0, s59, {16384*sl+8192*kh+1024*hf}\ns_add_u32 s52, s61, {56*kh*16384+8192*hf}")
                vm.op(f"buffer_load_dwordx4 v{vW2}, {S['w2']}, s52 offen lds", ("w2", s))
        if thr: vm.wait(("w2", s-1))
    W01 = OPT.get('w01', 2)
    if W01 == 0: w2_stage(0); w2_stage(1)
    ACC, GF, WF = 16, 32, 48
    a(f"v_bfe_u32 v9, v{vLANE}, 5, 1\nv_lshlrev_b32 v6, 5, v9\nv_and_b32 v5, 1, v{vLANE}\nv_lshl_add_u32 v6, v5, 4, v6\nv_add_u32 v6, {L_G}, v6")
    for r in range(16): a(f"v_mov_b32 v{ACC+r}, 0")
    GZ = OPT.get("gz", 1)
    for r in range(8): a(f"v_mov_b32 v{GF+r}, 0")
    a("s_mov_b32 s56, 3\ns_mov_b32 s57, 3")
    def rdG(e): a(("s_mov_b64 exec, s[56:57]\n" if GZ else "") + f"ds_read_b128 {vr(GF+4*e,4)}, v6 offset:{64*e}" + ("\ns_mov_b64 exec, -1" if GZ else ""))
    a(f"s_cmp_eq_u32 s{sH}, 3\ns_cbranch_scc1 Lh_uwh")
    tr_addr(a, 4, 5, True, 6, False)
    a(f"s_lshl_b32 s52, s{sH}, 10\ns_add_u32 s52, s52, {L_W1}\nv_add_u32 v4, s52, v4\ns_mov_b32 s51, 16")
    a("Lh_uwl:")
    for e in range(2):
        rdG(e)
        for st in range(2): a(f"ds_read_b64_tr_b16 {vr(WF+4*e+2*st,2)}, v4 offset:{3072*e+512*st}")
    a("v_add_u32 v4, 7168, v4\nv_add_u32 v6, 128, v6\ns_sub_u32 s51, s51, 1")
    for e in range(2):
        a(f"s_waitcnt lgkmcnt({3-3*e})")
        a(f"v_mfma_f32_32x32x16_bf16 {vr(ACC,16)}, {vr(WF+4*e,4)}, {vr(GF+4*e,4)}, {vr(ACC,16)}")
    a("s_cmp_lg_u32 s51, 0\ns_cbranch_scc1 Lh_uwl")
    a("s_branch Lh_uwd")
    a("Lh_uwh:")
    half_tr_addr(a, 4, 5)
    a(f"v_add_u32 v4, {L_W1+6144}, v4\ns_mov_b32 s51, 16")
    a(f"v_and_b32 v8, 16, v0\nv_cmp_eq_u32 vcc, 0, v8\nv_mov_b32 v8, 0xeeeeeeee\nv_mov_b32 v5, 0x44444444\nv_cndmask_b32 v8, v8, v5, vcc")
    a("Lh_uwhl:")
    for e in range(2): rdG(e)
    for st in range(2): a(f"ds_read_b64_tr_b16 {vr(WF+2*st,2)}, v4 offset:{256*st}")
    a("v_add_u32 v4, 7168, v4\nv_add_u32 v6, 128, v6\ns_sub_u32 s51, s51, 1\ns_waitcnt lgkmcnt(0)")
    a(f"v_smfmac_f32_32x32x32_bf16 {vr(ACC,16)}, {vr(WF,4)}, {vr(GF,8)}, v8")
    a("s_cmp_lg_u32 s51, 0\ns_cbranch_scc1 Lh_uwhl")
    a("s_nop 7\ns_nop 3")
    for r in range(8): a(f"v_add_f32 v{ACC+r}, v{ACC+r}, v{ACC+8+r}")
    a("Lh_uwd:")
    a(f"v_and_b32 v5, 1, v{vLANE}\nv_cmp_eq_u32 vcc, 1, v5\nv_mov_b32 v7, {hx(-LOG2E)}\nv_cndmask_b32 v7, 1.0, v7, vcc")
    a(f"v_lshlrev_b32 v6, 7, v9\nv_lshl_add_u32 v6, v5, 6, v6\ns_lshl_b32 s52, s{sH}, 8\ns_add_u32 s52, s52, {L_UW}\nv_add_u32 v6, s52, v6")
    a("s_nop 3")
    for r in range(16): a(f"v_mul_f32 v{ACC+r}, v{ACC+r}, v7")
    a("s_mov_b32 exec_lo, 3\ns_mov_b32 exec_hi, 3")
    for q in range(4): a(f"ds_write_b128 v6, {vr(ACC+4*q,4)} offset:{16*q}")
    a("s_mov_b64 exec, -1\ns_waitcnt lgkmcnt(0)")
    stamp(a, 9)
    if W01 == 2: w2_stage(0); w2_stage(1)
    if ONEWAY(): sig(a, "uw", 12, 13); await_(a, "uw", 12, 14)
    await_(a, "b6b", 12, 14)
    if W01 == 1: w2_stage(0); w2_stage(1)
    if OPT.get("e23", 0) and S0 == 4: w2_stage(2); w2_stage(3)
    if not OPT.get("now2"):
        for s in range(S0, 14):
            if s not in EARLY: w2_reg(s)
    await_(a, "b7", 12, 14)
    a(f"v_add_u32 v4, s59, v{vL16}\nv_add_u32 v5, 0x10000, v4\nv_add_u32 v6, 0x20000, v4")
    def w2_put(s):
        sl = s if s < 9 else s - 9
        for j in range(4): a(f"ds_write_b128 v{4 + sl//4}, {vr(RB+16*(s-S0)+4*j,4)} offset:{16384*(sl%4)+8192*(j>>1)+1024*(j&1)}")
    if not (OPT.get('e23', 0) and S0 == 4):
        for s in range(2, S0): w2_stage(s, True)
    for s in range(S0, 9):
        vm.wait(("w2r", s)); w2_put(s)
        if (s - S0) % 2 == 1: a("s_waitcnt lgkmcnt(4)")
    vm.wait_all()
    a("s_waitcnt lgkmcnt(0)")
    stamp(a, 12)
    a("s_barrier")
    if OPT.get("fast") and OPT.get("wb", 1):
        a(f"s_lshl_b32 s52, s{sC}, 2\ns_add_u32 s52, s52, s{sH}\ns_cmp_lg_u32 s52, 0\ns_cbranch_scc1 Lh_nowb\nbuffer_wbl2 sc1\nLh_nowb:")
    await_(a, "b9", 12, 14)
    for s in (9, 10, 11): w2_put(s)
    if ONEWAY(): a("s_waitcnt lgkmcnt(0)"); sig(a, "b11", 12, 13)
    await_(a, "b10", 12, 14)
    for s in (12, 13): w2_put(s)
    if not ONEWAY(): a("s_waitcnt lgkmcnt(8)\ns_barrier")
    a("s_waitcnt lgkmcnt(0)"); sig(a, "b12", 12, 13)
    a("s_barrier")

def diag_out(a, slot):
    if not DIAG: return
    stamp(a, 15)
    a("s_memrealtime s[52:53]\ns_waitcnt vmcnt(0) lgkmcnt(0)")
    a("s_mov_b64 exec, 1")
    for i in range(16):
        a(f"s_sub_u32 s{70+2*i}, s{70+2*i}, s3\nv_mov_b32 v{16+i}, s{70+2*i}")
    a("v_mov_b32 v32, s69\nv_mov_b32 v33, s52" if False else "v_mov_b32 v32, v250\nv_mov_b32 v33, s52")
    a(f"s_lshl_b32 s54, s2, 10\ns_lshl_b32 s55, s{sW}, 7\ns_add_u32 s54, s54, s55\ns_add_u32 s54, s54, {hex(WS_DIAG)}")
    for q in range(4): a(f"buffer_store_dwordx4 {vr(16+4*q,4)}, v{vZ}, {S['ws']}, s54 offen offset:{16*q}")
    a(f"buffer_store_dwordx2 v[32:33], v{vZ}, {S['ws']}, s54 offen offset:64")
    if OPT.get("dbgstart") and slot == 0:
        a(f"s_cmp_ge_u32 s2, 8\ns_cbranch_scc1 Ldiag{slot}\ns_cmp_lg_u32 s{sW}, 0\ns_cbranch_scc1 Ldiag{slot}\ns_lshl_b32 s54, s2, 2\ns_add_u32 s54, s54, 4")
        a(f"v_subrev_u32 v32, s{sTAG}, v250\nv_add_u32 v32, 1000, v32\nbuffer_store_dword v32, v{vZ}, {S['dbg']}, s54 offen")
        a(f"s_getreg_b32 s55, hwreg(HW_REG_XCC_ID)\ns_and_b32 s55, s55, 15\nv_mov_b32 v32, s55\ns_cmp_ge_u32 s2, 7\ns_cbranch_scc1 Ldiag{slot}\nbuffer_store_dword v32, v{vZ}, {S['dbg']}, s54 offen offset:32")
    if OPT.get("dbgout") and slot == 0:
        a(f"s_lshl_b32 s54, s2, 3\ns_add_u32 s54, s54, s{sW}\ns_cmp_lg_u32 s54, {OPT['dbgout']*8}\ns_cbranch_scc1 Ldiag{slot}")
        for i in range(1, 16): a(f"buffer_store_dword v{16+i}, v{vZ}, {S['dbg']}, 0 offen offset:{4*i}")
    a(f"Ldiag{slot}:")

def build():
    a = Asm()
    a("s_cmp_ge_u32 s2, 256\ns_cbranch_scc1 Lend")
    for nm in ("x", "dbg", "wmod", "c", "wqkv", "ws", "wo", "w1", "w2", "out"):
        a(f"s_load_dwordx2 {sr(SRD[nm],2)}, s[0:1], {KA[nm]}")
    if DIAG: a("s_memtime s[70:71]\ns_memrealtime s[72:73]")
    a(f"v_lshrrev_b32 v4, 6, v0\nv_and_b32 v{vLANE}, 63, v0\nv_mov_b32 v{vZ}, 0\nv_readfirstlane_b32 s{sW}, v4\nv_lshlrev_b32 v{vL16}, 4, v{vLANE}")
    a(f"s_getpc_b64 s[56:57]\nLpc:\ns_sub_u32 s56, s56, Lpc-{NAME}_kernel\ns_subb_u32 s57, s57, 0")
    a(f"s_and_b32 s{sX}, s2, 7\ns_lshr_b32 s{sI}, s2, 3\ns_sub_u32 s67, s{sW}, 4")
    a(f"s_cmp_lt_u32 s{sW}, 6\ns_cbranch_scc1 Le_nopf")
    a(f"s_lshl_b32 s58, s{sI}, 1\ns_add_u32 s58, s58, s67\ns_sub_u32 s58, s58, 2\ns_lshl_b32 s58, s58, 10\ns_min_u32 s58, s58, Lcode_end-{NAME}_kernel-1024\nv_add_u32 v5, s58, v{vL16}")
    a("global_load_dwordx4 v[16:19], v5, s[56:57]")
    a("Le_nopf:")
    if OPT.get('m216', 0):
        a(f"s_lshl_b32 s{sTB}, s{sX}, 1\ns_lshr_b32 s52, s{sI}, 4\ns_add_u32 s{sTB}, s{sTB}, s52\ns_and_b32 s{sR}, s{sI}, 7\ns_and_b32 s{sC}, s{sI}, 15")
    else:
        a(f"s_lshr_b32 s{sTB}, s{sX}, 1\ns_lshl_b32 s{sTB}, s{sTB}, 2\ns_lshr_b32 s52, s{sI}, 3\ns_add_u32 s{sTB}, s{sTB}, s52")
        a(f"s_and_b32 s{sR}, s{sI}, 7\ns_and_b32 s{sC}, s{sX}, 1\ns_lshl_b32 s{sC}, s{sC}, 3\ns_add_u32 s{sC}, s{sC}, s{sR}")
    for nm in ("x", "dbg", "wmod", "c", "wqkv", "ws"): a(f"s_mov_b32 s{SRD[nm]+2}, {hex(SZ[nm])}\ns_mov_b32 s{SRD[nm]+3}, 0x20000")
    a("s_memrealtime s[54:55]")
    if DIAG:
        a("s_waitcnt lgkmcnt(0)\ns_mov_b32 s3, s70\ns_mov_b32 s68, s72\nv_mov_b32 v250, s72")
        if OPT.get("rt"): a("s_mov_b32 s3, s72")
        for i in range(16): a(f"s_mov_b32 s{70+2*i}, s3")
    a(f"s_cmp_ge_u32 s{sW}, 4\ns_cbranch_scc1 Lp0_h\ns_cmp_lt_u32 s{sI}, 8\ns_cbranch_scc1 Lp0_mod\ns_cmp_ge_u32 s{sI}, 24\ns_cbranch_scc1 Lp0_warm")
    p0_ln(a)
    a("Lp0_h:")
    p0_helper(a)
    a("Lp0_mod:")
    p0_mod(a)
    a("Lp0_warm:")
    p0_warm(a)
    active(a)
    a("s_branch Latt")
    helper(a)
    a("Latt:")
    vm = Track(a, "vmcnt", 63)
    slow = attention(a, vm)
    a(f"s_cmp_ge_u32 s{sW}, 4\ns_cbranch_scc1 Lhelper2")
    active2(a)
    if OPT.get("hold"):
        a(f"Lhold:\ns_memrealtime s[52:53]\ns_waitcnt lgkmcnt(0)\ns_sub_u32 s52, s52, s{sTAG}\ns_cmp_lt_u32 s52, {OPT['hold']}\ns_cbranch_scc1 Lhold")
    if DIAG: a("v_mov_b32 v250, s68")
    diag_out(a, 0)
    a("s_endpgm")
    a("Lhelper2:")
    helper2(a)
    diag_out(a, 1)
    a("s_endpgm")
    a("; ==== attention fallback: true row maximum first, then exp(s - max)")
    slow(a)
    a("Lend:")
    return a

def emit(a):
    hdr = open(f"cdna_kernels/{NAME}.s.ref").read().split("\n")
    out = [l for l in hdr if l.startswith(";") and "@launch" not in l and "Override launch" not in l and "grid=ceil" not in l]
    out.append(f"; @launch grid=(256,1,1) block=(512,1,1) lds={LDS_SIZE}")
    a.fix()
    out += ['.amdgcn_target "amdgcn-amd-amdhsa--gfx950"', ".text", f".globl {NAME}_kernel", ".p2align 8", f".type {NAME}_kernel,@function", f"{NAME}_kernel:",
            a.text(), "    s_endpgm", "Lcode_end:", '.section .rodata,"a"', ".p2align 6", f".amdhsa_kernel {NAME}_kernel", "  .amdhsa_next_free_vgpr 256",
            "  .amdhsa_next_free_sgpr 102", "  .amdhsa_accum_offset 256", "  .amdhsa_group_segment_fixed_size 0", "  .amdhsa_kernarg_size 88",
            "  .amdhsa_user_sgpr_count 2", "  .amdhsa_user_sgpr_kernarg_segment_ptr 1", "  .amdhsa_system_sgpr_workgroup_id_x 1",
            "  .amdhsa_float_denorm_mode_32 3", ".end_amdhsa_kernel"]
    return "\n".join(out) + "\n"

if __name__ == "__main__":
    import argparse
    p = argparse.ArgumentParser(); p.add_argument("out"); p.add_argument("--diag", action="store_true"); p.add_argument("--opt", default="")
    args = p.parse_args()
    DIAG = args.diag
    for o in args.opt.split(","):
        if o: OPT[o.split("=")[0]] = int(o.split("=")[1]) if "=" in o else 1
    set_nring(OPT.get('nring', 4))
    open(args.out, "w").write(emit(build()))
```

```python
import sys, struct
from asmlib import *

NAME = "adaLN_cond__softmax_full_mha__dense_activation_silu__prompt"
WS_MODG = 0x0
WS_STATS = 0x10000
WS_FXN, WS_FKV, WS_FO, WS_FX1, WS_FH = 0x50000, 0x52000, 0x80000, 0xC0000, 0xE0000
WS_FXC = 0x58000
sLOC = 66
FH_B = 0x8000
WS_XN, WS_K, WS_V, WS_O, WS_X1, WS_Y, WS_H = 0x200000, 0x400000, 0x600000, 0x800000, 0xA00000, 0xC00000, 0xE00000
WS_DIAG = 0x1600000
WS_SIZE = 0x1700000
KA = dict(x=0, wqkv=8, wo=16, w1=32, w2=40, c=48, wmod=56, out=64, dbg=72, ws=80)
SZ = dict(x=2048*512*2, wqkv=512*1536*2, wo=512*512*2, w1=512*1792*2, w2=1792*512*2, c=1024, wmod=512*3072*2, out=2048*512*2, dbg=256, ws=WS_SIZE)
SRD = dict(x=4, wqkv=8, wo=12, w1=16, w2=20, c=24, wmod=28, out=32, dbg=36, ws=40)
S = {k: sr(v, 4) for k, v in SRD.items()}
sW, sTB, sC, sTAG, sI, sX, sR = 44, 45, 46, 47, 48, 49, 69
SPIN = 20000
def f2u(f): return struct.unpack("<I", struct.pack("<f", f))[0]
def hx(f): return hex(f2u(f))
LOG2E = 1.4426950408889634
DIAG = False
OPT = {}
L_WKV, L_WQ = 0, 64*1024
L_DG = 96*1024
L_SA = 112*1024
L_QX = 144*1024
L_WO = 0
L_W1 = 32*1024
L_RED = 88*1024
L_TAB = 156*1024
L_GA, L_G2, L_GB, L_SCR, L_UW, L_G = L_TAB, L_TAB+128, L_TAB+256, L_TAB+512, L_TAB+1024, L_TAB+2048
LDS_SIZE = 160*1024

def stamp(a, i, grp=0):
    if DIAG and (OPT.get("focus", 0) == grp or i == 15): a(f"{'s_memrealtime' if OPT.get('rt') else 's_memtime'} s[{70+2*i}:{71+2*i}]")

_uid = [0]
def poll(a, vm, mask, vaddr, soff, vt, first=0):
    _uid[0] += 1; n = _uid[0]
    a(f"s_mov_b64 exec, {mask}\ns_mov_b32 s50, {SPIN}")
    a("; wait for flags == launch tag (bounded)")
    if first: a(f"s_sleep {first}")
    a(f"Lpoll{n}:\nbuffer_load_dword v{vt}, v{vaddr}, {S['ws']}, {soff} offen sc1\ns_waitcnt vmcnt(0)\nv_cmp_ne_u32 vcc, s{sTAG}, v{vt}\ns_sub_u32 s50, s50, 1\ns_cbranch_vccz Lpolld{n}")
    if OPT.get("psleep", 0): a(f"s_sleep {OPT.get('psleep', 0)}")
    a(f"s_cmp_lg_u32 s50, 0\ns_cbranch_scc1 Lpoll{n}")
    a(f"Lpolld{n}:\ns_mov_b64 exec, -1")
    vm.reset()

def set_flag_rg(a, vm, soff, vt):
    _uid[0] += 1; n = _uid[0]
    vm.wait_all()
    a(f"v_mov_b32 v{vt}, s{sTAG}\ns_mov_b64 exec, 1\ns_cmp_lg_u32 s{sLOC}, 0\ns_cbranch_scc1 Lfl{n}")
    a(f"buffer_store_dword v{vt}, v{vZ}, {S['ws']}, {soff} offen sc1\ns_mov_b64 exec, -1\ns_sleep {OPT.get('fr', 16)}\ns_branch Lfl{n}d\nLfl{n}:")
    vm.op(f"buffer_store_dword v{vt}, v{vZ}, {S['ws']}, {soff} offen")
    a(f"s_mov_b64 exec, -1\nLfl{n}d:")

def LF(): return OPT.get("lf", 3)
def flag_off(a, d, f, base, lf=3):
    a(f"s_lshr_b32 s50, s{f}, {lf}\ns_lshl_b32 s50, s50, 7\ns_and_b32 s{d}, s{f}, {(1 << lf) - 1}\ns_lshl_b32 s{d}, s{d}, 2\ns_add_u32 s{d}, s{d}, s50\ns_add_u32 s{d}, s{d}, {hex(base)}")

RG = lambda: [' sc1', '', ' nt', ' sc0', ' sc0 nt'][OPT.get('fast', 0)]
RY = lambda: [' sc1', '', ' nt', ' sc0', ' sc0 nt'][OPT.get('fasty', OPT.get('fast', 0))]
RF = lambda: '' if (OPT.get('fast') or OPT.get('fastf')) else ' sc1'
RO = lambda: '' if (OPT.get('fast') and OPT.get('m216')) else ' sc1'
RL = lambda: '' if OPT.get('plainld') else ' sc1'
def set_flag(a, vm, soff, vz, vt, fl=' sc1'):
    vm.wait_all()
    a(f"v_mov_b32 v{vt}, s{sTAG}\ns_mov_b64 exec, 1")
    vm.op(f"buffer_store_dword v{vt}, v{vz}, {S['ws']}, {soff} offen{fl}")
    a("s_mov_b64 exec, -1")

def rne_bf16(a, d, s):
    a(f"v_cvt_pk_bf16_f32 v{d}, v{s}, v{s}\nv_lshlrev_b32 v{d}, 16, v{d}")

def tr_addr(a, d, t, perm, rowbytes_log2, swz):
    a(f"v_bfe_u32 v{d}, v0, 2, 2\nv_bfe_u32 v{t}, v0, 5, 1")
    a(f"v_lshl_add_u32 v{d}, v{t}, {2 if perm else 3}, v{d}\nv_lshlrev_b32 v{d}, {rowbytes_log2}, v{d}")
    a(f"v_bfe_u32 v{t}, v0, 4, 1\nv_lshl_add_u32 v{d}, v{t}, 5, v{d}")
    a(f"v_and_b32 v{t}, 3, v0\nv_lshl_add_u32 v{d}, v{t}, 3, v{d}")
    if swz: a(f"v_bfe_u32 v{t}, v0, 3, 1\nv_lshl_add_u32 v{d}, v{t}, 6, v{d}")

def half_tr_addr(a, d, t):
    a(f"v_bfe_u32 v{d}, v0, 2, 1")
    a(f"v_bfe_u32 v{t}, v0, 4, 1\nv_lshl_add_u32 v{d}, v{t}, 1, v{d}")
    a(f"v_bfe_u32 v{t}, v0, 3, 1\nv_lshl_add_u32 v{d}, v{t}, 2, v{d}")
    a(f"v_bfe_u32 v{t}, v0, 5, 1\nv_lshl_add_u32 v{d}, v{t}, 4, v{d}")
    a(f"v_lshlrev_b32 v{d}, 5, v{d}\nv_and_b32 v{t}, 3, v0\nv_lshl_add_u32 v{d}, v{t}, 3, v{d}")

vLANE, vL16, vZ = 1, 2, 3
def poll_addr(a, d, lf=3):
    a(f"v_lshrrev_b32 v{d}, {lf}, v{vLANE}\nv_lshlrev_b32 v{d}, 5, v{d}\nv_and_or_b32 v{d}, v{vLANE}, {(1 << lf) - 1}, v{d}\nv_lshlrev_b32 v{d}, 2, v{d}")

def mod_issue(a, vm, sCol, B=16, T=4):
    a(f"v_bfe_u32 v{T}, v0, 1, 7\nv_and_b32 v{T+1}, 1, v0")
    a(f"v_mul_u32_u24 v{T+2}, 6144, v{T}\nv_lshl_add_u32 v{T+2}, v{T+1}, 4, v{T+2}\nv_lshlrev_b32 v{T+3}, 1, v{T}")
    a(f"s_lshl_b32 s52, s{sCol}, 1")
    for m in range(4):
        vm.op(f"buffer_load_dwordx4 {vr(B+4*m,4)}, v{T+2}, {S['wmod']}, s52 offen", "mod")
        if m < 3: a(f"s_add_u32 s52, s52, {128*6144}")
    for m in range(4): vm.op(f"buffer_load_ushort v{B+16+m}, v{T+3}, {S['c']}, 0 offen offset:{256*m}", "mod")

def mod_partial(a, vm, B=16):
    vm.wait("mod")
    C, F, T, A = B+16, B+24, B+20, B+32
    for m in range(4): a(f"v_lshlrev_b32 v{C+m}, 16, v{C+m}")
    for m in range(4): a(f"v_mul_f32 v{T+m}, {hx(-LOG2E)}, v{C+m}")
    for m in range(4): a(f"v_exp_f32 v{T+m}, v{T+m}")
    for m in range(4): a(f"v_add_f32 v{T+m}, 1.0, v{T+m}")
    for m in range(4): a(f"v_rcp_f32 v{T+m}, v{T+m}")
    for m in range(4): a(f"v_mul_f32 v{C+m}, v{C+m}, v{T+m}")
    for m in range(4): a(f"v_cvt_pk_bf16_f32 v{C+m}, v{C+m}, v{C+m}")
    for m in range(4): a(f"v_lshlrev_b32 v{C+m}, 16, v{C+m}")
    for m in range(4):
        for r in range(4):
            a(f"v_lshlrev_b32 v{F+2*r}, 16, v{B+4*m+r}\nv_and_b32 v{F+2*r+1}, 0xffff0000, v{B+4*m+r}")
        for j in range(8):
            a(f"v_mul_f32 v{A+j}, v{F+j}, v{C}" if m == 0 else f"v_fmac_f32 v{A+j}, v{F+j}, v{C+m}")
    for j in range(4): a(f"v_permlane32_swap_b32 v{A+j}, v{A+4+j}")
    for j in range(4): a(f"v_add_f32 v{A+j}, v{A+j}, v{A+4+j}")
    for j in range(2): a(f"v_permlane16_swap_b32 v{A+j}, v{A+2+j}")
    for j in range(2): a(f"v_add_f32 v{A+j}, v{A+j}, v{A+2+j}")
    for r in (8, 4, 2):
        for j in range(2): a(f"v_add_f32_dpp v{A+j}, v{A+j}, v{A+j} row_ror:{r} row_mask:0xf bank_mask:0xf")
    a("v_bfe_u32 v8, v0, 6, 2\nv_lshlrev_b32 v8, 6, v8\nv_and_b32 v9, 1, v0\nv_lshl_add_u32 v8, v9, 5, v8")
    a("v_bfe_u32 v9, v0, 4, 1\nv_lshl_add_u32 v8, v9, 3, v8\nv_bfe_u32 v9, v0, 5, 1\nv_lshl_add_u32 v8, v9, 4, v8")
    a(f"v_add_u32 v8, {L_SCR}, v8")
    a("s_mov_b32 exec_lo, 0x00030003\ns_mov_b32 exec_hi, 0x00030003")
    a(f"ds_write_b64 v8, v[{A}:{A+1}]")
    a("s_mov_b64 exec, -1")

def mod_final(a, vm, sCol):
    a("s_mov_b64 exec, 0xff")
    a(f"v_lshlrev_b32 v8, 3, v{vLANE}\nv_add_u32 v9, {L_SCR}, v8")
    for w in range(4): a(f"ds_read_b64 {vr(240+2*w,2)}, v9 offset:{64*w}")
    a(f"s_lshr_b32 s52, s{sCol}, 9\ns_cmp_eq_u32 s52, 1\ns_cselect_b32 s53, 1.0, 0\ns_cmp_eq_u32 s52, 4\ns_cselect_b32 s53, 1.0, s53")
    a(f"s_lshl_b32 s52, s{sCol}, 2")
    a("s_waitcnt lgkmcnt(0)")
    for j in range(2): a(f"v_add_f32 v{240+j}, v{240+j}, v{242+j}\nv_add_f32 v{244+j}, v{244+j}, v{246+j}")
    for j in range(2): a(f"v_add_f32 v{240+j}, v{240+j}, v{244+j}")
    a("v_cvt_pk_bf16_f32 v242, v240, v241\nv_lshlrev_b32 v240, 16, v242\nv_and_b32 v241, 0xffff0000, v242")
    a("v_add_f32 v240, s53, v240\nv_add_f32 v241, s53, v241")
    a(f"v_cvt_pk_bf16_f32 v240, v240, v241\nv_mov_b32 v241, s{sTAG}")
    vm.op(f"buffer_store_dwordx2 v[240:241], v8, {S['ws']}, s52 offen sc1")
    a("s_mov_b64 exec, -1")

def gran_poll(a, vm, loads, regs, first=0):
    _uid[0] += 1; n = _uid[0]
    if first: a(f"s_sleep {first}")
    a(f"s_mov_b32 s50, {SPIN}\nLgp{n}:")
    for t in loads: a(t)
    a("s_waitcnt vmcnt(0)")
    first = True
    for r in regs:
        for o in (1, 3):
            if first: a(f"v_xor_b32 v15, s{sTAG}, v{r+o}"); first = False
            else: a(f"v_xor_b32 v14, s{sTAG}, v{r+o}\nv_or_b32 v15, v15, v14")
    a("v_cmp_ne_u32 vcc, 0, v15\ns_sub_u32 s50, s50, 1")
    a(f"s_cbranch_vccz Lgpd{n}\ns_sleep {OPT.get('gsleep', 1)}\ns_cmp_lg_u32 s50, 0\ns_cbranch_scc1 Lgp{n}\nLgpd{n}:")
    vm.reset()

def tag_get(a):
    _uid[0] += 1; n = _uid[0]
    a(f"v_mov_b32 v8, {L_SCR+260}\ns_mov_b32 s50, {SPIN*20}\nLtg{n}:\nds_read_b32 v9, v8\ns_sub_u32 s50, s50, 1\ns_waitcnt lgkmcnt(0)\nv_readfirstlane_b32 s{sTAG}, v9")
    a(f"s_cmp_lg_u32 s{sTAG}, 0\ns_cbranch_scc1 Ltgd{n}\ns_cmp_lg_u32 s50, 0\ns_cbranch_scc1 Ltg{n}\nLtgd{n}:")

def tag_now(a, v):
    _uid[0] += 1; n = _uid[0]
    a(f"s_mov_b32 s50, {SPIN}\nLtn{n}:\nv_readfirstlane_b32 s{sTAG}, v{v}\ns_sub_u32 s50, s50, 1")
    a(f"s_cmp_lg_u32 s{sTAG}, 0\ns_cbranch_scc1 Ltnd{n}\ns_cmp_eq_u32 s50, 0\ns_cbranch_scc1 Ltnd{n}")
    a(f"buffer_load_dword v{v}, v{vZ}, {S['dbg']}, 0 offen sc1\ns_waitcnt vmcnt(0)\ns_branch Ltn{n}\nLtnd{n}:")

def read_tag(a):
    a(f"v_mov_b32 v8, {L_SCR+260}\nds_read_b32 v9, v8\ns_waitcnt lgkmcnt(0)\nv_readfirstlane_b32 s{sTAG}, v9")

def mall_touch(a):
    _uid[0] += 1; n = _uid[0]
    a(f"v_lshlrev_b32 v5, 7, v{vLANE}\ns_cmp_eq_u32 s{sW}, 6\ns_cbranch_scc1 Lt6_{n}\ns_cmp_eq_u32 s{sW}, 7\ns_cbranch_scc1 Lt7_{n}")
    a(f"s_mul_i32 s52, s2, {56*128}\ns_cmp_eq_u32 s{sW}, 5\ns_cbranch_scc1 Lt5_{n}")
    a(f"buffer_load_dword v248, v5, {S['w1']}, s52 offen\ns_branch Ltd_{n}")
    a(f"Lt5_{n}:\nbuffer_load_dword v248, v5, {S['w2']}, s52 offen\ns_branch Ltd_{n}")
    a(f"Lt6_{n}:\nv_lshrrev_b32 v6, 5, v{vLANE}\nv_mul_u32_u24 v6, {6144-4096}, v6\nv_add_u32 v5, v5, v6\ns_mul_i32 s52, s2, 12288\ns_add_u32 s52, s52, 2048")
    a(f"buffer_load_dword v248, v5, {S['wmod']}, s52 offen\ns_branch Ltd_{n}")
    a(f"Lt7_{n}:\ns_lshl_b32 s52, s2, 11\ns_mov_b64 exec, 0xffff\nbuffer_load_dword v248, v5, {S['wo']}, s52 offen\ns_mov_b64 exec, -1")
    a(f"Ltd_{n}:")

def stouch(nm, soff, line):
    return f"s_buffer_load_dwordx2 s[0:1], {S[nm]}, s{soff} offset:{128*line+60}"

def mod_join(a, vm, sCol, name, pre=None):
    a(f"v_mov_b32 v8, {L_SCR+256}\nv_mov_b32 v9, 1\ns_waitcnt lgkmcnt(0)\ns_mov_b64 exec, 1\nds_add_rtn_u32 v9, v8, v9\ns_mov_b64 exec, -1\ns_waitcnt lgkmcnt(0)")
    a(f"v_readfirstlane_b32 s52, v9\ns_cmp_lg_u32 s52, 3\ns_cbranch_scc1 {name}")
    if pre: pre()
    mod_final(a, vm, sCol)

NRING = 4
def set_nring(n):
    global NRING
    NRING = n
vSTASH, vMOD, vXR = 180, 208, 208
QF, OA, SB, RING = 16, 32, [96, 112], 128
vV, vWO, vW1, vW1H = 4, 12, 13, 14
sHH, sKQ, sK, sV = 54, 55, 56, 57
def att_setup():
    a = Asm()
    a(f"s_and_b32 s{sHH}, s{sW}, 1\ns_lshr_b32 s{sKQ}, s{sW}, 1")
    a(f"v_and_b32 v{vV}, 15, v{vLANE}\nv_lshlrev_b32 v{vV}, 4, v{vV}\nv_bfe_u32 v5, v{vLANE}, 5, 1\nv_lshl_add_u32 v{vV}, v5, 8, v{vV}")
    a(f"s_lshl_b32 s58, s{sC}, 1\ns_add_u32 s58, s58, s{sHH}")
    a(f"s_lshl_b32 s59, s58, 16")
    a(f"s_lshl_b32 s52, s{sKQ}, 14\ns_add_u32 s52, s52, s59\ns_add_u32 s{sK}, s52, {hex(WS_K)}\ns_add_u32 s{sV}, s52, {hex(WS_V)}")
    a("s_mov_b32 s60, 0x0000ffff\ns_mov_b32 s61, 0x0000ffff")
    a(f"s_lshl_b32 s52, s{sKQ}, 8\ns_lshr_b32 s53, s{sC}, 1\ns_lshl_b32 s53, s53, 11\ns_add_u32 s52, s52, s53\ns_add_u32 s62, s52, {hex(WS_FKV)}")
    a(f"s_and_b32 s65, s{sTB}, {1 if OPT.get('m216', 0) else 3}\ns_lshl_b32 s65, s65, {13 if OPT.get('m216', 0) else 12}")
    a(f"v_lshrrev_b32 v6, 2, v{vLANE}\nv_and_b32 v11, 3, v{vLANE}\nv_lshlrev_b32 v{vWO}, 10, v6\nv_lshl_add_u32 v{vWO}, v11, 4, v{vWO}")
    w1_voffs(a, vW1, vW1H, 6, 11, 15)
    a(f"v_and_b32 v5, 7, v{vLANE}\nv_lshlrev_b32 v5, 2, v5\nv_bfe_u32 v6, v{vLANE}, 3, 1\nv_lshl_add_u32 v5, v6, 7, v5\nv_bfe_u32 v6, v{vLANE}, 4, 1\nv_lshl_add_u32 v5, v6, 10, v5")
    a(f"v_and_b32 v6, 0x1b, v{vLANE}\nv_cmp_eq_u32 vcc, 16, v6\nv_mov_b32 v15, 0x3f803f80\ns_nop 0\nv_cndmask_b32 v15, 0, v15, vcc")
    for r in range(64): a(f"v_mov_b32 v{OA+r}, 0")
    early = [I.text for I in a.L]
    late = [f"v_mov_b32 v{RING+12*sl+4+r}, v15" for sl in range(NRING) for r in range(8)] + [f"v_mov_b32 v{RING+12*NRING}, 0xdddddddd"]
    return early, late

CNT = dict(b5b=3, b6b=4, b7=5, b9=6, b10=7, b11=8, b12=9, uw=10, b5c=11)
ONEWAY = lambda: OPT.get("ow", 1)
def sig(a, name, va, vb, lg=None):
    if not ONEWAY(): a("s_barrier"); return
    a("s_mov_b64 exec, 1")
    t = f"ds_add_u32 v{va}, v{vb} offset:{4*CNT[name]}"
    lg.op(t, "sig") if lg else a(t)
    a("s_mov_b64 exec, -1")
def sig_regs(a, va, vb): a(f"v_mov_b32 v{va}, {L_SCR+256}\nv_mov_b32 v{vb}, 1")
def await_(a, name, va, vt, have=False):
    if not ONEWAY(): a("s_barrier"); return
    _uid[0] += 1; n = _uid[0]
    if have: a(f"v_readfirstlane_b32 s50, v{vt}\ns_cmp_eq_u32 s50, 4\ns_cbranch_scc1 Law{n}d")
    a(f"s_mov_b32 s63, {SPIN*20}\nLaw{n}:\nds_read_b32 v{vt}, v{va} offset:{4*CNT[name]}\ns_sub_u32 s63, s63, 1\ns_waitcnt lgkmcnt(0)\nv_readfirstlane_b32 s50, v{vt}")
    a(f"s_cmp_eq_u32 s50, 4\ns_cbranch_scc1 Law{n}d\ns_sleep {OPT.get('asleep', 1)}\ns_cmp_lg_u32 s63, 0\ns_cbranch_scc1 Law{n}\nLaw{n}d:")

def q_join(a):
    _uid[0] += 1; n = _uid[0]
    a(f"v_mov_b32 v9, {L_SCR+264}\ns_mov_b32 s50, {SPIN*20}\nLqj{n}:\nds_read_b32 v10, v9\ns_sub_u32 s50, s50, 1\ns_waitcnt lgkmcnt(0)\nv_readfirstlane_b32 s52, v10")
    a(f"s_cmp_eq_u32 s52, 4\ns_cbranch_scc1 Lqjd{n}\ns_cmp_lg_u32 s50, 0\ns_cbranch_scc1 Lqj{n}\nLqjd{n}:")

def att_q(a):
    for i in range(4):
        a(f"s_add_u32 s52, s{sKQ}, {i}\ns_and_b32 s52, s52, 3\ns_lshl_b32 s53, s{sHH}, 2\ns_add_u32 s52, s52, s53\ns_lshl_b32 s52, s52, 10\ns_add_u32 s52, s52, {L_QX}")
        a(f"v_add_u32 v9, s52, v{vL16}\nds_read_b128 {vr(QF+4*i,4)}, v9")

KVF = lambda: [' sc1', '', ' sc1 nt'][OPT.get('kvf', 0)]
def att_ld(a, vm, kt):
    sl = kt % NRING
    if kt % 4 == 0: a(f"s_add_u32 s63, s{sK}, s62\ns_add_u32 s64, s{sV}, s62\ns_add_u32 s62, s62, 4096\ns_and_b32 s62, s62, 0x3fff")
    o = 1024*(kt % 4)
    vm.op(f"buffer_load_dwordx4 {vr(RING+12*sl,4)}, v{vL16}, {S['ws']}, s63 offen offset:{o}{KVF()}", ("kv", kt))
    a("s_mov_b64 exec, s[60:61]")
    vm.op(f"buffer_load_dwordx4 {vr(RING+12*sl+4,4)}, v{vV}, {S['ws']}, s64 offen offset:{o}{KVF()}", ("kv", kt))
    vm.op(f"buffer_load_dwordx4 {vr(RING+12*sl+8,4)}, v{vV}, {S['ws']}, s64 offen offset:{o+512}{KVF()}", ("kv", kt))
    a("s_mov_b64 exec, -1")

def att_first(a, vm, first):
    stamp(a, 4)
    poll(a, vm, "0xffffffff", 5, "s62", 6, first)
    stamp(a, 5)
    a("s_mov_b32 s62, s65")
    for kt in range(NRING-1): att_ld(a, vm, kt)

def attention(a, vm):
    IDX = RING + 12*NRING
    assert IDX < vSTASH
    CP = lambda d: f"s_and_b32 s{d}, s{sI}, 15" if OPT.get('mix', 1) else f"s_mov_b32 s{d}, s{sC}"
    TP = lambda d: f"s_lshl_b32 s{d}, s{sX}, 1\ns_lshr_b32 s50, s{sI}, 4\ns_add_u32 s{d}, s{d}, s50" if OPT.get('mix', 1) else f"s_mov_b32 s{d}, s{sTB}"
    def kp_addr(d):
        return [f"s_lshl_b32 s65, s{sR}, 1", f"s_add_u32 s65, s65, s{sW}", f"s_add_u32 s65, s65, {d}", "s_and_b32 s65, s65, 15", f"s_mul_i32 s65, s65, {32*3584}",
                CP(52), "s_mul_i32 s52, s52, 224", "s_add_u32 s65, s65, s52", f"s_mul_i32 s66, s{sW}, 7168", f"s_add_u32 s66, s66, {L_W1+7168*d}"]
    wo = [[f"s_add_u32 m0, s66, {L_WO+1024*j}", f"s_add_u32 s52, s65, {16384*j}", f"buffer_load_dwordx4 v{vWO}, {S['wo']}, s52 offen lds"] for j in range(4)]
    wo[0] = [f"s_add_u32 s65, s{sW}, s{sR}", "s_and_b32 s65, s65, 7", "s_lshl_b32 s65, s65, 16", CP(52), "s_lshl_b32 s52, s52, 6", "s_add_u32 s65, s65, s52", f"s_lshl_b32 s66, s{sW}, 12"] + wo[0]
    k1 = w1_kp_dma(65, 66, vW1, vW1H); k1[0] = kp_addr(0) + k1[0]
    k2 = []
    for j, p in enumerate(w1_kp_dma(65, 66, vW1, vW1H)):
        k2.append([p[1], p[2].replace("buffer_load_dwordx4 ", f"buffer_load_dwordx4 {vr(vSTASH+4*j,4)}, ").replace(" lds", "")])
    k2[0] = kp_addr(8)[:8] + k2[0]
    p0 = OPT.get("pre0", 5)
    pre = {4*p0+1: wo[:2], 4*p0+5: wo[2:], 4*p0+9: k1[:3], 4*p0+13: k1[3:], 4*p0+17: k2[:3], 4*p0+21: k2[3:]}
    ld = lambda kt: att_ld(a, vm, kt)
    for kt in range(NRING-1): vm.q += [('kv', kt)]*3
    def QK(dst, sl, q): return f"v_mfma_f32_32x32x16_bf16 {vr(dst,16)}, {vr(RING+12*sl,4)}, {vr(QF+4*q,4)}, 0"
    def SM(q, sl, half, s): return f"v_smfmac_f32_32x32x32_bf16 {vr(OA+16*q,16)}, {vr(RING+12*sl+4+4*half,4)}, {vr(s+8*half,8)}, v{IDX}"
    a("s_setprio 1")
    a(f"s_and_b32 s53, s{sW}, 3\ns_lshl_b32 s52, s2, 2\ns_add_u32 s53, s53, s52\ns_mul_i32 s53, s53, {9*128}")
    ST = [stouch("w1", 53, n) for n in range(9)] + [stouch("wmod", 53, n) for n in range(16)] + [stouch("w2", 53, n) for n in range(14)]
    a("s_waitcnt lgkmcnt(0)")
    vm.wait(("kv", 0))
    a(QK(SB[0], 0, 0))
    a("s_nop 7\ns_nop 3")
    TAIL = OPT.get("tail", 1)
    qof = lambda t: (t + 1) % 4 if (TAIL and t >= 60) else t % 4
    def red_write(i):
        return [f"s_add_u32 s52, s{sKQ}, {i}\ns_and_b32 s52, s52, 3\ns_mul_i32 s52, s52, 3\ns_add_u32 s52, s52, s63\ns_add_u32 s52, s52, {i-1}\ns_mul_i32 s52, s52, 2304\ns_add_u32 s52, s52, {L_RED}",
                f"v_add_u32 v6, s52, v{vL16}\nv_add_u32 v7, s52, v15",
                f"ds_write_b128 v6, {vr(OA+16*i,4)}", f"ds_write_b128 v6, {vr(OA+16*i+4,4)} offset:1024", f"ds_write_b32 v7, v{OA+16*i+8} offset:2048"]
    for t in range(64):
        kt, q = t // 4, t % 4
        cur, prv = SB[t & 1], SB[(t + 1) & 1]
        E = [f"v_exp_f32 v{cur+r}, v{cur+r}" for r in range(16)]
        if t == OPT.get("prio", 53):
            a(f"s_cmp_ge_u32 s{sW}, 4\ns_cbranch_scc1 Latt_prio\ns_setprio 0\nLatt_prio:")
        a(E[0]); a(E[1])
        if t > 0: a(SM(qof(t-1), ((t-1)//4) % NRING, 1, prv))
        if t == 59: a(f"s_mul_i32 s63, s{sHH}, 12\nv_lshlrev_b32 v15, 2, v{vLANE}")
        if q == 0 and kt + NRING - 1 < 16: ld(kt + NRING - 1)
        if t in pre and not OPT.get("nopre"):
            for p in pre[t]:
                for x in p[:-1]: a(x)
                vm.op(p[-1], "pre")
        if t == OPT.get("cpf", 99):
            a(f"s_cmp_lg_u32 s{sW}, 7\ns_cbranch_scc1 Latt_nocp\ns_getpc_b64 s[50:51]\nLpc2:\ns_and_b32 s52, s{sI}, 3\ns_lshl_b32 s52, s52, 13\nv_lshlrev_b32 v5, 7, v{vLANE}\nv_add_u32 v5, s52, v5")
            a("v_min_u32 v5, Lcode_end-Lpc2-4, v5\nglobal_load_dword v249, v5, s[50:51]\nLatt_nocp:")
        if t == 5:
            a(f"s_cmp_lg_u32 s{sW}, 0\ns_cbranch_scc1 Latt_noxc"); a(TP(52)); a(f"s_lshl_b32 s52, s52, 5"); a(CP(50))
            a(f"s_add_u32 s52, s52, s50\ns_lshl_b32 s52, s52, 2\ns_add_u32 s52, s52, {hex(WS_FXC)}\ns_getreg_b32 s50, hwreg(HW_REG_XCC_ID)\ns_and_b32 s50, s50, 15\ns_lshl_b32 s50, s50, 1\ns_add_u32 s50, s50, s{sTAG}")
            if OPT.get("xcfake"): a(f"s_and_b32 s51, s2, {OPT['xcfake']}\ns_add_u32 s50, s50, s51")
            a(f"v_mov_b32 v5, s50\ns_mov_b64 exec, 1\nbuffer_store_dword v5, v{vZ}, {S['ws']}, s52 offen sc1\ns_mov_b64 exec, -1\nLatt_noxc:")
        if t == 57:
            a(f"s_cmp_ge_u32 s{sW}, 4\ns_cbranch_scc1 Latt_nox")
            a(f"v_bfe_u32 v5, v{vLANE}, 5, 1\nv_and_b32 v6, 31, v{vLANE}\nv_lshlrev_b32 v6, 10, v6\nv_lshl_add_u32 v6, v5, 3, v6")
            a(TP(52)); a(f"s_lshl_b32 s52, s52, 2\ns_add_u32 s67, s52, s{sW}\ns_lshl_b32 s52, s67, 15"); a(CP(50)); a("s_lshl_b32 s50, s50, 6\ns_add_u32 s52, s52, s50")
            for qq in range(4): a(f"buffer_load_dwordx2 {vr(vXR+2*qq,2)}, v6, {S['x']}, s52 offen offset:{16*qq}")
            a(f"s_lshr_b32 s52, s67, 2\ns_lshl_b32 s52, s52, 7\ns_add_u32 s52, s52, {hex(WS_FXC)}\nv_and_b32 v5, 15, v{vLANE}\nv_lshlrev_b32 v5, 2, v5")
            a(f"buffer_load_dword v{vXR+8}, v5, {S['ws']}, s52 offen sc1")
            a("Latt_nox:")
        if t == 50:
            a(f"s_cmp_lt_u32 s{sW}, 4\ns_cbranch_scc1 Latt_nomod\ns_sub_u32 s52, s{sI}, 8\ns_cmp_ge_u32 s52, 16\ns_cbranch_scc1 Latt_nomod")
            a(f"s_lshl_b32 s66, s{sX}, 2\ns_lshr_b32 s52, s52, 2\ns_add_u32 s66, s66, s52\ns_lshl_b32 s66, s66, 6")
            a(f"s_and_b32 s52, s{sI}, 3\ns_lshl_b32 s52, s52, 4\ns_add_u32 s66, s66, s52\ns_add_u32 s66, s66, 1024")
            mod_issue(a, Track(a, "vmcnt", 63), 66, vMOD, T=244)
            a("Latt_nomod:")
        if t == OPT.get("w2t", 62) and not OPT.get("nopre"):
            if OPT.get("nw", 1):
                a(f"s_mul_i32 s52, s{sI}, 7\ns_min_u32 s50, s{sW}, 6\ns_add_u32 s52, s52, s50\ns_lshl_b32 s52, s52, 13\nv_lshlrev_b32 v5, 7, v{vLANE}")
                vm.op(f"buffer_load_dword v248, v5, {S['w2']}, s52 offen", "w2t")
            else:
                a(f"s_cmp_eq_u32 s{sW}, 7\ns_cbranch_scc1 Latt_nopf\ns_mul_i32 s52, s{sI}, 7\ns_add_u32 s52, s52, s{sW}\ns_lshl_b32 s52, s52, 13\nv_lshlrev_b32 v5, 7, v{vLANE}")
                a(f"buffer_load_dword v248, v5, {S['w2']}, s52 offen")
                a("Latt_nopf:")
        if OPT.get("st", 7) & 4 and t % 3 != 2 and t - t//3 < 39:
            j = t - t//3
            if j == 9: a(f"s_lshl_b32 s53, s2, 1\ns_bfe_u32 s52, s{sW}, 0x10001\ns_add_u32 s53, s53, s52\ns_mul_i32 s53, s53, 6144\ns_lshl_b32 s52, s{sHH}, 11\ns_add_u32 s53, s53, s52\ns_add_u32 s53, s53, 2048")
            if j == 25: a(f"s_and_b32 s53, s{sW}, 3\ns_lshl_b32 s52, s2, 2\ns_add_u32 s53, s53, s52\ns_mul_i32 s53, s53, {14*128}")
            a(ST[j])
        sh = OPT.get("vb", 1)
        for r in range(2, 4+sh): a(E[r])
        if t < 63:
            if q == 3: vm.wait(("kv", kt + 1))
            a(QK(prv, ((t+1)//4) % NRING, qof(t+1)))
        for r in range(4+sh, 10+sh): a(E[r])
        a(SM(qof(t), kt % NRING, 0, cur))
        W = red_write(t - 60) if (TAIL and t >= 61) else []
        for r in range(10+sh, 16):
            a(E[r])
            if W: a(W.pop(0))
        for x in W: a(x)
        if t % 4 == 3 and t < 60: stamp(a, t//4, 5)
    a("s_nop 1")
    a(SM(qof(63), 15 % NRING, 1, SB[1]))
    a("s_setprio 0")
    stamp(a, 6); stamp(a, 0, 8)
    if not TAIL:
        for i in range(1, 4):
            for x in red_write(i): a(x)
    a(f"s_mul_i32 s52, s{sKQ}, 3\ns_add_u32 s52, s52, s63\ns_mul_i32 s52, s52, 2304\ns_add_u32 s52, s52, {L_RED}")
    a(f"v_add_u32 v6, s52, v{vL16}\nv_add_u32 v7, s52, v15")
    a(f"s_lshl_b32 s52, s{sTB}, 2\ns_add_u32 s52, s52, s{sKQ}\ns_lshl_b32 s52, s52, 5\ns_add_u32 s52, s52, s58")
    a(f"s_lshl_b32 s63, s52, 10\ns_add_u32 s63, s63, {hex(WS_O)}")
    flag_off(a, 64, 52, WS_FO, LF())
    a(TP(sTB)); a(CP(sC))
    stamp(a, 1, 8)
    if OPT.get("nw", 1): a("s_waitcnt vmcnt(1)")
    else: vm.wait_all()
    a("s_waitcnt lgkmcnt(0)")
    stamp(a, 2, 8)
    a("s_barrier")
    stamp(a, 3, 8)
    R = 96
    for i in range(3):
        a(f"ds_read_b128 {vr(R+12*i,4)}, v6 offset:{2304*i}\nds_read_b128 {vr(R+12*i+4,4)}, v6 offset:{2304*i+1024}\nds_read_b32 v{R+12*i+8}, v7 offset:{2304*i+2048}")
    a(f"s_mov_b32 s52, {hx(2.0**-60)}\ns_mov_b32 s53, {hx(2.0**60)}\ns_movk_i32 s65, 0x207")
    for i in range(3):
        a(f"s_waitcnt lgkmcnt({6-3*i})")
        for r in range(9): a(f"v_add_f32 v{OA+r}, v{OA+r}, v{R+12*i+r}")
    a(f"v_add_f32 v8, v{OA}, v{OA+1}\nv_add_f32 v9, v{OA+2}, v{OA+3}\nv_add_f32 v10, v{OA+4}, v{OA+5}\nv_add_f32 v11, v{OA+6}, v{OA+7}")
    a("v_add_f32 v8, v8, v9\nv_add_f32 v10, v10, v11\nv_add_f32 v8, v8, v10")
    a(f"v_cmp_nge_f32 vcc, v{OA+8}, s52\nv_cmp_nle_f32 s[54:55], v{OA+8}, s53\nv_cmp_class_f32 s[56:57], v8, s65")
    a(f"v_rcp_f32 v8, v{OA+8}")
    a("s_or_b64 vcc, vcc, s[54:55]\ns_or_b64 vcc, vcc, s[56:57]")
    a("s_cbranch_vccnz Lslow")
    a("Lnorm:")
    for r in range(8): a(f"v_mul_f32 v{OA+r}, v{OA+r}, v8")
    for r in range(4): a(f"v_cvt_pk_bf16_f32 v{8+r}, v{OA+2*r}, v{OA+2*r+1}")
    vm.op(f"buffer_store_dwordx4 v[8:11], v{vL16}, {S['ws']}, s63 offen{RO()}")
    stamp(a, 4, 8)
    a("s_barrier")
    stamp(a, 5, 8)
    a(f"s_mul_i32 s52, s{sW}, 7168\ns_add_u32 s52, s52, {L_W1+8*7168}\nv_add_u32 v5, s52, v{vL16}")
    for j in range(7): a(f"ds_write_b128 v5, {vr(vSTASH+4*j,4)} offset:{1024*j}")
    def slow(b):
        tv = Track(b, "vmcnt", 63)
        b("Lslow:")
        poll_addr(b, 5)
        b(f"s_lshr_b32 s52, s58, 2\ns_lshl_b32 s52, s52, 11\ns_add_u32 s62, s52, {hex(WS_FKV)}")
        poll(b, tv, "-1", 5, "s62", 6)
        b("s_add_u32 s62, s62, 1024")
        poll(b, tv, "-1", 5, "s62", 6)
        b(f"s_waitcnt vmcnt(0)\ns_add_u32 s{sK}, s59, {hex(WS_K)}\ns_mov_b32 s51, 64\nv_mov_b32 v8, 0xff800000")
        b("Ls1:")
        b(f"buffer_load_dwordx4 {vr(RING,4)}, v{vL16}, {S['ws']}, s{sK} offen sc1\ns_add_u32 s{sK}, s{sK}, 1024\ns_waitcnt vmcnt(0)")
        b(QK(SB[0], 0, 0))
        for r in range(0, 16, 2): b(f"v_max3_f32 v8, v{SB[0]+r}, v{SB[0]+r+1}, v8")
        b("s_sub_u32 s51, s51, 1\ns_cmp_lg_u32 s51, 0\ns_cbranch_scc1 Ls1")
        b("v_mov_b32 v9, v8\nv_permlane32_swap_b32 v8, v9\nv_max_f32 v8, v8, v9")
        for r in range(16): b(f"v_sub_f32 v{SB[1]+r}, 0, v8")
        for r in range(16): b(f"v_mov_b32 v{OA+r}, 0")
        b(f"s_add_u32 s{sK}, s59, {hex(WS_K)}\ns_add_u32 s{sV}, s59, {hex(WS_V)}\ns_mov_b32 s51, 64")
        b("Ls2:")
        b(f"buffer_load_dwordx4 {vr(RING,4)}, v{vL16}, {S['ws']}, s{sK} offen sc1\ns_mov_b64 exec, s[60:61]")
        b(f"buffer_load_dwordx4 {vr(RING+4,4)}, v{vV}, {S['ws']}, s{sV} offen sc1\nbuffer_load_dwordx4 {vr(RING+8,4)}, v{vV}, {S['ws']}, s{sV} offen offset:512 sc1")
        b(f"s_mov_b64 exec, -1\ns_add_u32 s{sK}, s{sK}, 1024\ns_add_u32 s{sV}, s{sV}, 1024\ns_waitcnt vmcnt(0)")
        b(f"v_mfma_f32_32x32x16_bf16 {vr(SB[0],16)}, {vr(RING,4)}, {vr(QF,4)}, {vr(SB[1],16)}")
        for r in range(16): b(f"v_exp_f32 v{SB[0]+r}, v{SB[0]+r}")
        b(SM(0, 0, 0, SB[0])); b(SM(0, 0, 1, SB[0]))
        b("s_sub_u32 s51, s51, 1\ns_cmp_lg_u32 s51, 0\ns_cbranch_scc1 Ls2")
        b(f"s_nop 7\ns_nop 7\nv_rcp_f32 v8, v{OA+8}\ns_nop 0\ns_branch Lnorm")
    return slow

def w1_voffs(a, vF, vH, p=7, q=8, r=9):
    a(f"v_lshrrev_b32 v{p}, 2, v{vLANE}\nv_and_b32 v{q}, 3, v{vLANE}\nv_mul_u32_u24 v{vF}, 3584, v{p}\nv_lshl_add_u32 v{vF}, v{q}, 4, v{vF}")
    a(f"v_lshrrev_b32 v{p}, 1, v{vLANE}\nv_and_b32 v{q}, 0x13, v{p}\nv_bfe_u32 v{r}, v{p}, 2, 1\nv_lshl_add_u32 v{q}, v{r}, 3, v{q}\nv_bfe_u32 v{r}, v{p}, 3, 1\nv_lshl_add_u32 v{q}, v{r}, 2, v{q}")
    a(f"v_mul_u32_u24 v{vH}, 3584, v{q}\nv_and_b32 v{q}, 1, v{vLANE}\nv_lshl_add_u32 v{vH}, v{q}, 4, v{vH}")

def w1_kp_dma(sOff, sLds, vF, vH, dOff=0, dLds=0):
    L = []
    for e in range(2):
        for nt in range(3):
            L.append([f"s_add_u32 m0, s{sLds}, {dLds+3072*e+1024*nt}", f"s_add_u32 s52, s{sOff}, {dOff+16*3584*e+64*nt}",
                      f"buffer_load_dwordx4 v{vF}, {S['w1']}, s52 offen lds"])
    L.append([f"s_add_u32 m0, s{sLds}, {dLds+6144}", f"s_add_u32 s52, s{sOff}, {dOff+192}", f"buffer_load_dwordx4 v{vH}, {S['w1']}, s52 offen lds"])
    return L

def w1_reads(kp, e, dst, vF):
    base = 7168*kp + 3072*e
    return [f"ds_read_b64_tr_b16 {vr(dst+4*nt+2*st,2)}, v{vF[base >> 15]} offset:{(base & 0x7fff)+1024*nt+512*st}" for nt in range(3) for st in range(2)]
def w1_half_reads(kp, dst, vH):
    base = 7168*kp + 6144
    return [f"ds_read_b64_tr_b16 {vr(dst+2*st,2)}, v{vH[base >> 15]} offset:{(base & 0x7fff)+256*st}" for st in range(2)]

def h_pj(ks):
    return (ks // 4, ks % 4) if ks < 32 else ((ks - 32) // 3, 4 + (ks - 32) % 3)

def rot_loads(a, vm, base_s, dst, tag, div=1):
    for ks in range(32):
        if ks % 4 == 0: a(f"s_add_u32 s53, s{sR}, {ks//4}\ns_and_b32 s53, s53, 7\ns_lshl_b32 s53, s53, 12\ns_add_u32 s53, s53, s{base_s}")
        yield ks, (f"buffer_load_dwordx4 {vr(dst+4*ks,4)}, v{vL16}, {S['ws']}, s53 offen offset:{1024*(ks%4)}{RL() if tag == 'y' else ' sc1'}", (tag, ks//div))

def lds_init_b0(a):
    late_srds(a)
    a(f"v_mov_b32 v8, {L_SCR+256}\nv_mov_b32 v10, 0\nv_mov_b32 v11, 0\nds_write_b64 v8, v[10:11]\nds_write_b64 v8, v[10:11] offset:8\nds_write_b64 v8, v[10:11] offset:16\nds_write_b64 v8, v[10:11] offset:24\nds_write_b64 v8, v[10:11] offset:32\nds_write_b64 v8, v[10:11] offset:40\ns_waitcnt lgkmcnt(0)\ns_barrier")

EB = lambda bit: OPT.get('eb1', 2) & bit
def tag_to_lds_b1(a, late, nap=0):
    a(f"v_mov_b32 v8, s{sTAG}\nv_mov_b32 v9, {L_SCR+260}\nds_write_b32 v9, v8\ns_waitcnt lgkmcnt(0)")
    stamp(a, 0)
    if late: a("s_barrier")
    if nap: a(f"s_sleep {nap}")
    a("s_branch La_p1")

def p0_ln(a):
    vm = Track(a, "vmcnt", 63)
    a(f"s_and_b32 s52, s{sX}, 1\ns_lshl_b32 s52, s52, 4\ns_add_u32 s52, s52, s{sI}\ns_sub_u32 s52, s52, 8\ns_lshl_b32 s52, s52, 2\ns_add_u32 s52, s52, s{sW}")
    a(f"s_lshr_b32 s53, s{sX}, 1\ns_lshl_b32 s53, s53, 7\ns_add_u32 s56, s52, s53\ns_lshl_b32 s53, s56, 12")
    a(f"v_and_b32 v4, 3, v{vLANE}\nv_lshrrev_b32 v5, 2, v{vLANE}\nv_lshlrev_b32 v6, 10, v4\nv_lshl_add_u32 v6, v5, 4, v6")
    a("s_waitcnt lgkmcnt(0)")
    for m in range(4): vm.op(f"buffer_load_dwordx4 {vr(16+4*m,4)}, v6, {S['x']}, s53 offen offset:{256*m}")
    lds_init_b0(a)
    a("v_lshrrev_b32 v7, 1, v5\nv_lshlrev_b32 v7, 10, v7\nv_and_b32 v8, 1, v5\nv_lshl_add_u32 v7, v8, 9, v7\nv_lshl_add_u32 v7, v4, 4, v7")
    a(f"s_lshr_b32 s53, s56, 3\ns_lshl_b32 s53, s53, 15\ns_and_b32 s54, s56, 7\ns_lshl_b32 s54, s54, 6\ns_add_u32 s53, s53, s54\ns_add_u32 s53, s53, {hex(WS_XN)}")
    flag_off(a, 55, 56, WS_FXN)
    stamp(a, 0, 7)
    vm.wait_all()
    stamp(a, 1, 7)
    vm.op(f"buffer_load_dword v15, v{vZ}, {S['dbg']}, 0 offen sc1")
    F = 32
    for r in range(16): a(f"v_lshlrev_b32 v{F+2*r}, 16, v{16+r}\nv_and_b32 v{F+2*r+1}, 0xffff0000, v{16+r}")
    def red(v, t):
        for r in (4, 8): a(f"v_add_f32_dpp v{v}, v{v}, v{v} row_ror:{r} row_mask:0xf bank_mask:0xf")
        a(f"v_mov_b32 v{t}, v{v}\nv_permlane16_swap_b32 v{v}, v{t}\nv_add_f32 v{v}, v{v}, v{t}")
        a(f"v_mov_b32 v{t}, v{v}\nv_permlane32_swap_b32 v{v}, v{t}\nv_add_f32 v{v}, v{v}, v{t}")
    a(f"v_pk_add_f32 v[64:65], {vr(F,2)}, {vr(F+2,2)}\nv_pk_add_f32 v[66:67], {vr(F+4,2)}, {vr(F+6,2)}")
    for r in range(8, 32, 4): a(f"v_pk_add_f32 v[64:65], v[64:65], {vr(F+r,2)}\nv_pk_add_f32 v[66:67], v[66:67], {vr(F+r+2,2)}")
    a("v_pk_add_f32 v[64:65], v[64:65], v[66:67]\nv_add_f32 v64, v64, v65")
    red(64, 65)
    a(f"v_mul_f32 v64, {hx(-1/512)}, v64")
    for r in range(0, 32, 2): a(f"v_pk_add_f32 {vr(F+r,2)}, {vr(F+r,2)}, v[64:65] op_sel_hi:[1,0]")
    a(f"v_pk_mul_f32 v[66:67], {vr(F,2)}, {vr(F,2)}\nv_pk_mul_f32 v[68:69], {vr(F+2,2)}, {vr(F+2,2)}")
    for r in range(4, 32, 4): a(f"v_pk_fma_f32 v[66:67], {vr(F+r,2)}, {vr(F+r,2)}, v[66:67]\nv_pk_fma_f32 v[68:69], {vr(F+r+2,2)}, {vr(F+r+2,2)}, v[68:69]")
    a("v_pk_add_f32 v[66:67], v[66:67], v[68:69]\nv_add_f32 v66, v66, v67")
    red(66, 67)
    a(f"v_mov_b32 v67, {hx(1e-5)}\nv_fmac_f32 v67, {hx(1/512)}, v66\nv_rsq_f32 v66, v67")
    for r in range(0, 32, 2): a(f"v_pk_mul_f32 {vr(F+r,2)}, {vr(F+r,2)}, v[66:67] op_sel_hi:[1,0]")
    for m in range(4):
        for r in range(4): a(f"v_cvt_pk_bf16_f32 v{16+4*m+r}, v{F+8*m+2*r}, v{F+8*m+2*r+1}")
        vm.op(f"buffer_store_dwordx4 {vr(16+4*m,4)}, v7, {S['ws']}, s53 offen sc1")
        if m < 3: a("s_add_u32 s53, s53, 8192")
    stamp(a, 2, 7)
    if EB(1): a("s_barrier")
    vm.wait_all()
    stamp(a, 3, 7)
    tag_now(a, 15)
    set_flag(a, vm, "s55", vZ, 8)
    stamp(a, 4, 7)
    tag_to_lds_b1(a, not EB(1), OPT.get('nl', 0))

def p0_mod(a):
    vm = Track(a, "vmcnt", 63)
    sCol = 51
    a(f"s_lshl_b32 s{sCol}, s{sX}, 1\ns_lshr_b32 s52, s{sI}, 2\ns_add_u32 s{sCol}, s{sCol}, s52\ns_lshl_b32 s{sCol}, s{sCol}, 6")
    a(f"s_and_b32 s52, s{sI}, 3\ns_lshl_b32 s52, s52, 4\ns_add_u32 s{sCol}, s{sCol}, s52")
    a("s_waitcnt lgkmcnt(0)")
    mod_issue(a, vm, sCol)
    lds_init_b0(a)
    vm.wait("mod")
    stamp(a, 1, 7)
    a(f"buffer_load_dword v15, v{vZ}, {S['dbg']}, 0 offen sc1")
    if EB(4): a("s_barrier")
    mod_partial(a, vm)
    a("s_waitcnt vmcnt(0)")
    tag_now(a, 15)
    mod_join(a, vm, sCol, "La_joined")
    a("La_joined:")
    stamp(a, 4, 7)
    tag_to_lds_b1(a, not EB(4), OPT.get('nm', 0))

def p0_warm(a):
    a(f"s_sub_u32 s52, s{sI}, 24\ns_lshl_b32 s52, s52, 1\ns_add_u32 s52, s52, s{sW}\ns_lshl_b32 s52, s52, 5")
    a(f"v_lshrrev_b32 v4, 1, v{vLANE}\nv_add_u32 v4, s52, v4\nv_mul_u32_u24 v4, 6144, v4\nv_and_b32 v5, 1, v{vLANE}\nv_lshl_add_u32 v4, v5, 7, v4\ns_lshl_b32 s52, s{sX}, 8")
    a(f"s_waitcnt lgkmcnt(0)\ns_cmp_ge_u32 s{sW}, 2\ns_cbranch_scc1 La_nowm")
    a(f"buffer_load_dword v6, v4, {S['wmod']}, s52 offen")
    a("La_nowm:")
    lds_init_b0(a)
    a("s_waitcnt vmcnt(0)")
    stamp(a, 1, 7)
    a(f"buffer_load_dword v15, v{vZ}, {S['dbg']}, 0 offen sc1")
    if EB(2): a("s_barrier")
    a("s_waitcnt vmcnt(0)")
    tag_now(a, 15)
    tag_to_lds_b1(a, not EB(2), OPT.get('nwm', 0))

def wkv_loop(a, name):
    a(f"{name}:")
    a(f"s_and_b32 s55, s55, 31\ns_lshl_b32 s53, s55, 11\ns_add_u32 s52, s55, s57\ns_and_b32 s52, s52, 31\ns_mul_i32 s52, s52, {16*3072}\ns_mov_b32 m0, s53\ns_add_u32 s52, s52, s56")
    a(f"buffer_load_dwordx4 v12, {S['wqkv']}, s52 offen lds\ns_add_u32 m0, s53, 1024\ns_add_u32 s52, s52, {8*3072}\nbuffer_load_dwordx4 v12, {S['wqkv']}, s52 offen lds")
    a(f"s_add_u32 s55, s55, 4\ns_sub_u32 s51, s51, 1\ns_cmp_lg_u32 s51, 0\ns_cbranch_scc1 {name}")

def p0_helper(a):
    vm = Track(a, "vmcnt", 63)
    sH = 67
    a(f"v_mov_b32 v32, 0\nv_mov_b32 v33, 0\nv_mov_b32 v34, 0\nv_mov_b32 v35, 0\ns_lshl_b32 s52, s{sH}, 12\ns_add_u32 s52, s52, {L_DG}\nv_add_u32 v9, s52, v{vL16}")
    for j in range(4): a(f"ds_write_b128 v9, v[32:35] offset:{1024*j}")
    a(f"s_lshl_b32 s52, s2, 2\ns_add_u32 s52, s52, s{sH}\ns_and_b32 s53, s52, 1\ns_lshr_b32 s52, s52, 1\ns_mul_i32 s52, s52, 3072")
    a("s_lshl_b32 s57, s53, 9\ns_add_u32 s57, s57, s52\ns_lshl_b32 s53, s53, 10\ns_add_u32 s52, s52, s53\ns_add_u32 s52, s52, 1024")
    a("s_waitcnt lgkmcnt(0)")
    a(f"s_andn2_b32 s58, s2, {OPT.get('tagm', 4)}\ns_lshl_b32 s58, s58, 3\ns_add_u32 s58, s58, s{sW}\ns_cmp_lg_u32 s58, {OPT.get('tagw', 64)*8+4}\ns_cbranch_scc1 Le_notag")
    a(f"s_or_b32 s54, s54, 1\nv_mov_b32 v6, s54\nv_mov_b32 v7, 0\ns_mov_b64 exec, 1\nbuffer_atomic_cmpswap v[6:7], v{vZ}, {S['dbg']}, 0 offen sc1\ns_mov_b64 exec, -1")
    a("Le_notag:")
    s0 = OPT.get("st0", 9)
    for n in range(min(s0, 4) if s0 != 9 else 1): a(stouch("wqkv", 52, n))
    late_srds(a)
    a("s_barrier")
    if s0 == 9: a("s_waitcnt lgkmcnt(0)")
    for n in range(min(s0, 4) if s0 != 9 else 1, 8): a(stouch("wqkv", 52, n))
    for n in range(4): a(stouch("wqkv", 57, n))
    a(f"v_lshrrev_b32 v4, 3, v{vLANE}\nv_mul_u32_u24 v4, 3072, v4\nv_bfe_u32 v5, v{vLANE}, 4, 1\nv_lshlrev_b32 v5, 2, v5\nv_xor_b32 v5, v5, v{vLANE}\nv_and_b32 v5, 7, v5\nv_lshl_add_u32 v12, v5, 4, v4")
    a(f"s_and_b32 s56, s{sC}, 1\ns_add_u32 s56, s56, 1\ns_lshl_b32 s56, s56, 10\ns_lshr_b32 s52, s{sC}, 1\ns_lshl_b32 s52, s52, 7\ns_add_u32 s56, s56, s52")
    a(f"s_and_b32 s55, s{sTB}, {1 if OPT.get('m216', 0) else 3}\ns_lshl_b32 s55, s55, {4 if OPT.get('m216', 0) else 3}\ns_add_u32 s55, s55, s{sH}\ns_lshl_b32 s57, s{sR}, 2\ns_mov_b32 s51, 8")
    WH_ = OPT.get("whalf", 0)
    if WH_: a(f"s_mov_b32 s55, s{sH}\ns_mov_b32 s51, {WH_}\ns_mov_b32 s59, s56\ns_mov_b32 s60, s57")
    stamp(a, 0, 7)
    a("s_barrier")
    stamp(a, 1, 7)
    wkv_loop(a, "Lh_wl")
    tag_get(a)
    stamp(a, 0); stamp(a, 2, 7)
    a(f"s_cmp_ge_u32 s{sH}, 2\ns_cbranch_scc1 Lh_b2")
    a(f"s_lshl_b32 s52, s{sH}, 11")
    a(f"v_lshrrev_b32 v5, 3, v{vLANE}\ns_lshl_b32 s53, s{sR}, 1\nv_subrev_u32 v5, s53, v5\nv_and_b32 v5, 15, v5\nv_xor_b32 v6, 8, v5")
    gran_poll(a, vm, [f"buffer_load_dwordx4 v[16:19], v{vL16}, {S['ws']}, s52 offen sc1", f"buffer_load_dwordx4 v[20:23], v{vL16}, {S['ws']}, s52 offen offset:1024 sc1"], [16, 20], OPT.get("ng", 0))
    stamp(a, 1)
    a(f"s_cmp_lg_u32 s{sH}, 0\ns_cbranch_scc1 Lh_g1")
    for j, r in enumerate((16, 18, 20, 22)): a(f"v_lshlrev_b32 v{24+2*j}, 16, v{r}\nv_and_b32 v{25+2*j}, 0xffff0000, v{r}")
    a(f"v_and_b32 v7, 1, v{vLANE}\nv_lshlrev_b32 v7, 6, v7\nv_bfe_u32 v9, v{vLANE}, 1, 2\nv_lshl_add_u32 v7, v9, 4, v7\nv_add_u32 v7, {L_SA}, v7")
    a("v_lshl_add_u32 v5, v5, 7, v7\nv_lshl_add_u32 v6, v6, 7, v7")
    a("ds_write_b128 v5, v[24:27]\nds_write_b128 v6, v[28:31]")
    a("s_branch Lh_b2")
    a("Lh_g1:")
    a(f"v_and_b32 v7, 7, v{vLANE}\nv_lshlrev_b32 v7, 6, v7\nv_bfe_u32 v9, v{vLANE}, 2, 1\nv_lshl_add_u32 v7, v9, 9, v7\nv_and_b32 v9, 3, v{vLANE}\nv_lshl_add_u32 v7, v9, 2, v7\nv_add_u32 v7, {L_DG}, v7")
    a("v_lshl_add_u32 v5, v5, 10, v7\nv_lshl_add_u32 v6, v6, 10, v7")
    for j in range(2):
        for e in range(4):
            a(f"ds_write_b16{'_d16_hi' if e & 1 else ''} v{5+j}, v{16+4*j+2*(e>>1)} offset:{16*e + 2*(e & 1)}")
    a("s_branch Lh_b2")

def late_srds(a):
    for nm in ("wo", "w1", "w2", "out"): a(f"s_mov_b32 s{SRD[nm]+2}, {hex(SZ[nm])}\ns_mov_b32 s{SRD[nm]+3}, 0x20000")

def active(a):
    vm = Track(a, "vmcnt", 63); lg = Track(a, "lgkmcnt", 15)
    sT32 = 67
    a("La_p1:")
    if OPT.get("ap", 0) & 2: a("s_setprio 1")
    ACC = [16, 32, 48]; WF = [64, 72]; DH = [88, 104]; DG = [120, 124]; AF = 128
    a(f"s_lshl_b32 s{sT32}, s{sTB}, 2\ns_add_u32 s{sT32}, s{sT32}, s{sW}")
    a(f"v_lshlrev_b32 v5, 2, v{vLANE}\ns_lshl_b32 s52, s{sT32}, 7\ns_add_u32 s52, s52, {hex(WS_FXN)}")
    tr_addr(a, 10, 12, True, 7, True)
    a("v_xor_b32 v12, 64, v10")
    a(f"v_bfe_u32 v11, v0, 5, 1\nv_lshlrev_b32 v11, 6, v11\nv_add_u32 v11, {L_SA}, v11\nv_add_u32 v13, {L_DG}, v{vL16}")
    a(f"v_and_b32 v14, 2, v0\nv_cmp_eq_u32 vcc, 0, v14\nv_mov_b32 v14, 0xeeeeeeee\nv_mov_b32 v15, 0x44444444\nv_cndmask_b32 v14, v14, v15, vcc")
    for r in range(48): a(f"v_mov_b32 v{16+r}, 0")
    poll(a, vm, "0xff", 5, "s52", 6, OPT.get("fn", 0))
    stamp(a, 1)
    a(f"s_lshl_b32 s52, s{sT32}, 15\ns_add_u32 s52, s52, {hex(WS_XN)}")
    a(f"s_lshr_b32 s54, s{sC}, 1\ns_lshl_b32 s54, s54, 18\ns_lshl_b32 s55, s{sT32}, 10\ns_add_u32 s54, s54, s55")
    a(f"s_bitcmp1_b32 s{sC}, 0\ns_cbranch_scc1 La_vwg")
    def rdS(b):
        L = [(f"ds_read_b128 {vr(DH[b&1]+4*q,4)}, v11 offset:{128*b+16*q}", ("s", b)) for q in range(4)]
        return L + [(f"ds_read_b128 {vr(DG[b&1],4)}, v13 offset:{1024*b}", ("s", b))]
    def rdW(ks):
        return [(f"ds_read_b64_tr_b16 {vr(WF[ks&1]+4*g+2*st,2)}, v{(10, 12)[g]} offset:{2048*ks+1024*st}", ("w", ks)) for g in range(2) for st in range(2)]
    def SMF(b): return f"v_smfmac_f32_32x32x32_bf16 {vr(DH[b&1],16)}, {vr(DG[b&1],4)}, {vr(AF+8*b,8)}, v14"
    def CVT(b): return [f"v_cvt_pk_bf16_f32 v{AF+8*b+r}, v{DH[b&1]+2*r}, v{DH[b&1]+2*r+1}" for r in range(8)]
    for isV in (0, 1):
        if isV: a("La_vwg:")
        vm.reset(); lg.reset()
        XL = rot_loads(a, vm, 52, AF, "xn", 2)
        def xn_issue(n):
            for _ in range(n):
                r = next(XL, None)
                if r: vm.op(*r[1])
        def MM(ks):
            f = AF + 4*ks; w = WF[ks & 1]
            if isV: return [f"v_mfma_f32_32x32x16_bf16 {vr(ACC[1+g],16)}, {vr(f,4)}, {vr(w+4*g,4)}, {vr(ACC[1+g],16)}" for g in range(2)]
            return [f"v_mfma_f32_32x32x16_bf16 {vr(ACC[1+g],16)}, {vr(w+4*g,4)}, {vr(f,4)}, {vr(ACC[1+g],16)}" for g in range(2)]
        xn_issue(OPT.get("xn0", 8))
        a("s_barrier")
        xn_issue(10 - OPT.get("xn0", 8))
        for x in rdS(0) + rdS(1): lg.op(*x)
        lg.wait(("s", 0)); vm.wait(("xn", 0))
        a(SMF(0))
        for x in rdW(0): lg.op(*x)
        xn_issue(2)
        a("s_nop 5")
        for x in CVT(0): a(x)
        stamp(a, 2)
        for b in range(16):
            nx = b + 1 < 16
            if nx:
                lg.wait(("s", b+1)); vm.wait(("xn", b+1))
                a(SMF(b+1))
            for x in rdW(2*b+1): lg.op(*x)
            lg.wait(("w", 2*b))
            M = MM(2*b); Rs = rdS(b+2) if b + 2 < 16 else []
            a(M[0]); [lg.op(*x) for x in Rs]
            a(M[1]); xn_issue(3)
            if b == OPT.get("b2b", 6): a("s_barrier")
            lg.wait(("w", 2*b+1))
            M = MM(2*b+1); C = CVT(b+1) if nx else []; Rw = rdW(2*b+2) if nx else []
            a(M[0]); [lg.op(*x) for x in Rw]; [a(x) for x in C[:3]]
            a(M[1]); [a(x) for x in C[3:]]
            if b < 15: stamp(a, b, 6)
        if not isV:
            a(f"s_add_u32 s54, s54, {hex(WS_K)}")
            a(f"v_and_b32 v5, 0x33, v{vLANE}\nv_bfe_u32 v6, v{vLANE}, 2, 1\nv_lshl_add_u32 v5, v6, 3, v5\nv_bfe_u32 v6, v{vLANE}, 3, 1\nv_lshl_add_u32 v5, v6, 2, v5\nv_lshlrev_b32 v5, 4, v5")
            for h in range(4):
                for r in range(4): a(f"v_cvt_pk_bf16_f32 v{112+4*h+r}, v{ACC[1]+8*h+2*r}, v{ACC[1]+8*h+2*r+1}")
                vm.op(f"buffer_store_dwordx4 {vr(112+4*h,4)}, v5, {S['ws']}, s54 offen sc1")
                if h < 3: a("s_add_u32 s54, s54, 65536")
            a("s_branch La_kvd")
        else:
            a(f"s_add_u32 s54, s54, {hex(WS_V)}")
            a(f"v_and_b32 v6, 15, v{vLANE}\nv_lshlrev_b32 v6, 4, v6\nv_bfe_u32 v7, v{vLANE}, 5, 1\nv_lshl_add_u32 v6, v7, 8, v6\nv_bfe_u32 v7, v{vLANE}, 4, 1\nv_lshl_add_u32 v6, v7, 16, v6")
            for h in range(4):
                for r in range(4): a(f"v_cvt_pk_bf16_f32 v{112+4*h+r}, v{ACC[1]+8*h+2*r}, v{ACC[1]+8*h+2*r+1}")
                vm.op(f"buffer_store_dwordx4 {vr(112+4*h,4)}, v6, {S['ws']}, s54 offen offset:{512*(h&1)} sc1")
                if h == 1: a("s_add_u32 s54, s54, 131072")
    a("La_kvd:")
    stamp(a, 3)
    a(f"s_lshl_b32 s57, s{sW}, 10\ns_add_u32 s57, s57, {L_QX}\nv_add_u32 v7, s57, v{vL16}")
    a(f"s_lshl_b32 s58, s{sC}, 6\ns_add_u32 s58, s58, s{sT32}")
    flag_off(a, 51, 58, WS_FKV)
    tr_addr(a, 10, 12, True, 6, False)
    a(f"v_add_u32 v10, {L_WQ}, v10")
    a("s_barrier")
    WQ = [96, 100, 104, 108]
    early, late = att_setup(); fill = early + late; assert len(early) >= 12*5
    def rdQ(ks): return [(f"ds_read_b64_tr_b16 {vr(WQ[ks&3]+2*st,2)}, v10 offset:{1024*ks+512*st}", ("q", ks)) for st in range(2)]
    lg.reset()
    for x in rdQ(0) + rdQ(1) + rdQ(2): lg.op(*x)
    for ks in range(32):
        if ks + 3 < 32: [lg.op(*x) for x in rdQ(ks+3)]
        lg.wait(("q", ks))
        a(f"v_mfma_f32_32x32x16_bf16 {vr(ACC[0],16)}, {vr(WQ[ks&3],4)}, {vr(AF+4*ks,4)}, {vr(ACC[0],16)}")
        if ks == OPT.get("kvflag", 8): set_flag(a, vm, "s51", vZ, 8)
        else:
            for x in fill[:6]: a(x)
            fill = fill[6:]
    for x in fill: a(x)
    a(f"s_mov_b32 s53, {hx(0.25*LOG2E)}")
    for r in range(16): a(f"v_mul_f32 v{ACC[0]+r}, s53, v{ACC[0]+r}")
    for r in range(8): a(f"v_cvt_pk_bf16_f32 v{96+r}, v{ACC[0]+2*r}, v{ACC[0]+2*r+1}")
    a("ds_write_b128 v7, v[96:99]\nds_write_b128 v7, v[100:103] offset:4096")
    if OPT.get("qj", 1):
        a(f"v_mov_b32 v9, {L_SCR+264}\nv_mov_b32 v10, 1\ns_waitcnt lgkmcnt(0)\ns_mov_b64 exec, 1\nds_add_u32 v9, v10\ns_mov_b64 exec, -1")
        att_first(a, vm, OPT.get("fk", 0))
        q_join(a); att_q(a)
    else:
        a("s_waitcnt lgkmcnt(0)\ns_barrier")
        att_q(a)
        att_first(a, vm, OPT.get("fk", 0))

def active2(a):
    vm = Track(a, "vmcnt", 63); lg = Track(a, "lgkmcnt", 15)
    sT32, AF = 67, 128
    if OPT.get("ap", 1) & 1: a("s_setprio 1")
    ACC, WF, XR, GA, G2, XF = 16, [96, 100, 104, 108], vXR, 48, 64, 80
    a(f"s_getreg_b32 s50, hwreg(HW_REG_XCC_ID)\ns_and_b32 s50, s50, 15\ns_lshl_b32 s50, s50, 1\ns_add_u32 s50, s50, s{sTAG}\nv_cmp_ne_u32 vcc, s50, v{vXR+8}\nv_bfe_u32 v9, v{vLANE}, 5, 1\ns_cmp_eq_u64 vcc, 0\ns_cselect_b32 s{sLOC}, 1, 0")
    for q in range(4):
        for h in range(2): a(f"v_lshlrev_b32 v{XF+4*q+2*h}, 16, v{XR+2*q+h}\nv_and_b32 v{XF+4*q+2*h+1}, 0xffff0000, v{XR+2*q+h}")
    a(f"s_lshl_b32 s57, s{sT32}, 15\ns_lshl_b32 s58, s{sC}, 11\ns_add_u32 s57, s57, s58\ns_add_u32 s58, s57, {hex(WS_Y)}\ns_add_u32 s57, s57, {hex(WS_X1)}")
    a(f"s_lshl_b32 s54, s{sC}, 14\ns_lshl_b32 s55, s{sT32}, 8\ns_add_u32 s54, s54, s55\ns_add_u32 s54, s54, {hex(WS_STATS)}")
    a(f"s_lshl_b32 s55, s{sT32}, 4\ns_add_u32 s55, s55, s{sC}")
    flag_off(a, 56, 55, WS_FX1, LF())
    a(f"s_lshl_b32 s55, s{sT32}, {11-LF()}\ns_add_u32 s55, s55, {hex(WS_FX1)}")
    tr_addr(a, 10, 11, True, 6, False)
    for r in range(16): a(f"v_mov_b32 v{ACC+r}, 0")
    poll_addr(a, 5, LF())
    a(f"s_lshl_b32 s52, s{sT32}, {12-LF()}\ns_add_u32 s52, s52, {hex(WS_FO)}")
    stamp(a, 6, 8)
    set_flag(a, vm, "s64", vZ, 8, RO())
    stamp(a, 7); stamp(a, 7, 8)
    if OPT.get("b5e", 0):
        a(f"s_sleep {OPT['b5e']}")
        sig_regs(a, 126, 127); sig(a, "b5b", 126, 127)
    poll(a, vm, "0xffffffff", 5, "s52", 11, OPT.get("fo", 25) - OPT.get("b5e", 0))
    stamp(a, 8); stamp(a, 0, 2)
    a(f"s_lshl_b32 s52, s{sT32}, 15\ns_add_u32 s52, s52, {hex(WS_O)}")
    OL = rot_loads(a, vm, 52, AF, "o")
    for _ in range(OPT.get("b5b", 12)): vm.op(*next(OL)[1])
    if not OPT.get("b5e", 0): sig_regs(a, 126, 127); sig(a, "b5b", 126, 127)
    for _ in range(12 - OPT.get("b5b", 12)): vm.op(*next(OL)[1])
    a(f"v_lshlrev_b32 v6, 2, v{vLANE}\nv_lshlrev_b32 v5, 4, v9\nv_add_u32 v5, {L_GA}, v5")
    def rdWo(ks): return [(f"ds_read_b64_tr_b16 {vr(WF[ks&3]+2*st,2)}, v10 offset:{L_WO+1024*ks+512*st}", ("w", ks)) for st in range(2)]
    lg.reset()
    for x in rdWo(0) + rdWo(1) + rdWo(2): lg.op(*x)
    for ks in range(32):
        if ks + 3 < 32:
            for x in rdWo(ks+3): lg.op(*x)
        if ks == 28:
            lg.wait(("w", 31))
            a("s_barrier")
            for q in range(4): a(f"ds_read_b128 {vr(GA+4*q,4)}, v5 offset:{32*q}")
            for q in range(4): a(f"ds_read_b128 {vr(G2+4*q,4)}, v5 offset:{128+32*q}")
        lg.wait(("w", ks)); vm.wait(("o", ks))
        a(f"v_mfma_f32_32x32x16_bf16 {vr(ACC,16)}, {vr(WF[ks&3],4)}, {vr(AF+4*ks,4)}, {vr(ACC,16)}")
        if ks + 12 < 32: vm.op(*next(OL)[1])
        if ks == 19 and OPT.get("early", 0): sig(a, "b5c", 126, 127, lg)
        if ks % 4 == 0 or ks == 31: stamp(a, 1 + (ks+1)//4, 2)
    stamp(a, 10, 2)
    a("s_waitcnt lgkmcnt(4)")
    for r in range(16): a(f"v_fmac_f32 v{XF+r}, v{ACC+r}, v{GA+r}")
    a("s_waitcnt lgkmcnt(0)")
    for r in range(16): a(f"v_mul_f32 v{ACC+r}, v{XF+r}, v{G2+r}")
    for r in range(8): a(f"v_cvt_pk_bf16_f32 v{32+r}, v{ACC+2*r}, v{ACC+2*r+1}")
    vm.op(f"buffer_store_dwordx4 v[32:35], v{vL16}, {S['ws']}, s58 offen{RY()}"); vm.op(f"buffer_store_dwordx4 v[36:39], v{vL16}, {S['ws']}, s58 offen offset:1024{RY()}")
    a(f"v_pk_add_f32 v[48:49], {vr(XF,2)}, {vr(XF+2,2)}\nv_pk_mul_f32 v[50:51], {vr(XF,2)}, {vr(XF,2)}\nv_pk_fma_f32 v[50:51], {vr(XF+2,2)}, {vr(XF+2,2)}, v[50:51]")
    for r in range(4, 16, 2): a(f"v_pk_add_f32 v[48:49], v[48:49], {vr(XF+r,2)}\nv_pk_fma_f32 v[50:51], {vr(XF+r,2)}, {vr(XF+r,2)}, v[50:51]")
    a("v_add_f32 v48, v48, v49\nv_add_f32 v49, v50, v51")
    for r in range(8): a(f"v_cvt_pk_bf16_f32 v{40+r}, v{XF+2*r}, v{XF+2*r+1}")
    a("v_permlane32_swap_b32 v48, v49\nv_add_f32 v48, v48, v49")
    vm.op(f"buffer_store_dword v48, v6, {S['ws']}, s54 offen{RY()}")
    vm.op(f"buffer_store_dwordx4 v[40:43], v{vL16}, {S['ws']}, s57 offen sc1"); vm.op(f"buffer_store_dwordx4 v[44:47], v{vL16}, {S['ws']}, s57 offen offset:1024 sc1")
    stamp(a, 11, 2)
    ACC, WF, WH, ST = 16, [80, 92, 104], [116, 120], 240
    vF, vH = [10, 11, 12, 13], [4, 7, 14, 15]
    tr_addr(a, 10, 11, True, 6, False)
    a(f"v_add_u32 v10, {L_W1}, v10\nv_add_u32 v11, 0x8000, v10\nv_add_u32 v12, 0x10000, v10\nv_add_u32 v13, 0x18000, v10")
    half_tr_addr(a, 4, 7)
    a(f"v_add_u32 v4, {L_W1}, v4\nv_add_u32 v7, 0x8000, v4\nv_add_u32 v14, 0x10000, v4\nv_add_u32 v15, 0x18000, v4")
    a(f"v_and_b32 v8, 16, v0\nv_cmp_eq_u32 vcc, 0, v8\nv_mov_b32 v8, 0xeeeeeeee\nv_mov_b32 v5, 0x44444444\nv_cndmask_b32 v8, v8, v5, vcc")
    for r in range(64): a(f"v_mov_b32 v{ACC+r}, 0")
    poll_addr(a, 5, LF())
    set_flag_rg(a, vm, "s56", 9)
    stamp(a, 9); stamp(a, 12, 2)
    poll(a, vm, "0xffff", 5, "s55", 125, OPT.get("fx", 4))
    stamp(a, 10); stamp(a, 0, 3)
    a(f"s_lshl_b32 s52, s{sT32}, 15\ns_add_u32 s52, s52, {hex(WS_Y)}")
    a(f"s_lshl_b32 s54, s{sT32}, 8\ns_add_u32 s54, s54, {hex(WS_STATS)}")
    YL = rot_loads(a, vm, 52, AF, "y")
    for _ in range(4): vm.op(*next(YL)[1])
    for q in range(16):
        vm.op(f"buffer_load_dword v{ST+q}, v6, {S['ws']}, s54 offen sc1", "st"); a("s_add_u32 s54, s54, 16384")
    for _ in range(8): vm.op(*next(YL)[1])
    lg.reset()
    def rdW1(ks): return [(x, ("w", ks)) for x in w1_reads(ks//2, ks & 1, WF[ks % 3], vF)]
    for x in rdW1(0) + rdW1(1): lg.op(*x)
    TT, UB = 128, 184
    side = {}
    side[(6, 0)] = ["v_mov_b32 v125, v124", f"v_bfe_u32 v5, v{vLANE}, 5, 1", "v_lshlrev_b32 v9, 7, v5", "v_permlane32_swap_b32 v124, v125"]
    side[(6, 1)] = [f"v_add_u32 v9, {L_UW}, v9", f"v_mul_f32 v124, {hx(1/512)}, v124", f"v_mul_f32 v125, {hx(1/512)}, v125", "v_fma_f32 v125, -v124, v124, v125"]
    side[(6, 2)] = ["v_max_f32 v125, 0, v125", f"v_add_f32 v125, {hx(1e-5)}, v125", "v_rsq_f32 v125, v125"]
    side[(7, 0)] = [f"v_mul_f32 v5, {hx(-LOG2E)}, v125", "v_mul_f32 v125, v5, v124", "v_sub_f32 v125, 0, v125", "v_mov_b32 v124, v5"]
    side[(7, 1)] = [f"s_lshl_b32 s55, s{sT32}, 4", f"s_add_u32 s55, s55, s{sC}", f"s_lshr_b32 s50, s55, {LF()}", "s_lshl_b32 s50, s50, 7", f"s_and_b32 s56, s55, {(1 << LF()) - 1}"]
    side[(7, 2)] = ["s_lshl_b32 s56, s56, 2", "s_add_u32 s56, s56, s50", f"s_add_u32 s56, s56, {hex(WS_FH)}"]
    side[(12, 0)] = [f"s_mul_i32 s52, s{sT32}, {112*1024}", f"s_mul_i32 s53, s{sC}, 7168", "s_add_u32 s52, s52, s53", f"s_add_u32 s52, s52, {hex(WS_H)}"]
    if ONEWAY(): side[(13, 2)] = ["uwrd"]; side[(15, 1)] = ["uwck"]
    for m in range(7):
        ks = 16 + 2*m
        rw = lambda j: f"ds_read_b128 {vr(TT+4*j,4)}, v9 offset:{256*(j//4)+64+16*(j%4)}"
        ru = lambda j: f"ds_read_b128 {vr(UB+4*(j&1),4)}, v9 offset:{256*(j//4)+16*(j%4)}"
        fm = lambda j: [f"v_fmac_f32 v{TT+4*j+r}, v125, v{UB+4*(j&1)+r}" for r in range(4)]
        side.setdefault((ks+2, 1), []).extend([f"wait{ks+1}"] + fm(2*m))
        side.setdefault((ks+2, 2), []).extend(fm(2*m+1))
        side.setdefault((ks, 2), []).append(rw(2*m))
        side.setdefault((ks+1, 2), []).extend([ru(2*m), rw(2*m+1), ru(2*m+1)])
    for kp in range(16):
        for e in range(2):
            ks = 2*kp + e
            R = rdW1(ks+2) if ks + 2 < 32 else []
            if e == 0: R = [(x, ("h", kp)) for x in w1_half_reads(kp, WH[kp & 1], vH)] + R
            lg.wait(("w", ks)); vm.wait(("y", ks))
            for nt in range(3):
                a(f"v_mfma_f32_32x32x16_bf16 {vr(ACC+16*nt,16)}, {vr(WF[ks%3]+4*nt,4)}, {vr(AF+4*ks,4)}, {vr(ACC+16*nt,16)}")
                [lg.op(*x) for x in R[3*nt:3*nt+3]]
                if nt >= 1:
                    j = 12 + 2*ks + nt - 1
                    if j < 32: vm.op(*next(YL)[1])
                if ks in (4, 5):
                    for q in (((0, 8), (1, 9), (2, 10)), ((3, 11), (4, 12), (5, 13)), ((6, 14), (7, 15)))[nt] if ks == 4 else (((0, 4), (1, 5), (2, 6), (3, 7)), ((0, 2), (1, 3)), ())[nt]:
                        a(f"v_add_f32 v{ST+q[0]}, v{ST+q[0]}, v{ST+q[1]}")
                    if ks == 5 and nt == 2: a(f"v_add_f32 v124, v{ST}, v{ST+1}")
                for x in side.get((ks, nt), []):
                    if x.startswith("ds_"): lg.op(x, ("u", ks))
                    elif x.startswith("wait"): lg.wait(("u", int(x[4:])))
                    elif x == "uwrd": lg.op(f"ds_read_b32 v5, v126 offset:{4*CNT['uw']}", "cnt")
                    elif x == "uwck": lg.wait("cnt"); await_(a, "uw", 126, 5, True)
                    else: a(x)
            if e == 1:
                lg.wait(("h", kp))
                a(f"v_smfmac_f32_32x32x32_bf16 {vr(ACC+48,16)}, {vr(WH[kp&1],4)}, {vr(AF+8*kp,8)}, v8")
                if kp % 2 == 0 or kp == 15: stamp(a, 1 + (kp+1)//2, 3)
                if kp == OPT.get("b6b", 4): sig(a, "b6b", 126, 127, lg)
    sig(a, "b7", 126, 127)
    stamp(a, 11)
    E = 80
    for r in range(8): a(f"v_add_f32 v{ACC+48+r}, v{ACC+48+r}, v{ACC+56+r}")
    for nt in range(4):
        t = TT + 16*nt; acc = ACC + 16*nt; n = 16 if nt < 3 else 8
        for r in range(0, n, 2): a(f"v_pk_fma_f32 {vr(acc+r,2)}, {vr(acc+r,2)}, v[124:125], {vr(t+r,2)} op_sel:[0,0,0] op_sel_hi:[1,0,1]")
        for r in range(n): a(f"v_exp_f32 v{E+r}, v{acc+r}")
        for r in range(0, n, 2): a(f"v_pk_add_f32 {vr(E+r,2)}, {vr(E+r,2)}, 1.0 op_sel_hi:[1,0]")
        for r in range(n): a(f"v_rcp_f32 v{E+r}, v{E+r}")
        for r in range(0, n, 2): a(f"v_pk_mul_f32 {vr(acc+r,2)}, {vr(acc+r,2)}, {vr(E+r,2)}")
        o = 208 + 8*nt
        for r in range(n//2): a(f"v_cvt_pk_bf16_f32 v{o+r}, v{acc+2*r}, v{acc+2*r+1}")
        if nt == 2: a("s_add_u32 s52, s52, 4096")
        vm.op(f"buffer_store_dwordx4 {vr(o,4)}, v{vL16}, {S['ws']}, s52 offen offset:{2048*(nt&1)}{RG()}")
        if nt < 3: vm.op(f"buffer_store_dwordx4 {vr(o+4,4)}, v{vL16}, {S['ws']}, s52 offen offset:{2048*(nt&1)+1024}{RG()}")
        stamp(a, 10 + nt, 3)
        if nt == 1: vm.q = [("ha", 0)]*len(vm.q)
        if nt == OPT.get("fa", 2) and OPT.get("h2", 0):
            vm.wait(("ha", 0))
            a(f"v_mov_b32 v9, s{sTAG}\ns_mov_b64 exec, 1")
            vm.op(f"buffer_store_dword v9, v{vZ}, {S['ws']}, s56 offen sc1")
            a(f"s_mov_b64 exec, -1\ns_add_u32 s56, s56, {FH_B}")
    stamp(a, 14, 3)
    ACC, WF, GB, XR, NR = [16, 32], [48, 56, 88], 64, 80, 32
    sTT, sKH, sT5, sF5 = 54, 55, 57, 58
    a(f"s_and_b32 s{sTT}, s{sW}, 1\ns_lshr_b32 s{sKH}, s{sW}, 1")
    a(f"s_lshr_b32 s52, s{sC}, 3\ns_lshl_b32 s52, s52, 1\ns_lshl_b32 s{sT5}, s{sTB}, 2\ns_add_u32 s{sT5}, s{sT5}, s52\ns_add_u32 s{sT5}, s{sT5}, s{sTT}")
    a(f"s_and_b32 s{sF5}, s{sC}, 7\ns_lshl_b32 s{sF5}, s{sF5}, 1\ns_add_u32 s{sF5}, s{sF5}, s{sKH}")
    tr_addr(a, 10, 11, True, 7, True)
    a(f"s_lshl_b32 s52, s{sKH}, 6\nv_xor_b32 v10, s52, v10\ns_lshl_b32 s52, s{sKH}, 13\nv_add_u32 v10, s52, v10\nv_xor_b32 v11, 64, v10")
    for r in range(32): a(f"v_mov_b32 v{16+r}, 0")
    poll_addr(a, 5, LF())
    a(f"s_lshl_b32 s52, s{sT5}, {11-LF()}\ns_lshl_b32 s53, s{sKH}, {10-LF()}\ns_add_u32 s52, s52, s53\ns_add_u32 s52, s52, {hex(WS_FH)}")
    a(f"s_lshl_b32 s61, s{sT5}, 15\ns_lshl_b32 s59, s{sF5}, 11\ns_add_u32 s61, s61, s59\ns_add_u32 s61, s61, {hex(WS_X1)}")
    H2 = OPT.get("h2", 0)
    a(f"s_add_u32 s62, s52, {FH_B}")
    if H2:
        a(f"s_mov_b64 exec, 0xff")
        vm.op(f"buffer_load_dword v6, v5, {S['ws']}, s52 offen sc1", "fa")
        a("s_mov_b64 exec, -1")
        set_flag_rg(a, vm, "s56", 9)
        stamp(a, 12)
        a(f"s_mov_b64 exec, 0xff\nv_cmp_ne_u32 vcc, s{sTAG}, v6\ns_mov_b64 exec, -1\ns_cbranch_vccz La_haok")
        poll(a, vm, "0xff", 5, "s52", 6, 2)
        a("La_haok:")
        vm.q = [None]
    else:
        set_flag_rg(a, vm, "s56", 9)
        stamp(a, 12)
        poll(a, vm, "0xff", 5, "s52", 6, OPT.get("fh", 4))
    stamp(a, 13); stamp(a, 0, 4)
    a(f"s_mul_i32 s52, s{sT5}, {112*1024}\ns_mul_i32 s53, s{sKH}, {56*1024}\ns_add_u32 s52, s52, s53\ns_add_u32 s52, s52, {hex(WS_H)}")
    def ldH(ks):
        p, j = h_pj(ks)
        if j in (0, 4): a(f"s_add_u32 s53, s{sR}, {p}\ns_and_b32 s53, s53, 7\ns_mul_i32 s53, s53, 7168\ns_add_u32 s53, s53, s52" + ("\ns_add_u32 s53, s53, 4096" if j else ""))
        vm.op(f"buffer_load_dwordx4 {vr(AF+4*(ks%NR),4)}, v{vL16}, {S['ws']}, s53 offen offset:{1024*(j%4)}{RL()}", ("h", ks))
    PF = OPT.get('pf5', 12)
    for ks in range(PF):
        ldH(ks)
        if ks == 7: a("s_barrier")
    slot = lambda s: s if s < 9 else s - 9
    def rdW2(ks):
        s, k = ks // 4, ks % 4
        return [(f"ds_read_b64_tr_b16 {vr(WF[ks%3]+4*n+2*st,2)}, v{12+n} offset:{2048*k+1024*st}", ("w", ks)) for n in range(2) for st in range(2)]
    def setslot(s): a(f"v_add_u32 v12, {16384*slot(s)}, v10\nv_add_u32 v13, {16384*slot(s)}, v11")
    lg.reset(); setslot(0)
    for x in rdW2(0) + rdW2(1): lg.op(*x)
    for ks in range(56):
        n = ks + 2
        lg.wait(("w", ks))
        if ks in (11, 19): sig(a, "b9" if ks == 11 else "b10", 126, 127, lg)
        if ONEWAY() and n + 2 in (36, 48): lg.op(f"ds_read_b32 v125, v126 offset:{4*CNT['b11' if n + 2 == 36 else 'b12']}", "cnt")
        if n < 56 and n % 4 == 0:
            if n // 4 in (9, 12):
                lg.wait("cnt"); await_(a, "b11" if n == 36 else "b12", 126, 125, True)
            setslot(n // 4)
        vm.wait(("h", ks))
        a(f"v_mfma_f32_32x32x16_bf16 {vr(ACC[0],16)}, {vr(WF[ks%3],4)}, {vr(AF+4*(ks%NR),4)}, {vr(ACC[0],16)}")
        if n < 56: [lg.op(*x) for x in rdW2(n)]
        a(f"v_mfma_f32_32x32x16_bf16 {vr(ACC[1],16)}, {vr(WF[ks%3]+4,4)}, {vr(AF+4*(ks%NR),4)}, {vr(ACC[1],16)}")
        if H2 and ks == OPT.get("fb", 10):
            a("s_mov_b64 exec, 0xff"); vm.op(f"buffer_load_dword v6, v5, {S['ws']}, s62 offen sc1", "fb"); a("s_mov_b64 exec, -1")
        if H2 and ks + PF == 32:
            vm.wait("fb")
            a(f"s_mov_b64 exec, 0xff\nv_cmp_ne_u32 vcc, s{sTAG}, v6\ns_mov_b64 exec, -1\ns_cbranch_vccz La_hbok")
            q0 = list(vm.q)
            poll(a, vm, "0xff", 5, "s62", 6, 0)
            vm.q = q0
            a("La_hbok:")
        if ks + PF < 56: ldH(ks + PF)
        if ks == 44:
            for q in range(2): vm.op(f"buffer_load_dwordx4 {vr(XR+4*q,4)}, v{vL16}, {S['ws']}, s61 offen offset:{1024*q} sc1", "x1")
        if ks % 4 == 3: stamp(a, 1 + ks//4, 4)
    stamp(a, 14)
    vm.wait("x1")
    a(f"s_xor_b32 s52, s{sW}, 2\ns_lshl_b32 s52, s52, 12\ns_add_u32 s52, s52, {16384*5}\nv_add_u32 v5, s52, v{vL16}")
    a(f"s_lshl_b32 s52, s{sW}, 12\ns_add_u32 s52, s52, {16384*5}\nv_add_u32 v6, s52, v{vL16}")
    a(f"v_bfe_u32 v9, v{vLANE}, 5, 1\nv_lshlrev_b32 v7, 4, v9\ns_lshl_b32 s52, s{sKH}, 7\ns_add_u32 s52, s52, {L_GB}\nv_add_u32 v7, s52, v7")
    for q in range(4): a(f"ds_read_b128 {vr(GB+4*q,4)}, v7 offset:{32*q}")
    XF = 96
    for r in range(8): a(f"v_lshlrev_b32 v{XF+2*r}, 16, v{XR+r}\nv_and_b32 v{XF+2*r+1}, 0xffff0000, v{XR+r}")
    for q in range(4): a(f"ds_write_b128 v5, {vr(ACC[1]+4*q,4)} offset:{1024*q}")
    a("s_waitcnt lgkmcnt(0)\ns_barrier")
    for q in range(4): a(f"ds_read_b128 {vr(ACC[1]+4*q,4)}, v6 offset:{1024*q}")
    a(f"v_and_b32 v7, 31, v{vLANE}\nv_lshlrev_b32 v8, 10, v7\nv_lshl_add_u32 v8, v9, 4, v8")
    a(f"s_lshl_b32 s52, s{sT5}, 15\ns_lshl_b32 s53, s{sF5}, 6\ns_add_u32 s52, s52, s53")
    for q in range(4):
        a(f"s_waitcnt lgkmcnt({3-q})")
        for r in range(4*q, 4*q+4): a(f"v_add_f32 v{ACC[0]+r}, v{ACC[0]+r}, v{ACC[1]+r}")
        for r in range(4*q, 4*q+4): a(f"v_fmac_f32 v{XF+r}, v{ACC[0]+r}, v{GB+r}")
    for r in range(8): a(f"v_cvt_pk_bf16_f32 v{64+r}, v{XF+2*r}, v{XF+2*r+1}")
    ofl = ['', ' sc1', ' nt', ' sc0 sc1', ' sc1 nt'][OPT.get('osc', 0)]
    if OPT.get("otr", 0):
        a(f"s_mul_i32 s53, s{sW}, 2560\ns_add_u32 s53, s53, {16384*6}\nv_mul_u32_u24 v5, 80, v7\nv_lshl_add_u32 v5, v9, 4, v5\nv_add_u32 v5, s53, v5")
        a(f"v_lshrrev_b32 v6, 2, v{vLANE}\nv_and_b32 v7, 3, v{vLANE}\nv_lshlrev_b32 v8, 10, v6\nv_lshl_add_u32 v8, v7, 4, v8\nv_mul_u32_u24 v6, 80, v6\nv_lshl_add_u32 v6, v7, 4, v6\nv_add_u32 v6, s53, v6")
        for p in range(2):
            a(f"v_permlane32_swap_b32 v{64+4*p}, v{64+4*p+2}\nv_permlane32_swap_b32 v{64+4*p+1}, v{64+4*p+3}")
            a(f"ds_write_b128 v5, {vr(64+4*p,4)} offset:{32*p}")
        a("s_add_u32 s53, s52, 16384\ns_waitcnt lgkmcnt(0)")
        for p in range(2): a(f"ds_read_b128 {vr(72+4*p,4)}, v6 offset:{1280*p}")
        for p in range(2):
            a(f"s_waitcnt lgkmcnt({1-p})")
            vm.op(f"buffer_store_dwordx4 {vr(72+4*p,4)}, v8, {S['out']}, s{52+p} offen{ofl}")
    else:
        for p in range(2):
            a(f"v_permlane32_swap_b32 v{64+4*p}, v{64+4*p+2}\nv_permlane32_swap_b32 v{64+4*p+1}, v{64+4*p+3}")
            vm.op(f"buffer_store_dwordx4 {vr(64+4*p,4)}, v8, {S['out']}, s52 offen offset:{32*p}{ofl}")

def wq_loop(a):
    a(f"v_lshrrev_b32 v4, 2, v{vLANE}\nv_mul_u32_u24 v4, 3072, v4\nv_and_b32 v5, 3, v{vLANE}\nv_lshl_add_u32 v4, v5, 4, v4")
    a(f"s_lshl_b32 s55, s{sR}, 2\ns_add_u32 s55, s55, s67\ns_lshl_b32 s53, s67, 10\ns_add_u32 s53, s53, {L_WQ}\ns_lshl_b32 s56, s{sC}, 6\ns_mov_b32 s51, 8\nLh_ql:")
    a(f"s_and_b32 s52, s55, 31\ns_mul_i32 s52, s52, {16*3072}\ns_mov_b32 m0, s53\ns_add_u32 s52, s52, s56")
    a(f"buffer_load_dwordx4 v4, {S['wqkv']}, s52 offen lds")
    a(f"s_add_u32 s55, s55, 4\ns_add_u32 s53, s53, 4096\ns_sub_u32 s51, s51, 1\ns_cmp_lg_u32 s51, 0\ns_cbranch_scc1 Lh_ql")

def helper(a):
    vm = Track(a, "vmcnt", 63)
    sH, sCol = 67, 66
    a("Lh_b2:")
    a("s_waitcnt vmcnt(0) lgkmcnt(0)\ns_barrier")
    if OPT.get("whalf", 0):
        a(f"s_add_u32 s55, s{sH}, {4*OPT['whalf']}\ns_mov_b32 s51, {8-OPT['whalf']}\ns_mov_b32 s56, s59\ns_mov_b32 s57, s60")
        wkv_loop(a, "Lh_wl2")
    if OPT.get("st", 7) & 2:
        a(f"s_lshl_b32 s57, s2, 2\ns_add_u32 s57, s57, s{sH}\ns_lshl_b32 s58, s57, 9\ns_mul_i32 s57, s57, {5*128}\ns_add_u32 s57, s57, {9216*128}")
        for n in range(3): a(stouch("w1", 57, n))
    if OPT.get("whalf", 0): a("s_waitcnt vmcnt(0)")
    a("s_barrier")
    wq_loop(a)
    if OPT.get("st", 7) & 2:
        for n in range(3, 5): a(stouch("w1", 57, n))
        a(stouch("wo", 58, 0))
    a("s_waitcnt vmcnt(0)")
    if OPT.get("touch", 0) == 1: mall_touch(a)
    stamp(a, 2)
    a("s_barrier")
    if OPT.get("st", 7) & 2:
        for n in range(1, 4): a(stouch("wo", 58, n))
    early, late = att_setup()
    for x in early + late: a(x)
    if OPT.get("hearly", 1):
        att_first(a, vm, OPT.get("fkh", 24))
        if OPT.get("qj", 1): q_join(a)
        else: a("s_barrier")
        att_q(a)
    else:
        a("s_barrier")
        att_q(a)
        att_first(a, vm, OPT.get("fk", 0))

def helper2(a):
    vm = Track(a, "vmcnt", 63); lg = Track(a, "lgkmcnt", 15)
    sH = 67
    MF = OPT.get("mf", 0)
    if MF:
        a(f"s_sub_u32 s52, s{sI}, 8\ns_cmp_ge_u32 s52, 16\ns_cbranch_scc1 Lh_nomod1")
        mod_partial(a, vm, vMOD)
        if MF == 2: mod_join(a, vm, 66, "Lh_nomod1")
        a("Lh_nomod1:")
    stamp(a, 6, 8)
    set_flag(a, vm, "s64", vZ, 8, RO())
    stamp(a, 7); stamp(a, 7, 8)
    vF, vH = 13, 14
    a(f"s_sub_u32 s52, s{sI}, 8\ns_cmp_ge_u32 s52, 16\ns_cbranch_scc1 Lh_nomod2")
    if not MF: mod_partial(a, vm, vMOD)
    if MF < 2: mod_join(a, vm, 66, "Lh_nomod2")
    a("Lh_nomod2:")
    def w2_touch():
        a(f"s_mul_i32 s52, s{sI}, 7\ns_lshl_b32 s53, s{sH}, 1\ns_add_u32 s52, s52, s53\ns_lshl_b32 s52, s52, 13\nv_lshlrev_b32 v5, 7, v{vLANE}")
        a(f"buffer_load_dword v248, v5, {S['w2']}, s52 offen\ns_add_u32 s52, s52, 8192\nbuffer_load_dword v248, v5, {S['w2']}, s52 offen")
    if OPT.get("w2s") == 1: w2_touch()
    sig_regs(a, 12, 13)
    await_(a, "b5b", 12, 14)
    a(f"v_lshlrev_b32 v4, 5, v{vLANE}\ns_lshl_b32 s52, s{sH}, 11\ns_add_u32 s52, s52, 4096")
    gran_poll(a, vm, [f"buffer_load_dwordx4 v[16:19], v4, {S['ws']}, s52 offen sc1", f"buffer_load_dwordx4 v[20:23], v4, {S['ws']}, s52 offen offset:16 sc1"], [16, 20], OPT.get("ng2", 0))
    for j, r in enumerate((16, 18, 20, 22)): a(f"v_lshlrev_b32 v{24+2*j}, 16, v{r}\nv_and_b32 v{25+2*j}, 0xffff0000, v{r}")
    a(f"s_cmp_eq_u32 s{sH}, 1\ns_cbranch_scc1 Lh_tabg")
    a(f"s_cmp_eq_u32 s{sH}, 3\ns_cselect_b32 s53, {hx(-1/LOG2E)}, 1.0")
    a(f"s_lshl_b32 s54, s{sC}, 2\ns_and_b32 s55, s{sC}, 7\ns_lshl_b32 s55, s55, 3\ns_lshl_b32 s56, s{sH}, 6\ns_cmp_eq_u32 s{sH}, 3\ns_cselect_b32 s54, s55, s54\ns_cselect_b32 s55, 8, 4")
    a(f"s_cselect_b32 s56, 256, s56\ns_add_u32 s56, s56, {L_TAB}")
    for r in range(8): a(f"v_mul_f32 v{24+r}, s53, v{24+r}")
    a(f"v_subrev_u32 v5, s54, v{vLANE}\nv_cmp_gt_u32 vcc, s55, v5\nv_lshlrev_b32 v5, 5, v5\nv_add_u32 v5, s56, v5")
    a("s_and_saveexec_b64 s[56:57], vcc\nds_write_b128 v5, v[24:27]\nds_write_b128 v5, v[28:31] offset:16\ns_mov_b64 exec, -1")
    a(f"s_cmp_lg_u32 s{sH}, 2\ns_cbranch_scc1 Lh_tabd")
    a("Lh_tabg:")
    a(f"v_lshrrev_b32 v5, 1, v{vLANE}\ns_lshl_b32 s53, s{sR}, 2\nv_subrev_u32 v5, s53, v5\nv_and_b32 v5, 31, v5\nv_lshlrev_b32 v5, 6, v5\nv_and_b32 v6, 1, v{vLANE}\nv_lshl_add_u32 v5, v6, 3, v5")
    a(f"s_and_b32 s53, s{sH}, 1\ns_lshl_b32 s53, s53, 4\ns_add_u32 s53, s53, {L_G}\nv_add_u32 v5, s53, v5")
    a("v_mov_b32 v17, v18\nv_mov_b32 v21, v22\nds_write_b64 v5, v[16:17]\nds_write_b64 v5, v[20:21] offset:32")
    a("Lh_tabd:")
    vW2 = 10
    a(f"v_lshrrev_b32 v{vW2}, 3, v{vLANE}\nv_lshlrev_b32 v{vW2}, 10, v{vW2}\nv_bfe_u32 v5, v{vLANE}, 4, 1\nv_lshlrev_b32 v5, 2, v5\nv_xor_b32 v5, v5, v{vLANE}\nv_and_b32 v5, 7, v5\nv_lshl_add_u32 v{vW2}, v5, 4, v{vW2}")
    a(f"s_lshl_b32 s58, s{sR}, 7\ns_lshl_b32 s59, s{sH}, 11")
    def w2_row(s):
        if s < 8:
            a(f"s_add_u32 s61, s{sR}, {s}\ns_and_b32 s61, s61, 7\ns_mul_i32 s61, s61, 7\ns_add_u32 s61, s61, s{sH}")
        else:
            a(f"s_add_u32 s60, s{sH}, {4*(s-8)}\ns_mul_i32 s61, s60, 43\ns_lshr_b32 s61, s61, 7\ns_mul_i32 s62, s61, 3\ns_sub_u32 s60, s60, s62")
            a(f"s_add_u32 s61, s61, s{sR}\ns_and_b32 s61, s61, 7\ns_mul_i32 s61, s61, 7\ns_add_u32 s61, s61, s60\ns_add_u32 s61, s61, 4")
        a("s_lshl_b32 s61, s61, 14\ns_add_u32 s61, s61, s58")
    NREG = OPT.get("nreg", 10); S0 = 14 - NREG; RB = 48
    def w2_reg(s):
        w2_row(s)
        for j in range(4):
            a(f"s_add_u32 s52, s61, {56*(j>>1)*16384+8192*(j&1)}")
            vm.op(f"buffer_load_dwordx4 {vr(RB+16*(s-S0)+4*j,4)}, v{vW2}, {S['w2']}, s52 offen", ("w2r", s))
    EARLY = list(range(14 - OPT.get("early", 0), 14))
    if EARLY:
        a("s_waitcnt lgkmcnt(0)"); await_(a, "b5c", 12, 14)
        for s_ in EARLY: w2_reg(s_)
    if OPT.get("w2s") == 2:
        a("s_waitcnt lgkmcnt(0)"); w2_touch()
    else: a("s_waitcnt lgkmcnt(0)")
    stamp(a, 8)
    a("s_barrier")
    def w2_stage(s, thr=None):
        sl = s if s < 9 else s - 9
        w2_row(s)
        for kh in range(2):
            for hf in range(2):
                a(f"s_add_u32 m0, s59, {16384*sl+8192*kh+1024*hf}\ns_add_u32 s52, s61, {56*kh*16384+8192*hf}")
                vm.op(f"buffer_load_dwordx4 v{vW2}, {S['w2']}, s52 offen lds", ("w2", s))
        if thr: vm.wait(("w2", s-1))
    W01 = OPT.get('w01', 2)
    if W01 == 0: w2_stage(0); w2_stage(1)
    ACC, GF, WF = 16, 32, 48
    a(f"v_bfe_u32 v9, v{vLANE}, 5, 1\nv_lshlrev_b32 v6, 5, v9\nv_and_b32 v5, 1, v{vLANE}\nv_lshl_add_u32 v6, v5, 4, v6\nv_add_u32 v6, {L_G}, v6")
    for r in range(16): a(f"v_mov_b32 v{ACC+r}, 0")
    GZ = OPT.get("gz", 1)
    for r in range(8): a(f"v_mov_b32 v{GF+r}, 0")
    a("s_mov_b32 s56, 3\ns_mov_b32 s57, 3")
    def rdG(e): a(("s_mov_b64 exec, s[56:57]\n" if GZ else "") + f"ds_read_b128 {vr(GF+4*e,4)}, v6 offset:{64*e}" + ("\ns_mov_b64 exec, -1" if GZ else ""))
    a(f"s_cmp_eq_u32 s{sH}, 3\ns_cbranch_scc1 Lh_uwh")
    tr_addr(a, 4, 5, True, 6, False)
    a(f"s_lshl_b32 s52, s{sH}, 10\ns_add_u32 s52, s52, {L_W1}\nv_add_u32 v4, s52, v4\ns_mov_b32 s51, 16")
    a("Lh_uwl:")
    for e in range(2):
        rdG(e)
        for st in range(2): a(f"ds_read_b64_tr_b16 {vr(WF+4*e+2*st,2)}, v4 offset:{3072*e+512*st}")
    a("v_add_u32 v4, 7168, v4\nv_add_u32 v6, 128, v6\ns_sub_u32 s51, s51, 1")
    for e in range(2):
        a(f"s_waitcnt lgkmcnt({3-3*e})")
        a(f"v_mfma_f32_32x32x16_bf16 {vr(ACC,16)}, {vr(WF+4*e,4)}, {vr(GF+4*e,4)}, {vr(ACC,16)}")
    a("s_cmp_lg_u32 s51, 0\ns_cbranch_scc1 Lh_uwl")
    a("s_branch Lh_uwd")
    a("Lh_uwh:")
    half_tr_addr(a, 4, 5)
    a(f"v_add_u32 v4, {L_W1+6144}, v4\ns_mov_b32 s51, 16")
    a(f"v_and_b32 v8, 16, v0\nv_cmp_eq_u32 vcc, 0, v8\nv_mov_b32 v8, 0xeeeeeeee\nv_mov_b32 v5, 0x44444444\nv_cndmask_b32 v8, v8, v5, vcc")
    a("Lh_uwhl:")
    for e in range(2): rdG(e)
    for st in range(2): a(f"ds_read_b64_tr_b16 {vr(WF+2*st,2)}, v4 offset:{256*st}")
    a("v_add_u32 v4, 7168, v4\nv_add_u32 v6, 128, v6\ns_sub_u32 s51, s51, 1\ns_waitcnt lgkmcnt(0)")
    a(f"v_smfmac_f32_32x32x32_bf16 {vr(ACC,16)}, {vr(WF,4)}, {vr(GF,8)}, v8")
    a("s_cmp_lg_u32 s51, 0\ns_cbranch_scc1 Lh_uwhl")
    a("s_nop 7\ns_nop 3")
    for r in range(8): a(f"v_add_f32 v{ACC+r}, v{ACC+r}, v{ACC+8+r}")
    a("Lh_uwd:")
    a(f"v_and_b32 v5, 1, v{vLANE}\nv_cmp_eq_u32 vcc, 1, v5\nv_mov_b32 v7, {hx(-LOG2E)}\nv_cndmask_b32 v7, 1.0, v7, vcc")
    a(f"v_lshlrev_b32 v6, 7, v9\nv_lshl_add_u32 v6, v5, 6, v6\ns_lshl_b32 s52, s{sH}, 8\ns_add_u32 s52, s52, {L_UW}\nv_add_u32 v6, s52, v6")
    a("s_nop 3")
    for r in range(16): a(f"v_mul_f32 v{ACC+r}, v{ACC+r}, v7")
    a("s_mov_b32 exec_lo, 3\ns_mov_b32 exec_hi, 3")
    for q in range(4): a(f"ds_write_b128 v6, {vr(ACC+4*q,4)} offset:{16*q}")
    a("s_mov_b64 exec, -1\ns_waitcnt lgkmcnt(0)")
    stamp(a, 9)
    if W01 == 2: w2_stage(0); w2_stage(1)
    if ONEWAY(): sig(a, "uw", 12, 13); await_(a, "uw", 12, 14)
    await_(a, "b6b", 12, 14)
    if W01 == 1: w2_stage(0); w2_stage(1)
    if OPT.get("e23", 0) and S0 == 4: w2_stage(2); w2_stage(3)
    if not OPT.get("now2"):
        for s in range(S0, 14):
            if s not in EARLY: w2_reg(s)
    await_(a, "b7", 12, 14)
    a(f"v_add_u32 v4, s59, v{vL16}\nv_add_u32 v5, 0x10000, v4\nv_add_u32 v6, 0x20000, v4")
    def w2_put(s):
        sl = s if s < 9 else s - 9
        for j in range(4): a(f"ds_write_b128 v{4 + sl//4}, {vr(RB+16*(s-S0)+4*j,4)} offset:{16384*(sl%4)+8192*(j>>1)+1024*(j&1)}")
    if not (OPT.get('e23', 0) and S0 == 4):
        for s in range(2, S0): w2_stage(s, True)
    for s in range(S0, 9):
        vm.wait(("w2r", s)); w2_put(s)
        if (s - S0) % 2 == 1: a("s_waitcnt lgkmcnt(4)")
    vm.wait_all()
    a("s_waitcnt lgkmcnt(0)")
    stamp(a, 12)
    a("s_barrier")
    if OPT.get("fast") and OPT.get("wb", 1):
        a(f"s_lshl_b32 s52, s{sC}, 2\ns_add_u32 s52, s52, s{sH}\ns_cmp_lg_u32 s52, 0\ns_cbranch_scc1 Lh_nowb\nbuffer_wbl2 sc1\nLh_nowb:")
    await_(a, "b9", 12, 14)
    for s in (9, 10, 11): w2_put(s)
    if ONEWAY(): a("s_waitcnt lgkmcnt(0)"); sig(a, "b11", 12, 13)
    await_(a, "b10", 12, 14)
    for s in (12, 13): w2_put(s)
    if not ONEWAY(): a("s_waitcnt lgkmcnt(8)\ns_barrier")
    a("s_waitcnt lgkmcnt(0)"); sig(a, "b12", 12, 13)
    a("s_barrier")

def diag_out(a, slot):
    if not DIAG: return
    stamp(a, 15)
    a("s_memrealtime s[52:53]\ns_waitcnt vmcnt(0) lgkmcnt(0)")
    a("s_mov_b64 exec, 1")
    for i in range(16):
        a(f"s_sub_u32 s{70+2*i}, s{70+2*i}, s3\nv_mov_b32 v{16+i}, s{70+2*i}")
    a("v_mov_b32 v32, s69\nv_mov_b32 v33, s52" if False else "v_mov_b32 v32, v250\nv_mov_b32 v33, s52")
    a(f"s_lshl_b32 s54, s2, 10\ns_lshl_b32 s55, s{sW}, 7\ns_add_u32 s54, s54, s55\ns_add_u32 s54, s54, {hex(WS_DIAG)}")
    for q in range(4): a(f"buffer_store_dwordx4 {vr(16+4*q,4)}, v{vZ}, {S['ws']}, s54 offen offset:{16*q}")
    a(f"buffer_store_dwordx2 v[32:33], v{vZ}, {S['ws']}, s54 offen offset:64")
    if OPT.get("dbgstart") and slot == 0:
        a(f"s_cmp_ge_u32 s2, 8\ns_cbranch_scc1 Ldiag{slot}\ns_cmp_lg_u32 s{sW}, 0\ns_cbranch_scc1 Ldiag{slot}\ns_lshl_b32 s54, s2, 2\ns_add_u32 s54, s54, 4")
        a(f"v_subrev_u32 v32, s{sTAG}, v250\nv_add_u32 v32, 1000, v32\nbuffer_store_dword v32, v{vZ}, {S['dbg']}, s54 offen")
        a(f"s_getreg_b32 s55, hwreg(HW_REG_XCC_ID)\ns_and_b32 s55, s55, 15\nv_mov_b32 v32, s55\ns_cmp_ge_u32 s2, 7\ns_cbranch_scc1 Ldiag{slot}\nbuffer_store_dword v32, v{vZ}, {S['dbg']}, s54 offen offset:32")
    if OPT.get("dbgout") and slot == 0:
        a(f"s_lshl_b32 s54, s2, 3\ns_add_u32 s54, s54, s{sW}\ns_cmp_lg_u32 s54, {OPT['dbgout']*8}\ns_cbranch_scc1 Ldiag{slot}")
        for i in range(1, 16): a(f"buffer_store_dword v{16+i}, v{vZ}, {S['dbg']}, 0 offen offset:{4*i}")
    a(f"Ldiag{slot}:")

def build():
    a = Asm()
    a("s_cmp_ge_u32 s2, 256\ns_cbranch_scc1 Lend")
    for nm in ("x", "dbg", "wmod", "c", "wqkv", "ws", "wo", "w1", "w2", "out"):
        a(f"s_load_dwordx2 {sr(SRD[nm],2)}, s[0:1], {KA[nm]}")
    if DIAG: a("s_memtime s[70:71]\ns_memrealtime s[72:73]")
    a(f"v_lshrrev_b32 v4, 6, v0\nv_and_b32 v{vLANE}, 63, v0\nv_mov_b32 v{vZ}, 0\nv_readfirstlane_b32 s{sW}, v4\nv_lshlrev_b32 v{vL16}, 4, v{vLANE}")
    a(f"s_getpc_b64 s[56:57]\nLpc:\ns_sub_u32 s56, s56, Lpc-{NAME}_kernel\ns_subb_u32 s57, s57, 0")
    a(f"s_and_b32 s{sX}, s2, 7\ns_lshr_b32 s{sI}, s2, 3\ns_sub_u32 s67, s{sW}, 4")
    a(f"s_cmp_lt_u32 s{sW}, 6\ns_cbranch_scc1 Le_nopf")
    a(f"s_lshl_b32 s58, s{sI}, 1\ns_add_u32 s58, s58, s67\ns_sub_u32 s58, s58, 2\ns_lshl_b32 s58, s58, 10\ns_min_u32 s58, s58, Lcode_end-{NAME}_kernel-1024\nv_add_u32 v5, s58, v{vL16}")
    a("global_load_dwordx4 v[16:19], v5, s[56:57]")
    a("Le_nopf:")
    if OPT.get('m216', 0):
        a(f"s_lshl_b32 s{sTB}, s{sX}, 1\ns_lshr_b32 s52, s{sI}, 4\ns_add_u32 s{sTB}, s{sTB}, s52\ns_and_b32 s{sR}, s{sI}, 7\ns_and_b32 s{sC}, s{sI}, 15")
    else:
        a(f"s_lshr_b32 s{sTB}, s{sX}, 1\ns_lshl_b32 s{sTB}, s{sTB}, 2\ns_lshr_b32 s52, s{sI}, 3\ns_add_u32 s{sTB}, s{sTB}, s52")
        a(f"s_and_b32 s{sR}, s{sI}, 7\ns_and_b32 s{sC}, s{sX}, 1\ns_lshl_b32 s{sC}, s{sC}, 3\ns_add_u32 s{sC}, s{sC}, s{sR}")
    for nm in ("x", "dbg", "wmod", "c", "wqkv", "ws"): a(f"s_mov_b32 s{SRD[nm]+2}, {hex(SZ[nm])}\ns_mov_b32 s{SRD[nm]+3}, 0x20000")
    a("s_memrealtime s[54:55]")
    if DIAG:
        a("s_waitcnt lgkmcnt(0)\ns_mov_b32 s3, s70\ns_mov_b32 s68, s72\nv_mov_b32 v250, s72")
        if OPT.get("rt"): a("s_mov_b32 s3, s72")
        for i in range(16): a(f"s_mov_b32 s{70+2*i}, s3")
    a(f"s_cmp_ge_u32 s{sW}, 4\ns_cbranch_scc1 Lp0_h\ns_cmp_lt_u32 s{sI}, 8\ns_cbranch_scc1 Lp0_mod\ns_cmp_ge_u32 s{sI}, 24\ns_cbranch_scc1 Lp0_warm")
    p0_ln(a)
    a("Lp0_h:")
    p0_helper(a)
    a("Lp0_mod:")
    p0_mod(a)
    a("Lp0_warm:")
    p0_warm(a)
    active(a)
    a("s_branch Latt")
    helper(a)
    a("Latt:")
    vm = Track(a, "vmcnt", 63)
    slow = attention(a, vm)
    a(f"s_cmp_ge_u32 s{sW}, 4\ns_cbranch_scc1 Lhelper2")
    active2(a)
    if OPT.get("hold"):
        a(f"Lhold:\ns_memrealtime s[52:53]\ns_waitcnt lgkmcnt(0)\ns_sub_u32 s52, s52, s{sTAG}\ns_cmp_lt_u32 s52, {OPT['hold']}\ns_cbranch_scc1 Lhold")
    if DIAG: a("v_mov_b32 v250, s68")
    diag_out(a, 0)
    a("s_endpgm")
    a("Lhelper2:")
    helper2(a)
    diag_out(a, 1)
    a("s_endpgm")
    a("; ==== attention fallback: true row maximum first, then exp(s - max)")
    slow(a)
    a("Lend:")
    return a

def emit(a):
    hdr = open(f"cdna_kernels/{NAME}.s.ref").read().split("\n")
    out = [l for l in hdr if l.startswith(";") and "@launch" not in l and "Override launch" not in l and "grid=ceil" not in l]
    out.append(f"; @launch grid=(256,1,1) block=(512,1,1) lds={LDS_SIZE}")
    out += """; One persistent launch, one 8-wave workgroup per CU (generated by gen/gen28.py).
;  P0  silu(c) @ w_mod (shift/scale part) and LayerNorm(x), spread over the workgroups; W_k/W_v slices -> LDS
;  P1  h = xn*(1+scale)+shift (sparse diagonal MFMA), K or V of 4 heads and Q of 2 heads for 128 tokens
;  P2  attention, 2 heads x 128 queries: S^T = K Q^T, exp2, O^T += V^T P^T by sparse MFMA on the high halves of the
;      fp32 exponentials (a ones row gives the row sum).  No max is subtracted when the row sums show it is safe;
;      any other wave redoes its tile with the true row maximum.
;  P3  x1 = x + gate*(O Wo), y = x1*(1+scale2), row statistics    P4  silu(LN2-corrected y W1)    P5  x1 + gate2*(h W2)
; Workgroups hand data over with write-through stores, a drain, and flags that carry a per-launch tag (d_debug[0]);
; every wait is bounded.  Workgroup ids are arranged for L2 sharing only; nothing relies on the placement.""".split("\n")
    a.fix()
    out += ['.amdgcn_target "amdgcn-amd-amdhsa--gfx950"', ".text", f".globl {NAME}_kernel", ".p2align 8", f".type {NAME}_kernel,@function", f"{NAME}_kernel:",
            a.text(), "    s_endpgm", "Lcode_end:", '.section .rodata,"a"', ".p2align 6", f".amdhsa_kernel {NAME}_kernel", "  .amdhsa_next_free_vgpr 256",
            "  .amdhsa_next_free_sgpr 102", "  .amdhsa_accum_offset 256", "  .amdhsa_group_segment_fixed_size 0", "  .amdhsa_kernarg_size 88",
            "  .amdhsa_user_sgpr_count 2", "  .amdhsa_user_sgpr_kernarg_segment_ptr 1", "  .amdhsa_system_sgpr_workgroup_id_x 1",
            "  .amdhsa_float_denorm_mode_32 3", ".end_amdhsa_kernel"]
    return "\n".join(out) + "\n"

if __name__ == "__main__":
    import argparse
    p = argparse.ArgumentParser(); p.add_argument("out"); p.add_argument("--diag", action="store_true"); p.add_argument("--opt", default="")
    args = p.parse_args()
    DIAG = args.diag
    for o in args.opt.split(","):
        if o: OPT[o.split("=")[0]] = int(o.split("=")[1]) if "=" in o else 1
    set_nring(OPT.get('nring', 4))
    open(args.out, "w").write(emit(build()))
```

```python
import sys, struct
from asmlib import *

NAME = "adaLN_cond__softmax_full_mha__dense_activation_silu__prompt"
WS_MODG = 0x0
WS_STATS = 0x10000
WS_FXN, WS_FKV, WS_FO, WS_FX1, WS_FH = 0x50000, 0x52000, 0x80000, 0xC0000, 0xE0000
WS_FXC = 0x58000
sLOC = 66
FH_B = 0x8000
WS_XN, WS_K, WS_V, WS_O, WS_X1, WS_Y, WS_H = 0x200000, 0x400000, 0x600000, 0x800000, 0xA00000, 0xC00000, 0xE00000
WS_DIAG = 0x1600000
WS_SIZE = 0x1700000
KA = dict(x=0, wqkv=8, wo=16, w1=32, w2=40, c=48, wmod=56, out=64, dbg=72, ws=80)
SZ = dict(x=2048*512*2, wqkv=512*1536*2, wo=512*512*2, w1=512*1792*2, w2=1792*512*2, c=1024, wmod=512*3072*2, out=2048*512*2, dbg=256, ws=WS_SIZE)
SRD = dict(x=4, wqkv=8, wo=12, w1=16, w2=20, c=24, wmod=28, out=32, dbg=36, ws=40)
S = {k: sr(v, 4) for k, v in SRD.items()}
sW, sTB, sC, sTAG, sI, sX, sR = 44, 45, 46, 47, 48, 49, 69
SPIN = 20000
def f2u(f): return struct.unpack("<I", struct.pack("<f", f))[0]
def hx(f): return hex(f2u(f))
LOG2E = 1.4426950408889634
DIAG = False
OPT = {}
L_WKV, L_WQ = 0, 64*1024
L_DG = 96*1024
L_SA = 112*1024
L_QX = 144*1024
L_WO = 0
L_W1 = 32*1024
L_RED = 88*1024
L_TAB = 156*1024
L_GA, L_G2, L_GB, L_SCR, L_UW, L_G = L_TAB, L_TAB+128, L_TAB+256, L_TAB+512, L_TAB+1024, L_TAB+2048
LDS_SIZE = 160*1024

def stamp(a, i, grp=0):
    if DIAG and (OPT.get("focus", 0) == grp or i == 15): a(f"{'s_memrealtime' if OPT.get('rt') else 's_memtime'} s[{70+2*i}:{71+2*i}]")

_uid = [0]
def poll(a, vm, mask, vaddr, soff, vt, first=0):
    _uid[0] += 1; n = _uid[0]
    a(f"s_mov_b64 exec, {mask}\ns_mov_b32 s50, {SPIN}")
    a("; wait for flags == launch tag (bounded)")
    if first: a(f"s_sleep {first}")
    a(f"Lpoll{n}:\nbuffer_load_dword v{vt}, v{vaddr}, {S['ws']}, {soff} offen sc1\ns_waitcnt vmcnt(0)\nv_cmp_ne_u32 vcc, s{sTAG}, v{vt}\ns_sub_u32 s50, s50, 1\ns_cbranch_vccz Lpolld{n}")
    if OPT.get("psleep", 0): a(f"s_sleep {OPT.get('psleep', 0)}")
    a(f"s_cmp_lg_u32 s50, 0\ns_cbranch_scc1 Lpoll{n}")
    a(f"Lpolld{n}:\ns_mov_b64 exec, -1")
    vm.reset()

def set_flag_rg(a, vm, soff, vt):
    _uid[0] += 1; n = _uid[0]
    vm.wait_all()
    a(f"v_mov_b32 v{vt}, s{sTAG}\ns_mov_b64 exec, 1\ns_cmp_lg_u32 s{sLOC}, 0\ns_cbranch_scc1 Lfl{n}")
    a(f"buffer_store_dword v{vt}, v{vZ}, {S['ws']}, {soff} offen sc1\ns_mov_b64 exec, -1\ns_sleep {OPT.get('fr', 16)}\ns_branch Lfl{n}d\nLfl{n}:")
    vm.op(f"buffer_store_dword v{vt}, v{vZ}, {S['ws']}, {soff} offen")
    a(f"s_mov_b64 exec, -1\nLfl{n}d:")

def LF(): return OPT.get("lf", 3)
def flag_off(a, d, f, base, lf=3):
    a(f"s_lshr_b32 s50, s{f}, {lf}\ns_lshl_b32 s50, s50, 7\ns_and_b32 s{d}, s{f}, {(1 << lf) - 1}\ns_lshl_b32 s{d}, s{d}, 2\ns_add_u32 s{d}, s{d}, s50\ns_add_u32 s{d}, s{d}, {hex(base)}")

RG = lambda: [' sc1', '', ' nt', ' sc0', ' sc0 nt'][OPT.get('fast', 0)]
RY = lambda: [' sc1', '', ' nt', ' sc0', ' sc0 nt'][OPT.get('fasty', OPT.get('fast', 0))]
RF = lambda: '' if (OPT.get('fast') or OPT.get('fastf')) else ' sc1'
RO = lambda: '' if (OPT.get('fast') and OPT.get('m216')) else ' sc1'
RL = lambda: '' if OPT.get('plainld') else ' sc1'
def set_flag(a, vm, soff, vz, vt, fl=' sc1'):
    vm.wait_all()
    a(f"v_mov_b32 v{vt}, s{sTAG}\ns_mov_b64 exec, 1")
    vm.op(f"buffer_store_dword v{vt}, v{vz}, {S['ws']}, {soff} offen{fl}")
    a("s_mov_b64 exec, -1")

def rne_bf16(a, d, s):
    a(f"v_cvt_pk_bf16_f32 v{d}, v{s}, v{s}\nv_lshlrev_b32 v{d}, 16, v{d}")

def tr_addr(a, d, t, perm, rowbytes_log2, swz):
    a(f"v_bfe_u32 v{d}, v0, 2, 2\nv_bfe_u32 v{t}, v0, 5, 1")
    a(f"v_lshl_add_u32 v{d}, v{t}, {2 if perm else 3}, v{d}\nv_lshlrev_b32 v{d}, {rowbytes_log2}, v{d}")
    a(f"v_bfe_u32 v{t}, v0, 4, 1\nv_lshl_add_u32 v{d}, v{t}, 5, v{d}")
    a(f"v_and_b32 v{t}, 3, v0\nv_lshl_add_u32 v{d}, v{t}, 3, v{d}")
    if swz: a(f"v_bfe_u32 v{t}, v0, 3, 1\nv_lshl_add_u32 v{d}, v{t}, 6, v{d}")

def half_tr_addr(a, d, t):
    a(f"v_bfe_u32 v{d}, v0, 2, 1")
    a(f"v_bfe_u32 v{t}, v0, 4, 1\nv_lshl_add_u32 v{d}, v{t}, 1, v{d}")
    a(f"v_bfe_u32 v{t}, v0, 3, 1\nv_lshl_add_u32 v{d}, v{t}, 2, v{d}")
    a(f"v_bfe_u32 v{t}, v0, 5, 1\nv_lshl_add_u32 v{d}, v{t}, 4, v{d}")
    a(f"v_lshlrev_b32 v{d}, 5, v{d}\nv_and_b32 v{t}, 3, v0\nv_lshl_add_u32 v{d}, v{t}, 3, v{d}")

vLANE, vL16, vZ = 1, 2, 3
def poll_addr(a, d, lf=3):
    a(f"v_lshrrev_b32 v{d}, {lf}, v{vLANE}\nv_lshlrev_b32 v{d}, 5, v{d}\nv_and_or_b32 v{d}, v{vLANE}, {(1 << lf) - 1}, v{d}\nv_lshlrev_b32 v{d}, 2, v{d}")

def mod_issue(a, vm, sCol, B=16, T=4):
    a(f"v_bfe_u32 v{T}, v0, 1, 7\nv_and_b32 v{T+1}, 1, v0")
    a(f"v_mul_u32_u24 v{T+2}, 6144, v{T}\nv_lshl_add_u32 v{T+2}, v{T+1}, 4, v{T+2}\nv_lshlrev_b32 v{T+3}, 1, v{T}")
    a(f"s_lshl_b32 s52, s{sCol}, 1")
    for m in range(4):
        vm.op(f"buffer_load_dwordx4 {vr(B+4*m,4)}, v{T+2}, {S['wmod']}, s52 offen", "mod")
        if m < 3: a(f"s_add_u32 s52, s52, {128*6144}")
    for m in range(4): vm.op(f"buffer_load_ushort v{B+16+m}, v{T+3}, {S['c']}, 0 offen offset:{256*m}", "mod")

def mod_partial(a, vm, B=16):
    vm.wait("mod")
    C, F, T, A = B+16, B+24, B+20, B+32
    for m in range(4): a(f"v_lshlrev_b32 v{C+m}, 16, v{C+m}")
    for m in range(4): a(f"v_mul_f32 v{T+m}, {hx(-LOG2E)}, v{C+m}")
    for m in range(4): a(f"v_exp_f32 v{T+m}, v{T+m}")
    for m in range(4): a(f"v_add_f32 v{T+m}, 1.0, v{T+m}")
    for m in range(4): a(f"v_rcp_f32 v{T+m}, v{T+m}")
    for m in range(4): a(f"v_mul_f32 v{C+m}, v{C+m}, v{T+m}")
    for m in range(4): a(f"v_cvt_pk_bf16_f32 v{C+m}, v{C+m}, v{C+m}")
    for m in range(4): a(f"v_lshlrev_b32 v{C+m}, 16, v{C+m}")
    for m in range(4):
        for r in range(4):
            a(f"v_lshlrev_b32 v{F+2*r}, 16, v{B+4*m+r}\nv_and_b32 v{F+2*r+1}, 0xffff0000, v{B+4*m+r}")
        for j in range(8):
            a(f"v_mul_f32 v{A+j}, v{F+j}, v{C}" if m == 0 else f"v_fmac_f32 v{A+j}, v{F+j}, v{C+m}")
    for j in range(4): a(f"v_permlane32_swap_b32 v{A+j}, v{A+4+j}")
    for j in range(4): a(f"v_add_f32 v{A+j}, v{A+j}, v{A+4+j}")
    for j in range(2): a(f"v_permlane16_swap_b32 v{A+j}, v{A+2+j}")
    for j in range(2): a(f"v_add_f32 v{A+j}, v{A+j}, v{A+2+j}")
    for r in (8, 4, 2):
        for j in range(2): a(f"v_add_f32_dpp v{A+j}, v{A+j}, v{A+j} row_ror:{r} row_mask:0xf bank_mask:0xf")
    a("v_bfe_u32 v8, v0, 6, 2\nv_lshlrev_b32 v8, 6, v8\nv_and_b32 v9, 1, v0\nv_lshl_add_u32 v8, v9, 5, v8")
    a("v_bfe_u32 v9, v0, 4, 1\nv_lshl_add_u32 v8, v9, 3, v8\nv_bfe_u32 v9, v0, 5, 1\nv_lshl_add_u32 v8, v9, 4, v8")
    a(f"v_add_u32 v8, {L_SCR}, v8")
    a("s_mov_b32 exec_lo, 0x00030003\ns_mov_b32 exec_hi, 0x00030003")
    a(f"ds_write_b64 v8, v[{A}:{A+1}]")
    a("s_mov_b64 exec, -1")

def mod_final(a, vm, sCol):
    a("s_mov_b64 exec, 0xff")
    a(f"v_lshlrev_b32 v8, 3, v{vLANE}\nv_add_u32 v9, {L_SCR}, v8")
    for w in range(4): a(f"ds_read_b64 {vr(240+2*w,2)}, v9 offset:{64*w}")
    a(f"s_lshr_b32 s52, s{sCol}, 9\ns_cmp_eq_u32 s52, 1\ns_cselect_b32 s53, 1.0, 0\ns_cmp_eq_u32 s52, 4\ns_cselect_b32 s53, 1.0, s53")
    a(f"s_lshl_b32 s52, s{sCol}, 2")
    a("s_waitcnt lgkmcnt(0)")
    for j in range(2): a(f"v_add_f32 v{240+j}, v{240+j}, v{242+j}\nv_add_f32 v{244+j}, v{244+j}, v{246+j}")
    for j in range(2): a(f"v_add_f32 v{240+j}, v{240+j}, v{244+j}")
    a("v_cvt_pk_bf16_f32 v242, v240, v241\nv_lshlrev_b32 v240, 16, v242\nv_and_b32 v241, 0xffff0000, v242")
    a("v_add_f32 v240, s53, v240\nv_add_f32 v241, s53, v241")
    a(f"v_cvt_pk_bf16_f32 v240, v240, v241\nv_mov_b32 v241, s{sTAG}")
    vm.op(f"buffer_store_dwordx2 v[240:241], v8, {S['ws']}, s52 offen sc1")
    a("s_mov_b64 exec, -1")

def gran_poll(a, vm, loads, regs, first=0):
    _uid[0] += 1; n = _uid[0]
    if first: a(f"s_sleep {first}")
    a(f"s_mov_b32 s50, {SPIN}\nLgp{n}:")
    for t in loads: a(t)
    a("s_waitcnt vmcnt(0)")
    first = True
    for r in regs:
        for o in (1, 3):
            if first: a(f"v_xor_b32 v15, s{sTAG}, v{r+o}"); first = False
            else: a(f"v_xor_b32 v14, s{sTAG}, v{r+o}\nv_or_b32 v15, v15, v14")
    a("v_cmp_ne_u32 vcc, 0, v15\ns_sub_u32 s50, s50, 1")
    a(f"s_cbranch_vccz Lgpd{n}\ns_sleep {OPT.get('gsleep', 1)}\ns_cmp_lg_u32 s50, 0\ns_cbranch_scc1 Lgp{n}\nLgpd{n}:")
    vm.reset()

def tag_get(a):
    _uid[0] += 1; n = _uid[0]
    a(f"v_mov_b32 v8, {L_SCR+260}\ns_mov_b32 s50, {SPIN*20}\nLtg{n}:\nds_read_b32 v9, v8\ns_sub_u32 s50, s50, 1\ns_waitcnt lgkmcnt(0)\nv_readfirstlane_b32 s{sTAG}, v9")
    a(f"s_cmp_lg_u32 s{sTAG}, 0\ns_cbranch_scc1 Ltgd{n}\ns_cmp_lg_u32 s50, 0\ns_cbranch_scc1 Ltg{n}\nLtgd{n}:")

def tag_now(a, v):
    _uid[0] += 1; n = _uid[0]
    a(f"s_mov_b32 s50, {SPIN}\nLtn{n}:\nv_readfirstlane_b32 s{sTAG}, v{v}\ns_sub_u32 s50, s50, 1")
    a(f"s_cmp_lg_u32 s{sTAG}, 0\ns_cbranch_scc1 Ltnd{n}\ns_cmp_eq_u32 s50, 0\ns_cbranch_scc1 Ltnd{n}")
    a(f"buffer_load_dword v{v}, v{vZ}, {S['dbg']}, 0 offen sc1\ns_waitcnt vmcnt(0)\ns_branch Ltn{n}\nLtnd{n}:")

def read_tag(a):
    a(f"v_mov_b32 v8, {L_SCR+260}\nds_read_b32 v9, v8\ns_waitcnt lgkmcnt(0)\nv_readfirstlane_b32 s{sTAG}, v9")

def mall_touch(a):
    _uid[0] += 1; n = _uid[0]
    a(f"v_lshlrev_b32 v5, 7, v{vLANE}\ns_cmp_eq_u32 s{sW}, 6\ns_cbranch_scc1 Lt6_{n}\ns_cmp_eq_u32 s{sW}, 7\ns_cbranch_scc1 Lt7_{n}")
    a(f"s_mul_i32 s52, s2, {56*128}\ns_cmp_eq_u32 s{sW}, 5\ns_cbranch_scc1 Lt5_{n}")
    a(f"buffer_load_dword v248, v5, {S['w1']}, s52 offen\ns_branch Ltd_{n}")
    a(f"Lt5_{n}:\nbuffer_load_dword v248, v5, {S['w2']}, s52 offen\ns_branch Ltd_{n}")
    a(f"Lt6_{n}:\nv_lshrrev_b32 v6, 5, v{vLANE}\nv_mul_u32_u24 v6, {6144-4096}, v6\nv_add_u32 v5, v5, v6\ns_mul_i32 s52, s2, 12288\ns_add_u32 s52, s52, 2048")
    a(f"buffer_load_dword v248, v5, {S['wmod']}, s52 offen\ns_branch Ltd_{n}")
    a(f"Lt7_{n}:\ns_lshl_b32 s52, s2, 11\ns_mov_b64 exec, 0xffff\nbuffer_load_dword v248, v5, {S['wo']}, s52 offen\ns_mov_b64 exec, -1")
    a(f"Ltd_{n}:")

def stouch(nm, soff, line):
    return f"s_buffer_load_dwordx2 s[0:1], {S[nm]}, s{soff} offset:{128*line+60}"

def mod_join(a, vm, sCol, name, pre=None):
    a(f"v_mov_b32 v8, {L_SCR+256}\nv_mov_b32 v9, 1\ns_waitcnt lgkmcnt(0)\ns_mov_b64 exec, 1\nds_add_rtn_u32 v9, v8, v9\ns_mov_b64 exec, -1\ns_waitcnt lgkmcnt(0)")
    a(f"v_readfirstlane_b32 s52, v9\ns_cmp_lg_u32 s52, 3\ns_cbranch_scc1 {name}")
    if pre: pre()
    mod_final(a, vm, sCol)

NRING = 4
def set_nring(n):
    global NRING
    NRING = n
vSTASH, vMOD, vXR = 180, 208, 208
QF, OA, SB, RING = 16, 32, [96, 112], 128
vV, vWO, vW1, vW1H = 4, 12, 13, 14
sHH, sKQ, sK, sV = 54, 55, 56, 57
def att_setup():
    a = Asm()
    a(f"s_and_b32 s{sHH}, s{sW}, 1\ns_lshr_b32 s{sKQ}, s{sW}, 1")
    a(f"v_and_b32 v{vV}, 15, v{vLANE}\nv_lshlrev_b32 v{vV}, 4, v{vV}\nv_bfe_u32 v5, v{vLANE}, 5, 1\nv_lshl_add_u32 v{vV}, v5, 8, v{vV}")
    a(f"s_lshl_b32 s58, s{sC}, 1\ns_add_u32 s58, s58, s{sHH}")
    a(f"s_lshl_b32 s59, s58, 16")
    a(f"s_lshl_b32 s52, s{sKQ}, 14\ns_add_u32 s52, s52, s59\ns_add_u32 s{sK}, s52, {hex(WS_K)}\ns_add_u32 s{sV}, s52, {hex(WS_V)}")
    a("s_mov_b32 s60, 0x0000ffff\ns_mov_b32 s61, 0x0000ffff")
    a(f"s_lshl_b32 s52, s{sKQ}, 8\ns_lshr_b32 s53, s{sC}, 1\ns_lshl_b32 s53, s53, 11\ns_add_u32 s52, s52, s53\ns_add_u32 s62, s52, {hex(WS_FKV)}")
    a(f"s_and_b32 s65, s{sTB}, {1 if OPT.get('m216', 0) else 3}\ns_lshl_b32 s65, s65, {13 if OPT.get('m216', 0) else 12}")
    a(f"v_lshrrev_b32 v6, 2, v{vLANE}\nv_and_b32 v11, 3, v{vLANE}\nv_lshlrev_b32 v{vWO}, 10, v6\nv_lshl_add_u32 v{vWO}, v11, 4, v{vWO}")
    w1_voffs(a, vW1, vW1H, 6, 11, 15)
    a(f"v_and_b32 v5, 7, v{vLANE}\nv_lshlrev_b32 v5, 2, v5\nv_bfe_u32 v6, v{vLANE}, 3, 1\nv_lshl_add_u32 v5, v6, 7, v5\nv_bfe_u32 v6, v{vLANE}, 4, 1\nv_lshl_add_u32 v5, v6, 10, v5")
    a(f"v_and_b32 v6, 0x1b, v{vLANE}\nv_cmp_eq_u32 vcc, 16, v6\nv_mov_b32 v15, 0x3f803f80\ns_nop 0\nv_cndmask_b32 v15, 0, v15, vcc")
    for r in range(64): a(f"v_mov_b32 v{OA+r}, 0")
    early = [I.text for I in a.L]
    late = [f"v_mov_b32 v{RING+12*sl+4+r}, v15" for sl in range(NRING) for r in range(8)] + [f"v_mov_b32 v{RING+12*NRING}, 0xdddddddd"]
    return early, late

CNT = dict(b5b=3, b6b=4, b7=5, b9=6, b10=7, b11=8, b12=9, uw=10, b5c=11)
ONEWAY = lambda: OPT.get("ow", 1)
def sig(a, name, va, vb, lg=None):
    if not ONEWAY(): a("s_barrier"); return
    a("s_mov_b64 exec, 1")
    t = f"ds_add_u32 v{va}, v{vb} offset:{4*CNT[name]}"
    lg.op(t, "sig") if lg else a(t)
    a("s_mov_b64 exec, -1")
def sig_regs(a, va, vb): a(f"v_mov_b32 v{va}, {L_SCR+256}\nv_mov_b32 v{vb}, 1")
def await_(a, name, va, vt, have=False):
    if not ONEWAY(): a("s_barrier"); return
    _uid[0] += 1; n = _uid[0]
    if have: a(f"v_readfirstlane_b32 s50, v{vt}\ns_cmp_eq_u32 s50, 4\ns_cbranch_scc1 Law{n}d")
    a(f"s_mov_b32 s63, {SPIN*20}\nLaw{n}:\nds_read_b32 v{vt}, v{va} offset:{4*CNT[name]}\ns_sub_u32 s63, s63, 1\ns_waitcnt lgkmcnt(0)\nv_readfirstlane_b32 s50, v{vt}")
    a(f"s_cmp_eq_u32 s50, 4\ns_cbranch_scc1 Law{n}d\ns_sleep {OPT.get('asleep', 1)}\ns_cmp_lg_u32 s63, 0\ns_cbranch_scc1 Law{n}\nLaw{n}d:")

def q_join(a):
    _uid[0] += 1; n = _uid[0]
    a(f"v_mov_b32 v9, {L_SCR+264}\ns_mov_b32 s50, {SPIN*20}\nLqj{n}:\nds_read_b32 v10, v9\ns_sub_u32 s50, s50, 1\ns_waitcnt lgkmcnt(0)\nv_readfirstlane_b32 s52, v10")
    a(f"s_cmp_eq_u32 s52, 4\ns_cbranch_scc1 Lqjd{n}\ns_cmp_lg_u32 s50, 0\ns_cbranch_scc1 Lqj{n}\nLqjd{n}:")

def att_q(a):
    for i in range(4):
        a(f"s_add_u32 s52, s{sKQ}, {i}\ns_and_b32 s52, s52, 3\ns_lshl_b32 s53, s{sHH}, 2\ns_add_u32 s52, s52, s53\ns_lshl_b32 s52, s52, 10\ns_add_u32 s52, s52, {L_QX}")
        a(f"v_add_u32 v9, s52, v{vL16}\nds_read_b128 {vr(QF+4*i,4)}, v9")

KVF = lambda: [' sc1', '', ' sc1 nt'][OPT.get('kvf', 0)]
def att_ld(a, vm, kt):
    sl = kt % NRING
    if kt % 4 == 0: a(f"s_add_u32 s63, s{sK}, s62\ns_add_u32 s64, s{sV}, s62\ns_add_u32 s62, s62, 4096\ns_and_b32 s62, s62, 0x3fff")
    o = 1024*(kt % 4)
    vm.op(f"buffer_load_dwordx4 {vr(RING+12*sl,4)}, v{vL16}, {S['ws']}, s63 offen offset:{o}{KVF()}", ("kv", kt))
    a("s_mov_b64 exec, s[60:61]")
    vm.op(f"buffer_load_dwordx4 {vr(RING+12*sl+4,4)}, v{vV}, {S['ws']}, s64 offen offset:{o}{KVF()}", ("kv", kt))
    vm.op(f"buffer_load_dwordx4 {vr(RING+12*sl+8,4)}, v{vV}, {S['ws']}, s64 offen offset:{o+512}{KVF()}", ("kv", kt))
    a("s_mov_b64 exec, -1")

def att_first(a, vm, first):
    stamp(a, 4)
    poll(a, vm, "0xffffffff", 5, "s62", 6, first)
    stamp(a, 5)
    a("s_mov_b32 s62, s65")
    for kt in range(NRING-1): att_ld(a, vm, kt)

def attention(a, vm):
    IDX = RING + 12*NRING
    assert IDX < vSTASH
    CP = lambda d: f"s_and_b32 s{d}, s{sI}, 15" if OPT.get('mix', 1) else f"s_mov_b32 s{d}, s{sC}"
    TP = lambda d: f"s_lshl_b32 s{d}, s{sX}, 1\ns_lshr_b32 s50, s{sI}, 4\ns_add_u32 s{d}, s{d}, s50" if OPT.get('mix', 1) else f"s_mov_b32 s{d}, s{sTB}"
    def kp_addr(d):
        return [f"s_lshl_b32 s65, s{sR}, 1", f"s_add_u32 s65, s65, s{sW}", f"s_add_u32 s65, s65, {d}", "s_and_b32 s65, s65, 15", f"s_mul_i32 s65, s65, {32*3584}",
                CP(52), "s_mul_i32 s52, s52, 224", "s_add_u32 s65, s65, s52", f"s_mul_i32 s66, s{sW}, 7168", f"s_add_u32 s66, s66, {L_W1+7168*d}"]
    wo = [[f"s_add_u32 m0, s66, {L_WO+1024*j}", f"s_add_u32 s52, s65, {16384*j}", f"buffer_load_dwordx4 v{vWO}, {S['wo']}, s52 offen lds"] for j in range(4)]
    wo[0] = [f"s_add_u32 s65, s{sW}, s{sR}", "s_and_b32 s65, s65, 7", "s_lshl_b32 s65, s65, 16", CP(52), "s_lshl_b32 s52, s52, 6", "s_add_u32 s65, s65, s52", f"s_lshl_b32 s66, s{sW}, 12"] + wo[0]
    k1 = w1_kp_dma(65, 66, vW1, vW1H); k1[0] = kp_addr(0) + k1[0]
    k2 = []
    for j, p in enumerate(w1_kp_dma(65, 66, vW1, vW1H)):
        k2.append([p[1], p[2].replace("buffer_load_dwordx4 ", f"buffer_load_dwordx4 {vr(vSTASH+4*j,4)}, ").replace(" lds", "")])
    k2[0] = kp_addr(8)[:8] + k2[0]
    p0 = OPT.get("pre0", 5)
    pre = {4*p0+1: wo[:2], 4*p0+5: wo[2:], 4*p0+9: k1[:3], 4*p0+13: k1[3:], 4*p0+17: k2[:3], 4*p0+21: k2[3:]}
    ld = lambda kt: att_ld(a, vm, kt)
    for kt in range(NRING-1): vm.q += [('kv', kt)]*3
    def QK(dst, sl, q): return f"v_mfma_f32_32x32x16_bf16 {vr(dst,16)}, {vr(RING+12*sl,4)}, {vr(QF+4*q,4)}, 0"
    def SM(q, sl, half, s): return f"v_smfmac_f32_32x32x32_bf16 {vr(OA+16*q,16)}, {vr(RING+12*sl+4+4*half,4)}, {vr(s+8*half,8)}, v{IDX}"
    a("s_setprio 1")
    a(f"s_and_b32 s53, s{sW}, 3\ns_lshl_b32 s52, s2, 2\ns_add_u32 s53, s53, s52\ns_mul_i32 s53, s53, {9*128}")
    ST = [stouch("w1", 53, n) for n in range(9)] + [stouch("wmod", 53, n) for n in range(16)] + [stouch("w2", 53, n) for n in range(14)]
    a("s_waitcnt lgkmcnt(0)")
    vm.wait(("kv", 0))
    a(QK(SB[0], 0, 0))
    a("s_nop 7\ns_nop 3")
    TAIL = OPT.get("tail", 1)
    qof = lambda t: (t + 1) % 4 if (TAIL and t >= 60) else t % 4
    def red_write(i):
        return [f"s_add_u32 s52, s{sKQ}, {i}\ns_and_b32 s52, s52, 3\ns_mul_i32 s52, s52, 3\ns_add_u32 s52, s52, s63\ns_add_u32 s52, s52, {i-1}\ns_mul_i32 s52, s52, 2304\ns_add_u32 s52, s52, {L_RED}",
                f"v_add_u32 v6, s52, v{vL16}\nv_add_u32 v7, s52, v15",
                f"ds_write_b128 v6, {vr(OA+16*i,4)}", f"ds_write_b128 v6, {vr(OA+16*i+4,4)} offset:1024", f"ds_write_b32 v7, v{OA+16*i+8} offset:2048"]
    for t in range(64):
        kt, q = t // 4, t % 4
        cur, prv = SB[t & 1], SB[(t + 1) & 1]
        E = [f"v_exp_f32 v{cur+r}, v{cur+r}" for r in range(16)]
        if t == OPT.get("prio", 53):
            a(f"s_cmp_ge_u32 s{sW}, 4\ns_cbranch_scc1 Latt_prio\ns_setprio 0\nLatt_prio:")
        a(E[0]); a(E[1])
        if t > 0: a(SM(qof(t-1), ((t-1)//4) % NRING, 1, prv))
        if t == 59: a(f"s_mul_i32 s63, s{sHH}, 12\nv_lshlrev_b32 v15, 2, v{vLANE}")
        if q == 0 and kt + NRING - 1 < 16: ld(kt + NRING - 1)
        if t in pre and not OPT.get("nopre"):
            for p in pre[t]:
                for x in p[:-1]: a(x)
                vm.op(p[-1], "pre")
        if t == OPT.get("cpf", 99):
            a(f"s_cmp_lg_u32 s{sW}, 7\ns_cbranch_scc1 Latt_nocp\ns_getpc_b64 s[50:51]\nLpc2:\ns_and_b32 s52, s{sI}, 3\ns_lshl_b32 s52, s52, 13\nv_lshlrev_b32 v5, 7, v{vLANE}\nv_add_u32 v5, s52, v5")
            a("v_min_u32 v5, Lcode_end-Lpc2-4, v5\nglobal_load_dword v249, v5, s[50:51]\nLatt_nocp:")
        if t == 5:
            a(f"s_cmp_lg_u32 s{sW}, 0\ns_cbranch_scc1 Latt_noxc"); a(TP(52)); a(f"s_lshl_b32 s52, s52, 5"); a(CP(50))
            a(f"s_add_u32 s52, s52, s50\ns_lshl_b32 s52, s52, 2\ns_add_u32 s52, s52, {hex(WS_FXC)}\ns_getreg_b32 s50, hwreg(HW_REG_XCC_ID)\ns_and_b32 s50, s50, 15\ns_lshl_b32 s50, s50, 1\ns_add_u32 s50, s50, s{sTAG}")
            if OPT.get("xcfake"): a(f"s_and_b32 s51, s2, {OPT['xcfake']}\ns_add_u32 s50, s50, s51")
            a(f"v_mov_b32 v5, s50\ns_mov_b64 exec, 1\nbuffer_store_dword v5, v{vZ}, {S['ws']}, s52 offen sc1\ns_mov_b64 exec, -1\nLatt_noxc:")
        if t == 57:
            a(f"s_cmp_ge_u32 s{sW}, 4\ns_cbranch_scc1 Latt_nox")
            a(f"v_bfe_u32 v5, v{vLANE}, 5, 1\nv_and_b32 v6, 31, v{vLANE}\nv_lshlrev_b32 v6, 10, v6\nv_lshl_add_u32 v6, v5, 3, v6")
            a(TP(52)); a(f"s_lshl_b32 s52, s52, 2\ns_add_u32 s67, s52, s{sW}\ns_lshl_b32 s52, s67, 15"); a(CP(50)); a("s_lshl_b32 s50, s50, 6\ns_add_u32 s52, s52, s50")
            for qq in range(4): a(f"buffer_load_dwordx2 {vr(vXR+2*qq,2)}, v6, {S['x']}, s52 offen offset:{16*qq}")
            a(f"s_lshr_b32 s52, s67, 2\ns_lshl_b32 s52, s52, 7\ns_add_u32 s52, s52, {hex(WS_FXC)}\nv_and_b32 v5, 15, v{vLANE}\nv_lshlrev_b32 v5, 2, v5")
            a(f"buffer_load_dword v{vXR+8}, v5, {S['ws']}, s52 offen sc1")
            if OPT.get("fastO"):
                a(f"s_lshl_b32 s52, s67, 9\ns_add_u32 s52, s52, {hex(WS_FO)}\nv_and_b32 v5, 3, v{vLANE}\nv_lshlrev_b32 v5, 7, v5\nbuffer_load_dword v{vXR+9}, v5, {S['ws']}, s52 offen sc1")
            a("Latt_nox:")
        if t == 50:
            a(f"s_cmp_lt_u32 s{sW}, 4\ns_cbranch_scc1 Latt_nomod\ns_sub_u32 s52, s{sI}, 8\ns_cmp_ge_u32 s52, 16\ns_cbranch_scc1 Latt_nomod")
            a(f"s_lshl_b32 s66, s{sX}, 2\ns_lshr_b32 s52, s52, 2\ns_add_u32 s66, s66, s52\ns_lshl_b32 s66, s66, 6")
            a(f"s_and_b32 s52, s{sI}, 3\ns_lshl_b32 s52, s52, 4\ns_add_u32 s66, s66, s52\ns_add_u32 s66, s66, 1024")
            mod_issue(a, Track(a, "vmcnt", 63), 66, vMOD, T=244)
            a("Latt_nomod:")
        if t == OPT.get("w2t", 62) and not OPT.get("nopre"):
            if OPT.get("nw", 1):
                a(f"s_mul_i32 s52, s{sI}, 7\ns_min_u32 s50, s{sW}, 6\ns_add_u32 s52, s52, s50\ns_lshl_b32 s52, s52, 13\nv_lshlrev_b32 v5, 7, v{vLANE}")
                vm.op(f"buffer_load_dword v248, v5, {S['w2']}, s52 offen", "w2t")
            else:
                a(f"s_cmp_eq_u32 s{sW}, 7\ns_cbranch_scc1 Latt_nopf\ns_mul_i32 s52, s{sI}, 7\ns_add_u32 s52, s52, s{sW}\ns_lshl_b32 s52, s52, 13\nv_lshlrev_b32 v5, 7, v{vLANE}")
                a(f"buffer_load_dword v248, v5, {S['w2']}, s52 offen")
                a("Latt_nopf:")
        if OPT.get("st", 7) & 4 and t % 3 != 2 and t - t//3 < 39:
            j = t - t//3
            if j == 9: a(f"s_lshl_b32 s53, s2, 1\ns_bfe_u32 s52, s{sW}, 0x10001\ns_add_u32 s53, s53, s52\ns_mul_i32 s53, s53, 6144\ns_lshl_b32 s52, s{sHH}, 11\ns_add_u32 s53, s53, s52\ns_add_u32 s53, s53, 2048")
            if j == 25: a(f"s_and_b32 s53, s{sW}, 3\ns_lshl_b32 s52, s2, 2\ns_add_u32 s53, s53, s52\ns_mul_i32 s53, s53, {14*128}")
            a(ST[j])
        sh = OPT.get("vb", 1)
        for r in range(2, 4+sh): a(E[r])
        if t < 63:
            if q == 3: vm.wait(("kv", kt + 1))
            a(QK(prv, ((t+1)//4) % NRING, qof(t+1)))
        for r in range(4+sh, 10+sh): a(E[r])
        a(SM(qof(t), kt % NRING, 0, cur))
        W = red_write(t - 60) if (TAIL and t >= 61) else []
        for r in range(10+sh, 16):
            a(E[r])
            if W: a(W.pop(0))
        for x in W: a(x)
        if t % 4 == 3 and t < 60: stamp(a, t//4, 5)
    a("s_nop 1")
    a(SM(qof(63), 15 % NRING, 1, SB[1]))
    a("s_setprio 0")
    stamp(a, 6); stamp(a, 0, 8)
    if not TAIL:
        for i in range(1, 4):
            for x in red_write(i): a(x)
    a(f"s_mul_i32 s52, s{sKQ}, 3\ns_add_u32 s52, s52, s63\ns_mul_i32 s52, s52, 2304\ns_add_u32 s52, s52, {L_RED}")
    a(f"v_add_u32 v6, s52, v{vL16}\nv_add_u32 v7, s52, v15")
    a(f"s_lshl_b32 s52, s{sTB}, 2\ns_add_u32 s52, s52, s{sKQ}\ns_lshl_b32 s52, s52, 5\ns_add_u32 s52, s52, s58")
    a(f"s_lshl_b32 s63, s52, 10\ns_add_u32 s63, s63, {hex(WS_O)}")
    flag_off(a, 64, 52, WS_FO, LF())
    a(TP(sTB)); a(CP(sC))
    stamp(a, 1, 8)
    if OPT.get("nw", 1): a("s_waitcnt vmcnt(1)")
    else: vm.wait_all()
    a("s_waitcnt lgkmcnt(0)")
    stamp(a, 2, 8)
    a("s_barrier")
    stamp(a, 3, 8)
    R = 96
    for i in range(3):
        a(f"ds_read_b128 {vr(R+12*i,4)}, v6 offset:{2304*i}\nds_read_b128 {vr(R+12*i+4,4)}, v6 offset:{2304*i+1024}\nds_read_b32 v{R+12*i+8}, v7 offset:{2304*i+2048}")
    a(f"s_mov_b32 s52, {hx(2.0**-60)}\ns_mov_b32 s53, {hx(2.0**60)}\ns_movk_i32 s65, 0x207")
    for i in range(3):
        a(f"s_waitcnt lgkmcnt({6-3*i})")
        for r in range(9): a(f"v_add_f32 v{OA+r}, v{OA+r}, v{R+12*i+r}")
    a(f"v_add_f32 v8, v{OA}, v{OA+1}\nv_add_f32 v9, v{OA+2}, v{OA+3}\nv_add_f32 v10, v{OA+4}, v{OA+5}\nv_add_f32 v11, v{OA+6}, v{OA+7}")
    a("v_add_f32 v8, v8, v9\nv_add_f32 v10, v10, v11\nv_add_f32 v8, v8, v10")
    a(f"v_cmp_nge_f32 vcc, v{OA+8}, s52\nv_cmp_nle_f32 s[54:55], v{OA+8}, s53\nv_cmp_class_f32 s[56:57], v8, s65")
    a(f"v_rcp_f32 v8, v{OA+8}")
    a("s_or_b64 vcc, vcc, s[54:55]\ns_or_b64 vcc, vcc, s[56:57]")
    a("s_cbranch_vccnz Lslow")
    a("Lnorm:")
    for r in range(8): a(f"v_mul_f32 v{OA+r}, v{OA+r}, v8")
    for r in range(4): a(f"v_cvt_pk_bf16_f32 v{8+r}, v{OA+2*r}, v{OA+2*r+1}")
    vm.op(f"buffer_store_dwordx4 v[8:11], v{vL16}, {S['ws']}, s63 offen{RO()}")
    stamp(a, 4, 8)
    a("s_barrier")
    stamp(a, 5, 8)
    a(f"s_mul_i32 s52, s{sW}, 7168\ns_add_u32 s52, s52, {L_W1+8*7168}\nv_add_u32 v5, s52, v{vL16}")
    for j in range(7): a(f"ds_write_b128 v5, {vr(vSTASH+4*j,4)} offset:{1024*j}")
    def slow(b):
        tv = Track(b, "vmcnt", 63)
        b("Lslow:")
        poll_addr(b, 5)
        b(f"s_lshr_b32 s52, s58, 2\ns_lshl_b32 s52, s52, 11\ns_add_u32 s62, s52, {hex(WS_FKV)}")
        poll(b, tv, "-1", 5, "s62", 6)
        b("s_add_u32 s62, s62, 1024")
        poll(b, tv, "-1", 5, "s62", 6)
        b(f"s_waitcnt vmcnt(0)\ns_add_u32 s{sK}, s59, {hex(WS_K)}\ns_mov_b32 s51, 64\nv_mov_b32 v8, 0xff800000")
        b("Ls1:")
        b(f"buffer_load_dwordx4 {vr(RING,4)}, v{vL16}, {S['ws']}, s{sK} offen sc1\ns_add_u32 s{sK}, s{sK}, 1024\ns_waitcnt vmcnt(0)")
        b(QK(SB[0], 0, 0))
        for r in range(0, 16, 2): b(f"v_max3_f32 v8, v{SB[0]+r}, v{SB[0]+r+1}, v8")
        b("s_sub_u32 s51, s51, 1\ns_cmp_lg_u32 s51, 0\ns_cbranch_scc1 Ls1")
        b("v_mov_b32 v9, v8\nv_permlane32_swap_b32 v8, v9\nv_max_f32 v8, v8, v9")
        for r in range(16): b(f"v_sub_f32 v{SB[1]+r}, 0, v8")
        for r in range(16): b(f"v_mov_b32 v{OA+r}, 0")
        b(f"s_add_u32 s{sK}, s59, {hex(WS_K)}\ns_add_u32 s{sV}, s59, {hex(WS_V)}\ns_mov_b32 s51, 64")
        b("Ls2:")
        b(f"buffer_load_dwordx4 {vr(RING,4)}, v{vL16}, {S['ws']}, s{sK} offen sc1\ns_mov_b64 exec, s[60:61]")
        b(f"buffer_load_dwordx4 {vr(RING+4,4)}, v{vV}, {S['ws']}, s{sV} offen sc1\nbuffer_load_dwordx4 {vr(RING+8,4)}, v{vV}, {S['ws']}, s{sV} offen offset:512 sc1")
        b(f"s_mov_b64 exec, -1\ns_add_u32 s{sK}, s{sK}, 1024\ns_add_u32 s{sV}, s{sV}, 1024\ns_waitcnt vmcnt(0)")
        b(f"v_mfma_f32_32x32x16_bf16 {vr(SB[0],16)}, {vr(RING,4)}, {vr(QF,4)}, {vr(SB[1],16)}")
        for r in range(16): b(f"v_exp_f32 v{SB[0]+r}, v{SB[0]+r}")
        b(SM(0, 0, 0, SB[0])); b(SM(0, 0, 1, SB[0]))
        b("s_sub_u32 s51, s51, 1\ns_cmp_lg_u32 s51, 0\ns_cbranch_scc1 Ls2")
        b(f"s_nop 7\ns_nop 7\nv_rcp_f32 v8, v{OA+8}\ns_nop 0\ns_branch Lnorm")
    return slow

def w1_voffs(a, vF, vH, p=7, q=8, r=9):
    a(f"v_lshrrev_b32 v{p}, 2, v{vLANE}\nv_and_b32 v{q}, 3, v{vLANE}\nv_mul_u32_u24 v{vF}, 3584, v{p}\nv_lshl_add_u32 v{vF}, v{q}, 4, v{vF}")
    a(f"v_lshrrev_b32 v{p}, 1, v{vLANE}\nv_and_b32 v{q}, 0x13, v{p}\nv_bfe_u32 v{r}, v{p}, 2, 1\nv_lshl_add_u32 v{q}, v{r}, 3, v{q}\nv_bfe_u32 v{r}, v{p}, 3, 1\nv_lshl_add_u32 v{q}, v{r}, 2, v{q}")
    a(f"v_mul_u32_u24 v{vH}, 3584, v{q}\nv_and_b32 v{q}, 1, v{vLANE}\nv_lshl_add_u32 v{vH}, v{q}, 4, v{vH}")

def w1_kp_dma(sOff, sLds, vF, vH, dOff=0, dLds=0):
    L = []
    for e in range(2):
        for nt in range(3):
            L.append([f"s_add_u32 m0, s{sLds}, {dLds+3072*e+1024*nt}", f"s_add_u32 s52, s{sOff}, {dOff+16*3584*e+64*nt}",
                      f"buffer_load_dwordx4 v{vF}, {S['w1']}, s52 offen lds"])
    L.append([f"s_add_u32 m0, s{sLds}, {dLds+6144}", f"s_add_u32 s52, s{sOff}, {dOff+192}", f"buffer_load_dwordx4 v{vH}, {S['w1']}, s52 offen lds"])
    return L

def w1_reads(kp, e, dst, vF):
    base = 7168*kp + 3072*e
    return [f"ds_read_b64_tr_b16 {vr(dst+4*nt+2*st,2)}, v{vF[base >> 15]} offset:{(base & 0x7fff)+1024*nt+512*st}" for nt in range(3) for st in range(2)]
def w1_half_reads(kp, dst, vH):
    base = 7168*kp + 6144
    return [f"ds_read_b64_tr_b16 {vr(dst+2*st,2)}, v{vH[base >> 15]} offset:{(base & 0x7fff)+256*st}" for st in range(2)]

def h_pj(ks):
    return (ks // 4, ks % 4) if ks < 32 else ((ks - 32) // 3, 4 + (ks - 32) % 3)

def rot_loads(a, vm, base_s, dst, tag, div=1):
    for ks in range(32):
        if ks % 4 == 0: a(f"s_add_u32 s53, s{sR}, {ks//4}\ns_and_b32 s53, s53, 7\ns_lshl_b32 s53, s53, 12\ns_add_u32 s53, s53, s{base_s}")
        yield ks, (f"buffer_load_dwordx4 {vr(dst+4*ks,4)}, v{vL16}, {S['ws']}, s53 offen offset:{1024*(ks%4)}{RL() if tag == 'y' else ' sc1'}", (tag, ks//div))

def lds_init_b0(a):
    late_srds(a)
    a(f"v_mov_b32 v8, {L_SCR+256}\nv_mov_b32 v10, 0\nv_mov_b32 v11, 0\nds_write_b64 v8, v[10:11]\nds_write_b64 v8, v[10:11] offset:8\nds_write_b64 v8, v[10:11] offset:16\nds_write_b64 v8, v[10:11] offset:24\nds_write_b64 v8, v[10:11] offset:32\nds_write_b64 v8, v[10:11] offset:40\ns_waitcnt lgkmcnt(0)\ns_barrier")

EB = lambda bit: OPT.get('eb1', 2) & bit
def tag_to_lds_b1(a, late, nap=0):
    a(f"v_mov_b32 v8, s{sTAG}\nv_mov_b32 v9, {L_SCR+260}\nds_write_b32 v9, v8\ns_waitcnt lgkmcnt(0)")
    stamp(a, 0)
    if late: a("s_barrier")
    if nap: a(f"s_sleep {nap}")
    a("s_branch La_p1")

def p0_ln(a):
    vm = Track(a, "vmcnt", 63)
    a(f"s_and_b32 s52, s{sX}, 1\ns_lshl_b32 s52, s52, 4\ns_add_u32 s52, s52, s{sI}\ns_sub_u32 s52, s52, 8\ns_lshl_b32 s52, s52, 2\ns_add_u32 s52, s52, s{sW}")
    a(f"s_lshr_b32 s53, s{sX}, 1\ns_lshl_b32 s53, s53, 7\ns_add_u32 s56, s52, s53\ns_lshl_b32 s53, s56, 12")
    a(f"v_and_b32 v4, 3, v{vLANE}\nv_lshrrev_b32 v5, 2, v{vLANE}\nv_lshlrev_b32 v6, 10, v4\nv_lshl_add_u32 v6, v5, 4, v6")
    a("s_waitcnt lgkmcnt(0)")
    for m in range(4): vm.op(f"buffer_load_dwordx4 {vr(16+4*m,4)}, v6, {S['x']}, s53 offen offset:{256*m}")
    lds_init_b0(a)
    a("v_lshrrev_b32 v7, 1, v5\nv_lshlrev_b32 v7, 10, v7\nv_and_b32 v8, 1, v5\nv_lshl_add_u32 v7, v8, 9, v7\nv_lshl_add_u32 v7, v4, 4, v7")
    a(f"s_lshr_b32 s53, s56, 3\ns_lshl_b32 s53, s53, 15\ns_and_b32 s54, s56, 7\ns_lshl_b32 s54, s54, 6\ns_add_u32 s53, s53, s54\ns_add_u32 s53, s53, {hex(WS_XN)}")
    flag_off(a, 55, 56, WS_FXN)
    stamp(a, 0, 7)
    vm.wait_all()
    stamp(a, 1, 7)
    vm.op(f"buffer_load_dword v15, v{vZ}, {S['dbg']}, 0 offen sc1")
    F = 32
    for r in range(16): a(f"v_lshlrev_b32 v{F+2*r}, 16, v{16+r}\nv_and_b32 v{F+2*r+1}, 0xffff0000, v{16+r}")
    def red(v, t):
        for r in (4, 8): a(f"v_add_f32_dpp v{v}, v{v}, v{v} row_ror:{r} row_mask:0xf bank_mask:0xf")
        a(f"v_mov_b32 v{t}, v{v}\nv_permlane16_swap_b32 v{v}, v{t}\nv_add_f32 v{v}, v{v}, v{t}")
        a(f"v_mov_b32 v{t}, v{v}\nv_permlane32_swap_b32 v{v}, v{t}\nv_add_f32 v{v}, v{v}, v{t}")
    a(f"v_pk_add_f32 v[64:65], {vr(F,2)}, {vr(F+2,2)}\nv_pk_add_f32 v[66:67], {vr(F+4,2)}, {vr(F+6,2)}")
    for r in range(8, 32, 4): a(f"v_pk_add_f32 v[64:65], v[64:65], {vr(F+r,2)}\nv_pk_add_f32 v[66:67], v[66:67], {vr(F+r+2,2)}")
    a("v_pk_add_f32 v[64:65], v[64:65], v[66:67]\nv_add_f32 v64, v64, v65")
    red(64, 65)
    a(f"v_mul_f32 v64, {hx(-1/512)}, v64")
    for r in range(0, 32, 2): a(f"v_pk_add_f32 {vr(F+r,2)}, {vr(F+r,2)}, v[64:65] op_sel_hi:[1,0]")
    a(f"v_pk_mul_f32 v[66:67], {vr(F,2)}, {vr(F,2)}\nv_pk_mul_f32 v[68:69], {vr(F+2,2)}, {vr(F+2,2)}")
    for r in range(4, 32, 4): a(f"v_pk_fma_f32 v[66:67], {vr(F+r,2)}, {vr(F+r,2)}, v[66:67]\nv_pk_fma_f32 v[68:69], {vr(F+r+2,2)}, {vr(F+r+2,2)}, v[68:69]")
    a("v_pk_add_f32 v[66:67], v[66:67], v[68:69]\nv_add_f32 v66, v66, v67")
    red(66, 67)
    a(f"v_mov_b32 v67, {hx(1e-5)}\nv_fmac_f32 v67, {hx(1/512)}, v66\nv_rsq_f32 v66, v67")
    for r in range(0, 32, 2): a(f"v_pk_mul_f32 {vr(F+r,2)}, {vr(F+r,2)}, v[66:67] op_sel_hi:[1,0]")
    for m in range(4):
        for r in range(4): a(f"v_cvt_pk_bf16_f32 v{16+4*m+r}, v{F+8*m+2*r}, v{F+8*m+2*r+1}")
        vm.op(f"buffer_store_dwordx4 {vr(16+4*m,4)}, v7, {S['ws']}, s53 offen sc1")
        if m < 3: a("s_add_u32 s53, s53, 8192")
    stamp(a, 2, 7)
    if EB(1): a("s_barrier")
    vm.wait_all()
    stamp(a, 3, 7)
    tag_now(a, 15)
    set_flag(a, vm, "s55", vZ, 8)
    stamp(a, 4, 7)
    tag_to_lds_b1(a, not EB(1), OPT.get('nl', 0))

def p0_mod(a):
    vm = Track(a, "vmcnt", 63)
    sCol = 51
    a(f"s_lshl_b32 s{sCol}, s{sX}, 1\ns_lshr_b32 s52, s{sI}, 2\ns_add_u32 s{sCol}, s{sCol}, s52\ns_lshl_b32 s{sCol}, s{sCol}, 6")
    a(f"s_and_b32 s52, s{sI}, 3\ns_lshl_b32 s52, s52, 4\ns_add_u32 s{sCol}, s{sCol}, s52")
    a("s_waitcnt lgkmcnt(0)")
    mod_issue(a, vm, sCol)
    lds_init_b0(a)
    vm.wait("mod")
    stamp(a, 1, 7)
    a(f"buffer_load_dword v15, v{vZ}, {S['dbg']}, 0 offen sc1")
    if EB(4): a("s_barrier")
    mod_partial(a, vm)
    a("s_waitcnt vmcnt(0)")
    tag_now(a, 15)
    mod_join(a, vm, sCol, "La_joined")
    a("La_joined:")
    stamp(a, 4, 7)
    tag_to_lds_b1(a, not EB(4), OPT.get('nm', 0))

def p0_warm(a):
    a(f"s_sub_u32 s52, s{sI}, 24\ns_lshl_b32 s52, s52, 1\ns_add_u32 s52, s52, s{sW}\ns_lshl_b32 s52, s52, 5")
    a(f"v_lshrrev_b32 v4, 1, v{vLANE}\nv_add_u32 v4, s52, v4\nv_mul_u32_u24 v4, 6144, v4\nv_and_b32 v5, 1, v{vLANE}\nv_lshl_add_u32 v4, v5, 7, v4\ns_lshl_b32 s52, s{sX}, 8")
    a(f"s_waitcnt lgkmcnt(0)\ns_cmp_ge_u32 s{sW}, 2\ns_cbranch_scc1 La_nowm")
    a(f"buffer_load_dword v6, v4, {S['wmod']}, s52 offen")
    a("La_nowm:")
    lds_init_b0(a)
    a("s_waitcnt vmcnt(0)")
    stamp(a, 1, 7)
    a(f"buffer_load_dword v15, v{vZ}, {S['dbg']}, 0 offen sc1")
    if EB(2): a("s_barrier")
    a("s_waitcnt vmcnt(0)")
    tag_now(a, 15)
    tag_to_lds_b1(a, not EB(2), OPT.get('nwm', 0))

def wkv_loop(a, name):
    a(f"{name}:")
    a(f"s_and_b32 s55, s55, 31\ns_lshl_b32 s53, s55, 11\ns_add_u32 s52, s55, s57\ns_and_b32 s52, s52, 31\ns_mul_i32 s52, s52, {16*3072}\ns_mov_b32 m0, s53\ns_add_u32 s52, s52, s56")
    a(f"buffer_load_dwordx4 v12, {S['wqkv']}, s52 offen lds\ns_add_u32 m0, s53, 1024\ns_add_u32 s52, s52, {8*3072}\nbuffer_load_dwordx4 v12, {S['wqkv']}, s52 offen lds")
    a(f"s_add_u32 s55, s55, 4\ns_sub_u32 s51, s51, 1\ns_cmp_lg_u32 s51, 0\ns_cbranch_scc1 {name}")

def p0_helper(a):
    vm = Track(a, "vmcnt", 63)
    sH = 67
    a(f"v_mov_b32 v32, 0\nv_mov_b32 v33, 0\nv_mov_b32 v34, 0\nv_mov_b32 v35, 0\ns_lshl_b32 s52, s{sH}, 12\ns_add_u32 s52, s52, {L_DG}\nv_add_u32 v9, s52, v{vL16}")
    for j in range(4): a(f"ds_write_b128 v9, v[32:35] offset:{1024*j}")
    a(f"s_lshl_b32 s52, s2, 2\ns_add_u32 s52, s52, s{sH}\ns_and_b32 s53, s52, 1\ns_lshr_b32 s52, s52, 1\ns_mul_i32 s52, s52, 3072")
    a("s_lshl_b32 s57, s53, 9\ns_add_u32 s57, s57, s52\ns_lshl_b32 s53, s53, 10\ns_add_u32 s52, s52, s53\ns_add_u32 s52, s52, 1024")
    a("s_waitcnt lgkmcnt(0)")
    a(f"s_andn2_b32 s58, s2, {OPT.get('tagm', 4)}\ns_lshl_b32 s58, s58, 3\ns_add_u32 s58, s58, s{sW}\ns_cmp_lg_u32 s58, {OPT.get('tagw', 64)*8+4}\ns_cbranch_scc1 Le_notag")
    a(f"s_or_b32 s54, s54, 1\nv_mov_b32 v6, s54\nv_mov_b32 v7, 0\ns_mov_b64 exec, 1\nbuffer_atomic_cmpswap v[6:7], v{vZ}, {S['dbg']}, 0 offen sc1\ns_mov_b64 exec, -1")
    a("Le_notag:")
    s0 = OPT.get("st0", 9)
    for n in range(min(s0, 4) if s0 != 9 else 1): a(stouch("wqkv", 52, n))
    late_srds(a)
    a("s_barrier")
    if s0 == 9: a("s_waitcnt lgkmcnt(0)")
    for n in range(min(s0, 4) if s0 != 9 else 1, 8): a(stouch("wqkv", 52, n))
    for n in range(4): a(stouch("wqkv", 57, n))
    a(f"v_lshrrev_b32 v4, 3, v{vLANE}\nv_mul_u32_u24 v4, 3072, v4\nv_bfe_u32 v5, v{vLANE}, 4, 1\nv_lshlrev_b32 v5, 2, v5\nv_xor_b32 v5, v5, v{vLANE}\nv_and_b32 v5, 7, v5\nv_lshl_add_u32 v12, v5, 4, v4")
    a(f"s_and_b32 s56, s{sC}, 1\ns_add_u32 s56, s56, 1\ns_lshl_b32 s56, s56, 10\ns_lshr_b32 s52, s{sC}, 1\ns_lshl_b32 s52, s52, 7\ns_add_u32 s56, s56, s52")
    a(f"s_and_b32 s55, s{sTB}, {1 if OPT.get('m216', 0) else 3}\ns_lshl_b32 s55, s55, {4 if OPT.get('m216', 0) else 3}\ns_add_u32 s55, s55, s{sH}\ns_lshl_b32 s57, s{sR}, 2\ns_mov_b32 s51, 8")
    WH_ = OPT.get("whalf", 0)
    if WH_: a(f"s_mov_b32 s55, s{sH}\ns_mov_b32 s51, {WH_}\ns_mov_b32 s59, s56\ns_mov_b32 s60, s57")
    stamp(a, 0, 7)
    a("s_barrier")
    stamp(a, 1, 7)
    wkv_loop(a, "Lh_wl")
    tag_get(a)
    stamp(a, 0); stamp(a, 2, 7)
    a(f"s_cmp_ge_u32 s{sH}, 2\ns_cbranch_scc1 Lh_b2")
    a(f"s_lshl_b32 s52, s{sH}, 11")
    a(f"v_lshrrev_b32 v5, 3, v{vLANE}\ns_lshl_b32 s53, s{sR}, 1\nv_subrev_u32 v5, s53, v5\nv_and_b32 v5, 15, v5\nv_xor_b32 v6, 8, v5")
    gran_poll(a, vm, [f"buffer_load_dwordx4 v[16:19], v{vL16}, {S['ws']}, s52 offen sc1", f"buffer_load_dwordx4 v[20:23], v{vL16}, {S['ws']}, s52 offen offset:1024 sc1"], [16, 20], OPT.get("ng", 0))
    stamp(a, 1)
    a(f"s_cmp_lg_u32 s{sH}, 0\ns_cbranch_scc1 Lh_g1")
    for j, r in enumerate((16, 18, 20, 22)): a(f"v_lshlrev_b32 v{24+2*j}, 16, v{r}\nv_and_b32 v{25+2*j}, 0xffff0000, v{r}")
    a(f"v_and_b32 v7, 1, v{vLANE}\nv_lshlrev_b32 v7, 6, v7\nv_bfe_u32 v9, v{vLANE}, 1, 2\nv_lshl_add_u32 v7, v9, 4, v7\nv_add_u32 v7, {L_SA}, v7")
    a("v_lshl_add_u32 v5, v5, 7, v7\nv_lshl_add_u32 v6, v6, 7, v7")
    a("ds_write_b128 v5, v[24:27]\nds_write_b128 v6, v[28:31]")
    a("s_branch Lh_b2")
    a("Lh_g1:")
    a(f"v_and_b32 v7, 7, v{vLANE}\nv_lshlrev_b32 v7, 6, v7\nv_bfe_u32 v9, v{vLANE}, 2, 1\nv_lshl_add_u32 v7, v9, 9, v7\nv_and_b32 v9, 3, v{vLANE}\nv_lshl_add_u32 v7, v9, 2, v7\nv_add_u32 v7, {L_DG}, v7")
    a("v_lshl_add_u32 v5, v5, 10, v7\nv_lshl_add_u32 v6, v6, 10, v7")
    for j in range(2):
        for e in range(4):
            a(f"ds_write_b16{'_d16_hi' if e & 1 else ''} v{5+j}, v{16+4*j+2*(e>>1)} offset:{16*e + 2*(e & 1)}")
    a("s_branch Lh_b2")

def late_srds(a):
    for nm in ("wo", "w1", "w2", "out"): a(f"s_mov_b32 s{SRD[nm]+2}, {hex(SZ[nm])}\ns_mov_b32 s{SRD[nm]+3}, 0x20000")

def active(a):
    vm = Track(a, "vmcnt", 63); lg = Track(a, "lgkmcnt", 15)
    sT32 = 67
    a("La_p1:")
    if OPT.get("ap", 0) & 2: a("s_setprio 1")
    ACC = [16, 32, 48]; WF = [64, 72]; DH = [88, 104]; DG = [120, 124]; AF = 128
    a(f"s_lshl_b32 s{sT32}, s{sTB}, 2\ns_add_u32 s{sT32}, s{sT32}, s{sW}")
    a(f"v_lshlrev_b32 v5, 2, v{vLANE}\ns_lshl_b32 s52, s{sT32}, 7\ns_add_u32 s52, s52, {hex(WS_FXN)}")
    tr_addr(a, 10, 12, True, 7, True)
    a("v_xor_b32 v12, 64, v10")
    a(f"v_bfe_u32 v11, v0, 5, 1\nv_lshlrev_b32 v11, 6, v11\nv_add_u32 v11, {L_SA}, v11\nv_add_u32 v13, {L_DG}, v{vL16}")
    a(f"v_and_b32 v14, 2, v0\nv_cmp_eq_u32 vcc, 0, v14\nv_mov_b32 v14, 0xeeeeeeee\nv_mov_b32 v15, 0x44444444\nv_cndmask_b32 v14, v14, v15, vcc")
    for r in range(48): a(f"v_mov_b32 v{16+r}, 0")
    poll(a, vm, "0xff", 5, "s52", 6, OPT.get("fn", 0))
    stamp(a, 1)
    a(f"s_lshl_b32 s52, s{sT32}, 15\ns_add_u32 s52, s52, {hex(WS_XN)}")
    a(f"s_lshr_b32 s54, s{sC}, 1\ns_lshl_b32 s54, s54, 18\ns_lshl_b32 s55, s{sT32}, 10\ns_add_u32 s54, s54, s55")
    a(f"s_bitcmp1_b32 s{sC}, 0\ns_cbranch_scc1 La_vwg")
    def rdS(b):
        L = [(f"ds_read_b128 {vr(DH[b&1]+4*q,4)}, v11 offset:{128*b+16*q}", ("s", b)) for q in range(4)]
        return L + [(f"ds_read_b128 {vr(DG[b&1],4)}, v13 offset:{1024*b}", ("s", b))]
    def rdW(ks):
        return [(f"ds_read_b64_tr_b16 {vr(WF[ks&1]+4*g+2*st,2)}, v{(10, 12)[g]} offset:{2048*ks+1024*st}", ("w", ks)) for g in range(2) for st in range(2)]
    def SMF(b): return f"v_smfmac_f32_32x32x32_bf16 {vr(DH[b&1],16)}, {vr(DG[b&1],4)}, {vr(AF+8*b,8)}, v14"
    def CVT(b): return [f"v_cvt_pk_bf16_f32 v{AF+8*b+r}, v{DH[b&1]+2*r}, v{DH[b&1]+2*r+1}" for r in range(8)]
    for isV in (0, 1):
        if isV: a("La_vwg:")
        vm.reset(); lg.reset()
        XL = rot_loads(a, vm, 52, AF, "xn", 2)
        def xn_issue(n):
            for _ in range(n):
                r = next(XL, None)
                if r: vm.op(*r[1])
        def MM(ks):
            f = AF + 4*ks; w = WF[ks & 1]
            if isV: return [f"v_mfma_f32_32x32x16_bf16 {vr(ACC[1+g],16)}, {vr(f,4)}, {vr(w+4*g,4)}, {vr(ACC[1+g],16)}" for g in range(2)]
            return [f"v_mfma_f32_32x32x16_bf16 {vr(ACC[1+g],16)}, {vr(w+4*g,4)}, {vr(f,4)}, {vr(ACC[1+g],16)}" for g in range(2)]
        xn_issue(OPT.get("xn0", 8))
        a("s_barrier")
        xn_issue(10 - OPT.get("xn0", 8))
        for x in rdS(0) + rdS(1): lg.op(*x)
        lg.wait(("s", 0)); vm.wait(("xn", 0))
        a(SMF(0))
        for x in rdW(0): lg.op(*x)
        xn_issue(2)
        a("s_nop 5")
        for x in CVT(0): a(x)
        stamp(a, 2)
        for b in range(16):
            nx = b + 1 < 16
            if nx:
                lg.wait(("s", b+1)); vm.wait(("xn", b+1))
                a(SMF(b+1))
            for x in rdW(2*b+1): lg.op(*x)
            lg.wait(("w", 2*b))
            M = MM(2*b); Rs = rdS(b+2) if b + 2 < 16 else []
            a(M[0]); [lg.op(*x) for x in Rs]
            a(M[1]); xn_issue(3)
            if b == OPT.get("b2b", 6): a("s_barrier")
            lg.wait(("w", 2*b+1))
            M = MM(2*b+1); C = CVT(b+1) if nx else []; Rw = rdW(2*b+2) if nx else []
            a(M[0]); [lg.op(*x) for x in Rw]; [a(x) for x in C[:3]]
            a(M[1]); [a(x) for x in C[3:]]
            if b < 15: stamp(a, b, 6)
        if not isV:
            a(f"s_add_u32 s54, s54, {hex(WS_K)}")
            a(f"v_and_b32 v5, 0x33, v{vLANE}\nv_bfe_u32 v6, v{vLANE}, 2, 1\nv_lshl_add_u32 v5, v6, 3, v5\nv_bfe_u32 v6, v{vLANE}, 3, 1\nv_lshl_add_u32 v5, v6, 2, v5\nv_lshlrev_b32 v5, 4, v5")
            for h in range(4):
                for r in range(4): a(f"v_cvt_pk_bf16_f32 v{112+4*h+r}, v{ACC[1]+8*h+2*r}, v{ACC[1]+8*h+2*r+1}")
                vm.op(f"buffer_store_dwordx4 {vr(112+4*h,4)}, v5, {S['ws']}, s54 offen sc1")
                if h < 3: a("s_add_u32 s54, s54, 65536")
            a("s_branch La_kvd")
        else:
            a(f"s_add_u32 s54, s54, {hex(WS_V)}")
            a(f"v_and_b32 v6, 15, v{vLANE}\nv_lshlrev_b32 v6, 4, v6\nv_bfe_u32 v7, v{vLANE}, 5, 1\nv_lshl_add_u32 v6, v7, 8, v6\nv_bfe_u32 v7, v{vLANE}, 4, 1\nv_lshl_add_u32 v6, v7, 16, v6")
            for h in range(4):
                for r in range(4): a(f"v_cvt_pk_bf16_f32 v{112+4*h+r}, v{ACC[1]+8*h+2*r}, v{ACC[1]+8*h+2*r+1}")
                vm.op(f"buffer_store_dwordx4 {vr(112+4*h,4)}, v6, {S['ws']}, s54 offen offset:{512*(h&1)} sc1")
                if h == 1: a("s_add_u32 s54, s54, 131072")
    a("La_kvd:")
    stamp(a, 3)
    a(f"s_lshl_b32 s57, s{sW}, 10\ns_add_u32 s57, s57, {L_QX}\nv_add_u32 v7, s57, v{vL16}")
    a(f"s_lshl_b32 s58, s{sC}, 6\ns_add_u32 s58, s58, s{sT32}")
    flag_off(a, 51, 58, WS_FKV)
    tr_addr(a, 10, 12, True, 6, False)
    a(f"v_add_u32 v10, {L_WQ}, v10")
    a("s_barrier")
    WQ = [96, 100, 104, 108]
    early, late = att_setup(); fill = early + late; assert len(early) >= 12*5
    def rdQ(ks): return [(f"ds_read_b64_tr_b16 {vr(WQ[ks&3]+2*st,2)}, v10 offset:{1024*ks+512*st}", ("q", ks)) for st in range(2)]
    lg.reset()
    for x in rdQ(0) + rdQ(1) + rdQ(2): lg.op(*x)
    for ks in range(32):
        if ks + 3 < 32: [lg.op(*x) for x in rdQ(ks+3)]
        lg.wait(("q", ks))
        a(f"v_mfma_f32_32x32x16_bf16 {vr(ACC[0],16)}, {vr(WQ[ks&3],4)}, {vr(AF+4*ks,4)}, {vr(ACC[0],16)}")
        if ks == OPT.get("kvflag", 8): set_flag(a, vm, "s51", vZ, 8)
        else:
            for x in fill[:6]: a(x)
            fill = fill[6:]
    for x in fill: a(x)
    a(f"s_mov_b32 s53, {hx(0.25*LOG2E)}")
    for r in range(16): a(f"v_mul_f32 v{ACC[0]+r}, s53, v{ACC[0]+r}")
    for r in range(8): a(f"v_cvt_pk_bf16_f32 v{96+r}, v{ACC[0]+2*r}, v{ACC[0]+2*r+1}")
    a("ds_write_b128 v7, v[96:99]\nds_write_b128 v7, v[100:103] offset:4096")
    if OPT.get("qj", 1):
        a(f"v_mov_b32 v9, {L_SCR+264}\nv_mov_b32 v10, 1\ns_waitcnt lgkmcnt(0)\ns_mov_b64 exec, 1\nds_add_u32 v9, v10\ns_mov_b64 exec, -1")
        att_first(a, vm, OPT.get("fk", 0))
        q_join(a); att_q(a)
    else:
        a("s_waitcnt lgkmcnt(0)\ns_barrier")
        att_q(a)
        att_first(a, vm, OPT.get("fk", 0))

def active2(a):
    vm = Track(a, "vmcnt", 63); lg = Track(a, "lgkmcnt", 15)
    sT32, AF = 67, 128
    if OPT.get("ap", 1) & 1: a("s_setprio 1")
    ACC, WF, XR, GA, G2, XF = 16, [96, 100, 104, 108], vXR, 48, 64, 80
    a(f"s_getreg_b32 s50, hwreg(HW_REG_XCC_ID)\ns_and_b32 s50, s50, 15\ns_lshl_b32 s50, s50, 1\ns_add_u32 s50, s50, s{sTAG}\nv_cmp_ne_u32 vcc, s50, v{vXR+8}\nv_bfe_u32 v9, v{vLANE}, 5, 1\ns_cmp_eq_u64 vcc, 0\ns_cselect_b32 s{sLOC}, 1, 0")
    for q in range(4):
        for h in range(2): a(f"v_lshlrev_b32 v{XF+4*q+2*h}, 16, v{XR+2*q+h}\nv_and_b32 v{XF+4*q+2*h+1}, 0xffff0000, v{XR+2*q+h}")
    a(f"s_lshl_b32 s57, s{sT32}, 15\ns_lshl_b32 s58, s{sC}, 11\ns_add_u32 s57, s57, s58\ns_add_u32 s58, s57, {hex(WS_Y)}\ns_add_u32 s57, s57, {hex(WS_X1)}")
    a(f"s_lshl_b32 s54, s{sC}, 14\ns_lshl_b32 s55, s{sT32}, 8\ns_add_u32 s54, s54, s55\ns_add_u32 s54, s54, {hex(WS_STATS)}")
    a(f"s_lshl_b32 s55, s{sT32}, 4\ns_add_u32 s55, s55, s{sC}")
    flag_off(a, 56, 55, WS_FX1, LF())
    a(f"s_lshl_b32 s55, s{sT32}, {11-LF()}\ns_add_u32 s55, s55, {hex(WS_FX1)}")
    tr_addr(a, 10, 11, True, 6, False)
    for r in range(16): a(f"v_mov_b32 v{ACC+r}, 0")
    poll_addr(a, 5, LF())
    a(f"s_lshl_b32 s52, s{sT32}, {12-LF()}\ns_add_u32 s52, s52, {hex(WS_FO)}")
    stamp(a, 6, 8)
    set_flag(a, vm, "s64", vZ, 8, '' if OPT.get('fastO') else ' sc1')
    stamp(a, 7); stamp(a, 7, 8)
    if OPT.get("ft", 1):
        a(f"s_cmp_eq_u32 s{sLOC}, 0\ns_cbranch_scc1 La_noft\nv_and_b32 v12, 1, v{vLANE}\nv_lshlrev_b32 v12, 7, v12\ns_mov_b64 exec, 3")
        a(f"buffer_load_dword v13, v12, {S['ws']}, s55 offen sc1\ns_add_u32 s53, s55, {hex(WS_FH-WS_FX1)}\nbuffer_load_dword v13, v12, {S['ws']}, s53 offen sc1\ns_mov_b64 exec, -1\nLa_noft:")
    if OPT.get("b5e", 0):
        a(f"s_sleep {OPT['b5e']}")
        sig_regs(a, 126, 127); sig(a, "b5b", 126, 127)
    poll(a, vm, "0xffffffff", 5, "s52", 11, OPT.get("fo", 25) - OPT.get("b5e", 0))
    stamp(a, 8); stamp(a, 0, 2)
    a(f"s_lshl_b32 s52, s{sT32}, 15\ns_add_u32 s52, s52, {hex(WS_O)}")
    OL = rot_loads(a, vm, 52, AF, "o")
    for _ in range(OPT.get("b5b", 12)): vm.op(*next(OL)[1])
    if not OPT.get("b5e", 0): sig_regs(a, 126, 127); sig(a, "b5b", 126, 127)
    for _ in range(12 - OPT.get("b5b", 12)): vm.op(*next(OL)[1])
    a(f"v_lshlrev_b32 v6, 2, v{vLANE}\nv_lshlrev_b32 v5, 4, v9\nv_add_u32 v5, {L_GA}, v5")
    def rdWo(ks): return [(f"ds_read_b64_tr_b16 {vr(WF[ks&3]+2*st,2)}, v10 offset:{L_WO+1024*ks+512*st}", ("w", ks)) for st in range(2)]
    lg.reset()
    for x in rdWo(0) + rdWo(1) + rdWo(2): lg.op(*x)
    for ks in range(32):
        if ks + 3 < 32:
            for x in rdWo(ks+3): lg.op(*x)
        if ks == 28:
            lg.wait(("w", 31))
            a("s_barrier")
            for q in range(4): a(f"ds_read_b128 {vr(GA+4*q,4)}, v5 offset:{32*q}")
            for q in range(4): a(f"ds_read_b128 {vr(G2+4*q,4)}, v5 offset:{128+32*q}")
        lg.wait(("w", ks)); vm.wait(("o", ks))
        a(f"v_mfma_f32_32x32x16_bf16 {vr(ACC,16)}, {vr(WF[ks&3],4)}, {vr(AF+4*ks,4)}, {vr(ACC,16)}")
        if ks + 12 < 32: vm.op(*next(OL)[1])
        if ks == 19 and OPT.get("early", 0): sig(a, "b5c", 126, 127, lg)
        if ks % 4 == 0 or ks == 31: stamp(a, 1 + (ks+1)//4, 2)
    stamp(a, 10, 2)
    a("s_waitcnt lgkmcnt(4)")
    for r in range(16): a(f"v_fmac_f32 v{XF+r}, v{ACC+r}, v{GA+r}")
    a("s_waitcnt lgkmcnt(0)")
    for r in range(16): a(f"v_mul_f32 v{ACC+r}, v{XF+r}, v{G2+r}")
    for r in range(8): a(f"v_cvt_pk_bf16_f32 v{32+r}, v{ACC+2*r}, v{ACC+2*r+1}")
    vm.op(f"buffer_store_dwordx4 v[32:35], v{vL16}, {S['ws']}, s58 offen{RY()}"); vm.op(f"buffer_store_dwordx4 v[36:39], v{vL16}, {S['ws']}, s58 offen offset:1024{RY()}")
    a(f"v_pk_add_f32 v[48:49], {vr(XF,2)}, {vr(XF+2,2)}\nv_pk_mul_f32 v[50:51], {vr(XF,2)}, {vr(XF,2)}\nv_pk_fma_f32 v[50:51], {vr(XF+2,2)}, {vr(XF+2,2)}, v[50:51]")
    for r in range(4, 16, 2): a(f"v_pk_add_f32 v[48:49], v[48:49], {vr(XF+r,2)}\nv_pk_fma_f32 v[50:51], {vr(XF+r,2)}, {vr(XF+r,2)}, v[50:51]")
    a("v_add_f32 v48, v48, v49\nv_add_f32 v49, v50, v51")
    for r in range(8): a(f"v_cvt_pk_bf16_f32 v{40+r}, v{XF+2*r}, v{XF+2*r+1}")
    a("v_permlane32_swap_b32 v48, v49\nv_add_f32 v48, v48, v49")
    vm.op(f"buffer_store_dword v48, v6, {S['ws']}, s54 offen{RY()}")
    vm.op(f"buffer_store_dwordx4 v[40:43], v{vL16}, {S['ws']}, s57 offen sc1"); vm.op(f"buffer_store_dwordx4 v[44:47], v{vL16}, {S['ws']}, s57 offen offset:1024 sc1")
    stamp(a, 11, 2)
    ACC, WF, WH, ST = 16, [80, 92, 104], [116, 120], 240
    vF, vH = [10, 11, 12, 13], [4, 7, 14, 15]
    tr_addr(a, 10, 11, True, 6, False)
    a(f"v_add_u32 v10, {L_W1}, v10\nv_add_u32 v11, 0x8000, v10\nv_add_u32 v12, 0x10000, v10\nv_add_u32 v13, 0x18000, v10")
    half_tr_addr(a, 4, 7)
    a(f"v_add_u32 v4, {L_W1}, v4\nv_add_u32 v7, 0x8000, v4\nv_add_u32 v14, 0x10000, v4\nv_add_u32 v15, 0x18000, v4")
    a(f"v_and_b32 v8, 16, v0\nv_cmp_eq_u32 vcc, 0, v8\nv_mov_b32 v8, 0xeeeeeeee\nv_mov_b32 v5, 0x44444444\nv_cndmask_b32 v8, v8, v5, vcc")
    for r in range(64): a(f"v_mov_b32 v{ACC+r}, 0")
    poll_addr(a, 5, LF())
    set_flag_rg(a, vm, "s56", 9)
    stamp(a, 9); stamp(a, 12, 2)
    poll(a, vm, "0xffff", 5, "s55", 125, OPT.get("fx", 2))
    stamp(a, 10); stamp(a, 0, 3)
    a(f"s_lshl_b32 s52, s{sT32}, 15\ns_add_u32 s52, s52, {hex(WS_Y)}")
    a(f"s_lshl_b32 s54, s{sT32}, 8\ns_add_u32 s54, s54, {hex(WS_STATS)}")
    YL = rot_loads(a, vm, 52, AF, "y")
    for _ in range(4): vm.op(*next(YL)[1])
    for q in range(16):
        vm.op(f"buffer_load_dword v{ST+q}, v6, {S['ws']}, s54 offen sc1", "st"); a("s_add_u32 s54, s54, 16384")
    for _ in range(8): vm.op(*next(YL)[1])
    lg.reset()
    def rdW1(ks): return [(x, ("w", ks)) for x in w1_reads(ks//2, ks & 1, WF[ks % 3], vF)]
    for x in rdW1(0) + rdW1(1): lg.op(*x)
    TT, UB = 128, 184
    side = {}
    side[(6, 0)] = ["v_mov_b32 v125, v124", f"v_bfe_u32 v5, v{vLANE}, 5, 1", "v_lshlrev_b32 v9, 7, v5", "v_permlane32_swap_b32 v124, v125"]
    side[(6, 1)] = [f"v_add_u32 v9, {L_UW}, v9", f"v_mul_f32 v124, {hx(1/512)}, v124", f"v_mul_f32 v125, {hx(1/512)}, v125", "v_fma_f32 v125, -v124, v124, v125"]
    side[(6, 2)] = ["v_max_f32 v125, 0, v125", f"v_add_f32 v125, {hx(1e-5)}, v125", "v_rsq_f32 v125, v125"]
    side[(7, 0)] = [f"v_mul_f32 v5, {hx(-LOG2E)}, v125", "v_mul_f32 v125, v5, v124", "v_sub_f32 v125, 0, v125", "v_mov_b32 v124, v5"]
    side[(7, 1)] = [f"s_lshl_b32 s55, s{sT32}, 4", f"s_add_u32 s55, s55, s{sC}", f"s_lshr_b32 s50, s55, {LF()}", "s_lshl_b32 s50, s50, 7", f"s_and_b32 s56, s55, {(1 << LF()) - 1}"]
    side[(7, 2)] = ["s_lshl_b32 s56, s56, 2", "s_add_u32 s56, s56, s50", f"s_add_u32 s56, s56, {hex(WS_FH)}"]
    side[(12, 0)] = [f"s_mul_i32 s52, s{sT32}, {112*1024}", f"s_mul_i32 s53, s{sC}, 7168", "s_add_u32 s52, s52, s53", f"s_add_u32 s52, s52, {hex(WS_H)}"]
    if ONEWAY(): side[(13, 2)] = ["uwrd"]; side[(15, 1)] = ["uwck"]
    for m in range(7):
        ks = 16 + 2*m
        rw = lambda j: f"ds_read_b128 {vr(TT+4*j,4)}, v9 offset:{256*(j//4)+64+16*(j%4)}"
        ru = lambda j: f"ds_read_b128 {vr(UB+4*(j&1),4)}, v9 offset:{256*(j//4)+16*(j%4)}"
        fm = lambda j: [f"v_fmac_f32 v{TT+4*j+r}, v125, v{UB+4*(j&1)+r}" for r in range(4)]
        side.setdefault((ks+2, 1), []).extend([f"wait{ks+1}"] + fm(2*m))
        side.setdefault((ks+2, 2), []).extend(fm(2*m+1))
        side.setdefault((ks, 2), []).append(rw(2*m))
        side.setdefault((ks+1, 2), []).extend([ru(2*m), rw(2*m+1), ru(2*m+1)])
    for kp in range(16):
        for e in range(2):
            ks = 2*kp + e
            R = rdW1(ks+2) if ks + 2 < 32 else []
            if e == 0: R = [(x, ("h", kp)) for x in w1_half_reads(kp, WH[kp & 1], vH)] + R
            lg.wait(("w", ks)); vm.wait(("y", ks))
            for nt in range(3):
                a(f"v_mfma_f32_32x32x16_bf16 {vr(ACC+16*nt,16)}, {vr(WF[ks%3]+4*nt,4)}, {vr(AF+4*ks,4)}, {vr(ACC+16*nt,16)}")
                [lg.op(*x) for x in R[3*nt:3*nt+3]]
                if nt >= 1:
                    j = 12 + 2*ks + nt - 1
                    if j < 32: vm.op(*next(YL)[1])
                if ks in (4, 5):
                    for q in (((0, 8), (1, 9), (2, 10)), ((3, 11), (4, 12), (5, 13)), ((6, 14), (7, 15)))[nt] if ks == 4 else (((0, 4), (1, 5), (2, 6), (3, 7)), ((0, 2), (1, 3)), ())[nt]:
                        a(f"v_add_f32 v{ST+q[0]}, v{ST+q[0]}, v{ST+q[1]}")
                    if ks == 5 and nt == 2: a(f"v_add_f32 v124, v{ST}, v{ST+1}")
                for x in side.get((ks, nt), []):
                    if x.startswith("ds_"): lg.op(x, ("u", ks))
                    elif x.startswith("wait"): lg.wait(("u", int(x[4:])))
                    elif x == "uwrd": lg.op(f"ds_read_b32 v5, v126 offset:{4*CNT['uw']}", "cnt")
                    elif x == "uwck": lg.wait("cnt"); await_(a, "uw", 126, 5, True)
                    else: a(x)
            if e == 1:
                lg.wait(("h", kp))
                a(f"v_smfmac_f32_32x32x32_bf16 {vr(ACC+48,16)}, {vr(WH[kp&1],4)}, {vr(AF+8*kp,8)}, v8")
                if kp % 2 == 0 or kp == 15: stamp(a, 1 + (kp+1)//2, 3)
                if kp == OPT.get("b6b", 4): sig(a, "b6b", 126, 127, lg)
    sig(a, "b7", 126, 127)
    stamp(a, 11)
    E = 80
    for r in range(8): a(f"v_add_f32 v{ACC+48+r}, v{ACC+48+r}, v{ACC+56+r}")
    for nt in range(4):
        t = TT + 16*nt; acc = ACC + 16*nt; n = 16 if nt < 3 else 8
        for r in range(0, n, 2): a(f"v_pk_fma_f32 {vr(acc+r,2)}, {vr(acc+r,2)}, v[124:125], {vr(t+r,2)} op_sel:[0,0,0] op_sel_hi:[1,0,1]")
        for r in range(n): a(f"v_exp_f32 v{E+r}, v{acc+r}")
        for r in range(0, n, 2): a(f"v_pk_add_f32 {vr(E+r,2)}, {vr(E+r,2)}, 1.0 op_sel_hi:[1,0]")
        for r in range(n): a(f"v_rcp_f32 v{E+r}, v{E+r}")
        for r in range(0, n, 2): a(f"v_pk_mul_f32 {vr(acc+r,2)}, {vr(acc+r,2)}, {vr(E+r,2)}")
        o = 208 + 8*nt
        for r in range(n//2): a(f"v_cvt_pk_bf16_f32 v{o+r}, v{acc+2*r}, v{acc+2*r+1}")
        if nt == 2: a("s_add_u32 s52, s52, 4096")
        vm.op(f"buffer_store_dwordx4 {vr(o,4)}, v{vL16}, {S['ws']}, s52 offen offset:{2048*(nt&1)}{RG()}")
        if nt < 3: vm.op(f"buffer_store_dwordx4 {vr(o+4,4)}, v{vL16}, {S['ws']}, s52 offen offset:{2048*(nt&1)+1024}{RG()}")
        stamp(a, 10 + nt, 3)
        if nt == 1: vm.q = [("ha", 0)]*len(vm.q)
        if nt == OPT.get("fa", 2) and OPT.get("h2", 0):
            vm.wait(("ha", 0))
            a(f"v_mov_b32 v9, s{sTAG}\ns_mov_b64 exec, 1")
            vm.op(f"buffer_store_dword v9, v{vZ}, {S['ws']}, s56 offen sc1")
            a(f"s_mov_b64 exec, -1\ns_add_u32 s56, s56, {FH_B}")
    stamp(a, 14, 3)
    ACC, WF, GB, XR, NR = [16, 32], [48, 56, 88], 64, 80, 32
    sTT, sKH, sT5, sF5 = 54, 55, 57, 58
    a(f"s_and_b32 s{sTT}, s{sW}, 1\ns_lshr_b32 s{sKH}, s{sW}, 1")
    a(f"s_lshr_b32 s52, s{sC}, 3\ns_lshl_b32 s52, s52, 1\ns_lshl_b32 s{sT5}, s{sTB}, 2\ns_add_u32 s{sT5}, s{sT5}, s52\ns_add_u32 s{sT5}, s{sT5}, s{sTT}")
    a(f"s_and_b32 s{sF5}, s{sC}, 7\ns_lshl_b32 s{sF5}, s{sF5}, 1\ns_add_u32 s{sF5}, s{sF5}, s{sKH}")
    tr_addr(a, 10, 11, True, 7, True)
    a(f"s_lshl_b32 s52, s{sKH}, 6\nv_xor_b32 v10, s52, v10\ns_lshl_b32 s52, s{sKH}, 13\nv_add_u32 v10, s52, v10\nv_xor_b32 v11, 64, v10")
    for r in range(32): a(f"v_mov_b32 v{16+r}, 0")
    poll_addr(a, 5, LF())
    a(f"s_lshl_b32 s52, s{sT5}, {11-LF()}\ns_lshl_b32 s53, s{sKH}, {10-LF()}\ns_add_u32 s52, s52, s53\ns_add_u32 s52, s52, {hex(WS_FH)}")
    a(f"s_lshl_b32 s61, s{sT5}, 15\ns_lshl_b32 s59, s{sF5}, 11\ns_add_u32 s61, s61, s59\ns_add_u32 s61, s61, {hex(WS_X1)}")
    H2 = OPT.get("h2", 0)
    a(f"s_add_u32 s62, s52, {FH_B}")
    if H2:
        a(f"s_mov_b64 exec, 0xff")
        vm.op(f"buffer_load_dword v6, v5, {S['ws']}, s52 offen sc1", "fa")
        a("s_mov_b64 exec, -1")
        set_flag_rg(a, vm, "s56", 9)
        stamp(a, 12)
        a(f"s_mov_b64 exec, 0xff\nv_cmp_ne_u32 vcc, s{sTAG}, v6\ns_mov_b64 exec, -1\ns_cbranch_vccz La_haok")
        poll(a, vm, "0xff", 5, "s52", 6, 2)
        a("La_haok:")
        vm.q = [None]
    else:
        set_flag_rg(a, vm, "s56", 9)
        stamp(a, 12)
        poll(a, vm, "0xff", 5, "s52", 6, OPT.get("fh", 2))
    stamp(a, 13); stamp(a, 0, 4)
    a(f"s_mul_i32 s52, s{sT5}, {112*1024}\ns_mul_i32 s53, s{sKH}, {56*1024}\ns_add_u32 s52, s52, s53\ns_add_u32 s52, s52, {hex(WS_H)}")
    def ldH(ks):
        p, j = h_pj(ks)
        if j in (0, 4): a(f"s_add_u32 s53, s{sR}, {p}\ns_and_b32 s53, s53, 7\ns_mul_i32 s53, s53, 7168\ns_add_u32 s53, s53, s52" + ("\ns_add_u32 s53, s53, 4096" if j else ""))
        vm.op(f"buffer_load_dwordx4 {vr(AF+4*(ks%NR),4)}, v{vL16}, {S['ws']}, s53 offen offset:{1024*(j%4)}{RL()}", ("h", ks))
    PF = OPT.get('pf5', 12)
    for ks in range(PF):
        ldH(ks)
        if ks == 7: a("s_barrier")
    slot = lambda s: s if s < 9 else s - 9
    def rdW2(ks):
        s, k = ks // 4, ks % 4
        return [(f"ds_read_b64_tr_b16 {vr(WF[ks%3]+4*n+2*st,2)}, v{12+n} offset:{2048*k+1024*st}", ("w", ks)) for n in range(2) for st in range(2)]
    def setslot(s): a(f"v_add_u32 v12, {16384*slot(s)}, v10\nv_add_u32 v13, {16384*slot(s)}, v11")
    lg.reset(); setslot(0)
    for x in rdW2(0) + rdW2(1): lg.op(*x)
    for ks in range(56):
        n = ks + 2
        lg.wait(("w", ks))
        if ks in (11, 19): sig(a, "b9" if ks == 11 else "b10", 126, 127, lg)
        if ONEWAY() and n + 2 in (36, 48): lg.op(f"ds_read_b32 v125, v126 offset:{4*CNT['b11' if n + 2 == 36 else 'b12']}", "cnt")
        if n < 56 and n % 4 == 0:
            if n // 4 in (9, 12):
                lg.wait("cnt"); await_(a, "b11" if n == 36 else "b12", 126, 125, True)
            setslot(n // 4)
        vm.wait(("h", ks))
        a(f"v_mfma_f32_32x32x16_bf16 {vr(ACC[0],16)}, {vr(WF[ks%3],4)}, {vr(AF+4*(ks%NR),4)}, {vr(ACC[0],16)}")
        if n < 56: [lg.op(*x) for x in rdW2(n)]
        a(f"v_mfma_f32_32x32x16_bf16 {vr(ACC[1],16)}, {vr(WF[ks%3]+4,4)}, {vr(AF+4*(ks%NR),4)}, {vr(ACC[1],16)}")
        if H2 and ks == OPT.get("fb", 10):
            a("s_mov_b64 exec, 0xff"); vm.op(f"buffer_load_dword v6, v5, {S['ws']}, s62 offen sc1", "fb"); a("s_mov_b64 exec, -1")
        if H2 and ks + PF == 32:
            vm.wait("fb")
            a(f"s_mov_b64 exec, 0xff\nv_cmp_ne_u32 vcc, s{sTAG}, v6\ns_mov_b64 exec, -1\ns_cbranch_vccz La_hbok")
            q0 = list(vm.q)
            poll(a, vm, "0xff", 5, "s62", 6, 0)
            vm.q = q0
            a("La_hbok:")
        if ks + PF < 56: ldH(ks + PF)
        if ks == 44:
            for q in range(2): vm.op(f"buffer_load_dwordx4 {vr(XR+4*q,4)}, v{vL16}, {S['ws']}, s61 offen offset:{1024*q} sc1", "x1")
        if ks % 4 == 3: stamp(a, 1 + ks//4, 4)
    stamp(a, 14)
    vm.wait("x1")
    a(f"s_xor_b32 s52, s{sW}, 2\ns_lshl_b32 s52, s52, 12\ns_add_u32 s52, s52, {16384*5}\nv_add_u32 v5, s52, v{vL16}")
    a(f"s_lshl_b32 s52, s{sW}, 12\ns_add_u32 s52, s52, {16384*5}\nv_add_u32 v6, s52, v{vL16}")
    a(f"v_bfe_u32 v9, v{vLANE}, 5, 1\nv_lshlrev_b32 v7, 4, v9\ns_lshl_b32 s52, s{sKH}, 7\ns_add_u32 s52, s52, {L_GB}\nv_add_u32 v7, s52, v7")
    for q in range(4): a(f"ds_read_b128 {vr(GB+4*q,4)}, v7 offset:{32*q}")
    XF = 96
    for r in range(8): a(f"v_lshlrev_b32 v{XF+2*r}, 16, v{XR+r}\nv_and_b32 v{XF+2*r+1}, 0xffff0000, v{XR+r}")
    for q in range(4): a(f"ds_write_b128 v5, {vr(ACC[1]+4*q,4)} offset:{1024*q}")
    a("s_waitcnt lgkmcnt(0)\ns_barrier")
    for q in range(4): a(f"ds_read_b128 {vr(ACC[1]+4*q,4)}, v6 offset:{1024*q}")
    a(f"v_and_b32 v7, 31, v{vLANE}\nv_lshlrev_b32 v8, 10, v7\nv_lshl_add_u32 v8, v9, 4, v8")
    a(f"s_lshl_b32 s52, s{sT5}, 15\ns_lshl_b32 s53, s{sF5}, 6\ns_add_u32 s52, s52, s53")
    for q in range(4):
        a(f"s_waitcnt lgkmcnt({3-q})")
        for r in range(4*q, 4*q+4): a(f"v_add_f32 v{ACC[0]+r}, v{ACC[0]+r}, v{ACC[1]+r}")
        for r in range(4*q, 4*q+4): a(f"v_fmac_f32 v{XF+r}, v{ACC[0]+r}, v{GB+r}")
    for r in range(8): a(f"v_cvt_pk_bf16_f32 v{64+r}, v{XF+2*r}, v{XF+2*r+1}")
    ofl = ['', ' sc1', ' nt', ' sc0 sc1', ' sc1 nt'][OPT.get('osc', 0)]
    if OPT.get("otr", 0):
        a(f"s_mul_i32 s53, s{sW}, 2560\ns_add_u32 s53, s53, {16384*6}\nv_mul_u32_u24 v5, 80, v7\nv_lshl_add_u32 v5, v9, 4, v5\nv_add_u32 v5, s53, v5")
        a(f"v_lshrrev_b32 v6, 2, v{vLANE}\nv_and_b32 v7, 3, v{vLANE}\nv_lshlrev_b32 v8, 10, v6\nv_lshl_add_u32 v8, v7, 4, v8\nv_mul_u32_u24 v6, 80, v6\nv_lshl_add_u32 v6, v7, 4, v6\nv_add_u32 v6, s53, v6")
        for p in range(2):
            a(f"v_permlane32_swap_b32 v{64+4*p}, v{64+4*p+2}\nv_permlane32_swap_b32 v{64+4*p+1}, v{64+4*p+3}")
            a(f"ds_write_b128 v5, {vr(64+4*p,4)} offset:{32*p}")
        a("s_add_u32 s53, s52, 16384\ns_waitcnt lgkmcnt(0)")
        for p in range(2): a(f"ds_read_b128 {vr(72+4*p,4)}, v6 offset:{1280*p}")
        for p in range(2):
            a(f"s_waitcnt lgkmcnt({1-p})")
            vm.op(f"buffer_store_dwordx4 {vr(72+4*p,4)}, v8, {S['out']}, s{52+p} offen{ofl}")
    else:
        for p in range(2):
            a(f"v_permlane32_swap_b32 v{64+4*p}, v{64+4*p+2}\nv_permlane32_swap_b32 v{64+4*p+1}, v{64+4*p+3}")
            vm.op(f"buffer_store_dwordx4 {vr(64+4*p,4)}, v8, {S['out']}, s52 offen offset:{32*p}{ofl}")

def wq_loop(a):
    a(f"v_lshrrev_b32 v4, 2, v{vLANE}\nv_mul_u32_u24 v4, 3072, v4\nv_and_b32 v5, 3, v{vLANE}\nv_lshl_add_u32 v4, v5, 4, v4")
    a(f"s_lshl_b32 s55, s{sR}, 2\ns_add_u32 s55, s55, s67\ns_lshl_b32 s53, s67, 10\ns_add_u32 s53, s53, {L_WQ}\ns_lshl_b32 s56, s{sC}, 6\ns_mov_b32 s51, 8\nLh_ql:")
    a(f"s_and_b32 s52, s55, 31\ns_mul_i32 s52, s52, {16*3072}\ns_mov_b32 m0, s53\ns_add_u32 s52, s52, s56")
    a(f"buffer_load_dwordx4 v4, {S['wqkv']}, s52 offen lds")
    a(f"s_add_u32 s55, s55, 4\ns_add_u32 s53, s53, 4096\ns_sub_u32 s51, s51, 1\ns_cmp_lg_u32 s51, 0\ns_cbranch_scc1 Lh_ql")

def helper(a):
    vm = Track(a, "vmcnt", 63)
    sH, sCol = 67, 66
    a("Lh_b2:")
    a("s_waitcnt vmcnt(0) lgkmcnt(0)\ns_barrier")
    if OPT.get("whalf", 0):
        a(f"s_add_u32 s55, s{sH}, {4*OPT['whalf']}\ns_mov_b32 s51, {8-OPT['whalf']}\ns_mov_b32 s56, s59\ns_mov_b32 s57, s60")
        wkv_loop(a, "Lh_wl2")
    if OPT.get("st", 7) & 2:
        a(f"s_lshl_b32 s57, s2, 2\ns_add_u32 s57, s57, s{sH}\ns_lshl_b32 s58, s57, 9\ns_mul_i32 s57, s57, {5*128}\ns_add_u32 s57, s57, {9216*128}")
        for n in range(3): a(stouch("w1", 57, n))
    if OPT.get("whalf", 0): a("s_waitcnt vmcnt(0)")
    a("s_barrier")
    wq_loop(a)
    if OPT.get("st", 7) & 2:
        for n in range(3, 5): a(stouch("w1", 57, n))
        a(stouch("wo", 58, 0))
    a("s_waitcnt vmcnt(0)")
    if OPT.get("touch", 0) == 1: mall_touch(a)
    stamp(a, 2)
    a("s_barrier")
    if OPT.get("st", 7) & 2:
        for n in range(1, 4): a(stouch("wo", 58, n))
    early, late = att_setup()
    for x in early + late: a(x)
    if OPT.get("hearly", 1):
        att_first(a, vm, OPT.get("fkh", 24))
        if OPT.get("qj", 1): q_join(a)
        else: a("s_barrier")
        att_q(a)
    else:
        a("s_barrier")
        att_q(a)
        att_first(a, vm, OPT.get("fk", 0))

def helper2(a):
    vm = Track(a, "vmcnt", 63); lg = Track(a, "lgkmcnt", 15)
    sH = 67
    MF = OPT.get("mf", 0)
    if MF:
        a(f"s_sub_u32 s52, s{sI}, 8\ns_cmp_ge_u32 s52, 16\ns_cbranch_scc1 Lh_nomod1")
        mod_partial(a, vm, vMOD)
        if MF == 2: mod_join(a, vm, 66, "Lh_nomod1")
        a("Lh_nomod1:")
    stamp(a, 6, 8)
    set_flag(a, vm, "s64", vZ, 8, '' if OPT.get('fastO') else ' sc1')
    stamp(a, 7); stamp(a, 7, 8)
    vF, vH = 13, 14
    a(f"s_sub_u32 s52, s{sI}, 8\ns_cmp_ge_u32 s52, 16\ns_cbranch_scc1 Lh_nomod2")
    if not MF: mod_partial(a, vm, vMOD)
    if MF < 2: mod_join(a, vm, 66, "Lh_nomod2")
    a("Lh_nomod2:")
    def w2_touch():
        a(f"s_mul_i32 s52, s{sI}, 7\ns_lshl_b32 s53, s{sH}, 1\ns_add_u32 s52, s52, s53\ns_lshl_b32 s52, s52, 13\nv_lshlrev_b32 v5, 7, v{vLANE}")
        a(f"buffer_load_dword v248, v5, {S['w2']}, s52 offen\ns_add_u32 s52, s52, 8192\nbuffer_load_dword v248, v5, {S['w2']}, s52 offen")
    if OPT.get("w2s") == 1: w2_touch()
    sig_regs(a, 12, 13)
    await_(a, "b5b", 12, 14)
    a(f"v_lshlrev_b32 v4, 5, v{vLANE}\ns_lshl_b32 s52, s{sH}, 11\ns_add_u32 s52, s52, 4096")
    gran_poll(a, vm, [f"buffer_load_dwordx4 v[16:19], v4, {S['ws']}, s52 offen sc1", f"buffer_load_dwordx4 v[20:23], v4, {S['ws']}, s52 offen offset:16 sc1"], [16, 20], OPT.get("ng2", 0))
    for j, r in enumerate((16, 18, 20, 22)): a(f"v_lshlrev_b32 v{24+2*j}, 16, v{r}\nv_and_b32 v{25+2*j}, 0xffff0000, v{r}")
    a(f"s_cmp_eq_u32 s{sH}, 1\ns_cbranch_scc1 Lh_tabg")
    a(f"s_cmp_eq_u32 s{sH}, 3\ns_cselect_b32 s53, {hx(-1/LOG2E)}, 1.0")
    a(f"s_lshl_b32 s54, s{sC}, 2\ns_and_b32 s55, s{sC}, 7\ns_lshl_b32 s55, s55, 3\ns_lshl_b32 s56, s{sH}, 6\ns_cmp_eq_u32 s{sH}, 3\ns_cselect_b32 s54, s55, s54\ns_cselect_b32 s55, 8, 4")
    a(f"s_cselect_b32 s56, 256, s56\ns_add_u32 s56, s56, {L_TAB}")
    for r in range(8): a(f"v_mul_f32 v{24+r}, s53, v{24+r}")
    a(f"v_subrev_u32 v5, s54, v{vLANE}\nv_cmp_gt_u32 vcc, s55, v5\nv_lshlrev_b32 v5, 5, v5\nv_add_u32 v5, s56, v5")
    a("s_and_saveexec_b64 s[56:57], vcc\nds_write_b128 v5, v[24:27]\nds_write_b128 v5, v[28:31] offset:16\ns_mov_b64 exec, -1")
    a(f"s_cmp_lg_u32 s{sH}, 2\ns_cbranch_scc1 Lh_tabd")
    a("Lh_tabg:")
    a(f"v_lshrrev_b32 v5, 1, v{vLANE}\ns_lshl_b32 s53, s{sR}, 2\nv_subrev_u32 v5, s53, v5\nv_and_b32 v5, 31, v5\nv_lshlrev_b32 v5, 6, v5\nv_and_b32 v6, 1, v{vLANE}\nv_lshl_add_u32 v5, v6, 3, v5")
    a(f"s_and_b32 s53, s{sH}, 1\ns_lshl_b32 s53, s53, 4\ns_add_u32 s53, s53, {L_G}\nv_add_u32 v5, s53, v5")
    a("v_mov_b32 v17, v18\nv_mov_b32 v21, v22\nds_write_b64 v5, v[16:17]\nds_write_b64 v5, v[20:21] offset:32")
    a("Lh_tabd:")
    vW2 = 10
    a(f"v_lshrrev_b32 v{vW2}, 3, v{vLANE}\nv_lshlrev_b32 v{vW2}, 10, v{vW2}\nv_bfe_u32 v5, v{vLANE}, 4, 1\nv_lshlrev_b32 v5, 2, v5\nv_xor_b32 v5, v5, v{vLANE}\nv_and_b32 v5, 7, v5\nv_lshl_add_u32 v{vW2}, v5, 4, v{vW2}")
    a(f"s_lshl_b32 s58, s{sR}, 7\ns_lshl_b32 s59, s{sH}, 11")
    def w2_row(s):
        if s < 8:
            a(f"s_add_u32 s61, s{sR}, {s}\ns_and_b32 s61, s61, 7\ns_mul_i32 s61, s61, 7\ns_add_u32 s61, s61, s{sH}")
        else:
            a(f"s_add_u32 s60, s{sH}, {4*(s-8)}\ns_mul_i32 s61, s60, 43\ns_lshr_b32 s61, s61, 7\ns_mul_i32 s62, s61, 3\ns_sub_u32 s60, s60, s62")
            a(f"s_add_u32 s61, s61, s{sR}\ns_and_b32 s61, s61, 7\ns_mul_i32 s61, s61, 7\ns_add_u32 s61, s61, s60\ns_add_u32 s61, s61, 4")
        a("s_lshl_b32 s61, s61, 14\ns_add_u32 s61, s61, s58")
    NREG = OPT.get("nreg", 10); S0 = 14 - NREG; RB = 48
    def w2_reg(s):
        w2_row(s)
        for j in range(4):
            a(f"s_add_u32 s52, s61, {56*(j>>1)*16384+8192*(j&1)}")
            vm.op(f"buffer_load_dwordx4 {vr(RB+16*(s-S0)+4*j,4)}, v{vW2}, {S['w2']}, s52 offen", ("w2r", s))
    EARLY = list(range(14 - OPT.get("early", 0), 14))
    if EARLY:
        a("s_waitcnt lgkmcnt(0)"); await_(a, "b5c", 12, 14)
        for s_ in EARLY: w2_reg(s_)
    if OPT.get("w2s") == 2:
        a("s_waitcnt lgkmcnt(0)"); w2_touch()
    else: a("s_waitcnt lgkmcnt(0)")
    stamp(a, 8)
    a("s_barrier")
    def w2_stage(s, thr=None):
        sl = s if s < 9 else s - 9
        w2_row(s)
        for kh in range(2):
            for hf in range(2):
                a(f"s_add_u32 m0, s59, {16384*sl+8192*kh+1024*hf}\ns_add_u32 s52, s61, {56*kh*16384+8192*hf}")
                vm.op(f"buffer_load_dwordx4 v{vW2}, {S['w2']}, s52 offen lds", ("w2", s))
        if thr: vm.wait(("w2", s-1))
    W01 = OPT.get('w01', 2)
    if W01 == 0: w2_stage(0); w2_stage(1)
    ACC, GF, WF = 16, 32, 48
    a(f"v_bfe_u32 v9, v{vLANE}, 5, 1\nv_lshlrev_b32 v6, 5, v9\nv_and_b32 v5, 1, v{vLANE}\nv_lshl_add_u32 v6, v5, 4, v6\nv_add_u32 v6, {L_G}, v6")
    for r in range(16): a(f"v_mov_b32 v{ACC+r}, 0")
    GZ = OPT.get("gz", 1)
    for r in range(8): a(f"v_mov_b32 v{GF+r}, 0")
    a("s_mov_b32 s56, 3\ns_mov_b32 s57, 3")
    def rdG(e): a(("s_mov_b64 exec, s[56:57]\n" if GZ else "") + f"ds_read_b128 {vr(GF+4*e,4)}, v6 offset:{64*e}" + ("\ns_mov_b64 exec, -1" if GZ else ""))
    a(f"s_cmp_eq_u32 s{sH}, 3\ns_cbranch_scc1 Lh_uwh")
    tr_addr(a, 4, 5, True, 6, False)
    a(f"s_lshl_b32 s52, s{sH}, 10\ns_add_u32 s52, s52, {L_W1}\nv_add_u32 v4, s52, v4\ns_mov_b32 s51, 16")
    a("Lh_uwl:")
    for e in range(2):
        rdG(e)
        for st in range(2): a(f"ds_read_b64_tr_b16 {vr(WF+4*e+2*st,2)}, v4 offset:{3072*e+512*st}")
    a("v_add_u32 v4, 7168, v4\nv_add_u32 v6, 128, v6\ns_sub_u32 s51, s51, 1")
    for e in range(2):
        a(f"s_waitcnt lgkmcnt({3-3*e})")
        a(f"v_mfma_f32_32x32x16_bf16 {vr(ACC,16)}, {vr(WF+4*e,4)}, {vr(GF+4*e,4)}, {vr(ACC,16)}")
    a("s_cmp_lg_u32 s51, 0\ns_cbranch_scc1 Lh_uwl")
    a("s_branch Lh_uwd")
    a("Lh_uwh:")
    half_tr_addr(a, 4, 5)
    a(f"v_add_u32 v4, {L_W1+6144}, v4\ns_mov_b32 s51, 16")
    a(f"v_and_b32 v8, 16, v0\nv_cmp_eq_u32 vcc, 0, v8\nv_mov_b32 v8, 0xeeeeeeee\nv_mov_b32 v5, 0x44444444\nv_cndmask_b32 v8, v8, v5, vcc")
    a("Lh_uwhl:")
    for e in range(2): rdG(e)
    for st in range(2): a(f"ds_read_b64_tr_b16 {vr(WF+2*st,2)}, v4 offset:{256*st}")
    a("v_add_u32 v4, 7168, v4\nv_add_u32 v6, 128, v6\ns_sub_u32 s51, s51, 1\ns_waitcnt lgkmcnt(0)")
    a(f"v_smfmac_f32_32x32x32_bf16 {vr(ACC,16)}, {vr(WF,4)}, {vr(GF,8)}, v8")
    a("s_cmp_lg_u32 s51, 0\ns_cbranch_scc1 Lh_uwhl")
    a("s_nop 7\ns_nop 3")
    for r in range(8): a(f"v_add_f32 v{ACC+r}, v{ACC+r}, v{ACC+8+r}")
    a("Lh_uwd:")
    a(f"v_and_b32 v5, 1, v{vLANE}\nv_cmp_eq_u32 vcc, 1, v5\nv_mov_b32 v7, {hx(-LOG2E)}\nv_cndmask_b32 v7, 1.0, v7, vcc")
    a(f"v_lshlrev_b32 v6, 7, v9\nv_lshl_add_u32 v6, v5, 6, v6\ns_lshl_b32 s52, s{sH}, 8\ns_add_u32 s52, s52, {L_UW}\nv_add_u32 v6, s52, v6")
    a("s_nop 3")
    for r in range(16): a(f"v_mul_f32 v{ACC+r}, v{ACC+r}, v7")
    a("s_mov_b32 exec_lo, 3\ns_mov_b32 exec_hi, 3")
    for q in range(4): a(f"ds_write_b128 v6, {vr(ACC+4*q,4)} offset:{16*q}")
    a("s_mov_b64 exec, -1\ns_waitcnt lgkmcnt(0)")
    stamp(a, 9)
    if W01 == 2: w2_stage(0); w2_stage(1)
    if ONEWAY(): sig(a, "uw", 12, 13); await_(a, "uw", 12, 14)
    await_(a, "b6b", 12, 14)
    if W01 == 1: w2_stage(0); w2_stage(1)
    if OPT.get("e23", 0) and S0 == 4: w2_stage(2); w2_stage(3)
    if not OPT.get("now2"):
        for s in range(S0, 14):
            if s not in EARLY: w2_reg(s)
    await_(a, "b7", 12, 14)
    a(f"v_add_u32 v4, s59, v{vL16}\nv_add_u32 v5, 0x10000, v4\nv_add_u32 v6, 0x20000, v4")
    def w2_put(s):
        sl = s if s < 9 else s - 9
        for j in range(4): a(f"ds_write_b128 v{4 + sl//4}, {vr(RB+16*(s-S0)+4*j,4)} offset:{16384*(sl%4)+8192*(j>>1)+1024*(j&1)}")
    if not (OPT.get('e23', 0) and S0 == 4):
        for s in range(2, S0): w2_stage(s, True)
    for s in range(S0, 9):
        vm.wait(("w2r", s)); w2_put(s)
        if (s - S0) % 2 == 1: a("s_waitcnt lgkmcnt(4)")
    vm.wait_all()
    a("s_waitcnt lgkmcnt(0)")
    stamp(a, 12)
    a("s_barrier")
    if OPT.get("fast") and OPT.get("wb", 1):
        a(f"s_lshl_b32 s52, s{sC}, 2\ns_add_u32 s52, s52, s{sH}\ns_cmp_lg_u32 s52, 0\ns_cbranch_scc1 Lh_nowb\nbuffer_wbl2 sc1\nLh_nowb:")
    await_(a, "b9", 12, 14)
    for s in (9, 10, 11): w2_put(s)
    if ONEWAY(): a("s_waitcnt lgkmcnt(0)"); sig(a, "b11", 12, 13)
    await_(a, "b10", 12, 14)
    for s in (12, 13): w2_put(s)
    if not ONEWAY(): a("s_waitcnt lgkmcnt(8)\ns_barrier")
    a("s_waitcnt lgkmcnt(0)"); sig(a, "b12", 12, 13)
    a("s_barrier")

def diag_out(a, slot):
    if not DIAG: return
    stamp(a, 15)
    a("s_memrealtime s[52:53]\ns_waitcnt vmcnt(0) lgkmcnt(0)")
    a("s_mov_b64 exec, 1")
    for i in range(16):
        a(f"s_sub_u32 s{70+2*i}, s{70+2*i}, s3\nv_mov_b32 v{16+i}, s{70+2*i}")
    a("v_mov_b32 v32, s69\nv_mov_b32 v33, s52" if False else "v_mov_b32 v32, v250\nv_mov_b32 v33, s52")
    a(f"s_lshl_b32 s54, s2, 10\ns_lshl_b32 s55, s{sW}, 7\ns_add_u32 s54, s54, s55\ns_add_u32 s54, s54, {hex(WS_DIAG)}")
    for q in range(4): a(f"buffer_store_dwordx4 {vr(16+4*q,4)}, v{vZ}, {S['ws']}, s54 offen offset:{16*q}")
    a(f"buffer_store_dwordx2 v[32:33], v{vZ}, {S['ws']}, s54 offen offset:64")
    if OPT.get("dbgstart") and slot == 0:
        a(f"s_cmp_ge_u32 s2, 8\ns_cbranch_scc1 Ldiag{slot}\ns_cmp_lg_u32 s{sW}, 0\ns_cbranch_scc1 Ldiag{slot}\ns_lshl_b32 s54, s2, 2\ns_add_u32 s54, s54, 4")
        a(f"v_subrev_u32 v32, s{sTAG}, v250\nv_add_u32 v32, 1000, v32\nbuffer_store_dword v32, v{vZ}, {S['dbg']}, s54 offen")
        a(f"s_getreg_b32 s55, hwreg(HW_REG_XCC_ID)\ns_and_b32 s55, s55, 15\nv_mov_b32 v32, s55\ns_cmp_ge_u32 s2, 7\ns_cbranch_scc1 Ldiag{slot}\nbuffer_store_dword v32, v{vZ}, {S['dbg']}, s54 offen offset:32")
    if OPT.get("dbgout") and slot == 0:
        a(f"s_lshl_b32 s54, s2, 3\ns_add_u32 s54, s54, s{sW}\ns_cmp_lg_u32 s54, {OPT['dbgout']*8}\ns_cbranch_scc1 Ldiag{slot}")
        for i in range(1, 16): a(f"buffer_store_dword v{16+i}, v{vZ}, {S['dbg']}, 0 offen offset:{4*i}")
    a(f"Ldiag{slot}:")

def build():
    a = Asm()
    a("s_cmp_ge_u32 s2, 256\ns_cbranch_scc1 Lend")
    for nm in ("x", "dbg", "wmod", "c", "wqkv", "ws", "wo", "w1", "w2", "out"):
        a(f"s_load_dwordx2 {sr(SRD[nm],2)}, s[0:1], {KA[nm]}")
    if DIAG: a("s_memtime s[70:71]\ns_memrealtime s[72:73]")
    a(f"v_lshrrev_b32 v4, 6, v0\nv_and_b32 v{vLANE}, 63, v0\nv_mov_b32 v{vZ}, 0\nv_readfirstlane_b32 s{sW}, v4\nv_lshlrev_b32 v{vL16}, 4, v{vLANE}")
    a(f"s_getpc_b64 s[56:57]\nLpc:\ns_sub_u32 s56, s56, Lpc-{NAME}_kernel\ns_subb_u32 s57, s57, 0")
    a(f"s_and_b32 s{sX}, s2, 7\ns_lshr_b32 s{sI}, s2, 3\ns_sub_u32 s67, s{sW}, 4")
    a(f"s_cmp_lt_u32 s{sW}, 6\ns_cbranch_scc1 Le_nopf")
    a(f"s_lshl_b32 s58, s{sI}, 1\ns_add_u32 s58, s58, s67\ns_sub_u32 s58, s58, 2\ns_lshl_b32 s58, s58, 10\ns_min_u32 s58, s58, Lcode_end-{NAME}_kernel-1024\nv_add_u32 v5, s58, v{vL16}")
    a("global_load_dwordx4 v[16:19], v5, s[56:57]")
    a("Le_nopf:")
    if OPT.get('m216', 0):
        a(f"s_lshl_b32 s{sTB}, s{sX}, 1\ns_lshr_b32 s52, s{sI}, 4\ns_add_u32 s{sTB}, s{sTB}, s52\ns_and_b32 s{sR}, s{sI}, 7\ns_and_b32 s{sC}, s{sI}, 15")
    else:
        a(f"s_lshr_b32 s{sTB}, s{sX}, 1\ns_lshl_b32 s{sTB}, s{sTB}, 2\ns_lshr_b32 s52, s{sI}, 3\ns_add_u32 s{sTB}, s{sTB}, s52")
        a(f"s_and_b32 s{sR}, s{sI}, 7\ns_and_b32 s{sC}, s{sX}, 1\ns_lshl_b32 s{sC}, s{sC}, 3\ns_add_u32 s{sC}, s{sC}, s{sR}")
    for nm in ("x", "dbg", "wmod", "c", "wqkv", "ws"): a(f"s_mov_b32 s{SRD[nm]+2}, {hex(SZ[nm])}\ns_mov_b32 s{SRD[nm]+3}, 0x20000")
    a("s_memrealtime s[54:55]")
    if DIAG:
        a("s_waitcnt lgkmcnt(0)\ns_mov_b32 s3, s70\ns_mov_b32 s68, s72\nv_mov_b32 v250, s72")
        if OPT.get("rt"): a("s_mov_b32 s3, s72")
        for i in range(16): a(f"s_mov_b32 s{70+2*i}, s3")
    a(f"s_cmp_ge_u32 s{sW}, 4\ns_cbranch_scc1 Lp0_h\ns_cmp_lt_u32 s{sI}, 8\ns_cbranch_scc1 Lp0_mod\ns_cmp_ge_u32 s{sI}, 24\ns_cbranch_scc1 Lp0_warm")
    p0_ln(a)
    a("Lp0_h:")
    p0_helper(a)
    a("Lp0_mod:")
    p0_mod(a)
    a("Lp0_warm:")
    p0_warm(a)
    active(a)
    a("s_branch Latt")
    helper(a)
    a("Latt:")
    vm = Track(a, "vmcnt", 63)
    slow = attention(a, vm)
    a(f"s_cmp_ge_u32 s{sW}, 4\ns_cbranch_scc1 Lhelper2")
    active2(a)
    if OPT.get("hold"):
        a(f"Lhold:\ns_memrealtime s[52:53]\ns_waitcnt lgkmcnt(0)\ns_sub_u32 s52, s52, s{sTAG}\ns_cmp_lt_u32 s52, {OPT['hold']}\ns_cbranch_scc1 Lhold")
    if DIAG: a("v_mov_b32 v250, s68")
    diag_out(a, 0)
    a("s_endpgm")
    a("Lhelper2:")
    helper2(a)
    diag_out(a, 1)
    a("s_endpgm")
    a("; ==== attention fallback: true row maximum first, then exp(s - max)")
    slow(a)
    a("Lend:")
    return a

def emit(a):
    hdr = open(f"cdna_kernels/{NAME}.s.ref").read().split("\n")
    out = [l for l in hdr if l.startswith(";") and "@launch" not in l and "Override launch" not in l and "grid=ceil" not in l]
    out.append(f"; @launch grid=(256,1,1) block=(512,1,1) lds={LDS_SIZE}")
    out += """; One persistent launch, one 8-wave workgroup per CU (generated by gen/gen30.py).
;  P0  silu(c) @ w_mod (shift/scale part) and LayerNorm(x), spread over the workgroups; W_k/W_v slices -> LDS
;  P1  h = xn*(1+scale)+shift (sparse diagonal MFMA), K or V of 4 heads and Q of 2 heads for 128 tokens
;  P2  attention, 2 heads x 128 queries: S^T = K Q^T, exp2, O^T += V^T P^T by sparse MFMA on the high halves of the
;      fp32 exponentials (a ones row gives the row sum).  No max is subtracted when the row sums show it is safe;
;      any other wave redoes its tile with the true row maximum.
;  P3  x1 = x + gate*(O Wo), y = x1*(1+scale2), row statistics    P4  silu(LN2-corrected y W1)    P5  x1 + gate2*(h W2)
; Workgroups hand data over with write-through stores, a drain, and flags that carry a per-launch tag (d_debug[0]);
; every wait is bounded.  Workgroup ids are arranged for L2 sharing only; nothing relies on the placement.""".split("\n")
    a.fix()
    out += ['.amdgcn_target "amdgcn-amd-amdhsa--gfx950"', ".text", f".globl {NAME}_kernel", ".p2align 8", f".type {NAME}_kernel,@function", f"{NAME}_kernel:",
            a.text(), "    s_endpgm", "Lcode_end:", '.section .rodata,"a"', ".p2align 6", f".amdhsa_kernel {NAME}_kernel", "  .amdhsa_next_free_vgpr 256",
            "  .amdhsa_next_free_sgpr 102", "  .amdhsa_accum_offset 256", "  .amdhsa_group_segment_fixed_size 0", "  .amdhsa_kernarg_size 88",
            "  .amdhsa_user_sgpr_count 2", "  .amdhsa_user_sgpr_kernarg_segment_ptr 1", "  .amdhsa_system_sgpr_workgroup_id_x 1",
            "  .amdhsa_float_denorm_mode_32 3", ".end_amdhsa_kernel"]
    return "\n".join(out) + "\n"

if __name__ == "__main__":
    import argparse
    p = argparse.ArgumentParser(); p.add_argument("out"); p.add_argument("--diag", action="store_true"); p.add_argument("--opt", default="")
    args = p.parse_args()
    DIAG = args.diag
    for o in args.opt.split(","):
        if o: OPT[o.split("=")[0]] = int(o.split("=")[1]) if "=" in o else 1
    set_nring(OPT.get('nring', 4))
    open(args.out, "w").write(emit(build()))
```

```python
import sys, struct
from asmlib import *

NAME = "adaLN_cond__softmax_full_mha__dense_activation_silu__prompt"
WS_MODG = 0x0
WS_STATS = 0x10000
WS_FXN, WS_FKV, WS_FO, WS_FX1, WS_FH = 0x50000, 0x52000, 0x80000, 0xC0000, 0xE0000
WS_FXC = 0x58000
sLOC = 66
FH_B = 0x8000
WS_XN, WS_K, WS_V, WS_O, WS_X1, WS_Y, WS_H = 0x200000, 0x400000, 0x600000, 0x800000, 0xA00000, 0xC00000, 0xE00000
WS_DIAG = 0x1600000
WS_SIZE = 0x1700000
KA = dict(x=0, wqkv=8, wo=16, w1=32, w2=40, c=48, wmod=56, out=64, dbg=72, ws=80)
SZ = dict(x=2048*512*2, wqkv=512*1536*2, wo=512*512*2, w1=512*1792*2, w2=1792*512*2, c=1024, wmod=512*3072*2, out=2048*512*2, dbg=256, ws=WS_SIZE)
SRD = dict(x=4, wqkv=8, wo=12, w1=16, w2=20, c=24, wmod=28, out=32, dbg=36, ws=40)
S = {k: sr(v, 4) for k, v in SRD.items()}
sW, sTB, sC, sTAG, sI, sX, sR = 44, 45, 46, 47, 48, 49, 69
SPIN = 20000
def f2u(f): return struct.unpack("<I", struct.pack("<f", f))[0]
def hx(f): return hex(f2u(f))
LOG2E = 1.4426950408889634
DIAG = False
OPT = {}
L_WKV, L_WQ = 0, 64*1024
L_DG = 96*1024
L_SA = 112*1024
L_QX = 144*1024
L_WO = 0
L_W1 = 32*1024
L_RED = 88*1024
L_TAB = 156*1024
L_GA, L_G2, L_GB, L_SCR, L_UW, L_G = L_TAB, L_TAB+128, L_TAB+256, L_TAB+512, L_TAB+1024, L_TAB+2048
LDS_SIZE = 160*1024

def stamp(a, i, grp=0):
    if DIAG and (OPT.get("focus", 0) == grp or i == 15): a(f"{'s_memrealtime' if OPT.get('rt') else 's_memtime'} s[{70+2*i}:{71+2*i}]")

_uid = [0]
def poll(a, vm, mask, vaddr, soff, vt, first=0):
    _uid[0] += 1; n = _uid[0]
    a(f"s_mov_b64 exec, {mask}\ns_mov_b32 s50, {SPIN}")
    a("; wait for flags == launch tag (bounded)")
    if first: a(f"s_sleep {first}")
    a(f"Lpoll{n}:\nbuffer_load_dword v{vt}, v{vaddr}, {S['ws']}, {soff} offen sc1\ns_waitcnt vmcnt(0)\nv_cmp_ne_u32 vcc, s{sTAG}, v{vt}\ns_sub_u32 s50, s50, 1\ns_cbranch_vccz Lpolld{n}")
    if OPT.get("psleep", 0): a(f"s_sleep {OPT.get('psleep', 0)}")
    a(f"s_cmp_lg_u32 s50, 0\ns_cbranch_scc1 Lpoll{n}")
    a(f"Lpolld{n}:\ns_mov_b64 exec, -1")
    vm.reset()

def set_flag_rg(a, vm, soff, vt):
    _uid[0] += 1; n = _uid[0]
    vm.wait_all()
    a(f"v_mov_b32 v{vt}, s{sTAG}\ns_mov_b64 exec, 1\ns_cmp_lg_u32 s{sLOC}, 0\ns_cbranch_scc1 Lfl{n}")
    a(f"buffer_store_dword v{vt}, v{vZ}, {S['ws']}, {soff} offen sc1\ns_mov_b64 exec, -1\ns_sleep {OPT.get('fr', 16)}\ns_branch Lfl{n}d\nLfl{n}:")
    vm.op(f"buffer_store_dword v{vt}, v{vZ}, {S['ws']}, {soff} offen")
    a(f"s_mov_b64 exec, -1\nLfl{n}d:")

def LF(): return OPT.get("lf", 3)
def flag_off(a, d, f, base, lf=3):
    a(f"s_lshr_b32 s50, s{f}, {lf}\ns_lshl_b32 s50, s50, 7\ns_and_b32 s{d}, s{f}, {(1 << lf) - 1}\ns_lshl_b32 s{d}, s{d}, 2\ns_add_u32 s{d}, s{d}, s50\ns_add_u32 s{d}, s{d}, {hex(base)}")

RG = lambda: [' sc1', '', ' nt', ' sc0', ' sc0 nt'][OPT.get('fast', 0)]
RY = lambda: [' sc1', '', ' nt', ' sc0', ' sc0 nt'][OPT.get('fasty', OPT.get('fast', 0))]
RF = lambda: '' if (OPT.get('fast') or OPT.get('fastf')) else ' sc1'
RO = lambda: '' if (OPT.get('fast') and OPT.get('m216')) else ' sc1'
RL = lambda: '' if OPT.get('plainld') else ' sc1'
def set_flag(a, vm, soff, vz, vt, fl=' sc1'):
    vm.wait_all()
    a(f"v_mov_b32 v{vt}, s{sTAG}\ns_mov_b64 exec, 1")
    vm.op(f"buffer_store_dword v{vt}, v{vz}, {S['ws']}, {soff} offen{fl}")
    a("s_mov_b64 exec, -1")

def rne_bf16(a, d, s):
    a(f"v_cvt_pk_bf16_f32 v{d}, v{s}, v{s}\nv_lshlrev_b32 v{d}, 16, v{d}")

def tr_addr(a, d, t, perm, rowbytes_log2, swz):
    a(f"v_bfe_u32 v{d}, v0, 2, 2\nv_bfe_u32 v{t}, v0, 5, 1")
    a(f"v_lshl_add_u32 v{d}, v{t}, {2 if perm else 3}, v{d}\nv_lshlrev_b32 v{d}, {rowbytes_log2}, v{d}")
    a(f"v_bfe_u32 v{t}, v0, 4, 1\nv_lshl_add_u32 v{d}, v{t}, 5, v{d}")
    a(f"v_and_b32 v{t}, 3, v0\nv_lshl_add_u32 v{d}, v{t}, 3, v{d}")
    if swz: a(f"v_bfe_u32 v{t}, v0, 3, 1\nv_lshl_add_u32 v{d}, v{t}, 6, v{d}")

def half_tr_addr(a, d, t):
    a(f"v_bfe_u32 v{d}, v0, 2, 1")
    a(f"v_bfe_u32 v{t}, v0, 4, 1\nv_lshl_add_u32 v{d}, v{t}, 1, v{d}")
    a(f"v_bfe_u32 v{t}, v0, 3, 1\nv_lshl_add_u32 v{d}, v{t}, 2, v{d}")
    a(f"v_bfe_u32 v{t}, v0, 5, 1\nv_lshl_add_u32 v{d}, v{t}, 4, v{d}")
    a(f"v_lshlrev_b32 v{d}, 5, v{d}\nv_and_b32 v{t}, 3, v0\nv_lshl_add_u32 v{d}, v{t}, 3, v{d}")

vLANE, vL16, vZ = 1, 2, 3
def poll_addr(a, d, lf=3):
    a(f"v_lshrrev_b32 v{d}, {lf}, v{vLANE}\nv_lshlrev_b32 v{d}, 5, v{d}\nv_and_or_b32 v{d}, v{vLANE}, {(1 << lf) - 1}, v{d}\nv_lshlrev_b32 v{d}, 2, v{d}")

def mod_issue(a, vm, sCol, B=16, T=4):
    a(f"v_bfe_u32 v{T}, v0, 1, 7\nv_and_b32 v{T+1}, 1, v0")
    a(f"v_mul_u32_u24 v{T+2}, 6144, v{T}\nv_lshl_add_u32 v{T+2}, v{T+1}, 4, v{T+2}\nv_lshlrev_b32 v{T+3}, 1, v{T}")
    a(f"s_lshl_b32 s52, s{sCol}, 1")
    for m in range(4):
        vm.op(f"buffer_load_dwordx4 {vr(B+4*m,4)}, v{T+2}, {S['wmod']}, s52 offen", "mod")
        if m < 3: a(f"s_add_u32 s52, s52, {128*6144}")
    for m in range(4): vm.op(f"buffer_load_ushort v{B+16+m}, v{T+3}, {S['c']}, 0 offen offset:{256*m}", "mod")

def mod_partial(a, vm, B=16):
    vm.wait("mod")
    C, F, T, A = B+16, B+24, B+20, B+32
    for m in range(4): a(f"v_lshlrev_b32 v{C+m}, 16, v{C+m}")
    for m in range(4): a(f"v_mul_f32 v{T+m}, {hx(-LOG2E)}, v{C+m}")
    for m in range(4): a(f"v_exp_f32 v{T+m}, v{T+m}")
    for m in range(4): a(f"v_add_f32 v{T+m}, 1.0, v{T+m}")
    for m in range(4): a(f"v_rcp_f32 v{T+m}, v{T+m}")
    for m in range(4): a(f"v_mul_f32 v{C+m}, v{C+m}, v{T+m}")
    for m in range(4): a(f"v_cvt_pk_bf16_f32 v{C+m}, v{C+m}, v{C+m}")
    for m in range(4): a(f"v_lshlrev_b32 v{C+m}, 16, v{C+m}")
    for m in range(4):
        for r in range(4):
            a(f"v_lshlrev_b32 v{F+2*r}, 16, v{B+4*m+r}\nv_and_b32 v{F+2*r+1}, 0xffff0000, v{B+4*m+r}")
        for j in range(8):
            a(f"v_mul_f32 v{A+j}, v{F+j}, v{C}" if m == 0 else f"v_fmac_f32 v{A+j}, v{F+j}, v{C+m}")
    for j in range(4): a(f"v_permlane32_swap_b32 v{A+j}, v{A+4+j}")
    for j in range(4): a(f"v_add_f32 v{A+j}, v{A+j}, v{A+4+j}")
    for j in range(2): a(f"v_permlane16_swap_b32 v{A+j}, v{A+2+j}")
    for j in range(2): a(f"v_add_f32 v{A+j}, v{A+j}, v{A+2+j}")
    for r in (8, 4, 2):
        for j in range(2): a(f"v_add_f32_dpp v{A+j}, v{A+j}, v{A+j} row_ror:{r} row_mask:0xf bank_mask:0xf")
    a("v_bfe_u32 v8, v0, 6, 2\nv_lshlrev_b32 v8, 6, v8\nv_and_b32 v9, 1, v0\nv_lshl_add_u32 v8, v9, 5, v8")
    a("v_bfe_u32 v9, v0, 4, 1\nv_lshl_add_u32 v8, v9, 3, v8\nv_bfe_u32 v9, v0, 5, 1\nv_lshl_add_u32 v8, v9, 4, v8")
    a(f"v_add_u32 v8, {L_SCR}, v8")
    a("s_mov_b32 exec_lo, 0x00030003\ns_mov_b32 exec_hi, 0x00030003")
    a(f"ds_write_b64 v8, v[{A}:{A+1}]")
    a("s_mov_b64 exec, -1")

def mod_final(a, vm, sCol):
    a("s_mov_b64 exec, 0xff")
    a(f"v_lshlrev_b32 v8, 3, v{vLANE}\nv_add_u32 v9, {L_SCR}, v8")
    for w in range(4): a(f"ds_read_b64 {vr(240+2*w,2)}, v9 offset:{64*w}")
    a(f"s_lshr_b32 s52, s{sCol}, 9\ns_cmp_eq_u32 s52, 1\ns_cselect_b32 s53, 1.0, 0\ns_cmp_eq_u32 s52, 4\ns_cselect_b32 s53, 1.0, s53")
    a(f"s_lshl_b32 s52, s{sCol}, 2")
    a("s_waitcnt lgkmcnt(0)")
    for j in range(2): a(f"v_add_f32 v{240+j}, v{240+j}, v{242+j}\nv_add_f32 v{244+j}, v{244+j}, v{246+j}")
    for j in range(2): a(f"v_add_f32 v{240+j}, v{240+j}, v{244+j}")
    a("v_cvt_pk_bf16_f32 v242, v240, v241\nv_lshlrev_b32 v240, 16, v242\nv_and_b32 v241, 0xffff0000, v242")
    a("v_add_f32 v240, s53, v240\nv_add_f32 v241, s53, v241")
    a(f"v_cvt_pk_bf16_f32 v240, v240, v241\nv_mov_b32 v241, s{sTAG}")
    vm.op(f"buffer_store_dwordx2 v[240:241], v8, {S['ws']}, s52 offen sc1")
    a("s_mov_b64 exec, -1")

def gran_poll(a, vm, loads, regs, first=0):
    _uid[0] += 1; n = _uid[0]
    if first: a(f"s_sleep {first}")
    a(f"s_mov_b32 s50, {SPIN}\nLgp{n}:")
    for t in loads: a(t)
    a("s_waitcnt vmcnt(0)")
    first = True
    for r in regs:
        for o in (1, 3):
            if first: a(f"v_xor_b32 v15, s{sTAG}, v{r+o}"); first = False
            else: a(f"v_xor_b32 v14, s{sTAG}, v{r+o}\nv_or_b32 v15, v15, v14")
    a("v_cmp_ne_u32 vcc, 0, v15\ns_sub_u32 s50, s50, 1")
    a(f"s_cbranch_vccz Lgpd{n}\ns_sleep {OPT.get('gsleep', 1)}\ns_cmp_lg_u32 s50, 0\ns_cbranch_scc1 Lgp{n}\nLgpd{n}:")
    vm.reset()

def tag_get(a):
    _uid[0] += 1; n = _uid[0]
    a(f"v_mov_b32 v8, {L_SCR+260}\ns_mov_b32 s50, {SPIN*20}\nLtg{n}:\nds_read_b32 v9, v8\ns_sub_u32 s50, s50, 1\ns_waitcnt lgkmcnt(0)\nv_readfirstlane_b32 s{sTAG}, v9")
    a(f"s_cmp_lg_u32 s{sTAG}, 0\ns_cbranch_scc1 Ltgd{n}\ns_cmp_lg_u32 s50, 0\ns_cbranch_scc1 Ltg{n}\nLtgd{n}:")

def tag_now(a, v):
    _uid[0] += 1; n = _uid[0]
    a(f"s_mov_b32 s50, {SPIN}\nLtn{n}:\nv_readfirstlane_b32 s{sTAG}, v{v}\ns_sub_u32 s50, s50, 1")
    a(f"s_cmp_lg_u32 s{sTAG}, 0\ns_cbranch_scc1 Ltnd{n}\ns_cmp_eq_u32 s50, 0\ns_cbranch_scc1 Ltnd{n}")
    a(f"buffer_load_dword v{v}, v{vZ}, {S['dbg']}, 0 offen sc1\ns_waitcnt vmcnt(0)\ns_branch Ltn{n}\nLtnd{n}:")

def read_tag(a):
    a(f"v_mov_b32 v8, {L_SCR+260}\nds_read_b32 v9, v8\ns_waitcnt lgkmcnt(0)\nv_readfirstlane_b32 s{sTAG}, v9")

def mall_touch(a):
    _uid[0] += 1; n = _uid[0]
    a(f"v_lshlrev_b32 v5, 7, v{vLANE}\ns_cmp_eq_u32 s{sW}, 6\ns_cbranch_scc1 Lt6_{n}\ns_cmp_eq_u32 s{sW}, 7\ns_cbranch_scc1 Lt7_{n}")
    a(f"s_mul_i32 s52, s2, {56*128}\ns_cmp_eq_u32 s{sW}, 5\ns_cbranch_scc1 Lt5_{n}")
    a(f"buffer_load_dword v248, v5, {S['w1']}, s52 offen\ns_branch Ltd_{n}")
    a(f"Lt5_{n}:\nbuffer_load_dword v248, v5, {S['w2']}, s52 offen\ns_branch Ltd_{n}")
    a(f"Lt6_{n}:\nv_lshrrev_b32 v6, 5, v{vLANE}\nv_mul_u32_u24 v6, {6144-4096}, v6\nv_add_u32 v5, v5, v6\ns_mul_i32 s52, s2, 12288\ns_add_u32 s52, s52, 2048")
    a(f"buffer_load_dword v248, v5, {S['wmod']}, s52 offen\ns_branch Ltd_{n}")
    a(f"Lt7_{n}:\ns_lshl_b32 s52, s2, 11\ns_mov_b64 exec, 0xffff\nbuffer_load_dword v248, v5, {S['wo']}, s52 offen\ns_mov_b64 exec, -1")
    a(f"Ltd_{n}:")

def stouch(nm, soff, line):
    return f"s_buffer_load_dwordx2 s[0:1], {S[nm]}, s{soff} offset:{128*line+60}"

def mod_join(a, vm, sCol, name, pre=None):
    a(f"v_mov_b32 v8, {L_SCR+256}\nv_mov_b32 v9, 1\ns_waitcnt lgkmcnt(0)\ns_mov_b64 exec, 1\nds_add_rtn_u32 v9, v8, v9\ns_mov_b64 exec, -1\ns_waitcnt lgkmcnt(0)")
    a(f"v_readfirstlane_b32 s52, v9\ns_cmp_lg_u32 s52, 3\ns_cbranch_scc1 {name}")
    if pre: pre()
    mod_final(a, vm, sCol)

NRING = 4
def set_nring(n):
    global NRING
    NRING = n
vSTASH, vMOD, vXR = 180, 208, 208
QF, OA, SB, RING = 16, 32, [96, 112], 128
vV, vWO, vW1, vW1H = 4, 12, 13, 14
sHH, sKQ, sK, sV = 54, 55, 56, 57
def att_setup():
    a = Asm()
    a(f"s_and_b32 s{sHH}, s{sW}, 1\ns_lshr_b32 s{sKQ}, s{sW}, 1")
    a(f"v_and_b32 v{vV}, 15, v{vLANE}\nv_lshlrev_b32 v{vV}, 4, v{vV}\nv_bfe_u32 v5, v{vLANE}, 5, 1\nv_lshl_add_u32 v{vV}, v5, 8, v{vV}")
    a(f"s_lshl_b32 s58, s{sC}, 1\ns_add_u32 s58, s58, s{sHH}")
    a(f"s_lshl_b32 s59, s58, 16")
    a(f"s_lshl_b32 s52, s{sKQ}, 14\ns_add_u32 s52, s52, s59\ns_add_u32 s{sK}, s52, {hex(WS_K)}\ns_add_u32 s{sV}, s52, {hex(WS_V)}")
    a("s_mov_b32 s60, 0x0000ffff\ns_mov_b32 s61, 0x0000ffff")
    a(f"s_lshl_b32 s52, s{sKQ}, 8\ns_lshr_b32 s53, s{sC}, 1\ns_lshl_b32 s53, s53, 11\ns_add_u32 s52, s52, s53\ns_add_u32 s62, s52, {hex(WS_FKV)}")
    a(f"s_and_b32 s65, s{sTB}, {1 if OPT.get('m216', 0) else 3}\ns_lshl_b32 s65, s65, {13 if OPT.get('m216', 0) else 12}")
    a(f"v_lshrrev_b32 v6, 2, v{vLANE}\nv_and_b32 v11, 3, v{vLANE}\nv_lshlrev_b32 v{vWO}, 10, v6\nv_lshl_add_u32 v{vWO}, v11, 4, v{vWO}")
    w1_voffs(a, vW1, vW1H, 6, 11, 15)
    a(f"v_and_b32 v5, 7, v{vLANE}\nv_lshlrev_b32 v5, 2, v5\nv_bfe_u32 v6, v{vLANE}, 3, 1\nv_lshl_add_u32 v5, v6, 7, v5\nv_bfe_u32 v6, v{vLANE}, 4, 1\nv_lshl_add_u32 v5, v6, 10, v5")
    a(f"v_and_b32 v6, 0x1b, v{vLANE}\nv_cmp_eq_u32 vcc, 16, v6\nv_mov_b32 v15, 0x3f803f80\ns_nop 0\nv_cndmask_b32 v15, 0, v15, vcc")
    for r in range(64): a(f"v_mov_b32 v{OA+r}, 0")
    early = [I.text for I in a.L]
    late = [f"v_mov_b32 v{RING+12*sl+4+r}, v15" for sl in range(NRING) for r in range(8)] + [f"v_mov_b32 v{RING+12*NRING}, 0xdddddddd"]
    return early, late

CNT = dict(b5b=3, b6b=4, b7=5, b9=6, b10=7, b11=8, b12=9, uw=10, b5c=11)
ONEWAY = lambda: OPT.get("ow", 1)
def sig(a, name, va, vb, lg=None):
    if not ONEWAY(): a("s_barrier"); return
    a("s_mov_b64 exec, 1")
    t = f"ds_add_u32 v{va}, v{vb} offset:{4*CNT[name]}"
    lg.op(t, "sig") if lg else a(t)
    a("s_mov_b64 exec, -1")
def sig_regs(a, va, vb): a(f"v_mov_b32 v{va}, {L_SCR+256}\nv_mov_b32 v{vb}, 1")
def await_(a, name, va, vt, have=False):
    if not ONEWAY(): a("s_barrier"); return
    _uid[0] += 1; n = _uid[0]
    if have: a(f"v_readfirstlane_b32 s50, v{vt}\ns_cmp_eq_u32 s50, 4\ns_cbranch_scc1 Law{n}d")
    a(f"s_mov_b32 s63, {SPIN*20}\nLaw{n}:\nds_read_b32 v{vt}, v{va} offset:{4*CNT[name]}\ns_sub_u32 s63, s63, 1\ns_waitcnt lgkmcnt(0)\nv_readfirstlane_b32 s50, v{vt}")
    a(f"s_cmp_eq_u32 s50, 4\ns_cbranch_scc1 Law{n}d\ns_sleep {OPT.get('asleep', 1)}\ns_cmp_lg_u32 s63, 0\ns_cbranch_scc1 Law{n}\nLaw{n}d:")

def q_join(a):
    _uid[0] += 1; n = _uid[0]
    a(f"v_mov_b32 v9, {L_SCR+264}\ns_mov_b32 s50, {SPIN*20}\nLqj{n}:\nds_read_b32 v10, v9\ns_sub_u32 s50, s50, 1\ns_waitcnt lgkmcnt(0)\nv_readfirstlane_b32 s52, v10")
    a(f"s_cmp_eq_u32 s52, 4\ns_cbranch_scc1 Lqjd{n}\ns_cmp_lg_u32 s50, 0\ns_cbranch_scc1 Lqj{n}\nLqjd{n}:")

def att_q(a):
    for i in range(4):
        a(f"s_add_u32 s52, s{sKQ}, {i}\ns_and_b32 s52, s52, 3\ns_lshl_b32 s53, s{sHH}, 2\ns_add_u32 s52, s52, s53\ns_lshl_b32 s52, s52, 10\ns_add_u32 s52, s52, {L_QX}")
        a(f"v_add_u32 v9, s52, v{vL16}\nds_read_b128 {vr(QF+4*i,4)}, v9")

KVF = lambda: [' sc1', '', ' sc1 nt'][OPT.get('kvf', 0)]
def att_ld(a, vm, kt):
    sl = kt % NRING
    if kt % 4 == 0: a(f"s_add_u32 s63, s{sK}, s62\ns_add_u32 s64, s{sV}, s62\ns_add_u32 s62, s62, 4096\ns_and_b32 s62, s62, 0x3fff")
    o = 1024*(kt % 4)
    vm.op(f"buffer_load_dwordx4 {vr(RING+12*sl,4)}, v{vL16}, {S['ws']}, s63 offen offset:{o}{KVF()}", ("kv", kt))
    a("s_mov_b64 exec, s[60:61]")
    vm.op(f"buffer_load_dwordx4 {vr(RING+12*sl+4,4)}, v{vV}, {S['ws']}, s64 offen offset:{o}{KVF()}", ("kv", kt))
    vm.op(f"buffer_load_dwordx4 {vr(RING+12*sl+8,4)}, v{vV}, {S['ws']}, s64 offen offset:{o+512}{KVF()}", ("kv", kt))
    a("s_mov_b64 exec, -1")

def att_first(a, vm, first):
    stamp(a, 4)
    poll(a, vm, "0xffffffff", 5, "s62", 6, first)
    stamp(a, 5)
    a("s_mov_b32 s62, s65")
    for kt in range(NRING-1): att_ld(a, vm, kt)

def attention(a, vm):
    IDX = RING + 12*NRING
    assert IDX < vSTASH
    CP = lambda d: f"s_and_b32 s{d}, s{sI}, 15" if OPT.get('mix', 1) else f"s_mov_b32 s{d}, s{sC}"
    TP = lambda d: f"s_lshl_b32 s{d}, s{sX}, 1\ns_lshr_b32 s50, s{sI}, 4\ns_add_u32 s{d}, s{d}, s50" if OPT.get('mix', 1) else f"s_mov_b32 s{d}, s{sTB}"
    def kp_addr(d):
        return [f"s_lshl_b32 s65, s{sR}, 1", f"s_add_u32 s65, s65, s{sW}", f"s_add_u32 s65, s65, {d}", "s_and_b32 s65, s65, 15", f"s_mul_i32 s65, s65, {32*3584}",
                CP(52), "s_mul_i32 s52, s52, 224", "s_add_u32 s65, s65, s52", f"s_mul_i32 s66, s{sW}, 7168", f"s_add_u32 s66, s66, {L_W1+7168*d}"]
    wo = [[f"s_add_u32 m0, s66, {L_WO+1024*j}", f"s_add_u32 s52, s65, {16384*j}", f"buffer_load_dwordx4 v{vWO}, {S['wo']}, s52 offen lds"] for j in range(4)]
    wo[0] = [f"s_add_u32 s65, s{sW}, s{sR}", "s_and_b32 s65, s65, 7", "s_lshl_b32 s65, s65, 16", CP(52), "s_lshl_b32 s52, s52, 6", "s_add_u32 s65, s65, s52", f"s_lshl_b32 s66, s{sW}, 12"] + wo[0]
    k1 = w1_kp_dma(65, 66, vW1, vW1H); k1[0] = kp_addr(0) + k1[0]
    k2 = []
    for j, p in enumerate(w1_kp_dma(65, 66, vW1, vW1H)):
        k2.append([p[1], p[2].replace("buffer_load_dwordx4 ", f"buffer_load_dwordx4 {vr(vSTASH+4*j,4)}, ").replace(" lds", "")])
    k2[0] = kp_addr(8)[:8] + k2[0]
    p0 = OPT.get("pre0", 5)
    pre = {4*p0+1: wo[:2], 4*p0+5: wo[2:], 4*p0+9: k1[:3], 4*p0+13: k1[3:], 4*p0+17: k2[:3], 4*p0+21: k2[3:]}
    ld = lambda kt: att_ld(a, vm, kt)
    for kt in range(NRING-1): vm.q += [('kv', kt)]*3
    def QK(dst, sl, q): return f"v_mfma_f32_32x32x16_bf16 {vr(dst,16)}, {vr(RING+12*sl,4)}, {vr(QF+4*q,4)}, 0"
    def SM(q, sl, half, s): return f"v_smfmac_f32_32x32x32_bf16 {vr(OA+16*q,16)}, {vr(RING+12*sl+4+4*half,4)}, {vr(s+8*half,8)}, v{IDX}"
    a("s_setprio 1")
    a(f"s_and_b32 s53, s{sW}, 3\ns_lshl_b32 s52, s2, 2\ns_add_u32 s53, s53, s52\ns_mul_i32 s53, s53, {9*128}")
    ST = [stouch("w1", 53, n) for n in range(9)] + [stouch("wmod", 53, n) for n in range(16)] + [stouch("w2", 53, n) for n in range(14)]
    a("s_waitcnt lgkmcnt(0)")
    vm.wait(("kv", 0))
    a(QK(SB[0], 0, 0))
    a("s_nop 7\ns_nop 3")
    TAIL = OPT.get("tail", 1)
    qof = lambda t: (t + 1) % 4 if (TAIL and t >= 60) else t % 4
    def red_write(i):
        return [f"s_add_u32 s52, s{sKQ}, {i}\ns_and_b32 s52, s52, 3\ns_mul_i32 s52, s52, 3\ns_add_u32 s52, s52, s63\ns_add_u32 s52, s52, {i-1}\ns_mul_i32 s52, s52, 2304\ns_add_u32 s52, s52, {L_RED}",
                f"v_add_u32 v6, s52, v{vL16}\nv_add_u32 v7, s52, v15",
                f"ds_write_b128 v6, {vr(OA+16*i,4)}", f"ds_write_b128 v6, {vr(OA+16*i+4,4)} offset:1024", f"ds_write_b32 v7, v{OA+16*i+8} offset:2048"]
    for t in range(64):
        kt, q = t // 4, t % 4
        cur, prv = SB[t & 1], SB[(t + 1) & 1]
        E = [f"v_exp_f32 v{cur+r}, v{cur+r}" for r in range(16)]
        if t == OPT.get("prio", 53):
            a(f"s_cmp_ge_u32 s{sW}, 4\ns_cbranch_scc1 Latt_prio\ns_setprio 0\nLatt_prio:")
        a(E[0]); a(E[1])
        if t > 0: a(SM(qof(t-1), ((t-1)//4) % NRING, 1, prv))
        if t == 59: a(f"s_mul_i32 s63, s{sHH}, 12\nv_lshlrev_b32 v15, 2, v{vLANE}")
        if q == 0 and kt + NRING - 1 < 16: ld(kt + NRING - 1)
        if t in pre and not OPT.get("nopre"):
            for p in pre[t]:
                for x in p[:-1]: a(x)
                vm.op(p[-1], "pre")
        if t == OPT.get("cpf", 99):
            a(f"s_cmp_lg_u32 s{sW}, 7\ns_cbranch_scc1 Latt_nocp\ns_getpc_b64 s[50:51]\nLpc2:\ns_and_b32 s52, s{sI}, 3\ns_lshl_b32 s52, s52, 13\nv_lshlrev_b32 v5, 7, v{vLANE}\nv_add_u32 v5, s52, v5")
            a("v_min_u32 v5, Lcode_end-Lpc2-4, v5\nglobal_load_dword v249, v5, s[50:51]\nLatt_nocp:")
        if t == 5:
            a(f"s_cmp_lg_u32 s{sW}, 0\ns_cbranch_scc1 Latt_noxc"); a(TP(52)); a(f"s_lshl_b32 s52, s52, 5"); a(CP(50))
            a(f"s_add_u32 s52, s52, s50\ns_lshl_b32 s52, s52, 2\ns_add_u32 s52, s52, {hex(WS_FXC)}\ns_getreg_b32 s50, hwreg(HW_REG_XCC_ID)\ns_and_b32 s50, s50, 15\ns_lshl_b32 s50, s50, 1\ns_add_u32 s50, s50, s{sTAG}")
            if OPT.get("xcfake"): a(f"s_and_b32 s51, s2, {OPT['xcfake']}\ns_add_u32 s50, s50, s51")
            a(f"v_mov_b32 v5, s50\ns_mov_b64 exec, 1\nbuffer_store_dword v5, v{vZ}, {S['ws']}, s52 offen sc1\ns_mov_b64 exec, -1\nLatt_noxc:")
        if t == 57:
            a(f"s_cmp_ge_u32 s{sW}, 4\ns_cbranch_scc1 Latt_nox")
            a(f"v_bfe_u32 v5, v{vLANE}, 5, 1\nv_and_b32 v6, 31, v{vLANE}\nv_lshlrev_b32 v6, 10, v6\nv_lshl_add_u32 v6, v5, 3, v6")
            a(TP(52)); a(f"s_lshl_b32 s52, s52, 2\ns_add_u32 s67, s52, s{sW}\ns_lshl_b32 s52, s67, 15"); a(CP(50)); a("s_lshl_b32 s50, s50, 6\ns_add_u32 s52, s52, s50")
            for qq in range(4): a(f"buffer_load_dwordx2 {vr(vXR+2*qq,2)}, v6, {S['x']}, s52 offen offset:{16*qq}")
            a(f"s_lshr_b32 s52, s67, 2\ns_lshl_b32 s52, s52, 7\ns_add_u32 s52, s52, {hex(WS_FXC)}\nv_and_b32 v5, 15, v{vLANE}\nv_lshlrev_b32 v5, 2, v5")
            a(f"buffer_load_dword v{vXR+8}, v5, {S['ws']}, s52 offen sc1")
            a("Latt_nox:")
        if t == 50:
            a(f"s_cmp_lt_u32 s{sW}, 4\ns_cbranch_scc1 Latt_nomod\ns_sub_u32 s52, s{sI}, 8\ns_cmp_ge_u32 s52, 16\ns_cbranch_scc1 Latt_nomod")
            a(f"s_lshl_b32 s66, s{sX}, 2\ns_lshr_b32 s52, s52, 2\ns_add_u32 s66, s66, s52\ns_lshl_b32 s66, s66, 6")
            a(f"s_and_b32 s52, s{sI}, 3\ns_lshl_b32 s52, s52, 4\ns_add_u32 s66, s66, s52\ns_add_u32 s66, s66, 1024")
            mod_issue(a, Track(a, "vmcnt", 63), 66, vMOD, T=244)
            a("Latt_nomod:")
        if t == OPT.get("w2t", 62) and not OPT.get("nopre"):
            if OPT.get("nw", 1):
                a(f"s_mul_i32 s52, s{sI}, 7\ns_min_u32 s50, s{sW}, 6\ns_add_u32 s52, s52, s50\ns_lshl_b32 s52, s52, 13\nv_lshlrev_b32 v5, 7, v{vLANE}")
                vm.op(f"buffer_load_dword v248, v5, {S['w2']}, s52 offen", "w2t")
            else:
                a(f"s_cmp_eq_u32 s{sW}, 7\ns_cbranch_scc1 Latt_nopf\ns_mul_i32 s52, s{sI}, 7\ns_add_u32 s52, s52, s{sW}\ns_lshl_b32 s52, s52, 13\nv_lshlrev_b32 v5, 7, v{vLANE}")
                a(f"buffer_load_dword v248, v5, {S['w2']}, s52 offen")
                a("Latt_nopf:")
        if OPT.get("st", 7) & 4 and t % 3 != 2 and t - t//3 < 39:
            j = t - t//3
            if j == 9: a(f"s_lshl_b32 s53, s2, 1\ns_bfe_u32 s52, s{sW}, 0x10001\ns_add_u32 s53, s53, s52\ns_mul_i32 s53, s53, 6144\ns_lshl_b32 s52, s{sHH}, 11\ns_add_u32 s53, s53, s52\ns_add_u32 s53, s53, 2048")
            if j == 25: a(f"s_and_b32 s53, s{sW}, 3\ns_lshl_b32 s52, s2, 2\ns_add_u32 s53, s53, s52\ns_mul_i32 s53, s53, {14*128}")
            a(ST[j])
        sh = OPT.get("vb", 1)
        for r in range(2, 4+sh): a(E[r])
        if t < 63:
            if q == 3: vm.wait(("kv", kt + 1))
            a(QK(prv, ((t+1)//4) % NRING, qof(t+1)))
        for r in range(4+sh, 10+sh): a(E[r])
        a(SM(qof(t), kt % NRING, 0, cur))
        W = red_write(t - 60) if (TAIL and t >= 61) else []
        for r in range(10+sh, 16):
            a(E[r])
            if W: a(W.pop(0))
        for x in W: a(x)
        if t % 4 == 3 and t < 60: stamp(a, t//4, 5)
    a("s_nop 1")
    a(SM(qof(63), 15 % NRING, 1, SB[1]))
    a("s_setprio 0")
    stamp(a, 6); stamp(a, 0, 8)
    if not TAIL:
        for i in range(1, 4):
            for x in red_write(i): a(x)
    a(f"s_mul_i32 s52, s{sKQ}, 3\ns_add_u32 s52, s52, s63\ns_mul_i32 s52, s52, 2304\ns_add_u32 s52, s52, {L_RED}")
    a(f"v_add_u32 v6, s52, v{vL16}\nv_add_u32 v7, s52, v15")
    a(f"s_lshl_b32 s52, s{sTB}, 2\ns_add_u32 s52, s52, s{sKQ}\ns_lshl_b32 s52, s52, 5\ns_add_u32 s52, s52, s58")
    a(f"s_lshl_b32 s63, s52, 10\ns_add_u32 s63, s63, {hex(WS_O)}")
    flag_off(a, 64, 52, WS_FO, LF())
    a(TP(sTB)); a(CP(sC))
    stamp(a, 1, 8)
    if OPT.get("nw", 1): a("s_waitcnt vmcnt(1)")
    else: vm.wait_all()
    a("s_waitcnt lgkmcnt(0)")
    stamp(a, 2, 8)
    a("s_barrier")
    stamp(a, 3, 8)
    R = 96
    for i in range(3):
        a(f"ds_read_b128 {vr(R+12*i,4)}, v6 offset:{2304*i}\nds_read_b128 {vr(R+12*i+4,4)}, v6 offset:{2304*i+1024}\nds_read_b32 v{R+12*i+8}, v7 offset:{2304*i+2048}")
    a(f"s_mov_b32 s52, {hx(2.0**-60)}\ns_mov_b32 s53, {hx(2.0**60)}\ns_movk_i32 s65, 0x207")
    for i in range(3):
        a(f"s_waitcnt lgkmcnt({6-3*i})")
        for r in range(9): a(f"v_add_f32 v{OA+r}, v{OA+r}, v{R+12*i+r}")
    a(f"v_add_f32 v8, v{OA}, v{OA+1}\nv_add_f32 v9, v{OA+2}, v{OA+3}\nv_add_f32 v10, v{OA+4}, v{OA+5}\nv_add_f32 v11, v{OA+6}, v{OA+7}")
    a("v_add_f32 v8, v8, v9\nv_add_f32 v10, v10, v11\nv_add_f32 v8, v8, v10")
    a(f"v_cmp_nge_f32 vcc, v{OA+8}, s52\nv_cmp_nle_f32 s[54:55], v{OA+8}, s53\nv_cmp_class_f32 s[56:57], v8, s65")
    a(f"v_rcp_f32 v8, v{OA+8}")
    a("s_or_b64 vcc, vcc, s[54:55]\ns_or_b64 vcc, vcc, s[56:57]")
    a("s_cbranch_vccnz Lslow")
    a("Lnorm:")
    for r in range(8): a(f"v_mul_f32 v{OA+r}, v{OA+r}, v8")
    for r in range(4): a(f"v_cvt_pk_bf16_f32 v{8+r}, v{OA+2*r}, v{OA+2*r+1}")
    vm.op(f"buffer_store_dwordx4 v[8:11], v{vL16}, {S['ws']}, s63 offen{RO()}")
    stamp(a, 4, 8)
    a("s_barrier")
    stamp(a, 5, 8)
    a(f"s_mul_i32 s52, s{sW}, 7168\ns_add_u32 s52, s52, {L_W1+8*7168}\nv_add_u32 v5, s52, v{vL16}")
    for j in range(7): a(f"ds_write_b128 v5, {vr(vSTASH+4*j,4)} offset:{1024*j}")
    def slow(b):
        tv = Track(b, "vmcnt", 63)
        b("Lslow:")
        poll_addr(b, 5)
        b(f"s_lshr_b32 s52, s58, 2\ns_lshl_b32 s52, s52, 11\ns_add_u32 s62, s52, {hex(WS_FKV)}")
        poll(b, tv, "-1", 5, "s62", 6)
        b("s_add_u32 s62, s62, 1024")
        poll(b, tv, "-1", 5, "s62", 6)
        b(f"s_waitcnt vmcnt(0)\ns_add_u32 s{sK}, s59, {hex(WS_K)}\ns_mov_b32 s51, 64\nv_mov_b32 v8, 0xff800000")
        b("Ls1:")
        b(f"buffer_load_dwordx4 {vr(RING,4)}, v{vL16}, {S['ws']}, s{sK} offen sc1\ns_add_u32 s{sK}, s{sK}, 1024\ns_waitcnt vmcnt(0)")
        b(QK(SB[0], 0, 0))
        for r in range(0, 16, 2): b(f"v_max3_f32 v8, v{SB[0]+r}, v{SB[0]+r+1}, v8")
        b("s_sub_u32 s51, s51, 1\ns_cmp_lg_u32 s51, 0\ns_cbranch_scc1 Ls1")
        b("v_mov_b32 v9, v8\nv_permlane32_swap_b32 v8, v9\nv_max_f32 v8, v8, v9")
        for r in range(16): b(f"v_sub_f32 v{SB[1]+r}, 0, v8")
        for r in range(16): b(f"v_mov_b32 v{OA+r}, 0")
        b(f"s_add_u32 s{sK}, s59, {hex(WS_K)}\ns_add_u32 s{sV}, s59, {hex(WS_V)}\ns_mov_b32 s51, 64")
        b("Ls2:")
        b(f"buffer_load_dwordx4 {vr(RING,4)}, v{vL16}, {S['ws']}, s{sK} offen sc1\ns_mov_b64 exec, s[60:61]")
        b(f"buffer_load_dwordx4 {vr(RING+4,4)}, v{vV}, {S['ws']}, s{sV} offen sc1\nbuffer_load_dwordx4 {vr(RING+8,4)}, v{vV}, {S['ws']}, s{sV} offen offset:512 sc1")
        b(f"s_mov_b64 exec, -1\ns_add_u32 s{sK}, s{sK}, 1024\ns_add_u32 s{sV}, s{sV}, 1024\ns_waitcnt vmcnt(0)")
        b(f"v_mfma_f32_32x32x16_bf16 {vr(SB[0],16)}, {vr(RING,4)}, {vr(QF,4)}, {vr(SB[1],16)}")
        for r in range(16): b(f"v_exp_f32 v{SB[0]+r}, v{SB[0]+r}")
        b(SM(0, 0, 0, SB[0])); b(SM(0, 0, 1, SB[0]))
        b("s_sub_u32 s51, s51, 1\ns_cmp_lg_u32 s51, 0\ns_cbranch_scc1 Ls2")
        b(f"s_nop 7\ns_nop 7\nv_rcp_f32 v8, v{OA+8}\ns_nop 0\ns_branch Lnorm")
    return slow

def w1_voffs(a, vF, vH, p=7, q=8, r=9):
    a(f"v_lshrrev_b32 v{p}, 2, v{vLANE}\nv_and_b32 v{q}, 3, v{vLANE}\nv_mul_u32_u24 v{vF}, 3584, v{p}\nv_lshl_add_u32 v{vF}, v{q}, 4, v{vF}")
    a(f"v_lshrrev_b32 v{p}, 1, v{vLANE}\nv_and_b32 v{q}, 0x13, v{p}\nv_bfe_u32 v{r}, v{p}, 2, 1\nv_lshl_add_u32 v{q}, v{r}, 3, v{q}\nv_bfe_u32 v{r}, v{p}, 3, 1\nv_lshl_add_u32 v{q}, v{r}, 2, v{q}")
    a(f"v_mul_u32_u24 v{vH}, 3584, v{q}\nv_and_b32 v{q}, 1, v{vLANE}\nv_lshl_add_u32 v{vH}, v{q}, 4, v{vH}")

def w1_kp_dma(sOff, sLds, vF, vH, dOff=0, dLds=0):
    L = []
    for e in range(2):
        for nt in range(3):
            L.append([f"s_add_u32 m0, s{sLds}, {dLds+3072*e+1024*nt}", f"s_add_u32 s52, s{sOff}, {dOff+16*3584*e+64*nt}",
                      f"buffer_load_dwordx4 v{vF}, {S['w1']}, s52 offen lds"])
    L.append([f"s_add_u32 m0, s{sLds}, {dLds+6144}", f"s_add_u32 s52, s{sOff}, {dOff+192}", f"buffer_load_dwordx4 v{vH}, {S['w1']}, s52 offen lds"])
    return L

def w1_reads(kp, e, dst, vF):
    base = 7168*kp + 3072*e
    return [f"ds_read_b64_tr_b16 {vr(dst+4*nt+2*st,2)}, v{vF[base >> 15]} offset:{(base & 0x7fff)+1024*nt+512*st}" for nt in range(3) for st in range(2)]
def w1_half_reads(kp, dst, vH):
    base = 7168*kp + 6144
    return [f"ds_read_b64_tr_b16 {vr(dst+2*st,2)}, v{vH[base >> 15]} offset:{(base & 0x7fff)+256*st}" for st in range(2)]

def h_pj(ks):
    return (ks // 4, ks % 4) if ks < 32 else ((ks - 32) // 3, 4 + (ks - 32) % 3)

def rot_loads(a, vm, base_s, dst, tag, div=1):
    for ks in range(32):
        if ks % 4 == 0: a(f"s_add_u32 s53, s{sR}, {ks//4}\ns_and_b32 s53, s53, 7\ns_lshl_b32 s53, s53, 12\ns_add_u32 s53, s53, s{base_s}")
        yield ks, (f"buffer_load_dwordx4 {vr(dst+4*ks,4)}, v{vL16}, {S['ws']}, s53 offen offset:{1024*(ks%4)}{RL() if tag == 'y' else ' sc1'}", (tag, ks//div))

def lds_init_b0(a):
    late_srds(a)
    a(f"v_mov_b32 v8, {L_SCR+256}\nv_mov_b32 v10, 0\nv_mov_b32 v11, 0\nds_write_b64 v8, v[10:11]\nds_write_b64 v8, v[10:11] offset:8\nds_write_b64 v8, v[10:11] offset:16\nds_write_b64 v8, v[10:11] offset:24\nds_write_b64 v8, v[10:11] offset:32\nds_write_b64 v8, v[10:11] offset:40\ns_waitcnt lgkmcnt(0)\ns_barrier")

EB = lambda bit: OPT.get('eb1', 2) & bit
def tag_to_lds_b1(a, late, nap=0):
    a(f"v_mov_b32 v8, s{sTAG}\nv_mov_b32 v9, {L_SCR+260}\nds_write_b32 v9, v8\ns_waitcnt lgkmcnt(0)")
    stamp(a, 0)
    if late: a("s_barrier")
    if nap: a(f"s_sleep {nap}")
    a("s_branch La_p1")

def p0_ln(a):
    vm = Track(a, "vmcnt", 63)
    a(f"s_and_b32 s52, s{sX}, 1\ns_lshl_b32 s52, s52, 4\ns_add_u32 s52, s52, s{sI}\ns_sub_u32 s52, s52, 8\ns_lshl_b32 s52, s52, 2\ns_add_u32 s52, s52, s{sW}")
    a(f"s_lshr_b32 s53, s{sX}, 1\ns_lshl_b32 s53, s53, 7\ns_add_u32 s56, s52, s53\ns_lshl_b32 s53, s56, 12")
    a(f"v_and_b32 v4, 3, v{vLANE}\nv_lshrrev_b32 v5, 2, v{vLANE}\nv_lshlrev_b32 v6, 10, v4\nv_lshl_add_u32 v6, v5, 4, v6")
    a("s_waitcnt lgkmcnt(0)")
    for m in range(4): vm.op(f"buffer_load_dwordx4 {vr(16+4*m,4)}, v6, {S['x']}, s53 offen offset:{256*m}")
    lds_init_b0(a)
    a("v_lshrrev_b32 v7, 1, v5\nv_lshlrev_b32 v7, 10, v7\nv_and_b32 v8, 1, v5\nv_lshl_add_u32 v7, v8, 9, v7\nv_lshl_add_u32 v7, v4, 4, v7")
    a(f"s_lshr_b32 s53, s56, 3\ns_lshl_b32 s53, s53, 15\ns_and_b32 s54, s56, 7\ns_lshl_b32 s54, s54, 6\ns_add_u32 s53, s53, s54\ns_add_u32 s53, s53, {hex(WS_XN)}")
    flag_off(a, 55, 56, WS_FXN)
    stamp(a, 0, 7)
    vm.wait_all()
    stamp(a, 1, 7)
    vm.op(f"buffer_load_dword v15, v{vZ}, {S['dbg']}, 0 offen sc1")
    F = 32
    for r in range(16): a(f"v_lshlrev_b32 v{F+2*r}, 16, v{16+r}\nv_and_b32 v{F+2*r+1}, 0xffff0000, v{16+r}")
    def red(v, t):
        for r in (4, 8): a(f"v_add_f32_dpp v{v}, v{v}, v{v} row_ror:{r} row_mask:0xf bank_mask:0xf")
        a(f"v_mov_b32 v{t}, v{v}\nv_permlane16_swap_b32 v{v}, v{t}\nv_add_f32 v{v}, v{v}, v{t}")
        a(f"v_mov_b32 v{t}, v{v}\nv_permlane32_swap_b32 v{v}, v{t}\nv_add_f32 v{v}, v{v}, v{t}")
    a(f"v_pk_add_f32 v[64:65], {vr(F,2)}, {vr(F+2,2)}\nv_pk_add_f32 v[66:67], {vr(F+4,2)}, {vr(F+6,2)}")
    for r in range(8, 32, 4): a(f"v_pk_add_f32 v[64:65], v[64:65], {vr(F+r,2)}\nv_pk_add_f32 v[66:67], v[66:67], {vr(F+r+2,2)}")
    a("v_pk_add_f32 v[64:65], v[64:65], v[66:67]\nv_add_f32 v64, v64, v65")
    red(64, 65)
    a(f"v_mul_f32 v64, {hx(-1/512)}, v64")
    for r in range(0, 32, 2): a(f"v_pk_add_f32 {vr(F+r,2)}, {vr(F+r,2)}, v[64:65] op_sel_hi:[1,0]")
    a(f"v_pk_mul_f32 v[66:67], {vr(F,2)}, {vr(F,2)}\nv_pk_mul_f32 v[68:69], {vr(F+2,2)}, {vr(F+2,2)}")
    for r in range(4, 32, 4): a(f"v_pk_fma_f32 v[66:67], {vr(F+r,2)}, {vr(F+r,2)}, v[66:67]\nv_pk_fma_f32 v[68:69], {vr(F+r+2,2)}, {vr(F+r+2,2)}, v[68:69]")
    a("v_pk_add_f32 v[66:67], v[66:67], v[68:69]\nv_add_f32 v66, v66, v67")
    red(66, 67)
    a(f"v_mov_b32 v67, {hx(1e-5)}\nv_fmac_f32 v67, {hx(1/512)}, v66\nv_rsq_f32 v66, v67")
    for r in range(0, 32, 2): a(f"v_pk_mul_f32 {vr(F+r,2)}, {vr(F+r,2)}, v[66:67] op_sel_hi:[1,0]")
    for m in range(4):
        for r in range(4): a(f"v_cvt_pk_bf16_f32 v{16+4*m+r}, v{F+8*m+2*r}, v{F+8*m+2*r+1}")
        vm.op(f"buffer_store_dwordx4 {vr(16+4*m,4)}, v7, {S['ws']}, s53 offen sc1")
        if m < 3: a("s_add_u32 s53, s53, 8192")
    stamp(a, 2, 7)
    if EB(1): a("s_barrier")
    vm.wait_all()
    stamp(a, 3, 7)
    tag_now(a, 15)
    set_flag(a, vm, "s55", vZ, 8)
    stamp(a, 4, 7)
    tag_to_lds_b1(a, not EB(1), OPT.get('nl', 0))

def p0_mod(a):
    vm = Track(a, "vmcnt", 63)
    sCol = 51
    a(f"s_lshl_b32 s{sCol}, s{sX}, 1\ns_lshr_b32 s52, s{sI}, 2\ns_add_u32 s{sCol}, s{sCol}, s52\ns_lshl_b32 s{sCol}, s{sCol}, 6")
    a(f"s_and_b32 s52, s{sI}, 3\ns_lshl_b32 s52, s52, 4\ns_add_u32 s{sCol}, s{sCol}, s52")
    a("s_waitcnt lgkmcnt(0)")
    mod_issue(a, vm, sCol)
    lds_init_b0(a)
    vm.wait("mod")
    stamp(a, 1, 7)
    a(f"buffer_load_dword v15, v{vZ}, {S['dbg']}, 0 offen sc1")
    if EB(4): a("s_barrier")
    mod_partial(a, vm)
    a("s_waitcnt vmcnt(0)")
    tag_now(a, 15)
    mod_join(a, vm, sCol, "La_joined")
    a("La_joined:")
    stamp(a, 4, 7)
    tag_to_lds_b1(a, not EB(4), OPT.get('nm', 0))

def p0_warm(a):
    a(f"s_sub_u32 s52, s{sI}, 24\ns_lshl_b32 s52, s52, 1\ns_add_u32 s52, s52, s{sW}\ns_lshl_b32 s52, s52, 5")
    a(f"v_lshrrev_b32 v4, 1, v{vLANE}\nv_add_u32 v4, s52, v4\nv_mul_u32_u24 v4, 6144, v4\nv_and_b32 v5, 1, v{vLANE}\nv_lshl_add_u32 v4, v5, 7, v4\ns_lshl_b32 s52, s{sX}, 8")
    a(f"s_waitcnt lgkmcnt(0)\ns_cmp_ge_u32 s{sW}, 2\ns_cbranch_scc1 La_nowm")
    a(f"buffer_load_dword v6, v4, {S['wmod']}, s52 offen")
    a("La_nowm:")
    lds_init_b0(a)
    a("s_waitcnt vmcnt(0)")
    stamp(a, 1, 7)
    a(f"buffer_load_dword v15, v{vZ}, {S['dbg']}, 0 offen sc1")
    if EB(2): a("s_barrier")
    a("s_waitcnt vmcnt(0)")
    tag_now(a, 15)
    tag_to_lds_b1(a, not EB(2), OPT.get('nwm', 0))

def wkv_loop(a, name):
    a(f"{name}:")
    a(f"s_and_b32 s55, s55, 31\ns_lshl_b32 s53, s55, 11\ns_add_u32 s52, s55, s57\ns_and_b32 s52, s52, 31\ns_mul_i32 s52, s52, {16*3072}\ns_mov_b32 m0, s53\ns_add_u32 s52, s52, s56")
    a(f"buffer_load_dwordx4 v12, {S['wqkv']}, s52 offen lds\ns_add_u32 m0, s53, 1024\ns_add_u32 s52, s52, {8*3072}\nbuffer_load_dwordx4 v12, {S['wqkv']}, s52 offen lds")
    a(f"s_add_u32 s55, s55, 4\ns_sub_u32 s51, s51, 1\ns_cmp_lg_u32 s51, 0\ns_cbranch_scc1 {name}")

def p0_helper(a):
    vm = Track(a, "vmcnt", 63)
    sH = 67
    a(f"v_mov_b32 v32, 0\nv_mov_b32 v33, 0\nv_mov_b32 v34, 0\nv_mov_b32 v35, 0\ns_lshl_b32 s52, s{sH}, 12\ns_add_u32 s52, s52, {L_DG}\nv_add_u32 v9, s52, v{vL16}")
    for j in range(4): a(f"ds_write_b128 v9, v[32:35] offset:{1024*j}")
    a(f"s_lshl_b32 s52, s2, 2\ns_add_u32 s52, s52, s{sH}\ns_and_b32 s53, s52, 1\ns_lshr_b32 s52, s52, 1\ns_mul_i32 s52, s52, 3072")
    a("s_lshl_b32 s57, s53, 9\ns_add_u32 s57, s57, s52\ns_lshl_b32 s53, s53, 10\ns_add_u32 s52, s52, s53\ns_add_u32 s52, s52, 1024")
    a("s_waitcnt lgkmcnt(0)")
    a(f"s_andn2_b32 s58, s2, {OPT.get('tagm', 4)}\ns_lshl_b32 s58, s58, 3\ns_add_u32 s58, s58, s{sW}\ns_cmp_lg_u32 s58, {OPT.get('tagw', 64)*8+4}\ns_cbranch_scc1 Le_notag")
    a(f"s_or_b32 s54, s54, 1\nv_mov_b32 v6, s54\nv_mov_b32 v7, 0\ns_mov_b64 exec, 1\nbuffer_atomic_cmpswap v[6:7], v{vZ}, {S['dbg']}, 0 offen sc1\ns_mov_b64 exec, -1")
    a("Le_notag:")
    s0 = OPT.get("st0", 9)
    for n in range(min(s0, 4) if s0 != 9 else 1): a(stouch("wqkv", 52, n))
    late_srds(a)
    a("s_barrier")
    if s0 == 9: a("s_waitcnt lgkmcnt(0)")
    for n in range(min(s0, 4) if s0 != 9 else 1, 8): a(stouch("wqkv", 52, n))
    for n in range(4): a(stouch("wqkv", 57, n))
    a(f"v_lshrrev_b32 v4, 3, v{vLANE}\nv_mul_u32_u24 v4, 3072, v4\nv_bfe_u32 v5, v{vLANE}, 4, 1\nv_lshlrev_b32 v5, 2, v5\nv_xor_b32 v5, v5, v{vLANE}\nv_and_b32 v5, 7, v5\nv_lshl_add_u32 v12, v5, 4, v4")
    a(f"s_and_b32 s56, s{sC}, 1\ns_add_u32 s56, s56, 1\ns_lshl_b32 s56, s56, 10\ns_lshr_b32 s52, s{sC}, 1\ns_lshl_b32 s52, s52, 7\ns_add_u32 s56, s56, s52")
    a(f"s_and_b32 s55, s{sTB}, {1 if OPT.get('m216', 0) else 3}\ns_lshl_b32 s55, s55, {4 if OPT.get('m216', 0) else 3}\ns_add_u32 s55, s55, s{sH}\ns_lshl_b32 s57, s{sR}, 2\ns_mov_b32 s51, 8")
    WH_ = OPT.get("whalf", 0)
    if WH_: a(f"s_mov_b32 s55, s{sH}\ns_mov_b32 s51, {WH_}\ns_mov_b32 s59, s56\ns_mov_b32 s60, s57")
    stamp(a, 0, 7)
    a("s_barrier")
    stamp(a, 1, 7)
    wkv_loop(a, "Lh_wl")
    tag_get(a)
    stamp(a, 0); stamp(a, 2, 7)
    a(f"s_cmp_ge_u32 s{sH}, 2\ns_cbranch_scc1 Lh_b2")
    a(f"s_lshl_b32 s52, s{sH}, 11")
    a(f"v_lshrrev_b32 v5, 3, v{vLANE}\ns_lshl_b32 s53, s{sR}, 1\nv_subrev_u32 v5, s53, v5\nv_and_b32 v5, 15, v5\nv_xor_b32 v6, 8, v5")
    gran_poll(a, vm, [f"buffer_load_dwordx4 v[16:19], v{vL16}, {S['ws']}, s52 offen sc1", f"buffer_load_dwordx4 v[20:23], v{vL16}, {S['ws']}, s52 offen offset:1024 sc1"], [16, 20], OPT.get("ng", 0))
    stamp(a, 1)
    a(f"s_cmp_lg_u32 s{sH}, 0\ns_cbranch_scc1 Lh_g1")
    for j, r in enumerate((16, 18, 20, 22)): a(f"v_lshlrev_b32 v{24+2*j}, 16, v{r}\nv_and_b32 v{25+2*j}, 0xffff0000, v{r}")
    a(f"v_and_b32 v7, 1, v{vLANE}\nv_lshlrev_b32 v7, 6, v7\nv_bfe_u32 v9, v{vLANE}, 1, 2\nv_lshl_add_u32 v7, v9, 4, v7\nv_add_u32 v7, {L_SA}, v7")
    a("v_lshl_add_u32 v5, v5, 7, v7\nv_lshl_add_u32 v6, v6, 7, v7")
    a("ds_write_b128 v5, v[24:27]\nds_write_b128 v6, v[28:31]")
    a("s_branch Lh_b2")
    a("Lh_g1:")
    a(f"v_and_b32 v7, 7, v{vLANE}\nv_lshlrev_b32 v7, 6, v7\nv_bfe_u32 v9, v{vLANE}, 2, 1\nv_lshl_add_u32 v7, v9, 9, v7\nv_and_b32 v9, 3, v{vLANE}\nv_lshl_add_u32 v7, v9, 2, v7\nv_add_u32 v7, {L_DG}, v7")
    a("v_lshl_add_u32 v5, v5, 10, v7\nv_lshl_add_u32 v6, v6, 10, v7")
    for j in range(2):
        for e in range(4):
            a(f"ds_write_b16{'_d16_hi' if e & 1 else ''} v{5+j}, v{16+4*j+2*(e>>1)} offset:{16*e + 2*(e & 1)}")
    a("s_branch Lh_b2")

def late_srds(a):
    for nm in ("wo", "w1", "w2", "out"): a(f"s_mov_b32 s{SRD[nm]+2}, {hex(SZ[nm])}\ns_mov_b32 s{SRD[nm]+3}, 0x20000")

def active(a):
    vm = Track(a, "vmcnt", 63); lg = Track(a, "lgkmcnt", 15)
    sT32 = 67
    a("La_p1:")
    if OPT.get("ap", 0) & 2: a("s_setprio 1")
    ACC = [16, 32, 48]; WF = [64, 72]; DH = [88, 104]; DG = [120, 124]; AF = 128
    a(f"s_lshl_b32 s{sT32}, s{sTB}, 2\ns_add_u32 s{sT32}, s{sT32}, s{sW}")
    a(f"v_lshlrev_b32 v5, 2, v{vLANE}\ns_lshl_b32 s52, s{sT32}, 7\ns_add_u32 s52, s52, {hex(WS_FXN)}")
    tr_addr(a, 10, 12, True, 7, True)
    a("v_xor_b32 v12, 64, v10")
    a(f"v_bfe_u32 v11, v0, 5, 1\nv_lshlrev_b32 v11, 6, v11\nv_add_u32 v11, {L_SA}, v11\nv_add_u32 v13, {L_DG}, v{vL16}")
    a(f"v_and_b32 v14, 2, v0\nv_cmp_eq_u32 vcc, 0, v14\nv_mov_b32 v14, 0xeeeeeeee\nv_mov_b32 v15, 0x44444444\nv_cndmask_b32 v14, v14, v15, vcc")
    for r in range(48): a(f"v_mov_b32 v{16+r}, 0")
    poll(a, vm, "0xff", 5, "s52", 6, OPT.get("fn", 0))
    stamp(a, 1)
    a(f"s_lshl_b32 s52, s{sT32}, 15\ns_add_u32 s52, s52, {hex(WS_XN)}")
    a(f"s_lshr_b32 s54, s{sC}, 1\ns_lshl_b32 s54, s54, 18\ns_lshl_b32 s55, s{sT32}, 10\ns_add_u32 s54, s54, s55")
    a(f"s_bitcmp1_b32 s{sC}, 0\ns_cbranch_scc1 La_vwg")
    def rdS(b):
        L = [(f"ds_read_b128 {vr(DH[b&1]+4*q,4)}, v11 offset:{128*b+16*q}", ("s", b)) for q in range(4)]
        return L + [(f"ds_read_b128 {vr(DG[b&1],4)}, v13 offset:{1024*b}", ("s", b))]
    def rdW(ks):
        return [(f"ds_read_b64_tr_b16 {vr(WF[ks&1]+4*g+2*st,2)}, v{(10, 12)[g]} offset:{2048*ks+1024*st}", ("w", ks)) for g in range(2) for st in range(2)]
    def SMF(b): return f"v_smfmac_f32_32x32x32_bf16 {vr(DH[b&1],16)}, {vr(DG[b&1],4)}, {vr(AF+8*b,8)}, v14"
    def CVT(b): return [f"v_cvt_pk_bf16_f32 v{AF+8*b+r}, v{DH[b&1]+2*r}, v{DH[b&1]+2*r+1}" for r in range(8)]
    for isV in (0, 1):
        if isV: a("La_vwg:")
        vm.reset(); lg.reset()
        XL = rot_loads(a, vm, 52, AF, "xn", 2)
        def xn_issue(n):
            for _ in range(n):
                r = next(XL, None)
                if r: vm.op(*r[1])
        def MM(ks):
            f = AF + 4*ks; w = WF[ks & 1]
            if isV: return [f"v_mfma_f32_32x32x16_bf16 {vr(ACC[1+g],16)}, {vr(f,4)}, {vr(w+4*g,4)}, {vr(ACC[1+g],16)}" for g in range(2)]
            return [f"v_mfma_f32_32x32x16_bf16 {vr(ACC[1+g],16)}, {vr(w+4*g,4)}, {vr(f,4)}, {vr(ACC[1+g],16)}" for g in range(2)]
        xn_issue(OPT.get("xn0", 8))
        a("s_barrier")
        xn_issue(10 - OPT.get("xn0", 8))
        for x in rdS(0) + rdS(1): lg.op(*x)
        lg.wait(("s", 0)); vm.wait(("xn", 0))
        a(SMF(0))
        for x in rdW(0): lg.op(*x)
        xn_issue(2)
        a("s_nop 5")
        for x in CVT(0): a(x)
        stamp(a, 2)
        for b in range(16):
            nx = b + 1 < 16
            if nx:
                lg.wait(("s", b+1)); vm.wait(("xn", b+1))
                a(SMF(b+1))
            for x in rdW(2*b+1): lg.op(*x)
            lg.wait(("w", 2*b))
            M = MM(2*b); Rs = rdS(b+2) if b + 2 < 16 else []
            a(M[0]); [lg.op(*x) for x in Rs]
            a(M[1]); xn_issue(3)
            if b == OPT.get("b2b", 6): a("s_barrier")
            lg.wait(("w", 2*b+1))
            M = MM(2*b+1); C = CVT(b+1) if nx else []; Rw = rdW(2*b+2) if nx else []
            a(M[0]); [lg.op(*x) for x in Rw]; [a(x) for x in C[:3]]
            a(M[1]); [a(x) for x in C[3:]]
            if b < 15: stamp(a, b, 6)
        if not isV:
            a(f"s_add_u32 s54, s54, {hex(WS_K)}")
            a(f"v_and_b32 v5, 0x33, v{vLANE}\nv_bfe_u32 v6, v{vLANE}, 2, 1\nv_lshl_add_u32 v5, v6, 3, v5\nv_bfe_u32 v6, v{vLANE}, 3, 1\nv_lshl_add_u32 v5, v6, 2, v5\nv_lshlrev_b32 v5, 4, v5")
            for h in range(4):
                for r in range(4): a(f"v_cvt_pk_bf16_f32 v{112+4*h+r}, v{ACC[1]+8*h+2*r}, v{ACC[1]+8*h+2*r+1}")
                vm.op(f"buffer_store_dwordx4 {vr(112+4*h,4)}, v5, {S['ws']}, s54 offen sc1")
                if h < 3: a("s_add_u32 s54, s54, 65536")
            a("s_branch La_kvd")
        else:
            a(f"s_add_u32 s54, s54, {hex(WS_V)}")
            a(f"v_and_b32 v6, 15, v{vLANE}\nv_lshlrev_b32 v6, 4, v6\nv_bfe_u32 v7, v{vLANE}, 5, 1\nv_lshl_add_u32 v6, v7, 8, v6\nv_bfe_u32 v7, v{vLANE}, 4, 1\nv_lshl_add_u32 v6, v7, 16, v6")
            for h in range(4):
                for r in range(4): a(f"v_cvt_pk_bf16_f32 v{112+4*h+r}, v{ACC[1]+8*h+2*r}, v{ACC[1]+8*h+2*r+1}")
                vm.op(f"buffer_store_dwordx4 {vr(112+4*h,4)}, v6, {S['ws']}, s54 offen offset:{512*(h&1)} sc1")
                if h == 1: a("s_add_u32 s54, s54, 131072")
    a("La_kvd:")
    stamp(a, 3)
    a(f"s_lshl_b32 s57, s{sW}, 10\ns_add_u32 s57, s57, {L_QX}\nv_add_u32 v7, s57, v{vL16}")
    a(f"s_lshl_b32 s58, s{sC}, 6\ns_add_u32 s58, s58, s{sT32}")
    flag_off(a, 51, 58, WS_FKV)
    tr_addr(a, 10, 12, True, 6, False)
    a(f"v_add_u32 v10, {L_WQ}, v10")
    a("s_barrier")
    WQ = [96, 100, 104, 108]
    early, late = att_setup(); fill = early + late; assert len(early) >= 12*5
    def rdQ(ks): return [(f"ds_read_b64_tr_b16 {vr(WQ[ks&3]+2*st,2)}, v10 offset:{1024*ks+512*st}", ("q", ks)) for st in range(2)]
    lg.reset()
    for x in rdQ(0) + rdQ(1) + rdQ(2): lg.op(*x)
    for ks in range(32):
        if ks + 3 < 32: [lg.op(*x) for x in rdQ(ks+3)]
        lg.wait(("q", ks))
        a(f"v_mfma_f32_32x32x16_bf16 {vr(ACC[0],16)}, {vr(WQ[ks&3],4)}, {vr(AF+4*ks,4)}, {vr(ACC[0],16)}")
        if ks == OPT.get("kvflag", 8): set_flag(a, vm, "s51", vZ, 8)
        else:
            for x in fill[:6]: a(x)
            fill = fill[6:]
    for x in fill: a(x)
    a(f"s_mov_b32 s53, {hx(0.25*LOG2E)}")
    for r in range(16): a(f"v_mul_f32 v{ACC[0]+r}, s53, v{ACC[0]+r}")
    for r in range(8): a(f"v_cvt_pk_bf16_f32 v{96+r}, v{ACC[0]+2*r}, v{ACC[0]+2*r+1}")
    a("ds_write_b128 v7, v[96:99]\nds_write_b128 v7, v[100:103] offset:4096")
    if OPT.get("qj", 1):
        a(f"v_mov_b32 v9, {L_SCR+264}\nv_mov_b32 v10, 1\ns_waitcnt lgkmcnt(0)\ns_mov_b64 exec, 1\nds_add_u32 v9, v10\ns_mov_b64 exec, -1")
        att_first(a, vm, OPT.get("fk", 0))
        q_join(a); att_q(a)
    else:
        a("s_waitcnt lgkmcnt(0)\ns_barrier")
        att_q(a)
        att_first(a, vm, OPT.get("fk", 0))

def active2(a):
    vm = Track(a, "vmcnt", 63); lg = Track(a, "lgkmcnt", 15)
    sT32, AF = 67, 128
    if OPT.get("ap", 1) & 1: a("s_setprio 1")
    ACC, WF, XR, GA, G2, XF = 16, [96, 100, 104, 108], vXR, 48, 64, 80
    a(f"s_getreg_b32 s50, hwreg(HW_REG_XCC_ID)\ns_and_b32 s50, s50, 15\ns_lshl_b32 s50, s50, 1\ns_add_u32 s50, s50, s{sTAG}\nv_cmp_ne_u32 vcc, s50, v{vXR+8}\nv_bfe_u32 v9, v{vLANE}, 5, 1\ns_cmp_eq_u64 vcc, 0\ns_cselect_b32 s{sLOC}, 1, 0")
    for q in range(4):
        for h in range(2): a(f"v_lshlrev_b32 v{XF+4*q+2*h}, 16, v{XR+2*q+h}\nv_and_b32 v{XF+4*q+2*h+1}, 0xffff0000, v{XR+2*q+h}")
    a(f"s_lshl_b32 s57, s{sT32}, 15\ns_lshl_b32 s58, s{sC}, 11\ns_add_u32 s57, s57, s58\ns_add_u32 s58, s57, {hex(WS_Y)}\ns_add_u32 s57, s57, {hex(WS_X1)}")
    a(f"s_lshl_b32 s54, s{sC}, 14\ns_lshl_b32 s55, s{sT32}, 8\ns_add_u32 s54, s54, s55\ns_add_u32 s54, s54, {hex(WS_STATS)}")
    a(f"s_lshl_b32 s55, s{sT32}, 4\ns_add_u32 s55, s55, s{sC}")
    flag_off(a, 56, 55, WS_FX1, LF())
    a(f"s_lshl_b32 s55, s{sT32}, {11-LF()}\ns_add_u32 s55, s55, {hex(WS_FX1)}")
    tr_addr(a, 10, 11, True, 6, False)
    for r in range(16): a(f"v_mov_b32 v{ACC+r}, 0")
    poll_addr(a, 5, LF())
    a(f"s_lshl_b32 s52, s{sT32}, {12-LF()}\ns_add_u32 s52, s52, {hex(WS_FO)}")
    stamp(a, 6, 8)
    set_flag(a, vm, "s64", vZ, 8, RO())
    stamp(a, 7); stamp(a, 7, 8)
    if OPT.get("ft", 1):
        a(f"s_cmp_eq_u32 s{sLOC}, 0\ns_cbranch_scc1 La_noft\nv_and_b32 v12, 1, v{vLANE}\nv_lshlrev_b32 v12, 7, v12\ns_mov_b64 exec, 3")
        a(f"buffer_load_dword v13, v12, {S['ws']}, s55 offen sc1\ns_add_u32 s53, s55, {hex(WS_FH-WS_FX1)}\nbuffer_load_dword v13, v12, {S['ws']}, s53 offen sc1\ns_mov_b64 exec, -1\nLa_noft:")
    if OPT.get("b5e", 0):
        a(f"s_sleep {OPT['b5e']}")
        sig_regs(a, 126, 127); sig(a, "b5b", 126, 127)
    poll(a, vm, "0xffffffff", 5, "s52", 11, OPT.get("fo", 25) - OPT.get("b5e", 0))
    stamp(a, 8); stamp(a, 0, 2)
    a(f"s_lshl_b32 s52, s{sT32}, 15\ns_add_u32 s52, s52, {hex(WS_O)}")
    OL = rot_loads(a, vm, 52, AF, "o")
    for _ in range(OPT.get("b5b", 12)): vm.op(*next(OL)[1])
    if not OPT.get("b5e", 0): sig_regs(a, 126, 127); sig(a, "b5b", 126, 127)
    for _ in range(12 - OPT.get("b5b", 12)): vm.op(*next(OL)[1])
    a(f"v_lshlrev_b32 v6, 2, v{vLANE}\nv_lshlrev_b32 v5, 4, v9\nv_add_u32 v5, {L_GA}, v5")
    def rdWo(ks): return [(f"ds_read_b64_tr_b16 {vr(WF[ks&3]+2*st,2)}, v10 offset:{L_WO+1024*ks+512*st}", ("w", ks)) for st in range(2)]
    lg.reset()
    for x in rdWo(0) + rdWo(1) + rdWo(2): lg.op(*x)
    for ks in range(32):
        if ks + 3 < 32:
            for x in rdWo(ks+3): lg.op(*x)
        if ks == 28:
            lg.wait(("w", 31))
            a("s_barrier")
            for q in range(4): a(f"ds_read_b128 {vr(GA+4*q,4)}, v5 offset:{32*q}")
            for q in range(4): a(f"ds_read_b128 {vr(G2+4*q,4)}, v5 offset:{128+32*q}")
        lg.wait(("w", ks)); vm.wait(("o", ks))
        a(f"v_mfma_f32_32x32x16_bf16 {vr(ACC,16)}, {vr(WF[ks&3],4)}, {vr(AF+4*ks,4)}, {vr(ACC,16)}")
        if ks + 12 < 32: vm.op(*next(OL)[1])
        if ks == 19 and OPT.get("early", 0): sig(a, "b5c", 126, 127, lg)
        if ks % 4 == 0 or ks == 31: stamp(a, 1 + (ks+1)//4, 2)
    stamp(a, 10, 2)
    a("s_waitcnt lgkmcnt(4)")
    for r in range(16): a(f"v_fmac_f32 v{XF+r}, v{ACC+r}, v{GA+r}")
    a("s_waitcnt lgkmcnt(0)")
    for r in range(16): a(f"v_mul_f32 v{ACC+r}, v{XF+r}, v{G2+r}")
    for r in range(8): a(f"v_cvt_pk_bf16_f32 v{32+r}, v{ACC+2*r}, v{ACC+2*r+1}")
    vm.op(f"buffer_store_dwordx4 v[32:35], v{vL16}, {S['ws']}, s58 offen{RY()}"); vm.op(f"buffer_store_dwordx4 v[36:39], v{vL16}, {S['ws']}, s58 offen offset:1024{RY()}")
    a(f"v_pk_add_f32 v[48:49], {vr(XF,2)}, {vr(XF+2,2)}\nv_pk_mul_f32 v[50:51], {vr(XF,2)}, {vr(XF,2)}\nv_pk_fma_f32 v[50:51], {vr(XF+2,2)}, {vr(XF+2,2)}, v[50:51]")
    for r in range(4, 16, 2): a(f"v_pk_add_f32 v[48:49], v[48:49], {vr(XF+r,2)}\nv_pk_fma_f32 v[50:51], {vr(XF+r,2)}, {vr(XF+r,2)}, v[50:51]")
    a("v_add_f32 v48, v48, v49\nv_add_f32 v49, v50, v51")
    for r in range(8): a(f"v_cvt_pk_bf16_f32 v{40+r}, v{XF+2*r}, v{XF+2*r+1}")
    a("v_permlane32_swap_b32 v48, v49\nv_add_f32 v48, v48, v49")
    vm.op(f"buffer_store_dword v48, v6, {S['ws']}, s54 offen{RY()}")
    vm.op(f"buffer_store_dwordx4 v[40:43], v{vL16}, {S['ws']}, s57 offen sc1"); vm.op(f"buffer_store_dwordx4 v[44:47], v{vL16}, {S['ws']}, s57 offen offset:1024 sc1")
    stamp(a, 11, 2)
    ACC, WF, WH, ST = 16, [80, 92, 104], [116, 120], 240
    vF, vH = [10, 11, 12, 13], [4, 7, 14, 15]
    tr_addr(a, 10, 11, True, 6, False)
    a(f"v_add_u32 v10, {L_W1}, v10\nv_add_u32 v11, 0x8000, v10\nv_add_u32 v12, 0x10000, v10\nv_add_u32 v13, 0x18000, v10")
    half_tr_addr(a, 4, 7)
    a(f"v_add_u32 v4, {L_W1}, v4\nv_add_u32 v7, 0x8000, v4\nv_add_u32 v14, 0x10000, v4\nv_add_u32 v15, 0x18000, v4")
    a(f"v_and_b32 v8, 16, v0\nv_cmp_eq_u32 vcc, 0, v8\nv_mov_b32 v8, 0xeeeeeeee\nv_mov_b32 v5, 0x44444444\nv_cndmask_b32 v8, v8, v5, vcc")
    for r in range(64): a(f"v_mov_b32 v{ACC+r}, 0")
    poll_addr(a, 5, LF())
    set_flag_rg(a, vm, "s56", 9)
    stamp(a, 9); stamp(a, 12, 2)
    poll(a, vm, "0xffff", 5, "s55", 125, OPT.get("fx", 2))
    stamp(a, 10); stamp(a, 0, 3)
    a(f"s_lshl_b32 s52, s{sT32}, 15\ns_add_u32 s52, s52, {hex(WS_Y)}")
    a(f"s_lshl_b32 s54, s{sT32}, 8\ns_add_u32 s54, s54, {hex(WS_STATS)}")
    YL = rot_loads(a, vm, 52, AF, "y")
    for _ in range(4): vm.op(*next(YL)[1])
    for q in range(16):
        vm.op(f"buffer_load_dword v{ST+q}, v6, {S['ws']}, s54 offen sc1", "st"); a("s_add_u32 s54, s54, 16384")
    for _ in range(8): vm.op(*next(YL)[1])
    lg.reset()
    def rdW1(ks): return [(x, ("w", ks)) for x in w1_reads(ks//2, ks & 1, WF[ks % 3], vF)]
    for x in rdW1(0) + rdW1(1): lg.op(*x)
    TT, UB = 128, 184
    side = {}
    side[(6, 0)] = ["v_mov_b32 v125, v124", f"v_bfe_u32 v5, v{vLANE}, 5, 1", "v_lshlrev_b32 v9, 7, v5", "v_permlane32_swap_b32 v124, v125"]
    side[(6, 1)] = [f"v_add_u32 v9, {L_UW}, v9", f"v_mul_f32 v124, {hx(1/512)}, v124", f"v_mul_f32 v125, {hx(1/512)}, v125", "v_fma_f32 v125, -v124, v124, v125"]
    side[(6, 2)] = ["v_max_f32 v125, 0, v125", f"v_add_f32 v125, {hx(1e-5)}, v125", "v_rsq_f32 v125, v125"]
    side[(7, 0)] = [f"v_mul_f32 v5, {hx(-LOG2E)}, v125", "v_mul_f32 v125, v5, v124", "v_sub_f32 v125, 0, v125", "v_mov_b32 v124, v5"]
    side[(7, 1)] = [f"s_lshl_b32 s55, s{sT32}, 4", f"s_add_u32 s55, s55, s{sC}", f"s_lshr_b32 s50, s55, {LF()}", "s_lshl_b32 s50, s50, 7", f"s_and_b32 s56, s55, {(1 << LF()) - 1}"]
    side[(7, 2)] = ["s_lshl_b32 s56, s56, 2", "s_add_u32 s56, s56, s50", f"s_add_u32 s56, s56, {hex(WS_FH)}"]
    side[(12, 0)] = [f"s_mul_i32 s52, s{sT32}, {112*1024}", f"s_mul_i32 s53, s{sC}, 7168", "s_add_u32 s52, s52, s53", f"s_add_u32 s52, s52, {hex(WS_H)}"]
    if ONEWAY(): side[(13, 2)] = ["uwrd"]; side[(15, 1)] = ["uwck"]
    for m in range(7):
        ks = 16 + 2*m
        rw = lambda j: f"ds_read_b128 {vr(TT+4*j,4)}, v9 offset:{256*(j//4)+64+16*(j%4)}"
        ru = lambda j: f"ds_read_b128 {vr(UB+4*(j&1),4)}, v9 offset:{256*(j//4)+16*(j%4)}"
        fm = lambda j: [f"v_fmac_f32 v{TT+4*j+r}, v125, v{UB+4*(j&1)+r}" for r in range(4)]
        side.setdefault((ks+2, 1), []).extend([f"wait{ks+1}"] + fm(2*m))
        side.setdefault((ks+2, 2), []).extend(fm(2*m+1))
        side.setdefault((ks, 2), []).append(rw(2*m))
        side.setdefault((ks+1, 2), []).extend([ru(2*m), rw(2*m+1), ru(2*m+1)])
    for kp in range(16):
        for e in range(2):
            ks = 2*kp + e
            R = rdW1(ks+2) if ks + 2 < 32 else []
            if e == 0: R = [(x, ("h", kp)) for x in w1_half_reads(kp, WH[kp & 1], vH)] + R
            lg.wait(("w", ks)); vm.wait(("y", ks))
            for nt in range(3):
                a(f"v_mfma_f32_32x32x16_bf16 {vr(ACC+16*nt,16)}, {vr(WF[ks%3]+4*nt,4)}, {vr(AF+4*ks,4)}, {vr(ACC+16*nt,16)}")
                [lg.op(*x) for x in R[3*nt:3*nt+3]]
                if nt >= 1:
                    j = 12 + 2*ks + nt - 1
                    if j < 32: vm.op(*next(YL)[1])
                if ks in (4, 5):
                    for q in (((0, 8), (1, 9), (2, 10)), ((3, 11), (4, 12), (5, 13)), ((6, 14), (7, 15)))[nt] if ks == 4 else (((0, 4), (1, 5), (2, 6), (3, 7)), ((0, 2), (1, 3)), ())[nt]:
                        a(f"v_add_f32 v{ST+q[0]}, v{ST+q[0]}, v{ST+q[1]}")
                    if ks == 5 and nt == 2: a(f"v_add_f32 v124, v{ST}, v{ST+1}")
                for x in side.get((ks, nt), []):
                    if x.startswith("ds_"): lg.op(x, ("u", ks))
                    elif x.startswith("wait"): lg.wait(("u", int(x[4:])))
                    elif x == "uwrd": lg.op(f"ds_read_b32 v5, v126 offset:{4*CNT['uw']}", "cnt")
                    elif x == "uwck": lg.wait("cnt"); await_(a, "uw", 126, 5, True)
                    else: a(x)
            if e == 1:
                lg.wait(("h", kp))
                a(f"v_smfmac_f32_32x32x32_bf16 {vr(ACC+48,16)}, {vr(WH[kp&1],4)}, {vr(AF+8*kp,8)}, v8")
                if kp % 2 == 0 or kp == 15: stamp(a, 1 + (kp+1)//2, 3)
                if kp == OPT.get("b6b", 4): sig(a, "b6b", 126, 127, lg)
    sig(a, "b7", 126, 127)
    stamp(a, 11)
    E = 80
    for r in range(8): a(f"v_add_f32 v{ACC+48+r}, v{ACC+48+r}, v{ACC+56+r}")
    for nt in range(4):
        t = TT + 16*nt; acc = ACC + 16*nt; n = 16 if nt < 3 else 8
        for r in range(0, n, 2): a(f"v_pk_fma_f32 {vr(acc+r,2)}, {vr(acc+r,2)}, v[124:125], {vr(t+r,2)} op_sel:[0,0,0] op_sel_hi:[1,0,1]")
        for r in range(n): a(f"v_exp_f32 v{E+r}, v{acc+r}")
        for r in range(0, n, 2): a(f"v_pk_add_f32 {vr(E+r,2)}, {vr(E+r,2)}, 1.0 op_sel_hi:[1,0]")
        for r in range(n): a(f"v_rcp_f32 v{E+r}, v{E+r}")
        for r in range(0, n, 2): a(f"v_pk_mul_f32 {vr(acc+r,2)}, {vr(acc+r,2)}, {vr(E+r,2)}")
        o = 208 + 8*nt
        for r in range(n//2): a(f"v_cvt_pk_bf16_f32 v{o+r}, v{acc+2*r}, v{acc+2*r+1}")
        if nt == 2: a("s_add_u32 s52, s52, 4096")
        vm.op(f"buffer_store_dwordx4 {vr(o,4)}, v{vL16}, {S['ws']}, s52 offen offset:{2048*(nt&1)}{RG()}")
        if nt < 3: vm.op(f"buffer_store_dwordx4 {vr(o+4,4)}, v{vL16}, {S['ws']}, s52 offen offset:{2048*(nt&1)+1024}{RG()}")
        stamp(a, 10 + nt, 3)
        if nt == 1: vm.q = [("ha", 0)]*len(vm.q)
        if nt == OPT.get("fa", 2) and OPT.get("h2", 0):
            vm.wait(("ha", 0))
            a(f"v_mov_b32 v9, s{sTAG}\ns_mov_b64 exec, 1")
            vm.op(f"buffer_store_dword v9, v{vZ}, {S['ws']}, s56 offen sc1")
            a(f"s_mov_b64 exec, -1\ns_add_u32 s56, s56, {FH_B}")
    stamp(a, 14, 3)
    ACC, WF, GB, XR, NR = [16, 32], [48, 56, 88], 64, 80, 32
    sTT, sKH, sT5, sF5 = 54, 55, 57, 58
    a(f"s_and_b32 s{sTT}, s{sW}, 1\ns_lshr_b32 s{sKH}, s{sW}, 1")
    a(f"s_lshr_b32 s52, s{sC}, 3\ns_lshl_b32 s52, s52, 1\ns_lshl_b32 s{sT5}, s{sTB}, 2\ns_add_u32 s{sT5}, s{sT5}, s52\ns_add_u32 s{sT5}, s{sT5}, s{sTT}")
    a(f"s_and_b32 s{sF5}, s{sC}, 7\ns_lshl_b32 s{sF5}, s{sF5}, 1\ns_add_u32 s{sF5}, s{sF5}, s{sKH}")
    tr_addr(a, 10, 11, True, 7, True)
    a(f"s_lshl_b32 s52, s{sKH}, 6\nv_xor_b32 v10, s52, v10\ns_lshl_b32 s52, s{sKH}, 13\nv_add_u32 v10, s52, v10\nv_xor_b32 v11, 64, v10")
    for r in range(32): a(f"v_mov_b32 v{16+r}, 0")
    poll_addr(a, 5, LF())
    a(f"s_lshl_b32 s52, s{sT5}, {11-LF()}\ns_lshl_b32 s53, s{sKH}, {10-LF()}\ns_add_u32 s52, s52, s53\ns_add_u32 s52, s52, {hex(WS_FH)}")
    a(f"s_lshl_b32 s61, s{sT5}, 15\ns_lshl_b32 s59, s{sF5}, 11\ns_add_u32 s61, s61, s59\ns_add_u32 s61, s61, {hex(WS_X1)}")
    H2 = OPT.get("h2", 0)
    a(f"s_add_u32 s62, s52, {FH_B}")
    if H2:
        a(f"s_mov_b64 exec, 0xff")
        vm.op(f"buffer_load_dword v6, v5, {S['ws']}, s52 offen sc1", "fa")
        a("s_mov_b64 exec, -1")
        set_flag_rg(a, vm, "s56", 9)
        stamp(a, 12)
        a(f"s_mov_b64 exec, 0xff\nv_cmp_ne_u32 vcc, s{sTAG}, v6\ns_mov_b64 exec, -1\ns_cbranch_vccz La_haok")
        poll(a, vm, "0xff", 5, "s52", 6, 2)
        a("La_haok:")
        vm.q = [None]
    else:
        set_flag_rg(a, vm, "s56", 9)
        stamp(a, 12)
        poll(a, vm, "0xff", 5, "s52", 6, OPT.get("fh", 2))
    stamp(a, 13); stamp(a, 0, 4)
    a(f"s_mul_i32 s52, s{sT5}, {112*1024}\ns_mul_i32 s53, s{sKH}, {56*1024}\ns_add_u32 s52, s52, s53\ns_add_u32 s52, s52, {hex(WS_H)}")
    def ldH(ks):
        p, j = h_pj(ks)
        if j in (0, 4): a(f"s_add_u32 s53, s{sR}, {p}\ns_and_b32 s53, s53, 7\ns_mul_i32 s53, s53, 7168\ns_add_u32 s53, s53, s52" + ("\ns_add_u32 s53, s53, 4096" if j else ""))
        vm.op(f"buffer_load_dwordx4 {vr(AF+4*(ks%NR),4)}, v{vL16}, {S['ws']}, s53 offen offset:{1024*(j%4)}{RL()}", ("h", ks))
    PF = OPT.get('pf5', 12)
    for ks in range(PF):
        ldH(ks)
        if ks == 7: a("s_barrier")
    slot = lambda s: s if s < 9 else s - 9
    def rdW2(ks):
        s, k = ks // 4, ks % 4
        return [(f"ds_read_b64_tr_b16 {vr(WF[ks%3]+4*n+2*st,2)}, v{12+n} offset:{2048*k+1024*st}", ("w", ks)) for n in range(2) for st in range(2)]
    def setslot(s): a(f"v_add_u32 v12, {16384*slot(s)}, v10\nv_add_u32 v13, {16384*slot(s)}, v11")
    lg.reset(); setslot(0)
    for x in rdW2(0) + rdW2(1): lg.op(*x)
    for ks in range(56):
        n = ks + 2
        lg.wait(("w", ks))
        if ks in (11, 19): sig(a, "b9" if ks == 11 else "b10", 126, 127, lg)
        if ONEWAY() and n + 2 in (36, 48): lg.op(f"ds_read_b32 v125, v126 offset:{4*CNT['b11' if n + 2 == 36 else 'b12']}", "cnt")
        if n < 56 and n % 4 == 0:
            if n // 4 in (9, 12):
                lg.wait("cnt"); await_(a, "b11" if n == 36 else "b12", 126, 125, True)
            setslot(n // 4)
        vm.wait(("h", ks))
        a(f"v_mfma_f32_32x32x16_bf16 {vr(ACC[0],16)}, {vr(WF[ks%3],4)}, {vr(AF+4*(ks%NR),4)}, {vr(ACC[0],16)}")
        if n < 56: [lg.op(*x) for x in rdW2(n)]
        a(f"v_mfma_f32_32x32x16_bf16 {vr(ACC[1],16)}, {vr(WF[ks%3]+4,4)}, {vr(AF+4*(ks%NR),4)}, {vr(ACC[1],16)}")
        if H2 and ks == OPT.get("fb", 10):
            a("s_mov_b64 exec, 0xff"); vm.op(f"buffer_load_dword v6, v5, {S['ws']}, s62 offen sc1", "fb"); a("s_mov_b64 exec, -1")
        if H2 and ks + PF == 32:
            vm.wait("fb")
            a(f"s_mov_b64 exec, 0xff\nv_cmp_ne_u32 vcc, s{sTAG}, v6\ns_mov_b64 exec, -1\ns_cbranch_vccz La_hbok")
            q0 = list(vm.q)
            poll(a, vm, "0xff", 5, "s62", 6, 0)
            vm.q = q0
            a("La_hbok:")
        if ks + PF < 56: ldH(ks + PF)
        if ks == 44:
            for q in range(2): vm.op(f"buffer_load_dwordx4 {vr(XR+4*q,4)}, v{vL16}, {S['ws']}, s61 offen offset:{1024*q} sc1", "x1")
        if ks % 4 == 3: stamp(a, 1 + ks//4, 4)
    stamp(a, 14)
    vm.wait("x1")
    a(f"s_xor_b32 s52, s{sW}, 2\ns_lshl_b32 s52, s52, 12\ns_add_u32 s52, s52, {16384*5}\nv_add_u32 v5, s52, v{vL16}")
    a(f"s_lshl_b32 s52, s{sW}, 12\ns_add_u32 s52, s52, {16384*5}\nv_add_u32 v6, s52, v{vL16}")
    a(f"v_bfe_u32 v9, v{vLANE}, 5, 1\nv_lshlrev_b32 v7, 4, v9\ns_lshl_b32 s52, s{sKH}, 7\ns_add_u32 s52, s52, {L_GB}\nv_add_u32 v7, s52, v7")
    for q in range(4): a(f"ds_read_b128 {vr(GB+4*q,4)}, v7 offset:{32*q}")
    XF = 96
    for r in range(8): a(f"v_lshlrev_b32 v{XF+2*r}, 16, v{XR+r}\nv_and_b32 v{XF+2*r+1}, 0xffff0000, v{XR+r}")
    for q in range(4): a(f"ds_write_b128 v5, {vr(ACC[1]+4*q,4)} offset:{1024*q}")
    a("s_waitcnt lgkmcnt(0)\ns_barrier")
    for q in range(4): a(f"ds_read_b128 {vr(ACC[1]+4*q,4)}, v6 offset:{1024*q}")
    a(f"v_and_b32 v7, 31, v{vLANE}\nv_lshlrev_b32 v8, 10, v7\nv_lshl_add_u32 v8, v9, 4, v8")
    a(f"s_lshl_b32 s52, s{sT5}, 15\ns_lshl_b32 s53, s{sF5}, 6\ns_add_u32 s52, s52, s53")
    for q in range(4):
        a(f"s_waitcnt lgkmcnt({3-q})")
        for r in range(4*q, 4*q+4): a(f"v_add_f32 v{ACC[0]+r}, v{ACC[0]+r}, v{ACC[1]+r}")
        for r in range(4*q, 4*q+4): a(f"v_fmac_f32 v{XF+r}, v{ACC[0]+r}, v{GB+r}")
    for r in range(8): a(f"v_cvt_pk_bf16_f32 v{64+r}, v{XF+2*r}, v{XF+2*r+1}")
    ofl = ['', ' sc1', ' nt', ' sc0 sc1', ' sc1 nt'][OPT.get('osc', 0)]
    if OPT.get("otr", 0):
        a(f"s_mul_i32 s53, s{sW}, 2560\ns_add_u32 s53, s53, {16384*6}\nv_mul_u32_u24 v5, 80, v7\nv_lshl_add_u32 v5, v9, 4, v5\nv_add_u32 v5, s53, v5")
        a(f"v_lshrrev_b32 v6, 2, v{vLANE}\nv_and_b32 v7, 3, v{vLANE}\nv_lshlrev_b32 v8, 10, v6\nv_lshl_add_u32 v8, v7, 4, v8\nv_mul_u32_u24 v6, 80, v6\nv_lshl_add_u32 v6, v7, 4, v6\nv_add_u32 v6, s53, v6")
        for p in range(2):
            a(f"v_permlane32_swap_b32 v{64+4*p}, v{64+4*p+2}\nv_permlane32_swap_b32 v{64+4*p+1}, v{64+4*p+3}")
            a(f"ds_write_b128 v5, {vr(64+4*p,4)} offset:{32*p}")
        a("s_add_u32 s53, s52, 16384\ns_waitcnt lgkmcnt(0)")
        for p in range(2): a(f"ds_read_b128 {vr(72+4*p,4)}, v6 offset:{1280*p}")
        for p in range(2):
            a(f"s_waitcnt lgkmcnt({1-p})")
            vm.op(f"buffer_store_dwordx4 {vr(72+4*p,4)}, v8, {S['out']}, s{52+p} offen{ofl}")
    else:
        for p in range(2):
            a(f"v_permlane32_swap_b32 v{64+4*p}, v{64+4*p+2}\nv_permlane32_swap_b32 v{64+4*p+1}, v{64+4*p+3}")
            vm.op(f"buffer_store_dwordx4 {vr(64+4*p,4)}, v8, {S['out']}, s52 offen offset:{32*p}{ofl}")

def wq_loop(a):
    a(f"v_lshrrev_b32 v4, 2, v{vLANE}\nv_mul_u32_u24 v4, 3072, v4\nv_and_b32 v5, 3, v{vLANE}\nv_lshl_add_u32 v4, v5, 4, v4")
    a(f"s_lshl_b32 s55, s{sR}, 2\ns_add_u32 s55, s55, s67\ns_lshl_b32 s53, s67, 10\ns_add_u32 s53, s53, {L_WQ}\ns_lshl_b32 s56, s{sC}, 6\ns_mov_b32 s51, 8\nLh_ql:")
    a(f"s_and_b32 s52, s55, 31\ns_mul_i32 s52, s52, {16*3072}\ns_mov_b32 m0, s53\ns_add_u32 s52, s52, s56")
    a(f"buffer_load_dwordx4 v4, {S['wqkv']}, s52 offen lds")
    a(f"s_add_u32 s55, s55, 4\ns_add_u32 s53, s53, 4096\ns_sub_u32 s51, s51, 1\ns_cmp_lg_u32 s51, 0\ns_cbranch_scc1 Lh_ql")

def helper(a):
    vm = Track(a, "vmcnt", 63)
    sH, sCol = 67, 66
    a("Lh_b2:")
    a("s_waitcnt vmcnt(0) lgkmcnt(0)\ns_barrier")
    if OPT.get("whalf", 0):
        a(f"s_add_u32 s55, s{sH}, {4*OPT['whalf']}\ns_mov_b32 s51, {8-OPT['whalf']}\ns_mov_b32 s56, s59\ns_mov_b32 s57, s60")
        wkv_loop(a, "Lh_wl2")
    if OPT.get("st", 7) & 2:
        a(f"s_lshl_b32 s57, s2, 2\ns_add_u32 s57, s57, s{sH}\ns_lshl_b32 s58, s57, 9\ns_mul_i32 s57, s57, {5*128}\ns_add_u32 s57, s57, {9216*128}")
        for n in range(3): a(stouch("w1", 57, n))
    if OPT.get("whalf", 0): a("s_waitcnt vmcnt(0)")
    a("s_barrier")
    wq_loop(a)
    if OPT.get("st", 7) & 2:
        for n in range(3, 5): a(stouch("w1", 57, n))
        a(stouch("wo", 58, 0))
    a("s_waitcnt vmcnt(0)")
    if OPT.get("touch", 0) == 1: mall_touch(a)
    stamp(a, 2)
    a("s_barrier")
    if OPT.get("st", 7) & 2:
        for n in range(1, 4): a(stouch("wo", 58, n))
    early, late = att_setup()
    for x in early + late: a(x)
    if OPT.get("hearly", 1):
        att_first(a, vm, OPT.get("fkh", 24))
        if OPT.get("qj", 1): q_join(a)
        else: a("s_barrier")
        att_q(a)
    else:
        a("s_barrier")
        att_q(a)
        att_first(a, vm, OPT.get("fk", 0))

def helper2(a):
    vm = Track(a, "vmcnt", 63); lg = Track(a, "lgkmcnt", 15)
    sH = 67
    MF = OPT.get("mf", 0)
    if MF:
        a(f"s_sub_u32 s52, s{sI}, 8\ns_cmp_ge_u32 s52, 16\ns_cbranch_scc1 Lh_nomod1")
        mod_partial(a, vm, vMOD)
        if MF == 2: mod_join(a, vm, 66, "Lh_nomod1")
        a("Lh_nomod1:")
    stamp(a, 6, 8)
    set_flag(a, vm, "s64", vZ, 8, RO())
    stamp(a, 7); stamp(a, 7, 8)
    vF, vH = 13, 14
    a(f"s_sub_u32 s52, s{sI}, 8\ns_cmp_ge_u32 s52, 16\ns_cbranch_scc1 Lh_nomod2")
    if not MF: mod_partial(a, vm, vMOD)
    if MF < 2: mod_join(a, vm, 66, "Lh_nomod2")
    a("Lh_nomod2:")
    def w2_touch():
        a(f"s_mul_i32 s52, s{sI}, 7\ns_lshl_b32 s53, s{sH}, 1\ns_add_u32 s52, s52, s53\ns_lshl_b32 s52, s52, 13\nv_lshlrev_b32 v5, 7, v{vLANE}")
        a(f"buffer_load_dword v248, v5, {S['w2']}, s52 offen\ns_add_u32 s52, s52, 8192\nbuffer_load_dword v248, v5, {S['w2']}, s52 offen")
    if OPT.get("w2s") == 1: w2_touch()
    sig_regs(a, 12, 13)
    await_(a, "b5b", 12, 14)
    a(f"v_lshlrev_b32 v4, 5, v{vLANE}\ns_lshl_b32 s52, s{sH}, 11\ns_add_u32 s52, s52, 4096")
    gran_poll(a, vm, [f"buffer_load_dwordx4 v[16:19], v4, {S['ws']}, s52 offen sc1", f"buffer_load_dwordx4 v[20:23], v4, {S['ws']}, s52 offen offset:16 sc1"], [16, 20], OPT.get("ng2", 0))
    for j, r in enumerate((16, 18, 20, 22)): a(f"v_lshlrev_b32 v{24+2*j}, 16, v{r}\nv_and_b32 v{25+2*j}, 0xffff0000, v{r}")
    a(f"s_cmp_eq_u32 s{sH}, 1\ns_cbranch_scc1 Lh_tabg")
    a(f"s_cmp_eq_u32 s{sH}, 3\ns_cselect_b32 s53, {hx(-1/LOG2E)}, 1.0")
    a(f"s_lshl_b32 s54, s{sC}, 2\ns_and_b32 s55, s{sC}, 7\ns_lshl_b32 s55, s55, 3\ns_lshl_b32 s56, s{sH}, 6\ns_cmp_eq_u32 s{sH}, 3\ns_cselect_b32 s54, s55, s54\ns_cselect_b32 s55, 8, 4")
    a(f"s_cselect_b32 s56, 256, s56\ns_add_u32 s56, s56, {L_TAB}")
    for r in range(8): a(f"v_mul_f32 v{24+r}, s53, v{24+r}")
    a(f"v_subrev_u32 v5, s54, v{vLANE}\nv_cmp_gt_u32 vcc, s55, v5\nv_lshlrev_b32 v5, 5, v5\nv_add_u32 v5, s56, v5")
    a("s_and_saveexec_b64 s[56:57], vcc\nds_write_b128 v5, v[24:27]\nds_write_b128 v5, v[28:31] offset:16\ns_mov_b64 exec, -1")
    a(f"s_cmp_lg_u32 s{sH}, 2\ns_cbranch_scc1 Lh_tabd")
    a("Lh_tabg:")
    a(f"v_lshrrev_b32 v5, 1, v{vLANE}\ns_lshl_b32 s53, s{sR}, 2\nv_subrev_u32 v5, s53, v5\nv_and_b32 v5, 31, v5\nv_lshlrev_b32 v5, 6, v5\nv_and_b32 v6, 1, v{vLANE}\nv_lshl_add_u32 v5, v6, 3, v5")
    a(f"s_and_b32 s53, s{sH}, 1\ns_lshl_b32 s53, s53, 4\ns_add_u32 s53, s53, {L_G}\nv_add_u32 v5, s53, v5")
    a("v_mov_b32 v17, v18\nv_mov_b32 v21, v22\nds_write_b64 v5, v[16:17]\nds_write_b64 v5, v[20:21] offset:32")
    a("Lh_tabd:")
    vW2 = 10
    a(f"v_lshrrev_b32 v{vW2}, 3, v{vLANE}\nv_lshlrev_b32 v{vW2}, 10, v{vW2}\nv_bfe_u32 v5, v{vLANE}, 4, 1\nv_lshlrev_b32 v5, 2, v5\nv_xor_b32 v5, v5, v{vLANE}\nv_and_b32 v5, 7, v5\nv_lshl_add_u32 v{vW2}, v5, 4, v{vW2}")
    a(f"s_lshl_b32 s58, s{sR}, 7\ns_lshl_b32 s59, s{sH}, 11")
    def w2_row(s):
        if s < 8:
            a(f"s_add_u32 s61, s{sR}, {s}\ns_and_b32 s61, s61, 7\ns_mul_i32 s61, s61, 7\ns_add_u32 s61, s61, s{sH}")
        else:
            a(f"s_add_u32 s60, s{sH}, {4*(s-8)}\ns_mul_i32 s61, s60, 43\ns_lshr_b32 s61, s61, 7\ns_mul_i32 s62, s61, 3\ns_sub_u32 s60, s60, s62")
            a(f"s_add_u32 s61, s61, s{sR}\ns_and_b32 s61, s61, 7\ns_mul_i32 s61, s61, 7\ns_add_u32 s61, s61, s60\ns_add_u32 s61, s61, 4")
        a("s_lshl_b32 s61, s61, 14\ns_add_u32 s61, s61, s58")
    NREG = OPT.get("nreg", 10); S0 = 14 - NREG; RB = 48
    def w2_reg(s):
        w2_row(s)
        for j in range(4):
            a(f"s_add_u32 s52, s61, {56*(j>>1)*16384+8192*(j&1)}")
            vm.op(f"buffer_load_dwordx4 {vr(RB+16*(s-S0)+4*j,4)}, v{vW2}, {S['w2']}, s52 offen", ("w2r", s))
    EARLY = list(range(14 - OPT.get("early", 0), 14))
    if EARLY:
        a("s_waitcnt lgkmcnt(0)"); await_(a, "b5c", 12, 14)
        for s_ in EARLY: w2_reg(s_)
    if OPT.get("w2s") == 2:
        a("s_waitcnt lgkmcnt(0)"); w2_touch()
    else: a("s_waitcnt lgkmcnt(0)")
    stamp(a, 8)
    a("s_barrier")
    def w2_stage(s, thr=None):
        sl = s if s < 9 else s - 9
        w2_row(s)
        for kh in range(2):
            for hf in range(2):
                a(f"s_add_u32 m0, s59, {16384*sl+8192*kh+1024*hf}\ns_add_u32 s52, s61, {56*kh*16384+8192*hf}")
                vm.op(f"buffer_load_dwordx4 v{vW2}, {S['w2']}, s52 offen lds", ("w2", s))
        if thr: vm.wait(("w2", s-1))
    W01 = OPT.get('w01', 2)
    if W01 == 0: w2_stage(0); w2_stage(1)
    ACC, GF, WF = 16, 32, 48
    a(f"v_bfe_u32 v9, v{vLANE}, 5, 1\nv_lshlrev_b32 v6, 5, v9\nv_and_b32 v5, 1, v{vLANE}\nv_lshl_add_u32 v6, v5, 4, v6\nv_add_u32 v6, {L_G}, v6")
    for r in range(16): a(f"v_mov_b32 v{ACC+r}, 0")
    GZ = OPT.get("gz", 1)
    for r in range(8): a(f"v_mov_b32 v{GF+r}, 0")
    a("s_mov_b32 s56, 3\ns_mov_b32 s57, 3")
    def rdG(e): a(("s_mov_b64 exec, s[56:57]\n" if GZ else "") + f"ds_read_b128 {vr(GF+4*e,4)}, v6 offset:{64*e}" + ("\ns_mov_b64 exec, -1" if GZ else ""))
    a(f"s_cmp_eq_u32 s{sH}, 3\ns_cbranch_scc1 Lh_uwh")
    tr_addr(a, 4, 5, True, 6, False)
    a(f"s_lshl_b32 s52, s{sH}, 10\ns_add_u32 s52, s52, {L_W1}\nv_add_u32 v4, s52, v4\ns_mov_b32 s51, 16")
    a("Lh_uwl:")
    for e in range(2):
        rdG(e)
        for st in range(2): a(f"ds_read_b64_tr_b16 {vr(WF+4*e+2*st,2)}, v4 offset:{3072*e+512*st}")
    a("v_add_u32 v4, 7168, v4\nv_add_u32 v6, 128, v6\ns_sub_u32 s51, s51, 1")
    for e in range(2):
        a(f"s_waitcnt lgkmcnt({3-3*e})")
        a(f"v_mfma_f32_32x32x16_bf16 {vr(ACC,16)}, {vr(WF+4*e,4)}, {vr(GF+4*e,4)}, {vr(ACC,16)}")
    a("s_cmp_lg_u32 s51, 0\ns_cbranch_scc1 Lh_uwl")
    a("s_branch Lh_uwd")
    a("Lh_uwh:")
    half_tr_addr(a, 4, 5)
    a(f"v_add_u32 v4, {L_W1+6144}, v4\ns_mov_b32 s51, 16")
    a(f"v_and_b32 v8, 16, v0\nv_cmp_eq_u32 vcc, 0, v8\nv_mov_b32 v8, 0xeeeeeeee\nv_mov_b32 v5, 0x44444444\nv_cndmask_b32 v8, v8, v5, vcc")
    a("Lh_uwhl:")
    for e in range(2): rdG(e)
    for st in range(2): a(f"ds_read_b64_tr_b16 {vr(WF+2*st,2)}, v4 offset:{256*st}")
    a("v_add_u32 v4, 7168, v4\nv_add_u32 v6, 128, v6\ns_sub_u32 s51, s51, 1\ns_waitcnt lgkmcnt(0)")
    a(f"v_smfmac_f32_32x32x32_bf16 {vr(ACC,16)}, {vr(WF,4)}, {vr(GF,8)}, v8")
    a("s_cmp_lg_u32 s51, 0\ns_cbranch_scc1 Lh_uwhl")
    a("s_nop 7\ns_nop 3")
    for r in range(8): a(f"v_add_f32 v{ACC+r}, v{ACC+r}, v{ACC+8+r}")
    a("Lh_uwd:")
    a(f"v_and_b32 v5, 1, v{vLANE}\nv_cmp_eq_u32 vcc, 1, v5\nv_mov_b32 v7, {hx(-LOG2E)}\nv_cndmask_b32 v7, 1.0, v7, vcc")
    a(f"v_lshlrev_b32 v6, 7, v9\nv_lshl_add_u32 v6, v5, 6, v6\ns_lshl_b32 s52, s{sH}, 8\ns_add_u32 s52, s52, {L_UW}\nv_add_u32 v6, s52, v6")
    a("s_nop 3")
    for r in range(16): a(f"v_mul_f32 v{ACC+r}, v{ACC+r}, v7")
    a("s_mov_b32 exec_lo, 3\ns_mov_b32 exec_hi, 3")
    for q in range(4): a(f"ds_write_b128 v6, {vr(ACC+4*q,4)} offset:{16*q}")
    a("s_mov_b64 exec, -1\ns_waitcnt lgkmcnt(0)")
    stamp(a, 9)
    if W01 == 2: w2_stage(0); w2_stage(1)
    if ONEWAY(): sig(a, "uw", 12, 13); await_(a, "uw", 12, 14)
    await_(a, "b6b", 12, 14)
    if W01 == 1: w2_stage(0); w2_stage(1)
    if OPT.get("e23", 0) and S0 == 4: w2_stage(2); w2_stage(3)
    if not OPT.get("now2"):
        for s in range(S0, 14):
            if s not in EARLY: w2_reg(s)
    await_(a, "b7", 12, 14)
    a(f"v_add_u32 v4, s59, v{vL16}\nv_add_u32 v5, 0x10000, v4\nv_add_u32 v6, 0x20000, v4")
    def w2_put(s):
        sl = s if s < 9 else s - 9
        for j in range(4): a(f"ds_write_b128 v{4 + sl//4}, {vr(RB+16*(s-S0)+4*j,4)} offset:{16384*(sl%4)+8192*(j>>1)+1024*(j&1)}")
    if not (OPT.get('e23', 0) and S0 == 4):
        for s in range(2, S0): w2_stage(s, True)
    for s in range(S0, 9):
        vm.wait(("w2r", s)); w2_put(s)
        if (s - S0) % 2 == 1: a("s_waitcnt lgkmcnt(4)")
    vm.wait_all()
    a("s_waitcnt lgkmcnt(0)")
    stamp(a, 12)
    a("s_barrier")
    if OPT.get("fast") and OPT.get("wb", 1):
        a(f"s_lshl_b32 s52, s{sC}, 2\ns_add_u32 s52, s52, s{sH}\ns_cmp_lg_u32 s52, 0\ns_cbranch_scc1 Lh_nowb\nbuffer_wbl2 sc1\nLh_nowb:")
    await_(a, "b9", 12, 14)
    for s in (9, 10, 11): w2_put(s)
    if ONEWAY(): a("s_waitcnt lgkmcnt(0)"); sig(a, "b11", 12, 13)
    await_(a, "b10", 12, 14)
    for s in (12, 13): w2_put(s)
    if not ONEWAY(): a("s_waitcnt lgkmcnt(8)\ns_barrier")
    a("s_waitcnt lgkmcnt(0)"); sig(a, "b12", 12, 13)
    a("s_barrier")

def diag_out(a, slot):
    if not DIAG: return
    stamp(a, 15)
    a("s_memrealtime s[52:53]\ns_waitcnt vmcnt(0) lgkmcnt(0)")
    a("s_mov_b64 exec, 1")
    for i in range(16):
        a(f"s_sub_u32 s{70+2*i}, s{70+2*i}, s3\nv_mov_b32 v{16+i}, s{70+2*i}")
    a("v_mov_b32 v32, s69\nv_mov_b32 v33, s52" if False else "v_mov_b32 v32, v250\nv_mov_b32 v33, s52")
    a(f"s_lshl_b32 s54, s2, 10\ns_lshl_b32 s55, s{sW}, 7\ns_add_u32 s54, s54, s55\ns_add_u32 s54, s54, {hex(WS_DIAG)}")
    for q in range(4): a(f"buffer_store_dwordx4 {vr(16+4*q,4)}, v{vZ}, {S['ws']}, s54 offen offset:{16*q}")
    a(f"buffer_store_dwordx2 v[32:33], v{vZ}, {S['ws']}, s54 offen offset:64")
    if OPT.get("dbgstart") and slot == 0:
        a(f"s_cmp_ge_u32 s2, 8\ns_cbranch_scc1 Ldiag{slot}\ns_cmp_lg_u32 s{sW}, 0\ns_cbranch_scc1 Ldiag{slot}\ns_lshl_b32 s54, s2, 2\ns_add_u32 s54, s54, 4")
        a(f"v_subrev_u32 v32, s{sTAG}, v250\nv_add_u32 v32, 1000, v32\nbuffer_store_dword v32, v{vZ}, {S['dbg']}, s54 offen")
        a(f"s_getreg_b32 s55, hwreg(HW_REG_XCC_ID)\ns_and_b32 s55, s55, 15\nv_mov_b32 v32, s55\ns_cmp_ge_u32 s2, 7\ns_cbranch_scc1 Ldiag{slot}\nbuffer_store_dword v32, v{vZ}, {S['dbg']}, s54 offen offset:32")
    if OPT.get("dbgout") and slot == 0:
        a(f"s_lshl_b32 s54, s2, 3\ns_add_u32 s54, s54, s{sW}\ns_cmp_lg_u32 s54, {OPT['dbgout']*8}\ns_cbranch_scc1 Ldiag{slot}")
        for i in range(1, 16): a(f"buffer_store_dword v{16+i}, v{vZ}, {S['dbg']}, 0 offen offset:{4*i}")
    a(f"Ldiag{slot}:")

def build():
    a = Asm()
    a("s_cmp_ge_u32 s2, 256\ns_cbranch_scc1 Lend")
    for nm in ("x", "dbg", "wmod", "c", "wqkv", "ws", "wo", "w1", "w2", "out"):
        a(f"s_load_dwordx2 {sr(SRD[nm],2)}, s[0:1], {KA[nm]}")
    if DIAG: a("s_memtime s[70:71]\ns_memrealtime s[72:73]")
    a(f"v_lshrrev_b32 v4, 6, v0\nv_and_b32 v{vLANE}, 63, v0\nv_mov_b32 v{vZ}, 0\nv_readfirstlane_b32 s{sW}, v4\nv_lshlrev_b32 v{vL16}, 4, v{vLANE}")
    a(f"s_getpc_b64 s[56:57]\nLpc:\ns_sub_u32 s56, s56, Lpc-{NAME}_kernel\ns_subb_u32 s57, s57, 0")
    a(f"s_and_b32 s{sX}, s2, 7\ns_lshr_b32 s{sI}, s2, 3\ns_sub_u32 s67, s{sW}, 4")
    a(f"s_cmp_lt_u32 s{sW}, 6\ns_cbranch_scc1 Le_nopf")
    a(f"s_lshl_b32 s58, s{sI}, 1\ns_add_u32 s58, s58, s67\ns_sub_u32 s58, s58, 2\ns_lshl_b32 s58, s58, 10\ns_min_u32 s58, s58, Lcode_end-{NAME}_kernel-1024\nv_add_u32 v5, s58, v{vL16}")
    a("global_load_dwordx4 v[16:19], v5, s[56:57]")
    a("Le_nopf:")
    if OPT.get('m216', 0):
        a(f"s_lshl_b32 s{sTB}, s{sX}, 1\ns_lshr_b32 s52, s{sI}, 4\ns_add_u32 s{sTB}, s{sTB}, s52\ns_and_b32 s{sR}, s{sI}, 7\ns_and_b32 s{sC}, s{sI}, 15")
    else:
        a(f"s_lshr_b32 s{sTB}, s{sX}, 1\ns_lshl_b32 s{sTB}, s{sTB}, 2\ns_lshr_b32 s52, s{sI}, 3\ns_add_u32 s{sTB}, s{sTB}, s52")
        a(f"s_and_b32 s{sR}, s{sI}, 7\ns_and_b32 s{sC}, s{sX}, 1\ns_lshl_b32 s{sC}, s{sC}, 3\ns_add_u32 s{sC}, s{sC}, s{sR}")
    for nm in ("x", "dbg", "wmod", "c", "wqkv", "ws"): a(f"s_mov_b32 s{SRD[nm]+2}, {hex(SZ[nm])}\ns_mov_b32 s{SRD[nm]+3}, 0x20000")
    a("s_memrealtime s[54:55]")
    if DIAG:
        a("s_waitcnt lgkmcnt(0)\ns_mov_b32 s3, s70\ns_mov_b32 s68, s72\nv_mov_b32 v250, s72")
        if OPT.get("rt"): a("s_mov_b32 s3, s72")
        for i in range(16): a(f"s_mov_b32 s{70+2*i}, s3")
    a(f"s_cmp_ge_u32 s{sW}, 4\ns_cbranch_scc1 Lp0_h\ns_cmp_lt_u32 s{sI}, 8\ns_cbranch_scc1 Lp0_mod\ns_cmp_ge_u32 s{sI}, 24\ns_cbranch_scc1 Lp0_warm")
    p0_ln(a)
    a("Lp0_h:")
    p0_helper(a)
    a("Lp0_mod:")
    p0_mod(a)
    a("Lp0_warm:")
    p0_warm(a)
    active(a)
    a("s_branch Latt")
    helper(a)
    a("Latt:")
    vm = Track(a, "vmcnt", 63)
    slow = attention(a, vm)
    a(f"s_cmp_ge_u32 s{sW}, 4\ns_cbranch_scc1 Lhelper2")
    active2(a)
    if OPT.get("hold"):
        a(f"Lhold:\ns_memrealtime s[52:53]\ns_waitcnt lgkmcnt(0)\ns_sub_u32 s52, s52, s{sTAG}\ns_cmp_lt_u32 s52, {OPT['hold']}\ns_cbranch_scc1 Lhold")
    if DIAG: a("v_mov_b32 v250, s68")
    diag_out(a, 0)
    a("s_endpgm")
    a("Lhelper2:")
    helper2(a)
    diag_out(a, 1)
    a("s_endpgm")
    a("; ==== attention fallback: true row maximum first, then exp(s - max)")
    slow(a)
    a("Lend:")
    return a

def emit(a):
    hdr = open(f"cdna_kernels/{NAME}.s.ref").read().split("\n")
    out = [l for l in hdr if l.startswith(";") and "@launch" not in l and "Override launch" not in l and "grid=ceil" not in l]
    out.append(f"; @launch grid=(256,1,1) block=(512,1,1) lds={LDS_SIZE}")
    out += """; One persistent launch, one 8-wave workgroup per CU (generated by gen/gen30.py).
;  P0  silu(c) @ w_mod (shift/scale part) and LayerNorm(x), spread over the workgroups; W_k/W_v slices -> LDS
;  P1  h = xn*(1+scale)+shift (sparse diagonal MFMA), K or V of 4 heads and Q of 2 heads for 128 tokens
;  P2  attention, 2 heads x 128 queries: S^T = K Q^T, exp2, O^T += V^T P^T by sparse MFMA on the high halves of the
;      fp32 exponentials (a ones row gives the row sum).  No max is subtracted when the row sums show it is safe;
;      any other wave redoes its tile with the true row maximum.
;  P3  x1 = x + gate*(O Wo), y = x1*(1+scale2), row statistics    P4  silu(LN2-corrected y W1)    P5  x1 + gate2*(h W2)
; Workgroups hand data over with write-through stores, a drain, and flags that carry a per-launch tag (d_debug[0]);
; every wait is bounded.  Workgroup ids are arranged for L2 sharing only; nothing relies on the placement.""".split("\n")
    a.fix()
    out += ['.amdgcn_target "amdgcn-amd-amdhsa--gfx950"', ".text", f".globl {NAME}_kernel", ".p2align 8", f".type {NAME}_kernel,@function", f"{NAME}_kernel:",
            a.text(), "    s_endpgm", "Lcode_end:", '.section .rodata,"a"', ".p2align 6", f".amdhsa_kernel {NAME}_kernel", "  .amdhsa_next_free_vgpr 256",
            "  .amdhsa_next_free_sgpr 102", "  .amdhsa_accum_offset 256", "  .amdhsa_group_segment_fixed_size 0", "  .amdhsa_kernarg_size 88",
            "  .amdhsa_user_sgpr_count 2", "  .amdhsa_user_sgpr_kernarg_segment_ptr 1", "  .amdhsa_system_sgpr_workgroup_id_x 1",
            "  .amdhsa_float_denorm_mode_32 3", ".end_amdhsa_kernel"]
    return "\n".join(out) + "\n"

if __name__ == "__main__":
    import argparse
    p = argparse.ArgumentParser(); p.add_argument("out"); p.add_argument("--diag", action="store_true"); p.add_argument("--opt", default="")
    args = p.parse_args()
    DIAG = args.diag
    for o in args.opt.split(","):
        if o: OPT[o.split("=")[0]] = int(o.split("=")[1]) if "=" in o else 1
    set_nring(OPT.get('nring', 4))
    open(args.out, "w").write(emit(build()))
```

```python
import sys, struct
from asmlib import *

NAME = "adaLN_cond__softmax_full_mha__dense_activation_silu__prompt"
WS_MODG = 0x0
WS_STATS = 0x10000
WS_FXN, WS_FKV, WS_FO, WS_FX1, WS_FH = 0x50000, 0x52000, 0x80000, 0xC0000, 0xE0000
WS_FXC = 0x58000
sLOC = 66
FH_B = 0x8000
WS_XN, WS_K, WS_V, WS_O, WS_X1, WS_Y, WS_H = 0x200000, 0x400000, 0x600000, 0x800000, 0xA00000, 0xC00000, 0xE00000
WS_DIAG = 0x1600000
WS_SIZE = 0x1700000
KA = dict(x=0, wqkv=8, wo=16, w1=32, w2=40, c=48, wmod=56, out=64, dbg=72, ws=80)
SZ = dict(x=2048*512*2, wqkv=512*1536*2, wo=512*512*2, w1=512*1792*2, w2=1792*512*2, c=1024, wmod=512*3072*2, out=2048*512*2, dbg=256, ws=WS_SIZE)
SRD = dict(x=4, wqkv=8, wo=12, w1=16, w2=20, c=24, wmod=28, out=32, dbg=36, ws=40)
S = {k: sr(v, 4) for k, v in SRD.items()}
sW, sTB, sC, sTAG, sI, sX, sR = 44, 45, 46, 47, 48, 49, 69
SPIN = 20000
def f2u(f): return struct.unpack("<I", struct.pack("<f", f))[0]
def hx(f): return hex(f2u(f))
LOG2E = 1.4426950408889634
DIAG = False
OPT = {}
L_WKV, L_WQ = 0, 64*1024
L_DG = 96*1024
L_SA = 112*1024
L_QX = 144*1024
L_WO = 0
L_W1 = 32*1024
L_RED = 88*1024
L_TAB = 156*1024
L_GA, L_G2, L_GB, L_SCR, L_UW, L_G = L_TAB, L_TAB+128, L_TAB+256, L_TAB+512, L_TAB+1024, L_TAB+2048
LDS_SIZE = 160*1024

def stamp(a, i, grp=0):
    if DIAG and (OPT.get("focus", 0) == grp or i == 15): a(f"{'s_memrealtime' if OPT.get('rt') else 's_memtime'} s[{70+2*i}:{71+2*i}]")

_uid = [0]
def poll(a, vm, mask, vaddr, soff, vt, first=0):
    _uid[0] += 1; n = _uid[0]
    a(f"s_mov_b64 exec, {mask}\ns_mov_b32 s50, {SPIN}")
    a("; wait for flags == launch tag (bounded)")
    if first: a(f"s_sleep {first}")
    a(f"Lpoll{n}:\nbuffer_load_dword v{vt}, v{vaddr}, {S['ws']}, {soff} offen sc1\ns_waitcnt vmcnt(0)\nv_cmp_ne_u32 vcc, s{sTAG}, v{vt}\ns_sub_u32 s50, s50, 1\ns_cbranch_vccz Lpolld{n}")
    if OPT.get("psleep", 0): a(f"s_sleep {OPT.get('psleep', 0)}")
    a(f"s_cmp_lg_u32 s50, 0\ns_cbranch_scc1 Lpoll{n}")
    a(f"Lpolld{n}:\ns_mov_b64 exec, -1")
    vm.reset()

def set_flag_rg(a, vm, soff, vt):
    _uid[0] += 1; n = _uid[0]
    vm.wait_all()
    a(f"v_mov_b32 v{vt}, s{sTAG}\ns_mov_b64 exec, 1\ns_cmp_lg_u32 s{sLOC}, 0\ns_cbranch_scc1 Lfl{n}")
    a(f"buffer_store_dword v{vt}, v{vZ}, {S['ws']}, {soff} offen sc1\ns_mov_b64 exec, -1\ns_sleep {OPT.get('fr', 16)}\ns_branch Lfl{n}d\nLfl{n}:")
    vm.op(f"buffer_store_dword v{vt}, v{vZ}, {S['ws']}, {soff} offen")
    a(f"s_mov_b64 exec, -1\nLfl{n}d:")

def LF(): return OPT.get("lf", 3)
def flag_off(a, d, f, base, lf=3):
    a(f"s_lshr_b32 s50, s{f}, {lf}\ns_lshl_b32 s50, s50, 7\ns_and_b32 s{d}, s{f}, {(1 << lf) - 1}\ns_lshl_b32 s{d}, s{d}, 2\ns_add_u32 s{d}, s{d}, s50\ns_add_u32 s{d}, s{d}, {hex(base)}")

RG = lambda: [' sc1', '', ' nt', ' sc0', ' sc0 nt'][OPT.get('fast', 0)]
RY = lambda: [' sc1', '', ' nt', ' sc0', ' sc0 nt'][OPT.get('fasty', OPT.get('fast', 0))]
RF = lambda: '' if (OPT.get('fast') or OPT.get('fastf')) else ' sc1'
RO = lambda: '' if (OPT.get('fast') and OPT.get('m216')) else ' sc1'
RL = lambda: '' if OPT.get('plainld') else ' sc1'
def set_flag(a, vm, soff, vz, vt, fl=' sc1'):
    vm.wait_all()
    a(f"v_mov_b32 v{vt}, s{sTAG}\ns_mov_b64 exec, 1")
    vm.op(f"buffer_store_dword v{vt}, v{vz}, {S['ws']}, {soff} offen{fl}")
    a("s_mov_b64 exec, -1")

def rne_bf16(a, d, s):
    a(f"v_cvt_pk_bf16_f32 v{d}, v{s}, v{s}\nv_lshlrev_b32 v{d}, 16, v{d}")

def tr_addr(a, d, t, perm, rowbytes_log2, swz):
    a(f"v_bfe_u32 v{d}, v0, 2, 2\nv_bfe_u32 v{t}, v0, 5, 1")
    a(f"v_lshl_add_u32 v{d}, v{t}, {2 if perm else 3}, v{d}\nv_lshlrev_b32 v{d}, {rowbytes_log2}, v{d}")
    a(f"v_bfe_u32 v{t}, v0, 4, 1\nv_lshl_add_u32 v{d}, v{t}, 5, v{d}")
    a(f"v_and_b32 v{t}, 3, v0\nv_lshl_add_u32 v{d}, v{t}, 3, v{d}")
    if swz: a(f"v_bfe_u32 v{t}, v0, 3, 1\nv_lshl_add_u32 v{d}, v{t}, 6, v{d}")

def half_tr_addr(a, d, t):
    a(f"v_bfe_u32 v{d}, v0, 2, 1")
    a(f"v_bfe_u32 v{t}, v0, 4, 1\nv_lshl_add_u32 v{d}, v{t}, 1, v{d}")
    a(f"v_bfe_u32 v{t}, v0, 3, 1\nv_lshl_add_u32 v{d}, v{t}, 2, v{d}")
    a(f"v_bfe_u32 v{t}, v0, 5, 1\nv_lshl_add_u32 v{d}, v{t}, 4, v{d}")
    a(f"v_lshlrev_b32 v{d}, 5, v{d}\nv_and_b32 v{t}, 3, v0\nv_lshl_add_u32 v{d}, v{t}, 3, v{d}")

vLANE, vL16, vZ = 1, 2, 3
def poll_addr(a, d, lf=3):
    a(f"v_lshrrev_b32 v{d}, {lf}, v{vLANE}\nv_lshlrev_b32 v{d}, 5, v{d}\nv_and_or_b32 v{d}, v{vLANE}, {(1 << lf) - 1}, v{d}\nv_lshlrev_b32 v{d}, 2, v{d}")

def mod_issue(a, vm, sCol, B=16, T=4):
    a(f"v_bfe_u32 v{T}, v0, 1, 7\nv_and_b32 v{T+1}, 1, v0")
    a(f"v_mul_u32_u24 v{T+2}, 6144, v{T}\nv_lshl_add_u32 v{T+2}, v{T+1}, 4, v{T+2}\nv_lshlrev_b32 v{T+3}, 1, v{T}")
    a(f"s_lshl_b32 s52, s{sCol}, 1")
    for m in range(4):
        vm.op(f"buffer_load_dwordx4 {vr(B+4*m,4)}, v{T+2}, {S['wmod']}, s52 offen", "mod")
        if m < 3: a(f"s_add_u32 s52, s52, {128*6144}")
    for m in range(4): vm.op(f"buffer_load_ushort v{B+16+m}, v{T+3}, {S['c']}, 0 offen offset:{256*m}", "mod")

def mod_partial(a, vm, B=16):
    vm.wait("mod")
    C, F, T, A = B+16, B+24, B+20, B+32
    for m in range(4): a(f"v_lshlrev_b32 v{C+m}, 16, v{C+m}")
    for m in range(4): a(f"v_mul_f32 v{T+m}, {hx(-LOG2E)}, v{C+m}")
    for m in range(4): a(f"v_exp_f32 v{T+m}, v{T+m}")
    for m in range(4): a(f"v_add_f32 v{T+m}, 1.0, v{T+m}")
    for m in range(4): a(f"v_rcp_f32 v{T+m}, v{T+m}")
    for m in range(4): a(f"v_mul_f32 v{C+m}, v{C+m}, v{T+m}")
    for m in range(4): a(f"v_cvt_pk_bf16_f32 v{C+m}, v{C+m}, v{C+m}")
    for m in range(4): a(f"v_lshlrev_b32 v{C+m}, 16, v{C+m}")
    for m in range(4):
        for r in range(4):
            a(f"v_lshlrev_b32 v{F+2*r}, 16, v{B+4*m+r}\nv_and_b32 v{F+2*r+1}, 0xffff0000, v{B+4*m+r}")
        for j in range(8):
            a(f"v_mul_f32 v{A+j}, v{F+j}, v{C}" if m == 0 else f"v_fmac_f32 v{A+j}, v{F+j}, v{C+m}")
    for j in range(4): a(f"v_permlane32_swap_b32 v{A+j}, v{A+4+j}")
    for j in range(4): a(f"v_add_f32 v{A+j}, v{A+j}, v{A+4+j}")
    for j in range(2): a(f"v_permlane16_swap_b32 v{A+j}, v{A+2+j}")
    for j in range(2): a(f"v_add_f32 v{A+j}, v{A+j}, v{A+2+j}")
    for r in (8, 4, 2):
        for j in range(2): a(f"v_add_f32_dpp v{A+j}, v{A+j}, v{A+j} row_ror:{r} row_mask:0xf bank_mask:0xf")
    a("v_bfe_u32 v8, v0, 6, 2\nv_lshlrev_b32 v8, 6, v8\nv_and_b32 v9, 1, v0\nv_lshl_add_u32 v8, v9, 5, v8")
    a("v_bfe_u32 v9, v0, 4, 1\nv_lshl_add_u32 v8, v9, 3, v8\nv_bfe_u32 v9, v0, 5, 1\nv_lshl_add_u32 v8, v9, 4, v8")
    a(f"v_add_u32 v8, {L_SCR}, v8")
    a("s_mov_b32 exec_lo, 0x00030003\ns_mov_b32 exec_hi, 0x00030003")
    a(f"ds_write_b64 v8, v[{A}:{A+1}]")
    a("s_mov_b64 exec, -1")

def mod_final(a, vm, sCol):
    a("s_mov_b64 exec, 0xff")
    a(f"v_lshlrev_b32 v8, 3, v{vLANE}\nv_add_u32 v9, {L_SCR}, v8")
    for w in range(4): a(f"ds_read_b64 {vr(240+2*w,2)}, v9 offset:{64*w}")
    a(f"s_lshr_b32 s52, s{sCol}, 9\ns_cmp_eq_u32 s52, 1\ns_cselect_b32 s53, 1.0, 0\ns_cmp_eq_u32 s52, 4\ns_cselect_b32 s53, 1.0, s53")
    a(f"s_lshl_b32 s52, s{sCol}, 2")
    a("s_waitcnt lgkmcnt(0)")
    for j in range(2): a(f"v_add_f32 v{240+j}, v{240+j}, v{242+j}\nv_add_f32 v{244+j}, v{244+j}, v{246+j}")
    for j in range(2): a(f"v_add_f32 v{240+j}, v{240+j}, v{244+j}")
    a("v_cvt_pk_bf16_f32 v242, v240, v241\nv_lshlrev_b32 v240, 16, v242\nv_and_b32 v241, 0xffff0000, v242")
    a("v_add_f32 v240, s53, v240\nv_add_f32 v241, s53, v241")
    a(f"v_cvt_pk_bf16_f32 v240, v240, v241\nv_mov_b32 v241, s{sTAG}")
    vm.op(f"buffer_store_dwordx2 v[240:241], v8, {S['ws']}, s52 offen sc1")
    a("s_mov_b64 exec, -1")

def gran_poll(a, vm, loads, regs, first=0):
    _uid[0] += 1; n = _uid[0]
    if first: a(f"s_sleep {first}")
    a(f"s_mov_b32 s50, {SPIN}\nLgp{n}:")
    for t in loads: a(t)
    a("s_waitcnt vmcnt(0)")
    first = True
    for r in regs:
        for o in (1, 3):
            if first: a(f"v_xor_b32 v15, s{sTAG}, v{r+o}"); first = False
            else: a(f"v_xor_b32 v14, s{sTAG}, v{r+o}\nv_or_b32 v15, v15, v14")
    a("v_cmp_ne_u32 vcc, 0, v15\ns_sub_u32 s50, s50, 1")
    a(f"s_cbranch_vccz Lgpd{n}\ns_sleep {OPT.get('gsleep', 1)}\ns_cmp_lg_u32 s50, 0\ns_cbranch_scc1 Lgp{n}\nLgpd{n}:")
    vm.reset()

def tag_get(a):
    _uid[0] += 1; n = _uid[0]
    a(f"v_mov_b32 v8, {L_SCR+260}\ns_mov_b32 s50, {SPIN*20}\nLtg{n}:\nds_read_b32 v9, v8\ns_sub_u32 s50, s50, 1\ns_waitcnt lgkmcnt(0)\nv_readfirstlane_b32 s{sTAG}, v9")
    a(f"s_cmp_lg_u32 s{sTAG}, 0\ns_cbranch_scc1 Ltgd{n}\ns_cmp_lg_u32 s50, 0\ns_cbranch_scc1 Ltg{n}\nLtgd{n}:")

def tag_now(a, v):
    _uid[0] += 1; n = _uid[0]
    a(f"s_mov_b32 s50, {SPIN}\nLtn{n}:\nv_readfirstlane_b32 s{sTAG}, v{v}\ns_sub_u32 s50, s50, 1")
    a(f"s_cmp_lg_u32 s{sTAG}, 0\ns_cbranch_scc1 Ltnd{n}\ns_cmp_eq_u32 s50, 0\ns_cbranch_scc1 Ltnd{n}")
    a(f"buffer_load_dword v{v}, v{vZ}, {S['dbg']}, 0 offen sc1\ns_waitcnt vmcnt(0)\ns_branch Ltn{n}\nLtnd{n}:")

def read_tag(a):
    a(f"v_mov_b32 v8, {L_SCR+260}\nds_read_b32 v9, v8\ns_waitcnt lgkmcnt(0)\nv_readfirstlane_b32 s{sTAG}, v9")

def mall_touch(a):
    _uid[0] += 1; n = _uid[0]
    a(f"v_lshlrev_b32 v5, 7, v{vLANE}\ns_cmp_eq_u32 s{sW}, 6\ns_cbranch_scc1 Lt6_{n}\ns_cmp_eq_u32 s{sW}, 7\ns_cbranch_scc1 Lt7_{n}")
    a(f"s_mul_i32 s52, s2, {56*128}\ns_cmp_eq_u32 s{sW}, 5\ns_cbranch_scc1 Lt5_{n}")
    a(f"buffer_load_dword v248, v5, {S['w1']}, s52 offen\ns_branch Ltd_{n}")
    a(f"Lt5_{n}:\nbuffer_load_dword v248, v5, {S['w2']}, s52 offen\ns_branch Ltd_{n}")
    a(f"Lt6_{n}:\nv_lshrrev_b32 v6, 5, v{vLANE}\nv_mul_u32_u24 v6, {6144-4096}, v6\nv_add_u32 v5, v5, v6\ns_mul_i32 s52, s2, 12288\ns_add_u32 s52, s52, 2048")
    a(f"buffer_load_dword v248, v5, {S['wmod']}, s52 offen\ns_branch Ltd_{n}")
    a(f"Lt7_{n}:\ns_lshl_b32 s52, s2, 11\ns_mov_b64 exec, 0xffff\nbuffer_load_dword v248, v5, {S['wo']}, s52 offen\ns_mov_b64 exec, -1")
    a(f"Ltd_{n}:")

def stouch(nm, soff, line):
    return f"s_buffer_load_dwordx2 s[0:1], {S[nm]}, s{soff} offset:{128*line+60}"

def mod_join(a, vm, sCol, name, pre=None):
    a(f"v_mov_b32 v8, {L_SCR+256}\nv_mov_b32 v9, 1\ns_waitcnt lgkmcnt(0)\ns_mov_b64 exec, 1\nds_add_rtn_u32 v9, v8, v9\ns_mov_b64 exec, -1\ns_waitcnt lgkmcnt(0)")
    a(f"v_readfirstlane_b32 s52, v9\ns_cmp_lg_u32 s52, 3\ns_cbranch_scc1 {name}")
    if pre: pre()
    mod_final(a, vm, sCol)

NRING = 4
def set_nring(n):
    global NRING
    NRING = n
vSTASH, vMOD, vXR = 180, 208, 208
QF, OA, SB, RING = 16, 32, [96, 112], 128
vV, vWO, vW1, vW1H = 4, 12, 13, 14
sHH, sKQ, sK, sV = 54, 55, 56, 57
def att_setup():
    a = Asm()
    a(f"s_and_b32 s{sHH}, s{sW}, 1\ns_lshr_b32 s{sKQ}, s{sW}, 1")
    a(f"v_and_b32 v{vV}, 15, v{vLANE}\nv_lshlrev_b32 v{vV}, 4, v{vV}\nv_bfe_u32 v5, v{vLANE}, 5, 1\nv_lshl_add_u32 v{vV}, v5, 8, v{vV}")
    a(f"s_lshl_b32 s58, s{sC}, 1\ns_add_u32 s58, s58, s{sHH}")
    a(f"s_lshl_b32 s59, s58, 16")
    a(f"s_lshl_b32 s52, s{sKQ}, 14\ns_add_u32 s52, s52, s59\ns_add_u32 s{sK}, s52, {hex(WS_K)}\ns_add_u32 s{sV}, s52, {hex(WS_V)}")
    a("s_mov_b32 s60, 0x0000ffff\ns_mov_b32 s61, 0x0000ffff")
    a(f"s_lshl_b32 s52, s{sKQ}, 8\ns_lshr_b32 s53, s{sC}, 1\ns_lshl_b32 s53, s53, 11\ns_add_u32 s52, s52, s53\ns_add_u32 s62, s52, {hex(WS_FKV)}")
    a(f"s_and_b32 s65, s{sTB}, {1 if OPT.get('m216', 0) else 3}\ns_lshl_b32 s65, s65, {13 if OPT.get('m216', 0) else 12}")
    a(f"v_lshrrev_b32 v6, 2, v{vLANE}\nv_and_b32 v11, 3, v{vLANE}\nv_lshlrev_b32 v{vWO}, 10, v6\nv_lshl_add_u32 v{vWO}, v11, 4, v{vWO}")
    w1_voffs(a, vW1, vW1H, 6, 11, 15)
    a(f"v_and_b32 v5, 7, v{vLANE}\nv_lshlrev_b32 v5, 2, v5\nv_bfe_u32 v6, v{vLANE}, 3, 1\nv_lshl_add_u32 v5, v6, 7, v5\nv_bfe_u32 v6, v{vLANE}, 4, 1\nv_lshl_add_u32 v5, v6, 10, v5")
    a(f"v_and_b32 v6, 0x1b, v{vLANE}\nv_cmp_eq_u32 vcc, 16, v6\nv_mov_b32 v15, 0x3f803f80\ns_nop 0\nv_cndmask_b32 v15, 0, v15, vcc")
    for r in range(64): a(f"v_mov_b32 v{OA+r}, 0")
    early = [I.text for I in a.L]
    late = [f"v_mov_b32 v{RING+12*sl+4+r}, v15" for sl in range(NRING) for r in range(8)] + [f"v_mov_b32 v{RING+12*NRING}, 0xdddddddd"]
    return early, late

CNT = dict(b5b=3, b6b=4, b7=5, b9=6, b10=7, b11=8, b12=9, uw=10, b5c=11)
ONEWAY = lambda: OPT.get("ow", 1)
def sig(a, name, va, vb, lg=None):
    if not ONEWAY(): a("s_barrier"); return
    a("s_mov_b64 exec, 1")
    t = f"ds_add_u32 v{va}, v{vb} offset:{4*CNT[name]}"
    lg.op(t, "sig") if lg else a(t)
    a("s_mov_b64 exec, -1")
def sig_regs(a, va, vb): a(f"v_mov_b32 v{va}, {L_SCR+256}\nv_mov_b32 v{vb}, 1")
def await_(a, name, va, vt, have=False):
    if not ONEWAY(): a("s_barrier"); return
    _uid[0] += 1; n = _uid[0]
    if have: a(f"v_readfirstlane_b32 s50, v{vt}\ns_cmp_eq_u32 s50, 4\ns_cbranch_scc1 Law{n}d")
    a(f"s_mov_b32 s63, {SPIN*20}\nLaw{n}:\nds_read_b32 v{vt}, v{va} offset:{4*CNT[name]}\ns_sub_u32 s63, s63, 1\ns_waitcnt lgkmcnt(0)\nv_readfirstlane_b32 s50, v{vt}")
    a(f"s_cmp_eq_u32 s50, 4\ns_cbranch_scc1 Law{n}d\ns_sleep {OPT.get('asleep', 1)}\ns_cmp_lg_u32 s63, 0\ns_cbranch_scc1 Law{n}\nLaw{n}d:")

def q_join(a):
    _uid[0] += 1; n = _uid[0]
    a(f"v_mov_b32 v9, {L_SCR+264}\ns_mov_b32 s50, {SPIN*20}\nLqj{n}:\nds_read_b32 v10, v9\ns_sub_u32 s50, s50, 1\ns_waitcnt lgkmcnt(0)\nv_readfirstlane_b32 s52, v10")
    a(f"s_cmp_eq_u32 s52, 4\ns_cbranch_scc1 Lqjd{n}\ns_cmp_lg_u32 s50, 0\ns_cbranch_scc1 Lqj{n}\nLqjd{n}:")

def att_q(a):
    for i in range(4):
        a(f"s_add_u32 s52, s{sKQ}, {i}\ns_and_b32 s52, s52, 3\ns_lshl_b32 s53, s{sHH}, 2\ns_add_u32 s52, s52, s53\ns_lshl_b32 s52, s52, 10\ns_add_u32 s52, s52, {L_QX}")
        a(f"v_add_u32 v9, s52, v{vL16}\nds_read_b128 {vr(QF+4*i,4)}, v9")

KVF = lambda: [' sc1', '', ' sc1 nt'][OPT.get('kvf', 0)]
def att_ld(a, vm, kt):
    sl = kt % NRING
    if kt % 4 == 0: a(f"s_add_u32 s63, s{sK}, s62\ns_add_u32 s64, s{sV}, s62\ns_add_u32 s62, s62, 4096\ns_and_b32 s62, s62, 0x3fff")
    o = 1024*(kt % 4)
    vm.op(f"buffer_load_dwordx4 {vr(RING+12*sl,4)}, v{vL16}, {S['ws']}, s63 offen offset:{o}{KVF()}", ("kv", kt))
    a("s_mov_b64 exec, s[60:61]")
    vm.op(f"buffer_load_dwordx4 {vr(RING+12*sl+4,4)}, v{vV}, {S['ws']}, s64 offen offset:{o}{KVF()}", ("kv", kt))
    vm.op(f"buffer_load_dwordx4 {vr(RING+12*sl+8,4)}, v{vV}, {S['ws']}, s64 offen offset:{o+512}{KVF()}", ("kv", kt))
    a("s_mov_b64 exec, -1")

def att_first(a, vm, first):
    stamp(a, 4)
    poll(a, vm, "0xffffffff", 5, "s62", 6, first)
    stamp(a, 5)
    a("s_mov_b32 s62, s65")
    for kt in range(NRING-1): att_ld(a, vm, kt)

def attention(a, vm):
    IDX = RING + 12*NRING
    assert IDX < vSTASH
    CP = lambda d: f"s_and_b32 s{d}, s{sI}, 15" if OPT.get('mix', 1) else f"s_mov_b32 s{d}, s{sC}"
    TP = lambda d: f"s_lshl_b32 s{d}, s{sX}, 1\ns_lshr_b32 s50, s{sI}, 4\ns_add_u32 s{d}, s{d}, s50" if OPT.get('mix', 1) else f"s_mov_b32 s{d}, s{sTB}"
    def kp_addr(d):
        return [f"s_lshl_b32 s65, s{sR}, 1", f"s_add_u32 s65, s65, s{sW}", f"s_add_u32 s65, s65, {d}", "s_and_b32 s65, s65, 15", f"s_mul_i32 s65, s65, {32*3584}",
                CP(52), "s_mul_i32 s52, s52, 224", "s_add_u32 s65, s65, s52", f"s_mul_i32 s66, s{sW}, 7168", f"s_add_u32 s66, s66, {L_W1+7168*d}"]
    wo = [[f"s_add_u32 m0, s66, {L_WO+1024*j}", f"s_add_u32 s52, s65, {16384*j}", f"buffer_load_dwordx4 v{vWO}, {S['wo']}, s52 offen lds"] for j in range(4)]
    wo[0] = [f"s_add_u32 s65, s{sW}, s{sR}", "s_and_b32 s65, s65, 7", "s_lshl_b32 s65, s65, 16", CP(52), "s_lshl_b32 s52, s52, 6", "s_add_u32 s65, s65, s52", f"s_lshl_b32 s66, s{sW}, 12"] + wo[0]
    k1 = w1_kp_dma(65, 66, vW1, vW1H); k1[0] = kp_addr(0) + k1[0]
    k2 = []
    for j, p in enumerate(w1_kp_dma(65, 66, vW1, vW1H)):
        k2.append([p[1], p[2].replace("buffer_load_dwordx4 ", f"buffer_load_dwordx4 {vr(vSTASH+4*j,4)}, ").replace(" lds", "")])
    k2[0] = kp_addr(8)[:8] + k2[0]
    p0 = OPT.get("pre0", 5)
    pre = {4*p0+1: wo[:2], 4*p0+5: wo[2:], 4*p0+9: k1[:3], 4*p0+13: k1[3:], 4*p0+17: k2[:3], 4*p0+21: k2[3:]}
    ld = lambda kt: att_ld(a, vm, kt)
    for kt in range(NRING-1): vm.q += [('kv', kt)]*3
    def QK(dst, sl, q): return f"v_mfma_f32_32x32x16_bf16 {vr(dst,16)}, {vr(RING+12*sl,4)}, {vr(QF+4*q,4)}, 0"
    def SM(q, sl, half, s): return f"v_smfmac_f32_32x32x32_bf16 {vr(OA+16*q,16)}, {vr(RING+12*sl+4+4*half,4)}, {vr(s+8*half,8)}, v{IDX}"
    a("s_setprio 1")
    a(f"s_and_b32 s53, s{sW}, 3\ns_lshl_b32 s52, s2, 2\ns_add_u32 s53, s53, s52\ns_mul_i32 s53, s53, {9*128}")
    ST = [stouch("w1", 53, n) for n in range(9)] + [stouch("wmod", 53, n) for n in range(16)] + [stouch("w2", 53, n) for n in range(14)]
    a("s_waitcnt lgkmcnt(0)")
    vm.wait(("kv", 0))
    a(QK(SB[0], 0, 0))
    a("s_nop 7\ns_nop 3")
    TAIL = OPT.get("tail", 1)
    qof = lambda t: (t + 1) % 4 if (TAIL and t >= 60) else t % 4
    def red_write(i):
        return [f"s_add_u32 s52, s{sKQ}, {i}\ns_and_b32 s52, s52, 3\ns_mul_i32 s52, s52, 3\ns_add_u32 s52, s52, s63\ns_add_u32 s52, s52, {i-1}\ns_mul_i32 s52, s52, 2304\ns_add_u32 s52, s52, {L_RED}",
                f"v_add_u32 v6, s52, v{vL16}\nv_add_u32 v7, s52, v15",
                f"ds_write_b128 v6, {vr(OA+16*i,4)}", f"ds_write_b128 v6, {vr(OA+16*i+4,4)} offset:1024", f"ds_write_b32 v7, v{OA+16*i+8} offset:2048"]
    for t in range(64):
        kt, q = t // 4, t % 4
        cur, prv = SB[t & 1], SB[(t + 1) & 1]
        E = [f"v_exp_f32 v{cur+r}, v{cur+r}" for r in range(16)]
        if t == OPT.get("prio", 53):
            a(f"s_cmp_ge_u32 s{sW}, 4\ns_cbranch_scc1 Latt_prio\ns_setprio 0\nLatt_prio:")
        a(E[0]); a(E[1])
        if t > 0: a(SM(qof(t-1), ((t-1)//4) % NRING, 1, prv))
        if t == 59: a(f"s_mul_i32 s63, s{sHH}, 12\nv_lshlrev_b32 v15, 2, v{vLANE}")
        if q == 0 and kt + NRING - 1 < 16: ld(kt + NRING - 1)
        if t in pre and not OPT.get("nopre"):
            for p in pre[t]:
                for x in p[:-1]: a(x)
                vm.op(p[-1], "pre")
        if t == OPT.get("cpf", 99):
            a(f"s_cmp_lg_u32 s{sW}, 7\ns_cbranch_scc1 Latt_nocp\ns_getpc_b64 s[50:51]\nLpc2:\ns_and_b32 s52, s{sI}, 3\ns_lshl_b32 s52, s52, 13\nv_lshlrev_b32 v5, 7, v{vLANE}\nv_add_u32 v5, s52, v5")
            a("v_min_u32 v5, Lcode_end-Lpc2-4, v5\nglobal_load_dword v249, v5, s[50:51]\nLatt_nocp:")
        if t == 5:
            a(f"s_cmp_lg_u32 s{sW}, 0\ns_cbranch_scc1 Latt_noxc"); a(TP(52)); a(f"s_lshl_b32 s52, s52, 5"); a(CP(50))
            a(f"s_add_u32 s52, s52, s50\ns_lshl_b32 s52, s52, 2\ns_add_u32 s52, s52, {hex(WS_FXC)}\ns_getreg_b32 s50, hwreg(HW_REG_XCC_ID)\ns_and_b32 s50, s50, 15\ns_lshl_b32 s50, s50, 1\ns_add_u32 s50, s50, s{sTAG}")
            if OPT.get("xcfake"): a(f"s_and_b32 s51, s2, {OPT['xcfake']}\ns_add_u32 s50, s50, s51")
            a(f"v_mov_b32 v5, s50\ns_mov_b64 exec, 1\nbuffer_store_dword v5, v{vZ}, {S['ws']}, s52 offen sc1\ns_mov_b64 exec, -1\nLatt_noxc:")
        if t == 57:
            a(f"s_cmp_ge_u32 s{sW}, 4\ns_cbranch_scc1 Latt_nox")
            a(f"v_bfe_u32 v5, v{vLANE}, 5, 1\nv_and_b32 v6, 31, v{vLANE}\nv_lshlrev_b32 v6, 10, v6\nv_lshl_add_u32 v6, v5, 3, v6")
            a(TP(52)); a(f"s_lshl_b32 s52, s52, 2\ns_add_u32 s67, s52, s{sW}\ns_lshl_b32 s52, s67, 15"); a(CP(50)); a("s_lshl_b32 s50, s50, 6\ns_add_u32 s52, s52, s50")
            for qq in range(4): a(f"buffer_load_dwordx2 {vr(vXR+2*qq,2)}, v6, {S['x']}, s52 offen offset:{16*qq}")
            a(f"s_lshr_b32 s52, s67, 2\ns_lshl_b32 s52, s52, 7\ns_add_u32 s52, s52, {hex(WS_FXC)}\nv_and_b32 v5, 15, v{vLANE}\nv_lshlrev_b32 v5, 2, v5")
            a(f"buffer_load_dword v{vXR+8}, v5, {S['ws']}, s52 offen sc1")
            a("Latt_nox:")
        if t == 50:
            a(f"s_cmp_lt_u32 s{sW}, 4\ns_cbranch_scc1 Latt_nomod\ns_sub_u32 s52, s{sI}, 8\ns_cmp_ge_u32 s52, 16\ns_cbranch_scc1 Latt_nomod")
            a(f"s_lshl_b32 s66, s{sX}, 2\ns_lshr_b32 s52, s52, 2\ns_add_u32 s66, s66, s52\ns_lshl_b32 s66, s66, 6")
            a(f"s_and_b32 s52, s{sI}, 3\ns_lshl_b32 s52, s52, 4\ns_add_u32 s66, s66, s52\ns_add_u32 s66, s66, 1024")
            mod_issue(a, Track(a, "vmcnt", 63), 66, vMOD, T=244)
            a("Latt_nomod:")
        if t == OPT.get("w2t", 62) and not OPT.get("nopre"):
            if OPT.get("nw", 1):
                a(f"s_mul_i32 s52, s{sI}, 7\ns_min_u32 s50, s{sW}, 6\ns_add_u32 s52, s52, s50\ns_lshl_b32 s52, s52, 13\nv_lshlrev_b32 v5, 7, v{vLANE}")
                vm.op(f"buffer_load_dword v248, v5, {S['w2']}, s52 offen", "w2t")
            else:
                a(f"s_cmp_eq_u32 s{sW}, 7\ns_cbranch_scc1 Latt_nopf\ns_mul_i32 s52, s{sI}, 7\ns_add_u32 s52, s52, s{sW}\ns_lshl_b32 s52, s52, 13\nv_lshlrev_b32 v5, 7, v{vLANE}")
                a(f"buffer_load_dword v248, v5, {S['w2']}, s52 offen")
                a("Latt_nopf:")
        if OPT.get("st", 7) & 4 and t % 3 != 2 and t - t//3 < 39:
            j = t - t//3
            if j == 9: a(f"s_lshl_b32 s53, s2, 1\ns_bfe_u32 s52, s{sW}, 0x10001\ns_add_u32 s53, s53, s52\ns_mul_i32 s53, s53, 6144\ns_lshl_b32 s52, s{sHH}, 11\ns_add_u32 s53, s53, s52\ns_add_u32 s53, s53, 2048")
            if j == 25: a(f"s_and_b32 s53, s{sW}, 3\ns_lshl_b32 s52, s2, 2\ns_add_u32 s53, s53, s52\ns_mul_i32 s53, s53, {14*128}")
            a(ST[j])
        sh = OPT.get("vb", 1)
        for r in range(2, 4+sh): a(E[r])
        if t < 63:
            if q == 3: vm.wait(("kv", kt + 1))
            a(QK(prv, ((t+1)//4) % NRING, qof(t+1)))
        for r in range(4+sh, 10+sh): a(E[r])
        a(SM(qof(t), kt % NRING, 0, cur))
        W = red_write(t - 60) if (TAIL and t >= 61) else []
        for r in range(10+sh, 16):
            a(E[r])
            if W: a(W.pop(0))
        for x in W: a(x)
        if t % 4 == 3 and t < 60: stamp(a, t//4, 5)
    a("s_nop 1")
    a(SM(qof(63), 15 % NRING, 1, SB[1]))
    a("s_setprio 0")
    stamp(a, 6); stamp(a, 0, 8)
    if not TAIL:
        for i in range(1, 4):
            for x in red_write(i): a(x)
    a(f"s_mul_i32 s52, s{sKQ}, 3\ns_add_u32 s52, s52, s63\ns_mul_i32 s52, s52, 2304\ns_add_u32 s52, s52, {L_RED}")
    a(f"v_add_u32 v6, s52, v{vL16}\nv_add_u32 v7, s52, v15")
    a(f"s_lshl_b32 s52, s{sTB}, 2\ns_add_u32 s52, s52, s{sKQ}\ns_lshl_b32 s52, s52, 5\ns_add_u32 s52, s52, s58")
    a(f"s_lshl_b32 s63, s52, 10\ns_add_u32 s63, s63, {hex(WS_O)}")
    flag_off(a, 64, 52, WS_FO, LF())
    a(TP(sTB)); a(CP(sC))
    stamp(a, 1, 8)
    if OPT.get("nw", 1): a("s_waitcnt vmcnt(1)")
    else: vm.wait_all()
    a("s_waitcnt lgkmcnt(0)")
    stamp(a, 2, 8)
    a("s_barrier")
    stamp(a, 3, 8)
    R = 96
    for i in range(3):
        a(f"ds_read_b128 {vr(R+12*i,4)}, v6 offset:{2304*i}\nds_read_b128 {vr(R+12*i+4,4)}, v6 offset:{2304*i+1024}\nds_read_b32 v{R+12*i+8}, v7 offset:{2304*i+2048}")
    a(f"s_mov_b32 s52, {hx(2.0**-60)}\ns_mov_b32 s53, {hx(2.0**60)}\ns_movk_i32 s65, 0x207")
    for i in range(3):
        a(f"s_waitcnt lgkmcnt({6-3*i})")
        for r in range(9): a(f"v_add_f32 v{OA+r}, v{OA+r}, v{R+12*i+r}")
    a(f"v_add_f32 v8, v{OA}, v{OA+1}\nv_add_f32 v9, v{OA+2}, v{OA+3}\nv_add_f32 v10, v{OA+4}, v{OA+5}\nv_add_f32 v11, v{OA+6}, v{OA+7}")
    a("v_add_f32 v8, v8, v9\nv_add_f32 v10, v10, v11\nv_add_f32 v8, v8, v10")
    a(f"v_cmp_nge_f32 vcc, v{OA+8}, s52\nv_cmp_nle_f32 s[54:55], v{OA+8}, s53\nv_cmp_class_f32 s[56:57], v8, s65")
    a(f"v_rcp_f32 v8, v{OA+8}")
    a("s_or_b64 vcc, vcc, s[54:55]\ns_or_b64 vcc, vcc, s[56:57]")
    a("s_cbranch_vccnz Lslow")
    a("Lnorm:")
    for r in range(8): a(f"v_mul_f32 v{OA+r}, v{OA+r}, v8")
    for r in range(4): a(f"v_cvt_pk_bf16_f32 v{8+r}, v{OA+2*r}, v{OA+2*r+1}")
    vm.op(f"buffer_store_dwordx4 v[8:11], v{vL16}, {S['ws']}, s63 offen{RO()}")
    stamp(a, 4, 8)
    a("s_barrier")
    stamp(a, 5, 8)
    a(f"s_mul_i32 s52, s{sW}, 7168\ns_add_u32 s52, s52, {L_W1+8*7168}\nv_add_u32 v5, s52, v{vL16}")
    for j in range(7): a(f"ds_write_b128 v5, {vr(vSTASH+4*j,4)} offset:{1024*j}")
    def slow(b):
        tv = Track(b, "vmcnt", 63)
        b("Lslow:")
        poll_addr(b, 5)
        b(f"s_lshr_b32 s52, s58, 2\ns_lshl_b32 s52, s52, 11\ns_add_u32 s62, s52, {hex(WS_FKV)}")
        poll(b, tv, "-1", 5, "s62", 6)
        b("s_add_u32 s62, s62, 1024")
        poll(b, tv, "-1", 5, "s62", 6)
        b(f"s_waitcnt vmcnt(0)\ns_add_u32 s{sK}, s59, {hex(WS_K)}\ns_mov_b32 s51, 64\nv_mov_b32 v8, 0xff800000")
        b("Ls1:")
        b(f"buffer_load_dwordx4 {vr(RING,4)}, v{vL16}, {S['ws']}, s{sK} offen sc1\ns_add_u32 s{sK}, s{sK}, 1024\ns_waitcnt vmcnt(0)")
        b(QK(SB[0], 0, 0))
        for r in range(0, 16, 2): b(f"v_max3_f32 v8, v{SB[0]+r}, v{SB[0]+r+1}, v8")
        b("s_sub_u32 s51, s51, 1\ns_cmp_lg_u32 s51, 0\ns_cbranch_scc1 Ls1")
        b("v_mov_b32 v9, v8\nv_permlane32_swap_b32 v8, v9\nv_max_f32 v8, v8, v9")
        for r in range(16): b(f"v_sub_f32 v{SB[1]+r}, 0, v8")
        for r in range(16): b(f"v_mov_b32 v{OA+r}, 0")
        b(f"s_add_u32 s{sK}, s59, {hex(WS_K)}\ns_add_u32 s{sV}, s59, {hex(WS_V)}\ns_mov_b32 s51, 64")
        b("Ls2:")
        b(f"buffer_load_dwordx4 {vr(RING,4)}, v{vL16}, {S['ws']}, s{sK} offen sc1\ns_mov_b64 exec, s[60:61]")
        b(f"buffer_load_dwordx4 {vr(RING+4,4)}, v{vV}, {S['ws']}, s{sV} offen sc1\nbuffer_load_dwordx4 {vr(RING+8,4)}, v{vV}, {S['ws']}, s{sV} offen offset:512 sc1")
        b(f"s_mov_b64 exec, -1\ns_add_u32 s{sK}, s{sK}, 1024\ns_add_u32 s{sV}, s{sV}, 1024\ns_waitcnt vmcnt(0)")
        b(f"v_mfma_f32_32x32x16_bf16 {vr(SB[0],16)}, {vr(RING,4)}, {vr(QF,4)}, {vr(SB[1],16)}")
        for r in range(16): b(f"v_exp_f32 v{SB[0]+r}, v{SB[0]+r}")
        b(SM(0, 0, 0, SB[0])); b(SM(0, 0, 1, SB[0]))
        b("s_sub_u32 s51, s51, 1\ns_cmp_lg_u32 s51, 0\ns_cbranch_scc1 Ls2")
        b(f"s_nop 7\ns_nop 7\nv_rcp_f32 v8, v{OA+8}\ns_nop 0\ns_branch Lnorm")
    return slow

def w1_voffs(a, vF, vH, p=7, q=8, r=9):
    a(f"v_lshrrev_b32 v{p}, 2, v{vLANE}\nv_and_b32 v{q}, 3, v{vLANE}\nv_mul_u32_u24 v{vF}, 3584, v{p}\nv_lshl_add_u32 v{vF}, v{q}, 4, v{vF}")
    a(f"v_lshrrev_b32 v{p}, 1, v{vLANE}\nv_and_b32 v{q}, 0x13, v{p}\nv_bfe_u32 v{r}, v{p}, 2, 1\nv_lshl_add_u32 v{q}, v{r}, 3, v{q}\nv_bfe_u32 v{r}, v{p}, 3, 1\nv_lshl_add_u32 v{q}, v{r}, 2, v{q}")
    a(f"v_mul_u32_u24 v{vH}, 3584, v{q}\nv_and_b32 v{q}, 1, v{vLANE}\nv_lshl_add_u32 v{vH}, v{q}, 4, v{vH}")

def w1_kp_dma(sOff, sLds, vF, vH, dOff=0, dLds=0):
    L = []
    for e in range(2):
        for nt in range(3):
            L.append([f"s_add_u32 m0, s{sLds}, {dLds+3072*e+1024*nt}", f"s_add_u32 s52, s{sOff}, {dOff+16*3584*e+64*nt}",
                      f"buffer_load_dwordx4 v{vF}, {S['w1']}, s52 offen lds"])
    L.append([f"s_add_u32 m0, s{sLds}, {dLds+6144}", f"s_add_u32 s52, s{sOff}, {dOff+192}", f"buffer_load_dwordx4 v{vH}, {S['w1']}, s52 offen lds"])
    return L

def w1_reads(kp, e, dst, vF):
    base = 7168*kp + 3072*e
    return [f"ds_read_b64_tr_b16 {vr(dst+4*nt+2*st,2)}, v{vF[base >> 15]} offset:{(base & 0x7fff)+1024*nt+512*st}" for nt in range(3) for st in range(2)]
def w1_half_reads(kp, dst, vH):
    base = 7168*kp + 6144
    return [f"ds_read_b64_tr_b16 {vr(dst+2*st,2)}, v{vH[base >> 15]} offset:{(base & 0x7fff)+256*st}" for st in range(2)]

def h_pj(ks):
    return (ks // 4, ks % 4) if ks < 32 else ((ks - 32) // 3, 4 + (ks - 32) % 3)

def rot_loads(a, vm, base_s, dst, tag, div=1):
    for ks in range(32):
        if ks % 4 == 0: a(f"s_add_u32 s53, s{sR}, {ks//4}\ns_and_b32 s53, s53, 7\ns_lshl_b32 s53, s53, 12\ns_add_u32 s53, s53, s{base_s}")
        yield ks, (f"buffer_load_dwordx4 {vr(dst+4*ks,4)}, v{vL16}, {S['ws']}, s53 offen offset:{1024*(ks%4)}{RL() if tag == 'y' else ' sc1'}", (tag, ks//div))

def lds_init_b0(a):
    late_srds(a)
    a(f"v_mov_b32 v8, {L_SCR+256}\nv_mov_b32 v10, 0\nv_mov_b32 v11, 0\nds_write_b64 v8, v[10:11]\nds_write_b64 v8, v[10:11] offset:8\nds_write_b64 v8, v[10:11] offset:16\nds_write_b64 v8, v[10:11] offset:24\nds_write_b64 v8, v[10:11] offset:32\nds_write_b64 v8, v[10:11] offset:40\ns_waitcnt lgkmcnt(0)\ns_barrier")

EB = lambda bit: OPT.get('eb1', 2) & bit
def tag_to_lds_b1(a, late, nap=0):
    a(f"v_mov_b32 v8, s{sTAG}\nv_mov_b32 v9, {L_SCR+260}\nds_write_b32 v9, v8\ns_waitcnt lgkmcnt(0)")
    stamp(a, 0)
    if late: a("s_barrier")
    if nap: a(f"s_sleep {nap}")
    a("s_branch La_p1")

def p0_ln(a):
    vm = Track(a, "vmcnt", 63)
    a(f"s_and_b32 s52, s{sX}, 1\ns_lshl_b32 s52, s52, 4\ns_add_u32 s52, s52, s{sI}\ns_sub_u32 s52, s52, 8\ns_lshl_b32 s52, s52, 2\ns_add_u32 s52, s52, s{sW}")
    a(f"s_lshr_b32 s53, s{sX}, 1\ns_lshl_b32 s53, s53, 7\ns_add_u32 s56, s52, s53\ns_lshl_b32 s53, s56, 12")
    a(f"v_and_b32 v4, 3, v{vLANE}\nv_lshrrev_b32 v5, 2, v{vLANE}\nv_lshlrev_b32 v6, 10, v4\nv_lshl_add_u32 v6, v5, 4, v6")
    a("s_waitcnt lgkmcnt(0)")
    for m in range(4): vm.op(f"buffer_load_dwordx4 {vr(16+4*m,4)}, v6, {S['x']}, s53 offen offset:{256*m}")
    lds_init_b0(a)
    a("v_lshrrev_b32 v7, 1, v5\nv_lshlrev_b32 v7, 10, v7\nv_and_b32 v8, 1, v5\nv_lshl_add_u32 v7, v8, 9, v7\nv_lshl_add_u32 v7, v4, 4, v7")
    a(f"s_lshr_b32 s53, s56, 3\ns_lshl_b32 s53, s53, 15\ns_and_b32 s54, s56, 7\ns_lshl_b32 s54, s54, 6\ns_add_u32 s53, s53, s54\ns_add_u32 s53, s53, {hex(WS_XN)}")
    flag_off(a, 55, 56, WS_FXN)
    stamp(a, 0, 7)
    vm.wait_all()
    stamp(a, 1, 7)
    vm.op(f"buffer_load_dword v15, v{vZ}, {S['dbg']}, 0 offen sc1")
    F = 32
    for r in range(16): a(f"v_lshlrev_b32 v{F+2*r}, 16, v{16+r}\nv_and_b32 v{F+2*r+1}, 0xffff0000, v{16+r}")
    def red(v, t):
        for r in (4, 8): a(f"v_add_f32_dpp v{v}, v{v}, v{v} row_ror:{r} row_mask:0xf bank_mask:0xf")
        a(f"v_mov_b32 v{t}, v{v}\nv_permlane16_swap_b32 v{v}, v{t}\nv_add_f32 v{v}, v{v}, v{t}")
        a(f"v_mov_b32 v{t}, v{v}\nv_permlane32_swap_b32 v{v}, v{t}\nv_add_f32 v{v}, v{v}, v{t}")
    a(f"v_pk_add_f32 v[64:65], {vr(F,2)}, {vr(F+2,2)}\nv_pk_add_f32 v[66:67], {vr(F+4,2)}, {vr(F+6,2)}")
    for r in range(8, 32, 4): a(f"v_pk_add_f32 v[64:65], v[64:65], {vr(F+r,2)}\nv_pk_add_f32 v[66:67], v[66:67], {vr(F+r+2,2)}")
    a("v_pk_add_f32 v[64:65], v[64:65], v[66:67]\nv_add_f32 v64, v64, v65")
    red(64, 65)
    a(f"v_mul_f32 v64, {hx(-1/512)}, v64")
    for r in range(0, 32, 2): a(f"v_pk_add_f32 {vr(F+r,2)}, {vr(F+r,2)}, v[64:65] op_sel_hi:[1,0]")
    a(f"v_pk_mul_f32 v[66:67], {vr(F,2)}, {vr(F,2)}\nv_pk_mul_f32 v[68:69], {vr(F+2,2)}, {vr(F+2,2)}")
    for r in range(4, 32, 4): a(f"v_pk_fma_f32 v[66:67], {vr(F+r,2)}, {vr(F+r,2)}, v[66:67]\nv_pk_fma_f32 v[68:69], {vr(F+r+2,2)}, {vr(F+r+2,2)}, v[68:69]")
    a("v_pk_add_f32 v[66:67], v[66:67], v[68:69]\nv_add_f32 v66, v66, v67")
    red(66, 67)
    a(f"v_mov_b32 v67, {hx(1e-5)}\nv_fmac_f32 v67, {hx(1/512)}, v66\nv_rsq_f32 v66, v67")
    for r in range(0, 32, 2): a(f"v_pk_mul_f32 {vr(F+r,2)}, {vr(F+r,2)}, v[66:67] op_sel_hi:[1,0]")
    for m in range(4):
        for r in range(4): a(f"v_cvt_pk_bf16_f32 v{16+4*m+r}, v{F+8*m+2*r}, v{F+8*m+2*r+1}")
        vm.op(f"buffer_store_dwordx4 {vr(16+4*m,4)}, v7, {S['ws']}, s53 offen sc1")
        if m < 3: a("s_add_u32 s53, s53, 8192")
    stamp(a, 2, 7)
    if EB(1): a("s_barrier")
    vm.wait_all()
    stamp(a, 3, 7)
    tag_now(a, 15)
    set_flag(a, vm, "s55", vZ, 8)
    stamp(a, 4, 7)
    tag_to_lds_b1(a, not EB(1), OPT.get('nl', 0))

def p0_mod(a):
    vm = Track(a, "vmcnt", 63)
    sCol = 51
    a(f"s_lshl_b32 s{sCol}, s{sX}, 1\ns_lshr_b32 s52, s{sI}, 2\ns_add_u32 s{sCol}, s{sCol}, s52\ns_lshl_b32 s{sCol}, s{sCol}, 6")
    a(f"s_and_b32 s52, s{sI}, 3\ns_lshl_b32 s52, s52, 4\ns_add_u32 s{sCol}, s{sCol}, s52")
    a("s_waitcnt lgkmcnt(0)")
    mod_issue(a, vm, sCol)
    lds_init_b0(a)
    vm.wait("mod")
    stamp(a, 1, 7)
    a(f"buffer_load_dword v15, v{vZ}, {S['dbg']}, 0 offen sc1")
    if EB(4): a("s_barrier")
    mod_partial(a, vm)
    a("s_waitcnt vmcnt(0)")
    tag_now(a, 15)
    mod_join(a, vm, sCol, "La_joined")
    a("La_joined:")
    stamp(a, 4, 7)
    tag_to_lds_b1(a, not EB(4), OPT.get('nm', 0))

def p0_warm(a):
    a(f"s_sub_u32 s52, s{sI}, 24\ns_lshl_b32 s52, s52, 1\ns_add_u32 s52, s52, s{sW}\ns_lshl_b32 s52, s52, 5")
    a(f"v_lshrrev_b32 v4, 1, v{vLANE}\nv_add_u32 v4, s52, v4\nv_mul_u32_u24 v4, 6144, v4\nv_and_b32 v5, 1, v{vLANE}\nv_lshl_add_u32 v4, v5, 7, v4\ns_lshl_b32 s52, s{sX}, 8")
    a(f"s_waitcnt lgkmcnt(0)\ns_cmp_ge_u32 s{sW}, 2\ns_cbranch_scc1 La_nowm")
    a(f"buffer_load_dword v6, v4, {S['wmod']}, s52 offen")
    a("La_nowm:")
    lds_init_b0(a)
    a("s_waitcnt vmcnt(0)")
    stamp(a, 1, 7)
    a(f"buffer_load_dword v15, v{vZ}, {S['dbg']}, 0 offen sc1")
    if EB(2): a("s_barrier")
    a("s_waitcnt vmcnt(0)")
    tag_now(a, 15)
    tag_to_lds_b1(a, not EB(2), OPT.get('nwm', 0))

def wkv_loop(a, name):
    a(f"{name}:")
    a(f"s_and_b32 s55, s55, 31\ns_lshl_b32 s53, s55, 11\ns_add_u32 s52, s55, s57\ns_and_b32 s52, s52, 31\ns_mul_i32 s52, s52, {16*3072}\ns_mov_b32 m0, s53\ns_add_u32 s52, s52, s56")
    a(f"buffer_load_dwordx4 v12, {S['wqkv']}, s52 offen lds\ns_add_u32 m0, s53, 1024\ns_add_u32 s52, s52, {8*3072}\nbuffer_load_dwordx4 v12, {S['wqkv']}, s52 offen lds")
    a(f"s_add_u32 s55, s55, 4\ns_sub_u32 s51, s51, 1\ns_cmp_lg_u32 s51, 0\ns_cbranch_scc1 {name}")

def p0_helper(a):
    vm = Track(a, "vmcnt", 63)
    sH = 67
    a(f"v_mov_b32 v32, 0\nv_mov_b32 v33, 0\nv_mov_b32 v34, 0\nv_mov_b32 v35, 0\ns_lshl_b32 s52, s{sH}, 12\ns_add_u32 s52, s52, {L_DG}\nv_add_u32 v9, s52, v{vL16}")
    for j in range(4): a(f"ds_write_b128 v9, v[32:35] offset:{1024*j}")
    a(f"s_lshl_b32 s52, s2, 2\ns_add_u32 s52, s52, s{sH}\ns_and_b32 s53, s52, 1\ns_lshr_b32 s52, s52, 1\ns_mul_i32 s52, s52, 3072")
    a("s_lshl_b32 s57, s53, 9\ns_add_u32 s57, s57, s52\ns_lshl_b32 s53, s53, 10\ns_add_u32 s52, s52, s53\ns_add_u32 s52, s52, 1024")
    a("s_waitcnt lgkmcnt(0)")
    a(f"s_andn2_b32 s58, s2, {OPT.get('tagm', 4)}\ns_lshl_b32 s58, s58, 3\ns_add_u32 s58, s58, s{sW}\ns_cmp_lg_u32 s58, {OPT.get('tagw', 64)*8+4}\ns_cbranch_scc1 Le_notag")
    a(f"s_or_b32 s54, s54, 1\nv_mov_b32 v6, s54\nv_mov_b32 v7, 0\ns_mov_b64 exec, 1\nbuffer_atomic_cmpswap v[6:7], v{vZ}, {S['dbg']}, 0 offen sc1\ns_mov_b64 exec, -1")
    a("Le_notag:")
    s0 = OPT.get("st0", 9)
    for n in range(min(s0, 4) if s0 != 9 else 1): a(stouch("wqkv", 52, n))
    late_srds(a)
    a("s_barrier")
    if s0 == 9: a("s_waitcnt lgkmcnt(0)")
    for n in range(min(s0, 4) if s0 != 9 else 1, 8): a(stouch("wqkv", 52, n))
    for n in range(4): a(stouch("wqkv", 57, n))
    a(f"v_lshrrev_b32 v4, 3, v{vLANE}\nv_mul_u32_u24 v4, 3072, v4\nv_bfe_u32 v5, v{vLANE}, 4, 1\nv_lshlrev_b32 v5, 2, v5\nv_xor_b32 v5, v5, v{vLANE}\nv_and_b32 v5, 7, v5\nv_lshl_add_u32 v12, v5, 4, v4")
    a(f"s_and_b32 s56, s{sC}, 1\ns_add_u32 s56, s56, 1\ns_lshl_b32 s56, s56, 10\ns_lshr_b32 s52, s{sC}, 1\ns_lshl_b32 s52, s52, 7\ns_add_u32 s56, s56, s52")
    a(f"s_and_b32 s55, s{sTB}, {1 if OPT.get('m216', 0) else 3}\ns_lshl_b32 s55, s55, {4 if OPT.get('m216', 0) else 3}\ns_add_u32 s55, s55, s{sH}\ns_lshl_b32 s57, s{sR}, 2\ns_mov_b32 s51, 8")
    WH_ = OPT.get("whalf", 0)
    if WH_: a(f"s_mov_b32 s55, s{sH}\ns_mov_b32 s51, {WH_}\ns_mov_b32 s59, s56\ns_mov_b32 s60, s57")
    stamp(a, 0, 7)
    a("s_barrier")
    stamp(a, 1, 7)
    wkv_loop(a, "Lh_wl")
    tag_get(a)
    stamp(a, 0); stamp(a, 2, 7)
    a(f"s_cmp_ge_u32 s{sH}, 2\ns_cbranch_scc1 Lh_b2")
    a(f"s_lshl_b32 s52, s{sH}, 11")
    a(f"v_lshrrev_b32 v5, 3, v{vLANE}\ns_lshl_b32 s53, s{sR}, 1\nv_subrev_u32 v5, s53, v5\nv_and_b32 v5, 15, v5\nv_xor_b32 v6, 8, v5")
    gran_poll(a, vm, [f"buffer_load_dwordx4 v[16:19], v{vL16}, {S['ws']}, s52 offen sc1", f"buffer_load_dwordx4 v[20:23], v{vL16}, {S['ws']}, s52 offen offset:1024 sc1"], [16, 20], OPT.get("ng", 0))
    stamp(a, 1)
    a(f"s_cmp_lg_u32 s{sH}, 0\ns_cbranch_scc1 Lh_g1")
    for j, r in enumerate((16, 18, 20, 22)): a(f"v_lshlrev_b32 v{24+2*j}, 16, v{r}\nv_and_b32 v{25+2*j}, 0xffff0000, v{r}")
    a(f"v_and_b32 v7, 1, v{vLANE}\nv_lshlrev_b32 v7, 6, v7\nv_bfe_u32 v9, v{vLANE}, 1, 2\nv_lshl_add_u32 v7, v9, 4, v7\nv_add_u32 v7, {L_SA}, v7")
    a("v_lshl_add_u32 v5, v5, 7, v7\nv_lshl_add_u32 v6, v6, 7, v7")
    a("ds_write_b128 v5, v[24:27]\nds_write_b128 v6, v[28:31]")
    a("s_branch Lh_b2")
    a("Lh_g1:")
    a(f"v_and_b32 v7, 7, v{vLANE}\nv_lshlrev_b32 v7, 6, v7\nv_bfe_u32 v9, v{vLANE}, 2, 1\nv_lshl_add_u32 v7, v9, 9, v7\nv_and_b32 v9, 3, v{vLANE}\nv_lshl_add_u32 v7, v9, 2, v7\nv_add_u32 v7, {L_DG}, v7")
    a("v_lshl_add_u32 v5, v5, 10, v7\nv_lshl_add_u32 v6, v6, 10, v7")
    for j in range(2):
        for e in range(4):
            a(f"ds_write_b16{'_d16_hi' if e & 1 else ''} v{5+j}, v{16+4*j+2*(e>>1)} offset:{16*e + 2*(e & 1)}")
    a("s_branch Lh_b2")

def late_srds(a):
    for nm in ("wo", "w1", "w2", "out"): a(f"s_mov_b32 s{SRD[nm]+2}, {hex(SZ[nm])}\ns_mov_b32 s{SRD[nm]+3}, 0x20000")

def active(a):
    vm = Track(a, "vmcnt", 63); lg = Track(a, "lgkmcnt", 15)
    sT32 = 67
    a("La_p1:")
    if OPT.get("ap", 0) & 2: a("s_setprio 1")
    ACC = [16, 32, 48]; WF = [64, 72]; DH = [88, 104]; DG = [120, 124]; AF = 128
    a(f"s_lshl_b32 s{sT32}, s{sTB}, 2\ns_add_u32 s{sT32}, s{sT32}, s{sW}")
    a(f"v_lshlrev_b32 v5, 2, v{vLANE}\ns_lshl_b32 s52, s{sT32}, 7\ns_add_u32 s52, s52, {hex(WS_FXN)}")
    tr_addr(a, 10, 12, True, 7, True)
    a("v_xor_b32 v12, 64, v10")
    a(f"v_bfe_u32 v11, v0, 5, 1\nv_lshlrev_b32 v11, 6, v11\nv_add_u32 v11, {L_SA}, v11\nv_add_u32 v13, {L_DG}, v{vL16}")
    a(f"v_and_b32 v14, 2, v0\nv_cmp_eq_u32 vcc, 0, v14\nv_mov_b32 v14, 0xeeeeeeee\nv_mov_b32 v15, 0x44444444\nv_cndmask_b32 v14, v14, v15, vcc")
    for r in range(48): a(f"v_mov_b32 v{16+r}, 0")
    poll(a, vm, "0xff", 5, "s52", 6, OPT.get("fn", 0))
    stamp(a, 1)
    a(f"s_lshl_b32 s52, s{sT32}, 15\ns_add_u32 s52, s52, {hex(WS_XN)}")
    a(f"s_lshr_b32 s54, s{sC}, 1\ns_lshl_b32 s54, s54, 18\ns_lshl_b32 s55, s{sT32}, 10\ns_add_u32 s54, s54, s55")
    a(f"s_bitcmp1_b32 s{sC}, 0\ns_cbranch_scc1 La_vwg")
    def rdS(b):
        L = [(f"ds_read_b128 {vr(DH[b&1]+4*q,4)}, v11 offset:{128*b+16*q}", ("s", b)) for q in range(4)]
        return L + [(f"ds_read_b128 {vr(DG[b&1],4)}, v13 offset:{1024*b}", ("s", b))]
    def rdW(ks):
        return [(f"ds_read_b64_tr_b16 {vr(WF[ks&1]+4*g+2*st,2)}, v{(10, 12)[g]} offset:{2048*ks+1024*st}", ("w", ks)) for g in range(2) for st in range(2)]
    def SMF(b): return f"v_smfmac_f32_32x32x32_bf16 {vr(DH[b&1],16)}, {vr(DG[b&1],4)}, {vr(AF+8*b,8)}, v14"
    def CVT(b): return [f"v_cvt_pk_bf16_f32 v{AF+8*b+r}, v{DH[b&1]+2*r}, v{DH[b&1]+2*r+1}" for r in range(8)]
    for isV in (0, 1):
        if isV: a("La_vwg:")
        vm.reset(); lg.reset()
        XL = rot_loads(a, vm, 52, AF, "xn", 2)
        def xn_issue(n):
            for _ in range(n):
                r = next(XL, None)
                if r: vm.op(*r[1])
        def MM(ks):
            f = AF + 4*ks; w = WF[ks & 1]
            if isV: return [f"v_mfma_f32_32x32x16_bf16 {vr(ACC[1+g],16)}, {vr(f,4)}, {vr(w+4*g,4)}, {vr(ACC[1+g],16)}" for g in range(2)]
            return [f"v_mfma_f32_32x32x16_bf16 {vr(ACC[1+g],16)}, {vr(w+4*g,4)}, {vr(f,4)}, {vr(ACC[1+g],16)}" for g in range(2)]
        xn_issue(OPT.get("xn0", 8))
        a("s_barrier")
        xn_issue(10 - OPT.get("xn0", 8))
        for x in rdS(0) + rdS(1): lg.op(*x)
        lg.wait(("s", 0)); vm.wait(("xn", 0))
        a(SMF(0))
        for x in rdW(0): lg.op(*x)
        xn_issue(2)
        a("s_nop 5")
        for x in CVT(0): a(x)
        stamp(a, 2)
        for b in range(16):
            nx = b + 1 < 16
            if nx:
                lg.wait(("s", b+1)); vm.wait(("xn", b+1))
                a(SMF(b+1))
            for x in rdW(2*b+1): lg.op(*x)
            lg.wait(("w", 2*b))
            M = MM(2*b); Rs = rdS(b+2) if b + 2 < 16 else []
            a(M[0]); [lg.op(*x) for x in Rs]
            a(M[1]); xn_issue(3)
            if b == OPT.get("b2b", 6): a("s_barrier")
            lg.wait(("w", 2*b+1))
            M = MM(2*b+1); C = CVT(b+1) if nx else []; Rw = rdW(2*b+2) if nx else []
            a(M[0]); [lg.op(*x) for x in Rw]; [a(x) for x in C[:3]]
            a(M[1]); [a(x) for x in C[3:]]
            if b < 15: stamp(a, b, 6)
        if not isV:
            a(f"s_add_u32 s54, s54, {hex(WS_K)}")
            a(f"v_and_b32 v5, 0x33, v{vLANE}\nv_bfe_u32 v6, v{vLANE}, 2, 1\nv_lshl_add_u32 v5, v6, 3, v5\nv_bfe_u32 v6, v{vLANE}, 3, 1\nv_lshl_add_u32 v5, v6, 2, v5\nv_lshlrev_b32 v5, 4, v5")
            for h in range(4):
                for r in range(4): a(f"v_cvt_pk_bf16_f32 v{112+4*h+r}, v{ACC[1]+8*h+2*r}, v{ACC[1]+8*h+2*r+1}")
                vm.op(f"buffer_store_dwordx4 {vr(112+4*h,4)}, v5, {S['ws']}, s54 offen sc1")
                if h < 3: a("s_add_u32 s54, s54, 65536")
            a("s_branch La_kvd")
        else:
            a(f"s_add_u32 s54, s54, {hex(WS_V)}")
            a(f"v_and_b32 v6, 15, v{vLANE}\nv_lshlrev_b32 v6, 4, v6\nv_bfe_u32 v7, v{vLANE}, 5, 1\nv_lshl_add_u32 v6, v7, 8, v6\nv_bfe_u32 v7, v{vLANE}, 4, 1\nv_lshl_add_u32 v6, v7, 16, v6")
            for h in range(4):
                for r in range(4): a(f"v_cvt_pk_bf16_f32 v{112+4*h+r}, v{ACC[1]+8*h+2*r}, v{ACC[1]+8*h+2*r+1}")
                vm.op(f"buffer_store_dwordx4 {vr(112+4*h,4)}, v6, {S['ws']}, s54 offen offset:{512*(h&1)} sc1")
                if h == 1: a("s_add_u32 s54, s54, 131072")
    a("La_kvd:")
    stamp(a, 3)
    a(f"s_lshl_b32 s57, s{sW}, 10\ns_add_u32 s57, s57, {L_QX}\nv_add_u32 v7, s57, v{vL16}")
    a(f"s_lshl_b32 s58, s{sC}, 6\ns_add_u32 s58, s58, s{sT32}")
    flag_off(a, 51, 58, WS_FKV)
    tr_addr(a, 10, 12, True, 6, False)
    a(f"v_add_u32 v10, {L_WQ}, v10")
    a("s_barrier")
    WQ = [96, 100, 104, 108]
    early, late = att_setup(); fill = early + late; assert len(early) >= 12*5
    def rdQ(ks): return [(f"ds_read_b64_tr_b16 {vr(WQ[ks&3]+2*st,2)}, v10 offset:{1024*ks+512*st}", ("q", ks)) for st in range(2)]
    lg.reset()
    for x in rdQ(0) + rdQ(1) + rdQ(2): lg.op(*x)
    for ks in range(32):
        if ks + 3 < 32: [lg.op(*x) for x in rdQ(ks+3)]
        lg.wait(("q", ks))
        a(f"v_mfma_f32_32x32x16_bf16 {vr(ACC[0],16)}, {vr(WQ[ks&3],4)}, {vr(AF+4*ks,4)}, {vr(ACC[0],16)}")
        if ks == OPT.get("kvflag", 8): set_flag(a, vm, "s51", vZ, 8)
        else:
            for x in fill[:6]: a(x)
            fill = fill[6:]
    for x in fill: a(x)
    a(f"s_mov_b32 s53, {hx(0.25*LOG2E)}")
    for r in range(16): a(f"v_mul_f32 v{ACC[0]+r}, s53, v{ACC[0]+r}")
    for r in range(8): a(f"v_cvt_pk_bf16_f32 v{96+r}, v{ACC[0]+2*r}, v{ACC[0]+2*r+1}")
    a("ds_write_b128 v7, v[96:99]\nds_write_b128 v7, v[100:103] offset:4096")
    if OPT.get("qj", 1):
        a(f"v_mov_b32 v9, {L_SCR+264}\nv_mov_b32 v10, 1\ns_waitcnt lgkmcnt(0)\ns_mov_b64 exec, 1\nds_add_u32 v9, v10\ns_mov_b64 exec, -1")
        att_first(a, vm, OPT.get("fk", 0))
        q_join(a); att_q(a)
    else:
        a("s_waitcnt lgkmcnt(0)\ns_barrier")
        att_q(a)
        att_first(a, vm, OPT.get("fk", 0))

def active2(a):
    vm = Track(a, "vmcnt", 63); lg = Track(a, "lgkmcnt", 15)
    sT32, AF = 67, 128
    if OPT.get("ap", 1) & 1: a("s_setprio 1")
    ACC, WF, XR, GA, G2, XF = 16, [96, 100, 104, 108], vXR, 48, 64, 80
    a(f"s_getreg_b32 s50, hwreg(HW_REG_XCC_ID)\ns_and_b32 s50, s50, 15\ns_lshl_b32 s50, s50, 1\ns_add_u32 s50, s50, s{sTAG}\nv_cmp_ne_u32 vcc, s50, v{vXR+8}\nv_bfe_u32 v9, v{vLANE}, 5, 1\ns_cmp_eq_u64 vcc, 0\ns_cselect_b32 s{sLOC}, 1, 0")
    for q in range(4):
        for h in range(2): a(f"v_lshlrev_b32 v{XF+4*q+2*h}, 16, v{XR+2*q+h}\nv_and_b32 v{XF+4*q+2*h+1}, 0xffff0000, v{XR+2*q+h}")
    a(f"s_lshl_b32 s57, s{sT32}, 15\ns_lshl_b32 s58, s{sC}, 11\ns_add_u32 s57, s57, s58\ns_add_u32 s58, s57, {hex(WS_Y)}\ns_add_u32 s57, s57, {hex(WS_X1)}")
    a(f"s_lshl_b32 s54, s{sC}, 14\ns_lshl_b32 s55, s{sT32}, 8\ns_add_u32 s54, s54, s55\ns_add_u32 s54, s54, {hex(WS_STATS)}")
    a(f"s_lshl_b32 s55, s{sT32}, 4\ns_add_u32 s55, s55, s{sC}")
    flag_off(a, 56, 55, WS_FX1, LF())
    a(f"s_lshl_b32 s55, s{sT32}, {11-LF()}\ns_add_u32 s55, s55, {hex(WS_FX1)}")
    tr_addr(a, 10, 11, True, 6, False)
    for r in range(16): a(f"v_mov_b32 v{ACC+r}, 0")
    poll_addr(a, 5, LF())
    a(f"s_lshl_b32 s52, s{sT32}, {12-LF()}\ns_add_u32 s52, s52, {hex(WS_FO)}")
    stamp(a, 6, 8)
    set_flag(a, vm, "s64", vZ, 8, RO())
    stamp(a, 7); stamp(a, 7, 8)
    if OPT.get("ft", 1):
        a(f"s_cmp_eq_u32 s{sLOC}, 0\ns_cbranch_scc1 La_noft\nv_and_b32 v12, 1, v{vLANE}\nv_lshlrev_b32 v12, 7, v12\ns_mov_b64 exec, 3")
        a(f"buffer_load_dword v13, v12, {S['ws']}, s55 offen sc1\ns_add_u32 s53, s55, {hex(WS_FH-WS_FX1)}\nbuffer_load_dword v13, v12, {S['ws']}, s53 offen sc1\ns_mov_b64 exec, -1\nLa_noft:")
    if OPT.get("b5e", 0):
        a(f"s_sleep {OPT['b5e']}")
        sig_regs(a, 126, 127); sig(a, "b5b", 126, 127)
    poll(a, vm, "0xffffffff", 5, "s52", 11, OPT.get("fo", 25) - OPT.get("b5e", 0))
    stamp(a, 8); stamp(a, 0, 2)
    a(f"s_lshl_b32 s52, s{sT32}, 15\ns_add_u32 s52, s52, {hex(WS_O)}")
    OL = rot_loads(a, vm, 52, AF, "o")
    for _ in range(OPT.get("b5b", 12)): vm.op(*next(OL)[1])
    if not OPT.get("b5e", 0): sig_regs(a, 126, 127); sig(a, "b5b", 126, 127)
    for _ in range(12 - OPT.get("b5b", 12)): vm.op(*next(OL)[1])
    a(f"v_lshlrev_b32 v6, 2, v{vLANE}\nv_lshlrev_b32 v5, 4, v9\nv_add_u32 v5, {L_GA}, v5")
    def rdWo(ks): return [(f"ds_read_b64_tr_b16 {vr(WF[ks&3]+2*st,2)}, v10 offset:{L_WO+1024*ks+512*st}", ("w", ks)) for st in range(2)]
    lg.reset()
    for x in rdWo(0) + rdWo(1) + rdWo(2): lg.op(*x)
    for ks in range(32):
        if ks + 3 < 32:
            for x in rdWo(ks+3): lg.op(*x)
        if ks == 28:
            lg.wait(("w", 31))
            a("s_barrier")
            for q in range(4): a(f"ds_read_b128 {vr(GA+4*q,4)}, v5 offset:{32*q}")
            for q in range(4): a(f"ds_read_b128 {vr(G2+4*q,4)}, v5 offset:{128+32*q}")
        lg.wait(("w", ks)); vm.wait(("o", ks))
        a(f"v_mfma_f32_32x32x16_bf16 {vr(ACC,16)}, {vr(WF[ks&3],4)}, {vr(AF+4*ks,4)}, {vr(ACC,16)}")
        if ks + 12 < 32: vm.op(*next(OL)[1])
        if ks == 19 and OPT.get("early", 0): sig(a, "b5c", 126, 127, lg)
        if ks % 4 == 0 or ks == 31: stamp(a, 1 + (ks+1)//4, 2)
    stamp(a, 10, 2)
    a("s_waitcnt lgkmcnt(4)")
    for r in range(16): a(f"v_fmac_f32 v{XF+r}, v{ACC+r}, v{GA+r}")
    a("s_waitcnt lgkmcnt(0)")
    for r in range(16): a(f"v_mul_f32 v{ACC+r}, v{XF+r}, v{G2+r}")
    for r in range(8): a(f"v_cvt_pk_bf16_f32 v{32+r}, v{ACC+2*r}, v{ACC+2*r+1}")
    vm.op(f"buffer_store_dwordx4 v[32:35], v{vL16}, {S['ws']}, s58 offen{RY()}"); vm.op(f"buffer_store_dwordx4 v[36:39], v{vL16}, {S['ws']}, s58 offen offset:1024{RY()}")
    a(f"v_pk_add_f32 v[48:49], {vr(XF,2)}, {vr(XF+2,2)}\nv_pk_mul_f32 v[50:51], {vr(XF,2)}, {vr(XF,2)}\nv_pk_fma_f32 v[50:51], {vr(XF+2,2)}, {vr(XF+2,2)}, v[50:51]")
    for r in range(4, 16, 2): a(f"v_pk_add_f32 v[48:49], v[48:49], {vr(XF+r,2)}\nv_pk_fma_f32 v[50:51], {vr(XF+r,2)}, {vr(XF+r,2)}, v[50:51]")
    a("v_add_f32 v48, v48, v49\nv_add_f32 v49, v50, v51")
    XD = OPT.get("xd", 1); X1R = 116 if XD else 40
    for r in range(8): a(f"v_cvt_pk_bf16_f32 v{X1R+r}, v{XF+2*r}, v{XF+2*r+1}")
    a("v_permlane32_swap_b32 v48, v49\nv_add_f32 v48, v48, v49")
    vm.op(f"buffer_store_dword v48, v6, {S['ws']}, s54 offen{RY()}")
    def x1_store():
        vm.op(f"buffer_store_dwordx4 {vr(X1R,4)}, v{vL16}, {S['ws']}, s57 offen sc1"); vm.op(f"buffer_store_dwordx4 {vr(X1R+4,4)}, v{vL16}, {S['ws']}, s57 offen offset:1024 sc1")
    if not XD: x1_store()
    stamp(a, 11, 2)
    ACC, WF, WH, ST = 16, [80, 92, 104], [116, 120], 240
    vF, vH = [10, 11, 12, 13], [4, 7, 14, 15]
    tr_addr(a, 10, 11, True, 6, False)
    a(f"v_add_u32 v10, {L_W1}, v10\nv_add_u32 v11, 0x8000, v10\nv_add_u32 v12, 0x10000, v10\nv_add_u32 v13, 0x18000, v10")
    half_tr_addr(a, 4, 7)
    a(f"v_add_u32 v4, {L_W1}, v4\nv_add_u32 v7, 0x8000, v4\nv_add_u32 v14, 0x10000, v4\nv_add_u32 v15, 0x18000, v4")
    a(f"v_and_b32 v8, 16, v0\nv_cmp_eq_u32 vcc, 0, v8\nv_mov_b32 v8, 0xeeeeeeee\nv_mov_b32 v5, 0x44444444\nv_cndmask_b32 v8, v8, v5, vcc")
    for r in range(64): a(f"v_mov_b32 v{ACC+r}, 0")
    poll_addr(a, 5, LF())
    set_flag_rg(a, vm, "s56", 9)
    stamp(a, 9); stamp(a, 12, 2)
    poll(a, vm, "0xffff", 5, "s55", 125, OPT.get("fx", 2))
    stamp(a, 10); stamp(a, 0, 3)
    a(f"s_lshl_b32 s52, s{sT32}, 15\ns_add_u32 s52, s52, {hex(WS_Y)}")
    a(f"s_lshl_b32 s54, s{sT32}, 8\ns_add_u32 s54, s54, {hex(WS_STATS)}")
    YL = rot_loads(a, vm, 52, AF, "y")
    for _ in range(4): vm.op(*next(YL)[1])
    for q in range(16):
        vm.op(f"buffer_load_dword v{ST+q}, v6, {S['ws']}, s54 offen sc1", "st"); a("s_add_u32 s54, s54, 16384")
    for _ in range(8): vm.op(*next(YL)[1])
    if XD: x1_store()
    lg.reset()
    def rdW1(ks): return [(x, ("w", ks)) for x in w1_reads(ks//2, ks & 1, WF[ks % 3], vF)]
    for x in rdW1(0) + rdW1(1): lg.op(*x)
    TT, UB = 128, 184
    side = {}
    side[(6, 0)] = ["v_mov_b32 v125, v124", f"v_bfe_u32 v5, v{vLANE}, 5, 1", "v_lshlrev_b32 v9, 7, v5", "v_permlane32_swap_b32 v124, v125"]
    side[(6, 1)] = [f"v_add_u32 v9, {L_UW}, v9", f"v_mul_f32 v124, {hx(1/512)}, v124", f"v_mul_f32 v125, {hx(1/512)}, v125", "v_fma_f32 v125, -v124, v124, v125"]
    side[(6, 2)] = ["v_max_f32 v125, 0, v125", f"v_add_f32 v125, {hx(1e-5)}, v125", "v_rsq_f32 v125, v125"]
    side[(7, 0)] = [f"v_mul_f32 v5, {hx(-LOG2E)}, v125", "v_mul_f32 v125, v5, v124", "v_sub_f32 v125, 0, v125", "v_mov_b32 v124, v5"]
    side[(7, 1)] = [f"s_lshl_b32 s55, s{sT32}, 4", f"s_add_u32 s55, s55, s{sC}", f"s_lshr_b32 s50, s55, {LF()}", "s_lshl_b32 s50, s50, 7", f"s_and_b32 s56, s55, {(1 << LF()) - 1}"]
    side[(7, 2)] = ["s_lshl_b32 s56, s56, 2", "s_add_u32 s56, s56, s50", f"s_add_u32 s56, s56, {hex(WS_FH)}"]
    side[(12, 0)] = [f"s_mul_i32 s52, s{sT32}, {112*1024}", f"s_mul_i32 s53, s{sC}, 7168", "s_add_u32 s52, s52, s53", f"s_add_u32 s52, s52, {hex(WS_H)}"]
    if ONEWAY(): side[(13, 2)] = ["uwrd"]; side[(15, 1)] = ["uwck"]
    for m in range(7):
        ks = 16 + 2*m
        rw = lambda j: f"ds_read_b128 {vr(TT+4*j,4)}, v9 offset:{256*(j//4)+64+16*(j%4)}"
        ru = lambda j: f"ds_read_b128 {vr(UB+4*(j&1),4)}, v9 offset:{256*(j//4)+16*(j%4)}"
        fm = lambda j: [f"v_fmac_f32 v{TT+4*j+r}, v125, v{UB+4*(j&1)+r}" for r in range(4)]
        side.setdefault((ks+2, 1), []).extend([f"wait{ks+1}"] + fm(2*m))
        side.setdefault((ks+2, 2), []).extend(fm(2*m+1))
        side.setdefault((ks, 2), []).append(rw(2*m))
        side.setdefault((ks+1, 2), []).extend([ru(2*m), rw(2*m+1), ru(2*m+1)])
    for kp in range(16):
        for e in range(2):
            ks = 2*kp + e
            R = rdW1(ks+2) if ks + 2 < 32 else []
            if e == 0: R = [(x, ("h", kp)) for x in w1_half_reads(kp, WH[kp & 1], vH)] + R
            lg.wait(("w", ks)); vm.wait(("y", ks))
            for nt in range(3):
                a(f"v_mfma_f32_32x32x16_bf16 {vr(ACC+16*nt,16)}, {vr(WF[ks%3]+4*nt,4)}, {vr(AF+4*ks,4)}, {vr(ACC+16*nt,16)}")
                [lg.op(*x) for x in R[3*nt:3*nt+3]]
                if nt >= 1:
                    j = 12 + 2*ks + nt - 1
                    if j < 32: vm.op(*next(YL)[1])
                if ks in (4, 5):
                    for q in (((0, 8), (1, 9), (2, 10)), ((3, 11), (4, 12), (5, 13)), ((6, 14), (7, 15)))[nt] if ks == 4 else (((0, 4), (1, 5), (2, 6), (3, 7)), ((0, 2), (1, 3)), ())[nt]:
                        a(f"v_add_f32 v{ST+q[0]}, v{ST+q[0]}, v{ST+q[1]}")
                    if ks == 5 and nt == 2: a(f"v_add_f32 v124, v{ST}, v{ST+1}")
                for x in side.get((ks, nt), []):
                    if x.startswith("ds_"): lg.op(x, ("u", ks))
                    elif x.startswith("wait"): lg.wait(("u", int(x[4:])))
                    elif x == "uwrd": lg.op(f"ds_read_b32 v5, v126 offset:{4*CNT['uw']}", "cnt")
                    elif x == "uwck": lg.wait("cnt"); await_(a, "uw", 126, 5, True)
                    else: a(x)
            if e == 1:
                lg.wait(("h", kp))
                a(f"v_smfmac_f32_32x32x32_bf16 {vr(ACC+48,16)}, {vr(WH[kp&1],4)}, {vr(AF+8*kp,8)}, v8")
                if kp % 2 == 0 or kp == 15: stamp(a, 1 + (kp+1)//2, 3)
                if kp == OPT.get("b6b", 4): sig(a, "b6b", 126, 127, lg)
    sig(a, "b7", 126, 127)
    stamp(a, 11)
    E = 80
    for r in range(8): a(f"v_add_f32 v{ACC+48+r}, v{ACC+48+r}, v{ACC+56+r}")
    for nt in range(4):
        t = TT + 16*nt; acc = ACC + 16*nt; n = 16 if nt < 3 else 8
        for r in range(0, n, 2): a(f"v_pk_fma_f32 {vr(acc+r,2)}, {vr(acc+r,2)}, v[124:125], {vr(t+r,2)} op_sel:[0,0,0] op_sel_hi:[1,0,1]")
        for r in range(n): a(f"v_exp_f32 v{E+r}, v{acc+r}")
        for r in range(0, n, 2): a(f"v_pk_add_f32 {vr(E+r,2)}, {vr(E+r,2)}, 1.0 op_sel_hi:[1,0]")
        for r in range(n): a(f"v_rcp_f32 v{E+r}, v{E+r}")
        for r in range(0, n, 2): a(f"v_pk_mul_f32 {vr(acc+r,2)}, {vr(acc+r,2)}, {vr(E+r,2)}")
        o = 208 + 8*nt
        for r in range(n//2): a(f"v_cvt_pk_bf16_f32 v{o+r}, v{acc+2*r}, v{acc+2*r+1}")
        if nt == 2: a("s_add_u32 s52, s52, 4096")
        vm.op(f"buffer_store_dwordx4 {vr(o,4)}, v{vL16}, {S['ws']}, s52 offen offset:{2048*(nt&1)}{RG()}")
        if nt < 3: vm.op(f"buffer_store_dwordx4 {vr(o+4,4)}, v{vL16}, {S['ws']}, s52 offen offset:{2048*(nt&1)+1024}{RG()}")
        stamp(a, 10 + nt, 3)
        if nt == 1: vm.q = [("ha", 0)]*len(vm.q)
        if nt == OPT.get("fa", 2) and OPT.get("h2", 0):
            vm.wait(("ha", 0))
            a(f"v_mov_b32 v9, s{sTAG}\ns_mov_b64 exec, 1")
            vm.op(f"buffer_store_dword v9, v{vZ}, {S['ws']}, s56 offen sc1")
            a(f"s_mov_b64 exec, -1\ns_add_u32 s56, s56, {FH_B}")
    stamp(a, 14, 3)
    ACC, WF, GB, XR, NR = [16, 32], [48, 56, 88], 64, 80, 32
    sTT, sKH, sT5, sF5 = 54, 55, 57, 58
    a(f"s_and_b32 s{sTT}, s{sW}, 1\ns_lshr_b32 s{sKH}, s{sW}, 1")
    a(f"s_lshr_b32 s52, s{sC}, 3\ns_lshl_b32 s52, s52, 1\ns_lshl_b32 s{sT5}, s{sTB}, 2\ns_add_u32 s{sT5}, s{sT5}, s52\ns_add_u32 s{sT5}, s{sT5}, s{sTT}")
    a(f"s_and_b32 s{sF5}, s{sC}, 7\ns_lshl_b32 s{sF5}, s{sF5}, 1\ns_add_u32 s{sF5}, s{sF5}, s{sKH}")
    tr_addr(a, 10, 11, True, 7, True)
    a(f"s_lshl_b32 s52, s{sKH}, 6\nv_xor_b32 v10, s52, v10\ns_lshl_b32 s52, s{sKH}, 13\nv_add_u32 v10, s52, v10\nv_xor_b32 v11, 64, v10")
    for r in range(32): a(f"v_mov_b32 v{16+r}, 0")
    poll_addr(a, 5, LF())
    a(f"s_lshl_b32 s52, s{sT5}, {11-LF()}\ns_lshl_b32 s53, s{sKH}, {10-LF()}\ns_add_u32 s52, s52, s53\ns_add_u32 s52, s52, {hex(WS_FH)}")
    a(f"s_lshl_b32 s61, s{sT5}, 15\ns_lshl_b32 s59, s{sF5}, 11\ns_add_u32 s61, s61, s59\ns_add_u32 s61, s61, {hex(WS_X1)}")
    H2 = OPT.get("h2", 0)
    a(f"s_add_u32 s62, s52, {FH_B}")
    if H2:
        a(f"s_mov_b64 exec, 0xff")
        vm.op(f"buffer_load_dword v6, v5, {S['ws']}, s52 offen sc1", "fa")
        a("s_mov_b64 exec, -1")
        set_flag_rg(a, vm, "s56", 9)
        stamp(a, 12)
        a(f"s_mov_b64 exec, 0xff\nv_cmp_ne_u32 vcc, s{sTAG}, v6\ns_mov_b64 exec, -1\ns_cbranch_vccz La_haok")
        poll(a, vm, "0xff", 5, "s52", 6, 2)
        a("La_haok:")
        vm.q = [None]
    else:
        if XD:
            a(f"s_lshl_b32 s53, s{sKH}, 3\ns_sub_u32 s53, s{sF5}, s53\ns_ashr_i32 s50, s53, {LF()}\ns_lshl_b32 s50, s50, 7\ns_and_b32 s53, s53, {(1 << LF()) - 1}\ns_lshl_b32 s53, s53, 2\ns_add_u32 s53, s53, s50")
            a(f"s_add_u32 s53, s53, 4096\ns_sub_u32 s52, s52, 4096\nv_add_u32 v5, 4096, v5\nv_writelane_b32 v5, s53, 8")
        set_flag_rg(a, vm, "s56", 9)
        stamp(a, 12)
        poll(a, vm, "0x1ff" if XD else "0xff", 5, "s52", 6, OPT.get("fh", 2))
    stamp(a, 13); stamp(a, 0, 4)
    a(f"s_mul_i32 s52, s{sT5}, {112*1024}\ns_mul_i32 s53, s{sKH}, {56*1024}\ns_add_u32 s52, s52, s53\ns_add_u32 s52, s52, {hex(WS_H)}")
    def ldH(ks):
        p, j = h_pj(ks)
        if j in (0, 4): a(f"s_add_u32 s53, s{sR}, {p}\ns_and_b32 s53, s53, 7\ns_mul_i32 s53, s53, 7168\ns_add_u32 s53, s53, s52" + ("\ns_add_u32 s53, s53, 4096" if j else ""))
        vm.op(f"buffer_load_dwordx4 {vr(AF+4*(ks%NR),4)}, v{vL16}, {S['ws']}, s53 offen offset:{1024*(j%4)}{RL()}", ("h", ks))
    PF = OPT.get('pf5', 12)
    for ks in range(PF):
        ldH(ks)
        if ks == 7: a("s_barrier")
    slot = lambda s: s if s < 9 else s - 9
    def rdW2(ks):
        s, k = ks // 4, ks % 4
        return [(f"ds_read_b64_tr_b16 {vr(WF[ks%3]+4*n+2*st,2)}, v{12+n} offset:{2048*k+1024*st}", ("w", ks)) for n in range(2) for st in range(2)]
    def setslot(s): a(f"v_add_u32 v12, {16384*slot(s)}, v10\nv_add_u32 v13, {16384*slot(s)}, v11")
    lg.reset(); setslot(0)
    for x in rdW2(0) + rdW2(1): lg.op(*x)
    for ks in range(56):
        n = ks + 2
        lg.wait(("w", ks))
        if ks in (11, 19): sig(a, "b9" if ks == 11 else "b10", 126, 127, lg)
        if ONEWAY() and n + 2 in (36, 48): lg.op(f"ds_read_b32 v125, v126 offset:{4*CNT['b11' if n + 2 == 36 else 'b12']}", "cnt")
        if n < 56 and n % 4 == 0:
            if n // 4 in (9, 12):
                lg.wait("cnt"); await_(a, "b11" if n == 36 else "b12", 126, 125, True)
            setslot(n // 4)
        vm.wait(("h", ks))
        a(f"v_mfma_f32_32x32x16_bf16 {vr(ACC[0],16)}, {vr(WF[ks%3],4)}, {vr(AF+4*(ks%NR),4)}, {vr(ACC[0],16)}")
        if n < 56: [lg.op(*x) for x in rdW2(n)]
        a(f"v_mfma_f32_32x32x16_bf16 {vr(ACC[1],16)}, {vr(WF[ks%3]+4,4)}, {vr(AF+4*(ks%NR),4)}, {vr(ACC[1],16)}")
        if H2 and ks == OPT.get("fb", 10):
            a("s_mov_b64 exec, 0xff"); vm.op(f"buffer_load_dword v6, v5, {S['ws']}, s62 offen sc1", "fb"); a("s_mov_b64 exec, -1")
        if H2 and ks + PF == 32:
            vm.wait("fb")
            a(f"s_mov_b64 exec, 0xff\nv_cmp_ne_u32 vcc, s{sTAG}, v6\ns_mov_b64 exec, -1\ns_cbranch_vccz La_hbok")
            q0 = list(vm.q)
            poll(a, vm, "0xff", 5, "s62", 6, 0)
            vm.q = q0
            a("La_hbok:")
        if ks + PF < 56: ldH(ks + PF)
        if ks == 44:
            for q in range(2): vm.op(f"buffer_load_dwordx4 {vr(XR+4*q,4)}, v{vL16}, {S['ws']}, s61 offen offset:{1024*q} sc1", "x1")
        if ks % 4 == 3: stamp(a, 1 + ks//4, 4)
    stamp(a, 14)
    vm.wait("x1")
    a(f"s_xor_b32 s52, s{sW}, 2\ns_lshl_b32 s52, s52, 12\ns_add_u32 s52, s52, {16384*5}\nv_add_u32 v5, s52, v{vL16}")
    a(f"s_lshl_b32 s52, s{sW}, 12\ns_add_u32 s52, s52, {16384*5}\nv_add_u32 v6, s52, v{vL16}")
    a(f"v_bfe_u32 v9, v{vLANE}, 5, 1\nv_lshlrev_b32 v7, 4, v9\ns_lshl_b32 s52, s{sKH}, 7\ns_add_u32 s52, s52, {L_GB}\nv_add_u32 v7, s52, v7")
    for q in range(4): a(f"ds_read_b128 {vr(GB+4*q,4)}, v7 offset:{32*q}")
    XF = 96
    for r in range(8): a(f"v_lshlrev_b32 v{XF+2*r}, 16, v{XR+r}\nv_and_b32 v{XF+2*r+1}, 0xffff0000, v{XR+r}")
    for q in range(4): a(f"ds_write_b128 v5, {vr(ACC[1]+4*q,4)} offset:{1024*q}")
    a("s_waitcnt lgkmcnt(0)\ns_barrier")
    for q in range(4): a(f"ds_read_b128 {vr(ACC[1]+4*q,4)}, v6 offset:{1024*q}")
    a(f"v_and_b32 v7, 31, v{vLANE}\nv_lshlrev_b32 v8, 10, v7\nv_lshl_add_u32 v8, v9, 4, v8")
    a(f"s_lshl_b32 s52, s{sT5}, 15\ns_lshl_b32 s53, s{sF5}, 6\ns_add_u32 s52, s52, s53")
    for q in range(4):
        a(f"s_waitcnt lgkmcnt({3-q})")
        for r in range(4*q, 4*q+4): a(f"v_add_f32 v{ACC[0]+r}, v{ACC[0]+r}, v{ACC[1]+r}")
        for r in range(4*q, 4*q+4): a(f"v_fmac_f32 v{XF+r}, v{ACC[0]+r}, v{GB+r}")
    for r in range(8): a(f"v_cvt_pk_bf16_f32 v{64+r}, v{XF+2*r}, v{XF+2*r+1}")
    ofl = ['', ' sc1', ' nt', ' sc0 sc1', ' sc1 nt'][OPT.get('osc', 0)]
    if OPT.get("otr", 0):
        a(f"s_mul_i32 s53, s{sW}, 2560\ns_add_u32 s53, s53, {16384*6}\nv_mul_u32_u24 v5, 80, v7\nv_lshl_add_u32 v5, v9, 4, v5\nv_add_u32 v5, s53, v5")
        a(f"v_lshrrev_b32 v6, 2, v{vLANE}\nv_and_b32 v7, 3, v{vLANE}\nv_lshlrev_b32 v8, 10, v6\nv_lshl_add_u32 v8, v7, 4, v8\nv_mul_u32_u24 v6, 80, v6\nv_lshl_add_u32 v6, v7, 4, v6\nv_add_u32 v6, s53, v6")
        for p in range(2):
            a(f"v_permlane32_swap_b32 v{64+4*p}, v{64+4*p+2}\nv_permlane32_swap_b32 v{64+4*p+1}, v{64+4*p+3}")
            a(f"ds_write_b128 v5, {vr(64+4*p,4)} offset:{32*p}")
        a("s_add_u32 s53, s52, 16384\ns_waitcnt lgkmcnt(0)")
        for p in range(2): a(f"ds_read_b128 {vr(72+4*p,4)}, v6 offset:{1280*p}")
        for p in range(2):
            a(f"s_waitcnt lgkmcnt({1-p})")
            vm.op(f"buffer_store_dwordx4 {vr(72+4*p,4)}, v8, {S['out']}, s{52+p} offen{ofl}")
    else:
        for p in range(2):
            a(f"v_permlane32_swap_b32 v{64+4*p}, v{64+4*p+2}\nv_permlane32_swap_b32 v{64+4*p+1}, v{64+4*p+3}")
            vm.op(f"buffer_store_dwordx4 {vr(64+4*p,4)}, v8, {S['out']}, s52 offen offset:{32*p}{ofl}")

def wq_loop(a):
    a(f"v_lshrrev_b32 v4, 2, v{vLANE}\nv_mul_u32_u24 v4, 3072, v4\nv_and_b32 v5, 3, v{vLANE}\nv_lshl_add_u32 v4, v5, 4, v4")
    a(f"s_lshl_b32 s55, s{sR}, 2\ns_add_u32 s55, s55, s67\ns_lshl_b32 s53, s67, 10\ns_add_u32 s53, s53, {L_WQ}\ns_lshl_b32 s56, s{sC}, 6\ns_mov_b32 s51, 8\nLh_ql:")
    a(f"s_and_b32 s52, s55, 31\ns_mul_i32 s52, s52, {16*3072}\ns_mov_b32 m0, s53\ns_add_u32 s52, s52, s56")
    a(f"buffer_load_dwordx4 v4, {S['wqkv']}, s52 offen lds")
    a(f"s_add_u32 s55, s55, 4\ns_add_u32 s53, s53, 4096\ns_sub_u32 s51, s51, 1\ns_cmp_lg_u32 s51, 0\ns_cbranch_scc1 Lh_ql")

def helper(a):
    vm = Track(a, "vmcnt", 63)
    sH, sCol = 67, 66
    a("Lh_b2:")
    a("s_waitcnt vmcnt(0) lgkmcnt(0)\ns_barrier")
    if OPT.get("whalf", 0):
        a(f"s_add_u32 s55, s{sH}, {4*OPT['whalf']}\ns_mov_b32 s51, {8-OPT['whalf']}\ns_mov_b32 s56, s59\ns_mov_b32 s57, s60")
        wkv_loop(a, "Lh_wl2")
    if OPT.get("st", 7) & 2:
        a(f"s_lshl_b32 s57, s2, 2\ns_add_u32 s57, s57, s{sH}\ns_lshl_b32 s58, s57, 9\ns_mul_i32 s57, s57, {5*128}\ns_add_u32 s57, s57, {9216*128}")
        for n in range(3): a(stouch("w1", 57, n))
    if OPT.get("whalf", 0): a("s_waitcnt vmcnt(0)")
    a("s_barrier")
    wq_loop(a)
    if OPT.get("st", 7) & 2:
        for n in range(3, 5): a(stouch("w1", 57, n))
        a(stouch("wo", 58, 0))
    a("s_waitcnt vmcnt(0)")
    if OPT.get("touch", 0) == 1: mall_touch(a)
    stamp(a, 2)
    a("s_barrier")
    if OPT.get("st", 7) & 2:
        for n in range(1, 4): a(stouch("wo", 58, n))
    early, late = att_setup()
    for x in early + late: a(x)
    if OPT.get("hearly", 1):
        att_first(a, vm, OPT.get("fkh", 24))
        if OPT.get("qj", 1): q_join(a)
        else: a("s_barrier")
        att_q(a)
    else:
        a("s_barrier")
        att_q(a)
        att_first(a, vm, OPT.get("fk", 0))

def helper2(a):
    vm = Track(a, "vmcnt", 63); lg = Track(a, "lgkmcnt", 15)
    sH = 67
    MF = OPT.get("mf", 0)
    if MF:
        a(f"s_sub_u32 s52, s{sI}, 8\ns_cmp_ge_u32 s52, 16\ns_cbranch_scc1 Lh_nomod1")
        mod_partial(a, vm, vMOD)
        if MF == 2: mod_join(a, vm, 66, "Lh_nomod1")
        a("Lh_nomod1:")
    stamp(a, 6, 8)
    set_flag(a, vm, "s64", vZ, 8, RO())
    stamp(a, 7); stamp(a, 7, 8)
    vF, vH = 13, 14
    a(f"s_sub_u32 s52, s{sI}, 8\ns_cmp_ge_u32 s52, 16\ns_cbranch_scc1 Lh_nomod2")
    if not MF: mod_partial(a, vm, vMOD)
    if MF < 2: mod_join(a, vm, 66, "Lh_nomod2")
    a("Lh_nomod2:")
    def w2_touch():
        a(f"s_mul_i32 s52, s{sI}, 7\ns_lshl_b32 s53, s{sH}, 1\ns_add_u32 s52, s52, s53\ns_lshl_b32 s52, s52, 13\nv_lshlrev_b32 v5, 7, v{vLANE}")
        a(f"buffer_load_dword v248, v5, {S['w2']}, s52 offen\ns_add_u32 s52, s52, 8192\nbuffer_load_dword v248, v5, {S['w2']}, s52 offen")
    if OPT.get("w2s") == 1: w2_touch()
    sig_regs(a, 12, 13)
    await_(a, "b5b", 12, 14)
    a(f"v_lshlrev_b32 v4, 5, v{vLANE}\ns_lshl_b32 s52, s{sH}, 11\ns_add_u32 s52, s52, 4096")
    gran_poll(a, vm, [f"buffer_load_dwordx4 v[16:19], v4, {S['ws']}, s52 offen sc1", f"buffer_load_dwordx4 v[20:23], v4, {S['ws']}, s52 offen offset:16 sc1"], [16, 20], OPT.get("ng2", 0))
    for j, r in enumerate((16, 18, 20, 22)): a(f"v_lshlrev_b32 v{24+2*j}, 16, v{r}\nv_and_b32 v{25+2*j}, 0xffff0000, v{r}")
    a(f"s_cmp_eq_u32 s{sH}, 1\ns_cbranch_scc1 Lh_tabg")
    a(f"s_cmp_eq_u32 s{sH}, 3\ns_cselect_b32 s53, {hx(-1/LOG2E)}, 1.0")
    a(f"s_lshl_b32 s54, s{sC}, 2\ns_and_b32 s55, s{sC}, 7\ns_lshl_b32 s55, s55, 3\ns_lshl_b32 s56, s{sH}, 6\ns_cmp_eq_u32 s{sH}, 3\ns_cselect_b32 s54, s55, s54\ns_cselect_b32 s55, 8, 4")
    a(f"s_cselect_b32 s56, 256, s56\ns_add_u32 s56, s56, {L_TAB}")
    for r in range(8): a(f"v_mul_f32 v{24+r}, s53, v{24+r}")
    a(f"v_subrev_u32 v5, s54, v{vLANE}\nv_cmp_gt_u32 vcc, s55, v5\nv_lshlrev_b32 v5, 5, v5\nv_add_u32 v5, s56, v5")
    a("s_and_saveexec_b64 s[56:57], vcc\nds_write_b128 v5, v[24:27]\nds_write_b128 v5, v[28:31] offset:16\ns_mov_b64 exec, -1")
    a(f"s_cmp_lg_u32 s{sH}, 2\ns_cbranch_scc1 Lh_tabd")
    a("Lh_tabg:")
    a(f"v_lshrrev_b32 v5, 1, v{vLANE}\ns_lshl_b32 s53, s{sR}, 2\nv_subrev_u32 v5, s53, v5\nv_and_b32 v5, 31, v5\nv_lshlrev_b32 v5, 6, v5\nv_and_b32 v6, 1, v{vLANE}\nv_lshl_add_u32 v5, v6, 3, v5")
    a(f"s_and_b32 s53, s{sH}, 1\ns_lshl_b32 s53, s53, 4\ns_add_u32 s53, s53, {L_G}\nv_add_u32 v5, s53, v5")
    a("v_mov_b32 v17, v18\nv_mov_b32 v21, v22\nds_write_b64 v5, v[16:17]\nds_write_b64 v5, v[20:21] offset:32")
    a("Lh_tabd:")
    vW2 = 10
    a(f"v_lshrrev_b32 v{vW2}, 3, v{vLANE}\nv_lshlrev_b32 v{vW2}, 10, v{vW2}\nv_bfe_u32 v5, v{vLANE}, 4, 1\nv_lshlrev_b32 v5, 2, v5\nv_xor_b32 v5, v5, v{vLANE}\nv_and_b32 v5, 7, v5\nv_lshl_add_u32 v{vW2}, v5, 4, v{vW2}")
    a(f"s_lshl_b32 s58, s{sR}, 7\ns_lshl_b32 s59, s{sH}, 11")
    def w2_row(s):
        if s < 8:
            a(f"s_add_u32 s61, s{sR}, {s}\ns_and_b32 s61, s61, 7\ns_mul_i32 s61, s61, 7\ns_add_u32 s61, s61, s{sH}")
        else:
            a(f"s_add_u32 s60, s{sH}, {4*(s-8)}\ns_mul_i32 s61, s60, 43\ns_lshr_b32 s61, s61, 7\ns_mul_i32 s62, s61, 3\ns_sub_u32 s60, s60, s62")
            a(f"s_add_u32 s61, s61, s{sR}\ns_and_b32 s61, s61, 7\ns_mul_i32 s61, s61, 7\ns_add_u32 s61, s61, s60\ns_add_u32 s61, s61, 4")
        a("s_lshl_b32 s61, s61, 14\ns_add_u32 s61, s61, s58")
    NREG = OPT.get("nreg", 10); S0 = 14 - NREG; RB = 48
    def w2_reg(s):
        w2_row(s)
        for j in range(4):
            a(f"s_add_u32 s52, s61, {56*(j>>1)*16384+8192*(j&1)}")
            vm.op(f"buffer_load_dwordx4 {vr(RB+16*(s-S0)+4*j,4)}, v{vW2}, {S['w2']}, s52 offen", ("w2r", s))
    EARLY = list(range(14 - OPT.get("early", 0), 14))
    if EARLY:
        a("s_waitcnt lgkmcnt(0)"); await_(a, "b5c", 12, 14)
        for s_ in EARLY: w2_reg(s_)
    if OPT.get("w2s") == 2:
        a("s_waitcnt lgkmcnt(0)"); w2_touch()
    else: a("s_waitcnt lgkmcnt(0)")
    stamp(a, 8)
    a("s_barrier")
    def w2_stage(s, thr=None):
        sl = s if s < 9 else s - 9
        w2_row(s)
        for kh in range(2):
            for hf in range(2):
                a(f"s_add_u32 m0, s59, {16384*sl+8192*kh+1024*hf}\ns_add_u32 s52, s61, {56*kh*16384+8192*hf}")
                vm.op(f"buffer_load_dwordx4 v{vW2}, {S['w2']}, s52 offen lds", ("w2", s))
        if thr: vm.wait(("w2", s-1))
    W01 = OPT.get('w01', 2)
    if W01 == 0: w2_stage(0); w2_stage(1)
    ACC, GF, WF = 16, 32, 48
    a(f"v_bfe_u32 v9, v{vLANE}, 5, 1\nv_lshlrev_b32 v6, 5, v9\nv_and_b32 v5, 1, v{vLANE}\nv_lshl_add_u32 v6, v5, 4, v6\nv_add_u32 v6, {L_G}, v6")
    for r in range(16): a(f"v_mov_b32 v{ACC+r}, 0")
    GZ = OPT.get("gz", 1)
    for r in range(8): a(f"v_mov_b32 v{GF+r}, 0")
    a("s_mov_b32 s56, 3\ns_mov_b32 s57, 3")
    def rdG(e): a(("s_mov_b64 exec, s[56:57]\n" if GZ else "") + f"ds_read_b128 {vr(GF+4*e,4)}, v6 offset:{64*e}" + ("\ns_mov_b64 exec, -1" if GZ else ""))
    a(f"s_cmp_eq_u32 s{sH}, 3\ns_cbranch_scc1 Lh_uwh")
    tr_addr(a, 4, 5, True, 6, False)
    a(f"s_lshl_b32 s52, s{sH}, 10\ns_add_u32 s52, s52, {L_W1}\nv_add_u32 v4, s52, v4\ns_mov_b32 s51, 16")
    a("Lh_uwl:")
    for e in range(2):
        rdG(e)
        for st in range(2): a(f"ds_read_b64_tr_b16 {vr(WF+4*e+2*st,2)}, v4 offset:{3072*e+512*st}")
    a("v_add_u32 v4, 7168, v4\nv_add_u32 v6, 128, v6\ns_sub_u32 s51, s51, 1")
    for e in range(2):
        a(f"s_waitcnt lgkmcnt({3-3*e})")
        a(f"v_mfma_f32_32x32x16_bf16 {vr(ACC,16)}, {vr(WF+4*e,4)}, {vr(GF+4*e,4)}, {vr(ACC,16)}")
    a("s_cmp_lg_u32 s51, 0\ns_cbranch_scc1 Lh_uwl")
    a("s_branch Lh_uwd")
    a("Lh_uwh:")
    half_tr_addr(a, 4, 5)
    a(f"v_add_u32 v4, {L_W1+6144}, v4\ns_mov_b32 s51, 16")
    a(f"v_and_b32 v8, 16, v0\nv_cmp_eq_u32 vcc, 0, v8\nv_mov_b32 v8, 0xeeeeeeee\nv_mov_b32 v5, 0x44444444\nv_cndmask_b32 v8, v8, v5, vcc")
    a("Lh_uwhl:")
    for e in range(2): rdG(e)
    for st in range(2): a(f"ds_read_b64_tr_b16 {vr(WF+2*st,2)}, v4 offset:{256*st}")
    a("v_add_u32 v4, 7168, v4\nv_add_u32 v6, 128, v6\ns_sub_u32 s51, s51, 1\ns_waitcnt lgkmcnt(0)")
    a(f"v_smfmac_f32_32x32x32_bf16 {vr(ACC,16)}, {vr(WF,4)}, {vr(GF,8)}, v8")
    a("s_cmp_lg_u32 s51, 0\ns_cbranch_scc1 Lh_uwhl")
    a("s_nop 7\ns_nop 3")
    for r in range(8): a(f"v_add_f32 v{ACC+r}, v{ACC+r}, v{ACC+8+r}")
    a("Lh_uwd:")
    a(f"v_and_b32 v5, 1, v{vLANE}\nv_cmp_eq_u32 vcc, 1, v5\nv_mov_b32 v7, {hx(-LOG2E)}\nv_cndmask_b32 v7, 1.0, v7, vcc")
    a(f"v_lshlrev_b32 v6, 7, v9\nv_lshl_add_u32 v6, v5, 6, v6\ns_lshl_b32 s52, s{sH}, 8\ns_add_u32 s52, s52, {L_UW}\nv_add_u32 v6, s52, v6")
    a("s_nop 3")
    for r in range(16): a(f"v_mul_f32 v{ACC+r}, v{ACC+r}, v7")
    a("s_mov_b32 exec_lo, 3\ns_mov_b32 exec_hi, 3")
    for q in range(4): a(f"ds_write_b128 v6, {vr(ACC+4*q,4)} offset:{16*q}")
    a("s_mov_b64 exec, -1\ns_waitcnt lgkmcnt(0)")
    stamp(a, 9)
    if W01 == 2: w2_stage(0); w2_stage(1)
    if ONEWAY(): sig(a, "uw", 12, 13); await_(a, "uw", 12, 14)
    await_(a, "b6b", 12, 14)
    if W01 == 1: w2_stage(0); w2_stage(1)
    if OPT.get("e23", 0) and S0 == 4: w2_stage(2); w2_stage(3)
    if not OPT.get("now2"):
        for s in range(S0, 14):
            if s not in EARLY: w2_reg(s)
    await_(a, "b7", 12, 14)
    a(f"v_add_u32 v4, s59, v{vL16}\nv_add_u32 v5, 0x10000, v4\nv_add_u32 v6, 0x20000, v4")
    def w2_put(s):
        sl = s if s < 9 else s - 9
        for j in range(4): a(f"ds_write_b128 v{4 + sl//4}, {vr(RB+16*(s-S0)+4*j,4)} offset:{16384*(sl%4)+8192*(j>>1)+1024*(j&1)}")
    if not (OPT.get('e23', 0) and S0 == 4):
        for s in range(2, S0): w2_stage(s, True)
    for s in range(S0, 9):
        vm.wait(("w2r", s)); w2_put(s)
        if (s - S0) % 2 == 1: a("s_waitcnt lgkmcnt(4)")
    vm.wait_all()
    a("s_waitcnt lgkmcnt(0)")
    stamp(a, 12)
    a("s_barrier")
    if OPT.get("fast") and OPT.get("wb", 1):
        a(f"s_lshl_b32 s52, s{sC}, 2\ns_add_u32 s52, s52, s{sH}\ns_cmp_lg_u32 s52, 0\ns_cbranch_scc1 Lh_nowb\nbuffer_wbl2 sc1\nLh_nowb:")
    await_(a, "b9", 12, 14)
    for s in (9, 10, 11): w2_put(s)
    if ONEWAY(): a("s_waitcnt lgkmcnt(0)"); sig(a, "b11", 12, 13)
    await_(a, "b10", 12, 14)
    for s in (12, 13): w2_put(s)
    if not ONEWAY(): a("s_waitcnt lgkmcnt(8)\ns_barrier")
    a("s_waitcnt lgkmcnt(0)"); sig(a, "b12", 12, 13)
    a("s_barrier")

def diag_out(a, slot):
    if not DIAG: return
    stamp(a, 15)
    a("s_memrealtime s[52:53]\ns_waitcnt vmcnt(0) lgkmcnt(0)")
    a("s_mov_b64 exec, 1")
    for i in range(16):
        a(f"s_sub_u32 s{70+2*i}, s{70+2*i}, s3\nv_mov_b32 v{16+i}, s{70+2*i}")
    a("v_mov_b32 v32, s69\nv_mov_b32 v33, s52" if False else "v_mov_b32 v32, v250\nv_mov_b32 v33, s52")
    a(f"s_lshl_b32 s54, s2, 10\ns_lshl_b32 s55, s{sW}, 7\ns_add_u32 s54, s54, s55\ns_add_u32 s54, s54, {hex(WS_DIAG)}")
    for q in range(4): a(f"buffer_store_dwordx4 {vr(16+4*q,4)}, v{vZ}, {S['ws']}, s54 offen offset:{16*q}")
    a(f"buffer_store_dwordx2 v[32:33], v{vZ}, {S['ws']}, s54 offen offset:64")
    if OPT.get("dbgstart") and slot == 0:
        a(f"s_cmp_ge_u32 s2, 8\ns_cbranch_scc1 Ldiag{slot}\ns_cmp_lg_u32 s{sW}, 0\ns_cbranch_scc1 Ldiag{slot}\ns_lshl_b32 s54, s2, 2\ns_add_u32 s54, s54, 4")
        a(f"v_subrev_u32 v32, s{sTAG}, v250\nv_add_u32 v32, 1000, v32\nbuffer_store_dword v32, v{vZ}, {S['dbg']}, s54 offen")
        a(f"s_getreg_b32 s55, hwreg(HW_REG_XCC_ID)\ns_and_b32 s55, s55, 15\nv_mov_b32 v32, s55\ns_cmp_ge_u32 s2, 7\ns_cbranch_scc1 Ldiag{slot}\nbuffer_store_dword v32, v{vZ}, {S['dbg']}, s54 offen offset:32")
    if OPT.get("dbgout") and slot == 0:
        a(f"s_lshl_b32 s54, s2, 3\ns_add_u32 s54, s54, s{sW}\ns_cmp_lg_u32 s54, {OPT['dbgout']*8}\ns_cbranch_scc1 Ldiag{slot}")
        for i in range(1, 16): a(f"buffer_store_dword v{16+i}, v{vZ}, {S['dbg']}, 0 offen offset:{4*i}")
    a(f"Ldiag{slot}:")

def build():
    a = Asm()
    a("s_cmp_ge_u32 s2, 256\ns_cbranch_scc1 Lend")
    for nm in ("x", "dbg", "wmod", "c", "wqkv", "ws", "wo", "w1", "w2", "out"):
        a(f"s_load_dwordx2 {sr(SRD[nm],2)}, s[0:1], {KA[nm]}")
    if DIAG: a("s_memtime s[70:71]\ns_memrealtime s[72:73]")
    a(f"v_lshrrev_b32 v4, 6, v0\nv_and_b32 v{vLANE}, 63, v0\nv_mov_b32 v{vZ}, 0\nv_readfirstlane_b32 s{sW}, v4\nv_lshlrev_b32 v{vL16}, 4, v{vLANE}")
    a(f"s_getpc_b64 s[56:57]\nLpc:\ns_sub_u32 s56, s56, Lpc-{NAME}_kernel\ns_subb_u32 s57, s57, 0")
    a(f"s_and_b32 s{sX}, s2, 7\ns_lshr_b32 s{sI}, s2, 3\ns_sub_u32 s67, s{sW}, 4")
    a(f"s_cmp_lt_u32 s{sW}, 6\ns_cbranch_scc1 Le_nopf")
    a(f"s_lshl_b32 s58, s{sI}, 1\ns_add_u32 s58, s58, s67\ns_sub_u32 s58, s58, 2\ns_lshl_b32 s58, s58, 10\ns_min_u32 s58, s58, Lcode_end-{NAME}_kernel-1024\nv_add_u32 v5, s58, v{vL16}")
    a("global_load_dwordx4 v[16:19], v5, s[56:57]")
    a("Le_nopf:")
    if OPT.get('m216', 0):
        a(f"s_lshl_b32 s{sTB}, s{sX}, 1\ns_lshr_b32 s52, s{sI}, 4\ns_add_u32 s{sTB}, s{sTB}, s52\ns_and_b32 s{sR}, s{sI}, 7\ns_and_b32 s{sC}, s{sI}, 15")
    else:
        a(f"s_lshr_b32 s{sTB}, s{sX}, 1\ns_lshl_b32 s{sTB}, s{sTB}, 2\ns_lshr_b32 s52, s{sI}, 3\ns_add_u32 s{sTB}, s{sTB}, s52")
        a(f"s_and_b32 s{sR}, s{sI}, 7\ns_and_b32 s{sC}, s{sX}, 1\ns_lshl_b32 s{sC}, s{sC}, 3\ns_add_u32 s{sC}, s{sC}, s{sR}")
    for nm in ("x", "dbg", "wmod", "c", "wqkv", "ws"): a(f"s_mov_b32 s{SRD[nm]+2}, {hex(SZ[nm])}\ns_mov_b32 s{SRD[nm]+3}, 0x20000")
    a("s_memrealtime s[54:55]")
    if DIAG:
        a("s_waitcnt lgkmcnt(0)\ns_mov_b32 s3, s70\ns_mov_b32 s68, s72\nv_mov_b32 v250, s72")
        if OPT.get("rt"): a("s_mov_b32 s3, s72")
        for i in range(16): a(f"s_mov_b32 s{70+2*i}, s3")
    a(f"s_cmp_ge_u32 s{sW}, 4\ns_cbranch_scc1 Lp0_h\ns_cmp_lt_u32 s{sI}, 8\ns_cbranch_scc1 Lp0_mod\ns_cmp_ge_u32 s{sI}, 24\ns_cbranch_scc1 Lp0_warm")
    p0_ln(a)
    a("Lp0_h:")
    p0_helper(a)
    a("Lp0_mod:")
    p0_mod(a)
    a("Lp0_warm:")
    p0_warm(a)
    active(a)
    a("s_branch Latt")
    helper(a)
    a("Latt:")
    vm = Track(a, "vmcnt", 63)
    slow = attention(a, vm)
    a(f"s_cmp_ge_u32 s{sW}, 4\ns_cbranch_scc1 Lhelper2")
    active2(a)
    if OPT.get("hold"):
        a(f"Lhold:\ns_memrealtime s[52:53]\ns_waitcnt lgkmcnt(0)\ns_sub_u32 s52, s52, s{sTAG}\ns_cmp_lt_u32 s52, {OPT['hold']}\ns_cbranch_scc1 Lhold")
    if DIAG: a("v_mov_b32 v250, s68")
    diag_out(a, 0)
    a("s_endpgm")
    a("Lhelper2:")
    helper2(a)
    diag_out(a, 1)
    a("s_endpgm")
    a("; ==== attention fallback: true row maximum first, then exp(s - max)")
    slow(a)
    a("Lend:")
    return a

def emit(a):
    hdr = open(f"cdna_kernels/{NAME}.s.ref").read().split("\n")
    out = [l for l in hdr if l.startswith(";") and "@launch" not in l and "Override launch" not in l and "grid=ceil" not in l]
    out.append(f"; @launch grid=(256,1,1) block=(512,1,1) lds={LDS_SIZE}")
    out += """; One persistent launch, one 8-wave workgroup per CU (generated by gen/gen30.py).
;  P0  silu(c) @ w_mod (shift/scale part) and LayerNorm(x), spread over the workgroups; W_k/W_v slices -> LDS
;  P1  h = xn*(1+scale)+shift (sparse diagonal MFMA), K or V of 4 heads and Q of 2 heads for 128 tokens
;  P2  attention, 2 heads x 128 queries: S^T = K Q^T, exp2, O^T += V^T P^T by sparse MFMA on the high halves of the
;      fp32 exponentials (a ones row gives the row sum).  No max is subtracted when the row sums show it is safe;
;      any other wave redoes its tile with the true row maximum.
;  P3  x1 = x + gate*(O Wo), y = x1*(1+scale2), row statistics    P4  silu(LN2-corrected y W1)    P5  x1 + gate2*(h W2)
; Workgroups hand data over with write-through stores, a drain, and flags that carry a per-launch tag (d_debug[0]);
; every wait is bounded.  Workgroup ids are arranged for L2 sharing only; nothing relies on the placement.""".split("\n")
    a.fix()
    out += ['.amdgcn_target "amdgcn-amd-amdhsa--gfx950"', ".text", f".globl {NAME}_kernel", ".p2align 8", f".type {NAME}_kernel,@function", f"{NAME}_kernel:",
            a.text(), "    s_endpgm", "Lcode_end:", '.section .rodata,"a"', ".p2align 6", f".amdhsa_kernel {NAME}_kernel", "  .amdhsa_next_free_vgpr 256",
            "  .amdhsa_next_free_sgpr 102", "  .amdhsa_accum_offset 256", "  .amdhsa_group_segment_fixed_size 0", "  .amdhsa_kernarg_size 88",
            "  .amdhsa_user_sgpr_count 2", "  .amdhsa_user_sgpr_kernarg_segment_ptr 1", "  .amdhsa_system_sgpr_workgroup_id_x 1",
            "  .amdhsa_float_denorm_mode_32 3", ".end_amdhsa_kernel"]
    return "\n".join(out) + "\n"

if __name__ == "__main__":
    import argparse
    p = argparse.ArgumentParser(); p.add_argument("out"); p.add_argument("--diag", action="store_true"); p.add_argument("--opt", default="")
    args = p.parse_args()
    DIAG = args.diag
    for o in args.opt.split(","):
        if o: OPT[o.split("=")[0]] = int(o.split("=")[1]) if "=" in o else 1
    set_nring(OPT.get('nring', 4))
    open(args.out, "w").write(emit(build()))
```
